```python
import torch

def _softmax(x, axis=-1):
    return torch.softmax(x, dim=axis)
def _gelu(x):
    return torch.nn.functional.gelu(x, approximate="tanh")
def _silu(x):
    return torch.nn.functional.silu(x)
def _sigmoid(x):
    return torch.sigmoid(x)
def _layernorm(x, axis=-1, eps=1e-5):
    m = x.mean(dim=axis, keepdim=True)
    v = x.var(dim=axis, keepdim=True, unbiased=False)
    return (x - m) / torch.sqrt(v + eps)
def _scatter_add(tgt, idx, src, axis=0):
    return tgt.clone().index_add_(axis, idx, src)
def _segment_sum(src, seg, n):
    out = torch.zeros((n,) + src.shape[1:], dtype=src.dtype)
    return out.index_add_(0, seg, src)
def _pad(x, pw):
    flat = tuple(v for pair in reversed(pw) for v in pair)
    return torch.nn.functional.pad(x, flat)

kernel_name = 'standalone__gqa_block_cached__near_ridge'

def setup_inputs():

    _w = (lambda a: (lambda t: t.to(torch.bfloat16) if t.is_floating_point() else t)(torch.as_tensor(a)))
    B, Sq, D = 32, 144, 640
    Hq, Hkv, Sk, Dh = 32, 32, 512, 128
    assert Hq % Hkv == 0, (Hq, Hkv)
    return {
        "x": _w((lambda *s: torch.randn(*s, dtype=torch.bfloat16) * 0.8)(B, Sq, D)),
        "k_cache": _w((lambda *s: torch.randn(*s, dtype=torch.bfloat16) * 0.8)(B, Hkv, Sk, Dh)),
        "v_cache": _w((lambda *s: torch.randn(*s, dtype=torch.bfloat16) * 0.05)(B, Hkv, Sk, Dh)),
        "wq": _w((lambda *s: torch.randn(*s, dtype=torch.bfloat16) * 0.8)(D, Hq * Dh) * (D ** -0.5)),
        "wo": _w((lambda *s: torch.randn(*s, dtype=torch.bfloat16) * 0.05)(Hq * Dh, D) * ((Hq * Dh) ** -0.5)),
    }

def reference(x, k_cache, v_cache, wq, wo):
    B, Sq, D = x.shape
    Hq, Dh = 32, 128
    Hkv = k_cache.shape[1]
    rep = Hq // Hkv
    q = (lambda x, *d: x.permute(*d))((x @ wq).reshape(B, Sq, Hq, Dh), 0, 2, 1, 3)
    k = (lambda x, n, axis: torch.repeat_interleave(x, n, dim=axis))(k_cache, rep, axis=1)
    v = (lambda x, n, axis: torch.repeat_interleave(x, n, dim=axis))(v_cache, rep, axis=1)
    scores = torch.einsum("bhqd,bhkd->bhqk", q, k) * (Dh ** -0.5)
    p = _softmax(scores, axis=-1)
    o = torch.einsum("bhqk,bhkd->bhqd", p, v)
    return (lambda x, *d: x.permute(*d))(o, 0, 2, 1, 3).reshape(B, Sq, Hq * Dh) @ wo
```

```python
import re

def vr(base, n=1):
    p = "v"
    if base >= 256:
        p = "a"; base -= 256
    return f"{p}{base}" if n == 1 else f"{p}[{base}:{base+n-1}]"
def sr(base, n=1):
    return f"s{base}" if n == 1 else f"s[{base}:{base+n-1}]"
def R(base, n=1):
    return set(range(base, base + n))

class Ins:
    __slots__ = ("text", "kind", "rd", "wr", "tag", "extra", "srcc", "wait_id")
    def __init__(self, text, kind, rd=(), wr=(), tag=None, extra=None, srcc=()):
        self.text = text; self.kind = kind
        self.rd = set(rd); self.wr = set(wr); self.tag = tag; self.extra = extra
        self.srcc = set(srcc); self.wait_id = None

class Prog:
    def __init__(self):
        self.ins = []
    def add(self, i):
        self.ins.append(i); return i
    def raw(self, text, kind="salu"):
        return self.add(Ins(text, kind))
    def label(self, name):
        return self.add(Ins(name + ":", "label"))
    def comment(self, t):
        return self.add(Ins("; " + t, "label"))
    def s(self, text):
        return self.add(Ins(text, "salu"))
    def nop(self, n):
        return self.add(Ins(f"s_nop {n}", "nop", extra=n + 1))
    def v(self, text, wr=(), rd=(), kind="valu"):
        return self.add(Ins(text, kind, rd, wr))
    def vop(self, op, d, *srcs, kind="valu"):
        rd = [x for x in srcs if isinstance(x, int)]
        t = ", ".join(f"v{x}" if isinstance(x, int) else x for x in srcs)
        return self.add(Ins(f"{op} v{d}, {t}", kind, rd, [d]))
    def exp(self, d, a):
        return self.vop("v_exp_f32", d, a, kind="trans")
    def cvtpk(self, d, a, b):
        return self.vop("v_cvt_pk_bf16_f32", d, a, b)
    def swap32(self, a, b):
        return self.add(Ins(f"v_permlane32_swap_b32 v{a}, v{b}", "perm", [a, b], [a, b]))
    def swap16(self, a, b):
        return self.add(Ins(f"v_permlane16_swap_b32 v{a}, v{b}", "perm", [a, b], [a, b]))
    def mfma(self, d, a, b, c):
        ct = "0" if c is None else vr(c, 4)
        rd = R(a, 4) | R(b, 4)
        srcc = set() if c is None else R(c, 4)
        return self.add(Ins(f"v_mfma_f32_16x16x32_bf16 {vr(d,4)}, {vr(a,4)}, {vr(b,4)}, {ct}", "mfma", rd | srcc, R(d, 4), extra=(d, c), srcc=srcc))
    def ds_read128(self, d, addr, off):
        assert 0 <= off < 65536, off
        return self.add(Ins(f"ds_read_b128 {vr(d,4)}, v{addr} offset:{off}", "dsr", [addr], R(d, 4)))
    def ds_read64(self, d, addr, off):
        assert 0 <= off < 65536, off
        return self.add(Ins(f"ds_read_b64 {vr(d,2)}, v{addr} offset:{off}", "dsr", [addr], R(d, 2)))
    def ds_read32(self, d, addr, off):
        assert 0 <= off < 65536, off
        return self.add(Ins(f"ds_read_b32 v{d}, v{addr} offset:{off}", "dsr", [addr], [d]))
    def ds_tr(self, d, addr, off):
        assert 0 <= off < 65536, off
        return self.add(Ins(f"ds_read_b64_tr_b16 {vr(d,2)}, v{addr} offset:{off}", "dsr", [addr], R(d, 2)))
    def ds_write(self, addr, src, n, off):
        assert 0 <= off < 65536, off
        op = {1: "ds_write_b32", 2: "ds_write_b64", 4: "ds_write_b128"}[n]
        return self.add(Ins(f"{op} v{addr}, {vr(src,n)} offset:{off}", "dsw", {addr} | R(src, n), []))
    def dma(self, voff, srd, soff, tag, flags=""):
        return self.add(Ins(f"buffer_load_dwordx4 v{voff}, {sr(srd,4)}, {soff} offen {flags} lds".replace("  ", " "), "vm", [voff], [], tag=tag))
    def load4(self, d, voff, srd, soff, off, tag, flags=""):
        return self.add(Ins(f"buffer_load_dwordx4 {vr(d,4)}, v{voff}, {sr(srd,4)}, {soff} offen offset:{off} {flags}".strip(), "vml", [voff], R(d, 4), tag=tag))
    def store(self, src, n, voff, srd, soff, off, tag="st", flags=""):
        op = {1: "buffer_store_dword", 2: "buffer_store_dwordx2", 4: "buffer_store_dwordx4"}[n]
        return self.add(Ins(f"{op} {vr(src,n)}, v{voff}, {sr(srd,4)}, {soff} offen offset:{off} {flags}".strip(), "vms", {voff} | R(src, n), [], tag=tag, extra=n))
    def wait_vm(self, tag, lgkm0=False):
        return self.add(Ins("", "waitvm", tag=tag, extra=lgkm0))
    def wait_all(self):
        return self.add(Ins("s_waitcnt vmcnt(0) lgkmcnt(0)", "waitall"))
    def wait_lgkm0(self):
        return self.add(Ins("s_waitcnt lgkmcnt(0)", "waitlgkm0"))
    def barrier(self):
        return self.add(Ins("s_barrier", "barrier"))

VALU_KINDS = ("valu", "trans", "perm")

def finalize(segments):
    need_lgkm = {}
    need_vm = {}
    need_nop = {}
    for _pass in range(3):
        lg = []
        vm = []
        hist = []
        t = 0
        changed = False
        for prog, rep in segments:
            for _r in range(rep):
                for ins in prog.ins:
                    k = ins.kind
                    if k == "label":
                        continue
                    key = id(ins)
                    touched = ins.rd | ins.wr
                    n = None
                    for idx in range(len(lg) - 1, -1, -1):
                        if lg[idx] & touched:
                            n = len(lg) - 1 - idx; break
                    if n is not None:
                        n = min(n, 15)
                        if key not in need_lgkm or need_lgkm[key] > n:
                            need_lgkm[key] = n; changed = True
                    n = None
                    for idx in range(len(vm) - 1, -1, -1):
                        if vm[idx][1] & touched:
                            n = len(vm) - 1 - idx; break
                    if k == "waitvm":
                        for idx in range(len(vm) - 1, -1, -1):
                            if vm[idx][0] == ins.tag:
                                n = len(vm) - 1 - idx; break
                    if n is not None:
                        n = min(n, 63)
                        if key not in need_vm or need_vm[key] > n:
                            need_vm[key] = n; changed = True
                    has_wait = False
                    if key in need_lgkm:
                        nn = need_lgkm[key]
                        if len(lg) > nn: lg = lg[len(lg) - nn:] if nn else []
                        has_wait = True
                    if key in need_vm:
                        nn = need_vm[key]
                        if len(vm) > nn: vm = vm[len(vm) - nn:] if nn else []
                        has_wait = True
                    if k == "waitvm":
                        if ins.extra: lg = []
                        t += 1
                        continue
                    if has_wait: t += 1
                    if k == "waitall": lg = []; vm = []
                    if k == "waitlgkm0": lg = []
                    req = 0
                    for (p, tp) in hist:
                        dist = t - tp - 1
                        need = 0
                        pk = p.kind
                        if pk in VALU_KINDS:
                            if k == "mfma" and (p.wr & ins.rd): need = 2
                            if k == "perm" and (p.wr & ins.rd): need = max(need, 2)
                            if k == "dpp" and (p.wr & ins.rd): need = max(need, 2)
                            if k == "rfl" and (p.wr & ins.rd): need = max(need, 1)
                            if pk == "trans" and k in ("valu", "perm", "mfma") and (p.wr & ins.rd): need = max(need, 1)
                        elif pk == "mfma":
                            if k == "mfma":
                                ab = ins.rd - ins.srcc
                                if p.wr & ab: need = 8
                                elif p.wr & ins.srcc:
                                    need = 0 if (ins.extra[1] == p.extra[0]) else 6
                                elif p.wr & ins.wr: need = 0
                            else:
                                if p.wr & (ins.rd | ins.wr): need = 8
                                if k in VALU_KINDS and (p.srcc & ins.wr): need = max(need, 3)
                                if k in ("dsr", "vml") and (p.srcc & ins.wr): need = max(need, 3)
                        elif pk == "vms" and p.extra == 4:
                            if k in VALU_KINDS or k == "mfma":
                                if p.rd & ins.wr: need = 2
                            elif p.rd & ins.wr: need = 1
                        if need > dist: req = max(req, need - dist)
                    if req > need_nop.get(key, 0):
                        need_nop[key] = req; changed = True
                    t += need_nop.get(key, 0)
                    if k == "dsr": lg.append(set(ins.wr))
                    elif k == "dsw": lg.append(set())
                    elif k in ("vm", "vms"): vm.append((ins.tag, set()))
                    elif k == "vml": vm.append((ins.tag, set(ins.wr)))
                    hist.append((ins, t))
                    t += ins.extra if k == "nop" else 1
                    while hist and t - hist[0][1] > 12: hist.pop(0)
        if not changed: break
    out = []
    stats = dict(nops=0, lgkm=0, n=0)
    for prog, rep in segments:
        for ins in prog.ins:
            key = id(ins)
            w = []
            if key in need_vm: w.append(f"vmcnt({need_vm[key]})")
            if ins.kind == "waitvm" and ins.extra: w.append("lgkmcnt(0)")
            elif key in need_lgkm: w.append(f"lgkmcnt({need_lgkm[key]})"); stats["lgkm"] += 1
            if w: out.append("    s_waitcnt " + " ".join(w))
            elif ins.kind == "waitvm": out.append("    s_nop 0")
            if need_nop.get(key, 0):
                out.append(f"    s_nop {need_nop[key]-1}"); stats["nops"] += 1
            if ins.kind == "waitvm": continue
            out.append(ins.text if ins.kind == "label" else "    " + ins.text)
            stats["n"] += 1
    return out, stats

def kd(name, vgpr, sgpr=102, accum=None):
    accum = accum if accum is not None else ((vgpr + 3) // 4) * 4
    return [".p2align 6", f".amdhsa_kernel {name}",
            f"  .amdhsa_next_free_vgpr {vgpr}", f"  .amdhsa_next_free_sgpr {sgpr}", f"  .amdhsa_accum_offset {min(accum,256)}",
            "  .amdhsa_group_segment_fixed_size 0", "  .amdhsa_kernarg_size 64", "  .amdhsa_user_sgpr_count 2",
            "  .amdhsa_user_sgpr_kernarg_segment_ptr 1", "  .amdhsa_system_sgpr_workgroup_id_x 1", ".end_amdhsa_kernel"]
```

```python
from asmlib import *
import math

SLOT = 18432
Q8AREA = 4 * SLOT
STAT = Q8AREA + 4096
LDS_BYTES = 81920
CSCALE = math.log2(math.e) / math.sqrt(128.0)
import struct
def f2u(f): return struct.unpack("<I", struct.pack("<f", f))[0]

S_KARG = 0
S_WG = 2
S_W = 3
SRD_X, SRD_K, SRD_V, SRD_W, SRD_O = 8, 12, 16, 20, 24
S_M0KV = 28
S_M0X = 29
S_M0X8 = 30
S_KVOFF = 31
S_WOFF = 32
S_XOFF = 33
S_OOFF = 34
S_ITER = 35
S_T0, S_T1 = 36, 37
S_B, S_H = 38, 39
S_CS = 40
S_WOFFN = 41
S_XOFFN = 42
S_OOFF8 = 43

V_DK, V_DV, V_DW, V_DX, V_DX8 = 1, 2, 3, 4, 5
V_AK, V_AK8, V_AV0, V_AV1, V_AV80, V_AV81, V_AX, V_AX8, V_LIN, V_P8W, V_OST = 6, 7, 8, 9, 10, 11, 12, 13, 14, 15, 16
V_L = 17
V_Q = 20
V_O = 68
V_S = 140
V_P = 176
V_P8 = 192
V_NM = 200
V_POOL = 212
V_T = 252
NPOOL = 5
def Qf(n, ks): return V_Q + (n * 4 + ks) * 4
def Oa(n, m): return V_O + (n * 8 + m) * 4 if n < 2 else V_O + 64 + m * 4
def Sa(n, kt): return V_S + (n * 4 + kt) * 4 if n < 2 else V_S + 32
def Pf(n, kk): return V_P + (n * 2 + kk) * 4
def NM(n): return V_NM + 4 * n
def Xf(buf, t): return V_S + (buf * 3 + t) * 4

SEQ = [("Q", i) for i in range(20)] + [("K", 0)]
for j in range(7): SEQ += [("K", j + 1), ("V", j)]
SEQ += [("V", 7)]
assert len(SEQ) == 36
POS = {t: i for i, t in enumerate(SEQ)}
def slot_of(t): return (POS[t] % 4) * SLOT

def issue_ops(tile, nxt):
    kind, i = tile
    sb = slot_of(tile)
    tag = (kind, i, nxt)
    ops = []
    if kind in "KV":
        srd = SRD_K if kind == "K" else SRD_V
        voff = V_DK if kind == "K" else V_DV
        for kt in range(4):
            def f(p, kt=kt):
                p.s(f"s_add_u32 m0, s{S_M0KV}, {sb + kt * 2048}")
                p.s(f"s_add_u32 s{S_T0}, s{S_KVOFF}, {i * 16384 + kt * 4096}")
                p.dma(voff, srd, f"s{S_T0}", tag, "nt")
            ops.append(f)
    else:
        wo = S_WOFFN if nxt else S_WOFF
        xo = S_XOFFN if nxt else S_XOFF
        for kt in range(2):
            def f(p, kt=kt):
                p.s(f"s_add_u32 m0, s{S_M0KV}, {sb + kt * 2048}")
                p.s(f"s_add_u32 s{S_T0}, s{wo}, {(32 * i + 4 * kt) * 8192}")
                p.dma(V_DW, SRD_W, f"s{S_T0}", tag)
            ops.append(f)
        for t in range(2):
            def f(p, t=t):
                p.s(f"s_add_u32 m0, s{S_M0X}, {sb + t * 1024}")
                p.s(f"s_add_u32 s{S_T0}, s{xo}, {i * 64 + t * 16 * 1280}")
                p.dma(V_DX, SRD_X, f"s{S_T0}", tag)
            ops.append(f)
        def f(p):
            p.s(f"s_add_u32 m0, s{S_M0X8}, {sb}")
            p.s(f"s_add_u32 s{S_T0}, s{xo}, {i * 64}")
            p.s("s_mov_b64 exec, 0xffff")
            p.dma(V_DX8, SRD_X, f"s{S_T0}", tag)
            p.s("s_mov_b64 exec, -1")
        ops.append(f)
    return ops

def prologue(name):
    p = Prog()
    p.s(f"s_cmp_ge_u32 s2, 512")
    p.s(f"s_cbranch_scc1 {name}_end")
    p.s("s_load_dwordx4 s[44:47], s[0:1], 0")
    p.s("s_load_dwordx4 s[48:51], s[0:1], 16")
    p.s("s_load_dwordx2 s[52:53], s[0:1], 56")
    T = V_POOL
    W, L = T, T + 1
    p.vop("v_lshrrev_b32", W, "6", 0)
    p.vop("v_and_b32", L, "63", 0)
    p.add(Ins(f"v_readfirstlane_b32 s{S_W}, v{W}", "rfl", [W], []))
    a, b, c, d = T + 2, T + 3, T + 4, T + 5
    H, U, VV, R8, PI = T + 6, T + 7, T + 8, T + 9, T + 10
    p.vop("v_and_b32", H, "1", W)
    p.vop("v_lshrrev_b32", U, "1", W)
    p.vop("v_lshrrev_b32", VV, "5", L)
    p.vop("v_bfe_u32", R8, L, "2", "3")
    p.vop("v_and_b32", PI, "3", L)
    p.vop("v_lshlrev_b32", a, "7", U)
    p.vop("v_lshl_add_u32", a, VV, "6", a)
    p.vop("v_lshl_add_u32", b, H, "3", R8)
    p.vop("v_lshl_add_u32", b, b, "8", a)
    p.vop("v_mul_u32_u24", c, "3", H)
    p.vop("v_xor_b32", c, c, PI)
    p.vop("v_lshl_add_u32", V_DK, c, "4", b)
    p.vop("v_lshrrev_b32", c, "2", R8)
    p.vop("v_lshlrev_b32", d, "1", c)
    p.vop("v_xor_b32", d, d, PI)
    p.vop("v_lshl_add_u32", V_DV, d, "4", b)
    p.vop("v_lshlrev_b32", b, "4", H)
    p.vop("v_lshl_add_u32", b, c, "3", b)
    p.vop("v_and_b32", c, "3", R8)
    p.vop("v_add_u32", b, b, c)
    p.vop("v_lshl_add_u32", b, b, "13", a)
    p.vop("v_lshl_add_u32", V_DW, d, "4", b)
    p.s(f"s_movk_i32 s{S_T0}, 1280")
    p.vop("v_lshrrev_b32", a, "2", L)
    p.vop("v_lshl_add_u32", b, W, "5", a)
    p.vop("v_mul_lo_u32", b, b, f"s{S_T0}")
    p.vop("v_mul_u32_u24", c, "3", VV)
    p.vop("v_xor_b32", c, c, PI)
    p.vop("v_lshl_add_u32", V_DX, c, "4", b)
    p.vop("v_and_b32", a, "3", a)
    p.vop("v_lshl_add_u32", b, W, "2", a)
    p.vop("v_add_u32", b, "128", b)
    p.vop("v_mul_lo_u32", b, b, f"s{S_T0}")
    p.vop("v_mul_u32_u24", c, "3", U)
    p.vop("v_xor_b32", c, c, PI)
    p.vop("v_lshl_add_u32", V_DX8, c, "4", b)
    M, G = H, U
    p.vop("v_and_b32", M, "15", L)
    p.vop("v_lshrrev_b32", G, "4", L)
    p.vop("v_lshrrev_b32", a, "3", M)
    p.vop("v_mul_u32_u24", c, "3", a)
    p.vop("v_xor_b32", c, c, G)
    p.vop("v_and_b32", b, "7", M)
    p.vop("v_lshlrev_b32", b, "6", b)
    p.vop("v_lshl_add_u32", b, c, "4", b)
    p.vop("v_lshl_add_u32", V_AK, a, "13", b)
    p.vop("v_lshl_add_u32", V_AK8, W, "11", V_AK)
    p.vop("v_lshl_add_u32", b, a, "9", b)
    p.vop("v_add_u32", V_AX8, f"{12288 + 4096}", b)
    p.vop("v_lshl_add_u32", V_AX, W, "11", b)
    p.vop("v_lshrrev_b32", a, "1", W)
    p.vop("v_lshl_add_u32", V_AX, a, "12", V_AX)
    p.vop("v_add_u32", V_AX, "4096", V_AX)
    p.vop("v_lshrrev_b32", a, "1", G)
    p.vop("v_lshlrev_b32", b, "13", a)
    p.vop("v_lshl_add_u32", b, R8, "6", b)
    p.vop("v_and_b32", c, "1", L)
    p.vop("v_lshl_add_u32", b, c, "3", b)
    p.vop("v_bfe_u32", c, L, "1", "1")
    p.vop("v_lshl_add_u32", b, c, "4", b)
    p.vop("v_and_b32", c, "1", G)
    p.vop("v_lshl_add_u32", V_AV0, c, "5", b)
    p.vop("v_xor_b32", V_AV1, "32", V_AV0)
    p.vop("v_lshl_add_u32", V_AV80, W, "9", V_AV0)
    p.vop("v_lshl_add_u32", V_AV81, W, "9", V_AV1)
    p.vop("v_lshlrev_b32", V_OST, "4", L)
    p.vop("v_add_u32", V_LIN, "16384", V_OST)
    p.vop("v_lshrrev_b32", a, "1", W)
    p.vop("v_lshl_add_u32", V_P8W, a, "10", V_LIN)
    p.vop("v_and_b32", a, "1", W)
    p.vop("v_lshl_add_u32", V_P8W, a, "3", V_P8W)
    p.s(f"s_and_b32 s{S_T0}, s{S_W}, 1")
    p.s(f"s_lshl_b32 s{S_T0}, s{S_T0}, 13")
    p.s(f"s_lshr_b32 s{S_T1}, s{S_W}, 1")
    p.s(f"s_lshl_b32 s{S_M0KV}, s{S_T1}, 10")
    p.s(f"s_add_u32 s{S_M0KV}, s{S_M0KV}, s{S_T0}")
    p.s(f"s_lshl_b32 s{S_M0X}, s{S_W}, 11")
    p.s(f"s_lshl_b32 s{S_T1}, s{S_T1}, 12")
    p.s(f"s_add_u32 s{S_M0X}, s{S_M0X}, s{S_T1}")
    p.s(f"s_add_u32 s{S_M0X}, s{S_M0X}, 4096")
    p.s(f"s_lshl_b32 s{S_M0X8}, s{S_W}, 8")
    p.s(f"s_add_u32 s{S_M0X8}, s{S_M0X8}, {12288 + 4096}")
    p.s(f"s_mov_b32 s{S_CS}, {f2u(CSCALE):#x}")
    p.s(f"s_bfe_u32 s{S_T0}, s2, 0x20001")
    p.s(f"s_lshl_b32 s{S_B}, s{S_T0}, 3")
    p.s(f"s_lshr_b32 s{S_T0}, s2, 6")
    p.s(f"s_add_u32 s{S_B}, s{S_B}, s{S_T0}")
    p.s(f"s_and_b32 s{S_T0}, s2, 1")
    p.s(f"s_lshl_b32 s{S_H}, s{S_T0}, 4")
    p.s(f"s_bfe_u32 s{S_T0}, s2, 0x30003")
    p.s(f"s_add_u32 s{S_H}, s{S_H}, s{S_T0}")
    p.s(f"s_mul_i32 s{S_XOFFN}, s{S_B}, {144 * 1280}")
    p.s(f"s_lshl_b32 s{S_WOFFN}, s{S_H}, 8")
    p.s(f"s_mov_b32 s{S_ITER}, 0")
    p.s("s_waitcnt lgkmcnt(0)")
    for srd, src, size in ((SRD_X, 44, 32 * 144 * 640 * 2), (SRD_K, 46, 1 << 27), (SRD_V, 48, 1 << 27), (SRD_W, 50, 640 * 4096 * 2), (SRD_O, 52, 32 * 9 * 128 * 1024)):
        p.s(f"s_mov_b32 s{srd}, s{src}")
        p.s(f"s_and_b32 s{srd+1}, s{src+1}, 0xffff")
        p.s(f"s_mov_b32 s{srd+2}, {size:#x}")
        p.s(f"s_mov_b32 s{srd+3}, 0x20000")
    for i in range(3):
        for f in issue_ops(("Q", i), True): f(p)
    return p

class Unit:
    def __init__(self, tile, reads, mfmas, first=False):
        self.tile = tile; self.reads = reads; self.mfmas = mfmas; self.first = first

def body(name, D=3):
    p = Prog()
    p.label(f"{name}_loop")
    p.s(f"s_mov_b32 s{S_WOFF}, s{S_WOFFN}")
    p.s(f"s_mov_b32 s{S_XOFF}, s{S_XOFFN}")
    p.s(f"s_lshl_b32 s{S_T0}, s{S_B}, 5")
    p.s(f"s_add_u32 s{S_T0}, s{S_T0}, s{S_H}")
    p.s(f"s_lshl_b32 s{S_KVOFF}, s{S_T0}, 17")
    p.s(f"s_mul_i32 s{S_T0}, s{S_B}, 9")
    p.s(f"s_lshl_b32 s{S_T1}, s{S_W}, 1")
    p.s(f"s_add_u32 s{S_T1}, s{S_T1}, s{S_T0}")
    p.s(f"s_lshl_b32 s{S_T1}, s{S_T1}, 17")
    p.s(f"s_lshl_b32 s{S_OOFF}, s{S_H}, 12")
    p.s(f"s_add_u32 s{S_OOFF8}, s{S_T0}, 8")
    p.s(f"s_lshl_b32 s{S_OOFF8}, s{S_OOFF8}, 17")
    p.s(f"s_add_u32 s{S_OOFF8}, s{S_OOFF8}, s{S_OOFF}")
    p.s(f"s_add_u32 s{S_OOFF}, s{S_OOFF}, s{S_T1}")
    p.s(f"s_lshl_b32 s{S_T1}, s{S_W}, 10")
    p.s(f"s_add_u32 s{S_OOFF8}, s{S_OOFF8}, s{S_T1}")
    p.s(f"s_add_u32 s{S_H}, s{S_H}, 8")
    p.s(f"s_lshl_b32 s{S_WOFFN}, s{S_H}, 8")
    p.s(f"s_cmp_eq_u32 s{S_ITER}, 1")
    p.s(f"s_cselect_b32 s{S_WOFFN}, 0x40000000, s{S_WOFFN}")
    p.s(f"s_cselect_b32 s{S_XOFFN}, 0x40000000, s{S_XOFFN}")

    units = []
    pool_i = [0]
    def pool():
        r = V_POOL + 8 * (pool_i[0] % NPOOL); pool_i[0] += 1; return r
    AV = (V_AV0, V_AV1); AV8 = (V_AV80, V_AV81)
    for tile in SEQ:
        kind, i = tile
        sb = slot_of(tile)
        us = []
        if kind == "Q":
            buf = i & 1
            for mp in range(4):
                r = pool()
                rd = []
                if mp == 0:
                    rd += [("r128", Xf(buf, 0), V_AX, sb), ("r128", Xf(buf, 1), V_AX, sb + 1024), ("r128", Xf(buf, 2), V_AX8, sb)]
                mf = []
                for e in range(2):
                    m = 2 * mp + e
                    rd += [("tr", r + 4 * e, AV[e], sb + mp * 512), ("tr", r + 4 * e + 2, AV[e], sb + 2048 + mp * 512)]
                    for n in range(2):
                        mf.append((Oa(n, m), r + 4 * e, Xf(buf, n), Oa(n, m) if i else None, ("Q", i, n, m)))
                us.append(Unit(tile, rd, mf))
            r = pool(); rd = []; mf = []
            for e in range(2):
                rd += [("tr", r + 4 * e, AV8[e], sb), ("tr", r + 4 * e + 2, AV8[e], sb + 2048)]
                mf.append((Oa(2, e), r + 4 * e, Xf(buf, 2), Oa(2, e) if i else None, ("Q", i, 2, e)))
            us.append(Unit(tile, rd, mf))
        elif kind == "K":
            def cinit(n): return NM(n) if i else None
            s8 = []
            for kp in range(2):
                r = pool(); rd = []; mf = []
                for e in range(2):
                    ks = 2 * kp + e
                    rd.append(("r128", r + 4 * e, V_AK8, sb + ks * 512))
                    mf.append((Sa(2, 0), r + 4 * e, Qf(2, ks), Sa(2, 0) if ks else cinit(2), ("S", i, 2, 0, ks)))
                s8.append((rd, mf))
            def main_units():
                out = []
                for kt in range(4):
                    for kp in range(2):
                        r = pool(); rd = []; mf = []
                        for e in range(2):
                            ks = 2 * kp + e
                            rd.append(("r128", r + 4 * e, V_AK, sb + kt * 2048 + ks * 512))
                            for n in range(2):
                                mf.append((Sa(n, kt), r + 4 * e, Qf(n, ks), Sa(n, kt) if ks else cinit(n), ("S", i, n, kt, ks)))
                            if i == 0 and kt == 3:
                                mf.append((V_T, r + 4 * e, Qf(2, ks), V_T if ks else None, ("S8ref", ks)))
                        out.append(Unit(tile, rd, mf))
                return out
            us = [Unit(tile, rd, mf) for rd, mf in s8] + main_units()
            if i == 0:
                us[0].reads = [("r128", Qf(2, t), V_LIN, Q8AREA - 16384 + t * 1024) for t in range(4)] + us[0].reads
        else:
            for kk in range(2):
                for mp in range(4):
                    r = pool(); rd = []; mf = []
                    for e in range(2):
                        m = 2 * mp + e
                        rd += [("tr", r + 4 * e, AV[e], sb + (2 * kk) * 2048 + mp * 512), ("tr", r + 4 * e + 2, AV[e], sb + (2 * kk + 1) * 2048 + mp * 512)]
                        for n in range(2):
                            mf.append((Oa(n, m), r + 4 * e, Pf(n, kk), Oa(n, m) if (i or kk) else None, ("PV", i, n, m, kk)))
                    us.append(Unit(tile, rd, mf))
                r = pool(); rd = [("r128", V_P8 + 4 * kk, V_LIN, sb + kk * 1024)]; mf = []
                for e in range(2):
                    rd += [("tr", r + 4 * e, AV8[e], sb + (2 * kk) * 2048), ("tr", r + 4 * e + 2, AV8[e], sb + (2 * kk + 1) * 2048)]
                    mf.append((Oa(2, e), r + 4 * e, V_P8 + 4 * kk, Oa(2, e) if (i or kk) else None, ("PV", i, 2, e, kk)))
                us.append(Unit(tile, rd, mf))
        us[0].first = True
        units += us
    assert pool_i[0] % NPOOL == 0, pool_i[0]

    side = []
    done = set()
    def S(after, f): side.append((after, f))

    def softmax_ops(j):
        order = [(2, 0)] + [(n, kt) for kt in range(4) for n in range(2)]
        if j == 0:
            order = [(n, kt) for kt in range(4) for n in range(2)] + [(2, 0)]
        for (n, kt) in order:
            a = ("S", j, n, kt, 3) if j else ("MAXDONE",)
            for r in range(4):
                reg = Sa(n, kt) + r
                S(a, lambda p, reg=reg: p.exp(reg, reg))
            for r in range(4):
                reg = Sa(n, kt) + r
                if j == 0 and kt == 0 and r == 0:
                    S(a, lambda p, reg=reg, n=n: p.vop("v_mov_b32", V_L + n, reg))
                else:
                    S(a, lambda p, reg=reg, n=n: p.vop("v_add_f32", V_L + n, V_L + n, reg))
            if n == 2:
                S(a, lambda p: p.cvtpk(V_T, Sa(2, 0), Sa(2, 0) + 1))
                S(a, lambda p: p.cvtpk(V_T + 1, Sa(2, 0) + 2, Sa(2, 0) + 3))
                S(a, lambda p, j=j: p.ds_write(V_P8W, V_T, 2, slot_of(("V", j))))
        S(None, ("mark", ("EXP", j)))
        for kk in range(2):
            a = ("PV", j - 1, 1, 7, kk) if j else ("MAXDONE",)
            for n in range(2):
                for h in range(2):
                    kt = 2 * kk + h
                    S(a, lambda p, n=n, kk=kk, h=h, kt=kt: p.cvtpk(Pf(n, kk) + 2 * h, Sa(n, kt), Sa(n, kt) + 1))
                    S(a, lambda p, n=n, kk=kk, h=h, kt=kt: p.cvtpk(Pf(n, kk) + 2 * h + 1, Sa(n, kt) + 2, Sa(n, kt) + 3))
            S(None, ("mark", ("CVT", j, kk)))
        S(None, ("mark", ("SM", j)))

    def flush_until(mark):
        while mark not in done:
            a, f = side.pop(0)
            assert a is None or a in done, (a, mark)
            if isinstance(f, tuple): done.add(f[1])
            else: f(p)
    def emit_side(k):
        c = 0
        while side and c < k:
            a, f = side[0]
            if a is not None and a not in done: break
            side.pop(0)
            if isinstance(f, tuple): done.add(f[1])
            else: f(p); c += 1

    def q_finalize():
        for n in range(3):
            for t in range(4 if n < 2 else 1):
                dst = Qf(n, t) if n < 2 else V_T
                src0 = Oa(n, 2 * t); src1 = Oa(n, 2 * t + 1)
                for r in range(4):
                    p.vop("v_mul_f32", src0 + r, f"s{S_CS}", src0 + r)
                    p.vop("v_mul_f32", src1 + r, f"s{S_CS}", src1 + r)
                p.cvtpk(dst, src0, src0 + 1); p.cvtpk(dst + 1, src0 + 2, src0 + 3)
                p.cvtpk(dst + 2, src1, src1 + 1); p.cvtpk(dst + 3, src1 + 2, src1 + 3)
        for n in (2, 0, 1):
            for t in range(4 if n < 2 else 1):
                dst = Qf(n, t) if n < 2 else V_T
                p.swap32(dst, dst + 2); p.swap32(dst + 1, dst + 3)
                p.swap16(dst, dst + 2); p.swap16(dst + 1, dst + 3)
            if n == 2:
                p.v(f"v_lshl_add_u32 v{V_S}, s{S_W}, 10, v{V_LIN}", [V_S], [V_LIN])
                p.ds_write(V_S, V_T, 4, Q8AREA - 16384)

    def xlane(op, reg, tmp):
        for sw in (p.swap32, p.swap16):
            p.vop("v_mov_b32", tmp, reg)
            sw(reg, tmp)
            p.vop(op, reg, reg, tmp)

    def block0_max():
        for n in range(3):
            regs = [Sa(n, kt) + r for kt in range(4) for r in range(4)] if n < 2 else [V_T + r for r in range(4)]
            m = NM(n)
            p.vop("v_max3_f32", m, regs[0], regs[1], regs[2])
            rest = regs[3:]
            while len(rest) >= 2:
                p.vop("v_max3_f32", m, m, rest[0], rest[1]); rest = rest[2:]
            if rest: p.vop("v_max_f32", m, m, rest[0])
        for sw in (p.swap32, p.swap16):
            for n in range(3): p.vop("v_mov_b32", NM(n) + 1, NM(n))
            for n in range(3): sw(NM(n), NM(n) + 1)
            for n in range(3): p.vop("v_max_f32", NM(n), NM(n), NM(n) + 1)
        for n in range(3):
            p.vop("v_sub_f32", NM(n), "0", NM(n))
            for r in range(1, 4): p.vop("v_mov_b32", NM(n) + r, NM(n))
        for n in range(3):
            regs = [Sa(n, kt) + r for kt in range(4) for r in range(4)] if n < 2 else [Sa(2, 0) + r for r in range(4)]
            for r in regs: p.vop("v_add_f32", r, r, NM(n))
        done.add(("MAXDONE",))

    def epilogue():
        p.ds_read128(V_T, V_LIN, STAT - 16384)
        p.vop("v_add_f32", V_T, V_T, V_T + 1); p.vop("v_add_f32", V_T + 2, V_T + 2, V_T + 3)
        p.vop("v_add_f32", V_L + 2, V_T, V_T + 2)
        for sw in (p.swap32, p.swap16):
            for n in range(3): p.vop("v_mov_b32", V_T + n, V_L + n)
            for n in range(3): sw(V_L + n, V_T + n)
            for n in range(3): p.vop("v_add_f32", V_L + n, V_L + n, V_T + n)
        for n in range(3): p.vop("v_rcp_f32", V_L + n, V_L + n, kind="trans")
        k = 0
        for n in range(3):
            for t in range(4 if n < 2 else 1):
                dst = V_S + 4 * k; k += 1
                s0 = Oa(n, 2 * t); s1 = Oa(n, 2 * t + 1)
                for r in range(4):
                    p.vop("v_mul_f32", s0 + r, s0 + r, V_L + n)
                    p.vop("v_mul_f32", s1 + r, s1 + r, V_L + n)
                p.cvtpk(dst, s0, s0 + 1); p.cvtpk(dst + 1, s0 + 2, s0 + 3)
                p.cvtpk(dst + 2, s1, s1 + 1); p.cvtpk(dst + 3, s1 + 2, s1 + 3)
                if n == 1 and t == 0: p.s(f"s_add_u32 s{S_OOFF}, s{S_OOFF}, {128 * 1024}")
                p.store(dst, 4, V_OST, SRD_O, f"s{S_OOFF if n < 2 else S_OOFF8}", t * 1024)

    pend_dma = []
    N = len(units)
    def emit_reads(u):
        nonlocal pend_dma
        if u.first:
            kind, i = u.tile
            for f in pend_dma: f(p)
            pos = POS[u.tile]
            if kind == "V": flush_until(("EXP", i))
            if u.tile == ("V", 7):
                p.v(f"v_lshl_add_u32 v{V_T+2}, s{S_W}, 2, v{V_LIN}", [V_T + 2], [V_LIN])
                p.ds_write(V_T + 2, V_L + 2, 1, STAT - 16384)
            p.wait_vm((kind, i, pos < 3), lgkm0=True)
            p.barrier()
            nt = pos + 3
            pend_dma = issue_ops(SEQ[nt % 36], nt >= 36)
        for (k, d, a, off) in u.reads:
            if k == "r128": p.ds_read128(d, a, off)
            else: p.ds_tr(d, a, off)
    def emit_mfmas(u):
        for (d, a, b, c, tag) in u.mfmas:
            if tag[0] == "PV" and tag[2:4] == (0, 0): flush_until(("CVT", tag[1], tag[4]))
            if tag[0] == "S" and tag[1] >= 1 and tag[4] == 0:
                if tag[2] == 2: flush_until(("EXP", tag[1] - 1))
                else: flush_until(("CVT", tag[1] - 1, tag[3] >> 1))
            p.mfma(d, a, b, c)
            done.add(tag)
            emit_side(2)
        if pend_dma: pend_dma.pop(0)(p)

    ri = 0
    for ui in range(N):
        u = units[ui]
        while ri < N and ri <= ui + D:
            t = units[ri].tile
            if t == ("K", 0) and u.tile[0] == "Q": break
            emit_reads(units[ri]); ri += 1
            if ri > ui + D: break
        if u.first and u.tile[0] == "K":
            j = u.tile[1]
            if j == 1:
                block0_max(); softmax_ops(0); flush_until(("SM", 0))
            if j >= 1: softmax_ops(j)
        emit_mfmas(u)
        if u.tile == ("Q", 19) and units[ui + 1].tile == ("K", 0):
            q_finalize()
    emit_side(100)
    assert not side, side
    for f in pend_dma: f(p)
    epilogue()
    p.s(f"s_add_u32 s{S_ITER}, s{S_ITER}, 1")
    p.s(f"s_cmp_lt_u32 s{S_ITER}, 2")
    p.s(f"s_cbranch_scc1 {name}_loop")
    p.label(f"{name}_end")
    p.raw("s_endpgm")
    return p

def gen(name):
    pro = prologue(name); b = body(name)
    lines, stats = finalize([(pro, 1), (b, 2)])
    return [f".globl {name}", ".p2align 8", f".type {name},@function", f"{name}:"] + lines, stats
```

```python
from asmlib import *
NWG = 240
NSLOT = 5
LDS_BYTES = 163840
WRING = NSLOT * 8192
NB = 5
SRD_O, SRD_W, SRD_OUT = 8, 12, 16
S_W = 3
S_T0, S_T1 = 20, 21
S_M0 = 22
S_WO = 23
S_WO1 = 24
S_OT = 26
S_R, S_C = 32, 33
S_OUT = 34
V_DW, V_LIN, V_AV0, V_AV1 = 1, 2, 3, 4
V_RW = 5
V_RR = 8
V_ST = 9
V_B = 12
V_POOL = V_B + NB * 24
NPOOL = 6
V_END = V_POOL + NPOOL * 8
ACC = 256
NVGPR = 256 + 192
def A(t, m): return ACC + (t * 8 + m) * 4
def Bf(buf, t): return V_B + (buf * 6 + t) * 4
NSTEP = 32

def issue_w(i):
    ops = []
    sb = (i % NSLOT) * 8192
    for kt in range(2):
        for h in range(2):
            for u in range(2):
                def f(p, kt=kt, h=h, u=u):
                    p.s(f"s_add_u32 m0, s{S_M0}, {sb + h * 4096 + kt * 2048 + u * 1024}")
                    p.s(f"s_add_u32 s{S_T0}, s{S_WO1 if u else S_WO}, {(i * 128 + 16 * kt + 8 * h) * 1280}")
                    p.dma(V_DW, SRD_W, f"s{S_T0}", ("W", i))
                ops.append(f)
    return ops
def issue_b(i):
    ops = []
    for t in range(6):
        def f(p, t=t):
            p.s(f"s_add_u32 s{S_T0}, s{S_OT + t}, {i * 4096}")
            p.load4(Bf(i % NB, t), V_LIN, SRD_O, f"s{S_T0}", 0, ("B", i))
        ops.append(f)
    return ops

def gen(name, D=4):
    p = Prog()
    p.s(f"s_cmp_ge_u32 s2, {NWG}")
    p.s(f"s_cbranch_scc1 {name}_end")
    p.s("s_load_dwordx4 s[44:47], s[0:1], 32")
    p.s("s_load_dwordx2 s[52:53], s[0:1], 56")
    T = V_POOL
    W, L, a, b, c, d, R8, G = T, T + 1, T + 2, T + 3, T + 4, T + 5, T + 6, T + 7
    p.vop("v_lshrrev_b32", W, "6", 0)
    p.vop("v_and_b32", L, "63", 0)
    p.add(Ins(f"v_readfirstlane_b32 s{S_W}, v{W}", "rfl", [W], []))
    p.s(f"s_movk_i32 s{S_T1}, 1280")
    p.vop("v_bfe_u32", R8, L, "2", "3")
    p.vop("v_mul_lo_u32", a, R8, f"s{S_T1}")
    p.vop("v_lshrrev_b32", b, "5", L)
    p.vop("v_xor_b32", b, b, W)
    p.vop("v_and_b32", b, "1", b)
    p.vop("v_lshl_add_u32", a, b, "6", a)
    p.vop("v_lshrrev_b32", c, "2", R8)
    p.vop("v_lshlrev_b32", c, "1", c)
    p.vop("v_and_b32", d, "3", L)
    p.vop("v_xor_b32", c, c, d)
    p.vop("v_lshl_add_u32", V_DW, c, "4", a)
    p.vop("v_lshlrev_b32", V_LIN, "4", L)
    p.s(f"s_mov_b32 s{S_T0}, {WRING}")
    p.vop("v_lshrrev_b32", G, "4", L)
    p.vop("v_mul_lo_u32", b, W, f"s{S_T0}")
    p.vop("v_lshrrev_b32", a, "1", G)
    p.vop("v_lshl_add_u32", b, a, "12", b)
    p.vop("v_lshl_add_u32", b, R8, "6", b)
    p.vop("v_and_b32", c, "1", L)
    p.vop("v_lshl_add_u32", b, c, "3", b)
    p.vop("v_bfe_u32", c, L, "1", "1")
    p.vop("v_lshl_add_u32", b, c, "4", b)
    p.vop("v_and_b32", c, "1", G)
    p.vop("v_lshl_add_u32", V_AV0, c, "5", b)
    p.vop("v_xor_b32", V_AV1, "32", V_AV0)
    p.s(f"s_mov_b32 s{S_T0}, 36864")
    for mp in range(1, 4):
        p.vop("v_xor_b32", a, f"{mp}", W)
        p.vop("v_mul_lo_u32", a, a, f"s{S_T0}")
        p.vop("v_add_u32", V_RW + mp - 1, a, V_LIN)
    p.vop("v_mul_lo_u32", a, W, f"s{S_T0}")
    p.vop("v_add_u32", V_RR, a, V_LIN)
    p.vop("v_and_b32", a, "15", L)
    p.vop("v_mul_lo_u32", a, a, f"s{S_T1}")
    p.vop("v_lshl_add_u32", a, W, "6", a)
    p.vop("v_lshl_add_u32", V_ST, G, "4", a)
    p.s(f"s_lshr_b32 s{S_T0}, s2, 3")
    p.s(f"s_mul_i32 s{S_R}, s{S_T0}, 52")
    p.s(f"s_lshr_b32 s{S_R}, s{S_R}, 8")
    p.s(f"s_mul_i32 s{S_C}, s{S_R}, 5")
    p.s(f"s_sub_u32 s{S_C}, s{S_T0}, s{S_C}")
    p.s(f"s_and_b32 s{S_T0}, s2, 7")
    p.s(f"s_mul_i32 s{S_T0}, s{S_T0}, 6")
    p.s(f"s_add_u32 s{S_R}, s{S_R}, s{S_T0}")
    p.s(f"s_mul_i32 s{S_M0}, s{S_W}, {WRING}")
    p.s(f"s_mul_i32 s{S_WO}, s{S_W}, {32 * 1280}")
    p.s(f"s_lshl_b32 s{S_T0}, s{S_C}, 8")
    p.s(f"s_add_u32 s{S_WO}, s{S_WO}, s{S_T0}")
    p.s(f"s_lshr_b32 s{S_T0}, s{S_W}, 1")
    p.s(f"s_lshl_b32 s{S_T0}, s{S_T0}, 7")
    p.s(f"s_xor_b32 s{S_T1}, s{S_T0}, 128")
    p.s(f"s_add_u32 s{S_WO1}, s{S_WO}, s{S_T1}")
    p.s(f"s_add_u32 s{S_WO}, s{S_WO}, s{S_T0}")
    p.s(f"s_mul_i32 s{S_T0}, s{S_R}, {6 * 131072}")
    p.s(f"s_lshl_b32 s{S_T1}, s{S_W}, 10")
    p.s(f"s_add_u32 s{S_T0}, s{S_T0}, s{S_T1}")
    for t in range(6): p.s(f"s_add_u32 s{S_OT + t}, s{S_T0}, {t * 131072}")
    p.s(f"s_mul_i32 s{S_OUT}, s{S_R}, {96 * 1280}")
    p.s(f"s_lshl_b32 s{S_T0}, s{S_C}, 8")
    p.s(f"s_add_u32 s{S_OUT}, s{S_OUT}, s{S_T0}")
    p.s("s_waitcnt lgkmcnt(0)")
    for srd, src, size in ((SRD_W, 44, 4096 * 640 * 2), (SRD_OUT, 46, 32 * 144 * 640 * 2), (SRD_O, 52, 32 * 9 * 128 * 1024)):
        p.s(f"s_mov_b32 s{srd}, s{src}")
        p.s(f"s_and_b32 s{srd+1}, s{src+1}, 0xffff")
        p.s(f"s_mov_b32 s{srd+2}, {size:#x}")
        p.s(f"s_mov_b32 s{srd+3}, 0x20000")
    PW = NSLOT - 1
    PB = NB - 1
    for i in range(max(PW, PB)):
        if i < PW:
            for f in issue_w(i): f(p)
        if i < PB:
            for f in issue_b(i): f(p)
    AV = (V_AV0, V_AV1)
    units = []
    for i in range(NSTEP):
        sb = (i % NSLOT) * 8192
        for mp in range(4):
            r = V_POOL + 8 * (len(units) % NPOOL)
            rd = []; mf = []
            for e in range(2):
                rd += [(r + 4 * e, AV[e], sb + mp * 512), (r + 4 * e + 2, AV[e], sb + 2048 + mp * 512)]
                for t in range(6):
                    mf.append((A(t, 2 * mp + e), r + 4 * e, Bf(i % NB, t), A(t, 2 * mp + e) if i else None))
            units.append((i, mp, rd, mf))
    N = len(units); ri = 0; pend = []
    for ui in range(N):
        while ri < N and ri <= ui + D:
            i, mp, rd, mf = units[ri]
            if mp == 0:
                p.comment(f"--- reads step {i}")
                p.wait_vm(("W", i))
            for (d_, a_, off) in rd: p.ds_tr(d_, a_, off)
            ri += 1
        i, mp, rd, mf = units[ui]
        if mp == 0:
            for f in pend: f(p)
            pend = []
            if i >= 1:
                if i - 1 + NSLOT < NSTEP: pend += issue_w(i - 1 + NSLOT) if False else []
            wi = i + PW; bi = i + PB
            lw = issue_w(wi) if wi < NSTEP else []
            lb = issue_b(bi) if bi < NSTEP else []
            pend = lw + lb
        for k, (d_, a_, b_, c_) in enumerate(mf):
            p.mfma(d_, a_, b_, c_)
            if k % 3 == 2 and pend: pend.pop(0)(p)
    p.wait_all()
    p.barrier()
    for mp in range(1, 4):
        for t in range(6):
            for e in range(2):
                p.ds_write(V_RW + mp - 1, A(t, 2 * mp + e), 4, (mp - 1) * 12288 + (t * 2 + e) * 1024)
    p.wait_lgkm0()
    p.barrier()
    TMP = V_B
    for t in range(6):
        base = TMP + (t % 3) * 40
        for e in range(2):
            for s in range(3):
                p.ds_read128(base + (e * 3 + s) * 4, V_RR, s * 12288 + (t * 2 + e) * 1024)
        own = base + 24
        for e in range(2):
            for r in range(4):
                p.v(f"v_accvgpr_read_b32 v{own + 4 * e + r}, a{A(t, e) - 256 + r}", [own + 4 * e + r], [A(t, e) + r])
        for e in range(2):
            for r in range(4):
                o = own + 4 * e + r
                p.vop("v_add_f32", o, o, base + (e * 3) * 4 + r)
                p.vop("v_add_f32", base + (e * 3 + 1) * 4 + r, base + (e * 3 + 1) * 4 + r, base + (e * 3 + 2) * 4 + r)
                p.vop("v_add_f32", o, o, base + (e * 3 + 1) * 4 + r)
        dst = base + 32
        p.cvtpk(dst, own, own + 1); p.cvtpk(dst + 1, own + 2, own + 3)
        p.cvtpk(dst + 2, own + 4, own + 5); p.cvtpk(dst + 3, own + 6, own + 7)
        p.swap32(dst, dst + 2); p.swap32(dst + 1, dst + 3)
        p.swap16(dst, dst + 2); p.swap16(dst + 1, dst + 3)
        p.s(f"s_add_u32 s{S_T0}, s{S_OUT}, {t * 16 * 1280}")
        p.store(dst, 4, V_ST, SRD_OUT, f"s{S_T0}", 0)
    p.label(f"{name}_end")
    p.raw("s_endpgm")
    lines, stats = finalize([(p, 1)])
    return [f".globl {name}", ".p2align 8", f".type {name},@function", f"{name}:"] + lines, stats
```

```python
import sys, importlib
from asmlib import *
import k1
HDR = open("standalone__gqa_block_cached__near_ridge.s.ref").read().split("\n")
hdr = [l for l in HDR if l.startswith(";") and "@launch" not in l and "Override" not in l and "grid=ceil" not in l]
def build(which, path):
    out = list(hdr)
    body = []; kds = []
    if "1" in which:
        out.append(f"; @launch kernel=attn_kernel grid=(512,1,1) block=(256,1,1) lds={k1.LDS_BYTES}")
        l, st = k1.gen("attn_kernel"); body += l; kds += kd("attn_kernel", 256, 64); print("k1", st, file=sys.stderr)
    if "2" in which:
        import k2
        out.append(f"; @launch kernel=oproj_kernel grid=({k2.NWG},1,1) block=(256,1,1) lds={k2.LDS_BYTES}")
        l, st = k2.gen("oproj_kernel"); body += l; kds += kd("oproj_kernel", k2.NVGPR, 64, 256); print("k2", st, file=sys.stderr)
    out += ['.amdgcn_target "amdgcn-amd-amdhsa--gfx950"', ".text"] + body + ['.section .rodata,"a"'] + kds
    open(path, "w").write("\n".join(out) + "\n")
if __name__ == "__main__":
    build(sys.argv[1], sys.argv[2])
```

```python
import re

def vr(base, n=1):
    p = "v"
    if base >= 256:
        p = "a"; base -= 256
    return f"{p}{base}" if n == 1 else f"{p}[{base}:{base+n-1}]"
def sr(base, n=1):
    return f"s{base}" if n == 1 else f"s[{base}:{base+n-1}]"
def R(base, n=1):
    return set(range(base, base + n))

class Ins:
    __slots__ = ("text", "kind", "rd", "wr", "tag", "extra", "srcc", "wait_id")
    def __init__(self, text, kind, rd=(), wr=(), tag=None, extra=None, srcc=()):
        self.text = text; self.kind = kind
        self.rd = set(rd); self.wr = set(wr); self.tag = tag; self.extra = extra
        self.srcc = set(srcc); self.wait_id = None

class Prog:
    def __init__(self):
        self.ins = []
    def add(self, i):
        self.ins.append(i); return i
    def raw(self, text, kind="salu"):
        return self.add(Ins(text, kind))
    def label(self, name):
        return self.add(Ins(name + ":", "label"))
    def comment(self, t):
        return self.add(Ins("; " + t, "label"))
    def s(self, text):
        return self.add(Ins(text, "salu"))
    def nop(self, n):
        return self.add(Ins(f"s_nop {n}", "nop", extra=n + 1))
    def v(self, text, wr=(), rd=(), kind="valu"):
        return self.add(Ins(text, kind, rd, wr))
    def vop(self, op, d, *srcs, kind="valu"):
        rd = [x for x in srcs if isinstance(x, int)]
        t = ", ".join(f"v{x}" if isinstance(x, int) else x for x in srcs)
        return self.add(Ins(f"{op} v{d}, {t}", kind, rd, [d]))
    def exp(self, d, a):
        return self.vop("v_exp_f32", d, a, kind="trans")
    def cvtpk(self, d, a, b):
        return self.vop("v_cvt_pk_bf16_f32", d, a, b)
    def swap32(self, a, b):
        return self.add(Ins(f"v_permlane32_swap_b32 v{a}, v{b}", "perm", [a, b], [a, b]))
    def swap16(self, a, b):
        return self.add(Ins(f"v_permlane16_swap_b32 v{a}, v{b}", "perm", [a, b], [a, b]))
    def mfma(self, d, a, b, c):
        ct = "0" if c is None else vr(c, 4)
        rd = R(a, 4) | R(b, 4)
        srcc = set() if c is None else R(c, 4)
        return self.add(Ins(f"v_mfma_f32_16x16x32_bf16 {vr(d,4)}, {vr(a,4)}, {vr(b,4)}, {ct}", "mfma", rd | srcc, R(d, 4), extra=(d, c), srcc=srcc))
    def ds_read128(self, d, addr, off):
        assert 0 <= off < 65536, off
        return self.add(Ins(f"ds_read_b128 {vr(d,4)}, v{addr} offset:{off}", "dsr", [addr], R(d, 4)))
    def ds_read64(self, d, addr, off):
        assert 0 <= off < 65536, off
        return self.add(Ins(f"ds_read_b64 {vr(d,2)}, v{addr} offset:{off}", "dsr", [addr], R(d, 2)))
    def ds_read32(self, d, addr, off):
        assert 0 <= off < 65536, off
        return self.add(Ins(f"ds_read_b32 v{d}, v{addr} offset:{off}", "dsr", [addr], [d]))
    def ds_tr(self, d, addr, off):
        assert 0 <= off < 65536, off
        return self.add(Ins(f"ds_read_b64_tr_b16 {vr(d,2)}, v{addr} offset:{off}", "dsr", [addr], R(d, 2)))
    def ds_write(self, addr, src, n, off):
        assert 0 <= off < 65536, off
        op = {1: "ds_write_b32", 2: "ds_write_b64", 4: "ds_write_b128"}[n]
        return self.add(Ins(f"{op} v{addr}, {vr(src,n)} offset:{off}", "dsw", {addr} | R(src, n), []))
    def dma(self, voff, srd, soff, tag, flags=""):
        return self.add(Ins(f"buffer_load_dwordx4 v{voff}, {sr(srd,4)}, {soff} offen {flags} lds".replace("  ", " "), "vm", [voff], [], tag=tag))
    def load4(self, d, voff, srd, soff, off, tag, flags=""):
        return self.add(Ins(f"buffer_load_dwordx4 {vr(d,4)}, v{voff}, {sr(srd,4)}, {soff} offen offset:{off} {flags}".strip(), "vml", [voff], R(d, 4), tag=tag))
    def load2(self, d, voff, srd, soff, off, tag, flags=""):
        return self.add(Ins(f"buffer_load_dwordx2 {vr(d,2)}, v{voff}, {sr(srd,4)}, {soff} offen offset:{off} {flags}".strip(), "vml", [voff], R(d, 2), tag=tag))
    def store(self, src, n, voff, srd, soff, off, tag="st", flags=""):
        op = {1: "buffer_store_dword", 2: "buffer_store_dwordx2", 4: "buffer_store_dwordx4"}[n]
        return self.add(Ins(f"{op} {vr(src,n)}, v{voff}, {sr(srd,4)}, {soff} offen offset:{off} {flags}".strip(), "vms", {voff} | R(src, n), [], tag=tag, extra=n))
    def wait_vm(self, tag, lgkm0=False):
        return self.add(Ins("", "waitvm", tag=tag, extra=lgkm0))
    def wait_all(self):
        return self.add(Ins("s_waitcnt vmcnt(0) lgkmcnt(0)", "waitall"))
    def wait_lgkm0(self):
        return self.add(Ins("s_waitcnt lgkmcnt(0)", "waitlgkm0"))
    def barrier(self):
        return self.add(Ins("s_barrier", "barrier"))

VALU_KINDS = ("valu", "trans", "perm")
import os
COALESCE = int(os.environ.get("COAL", "14"))
HOIST = int(os.environ.get("HOIST", "1"))

def finalize(segments, sim=None):
    need_lgkm = {}
    need_vm = {}
    need_nop = {}
    for _pass in range(3):
        lg = []
        vm = []
        hist = []
        t = 0
        changed = False
        for prog, rep in (sim or segments):
            for _r in range(rep):
                for ins in prog.ins:
                    k = ins.kind
                    if k == "label":
                        continue
                    key = id(ins)
                    touched = ins.rd | ins.wr
                    n = None
                    for idx in range(len(lg) - 1, -1, -1):
                        if lg[idx][0] & touched:
                            n = len(lg) - 1 - idx; break
                    if n is not None:
                        n = min(n, sum(1 for x in lg if x[1] > t - COALESCE))
                        n = min(n, 15)
                        if key not in need_lgkm or need_lgkm[key] > n:
                            need_lgkm[key] = n; changed = True
                    n = None
                    for idx in range(len(vm) - 1, -1, -1):
                        if vm[idx][1] & touched:
                            n = len(vm) - 1 - idx; break
                    if k == "waitvm":
                        for idx in range(len(vm) - 1, -1, -1):
                            if vm[idx][0] == ins.tag:
                                n = len(vm) - 1 - idx; break
                    if n is not None:
                        n = min(n, 63)
                        if key not in need_vm or need_vm[key] > n:
                            need_vm[key] = n; changed = True
                    has_wait = False
                    if key in need_lgkm:
                        nn = need_lgkm[key]
                        if len(lg) > nn: lg = lg[len(lg) - nn:] if nn else []
                        has_wait = True
                    if key in need_vm:
                        nn = need_vm[key]
                        if len(vm) > nn: vm = vm[len(vm) - nn:] if nn else []
                        has_wait = True
                    if k == "waitvm":
                        if ins.extra: lg = []
                        t += 1
                        continue
                    if has_wait: t += 1
                    if k == "waitvmn" and len(vm) > ins.extra: vm = vm[len(vm) - ins.extra:] if ins.extra else []
                    if k == "waitall": lg = []; vm = []
                    if k == "waitlgkm0": lg = []
                    req = 0
                    for (p, tp) in hist:
                        dist = t - tp - 1
                        need = 0
                        pk = p.kind
                        if pk in VALU_KINDS:
                            if k == "mfma" and (p.wr & ins.rd): need = 2
                            if k == "perm" and (p.wr & ins.rd): need = max(need, 2)
                            if k == "dpp" and (p.wr & ins.rd): need = max(need, 2)
                            if k == "rfl" and (p.wr & ins.rd): need = max(need, 1)
                            if pk == "trans" and k in ("valu", "perm", "mfma") and (p.wr & ins.rd): need = max(need, 1)
                        elif pk == "mfma":
                            if k == "mfma":
                                ab = ins.rd - ins.srcc
                                if p.wr & ab: need = 8
                                elif p.wr & ins.srcc:
                                    need = 0 if (ins.extra[1] == p.extra[0]) else 6
                                elif p.wr & ins.wr: need = 0
                            else:
                                if p.wr & (ins.rd | ins.wr): need = 8
                                if k in VALU_KINDS and (p.srcc & ins.wr): need = max(need, 3)
                                if k in ("dsr", "vml") and (p.srcc & ins.wr): need = max(need, 3)
                        elif pk == "vms" and p.extra == 4:
                            if k in VALU_KINDS or k == "mfma":
                                if p.rd & ins.wr: need = 2
                            elif p.rd & ins.wr: need = 1
                        if need > dist: req = max(req, need - dist)
                    if req > need_nop.get(key, 0):
                        need_nop[key] = req; changed = True
                    t += need_nop.get(key, 0)
                    if k == "dsr": lg.append((set(ins.wr), t))
                    elif k == "dsw": lg.append((set(), t))
                    elif k in ("vm", "vms"): vm.append((ins.tag, set()))
                    elif k == "vml": vm.append((ins.tag, set(ins.wr)))
                    hist.append((ins, t))
                    t += ins.extra if k == "nop" else 1
                    while hist and t - hist[0][1] > 12: hist.pop(0)
        if not changed: break
    out = []
    stats = dict(nops=0, lgkm=0, n=0, hoisted=0)
    for prog, rep in segments:
        L = prog.ins
        hoist_after = {}
        skip = set()
        if HOIST:
            for i, ins in enumerate(L):
                key = id(ins)
                if ins.kind != "mfma" or key not in need_lgkm or key in need_vm or need_nop.get(key, 0): continue
                n = need_lgkm[key]; j = i - 1; ok = True; nds = 0
                while j >= 0 and L[j].kind != "mfma":
                    kk = L[j].kind
                    if kk in ("dsr", "dsw"): nds += 1
                    elif kk not in ("valu", "trans"): ok = False; break
                    if id(L[j]) in need_lgkm or id(L[j]) in need_vm or need_nop.get(id(L[j]), 0): ok = False; break
                    j -= 1
                if not ok or j < 0 or j == i - 1 or n - nds < 0: continue
                if any(L[x].kind in VALU_KINDS and (L[x].wr & ins.rd) for x in range(max(j + 1, i - 3), i)): continue
                hoist_after[j] = n - nds; skip.add(i)
        for i, ins in enumerate(L):
            key = id(ins)
            w = []
            if key in need_vm: w.append(f"vmcnt({need_vm[key]})")
            if ins.kind == "waitvm" and ins.extra: w.append("lgkmcnt(0)")
            elif key in need_lgkm and i not in skip: w.append(f"lgkmcnt({need_lgkm[key]})"); stats["lgkm"] += 1
            if w: out.append("    s_waitcnt " + " ".join(w))
            elif ins.kind == "waitvm": out.append("    s_nop 0")
            if need_nop.get(key, 0):
                out.append(f"    s_nop {need_nop[key]-1}"); stats["nops"] += 1
            if ins.kind == "waitvm": continue
            out.append(ins.text if ins.kind == "label" else "    " + ins.text)
            stats["n"] += 1
            if i in hoist_after:
                out.append(f"    s_waitcnt lgkmcnt({hoist_after[i]})"); stats["hoisted"] += 1
    return out, stats

def kd(name, vgpr, sgpr=102, accum=None):
    accum = accum if accum is not None else ((vgpr + 3) // 4) * 4
    return [".p2align 6", f".amdhsa_kernel {name}",
            f"  .amdhsa_next_free_vgpr {vgpr}", f"  .amdhsa_next_free_sgpr {sgpr}", f"  .amdhsa_accum_offset {min(accum,256)}",
            "  .amdhsa_group_segment_fixed_size 0", "  .amdhsa_kernarg_size 64", "  .amdhsa_user_sgpr_count 2",
            "  .amdhsa_user_sgpr_kernarg_segment_ptr 1", "  .amdhsa_system_sgpr_workgroup_id_x 1", ".end_amdhsa_kernel"]

class Sched:
    def __init__(self, p, budget=8, late_extra=8):
        self.p = p; self.m = []; self.q = {}; self.budget = budget; self.late_extra = late_extra
        self.idx = {}
    def mfma(self, d, a, b, c, tag=None):
        self.m.append((d, a, b, c, tag))
        if tag is not None: self.idx[tag] = len(self.m) - 1
    def fill(self, queue, fn, cost=4, after=None, before=None, lead=0, tag=None, early=None, ds=False):
        self.q.setdefault(queue, []).append(dict(fn=fn, cost=cost, after=after, before=before, lead=lead, tag=tag, early=early, ds=ds))
    def run(self):
        p = self.p
        done = {}
        N = len(self.m)
        INF = 10 ** 9
        for ql in self.q.values():
            hd = INF; sd = INF
            for f in reversed(ql):
                if f["before"] is not None:
                    b = self.idx[f["before"]]
                    hd = min(hd, b); sd = min(sd, b - f["lead"])
                f["hd"] = hd; f["sd"] = sd
        tagq = {}
        for qn, ql in self.q.items():
            for f in ql:
                if f["tag"] is not None: tagq[f["tag"]] = qn
        def ready(f, cnt):
            a = f["after"]
            if a is not None:
                for x in (a if isinstance(a, list) else [a]):
                    dl = 0
                    if isinstance(x, dict): dl = x["delay"]; x = x["tag"]
                    if x not in done or cnt < done[x] + dl: return False
            if f["early"] is not None and f["before"] is not None and cnt < self.idx[f["before"]] - f["early"]: return False
            return True
        def emit(qn, cnt):
            f = self.q[qn].pop(0)
            f["fn"](p)
            if f["tag"] is not None: done[f["tag"]] = cnt
            return f["cost"]
        def force(qn, cnt, depth=0):
            f = self.q[qn][0]
            a = f["after"]
            for x in ([] if a is None else a if isinstance(a, list) else [a]):
                if isinstance(x, dict): x = x["tag"]
                while x not in done:
                    assert x in tagq and tagq[x] != qn and depth < 20, ("cannot force", f["tag"], f["before"], x, cnt)
                    force(tagq[x], cnt, depth + 1)
            return emit(qn, cnt)
        for i in range(N + 1):
            again = True
            while again:
                again = False
                for qn, ql in self.q.items():
                    while ql and (ql[0]["hd"] <= i or i == N):
                        force(qn, i); again = True
            if i == N: break
            d, a, b, c, tag = self.m[i]
            p.mfma(d, a, b, c)
            if tag is not None: done[tag] = i + 1
            used = 0; nds = 0
            while True:
                best = None
                for qn, ql in self.q.items():
                    if ql and ready(ql[0], i + 1):
                        f = ql[0]
                        late = f["sd"] <= i + 1
                        if f.get("ds") and nds >= (2 if late else 1): continue
                        if used and used + f["cost"] > self.budget + (self.late_extra if late else 0): continue
                        if best is None or f["sd"] < self.q[best][0]["sd"]: best = qn
                if best is None: break
                if self.q[best][0].get("ds"): nds += 1
                used += emit(best, i + 1)
                if used >= self.budget + self.late_extra: break
```

```python
from asmlib import *
import math, struct, os
PROF = int(os.environ.get("PROF", "0"))
ABL = os.environ.get("ABL", "")
ROT = int(os.environ.get("ROT", "1"))
OFL = os.environ.get("OFL", "sc1")
def f2u(f): return struct.unpack("<I", struct.pack("<f", f))[0]
CSCALE = math.log2(math.e) / math.sqrt(128.0)
NWG = 752
SLOT = 18432
Q8AREA = 4 * SLOT
STAT = Q8AREA + 4096
LDS_BYTES = 81920
OBYTES = 32 * 288 * 4096
FLAGOFF = OBYTES
WSBYTES = OBYTES + 8192
SRD_WO, SRD_OUT, SRD_DBG = 68, 72, 76
S_NON = 64
S_FLG, S_FLGN = 66, 67
S_SPIN = 80
PUBPOS = int(os.environ.get("PUBPOS", "1"))

S_W = 3
SRD_X, SRD_K, SRD_V, SRD_W, SRD_O = 8, 12, 16, 20, 24
S_M0KV, S_M0X, S_M0X8 = 28, 29, 30
S_KVOFF = 31
S_WOFF, S_XOFF, S_XOFF8 = 32, 33, 41
S_OOFF, S_OOFF8 = 34, 43
S_ITER = 35
S_T0, S_T1 = 36, 37
S_B, S_H = 38, 39
S_CS = 40
S_KW, S_KX, S_KX8, S_ROT = 4, 5, 6, 7
S_XM = 54
S_WLIM = 42

V_DK, V_DV, V_DW, V_DX = 1, 2, 3, 4
V_AK, V_AK8, V_AV0, V_AV1, V_AV80, V_AV81, V_AX, V_AX8, V_LIN, V_P8W, V_OST = 6, 7, 8, 9, 10, 11, 12, 13, 14, 15, 16
V_L = 17
V_Q = 20; V_O = 68; V_S = 140; V_P = 176; V_P8 = 192; V_NM = 200; V_POOL = 212; V_T = 252
NPOOL = 10
def Qf(n, ks): return V_Q + (n * 4 + ks) * 4
def Oa(n, m): return V_O + (n * 8 + m) * 4 if n < 2 else V_O + 64 + m * 4
def Sa(n, kt): return V_S + (n * 4 + kt) * 4 if n < 2 else V_S + 32
def Pf(n, kk): return V_P + (n * 2 + kk) * 4
def NM(n): return V_NM + 4 * n
def Xf(buf, kh, t): return V_S + ((buf * 2 + kh) * 3 + t) * 4

SEQ = []
for i in range(10): SEQ += [("X", i), ("W", i)]
SEQ += [("K", 0)]
for j in range(7): SEQ += [("K", j + 1), ("V", j)]
SEQ += [("V", 7)]
NT = len(SEQ)
POS = {t: i for i, t in enumerate(SEQ)}
def slot_of(t): return (POS[t] % 4) * SLOT

def issue_ops(tile, nxt):
    kind, i = tile
    sb = slot_of(tile); tag = (kind, i, nxt)
    ops = []
    if kind in "KV":
        srd = SRD_K if kind == "K" else SRD_V
        voff = V_DK if kind == "K" else V_DV
        for kt in range(4):
            def f(p, kt=kt):
                p.s(f"s_add_u32 m0, s{S_M0KV}, {sb + kt * 2048}")
                p.s(f"s_add_u32 s{S_T0}, s{S_KVOFF}, {i * 16384 + kt * 4096}")
                if "D" not in ABL: p.dma(voff, srd, f"s{S_T0}", tag, "nt")
            ops.append(f)
    elif kind == "W":
        for kt in range(4):
            def f(p, kt=kt):
                p.s(f"s_add_u32 m0, s{S_M0KV}, {sb + kt * 2048}")
                p.s(f"s_add_u32 s{S_T0}, s{S_KW}, {(32 * (kt >> 1) + 4 * (kt & 1)) * 8192}")
                if "W" not in ABL: p.dma(V_DW, SRD_W, f"s{S_T0}", tag)
                if kt == 3:
                    p.s(f"s_add_u32 s{S_KW}, s{S_KW}, {64 * 8192}")
                    p.s(f"s_cmp_ge_u32 s{S_KW}, s{S_WLIM}")
                    p.s(f"s_cselect_b32 s{S_KW}, s{S_WOFF}, s{S_KW}")
            ops.append(f)
    else:
        if i == 0: ops.append(next_problem_setup)
        for k in range(4):
            def f(p, k=k):
                p.s(f"s_add_u32 m0, s{S_M0X}, {sb + k * 4096}")
                if k == 0: p.s(f"s_add_u32 s{S_KX8}, s{S_XOFF}, s{S_KX}")
                p.s(f"s_add_u32 s{S_T0}, s{S_KX8}, {k * 32 * 1280}")
                if "X" not in ABL: p.dma(V_DX, SRD_X, f"s{S_T0}", tag)
            ops.append(f)
        def f(p):
            p.s(f"s_add_u32 m0, s{S_M0X8}, {sb}")
            p.s(f"s_add_u32 s{S_T0}, s{S_XOFF8}, s{S_KX}")
            p.s(f"s_mov_b64 exec, s[{S_XM}:{S_XM+1}]")
            if "X" not in ABL: p.dma(V_DX, SRD_X, f"s{S_T0}", tag)
            p.s("s_mov_b64 exec, -1")
            p.s(f"s_add_u32 s{S_KX}, s{S_KX}, 128")
            p.s(f"s_cmp_ge_u32 s{S_KX}, 1280")
            p.s(f"s_cselect_b32 s{S_KX}, 0, s{S_KX}")
        ops.append(f)
    return ops

def next_problem_setup(p):
    p.s(f"s_lshl_b32 s{S_WOFF}, s{S_H}, 8")
    p.s(f"s_cmp_eq_u32 s{S_ITER}, 1")
    p.s(f"s_cselect_b32 s{S_WOFF}, 0x40000000, s{S_WOFF}")
    p.s(f"s_cselect_b32 s{S_XOFF}, 0x40000000, s{S_XOFF}")
    p.s(f"s_cselect_b32 s{S_XOFF8}, 0x40000000, s{S_XOFF8}")
    p.s(f"s_add_u32 s{S_WLIM}, s{S_WOFF}, {640 * 8192}")
    p.s(f"s_mul_i32 s{S_KW}, s{S_ROT}, {64 * 8192}")
    p.s(f"s_add_u32 s{S_KW}, s{S_KW}, s{S_WOFF}")
    p.s(f"s_lshl_b32 s{S_KX}, s{S_ROT}, 7")

lbl = [0]
def stamp(p, idx):
    if not PROF: return
    p.s("s_memtime s[60:61]")
    p.wait_lgkm0()
    p.raw(f"v_writelane_b32 v0, s60, {idx}")

def get_nonce(p, name, t):
    p.vop("v_mov_b32", t + 2, "0")
    p.label(f"{name}")
    p.raw(f"buffer_load_dwordx2 v[{t}:{t+1}], v{t+2}, s[{SRD_DBG}:{SRD_DBG+3}], 0 offen sc1")
    p.wait_all()
    p.raw(f"v_readfirstlane_b32 s{S_NON}, v{t}")
    p.raw(f"v_readfirstlane_b32 s{S_NON+1}, v{t+1}")
    p.s(f"s_sub_u32 s{S_SPIN}, s{S_SPIN}, 64")
    p.s(f"s_cbranch_scc1 {name}_x")
    p.s(f"s_cmp_lt_i32 s{S_NON+1}, 0")
    p.s(f"s_cbranch_scc0 {name}")
    p.label(f"{name}_x")

def publish(p, sflag):
    p.vop("v_mov_b32", V_P8, f"s{S_NON}")
    p.vop("v_mov_b32", V_P8 + 1, f"s{S_NON+1}")
    p.s("s_mov_b64 exec, 1")
    p.store(V_P8, 2, V_OST, SRD_O, f"s{sflag}", 0, tag="flag", flags="sc1")
    p.s("s_mov_b64 exec, -1")

def prologue(name):
    p = Prog()
    p.s(f"s_cmp_ge_u32 s2, {NWG}")
    p.s(f"s_cbranch_scc1 {name}_end")
    if PROF: p.s("s_memrealtime s[58:59]")
    p.s("s_load_dwordx4 s[44:47], s[0:1], 0")
    p.s("s_load_dwordx4 s[48:51], s[0:1], 16")
    p.s("s_load_dwordx2 s[52:53], s[0:1], 56")
    p.s("s_load_dwordx4 s[88:91], s[0:1], 32")
    p.s("s_load_dwordx2 s[92:93], s[0:1], 48")
    p.s(f"s_mov_b32 s{S_SPIN}, 0x100000")
    T = V_POOL
    W, L, a, b, c, d, H, U, VV, R8, PI, M, G = range(T, T + 13)
    p.vop("v_lshrrev_b32", W, "6", 0)
    p.vop("v_and_b32", L, "63", 0)
    p.add(Ins(f"v_readfirstlane_b32 s{S_W}, v{W}", "rfl", [W], []))
    p.vop("v_and_b32", H, "1", W)
    p.vop("v_lshrrev_b32", U, "1", W)
    p.vop("v_lshrrev_b32", VV, "5", L)
    p.vop("v_bfe_u32", R8, L, "2", "3")
    p.vop("v_and_b32", PI, "3", L)
    p.vop("v_and_b32", M, "15", L)
    p.vop("v_lshrrev_b32", G, "4", L)
    p.s(f"s_movk_i32 s{S_T0}, 1280")
    p.vop("v_lshl_add_u32", b, H, "3", R8)
    p.vop("v_mul_lo_u32", a, b, f"s{S_T0}")
    p.vop("v_lshl_add_u32", a, VV, "6", a)
    p.vop("v_mul_u32_u24", c, "3", H)
    p.vop("v_xor_b32", c, c, PI)
    p.vop("v_lshl_add_u32", V_DX, c, "4", a)
    p.vop("v_lshlrev_b32", a, "7", U)
    p.vop("v_lshl_add_u32", a, VV, "6", a)
    p.vop("v_lshl_add_u32", b, b, "8", a)
    p.vop("v_lshl_add_u32", V_DK, c, "4", b)
    p.vop("v_lshrrev_b32", c, "2", R8)
    p.vop("v_lshlrev_b32", d, "1", c)
    p.vop("v_xor_b32", d, d, PI)
    p.vop("v_lshl_add_u32", V_DV, d, "4", b)
    p.vop("v_lshlrev_b32", b, "4", H)
    p.vop("v_lshl_add_u32", b, c, "3", b)
    p.vop("v_and_b32", c, "3", R8)
    p.vop("v_add_u32", b, b, c)
    p.vop("v_lshl_add_u32", b, b, "13", a)
    p.vop("v_lshl_add_u32", V_DW, d, "4", b)
    p.s(f"s_and_b32 s{S_T0}, s{S_W}, 1")
    p.s(f"s_lshr_b32 s{S_T1}, s{S_W}, 1")
    p.s(f"s_lshl_b32 s{S_M0KV}, s{S_T0}, 13")
    p.s(f"s_lshl_b32 s{S_M0X}, s{S_T1}, 10")
    p.s(f"s_add_u32 s{S_M0KV}, s{S_M0KV}, s{S_M0X}")
    p.s(f"s_lshl_b32 s{S_M0X8}, s{S_T0}, 10")
    p.s(f"s_lshl_b32 s{S_M0X}, s{S_T1}, 11")
    p.s(f"s_add_u32 s{S_M0X}, s{S_M0X}, s{S_M0X8}")
    p.s(f"s_add_u32 s{S_M0X8}, s{S_M0X8}, 16384")
    p.s(f"s_cmp_eq_u32 s{S_T1}, 0")
    p.s(f"s_mov_b32 s{S_XM+1}, 0xffff0000")
    p.s(f"s_cselect_b32 s{S_XM}, 0xffff, s{S_XM+1}")
    p.s(f"s_mov_b32 s{S_XM+1}, s{S_XM}")
    p.s(f"s_mov_b32 s{S_CS}, {f2u(CSCALE):#x}")
    p.s(f"s_and_b32 s{S_T0}, s2, 7")
    p.s(f"s_lshl_b32 s{S_B}, s{S_T0}, 2")
    p.s(f"s_bfe_u32 s{S_ROT}, s2, 0x20006")
    p.s(f"s_add_u32 s{S_B}, s{S_B}, s{S_ROT}")
    p.s(f"s_bfe_u32 s{S_T0}, s2, 0x10008")
    p.s(f"s_lshl_b32 s{S_H}, s{S_T0}, 3")
    p.s(f"s_bfe_u32 s{S_T0}, s2, 0x30003")
    p.s(f"s_add_u32 s{S_H}, s{S_H}, s{S_T0}")
    p.s(f"s_lshl_b32 s{S_ROT}, s{S_ROT}, 1")
    p.s(f"s_add_u32 s{S_ROT}, s{S_ROT}, s{S_T0}")
    p.s(f"s_and_b32 s{S_ROT}, s{S_ROT}, 7")
    p.s(f"s_mul_i32 s{S_ROT}, s{S_ROT}, 5")
    p.s(f"s_lshr_b32 s{S_ROT}, s{S_ROT}, 2")
    if not ROT: p.s(f"s_mov_b32 s{S_ROT}, 0")
    p.s(f"s_mul_i32 s{S_XOFF8}, s{S_B}, {144 * 1280}")
    p.s(f"s_mul_i32 s{S_XOFF}, s{S_T1}, {16 * 1280}")
    p.s(f"s_add_u32 s{S_XOFF}, s{S_XOFF}, s{S_XOFF8}")
    p.s(f"s_add_u32 s{S_XOFF8}, s{S_XOFF8}, {128 * 1280}")
    p.s(f"s_mov_b32 s{S_ITER}, 0")
    p.s("s_waitcnt lgkmcnt(0)")
    for srd, src, size in ((SRD_X, 44, 32 * 144 * 640 * 2), (SRD_K, 46, 1 << 27), (SRD_V, 48, 1 << 27), (SRD_W, 50, 640 * 4096 * 2), (SRD_O, 52, (1 << 28) if PROF else WSBYTES),
                           (SRD_WO, 88, 4096 * 640 * 2), (SRD_OUT, 90, 32 * 144 * 640 * 2), (SRD_DBG, 92, 256)):
        p.s(f"s_mov_b32 s{srd}, s{src}")
        p.s(f"s_and_b32 s{srd+1}, s{src+1}, 0xffff")
        p.s(f"s_mov_b32 s{srd+2}, {size:#x}")
        p.s(f"s_mov_b32 s{srd+3}, 0x20000")
    p.s(f"s_cmp_ge_u32 s2, 512")
    p.s(f"s_cbranch_scc1 {name}_O")
    for i in range(3):
        for f in issue_ops(SEQ[i], True): f(p)
    p.s(f"s_or_b32 s{S_T0}, s2, s{S_W}")
    p.s(f"s_cmp_lg_u32 s{S_T0}, 0")
    p.s(f"s_cbranch_scc1 {name}_nononce")
    p.s(f"s_memrealtime s[{S_NON}:{S_NON+1}]")
    p.s("s_waitcnt lgkmcnt(0)")
    p.s(f"s_or_b32 s{S_NON+1}, s{S_NON+1}, 0x80000000")
    p.raw(f"v_mov_b32 v{V_T}, s{S_NON}")
    p.raw(f"v_mov_b32 v{V_T+1}, s{S_NON+1}")
    p.raw(f"v_mov_b32 v{V_T+2}, 0")
    p.s("s_mov_b64 exec, 1")
    p.raw(f"buffer_store_dwordx2 v[{V_T}:{V_T+1}], v{V_T+2}, s[{SRD_DBG}:{SRD_DBG+3}], 0 offen sc1")
    p.s("s_mov_b64 exec, -1")
    p.s("s_waitcnt vmcnt(0)")
    p.label(f"{name}_nononce")
    p.s(f"s_mov_b32 s{S_FLGN}, 0x40000000")
    p.s(f"s_mov_b32 s{S_NON+1}, 0")
    PR = int(os.environ.get("PRIO", "0"))
    if PR:
        p.s(f"s_cmp_ge_u32 s2, 256")
        p.s(f"s_cbranch_scc1 {name}_noprio")
        p.s(f"s_setprio {PR}")
        p.label(f"{name}_noprio")
    p.vop("v_lshrrev_b32", a, "3", M)
    p.vop("v_mul_u32_u24", c, "3", a)
    p.vop("v_xor_b32", c, c, G)
    p.vop("v_and_b32", b, "7", M)
    p.vop("v_lshlrev_b32", b, "6", b)
    p.vop("v_lshl_add_u32", b, c, "4", b)
    p.vop("v_lshl_add_u32", V_AK, a, "13", b)
    p.vop("v_lshl_add_u32", V_AK8, W, "11", V_AK)
    p.vop("v_lshl_add_u32", b, a, "10", b)
    p.vop("v_add_u32", V_AX8, "16384", b)
    p.vop("v_lshl_add_u32", V_AX, W, "12", b)
    p.vop("v_lshrrev_b32", a, "1", G)
    p.vop("v_lshlrev_b32", b, "13", a)
    p.vop("v_lshl_add_u32", b, R8, "6", b)
    p.vop("v_and_b32", c, "1", L)
    p.vop("v_lshl_add_u32", b, c, "3", b)
    p.vop("v_bfe_u32", c, L, "1", "1")
    p.vop("v_lshl_add_u32", b, c, "4", b)
    p.vop("v_and_b32", c, "1", G)
    p.vop("v_lshl_add_u32", V_AV0, c, "5", b)
    p.vop("v_xor_b32", V_AV1, "32", V_AV0)
    p.vop("v_lshl_add_u32", V_AV80, W, "9", V_AV0)
    p.vop("v_lshl_add_u32", V_AV81, W, "9", V_AV1)
    p.vop("v_lshlrev_b32", V_OST, "4", L)
    p.vop("v_add_u32", V_LIN, "16384", V_OST)
    p.vop("v_lshl_add_u32", V_P8W, U, "10", V_LIN)
    p.vop("v_lshl_add_u32", V_P8W, H, "3", V_P8W)
    return p

def body(name):
    p = Prog()
    p.label(f"{name}_loop")
    p.s(f"s_lshl_b32 s{S_T0}, s{S_B}, 5")
    p.s(f"s_add_u32 s{S_T0}, s{S_T0}, s{S_H}")
    p.s(f"s_lshl_b32 s{S_KVOFF}, s{S_T0}, 17")
    p.s(f"s_mul_i32 s{S_T0}, s{S_B}, 9")
    p.s(f"s_mul_i32 s{S_T1}, s{S_H}, 288")
    p.s(f"s_add_u32 s{S_T0}, s{S_T0}, s{S_T1}")
    p.s(f"s_lshl_b32 s{S_T1}, s{S_W}, 1")
    p.s(f"s_add_u32 s{S_OOFF}, s{S_T1}, s{S_T0}")
    p.s(f"s_lshl_b32 s{S_OOFF}, s{S_OOFF}, 12")
    p.s(f"s_add_u32 s{S_OOFF8}, s{S_T0}, 8")
    p.s(f"s_lshl_b32 s{S_OOFF8}, s{S_OOFF8}, 12")
    p.s(f"s_lshl_b32 s{S_T1}, s{S_W}, 10")
    p.s(f"s_add_u32 s{S_OOFF8}, s{S_OOFF8}, s{S_T1}")
    p.s(f"s_mov_b32 s{S_FLG}, s{S_FLGN}")
    p.s(f"s_lshl_b32 s{S_T0}, s{S_B}, 5")
    p.s(f"s_add_u32 s{S_T0}, s{S_T0}, s{S_H}")
    p.s(f"s_lshl_b32 s{S_T0}, s{S_T0}, 3")
    p.s(f"s_add_u32 s{S_FLGN}, s{S_T0}, {FLAGOFF}")
    p.s(f"s_cmp_eq_u32 s{S_W}, 0")
    p.s(f"s_cselect_b32 s{S_FLGN}, s{S_FLGN}, 0x40000000")
    p.s(f"s_add_u32 s{S_H}, s{S_H}, 16")

    sc = Sched(p, budget=int(os.environ.get("ABUD", "12")), late_extra=8)
    AV = (V_AV0, V_AV1); AV8 = (V_AV80, V_AV81)
    pool_last = [None] * NPOOL; pool_i = [0]
    LEAD = int(os.environ.get("LEAD", "8"))
    DSP = int(os.environ.get("DSP", "1"))
    frags = []
    def frag(tile, mk_reads, consumers):
        k = pool_i[0] % NPOOL; pool_i[0] += 1
        r = V_POOL + 4 * k
        war = pool_last[k]
        for (d, b, c, tag) in consumers: sc.mfma(d, r, b, c, tag)
        pool_last[k] = consumers[-1][3]
        frags.append((tile, mk_reads(r), consumers[0][3], war))
    def R128(d, a, off): return lambda p: p.ds_read128(d, a, off)
    def TR(d, a, off): return lambda p: p.ds_tr(d, a, off)
    for tile in SEQ:
        kind, i = tile
        sb = slot_of(tile)
        if kind == "X":
            buf = i & 1
            rd = []
            for kh in range(2):
                rd += [R128(Xf(buf, kh, 0), V_AX, sb + kh * 512), R128(Xf(buf, kh, 1), V_AX, sb + 2048 + kh * 512), R128(Xf(buf, kh, 2), V_AX8, sb + kh * 512)]
            frags.append((tile, rd, ("Q", i, 0, 0, 0), ("Q", i - 2, 1, 2, 1) if i >= 2 else None))
        elif kind == "W":
            buf = i & 1
            for kh in range(2):
                for m in range(8):
                    e, mp = m & 1, m >> 1
                    frag(tile, lambda r: [TR(r, AV[e], sb + (2 * kh) * 2048 + mp * 512), TR(r + 2, AV[e], sb + (2 * kh + 1) * 2048 + mp * 512)],
                         [(Oa(n, m), Xf(buf, kh, n), Oa(n, m) if (i or kh) else None, ("Q", i, kh, n, m)) for n in range(2)])
                for e in range(2):
                    frag(tile, lambda r: [TR(r, AV8[e], sb + (2 * kh) * 2048), TR(r + 2, AV8[e], sb + (2 * kh + 1) * 2048)],
                         [(Oa(2, e), Xf(buf, kh, 2), Oa(2, e) if (i or kh) else None, ("Q", i, kh, 2, e))])
        elif kind == "K":
            def cinit(n): return NM(n) if i else None
            def s8():
                for ks in range(4):
                    extra = [R128(Qf(2, t), V_LIN, Q8AREA - 16384 + t * 1024) for t in range(4)] if (i == 0 and ks == 0) else []
                    frag(tile, lambda r: [R128(r, V_AK8, sb + ks * 512)] + extra,
                         [(Sa(2, 0), Qf(2, ks), Sa(2, 0) if ks else cinit(2), ("S", i, 2, 0, ks))])
            s8()
            for kt in range(4):
                for ks in range(4):
                    cons = [(Sa(n, kt), Qf(n, ks), Sa(n, kt) if ks else cinit(n), ("S", i, n, kt, ks)) for n in range(2)]
                    if i == 0 and kt == 3: cons.append((V_T, Qf(2, ks), V_T if ks else None, ("S8ref", ks)))
                    frag(tile, lambda r: [R128(r, V_AK, sb + kt * 2048 + ks * 512)], cons)
        else:
            for kk in range(2):
                for m in range(8):
                    e, mp = m & 1, m >> 1
                    frag(tile, lambda r: [TR(r, AV[e], sb + (2 * kk) * 2048 + mp * 512), TR(r + 2, AV[e], sb + (2 * kk + 1) * 2048 + mp * 512)],
                         [(Oa(n, m), Pf(n, kk), Oa(n, m) if (i or kk) else None, ("PV", i, n, m, kk)) for n in range(2)])
                for e in range(2):
                    extra = [R128(V_P8 + 4 * kk, V_LIN, sb + kk * 1024)] if e == 0 else []
                    frag(tile, lambda r: [TR(r, AV8[e], sb + (2 * kk) * 2048), TR(r + 2, AV8[e], sb + (2 * kk + 1) * 2048)] + extra,
                         [(Oa(2, e), V_P8 + 4 * kk, Oa(2, e) if (i or kk) else None, ("PV", i, 2, e, kk))])
    assert pool_i[0] % NPOOL == 0

    cur = None; lastrd = None
    for (tile, reads, cons, war) in frags:
        if tile != cur:
            cur = tile
            kind, i = tile; pos = POS[tile]
            aft = []
            if kind == "V": aft.append(("P8W", i))
            if tile == ("V", 7): aft.append(("STATW",))
            if tile == ("K", 0): aft.append(("QFIN",))
            if lastrd is not None: aft.append(dict(tag=lastrd, delay=int(os.environ.get("BDL", "3"))))
            if pos: aft.append(("DMA", SEQ[pos - 1]))
            def bar(p, kind=kind, i=i, pos=pos):
                p.comment(f"---- step {kind}{i}")
                if pos == PUBPOS: p.wait_vm("st")
                p.wait_vm((kind, i, pos < 3), lgkm0=True)
                p.barrier()
                if pos == PUBPOS: publish(p, S_FLG)
                stamp(p, pos)
                PM = os.environ.get("PM", "")
                if PM == "prog" and pos in (0, 20):
                    k = lbl[0]; lbl[0] += 1
                    p.s(f"s_cmp_eq_u32 s{S_ITER}, 0")
                    p.s(f"s_cbranch_scc1 Lp{k}a")
                    p.s(f"s_setprio {1 if pos == 0 else 0}")
                    p.s(f"s_branch Lp{k}b")
                    p.label(f"Lp{k}a")
                    p.s(f"s_setprio {3 if pos == 0 else 2}")
                    p.label(f"Lp{k}b")
                if PM == "iter" and pos == 0:
                    k = lbl[0]; lbl[0] += 1
                    p.s(f"s_setprio 2")
                    p.s(f"s_cmp_eq_u32 s{S_ITER}, 0")
                    p.s(f"s_cbranch_scc1 Lp{k}a")
                    p.s(f"s_setprio 0")
                    p.label(f"Lp{k}a")
                if PM == "kv" and pos in (0, 17):
                    p.s(f"s_setprio {0 if pos == 0 else 2}")
                if PM == "q" and pos in (0, 20):
                    p.s(f"s_setprio {2 if pos == 0 else 0}")
            sc.fill("rd", bar, 8, after=aft, before=cons, lead=LEAD + (10 if kind == "X" else 2), tag=("BAR", tile))
            nt = pos + 3
            ops = issue_ops(SEQ[nt % NT], nt >= NT)
            for k, fn in enumerate(ops):
                sc.fill("dma", fn, 12, after=dict(tag=("BAR", tile), delay=DSP * k), before=sc.m[min(sc.idx[cons] + 4 + DSP * k, len(sc.m) - 1)][4], lead=40,
                        tag=("DMA", tile) if k == len(ops) - 1 else None)
        for k, fn in enumerate(reads):
            lastrd = ("RD", tile, len(sc.q.get("rd", [])))
            sc.fill("rd", fn, 4, ds=True, after=war if k == 0 else None, before=cons, lead=LEAD + (8 if tile[0] == "X" else 0), tag=lastrd)

    def V(fn, after=None, before=None, cost=4, tag=None, lead=0): sc.fill("va", fn, cost, after=after, before=before, tag=tag, lead=lead)
    def q_finalize(p):
        for n in (2, 0, 1):
            for t in range(4 if n < 2 else 1):
                dst = Qf(n, t) if n < 2 else V_T
                src0 = Oa(n, 2 * t); src1 = Oa(n, 2 * t + 1)
                for r in range(4):
                    p.vop("v_mul_f32", src0 + r, f"s{S_CS}", src0 + r)
                    p.vop("v_mul_f32", src1 + r, f"s{S_CS}", src1 + r)
                p.cvtpk(dst, src0, src0 + 1); p.cvtpk(dst + 1, src0 + 2, src0 + 3)
                p.cvtpk(dst + 2, src1, src1 + 1); p.cvtpk(dst + 3, src1 + 2, src1 + 3)
        for n in (2, 0, 1):
            for t in range(4 if n < 2 else 1):
                dst = Qf(n, t) if n < 2 else V_T
                p.swap32(dst, dst + 2); p.swap32(dst + 1, dst + 3)
                p.swap16(dst, dst + 2); p.swap16(dst + 1, dst + 3)
            if n == 2:
                p.v(f"v_lshl_add_u32 v{V_S}, s{S_W}, 10, v{V_LIN}", [V_S], [V_LIN])
                p.ds_write(V_S, V_T, 4, Q8AREA - 16384)
    V(q_finalize, after=("Q", 9, 1, 2, 1), before=("S", 0, 2, 0, 0), cost=200, tag=("QFIN",))
    def block0_max(p):
        for n in range(3):
            regs = [Sa(n, kt) + r for kt in range(4) for r in range(4)] if n < 2 else [V_T + r for r in range(4)]
            m = NM(n)
            p.vop("v_max3_f32", m, regs[0], regs[1], regs[2])
            rest = regs[3:]
            while len(rest) >= 2:
                p.vop("v_max3_f32", m, m, rest[0], rest[1]); rest = rest[2:]
            if rest: p.vop("v_max_f32", m, m, rest[0])
        for sw in (p.swap32, p.swap16):
            for n in range(3): p.vop("v_mov_b32", NM(n) + 1, NM(n))
            for n in range(3): sw(NM(n), NM(n) + 1)
            for n in range(3): p.vop("v_max_f32", NM(n), NM(n), NM(n) + 1)
        for n in range(3):
            p.vop("v_sub_f32", NM(n), "0", NM(n))
            for r in range(1, 4): p.vop("v_mov_b32", NM(n) + r, NM(n))
        for n in (2, 0, 1):
            regs = [Sa(n, kt) + r for kt in range(4) for r in range(4)] if n < 2 else [Sa(2, 0) + r for r in range(4)]
            for r in regs: p.vop("v_add_f32", r, r, NM(n))
    for j in range(8):
        if j == 0: V(block0_max, after=("S8ref", 3), before=("S", 1, 2, 0, 0), cost=200)
        order = [(2, 0)] + [(n, kt) for kt in range(4) for n in range(2)]
        nxtS = lambda n, kt: ("S", j + 1, n, kt, 0) if j < 7 else None
        for (n, kt) in order:
            a = dict(tag=("S", j, n, kt, 3), delay=2) if j else None
            for r in range(4):
                reg = Sa(n, kt) + r
                V(lambda p, reg=reg: p.exp(reg, reg), after=a, cost=8)
            for r in range(4):
                reg = Sa(n, kt) + r
                if j == 0 and kt == 0 and r == 0: V(lambda p, reg=reg, n=n: p.vop("v_mov_b32", V_L + n, reg))
                else: V(lambda p, reg=reg, n=n: p.vop("v_add_f32", V_L + n, V_L + n, reg))
            if n == 2:
                V(lambda p: p.cvtpk(V_T, Sa(2, 0), Sa(2, 0) + 1))
                V(lambda p: p.cvtpk(V_T + 1, Sa(2, 0) + 2, Sa(2, 0) + 3), before=nxtS(2, 0))
                V(lambda p, j=j: p.ds_write(V_P8W, V_T, 2, slot_of(("V", j))), tag=("P8W", j))
                if j == 7:
                    V(lambda p: p.v(f"v_lshl_add_u32 v{V_T+2}, s{S_W}, 2, v{V_LIN}", [V_T + 2], [V_LIN]))
                    V(lambda p: p.ds_write(V_T + 2, V_L + 2, 1, STAT - 16384), tag=("STATW",))
            if j == 0 and n == 1:
                for n2 in range(2):
                    V(lambda p, n2=n2, kt=kt: p.cvtpk(Pf(n2, kt >> 1) + 2 * (kt & 1), Sa(n2, kt), Sa(n2, kt) + 1))
                    V(lambda p, n2=n2, kt=kt: p.cvtpk(Pf(n2, kt >> 1) + 2 * (kt & 1) + 1, Sa(n2, kt) + 2, Sa(n2, kt) + 3), before=nxtS(0, kt))
        if j:
            for kk in range(2):
                a = ("PV", j - 1, 1, 7, kk)
                for h in range(2):
                    kt = 2 * kk + h
                    for n in range(2):
                        bf = nxtS(0, kt) if j < 7 else ("PV", 7, 0, 0, kk)
                        V(lambda p, n=n, kk=kk, h=h, kt=kt: p.cvtpk(Pf(n, kk) + 2 * h, Sa(n, kt), Sa(n, kt) + 1), after=a)
                        V(lambda p, n=n, kk=kk, h=h, kt=kt: p.cvtpk(Pf(n, kk) + 2 * h + 1, Sa(n, kt) + 2, Sa(n, kt) + 3), before=bf, lead=2)
    sc.run()
    stamp(p, 36)
    p.s(f"s_cmp_lt_i32 s{S_NON+1}, 0")
    p.s(f"s_cbranch_scc1 {name}_havenon")
    get_nonce(p, f"{name}_Anon", V_T)
    p.label(f"{name}_havenon")
    p.ds_read128(V_T, V_LIN, STAT - 16384)
    p.vop("v_add_f32", V_T, V_T, V_T + 1); p.vop("v_add_f32", V_T + 2, V_T + 2, V_T + 3)
    p.vop("v_add_f32", V_L + 2, V_T, V_T + 2)
    for sw in (p.swap32, p.swap16):
        for n in range(3): p.vop("v_mov_b32", V_T + n, V_L + n)
        for n in range(3): sw(V_L + n, V_T + n)
        for n in range(3): p.vop("v_add_f32", V_L + n, V_L + n, V_T + n)
    for n in range(3): p.vop("v_rcp_f32", V_L + n, V_L + n, kind="trans")
    k = 0
    for n in range(3):
        for t in range(4 if n < 2 else 1):
            dst = V_Q + 4 * k; k += 1
            s0 = Oa(n, 2 * t); s1 = Oa(n, 2 * t + 1)
            for r in range(4):
                p.vop("v_mul_f32", s0 + r, s0 + r, V_L + n)
                p.vop("v_mul_f32", s1 + r, s1 + r, V_L + n)
            p.cvtpk(dst, s0, s0 + 1); p.cvtpk(dst + 1, s0 + 2, s0 + 3)
            p.cvtpk(dst + 2, s1, s1 + 1); p.cvtpk(dst + 3, s1 + 2, s1 + 3)
            if n == 1 and t == 0: p.s(f"s_add_u32 s{S_OOFF}, s{S_OOFF}, 4096")
            if "O" not in ABL: p.store(dst, 4, V_OST, SRD_O, f"s{S_OOFF if n < 2 else S_OOFF8}", t * 1024, flags=OFL)
    if PROF:
        stamp(p, 37)
        p.s("s_memrealtime s[56:57]")
        p.s("s_waitcnt lgkmcnt(0)")
        p.raw("v_writelane_b32 v0, s58, 62")
        p.raw("v_writelane_b32 v0, s56, 63")
        p.s(f"s_lshl_b32 s60, s2, 1")
        p.s(f"s_add_u32 s60, s60, s{S_ITER}")
        p.s(f"s_lshl_b32 s60, s60, 2")
        p.s(f"s_add_u32 s60, s60, s{S_W}")
        p.s(f"s_lshl_b32 s60, s60, 8")
        p.s(f"s_add_u32 s60, s60, 0x4000000")
        p.vop("v_lshrrev_b32", V_T, "2", V_OST)
        p.store(0, 1, V_T, SRD_O, "s60", 0)
    p.s(f"s_add_u32 s{S_ITER}, s{S_ITER}, 1")
    p.s(f"s_cmp_lt_u32 s{S_ITER}, 2")
    p.s(f"s_cbranch_scc1 {name}_loop")
    p.wait_all()
    p.barrier()
    publish(p, S_FLGN)
    p.raw("s_endpgm")
    return p

G_DO, G_AO, G_OL, G_FA = 1, 2, 6, 7
G_OACC = 8
G_OB = 104
G_NB = int(os.environ.get("GNB", "7"))
G_OP = G_OB + 12 * G_NB
G_NOP = (256 - G_OP) // 4 // 8 * 8
NWO = 5
S_WOO, S_OB, S_OUT, S_R, S_C, S_FB, S_ROTO, S_KB, S_KWB, S_KBB = 81, 82, 83, 84, 85, 86, 87, 31, 32, 33
def OA(t, m): return G_OACC + (t * 8 + m) * 4
NSO = 64

def go_issue_w(s_):
    sb = (s_ % NWO) * 16384
    ops = []
    for kt in range(4):
        def f(p, kt=kt):
            p.s(f"s_add_u32 m0, s{S_M0KV}, {sb + kt * 2048}")
            if kt == 0:
                p.s(f"s_mul_i32 s{S_KWB}, s{S_KW}, {64 * 1280}")
                p.s(f"s_add_u32 s{S_KWB}, s{S_KWB}, s{S_WOO}")
                p.s(f"s_add_u32 s{S_KW}, s{S_KW}, 1")
                p.s(f"s_and_b32 s{S_KW}, s{S_KW}, 15")
            p.s(f"s_add_u32 s{S_T0}, s{S_KWB}, {((s_ >> 4) * 1024 + 16 * kt) * 1280}")
            if "V" not in ABL: p.dma(G_DO, SRD_WO, f"s{S_T0}", ("WO", s_))
        ops.append(f)
    return ops
def go_issue_b(s_):
    ops = []
    for t in range(3):
        def f(p, t=t):
            if t == 0:
                p.s(f"s_lshr_b32 s{S_KBB}, s{S_KB}, 1")
                p.s(f"s_mul_i32 s{S_KBB}, s{S_KBB}, {288 * 4096}")
                p.s(f"s_and_b32 s{S_T0}, s{S_KB}, 1")
                p.s(f"s_lshl_b32 s{S_T0}, s{S_T0}, 11")
                p.s(f"s_add_u32 s{S_KBB}, s{S_KBB}, s{S_T0}")
                p.s(f"s_add_u32 s{S_KBB}, s{S_KBB}, s{S_OB}")
                p.s(f"s_add_u32 s{S_KB}, s{S_KB}, 1")
                p.s(f"s_and_b32 s{S_KB}, s{S_KB}, 15")
            p.s(f"s_add_u32 s{S_T0}, s{S_KBB}, {(s_ >> 4) * 8 * 288 * 4096 + t * 4096}")
            if "B" not in ABL: p.load4(G_OB + ((s_ % G_NB) * 3 + t) * 4, G_OL, SRD_O, f"s{S_T0}", 0, ("OB", s_), "sc1")
        ops.append(f)
    return ops

def o_role(name):
    p = Prog()
    p.label(f"{name}_O")
    T = V_POOL
    W, L, a, b, c, d, H, U, VV, R8, PI, M, G = range(T, T + 13)
    p.s(f"s_movk_i32 s{S_T0}, 1280")
    p.vop("v_lshl_add_u32", b, H, "3", R8)
    p.vop("v_mul_lo_u32", b, b, f"s{S_T0}")
    p.vop("v_lshl_add_u32", b, U, "7", b)
    p.vop("v_lshl_add_u32", b, VV, "6", b)
    p.vop("v_lshrrev_b32", c, "2", R8)
    p.vop("v_lshlrev_b32", d, "1", c)
    p.vop("v_xor_b32", d, d, PI)
    p.vop("v_lshl_add_u32", G_DO, d, "4", b)
    p.s(f"s_sub_u32 s{S_T0}, s2, 512")
    p.s(f"s_lshr_b32 s{S_T0}, s{S_T0}, 3")
    p.s(f"s_mul_i32 s{S_R}, s{S_T0}, 52")
    p.s(f"s_lshr_b32 s{S_R}, s{S_R}, 8")
    p.s(f"s_mul_i32 s{S_C}, s{S_R}, 5")
    p.s(f"s_sub_u32 s{S_C}, s{S_T0}, s{S_C}")
    p.s(f"s_mul_i32 s{S_T0}, s{S_R}, 43")
    p.s(f"s_mul_i32 s{S_T1}, s{S_C}, 51")
    p.s(f"s_add_u32 s{S_T0}, s{S_T0}, s{S_T1}")
    p.s(f"s_bfe_u32 s{S_KW}, s{S_T0}, 0x40004")
    if not ROT: p.s(f"s_mov_b32 s{S_KW}, 0")
    p.s(f"s_mov_b32 s{S_KB}, s{S_KW}")
    p.s(f"s_and_b32 s{S_T0}, s2, 7")
    p.s(f"s_mul_i32 s{S_T0}, s{S_T0}, 6")
    p.s(f"s_add_u32 s{S_R}, s{S_R}, s{S_T0}")
    p.s(f"s_lshl_b32 s{S_WOO}, s{S_C}, 8")
    PW = NWO - 1; PB = G_NB - 1
    for i in range(PW):
        for fn in go_issue_w(i): fn(p)
    p.s(f"s_mul_i32 s{S_T0}, s{S_R}, 6")
    p.s(f"s_and_b32 s{S_T1}, s{S_W}, 1")
    p.s(f"s_mul_i32 s{S_T1}, s{S_T1}, 3")
    p.s(f"s_add_u32 s{S_T0}, s{S_T0}, s{S_T1}")
    p.s(f"s_mul_i32 s{S_OUT}, s{S_T0}, {16 * 1280}")
    p.s(f"s_add_u32 s{S_OUT}, s{S_OUT}, s{S_WOO}")
    p.s(f"s_lshr_b32 s{S_T1}, s{S_W}, 1")
    p.s(f"s_lshl_b32 s{S_OB}, s{S_T1}, 7")
    p.s(f"s_add_u32 s{S_OUT}, s{S_OUT}, s{S_OB}")
    p.s(f"s_lshl_b32 s{S_OB}, s{S_T0}, 12")
    p.s(f"s_lshl_b32 s{S_T1}, s{S_T1}, 10")
    p.s(f"s_add_u32 s{S_OB}, s{S_OB}, s{S_T1}")
    p.s(f"s_mul_i32 s{S_T0}, s{S_T0}, 7282")
    p.s(f"s_lshr_b32 s{S_T0}, s{S_T0}, 16")
    p.s(f"s_lshl_b32 s{S_T0}, s{S_T0}, 8")
    p.s(f"s_add_u32 s{S_FB}, s{S_T0}, {FLAGOFF}")
    p.vop("v_lshrrev_b32", a, "1", G)
    p.vop("v_lshlrev_b32", b, "13", a)
    p.vop("v_lshl_add_u32", b, R8, "6", b)
    p.vop("v_and_b32", c, "1", L)
    p.vop("v_lshl_add_u32", b, c, "3", b)
    p.vop("v_bfe_u32", c, L, "1", "1")
    p.vop("v_lshl_add_u32", b, c, "4", b)
    p.vop("v_and_b32", c, "1", G)
    p.vop("v_lshl_add_u32", G_AO, c, "5", b)
    p.vop("v_lshl_add_u32", G_AO, U, "12", G_AO)
    p.vop("v_lshl_add_u32", G_AO, U, "10", G_AO)
    p.vop("v_xor_b32", G_AO + 1, "32", G_AO)
    p.vop("v_xor_b32", G_AO + 2, "1024", G_AO)
    p.vop("v_xor_b32", G_AO + 3, "1024", G_AO + 1)
    p.vop("v_lshlrev_b32", G_OL, "4", L)
    p.vop("v_and_b32", a, "7", L)
    p.vop("v_lshlrev_b32", G_FA, "3", a)
    get_nonce(p, f"{name}_Onon", G_OB)
    stamp(p, 0)
    PT = 254
    assert G_OP + 4 * G_NOP <= PT
    def poll(p, ch):
        p.label(f"{name}_poll{ch}")
        p.add(Ins(f"buffer_load_dwordx2 v[{PT}:{PT+1}], v{G_FA}, s[{SRD_O}:{SRD_O+3}], s{S_FB} offen offset:{ch * 64} sc1", "vml", [G_FA], [PT, PT + 1], tag="poll"))
        p.add(Ins(f"v_cmp_ne_u32 vcc, s{S_NON}, v{PT}", "valu", [PT], []))
        p.add(Ins(f"v_cmp_ne_u32 s[56:57], s{S_NON+1}, v{PT+1}", "valu", [PT + 1], []))
        p.s(f"s_or_b64 vcc, vcc, s[56:57]")
        p.s(f"s_cbranch_scc0 {name}_ready{ch}")
        p.s(f"s_sub_u32 s{S_SPIN}, s{S_SPIN}, 16")
        p.s(f"s_cbranch_scc1 {name}_ready{ch}")
        p.s("s_sleep 8")
        p.s(f"s_branch {name}_poll{ch}")
        p.label(f"{name}_ready{ch}")
        stamp(p, 1 + ch)
    poll(p, 0)
    for i in range(PB):
        for fn in go_issue_b(i): fn(p)
    sc = Sched(p, budget=int(os.environ.get("GBUD", "8")), late_extra=8)
    al = [None] * G_NOP; ai = [0]
    LEAD = 8
    lastrd = None
    PBL = int(os.environ.get("PBL", "2"))
    for i in range(NSO):
        wsb = (i % NWO) * 16384
        plan = []
        for m in range(8):
            k = ai[0] % G_NOP; ai[0] += 1
            r = G_OP + 4 * k
            war = al[k]
            for t in range(3):
                sc.mfma(OA(t, m), r, G_OB + ((i % G_NB) * 3 + t) * 4, OA(t, m) if i else None, ("O", i, m, t))
            al[k] = ("O", i, m, 2)
            plan.append((r, m, war))
    for i in range(NSO):
        wsb = (i % NWO) * 16384
        cons = ("O", i, 0, 0)
        def bar(p, i=i):
            p.comment(f"---- o step {i}")
            p.wait_vm(("WO", i), lgkm0=True)
            p.barrier()
        aft = [dict(tag=lastrd, delay=3)] if lastrd else []
        if i and i - 1 + PW < NSO: aft.append(("DMA", i - 1))
        sc.fill("rd", bar, 8, after=aft, before=cons, lead=LEAD + 12, tag=("BAR", i))
        ops = go_issue_w(i + PW) if i + PW < NSO else []
        for k, fn in enumerate(ops):
            sc.fill("dma", fn, 8, after=dict(tag=("BAR", i), delay=2 * k), before=sc.m[min(sc.idx[cons] + 2 * k, len(sc.m) - 1)][4], lead=40, tag=("DMA", i) if k == 3 else None)
        for m in range(8):
            k = (i * 8 + m) % G_NOP
            r = G_OP + 4 * k
            g = i * 8 + m - G_NOP
            war = ("O", g // 8, g % 8, 2) if g >= 0 else None
            e, mp = m & 1, m >> 1
            ad = G_AO + 2 * (mp >> 1) + e
            off = wsb + (mp & 1) * 512
            if off + 2048 > 65535:
                pass
            sc.fill("rd", lambda p, r=r, ad=ad, off=off: rd_tr(p, r, ad, off), 4, ds=True, after=war, before=("O", i, m, 0), lead=LEAD + 8)
            lastrd = ("RD", i, m)
            sc.fill("rd", lambda p, r=r, ad=ad, off=off: rd_tr(p, r + 2, ad, off + 2048), 4, ds=True, before=("O", i, m, 0), lead=LEAD + 8, tag=lastrd)
    for s_ in range(PB, NSO):
        prev = s_ - G_NB
        aft = dict(tag=("O", prev, 7, 2), delay=1) if prev >= 0 else None
        if s_ % 16 == 0:
            ch = s_ // 16
            pa = ("O", s_ - PBL, 7, 2) if ch == 3 else aft
            sc.fill("dmb", lambda p, ch=ch: poll(p, ch), 40, after=pa, before=("O", s_, 0, 0))
        for k, fn in enumerate(go_issue_b(s_)):
            sc.fill("dmb", fn, 8, after=aft if k == 0 else None, before=("O", s_, 0, 0), lead=24 * PB)
    sc.run()
    stamp(p, 5)
    p.wait_lgkm0()
    p.barrier()
    A1, A2, LL = G_OP, G_OP + 1, G_OP + 2
    p.s(f"s_mul_i32 s{S_T0}, s{S_W}, 12288")
    p.vop("v_add_u32", A1, f"s{S_T0}", G_OL)
    p.s(f"s_xor_b32 s{S_T1}, s{S_W}, 2")
    p.s(f"s_mul_i32 s{S_T1}, s{S_T1}, 12288")
    p.vop("v_add_u32", A2, f"s{S_T1}", G_OL)
    for t in range(3):
        for m in range(4):
            p.ds_write(A1, OA(t, 4 + m), 4, (t * 4 + m) * 1024)
    p.vop("v_lshrrev_b32", LL, "4", G_OL)
    p.vop("v_and_b32", A1 + 3, "15", LL)
    p.s(f"s_movk_i32 s{S_T0}, 1280")
    p.vop("v_mul_lo_u32", A1 + 3, A1 + 3, f"s{S_T0}")
    p.vop("v_lshrrev_b32", LL, "4", LL)
    p.vop("v_lshl_add_u32", A1 + 3, LL, "4", A1 + 3)
    p.wait_lgkm0()
    p.barrier()
    for t in range(3):
        for m in range(4):
            p.ds_read128(G_OB + (t * 4 + m) * 4, A2, (t * 4 + m) * 1024)
    for t in range(3):
        for pr in range(2):
            dst = G_OB + 48 + (t * 2 + pr) * 4
            for e in range(2):
                m = 2 * pr + e
                for r in range(4): p.vop("v_add_f32", OA(t, m) + r, OA(t, m) + r, G_OB + (t * 4 + m) * 4 + r)
            s0, s1 = OA(t, 2 * pr), OA(t, 2 * pr + 1)
            p.cvtpk(dst, s0, s0 + 1); p.cvtpk(dst + 1, s0 + 2, s0 + 3)
            p.cvtpk(dst + 2, s1, s1 + 1); p.cvtpk(dst + 3, s1 + 2, s1 + 3)
            p.swap32(dst, dst + 2); p.swap32(dst + 1, dst + 3)
            p.swap16(dst, dst + 2); p.swap16(dst + 1, dst + 3)
            p.s(f"s_add_u32 s{S_T0}, s{S_OUT}, {t * 16 * 1280}")
            p.store(dst, 4, A1 + 3, SRD_OUT, f"s{S_T0}", pr * 64)
    if PROF:
        stamp(p, 6)
        p.s("s_memrealtime s[56:57]")
        p.s("s_waitcnt lgkmcnt(0)")
        p.raw("v_writelane_b32 v0, s58, 62")
        p.raw("v_writelane_b32 v0, s56, 63")
        p.s(f"s_lshl_b32 s60, s2, 3")
        p.s(f"s_add_u32 s60, s60, s{S_W}")
        p.s(f"s_lshl_b32 s60, s60, 8")
        p.s(f"s_add_u32 s60, s60, 0x4000000")
        p.vop("v_lshrrev_b32", LL, "2", G_OL)
        p.store(0, 1, LL, SRD_O, "s60", 0)
    p.label(f"{name}_end")
    p.raw("s_endpgm")
    return p

G_AH = 252
def rd_tr(p, r, ad, off):
    if off <= 65535: p.ds_tr(r, ad, off)
    else:
        p.vop("v_add_u32", G_AH, "32768", ad)
        p.ds_tr(r, G_AH, off - 32768)

def gen(name):
    pro = prologue(name); b = body(name); o = o_role(name)
    lines, stats = finalize([(pro, 1), (b, 2)])
    lo, so = finalize([(o, 1)])
    return [f".globl {name}", ".p2align 8", f".type {name},@function", f"{name}:"] + lines + lo, (stats, so)
```

```python
from asmlib import *
import math, struct, os
PROF = int(os.environ.get("PROF", "0"))
ABL = os.environ.get("ABL", "")
WFL = os.environ.get("WFL", ""); XFL = os.environ.get("XFL", ""); OFL = os.environ.get("OFL", "sc1")
def f2u(f): return struct.unpack("<I", struct.pack("<f", f))[0]
CSCALE = math.log2(math.e) / math.sqrt(128.0)

NWG = 256
LDS_BYTES = 163840
SLOT = 16384
MISC = 4 * SLOT
P8A = MISC
STAT = MISC + 8192
SYNC = MISC + 9216
GW = MISC + 12288
XB = GW + 3 * 16384
NXS = 2
NWO = 3
XSLOT = 18432
OBYTES = 32 * 288 * 4096
MBOX = XB
FLAGOFF = OBYTES
WSBYTES = OBYTES + 8192
SRD_WO, SRD_OUT, SRD_DBG = 68, 72, 76
S_NON = 64
S_FLG = 66
S_FLGN = 67
S_WOO, S_OB, S_OUT, S_R, S_C = 80, 81, 82, 83, 84
S_FB = 85
S_KW, S_KX, S_KX8, S_ROTQ, S_ROTO, S_KB = 86, 87, 88, 89, 90, 91
ROT = int(os.environ.get("ROT", "1"))
GATE = int(os.environ.get("GATE", "1"))
S_GT, S_GI = 86, 87
GT_BASE = [int(x) for x in os.environ.get("GTB", "12,24,53,76").split(",")]
GT_INC = [int(x) for x in os.environ.get("GTI", "28,62,62,48").split(",")]
NO_ARR = 17
GPH_Q = [12, 24, 36, 36 + NO_ARR + 12]

S_W = 3
SRD_X, SRD_K, SRD_V, SRD_W, SRD_O = 8, 12, 16, 20, 24
S_M0KV = 28
S_KVOFF, S_KVOFFN = 31, 32
S_OOFF, S_OOFF8 = 34, 43
S_ITER = 35
S_T0, S_T1 = 36, 37
S_B, S_H = 38, 39
S_CS = 40
S_WOFF, S_XOFF, S_XOFF8, S_M0X, S_M0X8 = 29, 30, 33, 41, 42
S_XM = 54
S_W8 = 4

slow = []
lbl = [0]
SLP = int(os.environ.get("SLP", "0"))
def sync_check_ops(vchk, vaddr, off, vtarget, sleep=None):
    k = lbl[0]; lbl[0] += 1
    def rd(p): p.ds_read32(vchk, vaddr, off)
    def test(p):
        p.add(Ins(f"v_cmp_gt_u32 vcc, v{vtarget}, v{vchk}", "valu", [vtarget, vchk], []))
        p.s(f"s_cbranch_vccnz Lslow{k}")
        p.label(f"Lback{k}")
    slow.extend([f"Lslow{k}:", "    s_sub_u32 s5, s5, 1", f"    s_cbranch_scc1 Lback{k}", f"    s_sleep {SLP if sleep is None else sleep}", f"    ds_read_b32 v{vchk}, v{vaddr} offset:{off}", "    s_waitcnt lgkmcnt(0)",
                 f"    v_cmp_gt_u32 vcc, v{vtarget}, v{vchk}", f"    s_cbranch_vccnz Lslow{k}", f"    s_branch Lback{k}"])
    return rd, test

def prof_stamp(p, vreg, idx):
    if not PROF: return
    p.s("s_memtime s[60:61]")
    p.wait_lgkm0()
    p.raw(f"v_writelane_b32 v{vreg}, s60, {idx}")

def prof_dump(p, vreg, vtmp, vlin16, lin_bias, siter=S_ITER):
    if not PROF: return
    p.s("s_memrealtime s[56:57]")
    p.s("s_waitcnt lgkmcnt(0)")
    p.raw(f"v_writelane_b32 v{vreg}, s58, 62")
    p.raw(f"v_writelane_b32 v{vreg}, s56, 63")
    p.s(f"s_lshl_b32 s60, s2, 2")
    p.s(f"s_add_u32 s60, s60, s{siter}")
    p.s(f"s_lshl_b32 s60, s60, 3")
    p.s(f"s_add_u32 s60, s60, s{S_W8}")
    p.s(f"s_lshl_b32 s60, s60, 8")
    p.s(f"s_add_u32 s60, s60, 0x8000000")
    p.vop("v_subrev_u32", vtmp, f"{lin_bias}", vlin16)
    p.vop("v_lshrrev_b32", vtmp, "2", vtmp)
    p.store(vreg, 1, vtmp, SRD_O, "s60", 0)

V_SYW, V_SYR, V_PH, V_CHK = 1, 2, 3, 4
T0 = 230
def common_prologue(name):
    p = Prog()
    p.s(f"s_cmp_ge_u32 s2, {NWG}")
    p.s(f"s_cbranch_scc1 {name}_end")
    if PROF: p.s("s_memrealtime s[58:59]")
    p.s("s_load_dwordx4 s[44:47], s[0:1], 0")
    p.s("s_load_dwordx4 s[48:51], s[0:1], 16")
    p.s("s_load_dwordx2 s[52:53], s[0:1], 56")
    p.s("s_load_dwordx4 s[88:91], s[0:1], 32")
    p.s("s_load_dwordx2 s[92:93], s[0:1], 48")
    W8, L, W, a = T0, T0 + 1, T0 + 2, T0 + 3
    p.vop("v_lshrrev_b32", W8, "6", 0)
    p.vop("v_and_b32", L, "63", 0)
    p.vop("v_and_b32", W, "3", W8)
    p.add(Ins(f"v_readfirstlane_b32 s{S_W8}, v{W8}", "rfl", [W8], []))
    p.add(Ins(f"v_readfirstlane_b32 s{S_W}, v{W}", "rfl", [W], []))
    p.vop("v_lshlrev_b32", V_SYW, "2", 0)
    p.vop("v_add_u32", V_SYW, f"{SYNC}", V_SYW)
    p.vop("v_and_b32", a, "3", L)
    p.vop("v_lshlrev_b32", a, "8", a)
    p.vop("v_lshl_add_u32", V_SYR, L, "2", a)
    p.vop("v_add_u32", V_SYR, f"{SYNC}", V_SYR)
    p.vop("v_mov_b32", V_PH, "0")
    p.ds_write(V_SYW, V_PH, 1, 0)
    p.s(f"s_and_b32 s{S_T0}, s2, 7")
    p.s(f"s_lshl_b32 s{S_B}, s{S_T0}, 2")
    p.s(f"s_lshr_b32 s{S_T0}, s2, 6")
    p.s(f"s_add_u32 s{S_B}, s{S_B}, s{S_T0}")
    p.s(f"s_bfe_u32 s{S_H}, s2, 0x30003")
    p.s(f"s_mov_b32 s{S_ITER}, 0")
    p.s("s_mov_b32 s5, 0x40000")
    p.s(f"s_and_b32 s{S_T0}, s{S_W}, 1")
    p.s(f"s_lshl_b32 s{S_T0}, s{S_T0}, 13")
    p.s(f"s_lshr_b32 s{S_T1}, s{S_W}, 1")
    p.s(f"s_lshl_b32 s{S_M0KV}, s{S_T1}, 10")
    p.s(f"s_add_u32 s{S_M0KV}, s{S_M0KV}, s{S_T0}")
    p.s("s_waitcnt lgkmcnt(0)")
    for srd, src, size in ((SRD_X, 44, 32 * 144 * 640 * 2), (SRD_K, 46, 1 << 27), (SRD_V, 48, 1 << 27), (SRD_W, 50, 640 * 4096 * 2), (SRD_O, 52, (1 << 28) if PROF else WSBYTES),
                           (SRD_WO, 88, 4096 * 640 * 2), (SRD_OUT, 90, 32 * 144 * 640 * 2), (SRD_DBG, 92, 256)):
        p.s(f"s_mov_b32 s{srd}, s{src}")
        p.s(f"s_and_b32 s{srd+1}, s{src+1}, 0xffff")
        p.s(f"s_mov_b32 s{srd+2}, {size:#x}")
        p.s(f"s_mov_b32 s{srd+3}, 0x20000")
    p.s(f"s_or_b32 s{S_T0}, s2, s{S_W8}")
    p.s(f"s_cmp_lg_u32 s{S_T0}, 0")
    p.s(f"s_cbranch_scc1 {name}_nononce")
    p.s(f"s_memrealtime s[{S_NON}:{S_NON+1}]")
    p.s("s_waitcnt lgkmcnt(0)")
    p.s(f"s_or_b32 s{S_NON+1}, s{S_NON+1}, 0x80000000")
    p.vop("v_mov_b32", T0 + 4, f"s{S_NON}")
    p.vop("v_mov_b32", T0 + 5, f"s{S_NON+1}")
    p.vop("v_mov_b32", T0 + 6, "0")
    p.s("s_mov_b64 exec, 1")
    p.store(T0 + 4, 2, T0 + 6, SRD_DBG, "0", 0, flags="sc1")
    p.s("s_mov_b64 exec, -1")
    p.label(f"{name}_nononce")
    p.s(f"s_cmp_ge_u32 s{S_W8}, 4")
    p.s(f"s_cbranch_scc1 {name}_G")
    return p

def get_nonce(p, name, t):
    p.vop("v_mov_b32", t + 2, "0")
    p.label(f"{name}")
    p.raw(f"buffer_load_dwordx2 v[{t}:{t+1}], v{t+2}, s[{SRD_DBG}:{SRD_DBG+3}], 0 offen sc1")
    p.wait_all()
    p.raw(f"v_readfirstlane_b32 s{S_NON}, v{t}")
    p.raw(f"v_readfirstlane_b32 s{S_NON+1}, v{t+1}")
    p.s("s_sub_u32 s5, s5, 64")
    p.s(f"s_cbranch_scc1 {name}_x")
    p.s(f"s_cmp_lt_i32 s{S_NON+1}, 0")
    p.s(f"s_cbranch_scc0 {name}")
    p.label(f"{name}_x")

def lane_fields(p):
    W8, L, W = T0, T0 + 1, T0 + 2
    f = dict(L=L, W=W, a=T0 + 3, b=T0 + 4, c=T0 + 5, d=T0 + 6, H=T0 + 7, U=T0 + 8, VV=T0 + 9, R8=T0 + 10, PI=T0 + 11, M=T0 + 12, G=T0 + 13)
    p.vop("v_and_b32", f["H"], "1", W)
    p.vop("v_lshrrev_b32", f["U"], "1", W)
    p.vop("v_lshrrev_b32", f["VV"], "5", L)
    p.vop("v_bfe_u32", f["R8"], L, "2", "3")
    p.vop("v_and_b32", f["PI"], "3", L)
    p.vop("v_and_b32", f["M"], "15", L)
    p.vop("v_lshrrev_b32", f["G"], "4", L)
    return f

def tr_addr(p, f, dst0, dst1, base):
    a, b, c, L, G, R8 = f["a"], f["b"], f["c"], f["L"], f["G"], f["R8"]
    p.vop("v_lshrrev_b32", a, "1", G)
    p.vop("v_lshlrev_b32", b, "13", a)
    p.vop("v_lshl_add_u32", b, R8, "6", b)
    p.vop("v_and_b32", c, "1", L)
    p.vop("v_lshl_add_u32", b, c, "3", b)
    p.vop("v_bfe_u32", c, L, "1", "1")
    p.vop("v_lshl_add_u32", b, c, "4", b)
    p.vop("v_and_b32", c, "1", G)
    p.vop("v_lshl_add_u32", dst0, c, "5", b)
    if base: p.vop("v_add_u32", dst0, f"{base}", dst0)
    p.vop("v_xor_b32", dst1, "32", dst0)

def arrive(p):
    p.vop("v_add_u32", V_PH, "1", V_PH)
    p.ds_write(V_SYW, V_PH, 1, 0)

V_DK, V_DV = 5, 6
V_AK, V_AK8, V_AV0, V_AV1, V_AV80, V_AV81, V_LIN, V_P8W, V_OST, V_TG = 7, 8, 9, 10, 11, 12, 13, 14, 15, 16
V_L = 17
V_Q = 20; V_O = 68; V_S = 140; V_P = 176; V_P8 = 192; V_NM = 200; V_POOL = 212; V_T = 252
NPOOL = 10
def Qf(n, ks): return V_Q + (n * 4 + ks) * 4
def Oa(n, m): return V_O + (n * 8 + m) * 4 if n < 2 else V_O + 64 + m * 4
def Sa(n, kt): return V_S + (n * 4 + kt) * 4 if n < 2 else V_S + 32
def Pf(n, kk): return V_P + (n * 2 + kk) * 4
def NM(n): return V_NM + 4 * n
SEQ = [("K", 0)]
for j in range(7): SEQ += [("K", j + 1), ("V", j)]
SEQ += [("V", 7)]
POS = {t: i for i, t in enumerate(SEQ)}
def slot_of(t): return (POS[t] % 4) * SLOT

def kv_issue(tile, nxt):
    kind, i = tile
    sb = slot_of(tile)
    srd = SRD_K if kind == "K" else SRD_V
    voff = V_DK if kind == "K" else V_DV
    ops = []
    for kt in range(4):
        def f(p, kt=kt):
            p.s(f"s_add_u32 m0, s{S_M0KV}, {sb + kt * 2048}")
            p.s(f"s_add_u32 s{S_T0}, s{S_KVOFFN if nxt else S_KVOFF}, {i * 16384 + kt * 4096}")
            if "D" not in ABL: p.dma(voff, srd, f"s{S_T0}", (kind, i, nxt), "nt")
        ops.append(f)
    return ops

def q_pickup_ops():
    rd, test = sync_check_ops(V_CHK, V_SYR, 1024, V_TG, 2)
    ops = [lambda p: p.vop("v_mov_b32", V_TG, f"s{S_FB}"), rd, test,
           lambda p: p.v(f"v_lshl_add_u32 v{V_CHK}, s{S_W}, 13, v{V_LIN}", [V_CHK], [V_LIN]),
           lambda p: p.vop("v_add_u32", V_CHK, f"{MBOX - MISC}", V_CHK)]
    for n in range(2):
        for ks in range(4):
            ops.append(lambda p, n=n, ks=ks: p.ds_read128(Qf(n, ks), V_CHK, n * 4096 + ks * 1024))
    ops.append(lambda p: p.vop("v_add_u32", V_CHK, f"{MBOX - MISC + 32768}", V_LIN))
    for ks in range(4):
        ops.append(lambda p, ks=ks: p.ds_read128(Qf(2, ks), V_CHK, ks * 1024))
    return ops

def a_prologue(name):
    p = Prog()
    f = lane_fields(p)
    a, b, c, d, H, U, VV, R8, PI, M, G, L, W = (f[k] for k in "a b c d H U VV R8 PI M G L W".split())
    p.vop("v_lshlrev_b32", a, "7", U)
    p.vop("v_lshl_add_u32", a, VV, "6", a)
    p.vop("v_lshl_add_u32", b, H, "3", R8)
    p.vop("v_lshl_add_u32", b, b, "8", a)
    p.vop("v_mul_u32_u24", c, "3", H)
    p.vop("v_xor_b32", c, c, PI)
    p.vop("v_lshl_add_u32", V_DK, c, "4", b)
    p.vop("v_lshrrev_b32", c, "2", R8)
    p.vop("v_lshlrev_b32", d, "1", c)
    p.vop("v_xor_b32", d, d, PI)
    p.vop("v_lshl_add_u32", V_DV, d, "4", b)
    p.s(f"s_lshl_b32 s{S_T0}, s{S_B}, 5")
    p.s(f"s_add_u32 s{S_T0}, s{S_T0}, s{S_H}")
    p.s(f"s_lshl_b32 s{S_KVOFFN}, s{S_T0}, 17")
    for i in range(2):
        for fn in kv_issue(SEQ[i], True): fn(p)
    p.vop("v_lshrrev_b32", a, "3", M)
    p.vop("v_mul_u32_u24", c, "3", a)
    p.vop("v_xor_b32", c, c, G)
    p.vop("v_and_b32", b, "7", M)
    p.vop("v_lshlrev_b32", b, "6", b)
    p.vop("v_lshl_add_u32", b, c, "4", b)
    p.vop("v_lshl_add_u32", V_AK, a, "13", b)
    p.vop("v_lshl_add_u32", V_AK8, W, "11", V_AK)
    tr_addr(p, f, V_AV0, V_AV1, 0)
    p.vop("v_lshl_add_u32", V_AV80, W, "9", V_AV0)
    p.vop("v_lshl_add_u32", V_AV81, W, "9", V_AV1)
    p.vop("v_lshlrev_b32", V_OST, "4", L)
    p.vop("v_add_u32", V_LIN, f"{MISC}", V_OST)
    p.vop("v_lshl_add_u32", V_P8W, U, "10", V_LIN)
    p.vop("v_lshl_add_u32", V_P8W, H, "3", V_P8W)
    p.s(f"s_mov_b32 s{S_FB}, {GPH_Q[0]}")
    p.s(f"s_mov_b32 s{S_FLGN}, 0x40000000")
    p.wait_lgkm0()
    p.barrier()
    get_nonce(p, f"{name}_Anon", T0)
    p.s(f"s_setprio {int(os.environ.get('APRIO', '2'))}")
    if "A" in ABL: p.raw("s_endpgm")
    for fn in q_pickup_ops(): fn(p)
    return p

PUBPOS = int(os.environ.get("PUBPOS", "1"))
def publish(p, sflag):
    p.vop("v_mov_b32", V_P8, f"s{S_NON}")
    p.vop("v_mov_b32", V_P8 + 1, f"s{S_NON+1}")
    p.s("s_mov_b64 exec, 1")
    p.store(V_P8, 2, V_OST, SRD_O, f"s{sflag}", 0, tag="flag", flags="sc1")
    p.s("s_mov_b64 exec, -1")

def a_body(name):
    p = Prog()
    p.label(f"{name}_Aloop")
    prof_stamp(p, 0, 0)
    p.s(f"s_mov_b32 s{S_KVOFF}, s{S_KVOFFN}")
    p.s(f"s_add_u32 s{S_KVOFFN}, s{S_KVOFF}, {8 << 17}")
    p.s(f"s_cmp_eq_u32 s{S_ITER}, 3")
    p.s(f"s_cselect_b32 s{S_KVOFFN}, 0x40000000, s{S_KVOFFN}")
    p.s(f"s_mul_i32 s{S_T0}, s{S_B}, 9")
    p.s(f"s_mul_i32 s{S_T1}, s{S_H}, 288")
    p.s(f"s_add_u32 s{S_T0}, s{S_T0}, s{S_T1}")
    p.s(f"s_lshl_b32 s{S_T1}, s{S_W}, 1")
    p.s(f"s_add_u32 s{S_OOFF}, s{S_T1}, s{S_T0}")
    p.s(f"s_lshl_b32 s{S_OOFF}, s{S_OOFF}, 12")
    p.s(f"s_add_u32 s{S_OOFF8}, s{S_T0}, 8")
    p.s(f"s_lshl_b32 s{S_OOFF8}, s{S_OOFF8}, 12")
    p.s(f"s_lshl_b32 s{S_T1}, s{S_W}, 10")
    p.s(f"s_add_u32 s{S_OOFF8}, s{S_OOFF8}, s{S_T1}")
    p.s(f"s_mov_b32 s{S_FLG}, s{S_FLGN}")
    p.s(f"s_lshl_b32 s{S_T0}, s{S_B}, 5")
    p.s(f"s_add_u32 s{S_T0}, s{S_T0}, s{S_H}")
    p.s(f"s_lshl_b32 s{S_T0}, s{S_T0}, 3")
    p.s(f"s_add_u32 s{S_FLGN}, s{S_T0}, {FLAGOFF}")
    p.s(f"s_cmp_eq_u32 s{S_W}, 0")
    p.s(f"s_cselect_b32 s{S_FLGN}, s{S_FLGN}, 0x40000000")
    p.s(f"s_add_u32 s{S_H}, s{S_H}, 8")
    p.s(f"s_mov_b32 s{S_GT}, {GT_BASE[0] * 16}")
    p.s(f"s_mov_b32 s{S_GI}, {GT_INC[0]}")
    for it in range(1, 4):
        p.s(f"s_cmp_eq_u32 s{S_ITER}, {it}")
        p.s(f"s_cselect_b32 s{S_GT}, {GT_BASE[it] * 16}, s{S_GT}")
        p.s(f"s_cselect_b32 s{S_GI}, {GT_INC[it]}, s{S_GI}")
    p.s(f"s_mov_b32 s{S_FB}, {GPH_Q[1]}")
    p.s(f"s_cmp_eq_u32 s{S_ITER}, 1")
    p.s(f"s_cselect_b32 s{S_FB}, {GPH_Q[2]}, s{S_FB}")
    p.s(f"s_cmp_eq_u32 s{S_ITER}, 2")
    p.s(f"s_cselect_b32 s{S_FB}, {GPH_Q[3]}, s{S_FB}")

    sc = Sched(p, budget=int(os.environ.get("ABUD", "12")), late_extra=8)
    AV = (V_AV0, V_AV1); AV8 = (V_AV80, V_AV81)
    pool_last = [None] * NPOOL
    pool_i = [0]
    LEAD = 8
    DSP = int(os.environ.get("DSP", "1"))
    frags = []
    def frag(tile, mk_reads, consumers):
        k = pool_i[0] % NPOOL; pool_i[0] += 1
        r = V_POOL + 4 * k
        war = pool_last[k]
        for (d, b, c, tag) in consumers: sc.mfma(d, r, b, c, tag)
        pool_last[k] = consumers[-1][3]
        frags.append((tile, mk_reads(r), consumers[0][3], war))
    first_tag = {}
    def R128(d, a, off): return lambda p: p.ds_read128(d, a, off)
    def TR(d, a, off): return lambda p: p.ds_tr(d, a, off)
    for tile in SEQ:
        kind, i = tile
        sb = slot_of(tile)
        n0 = len(sc.m)
        if kind == "K":
            def cinit(n): return NM(n) if i else None
            for ks in range(4):
                frag(tile, lambda r: [R128(r, V_AK8, sb + ks * 512)],
                     [(Sa(2, 0), Qf(2, ks), Sa(2, 0) if ks else cinit(2), ("S", i, 2, 0, ks))])
            for kt in range(4):
                for ks in range(4):
                    cons = [(Sa(n, kt), Qf(n, ks), Sa(n, kt) if ks else cinit(n), ("S", i, n, kt, ks)) for n in range(2)]
                    if i == 0 and kt == 3: cons.append((V_T, Qf(2, ks), V_T if ks else None, ("S8ref", ks)))
                    frag(tile, lambda r: [R128(r, V_AK, sb + kt * 2048 + ks * 512)], cons)
        else:
            for kk in range(2):
                for m in range(8):
                    e, mp = m & 1, m >> 1
                    frag(tile, lambda r: [TR(r, AV[e], sb + (2 * kk) * 2048 + mp * 512), TR(r + 2, AV[e], sb + (2 * kk + 1) * 2048 + mp * 512)],
                         [(Oa(n, m), Pf(n, kk), Oa(n, m) if (i or kk) else None, ("PV", i, n, m, kk)) for n in range(2)])
                for e in range(2):
                    extra = [R128(V_P8 + 4 * kk, V_LIN, P8A - MISC + (i & 3) * 2048 + kk * 1024)] if e == 0 else []
                    frag(tile, lambda r: [TR(r, AV8[e], sb + (2 * kk) * 2048), TR(r + 2, AV8[e], sb + (2 * kk + 1) * 2048)] + extra,
                         [(Oa(2, e), V_P8 + 4 * kk, Oa(2, e) if (i or kk) else None, ("PV", i, 2, e, kk))])
        first_tag[tile] = sc.m[n0][4]
    assert pool_i[0] % NPOOL == 0

    cur = None
    for (tile, reads, cons, war) in frags:
        if tile != cur and POS[tile] % 2 == 0:
            cur = tile
            kind, i = tile; pos = POS[tile]; pr = pos // 2
            t2 = SEQ[pos + 1]
            aft = None
            if kind == "V": aft = ("P8W", i)
            if pr == 7: aft = [("P8W", 6), ("P8W", 7), ("STATW",)]
            def arr(p, t2=t2, pr=pr):
                p.comment(f"---- pair {pr}")
                p.wait_vm((t2[0], t2[1], pr == 0))
                if pr == PUBPOS: p.wait_vm("st")
                arrive(p)
                prof_stamp(p, 0, 1 + 2 * pr)
            sc.fill("rd", arr, 8, ds=True, after=aft, before=cons, lead=LEAD + 8, tag=("ARR", tile))
            rd, test = sync_check_ops(V_CHK, V_SYR, 0, V_PH)
            sc.fill("rd", rd, 4, ds=True, after=dict(tag=("ARR", tile), delay=3), before=cons, lead=LEAD + 5, tag=("CRD", tile))
            def test2(p, test=test, pr=pr):
                test(p)
                if pr == PUBPOS: publish(p, S_FLG)
                if GATE:
                    p.s(f"s_lshr_b32 s{S_T1}, s{S_GT}, 4")
                    p.vop("v_mov_b32", V_TG, f"s{S_T1}")
                    p.s(f"s_add_u32 s{S_GT}, s{S_GT}, s{S_GI}")
                    rd2, test2_ = sync_check_ops(V_CHK, V_SYR, 1024, V_TG, 2)
                    rd2(p); test2_(p)
                prof_stamp(p, 0, 2 + 2 * pr)
            sc.fill("rd", test2, 8, after=dict(tag=("CRD", tile), delay=4), before=cons, lead=LEAD + 1, tag=("CHK", tile))
            ops = []
            for nt in (pos + 2, pos + 3): ops += kv_issue(SEQ[nt % 16], nt >= 16)
            for k, fn in enumerate(ops):
                sc.fill("dma", fn, 12, after=dict(tag=("CHK", tile), delay=DSP * k), before=sc.m[sc.idx[cons] + 4 + DSP * k][4], lead=40)
        for k, fn in enumerate(reads):
            sc.fill("rd", fn, 4, ds=True, after=war if k == 0 else None, before=cons, lead=LEAD)
        if cons == ("PV", 6, 0, 3, 0):
            ops = q_pickup_ops()
            def pk(p, ops=ops):
                p.s(f"s_cmp_eq_u32 s{S_ITER}, 3")
                p.s(f"s_cbranch_scc1 {name}_nopick")
                for fn in ops: fn(p)
                p.label(f"{name}_nopick")
                arrive(p)
                p.wait_lgkm0()
            sc.fill("rd", pk, 80, after=("S", 7, 1, 3, 3))

    def V(fn, after=None, before=None, cost=4, tag=None, lead=0): sc.fill("va", fn, cost, after=after, before=before, tag=tag, lead=lead)
    def block0_max(p):
        for n in range(3):
            regs = [Sa(n, kt) + r for kt in range(4) for r in range(4)] if n < 2 else [V_T + r for r in range(4)]
            m = NM(n)
            p.vop("v_max3_f32", m, regs[0], regs[1], regs[2])
            rest = regs[3:]
            while len(rest) >= 2:
                p.vop("v_max3_f32", m, m, rest[0], rest[1]); rest = rest[2:]
            if rest: p.vop("v_max_f32", m, m, rest[0])
        for sw in (p.swap32, p.swap16):
            for n in range(3): p.vop("v_mov_b32", NM(n) + 1, NM(n))
            for n in range(3): sw(NM(n), NM(n) + 1)
            for n in range(3): p.vop("v_max_f32", NM(n), NM(n), NM(n) + 1)
        for n in range(3):
            p.vop("v_sub_f32", NM(n), "0", NM(n))
            for r in range(1, 4): p.vop("v_mov_b32", NM(n) + r, NM(n))
        for n in (2, 0, 1):
            regs = [Sa(n, kt) + r for kt in range(4) for r in range(4)] if n < 2 else [Sa(2, 0) + r for r in range(4)]
            for r in regs: p.vop("v_add_f32", r, r, NM(n))
    for j in range(8):
        if j == 0: V(block0_max, after=("S8ref", 3), before=("S", 1, 2, 0, 0), cost=200)
        order = [(2, 0)] + [(n, kt) for kt in range(4) for n in range(2)]
        nxtS = lambda n, kt: ("S", j + 1, n, kt, 0) if j < 7 else None
        for (n, kt) in order:
            a = dict(tag=("S", j, n, kt, 3), delay=2) if j else None
            for r in range(4):
                reg = Sa(n, kt) + r
                V(lambda p, reg=reg: p.exp(reg, reg), after=a, cost=8)
            for r in range(4):
                reg = Sa(n, kt) + r
                if j == 0 and kt == 0 and r == 0: V(lambda p, reg=reg, n=n: p.vop("v_mov_b32", V_L + n, reg))
                else: V(lambda p, reg=reg, n=n: p.vop("v_add_f32", V_L + n, V_L + n, reg))
            if n == 2:
                V(lambda p: p.cvtpk(V_T, Sa(2, 0), Sa(2, 0) + 1))
                V(lambda p: p.cvtpk(V_T + 1, Sa(2, 0) + 2, Sa(2, 0) + 3), before=nxtS(2, 0))
                V(lambda p, j=j: p.ds_write(V_P8W, V_T, 2, P8A - MISC + (j & 3) * 2048), tag=("P8W", j))
                if j == 7:
                    V(lambda p: p.v(f"v_lshl_add_u32 v{V_T+2}, s{S_W}, 2, v{V_LIN}", [V_T + 2], [V_LIN]))
                    V(lambda p: p.ds_write(V_T + 2, V_L + 2, 1, STAT - MISC), tag=("STATW",))
            if j == 0 and n == 1:
                for n2 in range(2):
                    V(lambda p, n2=n2, kt=kt: p.cvtpk(Pf(n2, kt >> 1) + 2 * (kt & 1), Sa(n2, kt), Sa(n2, kt) + 1))
                    V(lambda p, n2=n2, kt=kt: p.cvtpk(Pf(n2, kt >> 1) + 2 * (kt & 1) + 1, Sa(n2, kt) + 2, Sa(n2, kt) + 3), before=nxtS(0, kt))
        if j:
            for kk in range(2):
                a = ("PV", j - 1, 1, 7, kk)
                for h in range(2):
                    kt = 2 * kk + h
                    for n in range(2):
                        bf = nxtS(0, kt) if j < 7 else ("PV", 7, 0, 0, kk)
                        V(lambda p, n=n, kk=kk, h=h, kt=kt: p.cvtpk(Pf(n, kk) + 2 * h, Sa(n, kt), Sa(n, kt) + 1), after=a)
                        V(lambda p, n=n, kk=kk, h=h, kt=kt: p.cvtpk(Pf(n, kk) + 2 * h + 1, Sa(n, kt) + 2, Sa(n, kt) + 3), before=bf, lead=2)
    sc.run()
    prof_stamp(p, 0, 17)
    p.ds_read128(V_T, V_LIN, STAT - MISC)
    p.vop("v_add_f32", V_T, V_T, V_T + 1); p.vop("v_add_f32", V_T + 2, V_T + 2, V_T + 3)
    p.vop("v_add_f32", V_L + 2, V_T, V_T + 2)
    for sw in (p.swap32, p.swap16):
        for n in range(3): p.vop("v_mov_b32", V_T + n, V_L + n)
        for n in range(3): sw(V_L + n, V_T + n)
        for n in range(3): p.vop("v_add_f32", V_L + n, V_L + n, V_T + n)
    for n in range(3): p.vop("v_rcp_f32", V_L + n, V_L + n, kind="trans")
    k = 0
    for n in range(3):
        for t in range(4 if n < 2 else 1):
            dst = V_S + 4 * k; k += 1
            s0 = Oa(n, 2 * t); s1 = Oa(n, 2 * t + 1)
            for r in range(4):
                p.vop("v_mul_f32", s0 + r, s0 + r, V_L + n)
                p.vop("v_mul_f32", s1 + r, s1 + r, V_L + n)
            p.cvtpk(dst, s0, s0 + 1); p.cvtpk(dst + 1, s0 + 2, s0 + 3)
            p.cvtpk(dst + 2, s1, s1 + 1); p.cvtpk(dst + 3, s1 + 2, s1 + 3)
            if n == 1 and t == 0: p.s(f"s_add_u32 s{S_OOFF}, s{S_OOFF}, 4096")
            if "O" not in ABL: p.store(dst, 4, V_OST, SRD_O, f"s{S_OOFF if n < 2 else S_OOFF8}", t * 1024, flags=OFL)
    prof_stamp(p, 0, 18)
    prof_dump(p, 0, V_T, V_LIN, MISC)
    p.s(f"s_add_u32 s{S_ITER}, s{S_ITER}, 1")
    p.s(f"s_cmp_lt_u32 s{S_ITER}, 4")
    p.s(f"s_cbranch_scc1 {name}_Aloop")
    p.wait_all()
    arrive(p)
    rd, test = sync_check_ops(V_CHK, V_SYR, 0, V_PH)
    rd(p); test(p)
    publish(p, S_FLGN)
    p.raw("s_endpgm")
    return p

G_DW, G_DX, G_AW0, G_AW1, G_AX, G_LIN, G_TA = 5, 6, 7, 8, 9, 10, 11
G_DO, G_AO, G_OL, G_FA = 12, 13, 17, 18
G_OACC = 20
G_ACC = 116
G_WF = 188
G_XP = 204
G_NXP = 12
G_OB = 116
G_NB = int(os.environ.get("GNB", "6"))
G_OP = G_OB + 12 * G_NB
G_NOP = (252 - G_OP) // 4 // 8 * 8 if int(os.environ.get("GNOP", "0")) == 0 else int(os.environ["GNOP"])
QD1, QD2, OD1, OD2 = (int(x) for x in os.environ.get("GD", "5,6,3,4").split(","))
def OA(t, m): return G_OACC + (t * 8 + m) * 4
def GA(e, t): return G_ACC + (e * 9 + t) * 4

def gq_issue_w(i, nxt):
    sb = GW + (i % 3) * 16384
    ops = []
    for kt in range(4):
        def f(p, kt=kt):
            p.s(f"s_add_u32 m0, s{S_M0KV}, {sb + kt * 2048}")
            p.s(f"s_add_u32 s{S_T0}, s{S_KW}, {(32 * (kt >> 1) + 4 * (kt & 1)) * 8192}")
            if "W" not in ABL: p.dma(G_DW, SRD_W, f"s{S_T0}", ("W", i), WFL)
            if kt == 3:
                p.s(f"s_add_u32 s{S_KW}, s{S_KW}, {64 * 8192}")
                p.s(f"s_cmp_ge_u32 s{S_KW}, {640 * 8192}")
                p.s(f"s_cselect_b32 s{S_KW}, s{S_WOFF}, s{S_KW}")
        ops.append(f)
    return ops
def gq_issue_x(i):
    sb = XB + (i % NXS) * XSLOT
    ops = []
    for k in range(4):
        def f(p, k=k):
            p.s(f"s_add_u32 m0, s{S_M0X}, {sb + k * 4096}")
            if k == 0: p.s(f"s_add_u32 s{S_KX8}, s{S_XOFF}, s{S_KX}")
            p.s(f"s_add_u32 s{S_T0}, s{S_KX8}, {k * 32 * 1280}")
            if "X" not in ABL: p.dma(G_DX, SRD_X, f"s{S_T0}", ("X", i), XFL)
        ops.append(f)
    def f(p):
        p.s(f"s_add_u32 m0, s{S_M0X8}, {sb}")
        p.s(f"s_add_u32 s{S_T0}, s{S_XOFF8}, s{S_KX}")
        p.s(f"s_mov_b64 exec, s[{S_XM}:{S_XM+1}]")
        if "X" not in ABL: p.dma(G_DX, SRD_X, f"s{S_T0}", ("X", i), XFL)
        p.s("s_mov_b64 exec, -1")
        p.s(f"s_add_u32 s{S_KX}, s{S_KX}, 128")
        p.s(f"s_cmp_ge_u32 s{S_KX}, 1280")
        p.s(f"s_cselect_b32 s{S_KX}, 0, s{S_KX}")
    ops.append(f)
    return ops

def g_prologue(name):
    p = Prog()
    p.label(f"{name}_G")
    f = lane_fields(p)
    a, b, c, d, H, U, VV, R8, PI, M, G, L, W = (f[k] for k in "a b c d H U VV R8 PI M G L W".split())
    p.vop("v_lshlrev_b32", a, "7", U)
    p.vop("v_lshl_add_u32", a, VV, "6", a)
    p.vop("v_lshrrev_b32", c, "2", R8)
    p.vop("v_lshlrev_b32", d, "1", c)
    p.vop("v_xor_b32", d, d, PI)
    p.vop("v_lshlrev_b32", b, "4", H)
    p.vop("v_lshl_add_u32", b, c, "3", b)
    p.vop("v_and_b32", c, "3", R8)
    p.vop("v_add_u32", b, b, c)
    p.vop("v_lshl_add_u32", b, b, "13", a)
    p.vop("v_lshl_add_u32", G_DW, d, "4", b)
    p.s(f"s_movk_i32 s{S_T0}, 1280")
    p.vop("v_lshl_add_u32", b, H, "3", R8)
    p.vop("v_mul_lo_u32", b, b, f"s{S_T0}")
    p.vop("v_lshl_add_u32", b, VV, "6", b)
    p.vop("v_mul_u32_u24", c, "3", H)
    p.vop("v_xor_b32", c, c, PI)
    p.vop("v_lshl_add_u32", G_DX, c, "4", b)
    p.s(f"s_lshr_b32 s{S_T1}, s{S_W}, 1")
    p.s(f"s_and_b32 s{S_T0}, s{S_W}, 1")
    p.s(f"s_lshl_b32 s{S_M0X8}, s{S_T0}, 10")
    p.s(f"s_lshl_b32 s{S_M0X}, s{S_T1}, 11")
    p.s(f"s_add_u32 s{S_M0X}, s{S_M0X}, s{S_M0X8}")
    p.s(f"s_add_u32 s{S_M0X8}, s{S_M0X8}, 16384")
    p.s(f"s_mul_i32 s{S_XOFF8}, s{S_B}, {144 * 1280}")
    p.s(f"s_mul_i32 s{S_XOFF}, s{S_T1}, {16 * 1280}")
    p.s(f"s_add_u32 s{S_XOFF}, s{S_XOFF}, s{S_XOFF8}")
    p.s(f"s_add_u32 s{S_XOFF8}, s{S_XOFF8}, {128 * 1280}")
    p.s(f"s_cmp_eq_u32 s{S_T1}, 0")
    p.s(f"s_mov_b32 s{S_XM+1}, 0xffff0000")
    p.s(f"s_cselect_b32 s{S_XM}, 0xffff, s{S_XM+1}")
    p.s(f"s_mov_b32 s{S_XM+1}, s{S_XM}")
    p.s(f"s_lshl_b32 s{S_WOFF}, s{S_H}, 8")
    p.s(f"s_mov_b32 s{S_CS}, {f2u(CSCALE):#x}")
    p.s(f"s_lshr_b32 s{S_T0}, s2, 6")
    p.s(f"s_lshl_b32 s{S_T0}, s{S_T0}, 1")
    p.s(f"s_add_u32 s{S_T0}, s{S_T0}, s{S_H}")
    p.s(f"s_mul_i32 s{S_T0}, s{S_T0}, 5")
    p.s(f"s_lshr_b32 s{S_ROTQ}, s{S_T0}, 2")
    p.s(f"s_sub_u32 s{S_T0}, s{S_ROTQ}, 10")
    p.s(f"s_cmp_ge_u32 s{S_ROTQ}, 10")
    p.s(f"s_cselect_b32 s{S_ROTQ}, s{S_T0}, s{S_ROTQ}")
    if not ROT: p.s(f"s_mov_b32 s{S_ROTQ}, 0")
    tr_addr(p, f, G_AW0, G_AW1, GW)
    p.vop("v_lshl_add_u32", G_AW0, W, "9", G_AW0)
    p.vop("v_lshl_add_u32", G_AW1, W, "9", G_AW1)
    p.vop("v_lshrrev_b32", a, "3", M)
    p.vop("v_mul_u32_u24", c, "3", a)
    p.vop("v_xor_b32", c, c, G)
    p.vop("v_and_b32", b, "7", M)
    p.vop("v_lshlrev_b32", b, "6", b)
    p.vop("v_lshl_add_u32", b, c, "4", b)
    p.vop("v_lshl_add_u32", b, a, "10", b)
    p.vop("v_add_u32", G_AX, f"{XB}", b)
    p.vop("v_lshlrev_b32", G_LIN, "4", L)
    p.vop("v_lshl_add_u32", G_LIN, W, "10", G_LIN)
    p.vop("v_add_u32", G_LIN, f"{MBOX}", G_LIN)
    p.vop("v_mov_b32", G_TA, "0")
    for r in (G_DO, G_OL, G_FA): p.vop("v_mov_b32", r, "0")
    p.s(f"s_setprio {int(os.environ.get('GPRIO', '0'))}")
    p.wait_lgkm0()
    p.barrier()
    return p

def g_setup_o(p, name):
    W8, L, W = T0, T0 + 1, T0 + 2
    p.vop("v_subrev_u32", L, f"{SYNC}", V_SYW)
    p.vop("v_lshrrev_b32", L, "2", L)
    p.vop("v_bfe_u32", W, L, "6", "2")
    p.vop("v_and_b32", L, "63", L)
    f = lane_fields(p)
    a, b, c, d, H, U, VV, R8, PI, M, G = (f[k] for k in "a b c d H U VV R8 PI M G".split())
    p.s(f"s_movk_i32 s{S_T0}, 1280")
    p.vop("v_lshl_add_u32", b, H, "3", R8)
    p.vop("v_mul_lo_u32", b, b, f"s{S_T0}")
    p.vop("v_lshl_add_u32", b, U, "7", b)
    p.vop("v_lshl_add_u32", b, VV, "6", b)
    p.vop("v_lshrrev_b32", c, "2", R8)
    p.vop("v_lshlrev_b32", d, "1", c)
    p.vop("v_xor_b32", d, d, PI)
    p.vop("v_lshl_add_u32", G_DO, d, "4", b)
    tr_addr(p, f, G_AO, G_AO + 1, GW)
    for e in range(2):
        p.vop("v_lshl_add_u32", G_AO + e, U, "12", G_AO + e)
        p.vop("v_lshl_add_u32", G_AO + e, U, "10", G_AO + e)
        p.vop("v_xor_b32", G_AO + 2 + e, "1024", G_AO + e)
    p.vop("v_lshlrev_b32", G_OL, "4", L)
    p.s(f"s_lshr_b32 s{S_T0}, s2, 3")
    p.s(f"s_mul_i32 s{S_R}, s{S_T0}, 52")
    p.s(f"s_lshr_b32 s{S_R}, s{S_R}, 8")
    p.s(f"s_mul_i32 s{S_C}, s{S_R}, 5")
    p.s(f"s_sub_u32 s{S_C}, s{S_T0}, s{S_C}")
    p.s(f"s_mul_i32 s{S_T0}, s{S_R}, 43")
    p.s(f"s_mul_i32 s{S_T1}, s{S_C}, 51")
    p.s(f"s_add_u32 s{S_T0}, s{S_T0}, s{S_T1}")
    p.s(f"s_bfe_u32 s{S_ROTO}, s{S_T0}, 0x40004")
    if not ROT: p.s(f"s_mov_b32 s{S_ROTO}, 0")
    p.s(f"s_and_b32 s{S_T0}, s2, 7")
    p.s(f"s_mul_i32 s{S_T0}, s{S_T0}, 6")
    p.s(f"s_add_u32 s{S_R}, s{S_R}, s{S_T0}")
    p.s(f"s_lshl_b32 s{S_WOO}, s{S_C}, 8")
    p.s(f"s_mul_i32 s{S_T0}, s{S_R}, 6")
    p.s(f"s_and_b32 s{S_T1}, s{S_W}, 1")
    p.s(f"s_mul_i32 s{S_T1}, s{S_T1}, 3")
    p.s(f"s_add_u32 s{S_T0}, s{S_T0}, s{S_T1}")
    p.s(f"s_mul_i32 s{S_OUT}, s{S_T0}, {16 * 1280}")
    p.s(f"s_add_u32 s{S_OUT}, s{S_OUT}, s{S_WOO}")
    p.s(f"s_lshr_b32 s{S_T1}, s{S_W}, 1")
    p.s(f"s_lshl_b32 s{S_OB}, s{S_T1}, 7")
    p.s(f"s_add_u32 s{S_OUT}, s{S_OUT}, s{S_OB}")
    p.s(f"s_lshl_b32 s{S_OB}, s{S_T0}, 12")
    p.s(f"s_lshl_b32 s{S_T1}, s{S_T1}, 10")
    p.s(f"s_add_u32 s{S_OB}, s{S_OB}, s{S_T1}")
    p.s(f"s_mul_i32 s{S_T0}, s{S_T0}, 7282")
    p.s(f"s_lshr_b32 s{S_T0}, s{S_T0}, 16")
    p.s(f"s_lshl_b32 s{S_T0}, s{S_T0}, 8")
    p.s(f"s_add_u32 s{S_FB}, s{S_T0}, {FLAGOFF}")
    p.vop("v_and_b32", a, "7", L)
    p.vop("v_lshlrev_b32", G_FA, "3", a)
    for r in range(96): p.vop("v_mov_b32", G_OACC + r, "0")
    get_nonce(p, f"{name}_Gnon", T0)

def go_issue_w(s_):
    sb = GW + (s_ % NWO) * 16384
    ops = []
    for kt in range(4):
        def f(p, kt=kt):
            p.s(f"s_add_u32 m0, s{S_M0KV}, {sb + kt * 2048}")
            if kt == 0:
                p.s(f"s_mul_i32 s{S_KX8}, s{S_KW}, {64 * 1280}")
                p.s(f"s_add_u32 s{S_KX8}, s{S_KX8}, s{S_WOO}")
                p.s(f"s_add_u32 s{S_KW}, s{S_KW}, 1")
                p.s(f"s_and_b32 s{S_KW}, s{S_KW}, 15")
            p.s(f"s_add_u32 s{S_T0}, s{S_KX8}, {16 * kt * 1280}")
            if "V" not in ABL: p.dma(G_DO, SRD_WO, f"s{S_T0}", ("WO", s_))
        ops.append(f)
    return ops
def go_issue_b(s_):
    ops = []
    for t in range(3):
        def f(p, t=t):
            if t == 0:
                p.s(f"s_lshr_b32 s{S_KX}, s{S_KB}, 1")
                p.s(f"s_mul_i32 s{S_KX}, s{S_KX}, {288 * 4096}")
                p.s(f"s_and_b32 s{S_T0}, s{S_KB}, 1")
                p.s(f"s_lshl_b32 s{S_T0}, s{S_T0}, 11")
                p.s(f"s_add_u32 s{S_KX}, s{S_KX}, s{S_T0}")
                p.s(f"s_add_u32 s{S_KX}, s{S_KX}, s{S_OB}")
                p.s(f"s_add_u32 s{S_KB}, s{S_KB}, 1")
                p.s(f"s_and_b32 s{S_KB}, s{S_KB}, 15")
            p.s(f"s_add_u32 s{S_T0}, s{S_KX}, {t * 4096}")
            if "B" not in ABL: p.load4(G_OB + ((s_ % G_NB) * 3 + t) * 4, G_OL, SRD_O, f"s{S_T0}", 0, ("OB", s_), "sc1")
        ops.append(f)
    return ops

def g_ochunk(name):
    p = Prog()
    p.label(f"{name}_Gochunk")
    p.s(f"s_cmp_lt_u32 s{S_ITER}, 2")
    p.s(f"s_cbranch_scc1 {name}_Gnext")
    p.s(f"s_cmp_lt_u32 s2, {0 if 'N' in ABL else 240}")
    p.s(f"s_cbranch_scc1 {name}_Godo")
    p.vop("v_add_u32", V_PH, f"{NO_ARR - 1}", V_PH)
    arrive(p)
    p.s(f"s_branch {name}_Gnext")
    p.label(f"{name}_Godo")
    prof_stamp(p, 0, 4)
    NS = 16; PW = NWO - 1; PB = G_NB - 1
    p.s(f"s_mov_b32 s{S_KW}, s{S_ROTO}")
    p.s(f"s_mov_b32 s{S_KB}, s{S_ROTO}")
    for i in range(PW):
        for fn in go_issue_w(i): fn(p)
    T = G_OP
    p.label(f"{name}_Gpoll")
    p.raw(f"buffer_load_dwordx2 v[{T}:{T+1}], v{G_FA}, s[{SRD_O}:{SRD_O+3}], s{S_FB} offen sc1")
    p.wait_all()
    p.raw(f"v_cmp_ne_u32 vcc, s{S_NON}, v{T}")
    p.raw(f"v_cmp_ne_u32 s[{S_XM+2}:{S_XM+3}], s{S_NON+1}, v{T+1}")
    p.s(f"s_or_b64 vcc, vcc, s[{S_XM+2}:{S_XM+3}]")
    p.s(f"s_cbranch_scc0 {name}_Gready")
    if "A" in ABL: p.s(f"s_branch {name}_Gready")
    p.s("s_sub_u32 s5, s5, 16")
    p.s(f"s_cbranch_scc1 {name}_Gready")
    p.s("s_sleep 8")
    p.s(f"s_branch {name}_Gpoll")
    p.label(f"{name}_Gready")
    prof_stamp(p, 0, 5)
    for i in range(PB):
        for fn in go_issue_b(i): fn(p)
    sc = Sched(p, budget=int(os.environ.get("GBUD", "8")), late_extra=8)
    al = [None] * G_NOP; ai = [0]
    LEAD = 8
    for i in range(NS):
        wsb = (i % NWO) * 16384
        plan = []
        for m in range(8):
            k = ai[0] % G_NOP; ai[0] += 1
            r = G_OP + 4 * k
            war = al[k]
            for t in range(3):
                sc.mfma(OA(t, m), r, G_OB + ((i % G_NB) * 3 + t) * 4, OA(t, m), ("O", i, m, t))
            al[k] = ("O", i, m, 2)
            plan.append((r, m, war))
        cons = ("O", i, 0, 0)
        def arr(p, i=i):
            p.comment(f"---- G o step {i}")
            p.wait_vm(("WO", i))
            arrive(p)
        sc.fill("rd", arr, 8, ds=True, before=cons, lead=LEAD + 30, tag=("ARR", i))
        rd, test = sync_check_ops(V_CHK, V_SYR, 1024, V_PH)
        sc.fill("rd", rd, 4, ds=True, after=dict(tag=("ARR", i), delay=OD1), before=cons, lead=LEAD + 6, tag=("CRD", i))
        sc.fill("rd", test, 8, after=dict(tag=("CRD", i), delay=OD2), before=cons, lead=LEAD + 2, tag=("CHK", i))
        ops = go_issue_w(i + PW) if i + PW < NS else []
        for k, fn in enumerate(ops):
            sc.fill("dma", fn, 8, after=dict(tag=("CHK", i), delay=2 * k), before=sc.m[min(sc.idx[cons] + 2 * k, len(sc.m) - 1)][4], lead=40)
        ops = go_issue_b(i + PB) if i + PB < NS else []
        for k, fn in enumerate(ops):
            sc.fill("dmb", fn, 8, after=dict(tag=("O", i - 1, 7, 2), delay=1 + 2 * k) if i else None, before=sc.m[sc.idx[cons] + 10 + 2 * k][4], lead=6)
        for (r, m, war) in plan:
            e, mp = m & 1, m >> 1
            ad = G_AO + 2 * (mp >> 1) + e
            off = wsb + (mp & 1) * 512
            sc.fill("rd", lambda p, r=r, ad=ad, off=off: p.ds_tr(r, ad, off), 4, ds=True, after=war, before=("O", i, m, 0), lead=LEAD)
            sc.fill("rd", lambda p, r=r, ad=ad, off=off: p.ds_tr(r + 2, ad, off + 2048), 4, ds=True, before=("O", i, m, 0), lead=LEAD)
    sc.fill("rd", arrive, 8, ds=True)
    sc.run()
    rd, test = sync_check_ops(V_CHK, V_SYR, 1024, V_PH)
    rd(p); test(p)
    prof_stamp(p, 0, 6)
    p.s(f"s_add_u32 s{S_WOO}, s{S_WOO}, {1024 * 1280}")
    p.s(f"s_add_u32 s{S_OB}, s{S_OB}, {8 * 288 * 4096}")
    p.s(f"s_add_u32 s{S_FB}, s{S_FB}, 64")
    p.label(f"{name}_Gnext")
    if PROF:
        p.s(f"s_min_u32 s{S_T1}, s{S_ITER}, 3")
        prof_dump(p, 0, G_XP + 41, G_OL, 0, S_T1)
    p.s(f"s_add_u32 s{S_ITER}, s{S_ITER}, 1")
    p.s(f"s_cmp_lt_u32 s{S_ITER}, 4")
    p.s(f"s_cbranch_scc1 {name}_Gloop")
    p.s(f"s_cmp_lt_u32 s{S_ITER}, 6")
    p.s(f"s_cbranch_scc1 {name}_Gochunk")
    return p

def g_final(name):
    p = Prog()
    p.s(f"s_cmp_ge_u32 s2, {0 if 'N' in ABL else 240}")
    p.s(f"s_cbranch_scc1 {name}_end")
    A1, A2, L = G_OP, G_OP + 1, G_OP + 2
    p.s(f"s_mul_i32 s{S_T0}, s{S_W}, 12288")
    p.s(f"s_add_u32 s{S_T0}, s{S_T0}, {GW}")
    p.vop("v_add_u32", A1, f"s{S_T0}", G_OL)
    p.s(f"s_xor_b32 s{S_T1}, s{S_W}, 2")
    p.s(f"s_mul_i32 s{S_T1}, s{S_T1}, 12288")
    p.s(f"s_add_u32 s{S_T1}, s{S_T1}, {GW}")
    p.vop("v_add_u32", A2, f"s{S_T1}", G_OL)
    for t in range(3):
        for m in range(4):
            p.ds_write(A1, OA(t, 4 + m), 4, (t * 4 + m) * 1024)
    arrive(p)
    p.vop("v_lshrrev_b32", L, "4", G_OL)
    p.vop("v_and_b32", A1, "15", L)
    p.s(f"s_movk_i32 s{S_T0}, 1280")
    p.vop("v_mul_lo_u32", A1, A1, f"s{S_T0}")
    p.vop("v_lshrrev_b32", L, "4", L)
    p.vop("v_lshl_add_u32", A1, L, "4", A1)
    rd, test = sync_check_ops(V_CHK, V_SYR, 1024, V_PH)
    rd(p); test(p)
    for t in range(3):
        for m in range(4):
            p.ds_read128(G_OB + (t * 4 + m) * 4, A2, (t * 4 + m) * 1024)
    for t in range(3):
        for pr in range(2):
            dst = G_OB + 48 + (t * 2 + pr) * 4
            for e in range(2):
                m = 2 * pr + e
                for r in range(4): p.vop("v_add_f32", OA(t, m) + r, OA(t, m) + r, G_OB + (t * 4 + m) * 4 + r)
            s0, s1 = OA(t, 2 * pr), OA(t, 2 * pr + 1)
            p.cvtpk(dst, s0, s0 + 1); p.cvtpk(dst + 1, s0 + 2, s0 + 3)
            p.cvtpk(dst + 2, s1, s1 + 1); p.cvtpk(dst + 3, s1 + 2, s1 + 3)
            p.swap32(dst, dst + 2); p.swap32(dst + 1, dst + 3)
            p.swap16(dst, dst + 2); p.swap16(dst + 1, dst + 3)
            p.s(f"s_add_u32 s{S_T0}, s{S_OUT}, {t * 16 * 1280}")
            p.store(dst, 4, A1, SRD_OUT, f"s{S_T0}", pr * 64)
    if PROF:
        prof_stamp(p, 0, 7)
        p.s(f"s_mov_b32 s{S_T1}, 3")
        prof_dump(p, 0, G_XP + 41, G_OL, 0, S_T1)
    p.label(f"{name}_end")
    p.raw("s_endpgm")
    return p

def g_qtask(name):
    p = Prog()
    p.label(f"{name}_Gloop")
    prof_stamp(p, 0, 0)
    p.s(f"s_mul_i32 s{S_KW}, s{S_ROTQ}, {64 * 8192}")
    p.s(f"s_add_u32 s{S_KW}, s{S_KW}, s{S_WOFF}")
    p.s(f"s_lshl_b32 s{S_KX}, s{S_ROTQ}, 7")
    for i in range(2):
        for fn in gq_issue_w(i, False): fn(p)
    rd, test = sync_check_ops(V_CHK, V_SYR, 0, G_TA, 2)
    rd(p); test(p)
    prof_stamp(p, 0, 1)
    for i in range(NXS - 1):
        for fn in gq_issue_x(i): fn(p)
    sc = Sched(p, budget=int(os.environ.get("GBUD", "8")), late_extra=8)
    AW = (G_AW0, G_AW1)
    xl = [None] * G_NXP; xi = [0]
    wl = [None, None]
    LEAD = 8
    NS = 10
    for i in range(NS):
        wsb = (i % 3) * 16384; xsb = (i % NXS) * XSLOT
        for kh in range(2):
            wb = G_WF + 8 * kh
            tags = []
            plan = []
            for t in range(9):
                k = xi[0] % G_NXP; xi[0] += 1
                r = G_XP + 4 * k
                war = xl[k]
                for e in range(2):
                    sc.mfma(GA(e, t), wb + 4 * e, r, GA(e, t) if (i or kh) else None, ("Q", i, kh, t, e))
                xl[k] = ("Q", i, kh, t, 1)
                plan.append((r, t, war))
            cons = ("Q", i, kh, 0, 0)
            if kh == 0:
                def arr(p, i=i):
                    p.comment(f"---- G q step {i}")
                    p.wait_vm(("X", i)); p.wait_vm(("W", i))
                    arrive(p)
                sc.fill("rd", arr, 8, ds=True, before=cons, lead=LEAD + 30, tag=("ARR", i))
                rd, test = sync_check_ops(V_CHK, V_SYR, 1024, V_PH)
                sc.fill("rd", rd, 4, ds=True, after=dict(tag=("ARR", i), delay=QD1), before=cons, lead=LEAD + 6, tag=("CRD", i))
                sc.fill("rd", test, 8, after=dict(tag=("CRD", i), delay=QD2), before=cons, lead=LEAD + 2, tag=("CHK", i))
                ops = (gq_issue_x(i + NXS - 1) if i + NXS - 1 < NS else []) + (gq_issue_w(i + 2, False) if i + 2 < NS else [])
                for k, fn in enumerate(ops):
                    sc.fill("dma", fn, 8, after=dict(tag=("CHK", i), delay=2 * k), before=sc.m[min(sc.idx[cons] + 2 * k, len(sc.m) - 1)][4], lead=40)
            for e in range(2):
                sc.fill("rd", lambda p, e=e, wb=wb, kh=kh, wsb=wsb: p.ds_tr(wb + 4 * e, AW[e], wsb + (2 * kh) * 2048), 4, ds=True, after=wl[kh] if e == 0 else None, before=cons, lead=LEAD)
                sc.fill("rd", lambda p, e=e, wb=wb, kh=kh, wsb=wsb: p.ds_tr(wb + 4 * e + 2, AW[e], wsb + (2 * kh + 1) * 2048), 4, ds=True, before=cons, lead=LEAD)
            wl[kh] = ("Q", i, kh, 8, 1)
            for (r, t, war) in plan:
                sc.fill("rd", lambda p, r=r, t=t, kh=kh, xsb=xsb: p.ds_read128(r, G_AX, xsb + t * 2048 + kh * 512), 4, ds=True, after=war, before=("Q", i, kh, t, 0), lead=LEAD)
    assert xi[0] % G_NXP == 0
    sc.fill("rd", arrive, 8, ds=True)
    sc.run()
    prof_stamp(p, 0, 2)
    p.s(f"s_add_u32 s{S_WOFF}, s{S_WOFF}, {8 * 256}")
    rd, test = sync_check_ops(V_CHK, V_SYR, 1024, V_PH)
    rd(p)
    for t in range(9):
        dst = G_XP + 4 * t
        s0, s1 = GA(0, t), GA(1, t)
        for r in range(4):
            p.vop("v_mul_f32", s0 + r, f"s{S_CS}", s0 + r)
            p.vop("v_mul_f32", s1 + r, f"s{S_CS}", s1 + r)
        p.cvtpk(dst, s0, s0 + 1); p.cvtpk(dst + 1, s0 + 2, s0 + 3)
        p.cvtpk(dst + 2, s1, s1 + 1); p.cvtpk(dst + 3, s1 + 2, s1 + 3)
    test(p)
    for t in range(9):
        dst = G_XP + 4 * t
        p.swap32(dst, dst + 2); p.swap32(dst + 1, dst + 3)
        p.swap16(dst, dst + 2); p.swap16(dst + 1, dst + 3)
        p.ds_write(G_LIN, dst, 4, t * 4096)
    arrive(p)
    prof_stamp(p, 0, 3)
    p.s(f"s_mul_i32 s{S_T0}, s{S_ITER}, 9")
    p.s(f"s_max_u32 s{S_T0}, s{S_T0}, 1")
    if "A" not in ABL: p.vop("v_mov_b32", G_TA, f"s{S_T0}")
    p.s(f"s_cmp_lg_u32 s{S_ITER}, 0")
    p.s(f"s_cbranch_scc1 {name}_Gochunk")
    g_setup_o(p, name)
    return p

def gen(name):
    slow.clear(); lbl[0] = 0
    com = common_prologue(name)
    ap, ab = a_prologue(name), a_body(name)
    gp, gq, go, gf = g_prologue(name), g_qtask(name), g_ochunk(name), g_final(name)
    l0, _ = finalize([(com, 1)])
    la, sa = finalize([(ap, 1), (ab, 2)])
    lg, sg = finalize([(gp, 1), (gq, 1), (go, 1), (gf, 1)], sim=[(gp, 1), (gq, 2), (go, 1), (gq, 1), (go, 2), (gf, 1)])
    return [f".globl {name}", ".p2align 8", f".type {name},@function", f"{name}:"] + l0 + la + lg + slow, (sa, sg)
```

```python
from asmlib import *
import math

SLOT = 18432
Q8AREA = 4 * SLOT
STAT = Q8AREA + 4096
LDS_BYTES = 81920
CSCALE = math.log2(math.e) / math.sqrt(128.0)
import struct, os
PROF = int(os.environ.get("PROF", "0"))
ABL = os.environ.get("ABL", "")
def f2u(f): return struct.unpack("<I", struct.pack("<f", f))[0]

S_KARG = 0
S_WG = 2
S_W = 3
SRD_X, SRD_K, SRD_V, SRD_W, SRD_O = 8, 12, 16, 20, 24
S_M0KV = 28
S_M0X = 29
S_M0X8 = 30
S_KVOFF = 31
S_WOFF = 32
S_XOFF = 33
S_OOFF = 34
S_ITER = 35
S_T0, S_T1 = 36, 37
S_B, S_H = 38, 39
S_CS = 40
S_WOFFN = 41
S_XOFFN = 42
S_OOFF8 = 43

V_DK, V_DV, V_DW, V_DX, V_DX8 = 1, 2, 3, 4, 5
V_AK, V_AK8, V_AV0, V_AV1, V_AV80, V_AV81, V_AX, V_AX8, V_LIN, V_P8W, V_OST = 6, 7, 8, 9, 10, 11, 12, 13, 14, 15, 16
V_L = 17
V_Q = 20
V_O = 68
V_S = 140
V_P = 176
V_P8 = 192
V_NM = 200
V_POOL = 212
V_T = 252
NPOOL = 5
def Qf(n, ks): return V_Q + (n * 4 + ks) * 4
def Oa(n, m): return V_O + (n * 8 + m) * 4 if n < 2 else V_O + 64 + m * 4
def Sa(n, kt): return V_S + (n * 4 + kt) * 4 if n < 2 else V_S + 32
def Pf(n, kk): return V_P + (n * 2 + kk) * 4
def NM(n): return V_NM + 4 * n
def Xf(buf, t): return V_S + (buf * 3 + t) * 4

SEQ = [("Q", i) for i in range(20)] + [("K", 0)]
for j in range(7): SEQ += [("K", j + 1), ("V", j)]
SEQ += [("V", 7)]
assert len(SEQ) == 36
POS = {t: i for i, t in enumerate(SEQ)}
def slot_of(t): return (POS[t] % 4) * SLOT

def issue_ops(tile, nxt):
    kind, i = tile
    sb = slot_of(tile)
    tag = (kind, i, nxt)
    ops = []
    if kind in "KV":
        srd = SRD_K if kind == "K" else SRD_V
        voff = V_DK if kind == "K" else V_DV
        for kt in range(4):
            def f(p, kt=kt):
                p.s(f"s_add_u32 m0, s{S_M0KV}, {sb + kt * 2048}")
                p.s(f"s_add_u32 s{S_T0}, s{S_KVOFF}, {i * 16384 + kt * 4096}")
                if "D" not in ABL: p.dma(voff, srd, f"s{S_T0}", tag, "" if "L" in ABL else "nt")
            ops.append(f)
    else:
        wo = S_WOFFN if nxt else S_WOFF
        xo = S_XOFFN if nxt else S_XOFF
        for kt in range(2):
            def f(p, kt=kt):
                p.s(f"s_add_u32 m0, s{S_M0KV}, {sb + kt * 2048}")
                p.s(f"s_add_u32 s{S_T0}, s{wo}, {(32 * i + 4 * kt) * 8192}")
                if "D" not in ABL and "W" not in ABL: p.dma(V_DW, SRD_W, f"s{S_T0}", tag)
            ops.append(f)
        for t in range(2):
            def f(p, t=t):
                p.s(f"s_add_u32 m0, s{S_M0X}, {sb + t * 1024}")
                p.s(f"s_add_u32 s{S_T0}, s{xo}, {i * 64 + t * 16 * 1280}")
                if "D" not in ABL and "X" not in ABL: p.dma(V_DX, SRD_X, f"s{S_T0}", tag)
            ops.append(f)
        def f(p):
            p.s(f"s_add_u32 m0, s{S_M0X8}, {sb}")
            p.s(f"s_add_u32 s{S_T0}, s{xo}, {i * 64}")
            p.s("s_mov_b64 exec, 0xffff")
            if "D" not in ABL and "X" not in ABL: p.dma(V_DX8, SRD_X, f"s{S_T0}", tag)
            p.s("s_mov_b64 exec, -1")
        ops.append(f)
    return ops

def prologue(name):
    p = Prog()
    p.s(f"s_cmp_ge_u32 s2, 512")
    p.s(f"s_cbranch_scc1 {name}_end")
    if PROF: p.s("s_memrealtime s[58:59]"); p.s("s_memtime s[62:63]")
    p.s("s_load_dwordx4 s[44:47], s[0:1], 0")
    p.s("s_load_dwordx4 s[48:51], s[0:1], 16")
    p.s("s_load_dwordx2 s[52:53], s[0:1], 56")
    T = V_POOL
    W, L = T, T + 1
    p.vop("v_lshrrev_b32", W, "6", 0)
    p.vop("v_and_b32", L, "63", 0)
    p.add(Ins(f"v_readfirstlane_b32 s{S_W}, v{W}", "rfl", [W], []))
    a, b, c, d = T + 2, T + 3, T + 4, T + 5
    H, U, VV, R8, PI = T + 6, T + 7, T + 8, T + 9, T + 10
    p.vop("v_and_b32", H, "1", W)
    p.vop("v_lshrrev_b32", U, "1", W)
    p.vop("v_lshrrev_b32", VV, "5", L)
    p.vop("v_bfe_u32", R8, L, "2", "3")
    p.vop("v_and_b32", PI, "3", L)
    p.vop("v_lshlrev_b32", a, "7", U)
    p.vop("v_lshl_add_u32", a, VV, "6", a)
    p.vop("v_lshl_add_u32", b, H, "3", R8)
    p.vop("v_lshl_add_u32", b, b, "8", a)
    p.vop("v_mul_u32_u24", c, "3", H)
    p.vop("v_xor_b32", c, c, PI)
    p.vop("v_lshl_add_u32", V_DK, c, "4", b)
    p.vop("v_lshrrev_b32", c, "2", R8)
    p.vop("v_lshlrev_b32", d, "1", c)
    p.vop("v_xor_b32", d, d, PI)
    p.vop("v_lshl_add_u32", V_DV, d, "4", b)
    p.vop("v_lshlrev_b32", b, "4", H)
    p.vop("v_lshl_add_u32", b, c, "3", b)
    p.vop("v_and_b32", c, "3", R8)
    p.vop("v_add_u32", b, b, c)
    p.vop("v_lshl_add_u32", b, b, "13", a)
    p.vop("v_lshl_add_u32", V_DW, d, "4", b)
    p.s(f"s_movk_i32 s{S_T0}, 1280")
    p.vop("v_lshrrev_b32", a, "2", L)
    p.vop("v_lshl_add_u32", b, W, "5", a)
    p.vop("v_mul_lo_u32", b, b, f"s{S_T0}")
    p.vop("v_mul_u32_u24", c, "3", VV)
    p.vop("v_xor_b32", c, c, PI)
    p.vop("v_lshl_add_u32", V_DX, c, "4", b)
    p.vop("v_and_b32", a, "3", a)
    p.vop("v_lshl_add_u32", b, W, "2", a)
    p.vop("v_add_u32", b, "128", b)
    p.vop("v_mul_lo_u32", b, b, f"s{S_T0}")
    p.vop("v_mul_u32_u24", c, "3", U)
    p.vop("v_xor_b32", c, c, PI)
    p.vop("v_lshl_add_u32", V_DX8, c, "4", b)
    M, G = H, U
    p.vop("v_and_b32", M, "15", L)
    p.vop("v_lshrrev_b32", G, "4", L)
    p.vop("v_lshrrev_b32", a, "3", M)
    p.vop("v_mul_u32_u24", c, "3", a)
    p.vop("v_xor_b32", c, c, G)
    p.vop("v_and_b32", b, "7", M)
    p.vop("v_lshlrev_b32", b, "6", b)
    p.vop("v_lshl_add_u32", b, c, "4", b)
    p.vop("v_lshl_add_u32", V_AK, a, "13", b)
    p.vop("v_lshl_add_u32", V_AK8, W, "11", V_AK)
    p.vop("v_lshl_add_u32", b, a, "9", b)
    p.vop("v_add_u32", V_AX8, f"{12288 + 4096}", b)
    p.vop("v_lshl_add_u32", V_AX, W, "11", b)
    p.vop("v_lshrrev_b32", a, "1", W)
    p.vop("v_lshl_add_u32", V_AX, a, "12", V_AX)
    p.vop("v_add_u32", V_AX, "4096", V_AX)
    p.vop("v_lshrrev_b32", a, "1", G)
    p.vop("v_lshlrev_b32", b, "13", a)
    p.vop("v_lshl_add_u32", b, R8, "6", b)
    p.vop("v_and_b32", c, "1", L)
    p.vop("v_lshl_add_u32", b, c, "3", b)
    p.vop("v_bfe_u32", c, L, "1", "1")
    p.vop("v_lshl_add_u32", b, c, "4", b)
    p.vop("v_and_b32", c, "1", G)
    p.vop("v_lshl_add_u32", V_AV0, c, "5", b)
    p.vop("v_xor_b32", V_AV1, "32", V_AV0)
    p.vop("v_lshl_add_u32", V_AV80, W, "9", V_AV0)
    p.vop("v_lshl_add_u32", V_AV81, W, "9", V_AV1)
    p.vop("v_lshlrev_b32", V_OST, "4", L)
    p.vop("v_add_u32", V_LIN, "16384", V_OST)
    p.vop("v_lshrrev_b32", a, "1", W)
    p.vop("v_lshl_add_u32", V_P8W, a, "10", V_LIN)
    p.vop("v_and_b32", a, "1", W)
    p.vop("v_lshl_add_u32", V_P8W, a, "3", V_P8W)
    p.s(f"s_and_b32 s{S_T0}, s{S_W}, 1")
    p.s(f"s_lshl_b32 s{S_T0}, s{S_T0}, 13")
    p.s(f"s_lshr_b32 s{S_T1}, s{S_W}, 1")
    p.s(f"s_lshl_b32 s{S_M0KV}, s{S_T1}, 10")
    p.s(f"s_add_u32 s{S_M0KV}, s{S_M0KV}, s{S_T0}")
    p.s(f"s_lshl_b32 s{S_M0X}, s{S_W}, 11")
    p.s(f"s_lshl_b32 s{S_T1}, s{S_T1}, 12")
    p.s(f"s_add_u32 s{S_M0X}, s{S_M0X}, s{S_T1}")
    p.s(f"s_add_u32 s{S_M0X}, s{S_M0X}, 4096")
    p.s(f"s_lshl_b32 s{S_M0X8}, s{S_W}, 8")
    p.s(f"s_add_u32 s{S_M0X8}, s{S_M0X8}, {12288 + 4096}")
    p.s(f"s_mov_b32 s{S_CS}, {f2u(CSCALE):#x}")
    p.s(f"s_bfe_u32 s{S_T0}, s2, 0x20001")
    p.s(f"s_lshl_b32 s{S_B}, s{S_T0}, 3")
    p.s(f"s_lshr_b32 s{S_T0}, s2, 6")
    p.s(f"s_add_u32 s{S_B}, s{S_B}, s{S_T0}")
    p.s(f"s_and_b32 s{S_T0}, s2, 1")
    p.s(f"s_lshl_b32 s{S_H}, s{S_T0}, 4")
    p.s(f"s_bfe_u32 s{S_T0}, s2, 0x30003")
    p.s(f"s_add_u32 s{S_H}, s{S_H}, s{S_T0}")
    p.s(f"s_mul_i32 s{S_XOFFN}, s{S_B}, {144 * 1280}")
    p.s(f"s_lshl_b32 s{S_WOFFN}, s{S_H}, 8")
    p.s(f"s_mov_b32 s{S_ITER}, 0")
    p.s("s_waitcnt lgkmcnt(0)")
    for srd, src, size in ((SRD_X, 44, 32 * 144 * 640 * 2), (SRD_K, 46, 1 << 27), (SRD_V, 48, 1 << 27), (SRD_W, 50, 640 * 4096 * 2), (SRD_O, 52, (1 << 28) if PROF else 32 * 9 * 128 * 1024)):
        p.s(f"s_mov_b32 s{srd}, s{src}")
        p.s(f"s_and_b32 s{srd+1}, s{src+1}, 0xffff")
        p.s(f"s_mov_b32 s{srd+2}, {size:#x}")
        p.s(f"s_mov_b32 s{srd+3}, 0x20000")
    for i in range(3):
        for f in issue_ops(("Q", i), True): f(p)
    return p

class Unit:
    def __init__(self, tile, reads, mfmas, first=False):
        self.tile = tile; self.reads = reads; self.mfmas = mfmas; self.first = first

def body(name, D=3):
    p = Prog()
    p.label(f"{name}_loop")
    p.s(f"s_mov_b32 s{S_WOFF}, s{S_WOFFN}")
    p.s(f"s_mov_b32 s{S_XOFF}, s{S_XOFFN}")
    p.s(f"s_lshl_b32 s{S_T0}, s{S_B}, 5")
    p.s(f"s_add_u32 s{S_T0}, s{S_T0}, s{S_H}")
    p.s(f"s_lshl_b32 s{S_KVOFF}, s{S_T0}, 17")
    if "L" in ABL: p.s(f"s_and_b32 s{S_KVOFF}, s{S_KVOFF}, 0xe0000")
    p.s(f"s_mul_i32 s{S_T0}, s{S_B}, 9")
    p.s(f"s_mul_i32 s{S_T1}, s{S_H}, 288")
    p.s(f"s_add_u32 s{S_T0}, s{S_T0}, s{S_T1}")
    p.s(f"s_lshl_b32 s{S_T1}, s{S_W}, 1")
    p.s(f"s_add_u32 s{S_OOFF}, s{S_T1}, s{S_T0}")
    p.s(f"s_lshl_b32 s{S_OOFF}, s{S_OOFF}, 12")
    p.s(f"s_add_u32 s{S_OOFF8}, s{S_T0}, 8")
    p.s(f"s_lshl_b32 s{S_OOFF8}, s{S_OOFF8}, 12")
    p.s(f"s_lshl_b32 s{S_T1}, s{S_W}, 10")
    p.s(f"s_add_u32 s{S_OOFF8}, s{S_OOFF8}, s{S_T1}")
    p.s(f"s_add_u32 s{S_H}, s{S_H}, 8")
    p.s(f"s_lshl_b32 s{S_WOFFN}, s{S_H}, 8")
    p.s(f"s_cmp_eq_u32 s{S_ITER}, 1")
    p.s(f"s_cselect_b32 s{S_WOFFN}, 0x40000000, s{S_WOFFN}")
    p.s(f"s_cselect_b32 s{S_XOFFN}, 0x40000000, s{S_XOFFN}")

    units = []
    pool_i = [0]
    def pool():
        r = V_POOL + 8 * (pool_i[0] % NPOOL); pool_i[0] += 1; return r
    AV = (V_AV0, V_AV1); AV8 = (V_AV80, V_AV81)
    for tile in SEQ:
        kind, i = tile
        sb = slot_of(tile)
        us = []
        if kind == "Q":
            buf = i & 1
            for mp in range(4):
                r = pool()
                rd = []
                if mp == 0:
                    rd += [("r128", Xf(buf, 0), V_AX, sb), ("r128", Xf(buf, 1), V_AX, sb + 1024), ("r128", Xf(buf, 2), V_AX8, sb)]
                mf = []
                for e in range(2):
                    m = 2 * mp + e
                    rd += [("tr", r + 4 * e, AV[e], sb + mp * 512), ("tr", r + 4 * e + 2, AV[e], sb + 2048 + mp * 512)]
                    for n in range(2):
                        mf.append((Oa(n, m), r + 4 * e, Xf(buf, n), Oa(n, m) if i else None, ("Q", i, n, m)))
                us.append(Unit(tile, rd, mf))
            r = pool(); rd = []; mf = []
            for e in range(2):
                rd += [("tr", r + 4 * e, AV8[e], sb), ("tr", r + 4 * e + 2, AV8[e], sb + 2048)]
                mf.append((Oa(2, e), r + 4 * e, Xf(buf, 2), Oa(2, e) if i else None, ("Q", i, 2, e)))
            us.append(Unit(tile, rd, mf))
        elif kind == "K":
            def cinit(n): return NM(n) if i else None
            s8 = []
            for kp in range(2):
                r = pool(); rd = []; mf = []
                for e in range(2):
                    ks = 2 * kp + e
                    rd.append(("r128", r + 4 * e, V_AK8, sb + ks * 512))
                    mf.append((Sa(2, 0), r + 4 * e, Qf(2, ks), Sa(2, 0) if ks else cinit(2), ("S", i, 2, 0, ks)))
                s8.append((rd, mf))
            def main_units():
                out = []
                for kt in range(4):
                    for kp in range(2):
                        r = pool(); rd = []; mf = []
                        for e in range(2):
                            ks = 2 * kp + e
                            rd.append(("r128", r + 4 * e, V_AK, sb + kt * 2048 + ks * 512))
                            for n in range(2):
                                mf.append((Sa(n, kt), r + 4 * e, Qf(n, ks), Sa(n, kt) if ks else cinit(n), ("S", i, n, kt, ks)))
                            if i == 0 and kt == 3:
                                mf.append((V_T, r + 4 * e, Qf(2, ks), V_T if ks else None, ("S8ref", ks)))
                        out.append(Unit(tile, rd, mf))
                return out
            us = [Unit(tile, rd, mf) for rd, mf in s8] + main_units()
            if i == 0:
                us[0].reads = [("r128", Qf(2, t), V_LIN, Q8AREA - 16384 + t * 1024) for t in range(4)] + us[0].reads
        else:
            for kk in range(2):
                for mp in range(4):
                    r = pool(); rd = []; mf = []
                    for e in range(2):
                        m = 2 * mp + e
                        rd += [("tr", r + 4 * e, AV[e], sb + (2 * kk) * 2048 + mp * 512), ("tr", r + 4 * e + 2, AV[e], sb + (2 * kk + 1) * 2048 + mp * 512)]
                        for n in range(2):
                            mf.append((Oa(n, m), r + 4 * e, Pf(n, kk), Oa(n, m) if (i or kk) else None, ("PV", i, n, m, kk)))
                    us.append(Unit(tile, rd, mf))
                r = pool(); rd = [("r128", V_P8 + 4 * kk, V_LIN, sb + kk * 1024)]; mf = []
                for e in range(2):
                    rd += [("tr", r + 4 * e, AV8[e], sb + (2 * kk) * 2048), ("tr", r + 4 * e + 2, AV8[e], sb + (2 * kk + 1) * 2048)]
                    mf.append((Oa(2, e), r + 4 * e, V_P8 + 4 * kk, Oa(2, e) if (i or kk) else None, ("PV", i, 2, e, kk)))
                us.append(Unit(tile, rd, mf))
        us[0].first = True
        units += us
    assert pool_i[0] % NPOOL == 0, pool_i[0]

    side = []
    done = set()
    def S(after, f): side.append((after, f))

    def softmax_ops(j):
        order = [(2, 0)] + [(n, kt) for kt in range(4) for n in range(2)]
        if j == 0:
            order = [(n, kt) for kt in range(4) for n in range(2)] + [(2, 0)]
        for (n, kt) in order:
            a = ("S", j, n, kt, 3) if j else ("MAXDONE",)
            for r in range(4):
                reg = Sa(n, kt) + r
                S(a, lambda p, reg=reg: p.exp(reg, reg))
            for r in range(4):
                reg = Sa(n, kt) + r
                if j == 0 and kt == 0 and r == 0:
                    S(a, lambda p, reg=reg, n=n: p.vop("v_mov_b32", V_L + n, reg))
                else:
                    S(a, lambda p, reg=reg, n=n: p.vop("v_add_f32", V_L + n, V_L + n, reg))
            if n == 2:
                S(a, lambda p: p.cvtpk(V_T, Sa(2, 0), Sa(2, 0) + 1))
                S(a, lambda p: p.cvtpk(V_T + 1, Sa(2, 0) + 2, Sa(2, 0) + 3))
                S(a, lambda p, j=j: p.ds_write(V_P8W, V_T, 2, slot_of(("V", j))))
        S(None, ("mark", ("EXP", j)))
        for kk in range(2):
            a = ("PV", j - 1, 1, 7, kk) if j else ("MAXDONE",)
            for n in range(2):
                for h in range(2):
                    kt = 2 * kk + h
                    S(a, lambda p, n=n, kk=kk, h=h, kt=kt: p.cvtpk(Pf(n, kk) + 2 * h, Sa(n, kt), Sa(n, kt) + 1))
                    S(a, lambda p, n=n, kk=kk, h=h, kt=kt: p.cvtpk(Pf(n, kk) + 2 * h + 1, Sa(n, kt) + 2, Sa(n, kt) + 3))
            S(None, ("mark", ("CVT", j, kk)))
        S(None, ("mark", ("SM", j)))

    def flush_until(mark):
        while mark not in done:
            a, f = side.pop(0)
            assert a is None or a in done, (a, mark)
            if isinstance(f, tuple): done.add(f[1])
            else: f(p)
    def emit_side(k):
        c = 0
        while side and c < k:
            a, f = side[0]
            if a is not None and a not in done: break
            side.pop(0)
            if isinstance(f, tuple): done.add(f[1])
            else: f(p); c += 1

    def q_finalize():
        for n in range(3):
            for t in range(4 if n < 2 else 1):
                dst = Qf(n, t) if n < 2 else V_T
                src0 = Oa(n, 2 * t); src1 = Oa(n, 2 * t + 1)
                for r in range(4):
                    p.vop("v_mul_f32", src0 + r, f"s{S_CS}", src0 + r)
                    p.vop("v_mul_f32", src1 + r, f"s{S_CS}", src1 + r)
                p.cvtpk(dst, src0, src0 + 1); p.cvtpk(dst + 1, src0 + 2, src0 + 3)
                p.cvtpk(dst + 2, src1, src1 + 1); p.cvtpk(dst + 3, src1 + 2, src1 + 3)
        for n in (2, 0, 1):
            for t in range(4 if n < 2 else 1):
                dst = Qf(n, t) if n < 2 else V_T
                p.swap32(dst, dst + 2); p.swap32(dst + 1, dst + 3)
                p.swap16(dst, dst + 2); p.swap16(dst + 1, dst + 3)
            if n == 2:
                p.v(f"v_lshl_add_u32 v{V_S}, s{S_W}, 10, v{V_LIN}", [V_S], [V_LIN])
                p.ds_write(V_S, V_T, 4, Q8AREA - 16384)

    def xlane(op, reg, tmp):
        for sw in (p.swap32, p.swap16):
            p.vop("v_mov_b32", tmp, reg)
            sw(reg, tmp)
            p.vop(op, reg, reg, tmp)

    def block0_max():
        for n in range(3):
            regs = [Sa(n, kt) + r for kt in range(4) for r in range(4)] if n < 2 else [V_T + r for r in range(4)]
            m = NM(n)
            p.vop("v_max3_f32", m, regs[0], regs[1], regs[2])
            rest = regs[3:]
            while len(rest) >= 2:
                p.vop("v_max3_f32", m, m, rest[0], rest[1]); rest = rest[2:]
            if rest: p.vop("v_max_f32", m, m, rest[0])
        for sw in (p.swap32, p.swap16):
            for n in range(3): p.vop("v_mov_b32", NM(n) + 1, NM(n))
            for n in range(3): sw(NM(n), NM(n) + 1)
            for n in range(3): p.vop("v_max_f32", NM(n), NM(n), NM(n) + 1)
        for n in range(3):
            p.vop("v_sub_f32", NM(n), "0", NM(n))
            for r in range(1, 4): p.vop("v_mov_b32", NM(n) + r, NM(n))
        for n in range(3):
            regs = [Sa(n, kt) + r for kt in range(4) for r in range(4)] if n < 2 else [Sa(2, 0) + r for r in range(4)]
            for r in regs: p.vop("v_add_f32", r, r, NM(n))
        done.add(("MAXDONE",))

    def epilogue():
        p.ds_read128(V_T, V_LIN, STAT - 16384)
        p.vop("v_add_f32", V_T, V_T, V_T + 1); p.vop("v_add_f32", V_T + 2, V_T + 2, V_T + 3)
        p.vop("v_add_f32", V_L + 2, V_T, V_T + 2)
        for sw in (p.swap32, p.swap16):
            for n in range(3): p.vop("v_mov_b32", V_T + n, V_L + n)
            for n in range(3): sw(V_L + n, V_T + n)
            for n in range(3): p.vop("v_add_f32", V_L + n, V_L + n, V_T + n)
        for n in range(3): p.vop("v_rcp_f32", V_L + n, V_L + n, kind="trans")
        k = 0
        for n in range(3):
            for t in range(4 if n < 2 else 1):
                dst = V_S + 4 * k; k += 1
                s0 = Oa(n, 2 * t); s1 = Oa(n, 2 * t + 1)
                for r in range(4):
                    p.vop("v_mul_f32", s0 + r, s0 + r, V_L + n)
                    p.vop("v_mul_f32", s1 + r, s1 + r, V_L + n)
                p.cvtpk(dst, s0, s0 + 1); p.cvtpk(dst + 1, s0 + 2, s0 + 3)
                p.cvtpk(dst + 2, s1, s1 + 1); p.cvtpk(dst + 3, s1 + 2, s1 + 3)
                if n == 1 and t == 0: p.s(f"s_add_u32 s{S_OOFF}, s{S_OOFF}, 4096")
                p.store(dst, 4, V_OST, SRD_O, f"s{S_OOFF if n < 2 else S_OOFF8}", t * 1024)

    pend_dma = []
    N = len(units)
    def emit_reads(u):
        nonlocal pend_dma
        if u.first:
            kind, i = u.tile
            for f in pend_dma: f(p)
            pos = POS[u.tile]
            if kind == "V": flush_until(("EXP", i))
            if u.tile == ("V", 7):
                p.v(f"v_lshl_add_u32 v{V_T+2}, s{S_W}, 2, v{V_LIN}", [V_T + 2], [V_LIN])
                p.ds_write(V_T + 2, V_L + 2, 1, STAT - 16384)
            if PROF: p.s("s_memtime s[60:61]")
            p.wait_vm((kind, i, pos < 3), lgkm0=True)
            if PROF:
                p.s("s_bfe_u32 s60, s60, 0x100004")
                p.s("s_bfe_u32 s62, s62, 0x100004")
                p.s("s_lshl_b32 s62, s62, 16")
                p.s("s_or_b32 s60, s60, s62")
                p.raw(f"v_writelane_b32 v0, s60, {pos}")
            p.barrier()
            if PROF: p.s("s_memtime s[62:63]")
            nt = pos + 3
            pend_dma = issue_ops(SEQ[nt % 36], nt >= 36)
        for (k, d, a, off) in u.reads:
            if k == "r128": p.ds_read128(d, a, off)
            else: p.ds_tr(d, a, off)
    def emit_mfmas(u):
        for (d, a, b, c, tag) in u.mfmas:
            if tag[0] == "PV" and tag[2:4] == (0, 0): flush_until(("CVT", tag[1], tag[4]))
            if tag[0] == "S" and tag[1] >= 1 and tag[4] == 0:
                if tag[2] == 2: flush_until(("EXP", tag[1] - 1))
                else: flush_until(("CVT", tag[1] - 1, tag[3] >> 1))
            p.mfma(d, a, b, c)
            done.add(tag)
            emit_side(2)
        if pend_dma: pend_dma.pop(0)(p)

    ri = 0
    for ui in range(N):
        u = units[ui]
        while ri < N and ri <= ui + D:
            t = units[ri].tile
            if t == ("K", 0) and u.tile[0] == "Q": break
            emit_reads(units[ri]); ri += 1
            if ri > ui + D: break
        if u.first and u.tile[0] == "K":
            j = u.tile[1]
            if j == 1:
                block0_max(); softmax_ops(0); flush_until(("SM", 0))
            if j >= 1: softmax_ops(j)
        emit_mfmas(u)
        if u.tile == ("Q", 19) and units[ui + 1].tile == ("K", 0):
            q_finalize()
    emit_side(100)
    assert not side, side
    for f in pend_dma: f(p)
    epilogue()
    if PROF:
        p.s("s_memtime s[60:61]")
        p.s("s_memrealtime s[56:57]")
        p.s("s_waitcnt lgkmcnt(0)")
        p.s("s_bfe_u32 s60, s60, 0x100004")
        p.s("s_bfe_u32 s62, s62, 0x100004")
        p.s("s_lshl_b32 s62, s62, 16")
        p.s("s_or_b32 s60, s60, s62")
        p.raw("v_writelane_b32 v0, s60, 36")
        p.raw("v_writelane_b32 v0, s58, 62")
        p.raw("v_writelane_b32 v0, s56, 63")
        p.s("s_getreg_b32 s60, hwreg(HW_REG_HW_ID)")
        p.raw("v_writelane_b32 v0, s60, 61")
        p.s("s_getreg_b32 s60, hwreg(HW_REG_XCC_ID)")
        p.raw("v_writelane_b32 v0, s60, 60")
        p.s(f"s_lshl_b32 s60, s2, 1")
        p.s(f"s_add_u32 s60, s60, s{S_ITER}")
        p.s(f"s_lshl_b32 s60, s60, 2")
        p.s(f"s_add_u32 s60, s60, s{S_W}")
        p.s(f"s_lshl_b32 s60, s60, 8")
        p.s(f"s_add_u32 s60, s60, 0x4000000")
        p.vop("v_lshrrev_b32", V_T, "2", V_OST)
        p.store(0, 1, V_T, SRD_O, "s60", 0)
    p.s(f"s_add_u32 s{S_ITER}, s{S_ITER}, 1")
    p.s(f"s_cmp_lt_u32 s{S_ITER}, 2")
    p.s(f"s_cbranch_scc1 {name}_loop")
    p.label(f"{name}_end")
    p.raw("s_endpgm")
    return p

def gen(name):
    pro = prologue(name); b = body(name)
    lines, stats = finalize([(pro, 1), (b, 2)])
    return [f".globl {name}", ".p2align 8", f".type {name},@function", f"{name}:"] + lines, stats
```

```python
from asmlib import *
import math, struct, os
PROF = int(os.environ.get("PROF", "0"))
ABL = os.environ.get("ABL", "")
ROT = int(os.environ.get("ROT", "1"))
OFL = os.environ.get("OFL", "")
def f2u(f): return struct.unpack("<I", struct.pack("<f", f))[0]
CSCALE = math.log2(math.e) / math.sqrt(128.0)
NWG = 512
SLOT = 18432
Q8AREA = 4 * SLOT
STAT = Q8AREA + 4096
LDS_BYTES = 81920
OBYTES = 32 * 288 * 4096

S_W = 3
SRD_X, SRD_K, SRD_V, SRD_W, SRD_O = 8, 12, 16, 20, 24
S_M0KV, S_M0X, S_M0X8 = 28, 29, 30
S_KVOFF = 31
S_WOFF, S_XOFF, S_XOFF8 = 32, 33, 41
S_OOFF, S_OOFF8 = 34, 43
S_ITER = 35
S_T0, S_T1 = 36, 37
S_B, S_H = 38, 39
S_CS = 40
S_KW, S_KX, S_KX8, S_ROT = 4, 5, 6, 7
S_XM = 54
S_WLIM = 42

V_DK, V_DV, V_DW, V_DX = 1, 2, 3, 4
V_AK, V_AK8, V_AV0, V_AV1, V_AV80, V_AV81, V_AX, V_AX8, V_LIN, V_P8W, V_OST = 6, 7, 8, 9, 10, 11, 12, 13, 14, 15, 16
V_L = 17
V_Q = 20; V_O = 68; V_S = 140; V_P = 176; V_P8 = 192; V_NM = 200; V_POOL = 212; V_T = 252
NPOOL = 10
def Qf(n, ks): return V_Q + (n * 4 + ks) * 4
def Oa(n, m): return V_O + (n * 8 + m) * 4 if n < 2 else V_O + 64 + m * 4
def Sa(n, kt): return V_S + (n * 4 + kt) * 4 if n < 2 else V_S + 32
def Pf(n, kk): return V_P + (n * 2 + kk) * 4
def NM(n): return V_NM + 4 * n
def Xf(buf, kh, t): return V_S + ((buf * 2 + kh) * 3 + t) * 4

SEQ = []
for i in range(10): SEQ += [("X", i), ("W", i)]
SEQ += [("K", 0)]
for j in range(7): SEQ += [("K", j + 1), ("V", j)]
SEQ += [("V", 7)]
NT = len(SEQ)
POS = {t: i for i, t in enumerate(SEQ)}
def slot_of(t): return (POS[t] % 4) * SLOT

def issue_ops(tile, nxt):
    kind, i = tile
    sb = slot_of(tile); tag = (kind, i, nxt)
    ops = []
    if kind in "KV":
        srd = SRD_K if kind == "K" else SRD_V
        voff = V_DK if kind == "K" else V_DV
        for kt in range(4):
            def f(p, kt=kt):
                p.s(f"s_add_u32 m0, s{S_M0KV}, {sb + kt * 2048}")
                p.s(f"s_add_u32 s{S_T0}, s{S_KVOFF}, {i * 16384 + kt * 4096}")
                if "D" not in ABL: p.dma(voff, srd, f"s{S_T0}", tag, "nt")
            ops.append(f)
    elif kind == "W":
        for kt in range(4):
            def f(p, kt=kt):
                p.s(f"s_add_u32 m0, s{S_M0KV}, {sb + kt * 2048}")
                p.s(f"s_add_u32 s{S_T0}, s{S_KW}, {(32 * (kt >> 1) + 4 * (kt & 1)) * 8192}")
                if "W" not in ABL: p.dma(V_DW, SRD_W, f"s{S_T0}", tag)
                if kt == 3:
                    p.s(f"s_add_u32 s{S_KW}, s{S_KW}, {64 * 8192}")
                    p.s(f"s_cmp_ge_u32 s{S_KW}, s{S_WLIM}")
                    p.s(f"s_cselect_b32 s{S_KW}, s{S_WOFF}, s{S_KW}")
            ops.append(f)
    else:
        if i == 0: ops.append(next_problem_setup)
        for k in range(4):
            def f(p, k=k):
                p.s(f"s_add_u32 m0, s{S_M0X}, {sb + k * 4096}")
                if k == 0: p.s(f"s_add_u32 s{S_KX8}, s{S_XOFF}, s{S_KX}")
                p.s(f"s_add_u32 s{S_T0}, s{S_KX8}, {k * 32 * 1280}")
                if "X" not in ABL: p.dma(V_DX, SRD_X, f"s{S_T0}", tag)
            ops.append(f)
        def f(p):
            p.s(f"s_add_u32 m0, s{S_M0X8}, {sb}")
            p.s(f"s_add_u32 s{S_T0}, s{S_XOFF8}, s{S_KX}")
            p.s(f"s_mov_b64 exec, s[{S_XM}:{S_XM+1}]")
            if "X" not in ABL: p.dma(V_DX, SRD_X, f"s{S_T0}", tag)
            p.s("s_mov_b64 exec, -1")
            p.s(f"s_add_u32 s{S_KX}, s{S_KX}, 128")
            p.s(f"s_cmp_ge_u32 s{S_KX}, 1280")
            p.s(f"s_cselect_b32 s{S_KX}, 0, s{S_KX}")
        ops.append(f)
    return ops

def next_problem_setup(p):
    p.s(f"s_lshl_b32 s{S_WOFF}, s{S_H}, 8")
    p.s(f"s_cmp_eq_u32 s{S_ITER}, 1")
    p.s(f"s_cselect_b32 s{S_WOFF}, 0x40000000, s{S_WOFF}")
    p.s(f"s_cselect_b32 s{S_XOFF}, 0x40000000, s{S_XOFF}")
    p.s(f"s_cselect_b32 s{S_XOFF8}, 0x40000000, s{S_XOFF8}")
    p.s(f"s_add_u32 s{S_WLIM}, s{S_WOFF}, {640 * 8192}")
    p.s(f"s_mul_i32 s{S_KW}, s{S_ROT}, {64 * 8192}")
    p.s(f"s_add_u32 s{S_KW}, s{S_KW}, s{S_WOFF}")
    p.s(f"s_lshl_b32 s{S_KX}, s{S_ROT}, 7")

lbl = [0]
def stamp(p, idx):
    if not PROF: return
    p.s("s_memtime s[60:61]")
    p.wait_lgkm0()
    p.raw(f"v_writelane_b32 v0, s60, {idx}")

def prologue(name):
    p = Prog()
    p.s(f"s_cmp_ge_u32 s2, {NWG}")
    p.s(f"s_cbranch_scc1 {name}_end")
    if PROF: p.s("s_memrealtime s[58:59]")
    p.s("s_load_dwordx4 s[44:47], s[0:1], 0")
    p.s("s_load_dwordx4 s[48:51], s[0:1], 16")
    p.s("s_load_dwordx2 s[52:53], s[0:1], 56")
    T = V_POOL
    W, L, a, b, c, d, H, U, VV, R8, PI, M, G = range(T, T + 13)
    p.vop("v_lshrrev_b32", W, "6", 0)
    p.vop("v_and_b32", L, "63", 0)
    p.add(Ins(f"v_readfirstlane_b32 s{S_W}, v{W}", "rfl", [W], []))
    p.vop("v_and_b32", H, "1", W)
    p.vop("v_lshrrev_b32", U, "1", W)
    p.vop("v_lshrrev_b32", VV, "5", L)
    p.vop("v_bfe_u32", R8, L, "2", "3")
    p.vop("v_and_b32", PI, "3", L)
    p.vop("v_and_b32", M, "15", L)
    p.vop("v_lshrrev_b32", G, "4", L)
    p.s(f"s_movk_i32 s{S_T0}, 1280")
    p.vop("v_lshl_add_u32", b, H, "3", R8)
    p.vop("v_mul_lo_u32", a, b, f"s{S_T0}")
    p.vop("v_lshl_add_u32", a, VV, "6", a)
    p.vop("v_mul_u32_u24", c, "3", H)
    p.vop("v_xor_b32", c, c, PI)
    p.vop("v_lshl_add_u32", V_DX, c, "4", a)
    p.vop("v_lshlrev_b32", a, "7", U)
    p.vop("v_lshl_add_u32", a, VV, "6", a)
    p.vop("v_lshl_add_u32", b, b, "8", a)
    p.vop("v_lshl_add_u32", V_DK, c, "4", b)
    p.vop("v_lshrrev_b32", c, "2", R8)
    p.vop("v_lshlrev_b32", d, "1", c)
    p.vop("v_xor_b32", d, d, PI)
    p.vop("v_lshl_add_u32", V_DV, d, "4", b)
    p.vop("v_lshlrev_b32", b, "4", H)
    p.vop("v_lshl_add_u32", b, c, "3", b)
    p.vop("v_and_b32", c, "3", R8)
    p.vop("v_add_u32", b, b, c)
    p.vop("v_lshl_add_u32", b, b, "13", a)
    p.vop("v_lshl_add_u32", V_DW, d, "4", b)
    p.s(f"s_and_b32 s{S_T0}, s{S_W}, 1")
    p.s(f"s_lshr_b32 s{S_T1}, s{S_W}, 1")
    p.s(f"s_lshl_b32 s{S_M0KV}, s{S_T0}, 13")
    p.s(f"s_lshl_b32 s{S_M0X}, s{S_T1}, 10")
    p.s(f"s_add_u32 s{S_M0KV}, s{S_M0KV}, s{S_M0X}")
    p.s(f"s_lshl_b32 s{S_M0X8}, s{S_T0}, 10")
    p.s(f"s_lshl_b32 s{S_M0X}, s{S_T1}, 11")
    p.s(f"s_add_u32 s{S_M0X}, s{S_M0X}, s{S_M0X8}")
    p.s(f"s_add_u32 s{S_M0X8}, s{S_M0X8}, 16384")
    p.s(f"s_cmp_eq_u32 s{S_T1}, 0")
    p.s(f"s_mov_b32 s{S_XM+1}, 0xffff0000")
    p.s(f"s_cselect_b32 s{S_XM}, 0xffff, s{S_XM+1}")
    p.s(f"s_mov_b32 s{S_XM+1}, s{S_XM}")
    p.s(f"s_mov_b32 s{S_CS}, {f2u(CSCALE):#x}")
    p.s(f"s_bfe_u32 s{S_T0}, s2, 0x20001")
    p.s(f"s_lshl_b32 s{S_B}, s{S_T0}, 3")
    p.s(f"s_lshr_b32 s{S_ROT}, s2, 6")
    p.s(f"s_add_u32 s{S_B}, s{S_B}, s{S_ROT}")
    p.s(f"s_and_b32 s{S_T0}, s2, 1")
    p.s(f"s_lshl_b32 s{S_H}, s{S_T0}, 4")
    p.s(f"s_bfe_u32 s{S_T0}, s2, 0x30003")
    p.s(f"s_add_u32 s{S_H}, s{S_H}, s{S_T0}")
    p.s(f"s_add_u32 s{S_ROT}, s{S_ROT}, s{S_T0}")
    p.s(f"s_and_b32 s{S_ROT}, s{S_ROT}, 7")
    p.s(f"s_mul_i32 s{S_ROT}, s{S_ROT}, 5")
    p.s(f"s_lshr_b32 s{S_ROT}, s{S_ROT}, 2")
    if not ROT: p.s(f"s_mov_b32 s{S_ROT}, 0")
    p.s(f"s_mul_i32 s{S_XOFF8}, s{S_B}, {144 * 1280}")
    p.s(f"s_mul_i32 s{S_XOFF}, s{S_T1}, {16 * 1280}")
    p.s(f"s_add_u32 s{S_XOFF}, s{S_XOFF}, s{S_XOFF8}")
    p.s(f"s_add_u32 s{S_XOFF8}, s{S_XOFF8}, {128 * 1280}")
    p.s(f"s_mov_b32 s{S_ITER}, 0")
    p.s("s_waitcnt lgkmcnt(0)")
    for srd, src, size in ((SRD_X, 44, 32 * 144 * 640 * 2), (SRD_K, 46, 1 << 27), (SRD_V, 48, 1 << 27), (SRD_W, 50, 640 * 4096 * 2), (SRD_O, 52, (1 << 28) if PROF else OBYTES)):
        p.s(f"s_mov_b32 s{srd}, s{src}")
        p.s(f"s_and_b32 s{srd+1}, s{src+1}, 0xffff")
        p.s(f"s_mov_b32 s{srd+2}, {size:#x}")
        p.s(f"s_mov_b32 s{srd+3}, 0x20000")
    for i in range(3):
        for f in issue_ops(SEQ[i], True): f(p)
    PR = int(os.environ.get("PRIO", "0"))
    if PR:
        p.s(f"s_cmp_ge_u32 s2, 256")
        p.s(f"s_cbranch_scc1 {name}_noprio")
        p.s(f"s_setprio {PR}")
        p.label(f"{name}_noprio")
    p.vop("v_lshrrev_b32", a, "3", M)
    p.vop("v_mul_u32_u24", c, "3", a)
    p.vop("v_xor_b32", c, c, G)
    p.vop("v_and_b32", b, "7", M)
    p.vop("v_lshlrev_b32", b, "6", b)
    p.vop("v_lshl_add_u32", b, c, "4", b)
    p.vop("v_lshl_add_u32", V_AK, a, "13", b)
    p.vop("v_lshl_add_u32", V_AK8, W, "11", V_AK)
    p.vop("v_lshl_add_u32", b, a, "10", b)
    p.vop("v_add_u32", V_AX8, "16384", b)
    p.vop("v_lshl_add_u32", V_AX, W, "12", b)
    p.vop("v_lshrrev_b32", a, "1", G)
    p.vop("v_lshlrev_b32", b, "13", a)
    p.vop("v_lshl_add_u32", b, R8, "6", b)
    p.vop("v_and_b32", c, "1", L)
    p.vop("v_lshl_add_u32", b, c, "3", b)
    p.vop("v_bfe_u32", c, L, "1", "1")
    p.vop("v_lshl_add_u32", b, c, "4", b)
    p.vop("v_and_b32", c, "1", G)
    p.vop("v_lshl_add_u32", V_AV0, c, "5", b)
    p.vop("v_xor_b32", V_AV1, "32", V_AV0)
    p.vop("v_lshl_add_u32", V_AV80, W, "9", V_AV0)
    p.vop("v_lshl_add_u32", V_AV81, W, "9", V_AV1)
    p.vop("v_lshlrev_b32", V_OST, "4", L)
    p.vop("v_add_u32", V_LIN, "16384", V_OST)
    p.vop("v_lshl_add_u32", V_P8W, U, "10", V_LIN)
    p.vop("v_lshl_add_u32", V_P8W, H, "3", V_P8W)
    return p

def body(name):
    p = Prog()
    p.label(f"{name}_loop")
    p.s(f"s_lshl_b32 s{S_T0}, s{S_B}, 5")
    p.s(f"s_add_u32 s{S_T0}, s{S_T0}, s{S_H}")
    p.s(f"s_lshl_b32 s{S_KVOFF}, s{S_T0}, 17")
    p.s(f"s_mul_i32 s{S_T0}, s{S_B}, 9")
    p.s(f"s_mul_i32 s{S_T1}, s{S_H}, 288")
    p.s(f"s_add_u32 s{S_T0}, s{S_T0}, s{S_T1}")
    p.s(f"s_lshl_b32 s{S_T1}, s{S_W}, 1")
    p.s(f"s_add_u32 s{S_OOFF}, s{S_T1}, s{S_T0}")
    p.s(f"s_lshl_b32 s{S_OOFF}, s{S_OOFF}, 12")
    p.s(f"s_add_u32 s{S_OOFF8}, s{S_T0}, 8")
    p.s(f"s_lshl_b32 s{S_OOFF8}, s{S_OOFF8}, 12")
    p.s(f"s_lshl_b32 s{S_T1}, s{S_W}, 10")
    p.s(f"s_add_u32 s{S_OOFF8}, s{S_OOFF8}, s{S_T1}")
    p.s(f"s_add_u32 s{S_H}, s{S_H}, 8")

    sc = Sched(p, budget=int(os.environ.get("ABUD", "12")), late_extra=8)
    AV = (V_AV0, V_AV1); AV8 = (V_AV80, V_AV81)
    pool_last = [None] * NPOOL; pool_i = [0]
    LEAD = int(os.environ.get("LEAD", "8"))
    DSP = int(os.environ.get("DSP", "1"))
    frags = []
    def frag(tile, mk_reads, consumers):
        k = pool_i[0] % NPOOL; pool_i[0] += 1
        r = V_POOL + 4 * k
        war = pool_last[k]
        for (d, b, c, tag) in consumers: sc.mfma(d, r, b, c, tag)
        pool_last[k] = consumers[-1][3]
        frags.append((tile, mk_reads(r), consumers[0][3], war))
    def R128(d, a, off): return lambda p: p.ds_read128(d, a, off)
    def TR(d, a, off): return lambda p: p.ds_tr(d, a, off)
    for tile in SEQ:
        kind, i = tile
        sb = slot_of(tile)
        if kind == "X":
            buf = i & 1
            rd = []
            for kh in range(2):
                rd += [R128(Xf(buf, kh, 0), V_AX, sb + kh * 512), R128(Xf(buf, kh, 1), V_AX, sb + 2048 + kh * 512), R128(Xf(buf, kh, 2), V_AX8, sb + kh * 512)]
            frags.append((tile, rd, ("Q", i, 0, 0, 0), ("Q", i - 2, 1, 2, 1) if i >= 2 else None))
        elif kind == "W":
            buf = i & 1
            for kh in range(2):
                for m in range(8):
                    e, mp = m & 1, m >> 1
                    frag(tile, lambda r: [TR(r, AV[e], sb + (2 * kh) * 2048 + mp * 512), TR(r + 2, AV[e], sb + (2 * kh + 1) * 2048 + mp * 512)],
                         [(Oa(n, m), Xf(buf, kh, n), Oa(n, m) if (i or kh) else None, ("Q", i, kh, n, m)) for n in range(2)])
                for e in range(2):
                    frag(tile, lambda r: [TR(r, AV8[e], sb + (2 * kh) * 2048), TR(r + 2, AV8[e], sb + (2 * kh + 1) * 2048)],
                         [(Oa(2, e), Xf(buf, kh, 2), Oa(2, e) if (i or kh) else None, ("Q", i, kh, 2, e))])
        elif kind == "K":
            def cinit(n): return NM(n) if i else None
            def s8():
                for ks in range(4):
                    extra = [R128(Qf(2, t), V_LIN, Q8AREA - 16384 + t * 1024) for t in range(4)] if (i == 0 and ks == 0) else []
                    frag(tile, lambda r: [R128(r, V_AK8, sb + ks * 512)] + extra,
                         [(Sa(2, 0), Qf(2, ks), Sa(2, 0) if ks else cinit(2), ("S", i, 2, 0, ks))])
            s8()
            for kt in range(4):
                for ks in range(4):
                    cons = [(Sa(n, kt), Qf(n, ks), Sa(n, kt) if ks else cinit(n), ("S", i, n, kt, ks)) for n in range(2)]
                    if i == 0 and kt == 3: cons.append((V_T, Qf(2, ks), V_T if ks else None, ("S8ref", ks)))
                    frag(tile, lambda r: [R128(r, V_AK, sb + kt * 2048 + ks * 512)], cons)
        else:
            for kk in range(2):
                for m in range(8):
                    e, mp = m & 1, m >> 1
                    frag(tile, lambda r: [TR(r, AV[e], sb + (2 * kk) * 2048 + mp * 512), TR(r + 2, AV[e], sb + (2 * kk + 1) * 2048 + mp * 512)],
                         [(Oa(n, m), Pf(n, kk), Oa(n, m) if (i or kk) else None, ("PV", i, n, m, kk)) for n in range(2)])
                for e in range(2):
                    extra = [R128(V_P8 + 4 * kk, V_LIN, sb + kk * 1024)] if e == 0 else []
                    frag(tile, lambda r: [TR(r, AV8[e], sb + (2 * kk) * 2048), TR(r + 2, AV8[e], sb + (2 * kk + 1) * 2048)] + extra,
                         [(Oa(2, e), V_P8 + 4 * kk, Oa(2, e) if (i or kk) else None, ("PV", i, 2, e, kk))])
    assert pool_i[0] % NPOOL == 0

    cur = None; lastrd = None
    for (tile, reads, cons, war) in frags:
        if tile != cur:
            cur = tile
            kind, i = tile; pos = POS[tile]
            aft = []
            if kind == "V": aft.append(("P8W", i))
            if tile == ("V", 7): aft.append(("STATW",))
            if tile == ("K", 0): aft.append(("QFIN",))
            if lastrd is not None: aft.append(dict(tag=lastrd, delay=int(os.environ.get("BDL", "3"))))
            if pos: aft.append(("DMA", SEQ[pos - 1]))
            def bar(p, kind=kind, i=i, pos=pos):
                p.comment(f"---- step {kind}{i}")
                p.wait_vm((kind, i, pos < 3), lgkm0=True)
                p.barrier()
                stamp(p, pos)
                PM = os.environ.get("PM", "")
                if PM == "prog" and pos in (0, 20):
                    k = lbl[0]; lbl[0] += 1
                    p.s(f"s_cmp_eq_u32 s{S_ITER}, 0")
                    p.s(f"s_cbranch_scc1 Lp{k}a")
                    p.s(f"s_setprio {1 if pos == 0 else 0}")
                    p.s(f"s_branch Lp{k}b")
                    p.label(f"Lp{k}a")
                    p.s(f"s_setprio {3 if pos == 0 else 2}")
                    p.label(f"Lp{k}b")
                if PM == "iter" and pos == 0:
                    k = lbl[0]; lbl[0] += 1
                    p.s(f"s_setprio 2")
                    p.s(f"s_cmp_eq_u32 s{S_ITER}, 0")
                    p.s(f"s_cbranch_scc1 Lp{k}a")
                    p.s(f"s_setprio 0")
                    p.label(f"Lp{k}a")
                if PM == "kv" and pos in (0, 17):
                    p.s(f"s_setprio {0 if pos == 0 else 2}")
                if PM == "q" and pos in (0, 20):
                    p.s(f"s_setprio {2 if pos == 0 else 0}")
            sc.fill("rd", bar, 8, after=aft, before=cons, lead=LEAD + (10 if kind == "X" else 2), tag=("BAR", tile))
            nt = pos + 3
            ops = issue_ops(SEQ[nt % NT], nt >= NT)
            for k, fn in enumerate(ops):
                sc.fill("dma", fn, 12, after=dict(tag=("BAR", tile), delay=DSP * k), before=sc.m[min(sc.idx[cons] + 4 + DSP * k, len(sc.m) - 1)][4], lead=40,
                        tag=("DMA", tile) if k == len(ops) - 1 else None)
        for k, fn in enumerate(reads):
            lastrd = ("RD", tile, len(sc.q.get("rd", [])))
            sc.fill("rd", fn, 4, ds=True, after=war if k == 0 else None, before=cons, lead=LEAD + (8 if tile[0] == "X" else 0), tag=lastrd)

    def V(fn, after=None, before=None, cost=4, tag=None, lead=0): sc.fill("va", fn, cost, after=after, before=before, tag=tag, lead=lead)
    def q_finalize(p):
        for n in (2, 0, 1):
            for t in range(4 if n < 2 else 1):
                dst = Qf(n, t) if n < 2 else V_T
                src0 = Oa(n, 2 * t); src1 = Oa(n, 2 * t + 1)
                for r in range(4):
                    p.vop("v_mul_f32", src0 + r, f"s{S_CS}", src0 + r)
                    p.vop("v_mul_f32", src1 + r, f"s{S_CS}", src1 + r)
                p.cvtpk(dst, src0, src0 + 1); p.cvtpk(dst + 1, src0 + 2, src0 + 3)
                p.cvtpk(dst + 2, src1, src1 + 1); p.cvtpk(dst + 3, src1 + 2, src1 + 3)
        for n in (2, 0, 1):
            for t in range(4 if n < 2 else 1):
                dst = Qf(n, t) if n < 2 else V_T
                p.swap32(dst, dst + 2); p.swap32(dst + 1, dst + 3)
                p.swap16(dst, dst + 2); p.swap16(dst + 1, dst + 3)
            if n == 2:
                p.v(f"v_lshl_add_u32 v{V_S}, s{S_W}, 10, v{V_LIN}", [V_S], [V_LIN])
                p.ds_write(V_S, V_T, 4, Q8AREA - 16384)
    V(q_finalize, after=("Q", 9, 1, 2, 1), before=("S", 0, 2, 0, 0), cost=200, tag=("QFIN",))
    def block0_max(p):
        for n in range(3):
            regs = [Sa(n, kt) + r for kt in range(4) for r in range(4)] if n < 2 else [V_T + r for r in range(4)]
            m = NM(n)
            p.vop("v_max3_f32", m, regs[0], regs[1], regs[2])
            rest = regs[3:]
            while len(rest) >= 2:
                p.vop("v_max3_f32", m, m, rest[0], rest[1]); rest = rest[2:]
            if rest: p.vop("v_max_f32", m, m, rest[0])
        for sw in (p.swap32, p.swap16):
            for n in range(3): p.vop("v_mov_b32", NM(n) + 1, NM(n))
            for n in range(3): sw(NM(n), NM(n) + 1)
            for n in range(3): p.vop("v_max_f32", NM(n), NM(n), NM(n) + 1)
        for n in range(3):
            p.vop("v_sub_f32", NM(n), "0", NM(n))
            for r in range(1, 4): p.vop("v_mov_b32", NM(n) + r, NM(n))
        for n in (2, 0, 1):
            regs = [Sa(n, kt) + r for kt in range(4) for r in range(4)] if n < 2 else [Sa(2, 0) + r for r in range(4)]
            for r in regs: p.vop("v_add_f32", r, r, NM(n))
    for j in range(8):
        if j == 0: V(block0_max, after=("S8ref", 3), before=("S", 1, 2, 0, 0), cost=200)
        order = [(2, 0)] + [(n, kt) for kt in range(4) for n in range(2)]
        nxtS = lambda n, kt: ("S", j + 1, n, kt, 0) if j < 7 else None
        for (n, kt) in order:
            a = dict(tag=("S", j, n, kt, 3), delay=2) if j else None
            for r in range(4):
                reg = Sa(n, kt) + r
                V(lambda p, reg=reg: p.exp(reg, reg), after=a, cost=8)
            for r in range(4):
                reg = Sa(n, kt) + r
                if j == 0 and kt == 0 and r == 0: V(lambda p, reg=reg, n=n: p.vop("v_mov_b32", V_L + n, reg))
                else: V(lambda p, reg=reg, n=n: p.vop("v_add_f32", V_L + n, V_L + n, reg))
            if n == 2:
                V(lambda p: p.cvtpk(V_T, Sa(2, 0), Sa(2, 0) + 1))
                V(lambda p: p.cvtpk(V_T + 1, Sa(2, 0) + 2, Sa(2, 0) + 3), before=nxtS(2, 0))
                V(lambda p, j=j: p.ds_write(V_P8W, V_T, 2, slot_of(("V", j))), tag=("P8W", j))
                if j == 7:
                    V(lambda p: p.v(f"v_lshl_add_u32 v{V_T+2}, s{S_W}, 2, v{V_LIN}", [V_T + 2], [V_LIN]))
                    V(lambda p: p.ds_write(V_T + 2, V_L + 2, 1, STAT - 16384), tag=("STATW",))
            if j == 0 and n == 1:
                for n2 in range(2):
                    V(lambda p, n2=n2, kt=kt: p.cvtpk(Pf(n2, kt >> 1) + 2 * (kt & 1), Sa(n2, kt), Sa(n2, kt) + 1))
                    V(lambda p, n2=n2, kt=kt: p.cvtpk(Pf(n2, kt >> 1) + 2 * (kt & 1) + 1, Sa(n2, kt) + 2, Sa(n2, kt) + 3), before=nxtS(0, kt))
        if j:
            for kk in range(2):
                a = ("PV", j - 1, 1, 7, kk)
                for h in range(2):
                    kt = 2 * kk + h
                    for n in range(2):
                        bf = nxtS(0, kt) if j < 7 else ("PV", 7, 0, 0, kk)
                        V(lambda p, n=n, kk=kk, h=h, kt=kt: p.cvtpk(Pf(n, kk) + 2 * h, Sa(n, kt), Sa(n, kt) + 1), after=a)
                        V(lambda p, n=n, kk=kk, h=h, kt=kt: p.cvtpk(Pf(n, kk) + 2 * h + 1, Sa(n, kt) + 2, Sa(n, kt) + 3), before=bf, lead=2)
    sc.run()
    stamp(p, 36)
    p.ds_read128(V_T, V_LIN, STAT - 16384)
    p.vop("v_add_f32", V_T, V_T, V_T + 1); p.vop("v_add_f32", V_T + 2, V_T + 2, V_T + 3)
    p.vop("v_add_f32", V_L + 2, V_T, V_T + 2)
    for sw in (p.swap32, p.swap16):
        for n in range(3): p.vop("v_mov_b32", V_T + n, V_L + n)
        for n in range(3): sw(V_L + n, V_T + n)
        for n in range(3): p.vop("v_add_f32", V_L + n, V_L + n, V_T + n)
    for n in range(3): p.vop("v_rcp_f32", V_L + n, V_L + n, kind="trans")
    k = 0
    for n in range(3):
        for t in range(4 if n < 2 else 1):
            dst = V_Q + 4 * k; k += 1
            s0 = Oa(n, 2 * t); s1 = Oa(n, 2 * t + 1)
            for r in range(4):
                p.vop("v_mul_f32", s0 + r, s0 + r, V_L + n)
                p.vop("v_mul_f32", s1 + r, s1 + r, V_L + n)
            p.cvtpk(dst, s0, s0 + 1); p.cvtpk(dst + 1, s0 + 2, s0 + 3)
            p.cvtpk(dst + 2, s1, s1 + 1); p.cvtpk(dst + 3, s1 + 2, s1 + 3)
            if n == 1 and t == 0: p.s(f"s_add_u32 s{S_OOFF}, s{S_OOFF}, 4096")
            if "O" not in ABL: p.store(dst, 4, V_OST, SRD_O, f"s{S_OOFF if n < 2 else S_OOFF8}", t * 1024, flags=OFL)
    if PROF:
        stamp(p, 37)
        p.s("s_memrealtime s[56:57]")
        p.s("s_waitcnt lgkmcnt(0)")
        p.raw("v_writelane_b32 v0, s58, 62")
        p.raw("v_writelane_b32 v0, s56, 63")
        p.s(f"s_lshl_b32 s60, s2, 1")
        p.s(f"s_add_u32 s60, s60, s{S_ITER}")
        p.s(f"s_lshl_b32 s60, s60, 2")
        p.s(f"s_add_u32 s60, s60, s{S_W}")
        p.s(f"s_lshl_b32 s60, s60, 8")
        p.s(f"s_add_u32 s60, s60, 0x4000000")
        p.vop("v_lshrrev_b32", V_T, "2", V_OST)
        p.store(0, 1, V_T, SRD_O, "s60", 0)
    p.s(f"s_add_u32 s{S_ITER}, s{S_ITER}, 1")
    p.s(f"s_cmp_lt_u32 s{S_ITER}, 2")
    p.s(f"s_cbranch_scc1 {name}_loop")
    p.label(f"{name}_end")
    p.raw("s_endpgm")
    return p

def gen(name):
    pro = prologue(name); b = body(name)
    lines, stats = finalize([(pro, 1), (b, 2)])
    return [f".globl {name}", ".p2align 8", f".type {name},@function", f"{name}:"] + lines, stats
```

```python
from asmlib import *
import os
PROF = int(os.environ.get("PROF", "0"))
ABL = os.environ.get("ABL", "")
BFL = os.environ.get("BFL", "")
WFL = os.environ.get("WFL", "")
NWG = 240
NSLOT = 5
LDS_BYTES = 163840
WRING = NSLOT * 8192
NB = 5
SRD_O, SRD_W, SRD_OUT = 8, 12, 16
S_W = 3
S_T0, S_T1 = 20, 21
S_M0 = 22
S_WO = 23
S_WO1 = 24
S_OT = 26
S_R, S_C = 32, 33
S_OUT = 34
S_KW, S_KB, S_WB0, S_WB1, S_BB, S_ROT = 35, 36, 37, 38, 39, 40
ROT = int(os.environ.get("ROT", "1"))
CH = int(os.environ.get("CH", "8"))
V_DW, V_LIN, V_AV0, V_AV1 = 1, 2, 3, 4
V_RW = 5
V_RR = 8
V_ST = 9
V_B = 12
V_POOL = V_B + NB * 24
NPOOL = 6
V_END = V_POOL + NPOOL * 8
ACC = 256
NVGPR = 256 + 192
def A(t, m): return ACC + (t * 8 + m) * 4
def Bf(buf, t): return V_B + (buf * 6 + t) * 4
NSTEP = 32

def issue_w(i):
    ops = []
    if "W" in ABL: return ops
    sb = (i % NSLOT) * 8192
    for kt in range(2):
        for h in range(2):
            for u in range(2):
                def f(p, kt=kt, h=h, u=u):
                    p.s(f"s_add_u32 m0, s{S_M0}, {sb + h * 4096 + kt * 2048 + u * 1024}")
                    if (kt, h, u) == (0, 0, 0):
                        p.s(f"s_mul_i32 s{S_T0}, s{S_KW}, {128 * 1280}")
                        p.s(f"s_add_u32 s{S_T0}, s{S_T0}, {(i & ~(CH - 1)) * 128 * 1280}")
                        p.s(f"s_add_u32 s{S_WB0}, s{S_T0}, s{S_WO}")
                        p.s(f"s_add_u32 s{S_WB1}, s{S_T0}, s{S_WO1}")
                        p.s(f"s_add_u32 s{S_KW}, s{S_KW}, 1")
                        p.s(f"s_and_b32 s{S_KW}, s{S_KW}, {CH - 1}")
                    p.s(f"s_add_u32 s{S_T0}, s{S_WB1 if u else S_WB0}, {(16 * kt + 8 * h) * 1280}")
                    p.dma(V_DW, SRD_W, f"s{S_T0}", ("W", i), WFL)
                ops.append(f)
    return ops
def issue_b(i):
    ops = []
    if "B" in ABL: return ops
    for t in range(6):
        def f(p, t=t):
            if t == 0:
                p.s(f"s_mul_i32 s{S_BB}, s{S_KB}, {288 * 4096}")
                p.s(f"s_add_u32 s{S_BB}, s{S_BB}, {(i & ~(CH - 1)) * 288 * 4096}")
                p.s(f"s_add_u32 s{S_KB}, s{S_KB}, 1")
                p.s(f"s_and_b32 s{S_KB}, s{S_KB}, {CH - 1}")
            p.s(f"s_add_u32 s{S_T0}, s{S_OT + t}, s{S_BB}")
            p.load4(Bf(i % NB, t), V_LIN, SRD_O, f"s{S_T0}", 0, ("B", i), BFL)
        ops.append(f)
    return ops

def gen(name, D=4):
    p = Prog()
    p.s(f"s_cmp_ge_u32 s2, {NWG}")
    p.s(f"s_cbranch_scc1 {name}_end")
    nst = [0]
    def stamp():
        if not PROF: return
        p.s("s_memtime s[60:61]")
        p.wait_lgkm0()
        p.raw(f"v_writelane_b32 v10, s60, {nst[0]}"); nst[0] += 1
    if PROF: p.s("s_memrealtime s[58:59]")
    stamp()
    p.s("s_load_dwordx4 s[44:47], s[0:1], 32")
    p.s("s_load_dwordx2 s[52:53], s[0:1], 56")
    T = V_POOL
    W, L, a, b, c, d, R8, G = T, T + 1, T + 2, T + 3, T + 4, T + 5, T + 6, T + 7
    p.vop("v_lshrrev_b32", W, "6", 0)
    p.vop("v_and_b32", L, "63", 0)
    p.add(Ins(f"v_readfirstlane_b32 s{S_W}, v{W}", "rfl", [W], []))
    p.s(f"s_movk_i32 s{S_T1}, 1280")
    p.vop("v_bfe_u32", R8, L, "2", "3")
    p.vop("v_mul_lo_u32", a, R8, f"s{S_T1}")
    p.vop("v_lshrrev_b32", b, "5", L)
    p.vop("v_xor_b32", b, b, W)
    p.vop("v_and_b32", b, "1", b)
    p.vop("v_lshl_add_u32", a, b, "6", a)
    p.vop("v_lshrrev_b32", c, "2", R8)
    p.vop("v_lshlrev_b32", c, "1", c)
    p.vop("v_and_b32", d, "3", L)
    p.vop("v_xor_b32", c, c, d)
    p.vop("v_lshl_add_u32", V_DW, c, "4", a)
    p.vop("v_lshlrev_b32", V_LIN, "4", L)
    p.s(f"s_mov_b32 s{S_T0}, {WRING}")
    p.vop("v_lshrrev_b32", G, "4", L)
    p.vop("v_mul_lo_u32", b, W, f"s{S_T0}")
    p.vop("v_lshrrev_b32", a, "1", G)
    p.vop("v_lshl_add_u32", b, a, "12", b)
    p.vop("v_lshl_add_u32", b, R8, "6", b)
    p.vop("v_and_b32", c, "1", L)
    p.vop("v_lshl_add_u32", b, c, "3", b)
    p.vop("v_bfe_u32", c, L, "1", "1")
    p.vop("v_lshl_add_u32", b, c, "4", b)
    p.vop("v_and_b32", c, "1", G)
    p.vop("v_lshl_add_u32", V_AV0, c, "5", b)
    p.vop("v_xor_b32", V_AV1, "32", V_AV0)
    p.s(f"s_mov_b32 s{S_T0}, 36864")
    for mp in range(1, 4):
        p.vop("v_xor_b32", a, f"{mp}", W)
        p.vop("v_mul_lo_u32", a, a, f"s{S_T0}")
        p.vop("v_add_u32", V_RW + mp - 1, a, V_LIN)
    p.vop("v_mul_lo_u32", a, W, f"s{S_T0}")
    p.vop("v_add_u32", V_RR, a, V_LIN)
    p.vop("v_and_b32", a, "15", L)
    p.vop("v_mul_lo_u32", a, a, f"s{S_T1}")
    p.vop("v_lshl_add_u32", a, W, "6", a)
    p.vop("v_lshl_add_u32", V_ST, G, "4", a)
    p.s(f"s_lshr_b32 s{S_T0}, s2, 3")
    p.s(f"s_mul_i32 s{S_R}, s{S_T0}, 52")
    p.s(f"s_lshr_b32 s{S_R}, s{S_R}, 8")
    p.s(f"s_mul_i32 s{S_C}, s{S_R}, 5")
    p.s(f"s_sub_u32 s{S_C}, s{S_T0}, s{S_C}")
    RA, RB = (CH * 16 + 5) // 6, (CH * 16 + 4) // 5
    p.s(f"s_mul_i32 s{S_T0}, s{S_R}, {RA}")
    p.s(f"s_mul_i32 s{S_T1}, s{S_C}, {RB}")
    p.s(f"s_add_u32 s{S_T0}, s{S_T0}, s{S_T1}")
    p.s(f"s_lshr_b32 s{S_KW}, s{S_T0}, 4")
    p.s(f"s_and_b32 s{S_KW}, s{S_KW}, {CH - 1}")
    if not ROT: p.s(f"s_mov_b32 s{S_KW}, 0")
    p.s(f"s_mov_b32 s{S_KB}, s{S_KW}")
    p.s(f"s_and_b32 s{S_T0}, s2, 7")
    p.s(f"s_mul_i32 s{S_T0}, s{S_T0}, 6")
    p.s(f"s_add_u32 s{S_R}, s{S_R}, s{S_T0}")
    p.s(f"s_mul_i32 s{S_M0}, s{S_W}, {WRING}")
    p.s(f"s_mul_i32 s{S_WO}, s{S_W}, {32 * 1280}")
    p.s(f"s_lshl_b32 s{S_T0}, s{S_C}, 8")
    p.s(f"s_add_u32 s{S_WO}, s{S_WO}, s{S_T0}")
    p.s(f"s_lshr_b32 s{S_T0}, s{S_W}, 1")
    p.s(f"s_lshl_b32 s{S_T0}, s{S_T0}, 7")
    p.s(f"s_xor_b32 s{S_T1}, s{S_T0}, 128")
    p.s(f"s_add_u32 s{S_WO1}, s{S_WO}, s{S_T1}")
    p.s(f"s_add_u32 s{S_WO}, s{S_WO}, s{S_T0}")
    p.s(f"s_mul_i32 s{S_T0}, s{S_R}, {6 * 4096}")
    p.s(f"s_lshl_b32 s{S_T1}, s{S_W}, 10")
    p.s(f"s_add_u32 s{S_T0}, s{S_T0}, s{S_T1}")
    for t in range(6): p.s(f"s_add_u32 s{S_OT + t}, s{S_T0}, {t * 4096}")
    p.s(f"s_mul_i32 s{S_OUT}, s{S_R}, {96 * 1280}")
    p.s(f"s_lshl_b32 s{S_T0}, s{S_C}, 8")
    p.s(f"s_add_u32 s{S_OUT}, s{S_OUT}, s{S_T0}")
    p.s("s_waitcnt lgkmcnt(0)")
    for srd, src, size in ((SRD_W, 44, 4096 * 640 * 2), (SRD_OUT, 46, 32 * 144 * 640 * 2), (SRD_O, 52, (1 << 28) if PROF else 32 * 9 * 128 * 1024)):
        p.s(f"s_mov_b32 s{srd}, s{src}")
        p.s(f"s_and_b32 s{srd+1}, s{src+1}, 0xffff")
        p.s(f"s_mov_b32 s{srd+2}, {size:#x}")
        p.s(f"s_mov_b32 s{srd+3}, 0x20000")
    PW = NSLOT - 1
    PB = NB - 1
    for i in range(max(PW, PB)):
        if i < PW:
            for f in issue_w(i): f(p)
        if i < PB:
            for f in issue_b(i): f(p)
    AV = (V_AV0, V_AV1)
    units = []
    for i in range(NSTEP):
        sb = (i % NSLOT) * 8192
        for mp in range(4):
            r = V_POOL + 8 * (len(units) % NPOOL)
            rd = []; mf = []
            for e in range(2):
                rd += [(r + 4 * e, AV[e], sb + mp * 512), (r + 4 * e + 2, AV[e], sb + 2048 + mp * 512)]
                for t in range(6):
                    mf.append((A(t, 2 * mp + e), r + 4 * e, Bf(i % NB, t), A(t, 2 * mp + e) if i else None))
            units.append((i, mp, rd, mf))
    N = len(units); ri = 0; pend = []
    for ui in range(N):
        while ri < N and ri <= ui + D:
            i, mp, rd, mf = units[ri]
            if mp == 0:
                p.comment(f"--- reads step {i}")
                p.wait_vm(("W", i))
            for (d_, a_, off) in rd: p.ds_tr(d_, a_, off)
            ri += 1
        i, mp, rd, mf = units[ui]
        if mp == 0:
            stamp()
            for f in pend: f(p)
            pend = []
            if i >= 1:
                if i - 1 + NSLOT < NSTEP: pend += issue_w(i - 1 + NSLOT) if False else []
            wi = i + PW; bi = i + PB
            lw = issue_w(wi) if wi < NSTEP else []
            lb = issue_b(bi) if bi < NSTEP else []
            pend = lw + lb
        for k, (d_, a_, b_, c_) in enumerate(mf):
            if "M" not in ABL or k % 6 == 0: p.mfma(d_, a_, b_, c_)
            if k % 3 == 2 and pend: pend.pop(0)(p)
    stamp()
    p.wait_all()
    p.barrier()
    stamp()
    for mp in range(1, 4):
        for t in range(6):
            for e in range(2):
                p.ds_write(V_RW + mp - 1, A(t, 2 * mp + e), 4, (mp - 1) * 12288 + (t * 2 + e) * 1024)
    p.wait_lgkm0()
    p.barrier()
    stamp()
    TMP = V_B
    for t in range(6):
        base = TMP + (t % 3) * 40
        for e in range(2):
            for s in range(3):
                p.ds_read128(base + (e * 3 + s) * 4, V_RR, s * 12288 + (t * 2 + e) * 1024)
        own = base + 24
        for e in range(2):
            for r in range(4):
                p.v(f"v_accvgpr_read_b32 v{own + 4 * e + r}, a{A(t, e) - 256 + r}", [own + 4 * e + r], [A(t, e) + r])
        for e in range(2):
            for r in range(4):
                o = own + 4 * e + r
                p.vop("v_add_f32", o, o, base + (e * 3) * 4 + r)
                p.vop("v_add_f32", base + (e * 3 + 1) * 4 + r, base + (e * 3 + 1) * 4 + r, base + (e * 3 + 2) * 4 + r)
                p.vop("v_add_f32", o, o, base + (e * 3 + 1) * 4 + r)
        dst = base + 32
        p.cvtpk(dst, own, own + 1); p.cvtpk(dst + 1, own + 2, own + 3)
        p.cvtpk(dst + 2, own + 4, own + 5); p.cvtpk(dst + 3, own + 6, own + 7)
        p.swap32(dst, dst + 2); p.swap32(dst + 1, dst + 3)
        p.swap16(dst, dst + 2); p.swap16(dst + 1, dst + 3)
        p.s(f"s_add_u32 s{S_T0}, s{S_OUT}, {t * 16 * 1280}")
        p.store(dst, 4, V_ST, SRD_OUT, f"s{S_T0}", 0)
    if PROF:
        stamp()
        p.wait_all()
        stamp()
        p.s("s_memrealtime s[56:57]")
        p.s("s_waitcnt lgkmcnt(0)")
        p.raw("v_writelane_b32 v10, s58, 62")
        p.raw("v_writelane_b32 v10, s56, 63")
        p.s(f"s_lshl_b32 s60, s2, 2")
        p.s(f"s_add_u32 s60, s60, s{S_W}")
        p.s(f"s_lshl_b32 s60, s60, 8")
        p.s(f"s_add_u32 s60, s60, 0x4000000")
        p.vop("v_lshrrev_b32", 11, "2", V_LIN)
        p.store(10, 1, 11, SRD_O, "s60", 0)
    p.label(f"{name}_end")
    p.raw("s_endpgm")
    lines, stats = finalize([(p, 1)])
    return [f".globl {name}", ".p2align 8", f".type {name},@function", f"{name}:"] + lines, stats
```

```python
import sys, importlib
from asmlib import *
import k1
HDR = open("standalone__gqa_block_cached__near_ridge.s.ref").read().split("\n")
hdr = [l for l in HDR if l.startswith(";") and "@launch" not in l and "Override" not in l and "grid=ceil" not in l]
def build(which, path):
    out = list(hdr)
    body = []; kds = []
    if "1" in which:
        out.append(f"; @launch kernel=attn_kernel grid=(512,1,1) block=(256,1,1) lds={k1.LDS_BYTES}")
        l, st = k1.gen("attn_kernel"); body += l; kds += kd("attn_kernel", 256, 64); print("k1", st, file=sys.stderr)
    if "b" in which:
        import k1b
        out.append(f"; @launch kernel=attn_kernel grid=(512,1,1) block=(256,1,1) lds={k1b.LDS_BYTES}")
        l, st = k1b.gen("attn_kernel"); body += l; kds += kd("attn_kernel", 256, 64); print("k1b", st, file=sys.stderr)
    if "3" in which:
        import b3
        out.append(f"; @launch kernel=gqa_kernel grid=({b3.NWG},1,1) block=(256,1,1) lds={b3.LDS_BYTES}")
        l, st = b3.gen("gqa_kernel"); body += l; kds += kd("gqa_kernel", 256, 96); print("b3", st, file=sys.stderr)
    if "f" in which:
        import fk
        out.append(f"; @launch kernel=fused_kernel grid=({fk.NWG},1,1) block=(512,1,1) lds={fk.LDS_BYTES}")
        l, st = fk.gen("fused_kernel"); body += l; kds += kd("fused_kernel", 256, 96); print("fk", st, file=sys.stderr)
    if "2" in which:
        import k2
        out.append(f"; @launch kernel=oproj_kernel grid=({k2.NWG},1,1) block=(256,1,1) lds={k2.LDS_BYTES}")
        l, st = k2.gen("oproj_kernel"); body += l; kds += kd("oproj_kernel", k2.NVGPR, 64, 256); print("k2", st, file=sys.stderr)
    out += ['.amdgcn_target "amdgcn-amd-amdhsa--gfx950"', ".text"] + body + ['.section .rodata,"a"'] + kds
    open(path, "w").write("\n".join(out) + "\n")
if __name__ == "__main__":
    build(sys.argv[1], sys.argv[2])
```

```python
import re

def vr(base, n=1):
    p = "v"
    if base >= 256:
        p = "a"; base -= 256
    return f"{p}{base}" if n == 1 else f"{p}[{base}:{base+n-1}]"
def sr(base, n=1):
    return f"s{base}" if n == 1 else f"s[{base}:{base+n-1}]"
def R(base, n=1):
    return set(range(base, base + n))

class Ins:
    __slots__ = ("text", "kind", "rd", "wr", "tag", "extra", "srcc", "wait_id")
    def __init__(self, text, kind, rd=(), wr=(), tag=None, extra=None, srcc=()):
        self.text = text; self.kind = kind
        self.rd = set(rd); self.wr = set(wr); self.tag = tag; self.extra = extra
        self.srcc = set(srcc); self.wait_id = None

class Prog:
    def __init__(self):
        self.ins = []
    def add(self, i):
        self.ins.append(i); return i
    def raw(self, text, kind="salu"):
        return self.add(Ins(text, kind))
    def label(self, name):
        return self.add(Ins(name + ":", "label"))
    def comment(self, t):
        return self.add(Ins("; " + t, "label"))
    def s(self, text):
        return self.add(Ins(text, "salu"))
    def nop(self, n):
        return self.add(Ins(f"s_nop {n}", "nop", extra=n + 1))
    def v(self, text, wr=(), rd=(), kind="valu"):
        return self.add(Ins(text, kind, rd, wr))
    def vop(self, op, d, *srcs, kind="valu"):
        rd = [x for x in srcs if isinstance(x, int)]
        t = ", ".join(f"v{x}" if isinstance(x, int) else x for x in srcs)
        return self.add(Ins(f"{op} v{d}, {t}", kind, rd, [d]))
    def exp(self, d, a):
        return self.vop("v_exp_f32", d, a, kind="trans")
    def cvtpk(self, d, a, b):
        return self.vop("v_cvt_pk_bf16_f32", d, a, b)
    def swap32(self, a, b):
        return self.add(Ins(f"v_permlane32_swap_b32 v{a}, v{b}", "perm", [a, b], [a, b]))
    def swap16(self, a, b):
        return self.add(Ins(f"v_permlane16_swap_b32 v{a}, v{b}", "perm", [a, b], [a, b]))
    def mfma(self, d, a, b, c):
        ct = "0" if c is None else vr(c, 4)
        rd = R(a, 4) | R(b, 4)
        srcc = set() if c is None else R(c, 4)
        return self.add(Ins(f"v_mfma_f32_16x16x32_bf16 {vr(d,4)}, {vr(a,4)}, {vr(b,4)}, {ct}", "mfma", rd | srcc, R(d, 4), extra=(d, c), srcc=srcc))
    def ds_read128(self, d, addr, off):
        assert 0 <= off < 65536, off
        return self.add(Ins(f"ds_read_b128 {vr(d,4)}, v{addr} offset:{off}", "dsr", [addr], R(d, 4)))
    def ds_read64(self, d, addr, off):
        assert 0 <= off < 65536, off
        return self.add(Ins(f"ds_read_b64 {vr(d,2)}, v{addr} offset:{off}", "dsr", [addr], R(d, 2)))
    def ds_read32(self, d, addr, off):
        assert 0 <= off < 65536, off
        return self.add(Ins(f"ds_read_b32 v{d}, v{addr} offset:{off}", "dsr", [addr], [d]))
    def ds_tr(self, d, addr, off):
        assert 0 <= off < 65536, off
        return self.add(Ins(f"ds_read_b64_tr_b16 {vr(d,2)}, v{addr} offset:{off}", "dsr", [addr], R(d, 2)))
    def ds_write(self, addr, src, n, off):
        assert 0 <= off < 65536, off
        op = {1: "ds_write_b32", 2: "ds_write_b64", 4: "ds_write_b128"}[n]
        return self.add(Ins(f"{op} v{addr}, {vr(src,n)} offset:{off}", "dsw", {addr} | R(src, n), []))
    def dma(self, voff, srd, soff, tag, flags=""):
        return self.add(Ins(f"buffer_load_dwordx4 v{voff}, {sr(srd,4)}, {soff} offen {flags} lds".replace("  ", " "), "vm", [voff], [], tag=tag))
    def load4(self, d, voff, srd, soff, off, tag, flags=""):
        return self.add(Ins(f"buffer_load_dwordx4 {vr(d,4)}, v{voff}, {sr(srd,4)}, {soff} offen offset:{off} {flags}".strip(), "vml", [voff], R(d, 4), tag=tag))
    def load2(self, d, voff, srd, soff, off, tag, flags=""):
        return self.add(Ins(f"buffer_load_dwordx2 {vr(d,2)}, v{voff}, {sr(srd,4)}, {soff} offen offset:{off} {flags}".strip(), "vml", [voff], R(d, 2), tag=tag))
    def store(self, src, n, voff, srd, soff, off, tag="st", flags=""):
        op = {1: "buffer_store_dword", 2: "buffer_store_dwordx2", 4: "buffer_store_dwordx4"}[n]
        return self.add(Ins(f"{op} {vr(src,n)}, v{voff}, {sr(srd,4)}, {soff} offen offset:{off} {flags}".strip(), "vms", {voff} | R(src, n), [], tag=tag, extra=n))
    def wait_vm(self, tag, lgkm0=False):
        return self.add(Ins("", "waitvm", tag=tag, extra=lgkm0))
    def wait_all(self):
        return self.add(Ins("s_waitcnt vmcnt(0) lgkmcnt(0)", "waitall"))
    def wait_lgkm0(self):
        return self.add(Ins("s_waitcnt lgkmcnt(0)", "waitlgkm0"))
    def barrier(self):
        return self.add(Ins("s_barrier", "barrier"))

VALU_KINDS = ("valu", "trans", "perm")
import os
COALESCE = int(os.environ.get("COAL", "14"))
HOIST = int(os.environ.get("HOIST", "1"))

def finalize(segments, sim=None):
    need_lgkm = {}
    need_vm = {}
    need_nop = {}
    for _pass in range(3):
        lg = []
        vm = []
        hist = []
        t = 0
        changed = False
        for prog, rep in (sim or segments):
            for _r in range(rep):
                for ins in prog.ins:
                    k = ins.kind
                    if k == "label":
                        continue
                    key = id(ins)
                    touched = ins.rd | ins.wr
                    n = None
                    for idx in range(len(lg) - 1, -1, -1):
                        if lg[idx][0] & touched:
                            n = len(lg) - 1 - idx; break
                    if n is not None:
                        n = min(n, sum(1 for x in lg if x[1] > t - COALESCE))
                        n = min(n, 15)
                        if key not in need_lgkm or need_lgkm[key] > n:
                            need_lgkm[key] = n; changed = True
                    n = None
                    for idx in range(len(vm) - 1, -1, -1):
                        if vm[idx][1] & touched:
                            n = len(vm) - 1 - idx; break
                    if k == "waitvm":
                        for idx in range(len(vm) - 1, -1, -1):
                            if vm[idx][0] == ins.tag:
                                n = len(vm) - 1 - idx; break
                    if n is not None:
                        n = min(n, 63)
                        if key not in need_vm or need_vm[key] > n:
                            need_vm[key] = n; changed = True
                    has_wait = False
                    if key in need_lgkm:
                        nn = need_lgkm[key]
                        if len(lg) > nn: lg = lg[len(lg) - nn:] if nn else []
                        has_wait = True
                    if key in need_vm:
                        nn = need_vm[key]
                        if len(vm) > nn: vm = vm[len(vm) - nn:] if nn else []
                        has_wait = True
                    if k == "waitvm":
                        if ins.extra: lg = []
                        t += 1
                        continue
                    if has_wait: t += 1
                    if k == "waitvmn" and len(vm) > ins.extra: vm = vm[len(vm) - ins.extra:] if ins.extra else []
                    if k == "waitall": lg = []; vm = []
                    if k == "waitlgkm0": lg = []
                    req = 0
                    for (p, tp) in hist:
                        dist = t - tp - 1
                        need = 0
                        pk = p.kind
                        if pk in VALU_KINDS:
                            if k == "mfma" and (p.wr & ins.rd): need = 2
                            if k == "perm" and (p.wr & ins.rd): need = max(need, 2)
                            if k == "dpp" and (p.wr & ins.rd): need = max(need, 2)
                            if k == "rfl" and (p.wr & ins.rd): need = max(need, 1)
                            if pk == "trans" and k in ("valu", "perm", "mfma") and (p.wr & ins.rd): need = max(need, 1)
                        elif pk == "mfma":
                            if k == "mfma":
                                ab = ins.rd - ins.srcc
                                if p.wr & ab: need = 8
                                elif p.wr & ins.srcc:
                                    need = 0 if (ins.extra[1] == p.extra[0]) else 6
                                elif p.wr & ins.wr: need = 0
                            else:
                                if p.wr & (ins.rd | ins.wr): need = 8
                                if k in VALU_KINDS and (p.srcc & ins.wr): need = max(need, 3)
                                if k in ("dsr", "vml") and (p.srcc & ins.wr): need = max(need, 3)
                        elif pk == "vms" and p.extra == 4:
                            if k in VALU_KINDS or k == "mfma":
                                if p.rd & ins.wr: need = 2
                            elif p.rd & ins.wr: need = 1
                        if need > dist: req = max(req, need - dist)
                    if req > need_nop.get(key, 0):
                        need_nop[key] = req; changed = True
                    t += need_nop.get(key, 0)
                    if k == "dsr": lg.append((set(ins.wr), t))
                    elif k == "dsw": lg.append((set(), t))
                    elif k in ("vm", "vms"): vm.append((ins.tag, set()))
                    elif k == "vml": vm.append((ins.tag, set(ins.wr)))
                    hist.append((ins, t))
                    t += ins.extra if k == "nop" else 1
                    while hist and t - hist[0][1] > 12: hist.pop(0)
        if not changed: break
    out = []
    stats = dict(nops=0, lgkm=0, n=0, hoisted=0)
    for prog, rep in segments:
        L = prog.ins
        hoist_after = {}
        skip = set()
        if HOIST:
            for i, ins in enumerate(L):
                key = id(ins)
                if ins.kind != "mfma" or key not in need_lgkm or key in need_vm or need_nop.get(key, 0): continue
                n = need_lgkm[key]; j = i - 1; ok = True; nds = 0
                while j >= 0 and L[j].kind != "mfma":
                    kk = L[j].kind
                    if kk in ("dsr", "dsw"): nds += 1
                    elif kk not in ("valu", "trans"): ok = False; break
                    if id(L[j]) in need_lgkm or id(L[j]) in need_vm or need_nop.get(id(L[j]), 0): ok = False; break
                    j -= 1
                if not ok or j < 0 or j == i - 1 or n - nds < 0: continue
                if any(L[x].kind in VALU_KINDS and (L[x].wr & ins.rd) for x in range(max(j + 1, i - 3), i)): continue
                hoist_after[j] = n - nds; skip.add(i)
        for i, ins in enumerate(L):
            key = id(ins)
            w = []
            if key in need_vm: w.append(f"vmcnt({need_vm[key]})")
            if ins.kind == "waitvm" and ins.extra: w.append("lgkmcnt(0)")
            elif key in need_lgkm and i not in skip: w.append(f"lgkmcnt({need_lgkm[key]})"); stats["lgkm"] += 1
            if w: out.append("    s_waitcnt " + " ".join(w))
            elif ins.kind == "waitvm": out.append("    s_nop 0")
            if need_nop.get(key, 0):
                out.append(f"    s_nop {need_nop[key]-1}"); stats["nops"] += 1
            if ins.kind == "waitvm": continue
            out.append(ins.text if ins.kind == "label" else "    " + ins.text)
            stats["n"] += 1
            if i in hoist_after:
                out.append(f"    s_waitcnt lgkmcnt({hoist_after[i]})"); stats["hoisted"] += 1
    return out, stats

def kd(name, vgpr, sgpr=102, accum=None):
    accum = accum if accum is not None else ((vgpr + 3) // 4) * 4
    return [".p2align 6", f".amdhsa_kernel {name}",
            f"  .amdhsa_next_free_vgpr {vgpr}", f"  .amdhsa_next_free_sgpr {sgpr}", f"  .amdhsa_accum_offset {min(accum,256)}",
            "  .amdhsa_group_segment_fixed_size 0", "  .amdhsa_kernarg_size 64", "  .amdhsa_user_sgpr_count 2",
            "  .amdhsa_user_sgpr_kernarg_segment_ptr 1", "  .amdhsa_system_sgpr_workgroup_id_x 1", ".end_amdhsa_kernel"]

class Sched:
    def __init__(self, p, budget=8, late_extra=8):
        self.p = p; self.m = []; self.q = {}; self.budget = budget; self.late_extra = late_extra
        self.idx = {}
        self.pace = {}
        self.group = {}
        self.last = {}
    def mfma(self, d, a, b, c, tag=None):
        self.m.append((d, a, b, c, tag))
        if tag is not None: self.idx[tag] = len(self.m) - 1
    def fill(self, queue, fn, cost=4, after=None, before=None, lead=0, tag=None, early=None, ds=False):
        self.q.setdefault(queue, []).append(dict(fn=fn, cost=cost, after=after, before=before, lead=lead, tag=tag, early=early, ds=ds))
    def run(self):
        p = self.p
        done = {}
        N = len(self.m)
        INF = 10 ** 9
        for ql in self.q.values():
            hd = INF; sd = INF
            for f in reversed(ql):
                if f["before"] is not None:
                    b = self.idx[f["before"]]
                    hd = min(hd, b); sd = min(sd, b - f["lead"])
                f["hd"] = hd; f["sd"] = sd
        tagq = {}
        for qn, ql in self.q.items():
            for f in ql:
                if f["tag"] is not None: tagq[f["tag"]] = qn
        def ready(f, cnt):
            a = f["after"]
            if a is not None:
                for x in (a if isinstance(a, list) else [a]):
                    dl = 0
                    if isinstance(x, dict): dl = x["delay"]; x = x["tag"]
                    if x not in done or cnt < done[x] + dl: return False
            if f["early"] is not None and f["before"] is not None and cnt < self.idx[f["before"]] - f["early"]: return False
            return True
        def emit(qn, cnt):
            f = self.q[qn].pop(0)
            f["fn"](p)
            if qn in self.group: self.last[self.group[qn]] = cnt
            if f["tag"] is not None: done[f["tag"]] = cnt
            return f["cost"]
        def force(qn, cnt, depth=0):
            f = self.q[qn][0]
            a = f["after"]
            for x in ([] if a is None else a if isinstance(a, list) else [a]):
                if isinstance(x, dict): x = x["tag"]
                while x not in done:
                    assert x in tagq and tagq[x] != qn and depth < 20, ("cannot force", f["tag"], f["before"], x, cnt)
                    force(tagq[x], cnt, depth + 1)
            return emit(qn, cnt)
        for i in range(N + 1):
            again = True
            while again:
                again = False
                for qn, ql in self.q.items():
                    while ql and (ql[0]["hd"] <= i or i == N):
                        force(qn, i); again = True
            if i == N: break
            d, a, b, c, tag = self.m[i]
            p.mfma(d, a, b, c)
            if tag is not None: done[tag] = i + 1
            used = 0; nds = 0
            while True:
                best = None
                for qn, ql in self.q.items():
                    if ql and ready(ql[0], i + 1):
                        f = ql[0]
                        g = self.group.get(qn)
                        if g is not None and f.get("paced", True) and i + 1 - self.last.get(g, -99) < self.pace[g]: continue
                        late = f["sd"] <= i + 1
                        if f.get("ds") and nds >= (2 if late else 1): continue
                        if used and used + f["cost"] > self.budget + (self.late_extra if late else 0): continue
                        if best is None or f["sd"] < self.q[best][0]["sd"]: best = qn
                if best is None: break
                if self.q[best][0].get("ds"): nds += 1
                used += emit(best, i + 1)
                if used >= self.budget + self.late_extra: break
```

```python
from asmlib import *
import math, struct, os
PROF = int(os.environ.get("PROF", "0"))
ABL = os.environ.get("ABL", "")
ROT = int(os.environ.get("ROT", "1"))
OFL = os.environ.get("OFL", "sc1")
def f2u(f): return struct.unpack("<I", struct.pack("<f", f))[0]
CSCALE = math.log2(math.e) / math.sqrt(128.0)
NWG = 992
SLOT = 18432
Q8AREA = 4 * SLOT
STAT = Q8AREA + 4096
LDS_BYTES = 81920
OBYTES = 32 * 288 * 4096
FLAGOFF = OBYTES
PFLAG = OBYTES + 8192 + 16384
PARTOFF = PFLAG + 16384
WSBYTES = PARTOFF + 240 * 49152
SRD_WO, SRD_OUT, SRD_DBG = 68, 72, 76
S_NON = 64
S_FLG, S_FLGN = 66, 67
S_SPIN = 80
PUBPOS = int(os.environ.get("PUBPOS", "1"))
LOCK = int(os.environ.get("LOCK", "1"))
WAITPOS = int(os.environ.get("WAITPOS", "20"))
SIGPOS = int(os.environ.get("SIGPOS", "31"))
TOKOFF = FLAGOFF + 8192
S_TKW, S_TKS = 81, 82

S_W = 3
SRD_X, SRD_K, SRD_V, SRD_W, SRD_O = 8, 12, 16, 20, 24
S_M0KV, S_M0X, S_M0X8 = 28, 29, 30
S_KVOFF = 31
S_WOFF, S_XOFF, S_XOFF8 = 32, 33, 41
S_OOFF, S_OOFF8 = 34, 43
S_ITER = 35
S_T0, S_T1 = 36, 37
S_B, S_H = 38, 39
S_CS = 40
S_KW, S_KX, S_KX8, S_ROT = 4, 5, 6, 7
S_XM = 54
S_WLIM = 42

V_DK, V_DV, V_DW, V_DX = 1, 2, 3, 4
V_AK, V_AK8, V_AV0, V_AV1, V_AV80, V_AV81, V_AX, V_AX8, V_LIN, V_P8W, V_OST = 6, 7, 8, 9, 10, 11, 12, 13, 14, 15, 16
V_L = 17
V_Q = 20; V_O = 68; V_S = 140; V_P = 176; V_P8 = 192; V_NM = 200; V_POOL = 212; V_T = 252
NPOOL = 10
def Qf(n, ks): return V_Q + (n * 4 + ks) * 4
def Oa(n, m): return V_O + (n * 8 + m) * 4 if n < 2 else V_O + 64 + m * 4
def Sa(n, kt): return V_S + (n * 4 + kt) * 4 if n < 2 else V_S + 32
def Pf(n, kk): return V_P + (n * 2 + kk) * 4
def NM(n): return V_NM + 4 * n
def Xf(buf, kh, t): return V_S + ((buf * 2 + kh) * 3 + t) * 4

SEQ = []
for i in range(10): SEQ += [("X", i), ("W", i)]
SEQ += [("K", 0)]
for j in range(7): SEQ += [("K", j + 1), ("V", j)]
SEQ += [("V", 7)]
NT = len(SEQ)
POS = {t: i for i, t in enumerate(SEQ)}
def slot_of(t): return (POS[t] % 4) * SLOT

def issue_ops(tile, nxt):
    kind, i = tile
    sb = slot_of(tile); tag = (kind, i, nxt)
    ops = []
    if kind in "KV":
        srd = SRD_K if kind == "K" else SRD_V
        voff = V_DK if kind == "K" else V_DV
        for kt in range(4):
            def f(p, kt=kt):
                p.s(f"s_add_u32 m0, s{S_M0KV}, {sb + kt * 2048}")
                p.s(f"s_add_u32 s{S_T0}, s{S_KVOFF}, {i * 16384 + kt * 4096}")
                if "D" not in ABL: p.dma(voff, srd, f"s{S_T0}", tag, "nt")
            ops.append(f)
    elif kind == "W":
        for kt in range(4):
            def f(p, kt=kt):
                p.s(f"s_add_u32 m0, s{S_M0KV}, {sb + kt * 2048}")
                p.s(f"s_add_u32 s{S_T0}, s{S_KW}, {(32 * (kt >> 1) + 4 * (kt & 1)) * 8192}")
                if "W" not in ABL: p.dma(V_DW, SRD_W, f"s{S_T0}", tag)
                if kt == 3:
                    p.s(f"s_add_u32 s{S_KW}, s{S_KW}, {64 * 8192}")
                    p.s(f"s_cmp_ge_u32 s{S_KW}, s{S_WLIM}")
                    p.s(f"s_cselect_b32 s{S_KW}, s{S_WOFF}, s{S_KW}")
            ops.append(f)
    else:
        if i == 0: ops.append(next_problem_setup)
        for k in range(4):
            def f(p, k=k):
                p.s(f"s_add_u32 m0, s{S_M0X}, {sb + k * 4096}")
                if k == 0: p.s(f"s_add_u32 s{S_KX8}, s{S_XOFF}, s{S_KX}")
                p.s(f"s_add_u32 s{S_T0}, s{S_KX8}, {k * 32 * 1280}")
                if "X" not in ABL: p.dma(V_DX, SRD_X, f"s{S_T0}", tag)
            ops.append(f)
        def f(p):
            p.s(f"s_add_u32 m0, s{S_M0X8}, {sb}")
            p.s(f"s_add_u32 s{S_T0}, s{S_XOFF8}, s{S_KX}")
            p.s(f"s_mov_b64 exec, s[{S_XM}:{S_XM+1}]")
            if "X" not in ABL: p.dma(V_DX, SRD_X, f"s{S_T0}", tag)
            p.s("s_mov_b64 exec, -1")
            p.s(f"s_add_u32 s{S_KX}, s{S_KX}, 128")
            p.s(f"s_cmp_ge_u32 s{S_KX}, 1280")
            p.s(f"s_cselect_b32 s{S_KX}, 0, s{S_KX}")
        ops.append(f)
    return ops

def next_problem_setup(p):
    p.s(f"s_lshl_b32 s{S_WOFF}, s{S_H}, 8")
    p.s(f"s_cmp_eq_u32 s{S_ITER}, 1")
    p.s(f"s_cselect_b32 s{S_WOFF}, 0x40000000, s{S_WOFF}")
    p.s(f"s_cselect_b32 s{S_XOFF}, 0x40000000, s{S_XOFF}")
    p.s(f"s_cselect_b32 s{S_XOFF8}, 0x40000000, s{S_XOFF8}")
    p.s(f"s_add_u32 s{S_WLIM}, s{S_WOFF}, {640 * 8192}")
    p.s(f"s_mul_i32 s{S_KW}, s{S_ROT}, {64 * 8192}")
    p.s(f"s_add_u32 s{S_KW}, s{S_KW}, s{S_WOFF}")
    p.s(f"s_lshl_b32 s{S_KX}, s{S_ROT}, 7")

lbl = [0]
def stamp(p, idx):
    if not PROF: return
    p.s("s_memtime s[60:61]")
    p.wait_lgkm0()
    p.raw(f"v_writelane_b32 v0, s60, {idx}")

def get_nonce(p, name, t):
    p.vop("v_mov_b32", t + 2, "0")
    p.label(f"{name}")
    p.raw(f"buffer_load_dwordx2 v[{t}:{t+1}], v{t+2}, s[{SRD_DBG}:{SRD_DBG+3}], 0 offen sc1")
    p.wait_all()
    p.raw(f"v_readfirstlane_b32 s{S_NON}, v{t}")
    p.raw(f"v_readfirstlane_b32 s{S_NON+1}, v{t+1}")
    p.s(f"s_sub_u32 s{S_SPIN}, s{S_SPIN}, 64")
    p.s(f"s_cbranch_scc1 {name}_x")
    p.s(f"s_cmp_lt_i32 s{S_NON+1}, 0")
    p.s(f"s_cbranch_scc0 {name}")
    p.label(f"{name}_x")

def publish(p, sflag, t=None):
    t = V_P8 if t is None else t
    p.vop("v_mov_b32", t, f"s{S_NON}")
    p.vop("v_mov_b32", t + 1, f"s{S_NON+1}")
    p.s("s_mov_b64 exec, 1")
    p.store(t, 2, V_OST, SRD_O, f"s{sflag}", 0, tag="flag", flags="sc1")
    p.s("s_mov_b64 exec, -1")

def prologue(name):
    p = Prog()
    p.s(f"s_cmp_ge_u32 s2, {NWG}")
    p.s(f"s_cbranch_scc1 {name}_end")
    if PROF: p.s("s_memrealtime s[58:59]")
    p.s("s_load_dwordx4 s[44:47], s[0:1], 0")
    p.s("s_load_dwordx4 s[48:51], s[0:1], 16")
    p.s("s_load_dwordx2 s[52:53], s[0:1], 56")
    p.s("s_load_dwordx4 s[88:91], s[0:1], 32")
    p.s("s_load_dwordx2 s[92:93], s[0:1], 48")
    p.s(f"s_mov_b32 s{S_SPIN}, 0x100000")
    T = V_POOL
    W, L, a, b, c, d, H, U, VV, R8, PI, M, G = range(T, T + 13)
    p.vop("v_lshrrev_b32", W, "6", 0)
    p.vop("v_and_b32", L, "63", 0)
    p.add(Ins(f"v_readfirstlane_b32 s{S_W}, v{W}", "rfl", [W], []))
    p.vop("v_and_b32", H, "1", W)
    p.vop("v_lshrrev_b32", U, "1", W)
    p.vop("v_lshrrev_b32", VV, "5", L)
    p.vop("v_bfe_u32", R8, L, "2", "3")
    p.vop("v_and_b32", PI, "3", L)
    p.vop("v_and_b32", M, "15", L)
    p.vop("v_lshrrev_b32", G, "4", L)
    p.s(f"s_movk_i32 s{S_T0}, 1280")
    p.vop("v_lshl_add_u32", b, H, "3", R8)
    p.vop("v_mul_lo_u32", a, b, f"s{S_T0}")
    p.vop("v_lshl_add_u32", a, VV, "6", a)
    p.vop("v_mul_u32_u24", c, "3", H)
    p.vop("v_xor_b32", c, c, PI)
    p.vop("v_lshl_add_u32", V_DX, c, "4", a)
    p.vop("v_lshlrev_b32", a, "7", U)
    p.vop("v_lshl_add_u32", a, VV, "6", a)
    p.vop("v_lshl_add_u32", b, b, "8", a)
    p.vop("v_lshl_add_u32", V_DK, c, "4", b)
    p.vop("v_lshrrev_b32", c, "2", R8)
    p.vop("v_lshlrev_b32", d, "1", c)
    p.vop("v_xor_b32", d, d, PI)
    p.vop("v_lshl_add_u32", V_DV, d, "4", b)
    p.vop("v_lshlrev_b32", b, "4", H)
    p.vop("v_lshl_add_u32", b, c, "3", b)
    p.vop("v_and_b32", c, "3", R8)
    p.vop("v_add_u32", b, b, c)
    p.vop("v_lshl_add_u32", b, b, "13", a)
    p.vop("v_lshl_add_u32", V_DW, d, "4", b)
    p.s(f"s_and_b32 s{S_T0}, s{S_W}, 1")
    p.s(f"s_lshr_b32 s{S_T1}, s{S_W}, 1")
    p.s(f"s_lshl_b32 s{S_M0KV}, s{S_T0}, 13")
    p.s(f"s_lshl_b32 s{S_M0X}, s{S_T1}, 10")
    p.s(f"s_add_u32 s{S_M0KV}, s{S_M0KV}, s{S_M0X}")
    p.s(f"s_lshl_b32 s{S_M0X8}, s{S_T0}, 10")
    p.s(f"s_lshl_b32 s{S_M0X}, s{S_T1}, 11")
    p.s(f"s_add_u32 s{S_M0X}, s{S_M0X}, s{S_M0X8}")
    p.s(f"s_add_u32 s{S_M0X8}, s{S_M0X8}, 16384")
    p.s(f"s_cmp_eq_u32 s{S_T1}, 0")
    p.s(f"s_mov_b32 s{S_XM+1}, 0xffff0000")
    p.s(f"s_cselect_b32 s{S_XM}, 0xffff, s{S_XM+1}")
    p.s(f"s_mov_b32 s{S_XM+1}, s{S_XM}")
    p.s(f"s_mov_b32 s{S_CS}, {f2u(CSCALE):#x}")
    p.s(f"s_and_b32 s{S_T0}, s2, 7")
    p.s(f"s_lshl_b32 s{S_B}, s{S_T0}, 2")
    p.s(f"s_bfe_u32 s{S_ROT}, s2, 0x20006")
    p.s(f"s_add_u32 s{S_B}, s{S_B}, s{S_ROT}")
    p.s(f"s_bfe_u32 s{S_T0}, s2, 0x10008")
    p.s(f"s_lshl_b32 s{S_H}, s{S_T0}, 3")
    p.s(f"s_bfe_u32 s{S_T0}, s2, 0x30003")
    p.s(f"s_add_u32 s{S_H}, s{S_H}, s{S_T0}")
    p.s(f"s_lshl_b32 s{S_ROT}, s{S_ROT}, 1")
    p.s(f"s_add_u32 s{S_ROT}, s{S_ROT}, s{S_T0}")
    p.s(f"s_and_b32 s{S_ROT}, s{S_ROT}, 7")
    p.s(f"s_mul_i32 s{S_ROT}, s{S_ROT}, 5")
    p.s(f"s_lshr_b32 s{S_ROT}, s{S_ROT}, 2")
    if not ROT: p.s(f"s_mov_b32 s{S_ROT}, 0")
    p.s(f"s_mul_i32 s{S_XOFF8}, s{S_B}, {144 * 1280}")
    p.s(f"s_mul_i32 s{S_XOFF}, s{S_T1}, {16 * 1280}")
    p.s(f"s_add_u32 s{S_XOFF}, s{S_XOFF}, s{S_XOFF8}")
    p.s(f"s_add_u32 s{S_XOFF8}, s{S_XOFF8}, {128 * 1280}")
    p.s(f"s_mov_b32 s{S_ITER}, 0")
    p.s("s_waitcnt lgkmcnt(0)")
    for srd, src, size in ((SRD_X, 44, 32 * 144 * 640 * 2), (SRD_K, 46, 1 << 27), (SRD_V, 48, 1 << 27), (SRD_W, 50, 640 * 4096 * 2), (SRD_O, 52, (1 << 28) if PROF else WSBYTES),
                           (SRD_WO, 88, 4096 * 640 * 2), (SRD_OUT, 90, 32 * 144 * 640 * 2), (SRD_DBG, 92, 256)):
        p.s(f"s_mov_b32 s{srd}, s{src}")
        p.s(f"s_and_b32 s{srd+1}, s{src+1}, 0xffff")
        p.s(f"s_mov_b32 s{srd+2}, {size:#x}")
        p.s(f"s_mov_b32 s{srd+3}, 0x20000")
    p.s(f"s_cmp_ge_u32 s2, 512")
    p.s(f"s_cbranch_scc1 {name}_O")
    for i in range(3):
        for f in issue_ops(SEQ[i], True): f(p)
    p.s(f"s_or_b32 s{S_T0}, s2, s{S_W}")
    p.s(f"s_cmp_lg_u32 s{S_T0}, 0")
    p.s(f"s_cbranch_scc1 {name}_nononce")
    p.s(f"s_memrealtime s[{S_NON}:{S_NON+1}]")
    p.s("s_waitcnt lgkmcnt(0)")
    p.s(f"s_or_b32 s{S_NON+1}, s{S_NON+1}, 0x80000000")
    p.raw(f"v_mov_b32 v{V_T}, s{S_NON}")
    p.raw(f"v_mov_b32 v{V_T+1}, s{S_NON+1}")
    p.raw(f"v_mov_b32 v{V_T+2}, 0")
    p.s("s_mov_b64 exec, 1")
    p.raw(f"buffer_store_dwordx2 v[{V_T}:{V_T+1}], v{V_T+2}, s[{SRD_DBG}:{SRD_DBG+3}], 0 offen sc1")
    p.s("s_mov_b64 exec, -1")
    p.s("s_waitcnt vmcnt(0)")
    p.label(f"{name}_nononce")
    p.s(f"s_mov_b32 s{S_FLGN}, 0x40000000")
    p.s(f"s_mov_b32 s{S_NON+1}, 0")
    PR = int(os.environ.get("PRIO", "0"))
    if PR:
        p.s(f"s_cmp_ge_u32 s2, 256")
        p.s(f"s_cbranch_scc1 {name}_noprio")
        p.s(f"s_setprio {PR}")
        p.label(f"{name}_noprio")
    p.vop("v_lshrrev_b32", a, "3", M)
    p.vop("v_mul_u32_u24", c, "3", a)
    p.vop("v_xor_b32", c, c, G)
    p.vop("v_and_b32", b, "7", M)
    p.vop("v_lshlrev_b32", b, "6", b)
    p.vop("v_lshl_add_u32", b, c, "4", b)
    p.vop("v_lshl_add_u32", V_AK, a, "13", b)
    p.vop("v_lshl_add_u32", V_AK8, W, "11", V_AK)
    p.vop("v_lshl_add_u32", b, a, "10", b)
    p.vop("v_add_u32", V_AX8, "16384", b)
    p.vop("v_lshl_add_u32", V_AX, W, "12", b)
    p.vop("v_lshrrev_b32", a, "1", G)
    p.vop("v_lshlrev_b32", b, "13", a)
    p.vop("v_lshl_add_u32", b, R8, "6", b)
    p.vop("v_and_b32", c, "1", L)
    p.vop("v_lshl_add_u32", b, c, "3", b)
    p.vop("v_bfe_u32", c, L, "1", "1")
    p.vop("v_lshl_add_u32", b, c, "4", b)
    p.vop("v_and_b32", c, "1", G)
    p.vop("v_lshl_add_u32", V_AV0, c, "5", b)
    p.vop("v_xor_b32", V_AV1, "32", V_AV0)
    p.vop("v_lshl_add_u32", V_AV80, W, "9", V_AV0)
    p.vop("v_lshl_add_u32", V_AV81, W, "9", V_AV1)
    p.vop("v_lshlrev_b32", V_OST, "4", L)
    p.vop("v_add_u32", V_LIN, "16384", V_OST)
    p.vop("v_lshl_add_u32", V_P8W, U, "10", V_LIN)
    p.vop("v_lshl_add_u32", V_P8W, H, "3", V_P8W)
    return p

def body(name):
    p = Prog()
    p.label(f"{name}_loop")
    p.s(f"s_lshl_b32 s{S_T0}, s{S_B}, 5")
    p.s(f"s_add_u32 s{S_T0}, s{S_T0}, s{S_H}")
    p.s(f"s_lshl_b32 s{S_KVOFF}, s{S_T0}, 17")
    p.s(f"s_mul_i32 s{S_T0}, s{S_B}, 9")
    p.s(f"s_mul_i32 s{S_T1}, s{S_H}, 288")
    p.s(f"s_add_u32 s{S_T0}, s{S_T0}, s{S_T1}")
    p.s(f"s_lshl_b32 s{S_T1}, s{S_W}, 1")
    p.s(f"s_add_u32 s{S_OOFF}, s{S_T1}, s{S_T0}")
    p.s(f"s_lshl_b32 s{S_OOFF}, s{S_OOFF}, 12")
    p.s(f"s_add_u32 s{S_OOFF8}, s{S_T0}, 8")
    p.s(f"s_lshl_b32 s{S_OOFF8}, s{S_OOFF8}, 12")
    p.s(f"s_lshl_b32 s{S_T1}, s{S_W}, 10")
    p.s(f"s_add_u32 s{S_OOFF8}, s{S_OOFF8}, s{S_T1}")
    p.s(f"s_mov_b32 s{S_FLG}, s{S_FLGN}")
    p.s(f"s_lshl_b32 s{S_T0}, s{S_B}, 5")
    p.s(f"s_add_u32 s{S_T0}, s{S_T0}, s{S_H}")
    p.s(f"s_lshl_b32 s{S_T0}, s{S_T0}, 3")
    p.s(f"s_add_u32 s{S_FLGN}, s{S_T0}, {FLAGOFF}")
    p.s(f"s_cmp_eq_u32 s{S_W}, 0")
    p.s(f"s_cselect_b32 s{S_FLGN}, s{S_FLGN}, 0x40000000")
    p.s(f"s_add_u32 s{S_H}, s{S_H}, 16")
    p.s(f"s_and_b32 s{S_T0}, s2, 255")
    p.s(f"s_lshl_b32 s{S_T0}, s{S_T0}, 6")
    p.s(f"s_lshr_b32 s{S_T1}, s2, 8")
    p.s(f"s_lshl_b32 s{S_TKW}, s{S_ITER}, 1")
    p.s(f"s_add_u32 s{S_T1}, s{S_T1}, s{S_TKW}")
    p.s(f"s_lshl_b32 s{S_TKS}, s{S_T1}, 3")
    p.s(f"s_add_u32 s{S_TKS}, s{S_TKS}, s{S_T0}")
    p.s(f"s_add_u32 s{S_TKS}, s{S_TKS}, {TOKOFF}")
    p.s(f"s_sub_u32 s{S_TKW}, s{S_TKS}, 8")
    p.s(f"s_cmp_eq_u32 s{S_T1}, 0")
    p.s(f"s_cselect_b32 s{S_TKW}, 0, s{S_TKW}")
    p.s(f"s_cmp_eq_u32 s{S_W}, 0")
    p.s(f"s_cselect_b32 s{S_TKW}, s{S_TKW}, 0")
    p.s(f"s_cselect_b32 s{S_TKS}, s{S_TKS}, 0x40000000")

    sc = Sched(p, budget=int(os.environ.get("ABUD", "12")), late_extra=8)
    sc.group["dma"] = "vm"; sc.pace["vm"] = int(os.environ.get("APACE", "4"))
    AV = (V_AV0, V_AV1); AV8 = (V_AV80, V_AV81)
    pool_last = [None] * NPOOL; pool_i = [0]
    LEAD = int(os.environ.get("LEAD", "8"))
    DSP = int(os.environ.get("DSP", "1"))
    frags = []
    def frag(tile, mk_reads, consumers):
        k = pool_i[0] % NPOOL; pool_i[0] += 1
        r = V_POOL + 4 * k
        war = pool_last[k]
        for (d, b, c, tag) in consumers: sc.mfma(d, r, b, c, tag)
        pool_last[k] = consumers[-1][3]
        frags.append((tile, mk_reads(r), consumers[0][3], war))
    def R128(d, a, off): return lambda p: p.ds_read128(d, a, off)
    def TR(d, a, off): return lambda p: p.ds_tr(d, a, off)
    for tile in SEQ:
        kind, i = tile
        sb = slot_of(tile)
        if kind == "X":
            buf = i & 1
            rd = []
            for kh in range(2):
                rd += [R128(Xf(buf, kh, 0), V_AX, sb + kh * 512), R128(Xf(buf, kh, 1), V_AX, sb + 2048 + kh * 512), R128(Xf(buf, kh, 2), V_AX8, sb + kh * 512)]
            frags.append((tile, rd, ("Q", i, 0, 0, 0), ("Q", i - 2, 1, 2, 1) if i >= 2 else None))
        elif kind == "W":
            buf = i & 1
            for kh in range(2):
                for m in range(8):
                    e, mp = m & 1, m >> 1
                    frag(tile, lambda r: [TR(r, AV[e], sb + (2 * kh) * 2048 + mp * 512), TR(r + 2, AV[e], sb + (2 * kh + 1) * 2048 + mp * 512)],
                         [(Oa(n, m), Xf(buf, kh, n), Oa(n, m) if (i or kh) else None, ("Q", i, kh, n, m)) for n in range(2)])
                for e in range(2):
                    frag(tile, lambda r: [TR(r, AV8[e], sb + (2 * kh) * 2048), TR(r + 2, AV8[e], sb + (2 * kh + 1) * 2048)],
                         [(Oa(2, e), Xf(buf, kh, 2), Oa(2, e) if (i or kh) else None, ("Q", i, kh, 2, e))])
        elif kind == "K":
            def cinit(n): return NM(n) if i else None
            def s8():
                for ks in range(4):
                    extra = [R128(Qf(2, t), V_LIN, Q8AREA - 16384 + t * 1024) for t in range(4)] if (i == 0 and ks == 0) else []
                    frag(tile, lambda r: [R128(r, V_AK8, sb + ks * 512)] + extra,
                         [(Sa(2, 0), Qf(2, ks), Sa(2, 0) if ks else cinit(2), ("S", i, 2, 0, ks))])
            s8()
            for kt in range(4):
                for ks in range(4):
                    cons = [(Sa(n, kt), Qf(n, ks), Sa(n, kt) if ks else cinit(n), ("S", i, n, kt, ks)) for n in range(2)]
                    if i == 0 and kt == 3: cons.append((V_T, Qf(2, ks), V_T if ks else None, ("S8ref", ks)))
                    frag(tile, lambda r: [R128(r, V_AK, sb + kt * 2048 + ks * 512)], cons)
        else:
            for kk in range(2):
                for m in range(8):
                    e, mp = m & 1, m >> 1
                    frag(tile, lambda r: [TR(r, AV[e], sb + (2 * kk) * 2048 + mp * 512), TR(r + 2, AV[e], sb + (2 * kk + 1) * 2048 + mp * 512)],
                         [(Oa(n, m), Pf(n, kk), Oa(n, m) if (i or kk) else None, ("PV", i, n, m, kk)) for n in range(2)])
                for e in range(2):
                    extra = [R128(V_P8 + 4 * kk, V_LIN, sb + kk * 1024)] if e == 0 else []
                    frag(tile, lambda r: [TR(r, AV8[e], sb + (2 * kk) * 2048), TR(r + 2, AV8[e], sb + (2 * kk + 1) * 2048)] + extra,
                         [(Oa(2, e), V_P8 + 4 * kk, Oa(2, e) if (i or kk) else None, ("PV", i, 2, e, kk))])
    assert pool_i[0] % NPOOL == 0

    cur = None; lastrd = None
    for (tile, reads, cons, war) in frags:
        if tile != cur:
            cur = tile
            kind, i = tile; pos = POS[tile]
            aft = []
            if kind == "V": aft.append(("P8W", i))
            if tile == ("V", 7): aft.append(("STATW",))
            if tile == ("K", 0): aft.append(("QFIN",))
            if lastrd is not None: aft.append(dict(tag=lastrd, delay=int(os.environ.get("BDL", "3"))))
            if pos >= 2: aft.append(("DMA", SEQ[pos - 2]))
            def bar(p, kind=kind, i=i, pos=pos):
                p.comment(f"---- step {kind}{i}")
                if LOCK and pos == WAITPOS:
                    T = V_P8
                    p.s(f"s_cmp_lg_u32 s{S_W}, 0")
                    p.s(f"s_cbranch_scc1 {name}_tkdone")
                    p.s(f"s_cmp_lt_i32 s{S_NON+1}, 0")
                    p.s(f"s_cbranch_scc1 {name}_tkhave")
                    p.raw(f"v_mov_b32 v{T+2}, 0")
                    p.label(f"{name}_tknon")
                    p.raw(f"buffer_load_dwordx2 v[{T}:{T+1}], v{T+2}, s[{SRD_DBG}:{SRD_DBG+3}], 0 offen sc1")
                    p.raw("s_waitcnt vmcnt(0)")
                    p.raw(f"v_readfirstlane_b32 s{S_NON}, v{T}")
                    p.raw(f"v_readfirstlane_b32 s{S_NON+1}, v{T+1}")
                    p.s(f"s_sub_u32 s{S_SPIN}, s{S_SPIN}, 64")
                    p.s(f"s_cbranch_scc1 {name}_tkdone")
                    p.s(f"s_cmp_lt_i32 s{S_NON+1}, 0")
                    p.s(f"s_cbranch_scc0 {name}_tknon")
                    p.label(f"{name}_tkhave")
                    p.s(f"s_cmp_eq_u32 s{S_TKW}, 0")
                    p.s(f"s_cbranch_scc1 {name}_tkdone")
                    p.s(f"s_movk_i32 s{S_T1}, 200")
                    p.raw(f"v_mov_b32 v{T+2}, 0")
                    p.label(f"{name}_tkpoll")
                    p.raw(f"buffer_load_dwordx2 v[{T}:{T+1}], v{T+2}, s[{SRD_O}:{SRD_O+3}], s{S_TKW} offen sc1")
                    p.raw("s_waitcnt vmcnt(0)")
                    p.raw(f"v_readfirstlane_b32 s{S_T0}, v{T}")
                    p.s(f"s_cmp_eq_u32 s{S_T0}, s{S_NON}")
                    p.s(f"s_cbranch_scc1 {name}_tkdone")
                    p.s("s_sleep 4")
                    p.s(f"s_sub_u32 s{S_T1}, s{S_T1}, 1")
                    p.s(f"s_cbranch_scc0 {name}_tkpoll")
                    p.label(f"{name}_tkdone")
                if pos == PUBPOS: p.wait_vm("st")
                p.wait_vm((kind, i, pos < 3), lgkm0=True)
                p.barrier()
                if pos == PUBPOS: publish(p, S_FLG)
                if LOCK and pos == SIGPOS: publish(p, S_TKS, V_T + 2)
                stamp(p, pos)
                PM = os.environ.get("PM", "")
                if PM == "prog" and pos in (0, 20):
                    k = lbl[0]; lbl[0] += 1
                    p.s(f"s_cmp_eq_u32 s{S_ITER}, 0")
                    p.s(f"s_cbranch_scc1 Lp{k}a")
                    p.s(f"s_setprio {1 if pos == 0 else 0}")
                    p.s(f"s_branch Lp{k}b")
                    p.label(f"Lp{k}a")
                    p.s(f"s_setprio {3 if pos == 0 else 2}")
                    p.label(f"Lp{k}b")
                if PM == "iter" and pos == 0:
                    k = lbl[0]; lbl[0] += 1
                    p.s(f"s_setprio 2")
                    p.s(f"s_cmp_eq_u32 s{S_ITER}, 0")
                    p.s(f"s_cbranch_scc1 Lp{k}a")
                    p.s(f"s_setprio 0")
                    p.label(f"Lp{k}a")
                if PM == "kv" and pos in (0, 17):
                    p.s(f"s_setprio {0 if pos == 0 else 2}")
                if PM == "q" and pos in (0, 20):
                    p.s(f"s_setprio {2 if pos == 0 else 0}")
            sc.fill("rd", bar, 8, after=aft, before=cons, lead=LEAD + (10 if kind == "X" else 2), tag=("BAR", tile))
            QD = int(os.environ.get("QD", "3"))
            ops = []
            for nt in range(pos + QD, pos + 4):
                tl = SEQ[nt % NT]
                dist = QD if (tl[0] in "XW" and POS[tl] >= 3) else 3
                if nt - pos == dist: ops += issue_ops(tl, nt >= NT)
            if not ops: ops = [lambda p: None]
            for k, fn in enumerate(ops):
                sc.fill("dma", fn, 12, after=("BAR", tile), before=sc.m[min(sc.idx[cons] + 34, len(sc.m) - 1)][4], lead=80,
                        tag=("DMA", tile) if k == len(ops) - 1 else None)
        for k, fn in enumerate(reads):
            lastrd = ("RD", tile, len(sc.q.get("rd", [])))
            sc.fill("rd", fn, 4, ds=True, after=war if k == 0 else None, before=cons, lead=LEAD + (8 if tile[0] == "X" else 0), tag=lastrd)

    def V(fn, after=None, before=None, cost=4, tag=None, lead=0): sc.fill("va", fn, cost, after=after, before=before, tag=tag, lead=lead)
    def q_finalize(p):
        for n in (2, 0, 1):
            for t in range(4 if n < 2 else 1):
                dst = Qf(n, t) if n < 2 else V_T
                src0 = Oa(n, 2 * t); src1 = Oa(n, 2 * t + 1)
                for r in range(4):
                    p.vop("v_mul_f32", src0 + r, f"s{S_CS}", src0 + r)
                    p.vop("v_mul_f32", src1 + r, f"s{S_CS}", src1 + r)
                p.cvtpk(dst, src0, src0 + 1); p.cvtpk(dst + 1, src0 + 2, src0 + 3)
                p.cvtpk(dst + 2, src1, src1 + 1); p.cvtpk(dst + 3, src1 + 2, src1 + 3)
        for n in (2, 0, 1):
            for t in range(4 if n < 2 else 1):
                dst = Qf(n, t) if n < 2 else V_T
                p.swap32(dst, dst + 2); p.swap32(dst + 1, dst + 3)
                p.swap16(dst, dst + 2); p.swap16(dst + 1, dst + 3)
            if n == 2:
                p.v(f"v_lshl_add_u32 v{V_S}, s{S_W}, 10, v{V_LIN}", [V_S], [V_LIN])
                p.ds_write(V_S, V_T, 4, Q8AREA - 16384)
    V(q_finalize, after=("Q", 9, 1, 2, 1), before=("S", 0, 2, 0, 0), cost=200, tag=("QFIN",))
    def block0_max(p):
        for n in range(3):
            regs = [Sa(n, kt) + r for kt in range(4) for r in range(4)] if n < 2 else [V_T + r for r in range(4)]
            m = NM(n)
            p.vop("v_max3_f32", m, regs[0], regs[1], regs[2])
            rest = regs[3:]
            while len(rest) >= 2:
                p.vop("v_max3_f32", m, m, rest[0], rest[1]); rest = rest[2:]
            if rest: p.vop("v_max_f32", m, m, rest[0])
        for sw in (p.swap32, p.swap16):
            for n in range(3): p.vop("v_mov_b32", NM(n) + 1, NM(n))
            for n in range(3): sw(NM(n), NM(n) + 1)
            for n in range(3): p.vop("v_max_f32", NM(n), NM(n), NM(n) + 1)
        for n in range(3):
            p.vop("v_sub_f32", NM(n), "0", NM(n))
            for r in range(1, 4): p.vop("v_mov_b32", NM(n) + r, NM(n))
        for n in (2, 0, 1):
            regs = [Sa(n, kt) + r for kt in range(4) for r in range(4)] if n < 2 else [Sa(2, 0) + r for r in range(4)]
            for r in regs: p.vop("v_add_f32", r, r, NM(n))
    for j in range(8):
        if j == 0: V(block0_max, after=("S8ref", 3), before=("S", 1, 2, 0, 0), cost=200)
        order = [(2, 0)] + [(n, kt) for kt in range(4) for n in range(2)]
        nxtS = lambda n, kt: ("S", j + 1, n, kt, 0) if j < 7 else None
        for (n, kt) in order:
            a = dict(tag=("S", j, n, kt, 3), delay=2) if j else None
            for r in range(4):
                reg = Sa(n, kt) + r
                V(lambda p, reg=reg: p.exp(reg, reg), after=a, cost=8)
            for r in range(4):
                reg = Sa(n, kt) + r
                if j == 0 and kt == 0 and r == 0: V(lambda p, reg=reg, n=n: p.vop("v_mov_b32", V_L + n, reg))
                else: V(lambda p, reg=reg, n=n: p.vop("v_add_f32", V_L + n, V_L + n, reg))
            if n == 2:
                V(lambda p: p.cvtpk(V_T, Sa(2, 0), Sa(2, 0) + 1))
                V(lambda p: p.cvtpk(V_T + 1, Sa(2, 0) + 2, Sa(2, 0) + 3), before=nxtS(2, 0))
                V(lambda p, j=j: p.ds_write(V_P8W, V_T, 2, slot_of(("V", j))), tag=("P8W", j))
                if j == 7:
                    V(lambda p: p.v(f"v_lshl_add_u32 v{V_T+2}, s{S_W}, 2, v{V_LIN}", [V_T + 2], [V_LIN]))
                    V(lambda p: p.ds_write(V_T + 2, V_L + 2, 1, STAT - 16384), tag=("STATW",))
            if j == 0 and n == 1:
                for n2 in range(2):
                    V(lambda p, n2=n2, kt=kt: p.cvtpk(Pf(n2, kt >> 1) + 2 * (kt & 1), Sa(n2, kt), Sa(n2, kt) + 1))
                    V(lambda p, n2=n2, kt=kt: p.cvtpk(Pf(n2, kt >> 1) + 2 * (kt & 1) + 1, Sa(n2, kt) + 2, Sa(n2, kt) + 3), before=nxtS(0, kt))
        if j:
            for kk in range(2):
                a = ("PV", j - 1, 1, 7, kk)
                for h in range(2):
                    kt = 2 * kk + h
                    for n in range(2):
                        bf = nxtS(0, kt) if j < 7 else ("PV", 7, 0, 0, kk)
                        V(lambda p, n=n, kk=kk, h=h, kt=kt: p.cvtpk(Pf(n, kk) + 2 * h, Sa(n, kt), Sa(n, kt) + 1), after=a)
                        V(lambda p, n=n, kk=kk, h=h, kt=kt: p.cvtpk(Pf(n, kk) + 2 * h + 1, Sa(n, kt) + 2, Sa(n, kt) + 3), before=bf, lead=2)
    sc.run()
    stamp(p, 36)
    p.s(f"s_cmp_lt_i32 s{S_NON+1}, 0")
    p.s(f"s_cbranch_scc1 {name}_havenon")
    get_nonce(p, f"{name}_Anon", V_T)
    p.label(f"{name}_havenon")
    p.ds_read128(V_T, V_LIN, STAT - 16384)
    p.vop("v_add_f32", V_T, V_T, V_T + 1); p.vop("v_add_f32", V_T + 2, V_T + 2, V_T + 3)
    p.vop("v_add_f32", V_L + 2, V_T, V_T + 2)
    for sw in (p.swap32, p.swap16):
        for n in range(3): p.vop("v_mov_b32", V_T + n, V_L + n)
        for n in range(3): sw(V_L + n, V_T + n)
        for n in range(3): p.vop("v_add_f32", V_L + n, V_L + n, V_T + n)
    for n in range(3): p.vop("v_rcp_f32", V_L + n, V_L + n, kind="trans")
    k = 0
    for n in range(3):
        for t in range(4 if n < 2 else 1):
            dst = V_Q + 4 * k; k += 1
            s0 = Oa(n, 2 * t); s1 = Oa(n, 2 * t + 1)
            for r in range(4):
                p.vop("v_mul_f32", s0 + r, s0 + r, V_L + n)
                p.vop("v_mul_f32", s1 + r, s1 + r, V_L + n)
            p.cvtpk(dst, s0, s0 + 1); p.cvtpk(dst + 1, s0 + 2, s0 + 3)
            p.cvtpk(dst + 2, s1, s1 + 1); p.cvtpk(dst + 3, s1 + 2, s1 + 3)
            if n == 1 and t == 0: p.s(f"s_add_u32 s{S_OOFF}, s{S_OOFF}, 4096")
            if "O" not in ABL: p.store(dst, 4, V_OST, SRD_O, f"s{S_OOFF if n < 2 else S_OOFF8}", t * 1024, flags=OFL)
    if PROF:
        stamp(p, 37)
        p.s("s_memrealtime s[56:57]")
        p.s("s_waitcnt lgkmcnt(0)")
        p.raw("v_writelane_b32 v0, s58, 62")
        p.raw("v_writelane_b32 v0, s56, 63")
        p.s(f"s_lshl_b32 s60, s2, 1")
        p.s(f"s_add_u32 s60, s60, s{S_ITER}")
        p.s(f"s_lshl_b32 s60, s60, 2")
        p.s(f"s_add_u32 s60, s60, s{S_W}")
        p.s(f"s_lshl_b32 s60, s60, 8")
        p.s(f"s_add_u32 s60, s60, 0x4000000")
        p.vop("v_lshrrev_b32", V_T, "2", V_OST)
        p.store(0, 1, V_T, SRD_O, "s60", 0)
    p.s(f"s_add_u32 s{S_ITER}, s{S_ITER}, 1")
    p.s(f"s_cmp_lt_u32 s{S_ITER}, 2")
    p.s(f"s_cbranch_scc1 {name}_loop")
    p.wait_all()
    p.barrier()
    publish(p, S_FLGN)
    p.raw("s_endpgm")
    return p

G_DO, G_AO, G_OL, G_FA = 1, 2, 6, 7
G_OACC = 8
G_OB = 104
G_NB = int(os.environ.get("GNB", "7"))
G_OP = G_OB + 12 * G_NB
G_NOP = (256 - G_OP) // 4 // 8 * 8
NWO = 5
S_WOO, S_OB, S_OUT, S_R, S_C, S_FB, S_ROTO, S_KB, S_KWB, S_KBB = 81, 82, 83, 84, 85, 86, 87, 31, 32, 33
def OA(t, m): return G_OACC + (t * 8 + m) * 4
NSO = 32
S_TYP, S_TIL = 34, 35

def go_issue_w(s_):
    sb = (s_ % NWO) * 16384
    ops = []
    for kt in range(4):
        def f(p, kt=kt):
            p.s(f"s_add_u32 m0, s{S_M0KV}, {sb + kt * 2048}")
            if kt == 0:
                p.s(f"s_mul_i32 s{S_KWB}, s{S_KW}, {64 * 1280}")
                p.s(f"s_add_u32 s{S_KWB}, s{S_KWB}, s{S_WOO}")
                p.s(f"s_add_u32 s{S_KW}, s{S_KW}, 1")
                p.s(f"s_and_b32 s{S_KW}, s{S_KW}, 15")
            p.s(f"s_add_u32 s{S_T0}, s{S_KWB}, {((s_ >> 4) * 1024 + 16 * kt) * 1280}")
            if "V" not in ABL: p.dma(G_DO, SRD_WO, f"s{S_T0}", ("WO", s_))
        ops.append(f)
    return ops
def go_issue_b(s_):
    ops = []
    for t in range(3):
        def f(p, t=t):
            if t == 0:
                p.s(f"s_lshr_b32 s{S_KBB}, s{S_KB}, 1")
                p.s(f"s_mul_i32 s{S_KBB}, s{S_KBB}, {288 * 4096}")
                p.s(f"s_and_b32 s{S_T0}, s{S_KB}, 1")
                p.s(f"s_lshl_b32 s{S_T0}, s{S_T0}, 11")
                p.s(f"s_add_u32 s{S_KBB}, s{S_KBB}, s{S_T0}")
                p.s(f"s_add_u32 s{S_KBB}, s{S_KBB}, s{S_OB}")
                p.s(f"s_add_u32 s{S_KB}, s{S_KB}, 1")
                p.s(f"s_and_b32 s{S_KB}, s{S_KB}, 15")
            p.s(f"s_add_u32 s{S_T0}, s{S_KBB}, {(s_ >> 4) * 8 * 288 * 4096 + t * 4096}")
            if "B" not in ABL: p.load4(G_OB + ((s_ % G_NB) * 3 + t) * 4, G_OL, SRD_O, f"s{S_T0}", 0, ("OB", s_), "sc1")
        ops.append(f)
    return ops

def o_role(name):
    p = Prog()
    p.label(f"{name}_O")
    T = V_POOL
    W, L, a, b, c, d, H, U, VV, R8, PI, M, G = range(T, T + 13)
    p.s(f"s_movk_i32 s{S_T0}, 1280")
    p.vop("v_lshl_add_u32", b, H, "3", R8)
    p.vop("v_mul_lo_u32", b, b, f"s{S_T0}")
    p.vop("v_lshl_add_u32", b, U, "7", b)
    p.vop("v_lshl_add_u32", b, VV, "6", b)
    p.vop("v_lshrrev_b32", c, "2", R8)
    p.vop("v_lshlrev_b32", d, "1", c)
    p.vop("v_xor_b32", d, d, PI)
    p.vop("v_lshl_add_u32", G_DO, d, "4", b)
    p.s(f"s_sub_u32 s{S_TIL}, s2, 512")
    p.s(f"s_cmp_ge_u32 s{S_TIL}, 240")
    p.s(f"s_cselect_b32 s{S_TYP}, 1, 0")
    p.s(f"s_cselect_b32 s{S_T0}, 240, 0")
    p.s(f"s_sub_u32 s{S_TIL}, s{S_TIL}, s{S_T0}")
    p.s(f"s_lshr_b32 s{S_T0}, s{S_TIL}, 3")
    p.s(f"s_mul_i32 s{S_R}, s{S_T0}, 52")
    p.s(f"s_lshr_b32 s{S_R}, s{S_R}, 8")
    p.s(f"s_mul_i32 s{S_C}, s{S_R}, 5")
    p.s(f"s_sub_u32 s{S_C}, s{S_T0}, s{S_C}")
    p.s(f"s_mul_i32 s{S_T0}, s{S_R}, 43")
    p.s(f"s_mul_i32 s{S_T1}, s{S_C}, 51")
    p.s(f"s_add_u32 s{S_T0}, s{S_T0}, s{S_T1}")
    p.s(f"s_bfe_u32 s{S_KW}, s{S_T0}, 0x40004")
    if not ROT: p.s(f"s_mov_b32 s{S_KW}, 0")
    p.s(f"s_mov_b32 s{S_KB}, s{S_KW}")
    p.s(f"s_and_b32 s{S_T0}, s2, 7")
    p.s(f"s_mul_i32 s{S_T0}, s{S_T0}, 6")
    p.s(f"s_add_u32 s{S_R}, s{S_R}, s{S_T0}")
    p.s(f"s_lshl_b32 s{S_OUT}, s{S_C}, 8")
    p.s(f"s_mul_i32 s{S_WOO}, s{S_TYP}, {2048 * 1280}")
    p.s(f"s_add_u32 s{S_WOO}, s{S_WOO}, s{S_OUT}")
    PW = NWO - 1; PB = G_NB - 1
    for i in range(PW):
        for fn in go_issue_w(i): fn(p)
    p.s(f"s_mul_i32 s{S_T0}, s{S_R}, 6")
    p.s(f"s_and_b32 s{S_T1}, s{S_W}, 1")
    p.s(f"s_mul_i32 s{S_T1}, s{S_T1}, 3")
    p.s(f"s_add_u32 s{S_T0}, s{S_T0}, s{S_T1}")
    p.s(f"s_mul_i32 s{S_T1}, s{S_T0}, {16 * 1280}")
    p.s(f"s_add_u32 s{S_OUT}, s{S_OUT}, s{S_T1}")
    p.s(f"s_lshr_b32 s{S_T1}, s{S_W}, 1")
    p.s(f"s_lshl_b32 s{S_OB}, s{S_T1}, 7")
    p.s(f"s_add_u32 s{S_OUT}, s{S_OUT}, s{S_OB}")
    p.s(f"s_lshl_b32 s{S_OB}, s{S_T0}, 12")
    p.s(f"s_lshl_b32 s{S_T1}, s{S_T1}, 10")
    p.s(f"s_add_u32 s{S_OB}, s{S_OB}, s{S_T1}")
    p.s(f"s_mul_i32 s{S_T0}, s{S_T0}, 7282")
    p.s(f"s_lshr_b32 s{S_T0}, s{S_T0}, 16")
    p.s(f"s_lshl_b32 s{S_T0}, s{S_T0}, 8")
    p.s(f"s_add_u32 s{S_FB}, s{S_T0}, {FLAGOFF}")
    p.s(f"s_lshl_b32 s{S_T0}, s{S_TYP}, 7")
    p.s(f"s_add_u32 s{S_FB}, s{S_FB}, s{S_T0}")
    p.s(f"s_mul_i32 s{S_T0}, s{S_TYP}, {16 * 288 * 4096}")
    p.s(f"s_add_u32 s{S_OB}, s{S_OB}, s{S_T0}")
    p.vop("v_lshrrev_b32", a, "1", G)
    p.vop("v_lshlrev_b32", b, "13", a)
    p.vop("v_lshl_add_u32", b, R8, "6", b)
    p.vop("v_and_b32", c, "1", L)
    p.vop("v_lshl_add_u32", b, c, "3", b)
    p.vop("v_bfe_u32", c, L, "1", "1")
    p.vop("v_lshl_add_u32", b, c, "4", b)
    p.vop("v_and_b32", c, "1", G)
    p.vop("v_lshl_add_u32", G_AO, c, "5", b)
    p.vop("v_lshl_add_u32", G_AO, U, "12", G_AO)
    p.vop("v_lshl_add_u32", G_AO, U, "10", G_AO)
    p.vop("v_xor_b32", G_AO + 1, "32", G_AO)
    p.vop("v_xor_b32", G_AO + 2, "1024", G_AO)
    p.vop("v_xor_b32", G_AO + 3, "1024", G_AO + 1)
    p.vop("v_lshlrev_b32", G_OL, "4", L)
    p.vop("v_and_b32", a, "7", L)
    p.vop("v_lshlrev_b32", G_FA, "3", a)
    get_nonce(p, f"{name}_Onon", G_OB)
    stamp(p, 0)
    PT = 254
    assert G_OP + 4 * G_NOP <= PT
    def poll(p, ch):
        p.label(f"{name}_poll{ch}")
        p.add(Ins(f"buffer_load_dwordx2 v[{PT}:{PT+1}], v{G_FA}, s[{SRD_O}:{SRD_O+3}], s{S_FB} offen offset:{ch * 64} sc1", "vml", [G_FA], [PT, PT + 1], tag="poll"))
        p.add(Ins(f"v_cmp_ne_u32 vcc, s{S_NON}, v{PT}", "valu", [PT], []))
        p.add(Ins(f"v_cmp_ne_u32 s[56:57], s{S_NON+1}, v{PT+1}", "valu", [PT + 1], []))
        p.s(f"s_or_b64 vcc, vcc, s[56:57]")
        p.s(f"s_cbranch_scc0 {name}_ready{ch}")
        p.s(f"s_sub_u32 s{S_SPIN}, s{S_SPIN}, 16")
        p.s(f"s_cbranch_scc1 {name}_ready{ch}")
        p.s("s_sleep 8")
        p.s(f"s_branch {name}_poll{ch}")
        p.label(f"{name}_ready{ch}")
        stamp(p, 1 + ch)
    poll(p, 0)
    for i in range(PB):
        for fn in go_issue_b(i): fn(p)
    sc = Sched(p, budget=int(os.environ.get("GBUD", "8")), late_extra=8)
    sc.group["dma"] = "vm"; sc.group["dmb"] = "vm"; sc.pace["vm"] = int(os.environ.get("OPACE", "3"))
    al = [None] * G_NOP; ai = [0]
    LEAD = 8
    lastrd = None
    PBL = int(os.environ.get("PBL", "2"))
    for i in range(NSO):
        wsb = (i % NWO) * 16384
        plan = []
        for m in range(8):
            k = ai[0] % G_NOP; ai[0] += 1
            r = G_OP + 4 * k
            war = al[k]
            for t in range(3):
                sc.mfma(OA(t, m), r, G_OB + ((i % G_NB) * 3 + t) * 4, OA(t, m) if i else None, ("O", i, m, t))
            al[k] = ("O", i, m, 2)
            plan.append((r, m, war))
    for i in range(NSO):
        wsb = (i % NWO) * 16384
        cons = ("O", i, 0, 0)
        def bar(p, i=i):
            p.comment(f"---- o step {i}")
            p.wait_vm(("WO", i), lgkm0=True)
            p.barrier()
        aft = [dict(tag=lastrd, delay=3)] if lastrd else []
        if i >= 2 and i - 2 + PW < NSO: aft.append(("DMA", i - 2))
        sc.fill("rd", bar, 8, after=aft, before=cons, lead=LEAD + 12, tag=("BAR", i))
        ops = go_issue_w(i + PW) if i + PW < NSO else []
        for k, fn in enumerate(ops):
            sc.fill("dma", fn, 8, after=("BAR", i), before=sc.m[min(sc.idx[cons] + 20, len(sc.m) - 1)][4], lead=60 - 6 * k, tag=("DMA", i) if k == 3 else None)
        for m in range(8):
            k = (i * 8 + m) % G_NOP
            r = G_OP + 4 * k
            g = i * 8 + m - G_NOP
            war = ("O", g // 8, g % 8, 2) if g >= 0 else None
            e, mp = m & 1, m >> 1
            ad = G_AO + 2 * (mp >> 1) + e
            off = wsb + (mp & 1) * 512
            if off + 2048 > 65535:
                pass
            sc.fill("rd", lambda p, r=r, ad=ad, off=off: rd_tr(p, r, ad, off), 4, ds=True, after=war, before=("O", i, m, 0), lead=LEAD + 8)
            lastrd = ("RD", i, m)
            sc.fill("rd", lambda p, r=r, ad=ad, off=off: rd_tr(p, r + 2, ad, off + 2048), 4, ds=True, before=("O", i, m, 0), lead=LEAD + 8, tag=lastrd)
    for s_ in range(PB, NSO):
        prev = s_ - G_NB
        aft = dict(tag=("O", prev, 7, 2), delay=1) if prev >= 0 else None
        if s_ % 16 == 0:
            ch = s_ // 16
            pa = ("O", s_ - PBL, 7, 2) if ch == 1 else aft
            sc.fill("dmb", lambda p, ch=ch: poll(p, ch), 40, after=pa, before=("O", s_, 0, 0))
        for k, fn in enumerate(go_issue_b(s_)):
            sc.fill("dmb", fn, 8, after=aft if k == 0 else None, before=("O", s_, 0, 0), lead=24 * PB - 3 - 6 * k)
    sc.run()
    stamp(p, 3)
    p.wait_lgkm0()
    p.barrier()
    A1, A2, LL = G_OP, G_OP + 1, G_OP + 2
    p.s(f"s_mul_i32 s{S_T0}, s{S_W}, 12288")
    p.vop("v_add_u32", A1, f"s{S_T0}", G_OL)
    p.s(f"s_xor_b32 s{S_T1}, s{S_W}, 2")
    p.s(f"s_mul_i32 s{S_T1}, s{S_T1}, 12288")
    p.vop("v_add_u32", A2, f"s{S_T1}", G_OL)
    for t in range(3):
        for m in range(4):
            p.ds_write(A1, OA(t, 4 + m), 4, (t * 4 + m) * 1024)
    p.vop("v_lshrrev_b32", LL, "4", G_OL)
    p.vop("v_and_b32", A1 + 3, "15", LL)
    p.s(f"s_movk_i32 s{S_T0}, 1280")
    p.vop("v_mul_lo_u32", A1 + 3, A1 + 3, f"s{S_T0}")
    p.vop("v_lshrrev_b32", LL, "4", LL)
    p.vop("v_lshl_add_u32", A1 + 3, LL, "4", A1 + 3)
    p.wait_lgkm0()
    p.barrier()
    for t in range(3):
        for m in range(4):
            p.ds_read128(G_OB + (t * 4 + m) * 4, A2, (t * 4 + m) * 1024)
    for t in range(3):
        for m in range(4):
            for r in range(4): p.vop("v_add_f32", OA(t, m) + r, OA(t, m) + r, G_OB + (t * 4 + m) * 4 + r)
    p.s(f"s_mul_i32 s{S_KWB}, s{S_TIL}, 49152")
    p.s(f"s_mul_i32 s{S_T0}, s{S_W}, 12288")
    p.s(f"s_add_u32 s{S_KWB}, s{S_KWB}, s{S_T0}")
    p.s(f"s_add_u32 s{S_KWB}, s{S_KWB}, {PARTOFF}")
    p.s(f"s_lshl_b32 s{S_KBB}, s{S_TIL}, 6")
    p.s(f"s_lshl_b32 s{S_T0}, s{S_W}, 3")
    p.s(f"s_add_u32 s{S_KBB}, s{S_KBB}, s{S_T0}")
    p.s(f"s_add_u32 s{S_KBB}, s{S_KBB}, {PFLAG}")
    p.s(f"s_cmp_eq_u32 s{S_TYP}, 1")
    p.s(f"s_cbranch_scc1 {name}_ofin")
    for t in range(3):
        p.s(f"s_add_u32 s{S_T0}, s{S_KWB}, {t * 4096}")
        for m in range(4):
            p.store(OA(t, m), 4, G_OL, SRD_O, f"s{S_T0}", m * 1024, flags="sc1")
    p.vop("v_mov_b32", PT, f"s{S_NON}")
    p.vop("v_mov_b32", PT + 1, f"s{S_NON+1}")
    p.wait_all()
    p.s("s_mov_b64 exec, 1")
    p.store(PT, 2, G_OL, SRD_O, f"s{S_KBB}", 0, flags="sc1")
    p.s("s_mov_b64 exec, -1")
    p.s(f"s_branch {name}_odone")
    p.label(f"{name}_ofin")
    p.vop("v_mov_b32", LL, "0")
    p.label(f"{name}_ppoll")
    p.raw(f"buffer_load_dwordx2 v[{PT}:{PT+1}], v{LL}, s[{SRD_O}:{SRD_O+3}], s{S_KBB} offen sc1")
    p.wait_all()
    p.raw(f"v_cmp_ne_u32 vcc, s{S_NON}, v{PT}")
    p.raw(f"v_cmp_ne_u32 s[56:57], s{S_NON+1}, v{PT+1}")
    p.s(f"s_or_b64 vcc, vcc, s[56:57]")
    p.s(f"s_cbranch_scc0 {name}_pready")
    p.s(f"s_sub_u32 s{S_SPIN}, s{S_SPIN}, 16")
    p.s(f"s_cbranch_scc1 {name}_pready")
    p.s("s_sleep 4")
    p.s(f"s_branch {name}_ppoll")
    p.label(f"{name}_pready")
    for t in range(3):
        p.s(f"s_add_u32 s{S_T0}, s{S_KWB}, {t * 4096}")
        for m in range(4):
            p.load4(G_OB + (t * 4 + m) * 4, G_OL, SRD_O, f"s{S_T0}", m * 1024, "part", "sc1")
    for t in range(3):
        for pr in range(2):
            dst = G_OB + 48 + (t * 2 + pr) * 4
            for e in range(2):
                m = 2 * pr + e
                for r in range(4): p.vop("v_add_f32", OA(t, m) + r, OA(t, m) + r, G_OB + (t * 4 + m) * 4 + r)
            s0, s1 = OA(t, 2 * pr), OA(t, 2 * pr + 1)
            p.cvtpk(dst, s0, s0 + 1); p.cvtpk(dst + 1, s0 + 2, s0 + 3)
            p.cvtpk(dst + 2, s1, s1 + 1); p.cvtpk(dst + 3, s1 + 2, s1 + 3)
            p.swap32(dst, dst + 2); p.swap32(dst + 1, dst + 3)
            p.swap16(dst, dst + 2); p.swap16(dst + 1, dst + 3)
            p.s(f"s_add_u32 s{S_T0}, s{S_OUT}, {t * 16 * 1280}")
            p.store(dst, 4, A1 + 3, SRD_OUT, f"s{S_T0}", pr * 64)
    p.label(f"{name}_odone")
    if PROF:
        stamp(p, 4)
        p.s("s_memrealtime s[56:57]")
        p.s("s_waitcnt lgkmcnt(0)")
        p.raw("v_writelane_b32 v0, s58, 62")
        p.raw("v_writelane_b32 v0, s56, 63")
        p.s(f"s_lshl_b32 s60, s2, 3")
        p.s(f"s_add_u32 s60, s60, s{S_W}")
        p.s(f"s_lshl_b32 s60, s60, 8")
        p.s(f"s_add_u32 s60, s60, 0x4000000")
        p.vop("v_lshrrev_b32", LL, "2", G_OL)
        p.store(0, 1, LL, SRD_O, "s60", 0)
    p.label(f"{name}_end")
    p.raw("s_endpgm")
    return p

G_AH = 252
def rd_tr(p, r, ad, off):
    if off <= 65535: p.ds_tr(r, ad, off)
    else:
        p.vop("v_add_u32", G_AH, "32768", ad)
        p.ds_tr(r, G_AH, off - 32768)

def gen(name):
    pro = prologue(name); b = body(name); o = o_role(name)
    lines, stats = finalize([(pro, 1), (b, 2)])
    lo, so = finalize([(o, 1)])
    return [f".globl {name}", ".p2align 8", f".type {name},@function", f"{name}:"] + lines + lo, (stats, so)
```

```python
from asmlib import *
import math, struct, os
PROF = int(os.environ.get("PROF", "0"))
ABL = os.environ.get("ABL", "")
ROT = int(os.environ.get("ROT", "1"))
def E(n, d): return int(os.environ.get(n, str(d)))
def f2u(f): return struct.unpack("<I", struct.pack("<f", f))[0]
CSCALE = math.log2(math.e) / math.sqrt(128.0)
NWG = 256
LDS_BYTES = 163840
SLOT = 16384
MISC = 4 * SLOT
P8A = MISC
STAT = MISC + 4096
GW = MISC + 6144
XB = GW + 3 * 16384
XSLOT = 18432
MBOX = XB
assert XB + 2 * XSLOT <= LDS_BYTES
OBYTES = 32 * 288 * 4096
FLAGOFF = OBYTES
WSBYTES = OBYTES + 8192

S_W, S_W8, S_SPIN = 3, 4, 5
SRD_X, SRD_K, SRD_V, SRD_W, SRD_O = 8, 12, 16, 20, 24
SRD_WO, SRD_OUT, SRD_DBG = 68, 72, 76
S_M0KV = 28
S_KVOFF, S_KVOFFN = 31, 32
S_OOFF, S_OOFF8 = 34, 43
S_ITER = 35
S_T0, S_T1 = 36, 37
S_B, S_H = 38, 39
S_CS = 40
S_WOFF, S_XOFF, S_XOFF8, S_M0X, S_M0X8 = 29, 30, 33, 41, 42
S_XM = 54
S_NON = 64
S_FLG, S_FLGN = 66, 67
S_WOO, S_OB, S_OUT, S_R, S_C, S_FB = 80, 81, 82, 83, 84, 85
S_KW, S_KX, S_KX8, S_ROTQ, S_ROTO, S_KB, S_KWO, S_KWB, S_KBB = 86, 87, 88, 89, 90, 91, 92, 93, 6
T0 = 230
PUBBAR = E("PUBBAR", 2)

def stamp(p, idx):
    if not PROF: return
    p.s("s_memtime s[60:61]")
    p.wait_lgkm0()
    p.raw(f"v_writelane_b32 v0, s60, {idx}")
def prof_dump(p, vtmp, vlin16, lin_bias, siter):
    if not PROF: return
    p.s("s_memrealtime s[56:57]")
    p.s("s_waitcnt lgkmcnt(0)")
    p.raw(f"v_writelane_b32 v0, s58, 62")
    p.raw(f"v_writelane_b32 v0, s56, 63")
    p.s(f"s_lshl_b32 s60, s2, 2")
    p.s(f"s_add_u32 s60, s60, s{siter}")
    p.s(f"s_lshl_b32 s60, s60, 3")
    p.s(f"s_add_u32 s60, s60, s{S_W8}")
    p.s(f"s_lshl_b32 s60, s60, 8")
    p.s(f"s_add_u32 s60, s60, 0x8000000")
    p.vop("v_subrev_u32", vtmp, f"{lin_bias}", vlin16)
    p.vop("v_lshrrev_b32", vtmp, "2", vtmp)
    p.store(0, 1, vtmp, SRD_O, "s60", 0, tag="prof")

def common_prologue(name):
    p = Prog()
    p.s(f"s_cmp_ge_u32 s2, {NWG}")
    p.s(f"s_cbranch_scc1 {name}_end")
    if PROF: p.s("s_memrealtime s[58:59]")
    p.s("s_load_dwordx4 s[44:47], s[0:1], 0")
    p.s("s_load_dwordx4 s[48:51], s[0:1], 16")
    p.s("s_load_dwordx2 s[52:53], s[0:1], 56")
    p.s("s_load_dwordx4 s[88:91], s[0:1], 32")
    p.s("s_load_dwordx2 s[92:93], s[0:1], 48")
    W8, L, W = T0, T0 + 1, T0 + 2
    p.vop("v_lshrrev_b32", W8, "6", 0)
    p.vop("v_and_b32", L, "63", 0)
    p.vop("v_and_b32", W, "3", W8)
    p.add(Ins(f"v_readfirstlane_b32 s{S_W8}, v{W8}", "rfl", [W8], []))
    p.add(Ins(f"v_readfirstlane_b32 s{S_W}, v{W}", "rfl", [W], []))
    f = F
    p.vop("v_and_b32", f["H"], "1", W)
    p.vop("v_lshrrev_b32", f["U"], "1", W)
    p.vop("v_lshrrev_b32", f["VV"], "5", L)
    p.vop("v_bfe_u32", f["R8"], L, "2", "3")
    p.vop("v_and_b32", f["PI"], "3", L)
    p.vop("v_and_b32", f["M"], "15", L)
    p.vop("v_lshrrev_b32", f["G"], "4", L)
    p.s(f"s_and_b32 s{S_T0}, s2, 7")
    p.s(f"s_lshl_b32 s{S_B}, s{S_T0}, 2")
    p.s(f"s_lshr_b32 s{S_T0}, s2, 6")
    p.s(f"s_add_u32 s{S_B}, s{S_B}, s{S_T0}")
    p.s(f"s_bfe_u32 s{S_H}, s2, 0x30003")
    p.s(f"s_mov_b32 s{S_ITER}, 0")
    p.s(f"s_mov_b32 s{S_SPIN}, 0x100000")
    p.s(f"s_and_b32 s{S_T0}, s{S_W}, 1")
    p.s(f"s_lshl_b32 s{S_T0}, s{S_T0}, 13")
    p.s(f"s_lshr_b32 s{S_T1}, s{S_W}, 1")
    p.s(f"s_lshl_b32 s{S_M0KV}, s{S_T1}, 10")
    p.s(f"s_add_u32 s{S_M0KV}, s{S_M0KV}, s{S_T0}")
    p.s("s_waitcnt lgkmcnt(0)")
    for srd, src, size in ((SRD_X, 44, 32 * 144 * 640 * 2), (SRD_K, 46, 1 << 27), (SRD_V, 48, 1 << 27), (SRD_W, 50, 640 * 4096 * 2), (SRD_O, 52, (1 << 28) if PROF else WSBYTES),
                           (SRD_WO, 88, 4096 * 640 * 2), (SRD_OUT, 90, 32 * 144 * 640 * 2), (SRD_DBG, 92, 256)):
        p.s(f"s_mov_b32 s{srd}, s{src}")
        p.s(f"s_and_b32 s{srd+1}, s{src+1}, 0xffff")
        p.s(f"s_mov_b32 s{srd+2}, {size:#x}")
        p.s(f"s_mov_b32 s{srd+3}, 0x20000")
    p.s(f"s_cmp_ge_u32 s{S_W8}, 4")
    p.s(f"s_cbranch_scc1 {name}_G")
    return p
F = dict(L=T0 + 1, W=T0 + 2, a=T0 + 3, b=T0 + 4, c=T0 + 5, d=T0 + 6, H=T0 + 7, U=T0 + 8, VV=T0 + 9, R8=T0 + 10, PI=T0 + 11, M=T0 + 12, G=T0 + 13)

def get_nonce(p, name, t):
    p.vop("v_mov_b32", t + 2, "0")
    p.label(f"{name}")
    p.raw(f"buffer_load_dwordx2 v[{t}:{t+1}], v{t+2}, s[{SRD_DBG}:{SRD_DBG+3}], 0 offen sc1")
    p.wait_all()
    p.raw(f"v_readfirstlane_b32 s{S_NON}, v{t}")
    p.raw(f"v_readfirstlane_b32 s{S_NON+1}, v{t+1}")
    p.s(f"s_sub_u32 s{S_SPIN}, s{S_SPIN}, 64")
    p.s(f"s_cbranch_scc1 {name}_x")
    p.s(f"s_cmp_lt_i32 s{S_NON+1}, 0")
    p.s(f"s_cbranch_scc0 {name}")
    p.label(f"{name}_x")

def tr_addr(p, dst0, dst1, base):
    f = F
    a, b, c, L, G, R8 = f["a"], f["b"], f["c"], f["L"], f["G"], f["R8"]
    p.vop("v_lshrrev_b32", a, "1", G)
    p.vop("v_lshlrev_b32", b, "13", a)
    p.vop("v_lshl_add_u32", b, R8, "6", b)
    p.vop("v_and_b32", c, "1", L)
    p.vop("v_lshl_add_u32", b, c, "3", b)
    p.vop("v_bfe_u32", c, L, "1", "1")
    p.vop("v_lshl_add_u32", b, c, "4", b)
    p.vop("v_and_b32", c, "1", G)
    p.vop("v_lshl_add_u32", dst0, c, "5", b)
    if base: p.vop("v_add_u32", dst0, f"{base}", dst0)
    p.vop("v_xor_b32", dst1, "32", dst0)

NSTART = 12

V_CHK = 4
V_DK, V_DV = 5, 6
V_AK, V_AK8, V_AV0, V_AV1, V_AV80, V_AV81, V_LIN, V_P8W, V_OST = 7, 8, 9, 10, 11, 12, 13, 14, 15
V_L = 17
V_Q = 20; V_O = 68; V_S = 140; V_P = 176; V_P8 = 192; V_NM = 200; V_POOL = 212; V_T = 252
NPOOL = 10
def Qf(n, ks): return V_Q + (n * 4 + ks) * 4
def Oa(n, m): return V_O + (n * 8 + m) * 4 if n < 2 else V_O + 64 + m * 4
def Sa(n, kt): return V_S + (n * 4 + kt) * 4 if n < 2 else V_S + 32
def Pf(n, kk): return V_P + (n * 2 + kk) * 4
def NM(n): return V_NM + 4 * n
SEQ = [("K", 0)]
for j in range(7): SEQ += [("K", j + 1), ("V", j)]
SEQ += [("V", 7)]
POS = {t: i for i, t in enumerate(SEQ)}
def slot_of(t): return (POS[t] % 4) * SLOT
KD = E("KD", 3)

def kv_issue(tile, nxt):
    kind, i = tile
    sb = slot_of(tile)
    srd = SRD_K if kind == "K" else SRD_V
    voff = V_DK if kind == "K" else V_DV
    ops = []
    for kt in range(4):
        def f(p, kt=kt):
            p.s(f"s_add_u32 m0, s{S_M0KV}, {sb + kt * 2048}")
            p.s(f"s_add_u32 s{S_T0}, s{S_KVOFFN if nxt else S_KVOFF}, {i * 16384 + kt * 4096}")
            if "D" not in ABL: p.dma(voff, srd, f"s{S_T0}", (kind, i, nxt), "nt")
        ops.append(f)
    return ops

def q_pickup_ops():
    ops = [lambda p: p.v(f"v_lshl_add_u32 v{V_CHK}, s{S_W}, 13, v{V_LIN}", [V_CHK], [V_LIN])]
    for n in range(2):
        for ks in range(4):
            ops.append(lambda p, n=n, ks=ks: p.ds_read128(Qf(n, ks), V_CHK, MBOX - MISC + n * 4096 + ks * 1024))
    ops.append(lambda p: p.vop("v_add_u32", V_CHK, f"{MBOX - MISC + 32768}", V_LIN))
    for ks in range(4):
        ops.append(lambda p, ks=ks: p.ds_read128(Qf(2, ks), V_CHK, ks * 1024))
    return ops

def publish(p, sflag):
    p.vop("v_mov_b32", V_P8, f"s{S_NON}")
    p.vop("v_mov_b32", V_P8 + 1, f"s{S_NON+1}")
    p.s("s_mov_b64 exec, 1")
    p.store(V_P8, 2, V_OST, SRD_O, f"s{sflag}", 0, tag="flag", flags="sc1")
    p.s("s_mov_b64 exec, -1")

def a_prologue(name):
    p = Prog()
    a, b, c, d, H, U, VV, R8, PI, M, G, L, W = (F[k] for k in "a b c d H U VV R8 PI M G L W".split())
    p.s(f"s_or_b32 s{S_T0}, s2, s{S_W8}")
    p.s(f"s_cmp_lg_u32 s{S_T0}, 0")
    p.s(f"s_cbranch_scc1 {name}_nononce")
    p.s(f"s_memrealtime s[{S_NON}:{S_NON+1}]")
    p.s("s_waitcnt lgkmcnt(0)")
    p.s(f"s_or_b32 s{S_NON+1}, s{S_NON+1}, 0x80000000")
    p.raw(f"v_mov_b32 v{V_T}, s{S_NON}")
    p.raw(f"v_mov_b32 v{V_T+1}, s{S_NON+1}")
    p.raw(f"v_mov_b32 v{V_T+2}, 0")
    p.s("s_mov_b64 exec, 1")
    p.raw(f"buffer_store_dwordx2 v[{V_T}:{V_T+1}], v{V_T+2}, s[{SRD_DBG}:{SRD_DBG+3}], 0 offen sc1")
    p.s("s_mov_b64 exec, -1")
    p.label(f"{name}_nononce")
    p.vop("v_lshlrev_b32", a, "7", U)
    p.vop("v_lshl_add_u32", a, VV, "6", a)
    p.vop("v_lshl_add_u32", b, H, "3", R8)
    p.vop("v_lshl_add_u32", b, b, "8", a)
    p.vop("v_mul_u32_u24", c, "3", H)
    p.vop("v_xor_b32", c, c, PI)
    p.vop("v_lshl_add_u32", V_DK, c, "4", b)
    p.vop("v_lshrrev_b32", c, "2", R8)
    p.vop("v_lshlrev_b32", d, "1", c)
    p.vop("v_xor_b32", d, d, PI)
    p.vop("v_lshl_add_u32", V_DV, d, "4", b)
    p.s(f"s_lshl_b32 s{S_T0}, s{S_B}, 5")
    p.s(f"s_add_u32 s{S_T0}, s{S_T0}, s{S_H}")
    p.s(f"s_lshl_b32 s{S_KVOFFN}, s{S_T0}, 17")
    p.vop("v_lshrrev_b32", a, "3", M)
    p.vop("v_mul_u32_u24", c, "3", a)
    p.vop("v_xor_b32", c, c, G)
    p.vop("v_and_b32", b, "7", M)
    p.vop("v_lshlrev_b32", b, "6", b)
    p.vop("v_lshl_add_u32", b, c, "4", b)
    p.vop("v_lshl_add_u32", V_AK, a, "13", b)
    p.vop("v_lshl_add_u32", V_AK8, W, "11", V_AK)
    tr_addr(p, V_AV0, V_AV1, 0)
    p.vop("v_lshl_add_u32", V_AV80, W, "9", V_AV0)
    p.vop("v_lshl_add_u32", V_AV81, W, "9", V_AV1)
    p.vop("v_lshlrev_b32", V_OST, "4", L)
    p.vop("v_add_u32", V_LIN, f"{MISC}", V_OST)
    p.vop("v_lshl_add_u32", V_P8W, U, "10", V_LIN)
    p.vop("v_lshl_add_u32", V_P8W, H, "3", V_P8W)
    p.s(f"s_mov_b32 s{S_FLGN}, 0x40000000")
    p.s(f"s_setprio {E('APRIO', 0)}")
    KVAT = E("KVAT", 5)
    for k in range(NSTART):
        p.barrier()
        if k == 1: get_nonce(p, f"{name}_Anon", V_T)
        if KVAT <= k < KVAT + KD:
            for fn in kv_issue(SEQ[k - KVAT], True): fn(p)
    for fn in q_pickup_ops(): fn(p)
    p.wait_lgkm0()
    p.barrier()
    return p

def a_body(name):
    p = Prog()
    p.label(f"{name}_Aloop")
    p.s(f"s_mov_b32 s{S_KVOFF}, s{S_KVOFFN}")
    p.s(f"s_add_u32 s{S_KVOFFN}, s{S_KVOFF}, {8 << 17}")
    p.s(f"s_cmp_eq_u32 s{S_ITER}, 3")
    p.s(f"s_cselect_b32 s{S_KVOFFN}, 0x40000000, s{S_KVOFFN}")
    p.s(f"s_mul_i32 s{S_T0}, s{S_B}, 9")
    p.s(f"s_mul_i32 s{S_T1}, s{S_H}, 288")
    p.s(f"s_add_u32 s{S_T0}, s{S_T0}, s{S_T1}")
    p.s(f"s_lshl_b32 s{S_T1}, s{S_W}, 1")
    p.s(f"s_add_u32 s{S_OOFF}, s{S_T1}, s{S_T0}")
    p.s(f"s_lshl_b32 s{S_OOFF}, s{S_OOFF}, 12")
    p.s(f"s_add_u32 s{S_OOFF8}, s{S_T0}, 8")
    p.s(f"s_lshl_b32 s{S_OOFF8}, s{S_OOFF8}, 12")
    p.s(f"s_lshl_b32 s{S_T1}, s{S_W}, 10")
    p.s(f"s_add_u32 s{S_OOFF8}, s{S_OOFF8}, s{S_T1}")
    p.s(f"s_mov_b32 s{S_FLG}, s{S_FLGN}")
    p.s(f"s_lshl_b32 s{S_T0}, s{S_B}, 5")
    p.s(f"s_add_u32 s{S_T0}, s{S_T0}, s{S_H}")
    p.s(f"s_lshl_b32 s{S_T0}, s{S_T0}, 3")
    p.s(f"s_add_u32 s{S_FLGN}, s{S_T0}, {FLAGOFF}")
    p.s(f"s_cmp_eq_u32 s{S_W}, 0")
    p.s(f"s_cselect_b32 s{S_FLGN}, s{S_FLGN}, 0x40000000")
    p.s(f"s_add_u32 s{S_H}, s{S_H}, 8")
    sc = Sched(p, budget=E("ABUD", 12), late_extra=8)
    sc.group["dma"] = "vm"; sc.pace["vm"] = E("APACE", 8)
    AV = (V_AV0, V_AV1); AV8 = (V_AV80, V_AV81)
    pool_last = [None] * NPOOL; pool_i = [0]
    LEAD = 8
    frags = []
    def frag(tile, mk_reads, consumers):
        k = pool_i[0] % NPOOL; pool_i[0] += 1
        r = V_POOL + 4 * k
        war = pool_last[k]
        for (d, b, c, tag) in consumers: sc.mfma(d, r, b, c, tag)
        pool_last[k] = consumers[-1][3]
        frags.append((tile, mk_reads(r), consumers[0][3], war))
    def R128(d, a, off): return lambda p: p.ds_read128(d, a, off)
    def TR(d, a, off): return lambda p: p.ds_tr(d, a, off)
    for tile in SEQ:
        kind, i = tile
        sb = slot_of(tile)
        if kind == "K":
            def cinit(n): return NM(n) if i else None
            for ks in range(4):
                frag(tile, lambda r: [R128(r, V_AK8, sb + ks * 512)], [(Sa(2, 0), Qf(2, ks), Sa(2, 0) if ks else cinit(2), ("S", i, 2, 0, ks))])
            for kt in range(4):
                for ks in range(4):
                    cons = [(Sa(n, kt), Qf(n, ks), Sa(n, kt) if ks else cinit(n), ("S", i, n, kt, ks)) for n in range(2)]
                    if i == 0 and kt == 3: cons.append((V_T, Qf(2, ks), V_T if ks else None, ("S8ref", ks)))
                    frag(tile, lambda r: [R128(r, V_AK, sb + kt * 2048 + ks * 512)], cons)
        else:
            for kk in range(2):
                for m in range(8):
                    e, mp = m & 1, m >> 1
                    frag(tile, lambda r: [TR(r, AV[e], sb + (2 * kk) * 2048 + mp * 512), TR(r + 2, AV[e], sb + (2 * kk + 1) * 2048 + mp * 512)],
                         [(Oa(n, m), Pf(n, kk), Oa(n, m) if (i or kk) else None, ("PV", i, n, m, kk)) for n in range(2)])
                for e in range(2):
                    extra = [R128(V_P8 + 4 * kk, V_LIN, P8A - MISC + (i & 1) * 2048 + kk * 1024)] if e == 0 else []
                    frag(tile, lambda r: [TR(r, AV8[e], sb + (2 * kk) * 2048), TR(r + 2, AV8[e], sb + (2 * kk + 1) * 2048)] + extra,
                         [(Oa(2, e), V_P8 + 4 * kk, Oa(2, e) if (i or kk) else None, ("PV", i, 2, e, kk))])
    assert pool_i[0] % NPOOL == 0
    cur = None; lastrd = None; nfr = 0
    for (tile, reads, cons, war) in frags:
        if tile != cur:
            cur = tile; nfr = 0
            kind, i = tile; pos = POS[tile]
            aft = []
            if kind == "V": aft.append(("P8W", i))
            if tile == ("V", 7): aft.append(("STATW",))
            if lastrd is not None: aft.append(dict(tag=lastrd, delay=3))
            if pos >= 2: aft.append(("DMA", SEQ[pos - 2]))
            def bar(p, kind=kind, i=i, pos=pos):
                p.comment(f"---- step {kind}{i}")
                if 2 * pos == PUBBAR: p.wait_vm("st")
                p.wait_vm((kind, i, pos < KD), lgkm0=True)
                p.barrier()
                if 2 * pos == PUBBAR: publish(p, S_FLG)
                stamp(p, 2 * pos)
            sc.fill("rd", bar, 8, after=aft, before=cons, lead=LEAD + 2, tag=("BAR", tile))
            nt = pos + KD
            ops = kv_issue(SEQ[nt % 16], nt >= 16)
            for k, fn in enumerate(ops):
                sc.fill("dma", fn, 12, after=("BAR", tile), before=sc.m[min(sc.idx[cons] + 34, len(sc.m) - 1)][4], lead=80, tag=("DMA", tile) if k == 3 else None)
        if nfr == 10:
            def mid(p, pos=pos):
                p.barrier(); stamp(p, 2 * pos + 1)
            sc.fill("rd", mid, 4, before=cons, lead=LEAD)
        nfr += 1
        for k, fn in enumerate(reads):
            lastrd = ("RD", tile, len(sc.q.get("rd", [])))
            sc.fill("rd", fn, 4, ds=True, after=war if k == 0 else None, before=cons, lead=LEAD, tag=lastrd)
        if cons == ("PV", 6, 0, 5, 0):
            for k, fn in enumerate(q_pickup_ops()):
                sc.fill("rd", fn, 4, ds=True, after=("S", 7, 1, 3, 3) if k == 0 else None)

    def V(fn, after=None, before=None, cost=4, tag=None, lead=0): sc.fill("va", fn, cost, after=after, before=before, tag=tag, lead=lead)
    def block0_max(p):
        for n in range(3):
            regs = [Sa(n, kt) + r for kt in range(4) for r in range(4)] if n < 2 else [V_T + r for r in range(4)]
            m = NM(n)
            p.vop("v_max3_f32", m, regs[0], regs[1], regs[2])
            rest = regs[3:]
            while len(rest) >= 2:
                p.vop("v_max3_f32", m, m, rest[0], rest[1]); rest = rest[2:]
            if rest: p.vop("v_max_f32", m, m, rest[0])
        for sw in (p.swap32, p.swap16):
            for n in range(3): p.vop("v_mov_b32", NM(n) + 1, NM(n))
            for n in range(3): sw(NM(n), NM(n) + 1)
            for n in range(3): p.vop("v_max_f32", NM(n), NM(n), NM(n) + 1)
        for n in range(3):
            p.vop("v_sub_f32", NM(n), "0", NM(n))
            for r in range(1, 4): p.vop("v_mov_b32", NM(n) + r, NM(n))
        for n in (2, 0, 1):
            regs = [Sa(n, kt) + r for kt in range(4) for r in range(4)] if n < 2 else [Sa(2, 0) + r for r in range(4)]
            for r in regs: p.vop("v_add_f32", r, r, NM(n))
    for j in range(8):
        if j == 0: V(block0_max, after=("S8ref", 3), before=("S", 1, 2, 0, 0), cost=200)
        order = [(2, 0)] + [(n, kt) for kt in range(4) for n in range(2)]
        nxtS = lambda n, kt: ("S", j + 1, n, kt, 0) if j < 7 else None
        for (n, kt) in order:
            a = dict(tag=("S", j, n, kt, 3), delay=2) if j else None
            for r in range(4):
                reg = Sa(n, kt) + r
                V(lambda p, reg=reg: p.exp(reg, reg), after=a, cost=8)
            for r in range(4):
                reg = Sa(n, kt) + r
                if j == 0 and kt == 0 and r == 0: V(lambda p, reg=reg, n=n: p.vop("v_mov_b32", V_L + n, reg))
                else: V(lambda p, reg=reg, n=n: p.vop("v_add_f32", V_L + n, V_L + n, reg))
            if n == 2:
                V(lambda p: p.cvtpk(V_T, Sa(2, 0), Sa(2, 0) + 1))
                V(lambda p: p.cvtpk(V_T + 1, Sa(2, 0) + 2, Sa(2, 0) + 3), before=nxtS(2, 0))
                V(lambda p, j=j: p.ds_write(V_P8W, V_T, 2, P8A - MISC + (j & 1) * 2048), tag=("P8W", j))
                if j == 7:
                    V(lambda p: p.v(f"v_lshl_add_u32 v{V_T+2}, s{S_W}, 2, v{V_LIN}", [V_T + 2], [V_LIN]))
                    V(lambda p: p.ds_write(V_T + 2, V_L + 2, 1, STAT - MISC), tag=("STATW",))
            if j == 0 and n == 1:
                for n2 in range(2):
                    V(lambda p, n2=n2, kt=kt: p.cvtpk(Pf(n2, kt >> 1) + 2 * (kt & 1), Sa(n2, kt), Sa(n2, kt) + 1))
                    V(lambda p, n2=n2, kt=kt: p.cvtpk(Pf(n2, kt >> 1) + 2 * (kt & 1) + 1, Sa(n2, kt) + 2, Sa(n2, kt) + 3), before=nxtS(0, kt))
        if j:
            for kk in range(2):
                a = ("PV", j - 1, 1, 7, kk)
                for h in range(2):
                    kt = 2 * kk + h
                    for n in range(2):
                        bf = nxtS(0, kt) if j < 7 else ("PV", 7, 0, 0, kk)
                        V(lambda p, n=n, kk=kk, h=h, kt=kt: p.cvtpk(Pf(n, kk) + 2 * h, Sa(n, kt), Sa(n, kt) + 1), after=a)
                        V(lambda p, n=n, kk=kk, h=h, kt=kt: p.cvtpk(Pf(n, kk) + 2 * h + 1, Sa(n, kt) + 2, Sa(n, kt) + 3), before=bf, lead=2)
    sc.run()
    stamp(p, 32)
    p.ds_read128(V_T, V_LIN, STAT - MISC)
    p.vop("v_add_f32", V_T, V_T, V_T + 1); p.vop("v_add_f32", V_T + 2, V_T + 2, V_T + 3)
    p.vop("v_add_f32", V_L + 2, V_T, V_T + 2)
    for sw in (p.swap32, p.swap16):
        for n in range(3): p.vop("v_mov_b32", V_T + n, V_L + n)
        for n in range(3): sw(V_L + n, V_T + n)
        for n in range(3): p.vop("v_add_f32", V_L + n, V_L + n, V_T + n)
    for n in range(3): p.vop("v_rcp_f32", V_L + n, V_L + n, kind="trans")
    k = 0
    for n in range(3):
        for t in range(4 if n < 2 else 1):
            dst = V_S + 4 * k; k += 1
            s0 = Oa(n, 2 * t); s1 = Oa(n, 2 * t + 1)
            for r in range(4):
                p.vop("v_mul_f32", s0 + r, s0 + r, V_L + n)
                p.vop("v_mul_f32", s1 + r, s1 + r, V_L + n)
            p.cvtpk(dst, s0, s0 + 1); p.cvtpk(dst + 1, s0 + 2, s0 + 3)
            p.cvtpk(dst + 2, s1, s1 + 1); p.cvtpk(dst + 3, s1 + 2, s1 + 3)
            if n == 1 and t == 0: p.s(f"s_add_u32 s{S_OOFF}, s{S_OOFF}, 4096")
            if "O" not in ABL: p.store(dst, 4, V_OST, SRD_O, f"s{S_OOFF if n < 2 else S_OOFF8}", t * 1024, flags="sc1")
    stamp(p, 33)
    prof_dump(p, V_T, V_LIN, MISC, S_ITER)
    p.s(f"s_add_u32 s{S_ITER}, s{S_ITER}, 1")
    p.s(f"s_cmp_lt_u32 s{S_ITER}, 4")
    p.s(f"s_cbranch_scc1 {name}_Aloop")
    p.wait_all()
    p.barrier()
    publish(p, S_FLGN)
    p.raw("s_endpgm")
    return p

G_DW, G_DX, G_AW0, G_AW1, G_AX, G_LIN = 5, 6, 7, 8, 9, 10
G_DO, G_AO, G_OL, G_FA = 12, 13, 17, 18
G_OACC = 20
G_ACC = 116; G_WF = 188; G_XP = 204; G_NXP = 12
G_OB = 116
G_NB = E("GNB", 6)
G_OP = G_OB + 12 * G_NB
G_NOP = (252 - G_OP) // 4 // 8 * 8
G_PT = 252
NWO = 3
def GA(e, t): return G_ACC + (e * 9 + t) * 4
def OA(t, m): return G_OACC + (t * 8 + m) * 4

def gq_issue_w(i):
    sb = GW + (i % 3) * 16384
    ops = []
    for kt in range(4):
        def f(p, kt=kt):
            p.s(f"s_add_u32 m0, s{S_M0KV}, {sb + kt * 2048}")
            p.s(f"s_add_u32 s{S_T0}, s{S_KW}, {(32 * (kt >> 1) + 4 * (kt & 1)) * 8192}")
            if "W" not in ABL: p.dma(G_DW, SRD_W, f"s{S_T0}", ("W", i))
            if kt == 3:
                p.s(f"s_add_u32 s{S_KW}, s{S_KW}, {64 * 8192}")
                p.s(f"s_cmp_ge_u32 s{S_KW}, {640 * 8192}")
                p.s(f"s_cselect_b32 s{S_KW}, s{S_WOFF}, s{S_KW}")
        ops.append(f)
    return ops
def gq_issue_x(i):
    sb = XB + (i % 2) * XSLOT
    ops = []
    for k in range(4):
        def f(p, k=k):
            p.s(f"s_add_u32 m0, s{S_M0X}, {sb + k * 4096}")
            if k == 0: p.s(f"s_add_u32 s{S_KX8}, s{S_XOFF}, s{S_KX}")
            p.s(f"s_add_u32 s{S_T0}, s{S_KX8}, {k * 32 * 1280}")
            if "X" not in ABL: p.dma(G_DX, SRD_X, f"s{S_T0}", ("X", i))
        ops.append(f)
    def f(p):
        p.s(f"s_add_u32 m0, s{S_M0X8}, {sb}")
        p.s(f"s_add_u32 s{S_T0}, s{S_XOFF8}, s{S_KX}")
        p.s(f"s_mov_b64 exec, s[{S_XM}:{S_XM+1}]")
        if "X" not in ABL: p.dma(G_DX, SRD_X, f"s{S_T0}", ("X", i))
        p.s("s_mov_b64 exec, -1")
        p.s(f"s_add_u32 s{S_KX}, s{S_KX}, 128")
        p.s(f"s_cmp_ge_u32 s{S_KX}, 1280")
        p.s(f"s_cselect_b32 s{S_KX}, 0, s{S_KX}")
    ops.append(f)
    return ops
def gq_prefetch(p):
    p.s(f"s_mul_i32 s{S_KW}, s{S_ROTQ}, {64 * 8192}")
    p.s(f"s_add_u32 s{S_KW}, s{S_KW}, s{S_WOFF}")
    p.s(f"s_lshl_b32 s{S_KX}, s{S_ROTQ}, 7")
    for fn in gq_issue_x(0) + gq_issue_w(0) + gq_issue_w(1): fn(p)

def g_prologue(name):
    p = Prog()
    p.label(f"{name}_G")
    a, b, c, d, H, U, VV, R8, PI, M, G, L, W = (F[k] for k in "a b c d H U VV R8 PI M G L W".split())
    p.vop("v_lshlrev_b32", a, "7", U)
    p.vop("v_lshl_add_u32", a, VV, "6", a)
    p.vop("v_lshrrev_b32", c, "2", R8)
    p.vop("v_lshlrev_b32", d, "1", c)
    p.vop("v_xor_b32", d, d, PI)
    p.vop("v_lshlrev_b32", b, "4", H)
    p.vop("v_lshl_add_u32", b, c, "3", b)
    p.vop("v_and_b32", c, "3", R8)
    p.vop("v_add_u32", b, b, c)
    p.vop("v_lshl_add_u32", b, b, "13", a)
    p.vop("v_lshl_add_u32", G_DW, d, "4", b)
    p.s(f"s_movk_i32 s{S_T0}, 1280")
    p.vop("v_lshl_add_u32", b, H, "3", R8)
    p.vop("v_mul_lo_u32", b, b, f"s{S_T0}")
    p.vop("v_add_u32", G_DO, b, a)
    p.vop("v_lshl_add_u32", G_DO, d, "4", G_DO)
    p.vop("v_lshl_add_u32", b, VV, "6", b)
    p.vop("v_mul_u32_u24", c, "3", H)
    p.vop("v_xor_b32", c, c, PI)
    p.vop("v_lshl_add_u32", G_DX, c, "4", b)
    p.s(f"s_lshr_b32 s{S_T1}, s{S_W}, 1")
    p.s(f"s_and_b32 s{S_T0}, s{S_W}, 1")
    p.s(f"s_lshl_b32 s{S_M0X8}, s{S_T0}, 10")
    p.s(f"s_lshl_b32 s{S_M0X}, s{S_T1}, 11")
    p.s(f"s_add_u32 s{S_M0X}, s{S_M0X}, s{S_M0X8}")
    p.s(f"s_add_u32 s{S_M0X8}, s{S_M0X8}, 16384")
    p.s(f"s_mul_i32 s{S_XOFF8}, s{S_B}, {144 * 1280}")
    p.s(f"s_mul_i32 s{S_XOFF}, s{S_T1}, {16 * 1280}")
    p.s(f"s_add_u32 s{S_XOFF}, s{S_XOFF}, s{S_XOFF8}")
    p.s(f"s_add_u32 s{S_XOFF8}, s{S_XOFF8}, {128 * 1280}")
    p.s(f"s_cmp_eq_u32 s{S_T1}, 0")
    p.s(f"s_mov_b32 s{S_XM+1}, 0xffff0000")
    p.s(f"s_cselect_b32 s{S_XM}, 0xffff, s{S_XM+1}")
    p.s(f"s_mov_b32 s{S_XM+1}, s{S_XM}")
    p.s(f"s_lshl_b32 s{S_WOFF}, s{S_H}, 8")
    p.s(f"s_mov_b32 s{S_CS}, {f2u(CSCALE):#x}")
    p.s(f"s_lshr_b32 s{S_T0}, s2, 6")
    p.s(f"s_lshl_b32 s{S_T0}, s{S_T0}, 1")
    p.s(f"s_add_u32 s{S_T0}, s{S_T0}, s{S_H}")
    p.s(f"s_and_b32 s{S_T0}, s{S_T0}, 7")
    p.s(f"s_mul_i32 s{S_T0}, s{S_T0}, 5")
    p.s(f"s_lshr_b32 s{S_ROTQ}, s{S_T0}, 2")
    if not ROT: p.s(f"s_mov_b32 s{S_ROTQ}, 0")
    gq_prefetch(p)
    p.s(f"s_setprio {E('GPRIO', 0)}")
    tr_addr(p, G_AO, G_AO + 1, GW)
    p.vop("v_lshl_add_u32", G_AW0, W, "9", G_AO)
    p.vop("v_lshl_add_u32", G_AW1, W, "9", G_AO + 1)
    for e in range(2):
        p.vop("v_lshl_add_u32", G_AO + e, U, "12", G_AO + e)
        p.vop("v_lshl_add_u32", G_AO + e, U, "10", G_AO + e)
        p.vop("v_xor_b32", G_AO + 2 + e, "1024", G_AO + e)
    p.vop("v_lshrrev_b32", a, "3", M)
    p.vop("v_mul_u32_u24", c, "3", a)
    p.vop("v_xor_b32", c, c, G)
    p.vop("v_and_b32", b, "7", M)
    p.vop("v_lshlrev_b32", b, "6", b)
    p.vop("v_lshl_add_u32", b, c, "4", b)
    p.vop("v_lshl_add_u32", b, a, "10", b)
    p.vop("v_add_u32", G_AX, f"{XB}", b)
    p.vop("v_lshlrev_b32", G_OL, "4", L)
    p.vop("v_lshl_add_u32", G_LIN, W, "10", G_OL)
    p.vop("v_add_u32", G_LIN, f"{MBOX}", G_LIN)
    p.vop("v_and_b32", a, "7", L)
    p.vop("v_lshlrev_b32", G_FA, "3", a)
    p.s(f"s_lshr_b32 s{S_T0}, s2, 3")
    p.s(f"s_mul_i32 s{S_R}, s{S_T0}, 52")
    p.s(f"s_lshr_b32 s{S_R}, s{S_R}, 8")
    p.s(f"s_mul_i32 s{S_C}, s{S_R}, 5")
    p.s(f"s_sub_u32 s{S_C}, s{S_T0}, s{S_C}")
    p.s(f"s_mul_i32 s{S_T0}, s{S_R}, 43")
    p.s(f"s_mul_i32 s{S_T1}, s{S_C}, 51")
    p.s(f"s_add_u32 s{S_T0}, s{S_T0}, s{S_T1}")
    p.s(f"s_bfe_u32 s{S_ROTO}, s{S_T0}, 0x40004")
    if not ROT: p.s(f"s_mov_b32 s{S_ROTO}, 0")
    p.s(f"s_and_b32 s{S_T0}, s2, 7")
    p.s(f"s_mul_i32 s{S_T0}, s{S_T0}, 6")
    p.s(f"s_add_u32 s{S_R}, s{S_R}, s{S_T0}")
    p.s(f"s_lshl_b32 s{S_WOO}, s{S_C}, 8")
    p.s(f"s_mul_i32 s{S_T0}, s{S_R}, 6")
    p.s(f"s_and_b32 s{S_T1}, s{S_W}, 1")
    p.s(f"s_mul_i32 s{S_T1}, s{S_T1}, 3")
    p.s(f"s_add_u32 s{S_T0}, s{S_T0}, s{S_T1}")
    p.s(f"s_mul_i32 s{S_OUT}, s{S_T0}, {16 * 1280}")
    p.s(f"s_add_u32 s{S_OUT}, s{S_OUT}, s{S_WOO}")
    p.s(f"s_lshr_b32 s{S_T1}, s{S_W}, 1")
    p.s(f"s_lshl_b32 s{S_OB}, s{S_T1}, 7")
    p.s(f"s_add_u32 s{S_OUT}, s{S_OUT}, s{S_OB}")
    p.s(f"s_lshl_b32 s{S_OB}, s{S_T0}, 12")
    p.s(f"s_lshl_b32 s{S_T1}, s{S_T1}, 10")
    p.s(f"s_add_u32 s{S_OB}, s{S_OB}, s{S_T1}")
    p.s(f"s_mul_i32 s{S_T0}, s{S_T0}, 7282")
    p.s(f"s_lshr_b32 s{S_T0}, s{S_T0}, 16")
    p.s(f"s_lshl_b32 s{S_T0}, s{S_T0}, 8")
    p.s(f"s_add_u32 s{S_FB}, s{S_T0}, {FLAGOFF}")
    for r in range(96): p.vop("v_mov_b32", G_OACC + r, "0")
    return p

def g_q(name):
    p = Prog()
    p.label(f"{name}_Gloop")
    p.s(f"s_cmp_lt_u32 s{S_ITER}, 4")
    p.s(f"s_cbranch_scc1 {name}_Gq")
    p.s(f"s_cmp_eq_u32 s{S_ITER}, 5")
    p.s(f"s_cbranch_scc1 {name}_Gqdone")
    for k in range(E("P3IDLE", 5)): p.barrier()
    p.s(f"s_branch {name}_Gqdone")
    p.label(f"{name}_Gq")
    stamp(p, 0)
    sc = Sched(p, budget=E("GBUD", 8), late_extra=8)
    sc.group["dma"] = "vm"; sc.pace["vm"] = E("QPACE", 3)
    AW = (G_AW0, G_AW1)
    xl = [None] * G_NXP; xi = [0]; wl = [None, None]
    LEAD = 8; NS = 10
    lastrd = None
    for i in range(NS):
        wsb = (i % 3) * 16384; xsb = (i % 2) * XSLOT
        for kh in range(2):
            wb = G_WF + 8 * kh
            plan = []
            for t in range(9):
                k = xi[0] % G_NXP; xi[0] += 1
                r = G_XP + 4 * k
                war = xl[k]
                for e in range(2):
                    sc.mfma(GA(e, t), wb + 4 * e, r, GA(e, t) if (i or kh) else None, ("Q", i, kh, t, e))
                xl[k] = ("Q", i, kh, t, 1)
                plan.append((r, t, war))
            cons = ("Q", i, kh, 0, 0)
            if kh == 0:
                def bar(p, i=i):
                    p.comment(f"---- G q step {i}")
                    p.wait_vm(("W", i)); p.wait_vm(("X", i), lgkm0=True)
                    p.barrier()
                aft = [dict(tag=lastrd, delay=3)] if lastrd else []
                if i: aft.append(("DMA", i - 1))
                sc.fill("rd", bar, 8, after=aft, before=cons, lead=LEAD + 6, tag=("BAR", i))
                ops = (gq_issue_x(i + 1) if i + 1 < NS else []) + (gq_issue_w(i + 2) if i + 2 < NS else [])
                if not ops: ops = [lambda p: None]
                for k, fn in enumerate(ops):
                    sc.fill("dma", fn, 8, after=("BAR", i), before=("Q", i, 0, 8, 1), lead=60, tag=("DMA", i) if k == len(ops) - 1 else None)
            for e in range(2):
                sc.fill("rd", lambda p, e=e, wb=wb, kh=kh, wsb=wsb: p.ds_tr(wb + 4 * e, AW[e], wsb + (2 * kh) * 2048), 4, ds=True, after=wl[kh] if e == 0 else None, before=cons, lead=LEAD)
                sc.fill("rd", lambda p, e=e, wb=wb, kh=kh, wsb=wsb: p.ds_tr(wb + 4 * e + 2, AW[e], wsb + (2 * kh + 1) * 2048), 4, ds=True, before=cons, lead=LEAD)
            wl[kh] = ("Q", i, kh, 8, 1)
            for (r, t, war) in plan:
                lastrd = ("RD", i, kh, t)
                sc.fill("rd", lambda p, r=r, t=t, kh=kh, xsb=xsb: p.ds_read128(r, G_AX, xsb + t * 2048 + kh * 512), 4, ds=True, after=war, before=("Q", i, kh, t, 0), lead=LEAD + 8, tag=lastrd)
    assert xi[0] % G_NXP == 0
    def bar10(p):
        p.wait_lgkm0(); p.barrier()
    sc.fill("rd", bar10, 8, after=dict(tag=lastrd, delay=3))
    sc.run()
    stamp(p, 1)
    p.s(f"s_add_u32 s{S_WOFF}, s{S_WOFF}, {8 * 256}")
    for t in range(9):
        dst = G_XP + 4 * t
        s0, s1 = GA(0, t), GA(1, t)
        for r in range(4):
            p.vop("v_mul_f32", s0 + r, f"s{S_CS}", s0 + r)
            p.vop("v_mul_f32", s1 + r, f"s{S_CS}", s1 + r)
        p.cvtpk(dst, s0, s0 + 1); p.cvtpk(dst + 1, s0 + 2, s0 + 3)
        p.cvtpk(dst + 2, s1, s1 + 1); p.cvtpk(dst + 3, s1 + 2, s1 + 3)
    for t in range(9):
        dst = G_XP + 4 * t
        p.swap32(dst, dst + 2); p.swap32(dst + 1, dst + 3)
        p.swap16(dst, dst + 2); p.swap16(dst + 1, dst + 3)
        p.ds_write(G_LIN, dst, 4, t * 4096)
    p.wait_lgkm0()
    stamp(p, 2)
    p.label(f"{name}_Gqdone")
    return p

def go_issue_w(s_):
    sb = GW + (s_ % NWO) * 16384
    ops = []
    for kt in range(4):
        def f(p, kt=kt):
            p.s(f"s_add_u32 m0, s{S_M0KV}, {sb + kt * 2048}")
            if kt == 0:
                p.s(f"s_mul_i32 s{S_KWB}, s{S_KWO}, {64 * 1280}")
                p.s(f"s_add_u32 s{S_KWB}, s{S_KWB}, s{S_WOO}")
                p.s(f"s_add_u32 s{S_KWO}, s{S_KWO}, 1")
                p.s(f"s_and_b32 s{S_KWO}, s{S_KWO}, 15")
            p.s(f"s_add_u32 s{S_T0}, s{S_KWB}, {16 * kt * 1280}")
            if "V" not in ABL: p.dma(G_DO, SRD_WO, f"s{S_T0}", ("WO", s_))
        ops.append(f)
    return ops
def go_issue_b(s_):
    ops = []
    for t in range(3):
        def f(p, t=t):
            if t == 0:
                p.s(f"s_lshr_b32 s{S_KBB}, s{S_KB}, 1")
                p.s(f"s_mul_i32 s{S_KBB}, s{S_KBB}, {288 * 4096}")
                p.s(f"s_and_b32 s{S_T0}, s{S_KB}, 1")
                p.s(f"s_lshl_b32 s{S_T0}, s{S_T0}, 11")
                p.s(f"s_add_u32 s{S_KBB}, s{S_KBB}, s{S_T0}")
                p.s(f"s_add_u32 s{S_KBB}, s{S_KBB}, s{S_OB}")
                p.s(f"s_add_u32 s{S_KB}, s{S_KB}, 1")
                p.s(f"s_and_b32 s{S_KB}, s{S_KB}, 15")
            p.s(f"s_add_u32 s{S_T0}, s{S_KBB}, {t * 4096}")
            if "B" not in ABL: p.load4(G_OB + ((s_ % G_NB) * 3 + t) * 4, G_OL, SRD_O, f"s{S_T0}", 0, ("OB", s_), "sc1")
        ops.append(f)
    return ops

NWGO = 0 if "N" in ABL else 240
def g_o(name):
    p = Prog()
    p.s(f"s_cmp_lg_u32 s{S_ITER}, 0")
    p.s(f"s_cbranch_scc1 {name}_Gno0")
    p.barrier()
    get_nonce(p, f"{name}_Gnon", G_PT)
    p.barrier()
    p.s(f"s_branch {name}_Gpre")
    p.label(f"{name}_Gno0")
    p.s(f"s_cmp_lt_u32 s{S_ITER}, 2")
    p.s(f"s_cbranch_scc1 {name}_Goidle")
    p.s(f"s_cmp_lt_u32 s2, {NWGO}")
    p.s(f"s_cbranch_scc1 {name}_Godo")
    p.s(f"s_cmp_eq_u32 s{S_ITER}, 5")
    p.s(f"s_cbranch_scc1 {name}_end")
    p.label(f"{name}_Goidle")
    for k in range(18): p.barrier()
    p.s(f"s_branch {name}_Godone")
    p.label(f"{name}_Godo")
    stamp(p, 3)
    NS = 16; PW = NWO - 1; PB = G_NB - 1
    p.s(f"s_mov_b32 s{S_KWO}, s{S_ROTO}")
    p.s(f"s_mov_b32 s{S_KB}, s{S_ROTO}")
    T = G_PT
    p.label(f"{name}_Gpoll")
    p.raw(f"buffer_load_dwordx2 v[{T}:{T+1}], v{G_FA}, s[{SRD_O}:{SRD_O+3}], s{S_FB} offen sc1")
    p.wait_all()
    p.raw(f"v_cmp_ne_u32 vcc, s{S_NON}, v{T}")
    p.raw(f"v_cmp_ne_u32 s[56:57], s{S_NON+1}, v{T+1}")
    p.s(f"s_or_b64 vcc, vcc, s[56:57]")
    p.s(f"s_cbranch_scc0 {name}_Gready")
    p.s(f"s_sub_u32 s{S_SPIN}, s{S_SPIN}, 16")
    p.s(f"s_cbranch_scc1 {name}_Gready")
    p.s("s_sleep 4")
    p.s(f"s_branch {name}_Gpoll")
    p.label(f"{name}_Gready")
    stamp(p, 4)
    PB0 = E("PB0", 2)
    for fn in go_issue_w(0) + go_issue_b(0): fn(p)
    p.barrier()
    for fn in go_issue_w(1) + go_issue_b(1): fn(p)
    sc = Sched(p, budget=E("GBUD", 8), late_extra=8)
    sc.group["dma"] = "vm"; sc.group["dmb"] = "vm"; sc.pace["vm"] = E("OPACE", 3)
    LEAD = 8
    for i in range(NS):
        for m in range(8):
            r = G_OP + 4 * ((i * 8 + m) % G_NOP)
            for t in range(3):
                sc.mfma(OA(t, m), r, G_OB + ((i % G_NB) * 3 + t) * 4, OA(t, m), ("O", i, m, t))
    lastrd = None
    for i in range(NS):
        wsb = (i % NWO) * 16384
        cons = ("O", i, 0, 0)
        def bar(p, i=i):
            p.comment(f"---- G o step {i}")
            p.wait_vm(("WO", i), lgkm0=True)
            p.barrier()
        aft = [dict(tag=lastrd, delay=3)] if lastrd else []
        if i >= 1 and i - 1 + PW < NS: aft.append(("DMA", i - 1))
        sc.fill("rd", bar, 8, after=aft, before=cons, lead=LEAD + 12, tag=("BAR", i))
        ops = go_issue_w(i + PW) if i + PW < NS else []
        for k, fn in enumerate(ops):
            sc.fill("dma", fn, 8, after=("BAR", i), before=sc.m[min(sc.idx[cons] + 20, len(sc.m) - 1)][4], lead=60 - 4 * k, tag=("DMA", i) if k == 3 else None)
        for m in range(8):
            r = G_OP + 4 * ((i * 8 + m) % G_NOP)
            g = i * 8 + m - G_NOP
            war = ("O", g // 8, g % 8, 2) if g >= 0 else None
            e, mp = m & 1, m >> 1
            ad = G_AO + 2 * (mp >> 1) + e
            off = wsb + (mp & 1) * 512
            sc.fill("rd", lambda p, r=r, ad=ad, off=off: p.ds_tr(r, ad, off), 4, ds=True, after=war, before=("O", i, m, 0), lead=LEAD + 8)
            lastrd = ("RD", i, m)
            sc.fill("rd", lambda p, r=r, ad=ad, off=off: p.ds_tr(r + 2, ad, off + 2048), 4, ds=True, before=("O", i, m, 0), lead=LEAD + 8, tag=lastrd)
    for s_ in range(2, NS):
        prev = s_ - G_NB
        aft = dict(tag=("O", prev, 7, 2), delay=1) if prev >= 0 else None
        for k, fn in enumerate(go_issue_b(s_)):
            sc.fill("dmb", fn, 8, after=aft if k == 0 else None, before=("O", s_, 0, 0), lead=24 * E("BLD", 3) - 6 * k)
    def barl(p):
        p.wait_lgkm0(); p.barrier()
    sc.fill("rd", barl, 8, after=dict(tag=lastrd, delay=3))
    sc.run()
    stamp(p, 5)
    p.s(f"s_add_u32 s{S_WOO}, s{S_WOO}, {1024 * 1280}")
    p.s(f"s_add_u32 s{S_OB}, s{S_OB}, {8 * 288 * 4096}")
    p.s(f"s_add_u32 s{S_FB}, s{S_FB}, 64")
    p.s(f"s_cmp_eq_u32 s{S_ITER}, 5")
    p.s(f"s_cbranch_scc1 {name}_Gfinal")
    p.label(f"{name}_Godone")
    return p

def g_tail(name):
    p = Prog()
    if PROF:
        p.s(f"s_sub_u32 s{S_T1}, s{S_ITER}, 1")
        prof_dump(p, G_PT, G_OL, 0, S_T1)
    p.barrier(); p.barrier()
    p.s(f"s_cmp_lt_u32 s{S_ITER}, 3")
    p.s(f"s_cbranch_scc1 {name}_Gpre1")
    p.barrier()
    p.s(f"s_cmp_eq_u32 s{S_ITER}, 3")
    p.s(f"s_cbranch_scc1 {name}_Gnext")
    for k in range(11 - E("P3IDLE", 5) + 1): p.barrier()
    p.s(f"s_branch {name}_Gnext")
    p.label(f"{name}_Gpre1")
    p2 = Prog()
    gq_prefetch(p2)
    p2.barrier()
    p2.s(f"s_branch {name}_Gnext")
    p3 = Prog()
    p3.label(f"{name}_Gpre")
    gq_prefetch(p3)
    p3.label(f"{name}_Gnext")
    p3.s(f"s_add_u32 s{S_ITER}, s{S_ITER}, 1")
    p3.s(f"s_branch {name}_Gloop")
    return p, p2, p3

def g_final(name):
    p = Prog()
    p.label(f"{name}_Gfinal")
    A1, A2, L, A3 = G_OP, G_OP + 1, G_OP + 2, G_OP + 3
    p.s(f"s_mul_i32 s{S_T0}, s{S_W}, 12288")
    p.s(f"s_add_u32 s{S_T0}, s{S_T0}, {GW}")
    p.vop("v_add_u32", A1, f"s{S_T0}", G_OL)
    p.s(f"s_xor_b32 s{S_T1}, s{S_W}, 2")
    p.s(f"s_mul_i32 s{S_T1}, s{S_T1}, 12288")
    p.s(f"s_add_u32 s{S_T1}, s{S_T1}, {GW}")
    p.vop("v_add_u32", A2, f"s{S_T1}", G_OL)
    for t in range(3):
        for m in range(4):
            p.ds_write(A1, OA(t, 4 + m), 4, (t * 4 + m) * 1024)
    p.vop("v_lshrrev_b32", L, "4", G_OL)
    p.vop("v_and_b32", A3, "15", L)
    p.s(f"s_movk_i32 s{S_T0}, 1280")
    p.vop("v_mul_lo_u32", A3, A3, f"s{S_T0}")
    p.vop("v_lshrrev_b32", L, "4", L)
    p.vop("v_lshl_add_u32", A3, L, "4", A3)
    p.wait_lgkm0()
    p.barrier()
    for t in range(3):
        for m in range(4):
            p.ds_read128(G_OB + (t * 4 + m) * 4, A2, (t * 4 + m) * 1024)
    for t in range(3):
        for pr in range(2):
            dst = G_OB + 48 + (t * 2 + pr) * 4
            for e in range(2):
                m = 2 * pr + e
                for r in range(4): p.vop("v_add_f32", OA(t, m) + r, OA(t, m) + r, G_OB + (t * 4 + m) * 4 + r)
            s0, s1 = OA(t, 2 * pr), OA(t, 2 * pr + 1)
            p.cvtpk(dst, s0, s0 + 1); p.cvtpk(dst + 1, s0 + 2, s0 + 3)
            p.cvtpk(dst + 2, s1, s1 + 1); p.cvtpk(dst + 3, s1 + 2, s1 + 3)
            p.swap32(dst, dst + 2); p.swap32(dst + 1, dst + 3)
            p.swap16(dst, dst + 2); p.swap16(dst + 1, dst + 3)
            p.s(f"s_add_u32 s{S_T0}, s{S_OUT}, {t * 16 * 1280}")
            p.store(dst, 4, A3, SRD_OUT, f"s{S_T0}", pr * 64)
    if PROF:
        stamp(p, 6)
        p.s(f"s_mov_b32 s{S_T1}, 3")
        prof_dump(p, G_PT, G_OL, 0, S_T1)
    p.label(f"{name}_end")
    p.raw("s_endpgm")
    return p

def gen(name):
    com = common_prologue(name)
    ap, ab = a_prologue(name), a_body(name)
    gp, gq, go, (t1, t2, t3), gf = g_prologue(name), g_q(name), g_o(name), g_tail(name), g_final(name)
    l0, _ = finalize([(com, 1)])
    la, sa = finalize([(ap, 1), (ab, 2)])
    lg, sg = finalize([(gp, 1), (gq, 1), (go, 1), (t1, 1), (t2, 1), (t3, 1), (gf, 1)],
                      sim=[(gp, 1), (gq, 1), (t3, 1), (gq, 1), (t1, 1), (t2, 1), (gq, 1), (go, 1), (t1, 1), (t2, 1), (gq, 1), (go, 1), (t1, 1), (go, 1), (t1, 1), (go, 1), (gf, 1)])
    return [f".globl {name}", ".p2align 8", f".type {name},@function", f"{name}:"] + l0 + la + lg, (sa, sg)
```

```python
import sys, importlib
from asmlib import *
import k1
HDR = open("standalone__gqa_block_cached__near_ridge.s.ref").read().split("\n")
hdr = [l for l in HDR if l.startswith(";") and "@launch" not in l and "Override" not in l and "grid=ceil" not in l]
def build(which, path):
    out = list(hdr)
    body = []; kds = []
    if "1" in which:
        out.append(f"; @launch kernel=attn_kernel grid=(512,1,1) block=(256,1,1) lds={k1.LDS_BYTES}")
        l, st = k1.gen("attn_kernel"); body += l; kds += kd("attn_kernel", 256, 64); print("k1", st, file=sys.stderr)
    if "b" in which:
        import k1b
        out.append(f"; @launch kernel=attn_kernel grid=(512,1,1) block=(256,1,1) lds={k1b.LDS_BYTES}")
        l, st = k1b.gen("attn_kernel"); body += l; kds += kd("attn_kernel", 256, 64); print("k1b", st, file=sys.stderr)
    if "3" in which:
        import b3
        out.append(f"; @launch kernel=gqa_kernel grid=({b3.NWG},1,1) block=(256,1,1) lds={b3.LDS_BYTES}")
        l, st = b3.gen("gqa_kernel"); body += l; kds += kd("gqa_kernel", 256, 96); print("b3", st, file=sys.stderr)
    if "x" in which:
        import lx
        out.append(f"; @launch kernel=gqa_kernel grid=({lx.NWG},1,1) block=(512,1,1) lds={lx.LDS_BYTES}")
        l, st = lx.gen("gqa_kernel"); body += l; kds += kd("gqa_kernel", 256, 96); print("lx", st, file=sys.stderr)
    if "f" in which:
        import fk
        out.append(f"; @launch kernel=fused_kernel grid=({fk.NWG},1,1) block=(512,1,1) lds={fk.LDS_BYTES}")
        l, st = fk.gen("fused_kernel"); body += l; kds += kd("fused_kernel", 256, 96); print("fk", st, file=sys.stderr)
    if "2" in which:
        import k2
        out.append(f"; @launch kernel=oproj_kernel grid=({k2.NWG},1,1) block=(256,1,1) lds={k2.LDS_BYTES}")
        l, st = k2.gen("oproj_kernel"); body += l; kds += kd("oproj_kernel", k2.NVGPR, 64, 256); print("k2", st, file=sys.stderr)
    out += ['.amdgcn_target "amdgcn-amd-amdhsa--gfx950"', ".text"] + body + ['.section .rodata,"a"'] + kds
    open(path, "w").write("\n".join(out) + "\n")
if __name__ == "__main__":
    build(sys.argv[1], sys.argv[2])
```

```python
import re

def vr(base, n=1):
    p = "v"
    if base >= 256:
        p = "a"; base -= 256
    return f"{p}{base}" if n == 1 else f"{p}[{base}:{base+n-1}]"
def sr(base, n=1):
    return f"s{base}" if n == 1 else f"s[{base}:{base+n-1}]"
def R(base, n=1):
    return set(range(base, base + n))

class Ins:
    __slots__ = ("text", "kind", "rd", "wr", "tag", "extra", "srcc", "wait_id")
    def __init__(self, text, kind, rd=(), wr=(), tag=None, extra=None, srcc=()):
        self.text = text; self.kind = kind
        self.rd = set(rd); self.wr = set(wr); self.tag = tag; self.extra = extra
        self.srcc = set(srcc); self.wait_id = None

class Prog:
    def __init__(self):
        self.ins = []
    def add(self, i):
        self.ins.append(i); return i
    def raw(self, text, kind="salu"):
        return self.add(Ins(text, kind))
    def label(self, name):
        return self.add(Ins(name + ":", "label"))
    def comment(self, t):
        return self.add(Ins("; " + t, "label"))
    def s(self, text):
        return self.add(Ins(text, "salu"))
    def nop(self, n):
        return self.add(Ins(f"s_nop {n}", "nop", extra=n + 1))
    def v(self, text, wr=(), rd=(), kind="valu"):
        return self.add(Ins(text, kind, rd, wr))
    def vop(self, op, d, *srcs, kind="valu"):
        rd = [x for x in srcs if isinstance(x, int)]
        t = ", ".join(f"v{x}" if isinstance(x, int) else x for x in srcs)
        return self.add(Ins(f"{op} v{d}, {t}", kind, rd, [d]))
    def exp(self, d, a):
        return self.vop("v_exp_f32", d, a, kind="trans")
    def cvtpk(self, d, a, b):
        return self.vop("v_cvt_pk_bf16_f32", d, a, b)
    def swap32(self, a, b):
        return self.add(Ins(f"v_permlane32_swap_b32 v{a}, v{b}", "perm", [a, b], [a, b]))
    def swap16(self, a, b):
        return self.add(Ins(f"v_permlane16_swap_b32 v{a}, v{b}", "perm", [a, b], [a, b]))
    def mfma(self, d, a, b, c):
        ct = "0" if c is None else vr(c, 4)
        rd = R(a, 4) | R(b, 4)
        srcc = set() if c is None else R(c, 4)
        return self.add(Ins(f"v_mfma_f32_16x16x32_bf16 {vr(d,4)}, {vr(a,4)}, {vr(b,4)}, {ct}", "mfma", rd | srcc, R(d, 4), extra=(d, c), srcc=srcc))
    def ds_read128(self, d, addr, off):
        assert 0 <= off < 65536, off
        return self.add(Ins(f"ds_read_b128 {vr(d,4)}, v{addr} offset:{off}", "dsr", [addr], R(d, 4)))
    def ds_read64(self, d, addr, off):
        assert 0 <= off < 65536, off
        return self.add(Ins(f"ds_read_b64 {vr(d,2)}, v{addr} offset:{off}", "dsr", [addr], R(d, 2)))
    def ds_read32(self, d, addr, off):
        assert 0 <= off < 65536, off
        return self.add(Ins(f"ds_read_b32 v{d}, v{addr} offset:{off}", "dsr", [addr], [d]))
    def ds_tr(self, d, addr, off):
        assert 0 <= off < 65536, off
        return self.add(Ins(f"ds_read_b64_tr_b16 {vr(d,2)}, v{addr} offset:{off}", "dsr", [addr], R(d, 2)))
    def ds_write(self, addr, src, n, off):
        assert 0 <= off < 65536, off
        op = {1: "ds_write_b32", 2: "ds_write_b64", 4: "ds_write_b128"}[n]
        return self.add(Ins(f"{op} v{addr}, {vr(src,n)} offset:{off}", "dsw", {addr} | R(src, n), []))
    def dma(self, voff, srd, soff, tag, flags=""):
        return self.add(Ins(f"buffer_load_dwordx4 v{voff}, {sr(srd,4)}, {soff} offen {flags} lds".replace("  ", " "), "vm", [voff], [], tag=tag))
    def dmao(self, voff, srd, soff, off, tag, flags=""):
        return self.add(Ins(f"buffer_load_dwordx4 v{voff}, {sr(srd,4)}, {soff} offen offset:{off} {flags} lds".replace("  ", " "), "vm", [voff], [], tag=tag))
    def ar(self, d, a):
        return self.add(Ins(f"v_accvgpr_read_b32 v{d}, a{a-256}", "valu", [a], [d]))
    def aw(self, a, v):
        return self.add(Ins(f"v_accvgpr_write_b32 a{a-256}, {'v%d' % v if isinstance(v, int) else v}", "valu", [v] if isinstance(v, int) else [], [a]))
    def amov(self, d, a):
        return self.add(Ins(f"v_accvgpr_mov_b32 a{d-256}, a{a-256}", "valu", [a], [d]))
    def pkmul(self, d, a, b):
        bt = f"v[{b}:{b+1}]" if isinstance(b, int) else b
        return self.add(Ins(f"v_pk_mul_f32 v[{d}:{d+1}], v[{a}:{a+1}], {bt}", "valu", R(a, 2) | (R(b, 2) if isinstance(b, int) else set()), R(d, 2)))
    def load4(self, d, voff, srd, soff, off, tag, flags=""):
        return self.add(Ins(f"buffer_load_dwordx4 {vr(d,4)}, v{voff}, {sr(srd,4)}, {soff} offen offset:{off} {flags}".strip(), "vml", [voff], R(d, 4), tag=tag))
    def load2(self, d, voff, srd, soff, off, tag, flags=""):
        return self.add(Ins(f"buffer_load_dwordx2 {vr(d,2)}, v{voff}, {sr(srd,4)}, {soff} offen offset:{off} {flags}".strip(), "vml", [voff], R(d, 2), tag=tag))
    def store(self, src, n, voff, srd, soff, off, tag="st", flags=""):
        op = {1: "buffer_store_dword", 2: "buffer_store_dwordx2", 4: "buffer_store_dwordx4"}[n]
        return self.add(Ins(f"{op} {vr(src,n)}, v{voff}, {sr(srd,4)}, {soff} offen offset:{off} {flags}".strip(), "vms", {voff} | R(src, n), [], tag=tag, extra=n))
    def wait_vm(self, tag, lgkm0=False):
        return self.add(Ins("", "waitvm", tag=tag, extra=lgkm0))
    def wait_all(self):
        return self.add(Ins("s_waitcnt vmcnt(0) lgkmcnt(0)", "waitall"))
    def wait_lgkm0(self):
        return self.add(Ins("s_waitcnt lgkmcnt(0)", "waitlgkm0"))
    def barrier(self):
        return self.add(Ins("s_barrier", "barrier"))

VALU_KINDS = ("valu", "trans", "perm")
import os
COALESCE = int(os.environ.get("COAL", "14"))
HOIST = int(os.environ.get("HOIST", "1"))

def finalize(segments, sim=None, sims=None):
    need_lgkm = {}
    need_vm = {}
    need_nop = {}
    sims = sims or [sim or segments]
    flat = []
    for sm in sims: flat += [(None, 0)] + list(sm)
    for _pass in range(4):
        changed = False
        for prog, rep in flat:
            if prog is None:
                lg = []
                vm = []
                hist = []
                t = 0
            for _r in range(rep):
                for ins in prog.ins:
                    k = ins.kind
                    if k == "label":
                        continue
                    key = id(ins)
                    touched = ins.rd | ins.wr
                    n = None
                    for idx in range(len(lg) - 1, -1, -1):
                        if lg[idx][0] & touched:
                            n = len(lg) - 1 - idx; break
                    if n is not None:
                        n = min(n, sum(1 for x in lg if x[1] > t - COALESCE))
                        n = min(n, 15)
                        if key not in need_lgkm or need_lgkm[key] > n:
                            need_lgkm[key] = n; changed = True
                    n = None
                    for idx in range(len(vm) - 1, -1, -1):
                        if vm[idx][1] & touched:
                            n = len(vm) - 1 - idx; break
                    if k == "waitvm":
                        for idx in range(len(vm) - 1, -1, -1):
                            if vm[idx][0] == ins.tag or (isinstance(ins.tag, list) and vm[idx][0] in ins.tag):
                                n = len(vm) - 1 - idx; break
                    if n is not None:
                        n = min(n, 63)
                        if key not in need_vm or need_vm[key] > n:
                            need_vm[key] = n; changed = True
                    has_wait = False
                    if key in need_lgkm:
                        nn = need_lgkm[key]
                        if len(lg) > nn: lg = lg[len(lg) - nn:] if nn else []
                        has_wait = True
                    if key in need_vm:
                        nn = need_vm[key]
                        if len(vm) > nn: vm = vm[len(vm) - nn:] if nn else []
                        has_wait = True
                    if k == "waitvm":
                        if ins.extra: lg = []
                        t += 1
                        continue
                    if has_wait: t += 1
                    if k == "waitvmn" and len(vm) > ins.extra: vm = vm[len(vm) - ins.extra:] if ins.extra else []
                    if k == "waitall": lg = []; vm = []
                    if k == "waitlgkm0": lg = []
                    req = 0
                    for (p, tp) in hist:
                        dist = t - tp - 1
                        need = 0
                        pk = p.kind
                        if pk in VALU_KINDS:
                            if k == "mfma" and (p.wr & ins.rd): need = 2
                            if k == "perm" and (p.wr & ins.rd): need = max(need, 2)
                            if k == "dpp" and (p.wr & ins.rd): need = max(need, 2)
                            if k == "rfl" and (p.wr & ins.rd): need = max(need, 1)
                            if pk == "trans" and k in ("valu", "perm", "mfma") and (p.wr & ins.rd): need = max(need, 1)
                        elif pk == "mfma":
                            if k == "mfma":
                                ab = ins.rd - ins.srcc
                                if p.wr & ab: need = 8
                                elif p.wr & ins.srcc:
                                    need = 0 if (ins.extra[1] == p.extra[0]) else 6
                                elif p.wr & ins.wr: need = 0
                            else:
                                if p.wr & (ins.rd | ins.wr): need = 8
                                if k in VALU_KINDS and (p.srcc & ins.wr): need = max(need, 3)
                                if k in ("dsr", "vml") and (p.srcc & ins.wr): need = max(need, 3)
                        elif pk == "vms" and p.extra == 4:
                            if k in VALU_KINDS or k == "mfma":
                                if p.rd & ins.wr: need = 2
                            elif p.rd & ins.wr: need = 1
                        if need > dist: req = max(req, need - dist)
                    if req > need_nop.get(key, 0):
                        need_nop[key] = req; changed = True
                    t += need_nop.get(key, 0)
                    if k == "dsr": lg.append((set(ins.wr), t))
                    elif k == "dsw": lg.append((set(), t))
                    elif k in ("vm", "vms"): vm.append((ins.tag, set()))
                    elif k == "vml": vm.append((ins.tag, set(ins.wr)))
                    hist.append((ins, t))
                    t += ins.extra if k == "nop" else 1
                    while hist and t - hist[0][1] > 12: hist.pop(0)
        if not changed: break
    out = []
    stats = dict(nops=0, lgkm=0, n=0, hoisted=0)
    for prog, rep in segments:
        L = prog.ins
        hoist_after = {}
        skip = set()
        if HOIST:
            for i, ins in enumerate(L):
                key = id(ins)
                if ins.kind != "mfma" or key not in need_lgkm or key in need_vm or need_nop.get(key, 0): continue
                n = need_lgkm[key]; j = i - 1; ok = True; nds = 0
                while j >= 0 and L[j].kind != "mfma":
                    kk = L[j].kind
                    if kk in ("dsr", "dsw"): nds += 1
                    elif kk not in ("valu", "trans"): ok = False; break
                    if id(L[j]) in need_lgkm or id(L[j]) in need_vm or need_nop.get(id(L[j]), 0): ok = False; break
                    j -= 1
                if not ok or j < 0 or j == i - 1 or n - nds < 0: continue
                if any(L[x].kind in VALU_KINDS and (L[x].wr & ins.rd) for x in range(max(j + 1, i - 3), i)): continue
                hoist_after[j] = n - nds; skip.add(i)
        for i, ins in enumerate(L):
            key = id(ins)
            w = []
            if key in need_vm: w.append(f"vmcnt({need_vm[key]})")
            if ins.kind == "waitvm" and ins.extra: w.append("lgkmcnt(0)")
            elif key in need_lgkm and i not in skip: w.append(f"lgkmcnt({need_lgkm[key]})"); stats["lgkm"] += 1
            if w: out.append("    s_waitcnt " + " ".join(w))
            elif ins.kind == "waitvm": out.append("    s_nop 0")
            if need_nop.get(key, 0):
                out.append(f"    s_nop {need_nop[key]-1}"); stats["nops"] += 1
            if ins.kind == "waitvm": continue
            out.append(ins.text if ins.kind == "label" else "    " + ins.text)
            stats["n"] += 1
            if i in hoist_after:
                out.append(f"    s_waitcnt lgkmcnt({hoist_after[i]})"); stats["hoisted"] += 1
    return out, stats

def kd(name, vgpr, sgpr=102, accum=None):
    accum = accum if accum is not None else ((vgpr + 3) // 4) * 4
    return [".p2align 6", f".amdhsa_kernel {name}",
            f"  .amdhsa_next_free_vgpr {vgpr}", f"  .amdhsa_next_free_sgpr {sgpr}", f"  .amdhsa_accum_offset {min(accum,256)}",
            "  .amdhsa_group_segment_fixed_size 0", "  .amdhsa_kernarg_size 64", "  .amdhsa_user_sgpr_count 2",
            "  .amdhsa_user_sgpr_kernarg_segment_ptr 1", "  .amdhsa_system_sgpr_workgroup_id_x 1", ".end_amdhsa_kernel"]

class Sched:
    def __init__(self, p, budget=8, late_extra=8):
        self.p = p; self.m = []; self.q = {}; self.budget = budget; self.late_extra = late_extra
        self.idx = {}
        self.pace = {}
        self.group = {}
        self.last = {}
    def mfma(self, d, a, b, c, tag=None):
        self.m.append((d, a, b, c, tag))
        if tag is not None: self.idx[tag] = len(self.m) - 1
    def fill(self, queue, fn, cost=4, after=None, before=None, lead=0, tag=None, early=None, ds=False):
        self.q.setdefault(queue, []).append(dict(fn=fn, cost=cost, after=after, before=before, lead=lead, tag=tag, early=early, ds=ds))
    def run(self):
        p = self.p
        done = {}
        N = len(self.m)
        INF = 10 ** 9
        for ql in self.q.values():
            hd = INF; sd = INF
            for f in reversed(ql):
                if f["before"] is not None:
                    b = self.idx[f["before"]]
                    hd = min(hd, b); sd = min(sd, b - f["lead"])
                f["hd"] = hd; f["sd"] = sd
        tagq = {}
        for qn, ql in self.q.items():
            for f in ql:
                if f["tag"] is not None: tagq[f["tag"]] = qn
        def ready(f, cnt):
            a = f["after"]
            if a is not None:
                for x in (a if isinstance(a, list) else [a]):
                    dl = 0
                    if isinstance(x, dict): dl = x["delay"]; x = x["tag"]
                    if x not in done or cnt < done[x] + dl: return False
            if f["early"] is not None and f["before"] is not None and cnt < self.idx[f["before"]] - f["early"]: return False
            return True
        def emit(qn, cnt):
            f = self.q[qn].pop(0)
            f["fn"](p)
            if qn in self.group: self.last[self.group[qn]] = cnt
            if f["tag"] is not None: done[f["tag"]] = cnt
            return f["cost"]
        def force(qn, cnt, depth=0):
            f = self.q[qn][0]
            a = f["after"]
            for x in ([] if a is None else a if isinstance(a, list) else [a]):
                if isinstance(x, dict): x = x["tag"]
                while x not in done:
                    assert x in tagq and tagq[x] != qn and depth < 20, ("cannot force", f["tag"], f["before"], x, cnt)
                    force(tagq[x], cnt, depth + 1)
            return emit(qn, cnt)
        for i in range(N + 1):
            again = True
            while again:
                again = False
                for qn, ql in self.q.items():
                    while ql and (ql[0]["hd"] <= i or i == N):
                        force(qn, i); again = True
            if i == N: break
            d, a, b, c, tag = self.m[i]
            p.mfma(d, a, b, c)
            if tag is not None: done[tag] = i + 1
            used = 0; nds = 0
            while True:
                best = None
                for qn, ql in self.q.items():
                    if ql and ready(ql[0], i + 1):
                        f = ql[0]
                        g = self.group.get(qn)
                        if g is not None and f.get("paced", True) and i + 1 - self.last.get(g, -99) < self.pace[g]: continue
                        late = f["sd"] <= i + 1
                        if f.get("ds") and nds >= (2 if late else 1): continue
                        if used and used + f["cost"] > self.budget + (self.late_extra if late else 0): continue
                        if best is None or f["sd"] < self.q[best][0]["sd"]: best = qn
                if best is None: break
                if self.q[best][0].get("ds"): nds += 1
                used += emit(best, i + 1)
                if used >= self.budget + self.late_extra: break


def roll(lines, marker, period, sreg, name, minrep=2):
    idx = [i for i, l in enumerate(lines) if l.startswith(marker)]
    runs = []; cur = []
    for i in idx:
        if int(lines[i].split()[-1]) == 0 and cur: runs.append(cur); cur = []
        cur.append(i)
    if cur: runs.append(cur)
    out = list(lines)
    for rn, r in reversed(list(enumerate(runs))):
        blk = [lines[r[k] + 1:r[k + 1]] for k in range(len(r) - 1)]
        same = [blk[k] == blk[k + period] and not any(l.endswith(":") for l in blk[k]) for k in range(len(blk) - period)]
        best = (0, 0); k = 0
        while k < len(same):
            if same[k]:
                j = k
                while j < len(same) and same[j]: j += 1
                if j - k > best[0]: best = (j - k, k)
                k = j
            else: k += 1
        n = best[0] // period + 1
        if n < minrep: continue
        k = best[1]
        lab = f"{name}_{rn}"
        body = lines[r[k]:r[k + period]]
        out[r[k]:r[k + n * period]] = [f"    s_mov_b32 s{sreg}, {n - 1}", f"{lab}:"] + body + [f"    s_sub_u32 s{sreg}, s{sreg}, 1", f"    s_cbranch_scc0 {lab}"]
    return out
```

```python
from asmlib import *
import math, struct, os
E = os.environ.get
PROF = int(E("PROF", "0"))
ABL = E("ABL", "")
def f2u(f): return struct.unpack("<I", struct.pack("<f", f))[0]
CSCALE = math.log2(math.e) / math.sqrt(128.0)
NWG = 256
PADS = int(E("PADS", "0"))
LDS_BYTES = 163840
MISC = 65536
WRING = 73728
XRING = WRING + 3 * 16384
XSL = 18432
RB = (73728, 0)
DROP = 0x30000
OOB = 0x40000000
WOT = 0
PART = 128 * 40960
PARTB = 64 * 20480
WFLG = PART + 32 * PARTB
PFLG = WFLG + 4096
WSBYTES = PFLG + 65536
PROFOFF = 0x4000000

SRD_X, SRD_K, SRD_V, SRD_W, SRD_WS, SRD_WO, SRD_OUT, SRD_DBG = 8, 12, 16, 20, 24, 28, 32, 36
S_W = 3
S_T0, S_T1, S_B, S_G, S_P, S_T2 = 40, 41, 42, 43, 44, 45
S_CS, S_NON, S_SPIN, S_PH, S_GRP, S_SO = 46, 48, 50, 51, 52, 53
S_BAD = 54
S_KOFF, S_VOFF, S_KB, S_KVN, S_M0KV, S_WBR = 56, 57, 58, 59, 60, 61
S_WOFF, S_WB, S_WBN, S_XOFF, S_XB, S_XBN = 62, 63, 64, 65, 66, 67
S_M0W, S_M0WN, S_M0X, S_M0XN, S_M0X8, S_M0X8N = 68, 69, 70, 71, 72, 73
S_W0, S_W2 = 74, 75
S_WT, S_PT, S_PF, S_RD, S_OUTO = 76, 77, 78, 79, 80
S_LO, S_HI = 81, 82
S_TM = 84
S_VB = 88

V_DK, V_DV, V_DW, V_DX = 1, 5, 9, 13
V_AK, V_AV0, V_AV1, V_AW0, V_AW1, V_AX, V_LIN = 18, 19, 20, 21, 22, 23, 24
V_E0, V_E1, V_E2 = 25, 26, 27
V_S = 28
V_O = 84
V_T = 244
V_NV = 252
A_Q, A_QN, A_L, A_ONE, A_POOL, A_X = 256, 336, 416, 436, 440, 472
NPOOL = 8
def Qf(n, ks, base=A_Q): return base + (n * 4 + ks) * 4
def Oa(n, m): return V_O + (n * 8 + m) * 4
def XS(par, n): return V_S + (par * 4 + n) * 4 if n < 4 else V_S + 48
def YS(n): return V_S + 32 + n * 4 if n < 4 else V_S + 52
def La(n): return A_L + 4 * n
def Xf(st, t): return (A_X + (st * 5 + t) * 4) if st < 2 else V_S + t * 4
def QA(n, m): return V_O + (n * 8 + m) * 4 if n < 4 else V_O + 128 + m * 4

nst = {}
def stamp(p, idx, dyn=None):
    if not PROF: return
    p.s(f"s_memrealtime s[{S_TM}:{S_TM+1}]")
    p.s(f"s_memtime s[{S_TM+2}:{S_TM+3}]")
    p.wait_lgkm0()
    if dyn is None:
        p.raw(f"v_writelane_b32 v0, s{S_TM}, {idx}")
        p.raw(f"v_writelane_b32 v255, s{S_TM+2}, {idx}")
    else:
        p.s(f"s_lshl_b32 m0, s{dyn}, 2")
        p.s(f"s_add_u32 m0, m0, {idx}")
        p.raw(f"v_writelane_b32 v0, s{S_TM}, m0")
        p.raw(f"v_writelane_b32 v255, s{S_TM+2}, m0")

KVSEQ = [("K", 0)]
for u in range(15): KVSEQ += [("K", u + 1), ("V", u)]
KVSEQ += [("V", 15)]
KVPOS = {t: i for i, t in enumerate(KVSEQ)}
S_M0KVP, S_KVP, S_INC = 89, 90, 91
def kv_ops(pos):
    pre = pos >= 32; pos %= 32
    kind, u = KVSEQ[pos]
    srd, vo, so, sb = (SRD_K, V_DK, S_KOFF, S_KB) if kind == "K" else (SRD_V, V_DV, S_VOFF, S_VB)
    ops = []
    for j in range(4):
        def f(p, j=j):
            if j == 0:
                p.s(f"s_add_u32 m0, s{S_M0KVP if pre else S_M0KV}, {(pos % 4) * 16384}")
                p.s(f"s_add_u32 s{S_SO}, s{S_KVP if pre else sb}, s{so}")
            if "D" not in ABL: p.dmao(vo + j, srd, f"s{S_SO}", j * 1024, (kind, u), "nt")
            if j == 1: p.s(f"s_add_u32 s{so}, s{so}, {'s%d' % S_INC if pre else 8192}")
            if j == 2: p.s(f"s_and_b32 s{so}, s{so}, 0x1ffff")
        ops.append((f, 12 if j == 0 else 8 if j < 3 else 4))
    return ops
def w_ops(s_):
    nxt = s_ >= 20; s_ %= 20
    ops = []
    for j in range(4):
        def f(p, j=j):
            if j == 0:
                p.s(f"s_add_u32 m0, s{S_M0WN if nxt else S_M0W}, {(s_ % 3) * 16384}")
                if s_ < 3:
                    p.s(f"s_add_u32 s{S_SO}, s{S_WBN}, s{S_W2 if s_ == 2 else S_W0}")
                    if s_ == 1: p.s(f"s_add_u32 s{S_SO}, s{S_SO}, {32 * 8192}")
                else: p.s(f"s_add_u32 s{S_SO}, s{S_WB}, s{S_WOFF}")
            if "W" not in ABL: p.dmao(V_DW + j, SRD_W, f"s{S_SO}", j * 1024, ("W", s_))
            if s_ >= 3:
                if j == 1: p.s(f"s_add_u32 s{S_WOFF}, s{S_WOFF}, {32 * 8192}")
                if j == 2 and s_ % 2 == 1:
                    p.s(f"s_cmp_ge_u32 s{S_WOFF}, {640 * 8192}")
                    p.s(f"s_cselect_b32 s{S_WOFF}, 0, s{S_WOFF}")
        ops.append((f, 12 if j in (0, 2) else 8 if j == 1 else 4))
    return ops
def x_ops(i, qh):
    nxt = i >= 10; i %= 10
    ops = []
    for j in range(5):
        if j == 4 and (i & 1) != qh: continue
        def f(p, j=j):
            if j == 0:
                p.s(f"s_add_u32 m0, s{S_M0XN if nxt else S_M0X}, {(i % 2) * XSL}")
                p.s(f"s_add_u32 s{S_SO}, s{S_XBN if nxt else S_XB}, s{S_XOFF}")
            if j == 4:
                p.s(f"s_add_u32 m0, s{S_M0X8N if nxt else S_M0X8}, {(i % 2) * XSL}")
                p.nop(0)
            if "X" not in ABL: p.dmao(V_DX + j, SRD_X, f"s{S_SO}", (j & 3) * 1024, ("X", i))
            if j == 1: p.s(f"s_add_u32 s{S_XOFF}, s{S_XOFF}, 128")
            if j == 2:
                p.s(f"s_cmp_ge_u32 s{S_XOFF}, 1280")
                p.s(f"s_cselect_b32 s{S_XOFF}, 0, s{S_XOFF}")
        ops.append((f, 12 if j in (0, 2, 4) else 8 if j == 1 else 4))
    return ops

def get_nonce(p, name, t):
    p.add(Ins(f"v_readfirstlane_b32 s{S_NON}, v{V_NV}", "rfl", [V_NV], []))
    p.add(Ins(f"v_readfirstlane_b32 s{S_NON+1}, v{V_NV+1}", "rfl", [V_NV + 1], []))
    p.s(f"s_cmp_lt_i32 s{S_NON+1}, 0")
    p.s(f"s_cbranch_scc1 {name}_x")
    p.vop("v_mov_b32", t + 2, "0")
    p.label(f"{name}")
    p.raw(f"buffer_load_dwordx2 v[{t}:{t+1}], v{t+2}, s[{SRD_DBG}:{SRD_DBG+3}], 0 offen sc1")
    p.raw("s_waitcnt vmcnt(0)")
    p.raw(f"v_readfirstlane_b32 s{S_NON}, v{t}")
    p.raw(f"v_readfirstlane_b32 s{S_NON+1}, v{t+1}")
    p.s(f"s_sub_u32 s{S_SPIN}, s{S_SPIN}, 1")
    p.s(f"s_cbranch_scc1 {name}_x")
    p.s(f"s_cmp_lt_i32 s{S_NON+1}, 0")
    p.s(f"s_cbranch_scc0 {name}")
    p.label(f"{name}_x")
    p.nop(1)

def publish(p, soff, off, t):
    p.vop("v_mov_b32", t, f"s{S_NON}")
    p.vop("v_mov_b32", t + 1, f"s{S_NON+1}")
    p.s("s_mov_b64 exec, 1")
    p.store(t, 2, V_LIN, SRD_WS, soff, off, tag="flag", flags="sc1")
    p.s("s_mov_b64 exec, -1")

def poll_issue(p, vaddr, soff, off, t):
    p.add(Ins(f"buffer_load_dwordx2 v[{t}:{t+1}], v{vaddr}, s[{SRD_WS}:{SRD_WS+3}], {soff} offen offset:{off} sc1", "vml", [vaddr], [t, t + 1], tag="poll"))
def poll_check(p, name, vaddr, soff, off, t, slp=2):
    p.label(f"{name}")
    p.add(Ins(f"v_cmp_ne_u32 vcc, s{S_NON}, v{t}", "valu", [t], []))
    p.add(Ins(f"v_cmp_ne_u32 s[{S_TM+2}:{S_TM+3}], s{S_NON+1}, v{t+1}", "valu", [t + 1], []))
    p.s(f"s_or_b64 vcc, vcc, s[{S_TM+2}:{S_TM+3}]")
    p.s(f"s_cbranch_scc0 {name}_ok")
    p.s(f"s_sub_u32 s{S_SPIN}, s{S_SPIN}, 1")
    p.s(f"s_cbranch_scc1 {name}_ok")
    if slp: p.s(f"s_sleep {slp}")
    p.raw(f"buffer_load_dwordx2 v[{t}:{t+1}], v{vaddr}, s[{SRD_WS}:{SRD_WS+3}], {soff} offen offset:{off} sc1")
    p.raw("s_waitcnt vmcnt(0)")
    p.s(f"s_branch {name}")
    p.label(f"{name}_ok")

def prologue(name):
    p = Prog()
    p.s(f"s_cmp_ge_u32 s2, {NWG}")
    p.s(f"s_cbranch_scc1 {name}_end")
    p.s("s_load_dwordx8 s[84:91], s[0:1], 0")
    p.s("s_load_dwordx8 s[92:99], s[0:1], 32")
    T = V_O
    W, L, a, b, c, d, U, P, VV, R8, PI, M, G, cv = range(T, T + 14)
    p.vop("v_lshrrev_b32", W, "6", 0)
    p.vop("v_and_b32", L, "63", 0)
    p.add(Ins(f"v_readfirstlane_b32 s{S_W}, v{W}", "rfl", [W], []))
    p.vop("v_and_b32", U, "1", W)
    p.vop("v_lshrrev_b32", P, "1", W)
    p.vop("v_lshrrev_b32", VV, "5", L)
    p.vop("v_bfe_u32", R8, L, "2", "3")
    p.vop("v_and_b32", PI, "3", L)
    p.s(f"s_movk_i32 s{S_T0}, 1280")
    p.vop("v_mul_lo_u32", a, R8, f"s{S_T0}")
    p.vop("v_lshl_add_u32", a, VV, "6", a)
    p.vop("v_xor_b32", c, "3", PI)
    p.vop("v_lshl_add_u32", V_DX, PI, "4", a)
    p.vop("v_lshl_add_u32", b, c, "4", a)
    p.vop("v_add_u32", V_DX + 1, f"{9216}", b)
    p.vop("v_add_u32", V_DX + 2, f"{2 * 9216}", V_DX)
    p.vop("v_add_u32", V_DX + 3, f"{3 * 9216}", b)
    p.vop("v_lshrrev_b32", d, "2", R8)
    p.vop("v_lshlrev_b32", cv, "1", d)
    p.vop("v_xor_b32", cv, cv, PI)
    p.vop("v_and_b32", b, "3", R8)
    p.vop("v_lshl_add_u32", b, d, "3", b)
    p.vop("v_lshlrev_b32", d, "7", U)
    p.vop("v_lshl_add_u32", d, VV, "6", d)
    p.vop("v_lshl_add_u32", b, b, "13", d)
    p.vop("v_lshl_add_u32", V_DW, cv, "4", b)
    for j in range(1, 4): p.vop("v_add_u32", V_DW + j, f"{(16 * (j & 1) + 4 * (j >> 1)) * 8192 - 1024 * j}", V_DW)
    p.vop("v_mul_u32_u24", b, "3", P)
    p.vop("v_xor_b32", b, b, PI)
    p.vop("v_lshl_add_u32", b, b, "4", a)
    p.vop("v_lshlrev_b32", a, "2", W)
    p.vop("v_sub_u32", a, P, a)
    p.vop("v_add_u32", a, "16", a)
    p.s(f"s_movk_i32 s{S_T1}, {8 * 1280}")
    p.vop("v_mul_lo_u32", a, a, f"s{S_T1}")
    p.vop("v_add_u32", V_DX + 4, a, b)
    p.vop("v_lshl_add_u32", b, R8, "8", d)
    p.vop("v_lshl_add_u32", V_DK, PI, "4", b)
    p.vop("v_lshl_add_u32", a, c, "4", b)
    p.vop("v_add_u32", V_DK + 1, "1024", a)
    p.vop("v_add_u32", V_DK + 2, "2048", V_DK)
    p.vop("v_add_u32", V_DK + 3, "3072", a)
    p.vop("v_lshl_add_u32", V_DV, cv, "4", b)
    for j in range(1, 4): p.vop("v_add_u32", V_DV + j, f"{1024 * j}", V_DV)
    if int(E("KPAT", "0")):
        p.vop("v_lshlrev_b32", a, "4", L)
        for j in range(8): p.vop("v_lshl_add_u32", V_DK + j, U, "12", a)
    MAP = int(E("MAP", "2"))
    p.s(f"s_bfe_u32 s{S_T0}, s2, {(MAP << 16) | 3:#x}")
    p.s(f"s_lshr_b32 s{S_T2}, s2, {3 + MAP}")
    p.s(f"s_and_b32 s{S_G}, s2, {(1 << (3 - MAP)) - 1}")
    p.s(f"s_lshl_b32 s{S_G}, s{S_G}, {MAP}")
    p.s(f"s_or_b32 s{S_G}, s{S_G}, s{S_T0}")
    p.s(f"s_bfe_u32 s{S_B}, s2, {(MAP << 16) | (3 - MAP):#x}")
    p.s(f"s_lshl_b32 s{S_B}, s{S_B}, {5 - MAP}")
    p.s(f"s_or_b32 s{S_B}, s{S_B}, s{S_T2}")
    p.s(f"s_lshl_b32 s{S_T0}, s{S_T0}, {5 - MAP}")
    p.s(f"s_lshl_b32 s{S_T2}, s{S_T2}, {MAP}")
    p.s(f"s_add_u32 s{S_T2}, s{S_T2}, s{S_T0}")
    p.s(f"s_and_b32 s{S_T2}, s{S_T2}, 31")
    p.s(f"s_lshr_b32 s{S_P}, s{S_W}, 1")
    p.s(f"s_and_b32 s{S_GRP}, s{S_B}, 1")
    if E("SCHED", "") == "B": p.s(f"s_mov_b32 s{S_GRP}, 1")
    p.s(f"s_lshl_b32 s{S_M0KV}, s{S_W}, 12")
    p.s(f"s_add_u32 s{S_M0W}, s{S_M0KV}, {WRING}")
    p.s(f"s_add_u32 s{S_M0X}, s{S_M0KV}, {XRING}")
    p.s(f"s_lshl_b32 s{S_M0X8}, s{S_P}, 10")
    p.s(f"s_add_u32 s{S_M0X8}, s{S_M0X8}, {XRING + 16384}")
    for a_, b_ in ((S_M0WN, S_M0W), (S_M0XN, S_M0X), (S_M0X8N, S_M0X8)): p.s(f"s_mov_b32 s{a_}, s{b_}")
    p.s(f"s_lshl_b32 s{S_T0}, s{S_G}, 2")
    p.s(f"s_add_u32 s{S_T0}, s{S_T0}, s{S_P}")
    p.s(f"s_lshl_b32 s{S_WBN}, s{S_T0}, 8")
    p.s(f"s_mov_b32 s{S_WBR}, s{S_WBN}")
    p.s(f"s_lshl_b32 s{S_T1}, s{S_B}, 5")
    p.s(f"s_add_u32 s{S_T0}, s{S_T0}, s{S_T1}")
    p.s(f"s_lshl_b32 s{S_KVN}, s{S_T0}, 17")
    p.s(f"s_mul_i32 s{S_T0}, s{S_T2}, 5")
    p.s(f"s_lshr_b32 s{S_T0}, s{S_T0}, 4")
    if not int(E("ROT", "1")): p.s(f"s_mov_b32 s{S_T0}, 0")
    p.s(f"s_lshl_b32 s{S_XOFF}, s{S_T0}, 7")
    p.s(f"s_lshl_b32 s{S_W0}, s{S_T0}, 19")
    p.s(f"s_add_u32 s{S_W2}, s{S_W0}, {64 * 8192}")
    p.s(f"s_cmp_ge_u32 s{S_W2}, {640 * 8192}")
    p.s(f"s_cselect_b32 s{S_W2}, 0, s{S_W2}")
    p.s(f"s_mul_i32 s{S_XB}, s{S_B}, {144 * 1280}")
    p.s(f"s_mul_i32 s{S_T0}, s{S_W}, {32 * 1280}")
    p.s(f"s_add_u32 s{S_XB}, s{S_XB}, s{S_T0}")
    p.s(f"s_mov_b32 s{S_XBN}, s{S_XB}")
    p.s(f"s_lshl_b32 s{S_T0}, s2, 1")
    p.s(f"s_add_u32 s{S_T0}, s{S_T0}, s{S_P}")
    p.s(f"s_mul_i32 s{S_T0}, s{S_T0}, {int(E('KROT', '5'))}")
    p.s(f"s_lshr_b32 s{S_T1}, s2, 3")
    p.s(f"s_add_u32 s{S_T0}, s{S_T0}, s{S_T1}")
    p.s(f"s_and_b32 s{S_T0}, s{S_T0}, {15 if int(E('KROT', '5')) else 0}")
    p.s(f"s_lshl_b32 s{S_KOFF}, s{S_T0}, 13")
    p.s(f"s_mov_b32 s{S_VOFF}, s{S_KOFF}")
    p.s("s_waitcnt lgkmcnt(0)")
    for srd, src, size in ((SRD_X, 84, 32 * 144 * 640 * 2), (SRD_W, 90, 640 * 4096 * 2), (SRD_K, 86, 1 << 27), (SRD_V, 88, 1 << 27),
                           (SRD_WO, 92, 4096 * 640 * 2), (SRD_OUT, 94, 32 * 144 * 640 * 2), (SRD_DBG, 96, 256), (SRD_WS, 98, (1 << 28) if PROF else WSBYTES)):
        p.s(f"s_mov_b32 s{srd}, s{src}")
        p.s(f"s_and_b32 s{srd+1}, s{src+1}, 0xffff")
        p.s(f"s_mov_b32 s{srd+2}, {size:#x}")
        p.s(f"s_mov_b32 s{srd+3}, 0x20000")
    stamp(p, 0)
    p.s(f"s_bitcmp1_b32 s{S_W}, 0")
    p.s(f"s_cbranch_scc1 {name}_v1")
    return p

def prologue_v(name, qh):
    T = V_O
    W, L, a, b, c, d, U, P, VV, R8, PI, M, G, cv = range(T, T + 14)
    p = Prog()
    p.label(f"{name}_v{qh}")
    for ops in (x_ops(10, qh), w_ops(20)):
        for f, _ in ops: f(p)
    p.vop("v_lshlrev_b32", V_LIN, "4", L)
    if PADS:
        p.s(f"s_lshr_b32 s{S_T0}, s2, 3")
        p.s(f"s_lshl_b32 s{S_T0}, s{S_T0}, 1")
        p.s(f"s_add_u32 s{S_T0}, s{S_T0}, s{S_P}")
        p.label(f"@PADJUMP{qh}")
    p.vop("v_lshrrev_b32", a, "2", L)
    p.s(f"s_movk_i32 s{S_T0}, 1280")
    p.vop("v_mul_lo_u32", a, a, f"s{S_T0}")
    p.vop("v_lshl_add_u32", V_E2, PI, "4", a)
    p.s(f"s_lshr_b32 s{S_T1}, s{S_B}, 1")
    p.s(f"s_lshl_b32 s{S_T1}, s{S_T1}, 3")
    p.s(f"s_add_u32 s{S_T1}, s{S_T1}, s{S_G}")
    p.s(f"s_mul_i32 s{S_T1}, s{S_T1}, 40960")
    p.s(f"s_mul_i32 s{S_T0}, s{S_W}, 320")
    p.s(f"s_add_u32 s{S_WT}, s{S_T1}, s{S_T0}")
    q = p
    if qh == 0:
        q.s(f"s_or_b32 s{S_T0}, s2, s{S_W}")
        q.s(f"s_cmp_lg_u32 s{S_T0}, 0")
        q.s(f"s_cbranch_scc1 {name}_nononce")
        q.s(f"s_memrealtime s[{S_NON}:{S_NON+1}]")
        q.s("s_waitcnt lgkmcnt(0)")
        q.s(f"s_or_b32 s{S_NON+1}, s{S_NON+1}, 0x80000000")
        q.raw(f"v_mov_b32 v{V_T}, s{S_NON}")
        q.raw(f"v_mov_b32 v{V_T+1}, s{S_NON+1}")
        q.s("s_mov_b64 exec, 1")
        q.raw(f"buffer_store_dwordx2 v[{V_T}:{V_T+1}], v{V_LIN}, s[{SRD_DBG}:{SRD_DBG+3}], 0 offen sc1")
        q.s("s_mov_b64 exec, -1")
        q.label(f"{name}_nononce")
    q.s(f"s_mov_b32 s{S_NON+1}, 0")
    q.s(f"s_mov_b32 s{S_SPIN}, 0x40000")
    q.s(f"s_mov_b32 s{S_PH}, 0")
    if PROF == 3: q.s("s_mov_b32 s93, 32")
    q.s(f"s_mov_b64 s[{S_BAD}:{S_BAD+1}], 0")
    q.s(f"s_mov_b32 s{S_CS}, {f2u(CSCALE):#x}")
    q.s(f"s_mov_b32 s{S_CS+1}, s{S_CS}")
    q.s(f"s_mov_b32 s{S_LO}, {f2u(2.0 ** -16):#x}")
    q.s(f"s_mov_b32 s{S_HI}, {f2u(2.0 ** 24):#x}")
    q.vop("v_and_b32", M, "15", L)
    q.vop("v_lshrrev_b32", G, "4", L)
    q.vop("v_lshrrev_b32", a, "3", M)
    q.vop("v_mul_u32_u24", c, "3", a)
    q.vop("v_xor_b32", c, c, G)
    q.vop("v_and_b32", b, "7", M)
    q.vop("v_lshlrev_b32", b, "6", b)
    q.vop("v_lshl_add_u32", b, c, "4", b)
    q.vop("v_lshl_add_u32", b, a, "10", b)
    q.vop("v_add_u32", V_AX, f"{XRING}", b)
    q.vop("v_lshl_add_u32", V_AK, P, "13", b)
    q.vop("v_lshrrev_b32", a, "1", G)
    q.vop("v_lshlrev_b32", b, "10", a)
    q.vop("v_lshl_add_u32", b, R8, "6", b)
    q.vop("v_and_b32", c, "1", L)
    q.vop("v_lshl_add_u32", b, c, "3", b)
    q.vop("v_bfe_u32", c, L, "1", "1")
    q.vop("v_lshl_add_u32", b, c, "4", b)
    q.vop("v_and_b32", c, "1", G)
    q.vop("v_lshl_add_u32", b, c, "5", b)
    q.vop("v_lshl_add_u32", V_AV0, P, "13", b)
    q.vop("v_xor_b32", V_AV1, "32", V_AV0)
    q.vop("v_add_u32", V_AW0, f"{WRING}", V_AV0)
    q.vop("v_add_u32", V_AW1, f"{WRING}", V_AV1)
    q.vop("v_mov_b32", a, "0x3f803f80")
    for r in range(4): q.aw(A_ONE + r, a)
    for ops in (w_ops(21), x_ops(11, qh), w_ops(22)):
        for f, _ in ops: f(p)
    stamp(q, 23)
    return p

def R128(d, a, off): return lambda p: p.ds_read128(d, a, off)
def TR(d, a, off): return lambda p: p.ds_tr(d, a, off)

class Pool:
    def __init__(self, sc, base, n):
        self.sc = sc; self.regs = base if isinstance(base, list) else [base + 4 * k for k in range(n)]; n = len(self.regs); self.n = n; self.last = [None] * n; self.i = 0; self.frags = []
    def frag(self, tile, mk_reads, consumers, as_b=False):
        k = self.i % self.n; self.i += 1
        r = self.regs[k]
        war = self.last[k]
        for (d, o, c, tag) in consumers:
            if as_b: self.sc.mfma(d, o, r, c, tag)
            else: self.sc.mfma(d, r, o, c, tag)
        self.last[k] = consumers[-1][3]
        self.frags.append((tile, mk_reads(r), consumers[0][3], war))

LEAD = int(E("LEAD", "9"))
LEADB = int(E("LEADB", "8"))
BGAP = int(E("BGAP", "4"))

def qmod(name, qh):
    p = Prog()
    p.label(f"{name}_Q{qh}")
    p.s(f"s_mov_b32 s{S_WB}, s{S_WBR}")
    p.s(f"s_add_u32 s{S_WOFF}, s{S_W2}, {32 * 8192}")
    p.s(f"s_add_u32 s{S_WBR}, s{S_WBR}, 512")
    p.s(f"s_cmp_lt_u32 s{S_PH}, s{S_GRP}")
    p.s(f"s_cselect_b32 s{S_WBN}, s{S_WBR}, {OOB:#x}")
    p.s(f"s_cselect_b32 s{S_XBN}, s{S_XB}, {OOB:#x}")
    for r, r0 in ((S_M0WN, S_M0W), (S_M0XN, S_M0X), (S_M0X8N, S_M0X8)): p.s(f"s_cselect_b32 s{r}, s{r0}, {DROP:#x}")
    p.s(f"s_cselect_b32 s{S_M0KVP}, {DROP:#x}, s{S_M0KV}")
    p.s(f"s_cselect_b32 s{S_KVP}, {OOB:#x}, s{S_KVN}")
    p.s(f"s_cselect_b32 s{S_INC}, 0, 8192")
    KVS = int(E("KVS", "15"))
    def wop(p):
        p.s(f"s_cmp_ge_u32 s{S_PH}, s{S_GRP}")
        p.s(f"s_cbranch_scc1 {name}_Q{qh}_nowop")
        for pr in range(5):
            for kt in range(2):
                p.s(f"s_add_u32 m0, s{S_M0KV}, {(1 + pr // 2) * 16384 + (pr & 1) * 2048 + kt * 1024}")
                p.s(f"s_add_u32 s{S_SO}, s{S_WT}, {kt * 16 * 1280 + pr * 64}")
                p.raw(f"buffer_load_dwordx4 v{V_E2}, s[{SRD_WO}:{SRD_WO+3}], s{S_SO} offen lds")
        p.label(f"{name}_Q{qh}_nowop")
    sc = Sched(p, budget=int(E("QBUD", "8")), late_extra=8)
    sc.group["dma"] = "vm"; sc.pace["vm"] = int(E("QPACE", "4"))
    pool = Pool(sc, A_POOL, NPOOL)
    AW = (V_AW0, V_AW1)
    morder = [4 * qh + i for i in range(4)] + [4 * (1 - qh) + i for i in range(4)]
    for s_ in range(20):
        sb = (s_ % 3) * 16384
        for k, m in enumerate(morder):
            e, mp = m & 1, m >> 1
            off = sb + (mp >> 1) * 4096 + (mp & 1) * 512
            cons = [(QA(n, m), Xf(s_ % 3, n), QA(n, m) if s_ else None, ("Q", s_, k, n)) for n in range(4)]
            if k < 4: cons.append((QA(4, k), Xf(s_ % 3, 4), QA(4, k) if s_ else None, ("Q", s_, k, 4)))
            pool.frag(s_, lambda r: [TR(r, AW[e], off), TR(r + 2, AW[e], off + 2048)], cons)
    mt = lambda i: sc.m[max(0, min(i, len(sc.m) - 1))][4]
    def xreads(i, kh):
        st = (2 * i + kh) % 3
        return [R128(Xf(st, n), V_AX, (i % 2) * XSL + (4 * qh + n if n < 4 else 8) * 2048 + kh * 512) for n in range(5)]
    cur = None
    for fi, (s_, reads, cons, war) in enumerate(pool.frags):
        c0 = 36 * s_
        tau = c0 - LEADB
        taun = c0 + 36 - LEADB
        if s_ != cur:
            cur = s_
            def bar(p, s_=s_):
                p.comment(f"---- q step {s_}")
                tags = [("W", s_)]
                if s_ == 0: tags.append(("X", 0))
                if s_ % 2 == 1 and s_ < 19: tags.append(("X", (s_ + 1) // 2))
                p.wait_vm(tags, lgkm0=True)
                p.barrier()
                if PROF == 2:
                    p.s(f"s_cmp_lg_u32 s{S_PH}, 0")
                    p.s(f"s_cbranch_scc1 {name}_Q{qh}_ns{s_}")
                    stamp(p, 24 + s_)
                    p.label(f"{name}_Q{qh}_ns{s_}")
            sc.fill("rd", bar, 8, after=[("DMA", s_ - 1)] if s_ >= 2 else None, before=mt(tau), early=0 if s_ else None, tag=("BAR", s_))
            ops = []
            if s_ >= 1: ops += w_ops(s_ + 2 if s_ < 18 else 22 if s_ == 18 else 20)
            if s_ == 1: ops += x_ops(2, qh)
            if KVS <= s_ < KVS + 4:
                if s_ < 18: ops += kv_ops(32 + s_ - KVS)
                else: ops = kv_ops(32 + s_ - KVS) + ops
            if s_ == 15: ops.append((wop, 8))
            if s_ >= 2 and s_ % 2 == 0: ops += x_ops(s_ // 2 + 2, qh)
            for k, (fn, cost) in enumerate(ops):
                sc.fill("dma", fn, cost, after=("BAR", s_), before=mt(taun - 1), lead=80, tag=("DMA", s_) if k == len(ops) - 1 else None)
            if s_ == 0:
                for k, fn in enumerate(xreads(0, 0)): sc.fill("rd", fn, 4, ds=True, before=mt(0))
        k_in = fi % 8
        for k, fn in enumerate(reads):
            bf = cons
            if s_ < 19 and sc.idx[cons] > taun - BGAP: bf = mt(taun - BGAP)
            sc.fill("rd", fn, 4, ds=True, after=war if k == 0 else None, before=bf, lead=LEAD if bf is cons else 0)
        if k_in == 0:
            xr = []
            if s_ == 0: xr = xreads(0, 1)
            elif s_ % 2 == 1 and s_ < 19: xr = xreads((s_ + 1) // 2, 0) + xreads((s_ + 1) // 2, 1)
            for j, fn in enumerate(xr):
                sc.fill("rx", fn, 4, ds=True, after=[("BAR", s_)] + ([("Q", s_ - 1, 7, 3)] if s_ and j >= 5 else []), before=mt(taun - BGAP), lead=2 * (len(xr) - j))
    sc.run()
    stamp(p, 1, S_PH)
    p.add(Ins(f"buffer_load_dwordx2 v[{V_NV}:{V_NV+1}], off, s[{SRD_DBG}:{SRD_DBG+3}], 0 sc1", "vml", [], [V_NV, V_NV + 1], tag="non"))
    def fin(n, t, i):
        s0, s1 = (QA(n, 2 * t), QA(n, 2 * t + 1))
        dst = V_S + 4 * i
        for r in (0, 2):
            p.pkmul(s0 + r, s0 + r, f"s[{S_CS}:{S_CS+1}]")
            p.pkmul(s1 + r, s1 + r, f"s[{S_CS}:{S_CS+1}]")
        p.cvtpk(dst, s0, s0 + 1); p.cvtpk(dst + 1, s0 + 2, s0 + 3)
        p.cvtpk(dst + 2, s1, s1 + 1); p.cvtpk(dst + 3, s1 + 2, s1 + 3)
        return dst
    def swp(dst):
        p.swap32(dst, dst + 2); p.swap32(dst + 1, dst + 3)
        p.swap16(dst, dst + 2); p.swap16(dst + 1, dst + 3)
    p.v(f"v_lshl_add_u32 v{V_E0}, s{S_P}, 12, v{V_LIN}", [V_E0], [V_LIN])
    p.vop("v_add_u32", V_E0, f"{MISC}", V_E0)
    d8 = [fin(4, t, t) for t in range(2)]
    for d in d8: swp(d)
    for t, d in enumerate(d8): p.ds_write(V_E0, d, 4, (2 * qh + t) * 1024)
    first = True
    for n in range(4):
        ds = [fin(n, t, 2 + (n & 1) * 4 + t) for t in range(4)]
        if first:
            p.wait_lgkm0(); p.barrier()
            for t in range(4): p.ds_read128(Qf(4, t, A_QN), V_E0, t * 1024)
            for f, _ in w_ops(21): f(p)
            first = False
        for d in ds: swp(d)
        for t, d in enumerate(ds):
            for r in range(4): p.aw(Qf(n, t, A_QN) + r, d + r)
    p.wait_lgkm0()
    stamp(p, 2, S_PH)
    return p

def a_mfmas(sc, pool, qh):
    AV = (V_AV0, V_AV1)
    has8 = lambda u: (u & 1) == qh
    for pos, (kind, u) in enumerate(KVSEQ):
        sb = (pos % 4) * 16384
        ns = [0, 1, 2, 3] + ([4] if has8(u) else [])
        if kind == "K":
            for kt in range(2):
                for ks in range(4):
                    off = sb + kt * 2048 + (ks >> 1) * 4096 + (ks & 1) * 512
                    cons = []
                    for n in ns:
                        d = XS(u & 1, n) if kt == 0 else YS(n)
                        cons.append((d, Qf(n, ks), d if ks else None, ("S", u, kt, ks, n)))
                    pool.frag(pos, lambda r: [R128(r, V_AK, off)], cons)
        else:
            first = lambda n: u == 0 if n < 4 else u == qh
            for n in ns: sc.mfma(La(n), A_ONE, XS(u & 1, n), None if first(n) else La(n), ("L", u, n))
            for m in range(8):
                e, mp = m & 1, m >> 1
                off = sb + (mp >> 1) * 4096 + (mp & 1) * 512
                cons = [(Oa(n, m), XS(u & 1, n), None if first(n) else Oa(n, m), ("PV", u, m, n)) for n in ns]
                pool.frag(pos, lambda r: [TR(r, AV[e], off), TR(r + 2, AV[e], off + 2048)], cons)

def a_taus():
    cs = []
    for qh in range(2):
        sc = Sched(Prog()); pool = Pool(sc, A_POOL, NPOOL); a_mfmas(sc, pool, qh)
        c = {}
        for (pos, _, cons, _) in pool.frags: c.setdefault(pos, sc.idx[cons])
        c[32] = len(sc.m) + LEADB - 3
        cs.append(c)
    return [min(cs[0][j], cs[1][j]) - LEADB for j in range(33)]

def amod(name, qh):
    p = Prog()
    p.label(f"{name}_A{qh}")
    p.s(f"s_mov_b32 s{S_KB}, s{S_KVN}")
    p.s(f"s_mov_b32 s{S_VB}, s{S_KVN}")
    p.s(f"s_add_u32 s{S_KVN}, s{S_KVN}, {2 << 17}")
    p.s(f"s_cmp_eq_u32 s{S_PH}, 2")
    p.s(f"s_cselect_b32 s{S_M0KVP}, s{S_M0KV}, {DROP:#x}")
    p.s(f"s_cselect_b32 s{S_KVP}, s{S_KVN}, {OOB:#x}")
    p.s(f"s_cselect_b32 s{S_INC}, 8192, 0")
    def cond(k):
        def f(p):
            q = Prog()
            if k < 5:
                q.s(f"s_cmp_lg_u32 s{S_PH}, 1")
                q.s(f"s_cbranch_scc1 {name}_A{qh}_cq{k}")
                if k in (0, 3):
                    i = k // 3
                    q.s(f"s_add_u32 m0, s{S_M0X}, {i * XSL}")
                    q.s(f"s_lshr_b32 s{S_SO}, s{S_W2 if i else S_W0}, 12")
                    q.s(f"s_add_u32 s{S_SO}, s{S_SO}, s{S_XB}")
                    for j in range(4): q.dmao(V_DX + j, SRD_X, f"s{S_SO}", j * 1024, None)
                    if i == qh:
                        q.s(f"s_add_u32 m0, s{S_M0X8}, {i * XSL}")
                        q.nop(0)
                        q.dmao(V_DX + 4, SRD_X, f"s{S_SO}", 0, None)
                else:
                    i = (0, 0, 1, 0, 2)[k]
                    q.s(f"s_add_u32 m0, s{S_M0W}, {i * 16384}")
                    q.s(f"s_add_u32 s{S_SO}, s{S_WBR}, s{S_W2 if i == 2 else S_W0}")
                    if i == 1: q.s(f"s_add_u32 s{S_SO}, s{S_SO}, {32 * 8192}")
                    for j in range(4): q.dmao(V_DW + j, SRD_W, f"s{S_SO}", j * 1024, None)
                q.label(f"{name}_A{qh}_cq{k}")
            q.s(f"s_cmp_lg_u32 s{S_PH}, 3")
            q.s(f"s_cbranch_scc1 {name}_A{qh}_cp{k}")
            for i in range(4 * k, 4 * k + 4): wload(0, i)(q)
            q.label(f"{name}_A{qh}_cp{k}")
            for i in q.ins:
                if i.kind == "label": p.add(i)
                else: p.raw(i.text)
        return f
    sc = Sched(p, budget=int(E("ABUD", "8")), late_extra=int(E("ALATE", "8")))
    sc.group["dma"] = "vm"; sc.pace["vm"] = int(E("APACE", "7"))
    pool = Pool(sc, A_POOL, NPOOL)
    a_mfmas(sc, pool, qh)
    tau = a_taus()
    mt = lambda i: sc.m[max(0, min(i, len(sc.m) - 1))][4]
    def add_bar(pos):
        def bar(p, pos=pos):
            p.comment(f"---- a step {pos}")
            if pos < 32: p.wait_vm(KVSEQ[pos], lgkm0=True)
            else: p.wait_lgkm0()
            p.barrier()
            if PROF == 3 and pos % 2 == 0 and pos < 32:
                p.s(f"s_memrealtime s[{S_TM}:{S_TM+1}]")
                p.s(f"s_memtime s[{S_TM+2}:{S_TM+3}]")
                p.wait_lgkm0()
                p.s("s_mov_b32 m0, s93")
                p.s("s_add_u32 s93, s93, 1")
                p.raw(f"v_writelane_b32 v0, s{S_TM}, m0")
                p.raw(f"v_writelane_b32 v255, s{S_TM+2}, m0")
        sc.fill("rd", bar, 8, after=[("DMA", pos - 1)] if pos >= 2 else None, before=mt(tau[pos]), early=0 if pos else None, tag=("BAR", pos))
        if 1 <= pos < 32:
            ops = kv_ops(pos + 3)
            if pos >= 29: ops = [(cond(2 * (pos - 29)), 16)] + ops + [(cond(2 * (pos - 29) + 1), 16)]
            for k, (fn, cost) in enumerate(ops):
                sc.fill("dma", fn, cost, after=("BAR", pos), before=mt(tau[pos + 1] - 1), lead=80, tag=("DMA", pos) if k == len(ops) - 1 else None)
    cur = None
    for (pos, reads, cons, war) in pool.frags:
        if pos != cur:
            cur = pos; add_bar(pos)
        for k, fn in enumerate(reads):
            bf = cons
            if sc.idx[cons] > tau[pos + 1] - BGAP: bf = mt(tau[pos + 1] - BGAP)
            sc.fill("rd", fn, 4, ds=True, after=war if k == 0 else None, before=bf, lead=LEAD if bf is cons else 0)
    add_bar(32)
    def V(fn, after=None, before=None, cost=4, lead=0): sc.fill("va", fn, cost, after=after, before=before, lead=lead)
    EDL = int(E("EDL", "3"))
    for u in range(16):
        ns = [0, 1, 2, 3] + ([4] if (u & 1) == qh else [])
        for kt in range(2):
            for n in ns:
                src = XS(u & 1, n) if kt == 0 else YS(n)
                dst = XS(u & 1, n) + 2 * kt
                for r in range(4):
                    V(lambda p, reg=src + r: p.exp(reg, reg), after=dict(tag=("S", u, kt, 3, n), delay=EDL), cost=8)
                bf = ("L", u, n)
                if kt == 1 and n < 4 and u < 15: bf = ("S", u + 1, 1, 0, n)
                V(lambda p, dst=dst, src=src: p.cvtpk(dst, src, src + 1))
                V(lambda p, dst=dst, src=src: p.cvtpk(dst + 1, src + 2, src + 3), before=bf, lead=2)
    sc.run()
    stamp(p, 1, S_PH)
    p.v(f"v_lshl_add_u32 v{V_E0}, s{S_P}, 13, v{V_LIN}", [V_E0], [V_LIN])
    p.vop("v_lshrrev_b32", V_E1, "2", V_E0)
    p.vop("v_add_u32", V_E1, f"{MISC}", V_E1)
    for i in range(4): p.ds_write(V_E0, Oa(4, 4 * (1 - qh) + i), 4, 49152 + (1 - qh) * 4096 + i * 1024)
    p.ds_write(V_E1, La(4), 1, (1 - qh) * 256)
    RL = V_T
    for n in range(5): p.ar(RL + n, La(n))
    cond(6)(p)
    def check(n):
        p.add(Ins(f"v_cmp_nge_f32 vcc, v{RL+n}, s{S_LO}", "valu", [RL + n], []))
        p.s(f"s_or_b64 s[{S_BAD}:{S_BAD+1}], s[{S_BAD}:{S_BAD+1}], vcc")
        p.add(Ins(f"v_cmp_nle_f32 vcc, v{RL+n}, s{S_HI}", "valu", [RL + n], []))
        p.s(f"s_or_b64 s[{S_BAD}:{S_BAD+1}], s[{S_BAD}:{S_BAD+1}], vcc")
        p.vop("v_rcp_f32", RL + n, RL + n, kind="trans")
    def pkm(d, n):
        r = RL + (n & ~1); o = n & 1
        p.add(Ins(f"v_pk_mul_f32 v[{d}:{d+1}], v[{d}:{d+1}], v[{r}:{r+1}] op_sel:[0,{o}] op_sel_hi:[1,{o}]", "valu", R(d, 2) | {RL + n}, R(d, 2)))
    CHK = V_S + 40
    cnt = [0]
    def norm(n, t):
        s0, s1 = Oa(n, 2 * t), Oa(n, 2 * t + 1)
        dst = V_S + 4 * (cnt[0] % 4)
        for r in (0, 2):
            pkm(s0 + r, n); pkm(s1 + r, n)
        p.cvtpk(dst, s0, s0 + 1); p.cvtpk(dst + 1, s0 + 2, s0 + 3)
        p.cvtpk(dst + 2, s1, s1 + 1); p.cvtpk(dst + 3, s1 + 2, s1 + 3)
        sl = Qf(n, t if n < 4 else t - 2 * qh)
        for r in range(4): p.aw(sl + r, dst + r)
        p.mfma(CHK, A_ONE, dst, CHK if cnt[0] else None)
        cnt[0] += 1
    for n in range(4): check(n)
    for t in range(4): norm(0, t)
    p.wait_lgkm0(); p.barrier()
    PX = V_S + 16
    for i in range(4): p.ds_read128(PX + 4 * i, V_E0, 49152 + qh * 4096 + i * 1024)
    p.ds_read32(V_E2, V_E1, qh * 256)
    for t in range(4): norm(1, t)
    p.wait_lgkm0()
    for f, _ in kv_ops(35): f(p)
    cond(7)(p)
    p.vop("v_add_f32", RL + 4, RL + 4, V_E2)
    check(4)
    for i in range(4):
        for r in range(4): p.vop("v_add_f32", Oa(4, 4 * qh + i) + r, Oa(4, 4 * qh + i) + r, PX + 4 * i + r)
    for t in range(2): norm(4, 2 * qh + t)
    for n in (2, 3):
        for t in range(4): norm(n, t)
    p.s(f"s_movk_i32 s{S_T2}, 0x207")
    p.add(Ins(f"v_cmp_class_f32 vcc, v{CHK}, s{S_T2}", "valu", [CHK], []))
    p.s(f"s_or_b64 s[{S_BAD}:{S_BAD+1}], s[{S_BAD}:{S_BAD+1}], vcc")
    stamp(p, 2, S_PH)
    return p

def dump(p, qh, r):
    p.s(f"s_mul_i32 s{S_T0}, s{S_P}, 36864")
    if RB[r]: p.s(f"s_add_u32 s{S_T0}, s{S_T0}, {RB[r]}")
    p.vop("v_add_u32", V_E0, f"s{S_T0}", V_LIN)
    for t in range(2): p.ds_write(V_E0, Qf(4, t), 4, (2 * qh + t) * 9216)
    for n in range(4):
        p.s(f"s_sub_u32 s{S_T1}, {4 * qh + n + 7}, s{S_G}")
        p.s(f"s_and_b32 s{S_T1}, s{S_T1}, 7")
        p.v(f"v_lshl_add_u32 v{V_T+4+n}, s{S_T1}, 10, v{V_E0}", [V_T + 4 + n], [V_E0])
        for t in range(4): p.ds_write(V_T + 4 + n, Qf(n, t), 4, t * 9216 + 1024)

def q_copy(p):
    for r in range(80): p.amov(A_Q + r, A_QN + r)

P_R = ([A_QN + 4 * i for i in range(20)] + [A_X + 4 * i for i in range(10)] + [10, 14],
       [A_Q + 4 * i for i in range(20)] + [A_L + 4 * i for i in range(12)])
def wload(j, i, _=None):
    def f(p):
        if i % 2 == 0: p.s(f"s_add_u32 s{S_SO}, s{S_WT}, {(i >> 1) * 40960}")
        if "B" not in ABL: p.load4(P_R[j & 1][i], V_LIN, SRD_WS, f"s{S_SO}", (i & 1) * 1024, ("WT", j, i), "sc1")
    return f

def transitions(name, qh):
    d = {}
    N = f"{name}_t{qh}"
    p = d["q_disp"] = Prog()
    p.s(f"s_add_u32 s{S_PH}, s{S_PH}, 1")
    p.s(f"s_cmp_eq_u32 s{S_PH}, 3")
    p.s(f"s_cbranch_scc1 {N}_preab")
    p2 = d["q_disp2"] = Prog()
    p2.s(f"s_cmp_eq_u32 s{S_PH}, 2")
    p2.s(f"s_cbranch_scc1 {N}_bq2")
    p = d["q1"] = Prog()
    q_copy(p)
    p.s(f"s_cmp_eq_u32 s{S_GRP}, 0")
    p.s(f"s_cbranch_scc1 {name}_A{qh}")
    p = d["bq1"] = Prog()
    p.raw("s_waitcnt vmcnt(5)")
    p.v(f"v_lshl_add_u32 v{V_E0}, s{S_W}, 12, v{V_LIN}", [V_E0], [V_LIN])
    for pr in range(5):
        for e in range(2):
            r = V_O + (pr * 2 + e) * 4
            off = (1 + pr // 2) * 16384 + (pr & 1) * 2048 + 8 * e
            p.ds_tr(r, V_E0, off); p.ds_tr(r + 2, V_E0, off + 1024)
    p.s(f"s_lshr_b32 s{S_T1}, s{S_B}, 1")
    p.s(f"s_lshl_b32 s{S_T1}, s{S_T1}, 3")
    p.s(f"s_add_u32 s{S_T1}, s{S_T1}, s{S_G}")
    p.s(f"s_lshl_b32 s{S_PF}, s{S_T1}, 3")
    p.s(f"s_mul_i32 s{S_T1}, s{S_T1}, 40960")
    p.s(f"s_mul_i32 s{S_T0}, s{S_W}, 10240")
    p.s(f"s_add_u32 s{S_T1}, s{S_T1}, s{S_T0}")
    p.s(f"s_lshl_b32 s{S_T0}, s{S_W}, 10")
    p.s(f"s_add_u32 s{S_PF}, s{S_PF}, s{S_T0}")
    p.s(f"s_add_u32 s{S_PF}, s{S_PF}, {WFLG}")
    for i in range(10):
        if i % 4 == 0 and i: p.s(f"s_add_u32 s{S_T1}, s{S_T1}, 4096")
        p.store(V_O + 4 * i, 4, V_LIN, SRD_WS, f"s{S_T1}", (i % 4) * 1024, tag="wst", flags="sc1")
    p.s(f"s_branch {name}_Q{qh}")
    p = d["bq2"] = Prog()
    p.label(f"{N}_bq2")
    get_nonce(p, f"{N}_n1", V_T)
    p.wait_vm("wst")
    publish(p, f"s{S_PF}", 0, V_T)
    p.s(f"s_branch {name}_A{qh}")
    p = d["a_disp"] = Prog()
    p.s(f"s_add_u32 s{S_PH}, s{S_PH}, 1")
    p.s(f"s_cmp_lg_u32 s{S_PH}, 2")
    p.s(f"s_cbranch_scc1 {N}_ad2")
    p = d["aq"] = Prog()
    p.wait_all()
    p.s(f"s_branch {name}_Q{qh}")
    p2 = d["a_disp2"] = Prog()
    p2.label(f"{N}_ad2")
    p2.s(f"s_cmp_eq_u32 s{S_PH}, 4")
    p2.s(f"s_cbranch_scc1 {N}_fin")
    p = d["preab"] = Prog()
    p.label(f"{N}_preab")
    p.s(f"s_lshl_b32 s{S_T2}, s{S_W}, 10")
    p.s(f"s_lshl_b32 s{S_T1}, s{S_G}, 7")
    p.s(f"s_add_u32 s{S_T2}, s{S_T2}, s{S_T1}")
    p.s(f"s_add_u32 s{S_T2}, s{S_T2}, {WFLG}")
    p.vop("v_lshrrev_b32", V_E1, "1", V_LIN)
    p.vop("v_and_b32", V_E1, "0x78", V_E1)
    poll_issue(p, V_E1, f"s{S_T2}", 0, V_S)
    dump(p, qh, 0)
    get_nonce(p, f"{N}_n2", V_T)
    p.s(f"s_mul_i32 s{S_WT}, s{S_G}, {16 * 40960}")
    p.s(f"s_mul_i32 s{S_T0}, s{S_W}, 10240")
    p.s(f"s_add_u32 s{S_WT}, s{S_WT}, s{S_T0}")
    p.wait_lgkm0()
    q_copy(p)
    poll_check(p, f"{N}_wpoll", V_E1, f"s{S_T2}", 0, V_S)
    p.s(f"s_branch {name}_A{qh}")
    p = d["fin"] = Prog()
    p.label(f"{N}_fin")
    p.wait_lgkm0()
    p.barrier()
    dump(p, qh, 1)
    p.s(f"s_branch {name}_P")
    return d

def pmod(name):
    p = Prog()
    p.label(f"{name}_P")
    AO = (1, 2, 3)
    V_FA, V_OA = 4, 5
    PT, PT2 = 6, 8
    POOL = [28 + 4 * k for k in range(16)]
    ACC = 92
    OWN = 124
    JB = (164, 196)
    A8 = 228
    CT = 244
    S_ST = 62
    S_J, S_JO, S_J8, S_JO8 = S_KOFF, S_VOFF, S_KB, S_KVN
    p.vop("v_mov_b32", AO[0], V_LIN)
    p.vop("v_add_u32", AO[1], "49152", V_LIN)
    p.vop("v_add_u32", AO[2], "98304", V_LIN)
    p.s(f"s_mul_i32 s{S_RD}, s{S_B}, {PARTB}")
    p.s(f"s_mul_i32 s{S_T1}, s{S_W}, 5120")
    p.s(f"s_add_u32 s{S_RD}, s{S_RD}, s{S_T1}")
    p.s(f"s_add_u32 s{S_RD}, s{S_RD}, {PART}")
    p.s(f"s_mul_i32 s{S_ST}, s{S_G}, 20480")
    p.s(f"s_add_u32 s{S_ST}, s{S_ST}, s{S_RD}")
    p.s(f"s_add_u32 s{S_ST}, s{S_ST}, {56 * 20480}")
    for i in range(1, 8):
        p.s(f"s_add_u32 s{S_T0}, s{S_G}, {i}")
        p.s(f"s_and_b32 s{S_T0}, s{S_T0}, 7")
        p.s(f"s_mul_i32 s{S_T0}, s{S_T0}, {7 * 20480}")
        p.s(f"s_add_u32 s{S_T0}, s{S_T0}, s{S_RD}")
        p.s(f"s_add_u32 s{S_ST+i}, s{S_T0}, {(i - 1) * 20480}")
    p.s(f"s_lshl_b32 s{S_PF}, s{S_B}, 2")
    p.s(f"s_add_u32 s{S_PF}, s{S_PF}, s{S_W}")
    p.s(f"s_lshl_b32 s{S_PF}, s{S_PF}, 9")
    p.s(f"s_add_u32 s{S_PF}, s{S_PF}, {PFLG}")
    p.s(f"s_lshl_b32 s{S_T2}, s{S_G}, 3")
    p.s(f"s_add_u32 s{S_T2}, s{S_T2}, s{S_PF}")
    p.s(f"s_mul_i32 s{S_OUTO}, s{S_B}, {144 * 1280}")
    p.s(f"s_mul_i32 s{S_T1}, s{S_W}, 320")
    p.s(f"s_add_u32 s{S_OUTO}, s{S_OUTO}, s{S_T1}")
    p.vop("v_lshrrev_b32", V_FA, "1", V_LIN)
    p.vop("v_and_b32", V_FA, "0x38", V_FA)
    p.vop("v_bfe_u32", V_OA, V_LIN, "4", "4")
    p.s(f"s_movk_i32 s{S_T0}, 1280")
    p.vop("v_mul_lo_u32", V_OA, V_OA, f"s{S_T0}")
    p.vop("v_lshrrev_b32", PT, "8", V_LIN)
    p.vop("v_lshl_add_u32", V_OA, PT, "4", V_OA)
    p.s(f"s_mul_i32 s{S_J}, s{S_G}, {7 * 20480}")
    p.s(f"s_add_u32 s{S_J}, s{S_J}, s{S_RD}")
    p.s(f"s_mul_i32 s{S_JO}, s{S_G}, {16 * 1280}")
    p.s(f"s_add_u32 s{S_JO}, s{S_JO}, s{S_OUTO}")
    p.s(f"s_lshl_b32 s{S_T1}, s{S_G}, 10")
    p.s(f"s_add_u32 s{S_J8}, s{S_RD}, s{S_T1}")
    p.s(f"s_add_u32 s{S_J8}, s{S_J8}, {56 * 20480}")
    p.s(f"s_lshl_b32 s{S_T1}, s{S_G}, 6")
    p.s(f"s_add_u32 s{S_JO8}, s{S_OUTO}, s{S_T1}")
    p.s(f"s_add_u32 s{S_JO8}, s{S_JO8}, {128 * 1280}")
    p.s(f"s_cmp_ge_u32 s{S_G}, 5")
    p.s(f"s_cselect_b32 s{S_J8}, {OOB:#x}, s{S_J8}")
    p.s(f"s_cselect_b32 s{S_JO8}, {OOB:#x}, s{S_JO8}")
    p.vop("v_mov_b32", PT2, f"s{S_NON}")
    p.vop("v_mov_b32", PT2 + 1, f"s{S_NON+1}")
    p.wait_all()
    p.barrier()
    stamp(p, 16)
    S_PC, S_FO, S_PO, S_JL, S_JS = 70, 71, 72, 73, 74
    V_SA = 18
    HOLD = 140
    p.s(f"s_mov_b32 s{S_PC}, 0")
    p.vop("v_mov_b32", V_SA, V_LIN)
    NL = int(E("PLEAD", "8"))
    def ooff(i, kq): return RB[kq >> 3] + ((kq & 7) * 9 + i) * 1024
    for f in range(NL): p.ds_read128(POOL[f], AO[ooff(0, f) // 49152], ooff(0, f) % 49152)
    def job_loads(sbase, mp, buf, n):
        ops = []
        for g in range(n):
            def f(p, g=g):
                p.s(f"s_add_u32 s{S_T0}, s{sbase}, {g * 20480 + mp * 1024}")
                p.load4(buf + 4 * g, V_LIN, SRD_WS, f"s{S_T0}", 0, "job", "sc1")
            ops.append(f)
        return ops
    def job_reduce(sout, mp, buf, n, a, init):
        ops = []
        for g in range(n):
            for r in range(4):
                x = buf + 4 * g + r
                if g == 0 and init:
                    ops.append(lambda p, r=r, x=x: p.vop("v_lshlrev_b32", a + 2 * r, "16", x))
                    ops.append(lambda p, r=r, x=x: p.vop("v_and_b32", a + 2 * r + 1, "0xffff0000", x))
                else:
                    ops.append(lambda p, r=r, x=x: p.vop("v_lshlrev_b32", CT + (r & 1), "16", x))
                    ops.append(lambda p, r=r, x=x: p.vop("v_and_b32", x, "0xffff0000", x))
                    ops.append(lambda p, r=r, x=x: p.vop("v_add_f32", a + 2 * r, a + 2 * r, CT + (r & 1)))
                    ops.append(lambda p, r=r, x=x: p.vop("v_add_f32", a + 2 * r + 1, a + 2 * r + 1, x))
        for r in range(4): ops.append(lambda p, r=r: p.cvtpk(a + r, a + 2 * r, a + 2 * r + 1))
        ops.append(lambda p: p.store(a, 4, V_OA, SRD_OUT, f"s{sout}", mp * 64, tag="out"))
        return ops
    def flag(p, so, off, tag):
        p.wait_vm(tag)
        p.s("s_mov_b64 exec, 1")
        p.store(PT2, 2, V_LIN, SRD_WS, so, off, tag="flag", flags="sc1")
        p.s("s_mov_b64 exec, -1")
    FPOS = int(E("FPOS", "200")); IPOS = int(E("IPOS", "60")); CPOS = int(E("CPOS", "150")); WSP = int(E("WSP", "5")); RPOS = int(E("RPOS", "10"))
    def one_pass(par):
        q = Prog()
        q.label(f"{name}_pass{par}")
        if PROF == 4: stamp(q, 32, S_PC)
        q.s(f"s_add_u32 s{S_WT}, s{S_WT}, 2048")
        q.s(f"s_cmp_eq_u32 s{S_PC}, 4")
        q.s(f"s_cselect_b32 s{S_WT}, {OOB:#x}, s{S_WT}")
        q.s(f"s_lshl_b32 s{S_T0}, s{S_PC}, 6")
        q.s(f"s_add_u32 s{S_FO}, s{S_T2}, s{S_T0}")
        q.s(f"s_add_u32 s{S_PO}, s{S_PF}, s{S_T0}")
        q.s(f"s_add_u32 s{S_JS}, s{S_JO}, s{S_T0}")
        q.s(f"s_cmp_lt_u32 s{S_PC}, 3")
        q.s(f"s_cselect_b32 s{S_JS}, {OOB:#x}, s{S_JS}")
        q.s(f"s_lshl_b32 s{S_T0}, s{S_PC}, 10")
        q.s(f"s_add_u32 s{S_JL}, s{S_J}, s{S_T0}")
        q.s(f"s_cmp_lt_u32 s{S_PC}, 2")
        q.s(f"s_cselect_b32 s{S_JL}, {OOB:#x}, s{S_JL}")
        q.wait_vm(("WT", par, 31))
        sc = Sched(q, budget=int(E("PBUD", "8")), late_extra=8)
        for qn in ("wl", "st", "jl"): sc.group[qn] = "vm"
        sc.pace["vm"] = int(E("PPACE", "3"))
        pool = Pool(sc, POOL, 16)
        acc = lambda i: OWN + 8 * par if i == 8 else ACC + 8 * (i % 4)
        for i in range(9):
            a = acc(i)
            for kq in range(16):
                cons = [(a + 4 * e, P_R[par][2 * kq + e], a + 4 * e if kq else None, ("P", i, kq, e)) for e in range(2)]
                pool.frag(0, lambda r: [R128(r, AO[ooff(i, kq) // 49152], ooff(i, kq) % 49152)], cons, as_b=True)
        mt = lambda i: sc.m[max(0, min(i, len(sc.m) - 1))][4]
        for f in range(NL, 144 + NL):
            (_, reads, cons, war) = pool.frags[f % 144]
            if f >= 144: war = pool.last[f % 16]
            sc.fill("rd", reads[0], 4, ds=True, after=war, before=mt(2 * (f - NL) + 1), early=2)
        for i in range(32):
            sc.fill("wl", wload(1 - par, i, False), 8 if i % 2 == 0 else 4, after=mt(4 + WSP * i), before=mt(12 + WSP * i))
        for i in range(8):
            a = acc(i)
            dl = mt(32 * i + 32 + 24)
            sc.fill("va", lambda p, a=a: p.cvtpk(a, a, a + 1), 4, after=dict(tag=("P", i, 15, 1), delay=3), before=dl, lead=20)
            sc.fill("va", lambda p, a=a: p.cvtpk(a + 1, a + 2, a + 3), 4)
            sc.fill("va", lambda p, a=a: p.cvtpk(a + 2, a + 4, a + 5), 4)
            sc.fill("va", lambda p, a=a: p.cvtpk(a + 3, a + 6, a + 7), 4, tag=("CV", i), before=dl, lead=20)
            def st(p, a=a, i=i):
                if "O" not in ABL: p.store(a, 4, V_SA, SRD_WS, f"s{S_ST+i}", 0, tag=("ps", i), flags=E("SFL", "sc1"))
                if i == 7: p.vop("v_add_u32", V_SA, "1024", V_SA)
            sc.fill("st", st, 4, after=("CV", i), before=dl, lead=20, tag=("ST", i))
        sc.fill("fl", lambda p: flag(p, f"s{S_FO}", 64, ("ps", 0)), 16, before=mt(FPOS), early=0)
        sc.fill("jl", lambda p: poll_issue(p, V_FA, f"s{S_PO}", 0, PT), 4, before=mt(IPOS), early=4)
        def chk(p):
            p.s(f"s_cmp_lt_u32 s{S_PC}, 2")
            p.s(f"s_cbranch_scc1 {name}_pp{par}_ok")
            poll_check(p, f"{name}_pp{par}", V_FA, f"s{S_PO}", 0, PT)
        sc.fill("jl", chk, 16, before=mt(CPOS), early=0)
        for k, fn in enumerate(job_loads(S_JL, 0, JB[par], 7)): sc.fill("jl", fn, 8, before=mt(CPOS + 12 + 8 * k), lead=8)
        ops = job_reduce(S_JS, 0, JB[1 - par], 7, HOLD, False)
        for k, fn in enumerate(ops): sc.fill("jr", fn, 4, after=mt(RPOS) if k == 0 else None, before=mt(240), lead=2 * (len(ops) - k))
        for r in range(8): sc.fill("jr", lambda p, r=r: p.vop("v_mov_b32", HOLD + r, OWN + 8 * par + r), 4, before=mt(254), lead=8 - r)
        sc.run()
        q.s(f"s_add_u32 s{S_PC}, s{S_PC}, 1")
        if par == 0:
            q.s(f"s_cmp_eq_u32 s{S_PC}, 5")
            q.s(f"s_cbranch_scc1 {name}_ptail")
        else: q.s(f"s_branch {name}_pass0")
        return q
    p.s(f"s_sub_u32 s{S_J}, s{S_J}, 2048")
    p.s(f"s_sub_u32 s{S_JO}, s{S_JO}, 192")
    pre = p
    pe, po = one_pass(0), one_pass(1)
    p = Prog()
    p.label(f"{name}_ptail")
    stamp(p, 17)
    p.s(f"s_add_u32 s{S_JO}, s{S_JO}, 192")
    poll_issue(p, V_FA, f"s{S_PF}", 5 * 64, PT)
    for fn in job_reduce(S_JO, 2, JB[0], 7, HOLD, False): fn(p)
    flag(p, f"s{S_T2}", 6 * 64, ("ps", 7))
    poll_check(p, f"{name}_pp3", V_FA, f"s{S_PF}", 5 * 64, PT)
    for fn in job_loads(S_J, 5, JB[1], 7): fn(p)
    stamp(p, 18)
    for fn in job_loads(S_J8, 0, POOL[8], 8): fn(p)
    poll_issue(p, V_FA, f"s{S_PF}", 6 * 64, PT)
    for fn in job_reduce(S_JO, 3, JB[1], 7, OWN + 8, False): fn(p)
    stamp(p, 19)
    poll_check(p, f"{name}_pp4", V_FA, f"s{S_PF}", 6 * 64, PT, 0)
    stamp(p, 20)
    for fn in job_loads(S_J, 6, JB[0], 7): fn(p)
    for fn in job_reduce(S_JO8, 0, POOL[8], 8, A8, True): fn(p)
    for fn in job_reduce(S_JO, 4, JB[0], 7, OWN, False): fn(p)
    if PROF:
        p.wait_all()
        stamp(p, 21)
        p.s(f"s_lshl_b32 s{S_T0}, s2, 2")
        p.s(f"s_add_u32 s{S_T0}, s{S_T0}, s{S_W}")
        p.s(f"s_lshl_b32 s{S_T0}, s{S_T0}, 8")
        p.s(f"s_add_u32 s{S_T0}, s{S_T0}, {PROFOFF}")
        p.vop("v_lshrrev_b32", PT, "2", V_LIN)
        p.store(0, 1, PT, SRD_WS, f"s{S_T0}", 0)
        p.s(f"s_add_u32 s{S_T0}, s{S_T0}, 0x40000")
        p.store(255, 1, PT, SRD_WS, f"s{S_T0}", 0)
    p.label(f"{name}_end")
    p.raw("s_endpgm")
    return [pre, pe, po, p], [pre, pe, po, pe, po, pe, p]

def add_pads(name, lines):
    out = []; n = 0; k = 0
    first = max(i for i, l in enumerate(lines) if l.startswith("@PADJUMP0"))
    for i, l in enumerate(lines):
        if n >= PADS and l.startswith("    v_mfma"):
            out += [f"    s_branch {name}_ps{k}", f"{name}_pad{k}:", f"    s_branch {name}_pr{k & 1}", f"{name}_ps{k}:"]
            k += 1; n = 0
        out.append(l)
        if l.startswith("    "): n += 1
    res = []
    for l in out:
        if l.startswith("@PADJUMP"):
            qh = int(l[8])
            mine = [j for j in range(k) if (j & 1) == qh]
            res.append(f"    s_and_b32 s{S_T0}, s{S_T0}, {(1 << (len(mine) - 1).bit_length()) - 1}")
            for j, pd in enumerate(mine):
                res += [f"    s_cmp_eq_u32 s{S_T0}, {j}", f"    s_cbranch_scc1 {name}_pad{pd}"]
            res.append(f"{name}_pr{qh}:")
        else: res.append(l)
    return res

def gen(name):
    pro = prologue(name)
    P, PS = pmod(name)
    segs = [(pro, 1)]; sims = []
    for qh in range(2):
        pv = prologue_v(name, qh)
        Q = qmod(name, qh); A = amod(name, qh); T = transitions(name, qh)
        segs += [(x, 1) for x in (pv, Q, T["q_disp"], T["q_disp2"], T["q1"], T["bq1"], T["bq2"], A, T["a_disp"], T["aq"], T["a_disp2"], T["preab"], T["fin"])]
        ga = [pro, pv, Q, T["q_disp"], T["q_disp2"], T["q1"], A, T["a_disp"], T["aq"], Q, T["q_disp"], T["preab"], A, T["a_disp"], T["a_disp2"], T["fin"]] + PS
        gb = [pro, pv, Q, T["q_disp"], T["q_disp2"], T["q1"], T["bq1"], Q, T["q_disp"], T["q_disp2"], T["bq2"], A, T["a_disp"], T["a_disp2"], T["preab"], A,
              T["a_disp"], T["a_disp2"], T["fin"]] + PS
        sims += [[(x, 1) for x in ga], [(x, 1) for x in gb]]
    segs += [(x, 1) for x in P]
    lines, stats = finalize(segs, sims=sims)
    if int(E("ROLL", "1")): lines = roll(lines, "; ---- a step", 4, 92, f"{name}_aloop")
    if PADS: lines = add_pads(name, lines)
    return [f".globl {name}", ".p2align 8", f".type {name},@function", f"{name}:"] + lines, stats
```

```python
import sys, importlib
from asmlib import *
import k1
HDR = open("standalone__gqa_block_cached__near_ridge.s.ref").read().split("\n")
hdr = [l for l in HDR if l.startswith(";") and "@launch" not in l and "Override" not in l and "grid=ceil" not in l]
def build(which, path):
    out = list(hdr)
    body = []; kds = []
    if "1" in which:
        out.append(f"; @launch kernel=attn_kernel grid=(512,1,1) block=(256,1,1) lds={k1.LDS_BYTES}")
        l, st = k1.gen("attn_kernel"); body += l; kds += kd("attn_kernel", 256, 64); print("k1", st, file=sys.stderr)
    if "b" in which:
        import k1b
        out.append(f"; @launch kernel=attn_kernel grid=(512,1,1) block=(256,1,1) lds={k1b.LDS_BYTES}")
        l, st = k1b.gen("attn_kernel"); body += l; kds += kd("attn_kernel", 256, 64); print("k1b", st, file=sys.stderr)
    if "3" in which:
        import b3
        out.append(f"; @launch kernel=gqa_kernel grid=({b3.NWG},1,1) block=(256,1,1) lds={b3.LDS_BYTES}")
        l, st = b3.gen("gqa_kernel"); body += l; kds += kd("gqa_kernel", 256, 96); print("b3", st, file=sys.stderr)
    if "m" in which:
        import m1
        out.append(f"; @launch kernel=gqa_kernel grid=({m1.NWG},1,1) block=(256,1,1) lds={m1.LDS_BYTES}")
        l, st = m1.gen("gqa_kernel"); body += l; kds += kd("gqa_kernel", 512, 102, 256); print("m1", st, file=sys.stderr)
    if "x" in which:
        import lx
        out.append(f"; @launch kernel=gqa_kernel grid=({lx.NWG},1,1) block=(512,1,1) lds={lx.LDS_BYTES}")
        l, st = lx.gen("gqa_kernel"); body += l; kds += kd("gqa_kernel", 256, 96); print("lx", st, file=sys.stderr)
    if "f" in which:
        import fk
        out.append(f"; @launch kernel=fused_kernel grid=({fk.NWG},1,1) block=(512,1,1) lds={fk.LDS_BYTES}")
        l, st = fk.gen("fused_kernel"); body += l; kds += kd("fused_kernel", 256, 96); print("fk", st, file=sys.stderr)
    if "2" in which:
        import k2
        out.append(f"; @launch kernel=oproj_kernel grid=({k2.NWG},1,1) block=(256,1,1) lds={k2.LDS_BYTES}")
        l, st = k2.gen("oproj_kernel"); body += l; kds += kd("oproj_kernel", k2.NVGPR, 64, 256); print("k2", st, file=sys.stderr)
    out += ['.amdgcn_target "amdgcn-amd-amdhsa--gfx950"', ".text"] + body + ['.section .rodata,"a"'] + kds
    open(path, "w").write("\n".join(out) + "\n")
if __name__ == "__main__":
    build(sys.argv[1], sys.argv[2])
```

```python
import re

def vr(base, n=1):
    p = "v"
    if base >= 256:
        p = "a"; base -= 256
    return f"{p}{base}" if n == 1 else f"{p}[{base}:{base+n-1}]"
def sr(base, n=1):
    return f"s{base}" if n == 1 else f"s[{base}:{base+n-1}]"
def R(base, n=1):
    return set(range(base, base + n))

class Ins:
    __slots__ = ("text", "kind", "rd", "wr", "tag", "extra", "srcc", "wait_id")
    def __init__(self, text, kind, rd=(), wr=(), tag=None, extra=None, srcc=()):
        self.text = text; self.kind = kind
        self.rd = set(rd); self.wr = set(wr); self.tag = tag; self.extra = extra
        self.srcc = set(srcc); self.wait_id = None

class Prog:
    def __init__(self):
        self.ins = []
    def add(self, i):
        self.ins.append(i); return i
    def raw(self, text, kind="salu"):
        return self.add(Ins(text, kind))
    def label(self, name):
        return self.add(Ins(name + ":", "label"))
    def comment(self, t):
        return self.add(Ins("; " + t, "label"))
    def s(self, text):
        return self.add(Ins(text, "salu"))
    def nop(self, n):
        return self.add(Ins(f"s_nop {n}", "nop", extra=n + 1))
    def v(self, text, wr=(), rd=(), kind="valu"):
        return self.add(Ins(text, kind, rd, wr))
    def vop(self, op, d, *srcs, kind="valu"):
        rd = [x for x in srcs if isinstance(x, int)]
        t = ", ".join(f"v{x}" if isinstance(x, int) else x for x in srcs)
        return self.add(Ins(f"{op} v{d}, {t}", kind, rd, [d]))
    def exp(self, d, a):
        return self.vop("v_exp_f32", d, a, kind="trans")
    def cvtpk(self, d, a, b):
        return self.vop("v_cvt_pk_bf16_f32", d, a, b)
    def swap32(self, a, b):
        return self.add(Ins(f"v_permlane32_swap_b32 v{a}, v{b}", "perm", [a, b], [a, b]))
    def swap16(self, a, b):
        return self.add(Ins(f"v_permlane16_swap_b32 v{a}, v{b}", "perm", [a, b], [a, b]))
    def mfma(self, d, a, b, c):
        ct = "0" if c is None else vr(c, 4)
        rd = R(a, 4) | R(b, 4)
        srcc = set() if c is None else R(c, 4)
        return self.add(Ins(f"v_mfma_f32_16x16x32_bf16 {vr(d,4)}, {vr(a,4)}, {vr(b,4)}, {ct}", "mfma", rd | srcc, R(d, 4), extra=(d, c), srcc=srcc))
    def ds_read128(self, d, addr, off):
        assert 0 <= off < 65536, off
        return self.add(Ins(f"ds_read_b128 {vr(d,4)}, v{addr} offset:{off}", "dsr", [addr], R(d, 4)))
    def ds_read64(self, d, addr, off):
        assert 0 <= off < 65536, off
        return self.add(Ins(f"ds_read_b64 {vr(d,2)}, v{addr} offset:{off}", "dsr", [addr], R(d, 2)))
    def ds_read32(self, d, addr, off):
        assert 0 <= off < 65536, off
        return self.add(Ins(f"ds_read_b32 v{d}, v{addr} offset:{off}", "dsr", [addr], [d]))
    def ds_tr(self, d, addr, off):
        assert 0 <= off < 65536, off
        return self.add(Ins(f"ds_read_b64_tr_b16 {vr(d,2)}, v{addr} offset:{off}", "dsr", [addr], R(d, 2)))
    def ds_write(self, addr, src, n, off):
        assert 0 <= off < 65536, off
        op = {1: "ds_write_b32", 2: "ds_write_b64", 4: "ds_write_b128"}[n]
        return self.add(Ins(f"{op} v{addr}, {vr(src,n)} offset:{off}", "dsw", {addr} | R(src, n), []))
    def dma(self, voff, srd, soff, tag, flags=""):
        return self.add(Ins(f"buffer_load_dwordx4 v{voff}, {sr(srd,4)}, {soff} offen {flags} lds".replace("  ", " "), "vm", [voff], [], tag=tag))
    def dmao(self, voff, srd, soff, off, tag, flags=""):
        return self.add(Ins(f"buffer_load_dwordx4 v{voff}, {sr(srd,4)}, {soff} offen offset:{off} {flags} lds".replace("  ", " "), "vm", [voff], [], tag=tag))
    def ar(self, d, a):
        return self.add(Ins(f"v_accvgpr_read_b32 v{d}, a{a-256}", "valu", [a], [d]))
    def aw(self, a, v):
        return self.add(Ins(f"v_accvgpr_write_b32 a{a-256}, {'v%d' % v if isinstance(v, int) else v}", "valu", [v] if isinstance(v, int) else [], [a]))
    def amov(self, d, a):
        return self.add(Ins(f"v_accvgpr_mov_b32 a{d-256}, a{a-256}", "valu", [a], [d]))
    def pkmul(self, d, a, b):
        bt = f"v[{b}:{b+1}]" if isinstance(b, int) else b
        return self.add(Ins(f"v_pk_mul_f32 v[{d}:{d+1}], v[{a}:{a+1}], {bt}", "valu", R(a, 2) | (R(b, 2) if isinstance(b, int) else set()), R(d, 2)))
    def load4(self, d, voff, srd, soff, off, tag, flags=""):
        return self.add(Ins(f"buffer_load_dwordx4 {vr(d,4)}, v{voff}, {sr(srd,4)}, {soff} offen offset:{off} {flags}".strip(), "vml", [voff], R(d, 4), tag=tag))
    def load2(self, d, voff, srd, soff, off, tag, flags=""):
        return self.add(Ins(f"buffer_load_dwordx2 {vr(d,2)}, v{voff}, {sr(srd,4)}, {soff} offen offset:{off} {flags}".strip(), "vml", [voff], R(d, 2), tag=tag))
    def store(self, src, n, voff, srd, soff, off, tag="st", flags=""):
        op = {1: "buffer_store_dword", 2: "buffer_store_dwordx2", 4: "buffer_store_dwordx4"}[n]
        return self.add(Ins(f"{op} {vr(src,n)}, v{voff}, {sr(srd,4)}, {soff} offen offset:{off} {flags}".strip(), "vms", {voff} | R(src, n), [], tag=tag, extra=n))
    def wait_vm(self, tag, lgkm0=False):
        return self.add(Ins("", "waitvm", tag=tag, extra=lgkm0))
    def wait_all(self):
        return self.add(Ins("s_waitcnt vmcnt(0) lgkmcnt(0)", "waitall"))
    def wait_lgkm0(self):
        return self.add(Ins("s_waitcnt lgkmcnt(0)", "waitlgkm0"))
    def barrier(self):
        return self.add(Ins("s_barrier", "barrier"))

VALU_KINDS = ("valu", "trans", "perm")
import os
COALESCE = int(os.environ.get("COAL", "14"))
HOIST = int(os.environ.get("HOIST", "1"))

def finalize(segments, sim=None, sims=None):
    need_lgkm = {}
    need_vm = {}
    need_nop = {}
    sims = sims or [sim or segments]
    flat = []
    for sm in sims: flat += [(None, 0)] + list(sm)
    for _pass in range(4):
        changed = False
        for prog, rep in flat:
            if prog is None:
                lg = []
                vm = []
                hist = []
                t = 0
            for _r in range(rep):
                for ins in prog.ins:
                    k = ins.kind
                    if k == "label":
                        continue
                    key = id(ins)
                    touched = ins.rd | ins.wr
                    n = None
                    for idx in range(len(lg) - 1, -1, -1):
                        if lg[idx][0] & touched:
                            n = len(lg) - 1 - idx; break
                    if n is not None:
                        n = min(n, sum(1 for x in lg if x[1] > t - COALESCE))
                        n = min(n, 15)
                        if key not in need_lgkm or need_lgkm[key] > n:
                            need_lgkm[key] = n; changed = True
                    n = None
                    for idx in range(len(vm) - 1, -1, -1):
                        if vm[idx][1] & touched:
                            n = len(vm) - 1 - idx; break
                    if k == "waitvm":
                        for idx in range(len(vm) - 1, -1, -1):
                            if vm[idx][0] == ins.tag or (isinstance(ins.tag, list) and vm[idx][0] in ins.tag):
                                n = len(vm) - 1 - idx; break
                    if n is not None:
                        n = min(n, 63)
                        if key not in need_vm or need_vm[key] > n:
                            need_vm[key] = n; changed = True
                    has_wait = False
                    if key in need_lgkm:
                        nn = need_lgkm[key]
                        if len(lg) > nn: lg = lg[len(lg) - nn:] if nn else []
                        has_wait = True
                    if key in need_vm:
                        nn = need_vm[key]
                        if len(vm) > nn: vm = vm[len(vm) - nn:] if nn else []
                        has_wait = True
                    if k == "waitvm":
                        if ins.extra: lg = []
                        t += 1
                        continue
                    if has_wait: t += 1
                    if k == "waitvmn" and len(vm) > ins.extra: vm = vm[len(vm) - ins.extra:] if ins.extra else []
                    if k == "waitall": lg = []; vm = []
                    if k == "waitlgkm0": lg = []
                    req = 0
                    for (p, tp) in hist:
                        dist = t - tp - 1
                        need = 0
                        pk = p.kind
                        if pk in VALU_KINDS:
                            if k == "mfma" and (p.wr & ins.rd): need = 2
                            if k == "perm" and (p.wr & ins.rd): need = max(need, 2)
                            if k == "dpp" and (p.wr & ins.rd): need = max(need, 2)
                            if k == "rfl" and (p.wr & ins.rd): need = max(need, 1)
                            if pk == "trans" and k in ("valu", "perm", "mfma") and (p.wr & ins.rd): need = max(need, 1)
                        elif pk == "mfma":
                            if k == "mfma":
                                ab = ins.rd - ins.srcc
                                if p.wr & ab: need = 8
                                elif p.wr & ins.srcc:
                                    need = 0 if (ins.extra[1] == p.extra[0]) else 6
                                elif p.wr & ins.wr: need = 0
                            else:
                                if p.wr & (ins.rd | ins.wr): need = 8
                                if k in VALU_KINDS and (p.srcc & ins.wr): need = max(need, 3)
                                if k in ("dsr", "vml") and (p.srcc & ins.wr): need = max(need, 3)
                        elif pk == "salu":
                            if k == "vm" and p.text.split()[1:2] == ["m0,"]: need = 1
                        elif pk == "vms" and p.extra == 4:
                            if k in VALU_KINDS or k == "mfma":
                                if p.rd & ins.wr: need = 2
                            elif p.rd & ins.wr: need = 1
                        if need > dist: req = max(req, need - dist)
                    if req > need_nop.get(key, 0):
                        need_nop[key] = req; changed = True
                    t += need_nop.get(key, 0)
                    if k == "dsr": lg.append((set(ins.wr), t))
                    elif k == "dsw": lg.append((set(), t))
                    elif k in ("vm", "vms"): vm.append((ins.tag, set()))
                    elif k == "vml": vm.append((ins.tag, set(ins.wr)))
                    hist.append((ins, t))
                    t += ins.extra if k == "nop" else 1
                    while hist and t - hist[0][1] > 12: hist.pop(0)
        if not changed: break
    out = []
    stats = dict(nops=0, lgkm=0, n=0, hoisted=0)
    for prog, rep in segments:
        L = prog.ins
        hoist_after = {}
        skip = set()
        if HOIST:
            for i, ins in enumerate(L):
                key = id(ins)
                if ins.kind != "mfma" or key not in need_lgkm or key in need_vm or need_nop.get(key, 0): continue
                n = need_lgkm[key]; j = i - 1; ok = True; nds = 0
                while j >= 0 and L[j].kind != "mfma":
                    kk = L[j].kind
                    if kk in ("dsr", "dsw"): nds += 1
                    elif kk not in ("valu", "trans"): ok = False; break
                    if id(L[j]) in need_lgkm or id(L[j]) in need_vm or need_nop.get(id(L[j]), 0): ok = False; break
                    j -= 1
                if not ok or j < 0 or j == i - 1 or n - nds < 0: continue
                if any(L[x].kind in VALU_KINDS and (L[x].wr & ins.rd) for x in range(max(j + 1, i - 3), i)): continue
                hoist_after[j] = n - nds; skip.add(i)
        for i, ins in enumerate(L):
            key = id(ins)
            w = []
            if key in need_vm: w.append(f"vmcnt({need_vm[key]})")
            if ins.kind == "waitvm" and ins.extra: w.append("lgkmcnt(0)")
            elif key in need_lgkm and i not in skip: w.append(f"lgkmcnt({need_lgkm[key]})"); stats["lgkm"] += 1
            if w: out.append("    s_waitcnt " + " ".join(w))
            elif ins.kind == "waitvm": out.append("    s_nop 0")
            if need_nop.get(key, 0):
                out.append(f"    s_nop {need_nop[key]-1}"); stats["nops"] += 1
            if ins.kind == "waitvm": continue
            out.append(ins.text if ins.kind == "label" else "    " + ins.text)
            stats["n"] += 1
            if i in hoist_after:
                out.append(f"    s_waitcnt lgkmcnt({hoist_after[i]})"); stats["hoisted"] += 1
    return out, stats

def kd(name, vgpr, sgpr=102, accum=None):
    accum = accum if accum is not None else ((vgpr + 3) // 4) * 4
    return [".p2align 6", f".amdhsa_kernel {name}",
            f"  .amdhsa_next_free_vgpr {vgpr}", f"  .amdhsa_next_free_sgpr {sgpr}", f"  .amdhsa_accum_offset {min(accum,256)}",
            "  .amdhsa_group_segment_fixed_size 0", "  .amdhsa_kernarg_size 64", "  .amdhsa_user_sgpr_count 2",
            "  .amdhsa_user_sgpr_kernarg_segment_ptr 1", "  .amdhsa_system_sgpr_workgroup_id_x 1", ".end_amdhsa_kernel"]

class Sched:
    def __init__(self, p, budget=8, late_extra=8):
        self.p = p; self.m = []; self.q = {}; self.budget = budget; self.late_extra = late_extra
        self.idx = {}
        self.pace = {}
        self.group = {}
        self.last = {}
        self.maxds = 1
    def mfma(self, d, a, b, c, tag=None):
        self.m.append((d, a, b, c, tag))
        if tag is not None: self.idx[tag] = len(self.m) - 1
    def fill(self, queue, fn, cost=4, after=None, before=None, lead=0, tag=None, early=None, ds=False, solo=False, paced=True):
        self.q.setdefault(queue, []).append(dict(fn=fn, cost=cost, after=after, before=before, lead=lead, tag=tag, early=early, ds=ds, solo=solo, paced=paced))
    def run(self):
        p = self.p
        done = {}
        N = len(self.m)
        INF = 10 ** 9
        for ql in self.q.values():
            hd = INF; sd = INF
            for f in reversed(ql):
                if f["before"] is not None:
                    b = self.idx[f["before"]]
                    hd = min(hd, b); sd = min(sd, b - f["lead"])
                f["hd"] = hd; f["sd"] = sd
        tagq = {}
        for qn, ql in self.q.items():
            for f in ql:
                if f["tag"] is not None: tagq[f["tag"]] = qn
        def ready(f, cnt):
            a = f["after"]
            if a is not None:
                for x in (a if isinstance(a, list) else [a]):
                    dl = 0
                    if isinstance(x, dict): dl = x["delay"]; x = x["tag"]
                    if x not in done or cnt < done[x] + dl: return False
            if f["early"] is not None and f["before"] is not None and cnt < self.idx[f["before"]] - f["early"]: return False
            return True
        def emit(qn, cnt):
            f = self.q[qn].pop(0)
            f["fn"](p)
            if qn in self.group and f.get("paced", True): self.last[self.group[qn]] = cnt
            if f["tag"] is not None: done[f["tag"]] = cnt
            return f["cost"]
        def force(qn, cnt, depth=0):
            f = self.q[qn][0]
            a = f["after"]
            for x in ([] if a is None else a if isinstance(a, list) else [a]):
                if isinstance(x, dict): x = x["tag"]
                while x not in done:
                    assert x in tagq and tagq[x] != qn and depth < 20, ("cannot force", f["tag"], f["before"], x, cnt)
                    force(tagq[x], cnt, depth + 1)
            return emit(qn, cnt)
        for i in range(N + 1):
            again = True
            while again:
                again = False
                for qn, ql in self.q.items():
                    while ql and (ql[0]["hd"] <= i or i == N):
                        force(qn, i); again = True
            if i == N: break
            d, a, b, c, tag = self.m[i]
            p.mfma(d, a, b, c)
            if tag is not None: done[tag] = i + 1
            used = 0; nds = 0
            while True:
                best = None
                for qn, ql in self.q.items():
                    if ql and ready(ql[0], i + 1):
                        f = ql[0]
                        g = self.group.get(qn)
                        if g is not None and f.get("paced", True) and i + 1 - self.last.get(g, -99) < self.pace[g]: continue
                        late = f["sd"] <= i + 1
                        if f.get("ds") and nds >= (2 if late else self.maxds): continue
                        if f.get("solo") and used: continue
                        if used and used + f["cost"] > self.budget + (self.late_extra if late else 0): continue
                        if best is None or f["sd"] < self.q[best][0]["sd"]: best = qn
                if best is None: break
                if self.q[best][0].get("ds"): nds += 1
                solo = self.q[best][0].get("solo")
                used += emit(best, i + 1)
                if solo: break
                if used >= self.budget + self.late_extra: break


def roll(lines, marker, period, sreg, name, minrep=2):
    idx = [i for i, l in enumerate(lines) if l.startswith(marker)]
    runs = []; cur = []
    for i in idx:
        if int(lines[i].split()[-1]) == 0 and cur: runs.append(cur); cur = []
        cur.append(i)
    if cur: runs.append(cur)
    out = list(lines)
    for rn, r in reversed(list(enumerate(runs))):
        blk = [lines[r[k] + 1:r[k + 1]] for k in range(len(r) - 1)]
        same = [blk[k] == blk[k + period] and not any(l.endswith(":") for l in blk[k]) for k in range(len(blk) - period)]
        best = (0, 0); k = 0
        while k < len(same):
            if same[k]:
                j = k
                while j < len(same) and same[j]: j += 1
                if j - k > best[0]: best = (j - k, k)
                k = j
            else: k += 1
        n = best[0] // period + 1
        if n < minrep: continue
        k = best[1]
        lab = f"{name}_{rn}"
        body = lines[r[k]:r[k + period]]
        out[r[k]:r[k + n * period]] = [f"    s_mov_b32 s{sreg}, {n - 1}", f"{lab}:"] + body + [f"    s_sub_u32 s{sreg}, s{sreg}, 1", f"    s_cbranch_scc0 {lab}"]
    return out
```

```python
from asmlib import *
import math, struct, os
E = os.environ.get
PROF = int(E("PROF", "0"))
ABL = E("ABL", "")
def f2u(f): return struct.unpack("<I", struct.pack("<f", f))[0]
CSCALE = math.log2(math.e) / math.sqrt(128.0)
NWG = 256
LDS_BYTES = 163840
XSL = 18432
XRING = 131072
XALT = 65536 - XSL
WRING = 65536
MISC = 147456
def IMG(kq): return kq * 9216
DROP = 0x30000
OOB = 0x40000000
WOT = 0
PART = 128 * 40960
PARTB = 64 * 20480
WFLG = PART + 32 * PARTB
PFLG = WFLG + 8192
WSBYTES = PFLG + 65536
PROFOFF = 0x4000000

SRD_X, SRD_K, SRD_V, SRD_W, SRD_WS, SRD_WO, SRD_OUT, SRD_DBG = 8, 12, 16, 20, 24, 28, 32, 36
S_W = 3
S_T0, S_T1, S_B, S_G, S_P, S_T2 = 40, 41, 42, 43, 44, 45
S_CS, S_NON, S_SPIN, S_PH, S_GRP, S_SO = 46, 48, 50, 51, 52, 53
S_BAD = 54
S_KOFF, S_VOFF, S_KB, S_KVN, S_M0KV, S_WFP = 56, 57, 58, 59, 60, 61
S_WOFF, S_WB, S_XOFF, S_XB = 62, 63, 65, 66
S_M0W, S_M0X, S_M0X8 = 68, 70, 72
S_WT, S_PT, S_PF, S_RD, S_OUTO = 76, 77, 78, 79, 80
S_LO, S_HI = 81, 82
S_TM = 84
S_VB = 88
S_M0KVP, S_KVP, S_M0D, S_U = 89, 91, 94, 95
S_LOOP = 92
S_WT2 = 98
S_XM = 96

V_DK, V_DV, V_DW, V_DX = 1, 5, 9, 13
V_AK, V_AV0, V_AV1, V_AX, V_AX8, V_LIN = 18, 19, 20, 21, 22, 24
V_E0, V_E1, V_E2 = 25, 26, 27
V_S = 28
V_AW = V_S + 40
V_O = 84
V_T = 244
V_NV = 252
A_Q, A_QN, A_L, A_ONE, A_POOL, A_X = 256, 336, 416, 436, 440, 472
A_QP = 480
NPOOL = 8
def Qf(n, ks, base=A_Q): return base + (n * 4 + ks) * 4
def Oa(n, m): return V_O + (n * 8 + m) * 4
def XS(par, n): return V_S + (par * 4 + n) * 4 if n < 4 else V_S + 48
def YS(n): return V_S + 32 + n * 4 if n < 4 else V_S + 52
def La(n): return A_L + 4 * n
def Xf(st, t): return V_S + (st * 5 + t) * 4
def QA(r, n, m): return (A_QN if r else V_O) + (n * 8 + m) * 4

def stamp(p, idx, dyn=None):
    if not PROF: return
    p.s(f"s_memrealtime s[{S_TM}:{S_TM+1}]")
    p.s(f"s_memtime s[{S_TM+2}:{S_TM+3}]")
    p.wait_lgkm0()
    if dyn is None:
        p.raw(f"v_writelane_b32 v0, s{S_TM}, {idx}")
        p.raw(f"v_writelane_b32 v255, s{S_TM+2}, {idx}")
    else:
        p.s(f"s_lshl_b32 m0, s{dyn}, 2")
        p.s(f"s_add_u32 m0, m0, {idx}")
        p.raw(f"v_writelane_b32 v0, s{S_TM}, m0")
        p.raw(f"v_writelane_b32 v255, s{S_TM+2}, m0")

KVSEQ = [("K", 0)]
for u in range(15): KVSEQ += [("K", u + 1), ("V", u)]
KVSEQ += [("V", 15)]
KVPOS = {t: i for i, t in enumerate(KVSEQ)}
def kv_ops(pos):
    pre = pos >= 32; pos %= 32
    kind, u = KVSEQ[pos]
    srd, vo, so, sb = (SRD_K, V_DK, S_KOFF, S_KB) if kind == "K" else (SRD_V, V_DV, S_VOFF, S_VB)
    ops = []
    for j in range(4):
        def f(p, j=j):
            if j == 0:
                p.s(f"s_add_u32 m0, s{S_M0KVP + (pos >> 2) if pre else S_M0D}, {(pos % 4) * 16384}")
                p.s(f"s_add_u32 s{S_SO}, s{S_KVP if pre else sb}, s{so}")
            if "D" not in ABL: p.dmao(vo + j, srd, f"s{S_SO}", j * 1024, (kind, u), "nt")
            if j == 1: p.s(f"s_add_u32 s{so}, s{so}, 8192")
            if j == 2: p.s(f"s_and_b32 s{so}, s{so}, 0x1ffff")
        ops.append((f, 12 if j == 0 else 8 if j < 3 else 4))
    return ops
def w_ops(h):
    ops = []
    for j in range(4):
        def f(p, j=j):
            if j == 0:
                p.s(f"s_add_u32 m0, s{S_M0W}, {(h % 4) * 16384}")
                p.s(f"s_add_u32 s{S_SO}, s{S_WB + (h & 1)}, s{S_WOFF}")
            if "W" not in ABL: p.dmao(V_DW + j, SRD_W, f"s{S_SO}", j * 1024, ("W", h))
            if j == 1 and h % 2 == 1: p.s(f"s_add_u32 s{S_WOFF}, s{S_WOFF}, {32 * 8192}")
            if j == 2 and h % 4 == 3:
                p.s(f"s_cmp_ge_u32 s{S_WOFF}, {640 * 8192}")
                p.s(f"s_cselect_b32 s{S_WOFF}, 0, s{S_WOFF}")
        ops.append((f, 12 if j == 0 or (j == 2 and h % 4 == 3) else 8 if j == 1 and h % 2 else 4))
    return ops
def x_ops(i):
    ops = []
    sb = XRING if i else XALT
    for j in range(5):
        def f(p, j=j):
            if j == 0:
                p.s(f"s_add_u32 m0, s{S_M0KV}, {sb}")
                p.s(f"s_add_u32 s{S_SO}, s{S_XB}, s{S_XOFF}")
            if "X" not in ABL: p.dmao(V_DX + j, SRD_X, f"s{S_SO}", (j & 3) * 1024, ("X", i))
            if j == 1: p.s(f"s_add_u32 s{S_XOFF}, s{S_XOFF}, 128")
            if j == 2:
                p.s(f"s_cmp_ge_u32 s{S_XOFF}, 1280")
                p.s(f"s_cselect_b32 s{S_XOFF}, 0, s{S_XOFF}")
            if j == 3:
                p.s(f"s_add_u32 m0, s{S_M0X8}, {sb}")
                p.nop(0)
        ops.append((f, 12 if j in (0, 2, 3) else 8 if j == 1 else 4))
    return ops

def split_ops(ops):
    q = Prog()
    for f, _ in ops: f(q)
    out = []; i = 0; L = [x for x in q.ins if x.kind != "nop"]
    while i < len(L):
        grp = [L[i]]
        if L[i].text.startswith("s_cmp"): grp.append(L[i + 1])
        i += len(grp)
        out.append((lambda p, grp=grp: [p.add(x) for x in grp], "vm" if grp[0].kind in ("vm", "vml", "vms") else "s", 4 * len(grp)))
    return out
def fill_dma(sc, ops, after, before, tag=None, queue="dma", lead=80):
    so = split_ops(ops)
    for k, (fn, kind, cost) in enumerate(so):
        sc.fill(queue, fn, 8 if kind == "vm" else cost, after=after, before=before, lead=lead, solo=(kind == "vm" and SOLO), paced=(kind == "vm"),
                tag=tag if k == len(so) - 1 else None)
SOLO = int(E("SOLO", "1"))

def get_nonce(p, name, t):
    p.add(Ins(f"v_readfirstlane_b32 s{S_NON}, v{V_NV}", "rfl", [V_NV], []))
    p.add(Ins(f"v_readfirstlane_b32 s{S_NON+1}, v{V_NV+1}", "rfl", [V_NV + 1], []))
    p.s(f"s_cmp_lt_i32 s{S_NON+1}, 0")
    p.s(f"s_cbranch_scc1 {name}_x")
    p.vop("v_mov_b32", t + 2, "0")
    p.label(f"{name}")
    p.raw(f"buffer_load_dwordx2 v[{t}:{t+1}], v{t+2}, s[{SRD_DBG}:{SRD_DBG+3}], 0 offen sc1")
    p.raw("s_waitcnt vmcnt(0)")
    p.raw(f"v_readfirstlane_b32 s{S_NON}, v{t}")
    p.raw(f"v_readfirstlane_b32 s{S_NON+1}, v{t+1}")
    p.s(f"s_sub_u32 s{S_SPIN}, s{S_SPIN}, 1")
    p.s(f"s_cbranch_scc1 {name}_x")
    p.s(f"s_cmp_lt_i32 s{S_NON+1}, 0")
    p.s(f"s_cbranch_scc0 {name}")
    p.label(f"{name}_x")
    p.nop(1)

def publish(p, soff, off, t):
    p.vop("v_mov_b32", t, f"s{S_NON}")
    p.vop("v_mov_b32", t + 1, f"s{S_NON+1}")
    p.s("s_mov_b64 exec, 1")
    p.store(t, 2, V_LIN, SRD_WS, soff, off, tag="flag", flags="sc1")
    p.s("s_mov_b64 exec, -1")

def poll_issue(p, vaddr, soff, off, t):
    p.add(Ins(f"buffer_load_dwordx2 v[{t}:{t+1}], v{vaddr}, s[{SRD_WS}:{SRD_WS+3}], {soff} offen offset:{off} sc1", "vml", [vaddr], [t, t + 1], tag="poll"))
def poll_check(p, name, vaddr, soff, off, t, slp=2):
    p.label(f"{name}")
    p.add(Ins(f"v_cmp_ne_u32 vcc, s{S_NON}, v{t}", "valu", [t], []))
    p.add(Ins(f"v_cmp_ne_u32 s[{S_TM+2}:{S_TM+3}], s{S_NON+1}, v{t+1}", "valu", [t + 1], []))
    p.s(f"s_or_b64 vcc, vcc, s[{S_TM+2}:{S_TM+3}]")
    p.s(f"s_cbranch_scc0 {name}_ok")
    p.s(f"s_sub_u32 s{S_SPIN}, s{S_SPIN}, 1")
    p.s(f"s_cbranch_scc1 {name}_ok")
    if slp: p.s(f"s_sleep {slp}")
    p.raw(f"buffer_load_dwordx2 v[{t}:{t+1}], v{vaddr}, s[{SRD_WS}:{SRD_WS+3}], {soff} offen offset:{off} sc1")
    p.raw("s_waitcnt vmcnt(0)")
    p.s(f"s_branch {name}")
    p.label(f"{name}_ok")

def prologue(name):
    p = Prog()
    p.s(f"s_cmp_ge_u32 s2, {NWG}")
    p.s(f"s_cbranch_scc1 {name}_end")
    p.s("s_load_dwordx8 s[84:91], s[0:1], 0")
    p.s("s_load_dwordx8 s[92:99], s[0:1], 32")
    T = V_O
    W, L, a, b, c, d, U, P, VV, R8, PI, M, G, cv = range(T, T + 14)
    p.vop("v_lshrrev_b32", W, "6", 0)
    p.vop("v_and_b32", L, "63", 0)
    p.add(Ins(f"v_readfirstlane_b32 s{S_W}, v{W}", "rfl", [W], []))
    p.vop("v_and_b32", U, "1", W)
    p.vop("v_lshrrev_b32", P, "1", W)
    p.vop("v_lshrrev_b32", VV, "5", L)
    p.vop("v_bfe_u32", R8, L, "2", "3")
    p.vop("v_and_b32", PI, "3", L)
    p.s(f"s_movk_i32 s{S_T0}, 1280")
    p.vop("v_mul_lo_u32", a, R8, f"s{S_T0}")
    p.vop("v_lshl_add_u32", a, VV, "6", a)
    p.vop("v_xor_b32", c, "3", PI)
    p.vop("v_lshl_add_u32", V_DX, PI, "4", a)
    p.vop("v_lshl_add_u32", b, c, "4", a)
    p.vop("v_add_u32", V_DX + 1, f"{9216}", b)
    p.vop("v_add_u32", V_DX + 2, f"{2 * 9216}", V_DX)
    p.vop("v_add_u32", V_DX + 3, f"{3 * 9216}", b)
    p.vop("v_lshrrev_b32", d, "2", R8)
    p.vop("v_lshlrev_b32", cv, "1", d)
    p.vop("v_xor_b32", cv, cv, PI)
    p.vop("v_and_b32", b, "3", R8)
    p.vop("v_lshl_add_u32", b, d, "3", b)
    p.vop("v_lshlrev_b32", d, "7", U)
    p.vop("v_lshl_add_u32", d, VV, "6", d)
    p.vop("v_lshl_add_u32", b, b, "13", d)
    p.vop("v_lshl_add_u32", V_DW, cv, "4", b)
    for j in range(1, 4): p.vop("v_add_u32", V_DW + j, f"{(16 * (j & 1) + 4 * (j >> 1)) * 8192 - 1024 * j}", V_DW)
    p.vop("v_mul_u32_u24", b, "3", P)
    p.vop("v_xor_b32", b, b, PI)
    p.vop("v_lshl_add_u32", b, b, "4", a)
    p.vop("v_lshlrev_b32", a, "2", W)
    p.vop("v_sub_u32", a, P, a)
    p.vop("v_add_u32", a, "16", a)
    p.s(f"s_movk_i32 s{S_T1}, {8 * 1280}")
    p.vop("v_mul_lo_u32", a, a, f"s{S_T1}")
    p.vop("v_add_u32", a, a, b)
    p.vop("v_lshl_add_u32", V_DX + 4, U, "30", a)
    MAP = int(E("MAP", "0"))
    p.s(f"s_bfe_u32 s{S_T0}, s2, {(MAP << 16) | 3:#x}")
    p.s(f"s_lshr_b32 s{S_T2}, s2, {3 + MAP}")
    p.s(f"s_and_b32 s{S_G}, s2, {(1 << (3 - MAP)) - 1}")
    p.s(f"s_lshl_b32 s{S_G}, s{S_G}, {MAP}")
    p.s(f"s_or_b32 s{S_G}, s{S_G}, s{S_T0}")
    p.s(f"s_bfe_u32 s{S_B}, s2, {(MAP << 16) | (3 - MAP):#x}")
    p.s(f"s_lshl_b32 s{S_B}, s{S_B}, {5 - MAP}")
    p.s(f"s_or_b32 s{S_B}, s{S_B}, s{S_T2}")
    p.s(f"s_lshl_b32 s{S_T0}, s{S_T0}, {5 - MAP}")
    p.s(f"s_lshl_b32 s{S_T2}, s{S_T2}, {MAP}")
    p.s(f"s_add_u32 s{S_T2}, s{S_T2}, s{S_T0}")
    p.s(f"s_and_b32 s{S_T2}, s{S_T2}, 31")
    p.s(f"s_lshr_b32 s{S_P}, s{S_W}, 1")
    p.s(f"s_lshl_b32 s{S_M0KV}, s{S_W}, 12")
    p.s(f"s_add_u32 s{S_M0W}, s{S_M0KV}, {WRING}")
    p.s(f"s_lshl_b32 s{S_M0X8}, s{S_P}, 10")
    p.s(f"s_add_u32 s{S_M0X8}, s{S_M0X8}, 16384")
    p.s(f"s_bitcmp1_b32 s{S_W}, 0")
    p.s(f"s_cselect_b32 s{S_M0X8}, 0x1d000, s{S_M0X8}")
    p.s(f"s_lshl_b32 s{S_T0}, s{S_G}, 2")
    p.s(f"s_add_u32 s{S_T0}, s{S_T0}, s{S_P}")
    p.s(f"s_lshl_b32 s{S_WB}, s{S_T0}, 8")
    p.s(f"s_add_u32 s{S_WB+1}, s{S_WB}, 512")
    p.s(f"s_lshl_b32 s{S_T1}, s{S_B}, 5")
    p.s(f"s_add_u32 s{S_T0}, s{S_T0}, s{S_T1}")
    p.s(f"s_lshl_b32 s{S_KVN}, s{S_T0}, 17")
    p.s(f"s_mul_i32 s{S_T0}, s{S_T2}, 5")
    p.s(f"s_lshr_b32 s{S_T0}, s{S_T0}, 4")
    if not int(E("ROT", "1")): p.s(f"s_mov_b32 s{S_T0}, 0")
    p.s(f"s_lshl_b32 s{S_XOFF}, s{S_T0}, 7")
    p.s(f"s_lshl_b32 s{S_WOFF}, s{S_T0}, 19")
    p.s(f"s_mul_i32 s{S_XB}, s{S_B}, {144 * 1280}")
    p.s(f"s_mul_i32 s{S_T0}, s{S_W}, {32 * 1280}")
    p.s(f"s_add_u32 s{S_XB}, s{S_XB}, s{S_T0}")
    def srd(r, src, size):
        p.s(f"s_mov_b32 s{r+2}, {size:#x}")
        p.s(f"s_mov_b32 s{r+3}, 0x20000")
    def srd2(r, src):
        p.s(f"s_mov_b32 s{r}, s{src}")
        p.s(f"s_and_b32 s{r+1}, s{src+1}, 0xffff")
    SR = ((SRD_X, 84, 32 * 144 * 640 * 2), (SRD_W, 90, 640 * 4096 * 2), (SRD_K, 86, 1 << 27), (SRD_V, 88, 1 << 27),
          (SRD_WO, 92, 4096 * 640 * 2), (SRD_OUT, 94, 32 * 144 * 640 * 2), (SRD_DBG, 96, 256), (SRD_WS, 98, (1 << 28) if PROF else WSBYTES))
    for x in SR: srd(*x)
    p.s("s_waitcnt lgkmcnt(0)")
    for x in SR[:2]: srd2(*x[:2])
    for ops in (x_ops(0), w_ops(0), w_ops(1)):
        for f, _ in ops: f(p)
    for x in SR[2:]: srd2(*x[:2])
    stamp(p, 0)
    p.vop("v_lshlrev_b32", V_LIN, "4", L)
    p.vop("v_lshl_add_u32", b, R8, "8", d)
    p.vop("v_lshl_add_u32", V_DK, PI, "4", b)
    p.vop("v_lshl_add_u32", a, c, "4", b)
    p.vop("v_add_u32", V_DK + 1, "1024", a)
    p.vop("v_add_u32", V_DK + 2, "2048", V_DK)
    p.vop("v_add_u32", V_DK + 3, "3072", a)
    p.vop("v_lshl_add_u32", V_DV, cv, "4", b)
    for j in range(1, 4): p.vop("v_add_u32", V_DV + j, f"{1024 * j}", V_DV)
    p.s(f"s_lshl_b32 s{S_T0}, s2, 1")
    p.s(f"s_add_u32 s{S_T0}, s{S_T0}, s{S_P}")
    p.s(f"s_mul_i32 s{S_T0}, s{S_T0}, {int(E('KROT', '5'))}")
    p.s(f"s_lshr_b32 s{S_T1}, s2, 3")
    p.s(f"s_add_u32 s{S_T0}, s{S_T0}, s{S_T1}")
    p.s(f"s_and_b32 s{S_T0}, s{S_T0}, {15 if int(E('KROT', '5')) else 0}")
    p.s(f"s_lshl_b32 s{S_KOFF}, s{S_T0}, 13")
    p.s(f"s_mov_b32 s{S_VOFF}, s{S_KOFF}")
    p.s(f"s_mov_b32 s{S_M0KVP}, s{S_M0KV}")
    p.s(f"s_mov_b32 s{S_M0KVP+1}, s{S_M0W}")
    p.s(f"s_mov_b32 s{S_KVP}, s{S_KVN}")
    p.s(f"s_and_b32 s{S_U}, s{S_W}, 1")
    p.s(f"s_lshl_b32 s{S_T0}, s{S_B}, 2")
    p.s(f"s_lshr_b32 s{S_T1}, s{S_G}, 1")
    p.s(f"s_add_u32 s{S_T0}, s{S_T0}, s{S_T1}")
    p.s(f"s_and_b32 s{S_T1}, s{S_G}, 1")
    p.s(f"s_lshl_b32 s{S_T1}, s{S_T1}, 2")
    p.s(f"s_add_u32 s{S_T1}, s{S_T1}, s{S_W}")
    p.s(f"s_lshr_b32 s{S_WFP}, s{S_T1}, 1")
    p.s(f"s_lshl_b32 s{S_WFP}, s{S_WFP}, 7")
    p.s(f"s_add_u32 s{S_WFP}, s{S_WFP}, s{S_T0}")
    p.s(f"s_lshl_b32 s{S_WFP}, s{S_WFP}, 1")
    p.s(f"s_add_u32 s{S_WFP}, s{S_WFP}, s{S_U}")
    p.s(f"s_lshl_b32 s{S_WFP}, s{S_WFP}, 3")
    p.s(f"s_add_u32 s{S_WFP}, s{S_WFP}, {WFLG}")
    p.s(f"s_mul_i32 s{S_T1}, s{S_T1}, 5")
    p.s(f"s_mul_i32 s{S_T0}, s{S_T0}, 40960")
    p.s(f"s_lshl_b32 s{S_PT}, s{S_T1}, 10")
    p.s(f"s_add_u32 s{S_PT}, s{S_PT}, s{S_T0}")
    p.s(f"s_lshr_b32 s{S_T1}, s{S_T1}, 1")
    p.s(f"s_lshl_b32 s{S_T1}, s{S_T1}, 6")
    p.s(f"s_add_u32 s{S_WT}, s{S_T1}, s{S_T0}")
    p.s(f"s_mul_i32 s{S_RD}, s{S_W}, 6144")
    if int(E("TOUCH", "1")):
        p.add(Ins(f"buffer_load_dword v{V_T+4}, off, s[{SRD_K}:{SRD_K+3}], s{S_KVN} nt", "vml", [], [V_T + 4], tag="touch"))
        p.add(Ins(f"buffer_load_dword v{V_T+5}, off, s[{SRD_V}:{SRD_V+3}], s{S_KVN} nt", "vml", [], [V_T + 5], tag="touch"))
        p.add(Ins(f"buffer_load_dword v{V_T+7}, off, s[{SRD_WS}:{SRD_WS+3}], s{S_PT} sc1", "vml", [], [V_T + 7], tag="touch"))
    p.vop("v_lshrrev_b32", a, "2", L)
    p.s(f"s_movk_i32 s{S_T0}, 1280")
    p.vop("v_mul_lo_u32", a, a, f"s{S_T0}")
    p.vop("v_lshl_add_u32", V_E2, PI, "4", a)
    for i in range(6):
        p.s(f"s_add_u32 m0, s{S_RD}, {i * 1024}")
        p.s(f"s_add_u32 s{S_SO}, s{S_WT}, {(i & 1) * 16 * 1280 + (i >> 1) * 64}")
        p.dma(V_E2, SRD_WO, f"s{S_SO}", "WOP", E("WOFL", "nt"))
    p.s(f"s_or_b32 s{S_T0}, s2, s{S_W}")
    p.s(f"s_cmp_lg_u32 s{S_T0}, 0")
    p.s(f"s_cbranch_scc1 {name}_nononce")
    p.s(f"s_memrealtime s[{S_NON}:{S_NON+1}]")
    p.s("s_waitcnt lgkmcnt(0)")
    p.s(f"s_or_b32 s{S_NON+1}, s{S_NON+1}, 0x80000000")
    p.raw(f"v_mov_b32 v{V_T}, s{S_NON}")
    p.raw(f"v_mov_b32 v{V_T+1}, s{S_NON+1}")
    p.s("s_mov_b64 exec, 1")
    p.raw(f"buffer_store_dwordx2 v[{V_T}:{V_T+1}], v{V_LIN}, s[{SRD_DBG}:{SRD_DBG+3}], 0 offen sc1")
    p.s("s_mov_b64 exec, -1")
    p.label(f"{name}_nononce")
    p.s(f"s_mov_b32 s{S_SPIN}, 0x40000")
    p.s(f"s_mov_b32 s{S_PH}, 0")
    if PROF in (2, 3): p.s("s_mov_b32 s93, 32")
    p.s(f"s_mov_b64 s[{S_BAD}:{S_BAD+1}], 0")
    p.s(f"s_mov_b32 s{S_CS}, {f2u(CSCALE):#x}")
    p.s(f"s_mov_b32 s{S_CS+1}, s{S_CS}")
    p.s(f"s_mov_b32 s{S_LO}, {f2u(2.0 ** -16):#x}")
    p.s(f"s_mov_b32 s{S_HI}, {f2u(2.0 ** 24):#x}")
    p.vop("v_and_b32", M, "15", L)
    p.vop("v_lshrrev_b32", G, "4", L)
    p.vop("v_lshrrev_b32", a, "3", M)
    p.vop("v_mul_u32_u24", c, "3", a)
    p.vop("v_xor_b32", c, c, G)
    p.vop("v_and_b32", b, "7", M)
    p.vop("v_lshlrev_b32", b, "6", b)
    p.vop("v_lshl_add_u32", b, c, "4", b)
    p.vop("v_lshl_add_u32", b, a, "10", b)
    p.vop("v_add_u32", V_AX8, f"{XRING}", b)
    p.vop("v_lshl_add_u32", V_AX, U, "13", V_AX8)
    p.vop("v_add_u32", V_AW + 5, f"{XALT}", b)
    p.vop("v_lshl_add_u32", V_AW + 4, U, "13", V_AW + 5)
    p.vop("v_add_u32", c, f"s{S_RD}", V_LIN)
    p.vop("v_lshl_add_u32", V_E0, U, "3", c)
    p.vop("v_mul_u32_u24", a, "2040", U)
    p.v(f"v_add3_u32 v{V_E1}, v{c}, v{a}, 8", [V_E1], [c, a])
    p.vop("v_lshl_add_u32", V_AK, P, "13", b)
    p.vop("v_lshrrev_b32", a, "1", G)
    p.vop("v_lshlrev_b32", b, "10", a)
    p.vop("v_lshl_add_u32", b, R8, "6", b)
    p.vop("v_and_b32", c, "1", L)
    p.vop("v_lshl_add_u32", b, c, "3", b)
    p.vop("v_bfe_u32", c, L, "1", "1")
    p.vop("v_lshl_add_u32", b, c, "4", b)
    p.vop("v_and_b32", c, "1", G)
    p.vop("v_lshl_add_u32", b, c, "5", b)
    p.vop("v_lshl_add_u32", V_AV0, P, "13", b)
    p.vop("v_xor_b32", V_AV1, "32", V_AV0)
    p.vop("v_lshl_add_u32", a, U, "12", V_AV0)
    p.vop("v_xor_b32", b, "32", a)
    p.vop("v_xor_b32", c, "4096", a)
    p.vop("v_xor_b32", d, "4096", b)
    for i, r in enumerate((a, b, c, d)): p.vop("v_add_u32", V_AW + i, f"{WRING}", r)
    for ops in (w_ops(2), x_ops(1), w_ops(3)):
        for f, _ in ops: f(p)
    stamp(p, 23)
    return p

def R128(d, a, off): return lambda p: p.ds_read128(d, a, off)
def TR(d, a, off): return lambda p: p.ds_tr(d, a, off)

class Pool:
    def __init__(self, sc, base, n):
        self.sc = sc; self.regs = base if isinstance(base, list) else [base + 4 * k for k in range(n)]; n = len(self.regs); self.n = n; self.last = [None] * n; self.i = 0; self.frags = []
    def frag(self, tile, mk_reads, consumers, as_b=False):
        k = self.i % self.n; self.i += 1
        r = self.regs[k]
        war = self.last[k]
        for (d, o, c, tag) in consumers:
            if as_b: self.sc.mfma(d, o, r, c, tag)
            else: self.sc.mfma(d, r, o, c, tag)
        self.last[k] = consumers[-1][3]
        self.frags.append((tile, mk_reads(r), consumers[0][3], war))

LEAD = int(E("LEAD", "9"))
LEADB = int(E("LEADB", "8"))
BGAP = int(E("BGAP", "4"))

def sstamp(p):
    p.s(f"s_memrealtime s[{S_TM}:{S_TM+1}]")
    p.s(f"s_memtime s[{S_TM+2}:{S_TM+3}]")
    p.wait_lgkm0()
    p.s("s_mov_b32 m0, s93")
    p.s("s_add_u32 s93, s93, 1")
    p.raw(f"v_writelane_b32 v0, s{S_TM}, m0")
    p.raw(f"v_writelane_b32 v255, s{S_TM+2}, m0")

def qmod(name):
    p = Prog()
    KVS = [int(x) for x in E("KVS", "28,30,32,34,37,38,39").split(",")]
    sc = Sched(p, budget=int(E("QBUD", "8")), late_extra=8)
    sc.group["dma"] = "vm"; sc.pace["vm"] = int(E("QPACE", "4"))
    sc.maxds = int(E("QMAXDS", "1"))
    pool = Pool(sc, A_QP, NPOOL)
    for h in range(40):
        r = h & 1; st = (h >> 1) & 1
        for k in range(8):
            off = (h % 4) * 16384 + ((k >> 1) & 1) * 512
            ad = V_AW + 2 * (k >> 2) + (k & 1)
            cons = [(QA(r, n, k), Xf(st, n), QA(r, n, k) if h > 1 else None, ("Q", h, k, n)) for n in range(5 if k < 4 else 4)]
            pool.frag(h, lambda rg: [TR(rg, ad, off), TR(rg + 2, ad, off + 2048)], cons)
    mt = lambda i: sc.m[max(0, min(i, len(sc.m) - 1))][4]
    def xreads(i, kh):
        return [R128(Xf(kh, n), (V_AX if i else V_AW + 4) + (n >> 2), (n if n < 4 else 8) * 2048 + kh * 512) for n in range(5)]
    WOS = int(E("WOS", "2"))
    def wst():
        def f(p):
            for i in range(5):
                if i == 4: p.s(f"s_add_u32 s{S_PT}, s{S_PT}, 4096")
                p.store(A_Q + 4 * i, 4, V_LIN, SRD_WS, f"s{S_PT}", (i % 4) * 1024, tag="wst", flags="sc1")
        return [(f, 20)]
    for fi, (h, reads, cons, war) in enumerate(pool.frags):
        c0 = 36 * h
        tau = c0 - LEADB
        taun = c0 + 36 - LEADB
        if fi % 8 == 0:
            def bar(p, h=h):
                p.comment(f"---- q step {h}")
                tags = [("W", h)]
                if h == 0: tags.append(("X", 0))
                if h % 4 == 3 and h < 39: tags.append(("X", (h + 1) // 4))
                p.wait_vm(tags, lgkm0=True)
                if "b" not in ABL or h < 4: p.barrier()
                if PROF == 2 and h % 2 == 0: sstamp(p)
            ops = []
            if h % 4 == 1 and 5 <= h < 37: ops += x_ops(h // 4 + 1)
            if 1 <= h < 37: ops += w_ops(h + 3)
            if "d" in ABL: ops = []
            if h == WOS:
                sc.fill("rw", lambda p: p.wait_vm("WOP"), 4, after=dict(tag=("BAR", h), delay=4), before=mt(taun - BGAP), lead=24)
                for i in range(10):
                    sc.fill("rw", TR(A_Q + 2 * i, V_E0 + ((i >> 1) & 1), (i >> 2) * 2048 + (i & 1) * 1024), 4, ds=True, before=mt(taun - BGAP), lead=2 * (10 - i))
            if h == 36: ops += wst()
            for k, x in enumerate(KVS):
                if x == h: ops += kv_ops(32 + k)
            sc.fill("rd", bar, 8, before=mt(tau), early=0 if h else None, tag=("BAR", h))
            QD = int(E("QD", "14")) if len(ops) <= 4 else int(E("QD2", "0"))
            fill_dma(sc, ops, dict(tag=("BAR", h), delay=QD), mt(taun - 1))
            if h == 0:
                for k, fn in enumerate(xreads(0, 0)): sc.fill("rd", fn, 4, ds=True, before=mt(0))
            xr = []; aft = [("BAR", h)]
            if h % 4 == 3 and h < 39: xr = xreads((h + 1) // 4, 0)
            if h % 4 == 0:
                xr = xreads(h // 4, 1)
                if h: aft.append(("Q", h - 1, 7, 3))
            for j, fn in enumerate(xr):
                sc.fill("rx", fn, 4, ds=True, after=aft, before=mt(taun - BGAP), lead=3 * (len(xr) - j))
        for k, fn in enumerate(reads):
            if "r" in ABL and h >= 2: continue
            bf = cons
            if sc.idx[cons] > taun - BGAP: bf = mt(taun - BGAP)
            sc.fill("rd", fn, 4, ds=True, after=war if k == 0 else None, before=bf, lead=LEAD if bf is cons else 0, early=int(E("QEARLY", "99")))
    def lastbar(p):
        p.comment("---- q step 40")
        p.wait_lgkm0(); p.barrier()
        for f, _ in kv_ops(39): f(p)
        p.add(Ins(f"buffer_load_dwordx2 v[{V_NV}:{V_NV+1}], off, s[{SRD_DBG}:{SRD_DBG+3}], 0 sc1", "vml", [], [V_NV, V_NV + 1], tag="non"))
    sc.fill("rd", lastbar, 8, before=mt(36 * 40 - LEADB), early=0)
    sc.run()
    stamp(p, 1)
    TB = V_O + 144
    cnt = [0]
    def fin(r, n, t, i):
        s0 = QA(r, n, 2 * t)
        if r:
            tb = TB + 8 * (cnt[0] & 1); cnt[0] += 1
            for x in range(8): p.ar(tb + x, s0 + x)
            s0 = tb
        dst = V_S + 4 * i
        for x in range(0, 8, 2): p.pkmul(s0 + x, s0 + x, f"s[{S_CS}:{S_CS+1}]")
        for x in range(4): p.cvtpk(dst + x, s0 + 2 * x, s0 + 2 * x + 1)
        return dst
    def swp(dst):
        p.swap32(dst, dst + 2); p.swap32(dst + 1, dst + 3)
        p.swap16(dst, dst + 2); p.swap16(dst + 1, dst + 3)
    p.v(f"v_lshl_add_u32 v{V_E0}, s{S_W}, 12, v{V_LIN}", [V_E0], [V_LIN])
    p.vop("v_add_u32", V_E0, f"{XRING}", V_E0)
    p.vop("v_xor_b32", V_E1, "4096", V_E0)
    d8 = [fin(r, 4, t, 2 * r + t) for r in range(2) for t in range(2)]
    for d in d8: swp(d)
    for t, d in enumerate(d8): p.ds_write(V_E0, d, 4, t * 1024)
    for r in range(2):
        base = A_QN if r else A_Q
        for n in range(4):
            ds = [fin(r, n, t, 4 + (n & 1) * 4 + t) for t in range(4)]
            if r == 0 and n == 0:
                p.wait_lgkm0(); p.barrier()
                for t in range(2): p.ds_read128(Qf(4, t), V_E0, t * 1024)
                for t in range(2): p.ds_read128(Qf(4, 2 + t), V_E1, t * 1024)
            for d in ds: swp(d)
            for t, d in enumerate(ds):
                for x in range(4): p.aw(Qf(n, t, base) + x, d + x)
    for t in range(2): p.ds_read128(Qf(4, t, A_QN), V_E0, 2048 + t * 1024)
    for t in range(2): p.ds_read128(Qf(4, 2 + t, A_QN), V_E1, 2048 + t * 1024)
    p.vop("v_mov_b32", V_T, "0x3f803f80")
    for r in range(4): p.aw(A_ONE + r, V_T)
    get_nonce(p, f"{name}_n1", V_T)
    p.wait_vm("wst")
    publish(p, f"s{S_WFP}", 0, V_T)
    z = p
    z.s(f"s_mul_i32 s{S_WT}, s{S_G}, {16 * 40960}")
    z.s(f"s_mul_i32 s{S_T0}, s{S_W}, 10240")
    z.s(f"s_add_u32 s{S_WT}, s{S_WT}, s{S_T0}")
    z.s(f"s_lshl_b32 s{S_PF}, s{S_W}, 11")
    z.s(f"s_lshl_b32 s{S_T1}, s{S_G}, 8")
    z.s(f"s_add_u32 s{S_PF}, s{S_PF}, s{S_T1}")
    z.s(f"s_add_u32 s{S_PF}, s{S_PF}, {WFLG}")
    z.vop("v_lshrrev_b32", V_AX, "1", V_LIN)
    z.vop("v_and_b32", V_AX, "0xf8", V_AX)
    stamp(z, 2)
    return p

def a_mfmas(sc, pool, qh):
    AV = (V_AV0, V_AV1)
    has8 = lambda u: (u & 1) == qh
    for pos, (kind, u) in enumerate(KVSEQ):
        sb = (pos % 4) * 16384
        ns = [0, 1, 2, 3] + ([4] if has8(u) else [])
        if kind == "K":
            for kt in range(2):
                for ks in range(4):
                    off = sb + kt * 2048 + ((ks >> 1) ^ qh) * 4096 + (ks & 1) * 512
                    cons = []
                    for n in ns:
                        d = XS(u & 1, n) if kt == 0 else YS(n)
                        cons.append((d, Qf(n, ks), d if ks else None, ("S", u, kt, ks, n)))
                    pool.frag(pos, lambda r: [R128(r, V_AK, off)], cons)
        else:
            first = lambda n: u == 0 if n < 4 else u == qh
            for n in ns: sc.mfma(La(n), A_ONE, XS(u & 1, n), None if first(n) else La(n), ("L", u, n))
            for m in range(8):
                e, mp = m & 1, m >> 1
                off = sb + (mp >> 1) * 4096 + (mp & 1) * 512
                oa = lambda n: Oa(n, m if n < 4 else m ^ (4 * qh))
                cons = [(oa(n), XS(u & 1, n), None if first(n) else oa(n), ("PV", u, m, n)) for n in ns]
                pool.frag(pos, lambda r: [TR(r, AV[e], off), TR(r + 2, AV[e], off + 2048)], cons)

def a_taus():
    cs = []
    for qh in range(2):
        sc = Sched(Prog()); pool = Pool(sc, A_POOL, NPOOL); a_mfmas(sc, pool, qh)
        c = {}
        for (pos, _, cons, _) in pool.frags: c.setdefault(pos, sc.idx[cons])
        c[32] = len(sc.m) + LEADB - 3
        cs.append(c)
    return [min(cs[0][j], cs[1][j]) - LEADB for j in range(33)]

def aentry(name):
    p = Prog()
    p.label(f"{name}_A")
    p.s(f"s_mov_b32 s{S_KB}, s{S_KVN}")
    p.s(f"s_mov_b32 s{S_VB}, s{S_KVN}")
    p.s(f"s_add_u32 s{S_KVN}, s{S_KVN}, {2 << 17}")
    p.s(f"s_mov_b32 s{S_M0D}, s{S_M0W}")
    p.s(f"s_cmp_eq_u32 s{S_PH}, 0")
    p.s(f"s_cselect_b32 s{S_M0KVP}, s{S_M0KV}, {DROP:#x}")
    p.s(f"s_cselect_b32 s{S_M0KVP+1}, s{S_M0W}, {DROP:#x}")
    p.s(f"s_cselect_b32 s{S_KVP}, s{S_KVN}, {OOB:#x}")
    p.s(f"s_cselect_b64 s[{S_XM}:{S_XM+1}], 0, -1")
    p.s(f"s_cselect_b32 s{S_WT2}, {OOB:#x}, s{S_WT}")
    p.s(f"s_cmp_eq_u32 s{S_U}, 1")
    p.s(f"s_cbranch_scc1 {name}_A1")
    return p

def tile_addr(p, base, dst):
    p.s(f"s_lshl_b32 s{S_T0}, s{S_U}, 2")
    p.s(f"s_sub_u32 s{S_T0}, s{S_T0}, s{S_G}")
    for n in range(4):
        p.s(f"s_add_u32 s{S_T1}, s{S_T0}, {n + 7}")
        p.s(f"s_and_b32 s{S_T1}, s{S_T1}, 7")
        p.v(f"v_lshl_add_u32 v{dst+n}, s{S_T1}, 10, v{base}", [dst + n], [base])

WORD = list(range(20, 32)) + list(range(20))
def amod(name, qh):
    p = Prog()
    p.label(f"{name}_A{qh}")
    sc = Sched(p, budget=int(E("ABUD", "8")), late_extra=int(E("ALATE", "8")))
    sc.group["dma"] = "vm"; sc.pace["vm"] = int(E("APACE", "7"))
    pool = Pool(sc, A_POOL, NPOOL)
    a_mfmas(sc, pool, qh)
    tau = a_taus()
    mt = lambda i: sc.m[max(0, min(i, len(sc.m) - 1))][4]
    def add_bar(pos):
        def bar(p, pos=pos):
            p.comment(f"---- a step {pos}")
            if pos < 32: p.wait_vm(KVSEQ[pos], lgkm0=True)
            else: p.wait_lgkm0()
            p.barrier()
            if pos % 4 == 0 and pos:
                for r in (V_AV0, V_AV1, V_AK): p.vop("v_xor_b32", r, "0x10000", r)
            if PROF == 3 and pos % 2 == 0 and pos < 32: sstamp(p)
        sc.fill("rd", bar, 8, after=[("DMA", pos - 1)] if pos >= 2 else None, before=mt(tau[pos]), early=0 if pos else None, tag=("BAR", pos))
        if 1 <= pos < 32:
            ops = kv_ops(pos + 7)
            if pos % 4 == 1 and pos < 25: ops = [(lambda p: p.s(f"s_xor_b32 s{S_M0D}, s{S_M0D}, 0x10000"), 4)] + ops
            aft = ("BAR", pos); bf = mt(tau[pos + 1] - 1)
            fill_dma(sc, ops, aft, bf, tag=("DMA", pos))
            if pos == 30:
                NWL = int(E("NWL", "12")); WLS = int(E("WLS", "6"))
                last = ("S", 15, 1, 3, 4 if qh == 1 else 3)
                for k in range(NWL):
                    for fn, kind, cost in split_ops([(wload(0, k, S_T2, S_WT2), 8)]):
                        sc.fill("dmp", fn, 8 if kind == "vm" else 4, after=dict(tag=last, delay=2 + WLS * k), solo=(kind == "vm"), before=mt(sc.idx[last] + 12 + WLS * k), lead=9)
    cur = None
    for (pos, reads, cons, war) in pool.frags:
        if pos != cur:
            cur = pos; add_bar(pos)
        for k, fn in enumerate(reads):
            bf = cons
            if sc.idx[cons] > tau[pos + 1] - BGAP: bf = mt(tau[pos + 1] - BGAP)
            sc.fill("rd", fn, 4, ds=True, after=war if k == 0 else None, before=bf, lead=LEAD if bf is cons else 0)
    add_bar(32)
    def V(fn, after=None, before=None, cost=4, lead=0): sc.fill("va", fn, cost, after=after, before=before, lead=lead)
    EDL = int(E("EDL", "3"))
    for u in range(16):
        ns = [0, 1, 2, 3] + ([4] if (u & 1) == qh else [])
        for kt in range(2):
            for n in ns:
                src = XS(u & 1, n) if kt == 0 else YS(n)
                dst = XS(u & 1, n) + 2 * kt
                for r in range(4):
                    V(lambda p, reg=src + r: p.exp(reg, reg), after=dict(tag=("S", u, kt, 3, n), delay=EDL), cost=8)
                bf = ("L", u, n)
                if kt == 1 and n < 4 and u < 15: bf = ("S", u + 1, 1, 0, n)
                V(lambda p, dst=dst, src=src: p.cvtpk(dst, src, src + 1))
                V(lambda p, dst=dst, src=src: p.cvtpk(dst + 1, src + 2, src + 3), before=bf, lead=2)
    sc.run()
    if qh == 0: p.s(f"s_branch {name}_F")
    return p

def afin(name):
    p = Prog()
    p.label(f"{name}_F")
    stamp(p, 5, S_PH)
    for f, _ in kv_ops(39): f(p)
    poll_issue(p, V_AX, f"s{S_PF}", 0, V_NV)
    AD, AL, AI, A8 = V_S + 44, V_S + 46, V_S + 48, V_S + 52
    p.v(f"v_lshl_add_u32 v{AD}, s{S_W}, 12, v{V_LIN}", [AD], [V_LIN])
    p.vop("v_add_u32", AD, f"{MISC}", AD)
    p.vop("v_xor_b32", AD + 1, "4096", AD)
    for i in range(4): p.ds_write(AD + 1, Oa(4, 4 + i), 4, i * 1024)
    p.s(f"s_xor_b32 s{S_T0}, s{S_W}, 1")
    p.s(f"s_movk_i32 s{S_T1}, 18432")
    p.s(f"s_mov_b32 s{S_T2}, {IMG(8)}")
    p.s(f"s_cmp_eq_u32 s{S_PH}, 0")
    p.s(f"s_cselect_b32 s{S_T1}, 1024, s{S_T1}")
    p.s(f"s_cselect_b32 s{S_T2}, {XRING}, s{S_T2}")
    p.s(f"s_mul_i32 s{S_T0}, s{S_T0}, s{S_T1}")
    p.s(f"s_add_u32 s{S_T0}, s{S_T0}, s{S_T2}")
    p.vop("v_add_u32", AL + 1, f"s{S_T0}", V_LIN)
    p.ds_write(AL + 1, La(4), 1, 0)
    p.s(f"s_mul_i32 s{S_T0}, s{S_W}, s{S_T1}")
    p.s(f"s_add_u32 s{S_T0}, s{S_T0}, s{S_T2}")
    p.vop("v_add_u32", AL, f"s{S_T0}", V_LIN)
    RL = V_S + 2
    for n in range(5): p.ar(RL + 2 * n, La(n))
    p.s(f"s_mul_i32 s{S_T0}, s{S_P}, 36864")
    p.vop("v_add_u32", A8 + 1, f"s{S_T0}", V_LIN)
    tile_addr(p, A8 + 1, V_T)
    for n in range(4): p.vop("v_add_u32", AI + n, f"{IMG(8)}", V_T + n)
    p.vop("v_subrev_u32", A8, f"{IMG(8)}", AL)
    wleft = list(range(int(E("NWL", "12")), 20))
    def check(n):
        r = RL + 2 * n
        p.add(Ins(f"v_cmp_nge_f32 vcc, v{r}, s{S_LO}", "valu", [r], []))
        p.s(f"s_or_b64 s[{S_BAD}:{S_BAD+1}], s[{S_BAD}:{S_BAD+1}], vcc")
        p.add(Ins(f"v_cmp_nle_f32 vcc, v{r}, s{S_HI}", "valu", [r], []))
        p.s(f"s_or_b64 s[{S_BAD}:{S_BAD+1}], s[{S_BAD}:{S_BAD+1}], vcc")
        p.vop("v_rcp_f32", r + 1, r, kind="trans")
        p.vop("v_rcp_f32", r, r, kind="trans")
    def pkm(d, n): p.pkmul(d, d, RL + 2 * n)
    CHK = V_S + 40
    pend = []
    def flush():
        for d in pend: p.mfma(CHK, A_ONE, d, CHK if d != Oa(0, 0) else None)
        pend.clear()
    def norm(n, t):
        s0 = Oa(n, 2 * t)
        for r in range(0, 8, 2): pkm(s0 + r, n)
        for r in range(4): p.cvtpk(s0 + r, s0 + 2 * r, s0 + 2 * r + 1)
        flush()
        if t & 1:
            p.s(f"s_mov_b64 exec, s[{S_XM}:{S_XM+1}]")
            for tt in (t - 1, t):
                if n < 4: p.ds_write(AI + n, Oa(n, 2 * tt), 4, tt * 9216 + 1024).kind = "dsx"
                else: p.ds_write(AL, Oa(n, 2 * tt), 4, tt * 9216).kind = "dsx"
                if n < 4: p.ds_write(V_T + n, Qf(n, tt, A_QN), 4, tt * 9216 + 1024).kind = "dsx"
                else: p.ds_write(A8, Qf(n, tt, A_QN), 4, tt * 9216).kind = "dsx"
            p.s("s_mov_b64 exec, -1")
        if wleft: wload(0, wleft.pop(0), S_T2, S_WT2)(p)
        pend.append(s0)
    for n in range(4): check(n)
    p.add(Ins("s_waitcnt lgkmcnt(0)", "waitlgkm0"))
    for t in range(4): norm(0, t)
    p.barrier()
    PX = V_S + 16
    for i in range(4): p.ds_read128(PX + 4 * i, AD, i * 1024)
    p.ds_read32(V_S, AL, 0)
    for n in (1, 2):
        for t in range(4): norm(n, t)
    p.vop("v_add_f32", RL + 8, RL + 8, V_S)
    check(4)
    for i in range(4):
        for r in range(4): p.vop("v_add_f32", Oa(4, i) + r, Oa(4, i) + r, PX + 4 * i + r)
    for t in range(2): norm(4, t)
    for t in range(4): norm(3, t)
    flush()
    p.s(f"s_movk_i32 s{S_T2}, 0x207")
    p.s(f"s_add_u32 s{S_PH}, s{S_PH}, 1")
    p.add(Ins(f"v_cmp_class_f32 vcc, v{CHK}, s{S_T2}", "valu", [CHK], []))
    p.s(f"s_or_b64 s[{S_BAD}:{S_BAD+1}], s[{S_BAD}:{S_BAD+1}], vcc")
    stamp(p, 2, S_PH)
    p.s(f"s_cmp_eq_u32 s{S_PH}, 2")
    p.s(f"s_cbranch_scc1 {name}_P")
    q = Prog()
    q_copy(q)
    for n in range(5):
        for t in range(4 if n < 4 else 2):
            for r in range(4): q.aw(Qf(n, t, A_QN) + r, Oa(n, 2 * t) + r)
    poll_check(q, f"{name}_wpoll", V_AX, f"s{S_PF}", 0, V_NV)
    for i in range(20, 32): wload(0, i)(q)
    q.s(f"s_branch {name}_A")
    return p, q

def q_copy(p):
    for r in range(80): p.amov(A_Q + r, A_QN + r)

P_R = ([A_Q + 4 * i for i in range(20)] + [A_X + 4 * i for i in range(10)] + [10, 14],
       [A_QN + 4 * i for i in range(20)] + [A_L + 4 * i for i in range(12)])
def wload(j, i, so=None, sb=None):
    def f(p):
        if i % 2 == 0: p.s(f"s_add_u32 s{so or S_SO}, s{sb or S_WT}, {(i >> 1) * 40960}")
        if "B" not in ABL: p.load4(P_R[j & 1][i], V_LIN, SRD_WS, f"s{so or S_SO}", (i & 1) * 1024, ("WT", j, i), "sc1")
    return f

def slow(name):
    SI, SC, SX, SWq, SKV, SD, SK = 62, 63, 64, 65, 66, 67, 68
    VW, VX, VK, VV_, VD = 28, 36, 37, 38, 39
    MX, NM, LA, QF, SS, FB, AC, RAW, FR = 40, 44, 48, 52, 68, 76, 84, 116, 180
    def ld(p, op, n, d, vo, srd, so, off):
        p.add(Ins(f"{op} {vr(d, n)}, v{vo}, s[{srd}:{srd+3}], s{so} offen offset:{off}", "vml", [vo], R(d, n), tag="sl"))
    p0 = Prog()
    p0.label(f"{name}_slow")
    p0.wait_all()
    M, G = MX, MX + 1
    p0.vop("v_bfe_u32", M, V_LIN, "4", "4")
    p0.vop("v_lshrrev_b32", G, "8", V_LIN)
    p0.vop("v_lshlrev_b32", VW, "16", G)
    p0.vop("v_lshl_add_u32", VW, M, "1", VW)
    for i in range(1, 8): p0.vop("v_add_u32", VW + i, f"{8192 * i}", VW)
    p0.s(f"s_movk_i32 s{S_T0}, 1280")
    p0.vop("v_mul_lo_u32", VX, M, f"s{S_T0}")
    p0.vop("v_lshl_add_u32", VX, G, "4", VX)
    p0.vop("v_lshlrev_b32", VK, "8", M)
    p0.vop("v_lshl_add_u32", VK, G, "3", VK)
    p0.vop("v_lshlrev_b32", VV_, "10", G)
    p0.vop("v_lshl_add_u32", VV_, M, "1", VV_)
    p0.s(f"s_mov_b32 s{SI}, 0")
    p1 = Prog()
    p1.label(f"{name}_sl_it")
    p1.s(f"s_cmp_ge_u32 s{SI}, 5")
    p1.s(f"s_cselect_b32 s{S_T0}, 2, 0")
    p1.s(f"s_cselect_b32 s{S_T1}, 5, 0")
    p1.s(f"s_sub_u32 s{S_T1}, s{SI}, s{S_T1}")
    p1.s(f"s_add_u32 s{S_T0}, s{S_T0}, s{S_P}")
    p1.s(f"s_mul_i32 s{SD}, s{S_T0}, 36864")
    p1.s(f"s_lshl_b32 s{S_T2}, s{S_G}, 2")
    p1.s(f"s_add_u32 s{S_T0}, s{S_T0}, s{S_T2}")
    p1.s(f"s_lshl_b32 s{SWq}, s{S_T0}, 8")
    p1.s(f"s_lshl_b32 s{S_T2}, s{S_B}, 5")
    p1.s(f"s_add_u32 s{S_T0}, s{S_T0}, s{S_T2}")
    p1.s(f"s_lshl_b32 s{SKV}, s{S_T0}, 17")
    p1.s(f"s_lshl_b32 s{S_T0}, s{S_U}, 2")
    p1.s(f"s_add_u32 s{S_T0}, s{S_T0}, s{S_T1}")
    p1.s(f"s_sub_u32 s{S_T2}, s{S_T0}, s{S_G}")
    p1.s(f"s_add_u32 s{S_T2}, s{S_T2}, 7")
    p1.s(f"s_and_b32 s{S_T2}, s{S_T2}, 7")
    p1.s(f"s_add_u32 s{S_T2}, s{S_T2}, 1")
    p1.s(f"s_cmp_eq_u32 s{S_T1}, 4")
    p1.s(f"s_cselect_b32 s{S_T0}, 8, s{S_T0}")
    p1.s(f"s_cselect_b32 s{S_T2}, 0, s{S_T2}")
    p1.s(f"s_lshl_b32 s{S_T2}, s{S_T2}, 10")
    p1.s(f"s_add_u32 s{SD}, s{SD}, s{S_T2}")
    p1.vop("v_add_u32", VD, f"s{SD}", V_LIN)
    p1.s(f"s_mul_i32 s{S_T2}, s{S_B}, 9")
    p1.s(f"s_add_u32 s{S_T0}, s{S_T0}, s{S_T2}")
    p1.s(f"s_mul_i32 s{SX}, s{S_T0}, {16 * 1280}")
    for r in range(32): p1.vop("v_mov_b32", AC + r, "0")
    p1.s(f"s_mov_b32 s{SC}, 0")
    def pack(p):
        for r in range(32): p.vop("v_lshl_or_b32", FR + r, RAW + 2 * r + 1, "16", RAW + 2 * r)
    def loop_end(p, lab, n):
        p.s(f"s_add_u32 s{SC}, s{SC}, 1")
        p.s(f"s_cmp_lt_u32 s{SC}, {n}")
        p.s(f"s_cbranch_scc1 {lab}")
    p2 = Prog()
    p2.label(f"{name}_sl_q")
    ld(p2, "buffer_load_dwordx4", 4, FB, VX, SRD_X, SX, 0)
    for m in range(8):
        for i in range(8): ld(p2, "buffer_load_ushort", 1, RAW + 8 * m + i, VW + i, SRD_W, SWq, 32 * m)
        if m == 3: p2.wait_all()
    p2.wait_all()
    pack(p2)
    for m in range(8): p2.mfma(AC + 4 * m, FR + 4 * m, FB, AC + 4 * m)
    p2.s(f"s_add_u32 s{SX}, s{SX}, 64")
    p2.s(f"s_add_u32 s{SWq}, s{SWq}, {32 * 8192}")
    loop_end(p2, f"{name}_sl_q", 20)
    p3 = Prog()
    for r in range(32): p3.vop("v_mul_f32", AC + r, f"s{S_CS}", AC + r)
    for r in range(16): p3.cvtpk(QF + r, AC + 2 * r, AC + 2 * r + 1)
    for r in range(32): p3.vop("v_mov_b32", AC + r, "0")
    for r in range(4): p3.vop("v_mov_b32", LA + r, "0")
    p3.vop("v_mov_b32", MX, "0xff800000")
    p3.s(f"s_mov_b32 s{SK}, s{SKV}")
    p3.s(f"s_mov_b32 s{SC}, 0")
    def kfrags(p, dst, so):
        for ks in range(4):
            ld(p, "buffer_load_dwordx2", 2, dst + 4 * ks, VK, SRD_K, so, 64 * ks)
            ld(p, "buffer_load_dwordx2", 2, dst + 4 * ks + 2, VK, SRD_K, so, 64 * ks + 32)
    p4 = Prog()
    p4.label(f"{name}_sl_m")
    kfrags(p4, FR, SK)
    p4.wait_all()
    for ks in range(4): p4.mfma(SS, FR + 4 * ks, QF + 4 * ks, SS if ks else None)
    p4.vop("v_max3_f32", MX, MX, SS, SS + 1)
    p4.vop("v_max3_f32", MX, MX, SS + 2, SS + 3)
    p4.s(f"s_add_u32 s{SK}, s{SK}, 4096")
    loop_end(p4, f"{name}_sl_m", 32)
    p5 = Prog()
    for sw in (p5.swap32, p5.swap16):
        p5.vop("v_mov_b32", MX + 1, MX)
        sw(MX, MX + 1)
        p5.vop("v_max_f32", MX, MX, MX + 1)
    for r in range(4): p5.vop("v_sub_f32", NM + r, "0", MX)
    p5.s(f"s_mov_b32 s{SC}, 0")
    p6 = Prog()
    p6.label(f"{name}_sl_a")
    p6.s(f"s_add_u32 s{SK}, s{SKV}, 4096")
    kfrags(p6, FR, SKV)
    kfrags(p6, FR + 16, SK)
    p6.wait_all()
    for m in range(8):
        for i in range(8): ld(p6, "buffer_load_ushort", 1, RAW + 8 * m + i, VV_, SRD_V, SK if i >= 4 else SKV, 32 * m + 256 * (i & 3))
        if m == 3: p6.wait_all()
    for kt in range(2):
        for ks in range(4): p6.mfma(SS + 4 * kt, FR + 16 * kt + 4 * ks, QF + 4 * ks, SS + 4 * kt if ks else NM)
    for r in range(8): p6.exp(SS + r, SS + r)
    for r in range(4): p6.cvtpk(FB + r, SS + 2 * r, SS + 2 * r + 1)
    p6.wait_all()
    pack(p6)
    p6.mfma(LA, A_ONE, FB, LA)
    for m in range(8): p6.mfma(AC + 4 * m, FR + 4 * m, FB, AC + 4 * m)
    p6.s(f"s_add_u32 s{SKV}, s{SKV}, 8192")
    loop_end(p6, f"{name}_sl_a", 16)
    p7 = Prog()
    p7.vop("v_rcp_f32", LA, LA, kind="trans")
    for r in range(32): p7.vop("v_mul_f32", AC + r, AC + r, LA)
    for r in range(16): p7.cvtpk(QF + r, AC + 2 * r, AC + 2 * r + 1)
    for hf in range(2):
        p7.s(f"s_cmp_eq_u32 s{S_U}, {hf}")
        p7.s(f"s_cselect_b32 s{S_T0}, 0, s{S_T1}")
        p7.s(f"s_cmp_eq_u32 s{S_T0}, 4")
        p7.s(f"s_cbranch_scc1 {name}_sl_s{hf}")
        for t in (2 * hf, 2 * hf + 1): p7.ds_write(VD, QF + 4 * t, 4, t * 9216)
        p7.label(f"{name}_sl_s{hf}")
    p7.wait_all()
    p7.s(f"s_add_u32 s{SI}, s{SI}, 1")
    p7.s(f"s_cmp_lt_u32 s{SI}, 10")
    p7.s(f"s_cbranch_scc1 {name}_sl_it")
    p7.s(f"s_branch {name}_P2")
    body = [p1, p2, p2, p3, p4, p4, p5, p6, p6, p7]
    return [p0, p1, p2, p3, p4, p5, p6, p7], [p0] + body + body

def pmod(name):
    p = Prog()
    p.label(f"{name}_P")
    if "F" in ABL: p.s(f"s_mov_b32 s{S_BAD}, 1")
    p.s(f"s_cmp_lg_u64 s[{S_BAD}:{S_BAD+1}], 0")
    p.s(f"s_cbranch_scc1 {name}_slow")
    p.label(f"{name}_P2")
    AO = (1, 2, 3)
    V_FA, V_OA = 4, 5
    PT, PT2 = 6, 8
    POOL = [28 + 4 * k for k in range(16)]
    ACC = 92
    OWN = 124
    JB = (164, 196)
    A8 = 228
    CT = 244
    S_ST = 62
    S_J, S_JO, S_J8, S_JO8 = S_KOFF, S_VOFF, S_KB, S_KVN
    p.vop("v_mov_b32", AO[0], V_LIN)
    p.vop("v_add_u32", AO[1], "49152", V_LIN)
    p.vop("v_add_u32", AO[2], "98304", V_LIN)
    p.s(f"s_mul_i32 s{S_RD}, s{S_B}, {PARTB}")
    p.s(f"s_mul_i32 s{S_T1}, s{S_W}, 5120")
    p.s(f"s_add_u32 s{S_RD}, s{S_RD}, s{S_T1}")
    p.s(f"s_add_u32 s{S_RD}, s{S_RD}, {PART}")
    p.s(f"s_mul_i32 s{S_ST}, s{S_G}, 20480")
    p.s(f"s_add_u32 s{S_ST}, s{S_ST}, s{S_RD}")
    p.s(f"s_add_u32 s{S_ST}, s{S_ST}, {56 * 20480}")
    for i in range(1, 8):
        p.s(f"s_add_u32 s{S_T0}, s{S_G}, {i}")
        p.s(f"s_and_b32 s{S_T0}, s{S_T0}, 7")
        p.s(f"s_mul_i32 s{S_T0}, s{S_T0}, {7 * 20480}")
        p.s(f"s_add_u32 s{S_T0}, s{S_T0}, s{S_RD}")
        p.s(f"s_add_u32 s{S_ST+i}, s{S_T0}, {(i - 1) * 20480}")
    p.s(f"s_lshl_b32 s{S_PF}, s{S_B}, 2")
    p.s(f"s_add_u32 s{S_PF}, s{S_PF}, s{S_W}")
    p.s(f"s_lshl_b32 s{S_PF}, s{S_PF}, 9")
    p.s(f"s_add_u32 s{S_PF}, s{S_PF}, {PFLG}")
    p.s(f"s_lshl_b32 s{S_T2}, s{S_G}, 3")
    p.s(f"s_add_u32 s{S_T2}, s{S_T2}, s{S_PF}")
    p.s(f"s_mul_i32 s{S_OUTO}, s{S_B}, {144 * 1280}")
    p.s(f"s_mul_i32 s{S_T1}, s{S_W}, 320")
    p.s(f"s_add_u32 s{S_OUTO}, s{S_OUTO}, s{S_T1}")
    p.vop("v_lshrrev_b32", V_FA, "1", V_LIN)
    p.vop("v_and_b32", V_FA, "0x38", V_FA)
    p.vop("v_bfe_u32", V_OA, V_LIN, "4", "4")
    p.s(f"s_movk_i32 s{S_T0}, 1280")
    p.vop("v_mul_lo_u32", V_OA, V_OA, f"s{S_T0}")
    p.vop("v_lshrrev_b32", PT, "8", V_LIN)
    p.vop("v_lshl_add_u32", V_OA, PT, "4", V_OA)
    p.s(f"s_mul_i32 s{S_J}, s{S_G}, {7 * 20480}")
    p.s(f"s_add_u32 s{S_J}, s{S_J}, s{S_RD}")
    p.s(f"s_mul_i32 s{S_JO}, s{S_G}, {16 * 1280}")
    p.s(f"s_add_u32 s{S_JO}, s{S_JO}, s{S_OUTO}")
    p.s(f"s_lshl_b32 s{S_T1}, s{S_G}, 10")
    p.s(f"s_add_u32 s{S_J8}, s{S_RD}, s{S_T1}")
    p.s(f"s_add_u32 s{S_J8}, s{S_J8}, {56 * 20480}")
    p.s(f"s_lshl_b32 s{S_T1}, s{S_G}, 6")
    p.s(f"s_add_u32 s{S_JO8}, s{S_OUTO}, s{S_T1}")
    p.s(f"s_add_u32 s{S_JO8}, s{S_JO8}, {128 * 1280}")
    p.s(f"s_cmp_ge_u32 s{S_G}, 5")
    p.s(f"s_cselect_b32 s{S_J8}, {OOB:#x}, s{S_J8}")
    p.s(f"s_cselect_b32 s{S_JO8}, {OOB:#x}, s{S_JO8}")
    p.vop("v_mov_b32", PT2, f"s{S_NON}")
    p.vop("v_mov_b32", PT2 + 1, f"s{S_NON+1}")
    p.wait_all()
    p.barrier()
    stamp(p, 16)
    S_PC, S_FO, S_PO, S_JL, S_JS = 70, 71, 72, 73, 74
    V_SA = 18
    HOLD = 140
    p.s(f"s_mov_b32 s{S_PC}, 0")
    p.vop("v_mov_b32", V_SA, V_LIN)
    NL = int(E("PLEAD", "8"))
    def ooff(i, kq): return IMG(kq) + i * 1024
    for f in range(NL): p.ds_read128(POOL[f], AO[ooff(0, f) // 49152], ooff(0, f) % 49152)
    def job_loads(sbase, mp, buf, n):
        ops = []
        for g in range(n):
            def f(p, g=g):
                p.s(f"s_add_u32 s{S_T0}, s{sbase}, {g * 20480 + mp * 1024}")
                p.load4(buf + 4 * g, V_LIN, SRD_WS, f"s{S_T0}", 0, "job", "sc1")
            ops.append(f)
        return ops
    def job_reduce(sout, mp, buf, n, a, init):
        ops = []
        for g in range(n):
            for r in range(4):
                x = buf + 4 * g + r
                if g == 0 and init:
                    ops.append(lambda p, r=r, x=x: p.vop("v_lshlrev_b32", a + 2 * r, "16", x))
                    ops.append(lambda p, r=r, x=x: p.vop("v_and_b32", a + 2 * r + 1, "0xffff0000", x))
                else:
                    ops.append(lambda p, r=r, x=x: p.vop("v_lshlrev_b32", CT + (r & 1), "16", x))
                    ops.append(lambda p, r=r, x=x: p.vop("v_and_b32", x, "0xffff0000", x))
                    ops.append(lambda p, r=r, x=x: p.vop("v_add_f32", a + 2 * r, a + 2 * r, CT + (r & 1)))
                    ops.append(lambda p, r=r, x=x: p.vop("v_add_f32", a + 2 * r + 1, a + 2 * r + 1, x))
        for r in range(4): ops.append(lambda p, r=r: p.cvtpk(a + r, a + 2 * r, a + 2 * r + 1))
        ops.append(lambda p: p.store(a, 4, V_OA, SRD_OUT, f"s{sout}", mp * 64, tag="out"))
        return ops
    def flag(p, so, off, tag):
        p.wait_vm(tag)
        p.s("s_mov_b64 exec, 1")
        p.store(PT2, 2, V_LIN, SRD_WS, so, off, tag="flag", flags="sc1")
        p.s("s_mov_b64 exec, -1")
    FPOS = int(E("FPOS", "200")); IPOS = int(E("IPOS", "60")); CPOS = int(E("CPOS", "150")); WSP = int(E("WSP", "5")); RPOS = int(E("RPOS", "10"))
    def one_pass(par):
        q = Prog()
        q.label(f"{name}_pass{par}")
        if PROF == 4: stamp(q, 32, S_PC)
        q.s(f"s_add_u32 s{S_WT}, s{S_WT}, 2048")
        q.s(f"s_cmp_eq_u32 s{S_PC}, 4")
        q.s(f"s_cselect_b32 s{S_WT}, {OOB:#x}, s{S_WT}")
        q.s(f"s_lshl_b32 s{S_T0}, s{S_PC}, 6")
        q.s(f"s_add_u32 s{S_FO}, s{S_T2}, s{S_T0}")
        q.s(f"s_add_u32 s{S_PO}, s{S_PF}, s{S_T0}")
        q.s(f"s_add_u32 s{S_JS}, s{S_JO}, s{S_T0}")
        q.s(f"s_cmp_lt_u32 s{S_PC}, 3")
        q.s(f"s_cselect_b32 s{S_JS}, {OOB:#x}, s{S_JS}")
        q.s(f"s_lshl_b32 s{S_T0}, s{S_PC}, 10")
        q.s(f"s_add_u32 s{S_JL}, s{S_J}, s{S_T0}")
        q.s(f"s_cmp_lt_u32 s{S_PC}, 2")
        q.s(f"s_cselect_b32 s{S_JL}, {OOB:#x}, s{S_JL}")
        q.wait_vm(("WT", par, 31))
        sc = Sched(q, budget=int(E("PBUD", "8")), late_extra=8)
        for qn in ("wl", "st", "jl"): sc.group[qn] = "vm"
        sc.pace["vm"] = int(E("PPACE", "3"))
        pool = Pool(sc, POOL, 16)
        acc = lambda i: OWN + 8 * par if i == 8 else ACC + 8 * (i % 4)
        for i in range(9):
            a = acc(i)
            for kq in range(16):
                cons = [(a + 4 * e, P_R[par][2 * kq + e], a + 4 * e if kq else None, ("P", i, kq, e)) for e in range(2)]
                pool.frag(0, lambda r: [R128(r, AO[ooff(i, kq) // 49152], ooff(i, kq) % 49152)], cons, as_b=True)
        mt = lambda i: sc.m[max(0, min(i, len(sc.m) - 1))][4]
        for f in range(NL, 144 + NL):
            (_, reads, cons, war) = pool.frags[f % 144]
            if f >= 144: war = pool.last[f % 16]
            sc.fill("rd", reads[0], 4, ds=True, after=war, before=mt(2 * (f - NL) + 1), early=2)
        for i in range(32):
            sc.fill("wl", wload(1 - par, i, False), 8 if i % 2 == 0 else 4, after=mt(4 + WSP * i), before=mt(12 + WSP * i))
        for i in range(8):
            a = acc(i)
            dl = mt(32 * i + 32 + 24)
            sc.fill("va", lambda p, a=a: p.cvtpk(a, a, a + 1), 4, after=dict(tag=("P", i, 15, 1), delay=3), before=dl, lead=20)
            sc.fill("va", lambda p, a=a: p.cvtpk(a + 1, a + 2, a + 3), 4)
            sc.fill("va", lambda p, a=a: p.cvtpk(a + 2, a + 4, a + 5), 4)
            sc.fill("va", lambda p, a=a: p.cvtpk(a + 3, a + 6, a + 7), 4, tag=("CV", i), before=dl, lead=20)
            def st(p, a=a, i=i):
                if "O" not in ABL: p.store(a, 4, V_SA, SRD_WS, f"s{S_ST+i}", 0, tag=("ps", i), flags=E("SFL", "sc1"))
                if i == 7: p.vop("v_add_u32", V_SA, "1024", V_SA)
            sc.fill("st", st, 4, after=("CV", i), before=dl, lead=20, tag=("ST", i))
        sc.fill("fl", lambda p: flag(p, f"s{S_FO}", 64, ("ps", 0)), 16, before=mt(FPOS), early=0)
        sc.fill("jl", lambda p: poll_issue(p, V_FA, f"s{S_PO}", 0, PT), 4, before=mt(IPOS), early=4)
        def chk(p):
            p.s(f"s_cmp_lt_u32 s{S_PC}, 2")
            p.s(f"s_cbranch_scc1 {name}_pp{par}_ok")
            poll_check(p, f"{name}_pp{par}", V_FA, f"s{S_PO}", 0, PT)
        sc.fill("jl", chk, 16, before=mt(CPOS), early=0)
        for k, fn in enumerate(job_loads(S_JL, 0, JB[par], 7)): sc.fill("jl", fn, 8, before=mt(CPOS + 12 + 8 * k), lead=8)
        ops = job_reduce(S_JS, 0, JB[1 - par], 7, HOLD, False)
        for k, fn in enumerate(ops): sc.fill("jr", fn, 4, after=mt(RPOS) if k == 0 else None, before=mt(240), lead=2 * (len(ops) - k))
        for r in range(8): sc.fill("jr", lambda p, r=r: p.vop("v_mov_b32", HOLD + r, OWN + 8 * par + r), 4, before=mt(254), lead=8 - r)
        sc.run()
        q.s(f"s_add_u32 s{S_PC}, s{S_PC}, 1")
        if par == 0:
            q.s(f"s_cmp_eq_u32 s{S_PC}, 5")
            q.s(f"s_cbranch_scc1 {name}_ptail")
        else: q.s(f"s_branch {name}_pass0")
        return q
    p.s(f"s_sub_u32 s{S_J}, s{S_J}, 2048")
    p.s(f"s_sub_u32 s{S_JO}, s{S_JO}, 192")
    pre = p
    pe, po = one_pass(0), one_pass(1)
    p = Prog()
    p.label(f"{name}_ptail")
    stamp(p, 17)
    p.s(f"s_add_u32 s{S_JO}, s{S_JO}, 192")
    poll_issue(p, V_FA, f"s{S_PF}", 5 * 64, PT)
    for fn in job_reduce(S_JO, 2, JB[0], 7, HOLD, False): fn(p)
    flag(p, f"s{S_T2}", 6 * 64, ("ps", 7))
    poll_check(p, f"{name}_pp3", V_FA, f"s{S_PF}", 5 * 64, PT)
    for fn in job_loads(S_J, 5, JB[1], 7): fn(p)
    stamp(p, 18)
    for fn in job_loads(S_J8, 0, POOL[8], 8): fn(p)
    poll_issue(p, V_FA, f"s{S_PF}", 6 * 64, PT)
    for fn in job_reduce(S_JO, 3, JB[1], 7, OWN + 8, False): fn(p)
    stamp(p, 19)
    poll_check(p, f"{name}_pp4", V_FA, f"s{S_PF}", 6 * 64, PT, 0)
    stamp(p, 20)
    for fn in job_loads(S_J, 6, JB[0], 7): fn(p)
    for fn in job_reduce(S_JO8, 0, POOL[8], 8, A8, True): fn(p)
    for fn in job_reduce(S_JO, 4, JB[0], 7, OWN, False): fn(p)
    if PROF:
        p.wait_all()
        stamp(p, 21)
        p.s(f"s_lshl_b32 s{S_T0}, s2, 2")
        p.s(f"s_add_u32 s{S_T0}, s{S_T0}, s{S_W}")
        p.s(f"s_lshl_b32 s{S_T0}, s{S_T0}, 8")
        p.s(f"s_add_u32 s{S_T0}, s{S_T0}, {PROFOFF}")
        p.vop("v_lshrrev_b32", PT, "2", V_LIN)
        p.store(0, 1, PT, SRD_WS, f"s{S_T0}", 0)
        p.s(f"s_add_u32 s{S_T0}, s{S_T0}, 0x40000")
        p.store(255, 1, PT, SRD_WS, f"s{S_T0}", 0)
    p.label(f"{name}_end")
    p.raw("s_endpgm")
    return [pre, pe, po, p], [pre, pe, po, pe, po, pe, p]

def gen(name):
    pro = prologue(name)
    Q = qmod(name)
    AE = aentry(name)
    A = [amod(name, qh) for qh in range(2)]
    F, FB = afin(name)
    P, PS = pmod(name)
    SL, SLS = slow(name)
    segs = [pro, Q, AE, A[0], A[1], F, FB] + P + SL
    sims = [[(x, 1) for x in [pro, Q, AE, A[qh], F, FB, AE, A[qh], F] + PS] for qh in range(2)]
    sims.append([(x, 1) for x in [F] + SLS + PS])
    lines, stats = finalize([(x, 1) for x in segs], sims=sims)
    if int(E("ROLL", "1")):
        lines = roll(lines, "; ---- a step", 4, S_LOOP, f"{name}_aloop")
        lines = roll(lines, "; ---- q step", 4, S_LOOP, f"{name}_qloop")
    return [f".globl {name}", ".p2align 8", f".type {name},@function", f"{name}:"] + lines, stats
```

```python
import sys, importlib
from asmlib import *
import k1
HDR = open("standalone__gqa_block_cached__near_ridge.s.ref").read().split("\n")
hdr = [l for l in HDR if l.startswith(";") and "@launch" not in l and "Override" not in l and "grid=ceil" not in l]
def build(which, path):
    out = list(hdr)
    body = []; kds = []
    if "1" in which:
        out.append(f"; @launch kernel=attn_kernel grid=(512,1,1) block=(256,1,1) lds={k1.LDS_BYTES}")
        l, st = k1.gen("attn_kernel"); body += l; kds += kd("attn_kernel", 256, 64); print("k1", st, file=sys.stderr)
    if "b" in which:
        import k1b
        out.append(f"; @launch kernel=attn_kernel grid=(512,1,1) block=(256,1,1) lds={k1b.LDS_BYTES}")
        l, st = k1b.gen("attn_kernel"); body += l; kds += kd("attn_kernel", 256, 64); print("k1b", st, file=sys.stderr)
    if "3" in which:
        import b3
        out.append(f"; @launch kernel=gqa_kernel grid=({b3.NWG},1,1) block=(256,1,1) lds={b3.LDS_BYTES}")
        l, st = b3.gen("gqa_kernel"); body += l; kds += kd("gqa_kernel", 256, 96); print("b3", st, file=sys.stderr)
    if "m" in which:
        import m1
        out.append(f"; @launch kernel=gqa_kernel grid=({m1.NWG},1,1) block=(256,1,1) lds={m1.LDS_BYTES}")
        l, st = m1.gen("gqa_kernel"); body += l; kds += kd("gqa_kernel", 512, 102, 256); print("m1", st, file=sys.stderr)
    if "n" in which:
        import m2
        out.append(f"; @launch kernel=gqa_kernel grid=({m2.NWG},1,1) block=(256,1,1) lds={m2.LDS_BYTES}")
        l, st = m2.gen("gqa_kernel"); body += l; kds += kd("gqa_kernel", 512, 102, 256); print("m2", st, file=sys.stderr)
    if "x" in which:
        import lx
        out.append(f"; @launch kernel=gqa_kernel grid=({lx.NWG},1,1) block=(512,1,1) lds={lx.LDS_BYTES}")
        l, st = lx.gen("gqa_kernel"); body += l; kds += kd("gqa_kernel", 256, 96); print("lx", st, file=sys.stderr)
    if "f" in which:
        import fk
        out.append(f"; @launch kernel=fused_kernel grid=({fk.NWG},1,1) block=(512,1,1) lds={fk.LDS_BYTES}")
        l, st = fk.gen("fused_kernel"); body += l; kds += kd("fused_kernel", 256, 96); print("fk", st, file=sys.stderr)
    if "2" in which:
        import k2
        out.append(f"; @launch kernel=oproj_kernel grid=({k2.NWG},1,1) block=(256,1,1) lds={k2.LDS_BYTES}")
        l, st = k2.gen("oproj_kernel"); body += l; kds += kd("oproj_kernel", k2.NVGPR, 64, 256); print("k2", st, file=sys.stderr)
    out += ['.amdgcn_target "amdgcn-amd-amdhsa--gfx950"', ".text"] + body + ['.section .rodata,"a"'] + kds
    open(path, "w").write("\n".join(out) + "\n")
if __name__ == "__main__":
    build(sys.argv[1], sys.argv[2])
```

```python
import re

def vr(base, n=1):
    p = "v"
    if base >= 256:
        p = "a"; base -= 256
    return f"{p}{base}" if n == 1 else f"{p}[{base}:{base+n-1}]"
def sr(base, n=1):
    return f"s{base}" if n == 1 else f"s[{base}:{base+n-1}]"
def R(base, n=1):
    return set(range(base, base + n))

class Ins:
    __slots__ = ("text", "kind", "rd", "wr", "tag", "extra", "srcc", "wait_id")
    def __init__(self, text, kind, rd=(), wr=(), tag=None, extra=None, srcc=()):
        self.text = text; self.kind = kind
        self.rd = set(rd); self.wr = set(wr); self.tag = tag; self.extra = extra
        self.srcc = set(srcc); self.wait_id = None

class Prog:
    def __init__(self):
        self.ins = []
    def add(self, i):
        self.ins.append(i); return i
    def raw(self, text, kind="salu"):
        return self.add(Ins(text, kind))
    def label(self, name):
        return self.add(Ins(name + ":", "label"))
    def comment(self, t):
        return self.add(Ins("; " + t, "label"))
    def s(self, text):
        return self.add(Ins(text, "salu"))
    def nop(self, n):
        return self.add(Ins(f"s_nop {n}", "nop", extra=n + 1))
    def v(self, text, wr=(), rd=(), kind="valu"):
        return self.add(Ins(text, kind, rd, wr))
    def vop(self, op, d, *srcs, kind="valu"):
        rd = [x for x in srcs if isinstance(x, int)]
        t = ", ".join(f"v{x}" if isinstance(x, int) else x for x in srcs)
        return self.add(Ins(f"{op} v{d}, {t}", kind, rd, [d]))
    def exp(self, d, a):
        return self.vop("v_exp_f32", d, a, kind="trans")
    def cvtpk(self, d, a, b):
        return self.vop("v_cvt_pk_bf16_f32", d, a, b)
    def swap32(self, a, b):
        return self.add(Ins(f"v_permlane32_swap_b32 v{a}, v{b}", "perm", [a, b], [a, b]))
    def swap16(self, a, b):
        return self.add(Ins(f"v_permlane16_swap_b32 v{a}, v{b}", "perm", [a, b], [a, b]))
    def mfma(self, d, a, b, c):
        ct = "0" if c is None else vr(c, 4)
        rd = R(a, 4) | R(b, 4)
        srcc = set() if c is None else R(c, 4)
        return self.add(Ins(f"v_mfma_f32_16x16x32_bf16 {vr(d,4)}, {vr(a,4)}, {vr(b,4)}, {ct}", "mfma", rd | srcc, R(d, 4), extra=(d, c), srcc=srcc))
    def ds_read128(self, d, addr, off):
        assert 0 <= off < 65536, off
        return self.add(Ins(f"ds_read_b128 {vr(d,4)}, v{addr} offset:{off}", "dsr", [addr], R(d, 4)))
    def ds_read64(self, d, addr, off):
        assert 0 <= off < 65536, off
        return self.add(Ins(f"ds_read_b64 {vr(d,2)}, v{addr} offset:{off}", "dsr", [addr], R(d, 2)))
    def ds_read32(self, d, addr, off):
        assert 0 <= off < 65536, off
        return self.add(Ins(f"ds_read_b32 v{d}, v{addr} offset:{off}", "dsr", [addr], [d]))
    def ds_tr(self, d, addr, off):
        assert 0 <= off < 65536, off
        return self.add(Ins(f"ds_read_b64_tr_b16 {vr(d,2)}, v{addr} offset:{off}", "dsr", [addr], R(d, 2)))
    def ds_write(self, addr, src, n, off):
        assert 0 <= off < 65536, off
        op = {1: "ds_write_b32", 2: "ds_write_b64", 4: "ds_write_b128"}[n]
        return self.add(Ins(f"{op} v{addr}, {vr(src,n)} offset:{off}", "dsw", {addr} | R(src, n), []))
    def ds_write2(self, addr, src, off):
        assert off % 512 == 0 and off // 512 < 255
        return self.add(Ins(f"ds_write2st64_b64 v{addr}, {vr(src,2)}, {vr(src+2,2)} offset0:{off//512} offset1:{off//512+1}", "dsw", {addr} | R(src, 4), []))
    def dma(self, voff, srd, soff, tag, flags=""):
        return self.add(Ins(f"buffer_load_dwordx4 v{voff}, {sr(srd,4)}, {soff} offen {flags} lds".replace("  ", " "), "vm", [voff], [], tag=tag))
    def dmao(self, voff, srd, soff, off, tag, flags=""):
        return self.add(Ins(f"buffer_load_dwordx4 v{voff}, {sr(srd,4)}, {soff} offen offset:{off} {flags} lds".replace("  ", " "), "vm", [voff], [], tag=tag))
    def ar(self, d, a):
        return self.add(Ins(f"v_accvgpr_read_b32 v{d}, a{a-256}", "valu", [a], [d]))
    def aw(self, a, v):
        return self.add(Ins(f"v_accvgpr_write_b32 a{a-256}, {'v%d' % v if isinstance(v, int) else v}", "valu", [v] if isinstance(v, int) else [], [a]))
    def amov(self, d, a):
        return self.add(Ins(f"v_accvgpr_mov_b32 a{d-256}, a{a-256}", "valu", [a], [d]))
    def pkmul(self, d, a, b):
        bt = f"v[{b}:{b+1}]" if isinstance(b, int) else b
        return self.add(Ins(f"v_pk_mul_f32 v[{d}:{d+1}], v[{a}:{a+1}], {bt}", "valu", R(a, 2) | (R(b, 2) if isinstance(b, int) else set()), R(d, 2)))
    def load4(self, d, voff, srd, soff, off, tag, flags=""):
        return self.add(Ins(f"buffer_load_dwordx4 {vr(d,4)}, v{voff}, {sr(srd,4)}, {soff} offen offset:{off} {flags}".strip(), "vml", [voff], R(d, 4), tag=tag))
    def load2(self, d, voff, srd, soff, off, tag, flags=""):
        return self.add(Ins(f"buffer_load_dwordx2 {vr(d,2)}, v{voff}, {sr(srd,4)}, {soff} offen offset:{off} {flags}".strip(), "vml", [voff], R(d, 2), tag=tag))
    def store(self, src, n, voff, srd, soff, off, tag="st", flags=""):
        op = {1: "buffer_store_dword", 2: "buffer_store_dwordx2", 4: "buffer_store_dwordx4"}[n]
        return self.add(Ins(f"{op} {vr(src,n)}, v{voff}, {sr(srd,4)}, {soff} offen offset:{off} {flags}".strip(), "vms", {voff} | R(src, n), [], tag=tag, extra=n))
    def wait_vm(self, tag, lgkm0=False, cap=None):
        i = self.add(Ins("", "waitvm", tag=tag, extra=lgkm0)); i.wait_id = cap
        return i
    def wait_all(self):
        return self.add(Ins("s_waitcnt vmcnt(0) lgkmcnt(0)", "waitall"))
    def wait_lgkm0(self):
        return self.add(Ins("s_waitcnt lgkmcnt(0)", "waitlgkm0"))
    def barrier(self):
        return self.add(Ins("s_barrier", "barrier"))

VALU_KINDS = ("valu", "trans", "perm")
import os
COALESCE = int(os.environ.get("COAL", "14"))
HOIST = int(os.environ.get("HOIST", "1"))

def finalize(segments, sim=None, sims=None):
    need_lgkm = {}
    need_vm = {}
    need_nop = {}
    sims = sims or [sim or segments]
    flat = []
    for sm in sims: flat += [(None, 0)] + list(sm)
    for _pass in range(4):
        changed = False
        for prog, rep in flat:
            if prog is None:
                lg = []
                vm = []
                hist = []
                t = 0
            for _r in range(rep):
                for ins in prog.ins:
                    k = ins.kind
                    if k == "label":
                        continue
                    key = id(ins)
                    touched = ins.rd | ins.wr
                    n = None
                    for idx in range(len(lg) - 1, -1, -1):
                        if lg[idx][0] & touched:
                            n = len(lg) - 1 - idx; break
                    if n is not None:
                        n = min(n, sum(1 for x in lg if x[1] > t - COALESCE))
                        n = min(n, 15)
                        if key not in need_lgkm or need_lgkm[key] > n:
                            need_lgkm[key] = n; changed = True
                    n = None
                    for idx in range(len(vm) - 1, -1, -1):
                        if vm[idx][1] & touched:
                            n = len(vm) - 1 - idx; break
                    if k == "waitvm":
                        for idx in range(len(vm) - 1, -1, -1):
                            if vm[idx][0] == ins.tag or (isinstance(ins.tag, list) and vm[idx][0] in ins.tag):
                                n = len(vm) - 1 - idx; break
                        if ins.wait_id is not None: n = ins.wait_id if n is None else min(n, ins.wait_id)
                    if n is not None:
                        n = min(n, 63)
                        if key not in need_vm or need_vm[key] > n:
                            need_vm[key] = n; changed = True
                    has_wait = False
                    if key in need_lgkm:
                        nn = need_lgkm[key]
                        if len(lg) > nn: lg = lg[len(lg) - nn:] if nn else []
                        has_wait = True
                    if key in need_vm:
                        nn = need_vm[key]
                        if len(vm) > nn: vm = vm[len(vm) - nn:] if nn else []
                        has_wait = True
                    if k == "waitvm":
                        if ins.extra: lg = []
                        t += 1
                        continue
                    if has_wait: t += 1
                    if k == "waitvmn" and len(vm) > ins.extra: vm = vm[len(vm) - ins.extra:] if ins.extra else []
                    if k == "waitall": lg = []; vm = []
                    if k == "waitlgkm0": lg = []
                    req = 0
                    for (p, tp) in hist:
                        dist = t - tp - 1
                        need = 0
                        pk = p.kind
                        if pk in VALU_KINDS:
                            if k == "mfma" and (p.wr & ins.rd): need = 2
                            if k == "perm" and (p.wr & ins.rd): need = max(need, 2)
                            if k == "dpp" and (p.wr & ins.rd): need = max(need, 2)
                            if k == "rfl" and (p.wr & ins.rd): need = max(need, 1)
                            if pk == "trans" and k in ("valu", "perm", "mfma") and (p.wr & ins.rd): need = max(need, 1)
                        elif pk == "mfma":
                            if k == "mfma":
                                ab = ins.rd - ins.srcc
                                if p.wr & ab: need = 8
                                elif p.wr & ins.srcc:
                                    need = 0 if (ins.extra[1] == p.extra[0]) else 6
                                elif p.wr & ins.wr: need = 0
                            else:
                                if p.wr & (ins.rd | ins.wr): need = 8
                                if k in VALU_KINDS and (p.srcc & ins.wr): need = max(need, 3)
                                if k in ("dsr", "vml") and (p.srcc & ins.wr): need = max(need, 3)
                        elif pk == "salu":
                            if k == "vm" and p.text.split()[1:2] == ["m0,"]: need = 1
                        elif pk == "vms" and p.extra == 4:
                            if k in VALU_KINDS or k == "mfma":
                                if p.rd & ins.wr: need = 2
                            elif p.rd & ins.wr: need = 1
                        if need > dist: req = max(req, need - dist)
                    if req > need_nop.get(key, 0):
                        need_nop[key] = req; changed = True
                    t += need_nop.get(key, 0)
                    if k == "dsr": lg.append((set(ins.wr), t))
                    elif k == "dsw": lg.append((set(), t))
                    elif k in ("vm", "vms"): vm.append((ins.tag, set()))
                    elif k == "vml": vm.append((ins.tag, set(ins.wr)))
                    hist.append((ins, t))
                    t += ins.extra if k == "nop" else 1
                    while hist and t - hist[0][1] > 12: hist.pop(0)
        if not changed: break
    out = []
    stats = dict(nops=0, lgkm=0, n=0, hoisted=0)
    for prog, rep in segments:
        L = prog.ins
        hoist_after = {}
        skip = set()
        if HOIST:
            for i, ins in enumerate(L):
                key = id(ins)
                if ins.kind != "mfma" or key not in need_lgkm or key in need_vm or need_nop.get(key, 0): continue
                n = need_lgkm[key]; j = i - 1; ok = True; nds = 0
                while j >= 0 and L[j].kind != "mfma":
                    kk = L[j].kind
                    if kk in ("dsr", "dsw"): nds += 1
                    elif kk not in ("valu", "trans"): ok = False; break
                    if id(L[j]) in need_lgkm or id(L[j]) in need_vm or need_nop.get(id(L[j]), 0): ok = False; break
                    j -= 1
                if not ok or j < 0 or j == i - 1 or n - nds < 0: continue
                if any(L[x].kind in VALU_KINDS and (L[x].wr & ins.rd) for x in range(max(j + 1, i - 3), i)): continue
                hoist_after[j] = n - nds; skip.add(i)
        for i, ins in enumerate(L):
            key = id(ins)
            w = []
            if key in need_vm: w.append(f"vmcnt({need_vm[key]})")
            if ins.kind == "waitvm" and ins.extra: w.append("lgkmcnt(0)")
            elif key in need_lgkm and i not in skip: w.append(f"lgkmcnt({need_lgkm[key]})"); stats["lgkm"] += 1
            if w: out.append("    s_waitcnt " + " ".join(w))
            elif ins.kind == "waitvm": out.append("    s_nop 0")
            if need_nop.get(key, 0):
                out.append(f"    s_nop {need_nop[key]-1}"); stats["nops"] += 1
            if ins.kind == "waitvm": continue
            out.append(ins.text if ins.kind == "label" else "    " + ins.text)
            stats["n"] += 1
            if i in hoist_after:
                out.append(f"    s_waitcnt lgkmcnt({hoist_after[i]})"); stats["hoisted"] += 1
    return out, stats

def kd(name, vgpr, sgpr=102, accum=None):
    accum = accum if accum is not None else ((vgpr + 3) // 4) * 4
    return [".p2align 6", f".amdhsa_kernel {name}",
            f"  .amdhsa_next_free_vgpr {vgpr}", f"  .amdhsa_next_free_sgpr {sgpr}", f"  .amdhsa_accum_offset {min(accum,256)}",
            "  .amdhsa_group_segment_fixed_size 0", "  .amdhsa_kernarg_size 64", "  .amdhsa_user_sgpr_count 2",
            "  .amdhsa_user_sgpr_kernarg_segment_ptr 1", "  .amdhsa_system_sgpr_workgroup_id_x 1", ".end_amdhsa_kernel"]

class Sched:
    def __init__(self, p, budget=8, late_extra=8):
        self.p = p; self.m = []; self.q = {}; self.budget = budget; self.late_extra = late_extra
        self.idx = {}
        self.pace = {}
        self.group = {}
        self.last = {}
        self.maxds = 1
    def mfma(self, d, a, b, c, tag=None):
        self.m.append((d, a, b, c, tag))
        if tag is not None: self.idx[tag] = len(self.m) - 1
    def fill(self, queue, fn, cost=4, after=None, before=None, lead=0, tag=None, early=None, ds=False, solo=False, paced=True):
        self.q.setdefault(queue, []).append(dict(fn=fn, cost=cost, after=after, before=before, lead=lead, tag=tag, early=early, ds=ds, solo=solo, paced=paced))
    def run(self):
        p = self.p
        done = {}
        N = len(self.m)
        INF = 10 ** 9
        for ql in self.q.values():
            hd = INF; sd = INF
            for f in reversed(ql):
                if f["before"] is not None:
                    b = self.idx[f["before"]]
                    hd = min(hd, b); sd = min(sd, b - f["lead"])
                f["hd"] = hd; f["sd"] = sd
        tagq = {}
        for qn, ql in self.q.items():
            for f in ql:
                if f["tag"] is not None: tagq[f["tag"]] = qn
        def ready(f, cnt):
            a = f["after"]
            if a is not None:
                for x in (a if isinstance(a, list) else [a]):
                    dl = 0
                    if isinstance(x, dict): dl = x["delay"]; x = x["tag"]
                    if x not in done or cnt < done[x] + dl: return False
            if f["early"] is not None and f["before"] is not None and cnt < self.idx[f["before"]] - f["early"]: return False
            return True
        def emit(qn, cnt):
            f = self.q[qn].pop(0)
            f["fn"](p)
            if qn in self.group and f.get("paced", True): self.last[self.group[qn]] = cnt
            if f["tag"] is not None: done[f["tag"]] = cnt
            return f["cost"]
        def force(qn, cnt, depth=0):
            f = self.q[qn][0]
            a = f["after"]
            for x in ([] if a is None else a if isinstance(a, list) else [a]):
                if isinstance(x, dict): x = x["tag"]
                while x not in done:
                    assert x in tagq and tagq[x] != qn and depth < 20, ("cannot force", f["tag"], f["before"], x, cnt)
                    force(tagq[x], cnt, depth + 1)
            return emit(qn, cnt)
        for i in range(N + 1):
            again = True
            while again:
                again = False
                for qn, ql in self.q.items():
                    while ql and (ql[0]["hd"] <= i or i == N):
                        force(qn, i); again = True
            if i == N: break
            d, a, b, c, tag = self.m[i]
            p.mfma(d, a, b, c)
            if tag is not None: done[tag] = i + 1
            used = 0; nds = 0
            while True:
                best = None
                for qn, ql in self.q.items():
                    if ql and ready(ql[0], i + 1):
                        f = ql[0]
                        g = self.group.get(qn)
                        if g is not None and f.get("paced", True) and i + 1 - self.last.get(g, -99) < self.pace[g]: continue
                        late = f["sd"] <= i + 1
                        if f.get("ds") and nds >= (2 if late else self.maxds): continue
                        if f.get("solo") and used: continue
                        if used and used + f["cost"] > self.budget + (self.late_extra if late else 0): continue
                        if best is None or f["sd"] < self.q[best][0]["sd"]: best = qn
                if best is None: break
                if self.q[best][0].get("ds"): nds += 1
                solo = self.q[best][0].get("solo")
                used += emit(best, i + 1)
                if solo: break
                if used >= self.budget + self.late_extra: break


def roll(lines, marker, period, sreg, name, minrep=2):
    idx = [i for i, l in enumerate(lines) if l.startswith(marker)]
    runs = []; cur = []
    for i in idx:
        if int(lines[i].split()[-1]) == 0 and cur: runs.append(cur); cur = []
        cur.append(i)
    if cur: runs.append(cur)
    out = list(lines)
    for rn, r in reversed(list(enumerate(runs))):
        blk = [lines[r[k] + 1:r[k + 1]] for k in range(len(r) - 1)]
        same = [blk[k] == blk[k + period] and not any(l.endswith(":") for l in blk[k]) for k in range(len(blk) - period)]
        best = (0, 0); k = 0
        while k < len(same):
            if same[k]:
                j = k
                while j < len(same) and same[j]: j += 1
                if j - k > best[0]: best = (j - k, k)
                k = j
            else: k += 1
        n = best[0] // period + 1
        if n < minrep: continue
        k = best[1]
        lab = f"{name}_{rn}"
        body = lines[r[k]:r[k + period]]
        out[r[k]:r[k + n * period]] = [f"    s_mov_b32 s{sreg}, {n - 1}", f"{lab}:"] + body + [f"    s_sub_u32 s{sreg}, s{sreg}, 1", f"    s_cbranch_scc0 {lab}"]
    return out
```

```python
from asmlib import *
import math, struct, os
E = os.environ.get
PROF = int(E("PROF", "0"))
ABL = E("ABL", "")
def f2u(f): return struct.unpack("<I", struct.pack("<f", f))[0]
CSCALE = math.log2(math.e) / math.sqrt(128.0)
NWG = 256
LDS_BYTES = 163840
XSL = 18432
XRING = 131072
XALT = 65536 - XSL
WRING = 65536
MISC = 147456
def IMG(kq): return kq * 9216
DROP = 0x30000
OOB = 0x40000000
WOT = 0
PART = 128 * 40960
PARTH = 20 * 40960
PARTB = 2 * PARTH
WFLG = PART + 32 * PARTB
PFLG = WFLG + 8192
WSBYTES = PFLG + 65536
PROFOFF = 0x4000000

SRD_X, SRD_K, SRD_V, SRD_W, SRD_WS, SRD_WO, SRD_OUT, SRD_DBG = 8, 12, 16, 20, 24, 28, 32, 36
S_W = 3
S_T0, S_T1, S_B, S_G, S_P, S_T2 = 40, 41, 42, 43, 44, 45
S_CS, S_NON, S_SPIN, S_PH, S_GRP, S_SO = 46, 48, 50, 51, 52, 53
S_BAD = 54
S_KOFF, S_VOFF, S_KB, S_KVN, S_M0KV, S_WFP = 56, 57, 58, 59, 60, 61
S_WOFF, S_WB, S_XOFF, S_XB = 62, 63, 65, 66
S_M0W, S_M0X8 = 75, 72
S_WT, S_PT, S_PF, S_RD, S_OUTO = 76, 77, 78, 79, 80
S_LO, S_HI = 81, 82
S_TM = 84
S_VB = 88
S_M0KVP, S_KVP, S_M0D, S_U = 89, 91, 94, 95
S_LOOP = 92
S_WT2 = 98
S_XM = 96

V_DK, V_DV, V_DW, V_DX = 1, 5, 9, 13
V_AK, V_AV0, V_AV1, V_AX, V_AX8, V_LIN = 18, 19, 20, 21, 22, 24
V_E0, V_E1, V_E2 = 25, 26, 27
V_S = 28
V_AW = V_S + 40
V_O = 84
V_T = 244
V_NV = 252
V_JUNK = 254
A_Q, A_QN, A_L, A_ONE, A_POOL, A_X = 256, 336, 416, 436, 440, 472
A_QP = 480
NPOOL = 8
def Qf(n, ks, base=A_Q): return base + (n * 4 + ks) * 4
def Oa(n, m): return V_O + (n * 8 + m) * 4
def XS(par, n): return V_S + (par * 4 + n) * 4 if n < 4 else V_S + 48
def YS(n): return V_S + 32 + n * 4 if n < 4 else V_S + 52
def La(n): return A_L + 4 * n
def Xf(st, t): return V_S + (st * 5 + t) * 4
def QA(r, n, m): return (A_QN if r else V_O) + (n * 8 + m) * 4

def stamp(p, idx, dyn=None):
    if not PROF: return
    p.s(f"s_memrealtime s[{S_TM}:{S_TM+1}]")
    p.s(f"s_memtime s[{S_TM+2}:{S_TM+3}]")
    p.wait_lgkm0()
    if dyn is None:
        p.raw(f"v_writelane_b32 v0, s{S_TM}, {idx}")
        p.raw(f"v_writelane_b32 v255, s{S_TM+2}, {idx}")
    else:
        p.s("s_mov_b32 s99, m0")
        p.s(f"s_lshl_b32 m0, s{dyn}, 2")
        p.s(f"s_add_u32 m0, m0, {idx}")
        p.raw(f"v_writelane_b32 v0, s{S_TM}, m0")
        p.raw(f"v_writelane_b32 v255, s{S_TM+2}, m0")
        p.s("s_mov_b32 m0, s99")

KVSEQ = [("K", 0)]
for u in range(15): KVSEQ += [("K", u + 1), ("V", u)]
KVSEQ += [("V", 15)]
KVPOS = {t: i for i, t in enumerate(KVSEQ)}
def kv_ops(pos):
    pre = pos >= 32; pos %= 32
    kind, u = KVSEQ[pos]
    srd, vo, so, sb = (SRD_K, V_DK, S_KOFF, S_KB) if kind == "K" else (SRD_V, V_DV, S_VOFF, S_VB)
    ops = []
    for j in range(4):
        def f(p, j=j):
            if j == 0:
                p.s(f"s_add_u32 m0, s{S_M0KVP + (pos >> 2) if pre else S_M0D}, {(pos % 4) * 16384}")
                p.s(f"s_add_u32 s{S_SO}, s{S_KVP if pre else sb}, s{so}")
            if "D" not in ABL: p.dmao(vo + j, srd, f"s{S_SO}", j * 1024, (kind, u), "nt")
            if j == 1: p.s(f"s_add_u32 s{so}, s{so}, 8192")
            if j == 2: p.s(f"s_and_b32 s{so}, s{so}, 0x1ffff")
        ops.append((f, 12 if j == 0 else 8 if j < 3 else 4))
    return ops
def w_ops(h):
    ops = []
    for j in range(4):
        def f(p, j=j):
            if j == 0:
                p.s(f"s_add_u32 m0, s{S_M0W}, {(h % 4) * 16384}")
                p.s(f"s_add_u32 s{S_SO}, s{S_WB + (h & 1)}, s{S_WOFF}")
            if "W" not in ABL: p.dmao(V_DW + j, SRD_W, f"s{S_SO}", j * 1024, ("W", h))
            if j == 1 and h % 2 == 1: p.s(f"s_add_u32 s{S_WOFF}, s{S_WOFF}, {32 * 8192}")
            if j == 2 and h % 4 == 3:
                p.s(f"s_cmp_ge_u32 s{S_WOFF}, {640 * 8192}")
                p.s(f"s_cselect_b32 s{S_WOFF}, 0, s{S_WOFF}")
        ops.append((f, 12 if j == 0 or (j == 2 and h % 4 == 3) else 8 if j == 1 and h % 2 else 4))
    return ops
def x_ops(i):
    ops = []
    sb = XRING if i else XALT
    for j in range(5):
        def f(p, j=j):
            if j == 0:
                p.s(f"s_add_u32 m0, s{S_M0KV}, {sb}")
                p.s(f"s_add_u32 s{S_SO}, s{S_XB}, s{S_XOFF}")
            if "X" not in ABL: p.dmao(V_DX + j, SRD_X, f"s{S_SO}", (j & 3) * 1024, ("X", i))
            if j == 1: p.s(f"s_add_u32 s{S_XOFF}, s{S_XOFF}, 128")
            if j == 2:
                p.s(f"s_cmp_ge_u32 s{S_XOFF}, 1280")
                p.s(f"s_cselect_b32 s{S_XOFF}, 0, s{S_XOFF}")
            if j == 3:
                p.s(f"s_add_u32 m0, s{S_M0X8}, {sb}")
                p.nop(0)
        ops.append((f, 12 if j in (0, 2, 3) else 8 if j == 1 else 4))
    return ops

def split_ops(ops):
    q = Prog()
    for f, _ in ops: f(q)
    out = []; i = 0; L = [x for x in q.ins if x.kind != "nop"]
    while i < len(L):
        grp = [L[i]]
        if L[i].text.startswith("s_cmp"): grp.append(L[i + 1])
        i += len(grp)
        out.append((lambda p, grp=grp: [p.add(x) for x in grp], "vm" if grp[0].kind in ("vm", "vml", "vms") else "s", 4 * len(grp)))
    return out
def fill_dma(sc, ops, after, before, tag=None, queue="dma", lead=80):
    so = split_ops(ops)
    for k, (fn, kind, cost) in enumerate(so):
        sc.fill(queue, fn, 8 if kind == "vm" else cost, after=after, before=before, lead=lead, solo=(kind == "vm" and SOLO), paced=(kind == "vm"),
                tag=tag if k == len(so) - 1 else None)
SOLO = int(E("SOLO", "1"))
def sprinkle(progs, ops, lo=0.0, hi=1.0):
    pts = []
    for p, st in progs:
        masked = False
        for i in range(st, len(p.ins)):
            x = p.ins[i]
            if x.text.startswith("s_mov_b64 exec"): masked = not x.text.endswith("-1")
            if x.kind == "label" and not x.text.startswith(";"): break
            if x.kind in ("valu", "perm") and not masked and p.ins[i - 1].kind in ("valu", "perm") and "v_cmp" not in x.text and "v_cmp" not in p.ins[i - 1].text: pts.append((p, i))
    a, b = int(lo * len(pts)), int(hi * len(pts))
    sel = [pts[a + (k * (b - a)) // len(ops)] for k in range(len(ops))]
    for (p, i), (fn, _) in reversed(list(zip(sel, ops))):
        q = Prog(); fn(q)
        p.ins[i:i] = q.ins

CPF = int(E("CPF", "1"))
def code_prefetch(p, name, k, target, nchunk, t):
    if not CPF: return
    p.s(f"s_getpc_b64 s[{S_TM}:{S_TM+1}]")
    p.label(f"{name}_pc{k}")
    p.s(f"s_sub_u32 s{S_TM}, s{S_TM}, {name}_pc{k}-{name}")
    p.s(f"s_subb_u32 s{S_TM+1}, s{S_TM+1}, 0")
    p.s(f"s_add_u32 s{S_TM}, s{S_TM}, {target}-{name}")
    p.s(f"s_addc_u32 s{S_TM+1}, s{S_TM+1}, 0")
    p.s(f"s_lshr_b32 s{S_T0}, s2, 1")
    p.s(f"s_and_b32 s{S_T0}, s{S_T0}, 0x7c")
    p.s(f"s_add_u32 s{S_T0}, s{S_T0}, s{S_W}")
    p.s(f"s_cmp_ge_u32 s{S_T0}, {nchunk}")
    p.s(f"s_cbranch_scc1 {name}_pf{k}")
    p.s(f"s_lshl_b32 s{S_T0}, s{S_T0}, 13")
    p.s(f"s_add_u32 s{S_TM}, s{S_TM}, s{S_T0}")
    p.s(f"s_addc_u32 s{S_TM+1}, s{S_TM+1}, 0")
    p.raw(f"v_lshlrev_b32 v{t}, 3, v{V_LIN}")
    p.raw(f"v_mov_b32 v{t+1}, s{S_TM+1}")
    p.raw(f"v_add_co_u32 v{t}, vcc, s{S_TM}, v{t}")
    p.raw("s_nop 1")
    p.raw(f"v_addc_co_u32 v{t+1}, vcc, 0, v{t+1}, vcc")
    p.raw(f"global_load_dword v{V_JUNK}, v[{t}:{t+1}], off")
    p.label(f"{name}_pf{k}")

def get_nonce(p, name, t):
    p.add(Ins(f"v_readfirstlane_b32 s{S_NON}, v{V_NV}", "rfl", [V_NV], []))
    p.add(Ins(f"v_readfirstlane_b32 s{S_NON+1}, v{V_NV+1}", "rfl", [V_NV + 1], []))
    p.s(f"s_cmp_lt_i32 s{S_NON+1}, 0")
    p.s(f"s_cbranch_scc1 {name}_x")
    p.vop("v_mov_b32", t + 2, "0")
    p.label(f"{name}")
    p.raw(f"buffer_load_dwordx2 v[{t}:{t+1}], v{t+2}, s[{SRD_DBG}:{SRD_DBG+3}], 0 offen sc1")
    p.raw("s_waitcnt vmcnt(0)")
    p.raw(f"v_readfirstlane_b32 s{S_NON}, v{t}")
    p.raw(f"v_readfirstlane_b32 s{S_NON+1}, v{t+1}")
    p.s(f"s_sub_u32 s{S_SPIN}, s{S_SPIN}, 1")
    p.s(f"s_cbranch_scc1 {name}_x")
    p.s(f"s_cmp_lt_i32 s{S_NON+1}, 0")
    p.s(f"s_cbranch_scc0 {name}")
    p.label(f"{name}_x")
    p.nop(1)

def publish(p, soff, off, t):
    p.vop("v_mov_b32", t, f"s{S_NON}")
    p.vop("v_mov_b32", t + 1, f"s{S_NON+1}")
    p.s("s_mov_b64 exec, 1")
    p.store(t, 2, V_LIN, SRD_WS, soff, off, tag="flag", flags="sc1")
    p.s("s_mov_b64 exec, -1")

def poll_issue(p, vaddr, soff, off, t):
    p.add(Ins(f"buffer_load_dwordx2 v[{t}:{t+1}], v{vaddr}, s[{SRD_WS}:{SRD_WS+3}], {soff} offen offset:{off} sc1", "vml", [vaddr], [t, t + 1], tag="poll"))
def poll_check(p, name, vaddr, soff, off, t, slp=2):
    p.label(f"{name}")
    p.add(Ins(f"v_cmp_ne_u32 vcc, s{S_NON}, v{t}", "valu", [t], []))
    p.add(Ins(f"v_cmp_ne_u32 s[{S_TM+2}:{S_TM+3}], s{S_NON+1}, v{t+1}", "valu", [t + 1], []))
    p.s(f"s_or_b64 vcc, vcc, s[{S_TM+2}:{S_TM+3}]")
    p.s(f"s_cbranch_scc0 {name}_ok")
    p.s(f"s_sub_u32 s{S_SPIN}, s{S_SPIN}, 1")
    p.s(f"s_cbranch_scc1 {name}_ok")
    if slp: p.s(f"s_sleep {slp}")
    p.raw(f"buffer_load_dwordx2 v[{t}:{t+1}], v{vaddr}, s[{SRD_WS}:{SRD_WS+3}], {soff} offen offset:{off} sc1")
    p.raw("s_waitcnt vmcnt(0)")
    p.s(f"s_branch {name}")
    p.label(f"{name}_ok")

def prologue(name):
    p = Prog()
    p.s(f"s_cmp_ge_u32 s2, {NWG}")
    p.s(f"s_cbranch_scc1 {name}_end")
    p.s("s_load_dwordx8 s[84:91], s[0:1], 0")
    p.s("s_load_dwordx8 s[92:99], s[0:1], 32")
    T = V_O
    W, L, a, b, c, d, U, P, VV, R8, PI, M, G, cv = range(T, T + 14)
    p.vop("v_lshrrev_b32", W, "6", 0)
    p.vop("v_and_b32", L, "63", 0)
    p.add(Ins(f"v_readfirstlane_b32 s{S_W}, v{W}", "rfl", [W], []))
    p.vop("v_and_b32", U, "1", W)
    p.vop("v_lshrrev_b32", P, "1", W)
    p.vop("v_lshrrev_b32", VV, "5", L)
    p.vop("v_bfe_u32", R8, L, "2", "3")
    p.vop("v_and_b32", PI, "3", L)
    p.s(f"s_movk_i32 s{S_T0}, 1280")
    p.vop("v_mul_lo_u32", a, R8, f"s{S_T0}")
    p.vop("v_lshl_add_u32", a, VV, "6", a)
    p.vop("v_xor_b32", c, "3", PI)
    p.vop("v_lshl_add_u32", V_DX, PI, "4", a)
    p.vop("v_lshl_add_u32", b, c, "4", a)
    p.vop("v_add_u32", V_DX + 1, f"{9216}", b)
    p.vop("v_add_u32", V_DX + 2, f"{2 * 9216}", V_DX)
    p.vop("v_add_u32", V_DX + 3, f"{3 * 9216}", b)
    p.vop("v_lshrrev_b32", d, "2", R8)
    p.vop("v_lshlrev_b32", cv, "1", d)
    p.vop("v_xor_b32", cv, cv, PI)
    p.vop("v_and_b32", b, "3", R8)
    p.vop("v_lshl_add_u32", b, d, "3", b)
    p.vop("v_lshlrev_b32", d, "7", U)
    p.vop("v_lshl_add_u32", d, VV, "6", d)
    p.vop("v_lshl_add_u32", b, b, "13", d)
    p.vop("v_lshl_add_u32", V_DW, cv, "4", b)
    for j in range(1, 4): p.vop("v_add_u32", V_DW + j, f"{(16 * (j & 1) + 4 * (j >> 1)) * 8192 - 1024 * j}", V_DW)
    p.vop("v_mul_u32_u24", b, "3", P)
    p.vop("v_xor_b32", b, b, PI)
    p.vop("v_lshl_add_u32", b, b, "4", a)
    p.vop("v_lshlrev_b32", a, "2", W)
    p.vop("v_sub_u32", a, P, a)
    p.vop("v_add_u32", a, "16", a)
    p.s(f"s_movk_i32 s{S_T1}, {8 * 1280}")
    p.vop("v_mul_lo_u32", a, a, f"s{S_T1}")
    p.vop("v_add_u32", a, a, b)
    p.vop("v_lshl_add_u32", V_DX + 4, U, "30", a)
    MAP = int(E("MAP", "0"))
    p.s(f"s_bfe_u32 s{S_T0}, s2, {(MAP << 16) | 3:#x}")
    p.s(f"s_lshr_b32 s{S_T2}, s2, {3 + MAP}")
    p.s(f"s_and_b32 s{S_G}, s2, {(1 << (3 - MAP)) - 1}")
    p.s(f"s_lshl_b32 s{S_G}, s{S_G}, {MAP}")
    p.s(f"s_or_b32 s{S_G}, s{S_G}, s{S_T0}")
    p.s(f"s_bfe_u32 s{S_B}, s2, {(MAP << 16) | (3 - MAP):#x}")
    p.s(f"s_lshl_b32 s{S_B}, s{S_B}, {5 - MAP}")
    p.s(f"s_or_b32 s{S_B}, s{S_B}, s{S_T2}")
    p.s(f"s_lshl_b32 s{S_T0}, s{S_T0}, {5 - MAP}")
    p.s(f"s_lshl_b32 s{S_T2}, s{S_T2}, {MAP}")
    p.s(f"s_add_u32 s{S_T2}, s{S_T2}, s{S_T0}")
    p.s(f"s_and_b32 s{S_T2}, s{S_T2}, 31")
    p.s(f"s_lshr_b32 s{S_P}, s{S_W}, 1")
    p.s(f"s_lshl_b32 s{S_M0KV}, s{S_W}, 12")
    p.s(f"s_add_u32 s{S_M0W}, s{S_M0KV}, {WRING}")
    p.s(f"s_lshl_b32 s{S_M0X8}, s{S_P}, 10")
    p.s(f"s_add_u32 s{S_M0X8}, s{S_M0X8}, 16384")
    p.s(f"s_bitcmp1_b32 s{S_W}, 0")
    p.s(f"s_cselect_b32 s{S_M0X8}, 0x1d000, s{S_M0X8}")
    p.s(f"s_lshl_b32 s{S_T0}, s{S_G}, 2")
    p.s(f"s_add_u32 s{S_T0}, s{S_T0}, s{S_P}")
    p.s(f"s_lshl_b32 s{S_WB}, s{S_T0}, 8")
    p.s(f"s_add_u32 s{S_WB+1}, s{S_WB}, 512")
    p.s(f"s_lshl_b32 s{S_T1}, s{S_B}, 5")
    p.s(f"s_add_u32 s{S_T0}, s{S_T0}, s{S_T1}")
    p.s(f"s_lshl_b32 s{S_KVN}, s{S_T0}, 17")
    p.s(f"s_mul_i32 s{S_T0}, s{S_T2}, 5")
    p.s(f"s_lshr_b32 s{S_T0}, s{S_T0}, 4")
    if not int(E("ROT", "1")): p.s(f"s_mov_b32 s{S_T0}, 0")
    p.s(f"s_lshl_b32 s{S_XOFF}, s{S_T0}, 7")
    p.s(f"s_lshl_b32 s{S_WOFF}, s{S_T0}, 19")
    p.s(f"s_mul_i32 s{S_XB}, s{S_B}, {144 * 1280}")
    p.s(f"s_mul_i32 s{S_T0}, s{S_W}, {32 * 1280}")
    p.s(f"s_add_u32 s{S_XB}, s{S_XB}, s{S_T0}")
    def srd(r, src, size):
        p.s(f"s_mov_b32 s{r+2}, {size:#x}")
        p.s(f"s_mov_b32 s{r+3}, 0x20000")
    def srd2(r, src):
        p.s(f"s_mov_b32 s{r}, s{src}")
        p.s(f"s_and_b32 s{r+1}, s{src+1}, 0xffff")
    SR = ((SRD_X, 84, 32 * 144 * 640 * 2), (SRD_W, 90, 640 * 4096 * 2), (SRD_K, 86, 1 << 27), (SRD_V, 88, 1 << 27),
          (SRD_WO, 92, 4096 * 640 * 2), (SRD_OUT, 94, 32 * 144 * 640 * 2), (SRD_DBG, 96, 256), (SRD_WS, 98, (1 << 28) if PROF else WSBYTES))
    for x in SR: srd(*x)
    p.s("s_waitcnt lgkmcnt(0)")
    for x in SR[:2]: srd2(*x[:2])
    for ops in (x_ops(0), w_ops(0), w_ops(1)):
        for f, _ in ops: f(p)
    for x in SR[2:]: srd2(*x[:2])
    stamp(p, 0)
    p.vop("v_lshlrev_b32", V_LIN, "4", L)
    code_prefetch(p, name, 0, f"{name}_nononce", int(E("CPN0", "6")), V_T)
    p.vop("v_lshl_add_u32", b, R8, "8", d)
    p.vop("v_lshl_add_u32", V_DK, PI, "4", b)
    p.vop("v_lshl_add_u32", a, c, "4", b)
    p.vop("v_add_u32", V_DK + 1, "1024", a)
    p.vop("v_add_u32", V_DK + 2, "2048", V_DK)
    p.vop("v_add_u32", V_DK + 3, "3072", a)
    p.vop("v_lshl_add_u32", V_DV, cv, "4", b)
    for j in range(1, 4): p.vop("v_add_u32", V_DV + j, f"{1024 * j}", V_DV)
    p.s(f"s_lshl_b32 s{S_T0}, s2, 1")
    p.s(f"s_add_u32 s{S_T0}, s{S_T0}, s{S_P}")
    p.s(f"s_mul_i32 s{S_T0}, s{S_T0}, {int(E('KROT', '5'))}")
    p.s(f"s_lshr_b32 s{S_T1}, s2, 3")
    p.s(f"s_add_u32 s{S_T0}, s{S_T0}, s{S_T1}")
    p.s(f"s_and_b32 s{S_T0}, s{S_T0}, {15 if int(E('KROT', '5')) else 0}")
    p.s(f"s_lshl_b32 s{S_KOFF}, s{S_T0}, 13")
    p.s(f"s_mov_b32 s{S_VOFF}, s{S_KOFF}")
    p.s(f"s_mov_b32 s{S_M0KVP}, s{S_M0KV}")
    p.s(f"s_mov_b32 s{S_M0KVP+1}, s{S_M0W}")
    p.s(f"s_mov_b32 s{S_KVP}, s{S_KVN}")
    p.s(f"s_and_b32 s{S_U}, s{S_W}, 1")
    p.s(f"s_lshl_b32 s{S_T0}, s{S_B}, 2")
    p.s(f"s_lshr_b32 s{S_T1}, s{S_G}, 1")
    p.s(f"s_add_u32 s{S_T0}, s{S_T0}, s{S_T1}")
    p.s(f"s_and_b32 s{S_T1}, s{S_G}, 1")
    p.s(f"s_lshl_b32 s{S_T1}, s{S_T1}, 2")
    p.s(f"s_add_u32 s{S_T1}, s{S_T1}, s{S_W}")
    p.s(f"s_lshr_b32 s{S_WFP}, s{S_T1}, 1")
    p.s(f"s_lshl_b32 s{S_WFP}, s{S_WFP}, 7")
    p.s(f"s_add_u32 s{S_WFP}, s{S_WFP}, s{S_T0}")
    p.s(f"s_lshl_b32 s{S_WFP}, s{S_WFP}, 1")
    p.s(f"s_add_u32 s{S_WFP}, s{S_WFP}, s{S_U}")
    p.s(f"s_lshl_b32 s{S_WFP}, s{S_WFP}, 3")
    p.s(f"s_add_u32 s{S_WFP}, s{S_WFP}, {WFLG}")
    p.s(f"s_mul_i32 s{S_T1}, s{S_T1}, 5")
    p.s(f"s_mul_i32 s{S_T0}, s{S_T0}, 40960")
    p.s(f"s_lshl_b32 s{S_PT}, s{S_T1}, 10")
    p.s(f"s_add_u32 s{S_PT}, s{S_PT}, s{S_T0}")
    p.s(f"s_lshr_b32 s{S_T1}, s{S_T1}, 1")
    p.s(f"s_lshl_b32 s{S_T1}, s{S_T1}, 6")
    p.s(f"s_add_u32 s{S_WT}, s{S_T1}, s{S_T0}")
    p.s(f"s_mul_i32 s{S_RD}, s{S_W}, 6144")
    if int(E("TOUCH", "1")):
        p.add(Ins(f"buffer_load_dword v{V_T+4}, off, s[{SRD_K}:{SRD_K+3}], s{S_KVN} nt", "vml", [], [V_T + 4], tag="touch"))
        p.add(Ins(f"buffer_load_dword v{V_T+5}, off, s[{SRD_V}:{SRD_V+3}], s{S_KVN} nt", "vml", [], [V_T + 5], tag="touch"))
        p.add(Ins(f"buffer_load_dword v{V_T+7}, off, s[{SRD_WS}:{SRD_WS+3}], s{S_PT} sc1", "vml", [], [V_T + 7], tag="touch"))
    p.vop("v_lshrrev_b32", a, "2", L)
    p.s(f"s_movk_i32 s{S_T0}, 1280")
    p.vop("v_mul_lo_u32", a, a, f"s{S_T0}")
    p.vop("v_lshl_add_u32", V_E2, PI, "4", a)
    for i in range(6):
        p.s(f"s_add_u32 m0, s{S_RD}, {i * 1024}")
        p.s(f"s_add_u32 s{S_SO}, s{S_WT}, {(i & 1) * 16 * 1280 + (i >> 1) * 64}")
        p.dma(V_E2, SRD_WO, f"s{S_SO}", "WOP", E("WOFL", "nt"))
    p.s(f"s_or_b32 s{S_T0}, s2, s{S_W}")
    p.s(f"s_cmp_lg_u32 s{S_T0}, 0")
    p.s(f"s_cbranch_scc1 {name}_nononce")
    p.s(f"s_memrealtime s[{S_NON}:{S_NON+1}]")
    p.s("s_waitcnt lgkmcnt(0)")
    p.s(f"s_or_b32 s{S_NON+1}, s{S_NON+1}, 0x80000000")
    p.raw(f"v_mov_b32 v{V_T}, s{S_NON}")
    p.raw(f"v_mov_b32 v{V_T+1}, s{S_NON+1}")
    p.s("s_mov_b64 exec, 1")
    p.raw(f"buffer_store_dwordx2 v[{V_T}:{V_T+1}], v{V_LIN}, s[{SRD_DBG}:{SRD_DBG+3}], 0 offen sc1")
    p.s("s_mov_b64 exec, -1")
    p.label(f"{name}_nononce")
    p.s(f"s_mov_b32 s{S_SPIN}, 0x40000")
    p.s(f"s_mov_b32 s{S_PH}, 0")
    if PROF in (2, 3): p.s("s_mov_b32 s93, 32")
    p.s(f"s_mov_b64 s[{S_BAD}:{S_BAD+1}], 0")
    p.s(f"s_mov_b32 s{S_CS}, {f2u(CSCALE):#x}")
    p.s(f"s_mov_b32 s{S_CS+1}, s{S_CS}")
    p.s(f"s_mov_b32 s{S_LO}, {f2u(2.0 ** -16):#x}")
    p.s(f"s_mov_b32 s{S_HI}, {f2u(2.0 ** 24):#x}")
    p.vop("v_and_b32", M, "15", L)
    p.vop("v_lshrrev_b32", G, "4", L)
    p.vop("v_lshrrev_b32", a, "3", M)
    p.vop("v_mul_u32_u24", c, "3", a)
    p.vop("v_xor_b32", c, c, G)
    p.vop("v_and_b32", b, "7", M)
    p.vop("v_lshlrev_b32", b, "6", b)
    p.vop("v_lshl_add_u32", b, c, "4", b)
    p.vop("v_lshl_add_u32", b, a, "10", b)
    p.vop("v_add_u32", V_AX8, f"{XRING}", b)
    p.vop("v_lshl_add_u32", V_AX, U, "13", V_AX8)
    p.vop("v_add_u32", V_AW + 5, f"{XALT}", b)
    p.vop("v_lshl_add_u32", V_AW + 4, U, "13", V_AW + 5)
    p.vop("v_add_u32", c, f"s{S_RD}", V_LIN)
    p.vop("v_lshl_add_u32", V_E0, U, "3", c)
    p.vop("v_mul_u32_u24", a, "2040", U)
    p.v(f"v_add3_u32 v{V_E1}, v{c}, v{a}, 8", [V_E1], [c, a])
    p.vop("v_lshl_add_u32", V_AK, P, "13", b)
    p.vop("v_lshrrev_b32", a, "1", G)
    p.vop("v_lshlrev_b32", b, "10", a)
    p.vop("v_lshl_add_u32", b, R8, "6", b)
    p.vop("v_and_b32", c, "1", L)
    p.vop("v_lshl_add_u32", b, c, "3", b)
    p.vop("v_bfe_u32", c, L, "1", "1")
    p.vop("v_lshl_add_u32", b, c, "4", b)
    p.vop("v_and_b32", c, "1", G)
    p.vop("v_lshl_add_u32", b, c, "5", b)
    p.vop("v_lshl_add_u32", V_AV0, P, "13", b)
    p.vop("v_xor_b32", V_AV1, "32", V_AV0)
    p.vop("v_lshl_add_u32", a, U, "12", V_AV0)
    p.vop("v_xor_b32", b, "32", a)
    p.vop("v_xor_b32", c, "4096", a)
    p.vop("v_xor_b32", d, "4096", b)
    for i, r in enumerate((a, b, c, d)): p.vop("v_add_u32", V_AW + i, f"{WRING}", r)
    for ops in (w_ops(2), x_ops(1), w_ops(3)):
        for f, _ in ops: f(p)
    stamp(p, 23)
    return p

def R128(d, a, off): return lambda p: p.ds_read128(d, a, off)
def TR(d, a, off): return lambda p: p.ds_tr(d, a, off)

class Pool:
    def __init__(self, sc, base, n):
        self.sc = sc; self.regs = base if isinstance(base, list) else [base + 4 * k for k in range(n)]; n = len(self.regs); self.n = n; self.last = [None] * n; self.i = 0; self.frags = []
    def frag(self, tile, mk_reads, consumers, as_b=False):
        k = self.i % self.n; self.i += 1
        r = self.regs[k]
        war = self.last[k]
        for (d, o, c, tag) in consumers:
            if as_b: self.sc.mfma(d, o, r, c, tag)
            else: self.sc.mfma(d, r, o, c, tag)
        self.last[k] = consumers[-1][3]
        self.frags.append((tile, mk_reads(r), consumers[0][3], war))

LEAD = int(E("LEAD", "9"))
LEADB = int(E("LEADB", "8"))
BGAP = int(E("BGAP", "4"))

def sstamp(p):
    p.s(f"s_memrealtime s[{S_TM}:{S_TM+1}]")
    p.s(f"s_memtime s[{S_TM+2}:{S_TM+3}]")
    p.wait_lgkm0()
    p.s("s_mov_b32 m0, s93")
    p.s("s_add_u32 s93, s93, 1")
    p.raw(f"v_writelane_b32 v0, s{S_TM}, m0")
    p.raw(f"v_writelane_b32 v255, s{S_TM+2}, m0")

def qmod(name):
    p = Prog()
    KVS = [int(x) for x in E("KVS", "28,30,32,34,37").split(",")]
    sc = Sched(p, budget=int(E("QBUD", "8")), late_extra=8)
    sc.group["dma"] = "vm"; sc.pace["vm"] = int(E("QPACE", "4"))
    sc.maxds = int(E("QMAXDS", "1"))
    pool = Pool(sc, A_QP, NPOOL)
    for h in range(40):
        r = h & 1; st = (h >> 1) & 1
        for k in range(8):
            off = (h % 4) * 16384 + ((k >> 1) & 1) * 512
            ad = V_AW + 2 * (k >> 2) + (k & 1)
            cons = [(QA(r, n, k), Xf(st, n), QA(r, n, k) if h > 1 else None, ("Q", h, k, n)) for n in range(5 if k < 4 else 4)]
            pool.frag(h, lambda rg: [TR(rg, ad, off), TR(rg + 2, ad, off + 2048)], cons)
    mt = lambda i: sc.m[max(0, min(i, len(sc.m) - 1))][4]
    def xreads(i, kh):
        return [R128(Xf(kh, n), (V_AX if i else V_AW + 4) + (n >> 2), (n if n < 4 else 8) * 2048 + kh * 512) for n in range(5)]
    WOS = int(E("WOS", "2"))
    def wst():
        def f(p):
            for i in range(5):
                if i == 4: p.s(f"s_add_u32 s{S_PT}, s{S_PT}, 4096")
                p.store(A_Q + 4 * i, 4, V_LIN, SRD_WS, f"s{S_PT}", (i % 4) * 1024, tag="wst", flags="sc1")
        return [(f, 20)]
    for fi, (h, reads, cons, war) in enumerate(pool.frags):
        c0 = 36 * h
        tau = c0 - LEADB
        taun = c0 + 36 - LEADB
        if fi % 8 == 0:
            def bar(p, h=h):
                p.comment(f"---- q step {h}")
                tags = [("W", h)]
                if h == 0: tags.append(("X", 0))
                if h % 4 == 3 and h < 39: tags.append(("X", (h + 1) // 4))
                p.wait_vm(tags, lgkm0=True)
                if "b" not in ABL or h < 4: p.barrier()
                if PROF == 2 and h % 2 == 0: sstamp(p)
            ops = []
            if h % 4 == 1 and 5 <= h < 37: ops += x_ops(h // 4 + 1)
            if 1 <= h < 37: ops += w_ops(h + 3)
            if "d" in ABL: ops = []
            if h == WOS:
                sc.fill("rw", lambda p: p.wait_vm("WOP"), 4, after=dict(tag=("BAR", h), delay=4), before=mt(taun - BGAP), lead=24)
                for i in range(10):
                    sc.fill("rw", TR(A_Q + 2 * i, V_E0 + ((i >> 1) & 1), (i >> 2) * 2048 + (i & 1) * 1024), 4, ds=True, before=mt(taun - BGAP), lead=2 * (10 - i))
            if h == 36: ops += wst()
            for k, x in enumerate(KVS):
                if x == h: ops += kv_ops(32 + k)
            sc.fill("rd", bar, 8, before=mt(tau), early=0 if h else None, tag=("BAR", h))
            QD = int(E("QD", "14")) if len(ops) <= 4 else int(E("QD2", "0"))
            fill_dma(sc, ops, dict(tag=("BAR", h), delay=QD), mt(taun - 1))
            if h == 0:
                for k, fn in enumerate(xreads(0, 0)): sc.fill("rd", fn, 4, ds=True, before=mt(0))
            xr = []; aft = [("BAR", h)]
            if h % 4 == 3 and h < 39: xr = xreads((h + 1) // 4, 0)
            if h % 4 == 0:
                xr = xreads(h // 4, 1)
                if h: aft.append(("Q", h - 1, 7, 3))
            for j, fn in enumerate(xr):
                sc.fill("rx", fn, 4, ds=True, after=aft, before=mt(taun - BGAP), lead=3 * (len(xr) - j))
        for k, fn in enumerate(reads):
            if "r" in ABL and h >= 2: continue
            bf = cons
            if sc.idx[cons] > taun - BGAP: bf = mt(taun - BGAP)
            sc.fill("rd", fn, 4, ds=True, after=war if k == 0 else None, before=bf, lead=LEAD if bf is cons else 0, early=int(E("QEARLY", "99")))
    def lastbar(p):
        p.comment("---- q step 40")
        p.wait_lgkm0(); p.barrier()
        p.add(Ins(f"buffer_load_dwordx2 v[{V_NV}:{V_NV+1}], off, s[{SRD_DBG}:{SRD_DBG+3}], 0 sc1", "vml", [], [V_NV, V_NV + 1], tag="non"))
    sc.fill("rd", lastbar, 8, before=mt(36 * 40 - LEADB), early=0)
    sc.run()
    stamp(p, 1)
    fstart = len(p.ins)
    TB = V_O + 144
    cnt = [0]
    def fin(r, n, t, i):
        s0 = QA(r, n, 2 * t)
        if r:
            tb = TB + 8 * (cnt[0] & 1); cnt[0] += 1
            for x in range(8): p.ar(tb + x, s0 + x)
            s0 = tb
        dst = V_S + 4 * i
        for x in range(0, 8, 2): p.pkmul(s0 + x, s0 + x, f"s[{S_CS}:{S_CS+1}]")
        for x in range(4): p.cvtpk(dst + x, s0 + 2 * x, s0 + 2 * x + 1)
        return dst
    def swp(dst):
        p.swap32(dst, dst + 2); p.swap32(dst + 1, dst + 3)
        p.swap16(dst, dst + 2); p.swap16(dst + 1, dst + 3)
    p.v(f"v_lshl_add_u32 v{V_E0}, s{S_W}, 12, v{V_LIN}", [V_E0], [V_LIN])
    p.vop("v_add_u32", V_E0, f"{XRING}", V_E0)
    p.vop("v_xor_b32", V_E1, "4096", V_E0)
    d8 = [fin(r, 4, t, 2 * r + t) for r in range(2) for t in range(2)]
    for d in d8: swp(d)
    for t, d in enumerate(d8): p.ds_write(V_E0, d, 4, t * 1024)
    for r in range(2):
        base = A_QN if r else A_Q
        for n in range(4):
            ds = [fin(r, n, t, 4 + (n & 1) * 4 + t) for t in range(4)]
            if r == 0 and n == 0:
                p.wait_lgkm0(); p.barrier()
                for t in range(2): p.ds_read128(Qf(4, t), V_E0, t * 1024)
                for t in range(2): p.ds_read128(Qf(4, 2 + t), V_E1, t * 1024)
            for d in ds: swp(d)
            for t, d in enumerate(ds):
                for x in range(4): p.aw(Qf(n, t, base) + x, d + x)
    for t in range(2): p.ds_read128(Qf(4, t, A_QN), V_E0, 2048 + t * 1024)
    for t in range(2): p.ds_read128(Qf(4, 2 + t, A_QN), V_E1, 2048 + t * 1024)
    p.vop("v_mov_b32", V_T, "0x3f803f80")
    for r in range(4): p.aw(A_ONE + r, V_T)
    sprinkle([(p, fstart)], sum([kv_ops(32 + k) for k in range(len(KVS), 8)], []), 0.0, float(E("QSH", "1.0")))
    get_nonce(p, f"{name}_n1", V_T)
    p.wait_vm("wst")
    publish(p, f"s{S_WFP}", 0, V_T)
    z = p
    z.s(f"s_mul_i32 s{S_WT}, s{S_G}, {16 * 40960}")
    z.s(f"s_mul_i32 s{S_T0}, s{S_W}, 10240")
    z.s(f"s_add_u32 s{S_WT}, s{S_WT}, s{S_T0}")
    z.s(f"s_lshl_b32 s{S_PF}, s{S_W}, 11")
    z.s(f"s_lshl_b32 s{S_T1}, s{S_G}, 8")
    z.s(f"s_add_u32 s{S_PF}, s{S_PF}, s{S_T1}")
    z.s(f"s_add_u32 s{S_PF}, s{S_PF}, {WFLG}")
    z.vop("v_lshrrev_b32", V_AX, "1", V_LIN)
    z.vop("v_and_b32", V_AX, "0xf8", V_AX)
    psetup(z)
    stamp(z, 2)
    return p

def a_mfmas(sc, pool, qh):
    AV = (V_AV0, V_AV1)
    has8 = lambda u: (u & 1) == qh
    for pos, (kind, u) in enumerate(KVSEQ):
        sb = (pos % 4) * 16384
        ns = [0, 1, 2, 3] + ([4] if has8(u) else [])
        if kind == "K":
            for kt in range(2):
                for ks in range(4):
                    off = sb + kt * 2048 + ((ks >> 1) ^ qh) * 4096 + (ks & 1) * 512
                    cons = []
                    for n in ns:
                        d = XS(u & 1, n) if kt == 0 else YS(n)
                        cons.append((d, Qf(n, ks), d if ks else None, ("S", u, kt, ks, n)))
                    pool.frag(pos, lambda r: [R128(r, V_AK, off)], cons)
        else:
            first = lambda n: u == 0 if n < 4 else u == qh
            for n in ns: sc.mfma(La(n), A_ONE, XS(u & 1, n), None if first(n) else La(n), ("L", u, n))
            for m in range(8):
                e, mp = m & 1, m >> 1
                off = sb + (mp >> 1) * 4096 + (mp & 1) * 512
                oa = lambda n: Oa(n, m if n < 4 else m ^ (4 * qh))
                cons = [(oa(n), XS(u & 1, n), None if first(n) else oa(n), ("PV", u, m, n)) for n in ns]
                pool.frag(pos, lambda r: [TR(r, AV[e], off), TR(r + 2, AV[e], off + 2048)], cons)

def a_taus():
    cs = []
    for qh in range(2):
        sc = Sched(Prog()); pool = Pool(sc, A_POOL, NPOOL); a_mfmas(sc, pool, qh)
        c = {}
        for (pos, _, cons, _) in pool.frags: c.setdefault(pos, sc.idx[cons])
        c[32] = len(sc.m) + LEADB - 3
        cs.append(c)
    return [min(cs[0][j], cs[1][j]) - LEADB for j in range(33)]

def aentry(name):
    p = Prog()
    p.label(f"{name}_A")
    p.s(f"s_mov_b32 s{S_KB}, s{S_KVN}")
    p.s(f"s_mov_b32 s{S_VB}, s{S_KVN}")
    p.s(f"s_add_u32 s{S_KVN}, s{S_KVN}, {2 << 17}")
    p.s(f"s_mov_b32 s{S_M0D}, s{S_M0W}")
    p.s(f"s_cmp_eq_u32 s{S_PH}, 0")
    p.s(f"s_cselect_b32 s{S_M0KVP}, s{S_M0KV}, {DROP:#x}")
    p.s(f"s_cselect_b32 s{S_M0KVP+1}, s{S_M0W}, {DROP:#x}")
    p.s(f"s_cselect_b32 s{S_KVP}, s{S_KVN}, {OOB:#x}")
    p.s(f"s_cselect_b64 s[{S_XM}:{S_XM+1}], 0, -1")
    p.s(f"s_cselect_b32 s{S_WT2}, {OOB:#x}, s{S_WT}")
    p.s(f"s_cmp_eq_u32 s{S_U}, 1")
    p.s(f"s_cbranch_scc1 {name}_A1")
    return p

def tile_addr(p, base, dst):
    p.s(f"s_lshl_b32 s{S_T0}, s{S_U}, 2")
    p.s(f"s_sub_u32 s{S_T0}, s{S_T0}, s{S_G}")
    for n in range(4):
        p.s(f"s_add_u32 s{S_T1}, s{S_T0}, {n + 7}")
        p.s(f"s_and_b32 s{S_T1}, s{S_T1}, 7")
        p.v(f"v_lshl_add_u32 v{dst+n}, s{S_T1}, 10, v{base}", [dst + n], [base])

HOLD = int(E("HOLD", "37"))
WORD = list(range(20, 32)) + list(range(20))
def amod(name, qh):
    p = Prog()
    p.label(f"{name}_A{qh}")
    sc = Sched(p, budget=int(E("ABUD", "8")), late_extra=int(E("ALATE", "8")))
    sc.group["dma"] = "vm"; sc.pace["vm"] = int(E("APACE", "7"))
    pool = Pool(sc, A_POOL, NPOOL)
    a_mfmas(sc, pool, qh)
    tau = a_taus()
    mt = lambda i: sc.m[max(0, min(i, len(sc.m) - 1))][4]
    def add_bar(pos):
        def bar(p, pos=pos):
            p.comment(f"---- a step {pos}")
            if pos < 32: p.wait_vm(KVSEQ[pos], lgkm0=True, cap=int(E("AVM", "5")) + (2 if pos > 24 else 0) if pos < 30 else None)
            else: p.wait_lgkm0()
            p.barrier()
            if pos % 4 == 0 and pos:
                for r in (V_AV0, V_AV1, V_AK): p.vop("v_xor_b32", r, "0x10000", r)
            if PROF == 3 and pos % 2 == 0 and pos < 32: sstamp(p)
        sc.fill("rd", bar, 8, after=[("DMA", pos - 1)] if pos >= 2 else None, before=mt(tau[pos]), early=0 if pos else None, tag=("BAR", pos))
        if 1 <= pos < 32:
            ops = kv_ops(pos + 7) if pos + 7 < HOLD else [(lambda p: p.s("s_nop 0"), 4)]
            if pos % 4 == 1 and pos < 25: ops = [(lambda p: p.s(f"s_xor_b32 s{S_M0D}, s{S_M0D}, 0x10000"), 4)] + ops
            aft = ("BAR", pos); bf = mt(tau[pos + 1] - 1)
            fill_dma(sc, ops, aft, bf, tag=("DMA", pos))
            if 24 <= pos < 30:
                for k in (20 + 2 * (pos - 24), 21 + 2 * (pos - 24)):
                    for fn, kind, cost in split_ops([(wload(0, k, S_T2, S_WT2), 8)]):
                        sc.fill("dmp", fn, 8 if kind == "vm" else 4, after=dict(tag=aft, delay=4 + 14 * (k & 1)), solo=(kind == "vm"), before=bf, lead=20)
            if pos == 30:
                NWL = int(E("NWL", "12")); WLS = int(E("WLS", "6"))
                last = ("S", 15, 1, 3, 4 if qh == 1 else 3)
                for k in range(NWL):
                    for fn, kind, cost in split_ops([(wload(0, k, S_T2, S_WT2), 8)]):
                        sc.fill("dmp", fn, 8 if kind == "vm" else 4, after=dict(tag=last, delay=2 + WLS * k), solo=(kind == "vm"), before=mt(sc.idx[last] + 12 + WLS * k), lead=9)
    cur = None
    for (pos, reads, cons, war) in pool.frags:
        if pos != cur:
            cur = pos; add_bar(pos)
        for k, fn in enumerate(reads):
            bf = cons
            if sc.idx[cons] > tau[pos + 1] - BGAP: bf = mt(tau[pos + 1] - BGAP)
            sc.fill("rd", fn, 4, ds=True, after=war if k == 0 else None, before=bf, lead=LEAD if bf is cons else 0)
    add_bar(32)
    def V(fn, after=None, before=None, cost=4, lead=0): sc.fill("va", fn, cost, after=after, before=before, lead=lead)
    EDL = int(E("EDL", "3"))
    for u in range(16):
        ns = [0, 1, 2, 3] + ([4] if (u & 1) == qh else [])
        for kt in range(2):
            for n in ns:
                src = XS(u & 1, n) if kt == 0 else YS(n)
                dst = XS(u & 1, n) + 2 * kt
                for r in range(4):
                    V(lambda p, reg=src + r: p.exp(reg, reg), after=dict(tag=("S", u, kt, 3, n), delay=EDL), cost=8)
                bf = ("L", u, n)
                if kt == 1 and n < 4 and u < 15: bf = ("S", u + 1, 1, 0, n)
                V(lambda p, dst=dst, src=src: p.cvtpk(dst, src, src + 1))
                V(lambda p, dst=dst, src=src: p.cvtpk(dst + 1, src + 2, src + 3), before=bf, lead=2)
    sc.run()
    if qh == 0: p.s(f"s_branch {name}_F")
    return p

def afin(name):
    p = Prog()
    p.label(f"{name}_F")
    stamp(p, 5, S_PH)
    poll_issue(p, V_AX, f"s{S_PF}", 0, V_NV)
    AD, AL, AI, A8 = V_S + 44, V_S + 46, V_S + 48, V_S + 52
    p.v(f"v_lshl_add_u32 v{AD}, s{S_W}, 12, v{V_LIN}", [AD], [V_LIN])
    p.vop("v_add_u32", AD, f"{MISC}", AD)
    p.vop("v_xor_b32", AD + 1, "4096", AD)
    for i in range(4): p.ds_write(AD + 1, Oa(4, 4 + i), 4, i * 1024)
    p.s(f"s_xor_b32 s{S_T0}, s{S_W}, 1")
    p.s(f"s_movk_i32 s{S_T1}, 18432")
    p.s(f"s_mov_b32 s{S_T2}, {IMG(8)}")
    p.s(f"s_cmp_eq_u32 s{S_PH}, 0")
    p.s(f"s_cselect_b32 s{S_T1}, 1024, s{S_T1}")
    p.s(f"s_cselect_b32 s{S_T2}, {XRING}, s{S_T2}")
    p.s(f"s_mul_i32 s{S_T0}, s{S_T0}, s{S_T1}")
    p.s(f"s_add_u32 s{S_T0}, s{S_T0}, s{S_T2}")
    p.vop("v_add_u32", AL + 1, f"s{S_T0}", V_LIN)
    p.ds_write(AL + 1, La(4), 1, 0)
    p.s(f"s_mul_i32 s{S_T0}, s{S_W}, s{S_T1}")
    p.s(f"s_add_u32 s{S_T0}, s{S_T0}, s{S_T2}")
    p.vop("v_add_u32", AL, f"s{S_T0}", V_LIN)
    RL = V_S + 2
    for n in range(5): p.ar(RL + 2 * n, La(n))
    p.s(f"s_mul_i32 s{S_T0}, s{S_P}, 36864")
    p.vop("v_add_u32", A8 + 1, f"s{S_T0}", V_LIN)
    tile_addr(p, A8 + 1, V_T)
    for n in range(4): p.vop("v_add_u32", AI + n, f"{IMG(8)}", V_T + n)
    p.vop("v_subrev_u32", A8, f"{IMG(8)}", AL)
    wleft = list(range(int(E("NWL", "12")), 20))
    def check(n):
        r = RL + 2 * n
        p.add(Ins(f"v_cmp_nge_f32 vcc, v{r}, s{S_LO}", "valu", [r], []))
        p.s(f"s_or_b64 s[{S_BAD}:{S_BAD+1}], s[{S_BAD}:{S_BAD+1}], vcc")
        p.add(Ins(f"v_cmp_nle_f32 vcc, v{r}, s{S_HI}", "valu", [r], []))
        p.s(f"s_or_b64 s[{S_BAD}:{S_BAD+1}], s[{S_BAD}:{S_BAD+1}], vcc")
        p.vop("v_rcp_f32", r + 1, r, kind="trans")
        p.vop("v_rcp_f32", r, r, kind="trans")
    def pkm(d, n): p.pkmul(d, d, RL + 2 * n)
    CHK = V_S + 40
    pend = []
    def flush():
        for d in pend: p.mfma(CHK, A_ONE, d, CHK if d != Oa(0, 0) else None)
        pend.clear()
    def norm(n, t):
        s0 = Oa(n, 2 * t)
        for r in range(0, 8, 2): pkm(s0 + r, n)
        for r in range(4): p.cvtpk(s0 + r, s0 + 2 * r, s0 + 2 * r + 1)
        flush()
        if t & 1:
            p.s(f"s_mov_b64 exec, s[{S_XM}:{S_XM+1}]")
            for tt in (t - 1, t):
                if n < 4: p.ds_write(AI + n, Oa(n, 2 * tt), 4, tt * 9216 + 1024).kind = "dsx"
                else: p.ds_write(AL, Oa(n, 2 * tt), 4, tt * 9216).kind = "dsx"
                if n < 4: p.ds_write(V_T + n, Qf(n, tt, A_QN), 4, tt * 9216 + 1024).kind = "dsx"
                else: p.ds_write(A8, Qf(n, tt, A_QN), 4, tt * 9216).kind = "dsx"
            p.s("s_mov_b64 exec, -1")
        if wleft: wload(0, wleft.pop(0), S_T2, S_WT2)(p)
        pend.append(s0)
    for n in range(4): check(n)
    p.add(Ins("s_waitcnt lgkmcnt(0)", "waitlgkm0"))
    for t in range(4): norm(0, t)
    p.barrier()
    PX = V_S + 16
    for i in range(4): p.ds_read128(PX + 4 * i, AD, i * 1024)
    p.ds_read32(V_S, AL, 0)
    for n in (1, 2):
        for t in range(4): norm(n, t)
    p.vop("v_add_f32", RL + 8, RL + 8, V_S)
    check(4)
    for i in range(4):
        for r in range(4): p.vop("v_add_f32", Oa(4, i) + r, Oa(4, i) + r, PX + 4 * i + r)
    for t in range(2): norm(4, t)
    for t in range(4): norm(3, t)
    flush()
    p.s(f"s_movk_i32 s{S_T2}, 0x207")
    p.s(f"s_add_u32 s{S_PH}, s{S_PH}, 1")
    p.add(Ins(f"v_cmp_class_f32 vcc, v{CHK}, s{S_T2}", "valu", [CHK], []))
    p.s(f"s_or_b64 s[{S_BAD}:{S_BAD+1}], s[{S_BAD}:{S_BAD+1}], vcc")
    stamp(p, 2, S_PH)
    p.s(f"s_cmp_eq_u32 s{S_PH}, 2")
    p.s(f"s_cbranch_scc1 {name}_P")
    q = Prog()
    q_copy(q)
    for n in range(5):
        for t in range(4 if n < 4 else 2):
            for r in range(4): q.aw(Qf(n, t, A_QN) + r, Oa(n, 2 * t) + r)
    sprinkle([(p, 8), (q, 1)], sum([kv_ops(k) for k in range(HOLD, 40)], []), 0.0, float(E("ASH", "1.0")))
    code_prefetch(q, name, 1, f"{name}_end-16384", 2, V_T)
    poll_check(q, f"{name}_wpoll", V_AX, f"s{S_PF}", 0, V_NV)
    q.s(f"s_branch {name}_A")
    return p, q

def q_copy(p):
    for r in range(80): p.amov(A_Q + r, A_QN + r)

P_R = ([A_Q + 4 * i for i in range(20)] + [A_X + 4 * i for i in range(10)] + [10, 14],
       [A_QN + 4 * i for i in range(20)] + [A_L + 4 * i for i in range(12)])
def wload(j, i, so=None, sb=None):
    def f(p):
        if i % 2 == 0: p.s(f"s_add_u32 s{so or S_SO}, s{sb or S_WT}, {(i >> 1) * 40960}")
        if "B" not in ABL: p.load4(P_R[j & 1][i], V_LIN, SRD_WS, f"s{so or S_SO}", (i & 1) * 1024, ("WT", j, i), "sc1")
    return f

def slow(name):
    SI, SC, SX, SWq, SKV, SD, SK = 56, 57, 58, 59, 88, 89, 90
    VW, VX, VK, VV_, VD = 28, 36, 37, 38, 39
    MX, NM, LA, QF, SS, FB, AC, RAW, FR = 40, 44, 48, 52, 68, 76, 84, 116, 180
    def ld(p, op, n, d, vo, srd, so, off):
        p.add(Ins(f"{op} {vr(d, n)}, v{vo}, s[{srd}:{srd+3}], s{so} offen offset:{off}", "vml", [vo], R(d, n), tag="sl"))
    p0 = Prog()
    p0.label(f"{name}_slow")
    p0.wait_all()
    M, G = MX, MX + 1
    p0.vop("v_bfe_u32", M, V_LIN, "4", "4")
    p0.vop("v_lshrrev_b32", G, "8", V_LIN)
    p0.vop("v_lshlrev_b32", VW, "16", G)
    p0.vop("v_lshl_add_u32", VW, M, "1", VW)
    for i in range(1, 8): p0.vop("v_add_u32", VW + i, f"{8192 * i}", VW)
    p0.s(f"s_movk_i32 s{S_T0}, 1280")
    p0.vop("v_mul_lo_u32", VX, M, f"s{S_T0}")
    p0.vop("v_lshl_add_u32", VX, G, "4", VX)
    p0.vop("v_lshlrev_b32", VK, "8", M)
    p0.vop("v_lshl_add_u32", VK, G, "3", VK)
    p0.vop("v_lshlrev_b32", VV_, "10", G)
    p0.vop("v_lshl_add_u32", VV_, M, "1", VV_)
    p0.s(f"s_mov_b32 s{SI}, 0")
    p1 = Prog()
    p1.label(f"{name}_sl_it")
    p1.s(f"s_cmp_ge_u32 s{SI}, 5")
    p1.s(f"s_cselect_b32 s{S_T0}, 2, 0")
    p1.s(f"s_cselect_b32 s{S_T1}, 5, 0")
    p1.s(f"s_sub_u32 s{S_T1}, s{SI}, s{S_T1}")
    p1.s(f"s_add_u32 s{S_T0}, s{S_T0}, s{S_P}")
    p1.s(f"s_mul_i32 s{SD}, s{S_T0}, 36864")
    p1.s(f"s_lshl_b32 s{S_T2}, s{S_G}, 2")
    p1.s(f"s_add_u32 s{S_T0}, s{S_T0}, s{S_T2}")
    p1.s(f"s_lshl_b32 s{SWq}, s{S_T0}, 8")
    p1.s(f"s_lshl_b32 s{S_T2}, s{S_B}, 5")
    p1.s(f"s_add_u32 s{S_T0}, s{S_T0}, s{S_T2}")
    p1.s(f"s_lshl_b32 s{SKV}, s{S_T0}, 17")
    p1.s(f"s_lshl_b32 s{S_T0}, s{S_U}, 2")
    p1.s(f"s_add_u32 s{S_T0}, s{S_T0}, s{S_T1}")
    p1.s(f"s_sub_u32 s{S_T2}, s{S_T0}, s{S_G}")
    p1.s(f"s_add_u32 s{S_T2}, s{S_T2}, 7")
    p1.s(f"s_and_b32 s{S_T2}, s{S_T2}, 7")
    p1.s(f"s_add_u32 s{S_T2}, s{S_T2}, 1")
    p1.s(f"s_cmp_eq_u32 s{S_T1}, 4")
    p1.s(f"s_cselect_b32 s{S_T0}, 8, s{S_T0}")
    p1.s(f"s_cselect_b32 s{S_T2}, 0, s{S_T2}")
    p1.s(f"s_lshl_b32 s{S_T2}, s{S_T2}, 10")
    p1.s(f"s_add_u32 s{SD}, s{SD}, s{S_T2}")
    p1.vop("v_add_u32", VD, f"s{SD}", V_LIN)
    p1.s(f"s_mul_i32 s{S_T2}, s{S_B}, 9")
    p1.s(f"s_add_u32 s{S_T0}, s{S_T0}, s{S_T2}")
    p1.s(f"s_mul_i32 s{SX}, s{S_T0}, {16 * 1280}")
    for r in range(32): p1.vop("v_mov_b32", AC + r, "0")
    p1.s(f"s_mov_b32 s{SC}, 0")
    def pack(p):
        for r in range(32): p.vop("v_lshl_or_b32", FR + r, RAW + 2 * r + 1, "16", RAW + 2 * r)
    def loop_end(p, lab, n):
        p.s(f"s_add_u32 s{SC}, s{SC}, 1")
        p.s(f"s_cmp_lt_u32 s{SC}, {n}")
        p.s(f"s_cbranch_scc1 {lab}")
    p2 = Prog()
    p2.label(f"{name}_sl_q")
    ld(p2, "buffer_load_dwordx4", 4, FB, VX, SRD_X, SX, 0)
    for m in range(8):
        for i in range(8): ld(p2, "buffer_load_ushort", 1, RAW + 8 * m + i, VW + i, SRD_W, SWq, 32 * m)
        if m == 3: p2.wait_all()
    p2.wait_all()
    pack(p2)
    for m in range(8): p2.mfma(AC + 4 * m, FR + 4 * m, FB, AC + 4 * m)
    p2.s(f"s_add_u32 s{SX}, s{SX}, 64")
    p2.s(f"s_add_u32 s{SWq}, s{SWq}, {32 * 8192}")
    loop_end(p2, f"{name}_sl_q", 20)
    p3 = Prog()
    for r in range(32): p3.vop("v_mul_f32", AC + r, f"s{S_CS}", AC + r)
    for r in range(16): p3.cvtpk(QF + r, AC + 2 * r, AC + 2 * r + 1)
    for r in range(32): p3.vop("v_mov_b32", AC + r, "0")
    for r in range(4): p3.vop("v_mov_b32", LA + r, "0")
    p3.vop("v_mov_b32", MX, "0xff800000")
    p3.s(f"s_mov_b32 s{SK}, s{SKV}")
    p3.s(f"s_mov_b32 s{SC}, 0")
    def kfrags(p, dst, so):
        for ks in range(4):
            ld(p, "buffer_load_dwordx2", 2, dst + 4 * ks, VK, SRD_K, so, 64 * ks)
            ld(p, "buffer_load_dwordx2", 2, dst + 4 * ks + 2, VK, SRD_K, so, 64 * ks + 32)
    p4 = Prog()
    p4.label(f"{name}_sl_m")
    kfrags(p4, FR, SK)
    p4.wait_all()
    for ks in range(4): p4.mfma(SS, FR + 4 * ks, QF + 4 * ks, SS if ks else None)
    p4.vop("v_max3_f32", MX, MX, SS, SS + 1)
    p4.vop("v_max3_f32", MX, MX, SS + 2, SS + 3)
    p4.s(f"s_add_u32 s{SK}, s{SK}, 4096")
    loop_end(p4, f"{name}_sl_m", 32)
    p5 = Prog()
    for sw in (p5.swap32, p5.swap16):
        p5.vop("v_mov_b32", MX + 1, MX)
        sw(MX, MX + 1)
        p5.vop("v_max_f32", MX, MX, MX + 1)
    for r in range(4): p5.vop("v_sub_f32", NM + r, "0", MX)
    p5.s(f"s_mov_b32 s{SC}, 0")
    p6 = Prog()
    p6.label(f"{name}_sl_a")
    p6.s(f"s_add_u32 s{SK}, s{SKV}, 4096")
    kfrags(p6, FR, SKV)
    kfrags(p6, FR + 16, SK)
    p6.wait_all()
    for m in range(8):
        for i in range(8): ld(p6, "buffer_load_ushort", 1, RAW + 8 * m + i, VV_, SRD_V, SK if i >= 4 else SKV, 32 * m + 256 * (i & 3))
        if m == 3: p6.wait_all()
    for kt in range(2):
        for ks in range(4): p6.mfma(SS + 4 * kt, FR + 16 * kt + 4 * ks, QF + 4 * ks, SS + 4 * kt if ks else NM)
    for r in range(8): p6.exp(SS + r, SS + r)
    for r in range(4): p6.cvtpk(FB + r, SS + 2 * r, SS + 2 * r + 1)
    p6.wait_all()
    pack(p6)
    p6.mfma(LA, A_ONE, FB, LA)
    for m in range(8): p6.mfma(AC + 4 * m, FR + 4 * m, FB, AC + 4 * m)
    p6.s(f"s_add_u32 s{SKV}, s{SKV}, 8192")
    loop_end(p6, f"{name}_sl_a", 16)
    p7 = Prog()
    p7.vop("v_rcp_f32", LA, LA, kind="trans")
    for r in range(32): p7.vop("v_mul_f32", AC + r, AC + r, LA)
    for r in range(16): p7.cvtpk(QF + r, AC + 2 * r, AC + 2 * r + 1)
    for hf in range(2):
        p7.s(f"s_cmp_eq_u32 s{S_U}, {hf}")
        p7.s(f"s_cselect_b32 s{S_T0}, 0, s{S_T1}")
        p7.s(f"s_cmp_eq_u32 s{S_T0}, 4")
        p7.s(f"s_cbranch_scc1 {name}_sl_s{hf}")
        for t in (2 * hf, 2 * hf + 1): p7.ds_write(VD, QF + 4 * t, 4, t * 9216)
        p7.label(f"{name}_sl_s{hf}")
    p7.wait_all()
    p7.s(f"s_add_u32 s{SI}, s{SI}, 1")
    p7.s(f"s_cmp_lt_u32 s{SI}, 10")
    p7.s(f"s_cbranch_scc1 {name}_sl_it")
    p7.s(f"s_branch {name}_P2")
    body = [p1, p2, p2, p3, p4, p4, p5, p6, p6, p7]
    return [p0, p1, p2, p3, p4, p5, p6, p7], [p0] + body + body

S_ST = 62
S_J, S_JO, S_J8, S_JO8 = 4, 5, 6, 7
S_PC, S_FO, S_PO, S_JL = 70, 71, 72, 73
def psetup(p):
    p.s(f"s_mul_i32 s{S_RD}, s{S_B}, {PARTB}")
    p.s(f"s_lshl_b32 s{S_T1}, s{S_W}, 11")
    p.s(f"s_add_u32 s{S_RD}, s{S_RD}, s{S_T1}")
    p.s(f"s_add_u32 s{S_RD}, s{S_RD}, {PART}")
    p.s(f"s_lshr_b32 s{S_T0}, s{S_G}, 2")
    p.s(f"s_mul_i32 s{S_T0}, s{S_T0}, {PARTH}")
    p.s(f"s_add_u32 s{S_T0}, s{S_T0}, s{S_RD}")
    p.s(f"s_and_b32 s{S_T1}, s{S_G}, 3")
    p.s(f"s_mul_i32 s{S_ST}, s{S_T1}, 40960")
    p.s(f"s_add_u32 s{S_ST}, s{S_ST}, s{S_T0}")
    p.s(f"s_add_u32 s{S_ST}, s{S_ST}, 32768")
    p.s(f"s_lshl_b32 s{S_J}, s{S_T1}, 13")
    p.s(f"s_add_u32 s{S_J}, s{S_J}, s{S_T0}")
    for i in range(1, 8):
        p.s(f"s_add_u32 s{S_T0}, s{S_G}, {i}")
        p.s(f"s_bfe_u32 s{S_T1}, s{S_T0}, 0x10002")
        p.s(f"s_mul_i32 s{S_T1}, s{S_T1}, {PARTH}")
        p.s(f"s_and_b32 s{S_T0}, s{S_T0}, 3")
        p.s(f"s_lshl_b32 s{S_T0}, s{S_T0}, 13")
        p.s(f"s_add_u32 s{S_T0}, s{S_T0}, s{S_T1}")
        p.s(f"s_add_u32 s{S_T0}, s{S_T0}, s{S_RD}")
        p.s(f"s_add_u32 s{S_ST+i}, s{S_T0}, {((i - 1) >> 1) * 40960 + ((i - 1) & 1) * 1024}")
    p.s(f"s_lshl_b32 s{S_PO}, s{S_B}, 2")
    p.s(f"s_add_u32 s{S_PO}, s{S_PO}, s{S_W}")
    p.s(f"s_lshl_b32 s{S_PO}, s{S_PO}, 9")
    p.s(f"s_add_u32 s{S_PO}, s{S_PO}, {PFLG}")
    p.s(f"s_lshl_b32 s{S_FO}, s{S_G}, 3")
    p.s(f"s_add_u32 s{S_FO}, s{S_FO}, s{S_PO}")
    p.s(f"s_mul_i32 s{S_OUTO}, s{S_B}, {144 * 1280}")
    p.s(f"s_mul_i32 s{S_T1}, s{S_W}, 320")
    p.s(f"s_add_u32 s{S_OUTO}, s{S_OUTO}, s{S_T1}")
    p.s(f"s_mul_i32 s{S_JO}, s{S_G}, {16 * 1280}")
    p.s(f"s_add_u32 s{S_JO}, s{S_JO}, s{S_OUTO}")
    p.s(f"s_sub_u32 s{S_JO}, s{S_JO}, 64")
    p.s(f"s_mul_i32 s{S_T1}, s{S_G}, {4 * 40960}")
    p.s(f"s_add_u32 s{S_J8}, s{S_RD}, s{S_T1}")
    p.s(f"s_add_u32 s{S_J8}, s{S_J8}, 32768")
    p.s(f"s_lshl_b32 s{S_T1}, s{S_G}, 6")
    p.s(f"s_add_u32 s{S_JO8}, s{S_OUTO}, s{S_T1}")
    p.s(f"s_add_u32 s{S_JO8}, s{S_JO8}, {128 * 1280}")
    p.s(f"s_cmp_ge_u32 s{S_G}, 5")
    p.s(f"s_cselect_b32 s{S_J8}, {OOB:#x}, s{S_J8}")
    p.s(f"s_cselect_b32 s{S_JO8}, {OOB:#x}, s{S_JO8}")
    p.s(f"s_mov_b32 s{S_PC}, 0")

def pmod(name):
    p = Prog()
    p.label(f"{name}_P")
    if "F" in ABL: p.s(f"s_mov_b32 s{S_BAD}, 1")
    p.s(f"s_cmp_lg_u64 s[{S_BAD}:{S_BAD+1}], 0")
    p.s(f"s_cbranch_scc1 {name}_slow")
    p.label(f"{name}_P2")
    AO = (V_LIN, 2, 3)
    V_FA, V_OA = 4, 5
    PT, PT2 = 6, 8
    V_SA = 1
    SEL = 18
    POOL = [28 + 4 * k for k in range(16)]
    ACC = 92
    OWN = 124
    A8 = 164
    JB = (172, 204)
    CT = 244
    p.vop("v_add_u32", AO[1], "49152", V_LIN)
    p.vop("v_add_u32", AO[2], "98304", V_LIN)
    p.vop("v_mov_b32", V_SA, V_LIN)
    p.wait_all()
    p.barrier()
    stamp(p, 16)
    NL = int(E("PLEAD", "8"))
    def ooff(i, kq): return IMG(kq) + i * 1024
    for f in range(NL): p.ds_read128(POOL[f], AO[ooff(0, f) // 49152], ooff(0, f) % 49152)
    p.vop("v_lshrrev_b32", V_FA, "1", V_LIN)
    p.vop("v_and_b32", V_FA, "0x38", V_FA)
    p.vop("v_bfe_u32", CT, V_LIN, "4", "4")
    p.s(f"s_movk_i32 s{S_T0}, 1280")
    p.vop("v_mul_lo_u32", V_OA, CT, f"s{S_T0}")
    p.vop("v_lshrrev_b32", CT + 1, "8", V_LIN)
    p.vop("v_lshl_add_u32", V_OA, CT + 1, "4", V_OA)
    p.vop("v_mov_b32", PT2, f"s{S_NON}")
    p.vop("v_mov_b32", PT2 + 1, f"s{S_NON+1}")
    p.vop("v_and_b32", CT + 2, "1", CT)
    p.vop("v_lshlrev_b32", CT + 2, "4", CT + 2)
    p.s(f"s_movk_i32 s{S_T0}, 0x3f80")
    p.vop("v_lshlrev_b32", CT + 2, CT + 2, f"s{S_T0}")
    p.vop("v_lshrrev_b32", CT, "1", CT)
    p.vop("v_lshlrev_b32", CT + 1, "1", CT + 1)
    p.vop("v_sub_u32", CT, CT, CT + 1)
    for r in range(2):
        p.add(Ins(f"v_cmp_eq_u32 vcc, {r}, v{CT}", "valu", [CT], []))
        p.vop("v_mov_b32", SEL + r, "0")
        p.vop("v_mov_b32", SEL + 4 + r, "0")
        p.add(Ins(f"v_cndmask_b32 v{SEL+2+r}, 0, v{CT+2}, vcc", "valu", [CT + 2], [SEL + 2 + r]))
    def job_loads(p, sbase, offs, buf):
        for g, off in enumerate(offs):
            p.s(f"s_add_u32 s{S_T0}, s{sbase}, {off}")
            p.load4(buf + 4 * g, V_LIN, SRD_WS, f"s{S_T0}", 0, "job", "sc1")
    def job_reduce(p, sout, off, bufs, a, init):
        for g, bf in enumerate(bufs):
            for e in range(2): p.mfma(a + 4 * e, SEL + 2 - 2 * e, bf, None if (init and g == 0) else a + 4 * e)
        return lambda: ([p.cvtpk(a + r, a + 2 * r, a + 2 * r + 1) for r in range(4)],
                        p.store(a, 4, V_OA, SRD_OUT, f"s{sout}", off, tag="out", flags=E("OFL", "")))
    def flag(p, off, tag):
        p.wait_vm(tag)
        p.s("s_mov_b64 exec, 1")
        p.store(PT2, 2, V_LIN, SRD_WS, f"s{S_FO}", off, tag="flag", flags="sc1")
        p.s("s_mov_b64 exec, -1")
    FPOS = int(E("FPOS", "180")); WSP = float(E("WSP", "6")); PLAT = int(E("PLAT", "70")); CPOS = int(E("CPOS", "206")); WST = int(E("WST", "4"))
    jo = lambda mp: [(4 * mp + (g >> 1)) * 40960 + (g & 1) * 1024 for g in range(7)]
    def one_pass(par):
        q = Prog()
        q.label(f"{name}_pass{par}")
        if PROF == 4: stamp(q, 32, S_PC)
        q.wait_vm(("WT", par, 15))
        sc = Sched(q, budget=int(E("PBUD", "8")), late_extra=8)
        for qn in ("wl", "st", "jl"): sc.group[qn] = "vm"
        sc.pace["vm"] = int(E("PPACE", "4"))
        pool = Pool(sc, POOL, 16)
        acc = lambda i: OWN if i == 8 else ACC + 8 * (i % 4)
        for i in range(9):
            a = acc(i)
            for kq in range(16):
                cons = [(a + 4 * e, P_R[par][2 * kq + e], a + 4 * e if kq else None, ("P", i, kq, e)) for e in range(2)]
                pool.frag(0, lambda r: [R128(r, AO[ooff(i, kq) // 49152], ooff(i, kq) % 49152)], cons, as_b=True)
        mt = lambda i: sc.m[max(0, min(i, len(sc.m) - 1))][4]
        for f in range(NL, 144 + NL):
            (_, reads, cons, war) = pool.frags[f % 144]
            if f >= 144: war = pool.last[f % 16]
            if "R" not in ABL: sc.fill("rd", reads[0], 4, ds=True, after=war, before=mt(2 * (f - NL) + 1), early=2)
        for i in (16, 22, 28): sc.fill("ww", lambda p, i=i: p.wait_vm(("WT", par, min(31, i + 5))), 4, before=mt(i), early=0)
        def su(p):
            p.s(f"s_add_u32 s{S_WT}, s{S_WT}, 2048")
            p.s(f"s_cmp_eq_u32 s{S_PC}, 4")
            p.s(f"s_cselect_b32 s{S_WT}, {OOB:#x}, s{S_WT}")
        fill_dma(sc, [(su, 0)], None, mt(WST + 2), queue="wl", lead=6)
        for i in range(32):
            fill_dma(sc, [(wload(1 - par, i), 0)], mt(WST + int(WSP * i)), mt(WST + 12 + int(WSP * i)), queue="wl", lead=10)
        sc.fill("jl", lambda p: poll_issue(p, V_FA, f"s{S_PO}", 0, PT), 8, before=mt(CPOS - PLAT), early=4, solo=SOLO)
        for r in range(23, -1, -1): sc.fill("jr", lambda p, r=r: p.vop("v_mov_b32", OWN + 8 + r, OWN + r), 4, after=mt(40), before=mt(CPOS - 4), lead=4 * r)
        def cut(p):
            p.wait_vm("poll")
            p.s(f"s_cmp_lt_u32 s{S_PC}, 2")
            p.s(f"s_cbranch_scc1 {name}_nojob{par}")
            p.label("@CUT")
        sc.fill("jr", cut, 8, before=mt(CPOS), early=0)
        sc.fill("jr", lambda p: p.s(f"s_add_u32 s{S_PO}, s{S_PO}, 64"), 4)
        for i in range(8):
            a = acc(i)
            dl = mt(32 * i + 32 + 24)
            sc.fill("va", lambda p, a=a: p.cvtpk(a, a, a + 1), 4, after=dict(tag=("P", i, 15, 1), delay=4), before=dl, lead=10)
            sc.fill("va", lambda p, a=a: p.cvtpk(a + 1, a + 2, a + 3), 4)
            sc.fill("va", lambda p, a=a: p.cvtpk(a + 2, a + 4, a + 5), 4)
            sc.fill("va", lambda p, a=a: p.cvtpk(a + 3, a + 6, a + 7), 4, tag=("CV", i), before=dl, lead=10)
            def st(p, a=a, i=i):
                if "O" not in ABL: p.store(a, 4, V_SA, SRD_WS, f"s{S_ST+i}", 0, tag=("ps", i), flags=E("SFL", "sc1"))
            sc.fill("st", st, 8, after=("CV", i), before=dl, lead=20, tag=("ST", i), solo=SOLO)
        sc.fill("va", lambda p: p.vop("v_add_u32", V_SA, f"{4 * 40960}", V_SA), 4, after=("ST", 7))
        sc.fill("fl", lambda p: flag(p, 64, ("ps", 0)), 16, before=mt(FPOS), early=0)
        sc.fill("fl", lambda p: p.s(f"s_add_u32 s{S_FO}, s{S_FO}, 64"), 4)
        sc.fill("fl", lambda p: p.s(f"s_add_u32 s{S_PC}, s{S_PC}, 1"), 4, after=mt(270))
        sc.run()
        if par == 0:
            q.s(f"s_cmp_eq_u32 s{S_PC}, 5")
            q.s(f"s_cbranch_scc1 {name}_ptail")
        else: q.s(f"s_branch {name}_pass0")
        k = next(i for i, x in enumerate(q.ins) if x.text.startswith("@CUT"))
        q2 = Prog(); q2.label(f"{name}_nojob{par}"); q2.ins += q.ins[k + 1:]; q.ins = q.ins[:k]
        blk = Prog()
        poll_check(blk, f"{name}_pp{par}", V_FA, f"s{S_PO}", 0, PT)
        a = OWN + 24
        for g in range(7):
            for e in range(2): blk.mfma(a + 4 * e, SEL + 2 - 2 * e, JB[0] + 4 * g, a + 4 * e)
            job_loads(blk, S_J, [jo(0)[g]], JB[0] + 4 * g)
        blk.s(f"s_add_u32 s{S_J}, s{S_J}, {4 * 40960}")
        blk.s(f"s_cmp_eq_u32 s{S_PC}, 2")
        blk.s(f"s_cselect_b32 s{S_T0}, {OOB:#x}, s{S_JO}")
        blk.s(f"s_add_u32 s{S_JO}, s{S_JO}, 64")
        blk.wait_lgkm0()
        for r in range(4): blk.cvtpk(a + r, a + 2 * r, a + 2 * r + 1)
        blk.store(a, 4, V_OA, SRD_OUT, f"s{S_T0}", 0, tag="out", flags=E("OFL", ""))
        return q, blk, q2
    p.wait_lgkm0()
    pre = p
    pe, po = one_pass(0), one_pass(1)
    p = Prog()
    p.label(f"{name}_ptail")
    stamp(p, 17)
    poll_issue(p, V_FA, f"s{S_PO}", 0, PT)
    f2 = job_reduce(p, S_JO, 0, [JB[0] + 4 * g for g in range(7)], OWN + 16, False)
    flag(p, 64, ("ps", 7))
    poll_check(p, f"{name}_pp3", V_FA, f"s{S_PO}", 0, PT, 0)
    job_loads(p, S_J, jo(0), JB[0])
    job_loads(p, S_J8, [(g >> 2) * PARTH + (g & 3) * 40960 for g in range(8)], JB[1])
    poll_issue(p, V_FA, f"s{S_PO}", 64, PT)
    f2()
    stamp(p, 18)
    stamp(p, 19)
    poll_check(p, f"{name}_pp4", V_FA, f"s{S_PO}", 64, PT, 0)
    stamp(p, 20)
    job_loads(p, S_J, jo(1), POOL[8])
    f3 = job_reduce(p, S_JO, 64, [JB[0] + 4 * g for g in range(7)], OWN + 8, False)
    f8 = job_reduce(p, S_JO8, 0, [JB[1] + 4 * g for g in range(8)], A8, True)
    f3(); f8()
    job_reduce(p, S_JO, 128, POOL[8:15], OWN, False)()
    if PROF:
        p.wait_all()
        stamp(p, 21)
        p.s(f"s_lshl_b32 s{S_T0}, s2, 2")
        p.s(f"s_add_u32 s{S_T0}, s{S_T0}, s{S_W}")
        p.s(f"s_lshl_b32 s{S_T0}, s{S_T0}, 8")
        p.s(f"s_add_u32 s{S_T0}, s{S_T0}, {PROFOFF}")
        p.vop("v_lshrrev_b32", PT, "2", V_LIN)
        p.store(0, 1, PT, SRD_WS, f"s{S_T0}", 0)
        p.s(f"s_add_u32 s{S_T0}, s{S_T0}, 0x40000")
        p.store(255, 1, PT, SRD_WS, f"s{S_T0}", 0)
    p.label(f"{name}_end")
    p.raw("s_endpgm")
    return [pre, *pe, *po, p], [pre, pe[0], pe[2], po[0], po[2], *pe, *po, *pe, p]

def gen(name):
    pro = prologue(name)
    Q = qmod(name)
    AE = aentry(name)
    A = [amod(name, qh) for qh in range(2)]
    F, FB = afin(name)
    P, PS = pmod(name)
    SL, SLS = slow(name)
    segs = [pro, Q, AE, A[0], A[1], F, FB] + P + SL
    sims = [[(x, 1) for x in [pro, Q, AE, A[qh], F, FB, AE, A[qh], F] + PS] for qh in range(2)]
    sims.append([(x, 1) for x in [F] + SLS + PS])
    lines, stats = finalize([(x, 1) for x in segs], sims=sims)
    if int(E("ROLL", "1")):
        lines = roll(lines, "; ---- a step", 4, S_LOOP, f"{name}_aloop")
        lines = roll(lines, "; ---- q step", 4, S_LOOP, f"{name}_qloop")
    lines += [f".if {name}_end-{name}_nononce < {int(E('CPN0', '6')) * 8192}", '.error "code prefetch range"', ".endif"]
    return [f".globl {name}", ".p2align 8", f".type {name},@function", f"{name}:"] + lines, stats
```

```python
from asmlib import *
import math, struct, os
E = os.environ.get
PROF = int(E("PROF", "0"))
ABL = E("ABL", "")
def f2u(f): return struct.unpack("<I", struct.pack("<f", f))[0]
CSCALE = math.log2(math.e) / math.sqrt(128.0)
NWG = 256
LDS_BYTES = 163840
XSL = 18432
XRING = 131072
XALT = 65536 - XSL
WRING = 65536
MISC = 147456
def IMG(kq): return kq * 9216
DROP = 0x30000
OOB = 0x40000000
WOT = 0
PART = 128 * 40960
PARTH = 20 * 40960
PARTB = 2 * PARTH
WFLG = PART + 32 * PARTB
PFLG = WFLG + 8192
WSBYTES = PFLG + 65536
PROFOFF = 0x4000000

SRD_X, SRD_K, SRD_V, SRD_W, SRD_WS, SRD_WO, SRD_OUT, SRD_DBG = 8, 12, 16, 20, 24, 28, 32, 36
S_W = 3
S_T0, S_T1, S_B, S_G, S_P, S_T2 = 40, 41, 42, 43, 44, 45
S_CS, S_NON, S_SPIN, S_PH, S_GRP, S_SO = 46, 48, 50, 51, 52, 53
S_BAD = 54
S_KOFF, S_VOFF, S_KB, S_KVN, S_M0KV, S_WFP = 56, 57, 58, 59, 60, 61
S_WOFF, S_WB, S_XOFF, S_XB = 62, 63, 65, 66
S_M0W, S_M0X8 = 75, 72
S_WT, S_PT, S_PF, S_RD, S_OUTO = 76, 77, 78, 79, 80
S_LO, S_HI = 81, 82
S_TM = 84
S_VB = 88
S_M0KVP, S_KVP, S_M0D, S_U = 89, 91, 94, 95
S_LOOP = 92
S_WT2 = 98
S_XM = 96

V_DK, V_DV, V_DW, V_DX = 1, 5, 9, 13
V_AK, V_AV0, V_AV1, V_AX, V_AX8, V_LIN = 18, 19, 20, 21, 22, 24
V_E0, V_E1, V_E2 = 25, 26, 27
V_S = 28
V_AW = V_S + 40
V_O = 84
V_T = 244
V_NV = 252
V_JUNK = 254
A_Q, A_QN, A_L, A_ONE, A_POOL, A_X = 256, 336, 416, 436, 440, 472
A_QP = 480
NPOOL = 8
def Qf(n, ks, base=A_Q): return base + (n * 4 + ks) * 4
def Oa(n, m): return V_O + (n * 8 + m) * 4
def XS(par, n): return V_S + (par * 4 + n) * 4 if n < 4 else V_S + 48
def YS(n): return V_S + 32 + n * 4 if n < 4 else V_S + 52
def La(n): return A_L + 4 * n
def Xf(st, t): return V_S + (st * 5 + t) * 4
def QA(r, n, m): return (A_QN if r else V_O) + (n * 8 + m) * 4

def stamp(p, idx, dyn=None):
    if not PROF: return
    p.s(f"s_memrealtime s[{S_TM}:{S_TM+1}]")
    p.s(f"s_memtime s[{S_TM+2}:{S_TM+3}]")
    p.wait_lgkm0()
    if dyn is None:
        p.raw(f"v_writelane_b32 v0, s{S_TM}, {idx}")
        p.raw(f"v_writelane_b32 v255, s{S_TM+2}, {idx}")
    else:
        p.s("s_mov_b32 s99, m0")
        p.s(f"s_lshl_b32 m0, s{dyn}, 2")
        p.s(f"s_add_u32 m0, m0, {idx}")
        p.raw(f"v_writelane_b32 v0, s{S_TM}, m0")
        p.raw(f"v_writelane_b32 v255, s{S_TM+2}, m0")
        p.s("s_mov_b32 m0, s99")

KVSEQ = [("K", 0)]
for u in range(15): KVSEQ += [("K", u + 1), ("V", u)]
KVSEQ += [("V", 15)]
KVPOS = {t: i for i, t in enumerate(KVSEQ)}
def kv_ops(pos):
    pre = pos >= 32; pos %= 32
    kind, u = KVSEQ[pos]
    srd, vo, so, sb = (SRD_K, V_DK, S_KOFF, S_KB) if kind == "K" else (SRD_V, V_DV, S_VOFF, S_VB)
    ops = []
    for j in range(4):
        def f(p, j=j):
            if j == 0:
                p.s(f"s_add_u32 m0, s{S_M0KVP + (pos >> 2) if pre else S_M0D}, {(pos % 4) * 16384}")
                p.s(f"s_add_u32 s{S_SO}, s{S_KVP if pre else sb}, s{so}")
            if "D" not in ABL: p.dmao(vo + j, srd, f"s{S_SO}", j * 1024, (kind, u), "nt")
            if j == 1: p.s(f"s_add_u32 s{so}, s{so}, 8192")
            if j == 2: p.s(f"s_and_b32 s{so}, s{so}, 0x1ffff")
        ops.append((f, 12 if j == 0 else 8 if j < 3 else 4))
    return ops
def w_ops(h):
    ops = []
    for j in range(4):
        def f(p, j=j):
            if j == 0:
                p.s(f"s_add_u32 m0, s{S_M0W}, {(h % 4) * 16384}")
                p.s(f"s_add_u32 s{S_SO}, s{S_WB + (h & 1)}, s{S_WOFF}")
            if "W" not in ABL: p.dmao(V_DW + j, SRD_W, f"s{S_SO}", j * 1024, ("W", h))
            if j == 1 and h % 2 == 1: p.s(f"s_add_u32 s{S_WOFF}, s{S_WOFF}, {32 * 8192}")
            if j == 2 and h % 4 == 3:
                p.s(f"s_cmp_ge_u32 s{S_WOFF}, {640 * 8192}")
                p.s(f"s_cselect_b32 s{S_WOFF}, 0, s{S_WOFF}")
        ops.append((f, 12 if j == 0 or (j == 2 and h % 4 == 3) else 8 if j == 1 and h % 2 else 4))
    return ops
def x_ops(i):
    ops = []
    sb = XRING if i else XALT
    for j in range(5):
        def f(p, j=j):
            if j == 0:
                p.s(f"s_add_u32 m0, s{S_M0KV}, {sb}")
                p.s(f"s_add_u32 s{S_SO}, s{S_XB}, s{S_XOFF}")
            if "X" not in ABL: p.dmao(V_DX + j, SRD_X, f"s{S_SO}", (j & 3) * 1024, ("X", i))
            if j == 1: p.s(f"s_add_u32 s{S_XOFF}, s{S_XOFF}, 128")
            if j == 2:
                p.s(f"s_cmp_ge_u32 s{S_XOFF}, 1280")
                p.s(f"s_cselect_b32 s{S_XOFF}, 0, s{S_XOFF}")
            if j == 3:
                p.s(f"s_add_u32 m0, s{S_M0X8}, {sb}")
                p.nop(0)
        ops.append((f, 12 if j in (0, 2, 3) else 8 if j == 1 else 4))
    return ops

def split_ops(ops):
    q = Prog()
    for f, _ in ops: f(q)
    out = []; i = 0; L = [x for x in q.ins if x.kind != "nop"]
    while i < len(L):
        grp = [L[i]]
        if L[i].text.startswith("s_cmp"): grp.append(L[i + 1])
        i += len(grp)
        out.append((lambda p, grp=grp: [p.add(x) for x in grp], "vm" if grp[0].kind in ("vm", "vml", "vms") else "s", 4 * len(grp)))
    return out
def fill_dma(sc, ops, after, before, tag=None, queue="dma", lead=80):
    so = split_ops(ops)
    for k, (fn, kind, cost) in enumerate(so):
        sc.fill(queue, fn, 8 if kind == "vm" else cost, after=after, before=before, lead=lead, solo=(kind == "vm" and SOLO), paced=(kind == "vm"),
                tag=tag if k == len(so) - 1 else None)
SOLO = int(E("SOLO", "1"))
T7 = int(E("T7", "0"))
def sprinkle(progs, ops, lo=0.0, hi=1.0):
    pts = []
    for p, st in progs:
        masked = False
        for i in range(st, len(p.ins)):
            x = p.ins[i]
            if x.text.startswith("s_mov_b64 exec"): masked = not x.text.endswith("-1")
            if x.kind == "label" and not x.text.startswith(";"): break
            if x.kind in ("valu", "perm") and not masked and p.ins[i - 1].kind in ("valu", "perm") and "v_cmp" not in x.text and "v_cmp" not in p.ins[i - 1].text: pts.append((p, i))
    a, b = int(lo * len(pts)), int(hi * len(pts))
    sel = [pts[a + (k * (b - a)) // len(ops)] for k in range(len(ops))]
    for (p, i), (fn, _) in reversed(list(zip(sel, ops))):
        q = Prog(); fn(q)
        p.ins[i:i] = q.ins

CPF = int(E("CPF", "1"))
def code_prefetch(p, name, k, target, nchunk, t):
    if not CPF: return
    p.s(f"s_getpc_b64 s[{S_TM}:{S_TM+1}]")
    p.label(f"{name}_pc{k}")
    p.s(f"s_sub_u32 s{S_TM}, s{S_TM}, {name}_pc{k}-{name}")
    p.s(f"s_subb_u32 s{S_TM+1}, s{S_TM+1}, 0")
    p.s(f"s_add_u32 s{S_TM}, s{S_TM}, {target}-{name}")
    p.s(f"s_addc_u32 s{S_TM+1}, s{S_TM+1}, 0")
    p.s(f"s_lshr_b32 s{S_T0}, s2, 1")
    p.s(f"s_and_b32 s{S_T0}, s{S_T0}, 0x7c")
    p.s(f"s_add_u32 s{S_T0}, s{S_T0}, s{S_W}")
    p.s(f"s_cmp_ge_u32 s{S_T0}, {nchunk}")
    p.s(f"s_cbranch_scc1 {name}_pf{k}")
    p.s(f"s_lshl_b32 s{S_T0}, s{S_T0}, 13")
    p.s(f"s_add_u32 s{S_TM}, s{S_TM}, s{S_T0}")
    p.s(f"s_addc_u32 s{S_TM+1}, s{S_TM+1}, 0")
    p.raw(f"v_lshlrev_b32 v{t}, 3, v{V_LIN}")
    p.raw(f"v_mov_b32 v{t+1}, s{S_TM+1}")
    p.raw(f"v_add_co_u32 v{t}, vcc, s{S_TM}, v{t}")
    p.raw("s_nop 1")
    p.raw(f"v_addc_co_u32 v{t+1}, vcc, 0, v{t+1}, vcc")
    p.raw(f"global_load_dword v{V_JUNK}, v[{t}:{t+1}], off")
    p.label(f"{name}_pf{k}")

def get_nonce(p, name, t):
    p.add(Ins(f"v_readfirstlane_b32 s{S_NON}, v{V_NV}", "rfl", [V_NV], []))
    p.add(Ins(f"v_readfirstlane_b32 s{S_NON+1}, v{V_NV+1}", "rfl", [V_NV + 1], []))
    p.s(f"s_cmp_lt_i32 s{S_NON+1}, 0")
    p.s(f"s_cbranch_scc1 {name}_x")
    p.vop("v_mov_b32", t + 2, "0")
    p.label(f"{name}")
    p.raw(f"buffer_load_dwordx2 v[{t}:{t+1}], v{t+2}, s[{SRD_DBG}:{SRD_DBG+3}], 0 offen sc1")
    p.raw("s_waitcnt vmcnt(0)")
    p.raw(f"v_readfirstlane_b32 s{S_NON}, v{t}")
    p.raw(f"v_readfirstlane_b32 s{S_NON+1}, v{t+1}")
    p.s(f"s_sub_u32 s{S_SPIN}, s{S_SPIN}, 1")
    p.s(f"s_cbranch_scc1 {name}_x")
    p.s(f"s_cmp_lt_i32 s{S_NON+1}, 0")
    p.s(f"s_cbranch_scc0 {name}")
    p.label(f"{name}_x")
    p.nop(1)

def publish(p, soff, off, t):
    p.vop("v_mov_b32", t, f"s{S_NON}")
    p.vop("v_mov_b32", t + 1, f"s{S_NON+1}")
    p.s("s_mov_b64 exec, 1")
    p.store(t, 2, V_LIN, SRD_WS, soff, off, tag="flag", flags="sc1")
    p.s("s_mov_b64 exec, -1")

def poll_issue(p, vaddr, soff, off, t):
    p.add(Ins(f"buffer_load_dwordx2 v[{t}:{t+1}], v{vaddr}, s[{SRD_WS}:{SRD_WS+3}], {soff} offen offset:{off} sc1", "vml", [vaddr], [t, t + 1], tag="poll"))
def poll_check(p, name, vaddr, soff, off, t, slp=2):
    p.label(f"{name}")
    p.add(Ins(f"v_cmp_ne_u32 vcc, s{S_NON}, v{t}", "valu", [t], []))
    p.add(Ins(f"v_cmp_ne_u32 s[{S_TM+2}:{S_TM+3}], s{S_NON+1}, v{t+1}", "valu", [t + 1], []))
    p.s(f"s_or_b64 vcc, vcc, s[{S_TM+2}:{S_TM+3}]")
    p.s(f"s_cbranch_scc0 {name}_ok")
    p.s(f"s_sub_u32 s{S_SPIN}, s{S_SPIN}, 1")
    p.s(f"s_cbranch_scc1 {name}_ok")
    if slp: p.s(f"s_sleep {slp}")
    p.raw(f"buffer_load_dwordx2 v[{t}:{t+1}], v{vaddr}, s[{SRD_WS}:{SRD_WS+3}], {soff} offen offset:{off} sc1")
    p.raw("s_waitcnt vmcnt(0)")
    p.s(f"s_branch {name}")
    p.label(f"{name}_ok")

def prologue(name):
    p = Prog()
    p.s(f"s_cmp_ge_u32 s2, {NWG}")
    p.s(f"s_cbranch_scc1 {name}_end")
    p.s("s_load_dwordx8 s[84:91], s[0:1], 0")
    p.s("s_load_dwordx8 s[92:99], s[0:1], 32")
    T = V_O
    W, L, a, b, c, d, U, P, VV, R8, PI, M, G, cv = range(T, T + 14)
    p.vop("v_lshrrev_b32", W, "6", 0)
    p.vop("v_and_b32", L, "63", 0)
    p.add(Ins(f"v_readfirstlane_b32 s{S_W}, v{W}", "rfl", [W], []))
    p.vop("v_and_b32", U, "1", W)
    p.vop("v_lshrrev_b32", P, "1", W)
    p.vop("v_lshrrev_b32", VV, "5", L)
    p.vop("v_bfe_u32", R8, L, "2", "3")
    p.vop("v_and_b32", PI, "3", L)
    p.s(f"s_movk_i32 s{S_T0}, 1280")
    p.vop("v_mul_lo_u32", a, R8, f"s{S_T0}")
    p.vop("v_lshl_add_u32", a, VV, "6", a)
    p.vop("v_xor_b32", c, "3", PI)
    p.vop("v_lshl_add_u32", V_DX, PI, "4", a)
    p.vop("v_lshl_add_u32", b, c, "4", a)
    p.vop("v_add_u32", V_DX + 1, f"{9216}", b)
    p.vop("v_add_u32", V_DX + 2, f"{2 * 9216}", V_DX)
    p.vop("v_add_u32", V_DX + 3, f"{3 * 9216}", b)
    p.vop("v_lshrrev_b32", d, "2", R8)
    p.vop("v_lshlrev_b32", cv, "1", d)
    p.vop("v_xor_b32", cv, cv, PI)
    p.vop("v_and_b32", b, "3", R8)
    p.vop("v_lshl_add_u32", b, d, "3", b)
    p.vop("v_lshlrev_b32", d, "7", U)
    p.vop("v_lshl_add_u32", d, VV, "6", d)
    p.vop("v_lshl_add_u32", b, b, "13", d)
    p.vop("v_lshl_add_u32", V_DW, cv, "4", b)
    for j in range(1, 4): p.vop("v_add_u32", V_DW + j, f"{(16 * (j & 1) + 4 * (j >> 1)) * 8192 - 1024 * j}", V_DW)
    p.vop("v_mul_u32_u24", b, "3", P)
    p.vop("v_xor_b32", b, b, PI)
    p.vop("v_lshl_add_u32", b, b, "4", a)
    p.vop("v_lshlrev_b32", a, "2", W)
    p.vop("v_sub_u32", a, P, a)
    p.vop("v_add_u32", a, "16", a)
    p.s(f"s_movk_i32 s{S_T1}, {8 * 1280}")
    p.vop("v_mul_lo_u32", a, a, f"s{S_T1}")
    p.vop("v_add_u32", a, a, b)
    p.vop("v_lshl_add_u32", V_DX + 4, U, "30", a)
    MAP = int(E("MAP", "0"))
    p.s(f"s_bfe_u32 s{S_T0}, s2, {(MAP << 16) | 3:#x}")
    p.s(f"s_lshr_b32 s{S_T2}, s2, {3 + MAP}")
    p.s(f"s_and_b32 s{S_G}, s2, {(1 << (3 - MAP)) - 1}")
    p.s(f"s_lshl_b32 s{S_G}, s{S_G}, {MAP}")
    p.s(f"s_or_b32 s{S_G}, s{S_G}, s{S_T0}")
    p.s(f"s_bfe_u32 s{S_B}, s2, {(MAP << 16) | (3 - MAP):#x}")
    p.s(f"s_lshl_b32 s{S_B}, s{S_B}, {5 - MAP}")
    p.s(f"s_or_b32 s{S_B}, s{S_B}, s{S_T2}")
    p.s(f"s_lshl_b32 s{S_T0}, s{S_T0}, {5 - MAP}")
    p.s(f"s_lshl_b32 s{S_T2}, s{S_T2}, {MAP}")
    p.s(f"s_add_u32 s{S_T2}, s{S_T2}, s{S_T0}")
    p.s(f"s_and_b32 s{S_T2}, s{S_T2}, 31")
    p.s(f"s_lshr_b32 s{S_P}, s{S_W}, 1")
    p.s(f"s_lshl_b32 s{S_M0KV}, s{S_W}, 12")
    p.s(f"s_add_u32 s{S_M0W}, s{S_M0KV}, {WRING}")
    p.s(f"s_lshl_b32 s{S_M0X8}, s{S_P}, 10")
    p.s(f"s_add_u32 s{S_M0X8}, s{S_M0X8}, 16384")
    p.s(f"s_bitcmp1_b32 s{S_W}, 0")
    p.s(f"s_cselect_b32 s{S_M0X8}, 0x1d000, s{S_M0X8}")
    p.s(f"s_lshl_b32 s{S_T0}, s{S_G}, 2")
    p.s(f"s_add_u32 s{S_T0}, s{S_T0}, s{S_P}")
    p.s(f"s_lshl_b32 s{S_WB}, s{S_T0}, 8")
    p.s(f"s_add_u32 s{S_WB+1}, s{S_WB}, 512")
    p.s(f"s_lshl_b32 s{S_T1}, s{S_B}, 5")
    p.s(f"s_add_u32 s{S_T0}, s{S_T0}, s{S_T1}")
    p.s(f"s_lshl_b32 s{S_KVN}, s{S_T0}, 17")
    p.s(f"s_mul_i32 s{S_T0}, s{S_T2}, 5")
    p.s(f"s_lshr_b32 s{S_T0}, s{S_T0}, 4")
    if not int(E("ROT", "1")): p.s(f"s_mov_b32 s{S_T0}, 0")
    p.s(f"s_lshl_b32 s{S_XOFF}, s{S_T0}, 7")
    p.s(f"s_lshl_b32 s{S_WOFF}, s{S_T0}, 19")
    p.s(f"s_mul_i32 s{S_XB}, s{S_B}, {144 * 1280}")
    p.s(f"s_mul_i32 s{S_T0}, s{S_W}, {32 * 1280}")
    p.s(f"s_add_u32 s{S_XB}, s{S_XB}, s{S_T0}")
    def srd(r, src, size):
        p.s(f"s_mov_b32 s{r+2}, {size:#x}")
        p.s(f"s_mov_b32 s{r+3}, 0x20000")
    def srd2(r, src):
        p.s(f"s_mov_b32 s{r}, s{src}")
        p.s(f"s_and_b32 s{r+1}, s{src+1}, 0xffff")
    SR = ((SRD_X, 84, 32 * 144 * 640 * 2), (SRD_W, 90, 640 * 4096 * 2), (SRD_K, 86, 1 << 27), (SRD_V, 88, 1 << 27),
          (SRD_WO, 92, 4096 * 640 * 2), (SRD_OUT, 94, 32 * 144 * 640 * 2), (SRD_DBG, 96, 256), (SRD_WS, 98, (1 << 28) if PROF else WSBYTES))
    for x in SR: srd(*x)
    p.s("s_waitcnt lgkmcnt(0)")
    for x in SR[:2]: srd2(*x[:2])
    for ops in (x_ops(0), w_ops(0), w_ops(1)):
        for f, _ in ops: f(p)
    for x in SR[2:]: srd2(*x[:2])
    stamp(p, 0)
    p.vop("v_lshlrev_b32", V_LIN, "4", L)
    code_prefetch(p, name, 0, f"{name}_nononce", int(E("CPN0", "6")), V_T)
    p.vop("v_lshl_add_u32", b, R8, "8", d)
    p.vop("v_lshl_add_u32", V_DK, PI, "4", b)
    p.vop("v_lshl_add_u32", a, c, "4", b)
    p.vop("v_add_u32", V_DK + 1, "1024", a)
    p.vop("v_add_u32", V_DK + 2, "2048", V_DK)
    p.vop("v_add_u32", V_DK + 3, "3072", a)
    p.vop("v_lshl_add_u32", V_DV, cv, "4", b)
    for j in range(1, 4): p.vop("v_add_u32", V_DV + j, f"{1024 * j}", V_DV)
    p.s(f"s_lshl_b32 s{S_T0}, s2, 1")
    p.s(f"s_add_u32 s{S_T0}, s{S_T0}, s{S_P}")
    p.s(f"s_mul_i32 s{S_T0}, s{S_T0}, {int(E('KROT', '5'))}")
    p.s(f"s_lshr_b32 s{S_T1}, s2, 3")
    p.s(f"s_add_u32 s{S_T0}, s{S_T0}, s{S_T1}")
    p.s(f"s_and_b32 s{S_T0}, s{S_T0}, {15 if int(E('KROT', '5')) else 0}")
    p.s(f"s_lshl_b32 s{S_KOFF}, s{S_T0}, 13")
    p.s(f"s_mov_b32 s{S_VOFF}, s{S_KOFF}")
    p.s(f"s_mov_b32 s{S_M0KVP}, s{S_M0KV}")
    p.s(f"s_mov_b32 s{S_M0KVP+1}, s{S_M0W}")
    p.s(f"s_mov_b32 s{S_KVP}, s{S_KVN}")
    p.s(f"s_and_b32 s{S_U}, s{S_W}, 1")
    p.s(f"s_lshl_b32 s{S_T0}, s{S_B}, 2")
    p.s(f"s_lshr_b32 s{S_T1}, s{S_G}, 1")
    p.s(f"s_add_u32 s{S_T0}, s{S_T0}, s{S_T1}")
    p.s(f"s_and_b32 s{S_T1}, s{S_G}, 1")
    p.s(f"s_lshl_b32 s{S_T1}, s{S_T1}, 2")
    p.s(f"s_add_u32 s{S_T1}, s{S_T1}, s{S_W}")
    p.s(f"s_lshr_b32 s{S_WFP}, s{S_T1}, 1")
    p.s(f"s_lshl_b32 s{S_WFP}, s{S_WFP}, 7")
    p.s(f"s_add_u32 s{S_WFP}, s{S_WFP}, s{S_T0}")
    p.s(f"s_lshl_b32 s{S_WFP}, s{S_WFP}, 1")
    p.s(f"s_add_u32 s{S_WFP}, s{S_WFP}, s{S_U}")
    p.s(f"s_lshl_b32 s{S_WFP}, s{S_WFP}, 3")
    p.s(f"s_add_u32 s{S_WFP}, s{S_WFP}, {WFLG}")
    p.s(f"s_mul_i32 s{S_T1}, s{S_T1}, 5")
    p.s(f"s_mul_i32 s{S_T0}, s{S_T0}, 40960")
    p.s(f"s_lshl_b32 s{S_PT}, s{S_T1}, 10")
    p.s(f"s_add_u32 s{S_PT}, s{S_PT}, s{S_T0}")
    p.s(f"s_lshr_b32 s{S_T1}, s{S_T1}, 1")
    p.s(f"s_lshl_b32 s{S_T1}, s{S_T1}, 6")
    p.s(f"s_add_u32 s{S_WT}, s{S_T1}, s{S_T0}")
    p.s(f"s_mul_i32 s{S_RD}, s{S_W}, 6144")
    if int(E("TOUCH", "1")):
        p.add(Ins(f"buffer_load_dword v{V_T+4}, off, s[{SRD_K}:{SRD_K+3}], s{S_KVN} nt", "vml", [], [V_T + 4], tag="touch"))
        p.add(Ins(f"buffer_load_dword v{V_T+5}, off, s[{SRD_V}:{SRD_V+3}], s{S_KVN} nt", "vml", [], [V_T + 5], tag="touch"))
        p.add(Ins(f"buffer_load_dword v{V_T+7}, off, s[{SRD_WS}:{SRD_WS+3}], s{S_PT} sc1", "vml", [], [V_T + 7], tag="touch"))
    p.vop("v_lshrrev_b32", a, "2", L)
    p.s(f"s_movk_i32 s{S_T0}, 1280")
    p.vop("v_mul_lo_u32", a, a, f"s{S_T0}")
    p.vop("v_lshl_add_u32", V_E2, PI, "4", a)
    for i in range(6):
        p.s(f"s_add_u32 m0, s{S_RD}, {i * 1024}")
        p.s(f"s_add_u32 s{S_SO}, s{S_WT}, {(i & 1) * 16 * 1280 + (i >> 1) * 64}")
        p.dma(V_E2, SRD_WO, f"s{S_SO}", "WOP", E("WOFL", "nt"))
    p.s(f"s_or_b32 s{S_T0}, s2, s{S_W}")
    p.s(f"s_cmp_lg_u32 s{S_T0}, 0")
    p.s(f"s_cbranch_scc1 {name}_nononce")
    p.s(f"s_memrealtime s[{S_NON}:{S_NON+1}]")
    p.s("s_waitcnt lgkmcnt(0)")
    p.s(f"s_or_b32 s{S_NON+1}, s{S_NON+1}, 0x80000000")
    p.raw(f"v_mov_b32 v{V_T}, s{S_NON}")
    p.raw(f"v_mov_b32 v{V_T+1}, s{S_NON+1}")
    p.s("s_mov_b64 exec, 1")
    p.raw(f"buffer_store_dwordx2 v[{V_T}:{V_T+1}], v{V_LIN}, s[{SRD_DBG}:{SRD_DBG+3}], 0 offen sc1")
    p.s("s_mov_b64 exec, -1")
    p.label(f"{name}_nononce")
    p.s(f"s_mov_b32 s{S_SPIN}, 0x40000")
    p.s(f"s_mov_b32 s{S_PH}, 0")
    if PROF in (2, 3): p.s("s_mov_b32 s93, 32")
    p.s(f"s_mov_b64 s[{S_BAD}:{S_BAD+1}], 0")
    p.s(f"s_mov_b32 s{S_CS}, {f2u(CSCALE):#x}")
    p.s(f"s_mov_b32 s{S_CS+1}, s{S_CS}")
    p.s(f"s_mov_b32 s{S_LO}, {f2u(2.0 ** -16):#x}")
    p.s(f"s_mov_b32 s{S_HI}, {f2u(2.0 ** 24):#x}")
    p.vop("v_and_b32", M, "15", L)
    p.vop("v_lshrrev_b32", G, "4", L)
    p.vop("v_lshrrev_b32", a, "3", M)
    p.vop("v_mul_u32_u24", c, "3", a)
    p.vop("v_xor_b32", c, c, G)
    p.vop("v_and_b32", b, "7", M)
    p.vop("v_lshlrev_b32", b, "6", b)
    p.vop("v_lshl_add_u32", b, c, "4", b)
    p.vop("v_lshl_add_u32", b, a, "10", b)
    p.vop("v_add_u32", V_AX8, f"{XRING}", b)
    p.vop("v_lshl_add_u32", V_AX, U, "13", V_AX8)
    p.vop("v_add_u32", V_AW + 5, f"{XALT}", b)
    p.vop("v_lshl_add_u32", V_AW + 4, U, "13", V_AW + 5)
    p.vop("v_add_u32", c, f"s{S_RD}", V_LIN)
    p.vop("v_lshl_add_u32", V_E0, U, "3", c)
    p.vop("v_mul_u32_u24", a, "2040", U)
    p.v(f"v_add3_u32 v{V_E1}, v{c}, v{a}, 8", [V_E1], [c, a])
    p.vop("v_lshl_add_u32", V_AK, P, "13", b)
    p.vop("v_lshrrev_b32", a, "1", G)
    p.vop("v_lshlrev_b32", b, "10", a)
    p.vop("v_lshl_add_u32", b, R8, "6", b)
    p.vop("v_and_b32", c, "1", L)
    p.vop("v_lshl_add_u32", b, c, "3", b)
    p.vop("v_bfe_u32", c, L, "1", "1")
    p.vop("v_lshl_add_u32", b, c, "4", b)
    p.vop("v_and_b32", c, "1", G)
    p.vop("v_lshl_add_u32", b, c, "5", b)
    p.vop("v_lshl_add_u32", V_AV0, P, "13", b)
    p.vop("v_xor_b32", V_AV1, "32", V_AV0)
    p.vop("v_lshl_add_u32", a, U, "12", V_AV0)
    p.vop("v_xor_b32", b, "32", a)
    p.vop("v_xor_b32", c, "4096", a)
    p.vop("v_xor_b32", d, "4096", b)
    for i, r in enumerate((a, b, c, d)): p.vop("v_add_u32", V_AW + i, f"{WRING}", r)
    for ops in (w_ops(2), x_ops(1), w_ops(3)):
        for f, _ in ops: f(p)
    stamp(p, 23)
    return p

def R128(d, a, off): return lambda p: p.ds_read128(d, a, off)
def TR(d, a, off): return lambda p: p.ds_tr(d, a, off)

class Pool:
    def __init__(self, sc, base, n):
        self.sc = sc; self.regs = base if isinstance(base, list) else [base + 4 * k for k in range(n)]; n = len(self.regs); self.n = n; self.last = [None] * n; self.i = 0; self.frags = []
    def frag(self, tile, mk_reads, consumers, as_b=False):
        k = self.i % self.n; self.i += 1
        r = self.regs[k]
        war = self.last[k]
        for (d, o, c, tag) in consumers:
            if as_b: self.sc.mfma(d, o, r, c, tag)
            else: self.sc.mfma(d, r, o, c, tag)
        self.last[k] = consumers[-1][3]
        self.frags.append((tile, mk_reads(r), consumers[0][3], war))

LEAD = int(E("LEAD", "9"))
LEADB = int(E("LEADB", "8"))
BGAP = int(E("BGAP", "4"))

def sstamp(p):
    p.s(f"s_memrealtime s[{S_TM}:{S_TM+1}]")
    p.s(f"s_memtime s[{S_TM+2}:{S_TM+3}]")
    p.wait_lgkm0()
    p.s("s_mov_b32 s99, m0")
    p.s("s_mov_b32 m0, s93")
    p.s("s_add_u32 s93, s93, 1")
    p.raw(f"v_writelane_b32 v0, s{S_TM}, m0")
    p.raw(f"v_writelane_b32 v255, s{S_TM+2}, m0")
    p.s("s_mov_b32 m0, s99")

def qmod(name):
    p = Prog()
    KVS = [int(x) for x in E("KVS", "28,30,32,34,37").split(",")]
    sc = Sched(p, budget=int(E("QBUD", "8")), late_extra=8)
    sc.group["dma"] = "vm"; sc.pace["vm"] = int(E("QPACE", "4"))
    sc.maxds = int(E("QMAXDS", "1"))
    pool = Pool(sc, A_QP, NPOOL)
    for h in range(40):
        r = h & 1; st = (h >> 1) & 1
        for k in range(8):
            off = (h % 4) * 16384 + ((k >> 1) & 1) * 512
            ad = V_AW + 2 * (k >> 2) + (k & 1)
            cons = [(QA(r, n, k), Xf(st, n), QA(r, n, k) if h > 1 else None, ("Q", h, k, n)) for n in range(5 if k < 4 else 4)]
            pool.frag(h, lambda rg: [TR(rg, ad, off), TR(rg + 2, ad, off + 2048)], cons)
    mt = lambda i: sc.m[max(0, min(i, len(sc.m) - 1))][4]
    def xreads(i, kh):
        return [R128(Xf(kh, n), (V_AX if i else V_AW + 4) + (n >> 2), (n if n < 4 else 8) * 2048 + kh * 512) for n in range(5)]
    WOS = int(E("WOS", "2"))
    def wst():
        def f(p):
            for i in range(5):
                if i == 4: p.s(f"s_add_u32 s{S_PT}, s{S_PT}, 4096")
                p.store(A_Q + 4 * i, 4, V_LIN, SRD_WS, f"s{S_PT}", (i % 4) * 1024, tag="wst", flags="sc1")
        return [(f, 20)]
    for fi, (h, reads, cons, war) in enumerate(pool.frags):
        c0 = 36 * h
        tau = c0 - LEADB
        taun = c0 + 36 - LEADB
        if fi % 8 == 0:
            def bar(p, h=h):
                p.comment(f"---- q step {h}")
                tags = [("W", h)]
                if h == 0: tags.append(("X", 0))
                if h % 4 == 3 and h < 39: tags.append(("X", (h + 1) // 4))
                p.wait_vm(tags, lgkm0=True)
                if "b" not in ABL or h < 4: p.barrier()
                if PROF == 2 and h % 2 == 0: sstamp(p)
            ops = []
            if h % 4 == 1 and 5 <= h < 37: ops += x_ops(h // 4 + 1)
            if 1 <= h < 37: ops += w_ops(h + 3)
            if "d" in ABL: ops = []
            if h == WOS:
                sc.fill("rw", lambda p: p.wait_vm("WOP"), 4, after=dict(tag=("BAR", h), delay=4), before=mt(taun - BGAP), lead=24)
                for i in range(10):
                    sc.fill("rw", TR(A_Q + 2 * i, V_E0 + ((i >> 1) & 1), (i >> 2) * 2048 + (i & 1) * 1024), 4, ds=True, before=mt(taun - BGAP), lead=2 * (10 - i))
            if h == 36: ops += wst()
            for k, x in enumerate(KVS):
                if x == h: ops += kv_ops(32 + k)
            sc.fill("rd", bar, 8, before=mt(tau), early=0 if h else None, tag=("BAR", h))
            QD = int(E("QD", "14")) if len(ops) <= 4 else int(E("QD2", "0"))
            fill_dma(sc, ops, dict(tag=("BAR", h), delay=QD), mt(taun - 1))
            if h == 0:
                for k, fn in enumerate(xreads(0, 0)): sc.fill("rd", fn, 4, ds=True, before=mt(0))
            xr = []; aft = [("BAR", h)]
            if h % 4 == 3 and h < 39: xr = xreads((h + 1) // 4, 0)
            if h % 4 == 0:
                xr = xreads(h // 4, 1)
                if h: aft.append(("Q", h - 1, 7, 3))
            for j, fn in enumerate(xr):
                sc.fill("rx", fn, 4, ds=True, after=aft, before=mt(taun - BGAP), lead=3 * (len(xr) - j))
        for k, fn in enumerate(reads):
            if "r" in ABL and h >= 2: continue
            bf = cons
            if sc.idx[cons] > taun - BGAP: bf = mt(taun - BGAP)
            sc.fill("rd", fn, 4, ds=True, after=war if k == 0 else None, before=bf, lead=LEAD if bf is cons else 0, early=int(E("QEARLY", "99")))
    def lastbar(p):
        p.comment("---- q step 40")
        p.wait_lgkm0(); p.barrier()
        p.add(Ins(f"buffer_load_dwordx2 v[{V_NV}:{V_NV+1}], off, s[{SRD_DBG}:{SRD_DBG+3}], 0 sc1", "vml", [], [V_NV, V_NV + 1], tag="non"))
    sc.fill("rd", lastbar, 8, before=mt(36 * 40 - LEADB), early=0)
    sc.run()
    stamp(p, 1)
    fstart = len(p.ins)
    TB = V_O + 144
    cnt = [0]
    def fin(r, n, t, i):
        s0 = QA(r, n, 2 * t)
        if r:
            tb = TB + 8 * (cnt[0] & 1); cnt[0] += 1
            for x in range(8): p.ar(tb + x, s0 + x)
            s0 = tb
        dst = V_S + 4 * i
        for x in range(0, 8, 2): p.pkmul(s0 + x, s0 + x, f"s[{S_CS}:{S_CS+1}]")
        for x in range(4): p.cvtpk(dst + x, s0 + 2 * x, s0 + 2 * x + 1)
        return dst
    def swp(dst):
        p.swap32(dst, dst + 2); p.swap32(dst + 1, dst + 3)
        p.swap16(dst, dst + 2); p.swap16(dst + 1, dst + 3)
    p.v(f"v_lshl_add_u32 v{V_E0}, s{S_W}, 12, v{V_LIN}", [V_E0], [V_LIN])
    p.vop("v_add_u32", V_E0, f"{XRING}", V_E0)
    p.vop("v_xor_b32", V_E1, "4096", V_E0)
    d8 = [fin(r, 4, t, 2 * r + t) for r in range(2) for t in range(2)]
    for d in d8: swp(d)
    for t, d in enumerate(d8): p.ds_write(V_E0, d, 4, t * 1024)
    for r in range(2):
        base = A_QN if r else A_Q
        for n in range(4):
            ds = [fin(r, n, t, 4 + (n & 1) * 4 + t) for t in range(4)]
            if r == 0 and n == 0:
                p.wait_lgkm0(); p.barrier()
                for t in range(2): p.ds_read128(Qf(4, t), V_E0, t * 1024)
                for t in range(2): p.ds_read128(Qf(4, 2 + t), V_E1, t * 1024)
            for d in ds: swp(d)
            for t, d in enumerate(ds):
                for x in range(4): p.aw(Qf(n, t, base) + x, d + x)
    for t in range(2): p.ds_read128(Qf(4, t, A_QN), V_E0, 2048 + t * 1024)
    for t in range(2): p.ds_read128(Qf(4, 2 + t, A_QN), V_E1, 2048 + t * 1024)
    p.vop("v_mov_b32", V_T, "0x3f803f80")
    for r in range(4): p.aw(A_ONE + r, V_T)
    sprinkle([(p, fstart)], sum([kv_ops(32 + k) for k in range(len(KVS), 7 if T7 else 8)], []), 0.0, float(E("QSH", "1.0")))
    get_nonce(p, f"{name}_n1", V_T)
    p.wait_vm("wst")
    publish(p, f"s{S_WFP}", 0, V_T)
    z = p
    z.s(f"s_mul_i32 s{S_WT}, s{S_G}, {16 * 40960}")
    z.s(f"s_mul_i32 s{S_T0}, s{S_W}, 10240")
    z.s(f"s_add_u32 s{S_WT}, s{S_WT}, s{S_T0}")
    z.s(f"s_lshl_b32 s{S_PF}, s{S_W}, 11")
    z.s(f"s_lshl_b32 s{S_T1}, s{S_G}, 8")
    z.s(f"s_add_u32 s{S_PF}, s{S_PF}, s{S_T1}")
    z.s(f"s_add_u32 s{S_PF}, s{S_PF}, {WFLG}")
    z.vop("v_lshrrev_b32", V_AX, "1", V_LIN)
    z.vop("v_and_b32", V_AX, "0xf8", V_AX)
    psetup(z)
    stamp(z, 2)
    return p

def a_mfmas(sc, pool, qh):
    AV = (V_AV0, V_AV1)
    has8 = lambda u: (u & 1) == qh
    for pos, (kind, u) in enumerate(KVSEQ):
        sb = (pos % 4) * 16384
        ns = [0, 1, 2, 3] + ([4] if has8(u) else [])
        if kind == "K":
            for kt in range(2):
                for ks in range(4):
                    off = sb + kt * 2048 + ((ks >> 1) ^ qh) * 4096 + (ks & 1) * 512
                    cons = []
                    for n in ns:
                        d = XS(u & 1, n) if kt == 0 else YS(n)
                        cons.append((d, Qf(n, ks), d if ks else None, ("S", u, kt, ks, n)))
                    pool.frag(pos, lambda r: [R128(r, V_AK, off)], cons)
        else:
            first = lambda n: u == 0 if n < 4 else u == qh
            for n in ns: sc.mfma(La(n), A_ONE, XS(u & 1, n), None if first(n) else La(n), ("L", u, n))
            for m in range(8):
                e, mp = m & 1, m >> 1
                off = sb + (mp >> 1) * 4096 + (mp & 1) * 512
                oa = lambda n: Oa(n, m if n < 4 else m ^ (4 * qh))
                cons = [(oa(n), XS(u & 1, n), None if first(n) else oa(n), ("PV", u, m, n)) for n in ns]
                pool.frag(pos, lambda r: [TR(r, AV[e], off), TR(r + 2, AV[e], off + 2048)], cons)

def a_taus():
    cs = []
    for qh in range(2):
        sc = Sched(Prog()); pool = Pool(sc, A_POOL, NPOOL); a_mfmas(sc, pool, qh)
        c = {}
        for (pos, _, cons, _) in pool.frags: c.setdefault(pos, sc.idx[cons])
        c[32] = len(sc.m) + LEADB - 3
        cs.append(c)
    return [min(cs[0][j], cs[1][j]) - LEADB for j in range(33)]

def aentry(name):
    p = Prog()
    p.label(f"{name}_A")
    p.s(f"s_mov_b32 s{S_KB}, s{S_KVN}")
    p.s(f"s_mov_b32 s{S_VB}, s{S_KVN}")
    p.s(f"s_add_u32 s{S_KVN}, s{S_KVN}, {2 << 17}")
    p.s(f"s_mov_b32 s{S_M0D}, s{S_M0W}")
    p.s(f"s_cmp_eq_u32 s{S_PH}, 0")
    p.s(f"s_cselect_b32 s{S_M0KVP}, s{S_M0KV}, {DROP:#x}")
    p.s(f"s_cselect_b32 s{S_M0KVP+1}, s{S_M0W}, {DROP:#x}")
    p.s(f"s_cselect_b32 s{S_KVP}, s{S_KVN}, {OOB:#x}")
    p.s(f"s_cselect_b64 s[{S_XM}:{S_XM+1}], 0, -1")
    p.s(f"s_cselect_b32 s{S_WT2}, {OOB:#x}, s{S_WT}")
    p.s(f"s_cmp_eq_u32 s{S_U}, 1")
    p.s(f"s_cbranch_scc1 {name}_A1")
    return p

def tile_addr(p, base, dst):
    p.s(f"s_lshl_b32 s{S_T0}, s{S_U}, 2")
    p.s(f"s_sub_u32 s{S_T0}, s{S_T0}, s{S_G}")
    for n in range(4):
        p.s(f"s_add_u32 s{S_T1}, s{S_T0}, {n + 7}")
        p.s(f"s_and_b32 s{S_T1}, s{S_T1}, 7")
        p.v(f"v_lshl_add_u32 v{dst+n}, s{S_T1}, 10, v{base}", [dst + n], [base])

def avm(pos):
    if pos >= 30: return None
    pat = [int(x) for x in E("AVM", "5").split(",")]
    h = [int(x) for x in E("AVMH", "").split(",") if x]
    if pos < len(h): return h[pos]
    return pat[pos % len(pat)] + (2 if pos > 24 else 0)
tsn = lambda k: min(int(TS * k), int(E("TMAX", "20")))
TS = float(E("TS", "4"))
SEAM = sum([kv_ops(k) for k in range(32, 39 if T7 else 40)], [])
WORD = list(range(20, 32)) + list(range(20))
def amod(name, qh):
    p = Prog()
    p.label(f"{name}_A{qh}")
    sc = Sched(p, budget=int(E("ABUD", "8")), late_extra=int(E("ALATE", "8")))
    sc.group["dma"] = "vm"; sc.pace["vm"] = int(E("APACE", "7"))
    pool = Pool(sc, A_POOL, NPOOL)
    a_mfmas(sc, pool, qh)
    tau = a_taus()
    mt = lambda i: sc.m[max(0, min(i, len(sc.m) - 1))][4]
    def add_bar(pos):
        def bar(p, pos=pos):
            p.comment(f"---- a step {pos}")
            if pos < 32: p.wait_vm(KVSEQ[pos], lgkm0=True, cap=avm(pos))
            else: p.wait_lgkm0()
            p.barrier()
            if pos % 4 == 0 and pos:
                for r in (V_AV0, V_AV1, V_AK): p.vop("v_xor_b32", r, "0x10000", r)
            if PROF == 3 and pos % 2 == 0 and pos < 32: sstamp(p)
        sc.fill("rd", bar, 8, after=[("DMA", pos - 1)] if pos >= (1 if T7 else 2) else None, before=mt(tau[pos]), early=0 if pos else None, tag=("BAR", pos))
        if (0 if T7 else 1) <= pos < 32:
            ops = kv_ops(pos + 7) if pos < 25 else SEAM[tsn(pos - 25):tsn(pos - 24)] or [(lambda p: p.s("s_nop 0"), 4)]
            if pos % 4 == 1 and pos < 25: ops = [(lambda p: p.s(f"s_xor_b32 s{S_M0D}, s{S_M0D}, 0x10000"), 4)] + ops
            aft = ("BAR", pos); bf = mt(tau[pos + 1] - 1)
            fill_dma(sc, ops, aft, bf, tag=("DMA", pos))
            if 24 <= pos < 30:
                for k in (20 + 2 * (pos - 24), 21 + 2 * (pos - 24)):
                    for fn, kind, cost in split_ops([(wload(0, k, S_T2, S_WT2), 8)]):
                        sc.fill("dmp", fn, 8 if kind == "vm" else 4, after=dict(tag=aft, delay=4 + 14 * (k & 1)), solo=(kind == "vm"), before=bf, lead=20)
            if pos == 30:
                NWL = int(E("NWL", "12")); WLS = int(E("WLS", "6"))
                last = ("S", 15, 1, 3, 4 if qh == 1 else 3)
                for k in range(NWL):
                    for fn, kind, cost in split_ops([(wload(0, k, S_T2, S_WT2), 8)]):
                        sc.fill("dmp", fn, 8 if kind == "vm" else 4, after=dict(tag=last, delay=2 + WLS * k), solo=(kind == "vm"), before=mt(sc.idx[last] + 12 + WLS * k), lead=9)
    cur = None
    for (pos, reads, cons, war) in pool.frags:
        if pos != cur:
            cur = pos; add_bar(pos)
        for k, fn in enumerate(reads):
            bf = cons
            if sc.idx[cons] > tau[pos + 1] - BGAP: bf = mt(tau[pos + 1] - BGAP)
            sc.fill("rd", fn, 4, ds=True, after=war if k == 0 else None, before=bf, lead=LEAD if bf is cons else 0)
    add_bar(32)
    def V(fn, after=None, before=None, cost=4, lead=0): sc.fill("va", fn, cost, after=after, before=before, lead=lead)
    EDL = int(E("EDL", "3"))
    for u in range(16):
        ns = [0, 1, 2, 3] + ([4] if (u & 1) == qh else [])
        for kt in range(2):
            for n in ns:
                src = XS(u & 1, n) if kt == 0 else YS(n)
                dst = XS(u & 1, n) + 2 * kt
                for r in range(4):
                    V(lambda p, reg=src + r: p.exp(reg, reg), after=dict(tag=("S", u, kt, 3, n), delay=EDL), cost=8)
                bf = ("L", u, n)
                if kt == 1 and n < 4 and u < 15: bf = ("S", u + 1, 1, 0, n)
                V(lambda p, dst=dst, src=src: p.cvtpk(dst, src, src + 1))
                V(lambda p, dst=dst, src=src: p.cvtpk(dst + 1, src + 2, src + 3), before=bf, lead=2)
    sc.run()
    if qh == 0: p.s(f"s_branch {name}_F")
    return p

def afin(name):
    p = Prog()
    p.label(f"{name}_F")
    stamp(p, 5, S_PH)
    poll_issue(p, V_AX, f"s{S_PF}", 0, V_NV)
    AD, AL, AI, A8 = V_S + 44, V_S + 46, V_S + 48, V_S + 52
    p.v(f"v_lshl_add_u32 v{AD}, s{S_W}, 12, v{V_LIN}", [AD], [V_LIN])
    p.vop("v_add_u32", AD, f"{MISC}", AD)
    p.vop("v_xor_b32", AD + 1, "4096", AD)
    for i in range(4): p.ds_write(AD + 1, Oa(4, 4 + i), 4, i * 1024)
    p.s(f"s_xor_b32 s{S_T0}, s{S_W}, 1")
    p.s(f"s_movk_i32 s{S_T1}, 18432")
    p.s(f"s_mov_b32 s{S_T2}, {IMG(8)}")
    p.s(f"s_cmp_eq_u32 s{S_PH}, 0")
    p.s(f"s_cselect_b32 s{S_T1}, 1024, s{S_T1}")
    p.s(f"s_cselect_b32 s{S_T2}, {XRING}, s{S_T2}")
    p.s(f"s_mul_i32 s{S_T0}, s{S_T0}, s{S_T1}")
    p.s(f"s_add_u32 s{S_T0}, s{S_T0}, s{S_T2}")
    p.vop("v_add_u32", AL + 1, f"s{S_T0}", V_LIN)
    p.ds_write(AL + 1, La(4), 1, 0)
    p.s(f"s_mul_i32 s{S_T0}, s{S_W}, s{S_T1}")
    p.s(f"s_add_u32 s{S_T0}, s{S_T0}, s{S_T2}")
    p.vop("v_add_u32", AL, f"s{S_T0}", V_LIN)
    RL = V_S + 2
    for n in range(5): p.ar(RL + 2 * n, La(n))
    p.s(f"s_mul_i32 s{S_T0}, s{S_P}, 36864")
    p.vop("v_add_u32", A8 + 1, f"s{S_T0}", V_LIN)
    tile_addr(p, A8 + 1, V_T)
    for n in range(4): p.vop("v_add_u32", AI + n, f"{IMG(8)}", V_T + n)
    p.vop("v_subrev_u32", A8, f"{IMG(8)}", AL)
    wleft = list(range(int(E("NWL", "12")), 20))
    def check(n):
        r = RL + 2 * n
        p.add(Ins(f"v_cmp_nge_f32 vcc, v{r}, s{S_LO}", "valu", [r], []))
        p.s(f"s_or_b64 s[{S_BAD}:{S_BAD+1}], s[{S_BAD}:{S_BAD+1}], vcc")
        p.add(Ins(f"v_cmp_nle_f32 vcc, v{r}, s{S_HI}", "valu", [r], []))
        p.s(f"s_or_b64 s[{S_BAD}:{S_BAD+1}], s[{S_BAD}:{S_BAD+1}], vcc")
        p.vop("v_rcp_f32", r + 1, r, kind="trans")
        p.vop("v_rcp_f32", r, r, kind="trans")
    def pkm(d, n): p.pkmul(d, d, RL + 2 * n)
    CHK = V_S + 40
    pend = []
    def flush():
        for d in pend: p.mfma(CHK, A_ONE, d, CHK if d != Oa(0, 0) else None)
        pend.clear()
    def norm(n, t):
        s0 = Oa(n, 2 * t)
        for r in range(0, 8, 2): pkm(s0 + r, n)
        for r in range(4): p.cvtpk(s0 + r, s0 + 2 * r, s0 + 2 * r + 1)
        flush()
        if t & 1:
            p.s(f"s_mov_b64 exec, s[{S_XM}:{S_XM+1}]")
            for tt in (t - 1, t):
                if n < 4: p.ds_write(AI + n, Oa(n, 2 * tt), 4, tt * 9216 + 1024).kind = "dsx"
                else: p.ds_write(AL, Oa(n, 2 * tt), 4, tt * 9216).kind = "dsx"
                if n < 4: p.ds_write(V_T + n, Qf(n, tt, A_QN), 4, tt * 9216 + 1024).kind = "dsx"
                else: p.ds_write(A8, Qf(n, tt, A_QN), 4, tt * 9216).kind = "dsx"
            p.s("s_mov_b64 exec, -1")
        if wleft: wload(0, wleft.pop(0), S_T2, S_WT2)(p)
        pend.append(s0)
    for n in range(4): check(n)
    p.add(Ins("s_waitcnt lgkmcnt(0)", "waitlgkm0"))
    for t in range(4): norm(0, t)
    p.barrier()
    PX = V_S + 16
    for i in range(4): p.ds_read128(PX + 4 * i, AD, i * 1024)
    p.ds_read32(V_S, AL, 0)
    for n in (1, 2):
        for t in range(4): norm(n, t)
    p.vop("v_add_f32", RL + 8, RL + 8, V_S)
    check(4)
    for i in range(4):
        for r in range(4): p.vop("v_add_f32", Oa(4, i) + r, Oa(4, i) + r, PX + 4 * i + r)
    for t in range(2): norm(4, t)
    for t in range(4): norm(3, t)
    flush()
    p.s(f"s_movk_i32 s{S_T2}, 0x207")
    p.s(f"s_add_u32 s{S_PH}, s{S_PH}, 1")
    p.add(Ins(f"v_cmp_class_f32 vcc, v{CHK}, s{S_T2}", "valu", [CHK], []))
    p.s(f"s_or_b64 s[{S_BAD}:{S_BAD+1}], s[{S_BAD}:{S_BAD+1}], vcc")
    stamp(p, 2, S_PH)
    p.s(f"s_cmp_eq_u32 s{S_PH}, 2")
    p.s(f"s_cbranch_scc1 {name}_P")
    q = Prog()
    q_copy(q)
    for n in range(5):
        for t in range(4 if n < 4 else 2):
            for r in range(4): q.aw(Qf(n, t, A_QN) + r, Oa(n, 2 * t) + r)
    sprinkle([(p, 8), (q, 1)], SEAM[tsn(7):], 0.0, float(E("ASH", "1.0")))
    code_prefetch(q, name, 1, f"{name}_end-16384", 2, V_T)
    poll_check(q, f"{name}_wpoll", V_AX, f"s{S_PF}", 0, V_NV)
    q.s(f"s_branch {name}_A")
    return p, q

def q_copy(p):
    for r in range(80): p.amov(A_Q + r, A_QN + r)

P_R = ([A_Q + 4 * i for i in range(20)] + [A_X + 4 * i for i in range(10)] + [10, 14],
       [A_QN + 4 * i for i in range(20)] + [A_L + 4 * i for i in range(12)])
def wload(j, i, so=None, sb=None):
    def f(p):
        if i % 2 == 0: p.s(f"s_add_u32 s{so or S_SO}, s{sb or S_WT}, {(i >> 1) * 40960}")
        if "B" not in ABL: p.load4(P_R[j & 1][i], V_LIN, SRD_WS, f"s{so or S_SO}", (i & 1) * 1024, ("WT", j, i), "sc1")
    return f

def slow(name):
    SI, SC, SX, SWq, SKV, SD, SK = 56, 57, 58, 59, 88, 89, 90
    VW, VX, VK, VV_, VD = 28, 36, 37, 38, 39
    MX, NM, LA, QF, SS, FB, AC, RAW, FR = 40, 44, 48, 52, 68, 76, 84, 116, 180
    def ld(p, op, n, d, vo, srd, so, off):
        p.add(Ins(f"{op} {vr(d, n)}, v{vo}, s[{srd}:{srd+3}], s{so} offen offset:{off}", "vml", [vo], R(d, n), tag="sl"))
    p0 = Prog()
    p0.label(f"{name}_slow")
    p0.wait_all()
    M, G = MX, MX + 1
    p0.vop("v_bfe_u32", M, V_LIN, "4", "4")
    p0.vop("v_lshrrev_b32", G, "8", V_LIN)
    p0.vop("v_lshlrev_b32", VW, "16", G)
    p0.vop("v_lshl_add_u32", VW, M, "1", VW)
    for i in range(1, 8): p0.vop("v_add_u32", VW + i, f"{8192 * i}", VW)
    p0.s(f"s_movk_i32 s{S_T0}, 1280")
    p0.vop("v_mul_lo_u32", VX, M, f"s{S_T0}")
    p0.vop("v_lshl_add_u32", VX, G, "4", VX)
    p0.vop("v_lshlrev_b32", VK, "8", M)
    p0.vop("v_lshl_add_u32", VK, G, "3", VK)
    p0.vop("v_lshlrev_b32", VV_, "10", G)
    p0.vop("v_lshl_add_u32", VV_, M, "1", VV_)
    p0.s(f"s_mov_b32 s{SI}, 0")
    p1 = Prog()
    p1.label(f"{name}_sl_it")
    p1.s(f"s_cmp_ge_u32 s{SI}, 5")
    p1.s(f"s_cselect_b32 s{S_T0}, 2, 0")
    p1.s(f"s_cselect_b32 s{S_T1}, 5, 0")
    p1.s(f"s_sub_u32 s{S_T1}, s{SI}, s{S_T1}")
    p1.s(f"s_add_u32 s{S_T0}, s{S_T0}, s{S_P}")
    p1.s(f"s_mul_i32 s{SD}, s{S_T0}, 36864")
    p1.s(f"s_lshl_b32 s{S_T2}, s{S_G}, 2")
    p1.s(f"s_add_u32 s{S_T0}, s{S_T0}, s{S_T2}")
    p1.s(f"s_lshl_b32 s{SWq}, s{S_T0}, 8")
    p1.s(f"s_lshl_b32 s{S_T2}, s{S_B}, 5")
    p1.s(f"s_add_u32 s{S_T0}, s{S_T0}, s{S_T2}")
    p1.s(f"s_lshl_b32 s{SKV}, s{S_T0}, 17")
    p1.s(f"s_lshl_b32 s{S_T0}, s{S_U}, 2")
    p1.s(f"s_add_u32 s{S_T0}, s{S_T0}, s{S_T1}")
    p1.s(f"s_sub_u32 s{S_T2}, s{S_T0}, s{S_G}")
    p1.s(f"s_add_u32 s{S_T2}, s{S_T2}, 7")
    p1.s(f"s_and_b32 s{S_T2}, s{S_T2}, 7")
    p1.s(f"s_add_u32 s{S_T2}, s{S_T2}, 1")
    p1.s(f"s_cmp_eq_u32 s{S_T1}, 4")
    p1.s(f"s_cselect_b32 s{S_T0}, 8, s{S_T0}")
    p1.s(f"s_cselect_b32 s{S_T2}, 0, s{S_T2}")
    p1.s(f"s_lshl_b32 s{S_T2}, s{S_T2}, 10")
    p1.s(f"s_add_u32 s{SD}, s{SD}, s{S_T2}")
    p1.vop("v_add_u32", VD, f"s{SD}", V_LIN)
    p1.s(f"s_mul_i32 s{S_T2}, s{S_B}, 9")
    p1.s(f"s_add_u32 s{S_T0}, s{S_T0}, s{S_T2}")
    p1.s(f"s_mul_i32 s{SX}, s{S_T0}, {16 * 1280}")
    for r in range(32): p1.vop("v_mov_b32", AC + r, "0")
    p1.s(f"s_mov_b32 s{SC}, 0")
    def pack(p):
        for r in range(32): p.vop("v_lshl_or_b32", FR + r, RAW + 2 * r + 1, "16", RAW + 2 * r)
    def loop_end(p, lab, n):
        p.s(f"s_add_u32 s{SC}, s{SC}, 1")
        p.s(f"s_cmp_lt_u32 s{SC}, {n}")
        p.s(f"s_cbranch_scc1 {lab}")
    p2 = Prog()
    p2.label(f"{name}_sl_q")
    ld(p2, "buffer_load_dwordx4", 4, FB, VX, SRD_X, SX, 0)
    for m in range(8):
        for i in range(8): ld(p2, "buffer_load_ushort", 1, RAW + 8 * m + i, VW + i, SRD_W, SWq, 32 * m)
        if m == 3: p2.wait_all()
    p2.wait_all()
    pack(p2)
    for m in range(8): p2.mfma(AC + 4 * m, FR + 4 * m, FB, AC + 4 * m)
    p2.s(f"s_add_u32 s{SX}, s{SX}, 64")
    p2.s(f"s_add_u32 s{SWq}, s{SWq}, {32 * 8192}")
    loop_end(p2, f"{name}_sl_q", 20)
    p3 = Prog()
    for r in range(32): p3.vop("v_mul_f32", AC + r, f"s{S_CS}", AC + r)
    for r in range(16): p3.cvtpk(QF + r, AC + 2 * r, AC + 2 * r + 1)
    for r in range(32): p3.vop("v_mov_b32", AC + r, "0")
    for r in range(4): p3.vop("v_mov_b32", LA + r, "0")
    p3.vop("v_mov_b32", MX, "0xff800000")
    p3.s(f"s_mov_b32 s{SK}, s{SKV}")
    p3.s(f"s_mov_b32 s{SC}, 0")
    def kfrags(p, dst, so):
        for ks in range(4):
            ld(p, "buffer_load_dwordx2", 2, dst + 4 * ks, VK, SRD_K, so, 64 * ks)
            ld(p, "buffer_load_dwordx2", 2, dst + 4 * ks + 2, VK, SRD_K, so, 64 * ks + 32)
    p4 = Prog()
    p4.label(f"{name}_sl_m")
    kfrags(p4, FR, SK)
    p4.wait_all()
    for ks in range(4): p4.mfma(SS, FR + 4 * ks, QF + 4 * ks, SS if ks else None)
    p4.vop("v_max3_f32", MX, MX, SS, SS + 1)
    p4.vop("v_max3_f32", MX, MX, SS + 2, SS + 3)
    p4.s(f"s_add_u32 s{SK}, s{SK}, 4096")
    loop_end(p4, f"{name}_sl_m", 32)
    p5 = Prog()
    for sw in (p5.swap32, p5.swap16):
        p5.vop("v_mov_b32", MX + 1, MX)
        sw(MX, MX + 1)
        p5.vop("v_max_f32", MX, MX, MX + 1)
    for r in range(4): p5.vop("v_sub_f32", NM + r, "0", MX)
    p5.s(f"s_mov_b32 s{SC}, 0")
    p6 = Prog()
    p6.label(f"{name}_sl_a")
    p6.s(f"s_add_u32 s{SK}, s{SKV}, 4096")
    kfrags(p6, FR, SKV)
    kfrags(p6, FR + 16, SK)
    p6.wait_all()
    for m in range(8):
        for i in range(8): ld(p6, "buffer_load_ushort", 1, RAW + 8 * m + i, VV_, SRD_V, SK if i >= 4 else SKV, 32 * m + 256 * (i & 3))
        if m == 3: p6.wait_all()
    for kt in range(2):
        for ks in range(4): p6.mfma(SS + 4 * kt, FR + 16 * kt + 4 * ks, QF + 4 * ks, SS + 4 * kt if ks else NM)
    for r in range(8): p6.exp(SS + r, SS + r)
    for r in range(4): p6.cvtpk(FB + r, SS + 2 * r, SS + 2 * r + 1)
    p6.wait_all()
    pack(p6)
    p6.mfma(LA, A_ONE, FB, LA)
    for m in range(8): p6.mfma(AC + 4 * m, FR + 4 * m, FB, AC + 4 * m)
    p6.s(f"s_add_u32 s{SKV}, s{SKV}, 8192")
    loop_end(p6, f"{name}_sl_a", 16)
    p7 = Prog()
    p7.vop("v_rcp_f32", LA, LA, kind="trans")
    for r in range(32): p7.vop("v_mul_f32", AC + r, AC + r, LA)
    for r in range(16): p7.cvtpk(QF + r, AC + 2 * r, AC + 2 * r + 1)
    for hf in range(2):
        p7.s(f"s_cmp_eq_u32 s{S_U}, {hf}")
        p7.s(f"s_cselect_b32 s{S_T0}, 0, s{S_T1}")
        p7.s(f"s_cmp_eq_u32 s{S_T0}, 4")
        p7.s(f"s_cbranch_scc1 {name}_sl_s{hf}")
        for t in (2 * hf, 2 * hf + 1): p7.ds_write(VD, QF + 4 * t, 4, t * 9216)
        p7.label(f"{name}_sl_s{hf}")
    p7.wait_all()
    p7.s(f"s_add_u32 s{SI}, s{SI}, 1")
    p7.s(f"s_cmp_lt_u32 s{SI}, 10")
    p7.s(f"s_cbranch_scc1 {name}_sl_it")
    p7.s(f"s_branch {name}_P2")
    body = [p1, p2, p2, p3, p4, p4, p5, p6, p6, p7]
    return [p0, p1, p2, p3, p4, p5, p6, p7], [p0] + body + body

S_ST = 62
S_J, S_JO, S_J8, S_JO8 = 4, 5, 6, 7
S_PC, S_FO, S_PO, S_JL = 70, 71, 72, 73
def psetup(p):
    p.s(f"s_mul_i32 s{S_RD}, s{S_B}, {PARTB}")
    p.s(f"s_lshl_b32 s{S_T1}, s{S_W}, 11")
    p.s(f"s_add_u32 s{S_RD}, s{S_RD}, s{S_T1}")
    p.s(f"s_add_u32 s{S_RD}, s{S_RD}, {PART}")
    p.s(f"s_lshr_b32 s{S_T0}, s{S_G}, 2")
    p.s(f"s_mul_i32 s{S_T0}, s{S_T0}, {PARTH}")
    p.s(f"s_add_u32 s{S_T0}, s{S_T0}, s{S_RD}")
    p.s(f"s_and_b32 s{S_T1}, s{S_G}, 3")
    p.s(f"s_mul_i32 s{S_ST}, s{S_T1}, 40960")
    p.s(f"s_add_u32 s{S_ST}, s{S_ST}, s{S_T0}")
    p.s(f"s_add_u32 s{S_ST}, s{S_ST}, 32768")
    p.s(f"s_lshl_b32 s{S_J}, s{S_T1}, 13")
    p.s(f"s_add_u32 s{S_J}, s{S_J}, s{S_T0}")
    for i in range(1, 8):
        p.s(f"s_add_u32 s{S_T0}, s{S_G}, {i}")
        p.s(f"s_bfe_u32 s{S_T1}, s{S_T0}, 0x10002")
        p.s(f"s_mul_i32 s{S_T1}, s{S_T1}, {PARTH}")
        p.s(f"s_and_b32 s{S_T0}, s{S_T0}, 3")
        p.s(f"s_lshl_b32 s{S_T0}, s{S_T0}, 13")
        p.s(f"s_add_u32 s{S_T0}, s{S_T0}, s{S_T1}")
        p.s(f"s_add_u32 s{S_T0}, s{S_T0}, s{S_RD}")
        p.s(f"s_add_u32 s{S_ST+i}, s{S_T0}, {((i - 1) >> 1) * 40960 + ((i - 1) & 1) * 1024}")
    p.s(f"s_lshl_b32 s{S_PO}, s{S_B}, 2")
    p.s(f"s_add_u32 s{S_PO}, s{S_PO}, s{S_W}")
    p.s(f"s_lshl_b32 s{S_PO}, s{S_PO}, 9")
    p.s(f"s_add_u32 s{S_PO}, s{S_PO}, {PFLG}")
    p.s(f"s_lshl_b32 s{S_FO}, s{S_G}, 3")
    p.s(f"s_add_u32 s{S_FO}, s{S_FO}, s{S_PO}")
    p.s(f"s_mul_i32 s{S_OUTO}, s{S_B}, {144 * 1280}")
    p.s(f"s_mul_i32 s{S_T1}, s{S_W}, 320")
    p.s(f"s_add_u32 s{S_OUTO}, s{S_OUTO}, s{S_T1}")
    p.s(f"s_mul_i32 s{S_JO}, s{S_G}, {16 * 1280}")
    p.s(f"s_add_u32 s{S_JO}, s{S_JO}, s{S_OUTO}")
    p.s(f"s_sub_u32 s{S_JO}, s{S_JO}, 64")
    p.s(f"s_mul_i32 s{S_T1}, s{S_G}, {4 * 40960}")
    p.s(f"s_add_u32 s{S_J8}, s{S_RD}, s{S_T1}")
    p.s(f"s_add_u32 s{S_J8}, s{S_J8}, 32768")
    p.s(f"s_lshl_b32 s{S_T1}, s{S_G}, 6")
    p.s(f"s_add_u32 s{S_JO8}, s{S_OUTO}, s{S_T1}")
    p.s(f"s_add_u32 s{S_JO8}, s{S_JO8}, {128 * 1280}")
    p.s(f"s_cmp_ge_u32 s{S_G}, 5")
    p.s(f"s_cselect_b32 s{S_J8}, {OOB:#x}, s{S_J8}")
    p.s(f"s_cselect_b32 s{S_JO8}, {OOB:#x}, s{S_JO8}")
    p.s(f"s_mov_b32 s{S_PC}, 0")

def pmod(name):
    p = Prog()
    p.label(f"{name}_P")
    if "F" in ABL: p.s(f"s_mov_b32 s{S_BAD}, 1")
    p.s(f"s_cmp_lg_u64 s[{S_BAD}:{S_BAD+1}], 0")
    p.s(f"s_cbranch_scc1 {name}_slow")
    p.label(f"{name}_P2")
    AO = (V_LIN, 2, 3)
    V_FA, V_OA = 4, 5
    PT, PT2 = 6, 8
    V_SA = 1
    SEL = 18
    POOL = [28 + 4 * k for k in range(16)]
    ACC = 92
    OWN = 124
    A8 = 164
    JB = (172, 204)
    CT = 244
    p.vop("v_add_u32", AO[1], "49152", V_LIN)
    p.vop("v_add_u32", AO[2], "98304", V_LIN)
    p.vop("v_mov_b32", V_SA, V_LIN)
    p.wait_all()
    p.barrier()
    stamp(p, 16)
    NL = int(E("PLEAD", "8"))
    def ooff(i, kq): return IMG(kq) + i * 1024
    for f in range(NL): p.ds_read128(POOL[f], AO[ooff(0, f) // 49152], ooff(0, f) % 49152)
    p.vop("v_lshrrev_b32", V_FA, "1", V_LIN)
    p.vop("v_and_b32", V_FA, "0x38", V_FA)
    p.vop("v_bfe_u32", CT, V_LIN, "4", "4")
    p.s(f"s_movk_i32 s{S_T0}, 1280")
    p.vop("v_mul_lo_u32", V_OA, CT, f"s{S_T0}")
    p.vop("v_lshrrev_b32", CT + 1, "8", V_LIN)
    p.vop("v_lshl_add_u32", V_OA, CT + 1, "4", V_OA)
    p.vop("v_mov_b32", PT2, f"s{S_NON}")
    p.vop("v_mov_b32", PT2 + 1, f"s{S_NON+1}")
    p.vop("v_and_b32", CT + 2, "1", CT)
    p.vop("v_lshlrev_b32", CT + 2, "4", CT + 2)
    p.s(f"s_movk_i32 s{S_T0}, 0x3f80")
    p.vop("v_lshlrev_b32", CT + 2, CT + 2, f"s{S_T0}")
    p.vop("v_lshrrev_b32", CT, "1", CT)
    p.vop("v_lshlrev_b32", CT + 1, "1", CT + 1)
    p.vop("v_sub_u32", CT, CT, CT + 1)
    for r in range(2):
        p.add(Ins(f"v_cmp_eq_u32 vcc, {r}, v{CT}", "valu", [CT], []))
        p.vop("v_mov_b32", SEL + r, "0")
        p.vop("v_mov_b32", SEL + 4 + r, "0")
        p.add(Ins(f"v_cndmask_b32 v{SEL+2+r}, 0, v{CT+2}, vcc", "valu", [CT + 2], [SEL + 2 + r]))
    def job_loads(p, sbase, offs, buf):
        for g, off in enumerate(offs):
            p.s(f"s_add_u32 s{S_T0}, s{sbase}, {off}")
            p.load4(buf + 4 * g, V_LIN, SRD_WS, f"s{S_T0}", 0, "job", "sc1")
    def job_reduce(p, sout, off, bufs, a, init):
        for g, bf in enumerate(bufs):
            for e in range(2): p.mfma(a + 4 * e, SEL + 2 - 2 * e, bf, None if (init and g == 0) else a + 4 * e)
        return lambda: ([p.cvtpk(a + r, a + 2 * r, a + 2 * r + 1) for r in range(4)],
                        p.store(a, 4, V_OA, SRD_OUT, f"s{sout}", off, tag="out", flags=E("OFL", "")))
    def flag(p, off, tag):
        p.wait_vm(tag)
        p.s("s_mov_b64 exec, 1")
        p.store(PT2, 2, V_LIN, SRD_WS, f"s{S_FO}", off, tag="flag", flags="sc1")
        p.s("s_mov_b64 exec, -1")
    FPOS = int(E("FPOS", "180")); WSP = float(E("WSP", "6")); PLAT = int(E("PLAT", "70")); CPOS = int(E("CPOS", "206")); WST = int(E("WST", "4"))
    jo = lambda mp: [(4 * mp + (g >> 1)) * 40960 + (g & 1) * 1024 for g in range(7)]
    def one_pass(par):
        q = Prog()
        q.label(f"{name}_pass{par}")
        if PROF == 4: stamp(q, 32, S_PC)
        q.wait_vm(("WT", par, 15))
        sc = Sched(q, budget=int(E("PBUD", "8")), late_extra=8)
        for qn in ("wl", "st", "jl"): sc.group[qn] = "vm"
        sc.pace["vm"] = int(E("PPACE", "4"))
        pool = Pool(sc, POOL, 16)
        acc = lambda i: OWN if i == 8 else ACC + 8 * (i % 4)
        for i in range(9):
            a = acc(i)
            for kq in range(16):
                cons = [(a + 4 * e, P_R[par][2 * kq + e], a + 4 * e if kq else None, ("P", i, kq, e)) for e in range(2)]
                pool.frag(0, lambda r: [R128(r, AO[ooff(i, kq) // 49152], ooff(i, kq) % 49152)], cons, as_b=True)
        mt = lambda i: sc.m[max(0, min(i, len(sc.m) - 1))][4]
        for f in range(NL, 144 + NL):
            (_, reads, cons, war) = pool.frags[f % 144]
            if f >= 144: war = pool.last[f % 16]
            if "R" not in ABL: sc.fill("rd", reads[0], 4, ds=True, after=war, before=mt(2 * (f - NL) + 1), early=2)
        for i in (16, 22, 28): sc.fill("ww", lambda p, i=i: p.wait_vm(("WT", par, min(31, i + 5))), 4, before=mt(i), early=0)
        def su(p):
            p.s(f"s_add_u32 s{S_WT}, s{S_WT}, 2048")
            p.s(f"s_cmp_eq_u32 s{S_PC}, 4")
            p.s(f"s_cselect_b32 s{S_WT}, {OOB:#x}, s{S_WT}")
        fill_dma(sc, [(su, 0)], None, mt(WST + 2), queue="wl", lead=6)
        for i in range(32):
            fill_dma(sc, [(wload(1 - par, i), 0)], mt(WST + int(WSP * i)), mt(WST + 12 + int(WSP * i)), queue="wl", lead=10)
        sc.fill("jl", lambda p: poll_issue(p, V_FA, f"s{S_PO}", 0, PT), 8, before=mt(CPOS - PLAT), early=4, solo=SOLO)
        for r in range(23, -1, -1): sc.fill("jr", lambda p, r=r: p.vop("v_mov_b32", OWN + 8 + r, OWN + r), 4, after=mt(40), before=mt(CPOS - 4), lead=4 * r)
        def cut(p):
            p.wait_vm("poll")
            p.s(f"s_cmp_lt_u32 s{S_PC}, 2")
            p.s(f"s_cbranch_scc1 {name}_nojob{par}")
            p.label("@CUT")
        sc.fill("jr", cut, 8, before=mt(CPOS), early=0)
        sc.fill("jr", lambda p: p.s(f"s_add_u32 s{S_PO}, s{S_PO}, 64"), 4)
        for i in range(8):
            a = acc(i)
            dl = mt(32 * i + 32 + 24)
            sc.fill("va", lambda p, a=a: p.cvtpk(a, a, a + 1), 4, after=dict(tag=("P", i, 15, 1), delay=4), before=dl, lead=10)
            sc.fill("va", lambda p, a=a: p.cvtpk(a + 1, a + 2, a + 3), 4)
            sc.fill("va", lambda p, a=a: p.cvtpk(a + 2, a + 4, a + 5), 4)
            sc.fill("va", lambda p, a=a: p.cvtpk(a + 3, a + 6, a + 7), 4, tag=("CV", i), before=dl, lead=10)
            def st(p, a=a, i=i):
                if "O" not in ABL: p.store(a, 4, V_SA, SRD_WS, f"s{S_ST+i}", 0, tag=("ps", i), flags=E("SFL", "sc1"))
            sc.fill("st", st, 8, after=("CV", i), before=dl, lead=20, tag=("ST", i), solo=SOLO)
        sc.fill("va", lambda p: p.vop("v_add_u32", V_SA, f"{4 * 40960}", V_SA), 4, after=("ST", 7))
        sc.fill("fl", lambda p: flag(p, 64, ("ps", 0)), 16, before=mt(FPOS), early=0)
        sc.fill("fl", lambda p: p.s(f"s_add_u32 s{S_FO}, s{S_FO}, 64"), 4)
        sc.fill("fl", lambda p: p.s(f"s_add_u32 s{S_PC}, s{S_PC}, 1"), 4, after=mt(270))
        sc.run()
        if par == 0:
            q.s(f"s_cmp_eq_u32 s{S_PC}, 5")
            q.s(f"s_cbranch_scc1 {name}_ptail")
        else: q.s(f"s_branch {name}_pass0")
        k = next(i for i, x in enumerate(q.ins) if x.text.startswith("@CUT"))
        q2 = Prog(); q2.label(f"{name}_nojob{par}"); q2.ins += q.ins[k + 1:]; q.ins = q.ins[:k]
        blk = Prog()
        poll_check(blk, f"{name}_pp{par}", V_FA, f"s{S_PO}", 0, PT)
        a = OWN + 24
        for g in range(7):
            for e in range(2): blk.mfma(a + 4 * e, SEL + 2 - 2 * e, JB[0] + 4 * g, a + 4 * e)
            job_loads(blk, S_J, [jo(0)[g]], JB[0] + 4 * g)
        blk.s(f"s_add_u32 s{S_J}, s{S_J}, {4 * 40960}")
        blk.s(f"s_cmp_eq_u32 s{S_PC}, 2")
        blk.s(f"s_cselect_b32 s{S_T0}, {OOB:#x}, s{S_JO}")
        blk.s(f"s_add_u32 s{S_JO}, s{S_JO}, 64")
        blk.wait_lgkm0()
        for r in range(4): blk.cvtpk(a + r, a + 2 * r, a + 2 * r + 1)
        blk.store(a, 4, V_OA, SRD_OUT, f"s{S_T0}", 0, tag="out", flags=E("OFL", ""))
        return q, blk, q2
    p.wait_lgkm0()
    pre = p
    pe, po = one_pass(0), one_pass(1)
    p = Prog()
    p.label(f"{name}_ptail")
    stamp(p, 17)
    poll_issue(p, V_FA, f"s{S_PO}", 0, PT)
    f2 = job_reduce(p, S_JO, 0, [JB[0] + 4 * g for g in range(7)], OWN + 16, False)
    flag(p, 64, ("ps", 7))
    poll_check(p, f"{name}_pp3", V_FA, f"s{S_PO}", 0, PT, 0)
    job_loads(p, S_J, jo(0), JB[0])
    job_loads(p, S_J8, [(g >> 2) * PARTH + (g & 3) * 40960 for g in range(8)], JB[1])
    poll_issue(p, V_FA, f"s{S_PO}", 64, PT)
    f2()
    stamp(p, 18)
    stamp(p, 19)
    poll_check(p, f"{name}_pp4", V_FA, f"s{S_PO}", 64, PT, 0)
    stamp(p, 20)
    job_loads(p, S_J, jo(1), POOL[8])
    f3 = job_reduce(p, S_JO, 64, [JB[0] + 4 * g for g in range(7)], OWN + 8, False)
    f8 = job_reduce(p, S_JO8, 0, [JB[1] + 4 * g for g in range(8)], A8, True)
    f3(); f8()
    job_reduce(p, S_JO, 128, POOL[8:15], OWN, False)()
    if PROF:
        p.wait_all()
        stamp(p, 21)
        p.s(f"s_lshl_b32 s{S_T0}, s2, 2")
        p.s(f"s_add_u32 s{S_T0}, s{S_T0}, s{S_W}")
        p.s(f"s_lshl_b32 s{S_T0}, s{S_T0}, 8")
        p.s(f"s_add_u32 s{S_T0}, s{S_T0}, {PROFOFF}")
        p.vop("v_lshrrev_b32", PT, "2", V_LIN)
        p.store(0, 1, PT, SRD_WS, f"s{S_T0}", 0)
        p.s(f"s_add_u32 s{S_T0}, s{S_T0}, 0x40000")
        p.store(255, 1, PT, SRD_WS, f"s{S_T0}", 0)
        if PROF == 5:
            p.s(f"s_cmp_lg_u32 s2, 77")
            p.s(f"s_cbranch_scc1 {name}_end")
            p.s(f"s_cmp_lg_u32 s{S_W}, 0")
            p.s(f"s_cbranch_scc1 {name}_end")
            p.raw("v_readlane_b32 s56, v0, 0")
            for k, ix in enumerate([23, 1, 2, 5, 6, 9, 10, 16, 17, 18, 20, 21]):
                p.raw(f"v_readlane_b32 s57, v0, {ix}")
                p.raw("s_nop 3")
                p.s("s_sub_u32 s57, s57, s56")
                p.raw(f"v_mov_b32 v30, s57")
                p.raw(f"buffer_store_dword v30, off, s[{SRD_DBG}:{SRD_DBG+3}], 0 offset:{8 + 4 * k}")
                p.raw("s_nop 1")
    p.label(f"{name}_end")
    p.raw("s_endpgm")
    return [pre, *pe, *po, p], [pre, pe[0], pe[2], po[0], po[2], *pe, *po, *pe, p]

def gen(name):
    pro = prologue(name)
    Q = qmod(name)
    AE = aentry(name)
    A = [amod(name, qh) for qh in range(2)]
    F, FB = afin(name)
    P, PS = pmod(name)
    SL, SLS = slow(name)
    segs = [pro, Q, AE, A[0], A[1], F, FB] + P + SL
    sims = [[(x, 1) for x in [pro, Q, AE, A[qh], F, FB, AE, A[qh], F] + PS] for qh in range(2)]
    sims.append([(x, 1) for x in [F] + SLS + PS])
    lines, stats = finalize([(x, 1) for x in segs], sims=sims)
    if int(E("ROLL", "1")):
        lines = roll(lines, "; ---- a step", 4, S_LOOP, f"{name}_aloop")
        lines = roll(lines, "; ---- q step", 4, S_LOOP, f"{name}_qloop")
    lines += [f".if {name}_end-{name}_nononce < {int(E('CPN0', '6')) * 8192}", '.error "code prefetch range"', ".endif"]
    return [f".globl {name}", ".p2align 8", f".type {name},@function", f"{name}:"] + lines, stats
```

```python
from asmlib import *
import math, struct, os
E = os.environ.get
PROF = int(E("PROF", "0"))
ABL = E("ABL", "")
def f2u(f): return struct.unpack("<I", struct.pack("<f", f))[0]
CSCALE = math.log2(math.e) / math.sqrt(128.0)
NWG = 256
LDS_BYTES = 163840
XSL = 18432
XRING = 131072
XALT = 65536 - XSL
WRING = 65536
MISC = 147456
def IMG(kq): return kq * 9216
DROP = 0x30000
OOB = 0x40000000
WOT = 0
PART = 128 * 40960
PARTH = 20 * 40960
PARTB = 2 * PARTH
WFLG = PART + 32 * PARTB
PFLG = WFLG + 8192
WSBYTES = PFLG + 65536
PROFOFF = 0x4000000

SRD_X, SRD_K, SRD_V, SRD_W, SRD_WS, SRD_WO, SRD_OUT, SRD_DBG = 8, 12, 16, 20, 24, 28, 32, 36
S_W = 3
S_T0, S_T1, S_B, S_G, S_P, S_T2 = 40, 41, 42, 43, 44, 45
S_CS, S_NON, S_SPIN, S_PH, S_GRP, S_SO = 46, 48, 50, 51, 52, 53
S_BAD = 54
S_KOFF, S_VOFF, S_KB, S_KVN, S_M0KV, S_WFP = 56, 57, 58, 59, 60, 61
S_WOFF, S_WB, S_XOFF, S_XB = 62, 63, 65, 66
S_M0W, S_M0X8 = 75, 72
S_WT, S_PT, S_PF, S_RD, S_OUTO = 76, 77, 78, 79, 80
S_LO, S_HI = 81, 82
S_TM = 84
S_VB = 88
S_M0KVP, S_KVP, S_M0D, S_U = 89, 91, 94, 95
S_LOOP = 92
S_WT2 = 98
S_XM = 96

V_DK, V_DV, V_DW, V_DX = 1, 5, 9, 13
V_AK, V_AV0, V_AV1, V_AX, V_AX8, V_LIN = 18, 19, 20, 21, 22, 24
V_E0, V_E1, V_E2 = 25, 26, 27
V_S = 28
V_AW = V_S + 40
V_O = 84
V_T = 244
V_NV = 252
V_JUNK = 254
A_Q, A_QN, A_L, A_ONE, A_POOL, A_X = 256, 336, 416, 436, 440, 472
A_QP = 480
NPOOL = 8
def Qf(n, ks, base=A_Q): return base + (n * 4 + ks) * 4
def Oa(n, m): return V_O + (n * 8 + m) * 4
def XS(par, n): return V_S + (par * 4 + n) * 4 if n < 4 else V_S + 48
def YS(n): return V_S + 32 + n * 4 if n < 4 else V_S + 52
def La(n): return A_L + 4 * n
def Xf(st, t): return V_S + (st * 5 + t) * 4
def QA(r, n, m): return (A_QN if r else V_O) + (n * 8 + m) * 4

def stamp(p, idx, dyn=None):
    if not PROF: return
    p.s(f"s_memrealtime s[{S_TM}:{S_TM+1}]")
    p.s(f"s_memtime s[{S_TM+2}:{S_TM+3}]")
    p.wait_lgkm0()
    if dyn is None:
        p.raw(f"v_writelane_b32 v0, s{S_TM}, {idx}")
        p.raw(f"v_writelane_b32 v255, s{S_TM+2}, {idx}")
    else:
        p.s("s_mov_b32 s99, m0")
        p.s(f"s_lshl_b32 m0, s{dyn}, 2")
        p.s(f"s_add_u32 m0, m0, {idx}")
        p.raw(f"v_writelane_b32 v0, s{S_TM}, m0")
        p.raw(f"v_writelane_b32 v255, s{S_TM+2}, m0")
        p.s("s_mov_b32 m0, s99")

KVSEQ = [("K", 0)]
for u in range(15): KVSEQ += [("K", u + 1), ("V", u)]
KVSEQ += [("V", 15)]
KVPOS = {t: i for i, t in enumerate(KVSEQ)}
def kv_ops(pos):
    pre = pos >= 32; pos %= 32
    kind, u = KVSEQ[pos]
    srd, vo, so, sb = (SRD_K, V_DK, S_KOFF, S_KB) if kind == "K" else (SRD_V, V_DV, S_VOFF, S_VB)
    ops = []
    for j in range(4):
        def f(p, j=j):
            if j == 0:
                p.s(f"s_add_u32 m0, s{S_M0KVP + (pos >> 2) if pre else S_M0D}, {(pos % 4) * 16384}")
                p.s(f"s_add_u32 s{S_SO}, s{S_KVP if pre else sb}, s{so}")
            if "D" not in ABL: p.dmao(vo + j, srd, f"s{S_SO}", j * 1024, (kind, u), "nt")
            if j == 1: p.s(f"s_add_u32 s{so}, s{so}, 8192")
            if j == 2: p.s(f"s_and_b32 s{so}, s{so}, 0x1ffff")
        ops.append((f, 12 if j == 0 else 8 if j < 3 else 4))
    return ops
def w_ops(h):
    ops = []
    for j in range(4):
        def f(p, j=j):
            if j == 0:
                p.s(f"s_add_u32 m0, s{S_M0W}, {(h % 4) * 16384}")
                p.s(f"s_add_u32 s{S_SO}, s{S_WB + (h & 1)}, s{S_WOFF}")
            if "W" not in ABL: p.dmao(V_DW + j, SRD_W, f"s{S_SO}", j * 1024, ("W", h))
            if j == 1 and h % 2 == 1: p.s(f"s_add_u32 s{S_WOFF}, s{S_WOFF}, {32 * 8192}")
            if j == 2 and h % 4 == 3:
                p.s(f"s_cmp_ge_u32 s{S_WOFF}, {640 * 8192}")
                p.s(f"s_cselect_b32 s{S_WOFF}, 0, s{S_WOFF}")
        ops.append((f, 12 if j == 0 or (j == 2 and h % 4 == 3) else 8 if j == 1 and h % 2 else 4))
    return ops
def x_ops(i):
    ops = []
    sb = XRING if i else XALT
    for j in range(5):
        def f(p, j=j):
            if j == 0:
                p.s(f"s_add_u32 m0, s{S_M0KV}, {sb}")
                p.s(f"s_add_u32 s{S_SO}, s{S_XB}, s{S_XOFF}")
            if "X" not in ABL: p.dmao(V_DX + j, SRD_X, f"s{S_SO}", (j & 3) * 1024, ("X", i))
            if j == 1: p.s(f"s_add_u32 s{S_XOFF}, s{S_XOFF}, 128")
            if j == 2:
                p.s(f"s_cmp_ge_u32 s{S_XOFF}, 1280")
                p.s(f"s_cselect_b32 s{S_XOFF}, 0, s{S_XOFF}")
            if j == 3:
                p.s(f"s_add_u32 m0, s{S_M0X8}, {sb}")
                p.nop(0)
        ops.append((f, 12 if j in (0, 2, 3) else 8 if j == 1 else 4))
    return ops

def split_ops(ops):
    q = Prog()
    for f, _ in ops: f(q)
    out = []; i = 0; L = [x for x in q.ins if x.kind != "nop"]
    while i < len(L):
        grp = [L[i]]
        if L[i].text.startswith("s_cmp"): grp.append(L[i + 1])
        i += len(grp)
        out.append((lambda p, grp=grp: [p.add(x) for x in grp], "vm" if grp[0].kind in ("vm", "vml", "vms") else "s", 4 * len(grp)))
    return out
def fill_dma(sc, ops, after, before, tag=None, queue="dma", lead=80):
    so = split_ops(ops)
    for k, (fn, kind, cost) in enumerate(so):
        sc.fill(queue, fn, 8 if kind == "vm" else cost, after=after, before=before, lead=lead, solo=(kind == "vm" and SOLO), paced=(kind == "vm"),
                tag=tag if k == len(so) - 1 else None)
SOLO = int(E("SOLO", "1"))
T7 = int(E("T7", "0"))
def sprinkle(progs, ops, lo=0.0, hi=1.0):
    pts = []
    for p, st in progs:
        masked = False
        for i in range(st, len(p.ins)):
            x = p.ins[i]
            if x.text.startswith("s_mov_b64 exec"): masked = not x.text.endswith("-1")
            if x.kind == "label" and not x.text.startswith(";"): break
            if x.kind in ("valu", "perm") and not masked and p.ins[i - 1].kind in ("valu", "perm") and "v_cmp" not in x.text and "v_cmp" not in p.ins[i - 1].text: pts.append((p, i))
    a, b = int(lo * len(pts)), int(hi * len(pts))
    sel = [pts[a + (k * (b - a)) // len(ops)] for k in range(len(ops))]
    for (p, i), (fn, _) in reversed(list(zip(sel, ops))):
        q = Prog(); fn(q)
        p.ins[i:i] = q.ins

CPF = int(E("CPF", "1"))
def code_prefetch(p, name, k, target, nchunk, t):
    if not CPF: return
    p.s(f"s_getpc_b64 s[{S_TM}:{S_TM+1}]")
    p.label(f"{name}_pc{k}")
    p.s(f"s_sub_u32 s{S_TM}, s{S_TM}, {name}_pc{k}-{name}")
    p.s(f"s_subb_u32 s{S_TM+1}, s{S_TM+1}, 0")
    p.s(f"s_add_u32 s{S_TM}, s{S_TM}, {target}-{name}")
    p.s(f"s_addc_u32 s{S_TM+1}, s{S_TM+1}, 0")
    p.s(f"s_lshr_b32 s{S_T0}, s2, 1")
    p.s(f"s_and_b32 s{S_T0}, s{S_T0}, 0x7c")
    p.s(f"s_add_u32 s{S_T0}, s{S_T0}, s{S_W}")
    p.s(f"s_cmp_ge_u32 s{S_T0}, {nchunk}")
    p.s(f"s_cbranch_scc1 {name}_pf{k}")
    p.s(f"s_lshl_b32 s{S_T0}, s{S_T0}, 13")
    p.s(f"s_add_u32 s{S_TM}, s{S_TM}, s{S_T0}")
    p.s(f"s_addc_u32 s{S_TM+1}, s{S_TM+1}, 0")
    p.raw(f"v_lshlrev_b32 v{t}, 3, v{V_LIN}")
    p.raw(f"v_mov_b32 v{t+1}, s{S_TM+1}")
    p.raw(f"v_add_co_u32 v{t}, vcc, s{S_TM}, v{t}")
    p.raw("s_nop 1")
    p.raw(f"v_addc_co_u32 v{t+1}, vcc, 0, v{t+1}, vcc")
    p.raw(f"global_load_dword v{V_JUNK}, v[{t}:{t+1}], off")
    p.label(f"{name}_pf{k}")

def get_nonce(p, name, t):
    p.add(Ins(f"v_readfirstlane_b32 s{S_NON}, v{V_NV}", "rfl", [V_NV], []))
    p.add(Ins(f"v_readfirstlane_b32 s{S_NON+1}, v{V_NV+1}", "rfl", [V_NV + 1], []))
    p.s(f"s_cmp_lt_i32 s{S_NON+1}, 0")
    p.s(f"s_cbranch_scc1 {name}_x")
    p.vop("v_mov_b32", t + 2, "0")
    p.label(f"{name}")
    p.raw(f"buffer_load_dwordx2 v[{t}:{t+1}], v{t+2}, s[{SRD_DBG}:{SRD_DBG+3}], 0 offen sc1")
    p.raw("s_waitcnt vmcnt(0)")
    p.raw(f"v_readfirstlane_b32 s{S_NON}, v{t}")
    p.raw(f"v_readfirstlane_b32 s{S_NON+1}, v{t+1}")
    p.s(f"s_sub_u32 s{S_SPIN}, s{S_SPIN}, 1")
    p.s(f"s_cbranch_scc1 {name}_x")
    p.s(f"s_cmp_lt_i32 s{S_NON+1}, 0")
    p.s(f"s_cbranch_scc0 {name}")
    p.label(f"{name}_x")
    p.nop(1)

def publish(p, soff, off, t):
    p.vop("v_mov_b32", t, f"s{S_NON}")
    p.vop("v_mov_b32", t + 1, f"s{S_NON+1}")
    p.s("s_mov_b64 exec, 1")
    p.store(t, 2, V_LIN, SRD_WS, soff, off, tag="flag", flags="sc1")
    p.s("s_mov_b64 exec, -1")

def poll_issue(p, vaddr, soff, off, t):
    p.add(Ins(f"buffer_load_dwordx2 v[{t}:{t+1}], v{vaddr}, s[{SRD_WS}:{SRD_WS+3}], {soff} offen offset:{off} sc1", "vml", [vaddr], [t, t + 1], tag="poll"))
def poll_check(p, name, vaddr, soff, off, t, slp=2):
    p.label(f"{name}")
    p.add(Ins(f"v_cmp_ne_u32 vcc, s{S_NON}, v{t}", "valu", [t], []))
    p.add(Ins(f"v_cmp_ne_u32 s[{S_TM+2}:{S_TM+3}], s{S_NON+1}, v{t+1}", "valu", [t + 1], []))
    p.s(f"s_or_b64 vcc, vcc, s[{S_TM+2}:{S_TM+3}]")
    p.s(f"s_cbranch_scc0 {name}_ok")
    p.s(f"s_sub_u32 s{S_SPIN}, s{S_SPIN}, 1")
    p.s(f"s_cbranch_scc1 {name}_ok")
    if slp: p.s(f"s_sleep {slp}")
    p.raw(f"buffer_load_dwordx2 v[{t}:{t+1}], v{vaddr}, s[{SRD_WS}:{SRD_WS+3}], {soff} offen offset:{off} sc1")
    p.raw("s_waitcnt vmcnt(0)")
    p.s(f"s_branch {name}")
    p.label(f"{name}_ok")

def prologue(name):
    p = Prog()
    p.s(f"s_cmp_ge_u32 s2, {NWG}")
    p.s(f"s_cbranch_scc1 {name}_end")
    p.s("s_load_dwordx8 s[84:91], s[0:1], 0")
    p.s("s_load_dwordx8 s[92:99], s[0:1], 32")
    T = V_O
    W, L, a, b, c, d, U, P, VV, R8, PI, M, G, cv = range(T, T + 14)
    p.vop("v_lshrrev_b32", W, "6", 0)
    p.vop("v_and_b32", L, "63", 0)
    p.add(Ins(f"v_readfirstlane_b32 s{S_W}, v{W}", "rfl", [W], []))
    p.vop("v_and_b32", U, "1", W)
    p.vop("v_lshrrev_b32", P, "1", W)
    p.vop("v_lshrrev_b32", VV, "5", L)
    p.vop("v_bfe_u32", R8, L, "2", "3")
    p.vop("v_and_b32", PI, "3", L)
    p.s(f"s_movk_i32 s{S_T0}, 1280")
    p.vop("v_mul_lo_u32", a, R8, f"s{S_T0}")
    p.vop("v_lshl_add_u32", a, VV, "6", a)
    p.vop("v_xor_b32", c, "3", PI)
    p.vop("v_lshl_add_u32", V_DX, PI, "4", a)
    p.vop("v_lshl_add_u32", b, c, "4", a)
    p.vop("v_add_u32", V_DX + 1, f"{9216}", b)
    p.vop("v_add_u32", V_DX + 2, f"{2 * 9216}", V_DX)
    p.vop("v_add_u32", V_DX + 3, f"{3 * 9216}", b)
    p.vop("v_lshrrev_b32", d, "2", R8)
    p.vop("v_lshlrev_b32", cv, "1", d)
    p.vop("v_xor_b32", cv, cv, PI)
    p.vop("v_and_b32", b, "3", R8)
    p.vop("v_lshl_add_u32", b, d, "3", b)
    p.vop("v_lshlrev_b32", d, "7", U)
    p.vop("v_lshl_add_u32", d, VV, "6", d)
    p.vop("v_lshl_add_u32", b, b, "13", d)
    p.vop("v_lshl_add_u32", V_DW, cv, "4", b)
    for j in range(1, 4): p.vop("v_add_u32", V_DW + j, f"{(16 * (j & 1) + 4 * (j >> 1)) * 8192 - 1024 * j}", V_DW)
    p.vop("v_mul_u32_u24", b, "3", P)
    p.vop("v_xor_b32", b, b, PI)
    p.vop("v_lshl_add_u32", b, b, "4", a)
    p.vop("v_lshlrev_b32", a, "2", W)
    p.vop("v_sub_u32", a, P, a)
    p.vop("v_add_u32", a, "16", a)
    p.s(f"s_movk_i32 s{S_T1}, {8 * 1280}")
    p.vop("v_mul_lo_u32", a, a, f"s{S_T1}")
    p.vop("v_add_u32", a, a, b)
    p.vop("v_lshl_add_u32", V_DX + 4, U, "30", a)
    MAP = int(E("MAP", "0"))
    p.s(f"s_bfe_u32 s{S_T0}, s2, {(MAP << 16) | 3:#x}")
    p.s(f"s_lshr_b32 s{S_T2}, s2, {3 + MAP}")
    p.s(f"s_and_b32 s{S_G}, s2, {(1 << (3 - MAP)) - 1}")
    p.s(f"s_lshl_b32 s{S_G}, s{S_G}, {MAP}")
    p.s(f"s_or_b32 s{S_G}, s{S_G}, s{S_T0}")
    p.s(f"s_bfe_u32 s{S_B}, s2, {(MAP << 16) | (3 - MAP):#x}")
    p.s(f"s_lshl_b32 s{S_B}, s{S_B}, {5 - MAP}")
    p.s(f"s_or_b32 s{S_B}, s{S_B}, s{S_T2}")
    p.s(f"s_lshl_b32 s{S_T0}, s{S_T0}, {5 - MAP}")
    p.s(f"s_lshl_b32 s{S_T2}, s{S_T2}, {MAP}")
    p.s(f"s_add_u32 s{S_T2}, s{S_T2}, s{S_T0}")
    p.s(f"s_and_b32 s{S_T2}, s{S_T2}, 31")
    p.s(f"s_lshr_b32 s{S_P}, s{S_W}, 1")
    p.s(f"s_lshl_b32 s{S_M0KV}, s{S_W}, 12")
    p.s(f"s_add_u32 s{S_M0W}, s{S_M0KV}, {WRING}")
    p.s(f"s_lshl_b32 s{S_M0X8}, s{S_P}, 10")
    p.s(f"s_add_u32 s{S_M0X8}, s{S_M0X8}, 16384")
    p.s(f"s_bitcmp1_b32 s{S_W}, 0")
    p.s(f"s_cselect_b32 s{S_M0X8}, 0x1d000, s{S_M0X8}")
    p.s(f"s_lshl_b32 s{S_T0}, s{S_G}, 2")
    p.s(f"s_add_u32 s{S_T0}, s{S_T0}, s{S_P}")
    p.s(f"s_lshl_b32 s{S_WB}, s{S_T0}, 8")
    p.s(f"s_add_u32 s{S_WB+1}, s{S_WB}, 512")
    p.s(f"s_lshl_b32 s{S_T1}, s{S_B}, 5")
    p.s(f"s_add_u32 s{S_T0}, s{S_T0}, s{S_T1}")
    p.s(f"s_lshl_b32 s{S_KVN}, s{S_T0}, 17")
    p.s(f"s_mul_i32 s{S_T0}, s{S_T2}, 5")
    p.s(f"s_lshr_b32 s{S_T0}, s{S_T0}, 4")
    if not int(E("ROT", "1")): p.s(f"s_mov_b32 s{S_T0}, 0")
    p.s(f"s_lshl_b32 s{S_XOFF}, s{S_T0}, 7")
    p.s(f"s_lshl_b32 s{S_WOFF}, s{S_T0}, 19")
    p.s(f"s_mul_i32 s{S_XB}, s{S_B}, {144 * 1280}")
    p.s(f"s_mul_i32 s{S_T0}, s{S_W}, {32 * 1280}")
    p.s(f"s_add_u32 s{S_XB}, s{S_XB}, s{S_T0}")
    def srd(r, src, size):
        p.s(f"s_mov_b32 s{r+2}, {size:#x}")
        p.s(f"s_mov_b32 s{r+3}, 0x20000")
    def srd2(r, src):
        p.s(f"s_mov_b32 s{r}, s{src}")
        p.s(f"s_and_b32 s{r+1}, s{src+1}, 0xffff")
    SR = ((SRD_X, 84, 32 * 144 * 640 * 2), (SRD_W, 90, 640 * 4096 * 2), (SRD_K, 86, 1 << 27), (SRD_V, 88, 1 << 27),
          (SRD_WO, 92, 4096 * 640 * 2), (SRD_OUT, 94, 32 * 144 * 640 * 2), (SRD_DBG, 96, 256), (SRD_WS, 98, (1 << 28) if PROF else WSBYTES))
    for x in SR: srd(*x)
    p.s("s_waitcnt lgkmcnt(0)")
    for x in SR[:2]: srd2(*x[:2])
    for ops in (x_ops(0), w_ops(0), w_ops(1)):
        for f, _ in ops: f(p)
    for x in SR[2:]: srd2(*x[:2])
    stamp(p, 0)
    p.vop("v_lshlrev_b32", V_LIN, "4", L)
    code_prefetch(p, name, 0, f"{name}_nononce", int(E("CPN0", "6")), V_T)
    p.vop("v_lshl_add_u32", b, R8, "8", d)
    p.vop("v_lshl_add_u32", V_DK, PI, "4", b)
    p.vop("v_lshl_add_u32", a, c, "4", b)
    p.vop("v_add_u32", V_DK + 1, "1024", a)
    p.vop("v_add_u32", V_DK + 2, "2048", V_DK)
    p.vop("v_add_u32", V_DK + 3, "3072", a)
    p.vop("v_lshl_add_u32", V_DV, cv, "4", b)
    for j in range(1, 4): p.vop("v_add_u32", V_DV + j, f"{1024 * j}", V_DV)
    p.s(f"s_lshl_b32 s{S_T0}, s2, 1")
    p.s(f"s_add_u32 s{S_T0}, s{S_T0}, s{S_P}")
    p.s(f"s_mul_i32 s{S_T0}, s{S_T0}, {int(E('KROT', '5'))}")
    p.s(f"s_lshr_b32 s{S_T1}, s2, 3")
    p.s(f"s_add_u32 s{S_T0}, s{S_T0}, s{S_T1}")
    p.s(f"s_and_b32 s{S_T0}, s{S_T0}, {15 if int(E('KROT', '5')) else 0}")
    p.s(f"s_lshl_b32 s{S_KOFF}, s{S_T0}, 13")
    p.s(f"s_mov_b32 s{S_VOFF}, s{S_KOFF}")
    p.s(f"s_mov_b32 s{S_M0KVP}, s{S_M0KV}")
    p.s(f"s_mov_b32 s{S_M0KVP+1}, s{S_M0W}")
    p.s(f"s_mov_b32 s{S_KVP}, s{S_KVN}")
    p.s(f"s_and_b32 s{S_U}, s{S_W}, 1")
    p.s(f"s_lshl_b32 s{S_T0}, s{S_B}, 2")
    p.s(f"s_lshr_b32 s{S_T1}, s{S_G}, 1")
    p.s(f"s_add_u32 s{S_T0}, s{S_T0}, s{S_T1}")
    p.s(f"s_and_b32 s{S_T1}, s{S_G}, 1")
    p.s(f"s_lshl_b32 s{S_T1}, s{S_T1}, 2")
    p.s(f"s_add_u32 s{S_T1}, s{S_T1}, s{S_W}")
    p.s(f"s_lshr_b32 s{S_WFP}, s{S_T1}, 1")
    p.s(f"s_lshl_b32 s{S_WFP}, s{S_WFP}, 7")
    p.s(f"s_add_u32 s{S_WFP}, s{S_WFP}, s{S_T0}")
    p.s(f"s_lshl_b32 s{S_WFP}, s{S_WFP}, 1")
    p.s(f"s_add_u32 s{S_WFP}, s{S_WFP}, s{S_U}")
    p.s(f"s_lshl_b32 s{S_WFP}, s{S_WFP}, 3")
    p.s(f"s_add_u32 s{S_WFP}, s{S_WFP}, {WFLG}")
    p.s(f"s_mul_i32 s{S_T1}, s{S_T1}, 5")
    p.s(f"s_mul_i32 s{S_T0}, s{S_T0}, 40960")
    p.s(f"s_lshl_b32 s{S_PT}, s{S_T1}, 10")
    p.s(f"s_add_u32 s{S_PT}, s{S_PT}, s{S_T0}")
    p.s(f"s_lshr_b32 s{S_T1}, s{S_T1}, 1")
    p.s(f"s_lshl_b32 s{S_T1}, s{S_T1}, 6")
    p.s(f"s_add_u32 s{S_WT}, s{S_T1}, s{S_T0}")
    p.s(f"s_mul_i32 s{S_RD}, s{S_W}, 6144")
    if int(E("TOUCH", "1")):
        p.add(Ins(f"buffer_load_dword v{V_T+4}, off, s[{SRD_K}:{SRD_K+3}], s{S_KVN} nt", "vml", [], [V_T + 4], tag="touch"))
        p.add(Ins(f"buffer_load_dword v{V_T+5}, off, s[{SRD_V}:{SRD_V+3}], s{S_KVN} nt", "vml", [], [V_T + 5], tag="touch"))
        p.add(Ins(f"buffer_load_dword v{V_T+7}, off, s[{SRD_WS}:{SRD_WS+3}], s{S_PT} sc1", "vml", [], [V_T + 7], tag="touch"))
    p.vop("v_lshrrev_b32", a, "2", L)
    p.s(f"s_movk_i32 s{S_T0}, 1280")
    p.vop("v_mul_lo_u32", a, a, f"s{S_T0}")
    p.vop("v_lshl_add_u32", V_E2, PI, "4", a)
    for i in range(6):
        p.s(f"s_add_u32 m0, s{S_RD}, {i * 1024}")
        p.s(f"s_add_u32 s{S_SO}, s{S_WT}, {(i & 1) * 16 * 1280 + (i >> 1) * 64}")
        p.dma(V_E2, SRD_WO, f"s{S_SO}", "WOP", E("WOFL", "nt"))
    p.s(f"s_or_b32 s{S_T0}, s2, s{S_W}")
    p.s(f"s_cmp_lg_u32 s{S_T0}, 0")
    p.s(f"s_cbranch_scc1 {name}_nononce")
    p.s(f"s_memrealtime s[{S_NON}:{S_NON+1}]")
    p.s("s_waitcnt lgkmcnt(0)")
    p.s(f"s_or_b32 s{S_NON+1}, s{S_NON+1}, 0x80000000")
    p.raw(f"v_mov_b32 v{V_T}, s{S_NON}")
    p.raw(f"v_mov_b32 v{V_T+1}, s{S_NON+1}")
    p.s("s_mov_b64 exec, 1")
    p.raw(f"buffer_store_dwordx2 v[{V_T}:{V_T+1}], v{V_LIN}, s[{SRD_DBG}:{SRD_DBG+3}], 0 offen sc1")
    p.s("s_mov_b64 exec, -1")
    p.label(f"{name}_nononce")
    p.s(f"s_mov_b32 s{S_SPIN}, 0x40000")
    p.s(f"s_mov_b32 s{S_PH}, 0")
    if PROF in (2, 3): p.s("s_mov_b32 s93, 32")
    p.s(f"s_mov_b64 s[{S_BAD}:{S_BAD+1}], 0")
    p.s(f"s_mov_b32 s{S_CS}, {f2u(CSCALE):#x}")
    p.s(f"s_mov_b32 s{S_CS+1}, s{S_CS}")
    p.s(f"s_mov_b32 s{S_LO}, {f2u(2.0 ** -16):#x}")
    p.s(f"s_mov_b32 s{S_HI}, {f2u(2.0 ** 24):#x}")
    p.vop("v_and_b32", M, "15", L)
    p.vop("v_lshrrev_b32", G, "4", L)
    p.vop("v_lshrrev_b32", a, "3", M)
    p.vop("v_mul_u32_u24", c, "3", a)
    p.vop("v_xor_b32", c, c, G)
    p.vop("v_and_b32", b, "7", M)
    p.vop("v_lshlrev_b32", b, "6", b)
    p.vop("v_lshl_add_u32", b, c, "4", b)
    p.vop("v_lshl_add_u32", b, a, "10", b)
    p.vop("v_add_u32", V_AX8, f"{XRING}", b)
    p.vop("v_lshl_add_u32", V_AX, U, "13", V_AX8)
    p.vop("v_add_u32", V_AW + 5, f"{XALT}", b)
    p.vop("v_lshl_add_u32", V_AW + 4, U, "13", V_AW + 5)
    p.vop("v_add_u32", c, f"s{S_RD}", V_LIN)
    p.vop("v_lshl_add_u32", V_E0, U, "3", c)
    p.vop("v_mul_u32_u24", a, "2040", U)
    p.v(f"v_add3_u32 v{V_E1}, v{c}, v{a}, 8", [V_E1], [c, a])
    p.vop("v_lshl_add_u32", V_AK, P, "13", b)
    p.vop("v_lshrrev_b32", a, "1", G)
    p.vop("v_lshlrev_b32", b, "10", a)
    p.vop("v_lshl_add_u32", b, R8, "6", b)
    p.vop("v_and_b32", c, "1", L)
    p.vop("v_lshl_add_u32", b, c, "3", b)
    p.vop("v_bfe_u32", c, L, "1", "1")
    p.vop("v_lshl_add_u32", b, c, "4", b)
    p.vop("v_and_b32", c, "1", G)
    p.vop("v_lshl_add_u32", b, c, "5", b)
    p.vop("v_lshl_add_u32", V_AV0, P, "13", b)
    p.vop("v_xor_b32", V_AV1, "32", V_AV0)
    p.vop("v_lshl_add_u32", a, U, "12", V_AV0)
    p.vop("v_xor_b32", b, "32", a)
    p.vop("v_xor_b32", c, "4096", a)
    p.vop("v_xor_b32", d, "4096", b)
    for i, r in enumerate((a, b, c, d)): p.vop("v_add_u32", V_AW + i, f"{WRING}", r)
    for ops in (w_ops(2), x_ops(1), w_ops(3)):
        for f, _ in ops: f(p)
    stamp(p, 23)
    return p

def R128(d, a, off): return lambda p: p.ds_read128(d, a, off)
def TR(d, a, off): return lambda p: p.ds_tr(d, a, off)

class Pool:
    def __init__(self, sc, base, n):
        self.sc = sc; self.regs = base if isinstance(base, list) else [base + 4 * k for k in range(n)]; n = len(self.regs); self.n = n; self.last = [None] * n; self.i = 0; self.frags = []
    def frag(self, tile, mk_reads, consumers, as_b=False):
        k = self.i % self.n; self.i += 1
        r = self.regs[k]
        war = self.last[k]
        for (d, o, c, tag) in consumers:
            if as_b: self.sc.mfma(d, o, r, c, tag)
            else: self.sc.mfma(d, r, o, c, tag)
        self.last[k] = consumers[-1][3]
        self.frags.append((tile, mk_reads(r), consumers[0][3], war))

LEAD = int(E("LEAD", "9"))
LEADB = int(E("LEADB", "8"))
BGAP = int(E("BGAP", "4"))

def sstamp(p):
    p.s(f"s_memrealtime s[{S_TM}:{S_TM+1}]")
    p.s(f"s_memtime s[{S_TM+2}:{S_TM+3}]")
    p.wait_lgkm0()
    p.s("s_mov_b32 s99, m0")
    p.s("s_mov_b32 m0, s93")
    p.s("s_add_u32 s93, s93, 1")
    p.raw(f"v_writelane_b32 v0, s{S_TM}, m0")
    p.raw(f"v_writelane_b32 v255, s{S_TM+2}, m0")
    p.s("s_mov_b32 m0, s99")

def qmod(name):
    p = Prog()
    KVS = [int(x) for x in E("KVS", "28,30,32,34,37").split(",")]
    sc = Sched(p, budget=int(E("QBUD", "8")), late_extra=8)
    sc.group["dma"] = "vm"; sc.pace["vm"] = int(E("QPACE", "4"))
    sc.maxds = int(E("QMAXDS", "1"))
    pool = Pool(sc, A_QP, NPOOL)
    for h in range(40):
        r = h & 1; st = (h >> 1) & 1
        for k in range(8):
            off = (h % 4) * 16384 + ((k >> 1) & 1) * 512
            ad = V_AW + 2 * (k >> 2) + (k & 1)
            cons = [(QA(r, n, k), Xf(st, n), QA(r, n, k) if h > 1 else None, ("Q", h, k, n)) for n in range(5 if k < 4 else 4)]
            pool.frag(h, lambda rg: [TR(rg, ad, off), TR(rg + 2, ad, off + 2048)], cons)
    mt = lambda i: sc.m[max(0, min(i, len(sc.m) - 1))][4]
    def xreads(i, kh):
        return [R128(Xf(kh, n), (V_AX if i else V_AW + 4) + (n >> 2), (n if n < 4 else 8) * 2048 + kh * 512) for n in range(5)]
    WOS = int(E("WOS", "2"))
    def wst():
        def f(p):
            for i in range(5):
                if i == 4: p.s(f"s_add_u32 s{S_PT}, s{S_PT}, 4096")
                p.store(A_Q + 4 * i, 4, V_LIN, SRD_WS, f"s{S_PT}", (i % 4) * 1024, tag="wst", flags="sc1")
        return [(f, 20)]
    for fi, (h, reads, cons, war) in enumerate(pool.frags):
        c0 = 36 * h
        tau = c0 - LEADB
        taun = c0 + 36 - LEADB
        if fi % 8 == 0:
            def bar(p, h=h):
                p.comment(f"---- q step {h}")
                tags = [("W", h)]
                if h == 0: tags.append(("X", 0))
                if h % 4 == 3 and h < 39: tags.append(("X", (h + 1) // 4))
                p.wait_vm(tags, lgkm0=True)
                if "b" not in ABL or h < 4: p.barrier()
                if PROF == 2 and h % 2 == 0: sstamp(p)
            ops = []
            if h % 4 == 1 and 5 <= h < 37: ops += x_ops(h // 4 + 1)
            if 1 <= h < 37: ops += w_ops(h + 3)
            if "d" in ABL: ops = []
            if h == WOS:
                sc.fill("rw", lambda p: p.wait_vm("WOP"), 4, after=dict(tag=("BAR", h), delay=4), before=mt(taun - BGAP), lead=24)
                for i in range(10):
                    sc.fill("rw", TR(A_Q + 2 * i, V_E0 + ((i >> 1) & 1), (i >> 2) * 2048 + (i & 1) * 1024), 4, ds=True, before=mt(taun - BGAP), lead=2 * (10 - i))
            if h == 36: ops += wst()
            for k, x in enumerate(KVS):
                if x == h: ops += kv_ops(32 + k)
            sc.fill("rd", bar, 8, before=mt(tau), early=0 if h else None, tag=("BAR", h))
            QD = int(E("QD", "14")) if len(ops) <= 4 else int(E("QD2", "0"))
            fill_dma(sc, ops, dict(tag=("BAR", h), delay=QD), mt(taun - 1))
            if h == 0:
                for k, fn in enumerate(xreads(0, 0)): sc.fill("rd", fn, 4, ds=True, before=mt(0))
            xr = []; aft = [("BAR", h)]
            if h % 4 == 3 and h < 39: xr = xreads((h + 1) // 4, 0)
            if h % 4 == 0:
                xr = xreads(h // 4, 1)
                if h: aft.append(("Q", h - 1, 7, 3))
            for j, fn in enumerate(xr):
                sc.fill("rx", fn, 4, ds=True, after=aft, before=mt(taun - BGAP), lead=3 * (len(xr) - j))
        for k, fn in enumerate(reads):
            if "r" in ABL and h >= 2: continue
            bf = cons
            if sc.idx[cons] > taun - BGAP: bf = mt(taun - BGAP)
            sc.fill("rd", fn, 4, ds=True, after=war if k == 0 else None, before=bf, lead=LEAD if bf is cons else 0, early=int(E("QEARLY", "99")))
    def lastbar(p):
        p.comment("---- q step 40")
        p.wait_lgkm0(); p.barrier()
        p.add(Ins(f"buffer_load_dwordx2 v[{V_NV}:{V_NV+1}], off, s[{SRD_DBG}:{SRD_DBG+3}], 0 sc1", "vml", [], [V_NV, V_NV + 1], tag="non"))
    sc.fill("rd", lastbar, 8, before=mt(36 * 40 - LEADB), early=0)
    sc.run()
    stamp(p, 1)
    fstart = len(p.ins)
    TB = V_O + 144
    cnt = [0]
    def fin(r, n, t, i):
        s0 = QA(r, n, 2 * t)
        if r:
            tb = TB + 8 * (cnt[0] & 1); cnt[0] += 1
            for x in range(8): p.ar(tb + x, s0 + x)
            s0 = tb
        dst = V_S + 4 * i
        for x in range(0, 8, 2): p.pkmul(s0 + x, s0 + x, f"s[{S_CS}:{S_CS+1}]")
        for x in range(4): p.cvtpk(dst + x, s0 + 2 * x, s0 + 2 * x + 1)
        return dst
    def swp(dst):
        p.swap32(dst, dst + 2); p.swap32(dst + 1, dst + 3)
        p.swap16(dst, dst + 2); p.swap16(dst + 1, dst + 3)
    p.v(f"v_lshl_add_u32 v{V_E0}, s{S_W}, 12, v{V_LIN}", [V_E0], [V_LIN])
    p.vop("v_add_u32", V_E0, f"{XRING}", V_E0)
    p.vop("v_xor_b32", V_E1, "4096", V_E0)
    d8 = [fin(r, 4, t, 2 * r + t) for r in range(2) for t in range(2)]
    for d in d8: swp(d)
    for t, d in enumerate(d8): p.ds_write(V_E0, d, 4, t * 1024)
    for r in range(2):
        base = A_QN if r else A_Q
        for n in range(4):
            ds = [fin(r, n, t, 4 + (n & 1) * 4 + t) for t in range(4)]
            if r == 0 and n == 0:
                p.wait_lgkm0(); p.barrier()
                for t in range(2): p.ds_read128(Qf(4, t), V_E0, t * 1024)
                for t in range(2): p.ds_read128(Qf(4, 2 + t), V_E1, t * 1024)
            for d in ds: swp(d)
            for t, d in enumerate(ds):
                for x in range(4): p.aw(Qf(n, t, base) + x, d + x)
    for t in range(2): p.ds_read128(Qf(4, t, A_QN), V_E0, 2048 + t * 1024)
    for t in range(2): p.ds_read128(Qf(4, 2 + t, A_QN), V_E1, 2048 + t * 1024)
    p.vop("v_mov_b32", V_T, "0x3f803f80")
    for r in range(4): p.aw(A_ONE + r, V_T)
    sprinkle([(p, fstart)], sum([kv_ops(32 + k) for k in range(len(KVS), 7 if T7 else 8)], []), 0.0, float(E("QSH", "1.0")))
    get_nonce(p, f"{name}_n1", V_T)
    p.wait_vm("wst")
    publish(p, f"s{S_WFP}", 0, V_T)
    z = p
    z.s(f"s_mul_i32 s{S_WT}, s{S_G}, {16 * 40960}")
    z.s(f"s_mul_i32 s{S_T0}, s{S_W}, 10240")
    z.s(f"s_add_u32 s{S_WT}, s{S_WT}, s{S_T0}")
    z.s(f"s_lshl_b32 s{S_PF}, s{S_W}, 11")
    z.s(f"s_lshl_b32 s{S_T1}, s{S_G}, 8")
    z.s(f"s_add_u32 s{S_PF}, s{S_PF}, s{S_T1}")
    z.s(f"s_add_u32 s{S_PF}, s{S_PF}, {WFLG}")
    z.vop("v_lshrrev_b32", V_AX, "1", V_LIN)
    z.vop("v_and_b32", V_AX, "0xf8", V_AX)
    psetup(z)
    stamp(z, 2)
    return p

def a_mfmas(sc, pool, qh):
    AV = (V_AV0, V_AV1)
    has8 = lambda u: (u & 1) == qh
    for pos, (kind, u) in enumerate(KVSEQ):
        sb = (pos % 4) * 16384
        ns = [0, 1, 2, 3] + ([4] if has8(u) else [])
        if kind == "K":
            for kt in range(2):
                for ks in range(4):
                    off = sb + kt * 2048 + ((ks >> 1) ^ qh) * 4096 + (ks & 1) * 512
                    cons = []
                    for n in ns:
                        d = XS(u & 1, n) if kt == 0 else YS(n)
                        cons.append((d, Qf(n, ks), d if ks else None, ("S", u, kt, ks, n)))
                    pool.frag(pos, lambda r: [R128(r, V_AK, off)], cons)
        else:
            first = lambda n: u == 0 if n < 4 else u == qh
            for n in ns: sc.mfma(La(n), A_ONE, XS(u & 1, n), None if first(n) else La(n), ("L", u, n))
            for m in range(8):
                e, mp = m & 1, m >> 1
                off = sb + (mp >> 1) * 4096 + (mp & 1) * 512
                oa = lambda n: Oa(n, m if n < 4 else m ^ (4 * qh))
                cons = [(oa(n), XS(u & 1, n), None if first(n) else oa(n), ("PV", u, m, n)) for n in ns]
                pool.frag(pos, lambda r: [TR(r, AV[e], off), TR(r + 2, AV[e], off + 2048)], cons)

def a_taus():
    cs = []
    for qh in range(2):
        sc = Sched(Prog()); pool = Pool(sc, A_POOL, NPOOL); a_mfmas(sc, pool, qh)
        c = {}
        for (pos, _, cons, _) in pool.frags: c.setdefault(pos, sc.idx[cons])
        c[32] = len(sc.m) + LEADB - 3
        cs.append(c)
    return [min(cs[0][j], cs[1][j]) - LEADB for j in range(33)]

def aentry(name):
    p = Prog()
    p.label(f"{name}_A")
    p.s(f"s_mov_b32 s{S_KB}, s{S_KVN}")
    p.s(f"s_mov_b32 s{S_VB}, s{S_KVN}")
    p.s(f"s_add_u32 s{S_KVN}, s{S_KVN}, {2 << 17}")
    p.s(f"s_mov_b32 s{S_M0D}, s{S_M0W}")
    p.s(f"s_cmp_eq_u32 s{S_PH}, 0")
    p.s(f"s_cselect_b32 s{S_M0KVP}, s{S_M0KV}, {DROP:#x}")
    p.s(f"s_cselect_b32 s{S_M0KVP+1}, s{S_M0W}, {DROP:#x}")
    p.s(f"s_cselect_b32 s{S_KVP}, s{S_KVN}, {OOB:#x}")
    p.s(f"s_cselect_b64 s[{S_XM}:{S_XM+1}], 0, -1")
    p.s(f"s_cselect_b32 s{S_WT2}, {OOB:#x}, s{S_WT}")
    p.s(f"s_cmp_eq_u32 s{S_U}, 1")
    p.s(f"s_cbranch_scc1 {name}_A1")
    return p

def tile_addr(p, base, dst):
    p.s(f"s_lshl_b32 s{S_T0}, s{S_U}, 2")
    p.s(f"s_sub_u32 s{S_T0}, s{S_T0}, s{S_G}")
    for n in range(4):
        p.s(f"s_add_u32 s{S_T1}, s{S_T0}, {n + 7}")
        p.s(f"s_and_b32 s{S_T1}, s{S_T1}, 7")
        p.v(f"v_lshl_add_u32 v{dst+n}, s{S_T1}, 10, v{base}", [dst + n], [base])

def avm(pos):
    if pos >= 30: return None
    pat = [int(x) for x in E("AVM", "5").split(",")]
    h = [int(x) for x in E("AVMH", "").split(",") if x]
    if pos < len(h): return h[pos]
    return pat[pos % len(pat)] + (2 if pos > 24 else 0)
tsn = lambda k: min(int(TS * k), int(E("TMAX", "28")))
TS = float(E("TS", "4"))
SEAM = sum([kv_ops(k) for k in range(32, 39 if T7 else 40)], [])
WORD = list(range(20, 32)) + list(range(20))
def amod(name, qh):
    p = Prog()
    p.label(f"{name}_A{qh}")
    sc = Sched(p, budget=int(E("ABUD", "8")), late_extra=int(E("ALATE", "8")))
    sc.group["dma"] = "vm"; sc.pace["vm"] = int(E("APACE", "7"))
    pool = Pool(sc, A_POOL, NPOOL)
    a_mfmas(sc, pool, qh)
    tau = a_taus()
    mt = lambda i: sc.m[max(0, min(i, len(sc.m) - 1))][4]
    def add_bar(pos):
        def bar(p, pos=pos):
            p.comment(f"---- a step {pos}")
            if pos < 32: p.wait_vm(KVSEQ[pos], lgkm0=True, cap=avm(pos))
            else: p.wait_lgkm0()
            p.barrier()
            if pos % 4 == 0 and pos:
                for r in (V_AV0, V_AV1, V_AK): p.vop("v_xor_b32", r, "0x10000", r)
            if PROF == 3 and pos % 2 == 0 and pos < 32: sstamp(p)
        sc.fill("rd", bar, 8, after=[("DMA", pos - 1)] if pos >= (1 if T7 else 2) else None, before=mt(tau[pos]), early=0 if pos else None, tag=("BAR", pos))
        if (0 if T7 else 1) <= pos < 32:
            ops = kv_ops(pos + 7) if pos < 25 else SEAM[tsn(pos - 25):tsn(pos - 24)] or [(lambda p: p.s("s_nop 0"), 4)]
            if pos % 4 == 1 and pos < 25: ops = [(lambda p: p.s(f"s_xor_b32 s{S_M0D}, s{S_M0D}, 0x10000"), 4)] + ops
            aft = ("BAR", pos); bf = mt(tau[pos + 1] - 1)
            fill_dma(sc, ops, aft, bf, tag=("DMA", pos))
            if 24 <= pos < 30:
                for k in (20 + 2 * (pos - 24), 21 + 2 * (pos - 24)):
                    for fn, kind, cost in split_ops([(wload(0, k, S_T2, S_WT2), 8)]):
                        sc.fill("dmp", fn, 8 if kind == "vm" else 4, after=dict(tag=aft, delay=4 + 14 * (k & 1)), solo=(kind == "vm"), before=bf, lead=20)
            if pos == 30:
                NWL = int(E("NWL", "12")); WLS = int(E("WLS", "6"))
                last = ("S", 15, 1, 3, 4 if qh == 1 else 3)
                for k in range(NWL):
                    for fn, kind, cost in split_ops([(wload(0, k, S_T2, S_WT2), 8)]):
                        sc.fill("dmp", fn, 8 if kind == "vm" else 4, after=dict(tag=last, delay=2 + WLS * k), solo=(kind == "vm"), before=mt(sc.idx[last] + 12 + WLS * k), lead=9)
    cur = None
    for (pos, reads, cons, war) in pool.frags:
        if pos != cur:
            cur = pos; add_bar(pos)
        for k, fn in enumerate(reads):
            bf = cons
            if sc.idx[cons] > tau[pos + 1] - BGAP: bf = mt(tau[pos + 1] - BGAP)
            sc.fill("rd", fn, 4, ds=True, after=war if k == 0 else None, before=bf, lead=LEAD if bf is cons else 0)
    add_bar(32)
    def V(fn, after=None, before=None, cost=4, lead=0): sc.fill("va", fn, cost, after=after, before=before, lead=lead)
    EDL = int(E("EDL", "3"))
    for u in range(16):
        ns = [0, 1, 2, 3] + ([4] if (u & 1) == qh else [])
        for kt in range(2):
            for n in ns:
                src = XS(u & 1, n) if kt == 0 else YS(n)
                dst = XS(u & 1, n) + 2 * kt
                for r in range(4):
                    V(lambda p, reg=src + r: p.exp(reg, reg), after=dict(tag=("S", u, kt, 3, n), delay=EDL), cost=8)
                bf = ("L", u, n)
                if kt == 1 and n < 4 and u < 15: bf = ("S", u + 1, 1, 0, n)
                V(lambda p, dst=dst, src=src: p.cvtpk(dst, src, src + 1))
                V(lambda p, dst=dst, src=src: p.cvtpk(dst + 1, src + 2, src + 3), before=bf, lead=2)
    sc.run()
    if qh == 0: p.s(f"s_branch {name}_F")
    return p

def afin(name):
    p = Prog()
    p.label(f"{name}_F")
    stamp(p, 5, S_PH)
    poll_issue(p, V_AX, f"s{S_PF}", 0, V_NV)
    AD, AL, AI, A8 = V_S + 44, V_S + 46, V_S + 48, V_S + 52
    p.v(f"v_lshl_add_u32 v{AD}, s{S_W}, 12, v{V_LIN}", [AD], [V_LIN])
    p.vop("v_add_u32", AD, f"{MISC}", AD)
    p.vop("v_xor_b32", AD + 1, "4096", AD)
    for i in range(4): p.ds_write(AD + 1, Oa(4, 4 + i), 4, i * 1024)
    p.s(f"s_xor_b32 s{S_T0}, s{S_W}, 1")
    p.s(f"s_movk_i32 s{S_T1}, 18432")
    p.s(f"s_mov_b32 s{S_T2}, {IMG(8)}")
    p.s(f"s_cmp_eq_u32 s{S_PH}, 0")
    p.s(f"s_cselect_b32 s{S_T1}, 1024, s{S_T1}")
    p.s(f"s_cselect_b32 s{S_T2}, {XRING}, s{S_T2}")
    p.s(f"s_mul_i32 s{S_T0}, s{S_T0}, s{S_T1}")
    p.s(f"s_add_u32 s{S_T0}, s{S_T0}, s{S_T2}")
    p.vop("v_add_u32", AL + 1, f"s{S_T0}", V_LIN)
    p.ds_write(AL + 1, La(4), 1, 0)
    p.s(f"s_mul_i32 s{S_T0}, s{S_W}, s{S_T1}")
    p.s(f"s_add_u32 s{S_T0}, s{S_T0}, s{S_T2}")
    p.vop("v_add_u32", AL, f"s{S_T0}", V_LIN)
    RL = V_S + 2
    for n in range(5): p.ar(RL + 2 * n, La(n))
    p.s(f"s_mul_i32 s{S_T0}, s{S_P}, 36864")
    p.vop("v_add_u32", A8 + 1, f"s{S_T0}", V_LIN)
    tile_addr(p, A8 + 1, V_T)
    for n in range(4): p.vop("v_add_u32", AI + n, f"{IMG(8)}", V_T + n)
    p.vop("v_subrev_u32", A8, f"{IMG(8)}", AL)
    wleft = list(range(int(E("NWL", "12")), 20))
    def check(n):
        r = RL + 2 * n
        p.add(Ins(f"v_cmp_nge_f32 vcc, v{r}, s{S_LO}", "valu", [r], []))
        p.s(f"s_or_b64 s[{S_BAD}:{S_BAD+1}], s[{S_BAD}:{S_BAD+1}], vcc")
        p.add(Ins(f"v_cmp_nle_f32 vcc, v{r}, s{S_HI}", "valu", [r], []))
        p.s(f"s_or_b64 s[{S_BAD}:{S_BAD+1}], s[{S_BAD}:{S_BAD+1}], vcc")
        p.vop("v_rcp_f32", r + 1, r, kind="trans")
        p.vop("v_rcp_f32", r, r, kind="trans")
    def pkm(d, n): p.pkmul(d, d, RL + 2 * n)
    CHK = V_S + 40
    pend = []
    def flush():
        for d in pend: p.mfma(CHK, A_ONE, d, CHK if d != Oa(0, 0) else None)
        pend.clear()
    def norm(n, t):
        s0 = Oa(n, 2 * t)
        for r in range(0, 8, 2): pkm(s0 + r, n)
        for r in range(4): p.cvtpk(s0 + r, s0 + 2 * r, s0 + 2 * r + 1)
        flush()
        if t & 1:
            p.s(f"s_mov_b64 exec, s[{S_XM}:{S_XM+1}]")
            for tt in (t - 1, t):
                if n < 4: p.ds_write(AI + n, Oa(n, 2 * tt), 4, tt * 9216 + 1024).kind = "dsx"
                else: p.ds_write(AL, Oa(n, 2 * tt), 4, tt * 9216).kind = "dsx"
                if n < 4: p.ds_write(V_T + n, Qf(n, tt, A_QN), 4, tt * 9216 + 1024).kind = "dsx"
                else: p.ds_write(A8, Qf(n, tt, A_QN), 4, tt * 9216).kind = "dsx"
            p.s("s_mov_b64 exec, -1")
        if wleft: wload(0, wleft.pop(0), S_T2, S_WT2)(p)
        pend.append(s0)
    for n in range(4): check(n)
    p.add(Ins("s_waitcnt lgkmcnt(0)", "waitlgkm0"))
    for t in range(4): norm(0, t)
    p.barrier()
    PX = V_S + 16
    for i in range(4): p.ds_read128(PX + 4 * i, AD, i * 1024)
    p.ds_read32(V_S, AL, 0)
    for n in (1, 2):
        for t in range(4): norm(n, t)
    p.vop("v_add_f32", RL + 8, RL + 8, V_S)
    check(4)
    for i in range(4):
        for r in range(4): p.vop("v_add_f32", Oa(4, i) + r, Oa(4, i) + r, PX + 4 * i + r)
    for t in range(2): norm(4, t)
    for t in range(4): norm(3, t)
    flush()
    p.s(f"s_movk_i32 s{S_T2}, 0x207")
    p.s(f"s_add_u32 s{S_PH}, s{S_PH}, 1")
    p.add(Ins(f"v_cmp_class_f32 vcc, v{CHK}, s{S_T2}", "valu", [CHK], []))
    p.s(f"s_or_b64 s[{S_BAD}:{S_BAD+1}], s[{S_BAD}:{S_BAD+1}], vcc")
    stamp(p, 2, S_PH)
    p.s(f"s_cmp_eq_u32 s{S_PH}, 2")
    p.s(f"s_cbranch_scc1 {name}_P")
    q = Prog()
    q_copy(q)
    for n in range(5):
        for t in range(4 if n < 4 else 2):
            for r in range(4): q.aw(Qf(n, t, A_QN) + r, Oa(n, 2 * t) + r)
    sprinkle([(p, 8), (q, 1)], SEAM[tsn(7):], 0.0, float(E("ASH", "1.0")))
    code_prefetch(q, name, 1, f"{name}_end-16384", 2, V_T)
    if int(E("TOUCH2", "0")):
        q.s(f"s_add_u32 s{S_T0}, s{S_RD}, {32768 + 1024}")
        q.raw(f"buffer_load_dword v{V_JUNK}, off, s[{SRD_WS}:{SRD_WS+3}], s{S_T0} sc1")
        q.s(f"s_add_u32 s{S_T0}, s{S_T0}, {PARTB - 40960}")
        q.raw(f"buffer_load_dword v{V_JUNK}, off, s[{SRD_WS}:{SRD_WS+3}], s{S_T0} sc1")
        q.raw(f"buffer_load_dword v{V_JUNK}, off, s[{SRD_WS}:{SRD_WS+3}], s{S_PO} sc1")
        q.raw(f"buffer_load_dword v{V_JUNK}, off, s[{SRD_OUT}:{SRD_OUT+3}], s{S_OUTO} sc1")
    poll_check(q, f"{name}_wpoll", V_AX, f"s{S_PF}", 0, V_NV)
    q.s(f"s_branch {name}_A")
    return p, q

def q_copy(p):
    for r in range(80): p.amov(A_Q + r, A_QN + r)

P_R = ([A_Q + 4 * i for i in range(20)] + [A_X + 4 * i for i in range(10)] + [10, 14],
       [A_QN + 4 * i for i in range(20)] + [A_L + 4 * i for i in range(12)])
def wload(j, i, so=None, sb=None):
    def f(p):
        if i % 2 == 0: p.s(f"s_add_u32 s{so or S_SO}, s{sb or S_WT}, {(i >> 1) * 40960}")
        if "B" not in ABL: p.load4(P_R[j & 1][i], V_LIN, SRD_WS, f"s{so or S_SO}", (i & 1) * 1024, ("WT", j, i), "sc1")
    return f

def slow(name):
    SI, SC, SX, SWq, SKV, SD, SK = 56, 57, 58, 59, 88, 89, 90
    VW, VX, VK, VV_, VD = 28, 36, 37, 38, 39
    MX, NM, LA, QF, SS, FB, AC, RAW, FR = 40, 44, 48, 52, 68, 76, 84, 116, 180
    def ld(p, op, n, d, vo, srd, so, off):
        p.add(Ins(f"{op} {vr(d, n)}, v{vo}, s[{srd}:{srd+3}], s{so} offen offset:{off}", "vml", [vo], R(d, n), tag="sl"))
    p0 = Prog()
    p0.label(f"{name}_slow")
    p0.wait_all()
    M, G = MX, MX + 1
    p0.vop("v_bfe_u32", M, V_LIN, "4", "4")
    p0.vop("v_lshrrev_b32", G, "8", V_LIN)
    p0.vop("v_lshlrev_b32", VW, "16", G)
    p0.vop("v_lshl_add_u32", VW, M, "1", VW)
    for i in range(1, 8): p0.vop("v_add_u32", VW + i, f"{8192 * i}", VW)
    p0.s(f"s_movk_i32 s{S_T0}, 1280")
    p0.vop("v_mul_lo_u32", VX, M, f"s{S_T0}")
    p0.vop("v_lshl_add_u32", VX, G, "4", VX)
    p0.vop("v_lshlrev_b32", VK, "8", M)
    p0.vop("v_lshl_add_u32", VK, G, "3", VK)
    p0.vop("v_lshlrev_b32", VV_, "10", G)
    p0.vop("v_lshl_add_u32", VV_, M, "1", VV_)
    p0.s(f"s_mov_b32 s{SI}, 0")
    p1 = Prog()
    p1.label(f"{name}_sl_it")
    p1.s(f"s_cmp_ge_u32 s{SI}, 5")
    p1.s(f"s_cselect_b32 s{S_T0}, 2, 0")
    p1.s(f"s_cselect_b32 s{S_T1}, 5, 0")
    p1.s(f"s_sub_u32 s{S_T1}, s{SI}, s{S_T1}")
    p1.s(f"s_add_u32 s{S_T0}, s{S_T0}, s{S_P}")
    p1.s(f"s_mul_i32 s{SD}, s{S_T0}, 36864")
    p1.s(f"s_lshl_b32 s{S_T2}, s{S_G}, 2")
    p1.s(f"s_add_u32 s{S_T0}, s{S_T0}, s{S_T2}")
    p1.s(f"s_lshl_b32 s{SWq}, s{S_T0}, 8")
    p1.s(f"s_lshl_b32 s{S_T2}, s{S_B}, 5")
    p1.s(f"s_add_u32 s{S_T0}, s{S_T0}, s{S_T2}")
    p1.s(f"s_lshl_b32 s{SKV}, s{S_T0}, 17")
    p1.s(f"s_lshl_b32 s{S_T0}, s{S_U}, 2")
    p1.s(f"s_add_u32 s{S_T0}, s{S_T0}, s{S_T1}")
    p1.s(f"s_sub_u32 s{S_T2}, s{S_T0}, s{S_G}")
    p1.s(f"s_add_u32 s{S_T2}, s{S_T2}, 7")
    p1.s(f"s_and_b32 s{S_T2}, s{S_T2}, 7")
    p1.s(f"s_add_u32 s{S_T2}, s{S_T2}, 1")
    p1.s(f"s_cmp_eq_u32 s{S_T1}, 4")
    p1.s(f"s_cselect_b32 s{S_T0}, 8, s{S_T0}")
    p1.s(f"s_cselect_b32 s{S_T2}, 0, s{S_T2}")
    p1.s(f"s_lshl_b32 s{S_T2}, s{S_T2}, 10")
    p1.s(f"s_add_u32 s{SD}, s{SD}, s{S_T2}")
    p1.vop("v_add_u32", VD, f"s{SD}", V_LIN)
    p1.s(f"s_mul_i32 s{S_T2}, s{S_B}, 9")
    p1.s(f"s_add_u32 s{S_T0}, s{S_T0}, s{S_T2}")
    p1.s(f"s_mul_i32 s{SX}, s{S_T0}, {16 * 1280}")
    for r in range(32): p1.vop("v_mov_b32", AC + r, "0")
    p1.s(f"s_mov_b32 s{SC}, 0")
    def pack(p):
        for r in range(32): p.vop("v_lshl_or_b32", FR + r, RAW + 2 * r + 1, "16", RAW + 2 * r)
    def loop_end(p, lab, n):
        p.s(f"s_add_u32 s{SC}, s{SC}, 1")
        p.s(f"s_cmp_lt_u32 s{SC}, {n}")
        p.s(f"s_cbranch_scc1 {lab}")
    p2 = Prog()
    p2.label(f"{name}_sl_q")
    ld(p2, "buffer_load_dwordx4", 4, FB, VX, SRD_X, SX, 0)
    for m in range(8):
        for i in range(8): ld(p2, "buffer_load_ushort", 1, RAW + 8 * m + i, VW + i, SRD_W, SWq, 32 * m)
        if m == 3: p2.wait_all()
    p2.wait_all()
    pack(p2)
    for m in range(8): p2.mfma(AC + 4 * m, FR + 4 * m, FB, AC + 4 * m)
    p2.s(f"s_add_u32 s{SX}, s{SX}, 64")
    p2.s(f"s_add_u32 s{SWq}, s{SWq}, {32 * 8192}")
    loop_end(p2, f"{name}_sl_q", 20)
    p3 = Prog()
    for r in range(32): p3.vop("v_mul_f32", AC + r, f"s{S_CS}", AC + r)
    for r in range(16): p3.cvtpk(QF + r, AC + 2 * r, AC + 2 * r + 1)
    for r in range(32): p3.vop("v_mov_b32", AC + r, "0")
    for r in range(4): p3.vop("v_mov_b32", LA + r, "0")
    p3.vop("v_mov_b32", MX, "0xff800000")
    p3.s(f"s_mov_b32 s{SK}, s{SKV}")
    p3.s(f"s_mov_b32 s{SC}, 0")
    def kfrags(p, dst, so):
        for ks in range(4):
            ld(p, "buffer_load_dwordx2", 2, dst + 4 * ks, VK, SRD_K, so, 64 * ks)
            ld(p, "buffer_load_dwordx2", 2, dst + 4 * ks + 2, VK, SRD_K, so, 64 * ks + 32)
    p4 = Prog()
    p4.label(f"{name}_sl_m")
    kfrags(p4, FR, SK)
    p4.wait_all()
    for ks in range(4): p4.mfma(SS, FR + 4 * ks, QF + 4 * ks, SS if ks else None)
    p4.vop("v_max3_f32", MX, MX, SS, SS + 1)
    p4.vop("v_max3_f32", MX, MX, SS + 2, SS + 3)
    p4.s(f"s_add_u32 s{SK}, s{SK}, 4096")
    loop_end(p4, f"{name}_sl_m", 32)
    p5 = Prog()
    for sw in (p5.swap32, p5.swap16):
        p5.vop("v_mov_b32", MX + 1, MX)
        sw(MX, MX + 1)
        p5.vop("v_max_f32", MX, MX, MX + 1)
    for r in range(4): p5.vop("v_sub_f32", NM + r, "0", MX)
    p5.s(f"s_mov_b32 s{SC}, 0")
    p6 = Prog()
    p6.label(f"{name}_sl_a")
    p6.s(f"s_add_u32 s{SK}, s{SKV}, 4096")
    kfrags(p6, FR, SKV)
    kfrags(p6, FR + 16, SK)
    p6.wait_all()
    for m in range(8):
        for i in range(8): ld(p6, "buffer_load_ushort", 1, RAW + 8 * m + i, VV_, SRD_V, SK if i >= 4 else SKV, 32 * m + 256 * (i & 3))
        if m == 3: p6.wait_all()
    for kt in range(2):
        for ks in range(4): p6.mfma(SS + 4 * kt, FR + 16 * kt + 4 * ks, QF + 4 * ks, SS + 4 * kt if ks else NM)
    for r in range(8): p6.exp(SS + r, SS + r)
    for r in range(4): p6.cvtpk(FB + r, SS + 2 * r, SS + 2 * r + 1)
    p6.wait_all()
    pack(p6)
    p6.mfma(LA, A_ONE, FB, LA)
    for m in range(8): p6.mfma(AC + 4 * m, FR + 4 * m, FB, AC + 4 * m)
    p6.s(f"s_add_u32 s{SKV}, s{SKV}, 8192")
    loop_end(p6, f"{name}_sl_a", 16)
    p7 = Prog()
    p7.vop("v_rcp_f32", LA, LA, kind="trans")
    for r in range(32): p7.vop("v_mul_f32", AC + r, AC + r, LA)
    for r in range(16): p7.cvtpk(QF + r, AC + 2 * r, AC + 2 * r + 1)
    for hf in range(2):
        p7.s(f"s_cmp_eq_u32 s{S_U}, {hf}")
        p7.s(f"s_cselect_b32 s{S_T0}, 0, s{S_T1}")
        p7.s(f"s_cmp_eq_u32 s{S_T0}, 4")
        p7.s(f"s_cbranch_scc1 {name}_sl_s{hf}")
        for t in (2 * hf, 2 * hf + 1): p7.ds_write(VD, QF + 4 * t, 4, t * 9216)
        p7.label(f"{name}_sl_s{hf}")
    p7.wait_all()
    p7.s(f"s_add_u32 s{SI}, s{SI}, 1")
    p7.s(f"s_cmp_lt_u32 s{SI}, 10")
    p7.s(f"s_cbranch_scc1 {name}_sl_it")
    p7.s(f"s_branch {name}_P2")
    body = [p1, p2, p2, p3, p4, p4, p5, p6, p6, p7]
    return [p0, p1, p2, p3, p4, p5, p6, p7], [p0] + body + body

S_ST = 62
S_J, S_JO, S_J8, S_JO8 = 4, 5, 6, 7
S_PC, S_FO, S_PO, S_JL = 70, 71, 72, 73
def psetup(p):
    p.s(f"s_mul_i32 s{S_RD}, s{S_B}, {PARTB}")
    p.s(f"s_lshl_b32 s{S_T1}, s{S_W}, 11")
    p.s(f"s_add_u32 s{S_RD}, s{S_RD}, s{S_T1}")
    p.s(f"s_add_u32 s{S_RD}, s{S_RD}, {PART}")
    p.s(f"s_lshr_b32 s{S_T0}, s{S_G}, 2")
    p.s(f"s_mul_i32 s{S_T0}, s{S_T0}, {PARTH}")
    p.s(f"s_add_u32 s{S_T0}, s{S_T0}, s{S_RD}")
    p.s(f"s_and_b32 s{S_T1}, s{S_G}, 3")
    p.s(f"s_mul_i32 s{S_ST}, s{S_T1}, 40960")
    p.s(f"s_add_u32 s{S_ST}, s{S_ST}, s{S_T0}")
    p.s(f"s_add_u32 s{S_ST}, s{S_ST}, 32768")
    p.s(f"s_lshl_b32 s{S_J}, s{S_T1}, 13")
    p.s(f"s_add_u32 s{S_J}, s{S_J}, s{S_T0}")
    for i in range(1, 8):
        p.s(f"s_add_u32 s{S_T0}, s{S_G}, {i}")
        p.s(f"s_bfe_u32 s{S_T1}, s{S_T0}, 0x10002")
        p.s(f"s_mul_i32 s{S_T1}, s{S_T1}, {PARTH}")
        p.s(f"s_and_b32 s{S_T0}, s{S_T0}, 3")
        p.s(f"s_lshl_b32 s{S_T0}, s{S_T0}, 13")
        p.s(f"s_add_u32 s{S_T0}, s{S_T0}, s{S_T1}")
        p.s(f"s_add_u32 s{S_T0}, s{S_T0}, s{S_RD}")
        p.s(f"s_add_u32 s{S_ST+i}, s{S_T0}, {((i - 1) >> 1) * 40960 + ((i - 1) & 1) * 1024}")
    p.s(f"s_lshl_b32 s{S_PO}, s{S_B}, 2")
    p.s(f"s_add_u32 s{S_PO}, s{S_PO}, s{S_W}")
    p.s(f"s_lshl_b32 s{S_PO}, s{S_PO}, 9")
    p.s(f"s_add_u32 s{S_PO}, s{S_PO}, {PFLG}")
    p.s(f"s_lshl_b32 s{S_FO}, s{S_G}, 3")
    p.s(f"s_add_u32 s{S_FO}, s{S_FO}, s{S_PO}")
    p.s(f"s_mul_i32 s{S_OUTO}, s{S_B}, {144 * 1280}")
    p.s(f"s_mul_i32 s{S_T1}, s{S_W}, 320")
    p.s(f"s_add_u32 s{S_OUTO}, s{S_OUTO}, s{S_T1}")
    p.s(f"s_mul_i32 s{S_JO}, s{S_G}, {16 * 1280}")
    p.s(f"s_add_u32 s{S_JO}, s{S_JO}, s{S_OUTO}")
    p.s(f"s_sub_u32 s{S_JO}, s{S_JO}, 64")
    p.s(f"s_mul_i32 s{S_T1}, s{S_G}, {4 * 40960}")
    p.s(f"s_add_u32 s{S_J8}, s{S_RD}, s{S_T1}")
    p.s(f"s_add_u32 s{S_J8}, s{S_J8}, 32768")
    p.s(f"s_lshl_b32 s{S_T1}, s{S_G}, 6")
    p.s(f"s_add_u32 s{S_JO8}, s{S_OUTO}, s{S_T1}")
    p.s(f"s_add_u32 s{S_JO8}, s{S_JO8}, {128 * 1280}")
    p.s(f"s_cmp_ge_u32 s{S_G}, 5")
    p.s(f"s_cselect_b32 s{S_J8}, {OOB:#x}, s{S_J8}")
    p.s(f"s_cselect_b32 s{S_JO8}, {OOB:#x}, s{S_JO8}")
    p.s(f"s_mov_b32 s{S_PC}, 0")

def pmod(name):
    p = Prog()
    p.label(f"{name}_P")
    if "F" in ABL: p.s(f"s_mov_b32 s{S_BAD}, 1")
    p.s(f"s_cmp_lg_u64 s[{S_BAD}:{S_BAD+1}], 0")
    p.s(f"s_cbranch_scc1 {name}_slow")
    p.label(f"{name}_P2")
    AO = (V_LIN, 2, 3)
    V_FA, V_OA = 4, 5
    PT, PT2 = 6, 8
    V_SA = 1
    SEL = 18
    POOL = [28 + 4 * k for k in range(16)]
    ACC = 92
    OWN = 124
    A8 = 164
    JB = (172, 204)
    CT = 244
    p.vop("v_add_u32", AO[1], "49152", V_LIN)
    p.vop("v_add_u32", AO[2], "98304", V_LIN)
    p.vop("v_mov_b32", V_SA, V_LIN)
    p.wait_all()
    p.barrier()
    stamp(p, 16)
    NL = int(E("PLEAD", "8"))
    def ooff(i, kq): return IMG(kq) + i * 1024
    for f in range(NL): p.ds_read128(POOL[f], AO[ooff(0, f) // 49152], ooff(0, f) % 49152)
    p.vop("v_lshrrev_b32", V_FA, "1", V_LIN)
    p.vop("v_and_b32", V_FA, "0x38", V_FA)
    p.vop("v_bfe_u32", CT, V_LIN, "4", "4")
    p.s(f"s_movk_i32 s{S_T0}, 1280")
    p.vop("v_mul_lo_u32", V_OA, CT, f"s{S_T0}")
    p.vop("v_lshrrev_b32", CT + 1, "8", V_LIN)
    p.vop("v_lshl_add_u32", V_OA, CT + 1, "4", V_OA)
    p.vop("v_mov_b32", PT2, f"s{S_NON}")
    p.vop("v_mov_b32", PT2 + 1, f"s{S_NON+1}")
    p.vop("v_and_b32", CT + 2, "1", CT)
    p.vop("v_lshlrev_b32", CT + 2, "4", CT + 2)
    p.s(f"s_movk_i32 s{S_T0}, 0x3f80")
    p.vop("v_lshlrev_b32", CT + 2, CT + 2, f"s{S_T0}")
    p.vop("v_lshrrev_b32", CT, "1", CT)
    p.vop("v_lshlrev_b32", CT + 1, "1", CT + 1)
    p.vop("v_sub_u32", CT, CT, CT + 1)
    for r in range(2):
        p.add(Ins(f"v_cmp_eq_u32 vcc, {r}, v{CT}", "valu", [CT], []))
        p.vop("v_mov_b32", SEL + r, "0")
        p.vop("v_mov_b32", SEL + 4 + r, "0")
        p.add(Ins(f"v_cndmask_b32 v{SEL+2+r}, 0, v{CT+2}, vcc", "valu", [CT + 2], [SEL + 2 + r]))
    def job_loads(p, sbase, offs, buf):
        for g, off in enumerate(offs):
            p.s(f"s_add_u32 s{S_T0}, s{sbase}, {off}")
            p.load4(buf + 4 * g, V_LIN, SRD_WS, f"s{S_T0}", 0, "job", "sc1")
    def job_reduce(p, sout, off, bufs, a, init):
        for g, bf in enumerate(bufs):
            for e in range(2): p.mfma(a + 4 * e, SEL + 2 - 2 * e, bf, None if (init and g == 0) else a + 4 * e)
        return lambda: ([p.cvtpk(a + r, a + 2 * r, a + 2 * r + 1) for r in range(4)],
                        p.store(a, 4, V_OA, SRD_OUT, f"s{sout}", off, tag="out", flags=E("OFL", "")))
    def flag(p, off, tag):
        p.wait_vm(tag)
        p.s("s_mov_b64 exec, 1")
        p.store(PT2, 2, V_LIN, SRD_WS, f"s{S_FO}", off, tag="flag", flags="sc1")
        p.s("s_mov_b64 exec, -1")
    FPOS = int(E("FPOS", "180")); WSP = float(E("WSP", "6")); PLAT = int(E("PLAT", "70")); CPOS = int(E("CPOS", "206")); WST = int(E("WST", "4"))
    jo = lambda mp: [(4 * mp + (g >> 1)) * 40960 + (g & 1) * 1024 for g in range(7)]
    def one_pass(par):
        q = Prog()
        q.label(f"{name}_pass{par}")
        if PROF == 4: stamp(q, 32, S_PC)
        q.wait_vm(("WT", par, 15))
        sc = Sched(q, budget=int(E("PBUD", "8")), late_extra=8)
        for qn in ("wl", "st", "jl"): sc.group[qn] = "vm"
        sc.pace["vm"] = int(E("PPACE", "4"))
        pool = Pool(sc, POOL, 16)
        acc = lambda i: OWN if i == 8 else ACC + 8 * (i % 4)
        for i in range(9):
            a = acc(i)
            for kq in range(16):
                cons = [(a + 4 * e, P_R[par][2 * kq + e], a + 4 * e if kq else None, ("P", i, kq, e)) for e in range(2)]
                pool.frag(0, lambda r: [R128(r, AO[ooff(i, kq) // 49152], ooff(i, kq) % 49152)], cons, as_b=True)
        mt = lambda i: sc.m[max(0, min(i, len(sc.m) - 1))][4]
        for f in range(NL, 144 + NL):
            (_, reads, cons, war) = pool.frags[f % 144]
            if f >= 144: war = pool.last[f % 16]
            if "R" not in ABL: sc.fill("rd", reads[0], 4, ds=True, after=war, before=mt(2 * (f - NL) + 1), early=2)
        for i in (16, 22, 28): sc.fill("ww", lambda p, i=i: p.wait_vm(("WT", par, min(31, i + 5))), 4, before=mt(i), early=0)
        def su(p):
            p.s(f"s_add_u32 s{S_WT}, s{S_WT}, 2048")
            p.s(f"s_cmp_eq_u32 s{S_PC}, 4")
            p.s(f"s_cselect_b32 s{S_WT}, {OOB:#x}, s{S_WT}")
        fill_dma(sc, [(su, 0)], None, mt(WST + 2), queue="wl", lead=6)
        for i in range(32):
            fill_dma(sc, [(wload(1 - par, i), 0)], mt(WST + int(WSP * i)), mt(WST + 12 + int(WSP * i)), queue="wl", lead=10)
        sc.fill("jl", lambda p: poll_issue(p, V_FA, f"s{S_PO}", 0, PT), 8, before=mt(CPOS - PLAT), early=4, solo=SOLO)
        for r in range(23, -1, -1): sc.fill("jr", lambda p, r=r: p.vop("v_mov_b32", OWN + 8 + r, OWN + r), 4, after=mt(40), before=mt(CPOS - 4), lead=4 * r)
        def cut(p):
            p.wait_vm("poll")
            p.s(f"s_cmp_lt_u32 s{S_PC}, 2")
            p.s(f"s_cbranch_scc1 {name}_nojob{par}")
            p.label("@CUT")
        sc.fill("jr", cut, 8, before=mt(CPOS), early=0)
        sc.fill("jr", lambda p: p.s(f"s_add_u32 s{S_PO}, s{S_PO}, 64"), 4)
        for i in range(8):
            a = acc(i)
            dl = mt(32 * i + 32 + 24)
            sc.fill("va", lambda p, a=a: p.cvtpk(a, a, a + 1), 4, after=dict(tag=("P", i, 15, 1), delay=4), before=dl, lead=10)
            sc.fill("va", lambda p, a=a: p.cvtpk(a + 1, a + 2, a + 3), 4)
            sc.fill("va", lambda p, a=a: p.cvtpk(a + 2, a + 4, a + 5), 4)
            sc.fill("va", lambda p, a=a: p.cvtpk(a + 3, a + 6, a + 7), 4, tag=("CV", i), before=dl, lead=10)
            def st(p, a=a, i=i):
                if "O" not in ABL: p.store(a, 4, V_SA, SRD_WS, f"s{S_ST+i}", 0, tag=("ps", i), flags=E("SFL", "sc1"))
            sc.fill("st", st, 8, after=("CV", i), before=dl, lead=20, tag=("ST", i), solo=SOLO)
        sc.fill("va", lambda p: p.vop("v_add_u32", V_SA, f"{4 * 40960}", V_SA), 4, after=("ST", 7))
        sc.fill("fl", lambda p: flag(p, 64, ("ps", 0)), 16, before=mt(FPOS), early=0)
        sc.fill("fl", lambda p: p.s(f"s_add_u32 s{S_FO}, s{S_FO}, 64"), 4)
        sc.fill("fl", lambda p: p.s(f"s_add_u32 s{S_PC}, s{S_PC}, 1"), 4, after=mt(270))
        sc.run()
        if par == 0:
            q.s(f"s_cmp_eq_u32 s{S_PC}, 5")
            q.s(f"s_cbranch_scc1 {name}_ptail")
        else: q.s(f"s_branch {name}_pass0")
        k = next(i for i, x in enumerate(q.ins) if x.text.startswith("@CUT"))
        q2 = Prog(); q2.label(f"{name}_nojob{par}"); q2.ins += q.ins[k + 1:]; q.ins = q.ins[:k]
        blk = Prog()
        poll_check(blk, f"{name}_pp{par}", V_FA, f"s{S_PO}", 0, PT)
        a = OWN + 24
        for g in range(7):
            for e in range(2): blk.mfma(a + 4 * e, SEL + 2 - 2 * e, JB[0] + 4 * g, a + 4 * e)
            job_loads(blk, S_J, [jo(0)[g]], JB[0] + 4 * g)
        blk.s(f"s_add_u32 s{S_J}, s{S_J}, {4 * 40960}")
        blk.s(f"s_cmp_eq_u32 s{S_PC}, 2")
        blk.s(f"s_cselect_b32 s{S_T0}, {OOB:#x}, s{S_JO}")
        blk.s(f"s_add_u32 s{S_JO}, s{S_JO}, 64")
        blk.wait_lgkm0()
        for r in range(4): blk.cvtpk(a + r, a + 2 * r, a + 2 * r + 1)
        blk.store(a, 4, V_OA, SRD_OUT, f"s{S_T0}", 0, tag="out", flags=E("OFL", ""))
        return q, blk, q2
    p.wait_lgkm0()
    pre = p
    pe, po = one_pass(0), one_pass(1)
    p = Prog()
    p.label(f"{name}_ptail")
    stamp(p, 17)
    poll_issue(p, V_FA, f"s{S_PO}", 0, PT)
    f2 = job_reduce(p, S_JO, 0, [JB[0] + 4 * g for g in range(7)], OWN + 16, False)
    flag(p, 64, ("ps", 7))
    poll_check(p, f"{name}_pp3", V_FA, f"s{S_PO}", 0, PT, 0)
    job_loads(p, S_J, jo(0), JB[0])
    job_loads(p, S_J8, [(g >> 2) * PARTH + (g & 3) * 40960 for g in range(8)], JB[1])
    poll_issue(p, V_FA, f"s{S_PO}", 64, PT)
    f2()
    stamp(p, 18)
    stamp(p, 19)
    poll_check(p, f"{name}_pp4", V_FA, f"s{S_PO}", 64, PT, 0)
    stamp(p, 20)
    job_loads(p, S_J, jo(1), POOL[8])
    f3 = job_reduce(p, S_JO, 64, [JB[0] + 4 * g for g in range(7)], OWN + 8, False)
    f8 = job_reduce(p, S_JO8, 0, [JB[1] + 4 * g for g in range(8)], A8, True)
    f3(); f8()
    job_reduce(p, S_JO, 128, POOL[8:15], OWN, False)()
    if PROF:
        p.wait_all()
        stamp(p, 21)
        p.s(f"s_lshl_b32 s{S_T0}, s2, 2")
        p.s(f"s_add_u32 s{S_T0}, s{S_T0}, s{S_W}")
        p.s(f"s_lshl_b32 s{S_T0}, s{S_T0}, 8")
        p.s(f"s_add_u32 s{S_T0}, s{S_T0}, {PROFOFF}")
        p.vop("v_lshrrev_b32", PT, "2", V_LIN)
        p.store(0, 1, PT, SRD_WS, f"s{S_T0}", 0)
        p.s(f"s_add_u32 s{S_T0}, s{S_T0}, 0x40000")
        p.store(255, 1, PT, SRD_WS, f"s{S_T0}", 0)
        if PROF == 5:
            p.s(f"s_cmp_lg_u32 s2, 77")
            p.s(f"s_cbranch_scc1 {name}_end")
            p.s(f"s_cmp_lg_u32 s{S_W}, 0")
            p.s(f"s_cbranch_scc1 {name}_end")
            p.raw("v_readlane_b32 s56, v0, 0")
            for k, ix in enumerate([23, 1, 2, 5, 6, 9, 10, 16, 17, 18, 20, 21]):
                p.raw(f"v_readlane_b32 s57, v0, {ix}")
                p.raw("s_nop 3")
                p.s("s_sub_u32 s57, s57, s56")
                p.raw(f"v_mov_b32 v30, s57")
                p.raw(f"buffer_store_dword v30, off, s[{SRD_DBG}:{SRD_DBG+3}], 0 offset:{8 + 4 * k}")
                p.raw("s_nop 1")
    p.label(f"{name}_end")
    p.raw("s_endpgm")
    return [pre, *pe, *po, p], [pre, pe[0], pe[2], po[0], po[2], *pe, *po, *pe, p]

def gen(name):
    pro = prologue(name)
    Q = qmod(name)
    AE = aentry(name)
    A = [amod(name, qh) for qh in range(2)]
    F, FB = afin(name)
    P, PS = pmod(name)
    SL, SLS = slow(name)
    segs = [pro, Q, AE, A[0], A[1], F, FB] + P + SL
    sims = [[(x, 1) for x in [pro, Q, AE, A[qh], F, FB, AE, A[qh], F] + PS] for qh in range(2)]
    sims.append([(x, 1) for x in [F] + SLS + PS])
    lines, stats = finalize([(x, 1) for x in segs], sims=sims)
    if int(E("ROLL", "1")):
        lines = roll(lines, "; ---- a step", 4, S_LOOP, f"{name}_aloop")
        lines = roll(lines, "; ---- q step", 4, S_LOOP, f"{name}_qloop")
    lines += [f".if {name}_end-{name}_nononce < {int(E('CPN0', '6')) * 8192}", '.error "code prefetch range"', ".endif"]
    return [f".globl {name}", ".p2align 8", f".type {name},@function", f"{name}:"] + lines, stats
```

```python
from asmlib import *
import math, struct, os
E = os.environ.get
PROF = int(E("PROF", "0"))
ABL = E("ABL", "")
def f2u(f): return struct.unpack("<I", struct.pack("<f", f))[0]
CSCALE = math.log2(math.e) / math.sqrt(128.0)
NWG = 256
LDS_BYTES = 163840
XSL = 18432
XRING = 131072
XALT = 65536 - XSL
WRING = 65536
MISC = 147456
def IMG(kq): return kq * 9216
DROP = 0x30000
OOB = 0x40000000
WOT = 0
PART = 128 * 40960
PARTH = 20 * 40960
PARTB = 2 * PARTH
WFLG = PART + 32 * PARTB
PFLG = WFLG + 8192
WSBYTES = PFLG + 65536
PROFOFF = 0x4000000

SRD_X, SRD_K, SRD_V, SRD_W, SRD_WS, SRD_WO, SRD_OUT, SRD_DBG = 8, 12, 16, 20, 24, 28, 32, 36
S_W = 3
S_T0, S_T1, S_B, S_G, S_P, S_T2 = 40, 41, 42, 43, 44, 45
S_CS, S_NON, S_SPIN, S_PH, S_GRP, S_SO = 46, 48, 50, 51, 52, 53
S_BAD = 54
S_KOFF, S_VOFF, S_KB, S_KVN, S_M0KV, S_WFP = 56, 57, 58, 59, 60, 61
S_WOFF, S_WB, S_XOFF, S_XB = 62, 63, 65, 66
S_M0W, S_M0X8 = 75, 72
S_WT, S_PT, S_PF, S_RD, S_OUTO = 76, 77, 78, 79, 80
S_LO, S_HI = 81, 82
S_TM = 84
S_VB = 88
S_M0KVP, S_KVP, S_M0D, S_U = 89, 91, 94, 95
S_LOOP = 92
S_WT2 = 98
S_XM = 96

V_DK, V_DV, V_DW, V_DX = 1, 5, 9, 13
V_AK, V_AV0, V_AV1, V_AX, V_AX8, V_LIN = 18, 19, 20, 21, 22, 24
V_E0, V_E1, V_E2 = 25, 26, 27
V_S = 28
V_AW = V_S + 40
V_O = 84
V_T = 244
V_NV = 252
V_JUNK = 254
A_Q, A_QN, A_L, A_ONE, A_POOL, A_X = 256, 336, 416, 436, 440, 472
A_QP = 480
NPOOL = 8
def Qf(n, ks, base=A_Q): return base + (n * 4 + ks) * 4
def Oa(n, m): return V_O + (n * 8 + m) * 4
def XS(par, n): return V_S + (par * 4 + n) * 4 if n < 4 else V_S + 48
def YS(n): return V_S + 32 + n * 4 if n < 4 else V_S + 52
def La(n): return A_L + 4 * n
def Xf(st, t): return V_S + (st * 5 + t) * 4
def QA(r, n, m): return (A_QN if r else V_O) + (n * 8 + m) * 4

def stamp(p, idx, dyn=None):
    if not PROF: return
    p.s(f"s_memrealtime s[{S_TM}:{S_TM+1}]")
    p.s(f"s_memtime s[{S_TM+2}:{S_TM+3}]")
    p.wait_lgkm0()
    if dyn is None:
        p.raw(f"v_writelane_b32 v0, s{S_TM}, {idx}")
        p.raw(f"v_writelane_b32 v255, s{S_TM+2}, {idx}")
    else:
        p.s("s_mov_b32 s99, m0")
        p.s(f"s_lshl_b32 m0, s{dyn}, 2")
        p.s(f"s_add_u32 m0, m0, {idx}")
        p.raw(f"v_writelane_b32 v0, s{S_TM}, m0")
        p.raw(f"v_writelane_b32 v255, s{S_TM+2}, m0")
        p.s("s_mov_b32 m0, s99")

KVSEQ = [("K", 0)]
for u in range(15): KVSEQ += [("K", u + 1), ("V", u)]
KVSEQ += [("V", 15)]
KVPOS = {t: i for i, t in enumerate(KVSEQ)}
def kv_ops(pos):
    pre = pos >= 32; pos %= 32
    kind, u = KVSEQ[pos]
    srd, vo, so, sb = (SRD_K, V_DK, S_KOFF, S_KB) if kind == "K" else (SRD_V, V_DV, S_VOFF, S_VB)
    ops = []
    for j in range(4):
        def f(p, j=j):
            if j == 0:
                p.s(f"s_add_u32 m0, s{S_M0KVP + (pos >> 2) if pre else S_M0D}, {(pos % 4) * 16384}")
                p.s(f"s_add_u32 s{S_SO}, s{S_KVP if pre else sb}, s{so}")
            if "D" not in ABL: p.dmao(vo + j, srd, f"s{S_SO}", j * 1024, (kind, u), "nt")
            if j == 1: p.s(f"s_add_u32 s{so}, s{so}, 8192")
            if j == 2: p.s(f"s_and_b32 s{so}, s{so}, 0x1ffff")
        ops.append((f, 12 if j == 0 else 8 if j < 3 else 4))
    return ops
def w_ops(h):
    ops = []
    for j in range(4):
        def f(p, j=j):
            if j == 0:
                p.s(f"s_add_u32 m0, s{S_M0W}, {(h % 4) * 16384}")
                p.s(f"s_add_u32 s{S_SO}, s{S_WB + (h & 1)}, s{S_WOFF}")
            if "W" not in ABL: p.dmao(V_DW + j, SRD_W, f"s{S_SO}", j * 1024, ("W", h))
            if j == 1 and h % 2 == 1: p.s(f"s_add_u32 s{S_WOFF}, s{S_WOFF}, {32 * 8192}")
            if j == 2 and h % 4 == 3:
                p.s(f"s_cmp_ge_u32 s{S_WOFF}, {640 * 8192}")
                p.s(f"s_cselect_b32 s{S_WOFF}, 0, s{S_WOFF}")
        ops.append((f, 12 if j == 0 or (j == 2 and h % 4 == 3) else 8 if j == 1 and h % 2 else 4))
    return ops
def x_ops(i):
    ops = []
    sb = XRING if i else XALT
    for j in range(5):
        def f(p, j=j):
            if j == 0:
                p.s(f"s_add_u32 m0, s{S_M0KV}, {sb}")
                p.s(f"s_add_u32 s{S_SO}, s{S_XB}, s{S_XOFF}")
            if "X" not in ABL: p.dmao(V_DX + j, SRD_X, f"s{S_SO}", (j & 3) * 1024, ("X", i))
            if j == 1: p.s(f"s_add_u32 s{S_XOFF}, s{S_XOFF}, 128")
            if j == 2:
                p.s(f"s_cmp_ge_u32 s{S_XOFF}, 1280")
                p.s(f"s_cselect_b32 s{S_XOFF}, 0, s{S_XOFF}")
            if j == 3:
                p.s(f"s_add_u32 m0, s{S_M0X8}, {sb}")
                p.nop(0)
        ops.append((f, 12 if j in (0, 2, 3) else 8 if j == 1 else 4))
    return ops

def split_ops(ops):
    q = Prog()
    for f, _ in ops: f(q)
    out = []; i = 0; L = [x for x in q.ins if x.kind != "nop"]
    while i < len(L):
        grp = [L[i]]
        if L[i].text.startswith("s_cmp"): grp.append(L[i + 1])
        i += len(grp)
        out.append((lambda p, grp=grp: [p.add(x) for x in grp], "vm" if grp[0].kind in ("vm", "vml", "vms") else "s", 4 * len(grp)))
    return out
def fill_dma(sc, ops, after, before, tag=None, queue="dma", lead=80):
    so = split_ops(ops)
    for k, (fn, kind, cost) in enumerate(so):
        sc.fill(queue, fn, 8 if kind == "vm" else cost, after=after, before=before, lead=lead, solo=(kind == "vm" and SOLO), paced=(kind == "vm"),
                tag=tag if k == len(so) - 1 else None)
SOLO = int(E("SOLO", "1"))
T7 = int(E("T7", "0"))
def sprinkle(progs, ops, lo=0.0, hi=1.0):
    pts = []
    for p, st in progs:
        masked = False
        for i in range(st, len(p.ins)):
            x = p.ins[i]
            if x.text.startswith("s_mov_b64 exec"): masked = not x.text.endswith("-1")
            if x.kind == "label" and not x.text.startswith(";"): break
            if x.kind in ("valu", "perm") and not masked and p.ins[i - 1].kind in ("valu", "perm") and "v_cmp" not in x.text and "v_cmp" not in p.ins[i - 1].text: pts.append((p, i))
    a, b = int(lo * len(pts)), int(hi * len(pts))
    sel = [pts[a + (k * (b - a)) // len(ops)] for k in range(len(ops))]
    for (p, i), (fn, _) in reversed(list(zip(sel, ops))):
        q = Prog(); fn(q)
        p.ins[i:i] = q.ins

CPF = int(E("CPF", "1"))
def code_prefetch(p, name, k, target, nchunk, t):
    if not CPF: return
    p.s(f"s_getpc_b64 s[{S_TM}:{S_TM+1}]")
    p.label(f"{name}_pc{k}")
    p.s(f"s_sub_u32 s{S_TM}, s{S_TM}, {name}_pc{k}-{name}")
    p.s(f"s_subb_u32 s{S_TM+1}, s{S_TM+1}, 0")
    p.s(f"s_add_u32 s{S_TM}, s{S_TM}, {target}-{name}")
    p.s(f"s_addc_u32 s{S_TM+1}, s{S_TM+1}, 0")
    p.s(f"s_lshr_b32 s{S_T0}, s2, 1")
    p.s(f"s_and_b32 s{S_T0}, s{S_T0}, 0x7c")
    p.s(f"s_add_u32 s{S_T0}, s{S_T0}, s{S_W}")
    p.s(f"s_cmp_ge_u32 s{S_T0}, {nchunk}")
    p.s(f"s_cbranch_scc1 {name}_pf{k}")
    p.s(f"s_lshl_b32 s{S_T0}, s{S_T0}, 13")
    p.s(f"s_add_u32 s{S_TM}, s{S_TM}, s{S_T0}")
    p.s(f"s_addc_u32 s{S_TM+1}, s{S_TM+1}, 0")
    p.raw(f"v_lshlrev_b32 v{t}, 3, v{V_LIN}")
    p.raw(f"v_mov_b32 v{t+1}, s{S_TM+1}")
    p.raw(f"v_add_co_u32 v{t}, vcc, s{S_TM}, v{t}")
    p.raw("s_nop 1")
    p.raw(f"v_addc_co_u32 v{t+1}, vcc, 0, v{t+1}, vcc")
    p.raw(f"global_load_dword v{V_JUNK}, v[{t}:{t+1}], off")
    p.label(f"{name}_pf{k}")

def get_nonce(p, name, t):
    p.add(Ins(f"v_readfirstlane_b32 s{S_NON}, v{V_NV}", "rfl", [V_NV], []))
    p.add(Ins(f"v_readfirstlane_b32 s{S_NON+1}, v{V_NV+1}", "rfl", [V_NV + 1], []))
    p.s(f"s_cmp_lt_i32 s{S_NON+1}, 0")
    p.s(f"s_cbranch_scc1 {name}_x")
    p.vop("v_mov_b32", t + 2, "0")
    p.label(f"{name}")
    p.raw(f"buffer_load_dwordx2 v[{t}:{t+1}], v{t+2}, s[{SRD_DBG}:{SRD_DBG+3}], 0 offen sc1")
    p.raw("s_waitcnt vmcnt(0)")
    p.raw(f"v_readfirstlane_b32 s{S_NON}, v{t}")
    p.raw(f"v_readfirstlane_b32 s{S_NON+1}, v{t+1}")
    p.s(f"s_sub_u32 s{S_SPIN}, s{S_SPIN}, 1")
    p.s(f"s_cbranch_scc1 {name}_x")
    p.s(f"s_cmp_lt_i32 s{S_NON+1}, 0")
    p.s(f"s_cbranch_scc0 {name}")
    p.label(f"{name}_x")
    p.nop(1)

def publish(p, soff, off, t):
    p.vop("v_mov_b32", t, f"s{S_NON}")
    p.vop("v_mov_b32", t + 1, f"s{S_NON+1}")
    p.s("s_mov_b64 exec, 1")
    p.store(t, 2, V_LIN, SRD_WS, soff, off, tag="flag", flags="sc1")
    p.s("s_mov_b64 exec, -1")

def poll_issue(p, vaddr, soff, off, t):
    p.add(Ins(f"buffer_load_dwordx2 v[{t}:{t+1}], v{vaddr}, s[{SRD_WS}:{SRD_WS+3}], {soff} offen offset:{off} sc1", "vml", [vaddr], [t, t + 1], tag="poll"))
def poll_check(p, name, vaddr, soff, off, t, slp=2):
    p.label(f"{name}")
    p.add(Ins(f"v_cmp_ne_u32 vcc, s{S_NON}, v{t}", "valu", [t], []))
    p.add(Ins(f"v_cmp_ne_u32 s[{S_TM+2}:{S_TM+3}], s{S_NON+1}, v{t+1}", "valu", [t + 1], []))
    p.s(f"s_or_b64 vcc, vcc, s[{S_TM+2}:{S_TM+3}]")
    p.s(f"s_cbranch_scc0 {name}_ok")
    p.s(f"s_sub_u32 s{S_SPIN}, s{S_SPIN}, 1")
    p.s(f"s_cbranch_scc1 {name}_ok")
    if slp: p.s(f"s_sleep {slp}")
    p.raw(f"buffer_load_dwordx2 v[{t}:{t+1}], v{vaddr}, s[{SRD_WS}:{SRD_WS+3}], {soff} offen offset:{off} sc1")
    p.raw("s_waitcnt vmcnt(0)")
    p.s(f"s_branch {name}")
    p.label(f"{name}_ok")

def prologue(name):
    p = Prog()
    p.s(f"s_cmp_ge_u32 s2, {NWG}")
    p.s(f"s_cbranch_scc1 {name}_end")
    p.s("s_load_dwordx8 s[84:91], s[0:1], 0")
    p.s("s_load_dwordx8 s[92:99], s[0:1], 32")
    T = V_O
    W, L, a, b, c, d, U, P, VV, R8, PI, M, G, cv = range(T, T + 14)
    p.vop("v_lshrrev_b32", W, "6", 0)
    p.vop("v_and_b32", L, "63", 0)
    p.add(Ins(f"v_readfirstlane_b32 s{S_W}, v{W}", "rfl", [W], []))
    p.vop("v_and_b32", U, "1", W)
    p.vop("v_lshrrev_b32", P, "1", W)
    p.vop("v_lshrrev_b32", VV, "5", L)
    p.vop("v_bfe_u32", R8, L, "2", "3")
    p.vop("v_and_b32", PI, "3", L)
    p.s(f"s_movk_i32 s{S_T0}, 1280")
    p.vop("v_mul_lo_u32", a, R8, f"s{S_T0}")
    p.vop("v_lshl_add_u32", a, VV, "6", a)
    p.vop("v_xor_b32", c, "3", PI)
    p.vop("v_lshl_add_u32", V_DX, PI, "4", a)
    p.vop("v_lshl_add_u32", b, c, "4", a)
    p.vop("v_add_u32", V_DX + 1, f"{9216}", b)
    p.vop("v_add_u32", V_DX + 2, f"{2 * 9216}", V_DX)
    p.vop("v_add_u32", V_DX + 3, f"{3 * 9216}", b)
    p.vop("v_lshrrev_b32", d, "2", R8)
    p.vop("v_lshlrev_b32", cv, "1", d)
    p.vop("v_xor_b32", cv, cv, PI)
    p.vop("v_and_b32", b, "3", R8)
    p.vop("v_lshl_add_u32", b, d, "3", b)
    p.vop("v_lshlrev_b32", d, "7", U)
    p.vop("v_lshl_add_u32", d, VV, "6", d)
    p.vop("v_lshl_add_u32", b, b, "13", d)
    p.vop("v_lshl_add_u32", V_DW, cv, "4", b)
    for j in range(1, 4): p.vop("v_add_u32", V_DW + j, f"{(16 * (j & 1) + 4 * (j >> 1)) * 8192 - 1024 * j}", V_DW)
    p.vop("v_mul_u32_u24", b, "3", P)
    p.vop("v_xor_b32", b, b, PI)
    p.vop("v_lshl_add_u32", b, b, "4", a)
    p.vop("v_lshlrev_b32", a, "2", W)
    p.vop("v_sub_u32", a, P, a)
    p.vop("v_add_u32", a, "16", a)
    p.s(f"s_movk_i32 s{S_T1}, {8 * 1280}")
    p.vop("v_mul_lo_u32", a, a, f"s{S_T1}")
    p.vop("v_add_u32", a, a, b)
    p.vop("v_lshl_add_u32", V_DX + 4, U, "30", a)
    MAP = int(E("MAP", "0"))
    p.s(f"s_bfe_u32 s{S_T0}, s2, {(MAP << 16) | 3:#x}")
    p.s(f"s_lshr_b32 s{S_T2}, s2, {3 + MAP}")
    p.s(f"s_and_b32 s{S_G}, s2, {(1 << (3 - MAP)) - 1}")
    p.s(f"s_lshl_b32 s{S_G}, s{S_G}, {MAP}")
    p.s(f"s_or_b32 s{S_G}, s{S_G}, s{S_T0}")
    p.s(f"s_bfe_u32 s{S_B}, s2, {(MAP << 16) | (3 - MAP):#x}")
    p.s(f"s_lshl_b32 s{S_B}, s{S_B}, {5 - MAP}")
    p.s(f"s_or_b32 s{S_B}, s{S_B}, s{S_T2}")
    p.s(f"s_lshl_b32 s{S_T0}, s{S_T0}, {5 - MAP}")
    p.s(f"s_lshl_b32 s{S_T2}, s{S_T2}, {MAP}")
    p.s(f"s_add_u32 s{S_T2}, s{S_T2}, s{S_T0}")
    p.s(f"s_and_b32 s{S_T2}, s{S_T2}, 31")
    p.s(f"s_lshr_b32 s{S_P}, s{S_W}, 1")
    p.s(f"s_lshl_b32 s{S_M0KV}, s{S_W}, 12")
    p.s(f"s_add_u32 s{S_M0W}, s{S_M0KV}, {WRING}")
    p.s(f"s_lshl_b32 s{S_M0X8}, s{S_P}, 10")
    p.s(f"s_add_u32 s{S_M0X8}, s{S_M0X8}, 16384")
    p.s(f"s_bitcmp1_b32 s{S_W}, 0")
    p.s(f"s_cselect_b32 s{S_M0X8}, 0x1d000, s{S_M0X8}")
    p.s(f"s_lshl_b32 s{S_T0}, s{S_G}, 2")
    p.s(f"s_add_u32 s{S_T0}, s{S_T0}, s{S_P}")
    p.s(f"s_lshl_b32 s{S_WB}, s{S_T0}, 8")
    p.s(f"s_add_u32 s{S_WB+1}, s{S_WB}, 512")
    p.s(f"s_lshl_b32 s{S_T1}, s{S_B}, 5")
    p.s(f"s_add_u32 s{S_T0}, s{S_T0}, s{S_T1}")
    p.s(f"s_lshl_b32 s{S_KVN}, s{S_T0}, 17")
    p.s(f"s_mul_i32 s{S_T0}, s{S_T2}, 5")
    p.s(f"s_lshr_b32 s{S_T0}, s{S_T0}, 4")
    if not int(E("ROT", "1")): p.s(f"s_mov_b32 s{S_T0}, 0")
    p.s(f"s_lshl_b32 s{S_XOFF}, s{S_T0}, 7")
    p.s(f"s_lshl_b32 s{S_WOFF}, s{S_T0}, 19")
    p.s(f"s_mul_i32 s{S_XB}, s{S_B}, {144 * 1280}")
    p.s(f"s_mul_i32 s{S_T0}, s{S_W}, {32 * 1280}")
    p.s(f"s_add_u32 s{S_XB}, s{S_XB}, s{S_T0}")
    def srd(r, src, size):
        p.s(f"s_mov_b32 s{r+2}, {size:#x}")
        p.s(f"s_mov_b32 s{r+3}, 0x20000")
    def srd2(r, src):
        p.s(f"s_mov_b32 s{r}, s{src}")
        p.s(f"s_and_b32 s{r+1}, s{src+1}, 0xffff")
    SR = ((SRD_X, 84, 32 * 144 * 640 * 2), (SRD_W, 90, 640 * 4096 * 2), (SRD_K, 86, 1 << 27), (SRD_V, 88, 1 << 27),
          (SRD_WO, 92, 4096 * 640 * 2), (SRD_OUT, 94, 32 * 144 * 640 * 2), (SRD_DBG, 96, 256), (SRD_WS, 98, (1 << 28) if PROF else WSBYTES))
    for x in SR: srd(*x)
    p.s("s_waitcnt lgkmcnt(0)")
    for x in SR[:2]: srd2(*x[:2])
    for ops in (x_ops(0), w_ops(0), w_ops(1)):
        for f, _ in ops: f(p)
    for x in SR[2:]: srd2(*x[:2])
    stamp(p, 0)
    p.vop("v_lshlrev_b32", V_LIN, "4", L)
    code_prefetch(p, name, 0, f"{name}_nononce", int(E("CPN0", "6")), V_T)
    p.vop("v_lshl_add_u32", b, R8, "8", d)
    p.vop("v_lshl_add_u32", V_DK, PI, "4", b)
    p.vop("v_lshl_add_u32", a, c, "4", b)
    p.vop("v_add_u32", V_DK + 1, "1024", a)
    p.vop("v_add_u32", V_DK + 2, "2048", V_DK)
    p.vop("v_add_u32", V_DK + 3, "3072", a)
    p.vop("v_lshl_add_u32", V_DV, cv, "4", b)
    for j in range(1, 4): p.vop("v_add_u32", V_DV + j, f"{1024 * j}", V_DV)
    p.s(f"s_lshl_b32 s{S_T0}, s2, 1")
    p.s(f"s_add_u32 s{S_T0}, s{S_T0}, s{S_P}")
    p.s(f"s_mul_i32 s{S_T0}, s{S_T0}, {int(E('KROT', '5'))}")
    p.s(f"s_lshr_b32 s{S_T1}, s2, 3")
    p.s(f"s_add_u32 s{S_T0}, s{S_T0}, s{S_T1}")
    p.s(f"s_and_b32 s{S_T0}, s{S_T0}, {15 if int(E('KROT', '5')) else 0}")
    p.s(f"s_lshl_b32 s{S_KOFF}, s{S_T0}, 13")
    p.s(f"s_mov_b32 s{S_VOFF}, s{S_KOFF}")
    p.s(f"s_mov_b32 s{S_M0KVP}, s{S_M0KV}")
    p.s(f"s_mov_b32 s{S_M0KVP+1}, s{S_M0W}")
    p.s(f"s_mov_b32 s{S_KVP}, s{S_KVN}")
    p.s(f"s_and_b32 s{S_U}, s{S_W}, 1")
    p.s(f"s_lshl_b32 s{S_T0}, s{S_B}, 2")
    p.s(f"s_lshr_b32 s{S_T1}, s{S_G}, 1")
    p.s(f"s_add_u32 s{S_T0}, s{S_T0}, s{S_T1}")
    p.s(f"s_and_b32 s{S_T1}, s{S_G}, 1")
    p.s(f"s_lshl_b32 s{S_T1}, s{S_T1}, 2")
    p.s(f"s_add_u32 s{S_T1}, s{S_T1}, s{S_W}")
    p.s(f"s_lshr_b32 s{S_WFP}, s{S_T1}, 1")
    p.s(f"s_lshl_b32 s{S_WFP}, s{S_WFP}, 7")
    p.s(f"s_add_u32 s{S_WFP}, s{S_WFP}, s{S_T0}")
    p.s(f"s_lshl_b32 s{S_WFP}, s{S_WFP}, 1")
    p.s(f"s_add_u32 s{S_WFP}, s{S_WFP}, s{S_U}")
    p.s(f"s_lshl_b32 s{S_WFP}, s{S_WFP}, 3")
    p.s(f"s_add_u32 s{S_WFP}, s{S_WFP}, {WFLG}")
    p.s(f"s_mul_i32 s{S_T1}, s{S_T1}, 5")
    p.s(f"s_mul_i32 s{S_T0}, s{S_T0}, 40960")
    p.s(f"s_lshl_b32 s{S_PT}, s{S_T1}, 10")
    p.s(f"s_add_u32 s{S_PT}, s{S_PT}, s{S_T0}")
    p.s(f"s_and_b32 s{S_T1}, s{S_G}, 1")
    p.s(f"s_mul_i32 s{S_T1}, s{S_T1}, 640")
    p.s(f"s_add_u32 s{S_WT}, s{S_T1}, s{S_T0}")
    p.s(f"s_mul_i32 s{S_T1}, s{S_W}, {8 * 1280}")
    p.s(f"s_add_u32 s{S_WT}, s{S_WT}, s{S_T1}")
    p.s(f"s_lshl_b32 s{S_RD}, s{S_W}, 10")
    if int(E("TOUCH", "1")):
        p.add(Ins(f"buffer_load_dword v{V_T+4}, off, s[{SRD_K}:{SRD_K+3}], s{S_KVN} nt", "vml", [], [V_T + 4], tag="touch"))
        p.add(Ins(f"buffer_load_dword v{V_T+5}, off, s[{SRD_V}:{SRD_V+3}], s{S_KVN} nt", "vml", [], [V_T + 5], tag="touch"))
        p.add(Ins(f"buffer_load_dword v{V_T+7}, off, s[{SRD_WS}:{SRD_WS+3}], s{S_PT} sc1", "vml", [], [V_T + 7], tag="touch"))
    p.s(f"s_or_b32 s{S_T0}, s2, s{S_W}")
    p.s(f"s_cmp_lg_u32 s{S_T0}, 0")
    p.s(f"s_cbranch_scc1 {name}_nononce")
    p.s(f"s_memrealtime s[{S_NON}:{S_NON+1}]")
    p.s("s_waitcnt lgkmcnt(0)")
    p.s(f"s_or_b32 s{S_NON+1}, s{S_NON+1}, 0x80000000")
    p.raw(f"v_mov_b32 v{V_T}, s{S_NON}")
    p.raw(f"v_mov_b32 v{V_T+1}, s{S_NON+1}")
    p.s("s_mov_b64 exec, 1")
    p.raw(f"buffer_store_dwordx2 v[{V_T}:{V_T+1}], v{V_LIN}, s[{SRD_DBG}:{SRD_DBG+3}], 0 offen sc1")
    p.s("s_mov_b64 exec, -1")
    p.label(f"{name}_nononce")
    p.s(f"s_mov_b32 s{S_SPIN}, 0x40000")
    p.s(f"s_mov_b32 s{S_PH}, 0")
    if PROF in (2, 3): p.s("s_mov_b32 s93, 32")
    p.s(f"s_mov_b64 s[{S_BAD}:{S_BAD+1}], 0")
    p.s(f"s_mov_b32 s{S_CS}, {f2u(CSCALE):#x}")
    p.s(f"s_mov_b32 s{S_CS+1}, s{S_CS}")
    p.s(f"s_mov_b32 s{S_LO}, {f2u(2.0 ** -16):#x}")
    p.s(f"s_mov_b32 s{S_HI}, {f2u(2.0 ** 24):#x}")
    p.vop("v_and_b32", M, "15", L)
    p.vop("v_lshrrev_b32", G, "4", L)
    p.vop("v_lshrrev_b32", a, "3", M)
    p.vop("v_mul_u32_u24", c, "3", a)
    p.vop("v_xor_b32", c, c, G)
    p.vop("v_and_b32", b, "7", M)
    p.vop("v_lshlrev_b32", b, "6", b)
    p.vop("v_lshl_add_u32", b, c, "4", b)
    p.vop("v_lshl_add_u32", b, a, "10", b)
    p.vop("v_add_u32", V_AX8, f"{XRING}", b)
    p.vop("v_lshl_add_u32", V_AX, U, "13", V_AX8)
    p.vop("v_add_u32", V_AW + 5, f"{XALT}", b)
    p.vop("v_lshl_add_u32", V_AW + 4, U, "13", V_AW + 5)
    p.vop("v_and_b32", c, "0x1ff", V_LIN)
    p.vop("v_lshl_add_u32", c, VV, "10", c)
    p.s(f"s_mul_i32 s{S_T2}, s{S_W}, 5")
    for f in range(5):
        p.s(f"s_lshr_b32 s{S_T0}, s{S_T2}, 2")
        p.s(f"s_lshl_b32 s{S_T0}, s{S_T0}, 12")
        p.s(f"s_and_b32 s{S_T1}, s{S_T2}, 2")
        p.s(f"s_lshl_b32 s{S_T1}, s{S_T1}, 8")
        p.s(f"s_add_u32 s{S_T0}, s{S_T0}, s{S_T1}")
        p.s(f"s_and_b32 s{S_T1}, s{S_T2}, 1")
        p.s(f"s_lshl_b32 s{S_T1}, s{S_T1}, 3")
        p.s(f"s_add_u32 s{S_T0}, s{S_T0}, s{S_T1}")
        p.vop("v_add_u32", V_O + 144 + f, f"s{S_T0}", c)
        p.s(f"s_add_u32 s{S_T2}, s{S_T2}, 1")
    p.vop("v_lshl_add_u32", V_AK, P, "13", b)
    p.vop("v_lshrrev_b32", a, "1", G)
    p.vop("v_lshlrev_b32", b, "10", a)
    p.vop("v_lshl_add_u32", b, R8, "6", b)
    p.vop("v_and_b32", c, "1", L)
    p.vop("v_lshl_add_u32", b, c, "3", b)
    p.vop("v_bfe_u32", c, L, "1", "1")
    p.vop("v_lshl_add_u32", b, c, "4", b)
    p.vop("v_and_b32", c, "1", G)
    p.vop("v_lshl_add_u32", b, c, "5", b)
    p.vop("v_lshl_add_u32", V_AV0, P, "13", b)
    p.vop("v_xor_b32", V_AV1, "32", V_AV0)
    p.vop("v_lshl_add_u32", a, U, "12", V_AV0)
    p.vop("v_xor_b32", b, "32", a)
    p.vop("v_xor_b32", c, "4096", a)
    p.vop("v_xor_b32", d, "4096", b)
    for i, r in enumerate((a, b, c, d)): p.vop("v_add_u32", V_AW + i, f"{WRING}", r)
    for ops in (w_ops(2), x_ops(1), w_ops(3)):
        for f, _ in ops: f(p)
    stamp(p, 23)
    return p

def R128(d, a, off): return lambda p: p.ds_read128(d, a, off)
def TR(d, a, off): return lambda p: p.ds_tr(d, a, off)

class Pool:
    def __init__(self, sc, base, n):
        self.sc = sc; self.regs = base if isinstance(base, list) else [base + 4 * k for k in range(n)]; n = len(self.regs); self.n = n; self.last = [None] * n; self.i = 0; self.frags = []
    def frag(self, tile, mk_reads, consumers, as_b=False):
        k = self.i % self.n; self.i += 1
        r = self.regs[k]
        war = self.last[k]
        for (d, o, c, tag) in consumers:
            if as_b: self.sc.mfma(d, o, r, c, tag)
            else: self.sc.mfma(d, r, o, c, tag)
        self.last[k] = consumers[-1][3]
        self.frags.append((tile, mk_reads(r), consumers[0][3], war))

LEAD = int(E("LEAD", "9"))
LEADB = int(E("LEADB", "8"))
BGAP = int(E("BGAP", "4"))

def sstamp(p):
    p.s(f"s_memrealtime s[{S_TM}:{S_TM+1}]")
    p.s(f"s_memtime s[{S_TM+2}:{S_TM+3}]")
    p.wait_lgkm0()
    p.s("s_mov_b32 s99, m0")
    p.s("s_mov_b32 m0, s93")
    p.s("s_add_u32 s93, s93, 1")
    p.raw(f"v_writelane_b32 v0, s{S_TM}, m0")
    p.raw(f"v_writelane_b32 v255, s{S_TM+2}, m0")
    p.s("s_mov_b32 m0, s99")

def qmod(name):
    p = Prog()
    KVS = [int(x) for x in E("KVS", "28,30,32,34,37").split(",")]
    sc = Sched(p, budget=int(E("QBUD", "8")), late_extra=8)
    sc.group["dma"] = "vm"; sc.pace["vm"] = int(E("QPACE", "4"))
    sc.maxds = int(E("QMAXDS", "1"))
    pool = Pool(sc, A_QP, NPOOL)
    for h in range(40):
        r = h & 1; st = (h >> 1) & 1
        for k in range(8):
            off = (h % 4) * 16384 + ((k >> 1) & 1) * 512
            ad = V_AW + 2 * (k >> 2) + (k & 1)
            cons = [(QA(r, n, k), Xf(st, n), QA(r, n, k) if h > 1 else None, ("Q", h, k, n)) for n in range(5 if k < 4 else 4)]
            pool.frag(h, lambda rg: [TR(rg, ad, off), TR(rg + 2, ad, off + 2048)], cons)
    mt = lambda i: sc.m[max(0, min(i, len(sc.m) - 1))][4]
    def xreads(i, kh):
        return [R128(Xf(kh, n), (V_AX if i else V_AW + 4) + (n >> 2), (n if n < 4 else 8) * 2048 + kh * 512) for n in range(5)]
    WOS = int(E("WOS", "0")); WOR = int(E("WOR", "27"))
    def wop():
        ops = []
        for cb in range(5):
            def f(p, cb=cb):
                p.s(f"s_add_u32 m0, s{S_RD}, {cb * (4096 - 128)}")
                p.dmao(V_DX, SRD_WO, f"s{S_WT}", cb * 128, "WOP", E("WOFL", "nt"))
            ops.append((f, 8))
        return ops
    def wst():
        def f(p):
            for i in range(5):
                if i == 4: p.s(f"s_add_u32 s{S_PT}, s{S_PT}, 4096")
                p.store(A_Q + 4 * i, 4, V_LIN, SRD_WS, f"s{S_PT}", (i % 4) * 1024, tag="wst", flags="sc1")
        return [(f, 20)]
    for fi, (h, reads, cons, war) in enumerate(pool.frags):
        c0 = 36 * h
        tau = c0 - LEADB
        taun = c0 + 36 - LEADB
        if fi % 8 == 0:
            def bar(p, h=h):
                p.comment(f"---- q step {h}")
                tags = [("W", h)]
                if h == 0: tags.append(("X", 0))
                if h % 4 == 3 and h < 39: tags.append(("X", (h + 1) // 4))
                if h == WOR: tags.append("WOP")
                p.wait_vm(tags, lgkm0=True)
                if "b" not in ABL or h < 4: p.barrier()
                if PROF == 2 and h % 2 == 0: sstamp(p)
            ops = []
            if h % 4 == 1 and 5 <= h < 37: ops += x_ops(h // 4 + 1)
            if 1 <= h < 37: ops += w_ops(h + 3)
            if "d" in ABL: ops = []
            if h == WOS: ops += wop()
            if h == WOR:
                for i in range(10):
                    sc.fill("rw", TR(A_Q + 2 * i, V_O + 144 + (i >> 1), (i & 1) * 2048), 4, ds=True, after=("BAR", h), before=mt(taun - BGAP), lead=2 * (10 - i))
            if h == 36: ops += wst()
            for k, x in enumerate(KVS):
                if x == h: ops += kv_ops(32 + k)
            sc.fill("rd", bar, 8, before=mt(tau), early=0 if h else None, tag=("BAR", h))
            QD = int(E("QD", "14")) if len(ops) <= 4 else int(E("QD2", "0"))
            fill_dma(sc, ops, dict(tag=("BAR", h), delay=QD), mt(taun - 1))
            if h == 0:
                for k, fn in enumerate(xreads(0, 0)): sc.fill("rd", fn, 4, ds=True, before=mt(0))
            xr = []; aft = [("BAR", h)]
            if h % 4 == 3 and h < 39: xr = xreads((h + 1) // 4, 0)
            if h % 4 == 0:
                xr = xreads(h // 4, 1)
                if h: aft.append(("Q", h - 1, 7, 3))
            for j, fn in enumerate(xr):
                sc.fill("rx", fn, 4, ds=True, after=aft, before=mt(taun - BGAP), lead=3 * (len(xr) - j))
        for k, fn in enumerate(reads):
            if "r" in ABL and h >= 2: continue
            bf = cons
            if sc.idx[cons] > taun - BGAP: bf = mt(taun - BGAP)
            sc.fill("rd", fn, 4, ds=True, after=war if k == 0 else None, before=bf, lead=LEAD if bf is cons else 0, early=int(E("QEARLY", "99")))
    def lastbar(p):
        p.comment("---- q step 40")
        p.wait_lgkm0(); p.barrier()
        p.add(Ins(f"buffer_load_dwordx2 v[{V_NV}:{V_NV+1}], off, s[{SRD_DBG}:{SRD_DBG+3}], 0 sc1", "vml", [], [V_NV, V_NV + 1], tag="non"))
    sc.fill("rd", lastbar, 8, before=mt(36 * 40 - LEADB), early=0)
    sc.run()
    stamp(p, 1)
    fstart = len(p.ins)
    TB = V_O + 144
    cnt = [0]
    def fin(r, n, t, i):
        s0 = QA(r, n, 2 * t)
        if r:
            tb = TB + 8 * (cnt[0] & 1); cnt[0] += 1
            for x in range(8): p.ar(tb + x, s0 + x)
            s0 = tb
        dst = V_S + 4 * i
        for x in range(0, 8, 2): p.pkmul(s0 + x, s0 + x, f"s[{S_CS}:{S_CS+1}]")
        for x in range(4): p.cvtpk(dst + x, s0 + 2 * x, s0 + 2 * x + 1)
        return dst
    def swp(dst):
        p.swap32(dst, dst + 2); p.swap32(dst + 1, dst + 3)
        p.swap16(dst, dst + 2); p.swap16(dst + 1, dst + 3)
    p.v(f"v_lshl_add_u32 v{V_E0}, s{S_W}, 12, v{V_LIN}", [V_E0], [V_LIN])
    p.vop("v_add_u32", V_E0, f"{XRING}", V_E0)
    p.vop("v_xor_b32", V_E1, "4096", V_E0)
    d8 = [fin(r, 4, t, 2 * r + t) for r in range(2) for t in range(2)]
    for d in d8: swp(d)
    for t, d in enumerate(d8): p.ds_write(V_E0, d, 4, t * 1024)
    for r in range(2):
        base = A_QN if r else A_Q
        for n in range(4):
            ds = [fin(r, n, t, 4 + (n & 1) * 4 + t) for t in range(4)]
            if r == 0 and n == 0:
                p.wait_lgkm0(); p.barrier()
                for t in range(2): p.ds_read128(Qf(4, t), V_E0, t * 1024)
                for t in range(2): p.ds_read128(Qf(4, 2 + t), V_E1, t * 1024)
            for d in ds: swp(d)
            for t, d in enumerate(ds):
                for x in range(4): p.aw(Qf(n, t, base) + x, d + x)
    for t in range(2): p.ds_read128(Qf(4, t, A_QN), V_E0, 2048 + t * 1024)
    for t in range(2): p.ds_read128(Qf(4, 2 + t, A_QN), V_E1, 2048 + t * 1024)
    p.vop("v_mov_b32", V_T, "0x3f803f80")
    for r in range(4): p.aw(A_ONE + r, V_T)
    sprinkle([(p, fstart)], sum([kv_ops(32 + k) for k in range(len(KVS), 7 if T7 else 8)], []), 0.0, float(E("QSH", "1.0")))
    get_nonce(p, f"{name}_n1", V_T)
    p.wait_vm("wst")
    publish(p, f"s{S_WFP}", 0, V_T)
    z = p
    z.s(f"s_mul_i32 s{S_WT}, s{S_G}, {16 * 40960}")
    z.s(f"s_mul_i32 s{S_T0}, s{S_W}, 10240")
    z.s(f"s_add_u32 s{S_WT}, s{S_WT}, s{S_T0}")
    z.s(f"s_lshl_b32 s{S_PF}, s{S_W}, 11")
    z.s(f"s_lshl_b32 s{S_T1}, s{S_G}, 8")
    z.s(f"s_add_u32 s{S_PF}, s{S_PF}, s{S_T1}")
    z.s(f"s_add_u32 s{S_PF}, s{S_PF}, {WFLG}")
    z.vop("v_lshrrev_b32", V_AX, "1", V_LIN)
    z.vop("v_and_b32", V_AX, "0xf8", V_AX)
    psetup(z)
    stamp(z, 2)
    return p

def a_mfmas(sc, pool, qh):
    AV = (V_AV0, V_AV1)
    has8 = lambda u: (u & 1) == qh
    for pos, (kind, u) in enumerate(KVSEQ):
        sb = (pos % 4) * 16384
        ns = [0, 1, 2, 3] + ([4] if has8(u) else [])
        if kind == "K":
            for kt in range(2):
                for ks in range(4):
                    off = sb + kt * 2048 + ((ks >> 1) ^ qh) * 4096 + (ks & 1) * 512
                    cons = []
                    for n in ns:
                        d = XS(u & 1, n) if kt == 0 else YS(n)
                        cons.append((d, Qf(n, ks), d if ks else None, ("S", u, kt, ks, n)))
                    pool.frag(pos, lambda r: [R128(r, V_AK, off)], cons)
        else:
            first = lambda n: u == 0 if n < 4 else u == qh
            for n in ns: sc.mfma(La(n), A_ONE, XS(u & 1, n), None if first(n) else La(n), ("L", u, n))
            for m in range(8):
                e, mp = m & 1, m >> 1
                off = sb + (mp >> 1) * 4096 + (mp & 1) * 512
                oa = lambda n: Oa(n, m if n < 4 else m ^ (4 * qh))
                cons = [(oa(n), XS(u & 1, n), None if first(n) else oa(n), ("PV", u, m, n)) for n in ns]
                pool.frag(pos, lambda r: [TR(r, AV[e], off), TR(r + 2, AV[e], off + 2048)], cons)

def a_taus():
    cs = []
    for qh in range(2):
        sc = Sched(Prog()); pool = Pool(sc, A_POOL, NPOOL); a_mfmas(sc, pool, qh)
        c = {}
        for (pos, _, cons, _) in pool.frags: c.setdefault(pos, sc.idx[cons])
        c[32] = len(sc.m) + LEADB - 3
        cs.append(c)
    return [min(cs[0][j], cs[1][j]) - LEADB for j in range(33)]

def aentry(name):
    p = Prog()
    p.label(f"{name}_A")
    p.s(f"s_mov_b32 s{S_KB}, s{S_KVN}")
    p.s(f"s_mov_b32 s{S_VB}, s{S_KVN}")
    p.s(f"s_add_u32 s{S_KVN}, s{S_KVN}, {2 << 17}")
    p.s(f"s_mov_b32 s{S_M0D}, s{S_M0W}")
    p.s(f"s_cmp_eq_u32 s{S_PH}, 0")
    p.s(f"s_cselect_b32 s{S_M0KVP}, s{S_M0KV}, {DROP:#x}")
    p.s(f"s_cselect_b32 s{S_M0KVP+1}, s{S_M0W}, {DROP:#x}")
    p.s(f"s_cselect_b32 s{S_KVP}, s{S_KVN}, {OOB:#x}")
    p.s(f"s_cselect_b64 s[{S_XM}:{S_XM+1}], 0, -1")
    p.s(f"s_cselect_b32 s{S_WT2}, {OOB:#x}, s{S_WT}")
    p.s(f"s_cmp_eq_u32 s{S_U}, 1")
    p.s(f"s_cbranch_scc1 {name}_A1")
    return p

def tile_addr(p, base, dst):
    p.s(f"s_lshl_b32 s{S_T0}, s{S_U}, 2")
    p.s(f"s_sub_u32 s{S_T0}, s{S_T0}, s{S_G}")
    for n in range(4):
        p.s(f"s_add_u32 s{S_T1}, s{S_T0}, {n + 7}")
        p.s(f"s_and_b32 s{S_T1}, s{S_T1}, 7")
        p.v(f"v_lshl_add_u32 v{dst+n}, s{S_T1}, 10, v{base}", [dst + n], [base])

def avm(pos):
    if pos >= 30: return None
    pat = [int(x) for x in E("AVM", "5").split(",")]
    h = [int(x) for x in E("AVMH", "").split(",") if x]
    if pos < len(h): return h[pos]
    return pat[pos % len(pat)] + (2 if pos > 24 else 0)
tsn = lambda k: min(int(TS * k), int(E("TMAX", "28")))
TS = float(E("TS", "4"))
SEAM = sum([kv_ops(k) for k in range(32, 39 if T7 else 40)], [])
WORD = list(range(20, 32)) + list(range(20))
def amod(name, qh):
    p = Prog()
    p.label(f"{name}_A{qh}")
    sc = Sched(p, budget=int(E("ABUD", "8")), late_extra=int(E("ALATE", "8")))
    sc.group["dma"] = "vm"; sc.pace["vm"] = int(E("APACE", "7"))
    pool = Pool(sc, A_POOL, NPOOL)
    a_mfmas(sc, pool, qh)
    tau = a_taus()
    mt = lambda i: sc.m[max(0, min(i, len(sc.m) - 1))][4]
    def add_bar(pos):
        def bar(p, pos=pos):
            p.comment(f"---- a step {pos}")
            if pos < 32: p.wait_vm(KVSEQ[pos], lgkm0=True, cap=avm(pos))
            else: p.wait_lgkm0()
            p.barrier()
            if pos % 4 == 0 and pos:
                for r in (V_AV0, V_AV1, V_AK): p.vop("v_xor_b32", r, "0x10000", r)
            if PROF == 3 and pos % 2 == 0 and pos < 32: sstamp(p)
        sc.fill("rd", bar, 8, after=[("DMA", pos - 1)] if pos >= (1 if T7 else 2) else None, before=mt(tau[pos]), early=0 if pos else None, tag=("BAR", pos))
        if (0 if T7 else 1) <= pos < 32:
            ops = kv_ops(pos + 7) if pos < 25 else SEAM[tsn(pos - 25):tsn(pos - 24)] or [(lambda p: p.s("s_nop 0"), 4)]
            if pos % 4 == 1 and pos < 25: ops = [(lambda p: p.s(f"s_xor_b32 s{S_M0D}, s{S_M0D}, 0x10000"), 4)] + ops
            aft = ("BAR", pos); bf = mt(tau[pos + 1] - 1)
            fill_dma(sc, ops, aft, bf, tag=("DMA", pos))
            if 24 <= pos < 30:
                for k in (20 + 2 * (pos - 24), 21 + 2 * (pos - 24)):
                    for fn, kind, cost in split_ops([(wload(0, k, S_T2, S_WT2), 8)]):
                        sc.fill("dmp", fn, 8 if kind == "vm" else 4, after=dict(tag=aft, delay=4 + 14 * (k & 1)), solo=(kind == "vm"), before=bf, lead=20)
            if pos == 30:
                NWL = int(E("NWL", "12")); WLS = int(E("WLS", "6"))
                last = ("S", 15, 1, 3, 4 if qh == 1 else 3)
                for k in range(NWL):
                    for fn, kind, cost in split_ops([(wload(0, k, S_T2, S_WT2), 8)]):
                        sc.fill("dmp", fn, 8 if kind == "vm" else 4, after=dict(tag=last, delay=2 + WLS * k), solo=(kind == "vm"), before=mt(sc.idx[last] + 12 + WLS * k), lead=9)
    cur = None
    for (pos, reads, cons, war) in pool.frags:
        if pos != cur:
            cur = pos; add_bar(pos)
        for k, fn in enumerate(reads):
            bf = cons
            if sc.idx[cons] > tau[pos + 1] - BGAP: bf = mt(tau[pos + 1] - BGAP)
            sc.fill("rd", fn, 4, ds=True, after=war if k == 0 else None, before=bf, lead=LEAD if bf is cons else 0)
    add_bar(32)
    def V(fn, after=None, before=None, cost=4, lead=0): sc.fill("va", fn, cost, after=after, before=before, lead=lead)
    EDL = int(E("EDL", "3"))
    for u in range(16):
        ns = [0, 1, 2, 3] + ([4] if (u & 1) == qh else [])
        for kt in range(2):
            for n in ns:
                src = XS(u & 1, n) if kt == 0 else YS(n)
                dst = XS(u & 1, n) + 2 * kt
                for r in range(4):
                    V(lambda p, reg=src + r: p.exp(reg, reg), after=dict(tag=("S", u, kt, 3, n), delay=EDL), cost=8)
                bf = ("L", u, n)
                if kt == 1 and n < 4 and u < 15: bf = ("S", u + 1, 1, 0, n)
                V(lambda p, dst=dst, src=src: p.cvtpk(dst, src, src + 1))
                V(lambda p, dst=dst, src=src: p.cvtpk(dst + 1, src + 2, src + 3), before=bf, lead=2)
    sc.run()
    if qh == 0: p.s(f"s_branch {name}_F")
    return p

def afin(name):
    p = Prog()
    p.label(f"{name}_F")
    stamp(p, 5, S_PH)
    poll_issue(p, V_AX, f"s{S_PF}", 0, V_NV)
    AD, AL, AI, A8 = V_S + 44, V_S + 46, V_S + 48, V_S + 52
    p.v(f"v_lshl_add_u32 v{AD}, s{S_W}, 12, v{V_LIN}", [AD], [V_LIN])
    p.vop("v_add_u32", AD, f"{MISC}", AD)
    p.vop("v_xor_b32", AD + 1, "4096", AD)
    for i in range(4): p.ds_write(AD + 1, Oa(4, 4 + i), 4, i * 1024)
    p.s(f"s_xor_b32 s{S_T0}, s{S_W}, 1")
    p.s(f"s_movk_i32 s{S_T1}, 18432")
    p.s(f"s_mov_b32 s{S_T2}, {IMG(8)}")
    p.s(f"s_cmp_eq_u32 s{S_PH}, 0")
    p.s(f"s_cselect_b32 s{S_T1}, 1024, s{S_T1}")
    p.s(f"s_cselect_b32 s{S_T2}, {XRING}, s{S_T2}")
    p.s(f"s_mul_i32 s{S_T0}, s{S_T0}, s{S_T1}")
    p.s(f"s_add_u32 s{S_T0}, s{S_T0}, s{S_T2}")
    p.vop("v_add_u32", AL + 1, f"s{S_T0}", V_LIN)
    p.ds_write(AL + 1, La(4), 1, 0)
    p.s(f"s_mul_i32 s{S_T0}, s{S_W}, s{S_T1}")
    p.s(f"s_add_u32 s{S_T0}, s{S_T0}, s{S_T2}")
    p.vop("v_add_u32", AL, f"s{S_T0}", V_LIN)
    RL = V_S + 2
    for n in range(5): p.ar(RL + 2 * n, La(n))
    p.s(f"s_mul_i32 s{S_T0}, s{S_P}, 36864")
    p.vop("v_add_u32", A8 + 1, f"s{S_T0}", V_LIN)
    tile_addr(p, A8 + 1, V_T)
    for n in range(4): p.vop("v_add_u32", AI + n, f"{IMG(8)}", V_T + n)
    p.vop("v_subrev_u32", A8, f"{IMG(8)}", AL)
    wleft = list(range(int(E("NWL", "12")), 20))
    def check(n):
        r = RL + 2 * n
        p.add(Ins(f"v_cmp_nge_f32 vcc, v{r}, s{S_LO}", "valu", [r], []))
        p.s(f"s_or_b64 s[{S_BAD}:{S_BAD+1}], s[{S_BAD}:{S_BAD+1}], vcc")
        p.add(Ins(f"v_cmp_nle_f32 vcc, v{r}, s{S_HI}", "valu", [r], []))
        p.s(f"s_or_b64 s[{S_BAD}:{S_BAD+1}], s[{S_BAD}:{S_BAD+1}], vcc")
        p.vop("v_rcp_f32", r + 1, r, kind="trans")
        p.vop("v_rcp_f32", r, r, kind="trans")
    def pkm(d, n): p.pkmul(d, d, RL + 2 * n)
    CHK = V_S + 40
    pend = []
    def flush():
        for d in pend: p.mfma(CHK, A_ONE, d, CHK if d != Oa(0, 0) else None)
        pend.clear()
    def norm(n, t):
        s0 = Oa(n, 2 * t)
        for r in range(0, 8, 2): pkm(s0 + r, n)
        for r in range(4): p.cvtpk(s0 + r, s0 + 2 * r, s0 + 2 * r + 1)
        flush()
        if t & 1:
            p.s(f"s_mov_b64 exec, s[{S_XM}:{S_XM+1}]")
            for tt in (t - 1, t):
                if n < 4: p.ds_write(AI + n, Oa(n, 2 * tt), 4, tt * 9216 + 1024).kind = "dsx"
                else: p.ds_write(AL, Oa(n, 2 * tt), 4, tt * 9216).kind = "dsx"
                if n < 4: p.ds_write(V_T + n, Qf(n, tt, A_QN), 4, tt * 9216 + 1024).kind = "dsx"
                else: p.ds_write(A8, Qf(n, tt, A_QN), 4, tt * 9216).kind = "dsx"
            p.s("s_mov_b64 exec, -1")
        if wleft: wload(0, wleft.pop(0), S_T2, S_WT2)(p)
        pend.append(s0)
    for n in range(4): check(n)
    p.add(Ins("s_waitcnt lgkmcnt(0)", "waitlgkm0"))
    for t in range(4): norm(0, t)
    p.barrier()
    PX = V_S + 16
    for i in range(4): p.ds_read128(PX + 4 * i, AD, i * 1024)
    p.ds_read32(V_S, AL, 0)
    for n in (1, 2):
        for t in range(4): norm(n, t)
    p.vop("v_add_f32", RL + 8, RL + 8, V_S)
    check(4)
    for i in range(4):
        for r in range(4): p.vop("v_add_f32", Oa(4, i) + r, Oa(4, i) + r, PX + 4 * i + r)
    for t in range(2): norm(4, t)
    for t in range(4): norm(3, t)
    flush()
    p.s(f"s_movk_i32 s{S_T2}, 0x207")
    p.s(f"s_add_u32 s{S_PH}, s{S_PH}, 1")
    p.add(Ins(f"v_cmp_class_f32 vcc, v{CHK}, s{S_T2}", "valu", [CHK], []))
    p.s(f"s_or_b64 s[{S_BAD}:{S_BAD+1}], s[{S_BAD}:{S_BAD+1}], vcc")
    stamp(p, 2, S_PH)
    p.s(f"s_cmp_eq_u32 s{S_PH}, 2")
    p.s(f"s_cbranch_scc1 {name}_P")
    q = Prog()
    q_copy(q)
    for n in range(5):
        for t in range(4 if n < 4 else 2):
            for r in range(4): q.aw(Qf(n, t, A_QN) + r, Oa(n, 2 * t) + r)
    sprinkle([(p, 8), (q, 1)], SEAM[tsn(7):], 0.0, float(E("ASH", "1.0")))
    code_prefetch(q, name, 1, f"{name}_end-16384", 2, V_T)
    if int(E("TOUCH2", "0")):
        q.s(f"s_add_u32 s{S_T0}, s{S_RD}, {32768 + 1024}")
        q.raw(f"buffer_load_dword v{V_JUNK}, off, s[{SRD_WS}:{SRD_WS+3}], s{S_T0} sc1")
        q.s(f"s_add_u32 s{S_T0}, s{S_T0}, {PARTB - 40960}")
        q.raw(f"buffer_load_dword v{V_JUNK}, off, s[{SRD_WS}:{SRD_WS+3}], s{S_T0} sc1")
        q.raw(f"buffer_load_dword v{V_JUNK}, off, s[{SRD_WS}:{SRD_WS+3}], s{S_PO} sc1")
        q.raw(f"buffer_load_dword v{V_JUNK}, off, s[{SRD_OUT}:{SRD_OUT+3}], s{S_OUTO} sc1")
    poll_check(q, f"{name}_wpoll", V_AX, f"s{S_PF}", 0, V_NV)
    q.s(f"s_branch {name}_A")
    return p, q

def q_copy(p):
    for r in range(80): p.amov(A_Q + r, A_QN + r)

P_R = ([A_Q + 4 * i for i in range(20)] + [A_X + 4 * i for i in range(10)] + [10, 14],
       [A_QN + 4 * i for i in range(20)] + [A_L + 4 * i for i in range(12)])
def wload(j, i, so=None, sb=None):
    def f(p):
        if i % 2 == 0: p.s(f"s_add_u32 s{so or S_SO}, s{sb or S_WT}, {(i >> 1) * 40960}")
        if "B" not in ABL: p.load4(P_R[j & 1][i], V_LIN, SRD_WS, f"s{so or S_SO}", (i & 1) * 1024, ("WT", j, i), "sc1")
    return f

def slow(name):
    SI, SC, SX, SWq, SKV, SD, SK = 56, 57, 58, 59, 88, 89, 90
    VW, VX, VK, VV_, VD = 28, 36, 37, 38, 39
    MX, NM, LA, QF, SS, FB, AC, RAW, FR = 40, 44, 48, 52, 68, 76, 84, 116, 180
    def ld(p, op, n, d, vo, srd, so, off):
        p.add(Ins(f"{op} {vr(d, n)}, v{vo}, s[{srd}:{srd+3}], s{so} offen offset:{off}", "vml", [vo], R(d, n), tag="sl"))
    p0 = Prog()
    p0.label(f"{name}_slow")
    p0.wait_all()
    M, G = MX, MX + 1
    p0.vop("v_bfe_u32", M, V_LIN, "4", "4")
    p0.vop("v_lshrrev_b32", G, "8", V_LIN)
    p0.vop("v_lshlrev_b32", VW, "16", G)
    p0.vop("v_lshl_add_u32", VW, M, "1", VW)
    for i in range(1, 8): p0.vop("v_add_u32", VW + i, f"{8192 * i}", VW)
    p0.s(f"s_movk_i32 s{S_T0}, 1280")
    p0.vop("v_mul_lo_u32", VX, M, f"s{S_T0}")
    p0.vop("v_lshl_add_u32", VX, G, "4", VX)
    p0.vop("v_lshlrev_b32", VK, "8", M)
    p0.vop("v_lshl_add_u32", VK, G, "3", VK)
    p0.vop("v_lshlrev_b32", VV_, "10", G)
    p0.vop("v_lshl_add_u32", VV_, M, "1", VV_)
    p0.s(f"s_mov_b32 s{SI}, 0")
    p1 = Prog()
    p1.label(f"{name}_sl_it")
    p1.s(f"s_cmp_ge_u32 s{SI}, 5")
    p1.s(f"s_cselect_b32 s{S_T0}, 2, 0")
    p1.s(f"s_cselect_b32 s{S_T1}, 5, 0")
    p1.s(f"s_sub_u32 s{S_T1}, s{SI}, s{S_T1}")
    p1.s(f"s_add_u32 s{S_T0}, s{S_T0}, s{S_P}")
    p1.s(f"s_mul_i32 s{SD}, s{S_T0}, 36864")
    p1.s(f"s_lshl_b32 s{S_T2}, s{S_G}, 2")
    p1.s(f"s_add_u32 s{S_T0}, s{S_T0}, s{S_T2}")
    p1.s(f"s_lshl_b32 s{SWq}, s{S_T0}, 8")
    p1.s(f"s_lshl_b32 s{S_T2}, s{S_B}, 5")
    p1.s(f"s_add_u32 s{S_T0}, s{S_T0}, s{S_T2}")
    p1.s(f"s_lshl_b32 s{SKV}, s{S_T0}, 17")
    p1.s(f"s_lshl_b32 s{S_T0}, s{S_U}, 2")
    p1.s(f"s_add_u32 s{S_T0}, s{S_T0}, s{S_T1}")
    p1.s(f"s_sub_u32 s{S_T2}, s{S_T0}, s{S_G}")
    p1.s(f"s_add_u32 s{S_T2}, s{S_T2}, 7")
    p1.s(f"s_and_b32 s{S_T2}, s{S_T2}, 7")
    p1.s(f"s_add_u32 s{S_T2}, s{S_T2}, 1")
    p1.s(f"s_cmp_eq_u32 s{S_T1}, 4")
    p1.s(f"s_cselect_b32 s{S_T0}, 8, s{S_T0}")
    p1.s(f"s_cselect_b32 s{S_T2}, 0, s{S_T2}")
    p1.s(f"s_lshl_b32 s{S_T2}, s{S_T2}, 10")
    p1.s(f"s_add_u32 s{SD}, s{SD}, s{S_T2}")
    p1.vop("v_add_u32", VD, f"s{SD}", V_LIN)
    p1.s(f"s_mul_i32 s{S_T2}, s{S_B}, 9")
    p1.s(f"s_add_u32 s{S_T0}, s{S_T0}, s{S_T2}")
    p1.s(f"s_mul_i32 s{SX}, s{S_T0}, {16 * 1280}")
    for r in range(32): p1.vop("v_mov_b32", AC + r, "0")
    p1.s(f"s_mov_b32 s{SC}, 0")
    def pack(p):
        for r in range(32): p.vop("v_lshl_or_b32", FR + r, RAW + 2 * r + 1, "16", RAW + 2 * r)
    def loop_end(p, lab, n):
        p.s(f"s_add_u32 s{SC}, s{SC}, 1")
        p.s(f"s_cmp_lt_u32 s{SC}, {n}")
        p.s(f"s_cbranch_scc1 {lab}")
    p2 = Prog()
    p2.label(f"{name}_sl_q")
    ld(p2, "buffer_load_dwordx4", 4, FB, VX, SRD_X, SX, 0)
    for m in range(8):
        for i in range(8): ld(p2, "buffer_load_ushort", 1, RAW + 8 * m + i, VW + i, SRD_W, SWq, 32 * m)
        if m == 3: p2.wait_all()
    p2.wait_all()
    pack(p2)
    for m in range(8): p2.mfma(AC + 4 * m, FR + 4 * m, FB, AC + 4 * m)
    p2.s(f"s_add_u32 s{SX}, s{SX}, 64")
    p2.s(f"s_add_u32 s{SWq}, s{SWq}, {32 * 8192}")
    loop_end(p2, f"{name}_sl_q", 20)
    p3 = Prog()
    for r in range(32): p3.vop("v_mul_f32", AC + r, f"s{S_CS}", AC + r)
    for r in range(16): p3.cvtpk(QF + r, AC + 2 * r, AC + 2 * r + 1)
    for r in range(32): p3.vop("v_mov_b32", AC + r, "0")
    for r in range(4): p3.vop("v_mov_b32", LA + r, "0")
    p3.vop("v_mov_b32", MX, "0xff800000")
    p3.s(f"s_mov_b32 s{SK}, s{SKV}")
    p3.s(f"s_mov_b32 s{SC}, 0")
    def kfrags(p, dst, so):
        for ks in range(4):
            ld(p, "buffer_load_dwordx2", 2, dst + 4 * ks, VK, SRD_K, so, 64 * ks)
            ld(p, "buffer_load_dwordx2", 2, dst + 4 * ks + 2, VK, SRD_K, so, 64 * ks + 32)
    p4 = Prog()
    p4.label(f"{name}_sl_m")
    kfrags(p4, FR, SK)
    p4.wait_all()
    for ks in range(4): p4.mfma(SS, FR + 4 * ks, QF + 4 * ks, SS if ks else None)
    p4.vop("v_max3_f32", MX, MX, SS, SS + 1)
    p4.vop("v_max3_f32", MX, MX, SS + 2, SS + 3)
    p4.s(f"s_add_u32 s{SK}, s{SK}, 4096")
    loop_end(p4, f"{name}_sl_m", 32)
    p5 = Prog()
    for sw in (p5.swap32, p5.swap16):
        p5.vop("v_mov_b32", MX + 1, MX)
        sw(MX, MX + 1)
        p5.vop("v_max_f32", MX, MX, MX + 1)
    for r in range(4): p5.vop("v_sub_f32", NM + r, "0", MX)
    p5.s(f"s_mov_b32 s{SC}, 0")
    p6 = Prog()
    p6.label(f"{name}_sl_a")
    p6.s(f"s_add_u32 s{SK}, s{SKV}, 4096")
    kfrags(p6, FR, SKV)
    kfrags(p6, FR + 16, SK)
    p6.wait_all()
    for m in range(8):
        for i in range(8): ld(p6, "buffer_load_ushort", 1, RAW + 8 * m + i, VV_, SRD_V, SK if i >= 4 else SKV, 32 * m + 256 * (i & 3))
        if m == 3: p6.wait_all()
    for kt in range(2):
        for ks in range(4): p6.mfma(SS + 4 * kt, FR + 16 * kt + 4 * ks, QF + 4 * ks, SS + 4 * kt if ks else NM)
    for r in range(8): p6.exp(SS + r, SS + r)
    for r in range(4): p6.cvtpk(FB + r, SS + 2 * r, SS + 2 * r + 1)
    p6.wait_all()
    pack(p6)
    p6.mfma(LA, A_ONE, FB, LA)
    for m in range(8): p6.mfma(AC + 4 * m, FR + 4 * m, FB, AC + 4 * m)
    p6.s(f"s_add_u32 s{SKV}, s{SKV}, 8192")
    loop_end(p6, f"{name}_sl_a", 16)
    p7 = Prog()
    p7.vop("v_rcp_f32", LA, LA, kind="trans")
    for r in range(32): p7.vop("v_mul_f32", AC + r, AC + r, LA)
    for r in range(16): p7.cvtpk(QF + r, AC + 2 * r, AC + 2 * r + 1)
    for hf in range(2):
        p7.s(f"s_cmp_eq_u32 s{S_U}, {hf}")
        p7.s(f"s_cselect_b32 s{S_T0}, 0, s{S_T1}")
        p7.s(f"s_cmp_eq_u32 s{S_T0}, 4")
        p7.s(f"s_cbranch_scc1 {name}_sl_s{hf}")
        for t in (2 * hf, 2 * hf + 1): p7.ds_write(VD, QF + 4 * t, 4, t * 9216)
        p7.label(f"{name}_sl_s{hf}")
    p7.wait_all()
    p7.s(f"s_add_u32 s{SI}, s{SI}, 1")
    p7.s(f"s_cmp_lt_u32 s{SI}, 10")
    p7.s(f"s_cbranch_scc1 {name}_sl_it")
    p7.s(f"s_branch {name}_P2")
    body = [p1, p2, p2, p3, p4, p4, p5, p6, p6, p7]
    return [p0, p1, p2, p3, p4, p5, p6, p7], [p0] + body + body

S_ST = 62
S_J, S_JO, S_J8, S_JO8 = 4, 5, 6, 7
S_PC, S_FO, S_PO, S_JL = 70, 71, 72, 73
def psetup(p):
    p.s(f"s_mul_i32 s{S_RD}, s{S_B}, {PARTB}")
    p.s(f"s_lshl_b32 s{S_T1}, s{S_W}, 11")
    p.s(f"s_add_u32 s{S_RD}, s{S_RD}, s{S_T1}")
    p.s(f"s_add_u32 s{S_RD}, s{S_RD}, {PART}")
    p.s(f"s_lshr_b32 s{S_T0}, s{S_G}, 2")
    p.s(f"s_mul_i32 s{S_T0}, s{S_T0}, {PARTH}")
    p.s(f"s_add_u32 s{S_T0}, s{S_T0}, s{S_RD}")
    p.s(f"s_and_b32 s{S_T1}, s{S_G}, 3")
    p.s(f"s_mul_i32 s{S_ST}, s{S_T1}, 40960")
    p.s(f"s_add_u32 s{S_ST}, s{S_ST}, s{S_T0}")
    p.s(f"s_add_u32 s{S_ST}, s{S_ST}, 32768")
    p.s(f"s_lshl_b32 s{S_J}, s{S_T1}, 13")
    p.s(f"s_add_u32 s{S_J}, s{S_J}, s{S_T0}")
    for i in range(1, 8):
        p.s(f"s_add_u32 s{S_T0}, s{S_G}, {i}")
        p.s(f"s_bfe_u32 s{S_T1}, s{S_T0}, 0x10002")
        p.s(f"s_mul_i32 s{S_T1}, s{S_T1}, {PARTH}")
        p.s(f"s_and_b32 s{S_T0}, s{S_T0}, 3")
        p.s(f"s_lshl_b32 s{S_T0}, s{S_T0}, 13")
        p.s(f"s_add_u32 s{S_T0}, s{S_T0}, s{S_T1}")
        p.s(f"s_add_u32 s{S_T0}, s{S_T0}, s{S_RD}")
        p.s(f"s_add_u32 s{S_ST+i}, s{S_T0}, {((i - 1) >> 1) * 40960 + ((i - 1) & 1) * 1024}")
    p.s(f"s_lshl_b32 s{S_PO}, s{S_B}, 2")
    p.s(f"s_add_u32 s{S_PO}, s{S_PO}, s{S_W}")
    p.s(f"s_lshl_b32 s{S_PO}, s{S_PO}, 9")
    p.s(f"s_add_u32 s{S_PO}, s{S_PO}, {PFLG}")
    p.s(f"s_lshl_b32 s{S_FO}, s{S_G}, 3")
    p.s(f"s_add_u32 s{S_FO}, s{S_FO}, s{S_PO}")
    p.s(f"s_mul_i32 s{S_OUTO}, s{S_B}, {144 * 1280}")
    p.s(f"s_mul_i32 s{S_T1}, s{S_W}, 320")
    p.s(f"s_add_u32 s{S_OUTO}, s{S_OUTO}, s{S_T1}")
    p.s(f"s_mul_i32 s{S_JO}, s{S_G}, {16 * 1280}")
    p.s(f"s_add_u32 s{S_JO}, s{S_JO}, s{S_OUTO}")
    p.s(f"s_sub_u32 s{S_JO}, s{S_JO}, 64")
    p.s(f"s_mul_i32 s{S_T1}, s{S_G}, {4 * 40960}")
    p.s(f"s_add_u32 s{S_J8}, s{S_RD}, s{S_T1}")
    p.s(f"s_add_u32 s{S_J8}, s{S_J8}, 32768")
    p.s(f"s_lshl_b32 s{S_T1}, s{S_G}, 6")
    p.s(f"s_add_u32 s{S_JO8}, s{S_OUTO}, s{S_T1}")
    p.s(f"s_add_u32 s{S_JO8}, s{S_JO8}, {128 * 1280}")
    p.s(f"s_cmp_ge_u32 s{S_G}, 5")
    p.s(f"s_cselect_b32 s{S_J8}, {OOB:#x}, s{S_J8}")
    p.s(f"s_cselect_b32 s{S_JO8}, {OOB:#x}, s{S_JO8}")
    p.s(f"s_mov_b32 s{S_PC}, 0")

def pmod(name):
    p = Prog()
    p.label(f"{name}_P")
    if "F" in ABL: p.s(f"s_mov_b32 s{S_BAD}, 1")
    p.s(f"s_cmp_lg_u64 s[{S_BAD}:{S_BAD+1}], 0")
    p.s(f"s_cbranch_scc1 {name}_slow")
    p.label(f"{name}_P2")
    AO = (V_LIN, 2, 3)
    V_FA, V_OA = 4, 5
    PT, PT2 = 6, 8
    V_SA = 1
    SEL = 18
    POOL = [28 + 4 * k for k in range(16)]
    ACC = 92
    OWN = 124
    A8 = 164
    JB = (172, 204)
    CT = 244
    p.vop("v_add_u32", AO[1], "49152", V_LIN)
    p.vop("v_add_u32", AO[2], "98304", V_LIN)
    p.vop("v_mov_b32", V_SA, V_LIN)
    p.wait_all()
    p.barrier()
    stamp(p, 16)
    NL = int(E("PLEAD", "8"))
    def ooff(i, kq): return IMG(kq) + i * 1024
    for f in range(NL): p.ds_read128(POOL[f], AO[ooff(0, f) // 49152], ooff(0, f) % 49152)
    p.vop("v_lshrrev_b32", V_FA, "1", V_LIN)
    p.vop("v_and_b32", V_FA, "0x38", V_FA)
    p.vop("v_bfe_u32", CT, V_LIN, "4", "4")
    p.s(f"s_movk_i32 s{S_T0}, 1280")
    p.vop("v_mul_lo_u32", V_OA, CT, f"s{S_T0}")
    p.vop("v_lshrrev_b32", CT + 1, "8", V_LIN)
    p.vop("v_lshl_add_u32", V_OA, CT + 1, "4", V_OA)
    p.vop("v_mov_b32", PT2, f"s{S_NON}")
    p.vop("v_mov_b32", PT2 + 1, f"s{S_NON+1}")
    p.vop("v_and_b32", CT + 2, "1", CT)
    p.vop("v_lshlrev_b32", CT + 2, "4", CT + 2)
    p.s(f"s_movk_i32 s{S_T0}, 0x3f80")
    p.vop("v_lshlrev_b32", CT + 2, CT + 2, f"s{S_T0}")
    p.vop("v_lshrrev_b32", CT, "1", CT)
    p.vop("v_lshlrev_b32", CT + 1, "1", CT + 1)
    p.vop("v_sub_u32", CT, CT, CT + 1)
    for r in range(2):
        p.add(Ins(f"v_cmp_eq_u32 vcc, {r}, v{CT}", "valu", [CT], []))
        p.vop("v_mov_b32", SEL + r, "0")
        p.vop("v_mov_b32", SEL + 4 + r, "0")
        p.add(Ins(f"v_cndmask_b32 v{SEL+2+r}, 0, v{CT+2}, vcc", "valu", [CT + 2], [SEL + 2 + r]))
    def job_loads(p, sbase, offs, buf):
        for g, off in enumerate(offs):
            p.s(f"s_add_u32 s{S_T0}, s{sbase}, {off}")
            p.load4(buf + 4 * g, V_LIN, SRD_WS, f"s{S_T0}", 0, "job", "sc1")
    def job_reduce(p, sout, off, bufs, a, init):
        for g, bf in enumerate(bufs):
            for e in range(2): p.mfma(a + 4 * e, SEL + 2 - 2 * e, bf, None if (init and g == 0) else a + 4 * e)
        return lambda: ([p.cvtpk(a + r, a + 2 * r, a + 2 * r + 1) for r in range(4)],
                        p.store(a, 4, V_OA, SRD_OUT, f"s{sout}", off, tag="out", flags=E("OFL", "")))
    def flag(p, off, tag):
        p.wait_vm(tag)
        p.s("s_mov_b64 exec, 1")
        p.store(PT2, 2, V_LIN, SRD_WS, f"s{S_FO}", off, tag="flag", flags="sc1")
        p.s("s_mov_b64 exec, -1")
    FPOS = int(E("FPOS", "180")); WSP = float(E("WSP", "6")); PLAT = int(E("PLAT", "70")); CPOS = int(E("CPOS", "206")); WST = int(E("WST", "4"))
    jo = lambda mp: [(4 * mp + (g >> 1)) * 40960 + (g & 1) * 1024 for g in range(7)]
    def one_pass(par):
        q = Prog()
        q.label(f"{name}_pass{par}")
        if PROF == 4: stamp(q, 32, S_PC)
        q.wait_vm(("WT", par, 15))
        sc = Sched(q, budget=int(E("PBUD", "8")), late_extra=8)
        for qn in ("wl", "st", "jl"): sc.group[qn] = "vm"
        sc.pace["vm"] = int(E("PPACE", "4"))
        pool = Pool(sc, POOL, 16)
        acc = lambda i: OWN if i == 8 else ACC + 8 * (i % 4)
        for i in range(9):
            a = acc(i)
            for kq in range(16):
                cons = [(a + 4 * e, P_R[par][2 * kq + e], a + 4 * e if kq else None, ("P", i, kq, e)) for e in range(2)]
                pool.frag(0, lambda r: [R128(r, AO[ooff(i, kq) // 49152], ooff(i, kq) % 49152)], cons, as_b=True)
        mt = lambda i: sc.m[max(0, min(i, len(sc.m) - 1))][4]
        for f in range(NL, 144 + NL):
            (_, reads, cons, war) = pool.frags[f % 144]
            if f >= 144: war = pool.last[f % 16]
            if "R" not in ABL: sc.fill("rd", reads[0], 4, ds=True, after=war, before=mt(2 * (f - NL) + 1), early=2)
        for i in (16, 22, 28): sc.fill("ww", lambda p, i=i: p.wait_vm(("WT", par, min(31, i + 5))), 4, before=mt(i), early=0)
        def su(p):
            p.s(f"s_add_u32 s{S_WT}, s{S_WT}, 2048")
            p.s(f"s_cmp_eq_u32 s{S_PC}, 4")
            p.s(f"s_cselect_b32 s{S_WT}, {OOB:#x}, s{S_WT}")
        fill_dma(sc, [(su, 0)], None, mt(WST + 2), queue="wl", lead=6)
        for i in range(32):
            fill_dma(sc, [(wload(1 - par, i), 0)], mt(WST + int(WSP * i)), mt(WST + 12 + int(WSP * i)), queue="wl", lead=10)
        sc.fill("jl", lambda p: poll_issue(p, V_FA, f"s{S_PO}", 0, PT), 8, before=mt(CPOS - PLAT), early=4, solo=SOLO)
        for r in range(23, -1, -1): sc.fill("jr", lambda p, r=r: p.vop("v_mov_b32", OWN + 8 + r, OWN + r), 4, after=mt(40), before=mt(CPOS - 4), lead=4 * r)
        def cut(p):
            p.wait_vm("poll")
            p.s(f"s_cmp_lt_u32 s{S_PC}, 2")
            p.s(f"s_cbranch_scc1 {name}_nojob{par}")
            p.label("@CUT")
        sc.fill("jr", cut, 8, before=mt(CPOS), early=0)
        sc.fill("jr", lambda p: p.s(f"s_add_u32 s{S_PO}, s{S_PO}, 64"), 4)
        for i in range(8):
            a = acc(i)
            dl = mt(32 * i + 32 + 24)
            sc.fill("va", lambda p, a=a: p.cvtpk(a, a, a + 1), 4, after=dict(tag=("P", i, 15, 1), delay=4), before=dl, lead=10)
            sc.fill("va", lambda p, a=a: p.cvtpk(a + 1, a + 2, a + 3), 4)
            sc.fill("va", lambda p, a=a: p.cvtpk(a + 2, a + 4, a + 5), 4)
            sc.fill("va", lambda p, a=a: p.cvtpk(a + 3, a + 6, a + 7), 4, tag=("CV", i), before=dl, lead=10)
            def st(p, a=a, i=i):
                if "O" not in ABL: p.store(a, 4, V_SA, SRD_WS, f"s{S_ST+i}", 0, tag=("ps", i), flags=E("SFL", "sc1"))
            sc.fill("st", st, 8, after=("CV", i), before=dl, lead=20, tag=("ST", i), solo=SOLO)
        sc.fill("va", lambda p: p.vop("v_add_u32", V_SA, f"{4 * 40960}", V_SA), 4, after=("ST", 7))
        sc.fill("fl", lambda p: flag(p, 64, ("ps", 0)), 16, before=mt(FPOS), early=0)
        sc.fill("fl", lambda p: p.s(f"s_add_u32 s{S_FO}, s{S_FO}, 64"), 4)
        sc.fill("fl", lambda p: p.s(f"s_add_u32 s{S_PC}, s{S_PC}, 1"), 4, after=mt(270))
        sc.run()
        if par == 0:
            q.s(f"s_cmp_eq_u32 s{S_PC}, 5")
            q.s(f"s_cbranch_scc1 {name}_ptail")
        else: q.s(f"s_branch {name}_pass0")
        k = next(i for i, x in enumerate(q.ins) if x.text.startswith("@CUT"))
        q2 = Prog(); q2.label(f"{name}_nojob{par}"); q2.ins += q.ins[k + 1:]; q.ins = q.ins[:k]
        blk = Prog()
        poll_check(blk, f"{name}_pp{par}", V_FA, f"s{S_PO}", 0, PT)
        a = OWN + 24
        for g in range(7):
            for e in range(2): blk.mfma(a + 4 * e, SEL + 2 - 2 * e, JB[0] + 4 * g, a + 4 * e)
            job_loads(blk, S_J, [jo(0)[g]], JB[0] + 4 * g)
        blk.s(f"s_add_u32 s{S_J}, s{S_J}, {4 * 40960}")
        blk.s(f"s_cmp_eq_u32 s{S_PC}, 2")
        blk.s(f"s_cselect_b32 s{S_T0}, {OOB:#x}, s{S_JO}")
        blk.s(f"s_add_u32 s{S_JO}, s{S_JO}, 64")
        blk.wait_lgkm0()
        for r in range(4): blk.cvtpk(a + r, a + 2 * r, a + 2 * r + 1)
        blk.store(a, 4, V_OA, SRD_OUT, f"s{S_T0}", 0, tag="out", flags=E("OFL", ""))
        return q, blk, q2
    p.wait_lgkm0()
    pre = p
    pe, po = one_pass(0), one_pass(1)
    p = Prog()
    p.label(f"{name}_ptail")
    stamp(p, 17)
    poll_issue(p, V_FA, f"s{S_PO}", 0, PT)
    f2 = job_reduce(p, S_JO, 0, [JB[0] + 4 * g for g in range(7)], OWN + 16, False)
    flag(p, 64, ("ps", 7))
    poll_check(p, f"{name}_pp3", V_FA, f"s{S_PO}", 0, PT, 0)
    job_loads(p, S_J, jo(0), JB[0])
    job_loads(p, S_J8, [(g >> 2) * PARTH + (g & 3) * 40960 for g in range(8)], JB[1])
    poll_issue(p, V_FA, f"s{S_PO}", 64, PT)
    f2()
    stamp(p, 18)
    stamp(p, 19)
    poll_check(p, f"{name}_pp4", V_FA, f"s{S_PO}", 64, PT, 0)
    stamp(p, 20)
    job_loads(p, S_J, jo(1), POOL[8])
    f3 = job_reduce(p, S_JO, 64, [JB[0] + 4 * g for g in range(7)], OWN + 8, False)
    f8 = job_reduce(p, S_JO8, 0, [JB[1] + 4 * g for g in range(8)], A8, True)
    f3(); f8()
    job_reduce(p, S_JO, 128, POOL[8:15], OWN, False)()
    if PROF:
        p.wait_all()
        stamp(p, 21)
        p.s(f"s_lshl_b32 s{S_T0}, s2, 2")
        p.s(f"s_add_u32 s{S_T0}, s{S_T0}, s{S_W}")
        p.s(f"s_lshl_b32 s{S_T0}, s{S_T0}, 8")
        p.s(f"s_add_u32 s{S_T0}, s{S_T0}, {PROFOFF}")
        p.vop("v_lshrrev_b32", PT, "2", V_LIN)
        p.store(0, 1, PT, SRD_WS, f"s{S_T0}", 0)
        p.s(f"s_add_u32 s{S_T0}, s{S_T0}, 0x40000")
        p.store(255, 1, PT, SRD_WS, f"s{S_T0}", 0)
        if PROF == 5:
            p.s(f"s_cmp_lg_u32 s2, 77")
            p.s(f"s_cbranch_scc1 {name}_end")
            p.s(f"s_cmp_lg_u32 s{S_W}, 0")
            p.s(f"s_cbranch_scc1 {name}_end")
            p.raw("v_readlane_b32 s56, v0, 0")
            for k, ix in enumerate([23, 1, 2, 5, 6, 9, 10, 16, 17, 18, 20, 21]):
                p.raw(f"v_readlane_b32 s57, v0, {ix}")
                p.raw("s_nop 3")
                p.s("s_sub_u32 s57, s57, s56")
                p.raw(f"v_mov_b32 v30, s57")
                p.raw(f"buffer_store_dword v30, off, s[{SRD_DBG}:{SRD_DBG+3}], 0 offset:{8 + 4 * k}")
                p.raw("s_nop 1")
    p.label(f"{name}_end")
    p.raw("s_endpgm")
    return [pre, *pe, *po, p], [pre, pe[0], pe[2], po[0], po[2], *pe, *po, *pe, p]

def gen(name):
    pro = prologue(name)
    Q = qmod(name)
    AE = aentry(name)
    A = [amod(name, qh) for qh in range(2)]
    F, FB = afin(name)
    P, PS = pmod(name)
    SL, SLS = slow(name)
    segs = [pro, Q, AE, A[0], A[1], F, FB] + P + SL
    sims = [[(x, 1) for x in [pro, Q, AE, A[qh], F, FB, AE, A[qh], F] + PS] for qh in range(2)]
    sims.append([(x, 1) for x in [F] + SLS + PS])
    lines, stats = finalize([(x, 1) for x in segs], sims=sims)
    if int(E("ROLL", "1")):
        lines = roll(lines, "; ---- a step", 4, S_LOOP, f"{name}_aloop")
        lines = roll(lines, "; ---- q step", 4, S_LOOP, f"{name}_qloop")
    lines += [f".if {name}_end-{name}_nononce < {int(E('CPN0', '6')) * 8192}", '.error "code prefetch range"', ".endif"]
    return [f".globl {name}", ".p2align 8", f".type {name},@function", f"{name}:"] + lines, stats
```

```python
from asmlib import *
import math, struct, os
E = os.environ.get
PROF = int(E("PROF", "0"))
ABL = E("ABL", "")
def f2u(f): return struct.unpack("<I", struct.pack("<f", f))[0]
CSCALE = math.log2(math.e) / math.sqrt(128.0)
NWG = 256
LDS_BYTES = 163840
XSL = 18432
XRING = 131072
XALT = 65536 - XSL
WRING = 65536
MISC = 147456
def IMG(kq): return kq * 9216
DROP = 0x30000
OOB = 0x40000000
WOT = 0
PART = 128 * 40960
PARTH = 20 * 40960
PARTB = 2 * PARTH
WFLG = PART + 32 * PARTB
PFLG = WFLG + 8192
WSBYTES = PFLG + 65536
PROFOFF = 0x4000000

SRD_X, SRD_K, SRD_V, SRD_W, SRD_WS, SRD_WO, SRD_OUT, SRD_DBG = 8, 12, 16, 20, 24, 28, 32, 36
S_W = 3
S_T0, S_T1, S_B, S_G, S_P, S_T2 = 40, 41, 42, 43, 44, 45
S_CS, S_NON, S_SPIN, S_PH, S_GRP, S_SO = 46, 48, 50, 51, 52, 53
S_BAD = 54
S_KOFF, S_VOFF, S_KB, S_KVN, S_M0KV, S_WFP = 56, 57, 58, 59, 60, 61
S_WOFF, S_WB, S_XOFF, S_XB = 62, 63, 65, 66
S_M0W, S_M0X8 = 75, 72
S_WT, S_PT, S_PF, S_RD, S_OUTO = 76, 77, 78, 79, 80
S_LO, S_HI = 81, 82
S_TM = 84
S_VB = 88
S_M0KVP, S_KVP, S_M0D, S_U = 89, 91, 94, 95
S_LOOP = 92
S_WT2 = 98
S_XM = 96

V_DK, V_DV, V_DW, V_DX = 1, 5, 9, 13
V_AK, V_AV0, V_AV1, V_AX, V_AX8, V_LIN = 18, 19, 20, 21, 22, 24
V_E0, V_E1, V_E2 = 25, 26, 27
V_S = 28
V_AW = V_S + 40
V_O = 84
V_T = 244
V_NV = 252
V_JUNK = 254
A_Q, A_QN, A_L, A_ONE, A_POOL, A_X = 256, 336, 416, 436, 440, 472
A_QP = 480
NPOOL = 8
def Qf(n, ks, base=A_Q): return base + (n * 4 + ks) * 4
def Oa(n, m): return V_O + (n * 8 + m) * 4
def XS(par, n): return V_S + (par * 4 + n) * 4 if n < 4 else V_S + 48
def YS(n): return V_S + 32 + n * 4 if n < 4 else V_S + 52
def La(n): return A_L + 4 * n
def Xf(st, t): return V_S + (st * 5 + t) * 4
def QA(r, n, m): return (A_QN if r else V_O) + (n * 8 + m) * 4

def stamp(p, idx, dyn=None):
    if not PROF: return
    p.s(f"s_memrealtime s[{S_TM}:{S_TM+1}]")
    p.s(f"s_memtime s[{S_TM+2}:{S_TM+3}]")
    p.wait_lgkm0()
    if dyn is None:
        p.raw(f"v_writelane_b32 v0, s{S_TM}, {idx}")
        p.raw(f"v_writelane_b32 v255, s{S_TM+2}, {idx}")
    else:
        p.s("s_mov_b32 s99, m0")
        p.s(f"s_lshl_b32 m0, s{dyn}, 2")
        p.s(f"s_add_u32 m0, m0, {idx}")
        p.raw(f"v_writelane_b32 v0, s{S_TM}, m0")
        p.raw(f"v_writelane_b32 v255, s{S_TM+2}, m0")
        p.s("s_mov_b32 m0, s99")

KVSEQ = [("K", 0)]
for u in range(15): KVSEQ += [("K", u + 1), ("V", u)]
KVSEQ += [("V", 15)]
KVPOS = {t: i for i, t in enumerate(KVSEQ)}
DYN = (10, 30)
SRD_C = SRD_WO
S_ROT, S_C, S_D = S_KOFF, S_VOFF, S_VB
def kv_ops(pos):
    pre = pos >= 32; pos %= 32
    kind, u = KVSEQ[pos]
    dyn = DYN[0] <= pos <= DYN[1] and not pre
    ops = []
    for j in range(4):
        def f(p, j=j):
            if dyn:
                if j == 0:
                    if pos == DYN[0]:
                        p.s(f"s_add_u32 s{S_C}, s{S_ROT}, {u * 8192}")
                        p.s(f"s_and_b32 s{S_C}, s{S_C}, 0x1ffff")
                        p.s(f"s_mov_b32 s{S_D}, {16384 if kind == 'V' else -8192}")
                        p.s(f"s_mov_b32 s{S_M0D}, {(pos % 8) * 16384}")
                    p.s(f"s_cmp_gt_i32 s{S_D}, 0")
                    p.s(f"s_cselect_b64 s[{SRD_C}:{SRD_C+1}], s[{SRD_V}:{SRD_V+1}], s[{SRD_K}:{SRD_K+1}]")
                    p.s(f"s_add_u32 m0, s{S_M0KV}, s{S_M0D}")
                    p.s(f"s_add_u32 s{S_SO}, s{S_KB}, s{S_C}")
                if "D" not in ABL: p.dmao(V_DV + j, SRD_C, f"s{S_SO}", j * 1024, (kind, u), "nt")
                if j == 0: p.s(f"s_add_u32 s{S_C}, s{S_C}, s{S_D}")
                if j == 1:
                    p.s(f"s_and_b32 s{S_C}, s{S_C}, 0x1ffff")
                    p.s(f"s_sub_u32 s{S_D}, 8192, s{S_D}")
                if j == 2:
                    p.s(f"s_add_u32 s{S_M0D}, s{S_M0D}, 16384")
                    p.s(f"s_and_b32 s{S_M0D}, s{S_M0D}, 0x1ffff")
                return
            if j == 0:
                if pre: p.s(f"s_add_u32 m0, s{S_M0KVP + (pos >> 2)}, {(pos % 4) * 16384}")
                else: p.s(f"s_add_u32 m0, s{S_M0KV}, {(pos % 8) * 16384}")
                p.s(f"s_add_u32 s{S_SO}, s{S_ROT}, {u * 8192}")
                p.s(f"s_and_b32 s{S_SO}, s{S_SO}, 0x1ffff")
                p.s(f"s_add_u32 s{S_SO}, s{S_SO}, s{S_KVP if pre else S_KB}")
            if "D" not in ABL: p.dmao(V_DV + j, SRD_K if kind == "K" else SRD_V, f"s{S_SO}", j * 1024, (kind, u), "nt")
        ops.append((f, 8))
    return ops
def w_ops(h):
    ops = []
    for j in range(4):
        def f(p, j=j):
            if j == 0:
                p.s(f"s_add_u32 m0, s{S_M0W}, {(h % 4) * 16384}")
                p.s(f"s_add_u32 s{S_SO}, s{S_WB + (h & 1)}, s{S_WOFF}")
            if "W" not in ABL: p.dmao(V_DW + j, SRD_W, f"s{S_SO}", j * 1024, ("W", h))
            if j == 1 and h % 2 == 1: p.s(f"s_add_u32 s{S_WOFF}, s{S_WOFF}, {32 * 8192}")
            if j == 2 and h % 4 == 3:
                p.s(f"s_cmp_ge_u32 s{S_WOFF}, {640 * 8192}")
                p.s(f"s_cselect_b32 s{S_WOFF}, 0, s{S_WOFF}")
        ops.append((f, 12 if j == 0 or (j == 2 and h % 4 == 3) else 8 if j == 1 and h % 2 else 4))
    return ops
def x_ops(i):
    ops = []
    sb = XRING if i else XALT
    for j in range(5):
        def f(p, j=j):
            if j == 0:
                p.s(f"s_add_u32 m0, s{S_M0KV}, {sb}")
                p.s(f"s_add_u32 s{S_SO}, s{S_XB}, s{S_XOFF}")
            if "X" not in ABL: p.dmao(V_DX + j, SRD_X, f"s{S_SO}", (j & 3) * 1024, ("X", i))
            if j == 1: p.s(f"s_add_u32 s{S_XOFF}, s{S_XOFF}, 128")
            if j == 2:
                p.s(f"s_cmp_ge_u32 s{S_XOFF}, 1280")
                p.s(f"s_cselect_b32 s{S_XOFF}, 0, s{S_XOFF}")
            if j == 3:
                p.s(f"s_add_u32 m0, s{S_M0X8}, {sb}")
                p.nop(0)
        ops.append((f, 12 if j in (0, 2, 3) else 8 if j == 1 else 4))
    return ops

def split_ops(ops):
    q = Prog()
    for f, _ in ops: f(q)
    out = []; i = 0; L = [x for x in q.ins if x.kind != "nop"]
    while i < len(L):
        grp = [L[i]]
        if L[i].text.startswith("s_cmp"): grp.append(L[i + 1])
        i += len(grp)
        out.append((lambda p, grp=grp: [p.add(x) for x in grp], "vm" if grp[0].kind in ("vm", "vml", "vms") else "s", 4 * len(grp)))
    return out
def fill_dma(sc, ops, after, before, tag=None, queue="dma", lead=80):
    so = split_ops(ops)
    for k, (fn, kind, cost) in enumerate(so):
        sc.fill(queue, fn, 8 if kind == "vm" else cost, after=after, before=before, lead=lead, solo=(kind == "vm" and SOLO), paced=(kind == "vm"),
                tag=tag if k == len(so) - 1 else None)
SOLO = int(E("SOLO", "1"))
T7 = int(E("T7", "0"))
def sprinkle(progs, ops, lo=0.0, hi=1.0):
    pts = []
    for p, st in progs:
        masked = False
        for i in range(st, len(p.ins)):
            x = p.ins[i]
            if x.text.startswith("s_mov_b64 exec"): masked = not x.text.endswith("-1")
            if x.kind == "label" and not x.text.startswith(";"): break
            if x.kind in ("valu", "perm") and not masked and p.ins[i - 1].kind in ("valu", "perm") and "v_cmp" not in x.text and "v_cmp" not in p.ins[i - 1].text: pts.append((p, i))
    a, b = int(lo * len(pts)), int(hi * len(pts))
    sel = [pts[a + (k * (b - a)) // len(ops)] for k in range(len(ops))]
    for (p, i), (fn, _) in reversed(list(zip(sel, ops))):
        q = Prog(); fn(q)
        p.ins[i:i] = q.ins

CPF = int(E("CPF", "1"))
def code_prefetch(p, name, k, target, nchunk, t):
    if not CPF: return
    p.s(f"s_getpc_b64 s[{S_TM}:{S_TM+1}]")
    p.label(f"{name}_pc{k}")
    p.s(f"s_sub_u32 s{S_TM}, s{S_TM}, {name}_pc{k}-{name}")
    p.s(f"s_subb_u32 s{S_TM+1}, s{S_TM+1}, 0")
    p.s(f"s_add_u32 s{S_TM}, s{S_TM}, {target}-{name}")
    p.s(f"s_addc_u32 s{S_TM+1}, s{S_TM+1}, 0")
    p.s(f"s_lshr_b32 s{S_T0}, s2, 1")
    p.s(f"s_and_b32 s{S_T0}, s{S_T0}, 0x7c")
    p.s(f"s_add_u32 s{S_T0}, s{S_T0}, s{S_W}")
    p.s(f"s_cmp_ge_u32 s{S_T0}, {nchunk}")
    p.s(f"s_cbranch_scc1 {name}_pf{k}")
    p.s(f"s_lshl_b32 s{S_T0}, s{S_T0}, 13")
    p.s(f"s_add_u32 s{S_TM}, s{S_TM}, s{S_T0}")
    p.s(f"s_addc_u32 s{S_TM+1}, s{S_TM+1}, 0")
    p.raw(f"v_lshlrev_b32 v{t}, 3, v{V_LIN}")
    p.raw(f"v_mov_b32 v{t+1}, s{S_TM+1}")
    p.raw(f"v_add_co_u32 v{t}, vcc, s{S_TM}, v{t}")
    p.raw("s_nop 1")
    p.raw(f"v_addc_co_u32 v{t+1}, vcc, 0, v{t+1}, vcc")
    p.raw(f"global_load_dword v{V_JUNK}, v[{t}:{t+1}], off")
    p.label(f"{name}_pf{k}")

def get_nonce(p, name, t):
    p.add(Ins(f"v_readfirstlane_b32 s{S_NON}, v{V_NV}", "rfl", [V_NV], []))
    p.add(Ins(f"v_readfirstlane_b32 s{S_NON+1}, v{V_NV+1}", "rfl", [V_NV + 1], []))
    p.s(f"s_cmp_lt_i32 s{S_NON+1}, 0")
    p.s(f"s_cbranch_scc1 {name}_x")
    p.vop("v_mov_b32", t + 2, "0")
    p.label(f"{name}")
    p.raw(f"buffer_load_dwordx2 v[{t}:{t+1}], v{t+2}, s[{SRD_DBG}:{SRD_DBG+3}], 0 offen sc1")
    p.raw("s_waitcnt vmcnt(0)")
    p.raw(f"v_readfirstlane_b32 s{S_NON}, v{t}")
    p.raw(f"v_readfirstlane_b32 s{S_NON+1}, v{t+1}")
    p.s(f"s_sub_u32 s{S_SPIN}, s{S_SPIN}, 1")
    p.s(f"s_cbranch_scc1 {name}_x")
    p.s(f"s_cmp_lt_i32 s{S_NON+1}, 0")
    p.s(f"s_cbranch_scc0 {name}")
    p.label(f"{name}_x")
    p.nop(1)

def publish(p, soff, off, t):
    p.vop("v_mov_b32", t, f"s{S_NON}")
    p.vop("v_mov_b32", t + 1, f"s{S_NON+1}")
    p.s("s_mov_b64 exec, 1")
    p.store(t, 2, V_LIN, SRD_WS, soff, off, tag="flag", flags="sc1")
    p.s("s_mov_b64 exec, -1")

def poll_issue(p, vaddr, soff, off, t):
    p.add(Ins(f"buffer_load_dwordx2 v[{t}:{t+1}], v{vaddr}, s[{SRD_WS}:{SRD_WS+3}], {soff} offen offset:{off} sc1", "vml", [vaddr], [t, t + 1], tag="poll"))
def poll_check(p, name, vaddr, soff, off, t, slp=2):
    p.label(f"{name}")
    p.add(Ins(f"v_cmp_ne_u32 vcc, s{S_NON}, v{t}", "valu", [t], []))
    p.add(Ins(f"v_cmp_ne_u32 s[{S_TM+2}:{S_TM+3}], s{S_NON+1}, v{t+1}", "valu", [t + 1], []))
    p.s(f"s_or_b64 vcc, vcc, s[{S_TM+2}:{S_TM+3}]")
    p.s(f"s_cbranch_scc0 {name}_ok")
    p.s(f"s_sub_u32 s{S_SPIN}, s{S_SPIN}, 1")
    p.s(f"s_cbranch_scc1 {name}_ok")
    if slp: p.s(f"s_sleep {slp}")
    p.raw(f"buffer_load_dwordx2 v[{t}:{t+1}], v{vaddr}, s[{SRD_WS}:{SRD_WS+3}], {soff} offen offset:{off} sc1")
    p.raw("s_waitcnt vmcnt(0)")
    p.s(f"s_branch {name}")
    p.label(f"{name}_ok")

def prologue(name):
    p = Prog()
    p.s(f"s_cmp_ge_u32 s2, {NWG}")
    p.s(f"s_cbranch_scc1 {name}_end")
    p.s("s_load_dwordx8 s[84:91], s[0:1], 0")
    p.s("s_load_dwordx8 s[92:99], s[0:1], 32")
    T = V_O
    W, L, a, b, c, d, U, P, VV, R8, PI, M, G, cv = range(T, T + 14)
    p.vop("v_lshrrev_b32", W, "6", 0)
    p.vop("v_and_b32", L, "63", 0)
    p.add(Ins(f"v_readfirstlane_b32 s{S_W}, v{W}", "rfl", [W], []))
    p.vop("v_and_b32", U, "1", W)
    p.vop("v_lshrrev_b32", P, "1", W)
    p.vop("v_lshrrev_b32", VV, "5", L)
    p.vop("v_bfe_u32", R8, L, "2", "3")
    p.vop("v_and_b32", PI, "3", L)
    p.s(f"s_movk_i32 s{S_T0}, 1280")
    p.vop("v_mul_lo_u32", a, R8, f"s{S_T0}")
    p.vop("v_lshl_add_u32", a, VV, "6", a)
    p.vop("v_xor_b32", c, "3", PI)
    p.vop("v_lshl_add_u32", V_DX, PI, "4", a)
    p.vop("v_lshl_add_u32", b, c, "4", a)
    p.vop("v_add_u32", V_DX + 1, f"{9216}", b)
    p.vop("v_add_u32", V_DX + 2, f"{2 * 9216}", V_DX)
    p.vop("v_add_u32", V_DX + 3, f"{3 * 9216}", b)
    p.vop("v_lshrrev_b32", d, "2", R8)
    p.vop("v_lshlrev_b32", cv, "1", d)
    p.vop("v_xor_b32", cv, cv, PI)
    p.vop("v_and_b32", b, "3", R8)
    p.vop("v_lshl_add_u32", b, d, "3", b)
    p.vop("v_lshlrev_b32", d, "7", U)
    p.vop("v_lshl_add_u32", d, VV, "6", d)
    p.vop("v_lshl_add_u32", b, b, "13", d)
    p.vop("v_lshl_add_u32", V_DW, cv, "4", b)
    for j in range(1, 4): p.vop("v_add_u32", V_DW + j, f"{(16 * (j & 1) + 4 * (j >> 1)) * 8192 - 1024 * j}", V_DW)
    p.vop("v_mul_u32_u24", b, "3", P)
    p.vop("v_xor_b32", b, b, PI)
    p.vop("v_lshl_add_u32", b, b, "4", a)
    p.vop("v_lshlrev_b32", a, "2", W)
    p.vop("v_sub_u32", a, P, a)
    p.vop("v_add_u32", a, "16", a)
    p.s(f"s_movk_i32 s{S_T1}, {8 * 1280}")
    p.vop("v_mul_lo_u32", a, a, f"s{S_T1}")
    p.vop("v_add_u32", a, a, b)
    p.vop("v_lshl_add_u32", V_DX + 4, U, "30", a)
    MAP = int(E("MAP", "0"))
    p.s(f"s_bfe_u32 s{S_T0}, s2, {(MAP << 16) | 3:#x}")
    p.s(f"s_lshr_b32 s{S_T2}, s2, {3 + MAP}")
    p.s(f"s_and_b32 s{S_G}, s2, {(1 << (3 - MAP)) - 1}")
    p.s(f"s_lshl_b32 s{S_G}, s{S_G}, {MAP}")
    p.s(f"s_or_b32 s{S_G}, s{S_G}, s{S_T0}")
    p.s(f"s_bfe_u32 s{S_B}, s2, {(MAP << 16) | (3 - MAP):#x}")
    p.s(f"s_lshl_b32 s{S_B}, s{S_B}, {5 - MAP}")
    p.s(f"s_or_b32 s{S_B}, s{S_B}, s{S_T2}")
    p.s(f"s_lshl_b32 s{S_T0}, s{S_T0}, {5 - MAP}")
    p.s(f"s_lshl_b32 s{S_T2}, s{S_T2}, {MAP}")
    p.s(f"s_add_u32 s{S_T2}, s{S_T2}, s{S_T0}")
    p.s(f"s_and_b32 s{S_T2}, s{S_T2}, 31")
    p.s(f"s_lshr_b32 s{S_P}, s{S_W}, 1")
    p.s(f"s_lshl_b32 s{S_M0KV}, s{S_W}, 12")
    p.s(f"s_add_u32 s{S_M0W}, s{S_M0KV}, {WRING}")
    p.s(f"s_lshl_b32 s{S_M0X8}, s{S_P}, 10")
    p.s(f"s_add_u32 s{S_M0X8}, s{S_M0X8}, 16384")
    p.s(f"s_bitcmp1_b32 s{S_W}, 0")
    p.s(f"s_cselect_b32 s{S_M0X8}, 0x1d000, s{S_M0X8}")
    p.s(f"s_lshl_b32 s{S_T0}, s{S_G}, 2")
    p.s(f"s_add_u32 s{S_T0}, s{S_T0}, s{S_P}")
    p.s(f"s_lshl_b32 s{S_WB}, s{S_T0}, 8")
    p.s(f"s_add_u32 s{S_WB+1}, s{S_WB}, 512")
    p.s(f"s_lshl_b32 s{S_T1}, s{S_B}, 5")
    p.s(f"s_add_u32 s{S_T0}, s{S_T0}, s{S_T1}")
    p.s(f"s_lshl_b32 s{S_KVN}, s{S_T0}, 17")
    p.s(f"s_mul_i32 s{S_T0}, s{S_T2}, 5")
    p.s(f"s_lshr_b32 s{S_T0}, s{S_T0}, 4")
    if not int(E("ROT", "1")): p.s(f"s_mov_b32 s{S_T0}, 0")
    p.s(f"s_lshl_b32 s{S_XOFF}, s{S_T0}, 7")
    p.s(f"s_lshl_b32 s{S_WOFF}, s{S_T0}, 19")
    p.s(f"s_mul_i32 s{S_XB}, s{S_B}, {144 * 1280}")
    p.s(f"s_mul_i32 s{S_T0}, s{S_W}, {32 * 1280}")
    p.s(f"s_add_u32 s{S_XB}, s{S_XB}, s{S_T0}")
    def srd(r, src, size):
        p.s(f"s_mov_b32 s{r+2}, {size:#x}")
        p.s(f"s_mov_b32 s{r+3}, 0x20000")
    def srd2(r, src):
        p.s(f"s_mov_b32 s{r}, s{src}")
        p.s(f"s_and_b32 s{r+1}, s{src+1}, 0xffff")
    SR = ((SRD_X, 84, 32 * 144 * 640 * 2), (SRD_W, 90, 640 * 4096 * 2), (SRD_K, 86, 1 << 27), (SRD_V, 88, 1 << 27),
          (SRD_WO, 92, 4096 * 640 * 2), (SRD_OUT, 94, 32 * 144 * 640 * 2), (SRD_DBG, 96, 256), (SRD_WS, 98, (1 << 28) if PROF else WSBYTES))
    for x in SR: srd(*x)
    p.s("s_waitcnt lgkmcnt(0)")
    for x in SR[:2]: srd2(*x[:2])
    for ops in (x_ops(0), w_ops(0), w_ops(1)):
        for f, _ in ops: f(p)
    for x in SR[2:]: srd2(*x[:2])
    stamp(p, 0)
    p.vop("v_lshlrev_b32", V_LIN, "4", L)
    code_prefetch(p, name, 0, f"{name}_nononce", int(E("CPN0", "6")), V_T)
    p.vop("v_lshl_add_u32", b, R8, "8", d)
    p.vop("v_lshl_add_u32", V_DV, cv, "4", b)
    for j in range(1, 4): p.vop("v_add_u32", V_DV + j, f"{1024 * j}", V_DV)
    p.s(f"s_lshl_b32 s{S_T0}, s2, 1")
    p.s(f"s_add_u32 s{S_T0}, s{S_T0}, s{S_P}")
    p.s(f"s_mul_i32 s{S_T0}, s{S_T0}, {int(E('KROT', '5'))}")
    p.s(f"s_lshr_b32 s{S_T1}, s2, 3")
    p.s(f"s_add_u32 s{S_T0}, s{S_T0}, s{S_T1}")
    p.s(f"s_and_b32 s{S_T0}, s{S_T0}, {15 if int(E('KROT', '5')) else 0}")
    p.s(f"s_lshl_b32 s{S_KOFF}, s{S_T0}, 13")
    p.s(f"s_mov_b32 s{S_M0KVP}, s{S_M0KV}")
    p.s(f"s_mov_b32 s{S_M0KVP+1}, s{S_M0W}")
    p.s(f"s_mov_b32 s{S_KVP}, s{S_KVN}")
    p.s(f"s_and_b32 s{S_U}, s{S_W}, 1")
    p.s(f"s_lshl_b32 s{S_T0}, s{S_B}, 2")
    p.s(f"s_lshr_b32 s{S_T1}, s{S_G}, 1")
    p.s(f"s_add_u32 s{S_T0}, s{S_T0}, s{S_T1}")
    p.s(f"s_and_b32 s{S_T1}, s{S_G}, 1")
    p.s(f"s_lshl_b32 s{S_T1}, s{S_T1}, 2")
    p.s(f"s_add_u32 s{S_T1}, s{S_T1}, s{S_W}")
    p.s(f"s_lshr_b32 s{S_WFP}, s{S_T1}, 1")
    p.s(f"s_lshl_b32 s{S_WFP}, s{S_WFP}, 7")
    p.s(f"s_add_u32 s{S_WFP}, s{S_WFP}, s{S_T0}")
    p.s(f"s_lshl_b32 s{S_WFP}, s{S_WFP}, 1")
    p.s(f"s_add_u32 s{S_WFP}, s{S_WFP}, s{S_U}")
    p.s(f"s_lshl_b32 s{S_WFP}, s{S_WFP}, 3")
    p.s(f"s_add_u32 s{S_WFP}, s{S_WFP}, {WFLG}")
    p.s(f"s_mul_i32 s{S_T1}, s{S_T1}, 5")
    p.s(f"s_mul_i32 s{S_T0}, s{S_T0}, 40960")
    p.s(f"s_lshl_b32 s{S_PT}, s{S_T1}, 10")
    p.s(f"s_add_u32 s{S_PT}, s{S_PT}, s{S_T0}")
    p.s(f"s_and_b32 s{S_T1}, s{S_G}, 1")
    p.s(f"s_mul_i32 s{S_T1}, s{S_T1}, 640")
    p.s(f"s_add_u32 s{S_WT}, s{S_T1}, s{S_T0}")
    p.s(f"s_mul_i32 s{S_T1}, s{S_W}, {8 * 1280}")
    p.s(f"s_add_u32 s{S_WT}, s{S_WT}, s{S_T1}")
    p.s(f"s_lshl_b32 s{S_RD}, s{S_W}, 10")
    if int(E("TOUCH", "1")):
        p.add(Ins(f"buffer_load_dword v{V_T+4}, off, s[{SRD_K}:{SRD_K+3}], s{S_KVN} nt", "vml", [], [V_T + 4], tag="touch"))
        p.add(Ins(f"buffer_load_dword v{V_T+5}, off, s[{SRD_V}:{SRD_V+3}], s{S_KVN} nt", "vml", [], [V_T + 5], tag="touch"))
        p.add(Ins(f"buffer_load_dword v{V_T+7}, off, s[{SRD_WS}:{SRD_WS+3}], s{S_PT} sc1", "vml", [], [V_T + 7], tag="touch"))
    p.s(f"s_or_b32 s{S_T0}, s2, s{S_W}")
    p.s(f"s_cmp_lg_u32 s{S_T0}, 0")
    p.s(f"s_cbranch_scc1 {name}_nononce")
    p.s(f"s_memrealtime s[{S_NON}:{S_NON+1}]")
    p.s("s_waitcnt lgkmcnt(0)")
    p.s(f"s_or_b32 s{S_NON+1}, s{S_NON+1}, 0x80000000")
    p.raw(f"v_mov_b32 v{V_T}, s{S_NON}")
    p.raw(f"v_mov_b32 v{V_T+1}, s{S_NON+1}")
    p.s("s_mov_b64 exec, 1")
    p.raw(f"buffer_store_dwordx2 v[{V_T}:{V_T+1}], v{V_LIN}, s[{SRD_DBG}:{SRD_DBG+3}], 0 offen sc1")
    p.s("s_mov_b64 exec, -1")
    p.label(f"{name}_nononce")
    p.s(f"s_mov_b32 s{S_SPIN}, 0x40000")
    p.s(f"s_mov_b32 s{S_PH}, 0")
    if PROF in (2, 3): p.s("s_mov_b32 s93, 32")
    p.s(f"s_mov_b64 s[{S_BAD}:{S_BAD+1}], 0")
    p.s(f"s_mov_b32 s{S_CS}, {f2u(CSCALE):#x}")
    p.s(f"s_mov_b32 s{S_CS+1}, s{S_CS}")
    p.s(f"s_mov_b32 s{S_LO}, {f2u(2.0 ** -16):#x}")
    p.s(f"s_mov_b32 s{S_HI}, {f2u(2.0 ** 24):#x}")
    p.vop("v_and_b32", M, "15", L)
    p.vop("v_lshrrev_b32", G, "4", L)
    p.vop("v_lshrrev_b32", a, "3", M)
    p.vop("v_mul_u32_u24", c, "3", a)
    p.vop("v_xor_b32", c, c, G)
    p.vop("v_and_b32", b, "7", M)
    p.vop("v_lshlrev_b32", b, "6", b)
    p.vop("v_lshl_add_u32", b, c, "4", b)
    p.vop("v_lshl_add_u32", b, a, "10", b)
    p.vop("v_add_u32", V_AX8, f"{XRING}", b)
    p.vop("v_lshl_add_u32", V_AX, U, "13", V_AX8)
    p.vop("v_add_u32", V_AW + 5, f"{XALT}", b)
    p.vop("v_lshl_add_u32", V_AW + 4, U, "13", V_AW + 5)
    p.vop("v_and_b32", c, "0x1ff", V_LIN)
    p.vop("v_lshl_add_u32", c, VV, "10", c)
    p.s(f"s_mul_i32 s{S_T2}, s{S_W}, 5")
    for f in range(5):
        p.s(f"s_lshr_b32 s{S_T0}, s{S_T2}, 2")
        p.s(f"s_lshl_b32 s{S_T0}, s{S_T0}, 12")
        p.s(f"s_and_b32 s{S_T1}, s{S_T2}, 2")
        p.s(f"s_lshl_b32 s{S_T1}, s{S_T1}, 8")
        p.s(f"s_add_u32 s{S_T0}, s{S_T0}, s{S_T1}")
        p.s(f"s_and_b32 s{S_T1}, s{S_T2}, 1")
        p.s(f"s_lshl_b32 s{S_T1}, s{S_T1}, 3")
        p.s(f"s_add_u32 s{S_T0}, s{S_T0}, s{S_T1}")
        p.vop("v_add_u32", V_O + 144 + f, f"s{S_T0}", c)
        p.s(f"s_add_u32 s{S_T2}, s{S_T2}, 1")
    p.vop("v_and_b32", b, "0xffffffcf", b)
    p.vop("v_bfe_u32", a, M, "2", "1")
    p.vop("v_lshlrev_b32", a, "1", a)
    p.vop("v_xor_b32", a, a, G)
    p.vop("v_lshl_add_u32", b, a, "4", b)
    p.vop("v_lshl_add_u32", V_AK, P, "13", b)
    p.vop("v_lshrrev_b32", a, "1", G)
    p.vop("v_lshlrev_b32", b, "10", a)
    p.vop("v_lshl_add_u32", b, R8, "6", b)
    p.vop("v_and_b32", c, "1", L)
    p.vop("v_lshl_add_u32", b, c, "3", b)
    p.vop("v_bfe_u32", c, L, "1", "1")
    p.vop("v_lshl_add_u32", b, c, "4", b)
    p.vop("v_and_b32", c, "1", G)
    p.vop("v_lshl_add_u32", b, c, "5", b)
    p.vop("v_lshl_add_u32", V_AV0, P, "13", b)
    p.vop("v_xor_b32", V_AV1, "32", V_AV0)
    p.vop("v_lshl_add_u32", a, U, "12", V_AV0)
    p.vop("v_xor_b32", b, "32", a)
    p.vop("v_xor_b32", c, "4096", a)
    p.vop("v_xor_b32", d, "4096", b)
    for i, r in enumerate((a, b, c, d)): p.vop("v_add_u32", V_AW + i, f"{WRING}", r)
    for ops in (w_ops(2), x_ops(1), w_ops(3)):
        for f, _ in ops: f(p)
    stamp(p, 23)
    return p

def R128(d, a, off): return lambda p: p.ds_read128(d, a, off)
def TR(d, a, off): return lambda p: p.ds_tr(d, a, off)

class Pool:
    def __init__(self, sc, base, n):
        self.sc = sc; self.regs = base if isinstance(base, list) else [base + 4 * k for k in range(n)]; n = len(self.regs); self.n = n; self.last = [None] * n; self.i = 0; self.frags = []
    def frag(self, tile, mk_reads, consumers, as_b=False):
        k = self.i % self.n; self.i += 1
        r = self.regs[k]
        war = self.last[k]
        for (d, o, c, tag) in consumers:
            if as_b: self.sc.mfma(d, o, r, c, tag)
            else: self.sc.mfma(d, r, o, c, tag)
        self.last[k] = consumers[-1][3]
        self.frags.append((tile, mk_reads(r), consumers[0][3], war))

LEAD = int(E("LEAD", "9"))
LEADB = int(E("LEADB", "8"))
BGAP = int(E("BGAP", "4"))

def sstamp(p):
    p.s(f"s_memrealtime s[{S_TM}:{S_TM+1}]")
    p.s(f"s_memtime s[{S_TM+2}:{S_TM+3}]")
    p.wait_lgkm0()
    p.s("s_mov_b32 s99, m0")
    p.s("s_mov_b32 m0, s93")
    p.s("s_add_u32 s93, s93, 1")
    p.raw(f"v_writelane_b32 v0, s{S_TM}, m0")
    p.raw(f"v_writelane_b32 v255, s{S_TM+2}, m0")
    p.s("s_mov_b32 m0, s99")

def qmod(name):
    p = Prog()
    KVS = [int(x) for x in E("KVS", "29,31,33,35,37").split(",")]
    sc = Sched(p, budget=int(E("QBUD", "8")), late_extra=8)
    sc.group["dma"] = "vm"; sc.pace["vm"] = int(E("QPACE", "4"))
    sc.maxds = int(E("QMAXDS", "1"))
    pool = Pool(sc, A_QP, NPOOL)
    for h in range(40):
        r = h & 1; st = (h >> 1) & 1
        for k in range(8):
            off = (h % 4) * 16384 + ((k >> 1) & 1) * 512
            ad = V_AW + 2 * (k >> 2) + (k & 1)
            cons = [(QA(r, n, k), Xf(st, n), QA(r, n, k) if h > 1 else None, ("Q", h, k, n)) for n in range(5 if k < 4 else 4)]
            pool.frag(h, lambda rg: [TR(rg, ad, off), TR(rg + 2, ad, off + 2048)], cons)
    mt = lambda i: sc.m[max(0, min(i, len(sc.m) - 1))][4]
    def xreads(i, kh):
        return [R128(Xf(kh, n), (V_AX if i else V_AW + 4) + (n >> 2), (n if n < 4 else 8) * 2048 + kh * 512) for n in range(5)]
    WOS = int(E("WOS", "0")); WOR = int(E("WOR", "28"))
    def wop():
        ops = []
        for cb in range(5):
            def f(p, cb=cb):
                p.s(f"s_add_u32 m0, s{S_RD}, {cb * (4096 - 128)}")
                p.dmao(V_DX, SRD_WO, f"s{S_WT}", cb * 128, "WOP", E("WOFL", ""))
            ops.append((f, 8))
        return ops
    def wst():
        def f(p):
            for i in range(5):
                if i == 4: p.s(f"s_add_u32 s{S_PT}, s{S_PT}, 4096")
                p.store(A_Q + 4 * i, 4, V_LIN, SRD_WS, f"s{S_PT}", (i % 4) * 1024, tag="wst", flags="sc1")
        return [(f, 20)]
    for fi, (h, reads, cons, war) in enumerate(pool.frags):
        c0 = 36 * h
        tau = c0 - LEADB
        taun = c0 + 36 - LEADB
        if fi % 8 == 0:
            def bar(p, h=h):
                p.comment(f"---- q step {h}")
                tags = [("W", h)]
                if h == 0: tags.append(("X", 0))
                if h % 4 == 3 and h < 39: tags.append(("X", (h + 1) // 4))
                if h == WOR: tags.append("WOP")
                p.wait_vm(tags, lgkm0=True)
                if "b" not in ABL or h < 4: p.barrier()
                if PROF == 2 and h % 2 == 0: sstamp(p)
            ops = []
            if h % 4 == 1 and 5 <= h < 37: ops += x_ops(h // 4 + 1)
            if 1 <= h < 37: ops += w_ops(h + 3)
            if "d" in ABL: ops = []
            if h == WOS: ops += wop()
            if h == WOR:
                for i in range(10):
                    sc.fill("rw", TR(A_Q + 2 * i, V_O + 144 + (i >> 1), (i & 1) * 2048), 4, ds=True, after=("BAR", h), before=mt(taun - BGAP), lead=2 * (10 - i))
            if h == 36: ops += wst()
            for k, x in enumerate(KVS):
                if x == h: ops += kv_ops(32 + k)
            sc.fill("rd", bar, 8, before=mt(tau), early=0 if h else None, tag=("BAR", h))
            QD = int(E("QD", "14")) if len(ops) <= 4 else int(E("QD2", "0"))
            fill_dma(sc, ops, dict(tag=("BAR", h), delay=QD), mt(taun - 1))
            if h == 0:
                for k, fn in enumerate(xreads(0, 0)): sc.fill("rd", fn, 4, ds=True, before=mt(0))
            xr = []; aft = [("BAR", h)]
            if h % 4 == 3 and h < 39: xr = xreads((h + 1) // 4, 0)
            if h % 4 == 0:
                xr = xreads(h // 4, 1)
                if h: aft.append(("Q", h - 1, 7, 3))
            for j, fn in enumerate(xr):
                sc.fill("rx", fn, 4, ds=True, after=aft, before=mt(taun - BGAP), lead=3 * (len(xr) - j))
        for k, fn in enumerate(reads):
            if "r" in ABL and h >= 2: continue
            bf = cons
            if sc.idx[cons] > taun - BGAP: bf = mt(taun - BGAP)
            sc.fill("rd", fn, 4, ds=True, after=war if k == 0 else None, before=bf, lead=LEAD if bf is cons else 0, early=int(E("QEARLY", "99")))
    def lastbar(p):
        p.comment("---- q step 40")
        p.wait_lgkm0(); p.barrier()
        p.add(Ins(f"buffer_load_dwordx2 v[{V_NV}:{V_NV+1}], off, s[{SRD_DBG}:{SRD_DBG+3}], 0 sc1", "vml", [], [V_NV, V_NV + 1], tag="non"))
    sc.fill("rd", lastbar, 8, before=mt(36 * 40 - LEADB), early=0)
    sc.run()
    stamp(p, 1)
    fstart = len(p.ins)
    TB = V_O + 144
    cnt = [0]
    def fin(r, n, t, i):
        s0 = QA(r, n, 2 * t)
        if r:
            tb = TB + 8 * (cnt[0] & 1); cnt[0] += 1
            for x in range(8): p.ar(tb + x, s0 + x)
            s0 = tb
        dst = V_S + 4 * i
        for x in range(0, 8, 2): p.pkmul(s0 + x, s0 + x, f"s[{S_CS}:{S_CS+1}]")
        for x in range(4): p.cvtpk(dst + x, s0 + 2 * x, s0 + 2 * x + 1)
        return dst
    def swp(dst):
        p.swap32(dst, dst + 2); p.swap32(dst + 1, dst + 3)
        p.swap16(dst, dst + 2); p.swap16(dst + 1, dst + 3)
    p.v(f"v_lshl_add_u32 v{V_E0}, s{S_W}, 12, v{V_LIN}", [V_E0], [V_LIN])
    p.vop("v_add_u32", V_E0, f"{XRING}", V_E0)
    p.vop("v_xor_b32", V_E1, "4096", V_E0)
    d8 = [fin(r, 4, t, 2 * r + t) for r in range(2) for t in range(2)]
    for d in d8: swp(d)
    for t, d in enumerate(d8): p.ds_write(V_E0, d, 4, t * 1024)
    for r in range(2):
        base = A_QN if r else A_Q
        for n in range(4):
            ds = [fin(r, n, t, 4 + (n & 1) * 4 + t) for t in range(4)]
            if r == 0 and n == 0:
                p.wait_lgkm0(); p.barrier()
                for t in range(2): p.ds_read128(Qf(4, t), V_E0, t * 1024)
                for t in range(2): p.ds_read128(Qf(4, 2 + t), V_E1, t * 1024)
            for d in ds: swp(d)
            for t, d in enumerate(ds):
                for x in range(4): p.aw(Qf(n, t, base) + x, d + x)
    for t in range(2): p.ds_read128(Qf(4, t, A_QN), V_E0, 2048 + t * 1024)
    for t in range(2): p.ds_read128(Qf(4, 2 + t, A_QN), V_E1, 2048 + t * 1024)
    p.vop("v_mov_b32", V_T, "0x3f803f80")
    for r in range(4): p.aw(A_ONE + r, V_T)
    sprinkle([(p, fstart)], sum([kv_ops(32 + k) for k in range(len(KVS), 7 if T7 else 8)], []), 0.0, float(E("QSH", "1.0")))
    get_nonce(p, f"{name}_n1", V_T)
    p.wait_vm("wst")
    publish(p, f"s{S_WFP}", 0, V_T)
    z = p
    z.s(f"s_mul_i32 s{S_WT}, s{S_G}, {16 * 40960}")
    z.s(f"s_mul_i32 s{S_T0}, s{S_W}, 10240")
    z.s(f"s_add_u32 s{S_WT}, s{S_WT}, s{S_T0}")
    z.s(f"s_lshl_b32 s{S_PF}, s{S_W}, 11")
    z.s(f"s_lshl_b32 s{S_T1}, s{S_G}, 8")
    z.s(f"s_add_u32 s{S_PF}, s{S_PF}, s{S_T1}")
    z.s(f"s_add_u32 s{S_PF}, s{S_PF}, {WFLG}")
    z.vop("v_lshrrev_b32", V_AX, "1", V_LIN)
    z.vop("v_and_b32", V_AX, "0xf8", V_AX)
    psetup(z)
    stamp(z, 2)
    return p

def a_mfmas(sc, pool, qh):
    AV = (V_AV0, V_AV1)
    has8 = lambda u: (u & 1) == qh
    for pos, (kind, u) in enumerate(KVSEQ):
        sb = (pos % 4) * 16384
        ns = [0, 1, 2, 3] + ([4] if has8(u) else [])
        if kind == "K":
            for kt in range(2):
                for ks in range(4):
                    off = sb + kt * 2048 + ((ks >> 1) ^ qh) * 4096 + (ks & 1) * 512
                    cons = []
                    for n in ns:
                        d = XS(u & 1, n) if kt == 0 else YS(n)
                        cons.append((d, Qf(n, ks), d if ks else None, ("S", u, kt, ks, n)))
                    pool.frag(pos, lambda r: [R128(r, V_AK, off)], cons)
        else:
            first = lambda n: u == 0 if n < 4 else u == qh
            for n in ns: sc.mfma(La(n), A_ONE, XS(u & 1, n), None if first(n) else La(n), ("L", u, n))
            for m in range(8):
                e, mp = m & 1, m >> 1
                off = sb + (mp >> 1) * 4096 + (mp & 1) * 512
                oa = lambda n: Oa(n, m if n < 4 else m ^ (4 * qh))
                cons = [(oa(n), XS(u & 1, n), None if first(n) else oa(n), ("PV", u, m, n)) for n in ns]
                pool.frag(pos, lambda r: [TR(r, AV[e], off), TR(r + 2, AV[e], off + 2048)], cons)

def a_taus():
    cs = []
    for qh in range(2):
        sc = Sched(Prog()); pool = Pool(sc, A_POOL, NPOOL); a_mfmas(sc, pool, qh)
        c = {}
        for (pos, _, cons, _) in pool.frags: c.setdefault(pos, sc.idx[cons])
        c[32] = len(sc.m) + LEADB - 3
        cs.append(c)
    return [min(cs[0][j], cs[1][j]) - LEADB for j in range(33)]

def aentry(name):
    p = Prog()
    p.label(f"{name}_A")
    p.s(f"s_mov_b32 s{S_KB}, s{S_KVN}")
    p.s(f"s_mov_b32 s{SRD_C+2}, 0x8000000")
    p.s(f"s_add_u32 s{S_KVN}, s{S_KVN}, {2 << 17}")
    p.s(f"s_cmp_eq_u32 s{S_PH}, 0")
    p.s(f"s_cselect_b32 s{S_M0KVP}, s{S_M0KV}, {DROP:#x}")
    p.s(f"s_cselect_b32 s{S_M0KVP+1}, s{S_M0W}, {DROP:#x}")
    p.s(f"s_cselect_b32 s{S_KVP}, s{S_KVN}, {OOB:#x}")
    p.s(f"s_cselect_b64 s[{S_XM}:{S_XM+1}], 0, -1")
    p.s(f"s_cselect_b32 s{S_WT2}, {OOB:#x}, s{S_WT}")
    p.s(f"s_cmp_eq_u32 s{S_U}, 1")
    p.s(f"s_cbranch_scc1 {name}_A1")
    return p

def tile_addr(p, base, dst):
    p.s(f"s_lshl_b32 s{S_T0}, s{S_U}, 2")
    p.s(f"s_sub_u32 s{S_T0}, s{S_T0}, s{S_G}")
    for n in range(4):
        p.s(f"s_add_u32 s{S_T1}, s{S_T0}, {n + 7}")
        p.s(f"s_and_b32 s{S_T1}, s{S_T1}, 7")
        p.v(f"v_lshl_add_u32 v{dst+n}, s{S_T1}, 10, v{base}", [dst + n], [base])

def avm(pos):
    if pos >= 30: return None
    pat = [int(x) for x in E("AVM", "4").split(",")]
    h = [int(x) for x in E("AVMH", "").split(",") if x]
    if pos < len(h): return h[pos]
    return pat[pos % len(pat)] + (3 if 1 <= pos <= 4 else 0)
RQ = [int(x) for x in E("RQH", "0,3,3,2").split(",")] + [int(x) for x in E("RQL", "4,3,4,3,4,3,4,3").split(",")] * 3 + [int(x) for x in E("RQT", "4,4,4,4").split(",")]
STREAM = sum([kv_ops(k) for k in range(8, 40)], [])
for s_ in range(32): assert sum(RQ[:s_ + 1]) <= 4 * s_
WORD = list(range(20, 32)) + list(range(20))
def amod(name, qh):
    p = Prog()
    p.label(f"{name}_A{qh}")
    sc = Sched(p, budget=int(E("ABUD", "8")), late_extra=int(E("ALATE", "8")))
    sc.group["dma"] = "vm"; sc.pace["vm"] = int(E("APACE", "2"))
    pool = Pool(sc, A_POOL, NPOOL)
    a_mfmas(sc, pool, qh)
    tau = a_taus()
    mt = lambda i: sc.m[max(0, min(i, len(sc.m) - 1))][4]
    def add_bar(pos):
        def bar(p, pos=pos):
            p.comment(f"---- a step {pos}")
            if pos < 32: p.wait_vm(KVSEQ[pos], lgkm0=True, cap=avm(pos))
            else: p.wait_lgkm0()
            p.barrier()
            if pos % 4 == 0 and pos:
                for r in (V_AV0, V_AV1, V_AK): p.vop("v_xor_b32", r, "0x10000", r)
            if PROF == 3 and pos % 2 == 0 and pos < 32: sstamp(p)
        sc.fill("rd", bar, 8, before=mt(tau[pos]), early=0 if pos else None, tag=("BAR", pos))
        if pos < 32:
            ops = STREAM[sum(RQ[:pos]):sum(RQ[:pos + 1])]
            aft = ("BAR", pos); bf = mt(tau[pos + 1] - 1)
            span = tau[pos + 1] - max(tau[pos], 0)
            for k, op in enumerate(ops): fill_dma(sc, [op], dict(tag=aft, delay=(k * (span - 2)) // len(ops)), bf)
            if pos < 4:
                for k in range(20 + 3 * pos, 23 + 3 * pos):
                    for fn, kind, cost in split_ops([(wload(0, k, S_T2, S_WT2), 8)]):
                        sc.fill("dmp", fn, 8 if kind == "vm" else 4, after=dict(tag=aft, delay=5 + 9 * ((k - 20) % 3)), solo=(kind == "vm"), before=bf, lead=20)
            if pos == 30:
                NWL = int(E("NWL", "12")); WLS = int(E("WLS", "6"))
                last = ("S", 15, 1, 3, 4 if qh == 1 else 3)
                for k in range(NWL):
                    for fn, kind, cost in split_ops([(wload(0, k, S_T2, S_WT2), 8)]):
                        sc.fill("dmp", fn, 8 if kind == "vm" else 4, after=dict(tag=last, delay=2 + WLS * k), solo=(kind == "vm"), before=mt(sc.idx[last] + 12 + WLS * k), lead=9)
    cur = None
    for (pos, reads, cons, war) in pool.frags:
        if pos != cur:
            cur = pos; add_bar(pos)
        for k, fn in enumerate(reads):
            bf = cons
            if sc.idx[cons] > tau[pos + 1] - BGAP: bf = mt(tau[pos + 1] - BGAP)
            sc.fill("rd", fn, 4, ds=True, after=war if k == 0 else None, before=bf, lead=LEAD if bf is cons else 0)
    add_bar(32)
    def V(fn, after=None, before=None, cost=4, lead=0): sc.fill("va", fn, cost, after=after, before=before, lead=lead)
    EDL = int(E("EDL", "3"))
    for u in range(16):
        ns = [0, 1, 2, 3] + ([4] if (u & 1) == qh else [])
        for kt in range(2):
            for n in ns:
                src = XS(u & 1, n) if kt == 0 else YS(n)
                dst = XS(u & 1, n) + 2 * kt
                for r in range(4):
                    V(lambda p, reg=src + r: p.exp(reg, reg), after=dict(tag=("S", u, kt, 3, n), delay=EDL), cost=8)
                bf = ("L", u, n)
                if kt == 1 and n < 4 and u < 15: bf = ("S", u + 1, 1, 0, n)
                V(lambda p, dst=dst, src=src: p.cvtpk(dst, src, src + 1))
                V(lambda p, dst=dst, src=src: p.cvtpk(dst + 1, src + 2, src + 3), before=bf, lead=2)
    sc.run()
    if qh == 0: p.s(f"s_branch {name}_F")
    return p

def afin(name):
    p = Prog()
    p.label(f"{name}_F")
    stamp(p, 5, S_PH)
    poll_issue(p, V_AX, f"s{S_PF}", 0, V_NV)
    AD, AL, AI, A8 = V_S + 44, V_S + 46, V_S + 48, V_S + 52
    p.v(f"v_lshl_add_u32 v{AD}, s{S_W}, 12, v{V_LIN}", [AD], [V_LIN])
    p.vop("v_add_u32", AD, f"{MISC}", AD)
    p.vop("v_xor_b32", AD + 1, "4096", AD)
    for i in range(4): p.ds_write(AD + 1, Oa(4, 4 + i), 4, i * 1024)
    p.s(f"s_xor_b32 s{S_T0}, s{S_W}, 1")
    p.s(f"s_movk_i32 s{S_T1}, 18432")
    p.s(f"s_mov_b32 s{S_T2}, {IMG(8)}")
    p.s(f"s_cmp_eq_u32 s{S_PH}, 0")
    p.s(f"s_cselect_b32 s{S_T1}, 1024, s{S_T1}")
    p.s(f"s_cselect_b32 s{S_T2}, {XRING}, s{S_T2}")
    p.s(f"s_mul_i32 s{S_T0}, s{S_T0}, s{S_T1}")
    p.s(f"s_add_u32 s{S_T0}, s{S_T0}, s{S_T2}")
    p.vop("v_add_u32", AL + 1, f"s{S_T0}", V_LIN)
    p.ds_write(AL + 1, La(4), 1, 0)
    p.s(f"s_mul_i32 s{S_T0}, s{S_W}, s{S_T1}")
    p.s(f"s_add_u32 s{S_T0}, s{S_T0}, s{S_T2}")
    p.vop("v_add_u32", AL, f"s{S_T0}", V_LIN)
    RL = V_S + 2
    for n in range(5): p.ar(RL + 2 * n, La(n))
    p.s(f"s_mul_i32 s{S_T0}, s{S_P}, 36864")
    p.vop("v_add_u32", A8 + 1, f"s{S_T0}", V_LIN)
    tile_addr(p, A8 + 1, V_T)
    for n in range(4): p.vop("v_add_u32", AI + n, f"{IMG(8)}", V_T + n)
    p.vop("v_subrev_u32", A8, f"{IMG(8)}", AL)
    wleft = list(range(int(E("NWL", "12")), 20))
    def check(n):
        r = RL + 2 * n
        p.add(Ins(f"v_cmp_nge_f32 vcc, v{r}, s{S_LO}", "valu", [r], []))
        p.s(f"s_or_b64 s[{S_BAD}:{S_BAD+1}], s[{S_BAD}:{S_BAD+1}], vcc")
        p.add(Ins(f"v_cmp_nle_f32 vcc, v{r}, s{S_HI}", "valu", [r], []))
        p.s(f"s_or_b64 s[{S_BAD}:{S_BAD+1}], s[{S_BAD}:{S_BAD+1}], vcc")
        p.vop("v_rcp_f32", r + 1, r, kind="trans")
        p.vop("v_rcp_f32", r, r, kind="trans")
    def pkm(d, n): p.pkmul(d, d, RL + 2 * n)
    CHK = V_S + 40
    pend = []
    def flush():
        for d in pend: p.mfma(CHK, A_ONE, d, CHK if d != Oa(0, 0) else None)
        pend.clear()
    def norm(n, t):
        s0 = Oa(n, 2 * t)
        for r in range(0, 8, 2): pkm(s0 + r, n)
        for r in range(4): p.cvtpk(s0 + r, s0 + 2 * r, s0 + 2 * r + 1)
        flush()
        if t & 1:
            p.s(f"s_mov_b64 exec, s[{S_XM}:{S_XM+1}]")
            for tt in (t - 1, t):
                if n < 4: p.ds_write(AI + n, Oa(n, 2 * tt), 4, tt * 9216 + 1024).kind = "dsx"
                else: p.ds_write(AL, Oa(n, 2 * tt), 4, tt * 9216).kind = "dsx"
                if n < 4: p.ds_write(V_T + n, Qf(n, tt, A_QN), 4, tt * 9216 + 1024).kind = "dsx"
                else: p.ds_write(A8, Qf(n, tt, A_QN), 4, tt * 9216).kind = "dsx"
            p.s("s_mov_b64 exec, -1")
        if wleft: wload(0, wleft.pop(0), S_T2, S_WT2)(p)
        pend.append(s0)
    for n in range(4): check(n)
    p.add(Ins("s_waitcnt lgkmcnt(0)", "waitlgkm0"))
    for t in range(4): norm(0, t)
    p.barrier()
    PX = V_S + 16
    for i in range(4): p.ds_read128(PX + 4 * i, AD, i * 1024)
    p.ds_read32(V_S, AL, 0)
    for n in (1, 2):
        for t in range(4): norm(n, t)
    p.vop("v_add_f32", RL + 8, RL + 8, V_S)
    check(4)
    for i in range(4):
        for r in range(4): p.vop("v_add_f32", Oa(4, i) + r, Oa(4, i) + r, PX + 4 * i + r)
    for t in range(2): norm(4, t)
    for t in range(4): norm(3, t)
    flush()
    p.s(f"s_movk_i32 s{S_T2}, 0x207")
    p.s(f"s_add_u32 s{S_PH}, s{S_PH}, 1")
    p.add(Ins(f"v_cmp_class_f32 vcc, v{CHK}, s{S_T2}", "valu", [CHK], []))
    p.s(f"s_or_b64 s[{S_BAD}:{S_BAD+1}], s[{S_BAD}:{S_BAD+1}], vcc")
    stamp(p, 2, S_PH)
    p.s(f"s_cmp_eq_u32 s{S_PH}, 2")
    p.s(f"s_cbranch_scc1 {name}_P")
    q = Prog()
    q_copy(q)
    for n in range(5):
        for t in range(4 if n < 4 else 2):
            for r in range(4): q.aw(Qf(n, t, A_QN) + r, Oa(n, 2 * t) + r)
    sprinkle([(p, 8), (q, 1)], STREAM[sum(RQ):], 0.0, float(E("ASH", "1.0")))
    code_prefetch(q, name, 1, f"{name}_end-16384", 2, V_T)
    if int(E("TOUCH2", "0")):
        q.s(f"s_add_u32 s{S_T0}, s{S_RD}, {32768 + 1024}")
        q.raw(f"buffer_load_dword v{V_JUNK}, off, s[{SRD_WS}:{SRD_WS+3}], s{S_T0} sc1")
        q.s(f"s_add_u32 s{S_T0}, s{S_T0}, {PARTB - 40960}")
        q.raw(f"buffer_load_dword v{V_JUNK}, off, s[{SRD_WS}:{SRD_WS+3}], s{S_T0} sc1")
        q.raw(f"buffer_load_dword v{V_JUNK}, off, s[{SRD_WS}:{SRD_WS+3}], s{S_PO} sc1")
        q.raw(f"buffer_load_dword v{V_JUNK}, off, s[{SRD_OUT}:{SRD_OUT+3}], s{S_OUTO} sc1")
    poll_check(q, f"{name}_wpoll", V_AX, f"s{S_PF}", 0, V_NV)
    q.s(f"s_branch {name}_A")
    return p, q

def q_copy(p):
    for r in range(80): p.amov(A_Q + r, A_QN + r)

P_R = ([A_Q + 4 * i for i in range(20)] + [A_X + 4 * i for i in range(10)] + [10, 14],
       [A_QN + 4 * i for i in range(20)] + [A_L + 4 * i for i in range(12)])
def wload(j, i, so=None, sb=None):
    def f(p):
        if i % 2 == 0: p.s(f"s_add_u32 s{so or S_SO}, s{sb or S_WT}, {(i >> 1) * 40960}")
        if "B" not in ABL: p.load4(P_R[j & 1][i], V_LIN, SRD_WS, f"s{so or S_SO}", (i & 1) * 1024, ("WT", j, i), "sc1")
    return f

def slow(name):
    SI, SC, SX, SWq, SKV, SD, SK = 56, 57, 58, 59, 88, 89, 90
    VW, VX, VK, VV_, VD = 28, 36, 37, 38, 39
    MX, NM, LA, QF, SS, FB, AC, RAW, FR = 40, 44, 48, 52, 68, 76, 84, 116, 180
    def ld(p, op, n, d, vo, srd, so, off):
        p.add(Ins(f"{op} {vr(d, n)}, v{vo}, s[{srd}:{srd+3}], s{so} offen offset:{off}", "vml", [vo], R(d, n), tag="sl"))
    p0 = Prog()
    p0.label(f"{name}_slow")
    p0.wait_all()
    M, G = MX, MX + 1
    p0.vop("v_bfe_u32", M, V_LIN, "4", "4")
    p0.vop("v_lshrrev_b32", G, "8", V_LIN)
    p0.vop("v_lshlrev_b32", VW, "16", G)
    p0.vop("v_lshl_add_u32", VW, M, "1", VW)
    for i in range(1, 8): p0.vop("v_add_u32", VW + i, f"{8192 * i}", VW)
    p0.s(f"s_movk_i32 s{S_T0}, 1280")
    p0.vop("v_mul_lo_u32", VX, M, f"s{S_T0}")
    p0.vop("v_lshl_add_u32", VX, G, "4", VX)
    p0.vop("v_lshlrev_b32", VK, "8", M)
    p0.vop("v_lshl_add_u32", VK, G, "3", VK)
    p0.vop("v_lshlrev_b32", VV_, "10", G)
    p0.vop("v_lshl_add_u32", VV_, M, "1", VV_)
    p0.s(f"s_mov_b32 s{SI}, 0")
    p1 = Prog()
    p1.label(f"{name}_sl_it")
    p1.s(f"s_cmp_ge_u32 s{SI}, 5")
    p1.s(f"s_cselect_b32 s{S_T0}, 2, 0")
    p1.s(f"s_cselect_b32 s{S_T1}, 5, 0")
    p1.s(f"s_sub_u32 s{S_T1}, s{SI}, s{S_T1}")
    p1.s(f"s_add_u32 s{S_T0}, s{S_T0}, s{S_P}")
    p1.s(f"s_mul_i32 s{SD}, s{S_T0}, 36864")
    p1.s(f"s_lshl_b32 s{S_T2}, s{S_G}, 2")
    p1.s(f"s_add_u32 s{S_T0}, s{S_T0}, s{S_T2}")
    p1.s(f"s_lshl_b32 s{SWq}, s{S_T0}, 8")
    p1.s(f"s_lshl_b32 s{S_T2}, s{S_B}, 5")
    p1.s(f"s_add_u32 s{S_T0}, s{S_T0}, s{S_T2}")
    p1.s(f"s_lshl_b32 s{SKV}, s{S_T0}, 17")
    p1.s(f"s_lshl_b32 s{S_T0}, s{S_U}, 2")
    p1.s(f"s_add_u32 s{S_T0}, s{S_T0}, s{S_T1}")
    p1.s(f"s_sub_u32 s{S_T2}, s{S_T0}, s{S_G}")
    p1.s(f"s_add_u32 s{S_T2}, s{S_T2}, 7")
    p1.s(f"s_and_b32 s{S_T2}, s{S_T2}, 7")
    p1.s(f"s_add_u32 s{S_T2}, s{S_T2}, 1")
    p1.s(f"s_cmp_eq_u32 s{S_T1}, 4")
    p1.s(f"s_cselect_b32 s{S_T0}, 8, s{S_T0}")
    p1.s(f"s_cselect_b32 s{S_T2}, 0, s{S_T2}")
    p1.s(f"s_lshl_b32 s{S_T2}, s{S_T2}, 10")
    p1.s(f"s_add_u32 s{SD}, s{SD}, s{S_T2}")
    p1.vop("v_add_u32", VD, f"s{SD}", V_LIN)
    p1.s(f"s_mul_i32 s{S_T2}, s{S_B}, 9")
    p1.s(f"s_add_u32 s{S_T0}, s{S_T0}, s{S_T2}")
    p1.s(f"s_mul_i32 s{SX}, s{S_T0}, {16 * 1280}")
    for r in range(32): p1.vop("v_mov_b32", AC + r, "0")
    p1.s(f"s_mov_b32 s{SC}, 0")
    def pack(p):
        for r in range(32): p.vop("v_lshl_or_b32", FR + r, RAW + 2 * r + 1, "16", RAW + 2 * r)
    def loop_end(p, lab, n):
        p.s(f"s_add_u32 s{SC}, s{SC}, 1")
        p.s(f"s_cmp_lt_u32 s{SC}, {n}")
        p.s(f"s_cbranch_scc1 {lab}")
    p2 = Prog()
    p2.label(f"{name}_sl_q")
    ld(p2, "buffer_load_dwordx4", 4, FB, VX, SRD_X, SX, 0)
    for m in range(8):
        for i in range(8): ld(p2, "buffer_load_ushort", 1, RAW + 8 * m + i, VW + i, SRD_W, SWq, 32 * m)
        if m == 3: p2.wait_all()
    p2.wait_all()
    pack(p2)
    for m in range(8): p2.mfma(AC + 4 * m, FR + 4 * m, FB, AC + 4 * m)
    p2.s(f"s_add_u32 s{SX}, s{SX}, 64")
    p2.s(f"s_add_u32 s{SWq}, s{SWq}, {32 * 8192}")
    loop_end(p2, f"{name}_sl_q", 20)
    p3 = Prog()
    for r in range(32): p3.vop("v_mul_f32", AC + r, f"s{S_CS}", AC + r)
    for r in range(16): p3.cvtpk(QF + r, AC + 2 * r, AC + 2 * r + 1)
    for r in range(32): p3.vop("v_mov_b32", AC + r, "0")
    for r in range(4): p3.vop("v_mov_b32", LA + r, "0")
    p3.vop("v_mov_b32", MX, "0xff800000")
    p3.s(f"s_mov_b32 s{SK}, s{SKV}")
    p3.s(f"s_mov_b32 s{SC}, 0")
    def kfrags(p, dst, so):
        for ks in range(4):
            ld(p, "buffer_load_dwordx2", 2, dst + 4 * ks, VK, SRD_K, so, 64 * ks)
            ld(p, "buffer_load_dwordx2", 2, dst + 4 * ks + 2, VK, SRD_K, so, 64 * ks + 32)
    p4 = Prog()
    p4.label(f"{name}_sl_m")
    kfrags(p4, FR, SK)
    p4.wait_all()
    for ks in range(4): p4.mfma(SS, FR + 4 * ks, QF + 4 * ks, SS if ks else None)
    p4.vop("v_max3_f32", MX, MX, SS, SS + 1)
    p4.vop("v_max3_f32", MX, MX, SS + 2, SS + 3)
    p4.s(f"s_add_u32 s{SK}, s{SK}, 4096")
    loop_end(p4, f"{name}_sl_m", 32)
    p5 = Prog()
    for sw in (p5.swap32, p5.swap16):
        p5.vop("v_mov_b32", MX + 1, MX)
        sw(MX, MX + 1)
        p5.vop("v_max_f32", MX, MX, MX + 1)
    for r in range(4): p5.vop("v_sub_f32", NM + r, "0", MX)
    p5.s(f"s_mov_b32 s{SC}, 0")
    p6 = Prog()
    p6.label(f"{name}_sl_a")
    p6.s(f"s_add_u32 s{SK}, s{SKV}, 4096")
    kfrags(p6, FR, SKV)
    kfrags(p6, FR + 16, SK)
    p6.wait_all()
    for m in range(8):
        for i in range(8): ld(p6, "buffer_load_ushort", 1, RAW + 8 * m + i, VV_, SRD_V, SK if i >= 4 else SKV, 32 * m + 256 * (i & 3))
        if m == 3: p6.wait_all()
    for kt in range(2):
        for ks in range(4): p6.mfma(SS + 4 * kt, FR + 16 * kt + 4 * ks, QF + 4 * ks, SS + 4 * kt if ks else NM)
    for r in range(8): p6.exp(SS + r, SS + r)
    for r in range(4): p6.cvtpk(FB + r, SS + 2 * r, SS + 2 * r + 1)
    p6.wait_all()
    pack(p6)
    p6.mfma(LA, A_ONE, FB, LA)
    for m in range(8): p6.mfma(AC + 4 * m, FR + 4 * m, FB, AC + 4 * m)
    p6.s(f"s_add_u32 s{SKV}, s{SKV}, 8192")
    loop_end(p6, f"{name}_sl_a", 16)
    p7 = Prog()
    p7.vop("v_rcp_f32", LA, LA, kind="trans")
    for r in range(32): p7.vop("v_mul_f32", AC + r, AC + r, LA)
    for r in range(16): p7.cvtpk(QF + r, AC + 2 * r, AC + 2 * r + 1)
    for hf in range(2):
        p7.s(f"s_cmp_eq_u32 s{S_U}, {hf}")
        p7.s(f"s_cselect_b32 s{S_T0}, 0, s{S_T1}")
        p7.s(f"s_cmp_eq_u32 s{S_T0}, 4")
        p7.s(f"s_cbranch_scc1 {name}_sl_s{hf}")
        for t in (2 * hf, 2 * hf + 1): p7.ds_write(VD, QF + 4 * t, 4, t * 9216)
        p7.label(f"{name}_sl_s{hf}")
    p7.wait_all()
    p7.s(f"s_add_u32 s{SI}, s{SI}, 1")
    p7.s(f"s_cmp_lt_u32 s{SI}, 10")
    p7.s(f"s_cbranch_scc1 {name}_sl_it")
    p7.s(f"s_branch {name}_P2")
    body = [p1, p2, p2, p3, p4, p4, p5, p6, p6, p7]
    return [p0, p1, p2, p3, p4, p5, p6, p7], [p0] + body + body

S_ST = 62
S_J, S_JO, S_J8, S_JO8 = 4, 5, 6, 7
S_PC, S_FO, S_PO, S_JL = 70, 71, 72, 73
def psetup(p):
    p.s(f"s_mul_i32 s{S_RD}, s{S_B}, {PARTB}")
    p.s(f"s_lshl_b32 s{S_T1}, s{S_W}, 11")
    p.s(f"s_add_u32 s{S_RD}, s{S_RD}, s{S_T1}")
    p.s(f"s_add_u32 s{S_RD}, s{S_RD}, {PART}")
    p.s(f"s_lshr_b32 s{S_T0}, s{S_G}, 2")
    p.s(f"s_mul_i32 s{S_T0}, s{S_T0}, {PARTH}")
    p.s(f"s_add_u32 s{S_T0}, s{S_T0}, s{S_RD}")
    p.s(f"s_and_b32 s{S_T1}, s{S_G}, 3")
    p.s(f"s_mul_i32 s{S_ST}, s{S_T1}, 40960")
    p.s(f"s_add_u32 s{S_ST}, s{S_ST}, s{S_T0}")
    p.s(f"s_add_u32 s{S_ST}, s{S_ST}, 32768")
    p.s(f"s_lshl_b32 s{S_J}, s{S_T1}, 13")
    p.s(f"s_add_u32 s{S_J}, s{S_J}, s{S_T0}")
    for i in range(1, 8):
        p.s(f"s_add_u32 s{S_T0}, s{S_G}, {i}")
        p.s(f"s_bfe_u32 s{S_T1}, s{S_T0}, 0x10002")
        p.s(f"s_mul_i32 s{S_T1}, s{S_T1}, {PARTH}")
        p.s(f"s_and_b32 s{S_T0}, s{S_T0}, 3")
        p.s(f"s_lshl_b32 s{S_T0}, s{S_T0}, 13")
        p.s(f"s_add_u32 s{S_T0}, s{S_T0}, s{S_T1}")
        p.s(f"s_add_u32 s{S_T0}, s{S_T0}, s{S_RD}")
        p.s(f"s_add_u32 s{S_ST+i}, s{S_T0}, {((i - 1) >> 1) * 40960 + ((i - 1) & 1) * 1024}")
    p.s(f"s_lshl_b32 s{S_PO}, s{S_B}, 2")
    p.s(f"s_add_u32 s{S_PO}, s{S_PO}, s{S_W}")
    p.s(f"s_lshl_b32 s{S_PO}, s{S_PO}, 9")
    p.s(f"s_add_u32 s{S_PO}, s{S_PO}, {PFLG}")
    p.s(f"s_lshl_b32 s{S_FO}, s{S_G}, 3")
    p.s(f"s_add_u32 s{S_FO}, s{S_FO}, s{S_PO}")
    p.s(f"s_mul_i32 s{S_OUTO}, s{S_B}, {144 * 1280}")
    p.s(f"s_mul_i32 s{S_T1}, s{S_W}, 320")
    p.s(f"s_add_u32 s{S_OUTO}, s{S_OUTO}, s{S_T1}")
    p.s(f"s_mul_i32 s{S_JO}, s{S_G}, {16 * 1280}")
    p.s(f"s_add_u32 s{S_JO}, s{S_JO}, s{S_OUTO}")
    p.s(f"s_sub_u32 s{S_JO}, s{S_JO}, 64")
    p.s(f"s_mul_i32 s{S_T1}, s{S_G}, {4 * 40960}")
    p.s(f"s_add_u32 s{S_J8}, s{S_RD}, s{S_T1}")
    p.s(f"s_add_u32 s{S_J8}, s{S_J8}, 32768")
    p.s(f"s_lshl_b32 s{S_T1}, s{S_G}, 6")
    p.s(f"s_add_u32 s{S_JO8}, s{S_OUTO}, s{S_T1}")
    p.s(f"s_add_u32 s{S_JO8}, s{S_JO8}, {128 * 1280}")
    p.s(f"s_cmp_ge_u32 s{S_G}, 5")
    p.s(f"s_cselect_b32 s{S_J8}, {OOB:#x}, s{S_J8}")
    p.s(f"s_cselect_b32 s{S_JO8}, {OOB:#x}, s{S_JO8}")
    p.s(f"s_mov_b32 s{S_PC}, 0")

def pmod(name):
    p = Prog()
    p.label(f"{name}_P")
    if "F" in ABL: p.s(f"s_mov_b32 s{S_BAD}, 1")
    p.s(f"s_cmp_lg_u64 s[{S_BAD}:{S_BAD+1}], 0")
    p.s(f"s_cbranch_scc1 {name}_slow")
    p.label(f"{name}_P2")
    AO = (V_LIN, 2, 3)
    V_FA, V_OA = 4, 5
    PT, PT2 = 6, 8
    V_SA = 1
    SEL = 18
    POOL = [28 + 4 * k for k in range(16)]
    ACC = 92
    OWN = 124
    A8 = 164
    JB = (172, 204)
    CT = 244
    p.vop("v_add_u32", AO[1], "49152", V_LIN)
    p.vop("v_add_u32", AO[2], "98304", V_LIN)
    p.vop("v_mov_b32", V_SA, V_LIN)
    p.wait_all()
    p.barrier()
    stamp(p, 16)
    NL = int(E("PLEAD", "8"))
    def ooff(i, kq): return IMG(kq) + i * 1024
    for f in range(NL): p.ds_read128(POOL[f], AO[ooff(0, f) // 49152], ooff(0, f) % 49152)
    p.vop("v_lshrrev_b32", V_FA, "1", V_LIN)
    p.vop("v_and_b32", V_FA, "0x38", V_FA)
    p.vop("v_bfe_u32", CT, V_LIN, "4", "4")
    p.s(f"s_movk_i32 s{S_T0}, 1280")
    p.vop("v_mul_lo_u32", V_OA, CT, f"s{S_T0}")
    p.vop("v_lshrrev_b32", CT + 1, "8", V_LIN)
    p.vop("v_lshl_add_u32", V_OA, CT + 1, "4", V_OA)
    p.vop("v_mov_b32", PT2, f"s{S_NON}")
    p.vop("v_mov_b32", PT2 + 1, f"s{S_NON+1}")
    p.vop("v_and_b32", CT + 2, "1", CT)
    p.vop("v_lshlrev_b32", CT + 2, "4", CT + 2)
    p.s(f"s_movk_i32 s{S_T0}, 0x3f80")
    p.vop("v_lshlrev_b32", CT + 2, CT + 2, f"s{S_T0}")
    p.vop("v_lshrrev_b32", CT, "1", CT)
    p.vop("v_lshlrev_b32", CT + 1, "1", CT + 1)
    p.vop("v_sub_u32", CT, CT, CT + 1)
    for r in range(2):
        p.add(Ins(f"v_cmp_eq_u32 vcc, {r}, v{CT}", "valu", [CT], []))
        p.vop("v_mov_b32", SEL + r, "0")
        p.vop("v_mov_b32", SEL + 4 + r, "0")
        p.add(Ins(f"v_cndmask_b32 v{SEL+2+r}, 0, v{CT+2}, vcc", "valu", [CT + 2], [SEL + 2 + r]))
    def job_loads(p, sbase, offs, buf):
        for g, off in enumerate(offs):
            p.s(f"s_add_u32 s{S_T0}, s{sbase}, {off}")
            p.load4(buf + 4 * g, V_LIN, SRD_WS, f"s{S_T0}", 0, "job", "sc1")
    def job_reduce(p, sout, off, bufs, a, init):
        for g, bf in enumerate(bufs):
            for e in range(2): p.mfma(a + 4 * e, SEL + 2 - 2 * e, bf, None if (init and g == 0) else a + 4 * e)
        return lambda: ([p.cvtpk(a + r, a + 2 * r, a + 2 * r + 1) for r in range(4)],
                        p.store(a, 4, V_OA, SRD_OUT, f"s{sout}", off, tag="out", flags=E("OFL", "")))
    def flag(p, off, tag):
        p.wait_vm(tag)
        p.s("s_mov_b64 exec, 1")
        p.store(PT2, 2, V_LIN, SRD_WS, f"s{S_FO}", off, tag="flag", flags="sc1")
        p.s("s_mov_b64 exec, -1")
    FPOS = int(E("FPOS", "180")); WSP = float(E("WSP", "6")); PLAT = int(E("PLAT", "70")); CPOS = int(E("CPOS", "206")); WST = int(E("WST", "4"))
    jo = lambda mp: [(4 * mp + (g >> 1)) * 40960 + (g & 1) * 1024 for g in range(7)]
    def one_pass(par):
        q = Prog()
        q.label(f"{name}_pass{par}")
        if PROF == 4: stamp(q, 32, S_PC)
        q.wait_vm(("WT", par, 15))
        sc = Sched(q, budget=int(E("PBUD", "8")), late_extra=8)
        for qn in ("wl", "st", "jl"): sc.group[qn] = "vm"
        sc.pace["vm"] = int(E("PPACE", "4"))
        pool = Pool(sc, POOL, 16)
        acc = lambda i: OWN if i == 8 else ACC + 8 * (i % 4)
        for i in range(9):
            a = acc(i)
            for kq in range(16):
                cons = [(a + 4 * e, P_R[par][2 * kq + e], a + 4 * e if kq else None, ("P", i, kq, e)) for e in range(2)]
                pool.frag(0, lambda r: [R128(r, AO[ooff(i, kq) // 49152], ooff(i, kq) % 49152)], cons, as_b=True)
        mt = lambda i: sc.m[max(0, min(i, len(sc.m) - 1))][4]
        for f in range(NL, 144 + NL):
            (_, reads, cons, war) = pool.frags[f % 144]
            if f >= 144: war = pool.last[f % 16]
            if "R" not in ABL: sc.fill("rd", reads[0], 4, ds=True, after=war, before=mt(2 * (f - NL) + 1), early=2)
        for i in (16, 22, 28): sc.fill("ww", lambda p, i=i: p.wait_vm(("WT", par, min(31, i + 5))), 4, before=mt(i), early=0)
        def su(p):
            p.s(f"s_add_u32 s{S_WT}, s{S_WT}, 2048")
            p.s(f"s_cmp_eq_u32 s{S_PC}, 4")
            p.s(f"s_cselect_b32 s{S_WT}, {OOB:#x}, s{S_WT}")
        fill_dma(sc, [(su, 0)], None, mt(WST + 2), queue="wl", lead=6)
        for i in range(32):
            fill_dma(sc, [(wload(1 - par, i), 0)], mt(WST + int(WSP * i)), mt(WST + 12 + int(WSP * i)), queue="wl", lead=10)
        sc.fill("jl", lambda p: poll_issue(p, V_FA, f"s{S_PO}", 0, PT), 8, before=mt(CPOS - PLAT), early=4, solo=SOLO)
        for r in range(23, -1, -1): sc.fill("jr", lambda p, r=r: p.vop("v_mov_b32", OWN + 8 + r, OWN + r), 4, after=mt(40), before=mt(CPOS - 4), lead=4 * r)
        def cut(p):
            p.wait_vm("poll")
            p.s(f"s_cmp_lt_u32 s{S_PC}, 2")
            p.s(f"s_cbranch_scc1 {name}_nojob{par}")
            p.label("@CUT")
        sc.fill("jr", cut, 8, before=mt(CPOS), early=0)
        sc.fill("jr", lambda p: p.s(f"s_add_u32 s{S_PO}, s{S_PO}, 64"), 4)
        for i in range(8):
            a = acc(i)
            dl = mt(32 * i + 32 + 24)
            sc.fill("va", lambda p, a=a: p.cvtpk(a, a, a + 1), 4, after=dict(tag=("P", i, 15, 1), delay=4), before=dl, lead=10)
            sc.fill("va", lambda p, a=a: p.cvtpk(a + 1, a + 2, a + 3), 4)
            sc.fill("va", lambda p, a=a: p.cvtpk(a + 2, a + 4, a + 5), 4)
            sc.fill("va", lambda p, a=a: p.cvtpk(a + 3, a + 6, a + 7), 4, tag=("CV", i), before=dl, lead=10)
            def st(p, a=a, i=i):
                if "O" not in ABL: p.store(a, 4, V_SA, SRD_WS, f"s{S_ST+i}", 0, tag=("ps", i), flags=E("SFL", "sc1"))
            sc.fill("st", st, 8, after=("CV", i), before=dl, lead=20, tag=("ST", i), solo=SOLO)
        sc.fill("va", lambda p: p.vop("v_add_u32", V_SA, f"{4 * 40960}", V_SA), 4, after=("ST", 7))
        sc.fill("fl", lambda p: flag(p, 64, ("ps", 0)), 16, before=mt(FPOS), early=0)
        sc.fill("fl", lambda p: p.s(f"s_add_u32 s{S_FO}, s{S_FO}, 64"), 4)
        sc.fill("fl", lambda p: p.s(f"s_add_u32 s{S_PC}, s{S_PC}, 1"), 4, after=mt(270))
        sc.run()
        if par == 0:
            q.s(f"s_cmp_eq_u32 s{S_PC}, 5")
            q.s(f"s_cbranch_scc1 {name}_ptail")
        else: q.s(f"s_branch {name}_pass0")
        k = next(i for i, x in enumerate(q.ins) if x.text.startswith("@CUT"))
        q2 = Prog(); q2.label(f"{name}_nojob{par}"); q2.ins += q.ins[k + 1:]; q.ins = q.ins[:k]
        blk = Prog()
        poll_check(blk, f"{name}_pp{par}", V_FA, f"s{S_PO}", 0, PT)
        a = OWN + 24
        for g in range(7):
            for e in range(2): blk.mfma(a + 4 * e, SEL + 2 - 2 * e, JB[0] + 4 * g, a + 4 * e)
            job_loads(blk, S_J, [jo(0)[g]], JB[0] + 4 * g)
        blk.s(f"s_add_u32 s{S_J}, s{S_J}, {4 * 40960}")
        blk.s(f"s_cmp_eq_u32 s{S_PC}, 2")
        blk.s(f"s_cselect_b32 s{S_T0}, {OOB:#x}, s{S_JO}")
        blk.s(f"s_add_u32 s{S_JO}, s{S_JO}, 64")
        blk.wait_lgkm0()
        for r in range(4): blk.cvtpk(a + r, a + 2 * r, a + 2 * r + 1)
        blk.store(a, 4, V_OA, SRD_OUT, f"s{S_T0}", 0, tag="out", flags=E("OFL", ""))
        return q, blk, q2
    p.wait_lgkm0()
    pre = p
    pe, po = one_pass(0), one_pass(1)
    p = Prog()
    p.label(f"{name}_ptail")
    stamp(p, 17)
    poll_issue(p, V_FA, f"s{S_PO}", 0, PT)
    f2 = job_reduce(p, S_JO, 0, [JB[0] + 4 * g for g in range(7)], OWN + 16, False)
    flag(p, 64, ("ps", 7))
    poll_check(p, f"{name}_pp3", V_FA, f"s{S_PO}", 0, PT, 0)
    job_loads(p, S_J, jo(0), JB[0])
    job_loads(p, S_J8, [(g >> 2) * PARTH + (g & 3) * 40960 for g in range(8)], JB[1])
    poll_issue(p, V_FA, f"s{S_PO}", 64, PT)
    f2()
    stamp(p, 18)
    stamp(p, 19)
    poll_check(p, f"{name}_pp4", V_FA, f"s{S_PO}", 64, PT, 0)
    stamp(p, 20)
    job_loads(p, S_J, jo(1), POOL[8])
    f3 = job_reduce(p, S_JO, 64, [JB[0] + 4 * g for g in range(7)], OWN + 8, False)
    f8 = job_reduce(p, S_JO8, 0, [JB[1] + 4 * g for g in range(8)], A8, True)
    f3(); f8()
    job_reduce(p, S_JO, 128, POOL[8:15], OWN, False)()
    if PROF:
        p.wait_all()
        stamp(p, 21)
        p.s(f"s_lshl_b32 s{S_T0}, s2, 2")
        p.s(f"s_add_u32 s{S_T0}, s{S_T0}, s{S_W}")
        p.s(f"s_lshl_b32 s{S_T0}, s{S_T0}, 8")
        p.s(f"s_add_u32 s{S_T0}, s{S_T0}, {PROFOFF}")
        p.vop("v_lshrrev_b32", PT, "2", V_LIN)
        p.store(0, 1, PT, SRD_WS, f"s{S_T0}", 0)
        p.s(f"s_add_u32 s{S_T0}, s{S_T0}, 0x40000")
        p.store(255, 1, PT, SRD_WS, f"s{S_T0}", 0)
        if PROF == 5:
            p.s(f"s_cmp_lg_u32 s2, 77")
            p.s(f"s_cbranch_scc1 {name}_end")
            p.s(f"s_cmp_lg_u32 s{S_W}, 0")
            p.s(f"s_cbranch_scc1 {name}_end")
            p.raw("v_readlane_b32 s56, v0, 0")
            for k, ix in enumerate([23, 1, 2, 5, 6, 9, 10, 16, 17, 18, 20, 21]):
                p.raw(f"v_readlane_b32 s57, v0, {ix}")
                p.raw("s_nop 3")
                p.s("s_sub_u32 s57, s57, s56")
                p.raw(f"v_mov_b32 v30, s57")
                p.raw(f"buffer_store_dword v30, off, s[{SRD_DBG}:{SRD_DBG+3}], 0 offset:{8 + 4 * k}")
                p.raw("s_nop 1")
    p.label(f"{name}_end")
    p.raw("s_endpgm")
    return [pre, *pe, *po, p], [pre, pe[0], pe[2], po[0], po[2], *pe, *po, *pe, p]

def gen(name):
    pro = prologue(name)
    Q = qmod(name)
    AE = aentry(name)
    A = [amod(name, qh) for qh in range(2)]
    F, FB = afin(name)
    P, PS = pmod(name)
    SL, SLS = slow(name)
    segs = [pro, Q, AE, A[0], A[1], F, FB] + P + SL
    sims = [[(x, 1) for x in [pro, Q, AE, A[qh], F, FB, AE, A[qh], F] + PS] for qh in range(2)]
    sims.append([(x, 1) for x in [F] + SLS + PS])
    lines, stats = finalize([(x, 1) for x in segs], sims=sims)
    if int(E("ROLL", "1")):
        lines = roll(lines, "; ---- a step", 8, S_LOOP, f"{name}_aloop")
        lines = roll(lines, "; ---- q step", 4, S_LOOP, f"{name}_qloop")
    lines += [f".if {name}_end-{name}_nononce < {int(E('CPN0', '6')) * 8192}", '.error "code prefetch range"', ".endif"]
    return [f".globl {name}", ".p2align 8", f".type {name},@function", f"{name}:"] + lines, stats
```

```python
from asmlib import *
import math, struct, os
E = os.environ.get
PROF = int(E("PROF", "0"))
ABL = E("ABL", "")
def f2u(f): return struct.unpack("<I", struct.pack("<f", f))[0]
CSCALE = math.log2(math.e) / math.sqrt(128.0)
NWG = 256
LDS_BYTES = 163840
XSL = 18432
XRING = 131072
XALT = 65536 - XSL
WRING = 65536
MISC = 147456
def IMG(kq): return kq * 9216
DROP = 0x30000
OOB = 0x40000000
WOT = 0
PART = 128 * 40960
PARTH = 20 * 40960
PARTB = 2 * PARTH
WFLG = PART + 32 * PARTB
PFLG = WFLG + 8192
WSBYTES = PFLG + 65536
PROFOFF = 0x4000000

SRD_X, SRD_K, SRD_V, SRD_W, SRD_WS, SRD_WO, SRD_OUT, SRD_DBG = 8, 12, 16, 20, 24, 28, 32, 36
S_W = 3
S_T0, S_T1, S_B, S_G, S_P, S_T2 = 40, 41, 42, 43, 44, 45
S_CS, S_NON, S_SPIN, S_PH, S_GRP, S_SO = 46, 48, 50, 51, 52, 53
S_BAD = 54
S_KOFF, S_VOFF, S_KB, S_KVN, S_M0KV, S_WFP = 56, 57, 58, 59, 60, 61
S_WOFF, S_WB, S_XOFF, S_XB = 62, 63, 65, 66
S_M0W, S_M0X8 = 75, 72
S_WT, S_PT, S_PF, S_RD, S_OUTO = 76, 77, 78, 79, 80
S_LO, S_HI = 81, 82
S_TM = 84
S_VB = 88
S_M0KVP, S_KVP, S_M0D, S_U = 89, 91, 94, 95
S_LOOP = 92
S_WT2 = 98
S_XM = 96

V_DK, V_DV, V_DW, V_DX = 1, 5, 9, 13
V_AK, V_AV0, V_AV1, V_AX, V_AX8, V_LIN = 18, 19, 20, 21, 22, 24
V_E0, V_E1, V_E2 = 25, 26, 27
V_S = 28
V_AW = V_S + 40
V_O = 84
V_T = 244
V_NV = 252
V_JUNK = 254
A_Q, A_QN, A_L, A_ONE, A_POOL, A_X = 256, 336, 416, 436, 440, 472
A_QP = 480
NPOOL = 8
def Qf(n, ks, base=A_Q): return base + (n * 4 + ks) * 4
def Oa(n, m): return V_O + (n * 8 + m) * 4
def XS(par, n): return V_S + (par * 4 + n) * 4 if n < 4 else V_S + 48
def YS(n): return V_S + 32 + n * 4 if n < 4 else V_S + 52
def La(n): return A_L + 4 * n
def Xf(st, t): return V_S + (st * 5 + t) * 4
def QA(r, n, m): return (A_QN if r else V_O) + (n * 8 + m) * 4

def stamp(p, idx, dyn=None):
    if not PROF: return
    p.s(f"s_memrealtime s[{S_TM}:{S_TM+1}]")
    p.s(f"s_memtime s[{S_TM+2}:{S_TM+3}]")
    p.wait_lgkm0()
    if dyn is None:
        p.raw(f"v_writelane_b32 v0, s{S_TM}, {idx}")
        p.raw(f"v_writelane_b32 v255, s{S_TM+2}, {idx}")
    else:
        p.s("s_mov_b32 s99, m0")
        p.s(f"s_lshl_b32 m0, s{dyn}, 2")
        p.s(f"s_add_u32 m0, m0, {idx}")
        p.raw(f"v_writelane_b32 v0, s{S_TM}, m0")
        p.raw(f"v_writelane_b32 v255, s{S_TM+2}, m0")
        p.s("s_mov_b32 m0, s99")

KVSEQ = [("K", 0)]
for u in range(15): KVSEQ += [("K", u + 1), ("V", u)]
KVSEQ += [("V", 15)]
KVPOS = {t: i for i, t in enumerate(KVSEQ)}
DYN = (10, 30)
SRD_C = SRD_WO
S_ROT, S_C, S_D = S_KOFF, S_VOFF, S_VB
def kv_ops(pos):
    pre = pos >= 32; pos %= 32
    kind, u = KVSEQ[pos]
    dyn = DYN[0] <= pos <= DYN[1] and not pre
    ops = []
    for j in range(4):
        def f(p, j=j):
            if dyn:
                if j == 0:
                    if pos == DYN[0]:
                        p.s(f"s_add_u32 s{S_C}, s{S_ROT}, {u * 8192}")
                        p.s(f"s_and_b32 s{S_C}, s{S_C}, 0x1ffff")
                        p.s(f"s_mov_b32 s{S_D}, {16384 if kind == 'V' else -8192}")
                        p.s(f"s_mov_b32 s{S_M0D}, {(pos % 8) * 16384}")
                    p.s(f"s_cmp_gt_i32 s{S_D}, 0")
                    p.s(f"s_cselect_b64 s[{SRD_C}:{SRD_C+1}], s[{SRD_V}:{SRD_V+1}], s[{SRD_K}:{SRD_K+1}]")
                    p.s(f"s_add_u32 m0, s{S_M0KV}, s{S_M0D}")
                    p.s(f"s_add_u32 s{S_SO}, s{S_KB}, s{S_C}")
                if "D" not in ABL: p.dmao(V_DV + j, SRD_C, f"s{S_SO}", j * 1024, (kind, u), "nt")
                if j == 0: p.s(f"s_add_u32 s{S_C}, s{S_C}, s{S_D}")
                if j == 1:
                    p.s(f"s_and_b32 s{S_C}, s{S_C}, 0x1ffff")
                    p.s(f"s_sub_u32 s{S_D}, 8192, s{S_D}")
                if j == 2:
                    p.s(f"s_add_u32 s{S_M0D}, s{S_M0D}, 16384")
                    p.s(f"s_and_b32 s{S_M0D}, s{S_M0D}, 0x1ffff")
                return
            if j == 0:
                if pre: p.s(f"s_add_u32 m0, s{S_M0KVP + (pos >> 2)}, {(pos % 4) * 16384}")
                else: p.s(f"s_add_u32 m0, s{S_M0KV}, {(pos % 8) * 16384}")
                p.s(f"s_add_u32 s{S_SO}, s{S_ROT}, {u * 8192}")
                p.s(f"s_and_b32 s{S_SO}, s{S_SO}, 0x1ffff")
                p.s(f"s_add_u32 s{S_SO}, s{S_SO}, s{S_KVP if pre else S_KB}")
            if "D" not in ABL: p.dmao(V_DV + j, SRD_K if kind == "K" else SRD_V, f"s{S_SO}", j * 1024, (kind, u), "nt")
        ops.append((f, 8))
    return ops
def w_ops(h):
    ops = []
    for j in range(4):
        def f(p, j=j):
            if j == 0:
                p.s(f"s_add_u32 m0, s{S_M0W}, {(h % 4) * 16384}")
                p.s(f"s_add_u32 s{S_SO}, s{S_WB + (h & 1)}, s{S_WOFF}")
            if "W" not in ABL: p.dmao(V_DW + j, SRD_W, f"s{S_SO}", j * 1024, ("W", h))
            if j == 1 and h % 2 == 1: p.s(f"s_add_u32 s{S_WOFF}, s{S_WOFF}, {32 * 8192}")
            if j == 2 and h % 4 == 3:
                p.s(f"s_cmp_ge_u32 s{S_WOFF}, {640 * 8192}")
                p.s(f"s_cselect_b32 s{S_WOFF}, 0, s{S_WOFF}")
        ops.append((f, 12 if j == 0 or (j == 2 and h % 4 == 3) else 8 if j == 1 and h % 2 else 4))
    return ops
def x_ops(i):
    ops = []
    sb = XRING if i else XALT
    for j in range(5):
        def f(p, j=j):
            if j == 0:
                p.s(f"s_add_u32 m0, s{S_M0KV}, {sb}")
                p.s(f"s_add_u32 s{S_SO}, s{S_XB}, s{S_XOFF}")
            if "X" not in ABL: p.dmao(V_DX + j, SRD_X, f"s{S_SO}", (j & 3) * 1024, ("X", i))
            if j == 1: p.s(f"s_add_u32 s{S_XOFF}, s{S_XOFF}, 128")
            if j == 2:
                p.s(f"s_cmp_ge_u32 s{S_XOFF}, 1280")
                p.s(f"s_cselect_b32 s{S_XOFF}, 0, s{S_XOFF}")
            if j == 3:
                p.s(f"s_add_u32 m0, s{S_M0X8}, {sb}")
                p.nop(0)
        ops.append((f, 12 if j in (0, 2, 3) else 8 if j == 1 else 4))
    return ops

def split_ops(ops):
    q = Prog()
    for f, _ in ops: f(q)
    out = []; i = 0; L = [x for x in q.ins if x.kind != "nop"]
    while i < len(L):
        grp = [L[i]]
        if L[i].text.startswith("s_cmp"): grp.append(L[i + 1])
        i += len(grp)
        out.append((lambda p, grp=grp: [p.add(x) for x in grp], "vm" if grp[0].kind in ("vm", "vml", "vms") else "s", 4 * len(grp)))
    return out
def fill_dma(sc, ops, after, before, tag=None, queue="dma", lead=80):
    so = split_ops(ops)
    for k, (fn, kind, cost) in enumerate(so):
        sc.fill(queue, fn, 8 if kind == "vm" else cost, after=after, before=before, lead=lead, solo=(kind == "vm" and SOLO), paced=(kind == "vm"),
                tag=tag if k == len(so) - 1 else None)
SOLO = int(E("SOLO", "1"))
T7 = int(E("T7", "0"))
def sprinkle(progs, ops, lo=0.0, hi=1.0):
    pts = []
    for p, st in progs:
        masked = False
        for i in range(st, len(p.ins)):
            x = p.ins[i]
            if x.text.startswith("s_mov_b64 exec"): masked = not x.text.endswith("-1")
            if x.kind == "label" and not x.text.startswith(";"): break
            if x.kind in ("valu", "perm") and not masked and p.ins[i - 1].kind in ("valu", "perm") and "v_cmp" not in x.text and "v_cmp" not in p.ins[i - 1].text: pts.append((p, i))
    a, b = int(lo * len(pts)), int(hi * len(pts))
    sel = [pts[a + (k * (b - a)) // len(ops)] for k in range(len(ops))]
    for (p, i), (fn, _) in reversed(list(zip(sel, ops))):
        q = Prog(); fn(q)
        p.ins[i:i] = q.ins

CPF = int(E("CPF", "1"))
def code_prefetch(p, name, k, target, nchunk, t):
    if not CPF: return
    p.s(f"s_getpc_b64 s[{S_TM}:{S_TM+1}]")
    p.label(f"{name}_pc{k}")
    p.s(f"s_sub_u32 s{S_TM}, s{S_TM}, {name}_pc{k}-{name}")
    p.s(f"s_subb_u32 s{S_TM+1}, s{S_TM+1}, 0")
    p.s(f"s_add_u32 s{S_TM}, s{S_TM}, {target}-{name}")
    p.s(f"s_addc_u32 s{S_TM+1}, s{S_TM+1}, 0")
    p.s(f"s_lshr_b32 s{S_T0}, s2, 1")
    p.s(f"s_and_b32 s{S_T0}, s{S_T0}, 0x7c")
    p.s(f"s_add_u32 s{S_T0}, s{S_T0}, s{S_W}")
    p.s(f"s_cmp_ge_u32 s{S_T0}, {nchunk}")
    p.s(f"s_cbranch_scc1 {name}_pf{k}")
    p.s(f"s_lshl_b32 s{S_T0}, s{S_T0}, 13")
    p.s(f"s_add_u32 s{S_TM}, s{S_TM}, s{S_T0}")
    p.s(f"s_addc_u32 s{S_TM+1}, s{S_TM+1}, 0")
    p.raw(f"v_lshlrev_b32 v{t}, 3, v{V_LIN}")
    p.raw(f"v_mov_b32 v{t+1}, s{S_TM+1}")
    p.raw(f"v_add_co_u32 v{t}, vcc, s{S_TM}, v{t}")
    p.raw("s_nop 1")
    p.raw(f"v_addc_co_u32 v{t+1}, vcc, 0, v{t+1}, vcc")
    p.raw(f"global_load_dword v{V_JUNK}, v[{t}:{t+1}], off")
    p.label(f"{name}_pf{k}")

def get_nonce(p, name, t):
    p.add(Ins(f"v_readfirstlane_b32 s{S_NON}, v{V_NV}", "rfl", [V_NV], []))
    p.add(Ins(f"v_readfirstlane_b32 s{S_NON+1}, v{V_NV+1}", "rfl", [V_NV + 1], []))
    p.s(f"s_cmp_lt_i32 s{S_NON+1}, 0")
    p.s(f"s_cbranch_scc1 {name}_x")
    p.vop("v_mov_b32", t + 2, "0")
    p.label(f"{name}")
    p.raw(f"buffer_load_dwordx2 v[{t}:{t+1}], v{t+2}, s[{SRD_DBG}:{SRD_DBG+3}], 0 offen sc1")
    p.raw("s_waitcnt vmcnt(0)")
    p.raw(f"v_readfirstlane_b32 s{S_NON}, v{t}")
    p.raw(f"v_readfirstlane_b32 s{S_NON+1}, v{t+1}")
    p.s(f"s_sub_u32 s{S_SPIN}, s{S_SPIN}, 1")
    p.s(f"s_cbranch_scc1 {name}_x")
    p.s(f"s_cmp_lt_i32 s{S_NON+1}, 0")
    p.s(f"s_cbranch_scc0 {name}")
    p.label(f"{name}_x")
    p.nop(1)

def publish(p, soff, off, t):
    p.vop("v_mov_b32", t, f"s{S_NON}")
    p.vop("v_mov_b32", t + 1, f"s{S_NON+1}")
    p.s("s_mov_b64 exec, 1")
    p.store(t, 2, V_LIN, SRD_WS, soff, off, tag="flag", flags="sc1")
    p.s("s_mov_b64 exec, -1")

def poll_issue(p, vaddr, soff, off, t):
    p.add(Ins(f"buffer_load_dwordx2 v[{t}:{t+1}], v{vaddr}, s[{SRD_WS}:{SRD_WS+3}], {soff} offen offset:{off} sc1", "vml", [vaddr], [t, t + 1], tag="poll"))
def poll_check(p, name, vaddr, soff, off, t, slp=2):
    p.label(f"{name}")
    p.add(Ins(f"v_cmp_ne_u32 vcc, s{S_NON}, v{t}", "valu", [t], []))
    p.add(Ins(f"v_cmp_ne_u32 s[{S_TM+2}:{S_TM+3}], s{S_NON+1}, v{t+1}", "valu", [t + 1], []))
    p.s(f"s_or_b64 vcc, vcc, s[{S_TM+2}:{S_TM+3}]")
    p.s(f"s_cbranch_scc0 {name}_ok")
    p.s(f"s_sub_u32 s{S_SPIN}, s{S_SPIN}, 1")
    p.s(f"s_cbranch_scc1 {name}_ok")
    if slp: p.s(f"s_sleep {slp}")
    p.raw(f"buffer_load_dwordx2 v[{t}:{t+1}], v{vaddr}, s[{SRD_WS}:{SRD_WS+3}], {soff} offen offset:{off} sc1")
    p.raw("s_waitcnt vmcnt(0)")
    p.s(f"s_branch {name}")
    p.label(f"{name}_ok")

def prologue(name):
    p = Prog()
    p.s(f"s_cmp_ge_u32 s2, {NWG}")
    p.s(f"s_cbranch_scc1 {name}_end")
    p.s("s_load_dwordx8 s[84:91], s[0:1], 0")
    p.s("s_load_dwordx8 s[92:99], s[0:1], 32")
    T = V_O
    W, L, a, b, c, d, U, P, VV, R8, PI, M, G, cv = range(T, T + 14)
    p.vop("v_lshrrev_b32", W, "6", 0)
    p.vop("v_and_b32", L, "63", 0)
    p.add(Ins(f"v_readfirstlane_b32 s{S_W}, v{W}", "rfl", [W], []))
    p.vop("v_and_b32", U, "1", W)
    p.vop("v_lshrrev_b32", P, "1", W)
    p.vop("v_lshrrev_b32", VV, "5", L)
    p.vop("v_bfe_u32", R8, L, "2", "3")
    p.vop("v_and_b32", PI, "3", L)
    p.s(f"s_movk_i32 s{S_T0}, 1280")
    p.vop("v_mul_lo_u32", a, R8, f"s{S_T0}")
    p.vop("v_lshl_add_u32", a, VV, "6", a)
    p.vop("v_xor_b32", c, "3", PI)
    p.vop("v_lshl_add_u32", V_DX, PI, "4", a)
    p.vop("v_lshl_add_u32", b, c, "4", a)
    p.vop("v_add_u32", V_DX + 1, f"{9216}", b)
    p.vop("v_add_u32", V_DX + 2, f"{2 * 9216}", V_DX)
    p.vop("v_add_u32", V_DX + 3, f"{3 * 9216}", b)
    p.vop("v_lshrrev_b32", d, "2", R8)
    p.vop("v_lshlrev_b32", cv, "1", d)
    p.vop("v_xor_b32", cv, cv, PI)
    p.vop("v_and_b32", b, "3", R8)
    p.vop("v_lshl_add_u32", b, d, "3", b)
    p.vop("v_lshlrev_b32", d, "7", U)
    p.vop("v_lshl_add_u32", d, VV, "6", d)
    p.vop("v_lshl_add_u32", b, b, "13", d)
    p.vop("v_lshl_add_u32", V_DW, cv, "4", b)
    for j in range(1, 4): p.vop("v_add_u32", V_DW + j, f"{(16 * (j & 1) + 4 * (j >> 1)) * 8192 - 1024 * j}", V_DW)
    p.vop("v_mul_u32_u24", b, "3", P)
    p.vop("v_xor_b32", b, b, PI)
    p.vop("v_lshl_add_u32", b, b, "4", a)
    p.vop("v_lshlrev_b32", a, "2", W)
    p.vop("v_sub_u32", a, P, a)
    p.vop("v_add_u32", a, "16", a)
    p.s(f"s_movk_i32 s{S_T1}, {8 * 1280}")
    p.vop("v_mul_lo_u32", a, a, f"s{S_T1}")
    p.vop("v_add_u32", a, a, b)
    p.vop("v_lshl_add_u32", V_DX + 4, U, "30", a)
    MAP = int(E("MAP", "0"))
    p.s(f"s_bfe_u32 s{S_T0}, s2, {(MAP << 16) | 3:#x}")
    p.s(f"s_lshr_b32 s{S_T2}, s2, {3 + MAP}")
    p.s(f"s_and_b32 s{S_G}, s2, {(1 << (3 - MAP)) - 1}")
    p.s(f"s_lshl_b32 s{S_G}, s{S_G}, {MAP}")
    p.s(f"s_or_b32 s{S_G}, s{S_G}, s{S_T0}")
    p.s(f"s_bfe_u32 s{S_B}, s2, {(MAP << 16) | (3 - MAP):#x}")
    p.s(f"s_lshl_b32 s{S_B}, s{S_B}, {5 - MAP}")
    p.s(f"s_or_b32 s{S_B}, s{S_B}, s{S_T2}")
    p.s(f"s_lshl_b32 s{S_T0}, s{S_T0}, {5 - MAP}")
    p.s(f"s_lshl_b32 s{S_T2}, s{S_T2}, {MAP}")
    p.s(f"s_add_u32 s{S_T2}, s{S_T2}, s{S_T0}")
    p.s(f"s_and_b32 s{S_T2}, s{S_T2}, 31")
    p.s(f"s_lshr_b32 s{S_P}, s{S_W}, 1")
    p.s(f"s_lshl_b32 s{S_M0KV}, s{S_W}, 12")
    p.s(f"s_add_u32 s{S_M0W}, s{S_M0KV}, {WRING}")
    p.s(f"s_lshl_b32 s{S_M0X8}, s{S_P}, 10")
    p.s(f"s_add_u32 s{S_M0X8}, s{S_M0X8}, 16384")
    p.s(f"s_bitcmp1_b32 s{S_W}, 0")
    p.s(f"s_cselect_b32 s{S_M0X8}, 0x1d000, s{S_M0X8}")
    p.s(f"s_lshl_b32 s{S_T0}, s{S_G}, 2")
    p.s(f"s_add_u32 s{S_T0}, s{S_T0}, s{S_P}")
    p.s(f"s_lshl_b32 s{S_WB}, s{S_T0}, 8")
    p.s(f"s_add_u32 s{S_WB+1}, s{S_WB}, 512")
    p.s(f"s_lshl_b32 s{S_T1}, s{S_B}, 5")
    p.s(f"s_add_u32 s{S_T0}, s{S_T0}, s{S_T1}")
    p.s(f"s_lshl_b32 s{S_KVN}, s{S_T0}, 17")
    p.s(f"s_mul_i32 s{S_T0}, s{S_T2}, 5")
    p.s(f"s_lshr_b32 s{S_T0}, s{S_T0}, 4")
    if not int(E("ROT", "1")): p.s(f"s_mov_b32 s{S_T0}, 0")
    p.s(f"s_lshl_b32 s{S_XOFF}, s{S_T0}, 7")
    p.s(f"s_lshl_b32 s{S_WOFF}, s{S_T0}, 19")
    p.s(f"s_mul_i32 s{S_XB}, s{S_B}, {144 * 1280}")
    p.s(f"s_mul_i32 s{S_T0}, s{S_W}, {32 * 1280}")
    p.s(f"s_add_u32 s{S_XB}, s{S_XB}, s{S_T0}")
    def srd(r, src, size):
        p.s(f"s_mov_b32 s{r+2}, {size:#x}")
        p.s(f"s_mov_b32 s{r+3}, 0x20000")
    def srd2(r, src):
        p.s(f"s_mov_b32 s{r}, s{src}")
        p.s(f"s_and_b32 s{r+1}, s{src+1}, 0xffff")
    SR = ((SRD_X, 84, 32 * 144 * 640 * 2), (SRD_W, 90, 640 * 4096 * 2), (SRD_K, 86, 1 << 27), (SRD_V, 88, 1 << 27),
          (SRD_WO, 92, 4096 * 640 * 2), (SRD_OUT, 94, 32 * 144 * 640 * 2), (SRD_DBG, 96, 256), (SRD_WS, 98, (1 << 28) if PROF else WSBYTES))
    for x in SR: srd(*x)
    p.s("s_waitcnt lgkmcnt(0)")
    for x in SR[:2]: srd2(*x[:2])
    for ops in (x_ops(0), w_ops(0), w_ops(1)):
        for f, _ in ops: f(p)
    for x in SR[2:]: srd2(*x[:2])
    stamp(p, 0)
    p.vop("v_lshlrev_b32", V_LIN, "4", L)
    code_prefetch(p, name, 0, f"{name}_nononce", int(E("CPN0", "7")), V_T)
    p.vop("v_lshl_add_u32", b, R8, "8", d)
    p.vop("v_lshl_add_u32", V_DV, cv, "4", b)
    for j in range(1, 4): p.vop("v_add_u32", V_DV + j, f"{1024 * j}", V_DV)
    p.s(f"s_lshl_b32 s{S_T0}, s2, 1")
    p.s(f"s_add_u32 s{S_T0}, s{S_T0}, s{S_P}")
    p.s(f"s_mul_i32 s{S_T0}, s{S_T0}, {int(E('KROT', '5'))}")
    p.s(f"s_lshr_b32 s{S_T1}, s2, 3")
    p.s(f"s_add_u32 s{S_T0}, s{S_T0}, s{S_T1}")
    p.s(f"s_and_b32 s{S_T0}, s{S_T0}, {15 if int(E('KROT', '5')) else 0}")
    p.s(f"s_lshl_b32 s{S_KOFF}, s{S_T0}, 13")
    p.s(f"s_mov_b32 s{S_M0KVP}, s{S_M0KV}")
    p.s(f"s_mov_b32 s{S_M0KVP+1}, s{S_M0W}")
    p.s(f"s_mov_b32 s{S_KVP}, s{S_KVN}")
    p.s(f"s_and_b32 s{S_U}, s{S_W}, 1")
    p.s(f"s_lshl_b32 s{S_T0}, s{S_B}, 2")
    p.s(f"s_lshr_b32 s{S_T1}, s{S_G}, 1")
    p.s(f"s_add_u32 s{S_T0}, s{S_T0}, s{S_T1}")
    p.s(f"s_and_b32 s{S_T1}, s{S_G}, 1")
    p.s(f"s_lshl_b32 s{S_T1}, s{S_T1}, 2")
    p.s(f"s_add_u32 s{S_T1}, s{S_T1}, s{S_W}")
    p.s(f"s_lshr_b32 s{S_WFP}, s{S_T1}, 1")
    p.s(f"s_lshl_b32 s{S_WFP}, s{S_WFP}, 7")
    p.s(f"s_add_u32 s{S_WFP}, s{S_WFP}, s{S_T0}")
    p.s(f"s_lshl_b32 s{S_WFP}, s{S_WFP}, 1")
    p.s(f"s_add_u32 s{S_WFP}, s{S_WFP}, s{S_U}")
    p.s(f"s_lshl_b32 s{S_WFP}, s{S_WFP}, 3")
    p.s(f"s_add_u32 s{S_WFP}, s{S_WFP}, {WFLG}")
    p.s(f"s_mul_i32 s{S_T1}, s{S_T1}, 5")
    p.s(f"s_mul_i32 s{S_T0}, s{S_T0}, 40960")
    p.s(f"s_lshl_b32 s{S_PT}, s{S_T1}, 10")
    p.s(f"s_add_u32 s{S_PT}, s{S_PT}, s{S_T0}")
    p.s(f"s_and_b32 s{S_T1}, s{S_G}, 1")
    p.s(f"s_mul_i32 s{S_T1}, s{S_T1}, 640")
    p.s(f"s_add_u32 s{S_WT}, s{S_T1}, s{S_T0}")
    p.s(f"s_mul_i32 s{S_T1}, s{S_W}, {8 * 1280}")
    p.s(f"s_add_u32 s{S_WT}, s{S_WT}, s{S_T1}")
    p.s(f"s_lshl_b32 s{S_RD}, s{S_W}, 10")
    if int(E("TOUCH", "1")):
        p.add(Ins(f"buffer_load_dword v{V_T+4}, off, s[{SRD_K}:{SRD_K+3}], s{S_KVN} nt", "vml", [], [V_T + 4], tag="touch"))
        p.add(Ins(f"buffer_load_dword v{V_T+5}, off, s[{SRD_V}:{SRD_V+3}], s{S_KVN} nt", "vml", [], [V_T + 5], tag="touch"))
        p.add(Ins(f"buffer_load_dword v{V_T+7}, off, s[{SRD_WS}:{SRD_WS+3}], s{S_PT} sc1", "vml", [], [V_T + 7], tag="touch"))
    p.s(f"s_or_b32 s{S_T0}, s2, s{S_W}")
    p.s(f"s_cmp_lg_u32 s{S_T0}, 0")
    p.s(f"s_cbranch_scc1 {name}_nononce")
    p.s(f"s_memrealtime s[{S_NON}:{S_NON+1}]")
    p.s("s_waitcnt lgkmcnt(0)")
    p.s(f"s_or_b32 s{S_NON+1}, s{S_NON+1}, 0x80000000")
    p.raw(f"v_mov_b32 v{V_T}, s{S_NON}")
    p.raw(f"v_mov_b32 v{V_T+1}, s{S_NON+1}")
    p.s("s_mov_b64 exec, 1")
    p.raw(f"buffer_store_dwordx2 v[{V_T}:{V_T+1}], v{V_LIN}, s[{SRD_DBG}:{SRD_DBG+3}], 0 offen sc1")
    p.s("s_mov_b64 exec, -1")
    p.label(f"{name}_nononce")
    p.s(f"s_mov_b32 s{S_SPIN}, 0x40000")
    p.s(f"s_mov_b32 s{S_PH}, 0")
    if PROF in (2, 3): p.s("s_mov_b32 s93, 32")
    p.s(f"s_mov_b64 s[{S_BAD}:{S_BAD+1}], 0")
    p.s(f"s_mov_b32 s{S_CS}, {f2u(CSCALE):#x}")
    p.s(f"s_mov_b32 s{S_CS+1}, s{S_CS}")
    p.s(f"s_mov_b32 s{S_LO}, {f2u(2.0 ** -16):#x}")
    p.s(f"s_mov_b32 s{S_HI}, {f2u(2.0 ** 24):#x}")
    p.vop("v_and_b32", M, "15", L)
    p.vop("v_lshrrev_b32", G, "4", L)
    p.vop("v_lshrrev_b32", a, "3", M)
    p.vop("v_mul_u32_u24", c, "3", a)
    p.vop("v_xor_b32", c, c, G)
    p.vop("v_and_b32", b, "7", M)
    p.vop("v_lshlrev_b32", b, "6", b)
    p.vop("v_lshl_add_u32", b, c, "4", b)
    p.vop("v_lshl_add_u32", b, a, "10", b)
    p.vop("v_add_u32", V_AX8, f"{XRING}", b)
    p.vop("v_lshl_add_u32", V_AX, U, "13", V_AX8)
    p.vop("v_add_u32", V_AW + 5, f"{XALT}", b)
    p.vop("v_lshl_add_u32", V_AW + 4, U, "13", V_AW + 5)
    p.vop("v_and_b32", c, "0x1ff", V_LIN)
    p.vop("v_lshl_add_u32", c, VV, "10", c)
    p.s(f"s_mul_i32 s{S_T2}, s{S_W}, 5")
    for f in range(5):
        p.s(f"s_lshr_b32 s{S_T0}, s{S_T2}, 2")
        p.s(f"s_lshl_b32 s{S_T0}, s{S_T0}, 12")
        p.s(f"s_and_b32 s{S_T1}, s{S_T2}, 2")
        p.s(f"s_lshl_b32 s{S_T1}, s{S_T1}, 8")
        p.s(f"s_add_u32 s{S_T0}, s{S_T0}, s{S_T1}")
        p.s(f"s_and_b32 s{S_T1}, s{S_T2}, 1")
        p.s(f"s_lshl_b32 s{S_T1}, s{S_T1}, 3")
        p.s(f"s_add_u32 s{S_T0}, s{S_T0}, s{S_T1}")
        p.vop("v_add_u32", V_O + 144 + f, f"s{S_T0}", c)
        p.s(f"s_add_u32 s{S_T2}, s{S_T2}, 1")
    p.vop("v_and_b32", b, "0xffffffcf", b)
    p.vop("v_bfe_u32", a, M, "2", "1")
    p.vop("v_lshlrev_b32", a, "1", a)
    p.vop("v_xor_b32", a, a, G)
    p.vop("v_lshl_add_u32", b, a, "4", b)
    p.vop("v_lshl_add_u32", V_AK, P, "13", b)
    p.vop("v_lshrrev_b32", a, "1", G)
    p.vop("v_lshlrev_b32", b, "10", a)
    p.vop("v_lshl_add_u32", b, R8, "6", b)
    p.vop("v_and_b32", c, "1", L)
    p.vop("v_lshl_add_u32", b, c, "3", b)
    p.vop("v_bfe_u32", c, L, "1", "1")
    p.vop("v_lshl_add_u32", b, c, "4", b)
    p.vop("v_and_b32", c, "1", G)
    p.vop("v_lshl_add_u32", b, c, "5", b)
    p.vop("v_lshl_add_u32", V_AV0, P, "13", b)
    p.vop("v_xor_b32", V_AV1, "32", V_AV0)
    p.vop("v_lshl_add_u32", a, U, "12", V_AV0)
    p.vop("v_xor_b32", b, "32", a)
    p.vop("v_xor_b32", c, "4096", a)
    p.vop("v_xor_b32", d, "4096", b)
    for i, r in enumerate((a, b, c, d)): p.vop("v_add_u32", V_AW + i, f"{WRING}", r)
    for ops in (w_ops(2), x_ops(1), w_ops(3)):
        for f, _ in ops: f(p)
    stamp(p, 23)
    return p

def R128(d, a, off): return lambda p: p.ds_read128(d, a, off)
def TR(d, a, off): return lambda p: p.ds_tr(d, a, off)

class Pool:
    def __init__(self, sc, base, n):
        self.sc = sc; self.regs = base if isinstance(base, list) else [base + 4 * k for k in range(n)]; n = len(self.regs); self.n = n; self.last = [None] * n; self.i = 0; self.frags = []
    def frag(self, tile, mk_reads, consumers, as_b=False):
        k = self.i % self.n; self.i += 1
        r = self.regs[k]
        war = self.last[k]
        for (d, o, c, tag) in consumers:
            if as_b: self.sc.mfma(d, o, r, c, tag)
            else: self.sc.mfma(d, r, o, c, tag)
        self.last[k] = consumers[-1][3]
        self.frags.append((tile, mk_reads(r), consumers[0][3], war))

LEAD = int(E("LEAD", "9"))
LEADB = int(E("LEADB", "8"))
BGAP = int(E("BGAP", "4"))

def sstamp(p):
    p.s(f"s_memrealtime s[{S_TM}:{S_TM+1}]")
    p.s(f"s_memtime s[{S_TM+2}:{S_TM+3}]")
    p.wait_lgkm0()
    p.s("s_mov_b32 s99, m0")
    p.s("s_mov_b32 m0, s93")
    p.s("s_add_u32 s93, s93, 1")
    p.raw(f"v_writelane_b32 v0, s{S_TM}, m0")
    p.raw(f"v_writelane_b32 v255, s{S_TM+2}, m0")
    p.s("s_mov_b32 m0, s99")

def qmod(name):
    p = Prog()
    KVS = [int(x) for x in E("KVS", "29,31,33,35,37").split(",")]
    sc = Sched(p, budget=int(E("QBUD", "8")), late_extra=8)
    sc.group["dma"] = "vm"; sc.pace["vm"] = int(E("QPACE", "4"))
    sc.maxds = int(E("QMAXDS", "1"))
    pool = Pool(sc, A_QP, NPOOL)
    for h in range(40):
        r = h & 1; st = (h >> 1) & 1
        for k in range(8):
            off = (h % 4) * 16384 + ((k >> 1) & 1) * 512
            ad = V_AW + 2 * (k >> 2) + (k & 1)
            cons = [(QA(r, n, k), Xf(st, n), QA(r, n, k) if h > 1 else None, ("Q", h, k, n)) for n in range(5 if k < 4 else 4)]
            pool.frag(h, lambda rg: [TR(rg, ad, off), TR(rg + 2, ad, off + 2048)], cons)
    mt = lambda i: sc.m[max(0, min(i, len(sc.m) - 1))][4]
    def xreads(i, kh):
        return [R128(Xf(kh, n), (V_AX if i else V_AW + 4) + (n >> 2), (n if n < 4 else 8) * 2048 + kh * 512) for n in range(5)]
    WOS = int(E("WOS", "0")); WOR = int(E("WOR", "28"))
    def wop():
        ops = []
        for cb in range(5):
            def f(p, cb=cb):
                p.s(f"s_add_u32 m0, s{S_RD}, {cb * (4096 - 128)}")
                p.dmao(V_DX, SRD_WO, f"s{S_WT}", cb * 128, "WOP", E("WOFL", ""))
            ops.append((f, 8))
        return ops
    def wst():
        def f(p):
            for i in range(5):
                if i == 4: p.s(f"s_add_u32 s{S_PT}, s{S_PT}, 4096")
                p.store(A_Q + 4 * i, 4, V_LIN, SRD_WS, f"s{S_PT}", (i % 4) * 1024, tag="wst", flags="sc1")
        return [(f, 20)]
    for fi, (h, reads, cons, war) in enumerate(pool.frags):
        c0 = 36 * h
        tau = c0 - LEADB
        taun = c0 + 36 - LEADB
        if fi % 8 == 0:
            def bar(p, h=h):
                p.comment(f"---- q step {h}")
                tags = [("W", h)]
                if h == 0: tags.append(("X", 0))
                if h % 4 == 3 and h < 39: tags.append(("X", (h + 1) // 4))
                if h == WOR: tags.append("WOP")
                p.wait_vm(tags, lgkm0=True)
                if "b" not in ABL or h < 4: p.barrier()
                if PROF == 2 and h % 2 == 0: sstamp(p)
            ops = []
            if h % 4 == 1 and 5 <= h < 37: ops += x_ops(h // 4 + 1)
            if 1 <= h < 37: ops += w_ops(h + 3)
            if "d" in ABL: ops = []
            if h == WOS: ops += wop()
            if h == WOR:
                for i in range(10):
                    sc.fill("rw", TR(A_Q + 2 * i, V_O + 144 + (i >> 1), (i & 1) * 2048), 4, ds=True, after=("BAR", h), before=mt(taun - BGAP), lead=2 * (10 - i))
            if h == 36: ops += wst()
            for k, x in enumerate(KVS):
                if x == h: ops += kv_ops(32 + k)
            sc.fill("rd", bar, 8, before=mt(tau), early=0 if h else None, tag=("BAR", h))
            QD = int(E("QD", "14")) if len(ops) <= 4 else int(E("QD2", "0"))
            fill_dma(sc, ops, dict(tag=("BAR", h), delay=QD), mt(taun - 1))
            if h == 0:
                for k, fn in enumerate(xreads(0, 0)): sc.fill("rd", fn, 4, ds=True, before=mt(0))
            xr = []; aft = [("BAR", h)]
            if h % 4 == 3 and h < 39: xr = xreads((h + 1) // 4, 0)
            if h % 4 == 0:
                xr = xreads(h // 4, 1)
                if h: aft.append(("Q", h - 1, 7, 3))
            for j, fn in enumerate(xr):
                sc.fill("rx", fn, 4, ds=True, after=aft, before=mt(taun - BGAP), lead=3 * (len(xr) - j))
        for k, fn in enumerate(reads):
            if "r" in ABL and h >= 2: continue
            bf = cons
            if sc.idx[cons] > taun - BGAP: bf = mt(taun - BGAP)
            sc.fill("rd", fn, 4, ds=True, after=war if k == 0 else None, before=bf, lead=LEAD if bf is cons else 0, early=int(E("QEARLY", "99")))
    def lastbar(p):
        p.comment("---- q step 40")
        p.wait_lgkm0(); p.barrier()
        p.add(Ins(f"buffer_load_dwordx2 v[{V_NV}:{V_NV+1}], off, s[{SRD_DBG}:{SRD_DBG+3}], 0 sc1", "vml", [], [V_NV, V_NV + 1], tag="non"))
    sc.fill("rd", lastbar, 8, before=mt(36 * 40 - LEADB), early=0)
    sc.run()
    stamp(p, 1)
    fstart = len(p.ins)
    TB = V_O + 144
    cnt = [0]
    def fin(r, n, t, i):
        s0 = QA(r, n, 2 * t)
        if r:
            tb = TB + 8 * (cnt[0] & 1); cnt[0] += 1
            for x in range(8): p.ar(tb + x, s0 + x)
            s0 = tb
        dst = V_S + 4 * i
        for x in range(0, 8, 2): p.pkmul(s0 + x, s0 + x, f"s[{S_CS}:{S_CS+1}]")
        for x in range(4): p.cvtpk(dst + x, s0 + 2 * x, s0 + 2 * x + 1)
        return dst
    def swp(dst):
        p.swap32(dst, dst + 2); p.swap32(dst + 1, dst + 3)
        p.swap16(dst, dst + 2); p.swap16(dst + 1, dst + 3)
    p.v(f"v_lshl_add_u32 v{V_E0}, s{S_W}, 12, v{V_LIN}", [V_E0], [V_LIN])
    p.vop("v_add_u32", V_E0, f"{XRING}", V_E0)
    p.vop("v_xor_b32", V_E1, "4096", V_E0)
    d8 = [fin(r, 4, t, 2 * r + t) for r in range(2) for t in range(2)]
    for d in d8: swp(d)
    for t, d in enumerate(d8): p.ds_write(V_E0, d, 4, t * 1024)
    for r in range(2):
        base = A_QN if r else A_Q
        for n in range(4):
            ds = [fin(r, n, t, 4 + (n & 1) * 4 + t) for t in range(4)]
            if r == 0 and n == 0:
                p.wait_lgkm0(); p.barrier()
                for t in range(2): p.ds_read128(Qf(4, t), V_E0, t * 1024)
                for t in range(2): p.ds_read128(Qf(4, 2 + t), V_E1, t * 1024)
            for d in ds: swp(d)
            for t, d in enumerate(ds):
                for x in range(4): p.aw(Qf(n, t, base) + x, d + x)
    for t in range(2): p.ds_read128(Qf(4, t, A_QN), V_E0, 2048 + t * 1024)
    for t in range(2): p.ds_read128(Qf(4, 2 + t, A_QN), V_E1, 2048 + t * 1024)
    p.vop("v_mov_b32", V_T, "0x3f803f80")
    for r in range(4): p.aw(A_ONE + r, V_T)
    sprinkle([(p, fstart)], sum([kv_ops(32 + k) for k in range(len(KVS), 7 if T7 else 8)], []), 0.0, float(E("QSH", "1.0")))
    get_nonce(p, f"{name}_n1", V_T)
    p.wait_vm("wst")
    publish(p, f"s{S_WFP}", 0, V_T)
    z = p
    z.s(f"s_mul_i32 s{S_WT}, s{S_G}, {16 * 40960}")
    z.s(f"s_mul_i32 s{S_T0}, s{S_W}, 10240")
    z.s(f"s_add_u32 s{S_WT}, s{S_WT}, s{S_T0}")
    z.s(f"s_lshl_b32 s{S_PF}, s{S_W}, 11")
    z.s(f"s_lshl_b32 s{S_T1}, s{S_G}, 8")
    z.s(f"s_add_u32 s{S_PF}, s{S_PF}, s{S_T1}")
    z.s(f"s_add_u32 s{S_PF}, s{S_PF}, {WFLG}")
    z.vop("v_lshrrev_b32", V_AX, "1", V_LIN)
    z.vop("v_and_b32", V_AX, "0xf8", V_AX)
    psetup(z)
    stamp(z, 2)
    return p

def a_mfmas(sc, pool, qh):
    AV = (V_AV0, V_AV1)
    has8 = lambda u: (u & 1) == qh
    for pos, (kind, u) in enumerate(KVSEQ):
        sb = (pos % 4) * 16384
        ns = [0, 1, 2, 3] + ([4] if has8(u) else [])
        if kind == "K":
            for kt in range(2):
                for ks in range(4):
                    off = sb + kt * 2048 + ((ks >> 1) ^ qh) * 4096 + (ks & 1) * 512
                    cons = []
                    for n in ns:
                        d = XS(u & 1, n) if kt == 0 else YS(n)
                        cons.append((d, Qf(n, ks), d if ks else None, ("S", u, kt, ks, n)))
                    pool.frag(pos, lambda r: [R128(r, V_AK, off)], cons)
        else:
            first = lambda n: u == 0 if n < 4 else u == qh
            for n in ns: sc.mfma(La(n), A_ONE, XS(u & 1, n), None if first(n) else La(n), ("L", u, n))
            for m in range(8):
                e, mp = m & 1, m >> 1
                off = sb + (mp >> 1) * 4096 + (mp & 1) * 512
                oa = lambda n: Oa(n, m if n < 4 else m ^ (4 * qh))
                cons = [(oa(n), XS(u & 1, n), None if first(n) else oa(n), ("PV", u, m, n)) for n in ns]
                pool.frag(pos, lambda r: [TR(r, AV[e], off), TR(r + 2, AV[e], off + 2048)], cons)

def a_taus():
    cs = []
    for qh in range(2):
        sc = Sched(Prog()); pool = Pool(sc, A_POOL, NPOOL); a_mfmas(sc, pool, qh)
        c = {}
        for (pos, _, cons, _) in pool.frags: c.setdefault(pos, sc.idx[cons])
        c[32] = len(sc.m) + LEADB - 3
        cs.append(c)
    return [min(cs[0][j], cs[1][j]) - LEADB for j in range(33)]

def aentry(name):
    p = Prog()
    p.label(f"{name}_A")
    p.s(f"s_mov_b32 s{S_KB}, s{S_KVN}")
    p.s(f"s_mov_b32 s{SRD_C+2}, 0x8000000")
    p.s(f"s_add_u32 s{S_KVN}, s{S_KVN}, {2 << 17}")
    p.s(f"s_cmp_eq_u32 s{S_PH}, 0")
    p.s(f"s_cselect_b32 s{S_M0KVP}, s{S_M0KV}, {DROP:#x}")
    p.s(f"s_cselect_b32 s{S_M0KVP+1}, s{S_M0W}, {DROP:#x}")
    p.s(f"s_cselect_b32 s{S_KVP}, s{S_KVN}, {OOB:#x}")
    p.s(f"s_cselect_b64 s[{S_XM}:{S_XM+1}], 0, -1")
    p.s(f"s_cselect_b32 s{S_WT2}, {OOB:#x}, s{S_WT}")
    p.s(f"s_cmp_eq_u32 s{S_U}, 1")
    p.s(f"s_cbranch_scc1 {name}_A1")
    return p

def tile_addr(p, base, dst):
    p.s(f"s_lshl_b32 s{S_T0}, s{S_U}, 2")
    p.s(f"s_sub_u32 s{S_T0}, s{S_T0}, s{S_G}")
    for n in range(4):
        p.s(f"s_add_u32 s{S_T1}, s{S_T0}, {n + 7}")
        p.s(f"s_and_b32 s{S_T1}, s{S_T1}, 7")
        p.v(f"v_lshl_add_u32 v{dst+n}, s{S_T1}, 10, v{base}", [dst + n], [base])

def avm(pos):
    if pos >= 30: return None
    pat = [int(x) for x in E("AVM", "3,4").split(",")]
    h = [int(x) for x in E("AVMH", "").split(",") if x]
    if pos < len(h): return h[pos]
    return pat[pos % len(pat)] + (3 if 1 <= pos <= 4 else 0)
RQ = [int(x) for x in E("RQH", "0,3,3,2").split(",")] + [int(x) for x in E("RQL", "4,3,4,3,4,3,4,3").split(",")] * 3 + [int(x) for x in E("RQT", "4,4,4,4").split(",")]
STREAM = sum([kv_ops(k) for k in range(8, 40)], [])
for s_ in range(32): assert sum(RQ[:s_ + 1]) <= 4 * s_
WORD = list(range(20, 32)) + list(range(20))
def amod(name, qh):
    p = Prog()
    p.label(f"{name}_A{qh}")
    sc = Sched(p, budget=int(E("ABUD", "8")), late_extra=int(E("ALATE", "8")))
    sc.group["dma"] = "vm"; sc.pace["vm"] = int(E("APACE", "2"))
    pool = Pool(sc, A_POOL, NPOOL)
    a_mfmas(sc, pool, qh)
    tau = a_taus()
    mt = lambda i: sc.m[max(0, min(i, len(sc.m) - 1))][4]
    def add_bar(pos):
        def bar(p, pos=pos):
            p.comment(f"---- a step {pos}")
            if pos < 32: p.wait_vm(KVSEQ[pos], lgkm0=True, cap=avm(pos))
            else: p.wait_lgkm0()
            p.barrier()
            if pos % 4 == 0 and pos:
                for r in (V_AV0, V_AV1, V_AK): p.vop("v_xor_b32", r, "0x10000", r)
            if PROF == 3 and pos % 2 == 0 and pos < 32: sstamp(p)
        sc.fill("rd", bar, 8, before=mt(tau[pos]), early=0 if pos else None, tag=("BAR", pos))
        if pos < 32:
            ops = STREAM[sum(RQ[:pos]):sum(RQ[:pos + 1])]
            aft = ("BAR", pos); bf = mt(tau[pos + 1] - 1)
            span = tau[pos + 1] - max(tau[pos], 0)
            for k, op in enumerate(ops): fill_dma(sc, [op], dict(tag=aft, delay=(k * (span - 2)) // len(ops)), bf)
            if pos < 4:
                for k in range(20 + 3 * pos, 23 + 3 * pos):
                    for fn, kind, cost in split_ops([(wload(0, k, S_T2, S_WT2), 8)]):
                        sc.fill("dmp", fn, 8 if kind == "vm" else 4, after=dict(tag=aft, delay=5 + 9 * ((k - 20) % 3)), solo=(kind == "vm"), before=bf, lead=20)
            if pos == 30:
                NWL = int(E("NWL", "12")); WLS = int(E("WLS", "6"))
                last = ("S", 15, 1, 3, 4 if qh == 1 else 3)
                for k in range(NWL):
                    for fn, kind, cost in split_ops([(wload(0, k, S_T2, S_WT2), 8)]):
                        sc.fill("dmp", fn, 8 if kind == "vm" else 4, after=dict(tag=last, delay=2 + WLS * k), solo=(kind == "vm"), before=mt(sc.idx[last] + 12 + WLS * k), lead=9)
    cur = None
    for (pos, reads, cons, war) in pool.frags:
        if pos != cur:
            cur = pos; add_bar(pos)
        for k, fn in enumerate(reads):
            bf = cons
            if sc.idx[cons] > tau[pos + 1] - BGAP: bf = mt(tau[pos + 1] - BGAP)
            sc.fill("rd", fn, 4, ds=True, after=war if k == 0 else None, before=bf, lead=LEAD if bf is cons else 0)
    add_bar(32)
    def V(fn, after=None, before=None, cost=4, lead=0): sc.fill("va", fn, cost, after=after, before=before, lead=lead)
    EDL = int(E("EDL", "3"))
    for u in range(16):
        ns = [0, 1, 2, 3] + ([4] if (u & 1) == qh else [])
        for kt in range(2):
            for n in ns:
                src = XS(u & 1, n) if kt == 0 else YS(n)
                dst = XS(u & 1, n) + 2 * kt
                for r in range(4):
                    V(lambda p, reg=src + r: p.exp(reg, reg), after=dict(tag=("S", u, kt, 3, n), delay=EDL), cost=8)
                bf = ("L", u, n)
                if kt == 1 and n < 4 and u < 15: bf = ("S", u + 1, 1, 0, n)
                V(lambda p, dst=dst, src=src: p.cvtpk(dst, src, src + 1))
                V(lambda p, dst=dst, src=src: p.cvtpk(dst + 1, src + 2, src + 3), before=bf, lead=2)
    sc.run()
    if qh == 0: p.s(f"s_branch {name}_F")
    return p

def afin(name):
    p = Prog()
    p.label(f"{name}_F")
    stamp(p, 5, S_PH)
    poll_issue(p, V_AX, f"s{S_PF}", 0, V_NV)
    AD, AL, AI, A8 = V_S + 44, V_S + 46, V_S + 48, V_S + 52
    p.v(f"v_lshl_add_u32 v{AD}, s{S_W}, 12, v{V_LIN}", [AD], [V_LIN])
    p.vop("v_add_u32", AD, f"{MISC}", AD)
    p.vop("v_xor_b32", AD + 1, "4096", AD)
    for i in range(4): p.ds_write(AD + 1, Oa(4, 4 + i), 4, i * 1024)
    p.s(f"s_xor_b32 s{S_T0}, s{S_W}, 1")
    p.s(f"s_movk_i32 s{S_T1}, 18432")
    p.s(f"s_mov_b32 s{S_T2}, {IMG(8)}")
    p.s(f"s_cmp_eq_u32 s{S_PH}, 0")
    p.s(f"s_cselect_b32 s{S_T1}, 1024, s{S_T1}")
    p.s(f"s_cselect_b32 s{S_T2}, {XRING}, s{S_T2}")
    p.s(f"s_mul_i32 s{S_T0}, s{S_T0}, s{S_T1}")
    p.s(f"s_add_u32 s{S_T0}, s{S_T0}, s{S_T2}")
    p.vop("v_add_u32", AL + 1, f"s{S_T0}", V_LIN)
    p.ds_write(AL + 1, La(4), 1, 0)
    p.s(f"s_mul_i32 s{S_T0}, s{S_W}, s{S_T1}")
    p.s(f"s_add_u32 s{S_T0}, s{S_T0}, s{S_T2}")
    p.vop("v_add_u32", AL, f"s{S_T0}", V_LIN)
    RL = V_S + 2
    for n in range(5): p.ar(RL + 2 * n, La(n))
    p.s(f"s_mul_i32 s{S_T0}, s{S_P}, 36864")
    p.vop("v_add_u32", A8 + 1, f"s{S_T0}", V_LIN)
    tile_addr(p, A8 + 1, V_T)
    for n in range(4): p.vop("v_add_u32", AI + n, f"{IMG(8)}", V_T + n)
    p.vop("v_subrev_u32", A8, f"{IMG(8)}", AL)
    wleft = list(range(int(E("NWL", "12")), 20))
    def check(n):
        r = RL + 2 * n
        p.add(Ins(f"v_cmp_nge_f32 vcc, v{r}, s{S_LO}", "valu", [r], []))
        p.s(f"s_or_b64 s[{S_BAD}:{S_BAD+1}], s[{S_BAD}:{S_BAD+1}], vcc")
        p.add(Ins(f"v_cmp_nle_f32 vcc, v{r}, s{S_HI}", "valu", [r], []))
        p.s(f"s_or_b64 s[{S_BAD}:{S_BAD+1}], s[{S_BAD}:{S_BAD+1}], vcc")
        p.vop("v_rcp_f32", r + 1, r, kind="trans")
        p.vop("v_rcp_f32", r, r, kind="trans")
    def pkm(d, n): p.pkmul(d, d, RL + 2 * n)
    CHK = V_S + 40
    pend = []
    def flush():
        for d in pend: p.mfma(CHK, A_ONE, d, CHK if d != Oa(0, 0) else None)
        pend.clear()
    def norm(n, t):
        s0 = Oa(n, 2 * t)
        for r in range(0, 8, 2): pkm(s0 + r, n)
        for r in range(4): p.cvtpk(s0 + r, s0 + 2 * r, s0 + 2 * r + 1)
        flush()
        if t & 1:
            p.s(f"s_mov_b64 exec, s[{S_XM}:{S_XM+1}]")
            for tt in (t - 1, t):
                if n < 4: p.ds_write(AI + n, Oa(n, 2 * tt), 4, tt * 9216 + 1024).kind = "dsx"
                else: p.ds_write(AL, Oa(n, 2 * tt), 4, tt * 9216).kind = "dsx"
                if n < 4: p.ds_write(V_T + n, Qf(n, tt, A_QN), 4, tt * 9216 + 1024).kind = "dsx"
                else: p.ds_write(A8, Qf(n, tt, A_QN), 4, tt * 9216).kind = "dsx"
            p.s("s_mov_b64 exec, -1")
        if wleft: wload(0, wleft.pop(0), S_T2, S_WT2)(p)
        pend.append(s0)
    for n in range(4): check(n)
    p.add(Ins("s_waitcnt lgkmcnt(0)", "waitlgkm0"))
    for t in range(4): norm(0, t)
    p.barrier()
    PX = V_S + 16
    for i in range(4): p.ds_read128(PX + 4 * i, AD, i * 1024)
    p.ds_read32(V_S, AL, 0)
    for n in (1, 2):
        for t in range(4): norm(n, t)
    p.vop("v_add_f32", RL + 8, RL + 8, V_S)
    check(4)
    for i in range(4):
        for r in range(4): p.vop("v_add_f32", Oa(4, i) + r, Oa(4, i) + r, PX + 4 * i + r)
    for t in range(2): norm(4, t)
    for t in range(4): norm(3, t)
    flush()
    p.s(f"s_movk_i32 s{S_T2}, 0x207")
    p.s(f"s_add_u32 s{S_PH}, s{S_PH}, 1")
    p.add(Ins(f"v_cmp_class_f32 vcc, v{CHK}, s{S_T2}", "valu", [CHK], []))
    p.s(f"s_or_b64 s[{S_BAD}:{S_BAD+1}], s[{S_BAD}:{S_BAD+1}], vcc")
    stamp(p, 2, S_PH)
    p.s(f"s_cmp_eq_u32 s{S_PH}, 2")
    p.s(f"s_cbranch_scc1 {name}_P")
    q = Prog()
    q_copy(q)
    for n in range(5):
        for t in range(4 if n < 4 else 2):
            for r in range(4): q.aw(Qf(n, t, A_QN) + r, Oa(n, 2 * t) + r)
    sprinkle([(p, 8), (q, 1)], STREAM[sum(RQ):], 0.0, float(E("ASH", "0.7")))
    code_prefetch(q, name, 1, f"{name}_end-16384", 2, V_T)
    if int(E("TOUCH2", "0")):
        q.s(f"s_add_u32 s{S_T0}, s{S_RD}, {32768 + 1024}")
        q.raw(f"buffer_load_dword v{V_JUNK}, off, s[{SRD_WS}:{SRD_WS+3}], s{S_T0} sc1")
        q.s(f"s_add_u32 s{S_T0}, s{S_T0}, {PARTB - 40960}")
        q.raw(f"buffer_load_dword v{V_JUNK}, off, s[{SRD_WS}:{SRD_WS+3}], s{S_T0} sc1")
        q.raw(f"buffer_load_dword v{V_JUNK}, off, s[{SRD_WS}:{SRD_WS+3}], s{S_PO} sc1")
        q.raw(f"buffer_load_dword v{V_JUNK}, off, s[{SRD_OUT}:{SRD_OUT+3}], s{S_OUTO} sc1")
    poll_check(q, f"{name}_wpoll", V_AX, f"s{S_PF}", 0, V_NV)
    q.s(f"s_branch {name}_A")
    return p, q

def q_copy(p):
    for r in range(80): p.amov(A_Q + r, A_QN + r)

P_R = ([A_Q + 4 * i for i in range(20)] + [A_X + 4 * i for i in range(10)] + [10, 14],
       [A_QN + 4 * i for i in range(20)] + [A_L + 4 * i for i in range(12)])
def wload(j, i, so=None, sb=None):
    def f(p):
        if i % 2 == 0: p.s(f"s_add_u32 s{so or S_SO}, s{sb or S_WT}, {(i >> 1) * 40960}")
        if "B" not in ABL: p.load4(P_R[j & 1][i], V_LIN, SRD_WS, f"s{so or S_SO}", (i & 1) * 1024, ("WT", j, i), "sc1")
    return f

def slow(name):
    SI, SC, SX, SWq, SKV, SD, SK = 56, 57, 58, 59, 88, 89, 90
    VW, VX, VK, VV_, VD = 28, 36, 37, 38, 39
    MX, NM, LA, QF, SS, FB, AC, RAW, FR = 40, 44, 48, 52, 68, 76, 84, 116, 180
    def ld(p, op, n, d, vo, srd, so, off):
        p.add(Ins(f"{op} {vr(d, n)}, v{vo}, s[{srd}:{srd+3}], s{so} offen offset:{off}", "vml", [vo], R(d, n), tag="sl"))
    p0 = Prog()
    p0.label(f"{name}_slow")
    p0.wait_all()
    M, G = MX, MX + 1
    p0.vop("v_bfe_u32", M, V_LIN, "4", "4")
    p0.vop("v_lshrrev_b32", G, "8", V_LIN)
    p0.vop("v_lshlrev_b32", VW, "16", G)
    p0.vop("v_lshl_add_u32", VW, M, "1", VW)
    for i in range(1, 8): p0.vop("v_add_u32", VW + i, f"{8192 * i}", VW)
    p0.s(f"s_movk_i32 s{S_T0}, 1280")
    p0.vop("v_mul_lo_u32", VX, M, f"s{S_T0}")
    p0.vop("v_lshl_add_u32", VX, G, "4", VX)
    p0.vop("v_lshlrev_b32", VK, "8", M)
    p0.vop("v_lshl_add_u32", VK, G, "3", VK)
    p0.vop("v_lshlrev_b32", VV_, "10", G)
    p0.vop("v_lshl_add_u32", VV_, M, "1", VV_)
    p0.s(f"s_mov_b32 s{SI}, 0")
    p1 = Prog()
    p1.label(f"{name}_sl_it")
    p1.s(f"s_cmp_ge_u32 s{SI}, 5")
    p1.s(f"s_cselect_b32 s{S_T0}, 2, 0")
    p1.s(f"s_cselect_b32 s{S_T1}, 5, 0")
    p1.s(f"s_sub_u32 s{S_T1}, s{SI}, s{S_T1}")
    p1.s(f"s_add_u32 s{S_T0}, s{S_T0}, s{S_P}")
    p1.s(f"s_mul_i32 s{SD}, s{S_T0}, 36864")
    p1.s(f"s_lshl_b32 s{S_T2}, s{S_G}, 2")
    p1.s(f"s_add_u32 s{S_T0}, s{S_T0}, s{S_T2}")
    p1.s(f"s_lshl_b32 s{SWq}, s{S_T0}, 8")
    p1.s(f"s_lshl_b32 s{S_T2}, s{S_B}, 5")
    p1.s(f"s_add_u32 s{S_T0}, s{S_T0}, s{S_T2}")
    p1.s(f"s_lshl_b32 s{SKV}, s{S_T0}, 17")
    p1.s(f"s_lshl_b32 s{S_T0}, s{S_U}, 2")
    p1.s(f"s_add_u32 s{S_T0}, s{S_T0}, s{S_T1}")
    p1.s(f"s_sub_u32 s{S_T2}, s{S_T0}, s{S_G}")
    p1.s(f"s_add_u32 s{S_T2}, s{S_T2}, 7")
    p1.s(f"s_and_b32 s{S_T2}, s{S_T2}, 7")
    p1.s(f"s_add_u32 s{S_T2}, s{S_T2}, 1")
    p1.s(f"s_cmp_eq_u32 s{S_T1}, 4")
    p1.s(f"s_cselect_b32 s{S_T0}, 8, s{S_T0}")
    p1.s(f"s_cselect_b32 s{S_T2}, 0, s{S_T2}")
    p1.s(f"s_lshl_b32 s{S_T2}, s{S_T2}, 10")
    p1.s(f"s_add_u32 s{SD}, s{SD}, s{S_T2}")
    p1.vop("v_add_u32", VD, f"s{SD}", V_LIN)
    p1.s(f"s_mul_i32 s{S_T2}, s{S_B}, 9")
    p1.s(f"s_add_u32 s{S_T0}, s{S_T0}, s{S_T2}")
    p1.s(f"s_mul_i32 s{SX}, s{S_T0}, {16 * 1280}")
    for r in range(32): p1.vop("v_mov_b32", AC + r, "0")
    p1.s(f"s_mov_b32 s{SC}, 0")
    def pack(p):
        for r in range(32): p.vop("v_lshl_or_b32", FR + r, RAW + 2 * r + 1, "16", RAW + 2 * r)
    def loop_end(p, lab, n):
        p.s(f"s_add_u32 s{SC}, s{SC}, 1")
        p.s(f"s_cmp_lt_u32 s{SC}, {n}")
        p.s(f"s_cbranch_scc1 {lab}")
    p2 = Prog()
    p2.label(f"{name}_sl_q")
    ld(p2, "buffer_load_dwordx4", 4, FB, VX, SRD_X, SX, 0)
    for m in range(8):
        for i in range(8): ld(p2, "buffer_load_ushort", 1, RAW + 8 * m + i, VW + i, SRD_W, SWq, 32 * m)
        if m == 3: p2.wait_all()
    p2.wait_all()
    pack(p2)
    for m in range(8): p2.mfma(AC + 4 * m, FR + 4 * m, FB, AC + 4 * m)
    p2.s(f"s_add_u32 s{SX}, s{SX}, 64")
    p2.s(f"s_add_u32 s{SWq}, s{SWq}, {32 * 8192}")
    loop_end(p2, f"{name}_sl_q", 20)
    p3 = Prog()
    for r in range(32): p3.vop("v_mul_f32", AC + r, f"s{S_CS}", AC + r)
    for r in range(16): p3.cvtpk(QF + r, AC + 2 * r, AC + 2 * r + 1)
    for r in range(32): p3.vop("v_mov_b32", AC + r, "0")
    for r in range(4): p3.vop("v_mov_b32", LA + r, "0")
    p3.vop("v_mov_b32", MX, "0xff800000")
    p3.s(f"s_mov_b32 s{SK}, s{SKV}")
    p3.s(f"s_mov_b32 s{SC}, 0")
    def kfrags(p, dst, so):
        for ks in range(4):
            ld(p, "buffer_load_dwordx2", 2, dst + 4 * ks, VK, SRD_K, so, 64 * ks)
            ld(p, "buffer_load_dwordx2", 2, dst + 4 * ks + 2, VK, SRD_K, so, 64 * ks + 32)
    p4 = Prog()
    p4.label(f"{name}_sl_m")
    kfrags(p4, FR, SK)
    p4.wait_all()
    for ks in range(4): p4.mfma(SS, FR + 4 * ks, QF + 4 * ks, SS if ks else None)
    p4.vop("v_max3_f32", MX, MX, SS, SS + 1)
    p4.vop("v_max3_f32", MX, MX, SS + 2, SS + 3)
    p4.s(f"s_add_u32 s{SK}, s{SK}, 4096")
    loop_end(p4, f"{name}_sl_m", 32)
    p5 = Prog()
    for sw in (p5.swap32, p5.swap16):
        p5.vop("v_mov_b32", MX + 1, MX)
        sw(MX, MX + 1)
        p5.vop("v_max_f32", MX, MX, MX + 1)
    for r in range(4): p5.vop("v_sub_f32", NM + r, "0", MX)
    p5.s(f"s_mov_b32 s{SC}, 0")
    p6 = Prog()
    p6.label(f"{name}_sl_a")
    p6.s(f"s_add_u32 s{SK}, s{SKV}, 4096")
    kfrags(p6, FR, SKV)
    kfrags(p6, FR + 16, SK)
    p6.wait_all()
    for m in range(8):
        for i in range(8): ld(p6, "buffer_load_ushort", 1, RAW + 8 * m + i, VV_, SRD_V, SK if i >= 4 else SKV, 32 * m + 256 * (i & 3))
        if m == 3: p6.wait_all()
    for kt in range(2):
        for ks in range(4): p6.mfma(SS + 4 * kt, FR + 16 * kt + 4 * ks, QF + 4 * ks, SS + 4 * kt if ks else NM)
    for r in range(8): p6.exp(SS + r, SS + r)
    for r in range(4): p6.cvtpk(FB + r, SS + 2 * r, SS + 2 * r + 1)
    p6.wait_all()
    pack(p6)
    p6.mfma(LA, A_ONE, FB, LA)
    for m in range(8): p6.mfma(AC + 4 * m, FR + 4 * m, FB, AC + 4 * m)
    p6.s(f"s_add_u32 s{SKV}, s{SKV}, 8192")
    loop_end(p6, f"{name}_sl_a", 16)
    p7 = Prog()
    p7.vop("v_rcp_f32", LA, LA, kind="trans")
    for r in range(32): p7.vop("v_mul_f32", AC + r, AC + r, LA)
    for r in range(16): p7.cvtpk(QF + r, AC + 2 * r, AC + 2 * r + 1)
    for hf in range(2):
        p7.s(f"s_cmp_eq_u32 s{S_U}, {hf}")
        p7.s(f"s_cselect_b32 s{S_T0}, 0, s{S_T1}")
        p7.s(f"s_cmp_eq_u32 s{S_T0}, 4")
        p7.s(f"s_cbranch_scc1 {name}_sl_s{hf}")
        for t in (2 * hf, 2 * hf + 1): p7.ds_write(VD, QF + 4 * t, 4, t * 9216)
        p7.label(f"{name}_sl_s{hf}")
    p7.wait_all()
    p7.s(f"s_add_u32 s{SI}, s{SI}, 1")
    p7.s(f"s_cmp_lt_u32 s{SI}, 10")
    p7.s(f"s_cbranch_scc1 {name}_sl_it")
    p7.s(f"s_branch {name}_P2")
    body = [p1, p2, p2, p3, p4, p4, p5, p6, p6, p7]
    return [p0, p1, p2, p3, p4, p5, p6, p7], [p0] + body + body

S_ST = 62
S_J, S_JO, S_J8, S_JO8 = 4, 5, 6, 7
S_PC, S_FO, S_PO, S_JL = 70, 71, 72, 73
def psetup(p):
    p.s(f"s_mul_i32 s{S_RD}, s{S_B}, {PARTB}")
    p.s(f"s_lshl_b32 s{S_T1}, s{S_W}, 11")
    p.s(f"s_add_u32 s{S_RD}, s{S_RD}, s{S_T1}")
    p.s(f"s_add_u32 s{S_RD}, s{S_RD}, {PART}")
    p.s(f"s_lshr_b32 s{S_T0}, s{S_G}, 2")
    p.s(f"s_mul_i32 s{S_T0}, s{S_T0}, {PARTH}")
    p.s(f"s_add_u32 s{S_T0}, s{S_T0}, s{S_RD}")
    p.s(f"s_and_b32 s{S_T1}, s{S_G}, 3")
    p.s(f"s_mul_i32 s{S_ST}, s{S_T1}, 40960")
    p.s(f"s_add_u32 s{S_ST}, s{S_ST}, s{S_T0}")
    p.s(f"s_add_u32 s{S_ST}, s{S_ST}, 32768")
    p.s(f"s_lshl_b32 s{S_J}, s{S_T1}, 13")
    p.s(f"s_add_u32 s{S_J}, s{S_J}, s{S_T0}")
    for i in range(1, 8):
        p.s(f"s_add_u32 s{S_T0}, s{S_G}, {i}")
        p.s(f"s_bfe_u32 s{S_T1}, s{S_T0}, 0x10002")
        p.s(f"s_mul_i32 s{S_T1}, s{S_T1}, {PARTH}")
        p.s(f"s_and_b32 s{S_T0}, s{S_T0}, 3")
        p.s(f"s_lshl_b32 s{S_T0}, s{S_T0}, 13")
        p.s(f"s_add_u32 s{S_T0}, s{S_T0}, s{S_T1}")
        p.s(f"s_add_u32 s{S_T0}, s{S_T0}, s{S_RD}")
        p.s(f"s_add_u32 s{S_ST+i}, s{S_T0}, {((i - 1) >> 1) * 40960 + ((i - 1) & 1) * 1024}")
    p.s(f"s_lshl_b32 s{S_PO}, s{S_B}, 2")
    p.s(f"s_add_u32 s{S_PO}, s{S_PO}, s{S_W}")
    p.s(f"s_lshl_b32 s{S_PO}, s{S_PO}, 9")
    p.s(f"s_add_u32 s{S_PO}, s{S_PO}, {PFLG}")
    p.s(f"s_lshl_b32 s{S_FO}, s{S_G}, 3")
    p.s(f"s_add_u32 s{S_FO}, s{S_FO}, s{S_PO}")
    p.s(f"s_mul_i32 s{S_OUTO}, s{S_B}, {144 * 1280}")
    p.s(f"s_mul_i32 s{S_T1}, s{S_W}, 320")
    p.s(f"s_add_u32 s{S_OUTO}, s{S_OUTO}, s{S_T1}")
    p.s(f"s_mul_i32 s{S_JO}, s{S_G}, {16 * 1280}")
    p.s(f"s_add_u32 s{S_JO}, s{S_JO}, s{S_OUTO}")
    p.s(f"s_sub_u32 s{S_JO}, s{S_JO}, 64")
    p.s(f"s_mul_i32 s{S_T1}, s{S_G}, {4 * 40960}")
    p.s(f"s_add_u32 s{S_J8}, s{S_RD}, s{S_T1}")
    p.s(f"s_add_u32 s{S_J8}, s{S_J8}, 32768")
    p.s(f"s_lshl_b32 s{S_T1}, s{S_G}, 6")
    p.s(f"s_add_u32 s{S_JO8}, s{S_OUTO}, s{S_T1}")
    p.s(f"s_add_u32 s{S_JO8}, s{S_JO8}, {128 * 1280}")
    p.s(f"s_cmp_ge_u32 s{S_G}, 5")
    p.s(f"s_cselect_b32 s{S_J8}, {OOB:#x}, s{S_J8}")
    p.s(f"s_cselect_b32 s{S_JO8}, {OOB:#x}, s{S_JO8}")
    p.s(f"s_mov_b32 s{S_PC}, 0")

def pmod(name):
    p = Prog()
    p.label(f"{name}_P")
    if "F" in ABL: p.s(f"s_mov_b32 s{S_BAD}, 1")
    p.s(f"s_cmp_lg_u64 s[{S_BAD}:{S_BAD+1}], 0")
    p.s(f"s_cbranch_scc1 {name}_slow")
    p.label(f"{name}_P2")
    AO = (V_LIN, 2, 3)
    V_FA, V_OA = 4, 5
    PT, PT2 = 6, 8
    V_SA = 1
    SEL = 18
    POOL = [28 + 4 * k for k in range(16)]
    ACC = 92
    OWN = 124
    A8 = 164
    JB = (172, 204)
    CT = 244
    p.vop("v_add_u32", AO[1], "49152", V_LIN)
    p.vop("v_add_u32", AO[2], "98304", V_LIN)
    p.vop("v_mov_b32", V_SA, V_LIN)
    p.wait_all()
    p.barrier()
    stamp(p, 16)
    NL = int(E("PLEAD", "8"))
    def ooff(i, kq): return IMG(kq) + i * 1024
    for f in range(NL): p.ds_read128(POOL[f], AO[ooff(0, f) // 49152], ooff(0, f) % 49152)
    p.vop("v_lshrrev_b32", V_FA, "1", V_LIN)
    p.vop("v_and_b32", V_FA, "0x38", V_FA)
    p.vop("v_bfe_u32", CT, V_LIN, "4", "4")
    p.s(f"s_movk_i32 s{S_T0}, 1280")
    p.vop("v_mul_lo_u32", V_OA, CT, f"s{S_T0}")
    p.vop("v_lshrrev_b32", CT + 1, "8", V_LIN)
    p.vop("v_lshl_add_u32", V_OA, CT + 1, "4", V_OA)
    p.vop("v_mov_b32", PT2, f"s{S_NON}")
    p.vop("v_mov_b32", PT2 + 1, f"s{S_NON+1}")
    p.vop("v_and_b32", CT + 2, "1", CT)
    p.vop("v_lshlrev_b32", CT + 2, "4", CT + 2)
    p.s(f"s_movk_i32 s{S_T0}, 0x3f80")
    p.vop("v_lshlrev_b32", CT + 2, CT + 2, f"s{S_T0}")
    p.vop("v_lshrrev_b32", CT, "1", CT)
    p.vop("v_lshlrev_b32", CT + 1, "1", CT + 1)
    p.vop("v_sub_u32", CT, CT, CT + 1)
    for r in range(2):
        p.add(Ins(f"v_cmp_eq_u32 vcc, {r}, v{CT}", "valu", [CT], []))
        p.vop("v_mov_b32", SEL + r, "0")
        p.vop("v_mov_b32", SEL + 4 + r, "0")
        p.add(Ins(f"v_cndmask_b32 v{SEL+2+r}, 0, v{CT+2}, vcc", "valu", [CT + 2], [SEL + 2 + r]))
    def job_loads(p, sbase, offs, buf):
        for g, off in enumerate(offs):
            p.s(f"s_add_u32 s{S_T0}, s{sbase}, {off}")
            p.load4(buf + 4 * g, V_LIN, SRD_WS, f"s{S_T0}", 0, "job", "sc1")
    def job_reduce(p, sout, off, bufs, a, init):
        for g, bf in enumerate(bufs):
            for e in range(2): p.mfma(a + 4 * e, SEL + 2 - 2 * e, bf, None if (init and g == 0) else a + 4 * e)
        return lambda: ([p.cvtpk(a + r, a + 2 * r, a + 2 * r + 1) for r in range(4)],
                        p.store(a, 4, V_OA, SRD_OUT, f"s{sout}", off, tag="out", flags=E("OFL", "")))
    def flag(p, off, tag):
        p.wait_vm(tag)
        p.s("s_mov_b64 exec, 1")
        p.store(PT2, 2, V_LIN, SRD_WS, f"s{S_FO}", off, tag="flag", flags="sc1")
        p.s("s_mov_b64 exec, -1")
    FPOS = int(E("FPOS", "180")); WSP = float(E("WSP", "6")); PLAT = int(E("PLAT", "70")); CPOS = int(E("CPOS", "206")); WST = int(E("WST", "4"))
    jo = lambda mp: [(4 * mp + (g >> 1)) * 40960 + (g & 1) * 1024 for g in range(7)]
    def one_pass(par):
        q = Prog()
        q.label(f"{name}_pass{par}")
        if PROF == 4: stamp(q, 32, S_PC)
        q.wait_vm(("WT", par, 15))
        sc = Sched(q, budget=int(E("PBUD", "8")), late_extra=8)
        for qn in ("wl", "st", "jl"): sc.group[qn] = "vm"
        sc.pace["vm"] = int(E("PPACE", "4"))
        pool = Pool(sc, POOL, 16)
        acc = lambda i: OWN if i == 8 else ACC + 8 * (i % 4)
        for i in range(9):
            a = acc(i)
            for kq in range(16):
                cons = [(a + 4 * e, P_R[par][2 * kq + e], a + 4 * e if kq else None, ("P", i, kq, e)) for e in range(2)]
                pool.frag(0, lambda r: [R128(r, AO[ooff(i, kq) // 49152], ooff(i, kq) % 49152)], cons, as_b=True)
        mt = lambda i: sc.m[max(0, min(i, len(sc.m) - 1))][4]
        for f in range(NL, 144 + NL):
            (_, reads, cons, war) = pool.frags[f % 144]
            if f >= 144: war = pool.last[f % 16]
            if "R" not in ABL: sc.fill("rd", reads[0], 4, ds=True, after=war, before=mt(2 * (f - NL) + 1), early=2)
        for i in (16, 22, 28): sc.fill("ww", lambda p, i=i: p.wait_vm(("WT", par, min(31, i + 5))), 4, before=mt(i), early=0)
        def su(p):
            p.s(f"s_add_u32 s{S_WT}, s{S_WT}, 2048")
            p.s(f"s_cmp_eq_u32 s{S_PC}, 4")
            p.s(f"s_cselect_b32 s{S_WT}, {OOB:#x}, s{S_WT}")
        fill_dma(sc, [(su, 0)], None, mt(WST + 2), queue="wl", lead=6)
        for i in range(32):
            fill_dma(sc, [(wload(1 - par, i), 0)], mt(WST + int(WSP * i)), mt(WST + 12 + int(WSP * i)), queue="wl", lead=10)
        sc.fill("jl", lambda p: poll_issue(p, V_FA, f"s{S_PO}", 0, PT), 8, before=mt(CPOS - PLAT), early=4, solo=SOLO)
        for r in range(23, -1, -1): sc.fill("jr", lambda p, r=r: p.vop("v_mov_b32", OWN + 8 + r, OWN + r), 4, after=mt(40), before=mt(CPOS - 4), lead=4 * r)
        def cut(p):
            p.wait_vm("poll")
            p.s(f"s_cmp_lt_u32 s{S_PC}, 2")
            p.s(f"s_cbranch_scc1 {name}_nojob{par}")
            p.label("@CUT")
        sc.fill("jr", cut, 8, before=mt(CPOS), early=0)
        sc.fill("jr", lambda p: p.s(f"s_add_u32 s{S_PO}, s{S_PO}, 64"), 4)
        for i in range(8):
            a = acc(i)
            dl = mt(32 * i + 32 + 24)
            sc.fill("va", lambda p, a=a: p.cvtpk(a, a, a + 1), 4, after=dict(tag=("P", i, 15, 1), delay=4), before=dl, lead=10)
            sc.fill("va", lambda p, a=a: p.cvtpk(a + 1, a + 2, a + 3), 4)
            sc.fill("va", lambda p, a=a: p.cvtpk(a + 2, a + 4, a + 5), 4)
            sc.fill("va", lambda p, a=a: p.cvtpk(a + 3, a + 6, a + 7), 4, tag=("CV", i), before=dl, lead=10)
            def st(p, a=a, i=i):
                if "O" not in ABL: p.store(a, 4, V_SA, SRD_WS, f"s{S_ST+i}", 0, tag=("ps", i), flags=E("SFL", "sc1"))
            sc.fill("st", st, 8, after=("CV", i), before=dl, lead=20, tag=("ST", i), solo=SOLO)
        sc.fill("va", lambda p: p.vop("v_add_u32", V_SA, f"{4 * 40960}", V_SA), 4, after=("ST", 7))
        sc.fill("fl", lambda p: flag(p, 64, ("ps", 0)), 16, before=mt(FPOS), early=0)
        sc.fill("fl", lambda p: p.s(f"s_add_u32 s{S_FO}, s{S_FO}, 64"), 4)
        sc.fill("fl", lambda p: p.s(f"s_add_u32 s{S_PC}, s{S_PC}, 1"), 4, after=mt(270))
        sc.run()
        if par == 0:
            q.s(f"s_cmp_eq_u32 s{S_PC}, 5")
            q.s(f"s_cbranch_scc1 {name}_ptail")
        else: q.s(f"s_branch {name}_pass0")
        k = next(i for i, x in enumerate(q.ins) if x.text.startswith("@CUT"))
        q2 = Prog(); q2.label(f"{name}_nojob{par}"); q2.ins += q.ins[k + 1:]; q.ins = q.ins[:k]
        blk = Prog()
        poll_check(blk, f"{name}_pp{par}", V_FA, f"s{S_PO}", 0, PT)
        a = OWN + 24
        for g in range(7):
            for e in range(2): blk.mfma(a + 4 * e, SEL + 2 - 2 * e, JB[0] + 4 * g, a + 4 * e)
            job_loads(blk, S_J, [jo(0)[g]], JB[0] + 4 * g)
        blk.s(f"s_add_u32 s{S_J}, s{S_J}, {4 * 40960}")
        blk.s(f"s_cmp_eq_u32 s{S_PC}, 2")
        blk.s(f"s_cselect_b32 s{S_T0}, {OOB:#x}, s{S_JO}")
        blk.s(f"s_add_u32 s{S_JO}, s{S_JO}, 64")
        blk.wait_lgkm0()
        for r in range(4): blk.cvtpk(a + r, a + 2 * r, a + 2 * r + 1)
        blk.store(a, 4, V_OA, SRD_OUT, f"s{S_T0}", 0, tag="out", flags=E("OFL", ""))
        return q, blk, q2
    p.wait_lgkm0()
    pre = p
    pe, po = one_pass(0), one_pass(1)
    p = Prog()
    p.label(f"{name}_ptail")
    stamp(p, 17)
    poll_issue(p, V_FA, f"s{S_PO}", 0, PT)
    f2 = job_reduce(p, S_JO, 0, [JB[0] + 4 * g for g in range(7)], OWN + 16, False)
    flag(p, 64, ("ps", 7))
    poll_check(p, f"{name}_pp3", V_FA, f"s{S_PO}", 0, PT, 0)
    job_loads(p, S_J, jo(0), JB[0])
    job_loads(p, S_J8, [(g >> 2) * PARTH + (g & 3) * 40960 for g in range(8)], JB[1])
    poll_issue(p, V_FA, f"s{S_PO}", 64, PT)
    f2()
    stamp(p, 18)
    stamp(p, 19)
    poll_check(p, f"{name}_pp4", V_FA, f"s{S_PO}", 64, PT, 0)
    stamp(p, 20)
    job_loads(p, S_J, jo(1), POOL[8])
    f3 = job_reduce(p, S_JO, 64, [JB[0] + 4 * g for g in range(7)], OWN + 8, False)
    f8 = job_reduce(p, S_JO8, 0, [JB[1] + 4 * g for g in range(8)], A8, True)
    f3(); f8()
    job_reduce(p, S_JO, 128, POOL[8:15], OWN, False)()
    if PROF:
        p.wait_all()
        stamp(p, 21)
        p.s(f"s_lshl_b32 s{S_T0}, s2, 2")
        p.s(f"s_add_u32 s{S_T0}, s{S_T0}, s{S_W}")
        p.s(f"s_lshl_b32 s{S_T0}, s{S_T0}, 8")
        p.s(f"s_add_u32 s{S_T0}, s{S_T0}, {PROFOFF}")
        p.vop("v_lshrrev_b32", PT, "2", V_LIN)
        p.store(0, 1, PT, SRD_WS, f"s{S_T0}", 0)
        p.s(f"s_add_u32 s{S_T0}, s{S_T0}, 0x40000")
        p.store(255, 1, PT, SRD_WS, f"s{S_T0}", 0)
        if PROF == 5:
            p.s(f"s_cmp_lg_u32 s2, 77")
            p.s(f"s_cbranch_scc1 {name}_end")
            p.s(f"s_cmp_lg_u32 s{S_W}, 0")
            p.s(f"s_cbranch_scc1 {name}_end")
            p.raw("v_readlane_b32 s56, v0, 0")
            for k, ix in enumerate([23, 1, 2, 5, 6, 9, 10, 16, 17, 18, 20, 21]):
                p.raw(f"v_readlane_b32 s57, v0, {ix}")
                p.raw("s_nop 3")
                p.s("s_sub_u32 s57, s57, s56")
                p.raw(f"v_mov_b32 v30, s57")
                p.raw(f"buffer_store_dword v30, off, s[{SRD_DBG}:{SRD_DBG+3}], 0 offset:{8 + 4 * k}")
                p.raw("s_nop 1")
    p.label(f"{name}_end")
    p.raw("s_endpgm")
    return [pre, *pe, *po, p], [pre, pe[0], pe[2], po[0], po[2], *pe, *po, *pe, p]

def gen(name):
    pro = prologue(name)
    Q = qmod(name)
    AE = aentry(name)
    A = [amod(name, qh) for qh in range(2)]
    F, FB = afin(name)
    P, PS = pmod(name)
    SL, SLS = slow(name)
    segs = [pro, Q, AE, A[0], A[1], F, FB] + P + SL
    sims = [[(x, 1) for x in [pro, Q, AE, A[qh], F, FB, AE, A[qh], F] + PS] for qh in range(2)]
    sims.append([(x, 1) for x in [F] + SLS + PS])
    lines, stats = finalize([(x, 1) for x in segs], sims=sims)
    if int(E("ROLL", "1")):
        lines = roll(lines, "; ---- a step", 8, S_LOOP, f"{name}_aloop")
        lines = roll(lines, "; ---- q step", 4, S_LOOP, f"{name}_qloop")
    lines += [f".if {name}_end-{name}_nononce < {int(E('CPN0', '7')) * 8192}", '.error "code prefetch range"', ".endif"]
    return [f".globl {name}", ".p2align 8", f".type {name},@function", f"{name}:"] + lines, stats
```

```python
from asmlib import *
import math, struct, os
E = os.environ.get
PROF = int(E("PROF", "0"))
ABL = E("ABL", "")
def f2u(f): return struct.unpack("<I", struct.pack("<f", f))[0]
CSCALE = math.log2(math.e) / math.sqrt(128.0)
NWG = 256
LDS_BYTES = 163840
XSL = 18432
XRING = 131072
XALT = 65536 - XSL
WRING = 65536
MISC = 147456
def IMG(kq): return kq * 9216
DROP = 0x30000
OOB = 0x40000000
WOT = 0
PART = 128 * 40960
PARTH = 20 * 40960
PARTB = 2 * PARTH
WFLG = PART + 32 * PARTB
PFLG = WFLG + 8192
WSBYTES = PFLG + 65536
PROFOFF = 0x4000000

SRD_X, SRD_K, SRD_V, SRD_W, SRD_WS, SRD_WO, SRD_OUT, SRD_DBG = 8, 12, 16, 20, 24, 28, 32, 36
S_W = 3
S_T0, S_T1, S_B, S_G, S_P, S_T2 = 40, 41, 42, 43, 44, 45
S_CS, S_NON, S_SPIN, S_PH, S_GRP, S_SO = 46, 48, 50, 51, 52, 53
S_BAD = 54
S_KOFF, S_VOFF, S_KB, S_KVN, S_M0KV, S_WFP = 56, 57, 58, 59, 60, 61
S_WOFF, S_WB, S_XOFF, S_XB = 62, 63, 65, 66
S_M0W, S_M0X8 = 75, 72
S_WT, S_PT, S_PF, S_RD, S_OUTO = 76, 77, 78, 79, 80
S_LO, S_HI = 81, 82
S_TM = 84
S_VB = 88
S_M0KVP, S_KVP, S_M0D, S_U = 89, 91, 94, 95
S_LOOP = 92
S_WT2 = 98
S_XM = 96

V_DK, V_DV, V_DW, V_DX = 1, 5, 9, 13
V_AK, V_AV0, V_AV1, V_AX, V_AX8, V_LIN = 18, 19, 20, 21, 22, 24
V_E0, V_E1, V_E2 = 25, 26, 27
V_S = 28
V_AW = V_S + 40
V_O = 84
V_T = 244
V_NV = 252
V_JUNK = 254
A_Q, A_QN, A_L, A_ONE, A_POOL, A_X = 256, 336, 416, 436, 440, 472
A_QP = 480
NPOOL = 8
def Qf(n, ks, base=A_Q): return base + (n * 4 + ks) * 4
def Oa(n, m): return V_O + (n * 8 + m) * 4
def XS(par, n): return V_S + (par * 4 + n) * 4 if n < 4 else V_S + 48
def YS(n): return V_S + 32 + n * 4 if n < 4 else V_S + 52
def La(n): return A_L + 4 * n
def Xf(st, t): return V_S + (st * 5 + t) * 4
def QA(r, n, m): return (A_QN if r else V_O) + (n * 8 + m) * 4

def stamp(p, idx, dyn=None):
    if not PROF: return
    p.s(f"s_memrealtime s[{S_TM}:{S_TM+1}]")
    p.s(f"s_memtime s[{S_TM+2}:{S_TM+3}]")
    p.wait_lgkm0()
    if dyn is None:
        p.raw(f"v_writelane_b32 v0, s{S_TM}, {idx}")
        p.raw(f"v_writelane_b32 v255, s{S_TM+2}, {idx}")
    else:
        p.s("s_mov_b32 s99, m0")
        p.s(f"s_lshl_b32 m0, s{dyn}, 2")
        p.s(f"s_add_u32 m0, m0, {idx}")
        p.raw(f"v_writelane_b32 v0, s{S_TM}, m0")
        p.raw(f"v_writelane_b32 v255, s{S_TM+2}, m0")
        p.s("s_mov_b32 m0, s99")

KVSEQ = [("K", 0)]
for u in range(15): KVSEQ += [("K", u + 1), ("V", u)]
KVSEQ += [("V", 15)]
KVPOS = {t: i for i, t in enumerate(KVSEQ)}
DYN = (10, 30)
SRD_C = SRD_WO
S_ROT, S_C, S_D = S_KOFF, S_VOFF, S_VB
def kv_ops(pos):
    pre = pos >= 32; pos %= 32
    kind, u = KVSEQ[pos]
    dyn = DYN[0] <= pos <= DYN[1] and not pre
    ops = []
    for j in range(4):
        def f(p, j=j):
            if dyn:
                if j == 0:
                    if pos == DYN[0]:
                        p.s(f"s_add_u32 s{S_C}, s{S_ROT}, {u * 8192}")
                        p.s(f"s_and_b32 s{S_C}, s{S_C}, 0x1ffff")
                        p.s(f"s_mov_b32 s{S_D}, {16384 if kind == 'V' else -8192}")
                        p.s(f"s_mov_b32 s{S_M0D}, {(pos % 8) * 16384}")
                    p.s(f"s_cmp_gt_i32 s{S_D}, 0")
                    p.s(f"s_cselect_b64 s[{SRD_C}:{SRD_C+1}], s[{SRD_V}:{SRD_V+1}], s[{SRD_K}:{SRD_K+1}]")
                    p.s(f"s_add_u32 m0, s{S_M0KV}, s{S_M0D}")
                    p.s(f"s_add_u32 s{S_SO}, s{S_KB}, s{S_C}")
                if "D" not in ABL: p.dmao(V_DV + j, SRD_C, f"s{S_SO}", j * 1024, (kind, u), "nt")
                if j == 0: p.s(f"s_add_u32 s{S_C}, s{S_C}, s{S_D}")
                if j == 1:
                    p.s(f"s_and_b32 s{S_C}, s{S_C}, 0x1ffff")
                    p.s(f"s_sub_u32 s{S_D}, 8192, s{S_D}")
                if j == 2:
                    p.s(f"s_add_u32 s{S_M0D}, s{S_M0D}, 16384")
                    p.s(f"s_and_b32 s{S_M0D}, s{S_M0D}, 0x1ffff")
                return
            if j == 0:
                if pre: p.s(f"s_add_u32 m0, s{S_M0KVP + (pos >> 2)}, {(pos % 4) * 16384}")
                else: p.s(f"s_add_u32 m0, s{S_M0KV}, {(pos % 8) * 16384}")
                p.s(f"s_add_u32 s{S_SO}, s{S_ROT}, {u * 8192}")
                p.s(f"s_and_b32 s{S_SO}, s{S_SO}, 0x1ffff")
                p.s(f"s_add_u32 s{S_SO}, s{S_SO}, s{S_KVP if pre else S_KB}")
            if "D" not in ABL: p.dmao(V_DV + j, SRD_K if kind == "K" else SRD_V, f"s{S_SO}", j * 1024, (kind, u), "nt")
        ops.append((f, 8))
    return ops
def w_ops(h):
    ops = []
    for j in range(4):
        def f(p, j=j):
            if j == 0:
                p.s(f"s_add_u32 m0, s{S_M0W}, {(h % 4) * 16384}")
                p.s(f"s_add_u32 s{S_SO}, s{S_WB + (h & 1)}, s{S_WOFF}")
            if "W" not in ABL: p.dmao(V_DW + j, SRD_W, f"s{S_SO}", j * 1024, ("W", h))
            if j == 1 and h % 2 == 1: p.s(f"s_add_u32 s{S_WOFF}, s{S_WOFF}, {32 * 8192}")
            if j == 2 and h % 4 == 3:
                p.s(f"s_cmp_ge_u32 s{S_WOFF}, {640 * 8192}")
                p.s(f"s_cselect_b32 s{S_WOFF}, 0, s{S_WOFF}")
        ops.append((f, 12 if j == 0 or (j == 2 and h % 4 == 3) else 8 if j == 1 and h % 2 else 4))
    return ops
def x_ops(i):
    ops = []
    sb = XRING if i else XALT
    for j in range(5):
        def f(p, j=j):
            if j == 0:
                p.s(f"s_add_u32 m0, s{S_M0KV}, {sb}")
                p.s(f"s_add_u32 s{S_SO}, s{S_XB}, s{S_XOFF}")
            if "X" not in ABL: p.dmao(V_DX + j, SRD_X, f"s{S_SO}", (j & 3) * 1024, ("X", i))
            if j == 1: p.s(f"s_add_u32 s{S_XOFF}, s{S_XOFF}, 128")
            if j == 2:
                p.s(f"s_cmp_ge_u32 s{S_XOFF}, 1280")
                p.s(f"s_cselect_b32 s{S_XOFF}, 0, s{S_XOFF}")
            if j == 3:
                p.s(f"s_add_u32 m0, s{S_M0X8}, {sb}")
                p.nop(0)
        ops.append((f, 12 if j in (0, 2, 3) else 8 if j == 1 else 4))
    return ops

EK = int(E("EK", "1"))
S_EM, S_EC, S_EW, S_ES = 4, 5, 6, 7
STG, STG4 = (32768, XRING + XSL) if EK else (0, 16384)
def ek_ops(h):
    it = h // 4 - 1
    def k0(p):
        p.s(f"s_add_u32 m0, s{S_M0KV}, s{S_EM}")
        p.s(f"s_add_u32 s{S_ES}, s{S_KVP}, s{S_EC}")
        if "D" not in ABL: p.dmao(V_DV, SRD_K, f"s{S_ES}", 0, ("K", it // 2), "nt")
        p.s(f"s_add_u32 s{S_EC}, s{S_EC}, 4096")
        p.s(f"s_and_b32 s{S_EC}, s{S_EC}, 0x1ffff")
    def k1(p):
        p.s(f"s_add_u32 m0, s{S_M0KV}, s{S_EM}")
        p.s(f"s_lshl1_add_u32 s{S_T0}, s{S_EM}, 12288")
        if "D" not in ABL: p.dmao(V_DV + 1, SRD_K, f"s{S_ES}", 1024, ("K", it // 2), "nt")
        p.s(f"s_add_u32 s{S_EM}, s{S_EM}, 2048")
        p.s(f"s_bitcmp1_b32 s{S_EM}, 11")
        p.s(f"s_cselect_b32 s{S_EM}, s{S_EM}, s{S_T0}")
    def wo(p):
        p.s(f"s_add_u32 m0, s{S_RD}, s{S_EW}")
        p.s(f"s_add_u32 s{S_EW}, s{S_EW}, 4096")
        p.dmao(V_DX, SRD_WO, f"s{S_WT}", 0, "WOP" if it < 5 else "junk", E("WOFL", ""))
        p.s(f"s_add_u32 s{S_WT}, s{S_WT}, 128")
        p.s(f"s_cmp_eq_u32 s{S_EW}, {STG + 16384}")
        p.s(f"s_cselect_b32 s{S_EW}, {STG4}, s{S_EW}")
    return [(f, 8) for f in {0: [], 1: [k0], 2: [wo], 3: [k1]}[h % 4]]
def kv1(pos, j):
    kind, u = KVSEQ[pos]
    def f(p):
        p.s(f"s_add_u32 m0, s{S_M0KV}, {pos * 16384}")
        if j == 0:
            p.s(f"s_add_u32 s{S_ES}, s{S_ROT}, {u * 8192}")
            p.s(f"s_and_b32 s{S_ES}, s{S_ES}, 0x1ffff")
            p.s(f"s_add_u32 s{S_ES}, s{S_ES}, s{S_KVP}")
        if "D" not in ABL: p.dmao(V_DV + j, SRD_K if kind == "K" else SRD_V, f"s{S_ES}", j * 1024, (kind, u), "nt")
    return [(f, 8)]

def split_ops(ops):
    q = Prog()
    for f, _ in ops: f(q)
    out = []; i = 0; L = [x for x in q.ins if x.kind != "nop"]
    while i < len(L):
        grp = [L[i]]
        if L[i].text.startswith(("s_cmp", "s_bitcmp")): grp.append(L[i + 1])
        i += len(grp)
        out.append((lambda p, grp=grp: [p.add(x) for x in grp], "vm" if grp[0].kind in ("vm", "vml", "vms") else "s", 4 * len(grp)))
    return out
def fill_dma(sc, ops, after, before, tag=None, queue="dma", lead=80):
    so = split_ops(ops)
    for k, (fn, kind, cost) in enumerate(so):
        sc.fill(queue, fn, 8 if kind == "vm" else cost, after=after, before=before, lead=lead, solo=(kind == "vm" and SOLO), paced=(kind == "vm"),
                tag=tag if k == len(so) - 1 else None)
SOLO = int(E("SOLO", "1"))
T7 = int(E("T7", "0"))
def sprinkle(progs, ops, lo=0.0, hi=1.0):
    pts = []
    for p, st in progs:
        masked = False
        for i in range(st, len(p.ins)):
            x = p.ins[i]
            if x.text.startswith("s_mov_b64 exec"): masked = not x.text.endswith("-1")
            if x.kind == "label" and not x.text.startswith(";"): break
            if x.kind in ("valu", "perm") and not masked and p.ins[i - 1].kind in ("valu", "perm") and "v_cmp" not in x.text and "v_cmp" not in p.ins[i - 1].text: pts.append((p, i))
    a, b = int(lo * len(pts)), int(hi * len(pts))
    sel = [pts[a + (k * (b - a)) // len(ops)] for k in range(len(ops))]
    for (p, i), (fn, _) in reversed(list(zip(sel, ops))):
        q = Prog(); fn(q)
        p.ins[i:i] = q.ins

CPF = int(E("CPF", "1"))
def code_prefetch(p, name, k, target, nchunk, t):
    if not CPF: return
    p.s(f"s_getpc_b64 s[{S_TM}:{S_TM+1}]")
    p.label(f"{name}_pc{k}")
    p.s(f"s_sub_u32 s{S_TM}, s{S_TM}, {name}_pc{k}-{name}")
    p.s(f"s_subb_u32 s{S_TM+1}, s{S_TM+1}, 0")
    p.s(f"s_add_u32 s{S_TM}, s{S_TM}, {target}-{name}")
    p.s(f"s_addc_u32 s{S_TM+1}, s{S_TM+1}, 0")
    p.s(f"s_lshr_b32 s{S_T0}, s2, 1")
    p.s(f"s_and_b32 s{S_T0}, s{S_T0}, 0x7c")
    p.s(f"s_add_u32 s{S_T0}, s{S_T0}, s{S_W}")
    p.s(f"s_cmp_ge_u32 s{S_T0}, {nchunk}")
    p.s(f"s_cbranch_scc1 {name}_pf{k}")
    p.s(f"s_lshl_b32 s{S_T0}, s{S_T0}, 13")
    p.s(f"s_add_u32 s{S_TM}, s{S_TM}, s{S_T0}")
    p.s(f"s_addc_u32 s{S_TM+1}, s{S_TM+1}, 0")
    p.raw(f"v_lshlrev_b32 v{t}, 3, v{V_LIN}")
    p.raw(f"v_mov_b32 v{t+1}, s{S_TM+1}")
    p.raw(f"v_add_co_u32 v{t}, vcc, s{S_TM}, v{t}")
    p.raw("s_nop 1")
    p.raw(f"v_addc_co_u32 v{t+1}, vcc, 0, v{t+1}, vcc")
    p.raw(f"global_load_dword v{V_JUNK}, v[{t}:{t+1}], off")
    p.label(f"{name}_pf{k}")

def get_nonce(p, name, t):
    p.add(Ins(f"v_readfirstlane_b32 s{S_NON}, v{V_NV}", "rfl", [V_NV], []))
    p.add(Ins(f"v_readfirstlane_b32 s{S_NON+1}, v{V_NV+1}", "rfl", [V_NV + 1], []))
    p.s(f"s_cmp_lt_i32 s{S_NON+1}, 0")
    p.s(f"s_cbranch_scc1 {name}_x")
    p.vop("v_mov_b32", t + 2, "0")
    p.label(f"{name}")
    p.raw(f"buffer_load_dwordx2 v[{t}:{t+1}], v{t+2}, s[{SRD_DBG}:{SRD_DBG+3}], 0 offen sc1")
    p.raw("s_waitcnt vmcnt(0)")
    p.raw(f"v_readfirstlane_b32 s{S_NON}, v{t}")
    p.raw(f"v_readfirstlane_b32 s{S_NON+1}, v{t+1}")
    p.s(f"s_sub_u32 s{S_SPIN}, s{S_SPIN}, 1")
    p.s(f"s_cbranch_scc1 {name}_x")
    p.s(f"s_cmp_lt_i32 s{S_NON+1}, 0")
    p.s(f"s_cbranch_scc0 {name}")
    p.label(f"{name}_x")
    p.nop(1)

def publish(p, soff, off, t):
    p.vop("v_mov_b32", t, f"s{S_NON}")
    p.vop("v_mov_b32", t + 1, f"s{S_NON+1}")
    p.s("s_mov_b64 exec, 1")
    p.store(t, 2, V_LIN, SRD_WS, soff, off, tag="flag", flags="sc1")
    p.s("s_mov_b64 exec, -1")

def poll_issue(p, vaddr, soff, off, t):
    p.add(Ins(f"buffer_load_dwordx2 v[{t}:{t+1}], v{vaddr}, s[{SRD_WS}:{SRD_WS+3}], {soff} offen offset:{off} sc1", "vml", [vaddr], [t, t + 1], tag="poll"))
def poll_check(p, name, vaddr, soff, off, t, slp=2):
    p.label(f"{name}")
    p.add(Ins(f"v_cmp_ne_u32 vcc, s{S_NON}, v{t}", "valu", [t], []))
    p.add(Ins(f"v_cmp_ne_u32 s[{S_TM+2}:{S_TM+3}], s{S_NON+1}, v{t+1}", "valu", [t + 1], []))
    p.s(f"s_or_b64 vcc, vcc, s[{S_TM+2}:{S_TM+3}]")
    p.s(f"s_cbranch_scc0 {name}_ok")
    p.s(f"s_sub_u32 s{S_SPIN}, s{S_SPIN}, 1")
    p.s(f"s_cbranch_scc1 {name}_ok")
    if slp: p.s(f"s_sleep {slp}")
    p.raw(f"buffer_load_dwordx2 v[{t}:{t+1}], v{vaddr}, s[{SRD_WS}:{SRD_WS+3}], {soff} offen offset:{off} sc1")
    p.raw("s_waitcnt vmcnt(0)")
    p.s(f"s_branch {name}")
    p.label(f"{name}_ok")

def prologue(name):
    p = Prog()
    p.s(f"s_cmp_ge_u32 s2, {NWG}")
    p.s(f"s_cbranch_scc1 {name}_end")
    p.s("s_load_dwordx8 s[84:91], s[0:1], 0")
    p.s("s_load_dwordx8 s[92:99], s[0:1], 32")
    T = V_O
    W, L, a, b, c, d, U, P, VV, R8, PI, M, G, cv = range(T, T + 14)
    p.vop("v_lshrrev_b32", W, "6", 0)
    p.vop("v_and_b32", L, "63", 0)
    p.add(Ins(f"v_readfirstlane_b32 s{S_W}, v{W}", "rfl", [W], []))
    p.vop("v_and_b32", U, "1", W)
    p.vop("v_lshrrev_b32", P, "1", W)
    p.vop("v_lshrrev_b32", VV, "5", L)
    p.vop("v_bfe_u32", R8, L, "2", "3")
    p.vop("v_and_b32", PI, "3", L)
    p.s(f"s_movk_i32 s{S_T0}, 1280")
    p.vop("v_mul_lo_u32", a, R8, f"s{S_T0}")
    p.vop("v_lshl_add_u32", a, VV, "6", a)
    p.vop("v_xor_b32", c, "3", PI)
    p.vop("v_lshl_add_u32", V_DX, PI, "4", a)
    p.vop("v_lshl_add_u32", b, c, "4", a)
    p.vop("v_add_u32", V_DX + 1, f"{9216}", b)
    p.vop("v_add_u32", V_DX + 2, f"{2 * 9216}", V_DX)
    p.vop("v_add_u32", V_DX + 3, f"{3 * 9216}", b)
    p.vop("v_lshrrev_b32", d, "2", R8)
    p.vop("v_lshlrev_b32", cv, "1", d)
    p.vop("v_xor_b32", cv, cv, PI)
    p.vop("v_and_b32", b, "3", R8)
    p.vop("v_lshl_add_u32", b, d, "3", b)
    p.vop("v_lshlrev_b32", d, "7", U)
    p.vop("v_lshl_add_u32", d, VV, "6", d)
    p.vop("v_lshl_add_u32", b, b, "13", d)
    p.vop("v_lshl_add_u32", V_DW, cv, "4", b)
    for j in range(1, 4): p.vop("v_add_u32", V_DW + j, f"{(16 * (j & 1) + 4 * (j >> 1)) * 8192 - 1024 * j}", V_DW)
    p.vop("v_mul_u32_u24", b, "3", P)
    p.vop("v_xor_b32", b, b, PI)
    p.vop("v_lshl_add_u32", b, b, "4", a)
    p.vop("v_lshlrev_b32", a, "2", W)
    p.vop("v_sub_u32", a, P, a)
    p.vop("v_add_u32", a, "16", a)
    p.s(f"s_movk_i32 s{S_T1}, {8 * 1280}")
    p.vop("v_mul_lo_u32", a, a, f"s{S_T1}")
    p.vop("v_add_u32", a, a, b)
    p.vop("v_lshl_add_u32", V_DX + 4, U, "30", a)
    MAP = int(E("MAP", "0"))
    p.s(f"s_bfe_u32 s{S_T0}, s2, {(MAP << 16) | 3:#x}")
    p.s(f"s_lshr_b32 s{S_T2}, s2, {3 + MAP}")
    p.s(f"s_and_b32 s{S_G}, s2, {(1 << (3 - MAP)) - 1}")
    p.s(f"s_lshl_b32 s{S_G}, s{S_G}, {MAP}")
    p.s(f"s_or_b32 s{S_G}, s{S_G}, s{S_T0}")
    p.s(f"s_bfe_u32 s{S_B}, s2, {(MAP << 16) | (3 - MAP):#x}")
    p.s(f"s_lshl_b32 s{S_B}, s{S_B}, {5 - MAP}")
    p.s(f"s_or_b32 s{S_B}, s{S_B}, s{S_T2}")
    p.s(f"s_lshl_b32 s{S_T0}, s{S_T0}, {5 - MAP}")
    p.s(f"s_lshl_b32 s{S_T2}, s{S_T2}, {MAP}")
    p.s(f"s_add_u32 s{S_T2}, s{S_T2}, s{S_T0}")
    p.s(f"s_and_b32 s{S_T2}, s{S_T2}, 31")
    p.s(f"s_lshr_b32 s{S_P}, s{S_W}, 1")
    p.s(f"s_lshl_b32 s{S_M0KV}, s{S_W}, 12")
    p.s(f"s_add_u32 s{S_M0W}, s{S_M0KV}, {WRING}")
    p.s(f"s_lshl_b32 s{S_M0X8}, s{S_P}, 10")
    p.s(f"s_add_u32 s{S_M0X8}, s{S_M0X8}, 16384")
    p.s(f"s_bitcmp1_b32 s{S_W}, 0")
    p.s(f"s_cselect_b32 s{S_M0X8}, 0x1d000, s{S_M0X8}")
    p.s(f"s_lshl_b32 s{S_T0}, s{S_G}, 2")
    p.s(f"s_add_u32 s{S_T0}, s{S_T0}, s{S_P}")
    p.s(f"s_lshl_b32 s{S_WB}, s{S_T0}, 8")
    p.s(f"s_add_u32 s{S_WB+1}, s{S_WB}, 512")
    p.s(f"s_lshl_b32 s{S_T1}, s{S_B}, 5")
    p.s(f"s_add_u32 s{S_T0}, s{S_T0}, s{S_T1}")
    p.s(f"s_lshl_b32 s{S_KVN}, s{S_T0}, 17")
    p.s(f"s_mul_i32 s{S_T0}, s{S_T2}, 5")
    p.s(f"s_lshr_b32 s{S_T0}, s{S_T0}, 4")
    if not int(E("ROT", "1")): p.s(f"s_mov_b32 s{S_T0}, 0")
    p.s(f"s_lshl_b32 s{S_XOFF}, s{S_T0}, 7")
    p.s(f"s_lshl_b32 s{S_WOFF}, s{S_T0}, 19")
    p.s(f"s_mul_i32 s{S_XB}, s{S_B}, {144 * 1280}")
    p.s(f"s_mul_i32 s{S_T0}, s{S_W}, {32 * 1280}")
    p.s(f"s_add_u32 s{S_XB}, s{S_XB}, s{S_T0}")
    def srd(r, src, size):
        p.s(f"s_mov_b32 s{r+2}, {size:#x}")
        p.s(f"s_mov_b32 s{r+3}, 0x20000")
    def srd2(r, src):
        p.s(f"s_mov_b32 s{r}, s{src}")
        p.s(f"s_and_b32 s{r+1}, s{src+1}, 0xffff")
    SR = ((SRD_X, 84, 32 * 144 * 640 * 2), (SRD_W, 90, 640 * 4096 * 2), (SRD_K, 86, 1 << 27), (SRD_V, 88, 1 << 27),
          (SRD_WO, 92, 4096 * 640 * 2), (SRD_OUT, 94, 32 * 144 * 640 * 2), (SRD_DBG, 96, 256), (SRD_WS, 98, (1 << 28) if PROF else WSBYTES))
    for x in SR: srd(*x)
    p.s("s_waitcnt lgkmcnt(0)")
    for x in SR[:2]: srd2(*x[:2])
    for ops in (x_ops(0), w_ops(0), w_ops(1)):
        for f, _ in ops: f(p)
    for x in SR[2:]: srd2(*x[:2])
    stamp(p, 0)
    p.vop("v_lshlrev_b32", V_LIN, "4", L)
    code_prefetch(p, name, 0, f"{name}_nononce", int(E("CPN0", "7")), V_T)
    p.vop("v_lshl_add_u32", b, R8, "8", d)
    p.vop("v_lshl_add_u32", V_DV, cv, "4", b)
    for j in range(1, 4): p.vop("v_add_u32", V_DV + j, f"{1024 * j}", V_DV)
    p.s(f"s_lshl_b32 s{S_T0}, s2, 1")
    p.s(f"s_add_u32 s{S_T0}, s{S_T0}, s{S_P}")
    p.s(f"s_mul_i32 s{S_T0}, s{S_T0}, {int(E('KROT', '5'))}")
    p.s(f"s_lshr_b32 s{S_T1}, s2, 3")
    p.s(f"s_add_u32 s{S_T0}, s{S_T0}, s{S_T1}")
    p.s(f"s_and_b32 s{S_T0}, s{S_T0}, {15 if int(E('KROT', '5')) else 0}")
    p.s(f"s_lshl_b32 s{S_KOFF}, s{S_T0}, 13")
    p.s(f"s_mov_b32 s{S_M0KVP}, s{S_M0KV}")
    p.s(f"s_mov_b32 s{S_M0KVP+1}, s{S_M0W}")
    p.s(f"s_mov_b32 s{S_KVP}, s{S_KVN}")
    if EK:
        p.s(f"s_mov_b32 s{S_EM}, 0")
        p.s(f"s_mov_b32 s{S_EC}, s{S_KOFF}")
        p.s(f"s_mov_b32 s{S_EW}, {STG}")
    p.s(f"s_and_b32 s{S_U}, s{S_W}, 1")
    p.s(f"s_lshl_b32 s{S_T0}, s{S_B}, 2")
    p.s(f"s_lshr_b32 s{S_T1}, s{S_G}, 1")
    p.s(f"s_add_u32 s{S_T0}, s{S_T0}, s{S_T1}")
    p.s(f"s_and_b32 s{S_T1}, s{S_G}, 1")
    p.s(f"s_lshl_b32 s{S_T1}, s{S_T1}, 2")
    p.s(f"s_add_u32 s{S_T1}, s{S_T1}, s{S_W}")
    p.s(f"s_lshr_b32 s{S_WFP}, s{S_T1}, 1")
    p.s(f"s_lshl_b32 s{S_WFP}, s{S_WFP}, 7")
    p.s(f"s_add_u32 s{S_WFP}, s{S_WFP}, s{S_T0}")
    p.s(f"s_lshl_b32 s{S_WFP}, s{S_WFP}, 1")
    p.s(f"s_add_u32 s{S_WFP}, s{S_WFP}, s{S_U}")
    p.s(f"s_lshl_b32 s{S_WFP}, s{S_WFP}, 3")
    p.s(f"s_add_u32 s{S_WFP}, s{S_WFP}, {WFLG}")
    p.s(f"s_mul_i32 s{S_T1}, s{S_T1}, 5")
    p.s(f"s_mul_i32 s{S_T0}, s{S_T0}, 40960")
    p.s(f"s_lshl_b32 s{S_PT}, s{S_T1}, 10")
    p.s(f"s_add_u32 s{S_PT}, s{S_PT}, s{S_T0}")
    p.s(f"s_and_b32 s{S_T1}, s{S_G}, 1")
    p.s(f"s_mul_i32 s{S_T1}, s{S_T1}, 640")
    p.s(f"s_add_u32 s{S_WT}, s{S_T1}, s{S_T0}")
    p.s(f"s_mul_i32 s{S_T1}, s{S_W}, {8 * 1280}")
    p.s(f"s_add_u32 s{S_WT}, s{S_WT}, s{S_T1}")
    p.s(f"s_lshl_b32 s{S_RD}, s{S_W}, 10")
    if int(E("TOUCH", "1")):
        p.add(Ins(f"buffer_load_dword v{V_T+4}, off, s[{SRD_K}:{SRD_K+3}], s{S_KVN} nt", "vml", [], [V_T + 4], tag="touch"))
        p.add(Ins(f"buffer_load_dword v{V_T+5}, off, s[{SRD_V}:{SRD_V+3}], s{S_KVN} nt", "vml", [], [V_T + 5], tag="touch"))
        p.add(Ins(f"buffer_load_dword v{V_T+7}, off, s[{SRD_WS}:{SRD_WS+3}], s{S_PT} sc1", "vml", [], [V_T + 7], tag="touch"))
    p.s(f"s_or_b32 s{S_T0}, s2, s{S_W}")
    p.s(f"s_cmp_lg_u32 s{S_T0}, 0")
    p.s(f"s_cbranch_scc1 {name}_nononce")
    p.s(f"s_memrealtime s[{S_NON}:{S_NON+1}]")
    p.s("s_waitcnt lgkmcnt(0)")
    p.s(f"s_or_b32 s{S_NON+1}, s{S_NON+1}, 0x80000000")
    p.raw(f"v_mov_b32 v{V_T}, s{S_NON}")
    p.raw(f"v_mov_b32 v{V_T+1}, s{S_NON+1}")
    p.s("s_mov_b64 exec, 1")
    p.raw(f"buffer_store_dwordx2 v[{V_T}:{V_T+1}], v{V_LIN}, s[{SRD_DBG}:{SRD_DBG+3}], 0 offen sc1")
    p.s("s_mov_b64 exec, -1")
    p.label(f"{name}_nononce")
    p.s(f"s_mov_b32 s{S_SPIN}, 0x40000")
    p.s(f"s_mov_b32 s{S_PH}, 0")
    if PROF in (2, 3): p.s("s_mov_b32 s93, 32")
    p.s(f"s_mov_b64 s[{S_BAD}:{S_BAD+1}], 0")
    p.s(f"s_mov_b32 s{S_CS}, {f2u(CSCALE):#x}")
    p.s(f"s_mov_b32 s{S_CS+1}, s{S_CS}")
    p.s(f"s_mov_b32 s{S_LO}, {f2u(2.0 ** -16):#x}")
    p.s(f"s_mov_b32 s{S_HI}, {f2u(2.0 ** 24):#x}")
    p.vop("v_and_b32", M, "15", L)
    p.vop("v_lshrrev_b32", G, "4", L)
    p.vop("v_lshrrev_b32", a, "3", M)
    p.vop("v_mul_u32_u24", c, "3", a)
    p.vop("v_xor_b32", c, c, G)
    p.vop("v_and_b32", b, "7", M)
    p.vop("v_lshlrev_b32", b, "6", b)
    p.vop("v_lshl_add_u32", b, c, "4", b)
    p.vop("v_lshl_add_u32", b, a, "10", b)
    p.vop("v_add_u32", V_AX8, f"{XRING}", b)
    p.vop("v_lshl_add_u32", V_AX, U, "13", V_AX8)
    p.vop("v_add_u32", V_AW + 5, f"{XALT}", b)
    p.vop("v_lshl_add_u32", V_AW + 4, U, "13", V_AW + 5)
    p.vop("v_and_b32", c, "0x1ff", V_LIN)
    p.vop("v_lshl_add_u32", c, VV, "10", c)
    p.s(f"s_mul_i32 s{S_T2}, s{S_W}, 5")
    for f in range(5):
        p.s(f"s_lshr_b32 s{S_T0}, s{S_T2}, 2")
        p.s(f"s_lshl_b32 s{S_T0}, s{S_T0}, 12")
        if EK:
            p.s(f"s_cmp_ge_u32 s{S_T2}, 16")
            p.s(f"s_cselect_b32 s{S_T1}, {STG4 - 16384}, s{S_EW}")
            p.s(f"s_add_u32 s{S_T0}, s{S_T0}, s{S_T1}")
        p.s(f"s_and_b32 s{S_T1}, s{S_T2}, 2")
        p.s(f"s_lshl_b32 s{S_T1}, s{S_T1}, 8")
        p.s(f"s_add_u32 s{S_T0}, s{S_T0}, s{S_T1}")
        p.s(f"s_and_b32 s{S_T1}, s{S_T2}, 1")
        p.s(f"s_lshl_b32 s{S_T1}, s{S_T1}, 3")
        p.s(f"s_add_u32 s{S_T0}, s{S_T0}, s{S_T1}")
        p.vop("v_add_u32", V_O + 144 + f, f"s{S_T0}", c)
        p.s(f"s_add_u32 s{S_T2}, s{S_T2}, 1")
    p.vop("v_and_b32", b, "0xffffffcf", b)
    p.vop("v_bfe_u32", a, M, "2", "1")
    p.vop("v_lshlrev_b32", a, "1", a)
    p.vop("v_xor_b32", a, a, G)
    p.vop("v_lshl_add_u32", b, a, "4", b)
    p.vop("v_lshl_add_u32", V_AK, P, "13", b)
    p.vop("v_lshrrev_b32", a, "1", G)
    p.vop("v_lshlrev_b32", b, "10", a)
    p.vop("v_lshl_add_u32", b, R8, "6", b)
    p.vop("v_and_b32", c, "1", L)
    p.vop("v_lshl_add_u32", b, c, "3", b)
    p.vop("v_bfe_u32", c, L, "1", "1")
    p.vop("v_lshl_add_u32", b, c, "4", b)
    p.vop("v_and_b32", c, "1", G)
    p.vop("v_lshl_add_u32", b, c, "5", b)
    p.vop("v_lshl_add_u32", V_AV0, P, "13", b)
    p.vop("v_xor_b32", V_AV1, "32", V_AV0)
    p.vop("v_lshl_add_u32", a, U, "12", V_AV0)
    p.vop("v_xor_b32", b, "32", a)
    p.vop("v_xor_b32", c, "4096", a)
    p.vop("v_xor_b32", d, "4096", b)
    for i, r in enumerate((a, b, c, d)): p.vop("v_add_u32", V_AW + i, f"{WRING}", r)
    for ops in (w_ops(2), x_ops(1), w_ops(3)):
        for f, _ in ops: f(p)
    stamp(p, 23)
    return p

def R128(d, a, off): return lambda p: p.ds_read128(d, a, off)
def TR(d, a, off): return lambda p: p.ds_tr(d, a, off)

class Pool:
    def __init__(self, sc, base, n):
        self.sc = sc; self.regs = base if isinstance(base, list) else [base + 4 * k for k in range(n)]; n = len(self.regs); self.n = n; self.last = [None] * n; self.i = 0; self.frags = []
    def frag(self, tile, mk_reads, consumers, as_b=False):
        k = self.i % self.n; self.i += 1
        r = self.regs[k]
        war = self.last[k]
        for (d, o, c, tag) in consumers:
            if as_b: self.sc.mfma(d, o, r, c, tag)
            else: self.sc.mfma(d, r, o, c, tag)
        self.last[k] = consumers[-1][3]
        self.frags.append((tile, mk_reads(r), consumers[0][3], war))

LEAD = int(E("LEAD", "9"))
LEADB = int(E("LEADB", "8"))
BGAP = int(E("BGAP", "4"))

def sstamp(p):
    p.s(f"s_memrealtime s[{S_TM}:{S_TM+1}]")
    p.s(f"s_memtime s[{S_TM+2}:{S_TM+3}]")
    p.wait_lgkm0()
    p.s("s_mov_b32 s99, m0")
    p.s("s_mov_b32 m0, s93")
    p.s("s_add_u32 s93, s93, 1")
    p.raw(f"v_writelane_b32 v0, s{S_TM}, m0")
    p.raw(f"v_writelane_b32 v255, s{S_TM+2}, m0")
    p.s("s_mov_b32 m0, s99")

def qmod(name):
    p = Prog()
    KVS = [int(x) for x in E("KVS", "-1,-1,-1,-1,37" if EK else "29,31,33,35,37").split(",")]
    V0S = [int(x) for x in E("V0S", "29,30,33,34").split(",")]
    sc = Sched(p, budget=int(E("QBUD", "8")), late_extra=8)
    sc.group["dma"] = "vm"; sc.pace["vm"] = int(E("QPACE", "4"))
    sc.maxds = int(E("QMAXDS", "1"))
    pool = Pool(sc, A_QP, NPOOL)
    for h in range(40):
        r = h & 1; st = (h >> 1) & 1
        for k in range(8):
            off = (h % 4) * 16384 + ((k >> 1) & 1) * 512
            ad = V_AW + 2 * (k >> 2) + (k & 1)
            cons = [(QA(r, n, k), Xf(st, n), QA(r, n, k) if h > 1 else None, ("Q", h, k, n)) for n in range(5 if k < 4 else 4)]
            pool.frag(h, lambda rg: [TR(rg, ad, off), TR(rg + 2, ad, off + 2048)], cons)
    mt = lambda i: sc.m[max(0, min(i, len(sc.m) - 1))][4]
    XT = int(E("XT", "1")); A_XT = A_Q + 40
    def xreads(i, kh):
        return [R128(A_XT + 4 * n if (XT and kh and i) else Xf(kh, n), (V_AX if i else V_AW + 4) + (n >> 2), (n if n < 4 else 8) * 2048 + kh * 512) for n in range(5)]
    WOS = int(E("WOS", "0")); WOR = int(E("WOR", "28"))
    def wop():
        ops = []
        for cb in range(5):
            def f(p, cb=cb):
                p.s(f"s_add_u32 m0, s{S_RD}, {cb * (4096 - 128)}")
                p.dmao(V_DX, SRD_WO, f"s{S_WT}", cb * 128, "WOP", E("WOFL", ""))
            ops.append((f, 8))
        return ops
    def wst():
        def f(p):
            for i in range(5):
                if i == 4: p.s(f"s_add_u32 s{S_PT}, s{S_PT}, 4096")
                p.store(A_Q + 4 * i, 4, V_LIN, SRD_WS, f"s{S_PT}", (i % 4) * 1024, tag="wst", flags="sc1")
        return [(f, 20)]
    for fi, (h, reads, cons, war) in enumerate(pool.frags):
        c0 = 36 * h
        tau = c0 - LEADB
        taun = c0 + 36 - LEADB
        if fi % 8 == 0:
            def bar(p, h=h):
                p.comment(f"---- q step {h}")
                tags = [("W", h)]
                if h == 0: tags.append(("X", 0))
                if h % 4 == 3 and h < 39: tags.append(("X", (h + 1) // 4))
                if h == WOR: tags.append("WOP")
                p.wait_vm(tags, lgkm0=True)
                if "b" not in ABL or h < 4: p.barrier()
                if PROF == 2 and h % 2 == 0: sstamp(p)
            ops = []
            if h % 4 == 1 - XT and 4 <= h < 36: ops += x_ops(h // 4 + 1)
            if 1 <= h < 37: ops += w_ops(h + 3)
            if "d" in ABL: ops = []
            if h == WOS and not EK: ops += wop()
            nb = len(ops)
            if EK and 4 <= h < 28: ops += ek_ops(h)
            if EK and h in V0S: ops += kv1(2, V0S.index(h))
            nb = len(ops) - nb
            if h == WOR:
                for i in range(10):
                    sc.fill("rw", TR(A_Q + 2 * i, V_O + 144 + (i >> 1), (i & 1) * 2048), 4, ds=True, after=("BAR", h), before=mt(taun - BGAP), lead=2 * (10 - i))
            if h == 36: ops += wst()
            for k, x in enumerate(KVS):
                if x == h: ops += kv_ops(32 + k)
            sc.fill("rd", bar, 8, before=mt(tau), early=0 if h else None, tag=("BAR", h))
            QD = int(E("QD", "14")) - 4 * nb * int(E("QDE", "0")) if len(ops) - nb <= 4 else int(E("QD2", "0"))
            fill_dma(sc, ops, dict(tag=("BAR", h), delay=QD), mt(taun - 1))
            if h == 0:
                for k, fn in enumerate(xreads(0, 0)): sc.fill("rd", fn, 4, ds=True, before=mt(0))
            xr = []; aft = [("BAR", h)]
            if h % 4 == 3 and h < 39: xr = xreads((h + 1) // 4, 0)
            if XT and xr: xr += xreads((h + 1) // 4, 1)
            if XT and h % 4 == 0 and h:
                for r in range(20): sc.fill("cp", lambda p, r=r: p.ar(Xf(1, 0) + r, A_XT + r), 4, after=dict(tag=("Q", h - 1, 7, 3), delay=1), before=mt(c0 + 62), lead=0, early=int(E("XCE", "20")))
            elif h % 4 == 0:
                xr = xreads(h // 4, 1)
                if h: aft.append(("Q", h - 1, 7, 3))
            for j, fn in enumerate(xr):
                sc.fill("rx", fn, 4, ds=True, after=aft, before=mt(taun - BGAP), lead=(2 if XT else 3) * (len(xr) - j))
        for k, fn in enumerate(reads):
            if "r" in ABL and h >= 2: continue
            bf = cons
            if sc.idx[cons] > taun - BGAP: bf = mt(taun - BGAP)
            sc.fill("rd", fn, 4, ds=True, after=war if k == 0 else None, before=bf, lead=LEAD if bf is cons else 0, early=int(E("QEARLY", "99")))
    def lastbar(p):
        p.comment("---- q step 40")
        p.wait_lgkm0(); p.barrier()
        p.add(Ins(f"buffer_load_dwordx2 v[{V_NV}:{V_NV+1}], off, s[{SRD_DBG}:{SRD_DBG+3}], 0 sc1", "vml", [], [V_NV, V_NV + 1], tag="non"))
    sc.fill("rd", lastbar, 8, before=mt(36 * 40 - LEADB), early=0)
    sc.run()
    stamp(p, 1)
    fstart = len(p.ins)
    TB = V_O + 144
    cnt = [0]
    def fin(r, n, t, i):
        s0 = QA(r, n, 2 * t)
        if r:
            tb = TB + 8 * (cnt[0] & 1); cnt[0] += 1
            for x in range(8): p.ar(tb + x, s0 + x)
            s0 = tb
        dst = V_S + 4 * i
        for x in range(0, 8, 2): p.pkmul(s0 + x, s0 + x, f"s[{S_CS}:{S_CS+1}]")
        for x in range(4): p.cvtpk(dst + x, s0 + 2 * x, s0 + 2 * x + 1)
        return dst
    def swp(dst):
        p.swap32(dst, dst + 2); p.swap32(dst + 1, dst + 3)
        p.swap16(dst, dst + 2); p.swap16(dst + 1, dst + 3)
    p.v(f"v_lshl_add_u32 v{V_E0}, s{S_W}, 12, v{V_LIN}", [V_E0], [V_LIN])
    p.vop("v_add_u32", V_E0, f"{XRING}", V_E0)
    p.vop("v_xor_b32", V_E1, "4096", V_E0)
    d8 = [fin(r, 4, t, 2 * r + t) for r in range(2) for t in range(2)]
    for d in d8: swp(d)
    for t, d in enumerate(d8): p.ds_write(V_E0, d, 4, t * 1024)
    for r in range(2):
        base = A_QN if r else A_Q
        for n in range(4):
            ds = [fin(r, n, t, 4 + (n & 1) * 4 + t) for t in range(4)]
            if r == 0 and n == 0:
                p.wait_lgkm0(); p.barrier()
                for t in range(2): p.ds_read128(Qf(4, t), V_E0, t * 1024)
                for t in range(2): p.ds_read128(Qf(4, 2 + t), V_E1, t * 1024)
            for d in ds: swp(d)
            for t, d in enumerate(ds):
                for x in range(4): p.aw(Qf(n, t, base) + x, d + x)
    for t in range(2): p.ds_read128(Qf(4, t, A_QN), V_E0, 2048 + t * 1024)
    for t in range(2): p.ds_read128(Qf(4, 2 + t, A_QN), V_E1, 2048 + t * 1024)
    p.vop("v_mov_b32", V_T, "0x3f803f80")
    for r in range(4): p.aw(A_ONE + r, V_T)
    sprinkle([(p, fstart)], sum([kv_ops(32 + k) for k in range(len(KVS), 7 if T7 else 8)], []), 0.0, float(E("QSH", "1.0")))
    get_nonce(p, f"{name}_n1", V_T)
    p.wait_vm("wst")
    publish(p, f"s{S_WFP}", 0, V_T)
    z = p
    z.s(f"s_mul_i32 s{S_WT}, s{S_G}, {16 * 40960}")
    z.s(f"s_mul_i32 s{S_T0}, s{S_W}, 10240")
    z.s(f"s_add_u32 s{S_WT}, s{S_WT}, s{S_T0}")
    z.s(f"s_lshl_b32 s{S_PF}, s{S_W}, 11")
    z.s(f"s_lshl_b32 s{S_T1}, s{S_G}, 8")
    z.s(f"s_add_u32 s{S_PF}, s{S_PF}, s{S_T1}")
    z.s(f"s_add_u32 s{S_PF}, s{S_PF}, {WFLG}")
    z.vop("v_lshrrev_b32", V_AX, "1", V_LIN)
    z.vop("v_and_b32", V_AX, "0xf8", V_AX)
    psetup(z)
    stamp(z, 2)
    return p

def a_mfmas(sc, pool, qh):
    AV = (V_AV0, V_AV1)
    has8 = lambda u: (u & 1) == qh
    for pos, (kind, u) in enumerate(KVSEQ):
        sb = (pos % 4) * 16384
        ns = [0, 1, 2, 3] + ([4] if has8(u) else [])
        if kind == "K":
            for kt in range(2):
                for ks in range(4):
                    off = sb + kt * 2048 + ((ks >> 1) ^ qh) * 4096 + (ks & 1) * 512
                    cons = []
                    for n in ns:
                        d = XS(u & 1, n) if kt == 0 else YS(n)
                        cons.append((d, Qf(n, ks), d if ks else None, ("S", u, kt, ks, n)))
                    pool.frag(pos, lambda r: [R128(r, V_AK, off)], cons)
        else:
            first = lambda n: u == 0 if n < 4 else u == qh
            for n in ns: sc.mfma(La(n), A_ONE, XS(u & 1, n), None if first(n) else La(n), ("L", u, n))
            for m in range(8):
                e, mp = m & 1, m >> 1
                off = sb + (mp >> 1) * 4096 + (mp & 1) * 512
                oa = lambda n: Oa(n, m if n < 4 else m ^ (4 * qh))
                cons = [(oa(n), XS(u & 1, n), None if first(n) else oa(n), ("PV", u, m, n)) for n in ns]
                pool.frag(pos, lambda r: [TR(r, AV[e], off), TR(r + 2, AV[e], off + 2048)], cons)

def a_taus():
    cs = []
    for qh in range(2):
        sc = Sched(Prog()); pool = Pool(sc, A_POOL, NPOOL); a_mfmas(sc, pool, qh)
        c = {}
        for (pos, _, cons, _) in pool.frags: c.setdefault(pos, sc.idx[cons])
        c[32] = len(sc.m) + LEADB - 3
        cs.append(c)
    return [min(cs[0][j], cs[1][j]) - LEADB for j in range(33)]

def aentry(name):
    p = Prog()
    p.label(f"{name}_A")
    p.s(f"s_mov_b32 s{S_KB}, s{S_KVN}")
    p.s(f"s_mov_b32 s{SRD_C+2}, 0x8000000")
    p.s(f"s_add_u32 s{S_KVN}, s{S_KVN}, {2 << 17}")
    p.s(f"s_cmp_eq_u32 s{S_PH}, 0")
    p.s(f"s_cselect_b32 s{S_M0KVP}, s{S_M0KV}, {DROP:#x}")
    p.s(f"s_cselect_b32 s{S_M0KVP+1}, s{S_M0W}, {DROP:#x}")
    p.s(f"s_cselect_b32 s{S_KVP}, s{S_KVN}, {OOB:#x}")
    p.s(f"s_cselect_b64 s[{S_XM}:{S_XM+1}], 0, -1")
    p.s(f"s_cselect_b32 s{S_WT2}, {OOB:#x}, s{S_WT}")
    p.s(f"s_cmp_eq_u32 s{S_U}, 1")
    p.s(f"s_cbranch_scc1 {name}_A1")
    return p

def tile_addr(p, base, dst):
    p.s(f"s_lshl_b32 s{S_T0}, s{S_U}, 2")
    p.s(f"s_sub_u32 s{S_T0}, s{S_T0}, s{S_G}")
    for n in range(4):
        p.s(f"s_add_u32 s{S_T1}, s{S_T0}, {n + 7}")
        p.s(f"s_and_b32 s{S_T1}, s{S_T1}, 7")
        p.v(f"v_lshl_add_u32 v{dst+n}, s{S_T1}, 10, v{base}", [dst + n], [base])

def avm(pos):
    if pos >= 30: return None
    pat = [int(x) for x in E("AVM", "3,4").split(",")]
    h = [int(x) for x in E("AVMH", "").split(",") if x]
    if pos < len(h): return h[pos]
    return pat[pos % len(pat)] + (3 if 1 <= pos <= 4 else 0)
RQ = [int(x) for x in E("RQH", "0,3,3,2").split(",")] + [int(x) for x in E("RQL", "4,3,4,3,4,3,4,3").split(",")] * 3 + [int(x) for x in E("RQT", "4,4,4,4").split(",")]
STREAM = sum([kv_ops(k) for k in range(8, 40)], [])
for s_ in range(32): assert sum(RQ[:s_ + 1]) <= 4 * s_
WORD = list(range(20, 32)) + list(range(20))
def amod(name, qh):
    p = Prog()
    p.label(f"{name}_A{qh}")
    sc = Sched(p, budget=int(E("ABUD", "8")), late_extra=int(E("ALATE", "8")))
    sc.group["dma"] = "vm"; sc.pace["vm"] = int(E("APACE", "2"))
    pool = Pool(sc, A_POOL, NPOOL)
    a_mfmas(sc, pool, qh)
    tau = a_taus()
    mt = lambda i: sc.m[max(0, min(i, len(sc.m) - 1))][4]
    def add_bar(pos):
        def bar(p, pos=pos):
            p.comment(f"---- a step {pos}")
            if pos < 32: p.wait_vm(KVSEQ[pos], lgkm0=True, cap=avm(pos))
            else: p.wait_lgkm0()
            p.barrier()
            if pos % 4 == 0 and pos:
                for r in (V_AV0, V_AV1, V_AK): p.vop("v_xor_b32", r, "0x10000", r)
            if PROF == 3 and pos % 2 == 0 and pos < 32: sstamp(p)
        sc.fill("rd", bar, 8, before=mt(tau[pos]), early=0 if pos else None, tag=("BAR", pos))
        if pos < 32:
            ops = STREAM[sum(RQ[:pos]):sum(RQ[:pos + 1])]
            aft = ("BAR", pos); bf = mt(tau[pos + 1] - 1)
            span = tau[pos + 1] - max(tau[pos], 0)
            for k, op in enumerate(ops): fill_dma(sc, [op], dict(tag=aft, delay=(k * (span - 2)) // len(ops)), bf)
            if pos < 4:
                for k in range(20 + 3 * pos, 23 + 3 * pos):
                    for fn, kind, cost in split_ops([(wload(0, k, S_T2, S_WT2), 8)]):
                        sc.fill("dmp", fn, 8 if kind == "vm" else 4, after=dict(tag=aft, delay=5 + 9 * ((k - 20) % 3)), solo=(kind == "vm"), before=bf, lead=20)
            if pos == 30:
                NWL = int(E("NWL", "12")); WLS = int(E("WLS", "6"))
                last = ("S", 15, 1, 3, 4 if qh == 1 else 3)
                for k in range(NWL):
                    for fn, kind, cost in split_ops([(wload(0, k, S_T2, S_WT2), 8)]):
                        sc.fill("dmp", fn, 8 if kind == "vm" else 4, after=dict(tag=last, delay=2 + WLS * k), solo=(kind == "vm"), before=mt(sc.idx[last] + 12 + WLS * k), lead=9)
    cur = None
    for (pos, reads, cons, war) in pool.frags:
        if pos != cur:
            cur = pos; add_bar(pos)
        for k, fn in enumerate(reads):
            bf = cons
            if sc.idx[cons] > tau[pos + 1] - BGAP: bf = mt(tau[pos + 1] - BGAP)
            sc.fill("rd", fn, 4, ds=True, after=war if k == 0 else None, before=bf, lead=LEAD if bf is cons else 0)
    add_bar(32)
    def V(fn, after=None, before=None, cost=4, lead=0): sc.fill("va", fn, cost, after=after, before=before, lead=lead)
    EDL = int(E("EDL", "3"))
    for u in range(16):
        ns = [0, 1, 2, 3] + ([4] if (u & 1) == qh else [])
        for kt in range(2):
            for n in ns:
                src = XS(u & 1, n) if kt == 0 else YS(n)
                dst = XS(u & 1, n) + 2 * kt
                for r in range(4):
                    V(lambda p, reg=src + r: p.exp(reg, reg), after=dict(tag=("S", u, kt, 3, n), delay=EDL), cost=8)
                bf = ("L", u, n)
                if kt == 1 and n < 4 and u < 15: bf = ("S", u + 1, 1, 0, n)
                V(lambda p, dst=dst, src=src: p.cvtpk(dst, src, src + 1))
                V(lambda p, dst=dst, src=src: p.cvtpk(dst + 1, src + 2, src + 3), before=bf, lead=2)
    sc.run()
    if qh == 0: p.s(f"s_branch {name}_F")
    return p

def afin(name):
    p = Prog()
    p.label(f"{name}_F")
    stamp(p, 5, S_PH)
    poll_issue(p, V_AX, f"s{S_PF}", 0, V_NV)
    AD, AL, AI, A8 = V_S + 44, V_S + 46, V_S + 48, V_S + 52
    p.v(f"v_lshl_add_u32 v{AD}, s{S_W}, 12, v{V_LIN}", [AD], [V_LIN])
    p.vop("v_add_u32", AD, f"{MISC}", AD)
    p.vop("v_xor_b32", AD + 1, "4096", AD)
    for i in range(4): p.ds_write(AD + 1, Oa(4, 4 + i), 4, i * 1024)
    p.s(f"s_xor_b32 s{S_T0}, s{S_W}, 1")
    p.s(f"s_movk_i32 s{S_T1}, 18432")
    p.s(f"s_mov_b32 s{S_T2}, {IMG(8)}")
    p.s(f"s_cmp_eq_u32 s{S_PH}, 0")
    p.s(f"s_cselect_b32 s{S_T1}, 1024, s{S_T1}")
    p.s(f"s_cselect_b32 s{S_T2}, {XRING}, s{S_T2}")
    p.s(f"s_mul_i32 s{S_T0}, s{S_T0}, s{S_T1}")
    p.s(f"s_add_u32 s{S_T0}, s{S_T0}, s{S_T2}")
    p.vop("v_add_u32", AL + 1, f"s{S_T0}", V_LIN)
    p.ds_write(AL + 1, La(4), 1, 0)
    p.s(f"s_mul_i32 s{S_T0}, s{S_W}, s{S_T1}")
    p.s(f"s_add_u32 s{S_T0}, s{S_T0}, s{S_T2}")
    p.vop("v_add_u32", AL, f"s{S_T0}", V_LIN)
    RL = V_S + 2
    for n in range(5): p.ar(RL + 2 * n, La(n))
    p.s(f"s_mul_i32 s{S_T0}, s{S_P}, 36864")
    p.vop("v_add_u32", A8 + 1, f"s{S_T0}", V_LIN)
    tile_addr(p, A8 + 1, V_T)
    for n in range(4): p.vop("v_add_u32", AI + n, f"{IMG(8)}", V_T + n)
    p.vop("v_subrev_u32", A8, f"{IMG(8)}", AL)
    wleft = list(range(int(E("NWL", "12")), 20))
    def check(n):
        r = RL + 2 * n
        p.add(Ins(f"v_cmp_nge_f32 vcc, v{r}, s{S_LO}", "valu", [r], []))
        p.s(f"s_or_b64 s[{S_BAD}:{S_BAD+1}], s[{S_BAD}:{S_BAD+1}], vcc")
        p.add(Ins(f"v_cmp_nle_f32 vcc, v{r}, s{S_HI}", "valu", [r], []))
        p.s(f"s_or_b64 s[{S_BAD}:{S_BAD+1}], s[{S_BAD}:{S_BAD+1}], vcc")
        p.vop("v_rcp_f32", r + 1, r, kind="trans")
        p.vop("v_rcp_f32", r, r, kind="trans")
    def pkm(d, n): p.pkmul(d, d, RL + 2 * n)
    CHK = V_S + 40
    pend = []
    def flush():
        for d in pend: p.mfma(CHK, A_ONE, d, CHK if d != Oa(0, 0) else None)
        pend.clear()
    def norm(n, t):
        s0 = Oa(n, 2 * t)
        for r in range(0, 8, 2): pkm(s0 + r, n)
        for r in range(4): p.cvtpk(s0 + r, s0 + 2 * r, s0 + 2 * r + 1)
        flush()
        if t & 1:
            p.s(f"s_mov_b64 exec, s[{S_XM}:{S_XM+1}]")
            for tt in (t - 1, t):
                if n < 4: p.ds_write(AI + n, Oa(n, 2 * tt), 4, tt * 9216 + 1024).kind = "dsx"
                else: p.ds_write(AL, Oa(n, 2 * tt), 4, tt * 9216).kind = "dsx"
                if n < 4: p.ds_write(V_T + n, Qf(n, tt, A_QN), 4, tt * 9216 + 1024).kind = "dsx"
                else: p.ds_write(A8, Qf(n, tt, A_QN), 4, tt * 9216).kind = "dsx"
            p.s("s_mov_b64 exec, -1")
        if wleft: wload(0, wleft.pop(0), S_T2, S_WT2)(p)
        pend.append(s0)
    for n in range(4): check(n)
    p.add(Ins("s_waitcnt lgkmcnt(0)", "waitlgkm0"))
    for t in range(4): norm(0, t)
    p.barrier()
    PX = V_S + 16
    for i in range(4): p.ds_read128(PX + 4 * i, AD, i * 1024)
    p.ds_read32(V_S, AL, 0)
    for n in (1, 2):
        for t in range(4): norm(n, t)
    p.vop("v_add_f32", RL + 8, RL + 8, V_S)
    check(4)
    for i in range(4):
        for r in range(4): p.vop("v_add_f32", Oa(4, i) + r, Oa(4, i) + r, PX + 4 * i + r)
    for t in range(2): norm(4, t)
    for t in range(4): norm(3, t)
    flush()
    p.s(f"s_movk_i32 s{S_T2}, 0x207")
    p.s(f"s_add_u32 s{S_PH}, s{S_PH}, 1")
    p.add(Ins(f"v_cmp_class_f32 vcc, v{CHK}, s{S_T2}", "valu", [CHK], []))
    p.s(f"s_or_b64 s[{S_BAD}:{S_BAD+1}], s[{S_BAD}:{S_BAD+1}], vcc")
    stamp(p, 2, S_PH)
    p.s(f"s_cmp_eq_u32 s{S_PH}, 2")
    p.s(f"s_cbranch_scc1 {name}_P")
    q = Prog()
    q_copy(q)
    for n in range(5):
        for t in range(4 if n < 4 else 2):
            for r in range(4): q.aw(Qf(n, t, A_QN) + r, Oa(n, 2 * t) + r)
    sprinkle([(p, 8), (q, 1)], STREAM[sum(RQ):], 0.0, float(E("ASH", "0.7")))
    code_prefetch(q, name, 1, f"{name}_end-16384", 2, V_T)
    if int(E("TOUCH2", "0")):
        q.s(f"s_add_u32 s{S_T0}, s{S_RD}, {32768 + 1024}")
        q.raw(f"buffer_load_dword v{V_JUNK}, off, s[{SRD_WS}:{SRD_WS+3}], s{S_T0} sc1")
        q.s(f"s_add_u32 s{S_T0}, s{S_T0}, {PARTB - 40960}")
        q.raw(f"buffer_load_dword v{V_JUNK}, off, s[{SRD_WS}:{SRD_WS+3}], s{S_T0} sc1")
        q.raw(f"buffer_load_dword v{V_JUNK}, off, s[{SRD_WS}:{SRD_WS+3}], s{S_PO} sc1")
        q.raw(f"buffer_load_dword v{V_JUNK}, off, s[{SRD_OUT}:{SRD_OUT+3}], s{S_OUTO} sc1")
    poll_check(q, f"{name}_wpoll", V_AX, f"s{S_PF}", 0, V_NV)
    q.s(f"s_branch {name}_A")
    return p, q

def q_copy(p):
    for r in range(80): p.amov(A_Q + r, A_QN + r)

P_R = ([A_Q + 4 * i for i in range(20)] + [A_X + 4 * i for i in range(10)] + [10, 14],
       [A_QN + 4 * i for i in range(20)] + [A_L + 4 * i for i in range(12)])
def wload(j, i, so=None, sb=None):
    def f(p):
        if i % 2 == 0: p.s(f"s_add_u32 s{so or S_SO}, s{sb or S_WT}, {(i >> 1) * 40960}")
        if "B" not in ABL: p.load4(P_R[j & 1][i], V_LIN, SRD_WS, f"s{so or S_SO}", (i & 1) * 1024, ("WT", j, i), "sc1")
    return f

def slow(name):
    SI, SC, SX, SWq, SKV, SD, SK = 56, 57, 58, 59, 88, 89, 90
    VW, VX, VK, VV_, VD = 28, 36, 37, 38, 39
    MX, NM, LA, QF, SS, FB, AC, RAW, FR = 40, 44, 48, 52, 68, 76, 84, 116, 180
    def ld(p, op, n, d, vo, srd, so, off):
        p.add(Ins(f"{op} {vr(d, n)}, v{vo}, s[{srd}:{srd+3}], s{so} offen offset:{off}", "vml", [vo], R(d, n), tag="sl"))
    p0 = Prog()
    p0.label(f"{name}_slow")
    p0.wait_all()
    M, G = MX, MX + 1
    p0.vop("v_bfe_u32", M, V_LIN, "4", "4")
    p0.vop("v_lshrrev_b32", G, "8", V_LIN)
    p0.vop("v_lshlrev_b32", VW, "16", G)
    p0.vop("v_lshl_add_u32", VW, M, "1", VW)
    for i in range(1, 8): p0.vop("v_add_u32", VW + i, f"{8192 * i}", VW)
    p0.s(f"s_movk_i32 s{S_T0}, 1280")
    p0.vop("v_mul_lo_u32", VX, M, f"s{S_T0}")
    p0.vop("v_lshl_add_u32", VX, G, "4", VX)
    p0.vop("v_lshlrev_b32", VK, "8", M)
    p0.vop("v_lshl_add_u32", VK, G, "3", VK)
    p0.vop("v_lshlrev_b32", VV_, "10", G)
    p0.vop("v_lshl_add_u32", VV_, M, "1", VV_)
    p0.s(f"s_mov_b32 s{SI}, 0")
    p1 = Prog()
    p1.label(f"{name}_sl_it")
    p1.s(f"s_cmp_ge_u32 s{SI}, 5")
    p1.s(f"s_cselect_b32 s{S_T0}, 2, 0")
    p1.s(f"s_cselect_b32 s{S_T1}, 5, 0")
    p1.s(f"s_sub_u32 s{S_T1}, s{SI}, s{S_T1}")
    p1.s(f"s_add_u32 s{S_T0}, s{S_T0}, s{S_P}")
    p1.s(f"s_mul_i32 s{SD}, s{S_T0}, 36864")
    p1.s(f"s_lshl_b32 s{S_T2}, s{S_G}, 2")
    p1.s(f"s_add_u32 s{S_T0}, s{S_T0}, s{S_T2}")
    p1.s(f"s_lshl_b32 s{SWq}, s{S_T0}, 8")
    p1.s(f"s_lshl_b32 s{S_T2}, s{S_B}, 5")
    p1.s(f"s_add_u32 s{S_T0}, s{S_T0}, s{S_T2}")
    p1.s(f"s_lshl_b32 s{SKV}, s{S_T0}, 17")
    p1.s(f"s_lshl_b32 s{S_T0}, s{S_U}, 2")
    p1.s(f"s_add_u32 s{S_T0}, s{S_T0}, s{S_T1}")
    p1.s(f"s_sub_u32 s{S_T2}, s{S_T0}, s{S_G}")
    p1.s(f"s_add_u32 s{S_T2}, s{S_T2}, 7")
    p1.s(f"s_and_b32 s{S_T2}, s{S_T2}, 7")
    p1.s(f"s_add_u32 s{S_T2}, s{S_T2}, 1")
    p1.s(f"s_cmp_eq_u32 s{S_T1}, 4")
    p1.s(f"s_cselect_b32 s{S_T0}, 8, s{S_T0}")
    p1.s(f"s_cselect_b32 s{S_T2}, 0, s{S_T2}")
    p1.s(f"s_lshl_b32 s{S_T2}, s{S_T2}, 10")
    p1.s(f"s_add_u32 s{SD}, s{SD}, s{S_T2}")
    p1.vop("v_add_u32", VD, f"s{SD}", V_LIN)
    p1.s(f"s_mul_i32 s{S_T2}, s{S_B}, 9")
    p1.s(f"s_add_u32 s{S_T0}, s{S_T0}, s{S_T2}")
    p1.s(f"s_mul_i32 s{SX}, s{S_T0}, {16 * 1280}")
    for r in range(32): p1.vop("v_mov_b32", AC + r, "0")
    p1.s(f"s_mov_b32 s{SC}, 0")
    def pack(p):
        for r in range(32): p.vop("v_lshl_or_b32", FR + r, RAW + 2 * r + 1, "16", RAW + 2 * r)
    def loop_end(p, lab, n):
        p.s(f"s_add_u32 s{SC}, s{SC}, 1")
        p.s(f"s_cmp_lt_u32 s{SC}, {n}")
        p.s(f"s_cbranch_scc1 {lab}")
    p2 = Prog()
    p2.label(f"{name}_sl_q")
    ld(p2, "buffer_load_dwordx4", 4, FB, VX, SRD_X, SX, 0)
    for m in range(8):
        for i in range(8): ld(p2, "buffer_load_ushort", 1, RAW + 8 * m + i, VW + i, SRD_W, SWq, 32 * m)
        if m == 3: p2.wait_all()
    p2.wait_all()
    pack(p2)
    for m in range(8): p2.mfma(AC + 4 * m, FR + 4 * m, FB, AC + 4 * m)
    p2.s(f"s_add_u32 s{SX}, s{SX}, 64")
    p2.s(f"s_add_u32 s{SWq}, s{SWq}, {32 * 8192}")
    loop_end(p2, f"{name}_sl_q", 20)
    p3 = Prog()
    for r in range(32): p3.vop("v_mul_f32", AC + r, f"s{S_CS}", AC + r)
    for r in range(16): p3.cvtpk(QF + r, AC + 2 * r, AC + 2 * r + 1)
    for r in range(32): p3.vop("v_mov_b32", AC + r, "0")
    for r in range(4): p3.vop("v_mov_b32", LA + r, "0")
    p3.vop("v_mov_b32", MX, "0xff800000")
    p3.s(f"s_mov_b32 s{SK}, s{SKV}")
    p3.s(f"s_mov_b32 s{SC}, 0")
    def kfrags(p, dst, so):
        for ks in range(4):
            ld(p, "buffer_load_dwordx2", 2, dst + 4 * ks, VK, SRD_K, so, 64 * ks)
            ld(p, "buffer_load_dwordx2", 2, dst + 4 * ks + 2, VK, SRD_K, so, 64 * ks + 32)
    p4 = Prog()
    p4.label(f"{name}_sl_m")
    kfrags(p4, FR, SK)
    p4.wait_all()
    for ks in range(4): p4.mfma(SS, FR + 4 * ks, QF + 4 * ks, SS if ks else None)
    p4.vop("v_max3_f32", MX, MX, SS, SS + 1)
    p4.vop("v_max3_f32", MX, MX, SS + 2, SS + 3)
    p4.s(f"s_add_u32 s{SK}, s{SK}, 4096")
    loop_end(p4, f"{name}_sl_m", 32)
    p5 = Prog()
    for sw in (p5.swap32, p5.swap16):
        p5.vop("v_mov_b32", MX + 1, MX)
        sw(MX, MX + 1)
        p5.vop("v_max_f32", MX, MX, MX + 1)
    for r in range(4): p5.vop("v_sub_f32", NM + r, "0", MX)
    p5.s(f"s_mov_b32 s{SC}, 0")
    p6 = Prog()
    p6.label(f"{name}_sl_a")
    p6.s(f"s_add_u32 s{SK}, s{SKV}, 4096")
    kfrags(p6, FR, SKV)
    kfrags(p6, FR + 16, SK)
    p6.wait_all()
    for m in range(8):
        for i in range(8): ld(p6, "buffer_load_ushort", 1, RAW + 8 * m + i, VV_, SRD_V, SK if i >= 4 else SKV, 32 * m + 256 * (i & 3))
        if m == 3: p6.wait_all()
    for kt in range(2):
        for ks in range(4): p6.mfma(SS + 4 * kt, FR + 16 * kt + 4 * ks, QF + 4 * ks, SS + 4 * kt if ks else NM)
    for r in range(8): p6.exp(SS + r, SS + r)
    for r in range(4): p6.cvtpk(FB + r, SS + 2 * r, SS + 2 * r + 1)
    p6.wait_all()
    pack(p6)
    p6.mfma(LA, A_ONE, FB, LA)
    for m in range(8): p6.mfma(AC + 4 * m, FR + 4 * m, FB, AC + 4 * m)
    p6.s(f"s_add_u32 s{SKV}, s{SKV}, 8192")
    loop_end(p6, f"{name}_sl_a", 16)
    p7 = Prog()
    p7.vop("v_rcp_f32", LA, LA, kind="trans")
    for r in range(32): p7.vop("v_mul_f32", AC + r, AC + r, LA)
    for r in range(16): p7.cvtpk(QF + r, AC + 2 * r, AC + 2 * r + 1)
    for hf in range(2):
        p7.s(f"s_cmp_eq_u32 s{S_U}, {hf}")
        p7.s(f"s_cselect_b32 s{S_T0}, 0, s{S_T1}")
        p7.s(f"s_cmp_eq_u32 s{S_T0}, 4")
        p7.s(f"s_cbranch_scc1 {name}_sl_s{hf}")
        for t in (2 * hf, 2 * hf + 1): p7.ds_write(VD, QF + 4 * t, 4, t * 9216)
        p7.label(f"{name}_sl_s{hf}")
    p7.wait_all()
    p7.s(f"s_add_u32 s{SI}, s{SI}, 1")
    p7.s(f"s_cmp_lt_u32 s{SI}, 10")
    p7.s(f"s_cbranch_scc1 {name}_sl_it")
    p7.s(f"s_branch {name}_P2")
    body = [p1, p2, p2, p3, p4, p4, p5, p6, p6, p7]
    return [p0, p1, p2, p3, p4, p5, p6, p7], [p0] + body + body

S_ST = 62
S_J, S_JO, S_J8, S_JO8 = 4, 5, 6, 7
S_PC, S_FO, S_PO, S_JL = 70, 71, 72, 73
def psetup(p):
    p.s(f"s_mul_i32 s{S_RD}, s{S_B}, {PARTB}")
    p.s(f"s_lshl_b32 s{S_T1}, s{S_W}, 11")
    p.s(f"s_add_u32 s{S_RD}, s{S_RD}, s{S_T1}")
    p.s(f"s_add_u32 s{S_RD}, s{S_RD}, {PART}")
    p.s(f"s_lshr_b32 s{S_T0}, s{S_G}, 2")
    p.s(f"s_mul_i32 s{S_T0}, s{S_T0}, {PARTH}")
    p.s(f"s_add_u32 s{S_T0}, s{S_T0}, s{S_RD}")
    p.s(f"s_and_b32 s{S_T1}, s{S_G}, 3")
    p.s(f"s_mul_i32 s{S_ST}, s{S_T1}, 40960")
    p.s(f"s_add_u32 s{S_ST}, s{S_ST}, s{S_T0}")
    p.s(f"s_add_u32 s{S_ST}, s{S_ST}, 32768")
    p.s(f"s_lshl_b32 s{S_J}, s{S_T1}, 13")
    p.s(f"s_add_u32 s{S_J}, s{S_J}, s{S_T0}")
    for i in range(1, 8):
        p.s(f"s_add_u32 s{S_T0}, s{S_G}, {i}")
        p.s(f"s_bfe_u32 s{S_T1}, s{S_T0}, 0x10002")
        p.s(f"s_mul_i32 s{S_T1}, s{S_T1}, {PARTH}")
        p.s(f"s_and_b32 s{S_T0}, s{S_T0}, 3")
        p.s(f"s_lshl_b32 s{S_T0}, s{S_T0}, 13")
        p.s(f"s_add_u32 s{S_T0}, s{S_T0}, s{S_T1}")
        p.s(f"s_add_u32 s{S_T0}, s{S_T0}, s{S_RD}")
        p.s(f"s_add_u32 s{S_ST+i}, s{S_T0}, {((i - 1) >> 1) * 40960 + ((i - 1) & 1) * 1024}")
    p.s(f"s_lshl_b32 s{S_PO}, s{S_B}, 2")
    p.s(f"s_add_u32 s{S_PO}, s{S_PO}, s{S_W}")
    p.s(f"s_lshl_b32 s{S_PO}, s{S_PO}, 9")
    p.s(f"s_add_u32 s{S_PO}, s{S_PO}, {PFLG}")
    p.s(f"s_lshl_b32 s{S_FO}, s{S_G}, 3")
    p.s(f"s_add_u32 s{S_FO}, s{S_FO}, s{S_PO}")
    p.s(f"s_mul_i32 s{S_OUTO}, s{S_B}, {144 * 1280}")
    p.s(f"s_mul_i32 s{S_T1}, s{S_W}, 320")
    p.s(f"s_add_u32 s{S_OUTO}, s{S_OUTO}, s{S_T1}")
    p.s(f"s_mul_i32 s{S_JO}, s{S_G}, {16 * 1280}")
    p.s(f"s_add_u32 s{S_JO}, s{S_JO}, s{S_OUTO}")
    p.s(f"s_sub_u32 s{S_JO}, s{S_JO}, 64")
    p.s(f"s_mul_i32 s{S_T1}, s{S_G}, {4 * 40960}")
    p.s(f"s_add_u32 s{S_J8}, s{S_RD}, s{S_T1}")
    p.s(f"s_add_u32 s{S_J8}, s{S_J8}, 32768")
    p.s(f"s_lshl_b32 s{S_T1}, s{S_G}, 6")
    p.s(f"s_add_u32 s{S_JO8}, s{S_OUTO}, s{S_T1}")
    p.s(f"s_add_u32 s{S_JO8}, s{S_JO8}, {128 * 1280}")
    p.s(f"s_cmp_ge_u32 s{S_G}, 5")
    p.s(f"s_cselect_b32 s{S_J8}, {OOB:#x}, s{S_J8}")
    p.s(f"s_cselect_b32 s{S_JO8}, {OOB:#x}, s{S_JO8}")
    p.s(f"s_mov_b32 s{S_PC}, 0")

def pmod(name):
    p = Prog()
    p.label(f"{name}_P")
    if "F" in ABL: p.s(f"s_mov_b32 s{S_BAD}, 1")
    p.s(f"s_cmp_lg_u64 s[{S_BAD}:{S_BAD+1}], 0")
    p.s(f"s_cbranch_scc1 {name}_slow")
    p.label(f"{name}_P2")
    AO = (V_LIN, 2, 3)
    V_FA, V_OA = 4, 5
    PT, PT2 = 6, 8
    V_SA = 1
    SEL = 18
    POOL = [28 + 4 * k for k in range(16)]
    ACC = 92
    OWN = 124
    A8 = 164
    JB = (172, 204)
    CT = 244
    p.vop("v_add_u32", AO[1], "49152", V_LIN)
    p.vop("v_add_u32", AO[2], "98304", V_LIN)
    p.vop("v_mov_b32", V_SA, V_LIN)
    p.wait_all()
    p.barrier()
    stamp(p, 16)
    NL = int(E("PLEAD", "8"))
    def ooff(i, kq): return IMG(kq) + i * 1024
    for f in range(NL): p.ds_read128(POOL[f], AO[ooff(0, f) // 49152], ooff(0, f) % 49152)
    p.vop("v_lshrrev_b32", V_FA, "1", V_LIN)
    p.vop("v_and_b32", V_FA, "0x38", V_FA)
    p.vop("v_bfe_u32", CT, V_LIN, "4", "4")
    p.s(f"s_movk_i32 s{S_T0}, 1280")
    p.vop("v_mul_lo_u32", V_OA, CT, f"s{S_T0}")
    p.vop("v_lshrrev_b32", CT + 1, "8", V_LIN)
    p.vop("v_lshl_add_u32", V_OA, CT + 1, "4", V_OA)
    p.vop("v_mov_b32", PT2, f"s{S_NON}")
    p.vop("v_mov_b32", PT2 + 1, f"s{S_NON+1}")
    p.vop("v_and_b32", CT + 2, "1", CT)
    p.vop("v_lshlrev_b32", CT + 2, "4", CT + 2)
    p.s(f"s_movk_i32 s{S_T0}, 0x3f80")
    p.vop("v_lshlrev_b32", CT + 2, CT + 2, f"s{S_T0}")
    p.vop("v_lshrrev_b32", CT, "1", CT)
    p.vop("v_lshlrev_b32", CT + 1, "1", CT + 1)
    p.vop("v_sub_u32", CT, CT, CT + 1)
    for r in range(2):
        p.add(Ins(f"v_cmp_eq_u32 vcc, {r}, v{CT}", "valu", [CT], []))
        p.vop("v_mov_b32", SEL + r, "0")
        p.vop("v_mov_b32", SEL + 4 + r, "0")
        p.add(Ins(f"v_cndmask_b32 v{SEL+2+r}, 0, v{CT+2}, vcc", "valu", [CT + 2], [SEL + 2 + r]))
    def job_loads(p, sbase, offs, buf):
        for g, off in enumerate(offs):
            p.s(f"s_add_u32 s{S_T0}, s{sbase}, {off}")
            p.load4(buf + 4 * g, V_LIN, SRD_WS, f"s{S_T0}", 0, "job", "sc1")
    def job_reduce(p, sout, off, bufs, a, init):
        for g, bf in enumerate(bufs):
            for e in range(2): p.mfma(a + 4 * e, SEL + 2 - 2 * e, bf, None if (init and g == 0) else a + 4 * e)
        return lambda: ([p.cvtpk(a + r, a + 2 * r, a + 2 * r + 1) for r in range(4)],
                        p.store(a, 4, V_OA, SRD_OUT, f"s{sout}", off, tag="out", flags=E("OFL", "")))
    def flag(p, off, tag):
        p.wait_vm(tag)
        p.s("s_mov_b64 exec, 1")
        p.store(PT2, 2, V_LIN, SRD_WS, f"s{S_FO}", off, tag="flag", flags="sc1")
        p.s("s_mov_b64 exec, -1")
    FPOS = int(E("FPOS", "180")); WSP = float(E("WSP", "6")); PLAT = int(E("PLAT", "70")); CPOS = int(E("CPOS", "206")); WST = int(E("WST", "4"))
    jo = lambda mp: [(4 * mp + (g >> 1)) * 40960 + (g & 1) * 1024 for g in range(7)]
    def one_pass(par):
        q = Prog()
        q.label(f"{name}_pass{par}")
        if PROF == 4: stamp(q, 32, S_PC)
        q.wait_vm(("WT", par, 15))
        sc = Sched(q, budget=int(E("PBUD", "8")), late_extra=8)
        for qn in ("wl", "st", "jl"): sc.group[qn] = "vm"
        sc.pace["vm"] = int(E("PPACE", "4"))
        pool = Pool(sc, POOL, 16)
        acc = lambda i: OWN if i == 8 else ACC + 8 * (i % 4)
        for i in range(9):
            a = acc(i)
            for kq in range(16):
                cons = [(a + 4 * e, P_R[par][2 * kq + e], a + 4 * e if kq else None, ("P", i, kq, e)) for e in range(2)]
                pool.frag(0, lambda r: [R128(r, AO[ooff(i, kq) // 49152], ooff(i, kq) % 49152)], cons, as_b=True)
        PG = int(E("PG", "4"))
        sc.m = [x for k in range(0, 288, 2 * PG) for x in sc.m[k:k + 2 * PG:2] + sc.m[k + 1:k + 2 * PG:2]]
        sc.idx = {x[4]: k for k, x in enumerate(sc.m)}
        mt = lambda i: sc.m[max(0, min(i, len(sc.m) - 1))][4]
        for f in range(NL, 144 + NL):
            (_, reads, cons, war) = pool.frags[f % 144]
            if f >= 144: war = pool.last[f % 16]
            if "R" not in ABL: sc.fill("rd", reads[0], 4, ds=True, after=war, before=mt(2 * (f - NL) + 1), early=2)
        for i in ((16, 22, 28) if PG == 1 else (16, 24) if PG <= 4 else (16,)): sc.fill("ww", lambda p, i=i: p.wait_vm(("WT", par, min(31, i + (5 if PG == 1 else 7 if PG <= 4 else 15)))), 4, before=mt(i), early=0)
        def su(p):
            p.s(f"s_add_u32 s{S_WT}, s{S_WT}, 2048")
            p.s(f"s_cmp_eq_u32 s{S_PC}, 4")
            p.s(f"s_cselect_b32 s{S_WT}, {OOB:#x}, s{S_WT}")
        fill_dma(sc, [(su, 0)], None, mt(WST + 2), queue="wl", lead=6)
        for i in range(32):
            fill_dma(sc, [(wload(1 - par, i), 0)], mt(WST + int(WSP * i)), mt(WST + 12 + int(WSP * i)), queue="wl", lead=10)
        sc.fill("jl", lambda p: poll_issue(p, V_FA, f"s{S_PO}", 0, PT), 8, before=mt(CPOS - PLAT), early=4, solo=SOLO)
        for r in range(23, -1, -1): sc.fill("jr", lambda p, r=r: p.vop("v_mov_b32", OWN + 8 + r, OWN + r), 4, after=mt(40), before=mt(CPOS - 4), lead=4 * r)
        def cut(p):
            p.wait_vm("poll")
            p.s(f"s_cmp_lt_u32 s{S_PC}, 2")
            p.s(f"s_cbranch_scc1 {name}_nojob{par}")
            p.label("@CUT")
        sc.fill("jr", cut, 8, before=mt(CPOS), early=0)
        sc.fill("jr", lambda p: p.s(f"s_add_u32 s{S_PO}, s{S_PO}, 64"), 4)
        for i in range(8):
            a = acc(i)
            dl = mt(32 * i + 32 + 24)
            sc.fill("va", lambda p, a=a: p.cvtpk(a, a, a + 1), 4, after=dict(tag=("P", i, 15, 1), delay=4), before=dl, lead=10)
            sc.fill("va", lambda p, a=a: p.cvtpk(a + 1, a + 2, a + 3), 4)
            sc.fill("va", lambda p, a=a: p.cvtpk(a + 2, a + 4, a + 5), 4)
            sc.fill("va", lambda p, a=a: p.cvtpk(a + 3, a + 6, a + 7), 4, tag=("CV", i), before=dl, lead=10)
            def st(p, a=a, i=i):
                if "O" not in ABL: p.store(a, 4, V_SA, SRD_WS, f"s{S_ST+i}", 0, tag=("ps", i), flags=E("SFL", "sc1"))
            sc.fill("st", st, 8, after=("CV", i), before=dl, lead=20, tag=("ST", i), solo=SOLO)
        sc.fill("va", lambda p: p.vop("v_add_u32", V_SA, f"{4 * 40960}", V_SA), 4, after=("ST", 7))
        sc.fill("fl", lambda p: flag(p, 64, ("ps", 0)), 16, before=mt(FPOS), early=0)
        sc.fill("fl", lambda p: p.s(f"s_add_u32 s{S_FO}, s{S_FO}, 64"), 4)
        sc.fill("fl", lambda p: p.s(f"s_add_u32 s{S_PC}, s{S_PC}, 1"), 4, after=mt(270))
        sc.run()
        if par == 0:
            q.s(f"s_cmp_eq_u32 s{S_PC}, 5")
            q.s(f"s_cbranch_scc1 {name}_ptail")
        else: q.s(f"s_branch {name}_pass0")
        k = next(i for i, x in enumerate(q.ins) if x.text.startswith("@CUT"))
        q2 = Prog(); q2.label(f"{name}_nojob{par}"); q2.ins += q.ins[k + 1:]; q.ins = q.ins[:k]
        blk = Prog()
        poll_check(blk, f"{name}_pp{par}", V_FA, f"s{S_PO}", 0, PT)
        a = OWN + 24
        for g in range(7):
            for e in range(2): blk.mfma(a + 4 * e, SEL + 2 - 2 * e, JB[0] + 4 * g, a + 4 * e)
            job_loads(blk, S_J, [jo(0)[g]], JB[0] + 4 * g)
        blk.s(f"s_add_u32 s{S_J}, s{S_J}, {4 * 40960}")
        blk.s(f"s_cmp_eq_u32 s{S_PC}, 2")
        blk.s(f"s_cselect_b32 s{S_T0}, {OOB:#x}, s{S_JO}")
        blk.s(f"s_add_u32 s{S_JO}, s{S_JO}, 64")
        blk.wait_lgkm0()
        for r in range(4): blk.cvtpk(a + r, a + 2 * r, a + 2 * r + 1)
        blk.store(a, 4, V_OA, SRD_OUT, f"s{S_T0}", 0, tag="out", flags=E("OFL", ""))
        return q, blk, q2
    p.wait_lgkm0()
    pre = p
    pe, po = one_pass(0), one_pass(1)
    p = Prog()
    p.label(f"{name}_ptail")
    stamp(p, 17)
    poll_issue(p, V_FA, f"s{S_PO}", 0, PT)
    f2 = job_reduce(p, S_JO, 0, [JB[0] + 4 * g for g in range(7)], OWN + 16, False)
    flag(p, 64, ("ps", 7))
    poll_check(p, f"{name}_pp3", V_FA, f"s{S_PO}", 0, PT, 0)
    job_loads(p, S_J, jo(0), JB[0])
    job_loads(p, S_J8, [(g >> 2) * PARTH + (g & 3) * 40960 for g in range(8)], JB[1])
    poll_issue(p, V_FA, f"s{S_PO}", 64, PT)
    f2()
    stamp(p, 18)
    stamp(p, 19)
    poll_check(p, f"{name}_pp4", V_FA, f"s{S_PO}", 64, PT, 0)
    stamp(p, 20)
    job_loads(p, S_J, jo(1), POOL[8])
    f3 = job_reduce(p, S_JO, 64, [JB[0] + 4 * g for g in range(7)], OWN + 8, False)
    f8 = job_reduce(p, S_JO8, 0, [JB[1] + 4 * g for g in range(8)], A8, True)
    f3(); f8()
    job_reduce(p, S_JO, 128, POOL[8:15], OWN, False)()
    if PROF:
        p.wait_all()
        stamp(p, 21)
        p.s(f"s_getreg_b32 s{S_TM}, hwreg(HW_REG_HW_ID)")
        p.s(f"s_getreg_b32 s{S_TM+1}, hwreg(HW_REG_XCC_ID)")
        p.raw(f"v_writelane_b32 v0, s{S_TM}, 24")
        p.raw(f"v_writelane_b32 v0, s{S_TM+1}, 25")
        p.s(f"s_lshl_b32 s{S_T0}, s2, 2")
        p.s(f"s_add_u32 s{S_T0}, s{S_T0}, s{S_W}")
        p.s(f"s_lshl_b32 s{S_T0}, s{S_T0}, 8")
        p.s(f"s_add_u32 s{S_T0}, s{S_T0}, {PROFOFF}")
        p.vop("v_lshrrev_b32", PT, "2", V_LIN)
        p.store(0, 1, PT, SRD_WS, f"s{S_T0}", 0)
        p.s(f"s_add_u32 s{S_T0}, s{S_T0}, 0x40000")
        p.store(255, 1, PT, SRD_WS, f"s{S_T0}", 0)
        if PROF == 5:
            p.s(f"s_cmp_lg_u32 s2, 77")
            p.s(f"s_cbranch_scc1 {name}_end")
            p.s(f"s_cmp_lg_u32 s{S_W}, 0")
            p.s(f"s_cbranch_scc1 {name}_end")
            p.raw("v_readlane_b32 s56, v0, 0")
            for k, ix in enumerate([23, 1, 2, 5, 6, 9, 10, 16, 17, 18, 20, 21]):
                p.raw(f"v_readlane_b32 s57, v0, {ix}")
                p.raw("s_nop 3")
                p.s("s_sub_u32 s57, s57, s56")
                p.raw(f"v_mov_b32 v30, s57")
                p.raw(f"buffer_store_dword v30, off, s[{SRD_DBG}:{SRD_DBG+3}], 0 offset:{8 + 4 * k}")
                p.raw("s_nop 1")
    p.label(f"{name}_end")
    p.raw("s_endpgm")
    return [pre, *pe, *po, p], [pre, pe[0], pe[2], po[0], po[2], *pe, *po, *pe, p]

def gen(name):
    pro = prologue(name)
    Q = qmod(name)
    AE = aentry(name)
    A = [amod(name, qh) for qh in range(2)]
    F, FB = afin(name)
    P, PS = pmod(name)
    SL, SLS = slow(name)
    segs = [pro, Q, AE, A[0], A[1], F, FB] + P + SL
    sims = [[(x, 1) for x in [pro, Q, AE, A[qh], F, FB, AE, A[qh], F] + PS] for qh in range(2)]
    sims.append([(x, 1) for x in [F] + SLS + PS])
    lines, stats = finalize([(x, 1) for x in segs], sims=sims)
    if int(E("ROLL", "1")):
        lines = roll(lines, "; ---- a step", 8, S_LOOP, f"{name}_aloop")
        lines = roll(lines, "; ---- q step", 4, S_LOOP, f"{name}_qloop")
    lines += [f".if {name}_end-{name}_nononce < {int(E('CPN0', '7')) * 8192}", '.error "code prefetch range"', ".endif"]
    return [f".globl {name}", ".p2align 8", f".type {name},@function", f"{name}:"] + lines, stats
```

```python
from asmlib import *
import math, struct, os
E = os.environ.get
PROF = int(E("PROF", "0"))
ABL = E("ABL", "")
def f2u(f): return struct.unpack("<I", struct.pack("<f", f))[0]
CSCALE = math.log2(math.e) / math.sqrt(128.0)
NWG = 256
LDS_BYTES = 163840
XSL = 18432
XRING = 131072
XALT = 65536 - XSL
WRING = 65536
MISC = 147456
def IMG(kq): return (kq >> 3) * 73728 + (kq & 3) * 18432 + ((kq >> 2) & 1) * 9216
DROP = 0x30000
OOB = 0x40000000
WOT = 0
PART = 128 * 40960
PARTH = 20 * 40960
PARTB = 2 * PARTH
WFLG = PART + 32 * PARTB
PFLG = WFLG + 8192
WSBYTES = PFLG + 65536
PROFOFF = 0x4000000

SRD_X, SRD_K, SRD_V, SRD_W, SRD_WS, SRD_WO, SRD_OUT, SRD_DBG = 8, 12, 16, 20, 24, 28, 32, 36
S_W = 3
S_T0, S_T1, S_B, S_G, S_P, S_T2 = 40, 41, 42, 43, 44, 45
S_CS, S_NON, S_SPIN, S_PH, S_GRP, S_SO = 46, 48, 50, 51, 52, 53
S_BAD = 54
S_KOFF, S_VOFF, S_KB, S_KVN, S_M0KV, S_WFP = 56, 57, 58, 59, 60, 61
S_WOFF, S_WB, S_XOFF, S_XB = 62, 63, 65, 66
S_M0W, S_M0X8 = 75, 72
S_WT, S_PT, S_PF, S_RD, S_OUTO = 76, 77, 78, 79, 80
S_LO, S_HI = 81, 82
S_TM = 84
S_VB = 88
S_M0KVP, S_KVP, S_M0D, S_U = 89, 91, 94, 95
S_LOOP = 92
S_WT2 = 98

V_DK, V_DV, V_DW, V_DX = 1, 5, 9, 13
V_AK, V_AV0, V_AV1, V_AX, V_AX8, V_LIN = 18, 19, 20, 21, 22, 24
V_E0, V_E1, V_E2 = 25, 26, 27
V_S = 28
V_AW = V_S + 40
V_O = 84
V_T = 244
V_DA = V_T + 3
V_NV = 252
V_JUNK = 254
A_Q, A_QN, A_L, A_ONE, A_POOL, A_X = 256, 336, 416, 436, 440, 472
A_QP = 480
NPOOL = 8
def Qf(n, ks, base=A_Q): return base + (n * 4 + ks) * 4
def Oa(n, m): return V_O + (n * 8 + m) * 4
def XS(par, n): return V_S + (par * 4 + n) * 4 if n < 4 else V_S + 48
def YS(n): return V_S + 32 + n * 4 if n < 4 else V_S + 52
def La(n): return A_L + 4 * n
def Xf(st, t): return V_S + (st * 5 + t) * 4
def QA(r, n, m): return (A_QN if r else V_O) + (n * 8 + m) * 4

def stamp(p, idx, dyn=None):
    if not PROF: return
    p.s(f"s_memrealtime s[{S_TM}:{S_TM+1}]")
    p.s(f"s_memtime s[{S_TM+2}:{S_TM+3}]")
    p.wait_lgkm0()
    if dyn is None:
        p.raw(f"v_writelane_b32 v0, s{S_TM}, {idx}")
        p.raw(f"v_writelane_b32 v255, s{S_TM+2}, {idx}")
    else:
        p.s("s_mov_b32 s99, m0")
        p.s(f"s_lshl_b32 m0, s{dyn}, 2")
        p.s(f"s_add_u32 m0, m0, {idx}")
        p.raw(f"v_writelane_b32 v0, s{S_TM}, m0")
        p.raw(f"v_writelane_b32 v255, s{S_TM+2}, m0")
        p.s("s_mov_b32 m0, s99")

KVSEQ = [("K", 0)]
for u in range(15): KVSEQ += [("K", u + 1), ("V", u)]
KVSEQ += [("V", 15)]
KVPOS = {t: i for i, t in enumerate(KVSEQ)}
DYN = (10, 30)
SRD_C = SRD_WO
S_ROT, S_C, S_D = S_KOFF, S_VOFF, S_VB
def kv_ops(pos):
    pre = pos >= 32; pos %= 32
    kind, u = KVSEQ[pos]
    dyn = DYN[0] <= pos <= DYN[1] and not pre
    ops = []
    for j in range(4):
        def f(p, j=j):
            if dyn:
                if j == 0:
                    if pos == DYN[0]:
                        p.s(f"s_add_u32 s{S_C}, s{S_ROT}, {u * 8192}")
                        p.s(f"s_and_b32 s{S_C}, s{S_C}, 0x1ffff")
                        p.s(f"s_mov_b32 s{S_D}, {16384 if kind == 'V' else -8192}")
                        p.s(f"s_mov_b32 s{S_M0D}, {(pos % 8) * 16384}")
                    p.s(f"s_cmp_gt_i32 s{S_D}, 0")
                    p.s(f"s_cselect_b64 s[{SRD_C}:{SRD_C+1}], s[{SRD_V}:{SRD_V+1}], s[{SRD_K}:{SRD_K+1}]")
                    p.s(f"s_add_u32 m0, s{S_M0KV}, s{S_M0D}")
                    p.s(f"s_add_u32 s{S_SO}, s{S_KB}, s{S_C}")
                if "D" not in ABL: p.dmao(V_DV + j, SRD_C, f"s{S_SO}", j * 1024, (kind, u), "nt")
                if j == 0: p.s(f"s_add_u32 s{S_C}, s{S_C}, s{S_D}")
                if j == 1:
                    p.s(f"s_and_b32 s{S_C}, s{S_C}, 0x1ffff")
                    p.s(f"s_sub_u32 s{S_D}, 8192, s{S_D}")
                if j == 2:
                    p.s(f"s_add_u32 s{S_M0D}, s{S_M0D}, 16384")
                    p.s(f"s_and_b32 s{S_M0D}, s{S_M0D}, 0x1ffff")
                return
            if j == 0:
                if pre: p.s(f"s_add_u32 m0, s{S_M0KVP + (pos >> 2)}, {(pos % 4) * 16384}")
                else: p.s(f"s_add_u32 m0, s{S_M0KV}, {(pos % 8) * 16384}")
                p.s(f"s_add_u32 s{S_SO}, s{S_ROT}, {u * 8192}")
                p.s(f"s_and_b32 s{S_SO}, s{S_SO}, 0x1ffff")
                p.s(f"s_add_u32 s{S_SO}, s{S_SO}, s{S_KVP if pre else S_KB}")
            if "D" not in ABL: p.dmao(V_DV + j, SRD_K if kind == "K" else SRD_V, f"s{S_SO}", j * 1024, (kind, u), "nt")
        ops.append((f, 8))
    return ops
def w_ops(h):
    ops = []
    for j in range(4):
        def f(p, j=j):
            if j == 0:
                p.s(f"s_add_u32 m0, s{S_M0W}, {(h % 4) * 16384}")
                p.s(f"s_add_u32 s{S_SO}, s{S_WB + (h & 1)}, s{S_WOFF}")
            if "W" not in ABL: p.dmao(V_DW + j, SRD_W, f"s{S_SO}", j * 1024, ("W", h))
            if j == 1 and h % 2 == 1: p.s(f"s_add_u32 s{S_WOFF}, s{S_WOFF}, {32 * 8192}")
            if j == 2 and h % 4 == 3:
                p.s(f"s_cmp_ge_u32 s{S_WOFF}, {640 * 8192}")
                p.s(f"s_cselect_b32 s{S_WOFF}, 0, s{S_WOFF}")
        ops.append((f, 12 if j == 0 or (j == 2 and h % 4 == 3) else 8 if j == 1 and h % 2 else 4))
    return ops
def x_ops(i):
    ops = []
    sb = XRING if i else XALT
    for j in range(5):
        def f(p, j=j):
            if j == 0:
                p.s(f"s_add_u32 m0, s{S_M0KV}, {sb}")
                p.s(f"s_add_u32 s{S_SO}, s{S_XB}, s{S_XOFF}")
            if "X" not in ABL: p.dmao(V_DX + j, SRD_X, f"s{S_SO}", (j & 3) * 1024, ("X", i), E("XFL", ""))
            if j == 1: p.s(f"s_add_u32 s{S_XOFF}, s{S_XOFF}, 128")
            if j == 2:
                p.s(f"s_cmp_ge_u32 s{S_XOFF}, 1280")
                p.s(f"s_cselect_b32 s{S_XOFF}, 0, s{S_XOFF}")
            if j == 3:
                p.s(f"s_add_u32 m0, s{S_M0X8}, {sb}")
                p.nop(0)
        ops.append((f, 12 if j in (0, 2, 3) else 8 if j == 1 else 4))
    return ops

SRD_E = 4
S_EM, S_ED, S_TAB, S_ES, S_WEND, S_EW = 67, 68, 69, 70, 71, 73
STG = 0x26000
V_WR = V_O + 144
EKP = [int(x) for x in E("EKP", "1,2,1,2").split(",")]
PFP = [int(x) for x in E("PFP", "")]; PFN = len(PFP)
PFS = int(E("PFS", "1"))
S_PFO, S_PFB = 74, 83
def ek_ops(h):
    it = h // 4
    tag = KVSEQ[(it - 1) // 2]
    def kp(p):
        p.s(f"s_and_b32 s{S_ES}, s{S_TAB}, 0x7000")
        p.s(f"s_add_u32 s{S_ES}, s{S_ES}, s{S_ROT}")
        p.s(f"s_and_b32 s{S_ES}, s{S_ES}, 0x1ffff")
        p.s(f"s_add_u32 s{S_ES}, s{S_ES}, s{S_KVP}")
        p.s(f"s_bitcmp1_b32 s{S_TAB}, 15")
        p.s(f"s_cselect_b64 s[{SRD_E}:{SRD_E+1}], s[{SRD_V}:{SRD_V+1}], s[{SRD_K}:{SRD_K+1}]")
        p.s(f"s_lshr_b32 s{S_T0}, s{S_TAB}, 4")
        p.s(f"s_lshl_b32 s{S_TAB}, s{S_TAB}, 28")
        p.s(f"s_or_b32 s{S_TAB}, s{S_TAB}, s{S_T0}")
    def k0(p):
        p.s(f"s_add_u32 m0, s{S_M0KV}, s{S_EM}")
        if "D" not in ABL: p.dmao(V_DV, SRD_E, f"s{S_ES}", 0, tag, "nt")
    def k1(p):
        p.s(f"s_add_u32 m0, s{S_M0KV}, s{S_EM}")
        p.s(f"s_add_u32 s{S_EM}, s{S_EM}, s{S_ED}")
        if "D" not in ABL: p.dmao(V_DV + 1, SRD_E, f"s{S_ES}", 1024, tag, "nt")
        p.s(f"s_xor_b32 s{S_ED}, s{S_ED}, {2048 ^ 14336}")
    def wo(p):
        p.s(f"s_mov_b32 m0, s{S_EW}")
        p.s(f"s_bitcmp1_b32 s{S_WEND}, 0")
        p.s(f"s_cselect_b32 s{S_T0}, s{S_WT}, {OOB:#x}")
        p.dmao(V_DX, SRD_WO, f"s{S_T0}", 0, ("WOP", it), E("WOFL", "nt"))
        p.s(f"s_xor_b32 s{S_EW}, s{S_EW}, 4096")
        p.s(f"s_lshr_b32 s{S_WEND}, s{S_WEND}, 1")
        p.s(f"s_add_u32 s{S_WT}, s{S_WT}, 128")
    def none(p): p.add(Ins(f"buffer_load_dword v{V_JUNK}, off, s[{SRD_DBG}:{SRD_DBG+3}], 0 offset:256", "vm", [], [], tag="none"))
    def pf(srd, du, j, last):
        def f(p):
            p.s(f"s_add_u32 s{S_T0}, s{S_PFO}, {du * 8192}")
            p.s(f"s_and_b32 s{S_T0}, s{S_T0}, 0x1ffff")
            p.s(f"s_add_u32 s{S_T0}, s{S_T0}, s{S_PFB}")
            p.add(Ins(f"buffer_load_dword v{V_JUNK}, v{V_DV + j}, s[{srd}:{srd+3}], s{S_T0} offen offset:{j * 1024} {E('PFFL', '')}", "vm", [V_DV + j], [], tag="pf"))
            if last:
                p.s(f"s_add_u32 s{S_PFO}, s{S_PFO}, {8192 * PFN // 2}")
                p.s(f"s_bitcmp1_b32 s{S_WEND}, 16")
                p.s(f"s_cselect_b32 s{S_PFB}, s{S_KVP}, {OOB:#x}")
        return f
    fs = [k0, k1, wo, None, kp] if it else [none if x else None for x in EKP[:3]] + [None, kp]
    fs += [pf(SRD_K if k & 1 else SRD_V, (5 if k & 1 else 3) + (k >> 1), 3, k == PFN - 1) if it else (none if PFP[k] else None) for k in range(PFN)]
    fs += [code_touch] * len(CPQ)
    return [(f, 8) for f, x in zip(fs, EKP + [3] + PFP + CPQ) if f and x == h % 4]
def wst(p):
    for i in range(5):
        p.store(A_Q + 16 - 4 * i, 4, V_LIN, SRD_WS, f"s{S_PT}", 0, tag="wst", flags="sc1")
        if i < 4: p.s(f"s_add_u32 s{S_PT}, s{S_PT}, 4096")

def split_ops(ops):
    q = Prog()
    for f, _ in ops: f(q)
    out = []; i = 0; L = [x for x in q.ins if x.kind != "nop"]
    while i < len(L):
        grp = [L[i]]
        if L[i].text.startswith(("s_cmp", "s_bitcmp")): grp.append(L[i + 1])
        i += len(grp)
        out.append((lambda p, grp=grp: [p.add(x) for x in grp], "vm" if grp[0].kind in ("vm", "vml", "vms") else "s", 4 * len(grp)))
    return out
def fill_dma(sc, ops, after, before, tag=None, queue="dma", lead=80):
    so = split_ops(ops)
    for k, (fn, kind, cost) in enumerate(so):
        sc.fill(queue, fn, 8 if kind == "vm" else cost, after=after, before=before, lead=lead, solo=(kind == "vm" and SOLO), paced=(kind == "vm"),
                tag=tag if k == len(so) - 1 else None)
SOLO = int(E("SOLO", "1"))
T7 = int(E("T7", "0"))
def sprinkle(progs, ops, lo=0.0, hi=1.0):
    pts = []
    for p, st in progs:
        masked = False
        for i in range(st, len(p.ins)):
            x = p.ins[i]
            if x.text.startswith("s_mov_b64 exec"): masked = not x.text.endswith("-1")
            if x.kind == "label" and not x.text.startswith(";"): break
            if x.kind in ("valu", "perm") and not masked and p.ins[i - 1].kind in ("valu", "perm") and "v_cmp" not in x.text and "v_cmp" not in p.ins[i - 1].text: pts.append((p, i))
    a, b = int(lo * len(pts)), int(hi * len(pts))
    sel = [pts[a + (k * (b - a)) // len(ops)] for k in range(len(ops))]
    for (p, i), (fn, _) in reversed(list(zip(sel, ops))):
        q = Prog(); fn(q)
        p.ins[i:i] = q.ins

V_CP = 2
CPO = int(E("CPO", "1536"))
CPQ = [int(x) for x in E("CPQ", "2")]
CPA = [int(x) for x in E("CPA", "").split(",") if x]
def code_addr(p, name, L):
    p.s(f"s_getpc_b64 s[{S_TM}:{S_TM+1}]")
    p.label(f"{name}_pc")
    p.s(f"s_lshr_b32 s{S_T0}, s2, 1")
    p.s(f"s_and_b32 s{S_T0}, s{S_T0}, 0x7c")
    p.s(f"s_add_u32 s{S_T0}, s{S_T0}, s{S_W}")
    p.s(f"s_lshl_b32 s{S_T0}, s{S_T0}, 9")
    p.s(f"s_add_u32 s{S_T0}, s{S_T0}, {CPO}")
    p.s(f"s_add_u32 s{S_TM}, s{S_TM}, s{S_T0}")
    p.s(f"s_addc_u32 s{S_TM+1}, s{S_TM+1}, 0")
    p.raw(f"v_and_b32 v{V_CP}, 3, v{L}")
    p.raw(f"v_lshlrev_b32 v{V_CP}, 7, v{V_CP}")
    p.raw(f"v_mov_b32 v{V_CP+1}, s{S_TM+1}")
    p.raw(f"v_add_co_u32 v{V_CP}, vcc, s{S_TM}, v{V_CP}")
    p.raw("s_nop 1")
    p.raw(f"v_addc_co_u32 v{V_CP+1}, vcc, 0, v{V_CP+1}, vcc")
def code_touch(p): p.add(Ins(f"global_load_dword v{V_JUNK}, v[{V_CP}:{V_CP+1}], off", "vm", [], [], tag="code"))

def get_nonce(p, name, t):
    p.add(Ins(f"v_readfirstlane_b32 s{S_NON}, v{V_NV}", "rfl", [V_NV], []))
    p.add(Ins(f"v_readfirstlane_b32 s{S_NON+1}, v{V_NV+1}", "rfl", [V_NV + 1], []))
    p.s(f"s_cmp_lt_i32 s{S_NON+1}, 0")
    p.s(f"s_cbranch_scc1 {name}_x")
    p.vop("v_mov_b32", t + 2, "0")
    p.label(f"{name}")
    p.raw(f"buffer_load_dwordx2 v[{t}:{t+1}], v{t+2}, s[{SRD_DBG}:{SRD_DBG+3}], 0 offen sc1")
    p.raw("s_waitcnt vmcnt(0)")
    p.raw(f"v_readfirstlane_b32 s{S_NON}, v{t}")
    p.raw(f"v_readfirstlane_b32 s{S_NON+1}, v{t+1}")
    p.s(f"s_sub_u32 s{S_SPIN}, s{S_SPIN}, 1")
    p.s(f"s_cbranch_scc1 {name}_x")
    p.s(f"s_cmp_lt_i32 s{S_NON+1}, 0")
    p.s(f"s_cbranch_scc0 {name}")
    p.label(f"{name}_x")
    p.nop(1)

def publish(p, soff, off, t):
    p.vop("v_mov_b32", t, f"s{S_NON}")
    p.vop("v_mov_b32", t + 1, f"s{S_NON+1}")
    p.s("s_mov_b64 exec, 1")
    p.store(t, 2, V_LIN, SRD_WS, soff, off, tag="flag", flags="sc1")
    p.s("s_mov_b64 exec, -1")

def poll_issue(p, vaddr, soff, off, t):
    p.add(Ins(f"buffer_load_dwordx2 v[{t}:{t+1}], v{vaddr}, s[{SRD_WS}:{SRD_WS+3}], {soff} offen offset:{off} sc1", "vml", [vaddr], [t, t + 1], tag="poll"))
def poll_check(p, name, vaddr, soff, off, t, slp=2):
    p.label(f"{name}")
    p.add(Ins(f"v_cmp_ne_u32 vcc, s{S_NON}, v{t}", "valu", [t], []))
    p.add(Ins(f"v_cmp_ne_u32 s[{S_TM+2}:{S_TM+3}], s{S_NON+1}, v{t+1}", "valu", [t + 1], []))
    p.s(f"s_or_b64 vcc, vcc, s[{S_TM+2}:{S_TM+3}]")
    p.s(f"s_cbranch_scc0 {name}_ok")
    p.s(f"s_sub_u32 s{S_SPIN}, s{S_SPIN}, 1")
    p.s(f"s_cbranch_scc1 {name}_ok")
    if slp: p.s(f"s_sleep {slp}")
    p.raw(f"buffer_load_dwordx2 v[{t}:{t+1}], v{vaddr}, s[{SRD_WS}:{SRD_WS+3}], {soff} offen offset:{off} sc1")
    p.raw("s_waitcnt vmcnt(0)")
    p.s(f"s_branch {name}")
    p.label(f"{name}_ok")

def prologue(name):
    p = Prog()
    p.s(f"s_cmp_ge_u32 s2, {NWG}")
    p.s(f"s_cbranch_scc1 {name}_end")
    p.s("s_load_dwordx8 s[84:91], s[0:1], 0")
    p.s("s_load_dwordx8 s[92:99], s[0:1], 32")
    T = V_O
    W, L, a, b, c, d, U, P, VV, R8, PI, M, G, cv = range(T, T + 14)
    p.vop("v_lshrrev_b32", W, "6", 0)
    p.vop("v_and_b32", L, "63", 0)
    p.add(Ins(f"v_readfirstlane_b32 s{S_W}, v{W}", "rfl", [W], []))
    p.vop("v_and_b32", U, "1", W)
    p.vop("v_lshrrev_b32", P, "1", W)
    p.vop("v_lshrrev_b32", VV, "5", L)
    p.vop("v_bfe_u32", R8, L, "2", "3")
    p.vop("v_and_b32", PI, "3", L)
    p.s(f"s_movk_i32 s{S_T0}, 1280")
    p.vop("v_mul_lo_u32", a, R8, f"s{S_T0}")
    p.vop("v_lshl_add_u32", a, VV, "6", a)
    p.vop("v_xor_b32", c, "3", PI)
    p.vop("v_lshl_add_u32", V_DX, PI, "4", a)
    p.vop("v_lshl_add_u32", b, c, "4", a)
    p.vop("v_add_u32", V_DX + 1, f"{9216}", b)
    p.vop("v_add_u32", V_DX + 2, f"{2 * 9216}", V_DX)
    p.vop("v_add_u32", V_DX + 3, f"{3 * 9216}", b)
    p.vop("v_lshrrev_b32", d, "2", R8)
    p.vop("v_lshlrev_b32", cv, "1", d)
    p.vop("v_xor_b32", cv, cv, PI)
    p.vop("v_and_b32", b, "3", R8)
    p.vop("v_lshl_add_u32", b, d, "3", b)
    p.vop("v_lshlrev_b32", d, "7", U)
    p.vop("v_lshl_add_u32", d, VV, "6", d)
    p.vop("v_lshl_add_u32", b, b, "13", d)
    p.vop("v_lshl_add_u32", V_DW, cv, "4", b)
    for j in range(1, 4): p.vop("v_add_u32", V_DW + j, f"{(16 * (j & 1) + 4 * (j >> 1)) * 8192 - 1024 * j}", V_DW)
    p.vop("v_mul_u32_u24", b, "3", P)
    p.vop("v_xor_b32", b, b, PI)
    p.vop("v_lshl_add_u32", b, b, "4", a)
    p.vop("v_lshlrev_b32", a, "2", W)
    p.vop("v_sub_u32", a, P, a)
    p.vop("v_add_u32", a, "16", a)
    p.s(f"s_movk_i32 s{S_T1}, {8 * 1280}")
    p.vop("v_mul_lo_u32", a, a, f"s{S_T1}")
    p.vop("v_add_u32", a, a, b)
    p.vop("v_lshl_add_u32", V_DX + 4, U, "30", a)
    MAP = int(E("MAP", "0"))
    p.s(f"s_bfe_u32 s{S_T0}, s2, {(MAP << 16) | 3:#x}")
    p.s(f"s_lshr_b32 s{S_T2}, s2, {3 + MAP}")
    p.s(f"s_and_b32 s{S_G}, s2, {(1 << (3 - MAP)) - 1}")
    p.s(f"s_lshl_b32 s{S_G}, s{S_G}, {MAP}")
    p.s(f"s_or_b32 s{S_G}, s{S_G}, s{S_T0}")
    p.s(f"s_bfe_u32 s{S_B}, s2, {(MAP << 16) | (3 - MAP):#x}")
    p.s(f"s_lshl_b32 s{S_B}, s{S_B}, {5 - MAP}")
    p.s(f"s_or_b32 s{S_B}, s{S_B}, s{S_T2}")
    p.s(f"s_lshl_b32 s{S_T0}, s{S_T0}, {5 - MAP}")
    p.s(f"s_lshl_b32 s{S_T2}, s{S_T2}, {MAP}")
    p.s(f"s_add_u32 s{S_T2}, s{S_T2}, s{S_T0}")
    p.s(f"s_and_b32 s{S_T2}, s{S_T2}, 31")
    p.s(f"s_lshr_b32 s{S_P}, s{S_W}, 1")
    p.s(f"s_lshl_b32 s{S_M0KV}, s{S_W}, 12")
    p.s(f"s_add_u32 s{S_M0W}, s{S_M0KV}, {WRING}")
    p.s(f"s_lshl_b32 s{S_M0X8}, s{S_P}, 10")
    p.s(f"s_add_u32 s{S_M0X8}, s{S_M0X8}, 16384")
    p.s(f"s_bitcmp1_b32 s{S_W}, 0")
    p.s(f"s_cselect_b32 s{S_M0X8}, 0x1d000, s{S_M0X8}")
    p.s(f"s_lshl_b32 s{S_T0}, s{S_G}, 2")
    p.s(f"s_add_u32 s{S_T0}, s{S_T0}, s{S_P}")
    p.s(f"s_lshl_b32 s{S_WB}, s{S_T0}, 8")
    p.s(f"s_add_u32 s{S_WB+1}, s{S_WB}, 512")
    p.s(f"s_lshl_b32 s{S_T1}, s{S_B}, 5")
    p.s(f"s_add_u32 s{S_T0}, s{S_T0}, s{S_T1}")
    p.s(f"s_lshl_b32 s{S_KVN}, s{S_T0}, 17")
    p.s(f"s_mul_i32 s{S_T0}, s{S_T2}, 5")
    p.s(f"s_lshr_b32 s{S_T0}, s{S_T0}, 4")
    if not int(E("ROT", "1")): p.s(f"s_mov_b32 s{S_T0}, 0")
    p.s(f"s_lshl_b32 s{S_XOFF}, s{S_T0}, 7")
    p.s(f"s_lshl_b32 s{S_WOFF}, s{S_T0}, 19")
    p.s(f"s_mul_i32 s{S_XB}, s{S_B}, {144 * 1280}")
    p.s(f"s_mul_i32 s{S_T0}, s{S_W}, {32 * 1280}")
    p.s(f"s_add_u32 s{S_XB}, s{S_XB}, s{S_T0}")
    def srd(r, src, size):
        p.s(f"s_mov_b32 s{r+2}, {size:#x}")
        p.s(f"s_mov_b32 s{r+3}, 0x20000")
    def srd2(r, src):
        p.s(f"s_mov_b32 s{r}, s{src}")
        p.s(f"s_and_b32 s{r+1}, s{src+1}, 0xffff")
    SR = ((SRD_X, 84, 32 * 144 * 640 * 2), (SRD_W, 90, 640 * 4096 * 2), (SRD_K, 86, 1 << 27), (SRD_V, 88, 1 << 27),
          (SRD_WO, 92, 4096 * 640 * 2), (SRD_OUT, 94, 32 * 144 * 640 * 2), (SRD_DBG, 96, 256), (SRD_WS, 98, (1 << 28) if PROF else WSBYTES))
    for x in SR: srd(*x)
    p.s("s_waitcnt lgkmcnt(0)")
    for x in SR[:2]: srd2(*x[:2])
    for ops in (x_ops(0), w_ops(0), w_ops(1)):
        for f, _ in ops: f(p)
    for x in SR[2:]: srd2(*x[:2])
    stamp(p, 0)
    p.vop("v_lshlrev_b32", V_LIN, "4", L)
    code_addr(p, name, L)
    code_touch(p)
    p.vop("v_lshl_add_u32", b, R8, "8", d)
    p.vop("v_lshl_add_u32", V_DV, cv, "4", b)
    for j in range(1, 4): p.vop("v_add_u32", V_DV + j, f"{1024 * j}", V_DV)
    p.s(f"s_lshl_b32 s{S_T0}, s2, 1")
    p.s(f"s_add_u32 s{S_T0}, s{S_T0}, s{S_P}")
    p.s(f"s_mul_i32 s{S_T0}, s{S_T0}, {int(E('KROT', '5'))}")
    p.s(f"s_lshr_b32 s{S_T1}, s2, 3")
    p.s(f"s_add_u32 s{S_T0}, s{S_T0}, s{S_T1}")
    p.s(f"s_and_b32 s{S_T0}, s{S_T0}, {15 if int(E('KROT', '5')) else 0}")
    p.s(f"s_lshl_b32 s{S_KOFF}, s{S_T0}, 13")
    p.s(f"s_mov_b32 s{S_M0KVP}, s{S_M0KV}")
    p.s(f"s_mov_b32 s{S_M0KVP+1}, s{S_M0W}")
    p.s(f"s_mov_b32 s{S_KVP}, s{S_KVN}")
    p.s(f"s_mov_b32 s{S_EM}, 0")
    p.s(f"s_movk_i32 s{S_ED}, 2048")
    p.s(f"s_mov_b32 s{S_TAB}, 0x83210549")
    srd(SRD_E, 0, 1 << 27)
    p.s(f"s_and_b32 s{S_U}, s{S_W}, 1")
    p.s(f"s_lshl_b32 s{S_T0}, s{S_B}, 2")
    p.s(f"s_lshr_b32 s{S_T1}, s{S_G}, 1")
    p.s(f"s_add_u32 s{S_T0}, s{S_T0}, s{S_T1}")
    p.s(f"s_and_b32 s{S_T1}, s{S_G}, 1")
    p.s(f"s_lshl_b32 s{S_WFP}, s{S_T1}, 7")
    p.s(f"s_add_u32 s{S_WFP}, s{S_WFP}, s{S_T0}")
    p.s(f"s_lshl2_add_u32 s{S_WFP}, s{S_WFP}, s{S_W}")
    p.s(f"s_lshl3_add_u32 s{S_WFP}, s{S_WFP}, {WFLG}")
    p.s(f"s_mul_i32 s{S_T0}, s{S_T0}, 40960")
    p.s(f"s_mul_i32 s{S_PT}, s{S_T1}, 20480")
    p.s(f"s_add_u32 s{S_PT}, s{S_PT}, s{S_T0}")
    p.s(f"s_lshl_b32 s{S_EW}, s{S_W}, 10")
    p.s(f"s_add_u32 s{S_PT}, s{S_PT}, s{S_EW}")
    p.s(f"s_add_u32 s{S_EW}, s{S_EW}, {STG}")
    p.s(f"s_mul_i32 s{S_T1}, s{S_T1}, 640")
    p.s(f"s_add_u32 s{S_WT}, s{S_T1}, s{S_T0}")
    p.s(f"s_mul_i32 s{S_T1}, s{S_W}, {8 * 1280}")
    p.s(f"s_add_u32 s{S_WT}, s{S_WT}, s{S_T1}")
    p.s(f"s_mov_b32 s{S_WEND}, {0x7c | ((0xfff << (15 + PFS)) & 0x7fff0000):#x}")
    if PFN:
        p.s(f"s_sub_u32 s{S_PFO}, s{S_KOFF}, {8192 * PFN // 2 * (PFS - 1)}")
        p.s(f"s_mov_b32 s{S_PFB}, " + (f"s{S_KVP}" if PFS == 1 else f"{OOB:#x}"))
    if int(E("TOUCH", "1")):
        p.add(Ins(f"buffer_load_dword v{V_T+4}, off, s[{SRD_K}:{SRD_K+3}], s{S_KVN} nt", "vml", [], [V_T + 4], tag="touch"))
        p.add(Ins(f"buffer_load_dword v{V_T+5}, off, s[{SRD_V}:{SRD_V+3}], s{S_KVN} nt", "vml", [], [V_T + 5], tag="touch"))
        p.add(Ins(f"buffer_load_dword v{V_T+7}, off, s[{SRD_WS}:{SRD_WS+3}], s{S_PT} sc1", "vml", [], [V_T + 7], tag="touch"))
        if int(E("TOUCHO", "1")): p.add(Ins(f"buffer_load_dword v{V_T+6}, off, s[{SRD_WO}:{SRD_WO+3}], s{S_WT}", "vml", [], [V_T + 6], tag="touch"))
    p.s(f"s_sub_u32 s{S_WT}, s{S_WT}, 256")
    p.s(f"s_or_b32 s{S_T0}, s2, s{S_W}")
    p.s(f"s_cmp_lg_u32 s{S_T0}, 0")
    p.s(f"s_cbranch_scc1 {name}_nononce")
    p.s(f"s_memrealtime s[{S_NON}:{S_NON+1}]")
    p.s("s_waitcnt lgkmcnt(0)")
    p.s(f"s_or_b32 s{S_NON+1}, s{S_NON+1}, 0x80000000")
    p.raw(f"v_mov_b32 v{V_T}, s{S_NON}")
    p.raw(f"v_mov_b32 v{V_T+1}, s{S_NON+1}")
    p.s("s_mov_b64 exec, 1")
    p.raw(f"buffer_store_dwordx2 v[{V_T}:{V_T+1}], v{V_LIN}, s[{SRD_DBG}:{SRD_DBG+3}], 0 offen sc1")
    p.s("s_mov_b64 exec, -1")
    p.label(f"{name}_nononce")
    p.s(f"s_mov_b32 s{S_SPIN}, 0x40000")
    p.s(f"s_mov_b32 s{S_PH}, 0")
    if PROF in (2, 3): p.s("s_mov_b32 s93, 32")
    p.s(f"s_mov_b64 s[{S_BAD}:{S_BAD+1}], 0")
    p.s(f"s_mov_b32 s{S_CS}, {f2u(CSCALE):#x}")
    p.s(f"s_mov_b32 s{S_CS+1}, s{S_CS}")
    p.s(f"s_mov_b32 s{S_LO}, {f2u(2.0 ** -24):#x}")
    p.s(f"s_mov_b32 s{S_HI}, {f2u(2.0 ** 16):#x}")
    p.vop("v_and_b32", M, "15", L)
    p.vop("v_lshrrev_b32", G, "4", L)
    p.vop("v_lshrrev_b32", a, "3", M)
    p.vop("v_mul_u32_u24", c, "3", a)
    p.vop("v_xor_b32", c, c, G)
    p.vop("v_and_b32", b, "7", M)
    p.vop("v_lshlrev_b32", b, "6", b)
    p.vop("v_lshl_add_u32", b, c, "4", b)
    p.vop("v_lshl_add_u32", b, a, "10", b)
    p.vop("v_add_u32", V_AX8, f"{XRING}", b)
    p.vop("v_lshl_add_u32", V_AX, U, "13", V_AX8)
    p.vop("v_add_u32", V_AW + 5, f"{XALT}", b)
    p.vop("v_lshl_add_u32", V_AW + 4, U, "13", V_AW + 5)
    p.vop("v_and_b32", c, "0x1ff", V_LIN)
    p.vop("v_lshl_add_u32", c, VV, "10", c)
    p.vop("v_lshl_add_u32", c, P, "9", c)
    p.vop("v_lshl_add_u32", c, U, "3", c)
    p.vop("v_add_u32", V_WR, f"{STG + 4096}", c)
    p.vop("v_and_b32", b, "0xffffffcf", b)
    p.vop("v_bfe_u32", a, M, "2", "1")
    p.vop("v_lshlrev_b32", a, "1", a)
    p.vop("v_xor_b32", a, a, G)
    p.vop("v_lshl_add_u32", b, a, "4", b)
    p.vop("v_lshl_add_u32", V_AK, P, "13", b)
    p.vop("v_lshrrev_b32", a, "1", G)
    p.vop("v_lshlrev_b32", b, "10", a)
    p.vop("v_lshl_add_u32", b, R8, "6", b)
    p.vop("v_and_b32", c, "1", L)
    p.vop("v_lshl_add_u32", b, c, "3", b)
    p.vop("v_bfe_u32", c, L, "1", "1")
    p.vop("v_lshl_add_u32", b, c, "4", b)
    p.vop("v_and_b32", c, "1", G)
    p.vop("v_lshl_add_u32", b, c, "5", b)
    p.vop("v_lshl_add_u32", V_AV0, P, "13", b)
    p.vop("v_xor_b32", V_AV1, "32", V_AV0)
    p.vop("v_lshl_add_u32", a, U, "12", V_AV0)
    p.vop("v_xor_b32", b, "32", a)
    p.vop("v_xor_b32", c, "4096", a)
    p.vop("v_xor_b32", d, "4096", b)
    for i, r in enumerate((a, b, c, d)): p.vop("v_add_u32", V_AW + i, f"{WRING}", r)
    for ops in (w_ops(2), x_ops(1), w_ops(3)):
        for f, _ in ops: f(p)
    stamp(p, 23)
    return p

def R128(d, a, off): return lambda p: p.ds_read128(d, a, off)
def TR(d, a, off): return lambda p: p.ds_tr(d, a, off)

class Pool:
    def __init__(self, sc, base, n):
        self.sc = sc; self.regs = base if isinstance(base, list) else [base + 4 * k for k in range(n)]; n = len(self.regs); self.n = n; self.last = [None] * n; self.i = 0; self.frags = []
    def frag(self, tile, mk_reads, consumers, as_b=False):
        k = self.i % self.n; self.i += 1
        r = self.regs[k]
        war = self.last[k]
        for (d, o, c, tag) in consumers:
            if as_b: self.sc.mfma(d, o, r, c, tag)
            else: self.sc.mfma(d, r, o, c, tag)
        self.last[k] = consumers[-1][3]
        self.frags.append((tile, mk_reads(r), consumers[0][3], war))

LEAD = int(E("LEAD", "9"))
LEADB = int(E("LEADB", "8"))
BGAP = int(E("BGAP", "4"))

def sstamp(p):
    p.s(f"s_memrealtime s[{S_TM}:{S_TM+1}]")
    p.s(f"s_memtime s[{S_TM+2}:{S_TM+3}]")
    p.wait_lgkm0()
    p.s("s_mov_b32 s99, m0")
    p.s("s_mov_b32 m0, s93")
    p.s("s_add_u32 s93, s93, 1")
    p.raw(f"v_writelane_b32 v0, s{S_TM}, m0")
    p.raw(f"v_writelane_b32 v255, s{S_TM+2}, m0")
    p.s("s_mov_b32 m0, s99")

def qmod(name):
    p = Prog()
    KVS = [-1] * 4 + [int(x) for x in E("KVS", "37").split(",")]
    sc = Sched(p, budget=int(E("QBUD", "8")), late_extra=8)
    sc.group["dma"] = "vm"; sc.pace["vm"] = int(E("QPACE", "4"))
    sc.maxds = int(E("QMAXDS", "1"))
    pool = Pool(sc, A_QP, NPOOL)
    for h in range(40):
        r = h & 1; st = (h >> 1) & 1
        for k in range(8):
            off = (h % 4) * 16384 + ((k >> 1) & 1) * 512
            ad = V_AW + 2 * (k >> 2) + (k & 1)
            cons = [(QA(r, n, k), Xf(st, n), QA(r, n, k) if h > 1 else None, ("Q", h, k, n)) for n in range(5 if k < 4 else 4)]
            pool.frag(h, lambda rg: [TR(rg, ad, off), TR(rg + 2, ad, off + 2048)], cons)
    mt = lambda i: sc.m[max(0, min(i, len(sc.m) - 1))][4]
    XT = int(E("XT", "1")); A_XT = A_Q + 40
    def xreads(i, kh):
        return [R128(A_XT + 4 * n if (XT and kh and i) else Xf(kh, n), (V_AX if i else V_AW + 4) + (n >> 2), (n if n < 4 else 8) * 2048 + kh * 512) for n in range(5)]
    for fi, (h, reads, cons, war) in enumerate(pool.frags):
        c0 = 36 * h
        tau = c0 - LEADB
        taun = c0 + 36 - LEADB
        if fi % 8 == 0:
            def bar(p, h=h):
                p.comment(f"---- q step {h}")
                tags = [("W", h)]
                if h == 0: tags.append(("X", 0))
                if h % 4 == 3 and h < 39: tags.append(("X", (h + 1) // 4))
                if h % 4 == EKP[3] and 4 <= h < 36: tags.append(("WOP", h // 4 - 1))
                p.wait_vm(tags, lgkm0=True)
                if "b" not in ABL or h < 4: p.barrier()
                if PROF == 2 and h % 2 == 0: sstamp(p)
            ops = []
            if h % 4 == 1 - XT and 4 <= h < 36: ops += x_ops(h // 4 + 1)
            if 1 <= h < 37: ops += w_ops(h + 3)
            if "d" in ABL: ops = []
            nb = len(ops)
            if h < 36: ops = ek_ops(h) + ops if (h % 4 == 0 and int(E("EKF", "0"))) else ops + ek_ops(h)
            nb = len(ops) - nb
            if h % 4 == EKP[3] and 4 <= h < 36:
                for r in range(15, -1, -1): sc.fill("rw", lambda p, r=r: p.amov(A_Q + 4 + r, A_Q + r), 4, after=dict(tag=("BAR", h), delay=14))
                for i in range(2): sc.fill("rw", TR(A_Q + 2 * i, V_WR, i * 2048), 4, ds=True, before=mt(taun - BGAP), lead=2)
                sc.fill("rw", lambda p: p.vop("v_xor_b32", V_WR, "4096", V_WR), 4, before=mt(taun - 1))
            if h == 36 and "S" not in ABL: ops += [(wst, 20)]
            for k, x in enumerate(KVS):
                if x == h: ops += kv_ops(32 + k)
            sc.fill("rd", bar, 8, before=mt(tau), early=0 if h else None, tag=("BAR", h))
            QD = int(E("QD", "14")) - 4 * nb * int(E("QDE", "0")) if len(ops) - nb <= 4 else int(E("QD2", "0"))
            fill_dma(sc, ops, dict(tag=("BAR", h), delay=QD), mt(taun - 1))
            if h == 0:
                for k, fn in enumerate(xreads(0, 0)): sc.fill("rd", fn, 4, ds=True, before=mt(0))
            xr = []; aft = [("BAR", h)]
            if h % 4 == 3 and h < 39: xr = xreads((h + 1) // 4, 0)
            if XT and xr: xr += xreads((h + 1) // 4, 1)
            if XT and h % 4 == 0 and h:
                for r in range(20): sc.fill("cp", lambda p, r=r: p.ar(Xf(1, 0) + r, A_XT + r), 4, after=dict(tag=("Q", h - 1, 7, 3), delay=1), before=mt(c0 + 62), lead=0, early=int(E("XCE", "20")))
            elif h % 4 == 0:
                xr = xreads(h // 4, 1)
                if h: aft.append(("Q", h - 1, 7, 3))
            for j, fn in enumerate(xr):
                sc.fill("rx", fn, 4, ds=True, after=aft, before=mt(taun - BGAP), lead=(2 if XT else 3) * (len(xr) - j))
        for k, fn in enumerate(reads):
            if "r" in ABL and h >= 2: continue
            bf = cons
            if sc.idx[cons] > taun - BGAP: bf = mt(taun - BGAP)
            sc.fill("rd", fn, 4, ds=True, after=war if k == 0 else None, before=bf, lead=LEAD if bf is cons else 0, early=int(E("QEARLY", "99")))
    def lastbar(p):
        p.comment("---- q step 40")
        p.wait_lgkm0(); p.barrier()
        p.add(Ins(f"buffer_load_dwordx2 v[{V_NV}:{V_NV+1}], off, s[{SRD_DBG}:{SRD_DBG+3}], 0 sc1", "vml", [], [V_NV, V_NV + 1], tag="non"))
    sc.fill("rd", lastbar, 8, before=mt(36 * 40 - LEADB), early=0)
    sc.run()
    stamp(p, 1)
    fstart = len(p.ins)
    TB = V_O + 144
    cnt = [0]
    def fin(r, n, t, i):
        s0 = QA(r, n, 2 * t)
        if r:
            tb = TB + 8 * (cnt[0] & 1); cnt[0] += 1
            for x in range(8): p.ar(tb + x, s0 + x)
            s0 = tb
        dst = V_S + 4 * i
        for x in range(0, 8, 2): p.pkmul(s0 + x, s0 + x, f"s[{S_CS}:{S_CS+1}]")
        for x in range(4): p.cvtpk(dst + x, s0 + 2 * x, s0 + 2 * x + 1)
        return dst
    p.v(f"v_lshl_add_u32 v{V_E0}, s{S_W}, 12, v{V_LIN}", [V_E0], [V_LIN])
    p.vop("v_add_u32", V_E0, f"{XRING}", V_E0)
    p.vop("v_xor_b32", V_E1, "4096", V_E0)
    p.vop("v_and_b32", V_E2, "0xfffffcf0", V_E0)
    p.vop("v_bfe_u32", V_T, V_LIN, "9", "1")
    p.vop("v_lshl_add_u32", V_E2, V_T, "8", V_E2)
    p.vop("v_bfe_u32", V_T, V_LIN, "8", "1")
    p.vop("v_lshl_add_u32", V_E2, V_T, "3", V_E2)
    for r in range(2):
        for t in range(2): p.ds_write2(V_E2, fin(r, 4, t, 2 * r + t), (2 * r + t) * 1024)
    for r in range(2):
        base = A_QN if r else A_Q
        for n in range(4):
            FL = [int(x) for x in E("FLD", "02,02").split(",")[r]]
            ds = {}
            for t in range(4):
                ds[t] = fin(r, n, t, 4 + (n & 1) * 4 + t)
                if t in FL: p.ds_write2(V_E2, ds.pop(t), 16384 + t * 1024)
            for f in (p.swap32, p.swap16):
                for d in ds.values(): f(d, d + 2); f(d + 1, d + 3)
            for t in FL: p.ds_read128(Qf(n, t, base), V_E0, 16384 + t * 1024)
            for t, d in ds.items():
                for x in range(4): p.aw(Qf(n, t, base) + x, d + x)
            if r == 0 and n == 1:
                p.raw(f"s_waitcnt lgkmcnt({2 * len(FL)})"); p.barrier()
                for t in range(2): p.ds_read128(Qf(4, t), V_E0, t * 1024)
                for t in range(2): p.ds_read128(Qf(4, 2 + t), V_E1, t * 1024)
    for t in range(2): p.ds_read128(Qf(4, t, A_QN), V_E0, 2048 + t * 1024)
    for t in range(2): p.ds_read128(Qf(4, 2 + t, A_QN), V_E1, 2048 + t * 1024)
    p.vop("v_mov_b32", V_T, "0x3f803f80")
    for r in range(4): p.aw(A_ONE + r, V_T)
    sprinkle([(p, fstart)], sum([kv_ops(32 + k) for k in range(len(KVS), 8 - T7)], []), 0.0, float(E("QSH", "1.0")))
    stamp(p, 26)
    get_nonce(p, f"{name}_n1", V_T)
    stamp(p, 27)
    p.wait_vm("wst")
    stamp(p, 28)
    publish(p, f"s{S_WFP}", 0, V_T)
    stamp(p, 29)
    z = p
    z.s(f"s_mul_i32 s{S_WT}, s{S_G}, {16 * 40960}")
    z.s(f"s_mul_i32 s{S_T0}, s{S_W}, 10240")
    z.s(f"s_add_u32 s{S_WT}, s{S_WT}, s{S_T0}")
    z.s(f"s_lshl_b32 s{S_PF}, s{S_P}, 12")
    z.s(f"s_lshl_b32 s{S_T1}, s{S_G}, 9")
    z.s(f"s_add_u32 s{S_PF}, s{S_PF}, s{S_T1}")
    z.s(f"s_add_u32 s{S_PF}, s{S_PF}, {WFLG}")
    z.vop("v_lshrrev_b32", V_AX, "1", V_LIN)
    for n in range(5): z.vop("v_mov_b32", V_DA + n, f"{DROP:#x}")
    stamp(z, 2)
    return p

def a_mfmas(sc, pool, qh):
    AV = (V_AV0, V_AV1)
    has8 = lambda u: (u & 1) == qh
    for pos, (kind, u) in enumerate(KVSEQ):
        sb = (pos % 4) * 16384
        ns = [0, 1, 2, 3] + ([4] if has8(u) else [])
        if kind == "K":
            for kt in range(2):
                for ks in range(4):
                    off = sb + kt * 2048 + ((ks >> 1) ^ qh) * 4096 + (ks & 1) * 512
                    cons = []
                    for n in ns:
                        d = XS(u & 1, n) if kt == 0 else YS(n)
                        cons.append((d, Qf(n, ks), d if ks else None, ("S", u, kt, ks, n)))
                    pool.frag(pos, lambda r: [R128(r, V_AK, off)], cons)
        else:
            first = lambda n: u == 0 if n < 4 else u == qh
            for n in ns: sc.mfma(La(n), A_ONE, XS(u & 1, n), None if first(n) else La(n), ("L", u, n))
            for m in range(8):
                e, mp = m & 1, m >> 1
                off = sb + (mp >> 1) * 4096 + (mp & 1) * 512
                oa = lambda n: Oa(n, m if n < 4 else m ^ (4 * qh))
                cons = [(oa(n), XS(u & 1, n), None if first(n) else oa(n), ("PV", u, m, n)) for n in ns]
                pool.frag(pos, lambda r: [TR(r, AV[e], off), TR(r + 2, AV[e], off + 2048)], cons)

def a_taus():
    cs = []
    for qh in range(2):
        sc = Sched(Prog()); pool = Pool(sc, A_POOL, NPOOL); a_mfmas(sc, pool, qh)
        c = {}
        for (pos, _, cons, _) in pool.frags: c.setdefault(pos, sc.idx[cons])
        c[32] = len(sc.m) + LEADB - 3
        cs.append(c)
    return [min(cs[0][j], cs[1][j]) - LEADB for j in range(33)]

def aentry(name):
    p = Prog()
    p.label(f"{name}_A")
    p.s(f"s_mov_b32 s{S_KB}, s{S_KVN}")
    p.s(f"s_mov_b32 s{SRD_C+2}, 0x8000000")
    p.s(f"s_add_u32 s{S_KVN}, s{S_KVN}, {2 << 17}")
    p.s(f"s_cmp_eq_u32 s{S_PH}, 0")
    p.s(f"s_cselect_b32 s{S_M0KVP}, s{S_M0KV}, {DROP:#x}")
    p.s(f"s_cselect_b32 s{S_M0KVP+1}, s{S_M0W}, {DROP:#x}")
    p.s(f"s_cselect_b32 s{S_KVP}, s{S_KVN}, {OOB:#x}")
    p.s(f"s_cselect_b32 s{S_WT2}, {OOB:#x}, s{S_WT}")
    p.s(f"s_cmp_eq_u32 s{S_U}, 1")
    p.s(f"s_cbranch_scc1 {name}_A1")
    return p

def tile_addr(p, base, dst):
    p.s(f"s_lshl_b32 s{S_T0}, s{S_U}, 2")
    p.s(f"s_sub_u32 s{S_T0}, s{S_T0}, s{S_G}")
    for n in range(4):
        p.s(f"s_add_u32 s{S_T1}, s{S_T0}, {n + 7}")
        p.s(f"s_and_b32 s{S_T1}, s{S_T1}, 7")
        p.v(f"v_lshl_add_u32 v{dst+n}, s{S_T1}, 10, v{base}", [dst + n], [base])

def avm(pos):
    if pos >= 30: return None
    pat = [int(x) for x in E("AVM", "3,4").split(",")]
    h = [int(x) for x in E("AVMH", "").split(",") if x]
    if pos < len(h): return h[pos]
    return pat[pos % len(pat)] + (3 if 1 <= pos <= 4 else 0)
RQ = [int(x) for x in E("RQH", "3,3,3,3" if T7 else "0,3,3,2").split(",")] + [int(x) for k in "123" for x in E("RQ" + k, "43434343")] + [int(x) for x in E("RQT", "4,4,4,4").split(",")]
STREAM = sum([kv_ops(k) for k in range(8 - T7, 40 - T7)], [])
for s_ in range(32): assert sum(RQ[:s_ + 1]) <= 4 * (s_ + T7)
def amod(name, qh):
    p = Prog()
    p.label(f"{name}_A{qh}")
    sc = Sched(p, budget=int(E("ABUD", "8")), late_extra=int(E("ALATE", "8")))
    sc.group["dma"] = "vm"; sc.pace["vm"] = int(E("APACE", "2"))
    pool = Pool(sc, A_POOL, NPOOL)
    a_mfmas(sc, pool, qh)
    tau = a_taus()
    mt = lambda i: sc.m[max(0, min(i, len(sc.m) - 1))][4]
    def add_bar(pos):
        def bar(p, pos=pos):
            p.comment(f"---- a step {pos}")
            if pos < 32: p.wait_vm(KVSEQ[pos], lgkm0=True, cap=avm(pos))
            else: p.wait_lgkm0()
            p.barrier()
            if pos % 4 == 0 and pos:
                for r in (V_AV0, V_AV1, V_AK): p.vop("v_xor_b32", r, "0x10000", r)
            if PROF == 3 and pos % 2 == 0 and pos < 32: sstamp(p)
        sc.fill("rd", bar, 8, before=mt(tau[pos]), early=0 if pos else None, tag=("BAR", pos))
        if pos < 32:
            ops = STREAM[sum(RQ[:pos]):sum(RQ[:pos + 1])]
            aft = ("BAR", pos); bf = mt(tau[pos + 1] - 1)
            span = tau[pos + 1] - max(tau[pos], 0)
            if pos in CPA: ops = [(code_touch, 8)] + ops
            for k, op in enumerate(ops): fill_dma(sc, [op], dict(tag=aft, delay=(k * (span - 2)) // len(ops)), bf)
            if pos < 4:
                for k in range(3 * pos, 3 + 3 * pos):
                    for fn, kind, cost in split_ops([(wload(0, k, S_T2, S_WT2), 8)]):
                        sc.fill("dmp", fn, 8 if kind == "vm" else 4, after=dict(tag=aft, delay=5 + 9 * (k % 3)), solo=(kind == "vm"), before=bf, lead=20)
            if pos == 30:
                WLS = int(E("WLS", "6"))
                last = ("S", 15, 1, 3, 4 if qh == 1 else 3)
                for k in range(12):
                    for fn, kind, cost in split_ops([(wload(0, 12 + k, S_T2, S_WT2), 8)]):
                        sc.fill("dmp", fn, 8 if kind == "vm" else 4, after=dict(tag=last, delay=2 + WLS * k), solo=(kind == "vm"), before=mt(sc.idx[last] + 12 + WLS * k), lead=9)
            if 26 <= pos < 30:
                t = pos - 26
                ws = [(V_DA + n, Qf(n, t, A_QN), t * 18432 + 1024) for n in range(4)]
                if t >> 1 == qh: ws.append((V_DA + 4, Qf(4, t & 1, A_QN), (t & 1) * 18432))
                for k, w in enumerate(ws):
                    sc.fill("dw", lambda p, w=w: p.ds_write(w[0], w[1], 4, w[2]), 8, solo=True, after=dict(tag=aft, delay=4 + k * ((span - 10) // len(ws))), before=mt(tau[pos + 1] - BGAP), lead=12)
            if pos == 31:
                for f in range(8): sc.fill("dw", R128(P0_B[f], V_LIN, IMG(f)), 4, ds=True, after=dict(tag=aft, delay=16 + 2 * f), before=mt(tau[32] - BGAP), lead=4)
    cur = None
    for (pos, reads, cons, war) in pool.frags:
        if pos != cur:
            cur = pos; add_bar(pos)
        for k, fn in enumerate(reads):
            bf = cons
            if sc.idx[cons] > tau[pos + 1] - BGAP: bf = mt(tau[pos + 1] - BGAP)
            sc.fill("rd", fn, 4, ds=True, after=war if k == 0 else None, before=bf, lead=LEAD if bf is cons else 0)
    add_bar(32)
    def V(fn, after=None, before=None, cost=4, lead=0): sc.fill("va", fn, cost, after=after, before=before, lead=lead)
    EDL = int(E("EDL", "3"))
    for u in range(16):
        ns = [0, 1, 2, 3] + ([4] if (u & 1) == qh else [])
        for kt in range(2):
            for n in ns:
                src = XS(u & 1, n) if kt == 0 else YS(n)
                dst = XS(u & 1, n) + 2 * kt
                for r in range(4):
                    V(lambda p, reg=src + r: p.exp(reg, reg), after=dict(tag=("S", u, kt, 3, n), delay=EDL), cost=8)
                bf = ("L", u, n)
                if kt == 1 and n < 4 and u < 15: bf = ("S", u + 1, 1, 0, n)
                V(lambda p, dst=dst, src=src: p.cvtpk(dst, src, src + 1))
                V(lambda p, dst=dst, src=src: p.cvtpk(dst + 1, src + 2, src + 3), before=bf, lead=2)
    sc.run()
    p.s(f"s_cmp_eq_u32 s{S_PH}, 0")
    p.s(f"s_cbranch_scc0 {name}_P0")
    if qh == 0: p.s(f"s_branch {name}_F")
    return p

RL, CHK, PX, AD, AL = V_S + 2, V_S + 12, V_S + 16, V_S + 48, V_S + 50
def f_addr(p):
    p.v(f"v_lshl_add_u32 v{AD}, s{S_W}, 12, v{V_LIN}", [AD], [V_LIN])
    p.vop("v_add_u32", AD, f"{MISC}", AD)
    p.vop("v_xor_b32", AD + 1, "4096", AD)
def f_bad(op, a, b):
    def f(p):
        p.add(Ins(f"{op} vcc, v{a}, {b}", "valu", [a], []))
        p.s(f"s_or_b64 s[{S_BAD}:{S_BAD+1}], s[{S_BAD}:{S_BAD+1}], vcc")
    return f
def f_rcp(n): return [lambda p: p.vop("v_rcp_f32", RL + 2 * n, RL + 2 * n, kind="trans"), lambda p: p.vop("v_mov_b32", RL + 2 * n + 1, RL + 2 * n)]
def f_range():
    return [lambda p: p.vop("v_max3_f32", V_S, RL, RL + 2, RL + 4), lambda p: p.vop("v_min3_f32", V_S + 1, RL, RL + 2, RL + 4),
            lambda p: p.vop("v_max3_f32", V_S, V_S, RL + 6, RL + 8), lambda p: p.vop("v_min3_f32", V_S + 1, V_S + 1, RL + 6, RL + 8),
            f_bad("v_cmp_nle_f32", V_S, f"s{S_HI}"), f_bad("v_cmp_nge_f32", V_S + 1, f"s{S_LO}")]
def f_fin(): return [lambda p: p.s(f"s_movk_i32 s{S_T2}, 0x207"), f_bad("v_cmp_class_f32", CHK, f"s{S_T2}")]
def f_norm(n, t):
    s0 = Oa(n, 2 * t)
    add = [lambda p, r=r: p.add(Ins(f"v_pk_add_f32 {vr(s0 + r, 2)}, {vr(s0 + r, 2)}, {vr(PX + 8 * t + r, 2)}", "valu", R(s0 + r, 2) | R(PX + 8 * t + r, 2), R(s0 + r, 2))) for r in range(0, 8, 2)] if n == 4 else []
    return add + [lambda p, r=r: p.pkmul(s0 + r, s0 + r, RL + 2 * n) for r in range(0, 8, 2)], [lambda p, r=r: p.cvtpk(s0 + r, s0 + 2 * r, s0 + 2 * r + 1) for r in range(4)]
def f_l8(): return [lambda p: p.vop("v_add_f32", RL + 8, RL + 8, V_S)] + f_rcp(4)
UNITS = [(n, t) for n in (0, 1, 2, 4, 3) for t in range(4 if n < 4 else 2)]
def afin(name):
    p = Prog()
    p.label(f"{name}_F")
    stamp(p, 5)
    poll_issue(p, V_AX, f"s{S_PF}", 0, V_NV)
    f_addr(p)
    for i in range(4): p.ds_write(AD + 1, Oa(4, 4 + i), 4, i * 1024)
    for i in range(2): p.vop("v_subrev_u32", AL + i, "16384", AD + i)
    p.ds_write(AL + 1, La(4), 1, 0)
    for n in range(5): p.ar(RL + 2 * n, La(n))
    for k in range(2):
        for n in range(4): f_rcp(n)[k](p)
    p.wait_lgkm0()
    for k, (n, t) in enumerate(UNITS):
        if k == 4:
            p.barrier()
            for i in range(4): p.ds_read128(PX + 4 * i, AD, i * 1024)
            p.ds_read32(V_S, AL, 0)
        if k == 11:
            for f in f_l8(): f(p)
        for f in sum(f_norm(n, t), []): f(p)
    for f in f_range(): f(p)
    p.s(f"s_mov_b32 s{S_PH}, 1")
    stamp(p, 6)
    for r in range(80):
        if r % 4 == 0 and r < 72: p.mfma(CHK, A_ONE, Oa(UNITS[r // 4][0], 2 * UNITS[r // 4][1]), CHK if r else None)
        p.amov(A_Q + r, A_QN + r)
    for n, t in UNITS:
        for r in range(4): p.aw(Qf(n, t, A_QN) + r, Oa(n, 2 * t) + r)
    for f in f_fin(): f(p)
    sprinkle([(p, 8)], STREAM[sum(RQ):], 0.0, float(E("ASH", "0.7")))
    code_touch(p)
    p.s(f"s_mul_i32 s{S_T0}, s{S_P}, 9216")
    p.vop("v_add_u32", V_DA + 4, f"s{S_T0}", V_LIN)
    tile_addr(p, V_DA + 4, V_DA)
    p.s(f"s_mul_i32 s{S_T0}, s{S_U}, 36864")
    p.vop("v_add_u32", V_DA + 4, f"s{S_T0}", V_DA + 4)
    psetup(p)
    poll_check(p, f"{name}_wpoll", V_AX, f"s{S_PF}", 0, V_NV)
    p.s(f"s_branch {name}_A")
    return p

P_R = ([A_X + 4 * i for i in range(10)] + [10, 14] + [A_Q + 4 * i for i in range(20)],
       [A_L + 4 * i for i in range(5)] + [A_POOL + 4 * i for i in range(6)] + [A_QN + 64 + 4 * i for i in range(4)] + [A_QN + 4 * i for i in range(16)] + [A_ONE])
P0_B = P_R[0][24:] + [A_QN + 4 * (i % 16) for i in range(64)]
def wload(j, i, so=None, sb=None, extra=0):
    def f(p):
        if i % 2 == 0: p.s(f"s_add_u32 s{so or S_SO}, s{sb or S_WT}, {(i >> 1) * 40960 + extra}")
        if "B" not in ABL: p.load4(P_R[j & 1][i], V_LIN, SRD_WS, f"s{so or S_SO}", (i & 1) * 1024, ("WT", j, i), "sc1")
    return f

def slow(name):
    SI, SC, SX, SWq, SKV, SD, SK = 56, 57, 58, 59, 88, 89, 90
    VW, VX, VK, VV_, VD = 28, 36, 37, 38, 39
    MX, NM, LA, QF, SS, FB, AC, RAW, FR = 40, 44, 48, 52, 68, 76, 84, 116, 180
    def ld(p, op, n, d, vo, srd, so, off):
        p.add(Ins(f"{op} {vr(d, n)}, v{vo}, s[{srd}:{srd+3}], s{so} offen offset:{off}", "vml", [vo], R(d, n), tag="sl"))
    p0 = Prog()
    p0.label(f"{name}_slow")
    p0.wait_all()
    M, G = MX, MX + 1
    p0.vop("v_bfe_u32", M, V_LIN, "4", "4")
    p0.vop("v_lshrrev_b32", G, "8", V_LIN)
    p0.vop("v_lshlrev_b32", VW, "16", G)
    p0.vop("v_lshl_add_u32", VW, M, "1", VW)
    for i in range(1, 8): p0.vop("v_add_u32", VW + i, f"{8192 * i}", VW)
    p0.s(f"s_movk_i32 s{S_T0}, 1280")
    p0.vop("v_mul_lo_u32", VX, M, f"s{S_T0}")
    p0.vop("v_lshl_add_u32", VX, G, "4", VX)
    p0.vop("v_lshlrev_b32", VK, "8", M)
    p0.vop("v_lshl_add_u32", VK, G, "3", VK)
    p0.vop("v_lshlrev_b32", VV_, "10", G)
    p0.vop("v_lshl_add_u32", VV_, M, "1", VV_)
    p0.s(f"s_mov_b32 s{SI}, 0")
    p1 = Prog()
    p1.label(f"{name}_sl_it")
    p1.s(f"s_cmp_ge_u32 s{SI}, 5")
    p1.s(f"s_cselect_b32 s{S_T0}, 2, 0")
    p1.s(f"s_cselect_b32 s{S_T1}, 5, 0")
    p1.s(f"s_cselect_b32 s{SD}, {73728}, 0")
    p1.s(f"s_sub_u32 s{S_T1}, s{SI}, s{S_T1}")
    p1.s(f"s_add_u32 s{S_T0}, s{S_T0}, s{S_P}")
    p1.s(f"s_mul_i32 s{S_T2}, s{S_P}, 9216")
    p1.s(f"s_add_u32 s{SD}, s{SD}, s{S_T2}")
    p1.s(f"s_lshl_b32 s{S_T2}, s{S_G}, 2")
    p1.s(f"s_add_u32 s{S_T0}, s{S_T0}, s{S_T2}")
    p1.s(f"s_lshl_b32 s{SWq}, s{S_T0}, 8")
    p1.s(f"s_lshl_b32 s{S_T2}, s{S_B}, 5")
    p1.s(f"s_add_u32 s{S_T0}, s{S_T0}, s{S_T2}")
    p1.s(f"s_lshl_b32 s{SKV}, s{S_T0}, 17")
    p1.s(f"s_lshl_b32 s{S_T0}, s{S_U}, 2")
    p1.s(f"s_add_u32 s{S_T0}, s{S_T0}, s{S_T1}")
    p1.s(f"s_sub_u32 s{S_T2}, s{S_T0}, s{S_G}")
    p1.s(f"s_add_u32 s{S_T2}, s{S_T2}, 7")
    p1.s(f"s_and_b32 s{S_T2}, s{S_T2}, 7")
    p1.s(f"s_add_u32 s{S_T2}, s{S_T2}, 1")
    p1.s(f"s_cmp_eq_u32 s{S_T1}, 4")
    p1.s(f"s_cselect_b32 s{S_T0}, 8, s{S_T0}")
    p1.s(f"s_cselect_b32 s{S_T2}, 0, s{S_T2}")
    p1.s(f"s_lshl_b32 s{S_T2}, s{S_T2}, 10")
    p1.s(f"s_add_u32 s{SD}, s{SD}, s{S_T2}")
    p1.vop("v_add_u32", VD, f"s{SD}", V_LIN)
    p1.s(f"s_mul_i32 s{S_T2}, s{S_B}, 9")
    p1.s(f"s_add_u32 s{S_T0}, s{S_T0}, s{S_T2}")
    p1.s(f"s_mul_i32 s{SX}, s{S_T0}, {16 * 1280}")
    for r in range(32): p1.vop("v_mov_b32", AC + r, "0")
    p1.s(f"s_mov_b32 s{SC}, 0")
    def pack(p):
        for r in range(32): p.vop("v_lshl_or_b32", FR + r, RAW + 2 * r + 1, "16", RAW + 2 * r)
    def loop_end(p, lab, n):
        p.s(f"s_add_u32 s{SC}, s{SC}, 1")
        p.s(f"s_cmp_lt_u32 s{SC}, {n}")
        p.s(f"s_cbranch_scc1 {lab}")
    p2 = Prog()
    p2.label(f"{name}_sl_q")
    ld(p2, "buffer_load_dwordx4", 4, FB, VX, SRD_X, SX, 0)
    for m in range(8):
        for i in range(8): ld(p2, "buffer_load_ushort", 1, RAW + 8 * m + i, VW + i, SRD_W, SWq, 32 * m)
        if m == 3: p2.wait_all()
    p2.wait_all()
    pack(p2)
    for m in range(8): p2.mfma(AC + 4 * m, FR + 4 * m, FB, AC + 4 * m)
    p2.s(f"s_add_u32 s{SX}, s{SX}, 64")
    p2.s(f"s_add_u32 s{SWq}, s{SWq}, {32 * 8192}")
    loop_end(p2, f"{name}_sl_q", 20)
    p3 = Prog()
    for r in range(32): p3.vop("v_mul_f32", AC + r, f"s{S_CS}", AC + r)
    for r in range(16): p3.cvtpk(QF + r, AC + 2 * r, AC + 2 * r + 1)
    for r in range(32): p3.vop("v_mov_b32", AC + r, "0")
    for r in range(4): p3.vop("v_mov_b32", LA + r, "0")
    p3.vop("v_mov_b32", MX, "0xff800000")
    p3.s(f"s_mov_b32 s{SK}, s{SKV}")
    p3.s(f"s_mov_b32 s{SC}, 0")
    def kfrags(p, dst, so):
        for ks in range(4):
            ld(p, "buffer_load_dwordx2", 2, dst + 4 * ks, VK, SRD_K, so, 64 * ks)
            ld(p, "buffer_load_dwordx2", 2, dst + 4 * ks + 2, VK, SRD_K, so, 64 * ks + 32)
    p4 = Prog()
    p4.label(f"{name}_sl_m")
    kfrags(p4, FR, SK)
    p4.wait_all()
    for ks in range(4): p4.mfma(SS, FR + 4 * ks, QF + 4 * ks, SS if ks else None)
    p4.vop("v_max3_f32", MX, MX, SS, SS + 1)
    p4.vop("v_max3_f32", MX, MX, SS + 2, SS + 3)
    p4.s(f"s_add_u32 s{SK}, s{SK}, 4096")
    loop_end(p4, f"{name}_sl_m", 32)
    p5 = Prog()
    for sw in (p5.swap32, p5.swap16):
        p5.vop("v_mov_b32", MX + 1, MX)
        sw(MX, MX + 1)
        p5.vop("v_max_f32", MX, MX, MX + 1)
    for r in range(4): p5.vop("v_sub_f32", NM + r, "0", MX)
    p5.s(f"s_mov_b32 s{SC}, 0")
    p6 = Prog()
    p6.label(f"{name}_sl_a")
    p6.s(f"s_add_u32 s{SK}, s{SKV}, 4096")
    kfrags(p6, FR, SKV)
    kfrags(p6, FR + 16, SK)
    p6.wait_all()
    for m in range(8):
        for i in range(8): ld(p6, "buffer_load_ushort", 1, RAW + 8 * m + i, VV_, SRD_V, SK if i >= 4 else SKV, 32 * m + 256 * (i & 3))
        if m == 3: p6.wait_all()
    for kt in range(2):
        for ks in range(4): p6.mfma(SS + 4 * kt, FR + 16 * kt + 4 * ks, QF + 4 * ks, SS + 4 * kt if ks else NM)
    for r in range(8): p6.exp(SS + r, SS + r)
    for r in range(4): p6.cvtpk(FB + r, SS + 2 * r, SS + 2 * r + 1)
    p6.wait_all()
    pack(p6)
    p6.mfma(LA, A_ONE, FB, LA)
    for m in range(8): p6.mfma(AC + 4 * m, FR + 4 * m, FB, AC + 4 * m)
    p6.s(f"s_add_u32 s{SKV}, s{SKV}, 8192")
    loop_end(p6, f"{name}_sl_a", 16)
    p7 = Prog()
    p7.vop("v_rcp_f32", LA, LA, kind="trans")
    for r in range(32): p7.vop("v_mul_f32", AC + r, AC + r, LA)
    for r in range(16): p7.cvtpk(QF + r, AC + 2 * r, AC + 2 * r + 1)
    for hf in range(2):
        p7.s(f"s_cmp_eq_u32 s{S_U}, {hf}")
        p7.s(f"s_cselect_b32 s{S_T0}, 0, s{S_T1}")
        p7.s(f"s_cmp_eq_u32 s{S_T0}, 4")
        p7.s(f"s_cbranch_scc1 {name}_sl_s{hf}")
        for t in (2 * hf, 2 * hf + 1): p7.ds_write(VD, QF + 4 * t, 4, t * 18432)
        p7.label(f"{name}_sl_s{hf}")
    p7.wait_all()
    p7.s(f"s_add_u32 s{SI}, s{SI}, 1")
    p7.s(f"s_cmp_lt_u32 s{SI}, 10")
    p7.s(f"s_cbranch_scc1 {name}_sl_it")
    p7.s(f"s_branch {name}_P2")
    body = [p1, p2, p2, p3, p4, p4, p5, p6, p6, p7]
    return [p0, p1, p2, p3, p4, p5, p6, p7], [p0] + body + body

S_ST = 62
S_J, S_JO, S_J8, S_JO8 = 4, 5, 6, 7
S_PC, S_FO, S_PO, S_JL = 70, 71, 72, 73
def psetup(p):
    p.s(f"s_mul_i32 s{S_RD}, s{S_B}, {PARTB}")
    p.s(f"s_lshl_b32 s{S_T1}, s{S_W}, 11")
    p.s(f"s_add_u32 s{S_RD}, s{S_RD}, s{S_T1}")
    p.s(f"s_add_u32 s{S_RD}, s{S_RD}, {PART}")
    p.s(f"s_lshr_b32 s{S_T0}, s{S_G}, 2")
    p.s(f"s_mul_i32 s{S_T0}, s{S_T0}, {PARTH}")
    p.s(f"s_add_u32 s{S_T0}, s{S_T0}, s{S_RD}")
    p.s(f"s_and_b32 s{S_T1}, s{S_G}, 3")
    p.s(f"s_mul_i32 s{S_ST}, s{S_T1}, 40960")
    p.s(f"s_add_u32 s{S_ST}, s{S_ST}, s{S_T0}")
    p.s(f"s_add_u32 s{S_ST}, s{S_ST}, 32768")
    p.s(f"s_lshl_b32 s{S_J}, s{S_T1}, 13")
    p.s(f"s_add_u32 s{S_J}, s{S_J}, s{S_T0}")
    for i in range(1, 8):
        p.s(f"s_add_u32 s{S_T0}, s{S_G}, {i}")
        p.s(f"s_bfe_u32 s{S_T1}, s{S_T0}, 0x10002")
        p.s(f"s_mul_i32 s{S_T1}, s{S_T1}, {PARTH}")
        p.s(f"s_and_b32 s{S_T0}, s{S_T0}, 3")
        p.s(f"s_lshl_b32 s{S_T0}, s{S_T0}, 13")
        p.s(f"s_add_u32 s{S_T0}, s{S_T0}, s{S_T1}")
        p.s(f"s_add_u32 s{S_T0}, s{S_T0}, s{S_RD}")
        p.s(f"s_add_u32 s{S_ST+i}, s{S_T0}, {((i - 1) >> 1) * 40960 + ((i - 1) & 1) * 1024}")
    p.s(f"s_lshl_b32 s{S_PO}, s{S_B}, 2")
    p.s(f"s_add_u32 s{S_PO}, s{S_PO}, s{S_W}")
    p.s(f"s_lshl_b32 s{S_PO}, s{S_PO}, 9")
    p.s(f"s_add_u32 s{S_PO}, s{S_PO}, {PFLG}")
    p.s(f"s_lshl_b32 s{S_FO}, s{S_G}, 3")
    p.s(f"s_add_u32 s{S_FO}, s{S_FO}, s{S_PO}")
    p.s(f"s_mul_i32 s{S_OUTO}, s{S_B}, {144 * 1280}")
    p.s(f"s_mul_i32 s{S_T1}, s{S_W}, 320")
    p.s(f"s_add_u32 s{S_OUTO}, s{S_OUTO}, s{S_T1}")
    p.s(f"s_mul_i32 s{S_JO}, s{S_G}, {16 * 1280}")
    p.s(f"s_add_u32 s{S_JO}, s{S_JO}, s{S_OUTO}")
    p.s(f"s_sub_u32 s{S_JO}, s{S_JO}, 64")
    p.s(f"s_mul_i32 s{S_T1}, s{S_G}, {4 * 40960}")
    p.s(f"s_add_u32 s{S_J8}, s{S_RD}, s{S_T1}")
    p.s(f"s_add_u32 s{S_J8}, s{S_J8}, 32768")
    p.s(f"s_lshl_b32 s{S_T1}, s{S_G}, 6")
    p.s(f"s_add_u32 s{S_JO8}, s{S_OUTO}, s{S_T1}")
    p.s(f"s_add_u32 s{S_JO8}, s{S_JO8}, {128 * 1280}")
    p.s(f"s_cmp_ge_u32 s{S_G}, 5")
    p.s(f"s_cselect_b32 s{S_J8}, {OOB:#x}, s{S_J8}")
    p.s(f"s_cselect_b32 s{S_JO8}, {OOB:#x}, s{S_JO8}")
    p.s(f"s_mov_b32 s{S_PC}, 0")

def pmod(name):
    p = Prog()
    p.label(f"{name}_fb")
    p.wait_all()
    p.s(f"s_cmp_lg_u64 s[{S_BAD}:{S_BAD+1}], 0")
    p.s(f"s_cbranch_scc1 {name}_slow")
    p.label(f"{name}_P2")
    AO = (V_LIN, 2, 3)
    V_FA, V_OA = 4, 5
    PT, PT2 = 6, 8
    V_SA = 1
    SEL = 18
    POOL = [28 + 4 * k for k in range(16)]
    ACC = 92
    OWN = 124
    A8 = 164
    JB = (172, 204)
    CT = 244
    p.wait_all()
    p.barrier()
    NL = int(E("PLEAD", "8"))
    def ooff(i, kq): return IMG(kq) + i * 1024
    for f in range(NL): p.ds_read128(POOL[f], AO[ooff(0, f) // 49152], ooff(0, f) % 49152)
    s0 = len(p.ins)
    p.vop("v_mov_b32", V_SA, V_LIN)
    p.vop("v_lshrrev_b32", V_FA, "1", V_LIN)
    p.vop("v_and_b32", V_FA, "0x38", V_FA)
    p.vop("v_bfe_u32", CT, V_LIN, "4", "4")
    p.s(f"s_movk_i32 s{S_T0}, 1280")
    p.vop("v_mul_lo_u32", V_OA, CT, f"s{S_T0}")
    p.vop("v_lshrrev_b32", CT + 1, "8", V_LIN)
    p.vop("v_lshl_add_u32", V_OA, CT + 1, "4", V_OA)
    p.vop("v_mov_b32", PT2, f"s{S_NON}")
    p.vop("v_mov_b32", PT2 + 1, f"s{S_NON+1}")
    p.vop("v_and_b32", CT + 2, "1", CT)
    p.vop("v_lshlrev_b32", CT + 2, "4", CT + 2)
    p.s(f"s_movk_i32 s{S_T0}, 0x3f80")
    p.vop("v_lshlrev_b32", CT + 2, CT + 2, f"s{S_T0}")
    p.vop("v_lshrrev_b32", CT, "1", CT)
    p.vop("v_lshlrev_b32", CT + 1, "1", CT + 1)
    p.vop("v_sub_u32", CT, CT, CT + 1)
    for r in range(2):
        p.add(Ins(f"v_cmp_eq_u32 vcc, {r}, v{CT}", "valu", [CT], []))
        p.vop("v_mov_b32", SEL + r, "0")
        p.vop("v_mov_b32", SEL + 4 + r, "0")
        p.add(Ins(f"v_cndmask_b32 v{SEL+2+r}, 0, v{CT+2}, vcc", "valu", [CT + 2], [SEL + 2 + r]))
    setup = p.ins[s0:]
    def job_loads(p, sbase, offs, buf):
        for g, off in enumerate(offs):
            p.s(f"s_add_u32 s{S_T0}, s{sbase}, {off}")
            p.load4(buf + 4 * g, V_LIN, SRD_WS, f"s{S_T0}", 0, "job", "sc1")
    def job_reduce(p, sout, off, bufs, a, init):
        for g, bf in enumerate(bufs):
            for e in range(2): p.mfma(a + 4 * e, SEL + 2 - 2 * e, bf, None if (init and g == 0) else a + 4 * e)
        return lambda: ([p.cvtpk(a + r, a + 2 * r, a + 2 * r + 1) for r in range(4)],
                        p.store(a, 4, V_OA, SRD_OUT, f"s{sout}", off, tag="out", flags=E("OFL", "")))
    def flag(p, off, tag):
        p.wait_vm(tag)
        p.s("s_mov_b64 exec, 1")
        p.store(PT2, 2, V_LIN, SRD_WS, f"s{S_FO}", off, tag="flag", flags="sc1")
        p.s("s_mov_b64 exec, -1")
    FPOS = int(E("FPOS", "180")); WSP = float(E("WSP", "6")); PLAT = int(E("PLAT", "70")); CPOS = int(E("CPOS", "206")); WST = int(E("WST", "4"))
    jo = lambda mp: [(4 * mp + (g >> 1)) * 40960 + (g & 1) * 1024 for g in range(7)]
    def one_pass(par):
        q = Prog()
        q.label(f"{name}_pass{par}")
        if PROF == 4: stamp(q, 32, S_PC)
        q.wait_vm(("WT", par, 15))
        sc = Sched(q, budget=int(E("PBUD", "8")), late_extra=8)
        for qn in ("wl", "st", "jl"): sc.group[qn] = "vm"
        sc.pace["vm"] = int(E("PPACE", "4"))
        pool = Pool(sc, POOL, 16)
        acc = lambda i: OWN if i == 8 else ACC + 8 * (i % 4)
        for i in range(9):
            a = acc(i)
            for kq in range(16):
                cons = [(a + 4 * e, P_R[par][2 * kq + e], a + 4 * e if kq else None, ("P", i, kq, e)) for e in range(2)]
                pool.frag(0, lambda r: [R128(r, AO[ooff(i, kq) // 49152], ooff(i, kq) % 49152)], cons, as_b=True)
        PG = int(E("PG", "4"))
        sc.m = [x for k in range(0, 288, 2 * PG) for x in sc.m[k:k + 2 * PG:2] + sc.m[k + 1:k + 2 * PG:2]]
        sc.idx = {x[4]: k for k, x in enumerate(sc.m)}
        mt = lambda i: sc.m[max(0, min(i, len(sc.m) - 1))][4]
        for f in range(NL, 144 + NL):
            (_, reads, cons, war) = pool.frags[f % 144]
            if f >= 144: war = pool.last[f % 16]
            if "R" not in ABL: sc.fill("rd", reads[0], 4, ds=True, after=war, before=mt(2 * (f - NL) + 1), early=2)
        for i in ((16, 22, 28) if PG == 1 else (16, 24) if PG <= 4 else (16,)): sc.fill("ww", lambda p, i=i: p.wait_vm(("WT", par, min(31, i + (5 if PG == 1 else 7 if PG <= 4 else 15)))), 4, before=mt(i), early=0)
        def su(p):
            p.s(f"s_add_u32 s{S_WT}, s{S_WT}, 2048")
            p.s(f"s_cmp_eq_u32 s{S_PC}, 4")
            p.s(f"s_cselect_b32 s{S_WT}, {OOB:#x}, s{S_WT}")
        fill_dma(sc, [(su, 0)], None, mt(WST + 2), queue="wl", lead=6)
        for i in range(32):
            fill_dma(sc, [(wload(1 - par, i), 0)], mt(WST + int(WSP * i)), mt(WST + 12 + int(WSP * i)), queue="wl", lead=10)
        sc.fill("jl", lambda p: poll_issue(p, V_FA, f"s{S_PO}", 0, PT), 8, before=mt(CPOS - PLAT), early=4, solo=SOLO)
        for r in range(23, -1, -1): sc.fill("jr", lambda p, r=r: p.vop("v_mov_b32", OWN + 8 + r, OWN + r), 4, after=mt(40), before=mt(CPOS - 4), lead=4 * r)
        def cut(p):
            p.wait_vm("poll")
            p.s(f"s_cmp_lt_u32 s{S_PC}, 2")
            p.s(f"s_cbranch_scc1 {name}_nojob{par}")
            p.label("@CUT")
        sc.fill("jr", cut, 8, before=mt(CPOS), early=0)
        sc.fill("jr", lambda p: p.s(f"s_add_u32 s{S_PO}, s{S_PO}, 64"), 4)
        for i in range(8):
            a = acc(i)
            dl = mt(32 * i + 32 + 24)
            sc.fill("va", lambda p, a=a: p.cvtpk(a, a, a + 1), 4, after=dict(tag=("P", i, 15, 1), delay=4), before=dl, lead=10)
            sc.fill("va", lambda p, a=a: p.cvtpk(a + 1, a + 2, a + 3), 4)
            sc.fill("va", lambda p, a=a: p.cvtpk(a + 2, a + 4, a + 5), 4)
            sc.fill("va", lambda p, a=a: p.cvtpk(a + 3, a + 6, a + 7), 4, tag=("CV", i), before=dl, lead=10)
            def st(p, a=a, i=i):
                if "O" not in ABL: p.store(a, 4, V_SA, SRD_WS, f"s{S_ST+i}", 0, tag=("ps", i), flags=E("SFL", "sc1"))
            sc.fill("st", st, 8, after=("CV", i), before=dl, lead=20, tag=("ST", i), solo=SOLO)
        sc.fill("va", lambda p: p.vop("v_add_u32", V_SA, f"{4 * 40960}", V_SA), 4, after=("ST", 7))
        sc.fill("fl", lambda p: flag(p, 64, ("ps", 0)), 16, before=mt(FPOS), early=0)
        sc.fill("fl", lambda p: p.s(f"s_add_u32 s{S_FO}, s{S_FO}, 64"), 4)
        sc.fill("fl", lambda p: p.s(f"s_add_u32 s{S_PC}, s{S_PC}, 1"), 4, after=mt(270))
        sc.run()
        if par == 0:
            q.s(f"s_cmp_eq_u32 s{S_PC}, 5")
            q.s(f"s_cbranch_scc1 {name}_ptail")
            q.s(f"s_cmp_eq_u32 s{S_PC}, 1")
            q.s(f"s_cbranch_scc1 {name}_fbw")
        else: q.s(f"s_branch {name}_pass0")
        k = next(i for i, x in enumerate(q.ins) if x.text.startswith("@CUT"))
        q2 = Prog(); q2.label(f"{name}_nojob{par}"); q2.ins += q.ins[k + 1:]; q.ins = q.ins[:k]
        blk = Prog()
        poll_check(blk, f"{name}_pp{par}", V_FA, f"s{S_PO}", 0, PT)
        a = OWN + 24
        for g in range(7):
            for e in range(2): blk.mfma(a + 4 * e, SEL + 2 - 2 * e, JB[0] + 4 * g, a + 4 * e)
            job_loads(blk, S_J, [jo(0)[g]], JB[0] + 4 * g)
        blk.s(f"s_add_u32 s{S_J}, s{S_J}, {4 * 40960}")
        blk.s(f"s_cmp_eq_u32 s{S_PC}, 2")
        blk.s(f"s_cselect_b32 s{S_T0}, {OOB:#x}, s{S_JO}")
        blk.s(f"s_add_u32 s{S_JO}, s{S_JO}, 64")
        blk.wait_lgkm0()
        for r in range(4): blk.cvtpk(a + r, a + 2 * r, a + 2 * r + 1)
        blk.store(a, 4, V_OA, SRD_OUT, f"s{S_T0}", 0, tag="out", flags=E("OFL", ""))
        return q, blk, q2
    def first_pass():
        q = Prog()
        q.label(f"{name}_P0")
        stamp(q, 9)
        if "F" in ABL: q.s(f"s_mov_b32 s{S_BAD}, 1")
        if "G" in ABL:
            q.s(f"s_cmp_eq_u32 s{S_W}, 2")
            q.s(f"s_cselect_b32 s{S_BAD}, 1, 0")
        sc = Sched(q, budget=int(E("P0BUD", "8")), late_extra=8)
        for qn in ("wl", "st"): sc.group[qn] = "vm"
        sc.pace["vm"] = int(E("P0PACE", "3"))
        acc = [V_S + 32, V_S + 40, 92, 100, 108, 116, 132, 140, OWN]
        POOL2 = POOL[:8] + [148 + 4 * k for k in range(4)] + POOL[12:]
        reg = lambda f: P0_B[f] if f < 72 else POOL2[f % 16] if f < 144 else POOL[f % 16]
        fk = lambda f: ((f % 72) // 8, f % 8 + 8 * ((f // 72) & 1))
        base = []
        for f0 in range(0, 144, 4):
            for e in range(2):
                for f in range(f0, f0 + 4):
                    i, kq = fk(f); a = acc[i] + 4 * e
                    base.append((a, P_R[0][2 * kq + e], reg(f), a if kq else None, ("P", f, e)))
        units = UNITS
        C0, CS, MB = int(E("P0C0", "22")), float(E("P0CS", "5.8")), int(E("P0MB", "12"))
        cpos = {C0 + int(CS * k) + (int(E("P0C8", "0")) if k >= 12 else 0): k for k in range(18)}
        for j, m in enumerate(base):
            if j in cpos:
                k = cpos[j]; sc.mfma(CHK, A_ONE, Oa(units[k][0], 2 * units[k][1]), CHK if k else None, ("CHK", k))
            sc.mfma(*m)
        bt = lambda j: base[min(j, 287)][4]
        for i in range(2, 9): assert sc.idx[("CHK", (acc[i] - V_O) // 8)] + 1 < sc.idx[bt(16 * i)]
        for f in range(8, 144 + NL):
            i, kq = fk(f)
            aft = [("P", f - 16, 1)] if (f >= 24 and not 72 <= f < 88) else []
            if f == 8: aft.append("AO")
            if f == 12: aft.append("XW")
            if f == 72: aft.append("MID")
            j = 2 * (f - NL) + 1
            if f >= 72: j = max(j, 144 - MB + 2 + f - 72)
            sc.fill("rd", R128(reg(f), AO[ooff(i, kq) // 49152], ooff(i, kq) % 49152), 4, ds=True, after=aft, before=bt(j), early=2)
        def V(fn, cost=4, **kw): sc.fill("va", fn, cost, **kw)
        sc.fill("ww", lambda p: p.wait_vm(("WT", 0, 15)), 4, before=bt(10), early=0)
        def each(fn):
            z = Prog(); fn(z)
            return [lambda p, x=x: p.add(x) for x in z.ins]
        V(lambda p: p.vop("v_add_u32", AO[1], "49152", V_LIN))
        V(lambda p: p.vop("v_add_u32", AO[2], "98304", V_LIN), tag="AO")
        for fn in each(f_addr): V(fn)
        for i in range(4): V(lambda p, i=i: p.ds_write(AD + 1, Oa(4, 4 + i), 4, i * 1024), 8, solo=True)
        V(lambda p: p.s(f"s_mul_i32 s{S_T0}, s{S_U}, 73728"))
        V(lambda p: p.s(f"s_sub_u32 s{S_T0}, {73728 + 36864}, s{S_T0}"))
        V(lambda p: p.vop("v_add_u32", AL + 1, f"s{S_T0}", V_DA + 4))
        V(lambda p: p.ds_write(AL + 1, La(4), 1, 0), ds=True, tag="XW")
        for n in range(5): V(lambda p, n=n: p.ar(RL + 2 * n, La(n)), tag=("AR", n))
        for n in range(5): V(lambda p, n=n: p.vop("v_add_u32", V_DA + n, "73728", V_DA + n), tag=("DA", n))
        def wr(p, k):
            n, t = units[k]
            p.ds_write(V_DA + n, Oa(n, 2 * t), 4, t * 18432 + (1024 if n < 4 else 0))
        for n in range(4): V(f_rcp(n)[0], 8); V(f_rcp(n)[1], tag=("RC", n))
        l8 = f_l8(); V(l8[0], after=dict(tag="PX", delay=8)); V(l8[1], 8); V(l8[2], tag=("RC", 4), before=("CHK", 10))
        ct = lambda k, d: sc.m[sc.idx[("CHK", k)] + d][4]
        for k, (n, t) in enumerate(units):
            pk, cv = f_norm(n, t)
            sc.fill("pk", lambda p, k=k, pk=pk: (wr(p, k - 1) if k else None, [fn(p) for fn in pk]), 8, solo=True, after=[("RC", n)] + ([("DA", 4)] if k else []),
                    before=ct(k - 1, 1) if k else ct(0, -5), early=0, lead=99, tag=("PK", k))
            for j, fn in enumerate(cv): sc.fill("c1", fn, 4, after=("PK", k), before=ct(k, -1), lead=0)
        sc.fill("pk", lambda p: wr(p, 17), 8, solo=True, before=ct(17, 1), early=0, lead=99, tag="W17")
        for j, fn in enumerate(f_range()): V(fn, 8 if j >= 4 else 4)
        sc.fill("bx", lambda p: p.barrier(), 4, after=[("P", 12, 0), ("DA", 4)], before=bt(int(E("P0BX", "34"))), early=0)
        for i in range(4): sc.fill("bx", R128(PX + 4 * i, AD, i * 1024), 4, ds=True, before=bt(60))
        sc.fill("bx", lambda p: p.ds_read32(V_S, V_DA + 4, 0), 4, ds=True, before=bt(60), tag="PX")
        V(lambda p: p.vop("v_bfe_u32", V_T + 1, V_LIN, "4", "2"))
        V(lambda p: p.vop("v_lshlrev_b32", V_T + 1, "12", V_T + 1))
        V(lambda p: p.vop("v_add_u32", V_T + 1, f"{MISC}", V_T + 1))
        c5 = f_fin()
        V(c5[0]); V(c5[1], 8, after=dict(tag=("CHK", 17), delay=2))
        V(lambda p: (p.s(f"s_or_b32 s{S_T0}, s{S_BAD}, s{S_BAD+1}"), p.vop("v_mov_b32", V_T, f"s{S_T0}")), 8)
        V(lambda p: p.ds_write(AD, V_T, 1, 0), ds=True, after="W17", before=bt(144 - MB - 4), lead=2)
        def mid(p):
            p.wait_vm(("WT", 0, 31), lgkm0=True); p.barrier()
            stamp(p, 16)
            p.ds_read32(V_T + 2, V_T + 1, 0)
        V(mid, 8, before=bt(144 - MB), early=0, tag="MID")
        def chk(p):
            p.add(Ins(f"v_cmp_ne_u32 vcc, 0, v{V_T+2}", "valu", [V_T + 2], []))
            p.s("s_cmp_lg_u64 vcc, 0")
            p.s(f"s_cbranch_scc1 {name}_fb")
        V(chk, 8, before=bt(146), early=0, tag="OK")
        k = 0
        while k < len(setup):
            n = 4 if setup[k].text.startswith("v_cmp") else 1
            V(lambda p, g=setup[k:k + n]: [p.add(Ins(x.text, x.kind, x.rd, x.wr)) for x in g], 4 * n); k += n
        for i in range(8):
            a = acc[i]; dl = bt(144 + 16 * i + 16 + 14)
            sc.fill("cv", lambda p, a=a: p.cvtpk(a, a, a + 1), 4, after=["OK", dict(tag=("P", 72 + 8 * i + 7, 1), delay=3)], before=dl, lead=10)
            sc.fill("cv", lambda p, a=a: p.cvtpk(a + 1, a + 2, a + 3), 4)
            sc.fill("cv", lambda p, a=a: p.cvtpk(a + 2, a + 4, a + 5), 4)
            sc.fill("cv", lambda p, a=a: p.cvtpk(a + 3, a + 6, a + 7), 4, tag=("CV", i), before=dl, lead=10)
            def st(p, a=a, i=i):
                if "O" not in ABL: p.store(a, 4, V_SA, SRD_WS, f"s{S_ST+i}", 0, tag=("ps", i), flags=E("SFL", "sc1"))
            sj = int(E("P0S0", "200")) + int(E("P0SS", "8")) * i
            sc.fill("st", st, 8, after=[("CV", i), bt(sj)], before=bt(max(sj + 8, 144 + 16 * i + 30)), lead=20, tag=("ST", i), solo=SOLO)
        W1 = float(E("P0W1", "5.0")); W2 = float(E("P0W2", "3.0"))
        for i in range(8): fill_dma(sc, [(wload(0, 24 + i), 0)], bt(17 + int(W1 * i)), bt(30 + int(W1 * i)), queue="wl", lead=4)
        for i in range(32):
            j = 17 + int(W1 * (8 + i)) if i < 15 else 146 + int(W2 * (i - 15))
            fill_dma(sc, [(wload(1, i, extra=2048), 0)], [bt(j), ("AR", 4)] + (["OK"] if i >= 15 else []), bt(j + 13), queue="wl", lead=4)
        V(lambda p: p.vop("v_add_u32", V_SA, f"{4 * 40960}", V_SA), after=("ST", 7))
        for r, x in ((S_WT, 2048), (S_PO, 64), (S_FO, 64), (S_PC, 1)): sc.fill("fl", lambda p, r=r, x=x: p.s(f"s_add_u32 s{r}, s{r}, {x}"), 4, after=bt(275))
        sc.run()
        q.s(f"s_branch {name}_pass1")
        return q
    p.wait_lgkm0()
    p.s(f"s_branch {name}_pass0")
    pre = p
    p0 = first_pass()
    pe, po = one_pass(0), one_pass(1)
    p = Prog()
    p.label(f"{name}_ptail")
    stamp(p, 17)
    poll_issue(p, V_FA, f"s{S_PO}", 0, PT)
    f2 = job_reduce(p, S_JO, 0, [JB[0] + 4 * g for g in range(7)], OWN + 16, False)
    flag(p, 64, ("ps", 7))
    poll_check(p, f"{name}_pp3", V_FA, f"s{S_PO}", 0, PT, 0)
    job_loads(p, S_J, jo(0), JB[0])
    job_loads(p, S_J8, [(g >> 2) * PARTH + (g & 3) * 40960 for g in range(8)], JB[1])
    poll_issue(p, V_FA, f"s{S_PO}", 64, PT)
    f2()
    stamp(p, 18)
    stamp(p, 19)
    poll_check(p, f"{name}_pp4", V_FA, f"s{S_PO}", 64, PT, 0)
    stamp(p, 20)
    job_loads(p, S_J, jo(1), POOL[8])
    f3 = job_reduce(p, S_JO, 64, [JB[0] + 4 * g for g in range(7)], OWN + 8, False)
    f8 = job_reduce(p, S_JO8, 0, [JB[1] + 4 * g for g in range(8)], A8, True)
    f3(); f8()
    job_reduce(p, S_JO, 128, POOL[8:15], OWN, False)()
    if PROF:
        p.wait_all()
        stamp(p, 21)
        p.s(f"s_getreg_b32 s{S_TM}, hwreg(HW_REG_HW_ID)")
        p.s(f"s_getreg_b32 s{S_TM+1}, hwreg(HW_REG_XCC_ID)")
        p.raw(f"v_writelane_b32 v0, s{S_TM}, 24")
        p.raw(f"v_writelane_b32 v0, s{S_TM+1}, 25")
        p.s(f"s_lshl_b32 s{S_T0}, s2, 2")
        p.s(f"s_add_u32 s{S_T0}, s{S_T0}, s{S_W}")
        p.s(f"s_lshl_b32 s{S_T0}, s{S_T0}, 8")
        p.s(f"s_add_u32 s{S_T0}, s{S_T0}, {PROFOFF}")
        p.vop("v_lshrrev_b32", PT, "2", V_LIN)
        p.store(0, 1, PT, SRD_WS, f"s{S_T0}", 0)
        p.s(f"s_add_u32 s{S_T0}, s{S_T0}, 0x40000")
        p.store(255, 1, PT, SRD_WS, f"s{S_T0}", 0)
        if PROF == 5:
            p.s(f"s_cmp_lg_u32 s2, 77")
            p.s(f"s_cbranch_scc1 {name}_end")
            p.s(f"s_cmp_lg_u32 s{S_W}, 0")
            p.s(f"s_cbranch_scc1 {name}_end")
            p.raw("v_readlane_b32 s56, v0, 0")
            for k, ix in enumerate([23, 1, 2, 5, 6, 9, 10, 16, 17, 18, 20, 21]):
                p.raw(f"v_readlane_b32 s57, v0, {ix}")
                p.raw("s_nop 3")
                p.s("s_sub_u32 s57, s57, s56")
                p.raw(f"v_mov_b32 v30, s57")
                p.raw(f"buffer_store_dword v30, off, s[{SRD_DBG}:{SRD_DBG+3}], 0 offset:{8 + 4 * k}")
                p.raw("s_nop 1")
    p.label(f"{name}_end")
    p.raw("s_endpgm")
    rest = [po[0], po[2], *pe, *po, *pe, p]
    fw = Prog(); fw.label(f"{name}_fbw"); fw.wait_all(); fw.s(f"s_branch {name}_pass1")
    return [p0, *pe, *po, p, pre, fw], [p0] + rest, [pre, pe[0], pe[2], fw] + rest

def gen(name):
    pro = prologue(name)
    Q = qmod(name)
    AE = aentry(name)
    A = [amod(name, qh) for qh in range(2)]
    F = afin(name)
    P, PS, PS2 = pmod(name)
    SL, SLS = slow(name)
    segs = [pro, Q, AE, A[0], A[1], F] + P + SL
    sims = [[(x, 1) for x in [pro, Q, AE, A[qh], F, AE, A[qh]] + PS] for qh in range(2)]
    sims.append([(x, 1) for x in SLS + PS2])
    lines, stats = finalize([(x, 1) for x in segs], sims=sims)
    if int(E("ROLL", "1")):
        lines = roll(lines, "; ---- a step", 8, S_LOOP, f"{name}_aloop")
        lines = roll(lines, "; ---- q step", 4, S_LOOP, f"{name}_qloop")
    lines += [f"{name}_last:", f".if {name}_last-{name}_pc < {65536 + CPO}", f".fill ({65536 + CPO}-({name}_last-{name}_pc))/4, 4, 0xbf810000", ".endif", f".if {name}_end-{name}_pc > {65536 + CPO}", '.warning "code range"', ".endif"]
    return [f".globl {name}", ".p2align 8", f".type {name},@function", f"{name}:"] + lines, stats
```

```python
from asmlib import *
import math, struct, os
E = os.environ.get
PROF = int(E("PROF", "0"))
ABL = E("ABL", "")
def f2u(f): return struct.unpack("<I", struct.pack("<f", f))[0]
CSCALE = math.log2(math.e) / math.sqrt(128.0)
NWG = 256
LDS_BYTES = 163840
XSL = 18432
XRING = 131072
XALT = 65536 - XSL
WRING = 65536
MISC = 147456
def IMG(kq): return (kq >> 3) * 73728 + (kq & 3) * 18432 + ((kq >> 2) & 1) * 9216
DROP = 0x30000
OOB = 0x40000000
WOT = 0
PART = 128 * 40960
PARTH = 20 * 40960 + int(E('PHP', '0'))
PARTB = 2 * PARTH + int(E('PBP', '0'))
WFLG = PART + 32 * PARTB
PFLG = WFLG + 8192
WSBYTES = PFLG + 65536
PROFOFF = 0x4000000

SRD_X, SRD_K, SRD_V, SRD_W, SRD_WS, SRD_WO, SRD_OUT, SRD_DBG = 8, 12, 16, 20, 24, 28, 32, 36
S_W = 3
S_T0, S_T1, S_B, S_G, S_P, S_T2 = 40, 41, 42, 43, 44, 45
S_CS, S_NON, S_SPIN, S_PH, S_GRP, S_SO = 46, 48, 50, 51, 52, 53
S_BAD = 54
S_KOFF, S_VOFF, S_KB, S_KVN, S_M0KV, S_WFP = 56, 57, 58, 59, 60, 61
S_WOFF, S_WB, S_XOFF, S_XB = 62, 63, 65, 66
S_M0W, S_M0X8 = 75, 72
S_WT, S_PT, S_PF, S_RD, S_OUTO = 76, 77, 78, 79, 80
S_LO, S_HI = 81, 82
S_TM = 84
S_VB = 88
S_M0KVP, S_KVP, S_M0D, S_U = 89, 91, 94, 95
S_LOOP = 92
S_WT2 = 98

V_DK, V_DV, V_DW, V_DX = 1, 5, 9, 13
V_AK, V_AV0, V_AV1, V_AX, V_AX8, V_LIN = 18, 19, 20, 21, 22, 24
V_E0, V_E1, V_E2 = 25, 26, 27
V_S = 28
V_AW = V_S + 40
V_O = 84
V_T = 244
V_DA = V_T + 3
V_NV = 252
V_JUNK = 254
A_Q, A_QN, A_L, A_ONE, A_POOL, A_X = 256, 336, 416, 436, 440, 472
A_QP = 480
NPOOL = 8
def Qf(n, ks, base=A_Q): return base + (n * 4 + ks) * 4
def Oa(n, m): return V_O + (n * 8 + m) * 4
def XS(par, n): return V_S + (par * 4 + n) * 4 if n < 4 else V_S + 48
def YS(n): return V_S + 32 + n * 4 if n < 4 else V_S + 52
def La(n): return A_L + 4 * n
def Xf(st, t): return V_S + (st * 5 + t) * 4
def QA(r, n, m): return (A_QN if r else V_O) + (n * 8 + m) * 4

def stamp(p, idx, dyn=None):
    if not PROF: return
    p.s(f"s_memrealtime s[{S_TM}:{S_TM+1}]")
    p.s(f"s_memtime s[{S_TM+2}:{S_TM+3}]")
    p.wait_lgkm0()
    if dyn is None:
        p.raw(f"v_writelane_b32 v0, s{S_TM}, {idx}")
        p.raw(f"v_writelane_b32 v255, s{S_TM+2}, {idx}")
    else:
        p.s("s_mov_b32 s99, m0")
        p.s(f"s_lshl_b32 m0, s{dyn}, 2")
        p.s(f"s_add_u32 m0, m0, {idx}")
        p.raw(f"v_writelane_b32 v0, s{S_TM}, m0")
        p.raw(f"v_writelane_b32 v255, s{S_TM+2}, m0")
        p.s("s_mov_b32 m0, s99")

KVSEQ = [("K", 0)]
for u in range(15): KVSEQ += [("K", u + 1), ("V", u)]
KVSEQ += [("V", 15)]
KVPOS = {t: i for i, t in enumerate(KVSEQ)}
DYN = (10, 30)
SRD_C = SRD_WO
S_ROT, S_C, S_D = S_KOFF, S_VOFF, S_VB
def kv_ops(pos):
    pre = pos >= 32; pos %= 32
    kind, u = KVSEQ[pos]
    dyn = DYN[0] <= pos <= DYN[1] and not pre
    ops = []
    for j in range(4):
        def f(p, j=j):
            if dyn:
                if j == 0:
                    if pos == DYN[0]:
                        p.s(f"s_add_u32 s{S_C}, s{S_ROT}, {u * 8192}")
                        p.s(f"s_and_b32 s{S_C}, s{S_C}, 0x1ffff")
                        p.s(f"s_mov_b32 s{S_D}, {16384 if kind == 'V' else -8192}")
                        p.s(f"s_mov_b32 s{S_M0D}, {(pos % 8) * 16384}")
                    p.s(f"s_cmp_gt_i32 s{S_D}, 0")
                    p.s(f"s_cselect_b64 s[{SRD_C}:{SRD_C+1}], s[{SRD_V}:{SRD_V+1}], s[{SRD_K}:{SRD_K+1}]")
                    p.s(f"s_add_u32 m0, s{S_M0KV}, s{S_M0D}")
                    p.s(f"s_add_u32 s{S_SO}, s{S_KB}, s{S_C}")
                if "D" not in ABL: p.dmao(V_DV + j, SRD_C, f"s{S_SO}", j * 1024, (kind, u), "nt")
                if j == 0: p.s(f"s_add_u32 s{S_C}, s{S_C}, s{S_D}")
                if j == 1:
                    p.s(f"s_and_b32 s{S_C}, s{S_C}, 0x1ffff")
                    p.s(f"s_sub_u32 s{S_D}, 8192, s{S_D}")
                if j == 2:
                    p.s(f"s_add_u32 s{S_M0D}, s{S_M0D}, 16384")
                    p.s(f"s_and_b32 s{S_M0D}, s{S_M0D}, 0x1ffff")
                return
            if j == 0:
                if pre: p.s(f"s_add_u32 m0, s{S_M0KVP + (pos >> 2)}, {(pos % 4) * 16384}")
                else: p.s(f"s_add_u32 m0, s{S_M0KV}, {(pos % 8) * 16384}")
                p.s(f"s_add_u32 s{S_SO}, s{S_ROT}, {u * 8192}")
                p.s(f"s_and_b32 s{S_SO}, s{S_SO}, 0x1ffff")
                p.s(f"s_add_u32 s{S_SO}, s{S_SO}, s{S_KVP if pre else S_KB}")
            if "D" not in ABL: p.dmao(V_DV + j, SRD_K if kind == "K" else SRD_V, f"s{S_SO}", j * 1024, (kind, u), "nt")
        ops.append((f, 8))
    return ops
def w_ops(h):
    ops = []
    for j in range(4):
        def f(p, j=j):
            if j == 0:
                p.s(f"s_add_u32 m0, s{S_M0W}, {(h % 4) * 16384}")
                p.s(f"s_add_u32 s{S_SO}, s{S_WB + (h & 1)}, s{S_WOFF}")
            if "W" not in ABL: p.dmao(V_DW + j, SRD_W, f"s{S_SO}", j * 1024, ("W", h))
            if j == 1 and h % 2 == 1: p.s(f"s_add_u32 s{S_WOFF}, s{S_WOFF}, {32 * 8192}")
            if j == 2 and h % 4 == 3:
                p.s(f"s_cmp_ge_u32 s{S_WOFF}, {640 * 8192}")
                p.s(f"s_cselect_b32 s{S_WOFF}, 0, s{S_WOFF}")
        ops.append((f, 12 if j == 0 or (j == 2 and h % 4 == 3) else 8 if j == 1 and h % 2 else 4))
    return ops
def x_ops(i):
    ops = []
    sb = XRING if i else XALT
    for j in range(5):
        def f(p, j=j):
            if j == 0:
                p.s(f"s_add_u32 m0, s{S_M0KV}, {sb}")
                p.s(f"s_add_u32 s{S_SO}, s{S_XB}, s{S_XOFF}")
            if "X" not in ABL: p.dmao(V_DX + j, SRD_X, f"s{S_SO}", (j & 3) * 1024, ("X", i), E("XFL", ""))
            if j == 1: p.s(f"s_add_u32 s{S_XOFF}, s{S_XOFF}, 128")
            if j == 2:
                p.s(f"s_cmp_ge_u32 s{S_XOFF}, 1280")
                p.s(f"s_cselect_b32 s{S_XOFF}, 0, s{S_XOFF}")
            if j == 3:
                p.s(f"s_add_u32 m0, s{S_M0X8}, {sb}")
                p.nop(0)
        ops.append((f, 12 if j in (0, 2, 3) else 8 if j == 1 else 4))
    return ops

SRD_E = 4
S_EM, S_ED, S_TAB, S_ES, S_WEND, S_EW = 67, 68, 69, 70, 71, 73
STG = 0x26000
V_WR = V_O + 144
EKP = [int(x) for x in E("EKP", "1,2,1,2").split(",")]
PFP = [int(x) for x in E("PFP", "")]; PFN = len(PFP)
PFS = int(E("PFS", "1"))
S_PFO, S_PFB = 74, 83
def ek_ops(h):
    it = h // 4
    tag = KVSEQ[(it - 1) // 2]
    def kp(p):
        p.s(f"s_and_b32 s{S_ES}, s{S_TAB}, 0x7000")
        p.s(f"s_add_u32 s{S_ES}, s{S_ES}, s{S_ROT}")
        p.s(f"s_and_b32 s{S_ES}, s{S_ES}, 0x1ffff")
        p.s(f"s_add_u32 s{S_ES}, s{S_ES}, s{S_KVP}")
        p.s(f"s_bitcmp1_b32 s{S_TAB}, 15")
        p.s(f"s_cselect_b64 s[{SRD_E}:{SRD_E+1}], s[{SRD_V}:{SRD_V+1}], s[{SRD_K}:{SRD_K+1}]")
        p.s(f"s_lshr_b32 s{S_T0}, s{S_TAB}, 4")
        p.s(f"s_lshl_b32 s{S_TAB}, s{S_TAB}, 28")
        p.s(f"s_or_b32 s{S_TAB}, s{S_TAB}, s{S_T0}")
    def k0(p):
        p.s(f"s_add_u32 m0, s{S_M0KV}, s{S_EM}")
        if "D" not in ABL: p.dmao(V_DV, SRD_E, f"s{S_ES}", 0, tag, "nt")
    def k1(p):
        p.s(f"s_add_u32 m0, s{S_M0KV}, s{S_EM}")
        p.s(f"s_add_u32 s{S_EM}, s{S_EM}, s{S_ED}")
        if "D" not in ABL: p.dmao(V_DV + 1, SRD_E, f"s{S_ES}", 1024, tag, "nt")
        p.s(f"s_xor_b32 s{S_ED}, s{S_ED}, {2048 ^ 14336}")
    def wo(p):
        p.s(f"s_mov_b32 m0, s{S_EW}")
        p.s(f"s_bitcmp1_b32 s{S_WEND}, 0")
        p.s(f"s_cselect_b32 s{S_T0}, s{S_WT}, {OOB:#x}")
        p.dmao(V_DX, SRD_WO, f"s{S_T0}", 0, ("WOP", it), E("WOFL", "nt"))
        p.s(f"s_xor_b32 s{S_EW}, s{S_EW}, 4096")
        p.s(f"s_lshr_b32 s{S_WEND}, s{S_WEND}, 1")
        p.s(f"s_add_u32 s{S_WT}, s{S_WT}, 128")
    def none(p): p.add(Ins(f"buffer_load_dword v{V_JUNK}, off, s[{SRD_DBG}:{SRD_DBG+3}], 0 offset:256", "vm", [], [], tag="none"))
    def pf(srd, du, j, last):
        def f(p):
            p.s(f"s_add_u32 s{S_T0}, s{S_PFO}, {du * 8192}")
            p.s(f"s_and_b32 s{S_T0}, s{S_T0}, 0x1ffff")
            p.s(f"s_add_u32 s{S_T0}, s{S_T0}, s{S_PFB}")
            p.add(Ins(f"buffer_load_dword v{V_JUNK}, v{V_DV + j}, s[{srd}:{srd+3}], s{S_T0} offen offset:{j * 1024} {E('PFFL', '')}", "vm", [V_DV + j], [], tag="pf"))
            if last:
                p.s(f"s_add_u32 s{S_PFO}, s{S_PFO}, {8192 * PFN // 2}")
                p.s(f"s_bitcmp1_b32 s{S_WEND}, 16")
                p.s(f"s_cselect_b32 s{S_PFB}, s{S_KVP}, {OOB:#x}")
        return f
    fs = [k0, k1, wo, None, kp] if it else [none if x else None for x in EKP[:3]] + [None, kp]
    fs += [pf(SRD_K if k & 1 else SRD_V, (5 if k & 1 else 3) + (k >> 1), 3, k == PFN - 1) if it else (none if PFP[k] else None) for k in range(PFN)]
    fs += [code_touch] * len(CPQ)
    return [(f, 8) for f, x in zip(fs, EKP + [3] + PFP + CPQ) if f and x == h % 4]
def wst(p):
    for i in range(5):
        p.store(A_Q + 16 - 4 * i, 4, V_LIN, SRD_WS, f"s{S_PT}", 0, tag="wst", flags="sc1")
        if i < 4: p.s(f"s_add_u32 s{S_PT}, s{S_PT}, 4096")

def split_ops(ops):
    q = Prog()
    for f, _ in ops: f(q)
    out = []; i = 0; L = [x for x in q.ins if x.kind != "nop"]
    while i < len(L):
        grp = [L[i]]
        if L[i].text.startswith(("s_cmp", "s_bitcmp")): grp.append(L[i + 1])
        i += len(grp)
        out.append((lambda p, grp=grp: [p.add(x) for x in grp], "vm" if grp[0].kind in ("vm", "vml", "vms") else "s", 4 * len(grp)))
    return out
def fill_dma(sc, ops, after, before, tag=None, queue="dma", lead=80):
    so = split_ops(ops)
    for k, (fn, kind, cost) in enumerate(so):
        sc.fill(queue, fn, 8 if kind == "vm" else cost, after=after, before=before, lead=lead, solo=(kind == "vm" and SOLO), paced=(kind == "vm"),
                tag=tag if k == len(so) - 1 else None)
SOLO = int(E("SOLO", "1"))
T7 = int(E("T7", "0"))
def sprinkle(progs, ops, lo=0.0, hi=1.0):
    pts = []
    for p, st in progs:
        masked = False
        for i in range(st, len(p.ins)):
            x = p.ins[i]
            if x.text.startswith("s_mov_b64 exec"): masked = not x.text.endswith("-1")
            if x.kind == "label" and not x.text.startswith(";"): break
            if x.kind in ("valu", "perm") and not masked and p.ins[i - 1].kind in ("valu", "perm") and "v_cmp" not in x.text and "v_cmp" not in p.ins[i - 1].text: pts.append((p, i))
    a, b = int(lo * len(pts)), int(hi * len(pts))
    sel = [pts[a + (k * (b - a)) // len(ops)] for k in range(len(ops))]
    for (p, i), (fn, _) in reversed(list(zip(sel, ops))):
        q = Prog(); fn(q)
        p.ins[i:i] = q.ins

V_CP = 2
CPO = int(E("CPO", "1536"))
CPQ = [int(x) for x in E("CPQ", "2")]
CPA = [int(x) for x in E("CPA", "").split(",") if x]
def code_addr(p, name, L):
    p.s(f"s_getpc_b64 s[{S_TM}:{S_TM+1}]")
    p.label(f"{name}_pc")
    p.s(f"s_lshr_b32 s{S_T0}, s2, 1")
    p.s(f"s_and_b32 s{S_T0}, s{S_T0}, 0x7c")
    p.s(f"s_add_u32 s{S_T0}, s{S_T0}, s{S_W}")
    p.s(f"s_lshl_b32 s{S_T0}, s{S_T0}, 9")
    p.s(f"s_add_u32 s{S_T0}, s{S_T0}, {CPO}")
    p.s(f"s_add_u32 s{S_TM}, s{S_TM}, s{S_T0}")
    p.s(f"s_addc_u32 s{S_TM+1}, s{S_TM+1}, 0")
    p.raw(f"v_and_b32 v{V_CP}, 3, v{L}")
    p.raw(f"v_lshlrev_b32 v{V_CP}, 7, v{V_CP}")
    p.raw(f"v_mov_b32 v{V_CP+1}, s{S_TM+1}")
    p.raw(f"v_add_co_u32 v{V_CP}, vcc, s{S_TM}, v{V_CP}")
    p.raw("s_nop 1")
    p.raw(f"v_addc_co_u32 v{V_CP+1}, vcc, 0, v{V_CP+1}, vcc")
def code_touch(p): p.add(Ins(f"global_load_dword v{V_JUNK}, v[{V_CP}:{V_CP+1}], off", "vm", [], [], tag="code"))

def get_nonce(p, name, t):
    p.add(Ins(f"v_readfirstlane_b32 s{S_NON}, v{V_NV}", "rfl", [V_NV], []))
    p.add(Ins(f"v_readfirstlane_b32 s{S_NON+1}, v{V_NV+1}", "rfl", [V_NV + 1], []))
    p.s(f"s_cmp_lt_i32 s{S_NON+1}, 0")
    p.s(f"s_cbranch_scc1 {name}_x")
    p.vop("v_mov_b32", t + 2, "0")
    p.label(f"{name}")
    p.raw(f"buffer_load_dwordx2 v[{t}:{t+1}], v{t+2}, s[{SRD_DBG}:{SRD_DBG+3}], 0 offen sc1")
    p.raw("s_waitcnt vmcnt(0)")
    p.raw(f"v_readfirstlane_b32 s{S_NON}, v{t}")
    p.raw(f"v_readfirstlane_b32 s{S_NON+1}, v{t+1}")
    p.s(f"s_sub_u32 s{S_SPIN}, s{S_SPIN}, 1")
    p.s(f"s_cbranch_scc1 {name}_x")
    p.s(f"s_cmp_lt_i32 s{S_NON+1}, 0")
    p.s(f"s_cbranch_scc0 {name}")
    p.label(f"{name}_x")
    p.nop(1)

def publish(p, soff, off, t):
    p.vop("v_mov_b32", t, f"s{S_NON}")
    p.vop("v_mov_b32", t + 1, f"s{S_NON+1}")
    p.s("s_mov_b64 exec, 1")
    p.store(t, 2, V_LIN, SRD_WS, soff, off, tag="flag", flags="sc1")
    p.s("s_mov_b64 exec, -1")

def poll_issue(p, vaddr, soff, off, t):
    p.add(Ins(f"buffer_load_dwordx2 v[{t}:{t+1}], v{vaddr}, s[{SRD_WS}:{SRD_WS+3}], {soff} offen offset:{off} sc1", "vml", [vaddr], [t, t + 1], tag="poll"))
def poll_check(p, name, vaddr, soff, off, t, slp=2):
    p.label(f"{name}")
    p.add(Ins(f"v_cmp_ne_u32 vcc, s{S_NON}, v{t}", "valu", [t], []))
    p.add(Ins(f"v_cmp_ne_u32 s[{S_TM+2}:{S_TM+3}], s{S_NON+1}, v{t+1}", "valu", [t + 1], []))
    p.s(f"s_or_b64 vcc, vcc, s[{S_TM+2}:{S_TM+3}]")
    p.s(f"s_cbranch_scc0 {name}_ok")
    p.s(f"s_sub_u32 s{S_SPIN}, s{S_SPIN}, 1")
    p.s(f"s_cbranch_scc1 {name}_ok")
    if slp: p.s(f"s_sleep {slp}")
    p.raw(f"buffer_load_dwordx2 v[{t}:{t+1}], v{vaddr}, s[{SRD_WS}:{SRD_WS+3}], {soff} offen offset:{off} sc1")
    p.raw("s_waitcnt vmcnt(0)")
    p.s(f"s_branch {name}")
    p.label(f"{name}_ok")

def prologue(name):
    p = Prog()
    p.s(f"s_cmp_ge_u32 s2, {NWG}")
    p.s(f"s_cbranch_scc1 {name}_end")
    p.s("s_load_dwordx8 s[84:91], s[0:1], 0")
    p.s("s_load_dwordx8 s[92:99], s[0:1], 32")
    T = V_O
    W, L, a, b, c, d, U, P, VV, R8, PI, M, G, cv = range(T, T + 14)
    p.vop("v_lshrrev_b32", W, "6", 0)
    p.vop("v_and_b32", L, "63", 0)
    p.add(Ins(f"v_readfirstlane_b32 s{S_W}, v{W}", "rfl", [W], []))
    p.vop("v_and_b32", U, "1", W)
    p.vop("v_lshrrev_b32", P, "1", W)
    p.vop("v_lshrrev_b32", VV, "5", L)
    p.vop("v_bfe_u32", R8, L, "2", "3")
    p.vop("v_and_b32", PI, "3", L)
    p.s(f"s_movk_i32 s{S_T0}, 1280")
    p.vop("v_mul_lo_u32", a, R8, f"s{S_T0}")
    p.vop("v_lshl_add_u32", a, VV, "6", a)
    p.vop("v_xor_b32", c, "3", PI)
    p.vop("v_lshl_add_u32", V_DX, PI, "4", a)
    p.vop("v_lshl_add_u32", b, c, "4", a)
    p.vop("v_add_u32", V_DX + 1, f"{9216}", b)
    p.vop("v_add_u32", V_DX + 2, f"{2 * 9216}", V_DX)
    p.vop("v_add_u32", V_DX + 3, f"{3 * 9216}", b)
    p.vop("v_lshrrev_b32", d, "2", R8)
    p.vop("v_lshlrev_b32", cv, "1", d)
    p.vop("v_xor_b32", cv, cv, PI)
    p.vop("v_and_b32", b, "3", R8)
    p.vop("v_lshl_add_u32", b, d, "3", b)
    p.vop("v_lshlrev_b32", d, "7", U)
    p.vop("v_lshl_add_u32", d, VV, "6", d)
    p.vop("v_lshl_add_u32", b, b, "13", d)
    p.vop("v_lshl_add_u32", V_DW, cv, "4", b)
    for j in range(1, 4): p.vop("v_add_u32", V_DW + j, f"{(16 * (j & 1) + 4 * (j >> 1)) * 8192 - 1024 * j}", V_DW)
    p.vop("v_mul_u32_u24", b, "3", P)
    p.vop("v_xor_b32", b, b, PI)
    p.vop("v_lshl_add_u32", b, b, "4", a)
    p.vop("v_lshlrev_b32", a, "2", W)
    p.vop("v_sub_u32", a, P, a)
    p.vop("v_add_u32", a, "16", a)
    p.s(f"s_movk_i32 s{S_T1}, {8 * 1280}")
    p.vop("v_mul_lo_u32", a, a, f"s{S_T1}")
    p.vop("v_add_u32", a, a, b)
    p.vop("v_lshl_add_u32", V_DX + 4, U, "30", a)
    MAP = int(E("MAP", "0"))
    p.s(f"s_bfe_u32 s{S_T0}, s2, {(MAP << 16) | 3:#x}")
    p.s(f"s_lshr_b32 s{S_T2}, s2, {3 + MAP}")
    p.s(f"s_and_b32 s{S_G}, s2, {(1 << (3 - MAP)) - 1}")
    p.s(f"s_lshl_b32 s{S_G}, s{S_G}, {MAP}")
    p.s(f"s_or_b32 s{S_G}, s{S_G}, s{S_T0}")
    p.s(f"s_bfe_u32 s{S_B}, s2, {(MAP << 16) | (3 - MAP):#x}")
    p.s(f"s_lshl_b32 s{S_B}, s{S_B}, {5 - MAP}")
    p.s(f"s_or_b32 s{S_B}, s{S_B}, s{S_T2}")
    p.s(f"s_lshl_b32 s{S_T0}, s{S_T0}, {5 - MAP}")
    p.s(f"s_lshl_b32 s{S_T2}, s{S_T2}, {MAP}")
    p.s(f"s_add_u32 s{S_T2}, s{S_T2}, s{S_T0}")
    p.s(f"s_and_b32 s{S_T2}, s{S_T2}, 31")
    p.s(f"s_lshr_b32 s{S_P}, s{S_W}, 1")
    p.s(f"s_lshl_b32 s{S_M0KV}, s{S_W}, 12")
    p.s(f"s_add_u32 s{S_M0W}, s{S_M0KV}, {WRING}")
    p.s(f"s_lshl_b32 s{S_M0X8}, s{S_P}, 10")
    p.s(f"s_add_u32 s{S_M0X8}, s{S_M0X8}, 16384")
    p.s(f"s_bitcmp1_b32 s{S_W}, 0")
    p.s(f"s_cselect_b32 s{S_M0X8}, 0x1d000, s{S_M0X8}")
    p.s(f"s_lshl_b32 s{S_T0}, s{S_G}, 2")
    p.s(f"s_add_u32 s{S_T0}, s{S_T0}, s{S_P}")
    p.s(f"s_lshl_b32 s{S_WB}, s{S_T0}, 8")
    p.s(f"s_add_u32 s{S_WB+1}, s{S_WB}, 512")
    p.s(f"s_lshl_b32 s{S_T1}, s{S_B}, 5")
    p.s(f"s_add_u32 s{S_T0}, s{S_T0}, s{S_T1}")
    p.s(f"s_lshl_b32 s{S_KVN}, s{S_T0}, 17")
    p.s(f"s_mul_i32 s{S_T0}, s{S_T2}, 5")
    p.s(f"s_lshr_b32 s{S_T0}, s{S_T0}, 4")
    if not int(E("ROT", "1")): p.s(f"s_mov_b32 s{S_T0}, 0")
    p.s(f"s_lshl_b32 s{S_XOFF}, s{S_T0}, 7")
    p.s(f"s_lshl_b32 s{S_WOFF}, s{S_T0}, 19")
    p.s(f"s_mul_i32 s{S_XB}, s{S_B}, {144 * 1280}")
    p.s(f"s_mul_i32 s{S_T0}, s{S_W}, {32 * 1280}")
    p.s(f"s_add_u32 s{S_XB}, s{S_XB}, s{S_T0}")
    def srd(r, src, size):
        p.s(f"s_mov_b32 s{r+2}, {size:#x}")
        p.s(f"s_mov_b32 s{r+3}, 0x20000")
    def srd2(r, src):
        p.s(f"s_mov_b32 s{r}, s{src}")
        p.s(f"s_and_b32 s{r+1}, s{src+1}, 0xffff")
    SR = ((SRD_X, 84, 32 * 144 * 640 * 2), (SRD_W, 90, 640 * 4096 * 2), (SRD_K, 86, 1 << 27), (SRD_V, 88, 1 << 27),
          (SRD_WO, 92, 4096 * 640 * 2), (SRD_OUT, 94, 32 * 144 * 640 * 2), (SRD_DBG, 96, 256), (SRD_WS, 98, (1 << 28) if PROF else WSBYTES))
    for x in SR: srd(*x)
    p.s("s_waitcnt lgkmcnt(0)")
    for x in SR[:2]: srd2(*x[:2])
    for ops in (x_ops(0), w_ops(0), w_ops(1)):
        for f, _ in ops: f(p)
    for x in SR[2:]: srd2(*x[:2])
    stamp(p, 0)
    p.vop("v_lshlrev_b32", V_LIN, "4", L)
    code_addr(p, name, L)
    code_touch(p)
    p.vop("v_lshl_add_u32", b, R8, "8", d)
    p.vop("v_lshl_add_u32", V_DV, cv, "4", b)
    for j in range(1, 4): p.vop("v_add_u32", V_DV + j, f"{1024 * j}", V_DV)
    p.s(f"s_lshl_b32 s{S_T0}, s2, 1")
    p.s(f"s_add_u32 s{S_T0}, s{S_T0}, s{S_P}")
    p.s(f"s_mul_i32 s{S_T0}, s{S_T0}, {int(E('KROT', '5'))}")
    p.s(f"s_lshr_b32 s{S_T1}, s2, 3")
    p.s(f"s_add_u32 s{S_T0}, s{S_T0}, s{S_T1}")
    p.s(f"s_and_b32 s{S_T0}, s{S_T0}, {15 if int(E('KROT', '5')) else 0}")
    p.s(f"s_lshl_b32 s{S_KOFF}, s{S_T0}, 13")
    p.s(f"s_mov_b32 s{S_M0KVP}, s{S_M0KV}")
    p.s(f"s_mov_b32 s{S_M0KVP+1}, s{S_M0W}")
    p.s(f"s_mov_b32 s{S_KVP}, s{S_KVN}")
    p.s(f"s_mov_b32 s{S_EM}, 0")
    p.s(f"s_movk_i32 s{S_ED}, 2048")
    p.s(f"s_mov_b32 s{S_TAB}, 0x83210549")
    srd(SRD_E, 0, 1 << 27)
    p.s(f"s_and_b32 s{S_U}, s{S_W}, 1")
    p.s(f"s_lshl_b32 s{S_T0}, s{S_B}, 2")
    p.s(f"s_lshr_b32 s{S_T1}, s{S_G}, 1")
    p.s(f"s_add_u32 s{S_T0}, s{S_T0}, s{S_T1}")
    p.s(f"s_and_b32 s{S_T1}, s{S_G}, 1")
    p.s(f"s_lshl_b32 s{S_WFP}, s{S_T1}, 7")
    p.s(f"s_add_u32 s{S_WFP}, s{S_WFP}, s{S_T0}")
    p.s(f"s_lshl2_add_u32 s{S_WFP}, s{S_WFP}, s{S_W}")
    p.s(f"s_lshl3_add_u32 s{S_WFP}, s{S_WFP}, {WFLG}")
    p.s(f"s_mul_i32 s{S_T0}, s{S_T0}, 40960")
    p.s(f"s_mul_i32 s{S_PT}, s{S_T1}, 20480")
    p.s(f"s_add_u32 s{S_PT}, s{S_PT}, s{S_T0}")
    p.s(f"s_lshl_b32 s{S_EW}, s{S_W}, 10")
    p.s(f"s_add_u32 s{S_PT}, s{S_PT}, s{S_EW}")
    p.s(f"s_add_u32 s{S_EW}, s{S_EW}, {STG}")
    p.s(f"s_mul_i32 s{S_T1}, s{S_T1}, 640")
    p.s(f"s_add_u32 s{S_WT}, s{S_T1}, s{S_T0}")
    p.s(f"s_mul_i32 s{S_T1}, s{S_W}, {8 * 1280}")
    p.s(f"s_add_u32 s{S_WT}, s{S_WT}, s{S_T1}")
    p.s(f"s_mov_b32 s{S_WEND}, {0x7c | ((0xfff << (15 + PFS)) & 0x7fff0000):#x}")
    if PFN:
        p.s(f"s_sub_u32 s{S_PFO}, s{S_KOFF}, {8192 * PFN // 2 * (PFS - 1)}")
        p.s(f"s_mov_b32 s{S_PFB}, " + (f"s{S_KVP}" if PFS == 1 else f"{OOB:#x}"))
    if int(E("TOUCH", "1")):
        p.add(Ins(f"buffer_load_dword v{V_T+4}, off, s[{SRD_K}:{SRD_K+3}], s{S_KVN} nt", "vml", [], [V_T + 4], tag="touch"))
        p.add(Ins(f"buffer_load_dword v{V_T+5}, off, s[{SRD_V}:{SRD_V+3}], s{S_KVN} nt", "vml", [], [V_T + 5], tag="touch"))
        p.add(Ins(f"buffer_load_dword v{V_T+7}, off, s[{SRD_WS}:{SRD_WS+3}], s{S_PT} sc1", "vml", [], [V_T + 7], tag="touch"))
        if int(E("TOUCHO", "1")): p.add(Ins(f"buffer_load_dword v{V_T+6}, off, s[{SRD_WO}:{SRD_WO+3}], s{S_WT}", "vml", [], [V_T + 6], tag="touch"))
    p.s(f"s_sub_u32 s{S_WT}, s{S_WT}, 256")
    p.s(f"s_or_b32 s{S_T0}, s2, s{S_W}")
    p.s(f"s_cmp_lg_u32 s{S_T0}, 0")
    p.s(f"s_cbranch_scc1 {name}_nononce")
    p.s(f"s_memrealtime s[{S_NON}:{S_NON+1}]")
    p.s("s_waitcnt lgkmcnt(0)")
    p.s(f"s_or_b32 s{S_NON+1}, s{S_NON+1}, 0x80000000")
    p.raw(f"v_mov_b32 v{V_T}, s{S_NON}")
    p.raw(f"v_mov_b32 v{V_T+1}, s{S_NON+1}")
    p.s("s_mov_b64 exec, 1")
    p.raw(f"buffer_store_dwordx2 v[{V_T}:{V_T+1}], v{V_LIN}, s[{SRD_DBG}:{SRD_DBG+3}], 0 offen sc1")
    p.s("s_mov_b64 exec, -1")
    p.label(f"{name}_nononce")
    p.s(f"s_mov_b32 s{S_SPIN}, 0x40000")
    p.s(f"s_mov_b32 s{S_PH}, 0")
    if PROF in (2, 3): p.s("s_mov_b32 s93, 32")
    p.s(f"s_mov_b64 s[{S_BAD}:{S_BAD+1}], 0")
    p.s(f"s_mov_b32 s{S_CS}, {f2u(CSCALE):#x}")
    p.s(f"s_mov_b32 s{S_CS+1}, s{S_CS}")
    p.s(f"s_mov_b32 s{S_LO}, {f2u(2.0 ** -24):#x}")
    p.s(f"s_mov_b32 s{S_HI}, {f2u(2.0 ** 16):#x}")
    p.vop("v_and_b32", M, "15", L)
    p.vop("v_lshrrev_b32", G, "4", L)
    p.vop("v_lshrrev_b32", a, "3", M)
    p.vop("v_mul_u32_u24", c, "3", a)
    p.vop("v_xor_b32", c, c, G)
    p.vop("v_and_b32", b, "7", M)
    p.vop("v_lshlrev_b32", b, "6", b)
    p.vop("v_lshl_add_u32", b, c, "4", b)
    p.vop("v_lshl_add_u32", b, a, "10", b)
    p.vop("v_add_u32", V_AX8, f"{XRING}", b)
    p.vop("v_lshl_add_u32", V_AX, U, "13", V_AX8)
    p.vop("v_add_u32", V_AW + 5, f"{XALT}", b)
    p.vop("v_lshl_add_u32", V_AW + 4, U, "13", V_AW + 5)
    p.vop("v_and_b32", c, "0x1ff", V_LIN)
    p.vop("v_lshl_add_u32", c, VV, "10", c)
    p.vop("v_lshl_add_u32", c, P, "9", c)
    p.vop("v_lshl_add_u32", c, U, "3", c)
    p.vop("v_add_u32", V_WR, f"{STG + 4096}", c)
    p.vop("v_and_b32", b, "0xffffffcf", b)
    p.vop("v_bfe_u32", a, M, "2", "1")
    p.vop("v_lshlrev_b32", a, "1", a)
    p.vop("v_xor_b32", a, a, G)
    p.vop("v_lshl_add_u32", b, a, "4", b)
    p.vop("v_lshl_add_u32", V_AK, P, "13", b)
    p.vop("v_lshrrev_b32", a, "1", G)
    p.vop("v_lshlrev_b32", b, "10", a)
    p.vop("v_lshl_add_u32", b, R8, "6", b)
    p.vop("v_and_b32", c, "1", L)
    p.vop("v_lshl_add_u32", b, c, "3", b)
    p.vop("v_bfe_u32", c, L, "1", "1")
    p.vop("v_lshl_add_u32", b, c, "4", b)
    p.vop("v_and_b32", c, "1", G)
    p.vop("v_lshl_add_u32", b, c, "5", b)
    p.vop("v_lshl_add_u32", V_AV0, P, "13", b)
    p.vop("v_xor_b32", V_AV1, "32", V_AV0)
    p.vop("v_lshl_add_u32", a, U, "12", V_AV0)
    p.vop("v_xor_b32", b, "32", a)
    p.vop("v_xor_b32", c, "4096", a)
    p.vop("v_xor_b32", d, "4096", b)
    for i, r in enumerate((a, b, c, d)): p.vop("v_add_u32", V_AW + i, f"{WRING}", r)
    for ops in (w_ops(2), x_ops(1), w_ops(3)):
        for f, _ in ops: f(p)
    stamp(p, 23)
    return p

def R128(d, a, off): return lambda p: p.ds_read128(d, a, off)
def TR(d, a, off): return lambda p: p.ds_tr(d, a, off)

class Pool:
    def __init__(self, sc, base, n):
        self.sc = sc; self.regs = base if isinstance(base, list) else [base + 4 * k for k in range(n)]; n = len(self.regs); self.n = n; self.last = [None] * n; self.i = 0; self.frags = []
    def frag(self, tile, mk_reads, consumers, as_b=False):
        k = self.i % self.n; self.i += 1
        r = self.regs[k]
        war = self.last[k]
        for (d, o, c, tag) in consumers:
            if as_b: self.sc.mfma(d, o, r, c, tag)
            else: self.sc.mfma(d, r, o, c, tag)
        self.last[k] = consumers[-1][3]
        self.frags.append((tile, mk_reads(r), consumers[0][3], war))

LEAD = int(E("LEAD", "9"))
LEADB = int(E("LEADB", "8"))
BGAP = int(E("BGAP", "4"))

def sstamp(p):
    p.s(f"s_memrealtime s[{S_TM}:{S_TM+1}]")
    p.s(f"s_memtime s[{S_TM+2}:{S_TM+3}]")
    p.wait_lgkm0()
    p.s("s_mov_b32 s99, m0")
    p.s("s_mov_b32 m0, s93")
    p.s("s_add_u32 s93, s93, 1")
    p.raw(f"v_writelane_b32 v0, s{S_TM}, m0")
    p.raw(f"v_writelane_b32 v255, s{S_TM+2}, m0")
    p.s("s_mov_b32 m0, s99")

def qmod(name):
    p = Prog()
    KVS = [-1] * 4 + [int(x) for x in E("KVS", "37").split(",")]
    sc = Sched(p, budget=int(E("QBUD", "8")), late_extra=8)
    sc.group["dma"] = "vm"; sc.pace["vm"] = int(E("QPACE", "4"))
    sc.maxds = int(E("QMAXDS", "1"))
    pool = Pool(sc, A_QP, NPOOL)
    for h in range(40):
        r = h & 1; st = (h >> 1) & 1
        for k in range(8):
            off = (h % 4) * 16384 + ((k >> 1) & 1) * 512
            ad = V_AW + 2 * (k >> 2) + (k & 1)
            cons = [(QA(r, n, k), Xf(st, n), QA(r, n, k) if h > 1 else None, ("Q", h, k, n)) for n in range(5 if k < 4 else 4)]
            pool.frag(h, lambda rg: [TR(rg, ad, off), TR(rg + 2, ad, off + 2048)], cons)
    mt = lambda i: sc.m[max(0, min(i, len(sc.m) - 1))][4]
    XT = int(E("XT", "1")); A_XT = A_Q + 40
    def xreads(i, kh):
        return [R128(A_XT + 4 * n if (XT and kh and i) else Xf(kh, n), (V_AX if i else V_AW + 4) + (n >> 2), (n if n < 4 else 8) * 2048 + kh * 512) for n in range(5)]
    for fi, (h, reads, cons, war) in enumerate(pool.frags):
        c0 = 36 * h
        tau = c0 - LEADB
        taun = c0 + 36 - LEADB
        if fi % 8 == 0:
            def bar(p, h=h):
                p.comment(f"---- q step {h}")
                tags = [("W", h)]
                if h == 0: tags.append(("X", 0))
                if h % 4 == 3 and h < 39: tags.append(("X", (h + 1) // 4))
                if h % 4 == EKP[3] and 4 <= h < 36: tags.append(("WOP", h // 4 - 1))
                p.wait_vm(tags, lgkm0=True)
                if "b" not in ABL or h < 4: p.barrier()
                if PROF == 2 and h % 2 == 0: sstamp(p)
            ops = []
            if h % 4 == 1 - XT and 4 <= h < 36: ops += x_ops(h // 4 + 1)
            if 1 <= h < 37: ops += w_ops(h + 3)
            if "d" in ABL: ops = []
            nb = len(ops)
            if h < 36: ops = ek_ops(h) + ops if (h % 4 == 0 and int(E("EKF", "0"))) else ops + ek_ops(h)
            nb = len(ops) - nb
            if h % 4 == EKP[3] and 4 <= h < 36:
                for r in range(15, -1, -1): sc.fill("rw", lambda p, r=r: p.amov(A_Q + 4 + r, A_Q + r), 4, after=dict(tag=("BAR", h), delay=14))
                for i in range(2): sc.fill("rw", TR(A_Q + 2 * i, V_WR, i * 2048), 4, ds=True, before=mt(taun - BGAP), lead=2)
                sc.fill("rw", lambda p: p.vop("v_xor_b32", V_WR, "4096", V_WR), 4, before=mt(taun - 1))
            if h == 36 and "S" not in ABL: ops += [(wst, 20)]
            for k, x in enumerate(KVS):
                if x == h: ops += kv_ops(32 + k)
            sc.fill("rd", bar, 8, before=mt(tau), early=0 if h else None, tag=("BAR", h))
            QD = int(E("QD", "14")) - 4 * nb * int(E("QDE", "0")) if len(ops) - nb <= 4 else int(E("QD2", "0"))
            fill_dma(sc, ops, dict(tag=("BAR", h), delay=QD), mt(taun - 1))
            if h == 0:
                for k, fn in enumerate(xreads(0, 0)): sc.fill("rd", fn, 4, ds=True, before=mt(0))
            xr = []; aft = [("BAR", h)]
            if h % 4 == 3 and h < 39: xr = xreads((h + 1) // 4, 0)
            if XT and xr: xr += xreads((h + 1) // 4, 1)
            if XT and h % 4 == 0 and h:
                for r in range(20): sc.fill("cp", lambda p, r=r: p.ar(Xf(1, 0) + r, A_XT + r), 4, after=dict(tag=("Q", h - 1, 7, 3), delay=1), before=mt(c0 + 62), lead=0, early=int(E("XCE", "20")))
            elif h % 4 == 0:
                xr = xreads(h // 4, 1)
                if h: aft.append(("Q", h - 1, 7, 3))
            for j, fn in enumerate(xr):
                sc.fill("rx", fn, 4, ds=True, after=aft, before=mt(taun - BGAP), lead=(2 if XT else 3) * (len(xr) - j))
        for k, fn in enumerate(reads):
            if "r" in ABL and h >= 2: continue
            bf = cons
            if sc.idx[cons] > taun - BGAP: bf = mt(taun - BGAP)
            sc.fill("rd", fn, 4, ds=True, after=war if k == 0 else None, before=bf, lead=LEAD if bf is cons else 0, early=int(E("QEARLY", "99")))
    def lastbar(p):
        p.comment("---- q step 40")
        p.wait_lgkm0(); p.barrier()
        p.add(Ins(f"buffer_load_dwordx2 v[{V_NV}:{V_NV+1}], off, s[{SRD_DBG}:{SRD_DBG+3}], 0 sc1", "vml", [], [V_NV, V_NV + 1], tag="non"))
    sc.fill("rd", lastbar, 8, before=mt(36 * 40 - LEADB), early=0)
    sc.run()
    stamp(p, 1)
    fstart = len(p.ins)
    TB = V_O + 144
    cnt = [0]
    def fin(r, n, t, i):
        s0 = QA(r, n, 2 * t)
        if r:
            tb = TB + 8 * (cnt[0] & 1); cnt[0] += 1
            for x in range(8): p.ar(tb + x, s0 + x)
            s0 = tb
        dst = V_S + 4 * i
        for x in range(0, 8, 2): p.pkmul(s0 + x, s0 + x, f"s[{S_CS}:{S_CS+1}]")
        for x in range(4): p.cvtpk(dst + x, s0 + 2 * x, s0 + 2 * x + 1)
        return dst
    p.v(f"v_lshl_add_u32 v{V_E0}, s{S_W}, 12, v{V_LIN}", [V_E0], [V_LIN])
    p.vop("v_add_u32", V_E0, f"{XRING}", V_E0)
    p.vop("v_xor_b32", V_E1, "4096", V_E0)
    p.vop("v_and_b32", V_E2, "0xfffffcf0", V_E0)
    p.vop("v_bfe_u32", V_T, V_LIN, "9", "1")
    p.vop("v_lshl_add_u32", V_E2, V_T, "8", V_E2)
    p.vop("v_bfe_u32", V_T, V_LIN, "8", "1")
    p.vop("v_lshl_add_u32", V_E2, V_T, "3", V_E2)
    for r in range(2):
        for t in range(2): p.ds_write2(V_E2, fin(r, 4, t, 2 * r + t), (2 * r + t) * 1024)
    for r in range(2):
        base = A_QN if r else A_Q
        for n in range(4):
            FL = [int(x) for x in E("FLD", "02,02").split(",")[r]]
            ds = {}
            for t in range(4):
                ds[t] = fin(r, n, t, 4 + (n & 1) * 4 + t)
                if t in FL: p.ds_write2(V_E2, ds.pop(t), 16384 + t * 1024)
            for f in (p.swap32, p.swap16):
                for d in ds.values(): f(d, d + 2); f(d + 1, d + 3)
            for t in FL: p.ds_read128(Qf(n, t, base), V_E0, 16384 + t * 1024)
            for t, d in ds.items():
                for x in range(4): p.aw(Qf(n, t, base) + x, d + x)
            if r == 0 and n == 1:
                p.raw(f"s_waitcnt lgkmcnt({2 * len(FL)})"); p.barrier()
                for t in range(2): p.ds_read128(Qf(4, t), V_E0, t * 1024)
                for t in range(2): p.ds_read128(Qf(4, 2 + t), V_E1, t * 1024)
    for t in range(2): p.ds_read128(Qf(4, t, A_QN), V_E0, 2048 + t * 1024)
    for t in range(2): p.ds_read128(Qf(4, 2 + t, A_QN), V_E1, 2048 + t * 1024)
    p.vop("v_mov_b32", V_T, "0x3f803f80")
    for r in range(4): p.aw(A_ONE + r, V_T)
    sprinkle([(p, fstart)], sum([kv_ops(32 + k) for k in range(len(KVS), 8 - T7)], []), 0.0, float(E("QSH", "1.0")))
    stamp(p, 26)
    get_nonce(p, f"{name}_n1", V_T)
    stamp(p, 27)
    p.wait_vm("wst")
    stamp(p, 28)
    publish(p, f"s{S_WFP}", 0, V_T)
    stamp(p, 29)
    z = p
    z.s(f"s_mul_i32 s{S_WT}, s{S_G}, {16 * 40960}")
    z.s(f"s_mul_i32 s{S_T0}, s{S_W}, 10240")
    z.s(f"s_add_u32 s{S_WT}, s{S_WT}, s{S_T0}")
    z.s(f"s_lshl_b32 s{S_PF}, s{S_P}, 12")
    z.s(f"s_lshl_b32 s{S_T1}, s{S_G}, 9")
    z.s(f"s_add_u32 s{S_PF}, s{S_PF}, s{S_T1}")
    z.s(f"s_add_u32 s{S_PF}, s{S_PF}, {WFLG}")
    z.vop("v_lshrrev_b32", V_AX, "1", V_LIN)
    for n in range(5): z.vop("v_mov_b32", V_DA + n, f"{DROP:#x}")
    ti_init(z, 0)
    stamp(z, 2)
    return p

def a_mfmas(sc, pool, qh):
    AV = (V_AV0, V_AV1)
    has8 = lambda u: (u & 1) == qh
    for pos, (kind, u) in enumerate(KVSEQ):
        sb = (pos % 4) * 16384
        ns = [0, 1, 2, 3] + ([4] if has8(u) else [])
        if kind == "K":
            for kt in range(2):
                for ks in range(4):
                    off = sb + kt * 2048 + ((ks >> 1) ^ qh) * 4096 + (ks & 1) * 512
                    cons = []
                    for n in ns:
                        d = XS(u & 1, n) if kt == 0 else YS(n)
                        cons.append((d, Qf(n, ks), d if ks else None, ("S", u, kt, ks, n)))
                    pool.frag(pos, lambda r: [R128(r, V_AK, off)], cons)
                SCH = int(E("SCH", "4"))
                k0 = len(sc.m) - 4 * len(ns)
                sc.m[k0:] = sorted(sc.m[k0:], key=lambda x: (x[4][3] // SCH, x[4][4], x[4][3]))
                for k in range(k0, len(sc.m)): sc.idx[sc.m[k][4]] = k
        else:
            first = lambda n: u == 0 if n < 4 else u == qh
            for n in ns: sc.mfma(La(n), A_ONE, XS(u & 1, n), None if first(n) else La(n), ("L", u, n))
            for m in range(8):
                e, mp = m & 1, m >> 1
                off = sb + (mp >> 1) * 4096 + (mp & 1) * 512
                oa = lambda n: Oa(n, m if n < 4 else m ^ (4 * qh))
                cons = [(oa(n), XS(u & 1, n), None if first(n) else oa(n), ("PV", u, m, n)) for n in ns]
                if int(E("SNK", "1")) and m % 2 == 0: cons.reverse()
                pool.frag(pos, lambda r: [TR(r, AV[e], off), TR(r + 2, AV[e], off + 2048)], cons)

def a_taus():
    cs = []
    for qh in range(2):
        sc = Sched(Prog()); pool = Pool(sc, A_POOL, NPOOL); a_mfmas(sc, pool, qh)
        c = {}
        for (pos, _, cons, _) in pool.frags: c.setdefault(pos, sc.idx[cons])
        c[32] = len(sc.m) + LEADB - 3
        cs.append(c)
    return [min(cs[0][j], cs[1][j]) - LEADB for j in range(33)]

def aentry(name):
    p = Prog()
    p.label(f"{name}_A")
    p.s(f"s_mov_b32 s{S_KB}, s{S_KVN}")
    p.s(f"s_mov_b32 s{SRD_C+2}, 0x8000000")
    p.s(f"s_add_u32 s{S_KVN}, s{S_KVN}, {2 << 17}")
    p.s(f"s_cmp_eq_u32 s{S_PH}, 0")
    p.s(f"s_cselect_b32 s{S_M0KVP}, s{S_M0KV}, {DROP:#x}")
    p.s(f"s_cselect_b32 s{S_M0KVP+1}, s{S_M0W}, {DROP:#x}")
    p.s(f"s_cselect_b32 s{S_KVP}, s{S_KVN}, {OOB:#x}")
    p.s(f"s_cselect_b32 s{S_WT2}, {OOB:#x}, s{S_WT}")
    p.s(f"s_cmp_eq_u32 s{S_U}, 1")
    p.s(f"s_cbranch_scc1 {name}_A1")
    return p

def tile_addr(p, base, dst):
    p.s(f"s_lshl_b32 s{S_T0}, s{S_U}, 2")
    p.s(f"s_sub_u32 s{S_T0}, s{S_T0}, s{S_G}")
    for n in range(4):
        p.s(f"s_add_u32 s{S_T1}, s{S_T0}, {n + 7}")
        p.s(f"s_and_b32 s{S_T1}, s{S_T1}, 7")
        p.v(f"v_lshl_add_u32 v{dst+n}, s{S_T1}, 10, v{base}", [dst + n], [base])

S_TI = 96
TI = [[tuple(int(x) for x in y.split("+")) for y in z.split(",")] for z in E("TI", "0+0,4+7;-1+0,-1+0").split(";")]
def ti_init(p, r):
    for k, (b, sp) in enumerate(TI[r]):
        if b < 0 or TI[0][k] == (0, 0): continue
        p.s(f"s_add_u32 s{S_T0}, s{S_B}, s{S_G}")
        p.s(f"s_and_b32 s{S_T0}, s{S_T0}, {sp}")
        p.s(f"s_add_u32 s{S_T0}, s{S_T0}, {b}")
        p.s(f"s_lshl_b32 s{S_TI + k}, 1, s{S_T0}")
def avm(pos):
    if pos >= 30: return None
    pat = [int(x) for x in E("AVM", "3,4").split(",")]
    h = [int(x) for x in E("AVMH", "").split(",") if x]
    if pos < len(h): return h[pos]
    return pat[pos % len(pat)] + (3 if 1 <= pos <= 4 else 0)
RQ = [int(x) for x in E("RQH", "3,3,3,3" if T7 else "0,3,3,2").split(",")] + [int(x) for k in "123" for x in E("RQ" + k, "43434343")] + [int(x) for x in E("RQT", "4,4,4,4").split(",")]
STREAM = sum([kv_ops(k) for k in range(8 - T7, 40 - T7)], [])
for s_ in range(32): assert sum(RQ[:s_ + 1]) <= 4 * (s_ + T7)
def amod(name, qh):
    p = Prog()
    p.label(f"{name}_A{qh}")
    sc = Sched(p, budget=int(E("ABUD", "8")), late_extra=int(E("ALATE", "8")))
    sc.group["dma"] = "vm"; sc.pace["vm"] = int(E("APACE", "2"))
    pool = Pool(sc, A_POOL, NPOOL)
    a_mfmas(sc, pool, qh)
    tau = a_taus()
    mt = lambda i: sc.m[max(0, min(i, len(sc.m) - 1))][4]
    def add_bar(pos):
        def bar(p, pos=pos):
            p.comment(f"---- a step {pos}")
            if TI[0][pos % 2] != (0, 0) and pos < 30:
                p.s(f"s_lshr_b32 s{S_TI + pos % 2}, s{S_TI + pos % 2}, 1")
                p.s("s_cbranch_scc0 1")
                p.raw(f"s_waitcnt vmcnt({avm(pos) - 1})")
            if pos < 32: p.wait_vm(KVSEQ[pos], lgkm0=True, cap=avm(pos))
            else: p.wait_lgkm0()
            p.barrier()
            if pos % 4 == 0 and pos:
                for r in (V_AV0, V_AV1, V_AK): p.vop("v_xor_b32", r, "0x10000", r)
            if PROF == 3 and pos % 2 == 0 and pos < 32: sstamp(p)
        sc.fill("rd", bar, 8, before=mt(tau[pos]), early=0 if pos else None, tag=("BAR", pos))
        if pos < 32:
            ops = STREAM[sum(RQ[:pos]):sum(RQ[:pos + 1])]
            aft = ("BAR", pos); bf = mt(tau[pos + 1] - 1)
            span = tau[pos + 1] - max(tau[pos], 0)
            if pos in CPA: ops = [(code_touch, 8)] + ops
            for k, op in enumerate(ops): fill_dma(sc, [op], dict(tag=aft, delay=(k * (span - 2)) // len(ops)), bf)
            if pos < 4:
                for k in range(3 * pos, 3 + 3 * pos):
                    for fn, kind, cost in split_ops([(wload(0, k, S_T2, S_WT2), 8)]):
                        sc.fill("dmp", fn, 8 if kind == "vm" else 4, after=dict(tag=aft, delay=5 + 9 * (k % 3)), solo=(kind == "vm"), before=bf, lead=20)
            if pos == 30:
                WLS = int(E("WLS", "6"))
                last = ("S", 15, 1, 3, 4 if qh == 1 else 3)
                for k in range(12):
                    for fn, kind, cost in split_ops([(wload(0, 12 + k, S_T2, S_WT2), 8)]):
                        sc.fill("dmp", fn, 8 if kind == "vm" else 4, after=dict(tag=last, delay=2 + WLS * k), solo=(kind == "vm"), before=mt(sc.idx[last] + 12 + WLS * k), lead=9)
            if 26 <= pos < 30:
                t = pos - 26
                ws = [(V_DA + n, Qf(n, t, A_QN), t * 18432 + 1024) for n in range(4)]
                if t >> 1 == qh: ws.append((V_DA + 4, Qf(4, t & 1, A_QN), (t & 1) * 18432))
                for k, w in enumerate(ws):
                    sc.fill("dw", lambda p, w=w: p.ds_write(w[0], w[1], 4, w[2]), 8, solo=True, after=dict(tag=aft, delay=4 + k * ((span - 10) // len(ws))), before=mt(tau[pos + 1] - BGAP), lead=12)
            if pos == 31:
                for f in range(8): sc.fill("dw", R128(P0_B[f], V_LIN, IMG(f)), 4, ds=True, after=dict(tag=aft, delay=16 + 2 * f), before=mt(tau[32] - BGAP), lead=4)
    cur = None
    for (pos, reads, cons, war) in pool.frags:
        if pos != cur:
            cur = pos; add_bar(pos)
        for k, fn in enumerate(reads):
            bf = cons
            if sc.idx[cons] > tau[pos + 1] - BGAP: bf = mt(tau[pos + 1] - BGAP)
            sc.fill("rd", fn, 4, ds=True, after=war if k == 0 else None, before=bf, lead=LEAD if bf is cons else 0)
    add_bar(32)
    def V(fn, after=None, before=None, cost=4, lead=0): sc.fill("va", fn, cost, after=after, before=before, lead=lead)
    EDL = int(E("EDL", "3"))
    for u in range(16):
        ns = [0, 1, 2, 3] + ([4] if (u & 1) == qh else [])
        for kt in range(2):
            for n in ns:
                src = XS(u & 1, n) if kt == 0 else YS(n)
                dst = XS(u & 1, n) + 2 * kt
                for r in range(4):
                    V(lambda p, reg=src + r: p.exp(reg, reg), after=dict(tag=("S", u, kt, 3, n), delay=EDL), cost=8)
                bf = ("L", u, n)
                if kt == 1 and n < 4 and u < 15: bf = ("S", u + 1, 1, 0, n)
                V(lambda p, dst=dst, src=src: p.cvtpk(dst, src, src + 1))
                V(lambda p, dst=dst, src=src: p.cvtpk(dst + 1, src + 2, src + 3), before=bf, lead=2)
    sc.run()
    p.s(f"s_cmp_eq_u32 s{S_PH}, 0")
    p.s(f"s_cbranch_scc0 {name}_P0")
    if qh == 0: p.s(f"s_branch {name}_F")
    return p

RL, CHK, PX, AD, AL = V_S + 2, V_S + 12, V_S + 16, V_S + 48, V_S + 50
def f_addr(p):
    p.v(f"v_lshl_add_u32 v{AD}, s{S_W}, 12, v{V_LIN}", [AD], [V_LIN])
    p.vop("v_add_u32", AD, f"{MISC}", AD)
    p.vop("v_xor_b32", AD + 1, "4096", AD)
def f_bad(op, a, b):
    def f(p):
        p.add(Ins(f"{op} vcc, v{a}, {b}", "valu", [a], []))
        p.s(f"s_or_b64 s[{S_BAD}:{S_BAD+1}], s[{S_BAD}:{S_BAD+1}], vcc")
    return f
def f_rcp(n): return [lambda p: p.vop("v_rcp_f32", RL + 2 * n, RL + 2 * n, kind="trans"), lambda p: p.vop("v_mov_b32", RL + 2 * n + 1, RL + 2 * n)]
def f_range():
    return [lambda p: p.vop("v_max3_f32", V_S, RL, RL + 2, RL + 4), lambda p: p.vop("v_min3_f32", V_S + 1, RL, RL + 2, RL + 4),
            lambda p: p.vop("v_max3_f32", V_S, V_S, RL + 6, RL + 8), lambda p: p.vop("v_min3_f32", V_S + 1, V_S + 1, RL + 6, RL + 8),
            f_bad("v_cmp_nle_f32", V_S, f"s{S_HI}"), f_bad("v_cmp_nge_f32", V_S + 1, f"s{S_LO}")]
def f_fin(): return [lambda p: p.s(f"s_movk_i32 s{S_T2}, 0x207"), f_bad("v_cmp_class_f32", CHK, f"s{S_T2}")]
def f_norm(n, t):
    s0 = Oa(n, 2 * t)
    add = [lambda p, r=r: p.add(Ins(f"v_pk_add_f32 {vr(s0 + r, 2)}, {vr(s0 + r, 2)}, {vr(PX + 8 * t + r, 2)}", "valu", R(s0 + r, 2) | R(PX + 8 * t + r, 2), R(s0 + r, 2))) for r in range(0, 8, 2)] if n == 4 else []
    return add + [lambda p, r=r: p.pkmul(s0 + r, s0 + r, RL + 2 * n) for r in range(0, 8, 2)], [lambda p, r=r: p.cvtpk(s0 + r, s0 + 2 * r, s0 + 2 * r + 1) for r in range(4)]
def f_l8(): return [lambda p: p.vop("v_add_f32", RL + 8, RL + 8, V_S)] + f_rcp(4)
UNITS = [(n, t) for n in (0, 1, 2, 4, 3) for t in range(4 if n < 4 else 2)]
def afin(name):
    p = Prog()
    p.label(f"{name}_F")
    stamp(p, 5)
    poll_issue(p, V_AX, f"s{S_PF}", 0, V_NV)
    f_addr(p)
    for i in range(4): p.ds_write(AD + 1, Oa(4, 4 + i), 4, i * 1024)
    for i in range(2): p.vop("v_subrev_u32", AL + i, "16384", AD + i)
    p.ds_write(AL + 1, La(4), 1, 0)
    for n in range(5): p.ar(RL + 2 * n, La(n))
    for k in range(2):
        for n in range(4): f_rcp(n)[k](p)
    p.wait_lgkm0()
    for k, (n, t) in enumerate(UNITS):
        if k == 4:
            p.barrier()
            for i in range(4): p.ds_read128(PX + 4 * i, AD, i * 1024)
            p.ds_read32(V_S, AL, 0)
        if k == 11:
            for f in f_l8(): f(p)
        for f in sum(f_norm(n, t), []): f(p)
    for f in f_range(): f(p)
    p.s(f"s_mov_b32 s{S_PH}, 1")
    stamp(p, 6)
    for r in range(80):
        if r % 4 == 0 and r < 72: p.mfma(CHK, A_ONE, Oa(UNITS[r // 4][0], 2 * UNITS[r // 4][1]), CHK if r else None)
        p.amov(A_Q + r, A_QN + r)
    for n, t in UNITS:
        for r in range(4): p.aw(Qf(n, t, A_QN) + r, Oa(n, 2 * t) + r)
    for f in f_fin(): f(p)
    sprinkle([(p, 8)], STREAM[sum(RQ):], 0.0, float(E("ASH", "0.7")))
    code_touch(p)
    p.s(f"s_mul_i32 s{S_T0}, s{S_P}, 9216")
    p.vop("v_add_u32", V_DA + 4, f"s{S_T0}", V_LIN)
    tile_addr(p, V_DA + 4, V_DA)
    p.s(f"s_mul_i32 s{S_T0}, s{S_U}, 36864")
    p.vop("v_add_u32", V_DA + 4, f"s{S_T0}", V_DA + 4)
    psetup(p)
    ti_init(p, 1)
    poll_check(p, f"{name}_wpoll", V_AX, f"s{S_PF}", 0, V_NV)
    p.s(f"s_branch {name}_A")
    return p

P_R = ([A_X + 4 * i for i in range(10)] + [10, 14] + [A_Q + 4 * i for i in range(20)],
       [A_L + 4 * i for i in range(5)] + [A_POOL + 4 * i for i in range(6)] + [A_QN + 64 + 4 * i for i in range(4)] + [A_QN + 4 * i for i in range(16)] + [A_ONE])
P0_B = P_R[0][24:] + [A_QN + 4 * (i % 16) for i in range(64)]
def wload(j, i, so=None, sb=None, extra=0):
    def f(p):
        if i % 2 == 0: p.s(f"s_add_u32 s{so or S_SO}, s{sb or S_WT}, {(i >> 1) * 40960 + extra}")
        if "B" not in ABL: p.load4(P_R[j & 1][i], V_LIN, SRD_WS, f"s{so or S_SO}", (i & 1) * 1024, ("WT", j, i), "sc1")
    return f

def slow(name):
    SI, SC, SX, SWq, SKV, SD, SK = 56, 57, 58, 59, 88, 89, 90
    VW, VX, VK, VV_, VD = 28, 36, 37, 38, 39
    MX, NM, LA, QF, SS, FB, AC, RAW, FR = 40, 44, 48, 52, 68, 76, 84, 116, 180
    def ld(p, op, n, d, vo, srd, so, off):
        p.add(Ins(f"{op} {vr(d, n)}, v{vo}, s[{srd}:{srd+3}], s{so} offen offset:{off}", "vml", [vo], R(d, n), tag="sl"))
    p0 = Prog()
    p0.label(f"{name}_slow")
    p0.wait_all()
    M, G = MX, MX + 1
    p0.vop("v_bfe_u32", M, V_LIN, "4", "4")
    p0.vop("v_lshrrev_b32", G, "8", V_LIN)
    p0.vop("v_lshlrev_b32", VW, "16", G)
    p0.vop("v_lshl_add_u32", VW, M, "1", VW)
    for i in range(1, 8): p0.vop("v_add_u32", VW + i, f"{8192 * i}", VW)
    p0.s(f"s_movk_i32 s{S_T0}, 1280")
    p0.vop("v_mul_lo_u32", VX, M, f"s{S_T0}")
    p0.vop("v_lshl_add_u32", VX, G, "4", VX)
    p0.vop("v_lshlrev_b32", VK, "8", M)
    p0.vop("v_lshl_add_u32", VK, G, "3", VK)
    p0.vop("v_lshlrev_b32", VV_, "10", G)
    p0.vop("v_lshl_add_u32", VV_, M, "1", VV_)
    p0.s(f"s_mov_b32 s{SI}, 0")
    p1 = Prog()
    p1.label(f"{name}_sl_it")
    p1.s(f"s_cmp_ge_u32 s{SI}, 5")
    p1.s(f"s_cselect_b32 s{S_T0}, 2, 0")
    p1.s(f"s_cselect_b32 s{S_T1}, 5, 0")
    p1.s(f"s_cselect_b32 s{SD}, {73728}, 0")
    p1.s(f"s_sub_u32 s{S_T1}, s{SI}, s{S_T1}")
    p1.s(f"s_add_u32 s{S_T0}, s{S_T0}, s{S_P}")
    p1.s(f"s_mul_i32 s{S_T2}, s{S_P}, 9216")
    p1.s(f"s_add_u32 s{SD}, s{SD}, s{S_T2}")
    p1.s(f"s_lshl_b32 s{S_T2}, s{S_G}, 2")
    p1.s(f"s_add_u32 s{S_T0}, s{S_T0}, s{S_T2}")
    p1.s(f"s_lshl_b32 s{SWq}, s{S_T0}, 8")
    p1.s(f"s_lshl_b32 s{S_T2}, s{S_B}, 5")
    p1.s(f"s_add_u32 s{S_T0}, s{S_T0}, s{S_T2}")
    p1.s(f"s_lshl_b32 s{SKV}, s{S_T0}, 17")
    p1.s(f"s_lshl_b32 s{S_T0}, s{S_U}, 2")
    p1.s(f"s_add_u32 s{S_T0}, s{S_T0}, s{S_T1}")
    p1.s(f"s_sub_u32 s{S_T2}, s{S_T0}, s{S_G}")
    p1.s(f"s_add_u32 s{S_T2}, s{S_T2}, 7")
    p1.s(f"s_and_b32 s{S_T2}, s{S_T2}, 7")
    p1.s(f"s_add_u32 s{S_T2}, s{S_T2}, 1")
    p1.s(f"s_cmp_eq_u32 s{S_T1}, 4")
    p1.s(f"s_cselect_b32 s{S_T0}, 8, s{S_T0}")
    p1.s(f"s_cselect_b32 s{S_T2}, 0, s{S_T2}")
    p1.s(f"s_lshl_b32 s{S_T2}, s{S_T2}, 10")
    p1.s(f"s_add_u32 s{SD}, s{SD}, s{S_T2}")
    p1.vop("v_add_u32", VD, f"s{SD}", V_LIN)
    p1.s(f"s_mul_i32 s{S_T2}, s{S_B}, 9")
    p1.s(f"s_add_u32 s{S_T0}, s{S_T0}, s{S_T2}")
    p1.s(f"s_mul_i32 s{SX}, s{S_T0}, {16 * 1280}")
    for r in range(32): p1.vop("v_mov_b32", AC + r, "0")
    p1.s(f"s_mov_b32 s{SC}, 0")
    def pack(p):
        for r in range(32): p.vop("v_lshl_or_b32", FR + r, RAW + 2 * r + 1, "16", RAW + 2 * r)
    def loop_end(p, lab, n):
        p.s(f"s_add_u32 s{SC}, s{SC}, 1")
        p.s(f"s_cmp_lt_u32 s{SC}, {n}")
        p.s(f"s_cbranch_scc1 {lab}")
    p2 = Prog()
    p2.label(f"{name}_sl_q")
    ld(p2, "buffer_load_dwordx4", 4, FB, VX, SRD_X, SX, 0)
    for m in range(8):
        for i in range(8): ld(p2, "buffer_load_ushort", 1, RAW + 8 * m + i, VW + i, SRD_W, SWq, 32 * m)
        if m == 3: p2.wait_all()
    p2.wait_all()
    pack(p2)
    for m in range(8): p2.mfma(AC + 4 * m, FR + 4 * m, FB, AC + 4 * m)
    p2.s(f"s_add_u32 s{SX}, s{SX}, 64")
    p2.s(f"s_add_u32 s{SWq}, s{SWq}, {32 * 8192}")
    loop_end(p2, f"{name}_sl_q", 20)
    p3 = Prog()
    for r in range(32): p3.vop("v_mul_f32", AC + r, f"s{S_CS}", AC + r)
    for r in range(16): p3.cvtpk(QF + r, AC + 2 * r, AC + 2 * r + 1)
    for r in range(32): p3.vop("v_mov_b32", AC + r, "0")
    for r in range(4): p3.vop("v_mov_b32", LA + r, "0")
    p3.vop("v_mov_b32", MX, "0xff800000")
    p3.s(f"s_mov_b32 s{SK}, s{SKV}")
    p3.s(f"s_mov_b32 s{SC}, 0")
    def kfrags(p, dst, so):
        for ks in range(4):
            ld(p, "buffer_load_dwordx2", 2, dst + 4 * ks, VK, SRD_K, so, 64 * ks)
            ld(p, "buffer_load_dwordx2", 2, dst + 4 * ks + 2, VK, SRD_K, so, 64 * ks + 32)
    p4 = Prog()
    p4.label(f"{name}_sl_m")
    kfrags(p4, FR, SK)
    p4.wait_all()
    for ks in range(4): p4.mfma(SS, FR + 4 * ks, QF + 4 * ks, SS if ks else None)
    p4.vop("v_max3_f32", MX, MX, SS, SS + 1)
    p4.vop("v_max3_f32", MX, MX, SS + 2, SS + 3)
    p4.s(f"s_add_u32 s{SK}, s{SK}, 4096")
    loop_end(p4, f"{name}_sl_m", 32)
    p5 = Prog()
    for sw in (p5.swap32, p5.swap16):
        p5.vop("v_mov_b32", MX + 1, MX)
        sw(MX, MX + 1)
        p5.vop("v_max_f32", MX, MX, MX + 1)
    for r in range(4): p5.vop("v_sub_f32", NM + r, "0", MX)
    p5.s(f"s_mov_b32 s{SC}, 0")
    p6 = Prog()
    p6.label(f"{name}_sl_a")
    p6.s(f"s_add_u32 s{SK}, s{SKV}, 4096")
    kfrags(p6, FR, SKV)
    kfrags(p6, FR + 16, SK)
    p6.wait_all()
    for m in range(8):
        for i in range(8): ld(p6, "buffer_load_ushort", 1, RAW + 8 * m + i, VV_, SRD_V, SK if i >= 4 else SKV, 32 * m + 256 * (i & 3))
        if m == 3: p6.wait_all()
    for kt in range(2):
        for ks in range(4): p6.mfma(SS + 4 * kt, FR + 16 * kt + 4 * ks, QF + 4 * ks, SS + 4 * kt if ks else NM)
    for r in range(8): p6.exp(SS + r, SS + r)
    for r in range(4): p6.cvtpk(FB + r, SS + 2 * r, SS + 2 * r + 1)
    p6.wait_all()
    pack(p6)
    p6.mfma(LA, A_ONE, FB, LA)
    for m in range(8): p6.mfma(AC + 4 * m, FR + 4 * m, FB, AC + 4 * m)
    p6.s(f"s_add_u32 s{SKV}, s{SKV}, 8192")
    loop_end(p6, f"{name}_sl_a", 16)
    p7 = Prog()
    p7.vop("v_rcp_f32", LA, LA, kind="trans")
    for r in range(32): p7.vop("v_mul_f32", AC + r, AC + r, LA)
    for r in range(16): p7.cvtpk(QF + r, AC + 2 * r, AC + 2 * r + 1)
    for hf in range(2):
        p7.s(f"s_cmp_eq_u32 s{S_U}, {hf}")
        p7.s(f"s_cselect_b32 s{S_T0}, 0, s{S_T1}")
        p7.s(f"s_cmp_eq_u32 s{S_T0}, 4")
        p7.s(f"s_cbranch_scc1 {name}_sl_s{hf}")
        for t in (2 * hf, 2 * hf + 1): p7.ds_write(VD, QF + 4 * t, 4, t * 18432)
        p7.label(f"{name}_sl_s{hf}")
    p7.wait_all()
    p7.s(f"s_add_u32 s{SI}, s{SI}, 1")
    p7.s(f"s_cmp_lt_u32 s{SI}, 10")
    p7.s(f"s_cbranch_scc1 {name}_sl_it")
    p7.s(f"s_branch {name}_P2")
    body = [p1, p2, p2, p3, p4, p4, p5, p6, p6, p7]
    return [p0, p1, p2, p3, p4, p5, p6, p7], [p0] + body + body

S_ST = 62
S_J, S_JO, S_J8, S_JO8 = 4, 5, 6, 7
S_PC, S_FO, S_PO, S_JL = 70, 71, 72, 73
def psetup(p):
    p.s(f"s_mul_i32 s{S_RD}, s{S_B}, {PARTB}")
    p.s(f"s_lshl_b32 s{S_T1}, s{S_W}, 11")
    p.s(f"s_add_u32 s{S_RD}, s{S_RD}, s{S_T1}")
    p.s(f"s_add_u32 s{S_RD}, s{S_RD}, {PART}")
    p.s(f"s_lshr_b32 s{S_T0}, s{S_G}, 2")
    p.s(f"s_mul_i32 s{S_T0}, s{S_T0}, {PARTH}")
    p.s(f"s_add_u32 s{S_T0}, s{S_T0}, s{S_RD}")
    p.s(f"s_and_b32 s{S_T1}, s{S_G}, 3")
    p.s(f"s_mul_i32 s{S_ST}, s{S_T1}, 40960")
    p.s(f"s_add_u32 s{S_ST}, s{S_ST}, s{S_T0}")
    p.s(f"s_add_u32 s{S_ST}, s{S_ST}, 32768")
    p.s(f"s_lshl_b32 s{S_J}, s{S_T1}, 13")
    p.s(f"s_add_u32 s{S_J}, s{S_J}, s{S_T0}")
    for i in range(1, 8):
        p.s(f"s_add_u32 s{S_T0}, s{S_G}, {i}")
        p.s(f"s_bfe_u32 s{S_T1}, s{S_T0}, 0x10002")
        p.s(f"s_mul_i32 s{S_T1}, s{S_T1}, {PARTH}")
        p.s(f"s_and_b32 s{S_T0}, s{S_T0}, 3")
        p.s(f"s_lshl_b32 s{S_T0}, s{S_T0}, 13")
        p.s(f"s_add_u32 s{S_T0}, s{S_T0}, s{S_T1}")
        p.s(f"s_add_u32 s{S_T0}, s{S_T0}, s{S_RD}")
        p.s(f"s_add_u32 s{S_ST+i}, s{S_T0}, {((i - 1) >> 1) * 40960 + ((i - 1) & 1) * 1024}")
    p.s(f"s_lshl_b32 s{S_PO}, s{S_B}, 2")
    p.s(f"s_add_u32 s{S_PO}, s{S_PO}, s{S_W}")
    p.s(f"s_lshl_b32 s{S_PO}, s{S_PO}, 9")
    p.s(f"s_add_u32 s{S_PO}, s{S_PO}, {PFLG}")
    p.s(f"s_lshl_b32 s{S_FO}, s{S_G}, 3")
    p.s(f"s_add_u32 s{S_FO}, s{S_FO}, s{S_PO}")
    p.s(f"s_mul_i32 s{S_OUTO}, s{S_B}, {144 * 1280}")
    p.s(f"s_mul_i32 s{S_T1}, s{S_W}, 320")
    p.s(f"s_add_u32 s{S_OUTO}, s{S_OUTO}, s{S_T1}")
    p.s(f"s_mul_i32 s{S_JO}, s{S_G}, {16 * 1280}")
    p.s(f"s_add_u32 s{S_JO}, s{S_JO}, s{S_OUTO}")
    p.s(f"s_sub_u32 s{S_JO}, s{S_JO}, 64")
    p.s(f"s_mul_i32 s{S_T1}, s{S_G}, {4 * 40960}")
    p.s(f"s_add_u32 s{S_J8}, s{S_RD}, s{S_T1}")
    p.s(f"s_add_u32 s{S_J8}, s{S_J8}, 32768")
    p.s(f"s_lshl_b32 s{S_T1}, s{S_G}, 6")
    p.s(f"s_add_u32 s{S_JO8}, s{S_OUTO}, s{S_T1}")
    p.s(f"s_add_u32 s{S_JO8}, s{S_JO8}, {128 * 1280}")
    p.s(f"s_cmp_ge_u32 s{S_G}, 5")
    p.s(f"s_cselect_b32 s{S_J8}, {OOB:#x}, s{S_J8}")
    p.s(f"s_cselect_b32 s{S_JO8}, {OOB:#x}, s{S_JO8}")
    p.s(f"s_mov_b32 s{S_PC}, 0")

def pmod(name):
    p = Prog()
    p.label(f"{name}_fb")
    p.wait_all()
    p.s(f"s_cmp_lg_u64 s[{S_BAD}:{S_BAD+1}], 0")
    p.s(f"s_cbranch_scc1 {name}_slow")
    p.label(f"{name}_P2")
    AO = (V_LIN, 2, 3)
    V_FA, V_OA = 4, 5
    PT, PT2 = 6, 8
    V_SA = 1
    SEL = 18
    POOL = [28 + 4 * k for k in range(16)]
    ACC = 92
    OWN = 124
    A8 = 164
    JB = (172, 204)
    CT = 244
    p.wait_all()
    p.barrier()
    NL = int(E("PLEAD", "8"))
    def ooff(i, kq): return IMG(kq) + i * 1024
    for f in range(NL): p.ds_read128(POOL[f], AO[ooff(0, f) // 49152], ooff(0, f) % 49152)
    s0 = len(p.ins)
    p.vop("v_mov_b32", V_SA, V_LIN)
    p.vop("v_lshrrev_b32", V_FA, "1", V_LIN)
    p.vop("v_and_b32", V_FA, "0x38", V_FA)
    p.vop("v_bfe_u32", CT, V_LIN, "4", "4")
    p.s(f"s_movk_i32 s{S_T0}, 1280")
    p.vop("v_mul_lo_u32", V_OA, CT, f"s{S_T0}")
    p.vop("v_lshrrev_b32", CT + 1, "8", V_LIN)
    p.vop("v_lshl_add_u32", V_OA, CT + 1, "4", V_OA)
    p.vop("v_mov_b32", PT2, f"s{S_NON}")
    p.vop("v_mov_b32", PT2 + 1, f"s{S_NON+1}")
    p.vop("v_and_b32", CT + 2, "1", CT)
    p.vop("v_lshlrev_b32", CT + 2, "4", CT + 2)
    p.s(f"s_movk_i32 s{S_T0}, 0x3f80")
    p.vop("v_lshlrev_b32", CT + 2, CT + 2, f"s{S_T0}")
    p.vop("v_lshrrev_b32", CT, "1", CT)
    p.vop("v_lshlrev_b32", CT + 1, "1", CT + 1)
    p.vop("v_sub_u32", CT, CT, CT + 1)
    for r in range(2):
        p.add(Ins(f"v_cmp_eq_u32 vcc, {r}, v{CT}", "valu", [CT], []))
        p.vop("v_mov_b32", SEL + r, "0")
        p.vop("v_mov_b32", SEL + 4 + r, "0")
        p.add(Ins(f"v_cndmask_b32 v{SEL+2+r}, 0, v{CT+2}, vcc", "valu", [CT + 2], [SEL + 2 + r]))
    setup = p.ins[s0:]
    def job_loads(p, sbase, offs, buf):
        for g, off in enumerate(offs):
            p.s(f"s_add_u32 s{S_T0}, s{sbase}, {off}")
            p.load4(buf + 4 * g, V_LIN, SRD_WS, f"s{S_T0}", 0, "job", "sc1")
    def job_reduce(p, sout, off, bufs, a, init):
        for g, bf in enumerate(bufs):
            for e in range(2): p.mfma(a + 4 * e, SEL + 2 - 2 * e, bf, None if (init and g == 0) else a + 4 * e)
        return lambda: ([p.cvtpk(a + r, a + 2 * r, a + 2 * r + 1) for r in range(4)],
                        p.store(a, 4, V_OA, SRD_OUT, f"s{sout}", off, tag="out", flags=E("OFL", "")))
    def flag(p, off, tag):
        p.wait_vm(tag)
        p.s("s_mov_b64 exec, 1")
        p.store(PT2, 2, V_LIN, SRD_WS, f"s{S_FO}", off, tag="flag", flags="sc1")
        p.s("s_mov_b64 exec, -1")
    FPOS = int(E("FPOS", "180")); WSP = float(E("WSP", "6")); PLAT = int(E("PLAT", "76")); CPOS = int(E("CPOS", "206")); WST = int(E("WST", "4"))
    JS = int(E("JS", "0"))
    jo = lambda mp: [(4 * mp + (g >> 1)) * 40960 + (g & 1) * 1024 for g in range(7)]
    def one_pass(par):
        q = Prog()
        q.label(f"{name}_pass{par}")
        if PROF == 4: stamp(q, 32, S_PC)
        q.wait_vm(("WT", par, 15))
        sc = Sched(q, budget=int(E("PBUD", "8")), late_extra=8)
        for qn in ("wl", "st", "jl"): sc.group[qn] = "vm"
        sc.pace["vm"] = int(E("PPACE", "4"))
        pool = Pool(sc, POOL, 16)
        acc = lambda i: OWN if i == 8 else ACC + 8 * (i % 4)
        for i in range(9):
            a = acc(i)
            for kq in range(16):
                cons = [(a + 4 * e, P_R[par][2 * kq + e], a + 4 * e if kq else None, ("P", i, kq, e)) for e in range(2)]
                pool.frag(0, lambda r: [R128(r, AO[ooff(i, kq) // 49152], ooff(i, kq) % 49152)], cons, as_b=True)
        PG = int(E("PG", "4"))
        sc.m = [x for k in range(0, 288, 2 * PG) for x in sc.m[k:k + 2 * PG:2] + sc.m[k + 1:k + 2 * PG:2]]
        sc.idx = {x[4]: k for k, x in enumerate(sc.m)}
        mt = lambda i: sc.m[max(0, min(i, len(sc.m) - 1))][4]
        for f in range(NL, 144 + NL):
            (_, reads, cons, war) = pool.frags[f % 144]
            if f >= 144: war = pool.last[f % 16]
            if "R" not in ABL: sc.fill("rd", reads[0], 4, ds=True, after=war, before=mt(2 * (f - NL) + 1), early=2)
        for i in ((16, 22, 28) if PG == 1 else (16, 24) if PG <= 4 else (16,)): sc.fill("ww", lambda p, i=i: p.wait_vm(("WT", par, min(31, i + (5 if PG == 1 else 7 if PG <= 4 else 15)))), 4, before=mt(i), early=0)
        def su(p):
            p.s(f"s_add_u32 s{S_WT}, s{S_WT}, 2048")
            p.s(f"s_cmp_eq_u32 s{S_PC}, 4")
            p.s(f"s_cselect_b32 s{S_WT}, {OOB:#x}, s{S_WT}")
        fill_dma(sc, [(su, 0)], None, mt(WST + 2), queue="wl", lead=6)
        for i in range(32):
            fill_dma(sc, [(wload(1 - par, i), 0)], mt(WST + int(WSP * i)), mt(WST + 12 + int(WSP * i)), queue="wl", lead=10)
        sc.fill("jl", lambda p: poll_issue(p, V_FA, f"s{S_PO}", 64 * JS, PT), 8, before=mt(CPOS - PLAT), early=4, solo=SOLO)
        for r in range(23 - 8 * JS, -1, -1): sc.fill("jr", lambda p, r=r: p.vop("v_mov_b32", OWN + 8 + r, OWN + r), 4, after=mt(40), before=mt(CPOS - 4), lead=4 * r)
        def cut(p):
            p.wait_vm("poll")
            p.s(f"s_cmp_lt_u32 s{S_PC}, {2 - JS}")
            p.s(f"s_cbranch_scc1 {name}_nojob{par}")
            p.label("@CUT")
        sc.fill("jr", cut, 8, before=mt(CPOS), early=0)
        sc.fill("jr", lambda p: p.s(f"s_add_u32 s{S_PO}, s{S_PO}, 64"), 4)
        for i in range(8):
            a = acc(i)
            dl = mt(32 * i + 32 + 24)
            sc.fill("va", lambda p, a=a: p.cvtpk(a, a, a + 1), 4, after=dict(tag=("P", i, 15, 1), delay=4), before=dl, lead=10)
            sc.fill("va", lambda p, a=a: p.cvtpk(a + 1, a + 2, a + 3), 4)
            sc.fill("va", lambda p, a=a: p.cvtpk(a + 2, a + 4, a + 5), 4)
            sc.fill("va", lambda p, a=a: p.cvtpk(a + 3, a + 6, a + 7), 4, tag=("CV", i), before=dl, lead=10)
            def st(p, a=a, i=i):
                if "O" not in ABL: p.store(a, 4, V_SA, SRD_WS, f"s{S_ST+i}", 0, tag=("ps", i), flags=E("SFL", "sc1"))
            sc.fill("st", st, 8, after=("CV", i), before=dl, lead=20, tag=("ST", i), solo=SOLO)
        sc.fill("va", lambda p: p.vop("v_add_u32", V_SA, f"{4 * 40960}", V_SA), 4, after=("ST", 7))
        sc.fill("fl", lambda p: flag(p, 64, ("ps", 0)), 16, before=mt(FPOS), early=0)
        sc.fill("fl", lambda p: p.s(f"s_add_u32 s{S_FO}, s{S_FO}, 64"), 4)
        sc.fill("fl", lambda p: p.s(f"s_add_u32 s{S_PC}, s{S_PC}, 1"), 4, after=mt(270))
        sc.run()
        if par == 0:
            q.s(f"s_cmp_eq_u32 s{S_PC}, 5")
            q.s(f"s_cbranch_scc1 {name}_ptail")
            q.s(f"s_cmp_eq_u32 s{S_PC}, 1")
            q.s(f"s_cbranch_scc1 {name}_fbw")
        else: q.s(f"s_branch {name}_pass0")
        k = next(i for i, x in enumerate(q.ins) if x.text.startswith("@CUT"))
        q2 = Prog(); q2.label(f"{name}_nojob{par}"); q2.ins += q.ins[k + 1:]; q.ins = q.ins[:k]
        blk = Prog()
        poll_check(blk, f"{name}_pp{par}", V_FA, f"s{S_PO}", 64 * JS, PT)
        a = OWN + 24 - 8 * JS
        for g in range(7):
            for e in range(2): blk.mfma(a + 4 * e, SEL + 2 - 2 * e, JB[0] + 4 * g, a + 4 * e)
            job_loads(blk, S_J, [jo(0)[g]], JB[0] + 4 * g)
        blk.s(f"s_add_u32 s{S_J}, s{S_J}, {4 * 40960}")
        blk.s(f"s_cmp_eq_u32 s{S_PC}, {2 - JS}")
        blk.s(f"s_cselect_b32 s{S_T0}, {OOB:#x}, s{S_JO}")
        blk.s(f"s_add_u32 s{S_JO}, s{S_JO}, 64")
        blk.wait_lgkm0()
        for r in range(4): blk.cvtpk(a + r, a + 2 * r, a + 2 * r + 1)
        blk.store(a, 4, V_OA, SRD_OUT, f"s{S_T0}", 0, tag="out", flags=E("OFL", ""))
        return q, blk, q2
    def first_pass():
        q = Prog()
        q.label(f"{name}_P0")
        stamp(q, 9)
        if "F" in ABL: q.s(f"s_mov_b32 s{S_BAD}, 1")
        if "G" in ABL:
            q.s(f"s_cmp_eq_u32 s{S_W}, 2")
            q.s(f"s_cselect_b32 s{S_BAD}, 1, 0")
        sc = Sched(q, budget=int(E("P0BUD", "8")), late_extra=8)
        for qn in ("wl", "st"): sc.group[qn] = "vm"
        sc.pace["vm"] = int(E("P0PACE", "3"))
        acc = [V_S + 32, V_S + 40, 92, 100, 108, 116, 132, 140, OWN]
        POOL2 = POOL[:8] + [148 + 4 * k for k in range(4)] + POOL[12:]
        reg = lambda f: P0_B[f] if f < 72 else POOL2[f % 16] if f < 144 else POOL[f % 16]
        fk = lambda f: ((f % 72) // 8, f % 8 + 8 * ((f // 72) & 1))
        base = []
        for f0 in range(0, 144, 4):
            for e in range(2):
                for f in range(f0, f0 + 4):
                    i, kq = fk(f); a = acc[i] + 4 * e
                    base.append((a, P_R[0][2 * kq + e], reg(f), a if kq else None, ("P", f, e)))
        units = UNITS
        C0, CS, MB = int(E("P0C0", "22")), float(E("P0CS", "5.8")), int(E("P0MB", "12"))
        cpos = {C0 + int(CS * k) + (int(E("P0C8", "0")) if k >= 12 else 0): k for k in range(18)}
        for j, m in enumerate(base):
            if j in cpos:
                k = cpos[j]; sc.mfma(CHK, A_ONE, Oa(units[k][0], 2 * units[k][1]), CHK if k else None, ("CHK", k))
            sc.mfma(*m)
        bt = lambda j: base[min(j, 287)][4]
        for i in range(2, 9): assert sc.idx[("CHK", (acc[i] - V_O) // 8)] + 1 < sc.idx[bt(16 * i)]
        for f in range(8, 144 + NL):
            i, kq = fk(f)
            aft = [("P", f - 16, 1)] if (f >= 24 and not 72 <= f < 88) else []
            if f == 8: aft.append("AO")
            if f == 12: aft.append("XW")
            if f == 72: aft.append("MID")
            j = 2 * (f - NL) + 1
            if f >= 72: j = max(j, 144 - MB + 2 + f - 72)
            sc.fill("rd", R128(reg(f), AO[ooff(i, kq) // 49152], ooff(i, kq) % 49152), 4, ds=True, after=aft, before=bt(j), early=2)
        def V(fn, cost=4, **kw): sc.fill("va", fn, cost, **kw)
        sc.fill("ww", lambda p: p.wait_vm(("WT", 0, 15)), 4, before=bt(10), early=0)
        def each(fn):
            z = Prog(); fn(z)
            return [lambda p, x=x: p.add(x) for x in z.ins]
        V(lambda p: p.vop("v_add_u32", AO[1], "49152", V_LIN))
        V(lambda p: p.vop("v_add_u32", AO[2], "98304", V_LIN), tag="AO")
        for fn in each(f_addr): V(fn)
        for i in range(4): V(lambda p, i=i: p.ds_write(AD + 1, Oa(4, 4 + i), 4, i * 1024), 8, solo=True)
        V(lambda p: p.s(f"s_mul_i32 s{S_T0}, s{S_U}, 73728"))
        V(lambda p: p.s(f"s_sub_u32 s{S_T0}, {73728 + 36864}, s{S_T0}"))
        V(lambda p: p.vop("v_add_u32", AL + 1, f"s{S_T0}", V_DA + 4))
        V(lambda p: p.ds_write(AL + 1, La(4), 1, 0), ds=True, tag="XW")
        for n in range(5): V(lambda p, n=n: p.ar(RL + 2 * n, La(n)), tag=("AR", n))
        for n in range(5): V(lambda p, n=n: p.vop("v_add_u32", V_DA + n, "73728", V_DA + n), tag=("DA", n))
        def wr(p, k):
            n, t = units[k]
            p.ds_write(V_DA + n, Oa(n, 2 * t), 4, t * 18432 + (1024 if n < 4 else 0))
        for n in range(4): V(f_rcp(n)[0], 8); V(f_rcp(n)[1], tag=("RC", n))
        l8 = f_l8(); V(l8[0], after=dict(tag="PX", delay=8)); V(l8[1], 8); V(l8[2], tag=("RC", 4), before=("CHK", 10))
        ct = lambda k, d: sc.m[sc.idx[("CHK", k)] + d][4]
        for k, (n, t) in enumerate(units):
            pk, cv = f_norm(n, t)
            sc.fill("pk", lambda p, k=k, pk=pk: (wr(p, k - 1) if k else None, [fn(p) for fn in pk]), 8, solo=True, after=[("RC", n)] + ([("DA", 4)] if k else []),
                    before=ct(k - 1, 1) if k else ct(0, -5), early=0, lead=99, tag=("PK", k))
            for j, fn in enumerate(cv): sc.fill("c1", fn, 4, after=("PK", k), before=ct(k, -1), lead=0)
        sc.fill("pk", lambda p: wr(p, 17), 8, solo=True, before=ct(17, 1), early=0, lead=99, tag="W17")
        for j, fn in enumerate(f_range()): V(fn, 8 if j >= 4 else 4)
        sc.fill("bx", lambda p: p.barrier(), 4, after=[("P", 12, 0), ("DA", 4)], before=bt(int(E("P0BX", "34"))), early=0)
        for i in range(4): sc.fill("bx", R128(PX + 4 * i, AD, i * 1024), 4, ds=True, before=bt(60))
        sc.fill("bx", lambda p: p.ds_read32(V_S, V_DA + 4, 0), 4, ds=True, before=bt(60), tag="PX")
        V(lambda p: p.vop("v_bfe_u32", V_T + 1, V_LIN, "4", "2"))
        V(lambda p: p.vop("v_lshlrev_b32", V_T + 1, "12", V_T + 1))
        V(lambda p: p.vop("v_add_u32", V_T + 1, f"{MISC}", V_T + 1))
        c5 = f_fin()
        V(c5[0]); V(c5[1], 8, after=dict(tag=("CHK", 17), delay=2))
        V(lambda p: (p.s(f"s_or_b32 s{S_T0}, s{S_BAD}, s{S_BAD+1}"), p.vop("v_mov_b32", V_T, f"s{S_T0}")), 8)
        V(lambda p: p.ds_write(AD, V_T, 1, 0), ds=True, after="W17", before=bt(144 - MB - 4), lead=2)
        def mid(p):
            p.wait_vm(("WT", 0, 31), lgkm0=True); p.barrier()
            stamp(p, 16)
            p.ds_read32(V_T + 2, V_T + 1, 0)
        V(mid, 8, before=bt(144 - MB), early=0, tag="MID")
        def chk(p):
            p.add(Ins(f"v_cmp_ne_u32 vcc, 0, v{V_T+2}", "valu", [V_T + 2], []))
            p.s("s_cmp_lg_u64 vcc, 0")
            p.s(f"s_cbranch_scc1 {name}_fb")
        V(chk, 8, before=bt(146), early=0, tag="OK")
        k = 0
        while k < len(setup):
            n = 4 if setup[k].text.startswith("v_cmp") else 1
            V(lambda p, g=setup[k:k + n]: [p.add(Ins(x.text, x.kind, x.rd, x.wr)) for x in g], 4 * n); k += n
        for i in range(8):
            a = acc[i]; dl = bt(144 + 16 * i + 16 + 14)
            sc.fill("cv", lambda p, a=a: p.cvtpk(a, a, a + 1), 4, after=["OK", dict(tag=("P", 72 + 8 * i + 7, 1), delay=3)], before=dl, lead=10)
            sc.fill("cv", lambda p, a=a: p.cvtpk(a + 1, a + 2, a + 3), 4)
            sc.fill("cv", lambda p, a=a: p.cvtpk(a + 2, a + 4, a + 5), 4)
            sc.fill("cv", lambda p, a=a: p.cvtpk(a + 3, a + 6, a + 7), 4, tag=("CV", i), before=dl, lead=10)
            def st(p, a=a, i=i):
                if "O" not in ABL: p.store(a, 4, V_SA, SRD_WS, f"s{S_ST+i}", 0, tag=("ps", i), flags=E("SFL", "sc1"))
            sj = int(E("P0S0", "200")) + int(E("P0SS", "8")) * i
            sc.fill("st", st, 8, after=[("CV", i), bt(sj)], before=bt(max(sj + 8, 144 + 16 * i + 30)), lead=20, tag=("ST", i), solo=SOLO)
        W1 = float(E("P0W1", "5.0")); W2 = float(E("P0W2", "3.0"))
        for i in range(8): fill_dma(sc, [(wload(0, 24 + i), 0)], bt(17 + int(W1 * i)), bt(30 + int(W1 * i)), queue="wl", lead=4)
        for i in range(32):
            j = 17 + int(W1 * (8 + i)) if i < 15 else 146 + int(W2 * (i - 15))
            fill_dma(sc, [(wload(1, i, extra=2048), 0)], [bt(j), ("AR", 4)] + (["OK"] if i >= 15 else []), bt(j + 13), queue="wl", lead=4)
        V(lambda p: p.vop("v_add_u32", V_SA, f"{4 * 40960}", V_SA), after=("ST", 7))
        for r, x in ((S_WT, 2048), (S_PO, 64), (S_FO, 64), (S_PC, 1)): sc.fill("fl", lambda p, r=r, x=x: p.s(f"s_add_u32 s{r}, s{r}, {x}"), 4, after=bt(275))
        sc.run()
        q.s(f"s_branch {name}_pass1")
        return q
    p.wait_lgkm0()
    p.s(f"s_branch {name}_pass0")
    pre = p
    p0 = first_pass()
    pe, po = one_pass(0), one_pass(1)
    p = Prog()
    p.label(f"{name}_ptail")
    stamp(p, 17)
    if JS:
        job_loads(p, S_J8, [(g >> 2) * PARTH + (g & 3) * 40960 for g in range(8)], JB[1])
        f3 = job_reduce(p, S_JO, 0, [JB[0] + 4 * g for g in range(7)], OWN + 8, False)
        flag(p, 64, ("ps", 7))
        poll_issue(p, V_FA, f"s{S_PO}", 64, PT)
        f3()
        stamp(p, 18)
        f8 = job_reduce(p, S_JO8, 0, [JB[1] + 4 * g for g in range(8)], A8, True)
        stamp(p, 19)
        poll_check(p, f"{name}_pp4", V_FA, f"s{S_PO}", 64, PT, 0)
        stamp(p, 20)
        job_loads(p, S_J, jo(0), POOL[8])
        f8()
        job_reduce(p, S_JO, 64, POOL[8:15], OWN, False)()
    else:
        poll_issue(p, V_FA, f"s{S_PO}", 0, PT)
        f2 = job_reduce(p, S_JO, 0, [JB[0] + 4 * g for g in range(7)], OWN + 16, False)
        flag(p, 64, ("ps", 7))
        poll_check(p, f"{name}_pp3", V_FA, f"s{S_PO}", 0, PT, 0)
        job_loads(p, S_J, jo(0), JB[0])
        job_loads(p, S_J8, [(g >> 2) * PARTH + (g & 3) * 40960 for g in range(8)], JB[1])
        poll_issue(p, V_FA, f"s{S_PO}", 64, PT)
        f2()
        stamp(p, 18)
        stamp(p, 19)
        poll_check(p, f"{name}_pp4", V_FA, f"s{S_PO}", 64, PT, 0)
        stamp(p, 20)
        job_loads(p, S_J, jo(1), POOL[8])
        f3 = job_reduce(p, S_JO, 64, [JB[0] + 4 * g for g in range(7)], OWN + 8, False)
        f8 = job_reduce(p, S_JO8, 0, [JB[1] + 4 * g for g in range(8)], A8, True)
        f3(); f8()
        job_reduce(p, S_JO, 128, POOL[8:15], OWN, False)()
    if PROF:
        p.wait_all()
        stamp(p, 21)
        p.s(f"s_getreg_b32 s{S_TM}, hwreg(HW_REG_HW_ID)")
        p.s(f"s_getreg_b32 s{S_TM+1}, hwreg(HW_REG_XCC_ID)")
        p.raw(f"v_writelane_b32 v0, s{S_TM}, 24")
        p.raw(f"v_writelane_b32 v0, s{S_TM+1}, 25")
        p.s(f"s_lshl_b32 s{S_T0}, s2, 2")
        p.s(f"s_add_u32 s{S_T0}, s{S_T0}, s{S_W}")
        p.s(f"s_lshl_b32 s{S_T0}, s{S_T0}, 8")
        p.s(f"s_add_u32 s{S_T0}, s{S_T0}, {PROFOFF}")
        p.vop("v_lshrrev_b32", PT, "2", V_LIN)
        p.store(0, 1, PT, SRD_WS, f"s{S_T0}", 0)
        p.s(f"s_add_u32 s{S_T0}, s{S_T0}, 0x40000")
        p.store(255, 1, PT, SRD_WS, f"s{S_T0}", 0)
        if PROF == 5:
            p.s(f"s_cmp_lg_u32 s2, 77")
            p.s(f"s_cbranch_scc1 {name}_end")
            p.s(f"s_cmp_lg_u32 s{S_W}, 0")
            p.s(f"s_cbranch_scc1 {name}_end")
            p.raw("v_readlane_b32 s56, v0, 0")
            for k, ix in enumerate([23, 1, 2, 5, 6, 9, 10, 16, 17, 18, 20, 21]):
                p.raw(f"v_readlane_b32 s57, v0, {ix}")
                p.raw("s_nop 3")
                p.s("s_sub_u32 s57, s57, s56")
                p.raw(f"v_mov_b32 v30, s57")
                p.raw(f"buffer_store_dword v30, off, s[{SRD_DBG}:{SRD_DBG+3}], 0 offset:{8 + 4 * k}")
                p.raw("s_nop 1")
    p.label(f"{name}_end")
    p.raw("s_endpgm")
    rest = ([*po] if JS else [po[0], po[2]]) + [*pe, *po, *pe, p]
    fw = Prog(); fw.label(f"{name}_fbw"); fw.wait_all(); fw.s(f"s_branch {name}_pass1")
    return [p0, *pe, *po, p, pre, fw], [p0] + rest, [pre, pe[0], pe[2], fw] + rest

def gen(name):
    pro = prologue(name)
    Q = qmod(name)
    AE = aentry(name)
    A = [amod(name, qh) for qh in range(2)]
    F = afin(name)
    P, PS, PS2 = pmod(name)
    SL, SLS = slow(name)
    segs = [pro, Q, AE, A[0], A[1], F] + P + SL
    sims = [[(x, 1) for x in [pro, Q, AE, A[qh], F, AE, A[qh]] + PS] for qh in range(2)]
    sims.append([(x, 1) for x in SLS + PS2])
    lines, stats = finalize([(x, 1) for x in segs], sims=sims)
    if int(E("ROLL", "1")):
        lines = roll(lines, "; ---- a step", 8, S_LOOP, f"{name}_aloop")
        lines = roll(lines, "; ---- q step", 4, S_LOOP, f"{name}_qloop")
    lines += [f"{name}_last:", f".if {name}_last-{name}_pc < {65536 + CPO}", f".fill ({65536 + CPO}-({name}_last-{name}_pc))/4, 4, 0xbf810000", ".endif", f".if {name}_end-{name}_pc > {65536 + CPO}", '.warning "code range"', ".endif"]
    return [f".globl {name}", ".p2align 8", f".type {name},@function", f"{name}:"] + lines, stats
```

```python
from asmlib import *
import math, struct, os
E = os.environ.get
PROF = int(E("PROF", "0"))
ABL = E("ABL", "")
def f2u(f): return struct.unpack("<I", struct.pack("<f", f))[0]
CSCALE = math.log2(math.e) / math.sqrt(128.0)
NWG = 256
LDS_BYTES = 163840
XSL = 18432
XRING = 131072
XALT = 65536 - XSL
WRING = 65536
MISC = 147456
def IMG(kq): return (kq >> 3) * 73728 + (kq & 3) * 18432 + ((kq >> 2) & 1) * 9216
DROP = 0x30000
OOB = 0x40000000
WOT = 0
PART = 128 * 40960
AREA = 18 * 40960
PARTB = 2 * AREA
WFLG = PART + 32 * PARTB
PFLG = WFLG + 8192
WSBYTES = PFLG + 131072
PROFOFF = 0x4000000

SRD_X, SRD_K, SRD_V, SRD_W, SRD_WS, SRD_WO, SRD_OUT, SRD_DBG = 8, 12, 16, 20, 24, 28, 32, 36
S_W = 3
S_T0, S_T1, S_B, S_G, S_P, S_T2 = 40, 41, 42, 43, 44, 45
S_CS, S_NON, S_SPIN, S_PH, S_GRP, S_SO = 46, 48, 50, 51, 52, 53
S_BAD = 54
S_KOFF, S_VOFF, S_KB, S_KVN, S_M0KV, S_WFP = 56, 57, 58, 59, 60, 61
S_WOFF, S_WB, S_XOFF, S_XB = 62, 63, 65, 66
S_M0W, S_M0X8 = 75, 72
S_WT, S_PT, S_PF, S_RD, S_OUTO = 76, 77, 78, 79, 80
S_LO, S_HI = 81, 82
S_TM = 84
S_VB = 88
S_M0KVP, S_KVP, S_M0D, S_U = 89, 91, 94, 95
S_LOOP = 92
S_WT2 = 98

V_DK, V_DV, V_DW, V_DX = 1, 5, 9, 13
V_AK, V_AV0, V_AV1, V_AX, V_AX8, V_LIN = 18, 19, 20, 21, 22, 24
V_E0, V_E1, V_E2 = 25, 26, 27
V_S = 28
V_AW = V_S + 40
V_O = 84
V_T = 244
V_DA = V_T + 3
V_NV = 252
V_JUNK = 254
A_Q, A_QN, A_L, A_ONE, A_POOL, A_X = 256, 336, 416, 436, 440, 472
A_QP = 480
NPOOL = 8
def Qf(n, ks, base=A_Q): return base + (n * 4 + ks) * 4
def Oa(n, m): return V_O + (n * 8 + m) * 4
def XS(par, n): return V_S + (par * 4 + n) * 4 if n < 4 else V_S + 48
def YS(n): return V_S + 32 + n * 4 if n < 4 else V_S + 52
def La(n): return A_L + 4 * n
def Xf(st, t): return V_S + (st * 5 + t) * 4
def QA(r, n, m): return (A_QN if r else V_O) + (n * 8 + m) * 4

def stamp(p, idx, dyn=None):
    if not PROF: return
    p.s(f"s_memrealtime s[{S_TM}:{S_TM+1}]")
    p.s(f"s_memtime s[{S_TM+2}:{S_TM+3}]")
    p.wait_lgkm0()
    if dyn is None:
        p.raw(f"v_writelane_b32 v0, s{S_TM}, {idx}")
        p.raw(f"v_writelane_b32 v255, s{S_TM+2}, {idx}")
    else:
        p.s("s_mov_b32 s99, m0")
        p.s(f"s_lshl_b32 m0, s{dyn}, 2")
        p.s(f"s_add_u32 m0, m0, {idx}")
        p.raw(f"v_writelane_b32 v0, s{S_TM}, m0")
        p.raw(f"v_writelane_b32 v255, s{S_TM+2}, m0")
        p.s("s_mov_b32 m0, s99")

KVSEQ = [("K", 0)]
for u in range(15): KVSEQ += [("K", u + 1), ("V", u)]
KVSEQ += [("V", 15)]
KVPOS = {t: i for i, t in enumerate(KVSEQ)}
DYN = (10, 30)
SRD_C = SRD_WO
S_ROT, S_C, S_D = S_KOFF, S_VOFF, S_VB
def kv_ops(pos):
    pre = pos >= 32; pos %= 32
    kind, u = KVSEQ[pos]
    dyn = DYN[0] <= pos <= DYN[1] and not pre
    ops = []
    for j in range(4):
        def f(p, j=j):
            if dyn:
                if j == 0:
                    if pos == DYN[0]:
                        p.s(f"s_add_u32 s{S_C}, s{S_ROT}, {u * 8192}")
                        p.s(f"s_and_b32 s{S_C}, s{S_C}, 0x1ffff")
                        p.s(f"s_mov_b32 s{S_D}, {16384 if kind == 'V' else -8192}")
                        p.s(f"s_mov_b32 s{S_M0D}, {(pos % 8) * 16384}")
                    p.s(f"s_cmp_gt_i32 s{S_D}, 0")
                    p.s(f"s_cselect_b64 s[{SRD_C}:{SRD_C+1}], s[{SRD_V}:{SRD_V+1}], s[{SRD_K}:{SRD_K+1}]")
                    p.s(f"s_add_u32 m0, s{S_M0KV}, s{S_M0D}")
                    p.s(f"s_add_u32 s{S_SO}, s{S_KB}, s{S_C}")
                if "D" not in ABL: p.dmao(V_DV + j, SRD_C, f"s{S_SO}", j * 1024, (kind, u), "nt")
                if j == 0: p.s(f"s_add_u32 s{S_C}, s{S_C}, s{S_D}")
                if j == 1:
                    p.s(f"s_and_b32 s{S_C}, s{S_C}, 0x1ffff")
                    p.s(f"s_sub_u32 s{S_D}, 8192, s{S_D}")
                if j == 2:
                    p.s(f"s_add_u32 s{S_M0D}, s{S_M0D}, 16384")
                    p.s(f"s_and_b32 s{S_M0D}, s{S_M0D}, 0x1ffff")
                return
            if j == 0:
                if pre: p.s(f"s_add_u32 m0, s{S_M0KVP + (pos >> 2)}, {(pos % 4) * 16384}")
                else: p.s(f"s_add_u32 m0, s{S_M0KV}, {(pos % 8) * 16384}")
                p.s(f"s_add_u32 s{S_SO}, s{S_ROT}, {u * 8192}")
                p.s(f"s_and_b32 s{S_SO}, s{S_SO}, 0x1ffff")
                p.s(f"s_add_u32 s{S_SO}, s{S_SO}, s{S_KVP if pre else S_KB}")
            if "D" not in ABL: p.dmao(V_DV + j, SRD_K if kind == "K" else SRD_V, f"s{S_SO}", j * 1024, (kind, u), "nt")
        ops.append((f, 8))
    return ops
def w_ops(h):
    ops = []
    for j in range(4):
        def f(p, j=j):
            if j == 0:
                p.s(f"s_add_u32 m0, s{S_M0W}, {(h % 4) * 16384}")
                p.s(f"s_add_u32 s{S_SO}, s{S_WB + (h & 1)}, s{S_WOFF}")
            if "W" not in ABL: p.dmao(V_DW + j, SRD_W, f"s{S_SO}", j * 1024, ("W", h))
            if j == 1 and h % 2 == 1: p.s(f"s_add_u32 s{S_WOFF}, s{S_WOFF}, {32 * 8192}")
            if j == 2 and h % 4 == 3:
                p.s(f"s_cmp_ge_u32 s{S_WOFF}, {640 * 8192}")
                p.s(f"s_cselect_b32 s{S_WOFF}, 0, s{S_WOFF}")
        ops.append((f, 12 if j == 0 or (j == 2 and h % 4 == 3) else 8 if j == 1 and h % 2 else 4))
    return ops
def x_ops(i):
    ops = []
    sb = XRING if i else XALT
    for j in range(5):
        def f(p, j=j):
            if j == 0:
                p.s(f"s_add_u32 m0, s{S_M0KV}, {sb}")
                p.s(f"s_add_u32 s{S_SO}, s{S_XB}, s{S_XOFF}")
            if "X" not in ABL: p.dmao(V_DX + j, SRD_X, f"s{S_SO}", (j & 3) * 1024, ("X", i), E("XFL", ""))
            if j == 1: p.s(f"s_add_u32 s{S_XOFF}, s{S_XOFF}, 128")
            if j == 2:
                p.s(f"s_cmp_ge_u32 s{S_XOFF}, 1280")
                p.s(f"s_cselect_b32 s{S_XOFF}, 0, s{S_XOFF}")
            if j == 3:
                p.s(f"s_add_u32 m0, s{S_M0X8}, {sb}")
                p.nop(0)
        ops.append((f, 12 if j in (0, 2, 3) else 8 if j == 1 else 4))
    return ops

SRD_E = 4
S_EM, S_ED, S_TAB, S_ES, S_WEND, S_EW = 67, 68, 69, 70, 71, 73
STG = 0x26000
V_WR = V_O + 144
EKP = [int(x) for x in E("EKP", "1,2,1,2").split(",")]
PFP = [int(x) for x in E("PFP", "")]; PFN = len(PFP)
PFS = int(E("PFS", "1"))
S_PFO, S_PFB = 74, 83
def ek_ops(h):
    it = h // 4
    tag = KVSEQ[(it - 1) // 2]
    def kp(p):
        p.s(f"s_and_b32 s{S_ES}, s{S_TAB}, 0x7000")
        p.s(f"s_add_u32 s{S_ES}, s{S_ES}, s{S_ROT}")
        p.s(f"s_and_b32 s{S_ES}, s{S_ES}, 0x1ffff")
        p.s(f"s_add_u32 s{S_ES}, s{S_ES}, s{S_KVP}")
        p.s(f"s_bitcmp1_b32 s{S_TAB}, 15")
        p.s(f"s_cselect_b64 s[{SRD_E}:{SRD_E+1}], s[{SRD_V}:{SRD_V+1}], s[{SRD_K}:{SRD_K+1}]")
        p.s(f"s_lshr_b32 s{S_T0}, s{S_TAB}, 4")
        p.s(f"s_lshl_b32 s{S_TAB}, s{S_TAB}, 28")
        p.s(f"s_or_b32 s{S_TAB}, s{S_TAB}, s{S_T0}")
    def k0(p):
        p.s(f"s_add_u32 m0, s{S_M0KV}, s{S_EM}")
        if "D" not in ABL: p.dmao(V_DV, SRD_E, f"s{S_ES}", 0, tag, "nt")
    def k1(p):
        p.s(f"s_add_u32 m0, s{S_M0KV}, s{S_EM}")
        p.s(f"s_add_u32 s{S_EM}, s{S_EM}, s{S_ED}")
        if "D" not in ABL: p.dmao(V_DV + 1, SRD_E, f"s{S_ES}", 1024, tag, "nt")
        p.s(f"s_xor_b32 s{S_ED}, s{S_ED}, {2048 ^ 14336}")
    def wo(p):
        p.s(f"s_mov_b32 m0, s{S_EW}")
        p.s(f"s_bitcmp1_b32 s{S_WEND}, 0")
        p.s(f"s_cselect_b32 s{S_T0}, s{S_WT}, {OOB:#x}")
        p.dmao(V_DX, SRD_WO, f"s{S_T0}", 0, ("WOP", it), E("WOFL", "nt"))
        p.s(f"s_xor_b32 s{S_EW}, s{S_EW}, 4096")
        p.s(f"s_lshr_b32 s{S_WEND}, s{S_WEND}, 1")
        p.s(f"s_add_u32 s{S_WT}, s{S_WT}, 128")
    def none(p): p.add(Ins(f"buffer_load_dword v{V_JUNK}, off, s[{SRD_DBG}:{SRD_DBG+3}], 0 offset:256", "vm", [], [], tag="none"))
    def pf(srd, du, j, last):
        def f(p):
            p.s(f"s_add_u32 s{S_T0}, s{S_PFO}, {du * 8192}")
            p.s(f"s_and_b32 s{S_T0}, s{S_T0}, 0x1ffff")
            p.s(f"s_add_u32 s{S_T0}, s{S_T0}, s{S_PFB}")
            p.add(Ins(f"buffer_load_dword v{V_JUNK}, v{V_DV + j}, s[{srd}:{srd+3}], s{S_T0} offen offset:{j * 1024} {E('PFFL', '')}", "vm", [V_DV + j], [], tag="pf"))
            if last:
                p.s(f"s_add_u32 s{S_PFO}, s{S_PFO}, {8192 * PFN // 2}")
                p.s(f"s_bitcmp1_b32 s{S_WEND}, 16")
                p.s(f"s_cselect_b32 s{S_PFB}, s{S_KVP}, {OOB:#x}")
        return f
    fs = [k0, k1, wo, None, kp] if it else [none if x else None for x in EKP[:3]] + [None, kp]
    fs += [pf(SRD_K if k & 1 else SRD_V, (5 if k & 1 else 3) + (k >> 1), 3, k == PFN - 1) if it else (none if PFP[k] else None) for k in range(PFN)]
    fs += [code_touch] * len(CPQ)
    return [(f, 8) for f, x in zip(fs, EKP + [3] + PFP + CPQ) if f and x == h % 4]
def wst(p):
    for i in range(5):
        p.store(A_Q + 16 - 4 * i, 4, V_LIN, SRD_WS, f"s{S_PT}", 0, tag="wst", flags="sc1")
        if i < 4: p.s(f"s_add_u32 s{S_PT}, s{S_PT}, 4096")

def split_ops(ops):
    q = Prog()
    for f, _ in ops: f(q)
    out = []; i = 0; L = [x for x in q.ins if x.kind != "nop"]
    while i < len(L):
        grp = [L[i]]
        if L[i].text.startswith(("s_cmp", "s_bitcmp")): grp.append(L[i + 1])
        i += len(grp)
        out.append((lambda p, grp=grp: [p.add(x) for x in grp], "vm" if grp[0].kind in ("vm", "vml", "vms") else "s", 4 * len(grp)))
    return out
def fill_dma(sc, ops, after, before, tag=None, queue="dma", lead=80):
    so = split_ops(ops)
    for k, (fn, kind, cost) in enumerate(so):
        sc.fill(queue, fn, 8 if kind == "vm" else cost, after=after, before=before, lead=lead, solo=(kind == "vm" and SOLO), paced=(kind == "vm"),
                tag=tag if k == len(so) - 1 else None)
SOLO = int(E("SOLO", "1"))
T7 = int(E("T7", "0"))
def sprinkle(progs, ops, lo=0.0, hi=1.0):
    pts = []
    for p, st in progs:
        masked = False
        for i in range(st, len(p.ins)):
            x = p.ins[i]
            if x.text.startswith("s_mov_b64 exec"): masked = not x.text.endswith("-1")
            if x.kind == "label" and not x.text.startswith(";"): break
            if x.kind in ("valu", "perm") and not masked and p.ins[i - 1].kind in ("valu", "perm") and "v_cmp" not in x.text and "v_cmp" not in p.ins[i - 1].text: pts.append((p, i))
    a, b = int(lo * len(pts)), int(hi * len(pts))
    sel = [pts[a + (k * (b - a)) // len(ops)] for k in range(len(ops))]
    for (p, i), (fn, _) in reversed(list(zip(sel, ops))):
        q = Prog(); fn(q)
        p.ins[i:i] = q.ins

V_CP = 2
V_WP, WTP = 23, int(E("WTP", "-1"))
CPO = int(E("CPO", "1536"))
CPQ = [int(x) for x in E("CPQ", "2")]
CPA = [int(x) for x in E("CPA", "").split(",") if x]
def code_addr(p, name, L):
    p.s(f"s_getpc_b64 s[{S_TM}:{S_TM+1}]")
    p.label(f"{name}_pc")
    p.s(f"s_lshr_b32 s{S_T0}, s2, 1")
    p.s(f"s_and_b32 s{S_T0}, s{S_T0}, 0x7c")
    p.s(f"s_add_u32 s{S_T0}, s{S_T0}, s{S_W}")
    p.s(f"s_lshl_b32 s{S_T0}, s{S_T0}, 9")
    p.s(f"s_add_u32 s{S_T0}, s{S_T0}, {CPO}")
    p.s(f"s_add_u32 s{S_TM}, s{S_TM}, s{S_T0}")
    p.s(f"s_addc_u32 s{S_TM+1}, s{S_TM+1}, 0")
    p.raw(f"v_and_b32 v{V_CP}, 3, v{L}")
    p.raw(f"v_lshlrev_b32 v{V_CP}, 7, v{V_CP}")
    p.raw(f"v_mov_b32 v{V_CP+1}, s{S_TM+1}")
    p.raw(f"v_add_co_u32 v{V_CP}, vcc, s{S_TM}, v{V_CP}")
    p.raw("s_nop 1")
    p.raw(f"v_addc_co_u32 v{V_CP+1}, vcc, 0, v{V_CP+1}, vcc")
def code_touch(p): p.add(Ins(f"global_load_dword v{V_JUNK}, v[{V_CP}:{V_CP+1}], off", "vm", [], [], tag="code"))

def get_nonce(p, name, t):
    p.add(Ins(f"v_readfirstlane_b32 s{S_NON}, v{V_NV}", "rfl", [V_NV], []))
    p.add(Ins(f"v_readfirstlane_b32 s{S_NON+1}, v{V_NV+1}", "rfl", [V_NV + 1], []))
    p.s(f"s_cmp_lt_i32 s{S_NON+1}, 0")
    p.s(f"s_cbranch_scc1 {name}_x")
    p.vop("v_mov_b32", t + 2, "0")
    p.label(f"{name}")
    p.raw(f"buffer_load_dwordx2 v[{t}:{t+1}], v{t+2}, s[{SRD_DBG}:{SRD_DBG+3}], 0 offen sc1")
    p.raw("s_waitcnt vmcnt(0)")
    p.raw(f"v_readfirstlane_b32 s{S_NON}, v{t}")
    p.raw(f"v_readfirstlane_b32 s{S_NON+1}, v{t+1}")
    p.s(f"s_sub_u32 s{S_SPIN}, s{S_SPIN}, 1")
    p.s(f"s_cbranch_scc1 {name}_x")
    p.s(f"s_cmp_lt_i32 s{S_NON+1}, 0")
    p.s(f"s_cbranch_scc0 {name}")
    p.label(f"{name}_x")
    p.nop(1)

def publish(p, soff, off, t):
    p.vop("v_mov_b32", t, f"s{S_NON}")
    p.vop("v_mov_b32", t + 1, f"s{S_NON+1}")
    p.s("s_mov_b64 exec, 1")
    p.store(t, 2, V_LIN, SRD_WS, soff, off, tag="flag", flags="sc1")
    p.s("s_mov_b64 exec, -1")

def poll_issue(p, vaddr, soff, off, t):
    p.add(Ins(f"buffer_load_dwordx2 v[{t}:{t+1}], v{vaddr}, s[{SRD_WS}:{SRD_WS+3}], {soff} offen offset:{off} sc1", "vml", [vaddr], [t, t + 1], tag="poll"))
def poll_check(p, name, vaddr, soff, off, t, slp=2):
    p.label(f"{name}")
    p.add(Ins(f"v_cmp_ne_u32 vcc, s{S_NON}, v{t}", "valu", [t], []))
    p.add(Ins(f"v_cmp_ne_u32 s[{S_TM+2}:{S_TM+3}], s{S_NON+1}, v{t+1}", "valu", [t + 1], []))
    p.s(f"s_or_b64 vcc, vcc, s[{S_TM+2}:{S_TM+3}]")
    if "Y" in ABL and "pp" in name: p.s(f"s_branch {name}_ok")
    p.s(f"s_cbranch_scc0 {name}_ok")
    p.s(f"s_sub_u32 s{S_SPIN}, s{S_SPIN}, 1")
    p.s(f"s_cbranch_scc1 {name}_ok")
    if slp: p.s(f"s_sleep {slp}")
    p.raw(f"buffer_load_dwordx2 v[{t}:{t+1}], v{vaddr}, s[{SRD_WS}:{SRD_WS+3}], {soff} offen offset:{off} sc1")
    p.raw("s_waitcnt vmcnt(0)")
    p.s(f"s_branch {name}")
    p.label(f"{name}_ok")

def prologue(name):
    p = Prog()
    p.s(f"s_cmp_ge_u32 s2, {NWG}")
    p.s(f"s_cbranch_scc1 {name}_end")
    p.s("s_load_dwordx8 s[84:91], s[0:1], 0")
    p.s("s_load_dwordx8 s[92:99], s[0:1], 32")
    T = V_O
    W, L, a, b, c, d, U, P, VV, R8, PI, M, G, cv = range(T, T + 14)
    p.vop("v_lshrrev_b32", W, "6", 0)
    p.vop("v_and_b32", L, "63", 0)
    p.add(Ins(f"v_readfirstlane_b32 s{S_W}, v{W}", "rfl", [W], []))
    p.vop("v_and_b32", U, "1", W)
    p.vop("v_lshrrev_b32", P, "1", W)
    p.vop("v_lshrrev_b32", VV, "5", L)
    p.vop("v_bfe_u32", R8, L, "2", "3")
    p.vop("v_and_b32", PI, "3", L)
    p.s(f"s_movk_i32 s{S_T0}, 1280")
    p.vop("v_mul_lo_u32", a, R8, f"s{S_T0}")
    p.vop("v_lshl_add_u32", a, VV, "6", a)
    p.vop("v_xor_b32", c, "3", PI)
    p.vop("v_lshl_add_u32", V_DX, PI, "4", a)
    p.vop("v_lshl_add_u32", b, c, "4", a)
    p.vop("v_add_u32", V_DX + 1, f"{9216}", b)
    p.vop("v_add_u32", V_DX + 2, f"{2 * 9216}", V_DX)
    p.vop("v_add_u32", V_DX + 3, f"{3 * 9216}", b)
    p.vop("v_lshrrev_b32", d, "2", R8)
    p.vop("v_lshlrev_b32", cv, "1", d)
    p.vop("v_xor_b32", cv, cv, PI)
    p.vop("v_and_b32", b, "3", R8)
    p.vop("v_lshl_add_u32", b, d, "3", b)
    p.vop("v_lshlrev_b32", d, "7", U)
    p.vop("v_lshl_add_u32", d, VV, "6", d)
    p.vop("v_lshl_add_u32", b, b, "13", d)
    p.vop("v_lshl_add_u32", V_DW, cv, "4", b)
    for j in range(1, 4): p.vop("v_add_u32", V_DW + j, f"{(16 * (j & 1) + 4 * (j >> 1)) * 8192 - 1024 * j}", V_DW)
    p.vop("v_mul_u32_u24", b, "3", P)
    p.vop("v_xor_b32", b, b, PI)
    p.vop("v_lshl_add_u32", b, b, "4", a)
    p.vop("v_lshlrev_b32", a, "2", W)
    p.vop("v_sub_u32", a, P, a)
    p.vop("v_add_u32", a, "16", a)
    p.s(f"s_movk_i32 s{S_T1}, {8 * 1280}")
    p.vop("v_mul_lo_u32", a, a, f"s{S_T1}")
    p.vop("v_add_u32", a, a, b)
    p.vop("v_lshl_add_u32", V_DX + 4, U, "30", a)
    MAP = int(E("MAP", "0"))
    p.s(f"s_bfe_u32 s{S_T0}, s2, {(MAP << 16) | 3:#x}")
    p.s(f"s_lshr_b32 s{S_T2}, s2, {3 + MAP}")
    p.s(f"s_and_b32 s{S_G}, s2, {(1 << (3 - MAP)) - 1}")
    p.s(f"s_lshl_b32 s{S_G}, s{S_G}, {MAP}")
    p.s(f"s_or_b32 s{S_G}, s{S_G}, s{S_T0}")
    p.s(f"s_bfe_u32 s{S_B}, s2, {(MAP << 16) | (3 - MAP):#x}")
    p.s(f"s_lshl_b32 s{S_B}, s{S_B}, {5 - MAP}")
    p.s(f"s_or_b32 s{S_B}, s{S_B}, s{S_T2}")
    p.s(f"s_lshl_b32 s{S_T0}, s{S_T0}, {5 - MAP}")
    p.s(f"s_lshl_b32 s{S_T2}, s{S_T2}, {MAP}")
    p.s(f"s_add_u32 s{S_T2}, s{S_T2}, s{S_T0}")
    p.s(f"s_and_b32 s{S_T2}, s{S_T2}, 31")
    p.s(f"s_lshr_b32 s{S_P}, s{S_W}, 1")
    p.s(f"s_lshl_b32 s{S_M0KV}, s{S_W}, 12")
    p.s(f"s_add_u32 s{S_M0W}, s{S_M0KV}, {WRING}")
    p.s(f"s_lshl_b32 s{S_M0X8}, s{S_P}, 10")
    p.s(f"s_add_u32 s{S_M0X8}, s{S_M0X8}, 16384")
    p.s(f"s_bitcmp1_b32 s{S_W}, 0")
    p.s(f"s_cselect_b32 s{S_M0X8}, 0x1d000, s{S_M0X8}")
    p.s(f"s_lshl_b32 s{S_T0}, s{S_G}, 2")
    p.s(f"s_add_u32 s{S_T0}, s{S_T0}, s{S_P}")
    p.s(f"s_lshl_b32 s{S_WB}, s{S_T0}, 8")
    p.s(f"s_add_u32 s{S_WB+1}, s{S_WB}, 512")
    p.s(f"s_lshl_b32 s{S_T1}, s{S_B}, 5")
    p.s(f"s_add_u32 s{S_T0}, s{S_T0}, s{S_T1}")
    p.s(f"s_lshl_b32 s{S_KVN}, s{S_T0}, 17")
    p.s(f"s_mul_i32 s{S_T0}, s{S_T2}, 5")
    p.s(f"s_lshr_b32 s{S_T0}, s{S_T0}, 4")
    if not int(E("ROT", "1")): p.s(f"s_mov_b32 s{S_T0}, 0")
    p.s(f"s_lshl_b32 s{S_XOFF}, s{S_T0}, 7")
    p.s(f"s_lshl_b32 s{S_WOFF}, s{S_T0}, 19")
    p.s(f"s_mul_i32 s{S_XB}, s{S_B}, {144 * 1280}")
    p.s(f"s_mul_i32 s{S_T0}, s{S_W}, {32 * 1280}")
    p.s(f"s_add_u32 s{S_XB}, s{S_XB}, s{S_T0}")
    def srd(r, src, size):
        p.s(f"s_mov_b32 s{r+2}, {size:#x}")
        p.s(f"s_mov_b32 s{r+3}, 0x20000")
    def srd2(r, src):
        p.s(f"s_mov_b32 s{r}, s{src}")
        p.s(f"s_and_b32 s{r+1}, s{src+1}, 0xffff")
    SR = ((SRD_X, 84, 32 * 144 * 640 * 2), (SRD_W, 90, 640 * 4096 * 2), (SRD_K, 86, 1 << 27), (SRD_V, 88, 1 << 27),
          (SRD_WO, 92, 4096 * 640 * 2), (SRD_OUT, 94, 32 * 144 * 640 * 2), (SRD_DBG, 96, 256), (SRD_WS, 98, (1 << 28) if PROF else WSBYTES))
    for x in SR: srd(*x)
    p.s("s_waitcnt lgkmcnt(0)")
    for x in SR[:2]: srd2(*x[:2])
    for ops in (x_ops(0), w_ops(0), w_ops(1)):
        for f, _ in ops: f(p)
    for x in SR[2:]: srd2(*x[:2])
    stamp(p, 0)
    p.vop("v_lshlrev_b32", V_LIN, "4", L)
    code_addr(p, name, L)
    code_touch(p)
    p.vop("v_lshl_add_u32", b, R8, "8", d)
    p.vop("v_lshl_add_u32", V_DV, cv, "4", b)
    for j in range(1, 4): p.vop("v_add_u32", V_DV + j, f"{1024 * j}", V_DV)
    p.s(f"s_lshl_b32 s{S_T0}, s2, 1")
    p.s(f"s_add_u32 s{S_T0}, s{S_T0}, s{S_P}")
    p.s(f"s_mul_i32 s{S_T0}, s{S_T0}, {int(E('KROT', '5'))}")
    p.s(f"s_lshr_b32 s{S_T1}, s2, 3")
    p.s(f"s_add_u32 s{S_T0}, s{S_T0}, s{S_T1}")
    p.s(f"s_and_b32 s{S_T0}, s{S_T0}, {15 if int(E('KROT', '5')) else 0}")
    p.s(f"s_lshl_b32 s{S_KOFF}, s{S_T0}, 13")
    p.s(f"s_mov_b32 s{S_M0KVP}, s{S_M0KV}")
    p.s(f"s_mov_b32 s{S_M0KVP+1}, s{S_M0W}")
    p.s(f"s_mov_b32 s{S_KVP}, s{S_KVN}")
    p.s(f"s_mov_b32 s{S_EM}, 0")
    p.s(f"s_movk_i32 s{S_ED}, 2048")
    p.s(f"s_mov_b32 s{S_TAB}, 0x83210549")
    srd(SRD_E, 0, 1 << 27)
    p.s(f"s_and_b32 s{S_U}, s{S_W}, 1")
    p.s(f"s_lshl_b32 s{S_T0}, s{S_B}, 2")
    p.s(f"s_lshr_b32 s{S_T1}, s{S_G}, 1")
    p.s(f"s_add_u32 s{S_T0}, s{S_T0}, s{S_T1}")
    p.s(f"s_and_b32 s{S_T1}, s{S_G}, 1")
    p.s(f"s_lshl_b32 s{S_WFP}, s{S_T1}, 7")
    p.s(f"s_add_u32 s{S_WFP}, s{S_WFP}, s{S_T0}")
    p.s(f"s_lshl2_add_u32 s{S_WFP}, s{S_WFP}, s{S_W}")
    p.s(f"s_lshl3_add_u32 s{S_WFP}, s{S_WFP}, {WFLG}")
    p.s(f"s_mul_i32 s{S_T0}, s{S_T0}, 40960")
    p.s(f"s_mul_i32 s{S_PT}, s{S_T1}, 20480")
    p.s(f"s_add_u32 s{S_PT}, s{S_PT}, s{S_T0}")
    p.s(f"s_lshl_b32 s{S_EW}, s{S_W}, 10")
    p.s(f"s_add_u32 s{S_PT}, s{S_PT}, s{S_EW}")
    p.s(f"s_add_u32 s{S_EW}, s{S_EW}, {STG}")
    p.s(f"s_mul_i32 s{S_T1}, s{S_T1}, 640")
    p.s(f"s_add_u32 s{S_WT}, s{S_T1}, s{S_T0}")
    p.s(f"s_mul_i32 s{S_T1}, s{S_W}, {8 * 1280}")
    p.s(f"s_add_u32 s{S_WT}, s{S_WT}, s{S_T1}")
    p.s(f"s_mov_b32 s{S_WEND}, {0x7c | ((0xfff << (15 + PFS)) & 0x7fff0000):#x}")
    if PFN:
        p.s(f"s_sub_u32 s{S_PFO}, s{S_KOFF}, {8192 * PFN // 2 * (PFS - 1)}")
        p.s(f"s_mov_b32 s{S_PFB}, " + (f"s{S_KVP}" if PFS == 1 else f"{OOB:#x}"))
    if int(E("TOUCH", "1")):
        p.add(Ins(f"buffer_load_dword v{V_T+4}, off, s[{SRD_K}:{SRD_K+3}], s{S_KVN} nt", "vml", [], [V_T + 4], tag="touch"))
        p.add(Ins(f"buffer_load_dword v{V_T+5}, off, s[{SRD_V}:{SRD_V+3}], s{S_KVN} nt", "vml", [], [V_T + 5], tag="touch"))
        p.add(Ins(f"buffer_load_dword v{V_T+7}, off, s[{SRD_WS}:{SRD_WS+3}], s{S_PT} sc1", "vml", [], [V_T + 7], tag="touch"))
        if int(E("TOUCHO", "1")): p.add(Ins(f"buffer_load_dword v{V_T+6}, off, s[{SRD_WO}:{SRD_WO+3}], s{S_WT}", "vml", [], [V_T + 6], tag="touch"))
    p.s(f"s_sub_u32 s{S_WT}, s{S_WT}, 256")
    p.s(f"s_or_b32 s{S_T0}, s2, s{S_W}")
    p.s(f"s_cmp_lg_u32 s{S_T0}, 0")
    p.s(f"s_cbranch_scc1 {name}_nononce")
    p.s(f"s_memrealtime s[{S_NON}:{S_NON+1}]")
    p.s("s_waitcnt lgkmcnt(0)")
    p.s(f"s_or_b32 s{S_NON+1}, s{S_NON+1}, 0x80000000")
    p.raw(f"v_mov_b32 v{V_T}, s{S_NON}")
    p.raw(f"v_mov_b32 v{V_T+1}, s{S_NON+1}")
    p.s("s_mov_b64 exec, 1")
    p.raw(f"buffer_store_dwordx2 v[{V_T}:{V_T+1}], v{V_LIN}, s[{SRD_DBG}:{SRD_DBG+3}], 0 offen sc1")
    p.s("s_mov_b64 exec, -1")
    p.label(f"{name}_nononce")
    p.s(f"s_mov_b32 s{S_SPIN}, 0x40000")
    p.s(f"s_mov_b32 s{S_PH}, 0")
    if PROF in (2, 3): p.s("s_mov_b32 s93, 32")
    p.s(f"s_mov_b64 s[{S_BAD}:{S_BAD+1}], 0")
    p.s(f"s_mov_b32 s{S_CS}, {f2u(CSCALE):#x}")
    p.s(f"s_mov_b32 s{S_CS+1}, s{S_CS}")
    p.s(f"s_mov_b32 s{S_LO}, {f2u(2.0 ** -24):#x}")
    p.s(f"s_mov_b32 s{S_HI}, {f2u(2.0 ** 16):#x}")
    p.vop("v_and_b32", M, "15", L)
    p.vop("v_lshrrev_b32", G, "4", L)
    p.vop("v_lshrrev_b32", a, "3", M)
    p.vop("v_mul_u32_u24", c, "3", a)
    p.vop("v_xor_b32", c, c, G)
    p.vop("v_and_b32", b, "7", M)
    p.vop("v_lshlrev_b32", b, "6", b)
    p.vop("v_lshl_add_u32", b, c, "4", b)
    p.vop("v_lshl_add_u32", b, a, "10", b)
    p.vop("v_add_u32", V_AX8, f"{XRING}", b)
    p.vop("v_lshl_add_u32", V_AX, U, "13", V_AX8)
    p.vop("v_add_u32", V_AW + 5, f"{XALT}", b)
    p.vop("v_lshl_add_u32", V_AW + 4, U, "13", V_AW + 5)
    p.vop("v_and_b32", c, "0x1ff", V_LIN)
    p.vop("v_lshl_add_u32", c, VV, "10", c)
    p.vop("v_lshl_add_u32", c, P, "9", c)
    p.vop("v_lshl_add_u32", c, U, "3", c)
    p.vop("v_add_u32", V_WR, f"{STG + 4096}", c)
    p.vop("v_and_b32", b, "0xffffffcf", b)
    p.vop("v_bfe_u32", a, M, "2", "1")
    p.vop("v_lshlrev_b32", a, "1", a)
    p.vop("v_xor_b32", a, a, G)
    p.vop("v_lshl_add_u32", b, a, "4", b)
    p.vop("v_lshl_add_u32", V_AK, P, "13", b)
    p.vop("v_lshrrev_b32", a, "1", G)
    p.vop("v_lshlrev_b32", b, "10", a)
    p.vop("v_lshl_add_u32", b, R8, "6", b)
    p.vop("v_and_b32", c, "1", L)
    p.vop("v_lshl_add_u32", b, c, "3", b)
    p.vop("v_bfe_u32", c, L, "1", "1")
    p.vop("v_lshl_add_u32", b, c, "4", b)
    p.vop("v_and_b32", c, "1", G)
    p.vop("v_lshl_add_u32", b, c, "5", b)
    p.vop("v_lshl_add_u32", V_AV0, P, "13", b)
    p.vop("v_xor_b32", V_AV1, "32", V_AV0)
    p.vop("v_lshl_add_u32", a, U, "12", V_AV0)
    p.vop("v_xor_b32", b, "32", a)
    p.vop("v_xor_b32", c, "4096", a)
    p.vop("v_xor_b32", d, "4096", b)
    for i, r in enumerate((a, b, c, d)): p.vop("v_add_u32", V_AW + i, f"{WRING}", r)
    for ops in (w_ops(2), x_ops(1), w_ops(3)):
        for f, _ in ops: f(p)
    stamp(p, 23)
    return p

def R128(d, a, off): return lambda p: p.ds_read128(d, a, off)
def TR(d, a, off): return lambda p: p.ds_tr(d, a, off)

class Pool:
    def __init__(self, sc, base, n):
        self.sc = sc; self.regs = base if isinstance(base, list) else [base + 4 * k for k in range(n)]; n = len(self.regs); self.n = n; self.last = [None] * n; self.i = 0; self.frags = []
    def frag(self, tile, mk_reads, consumers, as_b=False):
        k = self.i % self.n; self.i += 1
        r = self.regs[k]
        war = self.last[k]
        for (d, o, c, tag) in consumers:
            if as_b: self.sc.mfma(d, o, r, c, tag)
            else: self.sc.mfma(d, r, o, c, tag)
        self.last[k] = consumers[-1][3]
        self.frags.append((tile, mk_reads(r), consumers[0][3], war))

LEAD = int(E("LEAD", "9"))
LEADB = int(E("LEADB", "8"))
BGAP = int(E("BGAP", "4"))

def sstamp(p):
    p.s(f"s_memrealtime s[{S_TM}:{S_TM+1}]")
    p.s(f"s_memtime s[{S_TM+2}:{S_TM+3}]")
    p.wait_lgkm0()
    p.s("s_mov_b32 s99, m0")
    p.s("s_mov_b32 m0, s93")
    p.s("s_add_u32 s93, s93, 1")
    p.raw(f"v_writelane_b32 v0, s{S_TM}, m0")
    p.raw(f"v_writelane_b32 v255, s{S_TM+2}, m0")
    p.s("s_mov_b32 m0, s99")

def qmod(name):
    p = Prog()
    KVS = [-1] * 4 + [int(x) for x in E("KVS", "37").split(",")]
    sc = Sched(p, budget=int(E("QBUD", "8")), late_extra=8)
    sc.group["dma"] = "vm"; sc.pace["vm"] = int(E("QPACE", "4"))
    sc.maxds = int(E("QMAXDS", "1"))
    pool = Pool(sc, A_QP, NPOOL)
    for h in range(40):
        r = h & 1; st = (h >> 1) & 1
        for k in range(8):
            off = (h % 4) * 16384 + ((k >> 1) & 1) * 512
            ad = V_AW + 2 * (k >> 2) + (k & 1)
            cons = [(QA(r, n, k), Xf(st, n), QA(r, n, k) if h > 1 else None, ("Q", h, k, n)) for n in range(5 if k < 4 else 4)]
            pool.frag(h, lambda rg: [TR(rg, ad, off), TR(rg + 2, ad, off + 2048)], cons)
    mt = lambda i: sc.m[max(0, min(i, len(sc.m) - 1))][4]
    XT = int(E("XT", "1")); A_XT = A_Q + 40
    def xreads(i, kh):
        return [R128(A_XT + 4 * n if (XT and kh and i) else Xf(kh, n), (V_AX if i else V_AW + 4) + (n >> 2), (n if n < 4 else 8) * 2048 + kh * 512) for n in range(5)]
    for fi, (h, reads, cons, war) in enumerate(pool.frags):
        c0 = 36 * h
        tau = c0 - LEADB
        taun = c0 + 36 - LEADB
        if fi % 8 == 0:
            def bar(p, h=h):
                p.comment(f"---- q step {h}")
                tags = [("W", h)]
                if h == 0: tags.append(("X", 0))
                if h % 4 == 3 and h < 39: tags.append(("X", (h + 1) // 4))
                if h % 4 == EKP[3] and 4 <= h < 36: tags.append(("WOP", h // 4 - 1))
                p.wait_vm(tags, lgkm0=True)
                if "b" not in ABL or h < 4: p.barrier()
                if PROF == 2 and h % 2 == 0: sstamp(p)
            ops = []
            if h % 4 == 1 - XT and 4 <= h < 36: ops += x_ops(h // 4 + 1)
            if 1 <= h < 37: ops += w_ops(h + 3)
            if "d" in ABL: ops = []
            nb = len(ops)
            if h < 36: ops = ek_ops(h) + ops if (h % 4 == 0 and int(E("EKF", "0"))) else ops + ek_ops(h)
            nb = len(ops) - nb
            if h % 4 == EKP[3] and 4 <= h < 36:
                for r in range(15, -1, -1): sc.fill("rw", lambda p, r=r: p.amov(A_Q + 4 + r, A_Q + r), 4, after=dict(tag=("BAR", h), delay=14))
                for i in range(2): sc.fill("rw", TR(A_Q + 2 * i, V_WR, i * 2048), 4, ds=True, before=mt(taun - BGAP), lead=2)
                sc.fill("rw", lambda p: p.vop("v_xor_b32", V_WR, "4096", V_WR), 4, before=mt(taun - 1))
            if h == 36 and "S" not in ABL: ops += [(wst, 20)]
            for k, x in enumerate(KVS):
                if x == h: ops += kv_ops(32 + k)
            sc.fill("rd", bar, 8, before=mt(tau), early=0 if h else None, tag=("BAR", h))
            QD = int(E("QD", "14")) - 4 * nb * int(E("QDE", "0")) if len(ops) - nb <= 4 else int(E("QD2", "0"))
            fill_dma(sc, ops, dict(tag=("BAR", h), delay=QD), mt(taun - 1))
            if h == 0:
                for k, fn in enumerate(xreads(0, 0)): sc.fill("rd", fn, 4, ds=True, before=mt(0))
            xr = []; aft = [("BAR", h)]
            if h % 4 == 3 and h < 39: xr = xreads((h + 1) // 4, 0)
            if XT and xr: xr += xreads((h + 1) // 4, 1)
            if XT and h % 4 == 0 and h:
                for r in range(20): sc.fill("cp", lambda p, r=r: p.ar(Xf(1, 0) + r, A_XT + r), 4, after=dict(tag=("Q", h - 1, 7, 3), delay=1), before=mt(c0 + 62), lead=0, early=int(E("XCE", "20")))
            elif h % 4 == 0:
                xr = xreads(h // 4, 1)
                if h: aft.append(("Q", h - 1, 7, 3))
            for j, fn in enumerate(xr):
                sc.fill("rx", fn, 4, ds=True, after=aft, before=mt(taun - BGAP), lead=(2 if XT else 3) * (len(xr) - j))
        for k, fn in enumerate(reads):
            if "r" in ABL and h >= 2: continue
            bf = cons
            if sc.idx[cons] > taun - BGAP: bf = mt(taun - BGAP)
            sc.fill("rd", fn, 4, ds=True, after=war if k == 0 else None, before=bf, lead=LEAD if bf is cons else 0, early=int(E("QEARLY", "99")))
    def lastbar(p):
        p.comment("---- q step 40")
        p.wait_lgkm0(); p.barrier()
        p.add(Ins(f"buffer_load_dwordx2 v[{V_NV}:{V_NV+1}], off, s[{SRD_DBG}:{SRD_DBG+3}], 0 sc1", "vml", [], [V_NV, V_NV + 1], tag="non"))
    sc.fill("rd", lastbar, 8, before=mt(36 * 40 - LEADB), early=0)
    sc.run()
    stamp(p, 1)
    fstart = len(p.ins)
    TB = V_O + 144
    cnt = [0]
    def fin(r, n, t, i):
        s0 = QA(r, n, 2 * t)
        if r:
            tb = TB + 8 * (cnt[0] & 1); cnt[0] += 1
            for x in range(8): p.ar(tb + x, s0 + x)
            s0 = tb
        dst = V_S + 4 * i
        for x in range(0, 8, 2): p.pkmul(s0 + x, s0 + x, f"s[{S_CS}:{S_CS+1}]")
        for x in range(4): p.cvtpk(dst + x, s0 + 2 * x, s0 + 2 * x + 1)
        return dst
    p.v(f"v_lshl_add_u32 v{V_E0}, s{S_W}, 12, v{V_LIN}", [V_E0], [V_LIN])
    p.vop("v_add_u32", V_E0, f"{XRING}", V_E0)
    p.vop("v_xor_b32", V_E1, "4096", V_E0)
    p.vop("v_and_b32", V_E2, "0xfffffcf0", V_E0)
    p.vop("v_bfe_u32", V_T, V_LIN, "9", "1")
    p.vop("v_lshl_add_u32", V_E2, V_T, "8", V_E2)
    p.vop("v_bfe_u32", V_T, V_LIN, "8", "1")
    p.vop("v_lshl_add_u32", V_E2, V_T, "3", V_E2)
    for r in range(2):
        for t in range(2): p.ds_write2(V_E2, fin(r, 4, t, 2 * r + t), (2 * r + t) * 1024)
    for r in range(2):
        base = A_QN if r else A_Q
        for n in range(4):
            FL = [int(x) for x in E("FLD", "02,02").split(",")[r]]
            ds = {}
            for t in range(4):
                ds[t] = fin(r, n, t, 4 + (n & 1) * 4 + t)
                if t in FL: p.ds_write2(V_E2, ds.pop(t), 16384 + t * 1024)
            for f in (p.swap32, p.swap16):
                for d in ds.values(): f(d, d + 2); f(d + 1, d + 3)
            for t in FL: p.ds_read128(Qf(n, t, base), V_E0, 16384 + t * 1024)
            for t, d in ds.items():
                for x in range(4): p.aw(Qf(n, t, base) + x, d + x)
            if r == 0 and n == 1:
                p.raw(f"s_waitcnt lgkmcnt({2 * len(FL)})"); p.barrier()
                for t in range(2): p.ds_read128(Qf(4, t), V_E0, t * 1024)
                for t in range(2): p.ds_read128(Qf(4, 2 + t), V_E1, t * 1024)
    for t in range(2): p.ds_read128(Qf(4, t, A_QN), V_E0, 2048 + t * 1024)
    for t in range(2): p.ds_read128(Qf(4, 2 + t, A_QN), V_E1, 2048 + t * 1024)
    p.vop("v_mov_b32", V_T, "0x3f803f80")
    for r in range(4): p.aw(A_ONE + r, V_T)
    sprinkle([(p, fstart)], sum([kv_ops(32 + k) for k in range(len(KVS), 8 - T7)], []), 0.0, float(E("QSH", "1.0")))
    stamp(p, 26)
    get_nonce(p, f"{name}_n1", V_T)
    stamp(p, 27)
    p.wait_vm("wst")
    stamp(p, 28)
    publish(p, f"s{S_WFP}", 0, V_T)
    stamp(p, 29)
    z = p
    z.s(f"s_lshl_b32 s{S_PF}, s{S_P}, 12")
    z.s(f"s_lshl_b32 s{S_T1}, s{S_G}, 9")
    z.s(f"s_add_u32 s{S_PF}, s{S_PF}, s{S_T1}")
    z.s(f"s_add_u32 s{S_PF}, s{S_PF}, {WFLG}")
    z.vop("v_lshrrev_b32", V_AX, "1", V_LIN)
    for n in range(5): z.vop("v_mov_b32", V_DA + n, f"{DROP:#x}")
    ti_init(z, 0)
    z.vop("v_mov_b32", V_WP, f"{OOB:#x}")
    stamp(z, 2)
    return p

def a_mfmas(sc, pool, qh):
    AV = (V_AV0, V_AV1)
    has8 = lambda u: (u & 1) == qh
    for pos, (kind, u) in enumerate(KVSEQ):
        sb = (pos % 4) * 16384
        ns = [0, 1, 2, 3] + ([4] if has8(u) else [])
        if kind == "K":
            for kt in range(2):
                for ks in range(4):
                    off = sb + kt * 2048 + ((ks >> 1) ^ qh) * 4096 + (ks & 1) * 512
                    cons = []
                    for n in ns:
                        d = XS(u & 1, n) if kt == 0 else YS(n)
                        cons.append((d, Qf(n, ks), d if ks else None, ("S", u, kt, ks, n)))
                    pool.frag(pos, lambda r: [R128(r, V_AK, off)], cons)
                SCH = int(E("SCH", "4"))
                k0 = len(sc.m) - 4 * len(ns)
                sc.m[k0:] = sorted(sc.m[k0:], key=lambda x: (x[4][3] // SCH, x[4][4], x[4][3]))
                for k in range(k0, len(sc.m)): sc.idx[sc.m[k][4]] = k
        else:
            first = lambda n: u == 0 if n < 4 else u == qh
            for n in ns: sc.mfma(La(n), A_ONE, XS(u & 1, n), None if first(n) else La(n), ("L", u, n))
            for m in range(8):
                e, mp = m & 1, m >> 1
                off = sb + (mp >> 1) * 4096 + (mp & 1) * 512
                oa = lambda n: Oa(n, m if n < 4 else m ^ (4 * qh))
                cons = [(oa(n), XS(u & 1, n), None if first(n) else oa(n), ("PV", u, m, n)) for n in ns]
                if int(E("SNK", "1")) and m % 2 == 0: cons.reverse()
                pool.frag(pos, lambda r: [TR(r, AV[e], off), TR(r + 2, AV[e], off + 2048)], cons)

def a_taus():
    cs = []
    for qh in range(2):
        sc = Sched(Prog()); pool = Pool(sc, A_POOL, NPOOL); a_mfmas(sc, pool, qh)
        c = {}
        for (pos, _, cons, _) in pool.frags: c.setdefault(pos, sc.idx[cons])
        c[32] = len(sc.m) + LEADB - 3
        cs.append(c)
    return [min(cs[0][j], cs[1][j]) - LEADB for j in range(33)]

def aentry(name):
    p = Prog()
    p.label(f"{name}_A")
    p.s(f"s_mov_b32 s{S_KB}, s{S_KVN}")
    p.s(f"s_mov_b32 s{SRD_C+2}, 0x8000000")
    p.s(f"s_add_u32 s{S_KVN}, s{S_KVN}, {2 << 17}")
    p.s(f"s_cmp_eq_u32 s{S_PH}, 0")
    p.s(f"s_cselect_b32 s{S_M0KVP}, s{S_M0KV}, {DROP:#x}")
    p.s(f"s_cselect_b32 s{S_M0KVP+1}, s{S_M0W}, {DROP:#x}")
    p.s(f"s_cselect_b32 s{S_KVP}, s{S_KVN}, {OOB:#x}")
    p.s(f"s_cselect_b32 s{S_WT2}, {OOB:#x}, s{S_WT}")
    p.s(f"s_cmp_eq_u32 s{S_U}, 1")
    p.s(f"s_cbranch_scc1 {name}_A1")
    return p

def tile_addr(p, base, dst):
    p.s(f"s_cmp_lt_u32 s{S_G}, 5")
    p.s(f"s_cselect_b32 s{S_T0}, 1, 0")
    p.s(f"s_xor_b32 s{S_T0}, s{S_T0}, s{S_U}")
    p.v(f"v_lshl_add_u32 v{dst}, s{S_T0}, 12, v{base}", [dst], [base])
    for n in range(1, 4): p.vop("v_add_u32", dst + n, f"{1024 * n}", dst)

S_TI = 96
TI = [[tuple(int(x) for x in y.split("+")) for y in z.split(",")] for z in E("TI", "0+0,4+7;-1+0,-1+0").split(";")]
def ti_init(p, r):
    for k, (b, sp) in enumerate(TI[r]):
        if b < 0 or TI[0][k] == (0, 0): continue
        p.s(f"s_add_u32 s{S_T0}, s{S_B}, s{S_G}")
        p.s(f"s_and_b32 s{S_T0}, s{S_T0}, {sp}")
        p.s(f"s_add_u32 s{S_T0}, s{S_T0}, {b}")
        p.s(f"s_lshl_b32 s{S_TI + k}, 1, s{S_T0}")
def avm(pos):
    if pos >= 30: return None
    pat = [int(x) for x in E("AVM", "3,4").split(",")]
    h = [int(x) for x in E("AVMH", "").split(",") if x]
    if pos < len(h): return h[pos]
    return pat[pos % len(pat)] + (3 if 1 <= pos <= 4 else 0)
RQ = [int(x) for x in E("RQH", "3,3,3,3" if T7 else "0,3,3,2").split(",")] + [int(x) for k in "123" for x in E("RQ" + k, "43434343")] + [int(x) for x in E("RQT", "4,4,4,4").split(",")]
STREAM = sum([kv_ops(k) for k in range(8 - T7, 40 - T7)], [])
for s_ in range(32): assert sum(RQ[:s_ + 1]) <= 4 * (s_ + T7)
def amod(name, qh):
    p = Prog()
    p.label(f"{name}_A{qh}")
    sc = Sched(p, budget=int(E("ABUD", "8")), late_extra=int(E("ALATE", "8")))
    sc.group["dma"] = "vm"; sc.pace["vm"] = int(E("APACE", "2"))
    pool = Pool(sc, A_POOL, NPOOL)
    a_mfmas(sc, pool, qh)
    tau = a_taus()
    mt = lambda i: sc.m[max(0, min(i, len(sc.m) - 1))][4]
    def add_bar(pos):
        def bar(p, pos=pos):
            p.comment(f"---- a step {pos}")
            if TI[0][pos % 2] != (0, 0) and pos < 30:
                p.s(f"s_lshr_b32 s{S_TI + pos % 2}, s{S_TI + pos % 2}, 1")
                p.s("s_cbranch_scc0 1")
                p.raw(f"s_waitcnt vmcnt({avm(pos) - 1})")
            if pos < 32: p.wait_vm(KVSEQ[pos], lgkm0=True, cap=avm(pos))
            else: p.wait_lgkm0()
            p.barrier()
            if pos % 4 == 0 and pos:
                for r in (V_AV0, V_AV1, V_AK): p.vop("v_xor_b32", r, "0x10000", r)
            if PROF == 3 and pos % 2 == 0 and pos < 32: sstamp(p)
        sc.fill("rd", bar, 8, before=mt(tau[pos]), early=0 if pos else None, tag=("BAR", pos))
        if pos < 32:
            ops = STREAM[sum(RQ[:pos]):sum(RQ[:pos + 1])]
            aft = ("BAR", pos); bf = mt(tau[pos + 1] - 1)
            span = tau[pos + 1] - max(tau[pos], 0)
            if pos in CPA: ops = [(code_touch, 8)] + ops
            if pos == WTP: ops = [(lambda p: p.add(Ins(f"buffer_load_dword v{V_JUNK}, v{V_WP}, s[{SRD_WS}:{SRD_WS+3}], 0 offen sc1", "vm", [V_WP], [], tag="wtp")), 8)] + ops
            for k, op in enumerate(ops): fill_dma(sc, [op], dict(tag=aft, delay=(k * (span - 2)) // len(ops)), bf)
            if pos < 4:
                for k in range(3 * pos, 3 + 3 * pos):
                    for fn, kind, cost in split_ops([(wload(0, k, S_T2, S_WT2), 8)]):
                        sc.fill("dmp", fn, 8 if kind == "vm" else 4, after=dict(tag=aft, delay=5 + 9 * (k % 3)), solo=(kind == "vm"), before=bf, lead=20)
            if pos == 30:
                WLS = int(E("WLS", "6"))
                last = ("S", 15, 1, 3, 4 if qh == 1 else 3)
                for k in range(12):
                    for fn, kind, cost in split_ops([(wload(0, 12 + k, S_T2, S_WT2), 8)]):
                        sc.fill("dmp", fn, 8 if kind == "vm" else 4, after=dict(tag=last, delay=2 + WLS * k), solo=(kind == "vm"), before=mt(sc.idx[last] + 12 + WLS * k), lead=9)
            if 26 <= pos < 30:
                t = pos - 26
                ws = [(V_DA + n, Qf(n, t, A_QN), t * 18432 + 1024) for n in range(4)]
                if t >> 1 == qh: ws.append((V_DA + 4, Qf(4, t & 1, A_QN), (t & 1) * 18432))
                for k, w in enumerate(ws):
                    sc.fill("dw", lambda p, w=w: p.ds_write(w[0], w[1], 4, w[2]), 8, solo=True, after=dict(tag=aft, delay=4 + k * ((span - 10) // len(ws))), before=mt(tau[pos + 1] - BGAP), lead=12)
            if pos == 31:
                for f in range(8): sc.fill("dw", R128(P0_B[f], V_LIN, IMG(f)), 4, ds=True, after=dict(tag=aft, delay=16 + 2 * f), before=mt(tau[32] - BGAP), lead=4)
    cur = None
    for (pos, reads, cons, war) in pool.frags:
        if pos != cur:
            cur = pos; add_bar(pos)
        for k, fn in enumerate(reads):
            bf = cons
            if sc.idx[cons] > tau[pos + 1] - BGAP: bf = mt(tau[pos + 1] - BGAP)
            sc.fill("rd", fn, 4, ds=True, after=war if k == 0 else None, before=bf, lead=LEAD if bf is cons else 0)
    add_bar(32)
    def V(fn, after=None, before=None, cost=4, lead=0): sc.fill("va", fn, cost, after=after, before=before, lead=lead)
    EDL = int(E("EDL", "3"))
    for u in range(16):
        ns = [0, 1, 2, 3] + ([4] if (u & 1) == qh else [])
        for kt in range(2):
            for n in ns:
                src = XS(u & 1, n) if kt == 0 else YS(n)
                dst = XS(u & 1, n) + 2 * kt
                for r in range(4):
                    V(lambda p, reg=src + r: p.exp(reg, reg), after=dict(tag=("S", u, kt, 3, n), delay=EDL), cost=8)
                bf = ("L", u, n)
                if kt == 1 and n < 4 and u < 15: bf = ("S", u + 1, 1, 0, n)
                V(lambda p, dst=dst, src=src: p.cvtpk(dst, src, src + 1))
                V(lambda p, dst=dst, src=src: p.cvtpk(dst + 1, src + 2, src + 3), before=bf, lead=2)
    sc.run()
    p.s(f"s_cmp_eq_u32 s{S_PH}, 0")
    p.s(f"s_cbranch_scc0 {name}_P0")
    if qh == 0: p.s(f"s_branch {name}_F")
    return p

RL, CHK, PX, AD, AL = V_S + 2, V_S + 12, V_S + 16, V_S + 48, V_S + 50
def f_addr(p):
    p.v(f"v_lshl_add_u32 v{AD}, s{S_W}, 12, v{V_LIN}", [AD], [V_LIN])
    p.vop("v_add_u32", AD, f"{MISC}", AD)
    p.vop("v_xor_b32", AD + 1, "4096", AD)
def f_bad(op, a, b):
    def f(p):
        p.add(Ins(f"{op} vcc, v{a}, {b}", "valu", [a], []))
        p.s(f"s_or_b64 s[{S_BAD}:{S_BAD+1}], s[{S_BAD}:{S_BAD+1}], vcc")
    return f
def f_rcp(n): return [lambda p: p.vop("v_rcp_f32", RL + 2 * n, RL + 2 * n, kind="trans"), lambda p: p.vop("v_mov_b32", RL + 2 * n + 1, RL + 2 * n)]
def f_range():
    return [lambda p: p.vop("v_max3_f32", V_S, RL, RL + 2, RL + 4), lambda p: p.vop("v_min3_f32", V_S + 1, RL, RL + 2, RL + 4),
            lambda p: p.vop("v_max3_f32", V_S, V_S, RL + 6, RL + 8), lambda p: p.vop("v_min3_f32", V_S + 1, V_S + 1, RL + 6, RL + 8),
            f_bad("v_cmp_nle_f32", V_S, f"s{S_HI}"), f_bad("v_cmp_nge_f32", V_S + 1, f"s{S_LO}")]
def f_fin(): return [lambda p: p.s(f"s_movk_i32 s{S_T2}, 0x207"), f_bad("v_cmp_class_f32", CHK, f"s{S_T2}")]
def f_norm(n, t):
    s0 = Oa(n, 2 * t)
    add = [lambda p, r=r: p.add(Ins(f"v_pk_add_f32 {vr(s0 + r, 2)}, {vr(s0 + r, 2)}, {vr(PX + 8 * t + r, 2)}", "valu", R(s0 + r, 2) | R(PX + 8 * t + r, 2), R(s0 + r, 2))) for r in range(0, 8, 2)] if n == 4 else []
    return add + [lambda p, r=r: p.pkmul(s0 + r, s0 + r, RL + 2 * n) for r in range(0, 8, 2)], [lambda p, r=r: p.cvtpk(s0 + r, s0 + 2 * r, s0 + 2 * r + 1) for r in range(4)]
def f_l8(): return [lambda p: p.vop("v_add_f32", RL + 8, RL + 8, V_S)] + f_rcp(4)
UNITS = [(n, t) for n in (0, 1, 2, 4, 3) for t in range(4 if n < 4 else 2)]
def afin(name):
    p = Prog()
    p.label(f"{name}_F")
    stamp(p, 5)
    poll_issue(p, V_AX, f"s{S_PF}", 0, V_NV)
    f_addr(p)
    for i in range(4): p.ds_write(AD + 1, Oa(4, 4 + i), 4, i * 1024)
    for i in range(2): p.vop("v_subrev_u32", AL + i, "16384", AD + i)
    p.ds_write(AL + 1, La(4), 1, 0)
    for n in range(5): p.ar(RL + 2 * n, La(n))
    for k in range(2):
        for n in range(4): f_rcp(n)[k](p)
    p.wait_lgkm0()
    for k, (n, t) in enumerate(UNITS):
        if k == 4:
            p.barrier()
            for i in range(4): p.ds_read128(PX + 4 * i, AD, i * 1024)
            p.ds_read32(V_S, AL, 0)
        if k == 11:
            for f in f_l8(): f(p)
        for f in sum(f_norm(n, t), []): f(p)
    for f in f_range(): f(p)
    p.s(f"s_mov_b32 s{S_PH}, 1")
    stamp(p, 6)
    for r in range(80):
        if r % 4 == 0 and r < 72: p.mfma(CHK, A_ONE, Oa(UNITS[r // 4][0], 2 * UNITS[r // 4][1]), CHK if r else None)
        p.amov(A_Q + r, A_QN + r)
    for n, t in UNITS:
        for r in range(4): p.aw(Qf(n, t, A_QN) + r, Oa(n, 2 * t) + r)
    for f in f_fin(): f(p)
    sprinkle([(p, 8)], STREAM[sum(RQ):], 0.0, float(E("ASH", "0.7")))
    code_touch(p)
    p.s(f"s_mul_i32 s{S_T0}, s{S_P}, 9216")
    p.vop("v_add_u32", V_DA + 4, f"s{S_T0}", V_LIN)
    tile_addr(p, V_DA + 4, V_DA)
    p.s(f"s_mul_i32 s{S_T0}, s{S_U}, 36864")
    p.vop("v_add_u32", V_DA + 4, f"s{S_T0}", V_DA + 4)
    p.s(f"s_lshr_b32 s{S_T0}, s{S_B}, 1")
    p.s(f"s_lshl4_add_u32 s{S_T0}, s{S_G}, s{S_T0}")
    p.s(f"s_lshl1_add_u32 s{S_T0}, s{S_T0}, s{S_P}")
    p.s(f"s_and_b32 s{S_T1}, s{S_B}, 1")
    p.s(f"s_lshl1_add_u32 s{S_T0}, s{S_T0}, s{S_T1}")
    p.s(f"s_lshl1_add_u32 s{S_T0}, s{S_T0}, s{S_U}")
    p.s(f"s_mul_i32 s{S_T0}, s{S_T0}, 5120")
    p.vop("v_min_u32", V_WP, f"{39 * 16}", V_LIN)
    p.v(f"v_lshl_add_u32 v{V_WP}, v{V_WP}, 3, s{S_T0}", [V_WP], [V_WP])
    psetup(p)
    ti_init(p, 1)
    poll_check(p, f"{name}_wpoll", V_AX, f"s{S_PF}", 0, V_NV)
    p.s(f"s_branch {name}_A")
    return p

P_R = ([A_X + 4 * i for i in range(10)] + [10, 14] + [A_Q + 4 * i for i in range(20)],
       [A_L + 4 * i for i in range(5)] + [A_POOL + 4 * i for i in range(6)] + [A_QN + 64 + 4 * i for i in range(4)] + [A_QN + 4 * i for i in range(16)] + [A_ONE])
P0_B = P_R[0][24:] + [A_QN + 4 * (i % 16) for i in range(64)]
def wload(j, i, so=None, sb=None, extra=0):
    def f(p):
        if i % 2 == 0: p.s(f"s_add_u32 s{so or S_SO}, s{sb or S_WT}, {(i >> 1) * 40960 + extra}")
        if "B" not in ABL: p.load4(P_R[j & 1][i], V_LIN, SRD_WS, f"s{so or S_SO}", (i & 1) * 1024, ("WT", j, i), "sc1")
    return f

def slow(name):
    SI, SC, SX, SWq, SKV, SD, SK = 56, 57, 58, 59, 88, 89, 90
    VW, VX, VK, VV_, VD = 28, 36, 37, 38, 39
    MX, NM, LA, QF, SS, FB, AC, RAW, FR = 40, 44, 48, 52, 68, 76, 84, 116, 180
    def ld(p, op, n, d, vo, srd, so, off):
        p.add(Ins(f"{op} {vr(d, n)}, v{vo}, s[{srd}:{srd+3}], s{so} offen offset:{off}", "vml", [vo], R(d, n), tag="sl"))
    p0 = Prog()
    p0.label(f"{name}_slow")
    p0.wait_all()
    M, G = MX, MX + 1
    p0.vop("v_bfe_u32", M, V_LIN, "4", "4")
    p0.vop("v_lshrrev_b32", G, "8", V_LIN)
    p0.vop("v_lshlrev_b32", VW, "16", G)
    p0.vop("v_lshl_add_u32", VW, M, "1", VW)
    for i in range(1, 8): p0.vop("v_add_u32", VW + i, f"{8192 * i}", VW)
    p0.s(f"s_movk_i32 s{S_T0}, 1280")
    p0.vop("v_mul_lo_u32", VX, M, f"s{S_T0}")
    p0.vop("v_lshl_add_u32", VX, G, "4", VX)
    p0.vop("v_lshlrev_b32", VK, "8", M)
    p0.vop("v_lshl_add_u32", VK, G, "3", VK)
    p0.vop("v_lshlrev_b32", VV_, "10", G)
    p0.vop("v_lshl_add_u32", VV_, M, "1", VV_)
    p0.s(f"s_mov_b32 s{SI}, 0")
    p1 = Prog()
    p1.label(f"{name}_sl_it")
    p1.s(f"s_cmp_ge_u32 s{SI}, 5")
    p1.s(f"s_cselect_b32 s{S_T0}, 2, 0")
    p1.s(f"s_cselect_b32 s{S_T1}, 5, 0")
    p1.s(f"s_cselect_b32 s{SD}, {73728}, 0")
    p1.s(f"s_sub_u32 s{S_T1}, s{SI}, s{S_T1}")
    p1.s(f"s_add_u32 s{S_T0}, s{S_T0}, s{S_P}")
    p1.s(f"s_mul_i32 s{S_T2}, s{S_P}, 9216")
    p1.s(f"s_add_u32 s{SD}, s{SD}, s{S_T2}")
    p1.s(f"s_lshl_b32 s{S_T2}, s{S_G}, 2")
    p1.s(f"s_add_u32 s{S_T0}, s{S_T0}, s{S_T2}")
    p1.s(f"s_lshl_b32 s{SWq}, s{S_T0}, 8")
    p1.s(f"s_lshl_b32 s{S_T2}, s{S_B}, 5")
    p1.s(f"s_add_u32 s{S_T0}, s{S_T0}, s{S_T2}")
    p1.s(f"s_lshl_b32 s{SKV}, s{S_T0}, 17")
    p1.s(f"s_lshl_b32 s{S_T0}, s{S_U}, 2")
    p1.s(f"s_add_u32 s{S_T0}, s{S_T0}, s{S_T1}")
    p1.s(f"s_cmp_lt_u32 s{S_G}, 5")
    p1.s(f"s_cselect_b32 s{S_T2}, 4, 0")
    p1.s(f"s_xor_b32 s{S_T2}, s{S_T2}, s{S_T0}")
    p1.s(f"s_add_u32 s{S_T2}, s{S_T2}, 1")
    p1.s(f"s_cmp_eq_u32 s{S_T1}, 4")
    p1.s(f"s_cselect_b32 s{S_T0}, 8, s{S_T0}")
    p1.s(f"s_cselect_b32 s{S_T2}, 0, s{S_T2}")
    p1.s(f"s_lshl_b32 s{S_T2}, s{S_T2}, 10")
    p1.s(f"s_add_u32 s{SD}, s{SD}, s{S_T2}")
    p1.vop("v_add_u32", VD, f"s{SD}", V_LIN)
    p1.s(f"s_mul_i32 s{S_T2}, s{S_B}, 9")
    p1.s(f"s_add_u32 s{S_T0}, s{S_T0}, s{S_T2}")
    p1.s(f"s_mul_i32 s{SX}, s{S_T0}, {16 * 1280}")
    for r in range(32): p1.vop("v_mov_b32", AC + r, "0")
    p1.s(f"s_mov_b32 s{SC}, 0")
    def pack(p):
        for r in range(32): p.vop("v_lshl_or_b32", FR + r, RAW + 2 * r + 1, "16", RAW + 2 * r)
    def loop_end(p, lab, n):
        p.s(f"s_add_u32 s{SC}, s{SC}, 1")
        p.s(f"s_cmp_lt_u32 s{SC}, {n}")
        p.s(f"s_cbranch_scc1 {lab}")
    p2 = Prog()
    p2.label(f"{name}_sl_q")
    ld(p2, "buffer_load_dwordx4", 4, FB, VX, SRD_X, SX, 0)
    for m in range(8):
        for i in range(8): ld(p2, "buffer_load_ushort", 1, RAW + 8 * m + i, VW + i, SRD_W, SWq, 32 * m)
        if m == 3: p2.wait_all()
    p2.wait_all()
    pack(p2)
    for m in range(8): p2.mfma(AC + 4 * m, FR + 4 * m, FB, AC + 4 * m)
    p2.s(f"s_add_u32 s{SX}, s{SX}, 64")
    p2.s(f"s_add_u32 s{SWq}, s{SWq}, {32 * 8192}")
    loop_end(p2, f"{name}_sl_q", 20)
    p3 = Prog()
    for r in range(32): p3.vop("v_mul_f32", AC + r, f"s{S_CS}", AC + r)
    for r in range(16): p3.cvtpk(QF + r, AC + 2 * r, AC + 2 * r + 1)
    for r in range(32): p3.vop("v_mov_b32", AC + r, "0")
    for r in range(4): p3.vop("v_mov_b32", LA + r, "0")
    p3.vop("v_mov_b32", MX, "0xff800000")
    p3.s(f"s_mov_b32 s{SK}, s{SKV}")
    p3.s(f"s_mov_b32 s{SC}, 0")
    def kfrags(p, dst, so):
        for ks in range(4):
            ld(p, "buffer_load_dwordx2", 2, dst + 4 * ks, VK, SRD_K, so, 64 * ks)
            ld(p, "buffer_load_dwordx2", 2, dst + 4 * ks + 2, VK, SRD_K, so, 64 * ks + 32)
    p4 = Prog()
    p4.label(f"{name}_sl_m")
    kfrags(p4, FR, SK)
    p4.wait_all()
    for ks in range(4): p4.mfma(SS, FR + 4 * ks, QF + 4 * ks, SS if ks else None)
    p4.vop("v_max3_f32", MX, MX, SS, SS + 1)
    p4.vop("v_max3_f32", MX, MX, SS + 2, SS + 3)
    p4.s(f"s_add_u32 s{SK}, s{SK}, 4096")
    loop_end(p4, f"{name}_sl_m", 32)
    p5 = Prog()
    for sw in (p5.swap32, p5.swap16):
        p5.vop("v_mov_b32", MX + 1, MX)
        sw(MX, MX + 1)
        p5.vop("v_max_f32", MX, MX, MX + 1)
    for r in range(4): p5.vop("v_sub_f32", NM + r, "0", MX)
    p5.s(f"s_mov_b32 s{SC}, 0")
    p6 = Prog()
    p6.label(f"{name}_sl_a")
    p6.s(f"s_add_u32 s{SK}, s{SKV}, 4096")
    kfrags(p6, FR, SKV)
    kfrags(p6, FR + 16, SK)
    p6.wait_all()
    for m in range(8):
        for i in range(8): ld(p6, "buffer_load_ushort", 1, RAW + 8 * m + i, VV_, SRD_V, SK if i >= 4 else SKV, 32 * m + 256 * (i & 3))
        if m == 3: p6.wait_all()
    for kt in range(2):
        for ks in range(4): p6.mfma(SS + 4 * kt, FR + 16 * kt + 4 * ks, QF + 4 * ks, SS + 4 * kt if ks else NM)
    for r in range(8): p6.exp(SS + r, SS + r)
    for r in range(4): p6.cvtpk(FB + r, SS + 2 * r, SS + 2 * r + 1)
    p6.wait_all()
    pack(p6)
    p6.mfma(LA, A_ONE, FB, LA)
    for m in range(8): p6.mfma(AC + 4 * m, FR + 4 * m, FB, AC + 4 * m)
    p6.s(f"s_add_u32 s{SKV}, s{SKV}, 8192")
    loop_end(p6, f"{name}_sl_a", 16)
    p7 = Prog()
    p7.vop("v_rcp_f32", LA, LA, kind="trans")
    for r in range(32): p7.vop("v_mul_f32", AC + r, AC + r, LA)
    for r in range(16): p7.cvtpk(QF + r, AC + 2 * r, AC + 2 * r + 1)
    for hf in range(2):
        p7.s(f"s_cmp_eq_u32 s{S_U}, {hf}")
        p7.s(f"s_cselect_b32 s{S_T0}, 0, s{S_T1}")
        p7.s(f"s_cmp_eq_u32 s{S_T0}, 4")
        p7.s(f"s_cbranch_scc1 {name}_sl_s{hf}")
        for t in (2 * hf, 2 * hf + 1): p7.ds_write(VD, QF + 4 * t, 4, t * 18432)
        p7.label(f"{name}_sl_s{hf}")
    p7.wait_all()
    p7.s(f"s_add_u32 s{SI}, s{SI}, 1")
    p7.s(f"s_cmp_lt_u32 s{SI}, 10")
    p7.s(f"s_cbranch_scc1 {name}_sl_it")
    p7.s(f"s_branch {name}_P2")
    body = [p1, p2, p2, p3, p4, p4, p5, p6, p6, p7]
    return [p0, p1, p2, p3, p4, p5, p6, p7], [p0] + body + body

S_ST = 62
S_PC, S_FO, S_PO = 71, 72, 73
S_OF = (4, 5, 6, 7, 74)
S_JA, S_JC, S_JO, S_WE = 77, 83, 52, 101
S_JE, S_EO = (79, 80), (61, 100)
def psetup(p):
    C, J, BW, OW = S_TM, S_TM + 1, S_TM + 2, S_TM + 3
    p.s(f"s_mul_i32 s{BW}, s{S_B}, {PARTB}")
    p.s(f"s_lshl_b32 s{S_T1}, s{S_W}, 11")
    p.s(f"s_add_u32 s{BW}, s{BW}, s{S_T1}")
    p.s(f"s_add_u32 s{BW}, s{BW}, {PART}")
    p.s(f"s_mul_i32 s{OW}, s{S_B}, {144 * 1280}")
    p.s(f"s_mul_i32 s{S_T1}, s{S_W}, 320")
    p.s(f"s_add_u32 s{OW}, s{OW}, s{S_T1}")
    p.s(f"s_sub_u32 s{S_T0}, s{S_G}, 5")
    p.s(f"s_cselect_b32 s{C}, s{S_G}, s{S_T0}")
    p.s(f"s_cselect_b32 s{J}, 0, 1")
    p.s(f"s_add_u32 s{S_ST}, s{BW}, {8 * 81920}")
    p.s(f"s_mul_i32 s{S_T0}, s{J}, {4 * 81920}")
    p.s(f"s_add_u32 s{S_ST+5}, s{BW}, s{S_T0}")
    p.s(f"s_sub_u32 s{S_ST+1}, s{BW}, s{S_T0}")
    p.s(f"s_add_u32 s{S_ST+1}, s{S_ST+1}, {4 * 81920}")
    for i in (2, 3, 4, 6, 7, 8): p.s(f"s_add_u32 s{S_ST+i}, s{S_ST+i-1}, 81920")
    p.s(f"s_lshl_b32 s{S_T0}, s{C}, 13")
    p.s(f"s_add_u32 s{S_JA}, s{S_ST+5}, s{S_T0}")
    p.s(f"s_mul_i32 s{S_JO}, s{J}, {64 * 1280}")
    p.s(f"s_add_u32 s{S_JO}, s{S_JO}, s{OW}")
    p.s(f"s_lshl_b32 s{S_T0}, s{C}, 6")
    p.s(f"s_add_u32 s{S_JO}, s{S_JO}, s{S_T0}")
    p.s(f"s_mul_i32 s{S_WE}, s{S_G}, {16 * 40960}")
    p.s(f"s_mul_i32 s{S_T0}, s{S_W}, 10240")
    p.s(f"s_add_u32 s{S_WE}, s{S_WE}, s{S_T0}")
    for k in range(5):
        p.s(f"s_add_u32 s{C}, s{C}, 1")
        p.s(f"s_cmp_eq_u32 s{C}, 5")
        p.s(f"s_cselect_b32 s{C}, 0, s{C}")
        if k == 0:
            p.s(f"s_lshl_b32 s{S_WT}, s{C}, 11")
            p.s(f"s_add_u32 s{S_WT}, s{S_WT}, s{S_WE}")
            p.s(f"s_add_u32 s{S_WE}, s{S_WE}, 10240")
        p.s(f"s_and_b32 s{S_T0}, s{J}, 1")
        p.s(f"s_lshl3_add_u32 s{S_T0}, s{C}, s{S_T0}")
        p.s(f"s_lshl_b32 s{S_OF[k]}, s{S_T0}, 10")
        if k:
            p.s(f"s_bitcmp1_b32 s{J}, 1")
            p.s(f"s_cselect_b32 s{S_T0}, 40960, 0")
            p.s(f"s_add_u32 s{S_OF[k]}, s{S_OF[k]}, s{S_T0}")
        if k > 1:
            p.s(f"s_bitcmp1_b32 s{J}, 2")
            p.s(f"s_cselect_b32 s{S_T0}, {AREA}, 0")
            p.s(f"s_add_u32 s{S_OF[k]}, s{S_OF[k]}, s{S_T0}")
        if k < 4:
            p.s(f"s_cmp_lt_u32 s{C}, 3")
            p.s(f"s_addc_u32 s{J}, s{J}, 1")
    p.s(f"s_bitcmp1_b32 s{J}, 0")
    p.s(f"s_cselect_b32 s{S_T0}, 0, 1024")
    p.s(f"s_add_u32 s{S_JC}, s{S_JA}, s{S_T0}")
    for k in range(2):
        p.s(f"s_add_u32 s{S_T2}, s{S_G}, {8 * k + 11}")
        p.s(f"s_and_b32 s{S_T0}, s{S_T2}, 3")
        p.s(f"s_add_u32 s{S_T0}, s{S_T0}, 4")
        p.s(f"s_lshr_b32 s{S_T1}, s{S_T2}, 2")
        p.s(f"s_sub_u32 s{S_T1}, s{S_T1}, 1")
        if k == 0:
            p.s(f"s_cmp_lt_u32 s{S_G}, 5")
            p.s(f"s_cselect_b32 s{S_T0}, 8, s{S_T0}")
            p.s(f"s_cselect_b32 s{S_T1}, s{S_G}, s{S_T1}")
        p.s(f"s_mul_i32 s{S_JE[k]}, s{S_T0}, 10")
        p.s(f"s_add_u32 s{S_JE[k]}, s{S_JE[k]}, s{S_T1}")
        p.s(f"s_lshl_b32 s{S_JE[k]}, s{S_JE[k]}, 13")
        p.s(f"s_add_u32 s{S_JE[k]}, s{S_JE[k]}, s{BW}")
        p.s(f"s_mul_i32 s{S_EO[k]}, s{S_T0}, 320")
        p.s(f"s_add_u32 s{S_EO[k]}, s{S_EO[k]}, s{S_T1}")
        p.s(f"s_lshl_b32 s{S_EO[k]}, s{S_EO[k]}, 6")
        p.s(f"s_add_u32 s{S_EO[k]}, s{S_EO[k]}, s{OW}")
    p.s(f"s_cmp_ge_u32 s{S_G}, 5")
    p.s(f"s_cselect_b32 s{S_JE[1]}, {OOB:#x}, s{S_JE[1]}")
    p.s(f"s_cselect_b32 s{S_EO[1]}, {OOB:#x}, s{S_EO[1]}")
    p.s(f"s_lshl2_add_u32 s{S_PO}, s{S_B}, s{S_W}")
    p.s(f"s_lshl_b32 s{S_PO}, s{S_PO}, 10")
    p.s(f"s_add_u32 s{S_PO}, s{S_PO}, {PFLG}")
    p.s(f"s_lshl3_add_u32 s{S_FO}, s{S_G}, s{S_PO}")
    p.s(f"s_mov_b32 s{S_PC}, 0")

def pmod(name):
    p = Prog()
    p.label(f"{name}_fb")
    p.wait_all()
    p.s(f"s_cmp_lg_u64 s[{S_BAD}:{S_BAD+1}], 0")
    p.s(f"s_cbranch_scc1 {name}_slow")
    p.label(f"{name}_P2")
    AO = (V_LIN, 2, 3)
    V_FA, V_OA = 4, 5
    PT, PT2 = 6, 8
    V_SA, V_JA, PT3 = 1, 25, 26
    SEL = 18
    POOL = [28 + 4 * k for k in range(16)]
    ACC = 92
    OWN = 124
    PK, SUM, JB = 132, 140, 188
    CT = 244
    p.wait_all()
    p.barrier()
    NL = int(E("PLEAD", "8"))
    def ooff(i, kq): return IMG(kq) + i * 1024
    for f in range(NL): p.ds_read128(POOL[f], AO[ooff(0, f) // 49152], ooff(0, f) % 49152)
    p.vop("v_mov_b32", V_SA, f"{OOB:#x}")
    s0 = len(p.ins)
    p.vop("v_mov_b32", V_JA, f"{OOB:#x}")
    p.vop("v_lshrrev_b32", V_FA, "1", V_LIN)
    p.vop("v_and_b32", V_FA, "0x38", V_FA)
    p.vop("v_bfe_u32", CT, V_LIN, "4", "4")
    p.s(f"s_movk_i32 s{S_T0}, 1280")
    p.vop("v_mul_lo_u32", V_OA, CT, f"s{S_T0}")
    p.vop("v_lshrrev_b32", CT + 1, "8", V_LIN)
    p.vop("v_lshl_add_u32", V_OA, CT + 1, "4", V_OA)
    p.vop("v_mov_b32", PT2, f"s{S_NON}")
    p.vop("v_mov_b32", PT2 + 1, f"s{S_NON+1}")
    p.vop("v_and_b32", CT + 2, "1", CT)
    p.vop("v_lshlrev_b32", CT + 2, "4", CT + 2)
    p.s(f"s_movk_i32 s{S_T0}, 0x3f80")
    p.vop("v_lshlrev_b32", CT + 2, CT + 2, f"s{S_T0}")
    p.vop("v_lshrrev_b32", CT, "1", CT)
    p.vop("v_lshlrev_b32", CT + 1, "1", CT + 1)
    p.vop("v_sub_u32", CT, CT, CT + 1)
    for r in range(2):
        p.add(Ins(f"v_cmp_eq_u32 vcc, {r}, v{CT}", "valu", [CT], []))
        p.vop("v_mov_b32", SEL + r, "0")
        p.vop("v_mov_b32", SEL + 4 + r, "0")
        p.add(Ins(f"v_cndmask_b32 v{SEL+2+r}, 0, v{CT+2}, vcc", "valu", [CT + 2], [SEL + 2 + r]))
    setup = p.ins[s0:]
    def jload(q, jl, dst, own=S_JA):
        def f(p):
            so = S_JE[q - 4] if q >= 4 else S_T1 if q else own
            if 0 < q < 4 and jl == 0: p.s(f"s_add_u32 s{S_T1}, s{own}, {q * 81920}")
            if "J" not in ABL or own != S_JA or dst < JB: p.load4(dst, V_JA, SRD_WS, f"s{so}", jl * 1024, "job", E("JFL", "sc1"))
        return f
    def reduce(p, q, bufs, init=False):
        for e in range(2):
            for k, bf in enumerate(bufs): p.mfma(SUM + 8 * q + 4 * e, SEL + 2 - 2 * e, bf, None if (init and k == 0) else SUM + 8 * q + 4 * e)
    def next_off(): return [lambda p: p.vop("v_add_u32", V_SA, f"s{S_OF[0]}", V_LIN)] + [lambda p, k=k: p.s(f"s_mov_b32 s{S_OF[k]}, s{S_OF[k+1]}") for k in range(4)]
    def next_pair(p, d):
        p.s(f"s_add_u32 s{d}, s{S_WT}, 2048")
        p.s(f"s_sub_u32 s{S_T2}, s{S_WE}, 10240")
        p.s(f"s_cmp_eq_u32 s{d}, s{S_WE}")
        p.s(f"s_cselect_b32 s{d}, s{S_T2}, s{d}")
    def flag(p, off, tag):
        p.wait_vm(tag)
        p.s("s_mov_b64 exec, 1")
        p.store(PT2, 2, V_LIN, SRD_WS, f"s{S_FO}", off, tag="flag", flags="sc1")
        p.s("s_mov_b64 exec, -1")
    FPOS = int(E("FPOS", "70")); FPB = int(E("FPB", "190")); PPB = int(E("PPB", "256")); WSP = float(E("WSP", "6")); PLAT = int(E("PLAT", "66")); CPOS = int(E("CPOS", "226")); WST = int(E("WST", "4"))
    def one_pass(par):
        q = Prog()
        q.label(f"{name}_pass{par}")
        if PROF == 4: stamp(q, 32, S_PC)
        q.wait_vm(("WT", par, 15))
        sc = Sched(q, budget=int(E("PBUD", "8")), late_extra=8)
        for qn in ("wl", "st", "jl", "jp"): sc.group[qn] = "vm"
        sc.pace["vm"] = int(E("PPACE", "4"))
        pool = Pool(sc, POOL, 16)
        acc = lambda i: OWN if i == 8 else ACC + 8 * (i % 4)
        for i in range(9):
            a = acc(i)
            for kq in range(16):
                cons = [(a + 4 * e, P_R[par][2 * kq + e], a + 4 * e if kq else None, ("P", i, kq, e)) for e in range(2)]
                pool.frag(0, lambda r: [R128(r, AO[ooff(i, kq) // 49152], ooff(i, kq) % 49152)], cons, as_b=True)
        PG = int(E("PG", "4"))
        sc.m = [x for k in range(0, 288, 2 * PG) for x in sc.m[k:k + 2 * PG:2] + sc.m[k + 1:k + 2 * PG:2]]
        sc.idx = {x[4]: k for k, x in enumerate(sc.m)}
        mt = lambda i: sc.m[max(0, min(i, len(sc.m) - 1))][4]
        for f in range(NL, 144 + NL):
            (_, reads, cons, war) = pool.frags[f % 144]
            if f >= 144: war = pool.last[f % 16]
            if "R" not in ABL: sc.fill("rd", reads[0], 4, ds=True, after=war, before=mt(2 * (f - NL) + 1), early=2)
        for i in ((16, 22, 28) if PG == 1 else (16, 24) if PG <= 4 else (16,)): sc.fill("ww", lambda p, i=i: p.wait_vm(("WT", par, min(31, i + (5 if PG == 1 else 7 if PG <= 4 else 15)))), 4, before=mt(i), early=0)
        def su(p):
            next_pair(p, S_WT)
            if par == 0:
                p.s(f"s_cmp_eq_u32 s{S_PC}, 4")
                p.s(f"s_cselect_b32 s{S_WT}, {OOB:#x}, s{S_WT}")
        def keep(p):
            p.s(f"s_cmp_eq_u32 s{S_PC}, 4")
            for i in (5, 6, 7): p.s(f"s_cselect_b32 s{S_ST+i}, {OOB:#x}, s{S_ST+i}")
        if par == 0: sc.fill("jr", keep, 16, after=mt(100), before=mt(150))
        fill_dma(sc, [(su, 0)], None, mt(WST + 2), queue="wl", lead=6)
        for i in range(32):
            fill_dma(sc, [(wload(1 - par, i), 0)], mt(WST + int(WSP * i)), mt(WST + 12 + int(WSP * i)), queue="wl", lead=10)
        sc.fill("jl", lambda p: poll_issue(p, V_FA, f"s{S_PO}", 0, PT), 8, before=mt(CPOS - PLAT), early=4, solo=SOLO)
        def cut(p):
            p.s(f"s_cmp_lt_u32 s{S_PC}, 2")
            p.s(f"s_cbranch_scc1 {name}_nojob{par}")
            if par == 0:
                p.s(f"s_cmp_eq_u32 s{S_PC}, 2")
                p.s(f"s_cbranch_scc1 {name}_pp0")
            p.label("@CUT")
        sc.fill("jr", cut, 8, before=mt(CPOS), early=0, tag="CUT")
        JSP = float(E("JSP", "4"))
        for k in range(12): fill_dma(sc, [(jload(k >> 1, k & 1, JB + 4 * k), 0)], ["CUT", mt(CPOS + int(JSP * k))], mt(CPOS + 12 + int(JSP * k)), queue="jl", lead=10)
        if par == 0: sc.fill("jp", lambda p: poll_issue(p, V_FA, f"s{S_PO}", 64, PT3), 8, after=mt(PPB), before=mt(PPB + 8), lead=8, solo=SOLO)
        for i in range(-1, 8):
            a = acc(i % 9); d = PK + 4 * (i & 1) if (par == 0 and i >= 5) else a
            dl = mt(32 * i + 32 + 24)
            sc.fill("va", lambda p, a=a, d=d: p.cvtpk(d, a, a + 1), 4, after=dict(tag=("P", i, 15, 1), delay=4) if i >= 0 else mt(3), before=dl, lead=10)
            sc.fill("va", lambda p, a=a, d=d: p.cvtpk(d + 1, a + 2, a + 3), 4)
            sc.fill("va", lambda p, a=a, d=d: p.cvtpk(d + 2, a + 4, a + 5), 4)
            sc.fill("va", lambda p, a=a, d=d: p.cvtpk(d + 3, a + 6, a + 7), 4, tag=("CV", i), before=dl, lead=10)
            def st(p, d=d, i=i):
                if "O" not in ABL: p.store(d, 4, V_SA, SRD_WS, f"s{S_ST + i % 9}", 0, tag=("ps", i), flags=E("SFL", "sc1"))
            sc.fill("st", st, 8, after=("CV", i), before=dl, lead=20, tag=("ST", i), solo=SOLO)
            if i < 0:
                for fn in next_off(): sc.fill("va", fn, 4, after=("ST", -1))
        if PROF == 4:
            for k, x in enumerate(int(y) for y in E("PST", "66,74,224").split(",")): sc.fill(f"st{k}", lambda p, k=k: stamp(p, 33 + k, S_PC), 16, before=mt(x), early=0)
        sc.fill("fl", lambda p: flag(p, 0, ("ps", int(E("FTAG", "-1")))), 16, before=mt(FPOS), early=0)
        for r, x in ((S_FO, 128), (S_PC, 1)): sc.fill("fl", lambda p, r=r, x=x: p.s(f"s_add_u32 s{r}, s{r}, {x}"), 4, after=mt(272))
        sc.run()
        if par == 0:
            q.s(f"s_cmp_eq_u32 s{S_PC}, 5")
            q.s(f"s_cbranch_scc1 {name}_ptail")
            q.s(f"s_add_u32 s{S_PO}, s{S_PO}, 128")
            q.s(f"s_cmp_eq_u32 s{S_PC}, 1")
            q.s(f"s_cbranch_scc1 {name}_fbw")
        else:
            q.s(f"s_add_u32 s{S_PO}, s{S_PO}, 128")
            q.s(f"s_branch {name}_pass0")
        k = next(i for i, x in enumerate(q.ins) if x.text.startswith("@CUT"))
        q2 = Prog(); q2.label(f"{name}_nojob{par}"); q2.ins += q.ins[k + 1:]; q.ins = q.ins[:k]
        blk = Prog()
        poll_check(blk, f"{name}_pp{par}", V_FA, f"s{S_PO}", 0, PT)
        red = Prog()
        if par == 0:
            blk.vop("v_mov_b32", V_JA, V_LIN)
            blk.s(f"s_cmp_eq_u32 s{S_PC}, 2")
            blk.s(f"s_cbranch_scc1 {name}_nojob{par}")
        red.vop("v_add_u32", V_JA, f"{40960 if par else AREA}", V_LIN)
        for c in range(6): reduce(red, c, [JB + 8 * c, JB + 8 * c + 4], par == 1)
        fb = Prog()
        if par == 0: flag(fb, 64, ("ps", 4))
        return q, fb, blk, red, q2
    def first_pass():
        q = Prog()
        q.label(f"{name}_P0")
        stamp(q, 9)
        if "F" in ABL: q.s(f"s_mov_b32 s{S_BAD}, 1")
        if "G" in ABL:
            q.s(f"s_cmp_eq_u32 s{S_W}, 2")
            q.s(f"s_cselect_b32 s{S_BAD}, 1, 0")
        sc = Sched(q, budget=int(E("P0BUD", "8")), late_extra=8)
        for qn in ("wl", "st"): sc.group[qn] = "vm"
        sc.pace["vm"] = int(E("P0PACE", "3"))
        acc = [V_S + 32, V_S + 40, 92, 100, 108, 116, 132, 140, OWN]
        POOL2 = POOL[:8] + [148 + 4 * k for k in range(4)] + POOL[12:]
        reg = lambda f: P0_B[f] if f < 72 else POOL2[f % 16] if f < 144 else POOL[f % 16]
        fk = lambda f: ((f % 72) // 8, f % 8 + 8 * ((f // 72) & 1))
        base = []
        for f0 in range(0, 144, 4):
            for e in range(2):
                for f in range(f0, f0 + 4):
                    i, kq = fk(f); a = acc[i] + 4 * e
                    base.append((a, P_R[0][2 * kq + e], reg(f), a if kq else None, ("P", f, e)))
        units = UNITS
        C0, CS, MB = int(E("P0C0", "22")), float(E("P0CS", "5.8")), int(E("P0MB", "12"))
        cpos = {C0 + int(CS * k) + (int(E("P0C8", "0")) if k >= 12 else 0): k for k in range(18)}
        for j, m in enumerate(base):
            if j in cpos:
                k = cpos[j]; sc.mfma(CHK, A_ONE, Oa(units[k][0], 2 * units[k][1]), CHK if k else None, ("CHK", k))
            sc.mfma(*m)
        bt = lambda j: base[min(j, 287)][4]
        for i in range(2, 9): assert sc.idx[("CHK", (acc[i] - V_O) // 8)] + 1 < sc.idx[bt(16 * i)]
        for f in range(8, 144 + NL):
            i, kq = fk(f)
            aft = [("P", f - 16, 1)] if (f >= 24 and not 72 <= f < 88) else []
            if f == 8: aft.append("AO")
            if f == 12: aft.append("XW")
            if f == 72: aft.append("MID")
            j = 2 * (f - NL) + 1
            if f >= 72: j = max(j, 144 - MB + 2 + f - 72)
            sc.fill("rd", R128(reg(f), AO[ooff(i, kq) // 49152], ooff(i, kq) % 49152), 4, ds=True, after=aft, before=bt(j), early=2)
        def V(fn, cost=4, **kw): sc.fill("va", fn, cost, **kw)
        sc.fill("ww", lambda p: p.wait_vm(("WT", 0, 15)), 4, before=bt(10), early=0)
        def each(fn):
            z = Prog(); fn(z)
            return [lambda p, x=x: p.add(x) for x in z.ins]
        V(lambda p: p.vop("v_add_u32", AO[1], "49152", V_LIN))
        V(lambda p: p.vop("v_add_u32", AO[2], "98304", V_LIN), tag="AO")
        for fn in each(f_addr): V(fn)
        for i in range(4): V(lambda p, i=i: p.ds_write(AD + 1, Oa(4, 4 + i), 4, i * 1024), 8, solo=True)
        V(lambda p: p.s(f"s_mul_i32 s{S_T0}, s{S_U}, 73728"))
        V(lambda p: p.s(f"s_sub_u32 s{S_T0}, {73728 + 36864}, s{S_T0}"))
        V(lambda p: p.vop("v_add_u32", AL + 1, f"s{S_T0}", V_DA + 4))
        V(lambda p: p.ds_write(AL + 1, La(4), 1, 0), ds=True, tag="XW")
        for n in range(5): V(lambda p, n=n: p.ar(RL + 2 * n, La(n)), tag=("AR", n))
        for n in range(5): V(lambda p, n=n: p.vop("v_add_u32", V_DA + n, "73728", V_DA + n), tag=("DA", n))
        def wr(p, k):
            n, t = units[k]
            p.ds_write(V_DA + n, Oa(n, 2 * t), 4, t * 18432 + (1024 if n < 4 else 0))
        for n in range(4): V(f_rcp(n)[0], 8); V(f_rcp(n)[1], tag=("RC", n))
        l8 = f_l8(); V(l8[0], after=dict(tag="PX", delay=8)); V(l8[1], 8); V(l8[2], tag=("RC", 4), before=("CHK", 10))
        ct = lambda k, d: sc.m[sc.idx[("CHK", k)] + d][4]
        for k, (n, t) in enumerate(units):
            pk, cv = f_norm(n, t)
            sc.fill("pk", lambda p, k=k, pk=pk: (wr(p, k - 1) if k else None, [fn(p) for fn in pk]), 8, solo=True, after=[("RC", n)] + ([("DA", 4)] if k else []),
                    before=ct(k - 1, 1) if k else ct(0, -5), early=0, lead=99, tag=("PK", k))
            for j, fn in enumerate(cv): sc.fill("c1", fn, 4, after=("PK", k), before=ct(k, -1), lead=0)
        sc.fill("pk", lambda p: wr(p, 17), 8, solo=True, before=ct(17, 1), early=0, lead=99, tag="W17")
        for j, fn in enumerate(f_range()): V(fn, 8 if j >= 4 else 4)
        sc.fill("bx", lambda p: p.barrier(), 4, after=[("P", 12, 0), ("DA", 4)], before=bt(int(E("P0BX", "34"))), early=0)
        for i in range(4): sc.fill("bx", R128(PX + 4 * i, AD, i * 1024), 4, ds=True, before=bt(60))
        sc.fill("bx", lambda p: p.ds_read32(V_S, V_DA + 4, 0), 4, ds=True, before=bt(60), tag="PX")
        V(lambda p: p.vop("v_bfe_u32", V_T + 1, V_LIN, "4", "2"))
        V(lambda p: p.vop("v_lshlrev_b32", V_T + 1, "12", V_T + 1))
        V(lambda p: p.vop("v_add_u32", V_T + 1, f"{MISC}", V_T + 1))
        c5 = f_fin()
        V(c5[0]); V(c5[1], 8, after=dict(tag=("CHK", 17), delay=2))
        V(lambda p: (p.s(f"s_or_b32 s{S_T0}, s{S_BAD}, s{S_BAD+1}"), p.vop("v_mov_b32", V_T, f"s{S_T0}")), 8)
        V(lambda p: p.ds_write(AD, V_T, 1, 0), ds=True, after="W17", before=bt(144 - MB - 4), lead=2)
        def mid(p):
            p.wait_vm(("WT", 0, 31), lgkm0=True); p.barrier()
            stamp(p, 16)
            p.ds_read32(V_T + 2, V_T + 1, 0)
        V(mid, 8, before=bt(144 - MB), early=0, tag="MID")
        def chk(p):
            p.add(Ins(f"v_cmp_ne_u32 vcc, 0, v{V_T+2}", "valu", [V_T + 2], []))
            p.s("s_cmp_lg_u64 vcc, 0")
            p.s(f"s_cbranch_scc1 {name}_fb")
        V(chk, 8, before=bt(146), early=0, tag="OK")
        for fn in next_off(): V(fn, before=bt(160))
        k = 0
        while k < len(setup):
            n = 4 if setup[k].text.startswith("v_cmp") else 1
            V(lambda p, g=setup[k:k + n]: [p.add(Ins(x.text, x.kind, x.rd, x.wr)) for x in g], 4 * n); k += n
        for i in range(8):
            a = acc[i]; dl = bt(144 + 16 * i + 16 + 14)
            sc.fill("cv", lambda p, a=a: p.cvtpk(a, a, a + 1), 4, after=["OK", dict(tag=("P", 72 + 8 * i + 7, 1), delay=3)], before=dl, lead=10)
            sc.fill("cv", lambda p, a=a: p.cvtpk(a + 1, a + 2, a + 3), 4)
            sc.fill("cv", lambda p, a=a: p.cvtpk(a + 2, a + 4, a + 5), 4)
            sc.fill("cv", lambda p, a=a: p.cvtpk(a + 3, a + 6, a + 7), 4, tag=("CV", i), before=dl, lead=10)
            def st(p, a=a, i=i):
                if "O" not in ABL: p.store(a, 4, V_SA, SRD_WS, f"s{S_ST+i}", 0, tag=("ps", i), flags=E("SFL", "sc1"))
            sj = int(E("P0S0", "200")) + int(E("P0SS", "8")) * i
            sc.fill("st", st, 8, after=[("CV", i), bt(sj)], before=bt(max(sj + 8, 144 + 16 * i + 30)), lead=20, tag=("ST", i), solo=SOLO)
        W1 = float(E("P0W1", "5.0")); W2 = float(E("P0W2", "3.0"))
        for i in range(8): fill_dma(sc, [(wload(0, 24 + i), 0)], bt(17 + int(W1 * i)), bt(30 + int(W1 * i)), queue="wl", lead=4)
        for i in range(32):
            j = 17 + int(W1 * (8 + i)) if i < 15 else 146 + int(W2 * (i - 15))
            if i == 0: fill_dma(sc, [(lambda p: next_pair(p, S_WT2), 0)], None, bt(j), queue="wl", lead=4)
            fill_dma(sc, [(wload(1, i, sb=S_WT2), 0)], [bt(j), ("AR", 4)] + (["OK"] if i >= 15 else []), bt(j + 13), queue="wl", lead=4)
        sc.fill("fl", lambda p: p.s(f"s_mov_b32 s{S_WT}, s{S_WT2}"), 4, after=bt(275))
        for r, x in ((S_PO, 128), (S_FO, 128), (S_PC, 1)): sc.fill("fl", lambda p, r=r, x=x: p.s(f"s_add_u32 s{r}, s{r}, {x}"), 4, after=bt(275))
        sc.run()
        q.s(f"s_branch {name}_pass1")
        return q
    p.wait_lgkm0()
    p.s(f"s_branch {name}_pass0")
    pre = p
    p0 = first_pass()
    pe, po = one_pass(0), one_pass(1)
    p = Prog()
    p.label(f"{name}_ptail")
    stamp(p, 17)
    p.vop("v_add_u32", V_JA, f"{AREA + 40960}", V_LIN)
    poll_check(p, f"{name}_pp4", V_FA, f"s{S_PO}", 64, PT3, 0)
    stamp(p, 18)
    for c in range(4): jload(c, 0, POOL[8 + c], S_JC)(p)
    for k in range(4): jload(4 + (k >> 1), k & 1, POOL[12 + k])(p)
    stamp(p, 19)
    for c in (4, 5, 0, 1, 2, 3):
        if c < 4:
            for r in range(8): p.vop("v_add_f32", SUM + 8 * c + r, SUM + 8 * c + r, (ACC + 8 * (c + 1) if c < 3 else OWN) + r)
        reduce(p, c, [JB + 8 * c, JB + 8 * c + 4])
    stamp(p, 20)
    def out(c):
        a = SUM + 8 * c
        for r in range(4): p.cvtpk(a + r, a + 2 * r, a + 2 * r + 1)
        if 0 < c < 4: p.s(f"s_add_u32 s{S_JO}, s{S_JO}, {16 * 1280}")
        p.store(a, 4, V_OA, SRD_OUT, f"s{S_JO if c < 4 else S_EO[c - 4]}", 0, tag="out", flags=E("OFL", ""))
    for c in range(6):
        reduce(p, c, [POOL[8 + c]] if c < 4 else POOL[4 + 2 * c:6 + 2 * c])
        if c: out(c - 1)
    out(5)
    if PROF:
        p.wait_all()
        stamp(p, 21)
        p.s(f"s_getreg_b32 s{S_TM}, hwreg(HW_REG_HW_ID)")
        p.s(f"s_getreg_b32 s{S_TM+1}, hwreg(HW_REG_XCC_ID)")
        p.raw(f"v_writelane_b32 v0, s{S_TM}, 24")
        p.raw(f"v_writelane_b32 v0, s{S_TM+1}, 25")
        p.s(f"s_lshl_b32 s{S_T0}, s2, 2")
        p.s(f"s_add_u32 s{S_T0}, s{S_T0}, s{S_W}")
        p.s(f"s_lshl_b32 s{S_T0}, s{S_T0}, 8")
        p.s(f"s_add_u32 s{S_T0}, s{S_T0}, {PROFOFF}")
        p.vop("v_lshrrev_b32", PT, "2", V_LIN)
        p.store(0, 1, PT, SRD_WS, f"s{S_T0}", 0)
        p.s(f"s_add_u32 s{S_T0}, s{S_T0}, 0x40000")
        p.store(255, 1, PT, SRD_WS, f"s{S_T0}", 0)
        if PROF == 5:
            p.s(f"s_cmp_lg_u32 s2, 77")
            p.s(f"s_cbranch_scc1 {name}_end")
            p.s(f"s_cmp_lg_u32 s{S_W}, 0")
            p.s(f"s_cbranch_scc1 {name}_end")
            p.raw("v_readlane_b32 s56, v0, 0")
            for k, ix in enumerate([23, 1, 2, 5, 6, 9, 10, 16, 17, 18, 20, 21]):
                p.raw(f"v_readlane_b32 s57, v0, {ix}")
                p.raw("s_nop 3")
                p.s("s_sub_u32 s57, s57, s56")
                p.raw(f"v_mov_b32 v30, s57")
                p.raw(f"buffer_store_dword v30, off, s[{SRD_DBG}:{SRD_DBG+3}], 0 offset:{8 + 4 * k}")
                p.raw("s_nop 1")
    p.label(f"{name}_end")
    p.raw("s_endpgm")
    rest = [po[0], po[4], pe[0], pe[2], pe[4], *po, *pe, p]
    fw = Prog(); fw.label(f"{name}_fbw"); fw.wait_all(); fw.s(f"s_branch {name}_pass1")
    return [p0, *pe, *po, p, pre, fw], [p0] + rest, [pre, pe[0], pe[4], fw] + rest

def gen(name):
    pro = prologue(name)
    Q = qmod(name)
    AE = aentry(name)
    A = [amod(name, qh) for qh in range(2)]
    F = afin(name)
    P, PS, PS2 = pmod(name)
    SL, SLS = slow(name)
    segs = [pro, Q, AE, A[0], A[1], F] + P + SL
    sims = [[(x, 1) for x in [pro, Q, AE, A[qh], F, AE, A[qh]] + PS] for qh in range(2)]
    sims.append([(x, 1) for x in SLS + PS2])
    lines, stats = finalize([(x, 1) for x in segs], sims=sims)
    if int(E("ROLL", "1")):
        lines = roll(lines, "; ---- a step", 8, S_LOOP, f"{name}_aloop")
        lines = roll(lines, "; ---- q step", 4, S_LOOP, f"{name}_qloop")
    lines += [f"{name}_last:", f".if {name}_last-{name}_pc < {65536 + CPO}", f".fill ({65536 + CPO}-({name}_last-{name}_pc))/4, 4, 0xbf810000", ".endif", f".if {name}_end-{name}_pc > {65536 + CPO}", '.warning "code range"', ".endif"]
    return [f".globl {name}", ".p2align 8", f".type {name},@function", f"{name}:"] + lines, stats
```

```python
from asmlib import *
import math, struct, os
E = os.environ.get
PROF = int(E("PROF", "0"))
ABL = E("ABL", "")
def f2u(f): return struct.unpack("<I", struct.pack("<f", f))[0]
CSCALE = math.log2(math.e) / math.sqrt(128.0)
NWG = 256
LDS_BYTES = 163840
XSL = 18432
XRING = 131072
XALT = 65536 - XSL
WRING = 65536
MISC = 147456
def IMG(kq): return (kq >> 3) * 73728 + (kq & 3) * 18432 + ((kq >> 2) & 1) * 9216
DROP = 0x30000
OOB = 0x40000000
WOT = 0
PART = 128 * 40960
AREA = 18 * 40960
PARTB = 2 * AREA
WFLG = PART + 32 * PARTB
PFLG = WFLG + 8192
WSBYTES = PFLG + 128 * 256
PROFOFF = 0x4000000

SRD_X, SRD_K, SRD_V, SRD_W, SRD_WS, SRD_WO, SRD_OUT, SRD_DBG = 8, 12, 16, 20, 24, 28, 32, 36
S_W = 3
S_T0, S_T1, S_B, S_G, S_P, S_T2 = 40, 41, 42, 43, 44, 45
S_CS, S_NON, S_SPIN, S_PH, S_GRP, S_SO = 46, 48, 50, 51, 52, 53
S_BAD = 54
S_KOFF, S_VOFF, S_KB, S_KVN, S_M0KV, S_WFP = 56, 57, 58, 59, 60, 61
S_WOFF, S_WB, S_XOFF, S_XB = 62, 63, 65, 66
S_M0W, S_M0X8 = 75, 72
S_WT, S_PT, S_PF, S_RD, S_OUTO = 76, 77, 78, 79, 80
S_LO, S_HI = 81, 82
S_TM = 84
S_VB = 88
S_M0KVP, S_KVP, S_M0D, S_U = 89, 91, 94, 95
S_LOOP = 92
S_WT2 = 98

V_DK, V_DV, V_DW, V_DX = 1, 5, 9, 13
V_AK, V_AV0, V_AV1, V_AX, V_AX8, V_LIN = 18, 19, 20, 21, 22, 24
V_E0, V_E1, V_E2 = 25, 26, 27
V_S = 28
V_AW = V_S + 40
V_O = 84
V_T = 244
V_DA = V_T + 3
V_NV = 252
V_JUNK = 254
A_Q, A_QN, A_L, A_ONE, A_POOL, A_X = 256, 336, 416, 436, 440, 472
A_QP = 480
NPOOL = 8
def Qf(n, ks, base=A_Q): return base + (n * 4 + ks) * 4
def Oa(n, m): return V_O + (n * 8 + m) * 4
def XS(par, n): return V_S + (par * 4 + n) * 4 if n < 4 else V_S + 48
def YS(n): return V_S + 32 + n * 4 if n < 4 else V_S + 52
def La(n): return A_L + 4 * n
def Xf(st, t): return V_S + (st * 5 + t) * 4
def QA(r, n, m): return (A_QN if r else V_O) + (n * 8 + m) * 4

def stamp(p, idx, dyn=None):
    if not PROF: return
    p.s(f"s_memrealtime s[{S_TM}:{S_TM+1}]")
    p.s(f"s_memtime s[{S_TM+2}:{S_TM+3}]")
    p.wait_lgkm0()
    if dyn is None:
        p.raw(f"v_writelane_b32 v0, s{S_TM}, {idx}")
        p.raw(f"v_writelane_b32 v255, s{S_TM+2}, {idx}")
    else:
        p.s("s_mov_b32 s99, m0")
        p.s(f"s_lshl_b32 m0, s{dyn}, 2")
        p.s(f"s_add_u32 m0, m0, {idx}")
        p.raw(f"v_writelane_b32 v0, s{S_TM}, m0")
        p.raw(f"v_writelane_b32 v255, s{S_TM+2}, m0")
        p.s("s_mov_b32 m0, s99")

KVSEQ = [("K", 0)]
for u in range(15): KVSEQ += [("K", u + 1), ("V", u)]
KVSEQ += [("V", 15)]
KVPOS = {t: i for i, t in enumerate(KVSEQ)}
DYN = (10, 30)
SRD_C = SRD_WO
S_ROT, S_C, S_D = S_KOFF, S_VOFF, S_VB
def kv_ops(pos):
    pre = pos >= 32; pos %= 32
    kind, u = KVSEQ[pos]
    dyn = DYN[0] <= pos <= DYN[1] and not pre
    ops = []
    for j in range(4):
        def f(p, j=j):
            if dyn:
                if j == 0:
                    if pos == DYN[0]:
                        p.s(f"s_add_u32 s{S_C}, s{S_ROT}, {u * 8192}")
                        p.s(f"s_and_b32 s{S_C}, s{S_C}, 0x1ffff")
                        p.s(f"s_mov_b32 s{S_D}, {16384 if kind == 'V' else -8192}")
                        p.s(f"s_mov_b32 s{S_M0D}, {(pos % 8) * 16384}")
                    p.s(f"s_cmp_gt_i32 s{S_D}, 0")
                    p.s(f"s_cselect_b64 s[{SRD_C}:{SRD_C+1}], s[{SRD_V}:{SRD_V+1}], s[{SRD_K}:{SRD_K+1}]")
                    p.s(f"s_add_u32 m0, s{S_M0KV}, s{S_M0D}")
                    p.s(f"s_add_u32 s{S_SO}, s{S_KB}, s{S_C}")
                if "D" not in ABL: p.dmao(V_DV + j, SRD_C, f"s{S_SO}", j * 1024, (kind, u), "nt")
                if j == 0: p.s(f"s_add_u32 s{S_C}, s{S_C}, s{S_D}")
                if j == 1:
                    p.s(f"s_and_b32 s{S_C}, s{S_C}, 0x1ffff")
                    p.s(f"s_sub_u32 s{S_D}, 8192, s{S_D}")
                if j == 2:
                    p.s(f"s_add_u32 s{S_M0D}, s{S_M0D}, 16384")
                    p.s(f"s_and_b32 s{S_M0D}, s{S_M0D}, 0x1ffff")
                return
            if j == 0:
                if pre: p.s(f"s_add_u32 m0, s{S_M0KVP + (pos >> 2)}, {(pos % 4) * 16384}")
                else: p.s(f"s_add_u32 m0, s{S_M0KV}, {(pos % 8) * 16384}")
                p.s(f"s_add_u32 s{S_SO}, s{S_ROT}, {u * 8192}")
                p.s(f"s_and_b32 s{S_SO}, s{S_SO}, 0x1ffff")
                p.s(f"s_add_u32 s{S_SO}, s{S_SO}, s{S_KVP if pre else S_KB}")
            if "D" not in ABL: p.dmao(V_DV + j, SRD_K if kind == "K" else SRD_V, f"s{S_SO}", j * 1024, (kind, u), "nt")
        ops.append((f, 8))
    return ops
def w_ops(h):
    ops = []
    for j in range(4):
        def f(p, j=j):
            if j == 0:
                p.s(f"s_add_u32 m0, s{S_M0W}, {(h % 4) * 16384}")
                p.s(f"s_add_u32 s{S_SO}, s{S_WB + (h & 1)}, s{S_WOFF}")
            if "W" not in ABL: p.dmao(V_DW + j, SRD_W, f"s{S_SO}", j * 1024, ("W", h))
            if j == 1 and h % 2 == 1: p.s(f"s_add_u32 s{S_WOFF}, s{S_WOFF}, {32 * 8192}")
            if j == 2 and h % 4 == 3:
                p.s(f"s_cmp_ge_u32 s{S_WOFF}, {640 * 8192}")
                p.s(f"s_cselect_b32 s{S_WOFF}, 0, s{S_WOFF}")
        ops.append((f, 12 if j == 0 or (j == 2 and h % 4 == 3) else 8 if j == 1 and h % 2 else 4))
    return ops
def xw_ops(i, h):
    def X(j):
        def f(p):
            p.s(f"s_add_u32 m0, s{S_M0KV if j < 4 else S_M0X8}, {XRING}")
            if j == 0: p.s(f"s_add_u32 s{S_T1}, s{S_XB}, s{S_XOFF}")
            p.dmao(V_DX + j, SRD_X, f"s{S_T1}", (j & 3) * 1024, ("X", i))
            if j == 1: p.s(f"s_add_u32 s{S_XOFF}, s{S_XOFF}, 128")
            if j == 2:
                p.s(f"s_cmp_ge_u32 s{S_XOFF}, 1280")
                p.s(f"s_cselect_b32 s{S_XOFF}, 0, s{S_XOFF}")
        return (f, 8)
    w = w_ops(h)
    W = lambda j: ((lambda p: ((p.s(f"s_add_u32 m0, s{S_M0W}, {(h % 4) * 16384}") if j else None), w[j][0](p))), 8)
    return [X(0), W(0), X(1), W(1), X(2), W(2), X(3), W(3), X(4)]
def x_ops(i):
    ops = []
    sb = XRING if i else XALT
    for j in range(5):
        def f(p, j=j):
            if j == 0:
                p.s(f"s_add_u32 m0, s{S_M0KV}, {sb}")
                p.s(f"s_add_u32 s{S_SO}, s{S_XB}, s{S_XOFF}")
            if "X" not in ABL: p.dmao(V_DX + j, SRD_X, f"s{S_SO}", (j & 3) * 1024, ("X", i), E("XFL", ""))
            if j == 1: p.s(f"s_add_u32 s{S_XOFF}, s{S_XOFF}, 128")
            if j == 2:
                p.s(f"s_cmp_ge_u32 s{S_XOFF}, 1280")
                p.s(f"s_cselect_b32 s{S_XOFF}, 0, s{S_XOFF}")
            if j == 3:
                p.s(f"s_add_u32 m0, s{S_M0X8}, {sb}")
                p.nop(0)
        ops.append((f, 12 if j in (0, 2, 3) else 8 if j == 1 else 4))
    return ops

SRD_E = 4
S_EM, S_ED, S_TAB, S_ES, S_WEND, S_EW = 67, 68, 69, 70, 71, 73
STG = 0x26000
V_WR = V_O + 144
EKP = [int(x) for x in E("EKP", "1,2,1,2").split(",")]
PFP = [int(x) for x in E("PFP", "")]; PFN = len(PFP)
PFS = int(E("PFS", "1"))
S_PFO, S_PFB = 74, 83
def ek_ops(h):
    it = h // 4
    tag = KVSEQ[(it - 1) // 2]
    def kp(p):
        p.s(f"s_and_b32 s{S_ES}, s{S_TAB}, 0x7000")
        p.s(f"s_add_u32 s{S_ES}, s{S_ES}, s{S_ROT}")
        p.s(f"s_and_b32 s{S_ES}, s{S_ES}, 0x1ffff")
        p.s(f"s_add_u32 s{S_ES}, s{S_ES}, s{S_KVP}")
        if PFS > 1 and not PFN:
            p.s(f"s_bitcmp1_b32 s{S_WEND}, 16")
            p.s(f"s_cselect_b32 s{S_ES}, s{S_ES}, {OOB:#x}")
        p.s(f"s_bitcmp1_b32 s{S_TAB}, 15")
        p.s(f"s_cselect_b64 s[{SRD_E}:{SRD_E+1}], s[{SRD_V}:{SRD_V+1}], s[{SRD_K}:{SRD_K+1}]")
        p.s(f"s_lshr_b32 s{S_T0}, s{S_TAB}, 4")
        p.s(f"s_lshl_b32 s{S_TAB}, s{S_TAB}, 28")
        p.s(f"s_or_b32 s{S_TAB}, s{S_TAB}, s{S_T0}")
    def k0(p):
        p.s(f"s_add_u32 m0, s{S_M0KV}, s{S_EM}")
        if "D" not in ABL: p.dmao(V_DV, SRD_E, f"s{S_ES}", 0, tag, "nt")
    def k1(p):
        p.s(f"s_add_u32 m0, s{S_M0KV}, s{S_EM}")
        p.s(f"s_add_u32 s{S_EM}, s{S_EM}, s{S_ED}")
        if "D" not in ABL: p.dmao(V_DV + 1, SRD_E, f"s{S_ES}", 1024, tag, "nt")
        p.s(f"s_xor_b32 s{S_ED}, s{S_ED}, {2048 ^ 14336}")
    def wo(p):
        p.s(f"s_mov_b32 m0, s{S_EW}")
        p.s(f"s_bitcmp1_b32 s{S_WEND}, 0")
        p.s(f"s_cselect_b32 s{S_T0}, s{S_WT}, {OOB:#x}")
        p.dmao(V_DX, SRD_WO, f"s{S_T0}", 0, ("WOP", it), E("WOFL", "nt"))
        p.s(f"s_xor_b32 s{S_EW}, s{S_EW}, 4096")
        p.s(f"s_lshr_b32 s{S_WEND}, s{S_WEND}, 1")
        p.s(f"s_add_u32 s{S_WT}, s{S_WT}, 128")
    def none(p): p.add(Ins(f"buffer_load_dword v{V_JUNK}, off, s[{SRD_DBG}:{SRD_DBG+3}], 0 offset:256", "vm", [], [], tag="none"))
    def pf(srd, du, j, last):
        def f(p):
            p.s(f"s_add_u32 s{S_T0}, s{S_PFO}, {du * 8192}")
            p.s(f"s_and_b32 s{S_T0}, s{S_T0}, 0x1ffff")
            p.s(f"s_add_u32 s{S_T0}, s{S_T0}, s{S_PFB}")
            p.add(Ins(f"buffer_load_dword v{V_JUNK}, v{V_DV + j}, s[{srd}:{srd+3}], s{S_T0} offen offset:{j * 1024} {E('PFFL', '')}", "vm", [V_DV + j], [], tag="pf"))
            if last:
                p.s(f"s_add_u32 s{S_PFO}, s{S_PFO}, {8192 * PFN // 2}")
                p.s(f"s_bitcmp1_b32 s{S_WEND}, 16")
                p.s(f"s_cselect_b32 s{S_PFB}, s{S_KVP}, {OOB:#x}")
        return f
    if int(E("PFD", "0")) == 2:
        def pf(srd, du, j, last):
            def f(p):
                p.s(f"s_mov_b32 m0, s94")
                p.s(f"s_add_u32 s{S_T0}, s{S_PFO}, {du * 8192}")
                p.s(f"s_and_b32 s{S_T0}, s{S_T0}, 0x1ffff")
                p.s(f"s_add_u32 s{S_T0}, s{S_T0}, s{S_PFB}")
                p.dmao(V_DV, srd, f"s{S_T0}", 0, "pf", E("PFFL", ""))
                if last:
                    p.s(f"s_add_u32 s{S_PFO}, s{S_PFO}, {8192 * PFN // 2}")
                    p.s(f"s_bitcmp1_b32 s{S_WEND}, 16")
                    p.s(f"s_cselect_b32 s{S_PFB}, s{S_KVP}, {OOB:#x}")
            return f
    if int(E("PFD", "0")) == 1:
        def pf(srd, du, j, last):
            def f(p):
                p.s(f"s_mov_b32 m0, s94")
                p.s(f"s_and_b32 s{S_T0}, s{S_PFO}, 0x1ffff")
                p.s(f"s_add_u32 s{S_T0}, s{S_T0}, s{S_PFB}")
                p.dmao(V_DV, SRD_V, f"s{S_T0}", 0, "pf", "nt")
                p.s(f"s_add_u32 s{S_PFO}, s{S_PFO}, 2048")
            return f
    fs = [k0, k1, wo, None, kp] if it else [none if x else None for x in EKP[:3]] + [None, kp]
    fs += [pf(SRD_K if k & 1 else SRD_V, (5 if k & 1 else 3) + (k >> 1), 3, k == PFN - 1) if it else (none if PFP[k] else None) for k in range(PFN)]
    fs += [code_touch] * len(CPQ)
    return [(f, 8) for f, x in zip(fs, EKP + [3] + PFP + CPQ) if f and x == h % 4]
def wst(p):
    for i in range(5):
        p.store(A_Q + 16 - 4 * i, 4, V_LIN, SRD_WS, f"s{S_PT}", 0, tag="wst", flags="sc1")
        if i < 4: p.s(f"s_add_u32 s{S_PT}, s{S_PT}, 4096")

def split_ops(ops):
    q = Prog()
    for f, _ in ops: f(q)
    out = []; i = 0; L = [x for x in q.ins if x.kind != "nop"]
    while i < len(L):
        grp = [L[i]]
        if L[i].text.startswith(("s_cmp", "s_bitcmp")): grp.append(L[i + 1])
        i += len(grp)
        out.append((lambda p, grp=grp: [p.add(x) for x in grp], "vm" if grp[0].kind in ("vm", "vml", "vms") else "s", 4 * len(grp)))
    return out
def fill_dma(sc, ops, after, before, tag=None, queue="dma", lead=80):
    so = split_ops(ops)
    for k, (fn, kind, cost) in enumerate(so):
        sc.fill(queue, fn, 8 if kind == "vm" else cost, after=after, before=before, lead=lead, solo=(kind == "vm" and SOLO), paced=(kind == "vm"),
                tag=tag if k == len(so) - 1 else None)
SOLO = int(E("SOLO", "1"))
T7 = int(E("T7", "0"))
def sprinkle(progs, ops, lo=0.0, hi=1.0):
    pts = []
    for p, st in progs:
        masked = False
        for i in range(st, len(p.ins)):
            x = p.ins[i]
            if x.text.startswith("s_mov_b64 exec"): masked = not x.text.endswith("-1")
            if x.kind == "label" and not x.text.startswith(";"): break
            if x.kind in ("valu", "perm") and not masked and p.ins[i - 1].kind in ("valu", "perm") and "v_cmp" not in x.text and "v_cmp" not in p.ins[i - 1].text: pts.append((p, i))
    a, b = int(lo * len(pts)), int(hi * len(pts))
    sel = [pts[a + (k * (b - a)) // len(ops)] for k in range(len(ops))]
    for (p, i), (fn, _) in reversed(list(zip(sel, ops))):
        q = Prog(); fn(q)
        p.ins[i:i] = q.ins

V_CP = 2
V_WP, WTP = 23, int(E("WTP", "-1"))
CPO = int(E("CPO", "1536"))
CPQ = [int(x) for x in E("CPQ", "2")]
CPA = [int(x) for x in E("CPA", "").split(",") if x]
WTN = int(E("WTN", "2"))
def w_touch(p, off): p.add(Ins(f"buffer_load_dword v{V_JUNK}, v{V_WP}, s[{SRD_WS}:{SRD_WS+3}], 0 offen offset:{off} sc1", "vm", [V_WP], [], tag="wtp"))
def code_addr(p, name, L):
    p.s(f"s_getpc_b64 s[{S_TM}:{S_TM+1}]")
    p.label(f"{name}_pc")
    p.s(f"s_lshr_b32 s{S_T0}, s2, 1")
    p.s(f"s_and_b32 s{S_T0}, s{S_T0}, 0x7c")
    p.s(f"s_add_u32 s{S_T0}, s{S_T0}, s{S_W}")
    p.s(f"s_lshl_b32 s{S_T0}, s{S_T0}, 9")
    p.s(f"s_add_u32 s{S_T0}, s{S_T0}, {CPO}")
    p.s(f"s_add_u32 s{S_TM}, s{S_TM}, s{S_T0}")
    p.s(f"s_addc_u32 s{S_TM+1}, s{S_TM+1}, 0")
    p.raw(f"v_and_b32 v{V_CP}, {7 if int(E('CP64', '0')) else 3}, v{L}")
    p.raw(f"v_lshlrev_b32 v{V_CP}, {6 if int(E('CP64', '0')) else 7}, v{V_CP}")
    p.raw(f"v_mov_b32 v{V_CP+1}, s{S_TM+1}")
    p.raw(f"v_add_co_u32 v{V_CP}, vcc, s{S_TM}, v{V_CP}")
    p.raw("s_nop 1")
    p.raw(f"v_addc_co_u32 v{V_CP+1}, vcc, 0, v{V_CP+1}, vcc")
def code_touch(p): p.add(Ins(f"global_load_dword v{V_JUNK}, v[{V_CP}:{V_CP+1}], off", "vm", [], [], tag="code"))

def get_nonce(p, name, t):
    p.add(Ins(f"v_readfirstlane_b32 s{S_NON}, v{V_NV}", "rfl", [V_NV], []))
    p.add(Ins(f"v_readfirstlane_b32 s{S_NON+1}, v{V_NV+1}", "rfl", [V_NV + 1], []))
    p.s(f"s_cmp_lt_i32 s{S_NON+1}, 0")
    p.s(f"s_cbranch_scc1 {name}_x")
    p.vop("v_mov_b32", t + 2, "0")
    p.label(f"{name}")
    p.raw(f"buffer_load_dwordx2 v[{t}:{t+1}], v{t+2}, s[{SRD_DBG}:{SRD_DBG+3}], 0 offen sc1")
    p.raw("s_waitcnt vmcnt(0)")
    p.raw(f"v_readfirstlane_b32 s{S_NON}, v{t}")
    p.raw(f"v_readfirstlane_b32 s{S_NON+1}, v{t+1}")
    p.s(f"s_sub_u32 s{S_SPIN}, s{S_SPIN}, 1")
    p.s(f"s_cbranch_scc1 {name}_x")
    p.s(f"s_cmp_lt_i32 s{S_NON+1}, 0")
    p.s(f"s_cbranch_scc0 {name}")
    p.label(f"{name}_x")
    p.nop(1)

def publish(p, soff, off, t):
    p.vop("v_mov_b32", t, f"s{S_NON}")
    p.vop("v_mov_b32", t + 1, f"s{S_NON+1}")
    p.s("s_mov_b64 exec, 1")
    p.store(t, 2, V_LIN, SRD_WS, soff, off, tag="flag", flags="sc1")
    p.s("s_mov_b64 exec, -1")

def poll_issue(p, vaddr, soff, off, t):
    p.add(Ins(f"buffer_load_dwordx2 v[{t}:{t+1}], v{vaddr}, s[{SRD_WS}:{SRD_WS+3}], {soff} offen offset:{off} sc1", "vml", [vaddr], [t, t + 1], tag="poll"))
def poll_check(p, name, vaddr, soff, off, t, slp=2):
    p.label(f"{name}")
    p.add(Ins(f"v_cmp_ne_u32 vcc, s{S_NON}, v{t}", "valu", [t], []))
    p.add(Ins(f"v_cmp_ne_u32 s[{S_TM+2}:{S_TM+3}], s{S_NON+1}, v{t+1}", "valu", [t + 1], []))
    p.s(f"s_or_b64 vcc, vcc, s[{S_TM+2}:{S_TM+3}]")
    if "Y" in ABL and "pp" in name: p.s(f"s_branch {name}_ok")
    p.s(f"s_cbranch_scc0 {name}_ok")
    p.s(f"s_sub_u32 s{S_SPIN}, s{S_SPIN}, 1")
    p.s(f"s_cbranch_scc1 {name}_ok")
    if slp: p.s(f"s_sleep {slp}")
    p.raw(f"buffer_load_dwordx2 v[{t}:{t+1}], v{vaddr}, s[{SRD_WS}:{SRD_WS+3}], {soff} offen offset:{off} sc1")
    p.raw("s_waitcnt vmcnt(0)")
    p.s(f"s_branch {name}")
    p.label(f"{name}_ok")

def prologue(name):
    p = Prog()
    p.s(f"s_cmp_ge_u32 s2, {NWG}")
    p.s(f"s_cbranch_scc1 {name}_end")
    p.s("s_load_dwordx8 s[84:91], s[0:1], 0")
    p.s("s_load_dwordx8 s[92:99], s[0:1], 32")
    T = V_O
    W, L, a, b, c, d, U, P, VV, R8, PI, M, G, cv = range(T, T + 14)
    p.vop("v_lshrrev_b32", W, "6", 0)
    p.vop("v_and_b32", L, "63", 0)
    p.add(Ins(f"v_readfirstlane_b32 s{S_W}, v{W}", "rfl", [W], []))
    p.vop("v_and_b32", U, "1", W)
    p.vop("v_lshrrev_b32", P, "1", W)
    p.vop("v_lshrrev_b32", VV, "5", L)
    p.vop("v_bfe_u32", R8, L, "2", "3")
    p.vop("v_and_b32", PI, "3", L)
    p.s(f"s_movk_i32 s{S_T0}, 1280")
    p.vop("v_mul_lo_u32", a, R8, f"s{S_T0}")
    p.vop("v_lshl_add_u32", a, VV, "6", a)
    p.vop("v_xor_b32", c, "3", PI)
    p.vop("v_lshl_add_u32", V_DX, PI, "4", a)
    p.vop("v_lshl_add_u32", b, c, "4", a)
    p.vop("v_add_u32", V_DX + 1, f"{9216}", b)
    p.vop("v_add_u32", V_DX + 2, f"{2 * 9216}", V_DX)
    p.vop("v_add_u32", V_DX + 3, f"{3 * 9216}", b)
    p.vop("v_lshrrev_b32", d, "2", R8)
    p.vop("v_lshlrev_b32", cv, "1", d)
    p.vop("v_xor_b32", cv, cv, PI)
    p.vop("v_and_b32", b, "3", R8)
    p.vop("v_lshl_add_u32", b, d, "3", b)
    p.vop("v_lshlrev_b32", d, "7", U)
    p.vop("v_lshl_add_u32", d, VV, "6", d)
    p.vop("v_lshl_add_u32", b, b, "13", d)
    p.vop("v_lshl_add_u32", V_DW, cv, "4", b)
    for j in range(1, 4): p.vop("v_add_u32", V_DW + j, f"{(16 * (j & 1) + 4 * (j >> 1)) * 8192 - 1024 * j}", V_DW)
    p.vop("v_mul_u32_u24", b, "3", P)
    p.vop("v_xor_b32", b, b, PI)
    p.vop("v_lshl_add_u32", b, b, "4", a)
    p.vop("v_lshlrev_b32", a, "2", W)
    p.vop("v_sub_u32", a, P, a)
    p.vop("v_add_u32", a, "16", a)
    p.s(f"s_movk_i32 s{S_T1}, {8 * 1280}")
    p.vop("v_mul_lo_u32", a, a, f"s{S_T1}")
    p.vop("v_add_u32", a, a, b)
    p.vop("v_lshl_add_u32", V_DX + 4, U, "30", a)
    MAP = int(E("MAP", "0"))
    p.s(f"s_bfe_u32 s{S_T0}, s2, {(MAP << 16) | 3:#x}")
    p.s(f"s_lshr_b32 s{S_T2}, s2, {3 + MAP}")
    p.s(f"s_and_b32 s{S_G}, s2, {(1 << (3 - MAP)) - 1}")
    p.s(f"s_lshl_b32 s{S_G}, s{S_G}, {MAP}")
    p.s(f"s_or_b32 s{S_G}, s{S_G}, s{S_T0}")
    p.s(f"s_bfe_u32 s{S_B}, s2, {(MAP << 16) | (3 - MAP):#x}")
    p.s(f"s_lshl_b32 s{S_B}, s{S_B}, {5 - MAP}")
    p.s(f"s_or_b32 s{S_B}, s{S_B}, s{S_T2}")
    p.s(f"s_mul_i32 s{S_T0}, s{S_T0}, {int(E('PHM', str(1 << (5 - MAP))))}")
    p.s(f"s_lshl_b32 s{S_T2}, s{S_T2}, {MAP}")
    p.s(f"s_add_u32 s{S_T2}, s{S_T2}, s{S_T0}")
    if int(E("GPH", "0")):
        p.s(f"s_and_b32 s{S_T0}, s{S_G}, {int(E('GPM', '7'))}")
        p.s(f"s_mul_i32 s{S_T0}, s{S_T0}, {int(E('GPH', '0'))}")
        p.s(f"s_add_u32 s{S_T2}, s{S_T2}, s{S_T0}")
    p.s(f"s_and_b32 s{S_T2}, s{S_T2}, 31")
    p.s(f"s_lshr_b32 s{S_P}, s{S_W}, 1")
    p.s(f"s_lshl_b32 s{S_M0KV}, s{S_W}, 12")
    p.s(f"s_add_u32 s{S_M0W}, s{S_M0KV}, {WRING}")
    p.s(f"s_lshl_b32 s{S_M0X8}, s{S_P}, 10")
    p.s(f"s_add_u32 s{S_M0X8}, s{S_M0X8}, 16384")
    p.s(f"s_bitcmp1_b32 s{S_W}, 0")
    p.s(f"s_cselect_b32 s{S_M0X8}, 0x1d000, s{S_M0X8}")
    p.s(f"s_lshl_b32 s{S_T0}, s{S_G}, 2")
    p.s(f"s_add_u32 s{S_T0}, s{S_T0}, s{S_P}")
    p.s(f"s_lshl_b32 s{S_WB}, s{S_T0}, 8")
    p.s(f"s_add_u32 s{S_WB+1}, s{S_WB}, 512")
    p.s(f"s_lshl_b32 s{S_T1}, s{S_B}, 5")
    p.s(f"s_add_u32 s{S_T0}, s{S_T0}, s{S_T1}")
    p.s(f"s_lshl_b32 s{S_KVN}, s{S_T0}, 17")
    p.s(f"s_mul_i32 s{S_T0}, s{S_T2}, 5")
    p.s(f"s_lshr_b32 s{S_T0}, s{S_T0}, 4")
    if not int(E("ROT", "1")): p.s(f"s_mov_b32 s{S_T0}, 0")
    p.s(f"s_lshl_b32 s{S_XOFF}, s{S_T0}, 7")
    p.s(f"s_lshl_b32 s{S_WOFF}, s{S_T0}, 19")
    p.s(f"s_mul_i32 s{S_XB}, s{S_B}, {144 * 1280}")
    p.s(f"s_mul_i32 s{S_T0}, s{S_W}, {32 * 1280}")
    p.s(f"s_add_u32 s{S_XB}, s{S_XB}, s{S_T0}")
    def srd(r, src, size):
        p.s(f"s_mov_b32 s{r+2}, {size:#x}")
        p.s(f"s_mov_b32 s{r+3}, 0x20000")
    def srd2(r, src):
        p.s(f"s_mov_b32 s{r}, s{src}")
        p.s(f"s_and_b32 s{r+1}, s{src+1}, 0xffff")
    SR = ((SRD_X, 84, 32 * 144 * 640 * 2), (SRD_W, 90, 640 * 4096 * 2), (SRD_K, 86, 1 << 27), (SRD_V, 88, 1 << 27),
          (SRD_WO, 92, 4096 * 640 * 2), (SRD_OUT, 94, 32 * 144 * 640 * 2), (SRD_DBG, 96, 256), (SRD_WS, 98, (1 << 28) if PROF else WSBYTES))
    for x in SR: srd(*x)
    p.s("s_waitcnt lgkmcnt(0)")
    for x in SR[:2]: srd2(*x[:2])
    for ops in (x_ops(0), w_ops(0), w_ops(1)):
        for f, _ in ops: f(p)
    for x in SR[2:]: srd2(*x[:2])
    stamp(p, 0)
    p.vop("v_lshlrev_b32", V_LIN, "4", L)
    code_addr(p, name, L)
    code_touch(p)
    p.vop("v_lshl_add_u32", b, R8, "8", d)
    p.vop("v_lshl_add_u32", V_DV, cv, "4", b)
    for j in range(1, 4): p.vop("v_add_u32", V_DV + j, f"{1024 * j}", V_DV)
    if E("LINT", "") == "1":
        for j in range(4): p.vop("v_lshl_add_u32", V_DV + j, U, "12", V_LIN)
    if E("LINT", "") == "2":
        p.vop("v_lshl_add_u32", V_DV, U, "10", V_LIN)
        for j in range(1, 4): p.vop("v_add_u32", V_DV + j, f"{1024 * j}", V_DV)
    p.s(f"s_lshl_b32 s{S_T0}, s2, 1")
    p.s(f"s_add_u32 s{S_T0}, s{S_T0}, s{S_P}")
    p.s(f"s_mul_i32 s{S_T0}, s{S_T0}, {int(E('KROT', '5'))}")
    p.s(f"s_lshr_b32 s{S_T1}, s2, 3")
    p.s(f"s_add_u32 s{S_T0}, s{S_T0}, s{S_T1}")
    p.s(f"s_and_b32 s{S_T0}, s{S_T0}, {15 if int(E('KROT', '5')) else 0}")
    p.s(f"s_lshl_b32 s{S_KOFF}, s{S_T0}, 13")
    p.s(f"s_mov_b32 s{S_M0KVP}, s{S_M0KV}")
    p.s(f"s_mov_b32 s{S_M0KVP+1}, s{S_M0W}")
    p.s(f"s_mov_b32 s{S_KVP}, s{S_KVN}")
    p.s(f"s_mov_b32 s{S_EM}, 0")
    p.s(f"s_movk_i32 s{S_ED}, 2048")
    p.s(f"s_mov_b32 s{S_TAB}, 0x83210549")
    srd(SRD_E, 0, 1 << 27)
    p.s(f"s_and_b32 s{S_U}, s{S_W}, 1")
    p.s(f"s_lshl_b32 s{S_T0}, s{S_B}, 2")
    p.s(f"s_lshr_b32 s{S_T1}, s{S_G}, 1")
    p.s(f"s_add_u32 s{S_T0}, s{S_T0}, s{S_T1}")
    p.s(f"s_and_b32 s{S_T1}, s{S_G}, 1")
    p.s(f"s_lshl_b32 s{S_WFP}, s{S_T1}, 7")
    p.s(f"s_add_u32 s{S_WFP}, s{S_WFP}, s{S_T0}")
    p.s(f"s_lshl2_add_u32 s{S_WFP}, s{S_WFP}, s{S_W}")
    p.s(f"s_lshl3_add_u32 s{S_WFP}, s{S_WFP}, {WFLG}")
    p.s(f"s_mul_i32 s{S_T0}, s{S_T0}, 40960")
    p.s(f"s_mul_i32 s{S_PT}, s{S_T1}, 20480")
    p.s(f"s_add_u32 s{S_PT}, s{S_PT}, s{S_T0}")
    p.s(f"s_lshl_b32 s{S_EW}, s{S_W}, 10")
    p.s(f"s_add_u32 s{S_PT}, s{S_PT}, s{S_EW}")
    p.s(f"s_add_u32 s{S_EW}, s{S_EW}, {STG}")
    p.s(f"s_mul_i32 s{S_T1}, s{S_T1}, 640")
    p.s(f"s_add_u32 s{S_WT}, s{S_T1}, s{S_T0}")
    p.s(f"s_mul_i32 s{S_T1}, s{S_W}, {8 * 1280}")
    p.s(f"s_add_u32 s{S_WT}, s{S_WT}, s{S_T1}")
    p.s(f"s_mov_b32 s{S_WEND}, {0x7c | ((0xfff << (15 + PFS)) & 0x7fff0000):#x}")
    if PFN:
        p.s(f"s_lshl_b32 s94, s{S_W}, 10")
        p.s(f"s_add_u32 s94, s94, {XRING + XSL}")
        p.s(f"s_sub_u32 s{S_PFO}, s{S_KOFF}, {8192 * PFN // 2 * (PFS - 1) + 65536 * (int(E('PFD', '0')) == 1)}")
        if int(E("PFD", "0")) == 2:
            p.s(f"s_add_u32 s{S_T0}, s{S_B}, s{S_G}")
            p.s(f"s_add_u32 s{S_T0}, s{S_T0}, s{S_P}")
            p.s(f"s_and_b32 s{S_T0}, s{S_T0}, 3")
            p.s(f"s_lshl_b32 s{S_T0}, s{S_T0}, 11")
            p.s(f"s_add_u32 s{S_PFO}, s{S_PFO}, s{S_T0}")
        p.s(f"s_mov_b32 s{S_PFB}, " + (f"s{S_KVP}" if PFS == 1 else f"{OOB:#x}"))
    if int(E("TOUCH", "1")):
        p.add(Ins(f"buffer_load_dword v{V_T+4}, off, s[{SRD_K}:{SRD_K+3}], s{S_KVN} nt", "vml", [], [V_T + 4], tag="touch"))
        p.add(Ins(f"buffer_load_dword v{V_T+5}, off, s[{SRD_V}:{SRD_V+3}], s{S_KVN} nt", "vml", [], [V_T + 5], tag="touch"))
        p.add(Ins(f"buffer_load_dword v{V_T+7}, off, s[{SRD_WS}:{SRD_WS+3}], s{S_PT} sc1", "vml", [], [V_T + 7], tag="touch"))
        if int(E("TOUCHO", "1")): p.add(Ins(f"buffer_load_dword v{V_T+6}, off, s[{SRD_WO}:{SRD_WO+3}], s{S_WT}", "vml", [], [V_T + 6], tag="touch"))
    p.s(f"s_sub_u32 s{S_WT}, s{S_WT}, 256")
    FWARM = int(E("FWARM", "3"))
    if FWARM & 1:
        p.s(f"s_lshl2_add_u32 s{S_T0}, s{S_B}, s{S_W}")
        p.s(f"s_and_b32 s{S_T1}, s{S_G}, 3")
        p.s(f"s_lshl2_add_u32 s{S_T0}, s{S_T0}, s{S_T1}")
        p.s(f"s_lshl_b32 s{S_T0}, s{S_T0}, 6")
        p.s(f"s_add_u32 s{S_T0}, s{S_T0}, {PFLG}")
        p.add(Ins(f"buffer_load_dword v{V_JUNK}, off, s[{SRD_WS}:{SRD_WS+3}], s{S_T0} sc1", "vm", [], [], tag="touch"))
    if FWARM & 4:
        p.s(f"s_lshl2_add_u32 s{S_T0}, s{S_B}, s{S_W}")
        p.s(f"s_mul_i32 s{S_T1}, s{S_T0}, {PARTB // 4}")
        p.s(f"s_add_u32 s{S_T1}, s{S_T1}, {PART}")
        p.add(Ins(f"buffer_load_dword v{V_JUNK}, off, s[{SRD_WS}:{SRD_WS+3}], s{S_T1} sc1 nt", "vm", [], [], tag="touch"))
        p.s(f"s_mul_i32 s{S_T1}, s{S_T0}, {36 * 1280}")
        p.add(Ins(f"buffer_load_dword v{V_JUNK}, off, s[{SRD_OUT}:{SRD_OUT+3}], s{S_T1} sc1 nt", "vm", [], [], tag="touch"))
    if FWARM & 8:
        p.vop("v_mul_u32_u24", V_T + 3, f"{PARTB // 64}", L)
        p.s(f"s_mul_i32 s{S_T1}, s{S_B}, {PARTB}")
        p.s(f"s_add_u32 s{S_T1}, s{S_T1}, {PART}")
        p.s(f"s_cmp_eq_u32 s{S_W}, 0")
        p.s(f"s_cselect_b32 s{S_T1}, s{S_T1}, {OOB:#x}")
        p.add(Ins(f"buffer_load_dword v{V_JUNK}, v{V_T+3}, s[{SRD_WS}:{SRD_WS+3}], s{S_T1} offen sc1 nt", "vm", [V_T + 3], [], tag="touch"))
    if FWARM & 2: p.add(Ins(f"buffer_load_dword v{V_JUNK}, off, s[{SRD_WS}:{SRD_WS+3}], s{S_WFP} sc1", "vm", [], [], tag="touch"))
    p.s(f"s_or_b32 s{S_T0}, s2, s{S_W}")
    p.s(f"s_cmp_lg_u32 s{S_T0}, 0")
    p.s(f"s_cbranch_scc1 {name}_nononce")
    p.s(f"s_memrealtime s[{S_NON}:{S_NON+1}]")
    p.s("s_waitcnt lgkmcnt(0)")
    p.s(f"s_or_b32 s{S_NON+1}, s{S_NON+1}, 0x80000000")
    p.raw(f"v_mov_b32 v{V_T}, s{S_NON}")
    p.raw(f"v_mov_b32 v{V_T+1}, s{S_NON+1}")
    p.s("s_mov_b64 exec, 1")
    p.raw(f"buffer_store_dwordx2 v[{V_T}:{V_T+1}], v{V_LIN}, s[{SRD_DBG}:{SRD_DBG+3}], 0 offen sc1")
    p.s("s_mov_b64 exec, -1")
    p.label(f"{name}_nononce")
    p.s(f"s_mov_b32 s{S_SPIN}, 0x40000")
    p.s(f"s_mov_b32 s{S_PH}, 0")
    if QT:
        p.s(f"s_add_u32 s{S_T0}, s{S_B}, s{S_G}")
        p.s(f"s_and_b32 s{S_T0}, s{S_T0}, {QT[1]}")
        p.s(f"s_add_u32 s{S_T0}, s{S_T0}, {QT[0]}")
        p.s(f"s_lshl_b32 s{S_TI}, 1, s{S_T0}")
    if PROF in (2, 3): p.s("s_mov_b32 s93, 32")
    p.s(f"s_mov_b64 s[{S_BAD}:{S_BAD+1}], 0")
    p.s(f"s_mov_b32 s{S_CS}, {f2u(CSCALE):#x}")
    p.s(f"s_mov_b32 s{S_CS+1}, s{S_CS}")
    p.s(f"s_mov_b32 s{S_LO}, {f2u(2.0 ** -24):#x}")
    p.s(f"s_mov_b32 s{S_HI}, {f2u(2.0 ** 16):#x}")
    p.vop("v_and_b32", M, "15", L)
    p.vop("v_lshrrev_b32", G, "4", L)
    p.vop("v_lshrrev_b32", a, "3", M)
    p.vop("v_mul_u32_u24", c, "3", a)
    p.vop("v_xor_b32", c, c, G)
    p.vop("v_and_b32", b, "7", M)
    p.vop("v_lshlrev_b32", b, "6", b)
    p.vop("v_lshl_add_u32", b, c, "4", b)
    p.vop("v_lshl_add_u32", b, a, "10", b)
    p.vop("v_add_u32", V_AX8, f"{XRING}", b)
    p.vop("v_lshl_add_u32", V_AX, U, "13", V_AX8)
    p.vop("v_add_u32", V_AW + 5, f"{XALT}", b)
    p.vop("v_lshl_add_u32", V_AW + 4, U, "13", V_AW + 5)
    p.vop("v_and_b32", c, "0x1ff", V_LIN)
    p.vop("v_lshl_add_u32", c, VV, "10", c)
    p.vop("v_lshl_add_u32", c, P, "9", c)
    p.vop("v_lshl_add_u32", c, U, "3", c)
    p.vop("v_add_u32", V_WR, f"{STG + 4096}", c)
    p.vop("v_and_b32", b, "0xffffffcf", b)
    p.vop("v_bfe_u32", a, M, "2", "1")
    p.vop("v_lshlrev_b32", a, "1", a)
    p.vop("v_xor_b32", a, a, G)
    p.vop("v_lshl_add_u32", b, a, "4", b)
    p.vop("v_lshl_add_u32", V_AK, P, "13", b)
    p.vop("v_lshrrev_b32", a, "1", G)
    p.vop("v_lshlrev_b32", b, "10", a)
    p.vop("v_lshl_add_u32", b, R8, "6", b)
    p.vop("v_and_b32", c, "1", L)
    p.vop("v_lshl_add_u32", b, c, "3", b)
    p.vop("v_bfe_u32", c, L, "1", "1")
    p.vop("v_lshl_add_u32", b, c, "4", b)
    p.vop("v_and_b32", c, "1", G)
    p.vop("v_lshl_add_u32", b, c, "5", b)
    p.vop("v_lshl_add_u32", V_AV0, P, "13", b)
    p.vop("v_xor_b32", V_AV1, "32", V_AV0)
    p.vop("v_lshl_add_u32", a, U, "12", V_AV0)
    p.vop("v_xor_b32", b, "32", a)
    p.vop("v_xor_b32", c, "4096", a)
    p.vop("v_xor_b32", d, "4096", b)
    for i, r in enumerate((a, b, c, d)): p.vop("v_add_u32", V_AW + i, f"{WRING}", r)
    for ops in (w_ops(2), x_ops(1), w_ops(3)):
        for f, _ in ops: f(p)
    stamp(p, 23)
    return p

def R128(d, a, off): return lambda p: p.ds_read128(d, a, off)
def TR(d, a, off): return lambda p: p.ds_tr(d, a, off)

class Pool:
    def __init__(self, sc, base, n):
        self.sc = sc; self.regs = base if isinstance(base, list) else [base + 4 * k for k in range(n)]; n = len(self.regs); self.n = n; self.last = [None] * n; self.i = 0; self.frags = []
    def frag(self, tile, mk_reads, consumers, as_b=False):
        k = self.i % self.n; self.i += 1
        r = self.regs[k]
        war = self.last[k]
        for (d, o, c, tag) in consumers:
            if as_b: self.sc.mfma(d, o, r, c, tag)
            else: self.sc.mfma(d, r, o, c, tag)
        self.last[k] = consumers[-1][3]
        self.frags.append((tile, mk_reads(r), consumers[0][3], war))

LEAD = int(E("LEAD", "9"))
LEADB = int(E("LEADB", "8"))
BGAP = int(E("BGAP", "4"))

def sstamp(p):
    p.s(f"s_memrealtime s[{S_TM}:{S_TM+1}]")
    p.s(f"s_memtime s[{S_TM+2}:{S_TM+3}]")
    p.wait_lgkm0()
    p.s("s_mov_b32 s99, m0")
    p.s("s_mov_b32 m0, s93")
    p.s("s_add_u32 s93, s93, 1")
    p.raw(f"v_writelane_b32 v0, s{S_TM}, m0")
    p.raw(f"v_writelane_b32 v255, s{S_TM+2}, m0")
    p.s("s_mov_b32 m0, s99")

QT = [int(x) for x in E("QT", "2,0,0,0,3").split(",") if x]
def qmod(name):
    p = Prog()
    KVS = [-1] * 4 + [int(x) for x in E("KVS", "37").split(",")]
    sc = Sched(p, budget=int(E("QBUD", "8")), late_extra=8)
    sc.group["dma"] = "vm"; sc.pace["vm"] = int(E("QPACE", "4"))
    sc.maxds = int(E("QMAXDS", "1"))
    pool = Pool(sc, A_QP, NPOOL)
    for h in range(40):
        r = h & 1; st = (h >> 1) & 1
        for k in range(8):
            off = (h % 4) * 16384 + ((k >> 1) & 1) * 512
            ad = V_AW + 2 * (k >> 2) + (k & 1)
            cons = [(QA(r, n, k), Xf(st, n), QA(r, n, k) if h > 1 else None, ("Q", h, k, n)) for n in range(5 if k < 4 else 4)]
            if int(E("QSNK", "1")) and k % 2 == 0: cons.reverse()
            pool.frag(h, lambda rg: [TR(rg, ad, off), TR(rg + 2, ad, off + 2048)], cons)
    mt = lambda i: sc.m[max(0, min(i, len(sc.m) - 1))][4]
    XT = int(E("XT", "1")); A_XT = A_Q + 40
    def xreads(i, kh):
        return [R128(A_XT + 4 * n if (XT and kh and i) else Xf(kh, n), (V_AX if i else V_AW + 4) + (n >> 2), (n if n < 4 else 8) * 2048 + kh * 512) for n in range(5)]
    for fi, (h, reads, cons, war) in enumerate(pool.frags):
        c0 = 36 * h
        tau = c0 - LEADB
        taun = c0 + 36 - LEADB
        if fi % 8 == 0:
            def bar(p, h=h):
                p.comment(f"---- q step {h}")
                tags = [("W", h)]
                if h == 0: tags.append(("X", 0))
                if h % 4 == 3 and h < 39: tags.append(("X", (h + 1) // 4))
                if h % 4 == EKP[3] and 4 <= h < 36: tags.append(("WOP", h // 4 - 1))
                if QT and h % 4 in QT[3:] and h >= 1:
                    p.s(f"s_lshr_b32 s{S_TI}, s{S_TI}, 1")
                    p.s("s_cbranch_scc0 1")
                    p.raw(f"s_waitcnt vmcnt({QT[2]})")
                p.wait_vm(tags, lgkm0=True)
                if "b" not in ABL or h < 4: p.barrier()
                if PROF == 2 and h % 2 == 0: sstamp(p)
                if int(E("QSL", "0")) and (h < 3 or int(E("QSA", "0"))): p.raw(f"s_nop {int(E('QSL', '0'))}")
            ops = []
            if h % 4 == 1 - XT and 4 <= h < 36: ops += x_ops(h // 4 + 1)
            if 1 <= h < 37: ops += w_ops(h + 3)
            if int(E("XW", "0")) and h % 4 == 0 and 4 <= h < 36: ops = xw_ops(h // 4 + 1, h + 3)
            if "d" in ABL: ops = []
            nb = len(ops)
            if h < 36: ops = ek_ops(h) + ops if (h % 4 == 0 and int(E("EKF", "0"))) else ops + ek_ops(h)
            nb = len(ops) - nb
            if h % 4 == EKP[3] and 4 <= h < 36:
                for r in range(15, -1, -1): sc.fill("rw", lambda p, r=r: p.amov(A_Q + 4 + r, A_Q + r), 4, after=dict(tag=("BAR", h), delay=14))
                for i in range(2): sc.fill("rw", TR(A_Q + 2 * i, V_WR, i * 2048), 4, ds=True, before=mt(taun - BGAP), lead=2)
                sc.fill("rw", lambda p: p.vop("v_xor_b32", V_WR, "4096", V_WR), 4, before=mt(taun - 1))
            if h == 36 and "S" not in ABL: ops += [(wst, 20)]
            for k, x in enumerate(KVS):
                if x == h: ops += kv_ops(32 + k)
            sc.fill("rd", bar, 8, before=mt(tau), early=0 if h else None, tag=("BAR", h))
            QD = int(E("QD", "14")) - 4 * nb * int(E("QDE", "0")) if len(ops) - nb <= 4 else int(E("QD2", "0"))
            fill_dma(sc, ops, dict(tag=("BAR", h), delay=QD), mt(taun - 1))
            if h == 0:
                for k, fn in enumerate(xreads(0, 0)): sc.fill("rd", fn, 4, ds=True, before=mt(0))
            xr = []; aft = [("BAR", h)]
            if h % 4 == 3 and h < 39: xr = xreads((h + 1) // 4, 0)
            if XT and xr: xr += xreads((h + 1) // 4, 1)
            if XT and h % 4 == 0 and h:
                for r in range(20): sc.fill("cp", lambda p, r=r: p.ar(Xf(1, 0) + r, A_XT + r), 4, after=dict(tag=("Q", h - 1, 7, 3), delay=1), before=mt(c0 + 62), lead=0, early=int(E("XCE", "20")))
            elif h % 4 == 0:
                xr = xreads(h // 4, 1)
                if h: aft.append(("Q", h - 1, 7, 3))
            for j, fn in enumerate(xr):
                sc.fill("rx", fn, 4, ds=True, after=aft, before=mt(taun - BGAP), lead=(2 if XT else 3) * (len(xr) - j))
        for k, fn in enumerate(reads):
            if "r" in ABL and h >= 2: continue
            bf = cons
            if sc.idx[cons] > taun - BGAP: bf = mt(taun - BGAP)
            sc.fill("rd", fn, 4, ds=True, after=war if k == 0 else None, before=bf, lead=LEAD if bf is cons else 0, early=int(E("QEARLY", "99")))
    def lastbar(p):
        p.comment("---- q step 40")
        p.wait_lgkm0(); p.barrier()
        p.add(Ins(f"buffer_load_dwordx2 v[{V_NV}:{V_NV+1}], off, s[{SRD_DBG}:{SRD_DBG+3}], 0 sc1", "vml", [], [V_NV, V_NV + 1], tag="non"))
    sc.fill("rd", lastbar, 8, before=mt(36 * 40 - LEADB), early=0)
    sc.run()
    stamp(p, 1)
    fstart = len(p.ins)
    TB = V_O + 144
    cnt = [0]
    def fin(r, n, t, i):
        s0 = QA(r, n, 2 * t)
        if r:
            tb = TB + 8 * (cnt[0] & 1); cnt[0] += 1
            for x in range(8): p.ar(tb + x, s0 + x)
            s0 = tb
        dst = V_S + 4 * i
        for x in range(0, 8, 2): p.pkmul(s0 + x, s0 + x, f"s[{S_CS}:{S_CS+1}]")
        for x in range(4): p.cvtpk(dst + x, s0 + 2 * x, s0 + 2 * x + 1)
        return dst
    p.v(f"v_lshl_add_u32 v{V_E0}, s{S_W}, 12, v{V_LIN}", [V_E0], [V_LIN])
    p.vop("v_add_u32", V_E0, f"{XRING}", V_E0)
    p.vop("v_xor_b32", V_E1, "4096", V_E0)
    p.vop("v_and_b32", V_E2, "0xfffffcf0", V_E0)
    p.vop("v_bfe_u32", V_T, V_LIN, "9", "1")
    p.vop("v_lshl_add_u32", V_E2, V_T, "8", V_E2)
    p.vop("v_bfe_u32", V_T, V_LIN, "8", "1")
    p.vop("v_lshl_add_u32", V_E2, V_T, "3", V_E2)
    for r in range(2):
        for t in range(2): p.ds_write2(V_E2, fin(r, 4, t, 2 * r + t), (2 * r + t) * 1024)
    for r in range(2):
        base = A_QN if r else A_Q
        for n in range(4):
            FL = [int(x) for x in E("FLD", "02,02").split(",")[r]]
            ds = {}
            for t in range(4):
                ds[t] = fin(r, n, t, 4 + (n & 1) * 4 + t)
                if t in FL: p.ds_write2(V_E2, ds.pop(t), 16384 + t * 1024)
            for f in (p.swap32, p.swap16):
                for d in ds.values(): f(d, d + 2); f(d + 1, d + 3)
            for t in FL: p.ds_read128(Qf(n, t, base), V_E0, 16384 + t * 1024)
            for t, d in ds.items():
                for x in range(4): p.aw(Qf(n, t, base) + x, d + x)
            if r == 0 and n == 1:
                p.raw(f"s_waitcnt lgkmcnt({2 * len(FL)})"); p.barrier()
                for t in range(2): p.ds_read128(Qf(4, t), V_E0, t * 1024)
                for t in range(2): p.ds_read128(Qf(4, 2 + t), V_E1, t * 1024)
    for t in range(2): p.ds_read128(Qf(4, t, A_QN), V_E0, 2048 + t * 1024)
    for t in range(2): p.ds_read128(Qf(4, 2 + t, A_QN), V_E1, 2048 + t * 1024)
    p.vop("v_mov_b32", V_T, "0x3f803f80")
    for r in range(4): p.aw(A_ONE + r, V_T)
    sprinkle([(p, fstart)], sum([kv_ops(32 + k) for k in range(len(KVS), 8 - T7)], []), 0.0, float(E("QSH", "1.0")))
    stamp(p, 26)
    get_nonce(p, f"{name}_n1", V_T)
    stamp(p, 27)
    p.wait_vm("wst")
    stamp(p, 28)
    publish(p, f"s{S_WFP}", 0, V_T)
    stamp(p, 29)
    z = p
    z.s(f"s_lshl_b32 s{S_PF}, s{S_P}, 12")
    z.s(f"s_lshl_b32 s{S_T1}, s{S_G}, 9")
    z.s(f"s_add_u32 s{S_PF}, s{S_PF}, s{S_T1}")
    z.s(f"s_add_u32 s{S_PF}, s{S_PF}, {WFLG}")
    z.vop("v_lshrrev_b32", V_AX, "1", V_LIN)
    for n in range(5): z.vop("v_mov_b32", V_DA + n, f"{DROP:#x}")
    ti_init(z, 0)
    z.vop("v_mov_b32", V_WP, f"{OOB:#x}")
    stamp(z, 2)
    return p

def a_mfmas(sc, pool, qh):
    AV = (V_AV0, V_AV1)
    has8 = lambda u: (u & 1) == qh
    for pos, (kind, u) in enumerate(KVSEQ):
        sb = (pos % 4) * 16384
        ns = [0, 1, 2, 3] + ([4] if has8(u) else [])
        if kind == "K":
            for kt in range(2):
                for ks in range(4):
                    off = sb + kt * 2048 + ((ks >> 1) ^ qh) * 4096 + (ks & 1) * 512
                    cons = []
                    for n in ns:
                        d = XS(u & 1, n) if kt == 0 else YS(n)
                        cons.append((d, Qf(n, ks), d if ks else None, ("S", u, kt, ks, n)))
                    pool.frag(pos, lambda r: [R128(r, V_AK, off)], cons)
                SCH = int(E("SCH", "4"))
                k0 = len(sc.m) - 4 * len(ns)
                sc.m[k0:] = sorted(sc.m[k0:], key=lambda x: (x[4][3] // SCH, x[4][4], x[4][3]))
                for k in range(k0, len(sc.m)): sc.idx[sc.m[k][4]] = k
        else:
            first = lambda n: u == 0 if n < 4 else u == qh
            for n in ns: sc.mfma(La(n), A_ONE, XS(u & 1, n), None if first(n) else La(n), ("L", u, n))
            for m in range(8):
                e, mp = m & 1, m >> 1
                off = sb + (mp >> 1) * 4096 + (mp & 1) * 512
                oa = lambda n: Oa(n, m if n < 4 else m ^ (4 * qh))
                cons = [(oa(n), XS(u & 1, n), None if first(n) else oa(n), ("PV", u, m, n)) for n in ns]
                if int(E("SNK", "1")) and m % 2 == 0: cons.reverse()
                pool.frag(pos, lambda r: [TR(r, AV[e], off), TR(r + 2, AV[e], off + 2048)], cons)

def a_taus():
    cs = []
    for qh in range(2):
        sc = Sched(Prog()); pool = Pool(sc, A_POOL, NPOOL); a_mfmas(sc, pool, qh)
        c = {}
        for (pos, _, cons, _) in pool.frags: c.setdefault(pos, sc.idx[cons])
        c[32] = len(sc.m) + LEADB - 3
        cs.append(c)
    return [min(cs[0][j], cs[1][j]) - LEADB for j in range(33)]

def aentry(name):
    p = Prog()
    p.label(f"{name}_A")
    p.s(f"s_mov_b32 s{S_KB}, s{S_KVN}")
    p.s(f"s_mov_b32 s{SRD_C+2}, 0x8000000")
    p.s(f"s_add_u32 s{S_KVN}, s{S_KVN}, {2 << 17}")
    p.s(f"s_cmp_eq_u32 s{S_PH}, 0")
    p.s(f"s_cselect_b32 s{S_M0KVP}, s{S_M0KV}, {DROP:#x}")
    p.s(f"s_cselect_b32 s{S_M0KVP+1}, s{S_M0W}, {DROP:#x}")
    p.s(f"s_cselect_b32 s{S_KVP}, s{S_KVN}, {OOB:#x}")
    p.s(f"s_cselect_b32 s{S_WT2}, {OOB:#x}, s{S_WT}")
    p.s(f"s_cmp_eq_u32 s{S_U}, 1")
    p.s(f"s_cbranch_scc1 {name}_A1")
    return p

def tile_addr(p, base, dst):
    p.s(f"s_cmp_lt_u32 s{S_G}, 5")
    p.s(f"s_cselect_b32 s{S_T0}, 1, 0")
    p.s(f"s_xor_b32 s{S_T0}, s{S_T0}, s{S_U}")
    p.v(f"v_lshl_add_u32 v{dst}, s{S_T0}, 12, v{base}", [dst], [base])
    for n in range(1, 4): p.vop("v_add_u32", dst + n, f"{1024 * n}", dst)

S_TI = 96
TI = [[tuple(int(x) for x in y.split("+")) for y in z.split(",")] for z in E("TI", "0+0,4+7;-1+0,-1+0").split(";")]
def ti_init(p, r):
    for k, (b, sp) in enumerate(TI[r]):
        if b < 0 or TI[0][k] == (0, 0): continue
        p.s(f"s_add_u32 s{S_T0}, s{S_B}, s{S_G}")
        p.s(f"s_and_b32 s{S_T0}, s{S_T0}, {sp}")
        p.s(f"s_add_u32 s{S_T0}, s{S_T0}, {b}")
        p.s(f"s_lshl_b32 s{S_TI + k}, 1, s{S_T0}")
WLP = [int(x) for x in E("WLP", "0,0,0,1,1,1,2,2,2,3,3,3").split(",")]
def avm(pos):
    if pos >= 30: return None
    pat = [int(x) for x in E("AVM", "3,4").split(",")]
    h = [int(x) for x in E("AVMH", "").split(",") if x]
    if pos < len(h): return h[pos]
    return pat[pos % len(pat)] + WLP.count(pos - 1) * int(E("WLC", "1"))
RQ = [int(x) for x in E("RQH", "3,3,3,3" if T7 else "0,3,3,2").split(",")] + [int(x) for k in "123" for x in E("RQ" + k, "43434343")] + [int(x) for x in E("RQT", "4,4,4,4").split(",")]
STREAM = sum([kv_ops(k) for k in range(8 - T7, 40 - T7)], [])
for s_ in range(32): assert sum(RQ[:s_ + 1]) <= 4 * (s_ + T7)
def amod(name, qh):
    p = Prog()
    p.label(f"{name}_A{qh}")
    sc = Sched(p, budget=int(E("ABUD", "8")), late_extra=int(E("ALATE", "8")))
    sc.group["dma"] = "vm"; sc.pace["vm"] = int(E("APACE", "2"))
    pool = Pool(sc, A_POOL, NPOOL)
    a_mfmas(sc, pool, qh)
    tau = a_taus()
    mt = lambda i: sc.m[max(0, min(i, len(sc.m) - 1))][4]
    def add_bar(pos):
        def bar(p, pos=pos):
            p.comment(f"---- a step {pos}")
            if TI[0][pos % 2] != (0, 0) and pos < 30:
                p.s(f"s_lshr_b32 s{S_TI + pos % 2}, s{S_TI + pos % 2}, 1")
                p.s("s_cbranch_scc0 1")
                p.raw(f"s_waitcnt vmcnt({avm(pos) - 1})")
            if pos < 32: p.wait_vm(KVSEQ[pos], lgkm0=True, cap=avm(pos))
            else: p.wait_lgkm0()
            p.barrier()
            if pos % 4 == 0 and pos:
                for r in (V_AV0, V_AV1, V_AK): p.vop("v_xor_b32", r, "0x10000", r)
            if PROF == 3 and pos % 2 == 0 and pos < 32: sstamp(p)
        sc.fill("rd", bar, 8, before=mt(tau[pos]), early=0 if pos else None, tag=("BAR", pos))
        if pos < 32:
            ops = STREAM[sum(RQ[:pos]):sum(RQ[:pos + 1])]
            aft = ("BAR", pos); bf = mt(tau[pos + 1] - 1)
            span = tau[pos + 1] - max(tau[pos], 0)
            if pos in CPA: ops = [(code_touch, 8)] + ops
            if pos == WTP: ops = [(lambda p: w_touch(p, 0), 8), (lambda p: w_touch(p, 64), 8)][:WTN] + ops
            for k, op in enumerate(ops): fill_dma(sc, [op], dict(tag=aft, delay=(k * (span - 2)) // len(ops)), bf)
            for k in [k for k in range(12) if WLP[k] == pos]:
                for fn, kind, cost in split_ops([(wload(0, k, S_T2, S_WT2), 8)]):
                    sc.fill("dmp", fn, 8 if kind == "vm" else 4, after=dict(tag=aft, delay=(5 if WLP.count(pos) > 1 else 20) + 9 * (k - WLP.index(pos))), solo=(kind == "vm"), before=bf, lead=20)
            if pos == 30:
                WLS = int(E("WLS", "6"))
                last = ("S", 15, 1, 3, 4 if qh == 1 else 3)
                for k in range(12):
                    for fn, kind, cost in split_ops([(wload(0, 12 + k, S_T2, S_WT2), 8)]):
                        sc.fill("dmp", fn, 8 if kind == "vm" else 4, after=dict(tag=last, delay=2 + WLS * k), solo=(kind == "vm"), before=mt(sc.idx[last] + 12 + WLS * k), lead=9)
            if 26 <= pos < 30:
                t = pos - 26
                ws = [(V_DA + n, Qf(n, t, A_QN), t * 18432 + 1024) for n in range(4)]
                if t >> 1 == qh: ws.append((V_DA + 4, Qf(4, t & 1, A_QN), (t & 1) * 18432))
                for k, w in enumerate(ws):
                    sc.fill("dw", lambda p, w=w: p.ds_write(w[0], w[1], 4, w[2]), 8, solo=True, after=dict(tag=aft, delay=4 + k * ((span - 10) // len(ws))), before=mt(tau[pos + 1] - BGAP), lead=12)
            if pos == 31:
                for f in range(8): sc.fill("dw", R128(P0_B[f], V_LIN, IMG(f)), 4, ds=True, after=dict(tag=aft, delay=16 + 2 * f), before=mt(tau[32] - BGAP), lead=4)
    cur = None
    for (pos, reads, cons, war) in pool.frags:
        if pos != cur:
            cur = pos; add_bar(pos)
        for k, fn in enumerate(reads):
            bf = cons
            if sc.idx[cons] > tau[pos + 1] - BGAP: bf = mt(tau[pos + 1] - BGAP)
            sc.fill("rd", fn, 4, ds=True, after=war if k == 0 else None, before=bf, lead=LEAD if bf is cons else 0)
    add_bar(32)
    def V(fn, after=None, before=None, cost=4, lead=0): sc.fill("va", fn, cost, after=after, before=before, lead=lead)
    EDL = int(E("EDL", "3"))
    for u in range(16):
        ns = [0, 1, 2, 3] + ([4] if (u & 1) == qh else [])
        for kt in range(2):
            for n in ns:
                src = XS(u & 1, n) if kt == 0 else YS(n)
                dst = XS(u & 1, n) + 2 * kt
                for r in range(4):
                    V(lambda p, reg=src + r: p.exp(reg, reg), after=dict(tag=("S", u, kt, 3, n), delay=EDL), cost=8)
                bf = ("L", u, n)
                if kt == 1 and n < 4 and u < 15: bf = ("S", u + 1, 1, 0, n)
                V(lambda p, dst=dst, src=src: p.cvtpk(dst, src, src + 1))
                V(lambda p, dst=dst, src=src: p.cvtpk(dst + 1, src + 2, src + 3), before=bf, lead=2)
    sc.run()
    p.s(f"s_cmp_eq_u32 s{S_PH}, 0")
    p.s(f"s_cbranch_scc0 {name}_P0")
    if qh == 0: p.s(f"s_branch {name}_F")
    return p

RL, CHK, PX, AD, AL = V_S + 2, V_S + 12, V_S + 16, V_S + 48, V_S + 50
def f_addr(p):
    p.v(f"v_lshl_add_u32 v{AD}, s{S_W}, 12, v{V_LIN}", [AD], [V_LIN])
    p.vop("v_add_u32", AD, f"{MISC}", AD)
    p.vop("v_xor_b32", AD + 1, "4096", AD)
def f_bad(op, a, b):
    def f(p):
        p.add(Ins(f"{op} vcc, v{a}, {b}", "valu", [a], []))
        p.s(f"s_or_b64 s[{S_BAD}:{S_BAD+1}], s[{S_BAD}:{S_BAD+1}], vcc")
    return f
def f_rcp(n): return [lambda p: p.vop("v_rcp_f32", RL + 2 * n, RL + 2 * n, kind="trans"), lambda p: p.vop("v_mov_b32", RL + 2 * n + 1, RL + 2 * n)]
def f_range():
    return [lambda p: p.vop("v_max3_f32", V_S, RL, RL + 2, RL + 4), lambda p: p.vop("v_min3_f32", V_S + 1, RL, RL + 2, RL + 4),
            lambda p: p.vop("v_max3_f32", V_S, V_S, RL + 6, RL + 8), lambda p: p.vop("v_min3_f32", V_S + 1, V_S + 1, RL + 6, RL + 8),
            f_bad("v_cmp_nle_f32", V_S, f"s{S_HI}"), f_bad("v_cmp_nge_f32", V_S + 1, f"s{S_LO}")]
def f_fin(): return [lambda p: p.s(f"s_movk_i32 s{S_T2}, 0x207"), f_bad("v_cmp_class_f32", CHK, f"s{S_T2}")]
def f_norm(n, t):
    s0 = Oa(n, 2 * t)
    add = [lambda p, r=r: p.add(Ins(f"v_pk_add_f32 {vr(s0 + r, 2)}, {vr(s0 + r, 2)}, {vr(PX + 8 * t + r, 2)}", "valu", R(s0 + r, 2) | R(PX + 8 * t + r, 2), R(s0 + r, 2))) for r in range(0, 8, 2)] if n == 4 else []
    return add + [lambda p, r=r: p.pkmul(s0 + r, s0 + r, RL + 2 * n) for r in range(0, 8, 2)], [lambda p, r=r: p.cvtpk(s0 + r, s0 + 2 * r, s0 + 2 * r + 1) for r in range(4)]
def f_l8(): return [lambda p: p.vop("v_add_f32", RL + 8, RL + 8, V_S)] + f_rcp(4)
UNITS = [(n, t) for n in (0, 1, 2, 4, 3) for t in range(4 if n < 4 else 2)]
def afin(name):
    p = Prog()
    p.label(f"{name}_F")
    stamp(p, 5)
    poll_issue(p, V_AX, f"s{S_PF}", 0, V_NV)
    f_addr(p)
    for i in range(4): p.ds_write(AD + 1, Oa(4, 4 + i), 4, i * 1024)
    for i in range(2): p.vop("v_subrev_u32", AL + i, "16384", AD + i)
    p.ds_write(AL + 1, La(4), 1, 0)
    for n in range(5): p.ar(RL + 2 * n, La(n))
    for k in range(2):
        for n in range(4): f_rcp(n)[k](p)
    p.wait_lgkm0()
    for k, (n, t) in enumerate(UNITS):
        if k == 4:
            p.barrier()
            for i in range(4): p.ds_read128(PX + 4 * i, AD, i * 1024)
            p.ds_read32(V_S, AL, 0)
        if k == 11:
            for f in f_l8(): f(p)
        for f in sum(f_norm(n, t), []): f(p)
    for f in f_range(): f(p)
    p.s(f"s_mov_b32 s{S_PH}, 1")
    stamp(p, 6)
    for r in range(80):
        if r % 4 == 0 and r < 72: p.mfma(CHK, A_ONE, Oa(UNITS[r // 4][0], 2 * UNITS[r // 4][1]), CHK if r else None)
        p.amov(A_Q + r, A_QN + r)
    for n, t in UNITS:
        for r in range(4): p.aw(Qf(n, t, A_QN) + r, Oa(n, 2 * t) + r)
    for f in f_fin(): f(p)
    sprinkle([(p, 8)], STREAM[sum(RQ):], 0.0, float(E("ASH", "0.7")))
    code_touch(p)
    p.s(f"s_mul_i32 s{S_T0}, s{S_P}, 9216")
    p.vop("v_add_u32", V_DA + 4, f"s{S_T0}", V_LIN)
    tile_addr(p, V_DA + 4, V_DA)
    p.s(f"s_mul_i32 s{S_T0}, s{S_U}, 36864")
    p.vop("v_add_u32", V_DA + 4, f"s{S_T0}", V_DA + 4)
    p.s(f"s_lshr_b32 s{S_T0}, s{S_B}, 1")
    p.s(f"s_lshl4_add_u32 s{S_T0}, s{S_G}, s{S_T0}")
    p.s(f"s_lshl1_add_u32 s{S_T0}, s{S_T0}, s{S_P}")
    p.s(f"s_and_b32 s{S_T1}, s{S_B}, 1")
    p.s(f"s_lshl1_add_u32 s{S_T0}, s{S_T0}, s{S_T1}")
    p.s(f"s_lshl1_add_u32 s{S_T0}, s{S_T0}, s{S_U}")
    p.s(f"s_mul_i32 s{S_T0}, s{S_T0}, 5120")
    p.vop("v_min_u32", V_WP, f"{39 * 16}", V_LIN)
    p.v(f"v_lshl_add_u32 v{V_WP}, v{V_WP}, 3, s{S_T0}", [V_WP], [V_WP])
    psetup(p)
    ti_init(p, 1)
    poll_check(p, f"{name}_wpoll", V_AX, f"s{S_PF}", 0, V_NV)
    p.s(f"s_branch {name}_A")
    return p

P_R = ([A_X + 4 * i for i in range(10)] + [10, 14] + [A_Q + 4 * i for i in range(20)],
       [A_L + 4 * i for i in range(5)] + [A_POOL + 4 * i for i in range(6)] + [A_QN + 64 + 4 * i for i in range(4)] + [A_QN + 4 * i for i in range(16)] + [A_ONE])
P0_B = P_R[0][24:] + [A_QN + 4 * (i % 16) for i in range(64)]
def wload(j, i, so=None, sb=None, extra=0):
    def f(p):
        if i % 2 == 0: p.s(f"s_add_u32 s{so or S_SO}, s{sb or S_WT}, {(i >> 1) * 40960 + extra}")
        if "B" not in ABL: p.load4(P_R[j & 1][i], V_LIN, SRD_WS, f"s{so or S_SO}", (i & 1) * 1024, ("WT", j, i), "sc1")
    return f

def slow(name):
    SI, SC, SX, SWq, SKV, SD, SK = 56, 57, 58, 59, 88, 89, 90
    VW, VX, VK, VV_, VD = 28, 36, 37, 38, 39
    MX, NM, LA, QF, SS, FB, AC, RAW, FR = 40, 44, 48, 52, 68, 76, 84, 116, 180
    def ld(p, op, n, d, vo, srd, so, off):
        p.add(Ins(f"{op} {vr(d, n)}, v{vo}, s[{srd}:{srd+3}], s{so} offen offset:{off}", "vml", [vo], R(d, n), tag="sl"))
    p0 = Prog()
    p0.label(f"{name}_slow")
    p0.wait_all()
    M, G = MX, MX + 1
    p0.vop("v_bfe_u32", M, V_LIN, "4", "4")
    p0.vop("v_lshrrev_b32", G, "8", V_LIN)
    p0.vop("v_lshlrev_b32", VW, "16", G)
    p0.vop("v_lshl_add_u32", VW, M, "1", VW)
    for i in range(1, 8): p0.vop("v_add_u32", VW + i, f"{8192 * i}", VW)
    p0.s(f"s_movk_i32 s{S_T0}, 1280")
    p0.vop("v_mul_lo_u32", VX, M, f"s{S_T0}")
    p0.vop("v_lshl_add_u32", VX, G, "4", VX)
    p0.vop("v_lshlrev_b32", VK, "8", M)
    p0.vop("v_lshl_add_u32", VK, G, "3", VK)
    p0.vop("v_lshlrev_b32", VV_, "10", G)
    p0.vop("v_lshl_add_u32", VV_, M, "1", VV_)
    p0.s(f"s_mov_b32 s{SI}, 0")
    p1 = Prog()
    p1.label(f"{name}_sl_it")
    p1.s(f"s_cmp_ge_u32 s{SI}, 5")
    p1.s(f"s_cselect_b32 s{S_T0}, 2, 0")
    p1.s(f"s_cselect_b32 s{S_T1}, 5, 0")
    p1.s(f"s_cselect_b32 s{SD}, {73728}, 0")
    p1.s(f"s_sub_u32 s{S_T1}, s{SI}, s{S_T1}")
    p1.s(f"s_add_u32 s{S_T0}, s{S_T0}, s{S_P}")
    p1.s(f"s_mul_i32 s{S_T2}, s{S_P}, 9216")
    p1.s(f"s_add_u32 s{SD}, s{SD}, s{S_T2}")
    p1.s(f"s_lshl_b32 s{S_T2}, s{S_G}, 2")
    p1.s(f"s_add_u32 s{S_T0}, s{S_T0}, s{S_T2}")
    p1.s(f"s_lshl_b32 s{SWq}, s{S_T0}, 8")
    p1.s(f"s_lshl_b32 s{S_T2}, s{S_B}, 5")
    p1.s(f"s_add_u32 s{S_T0}, s{S_T0}, s{S_T2}")
    p1.s(f"s_lshl_b32 s{SKV}, s{S_T0}, 17")
    p1.s(f"s_lshl_b32 s{S_T0}, s{S_U}, 2")
    p1.s(f"s_add_u32 s{S_T0}, s{S_T0}, s{S_T1}")
    p1.s(f"s_cmp_lt_u32 s{S_G}, 5")
    p1.s(f"s_cselect_b32 s{S_T2}, 4, 0")
    p1.s(f"s_xor_b32 s{S_T2}, s{S_T2}, s{S_T0}")
    p1.s(f"s_add_u32 s{S_T2}, s{S_T2}, 1")
    p1.s(f"s_cmp_eq_u32 s{S_T1}, 4")
    p1.s(f"s_cselect_b32 s{S_T0}, 8, s{S_T0}")
    p1.s(f"s_cselect_b32 s{S_T2}, 0, s{S_T2}")
    p1.s(f"s_lshl_b32 s{S_T2}, s{S_T2}, 10")
    p1.s(f"s_add_u32 s{SD}, s{SD}, s{S_T2}")
    p1.vop("v_add_u32", VD, f"s{SD}", V_LIN)
    p1.s(f"s_mul_i32 s{S_T2}, s{S_B}, 9")
    p1.s(f"s_add_u32 s{S_T0}, s{S_T0}, s{S_T2}")
    p1.s(f"s_mul_i32 s{SX}, s{S_T0}, {16 * 1280}")
    for r in range(32): p1.vop("v_mov_b32", AC + r, "0")
    p1.s(f"s_mov_b32 s{SC}, 0")
    def pack(p):
        for r in range(32): p.vop("v_lshl_or_b32", FR + r, RAW + 2 * r + 1, "16", RAW + 2 * r)
    def loop_end(p, lab, n):
        p.s(f"s_add_u32 s{SC}, s{SC}, 1")
        p.s(f"s_cmp_lt_u32 s{SC}, {n}")
        p.s(f"s_cbranch_scc1 {lab}")
    p2 = Prog()
    p2.label(f"{name}_sl_q")
    ld(p2, "buffer_load_dwordx4", 4, FB, VX, SRD_X, SX, 0)
    for m in range(8):
        for i in range(8): ld(p2, "buffer_load_ushort", 1, RAW + 8 * m + i, VW + i, SRD_W, SWq, 32 * m)
        if m == 3: p2.wait_all()
    p2.wait_all()
    pack(p2)
    for m in range(8): p2.mfma(AC + 4 * m, FR + 4 * m, FB, AC + 4 * m)
    p2.s(f"s_add_u32 s{SX}, s{SX}, 64")
    p2.s(f"s_add_u32 s{SWq}, s{SWq}, {32 * 8192}")
    loop_end(p2, f"{name}_sl_q", 20)
    p3 = Prog()
    for r in range(32): p3.vop("v_mul_f32", AC + r, f"s{S_CS}", AC + r)
    for r in range(16): p3.cvtpk(QF + r, AC + 2 * r, AC + 2 * r + 1)
    for r in range(32): p3.vop("v_mov_b32", AC + r, "0")
    for r in range(4): p3.vop("v_mov_b32", LA + r, "0")
    p3.vop("v_mov_b32", MX, "0xff800000")
    p3.s(f"s_mov_b32 s{SK}, s{SKV}")
    p3.s(f"s_mov_b32 s{SC}, 0")
    def kfrags(p, dst, so):
        for ks in range(4):
            ld(p, "buffer_load_dwordx2", 2, dst + 4 * ks, VK, SRD_K, so, 64 * ks)
            ld(p, "buffer_load_dwordx2", 2, dst + 4 * ks + 2, VK, SRD_K, so, 64 * ks + 32)
    p4 = Prog()
    p4.label(f"{name}_sl_m")
    kfrags(p4, FR, SK)
    p4.wait_all()
    for ks in range(4): p4.mfma(SS, FR + 4 * ks, QF + 4 * ks, SS if ks else None)
    p4.vop("v_max3_f32", MX, MX, SS, SS + 1)
    p4.vop("v_max3_f32", MX, MX, SS + 2, SS + 3)
    p4.s(f"s_add_u32 s{SK}, s{SK}, 4096")
    loop_end(p4, f"{name}_sl_m", 32)
    p5 = Prog()
    for sw in (p5.swap32, p5.swap16):
        p5.vop("v_mov_b32", MX + 1, MX)
        sw(MX, MX + 1)
        p5.vop("v_max_f32", MX, MX, MX + 1)
    for r in range(4): p5.vop("v_sub_f32", NM + r, "0", MX)
    p5.s(f"s_mov_b32 s{SC}, 0")
    p6 = Prog()
    p6.label(f"{name}_sl_a")
    p6.s(f"s_add_u32 s{SK}, s{SKV}, 4096")
    kfrags(p6, FR, SKV)
    kfrags(p6, FR + 16, SK)
    p6.wait_all()
    for m in range(8):
        for i in range(8): ld(p6, "buffer_load_ushort", 1, RAW + 8 * m + i, VV_, SRD_V, SK if i >= 4 else SKV, 32 * m + 256 * (i & 3))
        if m == 3: p6.wait_all()
    for kt in range(2):
        for ks in range(4): p6.mfma(SS + 4 * kt, FR + 16 * kt + 4 * ks, QF + 4 * ks, SS + 4 * kt if ks else NM)
    for r in range(8): p6.exp(SS + r, SS + r)
    for r in range(4): p6.cvtpk(FB + r, SS + 2 * r, SS + 2 * r + 1)
    p6.wait_all()
    pack(p6)
    p6.mfma(LA, A_ONE, FB, LA)
    for m in range(8): p6.mfma(AC + 4 * m, FR + 4 * m, FB, AC + 4 * m)
    p6.s(f"s_add_u32 s{SKV}, s{SKV}, 8192")
    loop_end(p6, f"{name}_sl_a", 16)
    p7 = Prog()
    p7.vop("v_rcp_f32", LA, LA, kind="trans")
    for r in range(32): p7.vop("v_mul_f32", AC + r, AC + r, LA)
    for r in range(16): p7.cvtpk(QF + r, AC + 2 * r, AC + 2 * r + 1)
    for hf in range(2):
        p7.s(f"s_cmp_eq_u32 s{S_U}, {hf}")
        p7.s(f"s_cselect_b32 s{S_T0}, 0, s{S_T1}")
        p7.s(f"s_cmp_eq_u32 s{S_T0}, 4")
        p7.s(f"s_cbranch_scc1 {name}_sl_s{hf}")
        for t in (2 * hf, 2 * hf + 1): p7.ds_write(VD, QF + 4 * t, 4, t * 18432)
        p7.label(f"{name}_sl_s{hf}")
    p7.wait_all()
    p7.s(f"s_add_u32 s{SI}, s{SI}, 1")
    p7.s(f"s_cmp_lt_u32 s{SI}, 10")
    p7.s(f"s_cbranch_scc1 {name}_sl_it")
    p7.s(f"s_branch {name}_P2")
    body = [p1, p2, p2, p3, p4, p4, p5, p6, p6, p7]
    return [p0, p1, p2, p3, p4, p5, p6, p7], [p0] + body + body

S_ST = 62
S_PC, S_FO, S_PO = 71, 72, 73
S_OF = (4, 5, 6, 7, 74)
S_JA, S_JC, S_JO, S_WE = 77, 83, 52, 101
S_JE, S_EO = (79, 80), (61, 100)
def psetup(p):
    C, J, BW, OW = S_TM, S_TM + 1, S_TM + 2, S_TM + 3
    p.s(f"s_mul_i32 s{BW}, s{S_B}, {PARTB}")
    p.s(f"s_lshl_b32 s{S_T1}, s{S_W}, 11")
    p.s(f"s_add_u32 s{BW}, s{BW}, s{S_T1}")
    p.s(f"s_add_u32 s{BW}, s{BW}, {PART}")
    p.s(f"s_mul_i32 s{OW}, s{S_B}, {144 * 1280}")
    p.s(f"s_mul_i32 s{S_T1}, s{S_W}, 320")
    p.s(f"s_add_u32 s{OW}, s{OW}, s{S_T1}")
    p.s(f"s_sub_u32 s{S_T0}, s{S_G}, 5")
    p.s(f"s_cselect_b32 s{C}, s{S_G}, s{S_T0}")
    p.s(f"s_cselect_b32 s{J}, 0, 1")
    p.s(f"s_add_u32 s{S_ST}, s{BW}, {8 * 81920}")
    p.s(f"s_mul_i32 s{S_T0}, s{J}, {4 * 81920}")
    p.s(f"s_add_u32 s{S_ST+5}, s{BW}, s{S_T0}")
    p.s(f"s_sub_u32 s{S_ST+1}, s{BW}, s{S_T0}")
    p.s(f"s_add_u32 s{S_ST+1}, s{S_ST+1}, {4 * 81920}")
    for i in (2, 3, 4, 6, 7, 8): p.s(f"s_add_u32 s{S_ST+i}, s{S_ST+i-1}, 81920")
    p.s(f"s_lshl_b32 s{S_T0}, s{C}, 13")
    p.s(f"s_add_u32 s{S_JA}, s{S_ST+5}, s{S_T0}")
    p.s(f"s_mul_i32 s{S_JO}, s{J}, {64 * 1280}")
    p.s(f"s_add_u32 s{S_JO}, s{S_JO}, s{OW}")
    p.s(f"s_lshl_b32 s{S_T0}, s{C}, 6")
    p.s(f"s_add_u32 s{S_JO}, s{S_JO}, s{S_T0}")
    p.s(f"s_mul_i32 s{S_WE}, s{S_G}, {16 * 40960}")
    p.s(f"s_mul_i32 s{S_T0}, s{S_W}, 10240")
    p.s(f"s_add_u32 s{S_WE}, s{S_WE}, s{S_T0}")
    for k in range(5):
        p.s(f"s_add_u32 s{C}, s{C}, 1")
        p.s(f"s_cmp_eq_u32 s{C}, 5")
        p.s(f"s_cselect_b32 s{C}, 0, s{C}")
        if k == 0:
            p.s(f"s_lshl_b32 s{S_WT}, s{C}, 11")
            p.s(f"s_add_u32 s{S_WT}, s{S_WT}, s{S_WE}")
            p.s(f"s_add_u32 s{S_WE}, s{S_WE}, 10240")
        p.s(f"s_and_b32 s{S_T0}, s{J}, 1")
        p.s(f"s_lshl3_add_u32 s{S_T0}, s{C}, s{S_T0}")
        p.s(f"s_lshl_b32 s{S_OF[k]}, s{S_T0}, 10")
        if k:
            p.s(f"s_bitcmp1_b32 s{J}, 1")
            p.s(f"s_cselect_b32 s{S_T0}, 40960, 0")
            p.s(f"s_add_u32 s{S_OF[k]}, s{S_OF[k]}, s{S_T0}")
        if k > 1:
            p.s(f"s_bitcmp1_b32 s{J}, 2")
            p.s(f"s_cselect_b32 s{S_T0}, {AREA}, 0")
            p.s(f"s_add_u32 s{S_OF[k]}, s{S_OF[k]}, s{S_T0}")
        if k < 4:
            p.s(f"s_cmp_lt_u32 s{C}, 3")
            p.s(f"s_addc_u32 s{J}, s{J}, 1")
    p.s(f"s_bitcmp1_b32 s{J}, 0")
    p.s(f"s_cselect_b32 s{S_T0}, 0, 1024")
    p.s(f"s_add_u32 s{S_JC}, s{S_JA}, s{S_T0}")
    for k in range(2):
        p.s(f"s_add_u32 s{S_T2}, s{S_G}, {8 * k + 11}")
        p.s(f"s_and_b32 s{S_T0}, s{S_T2}, 3")
        p.s(f"s_add_u32 s{S_T0}, s{S_T0}, 4")
        p.s(f"s_lshr_b32 s{S_T1}, s{S_T2}, 2")
        p.s(f"s_sub_u32 s{S_T1}, s{S_T1}, 1")
        if k == 0:
            p.s(f"s_cmp_lt_u32 s{S_G}, 5")
            p.s(f"s_cselect_b32 s{S_T0}, 8, s{S_T0}")
            p.s(f"s_cselect_b32 s{S_T1}, s{S_G}, s{S_T1}")
        p.s(f"s_mul_i32 s{S_JE[k]}, s{S_T0}, 10")
        p.s(f"s_add_u32 s{S_JE[k]}, s{S_JE[k]}, s{S_T1}")
        p.s(f"s_lshl_b32 s{S_JE[k]}, s{S_JE[k]}, 13")
        p.s(f"s_add_u32 s{S_JE[k]}, s{S_JE[k]}, s{BW}")
        p.s(f"s_mul_i32 s{S_EO[k]}, s{S_T0}, 320")
        p.s(f"s_add_u32 s{S_EO[k]}, s{S_EO[k]}, s{S_T1}")
        p.s(f"s_lshl_b32 s{S_EO[k]}, s{S_EO[k]}, 6")
        p.s(f"s_add_u32 s{S_EO[k]}, s{S_EO[k]}, s{OW}")
    p.s(f"s_cmp_ge_u32 s{S_G}, 5")
    p.s(f"s_cselect_b32 s{S_JE[1]}, {OOB:#x}, s{S_JE[1]}")
    p.s(f"s_cselect_b32 s{S_EO[1]}, {OOB:#x}, s{S_EO[1]}")
    p.s(f"s_lshl2_add_u32 s{S_PO}, s{S_B}, s{S_W}")
    p.s(f"s_lshl_b32 s{S_PO}, s{S_PO}, 8")
    p.s(f"s_add_u32 s{S_PO}, s{S_PO}, {PFLG - 128 + OOB}")
    p.s(f"s_lshl3_add_u32 s{S_FO}, s{S_G}, s{S_PO}")
    p.s(f"s_mov_b32 s{S_PC}, 0")

def pmod(name):
    p = Prog()
    p.label(f"{name}_fb")
    p.wait_all()
    p.s(f"s_cmp_lg_u64 s[{S_BAD}:{S_BAD+1}], 0")
    p.s(f"s_cbranch_scc1 {name}_slow")
    p.label(f"{name}_P2")
    AO = (V_LIN, 2, 3)
    V_FA, V_OA = 4, 5
    PT, PT2 = 6, 8
    V_SA, V_JA, PT3 = 1, 25, 26
    SEL = 18
    POOL = [28 + 4 * k for k in range(16)]
    ACC = 92
    OWN = 124
    PK, SUM, JB = 132, 140, 188
    CT = 244
    p.wait_all()
    p.barrier()
    NL = int(E("PLEAD", "8"))
    def ooff(i, kq): return IMG(kq) + i * 1024
    for f in range(NL): p.ds_read128(POOL[f], AO[ooff(0, f) // 49152], ooff(0, f) % 49152)
    p.vop("v_mov_b32", V_SA, f"{OOB:#x}")
    s0 = len(p.ins)
    p.vop("v_mov_b32", V_JA, f"{OOB:#x}")
    p.vop("v_bfe_u32", V_FA, V_LIN, "4", "3")
    p.vop("v_lshlrev_b32", V_FA, "3", V_FA)
    p.vop("v_bfe_u32", CT, V_LIN, "4", "4")
    p.s(f"s_movk_i32 s{S_T0}, 1280")
    p.vop("v_mul_lo_u32", V_OA, CT, f"s{S_T0}")
    p.vop("v_lshrrev_b32", CT + 1, "8", V_LIN)
    p.vop("v_lshl_add_u32", V_OA, CT + 1, "4", V_OA)
    p.vop("v_mov_b32", PT2, f"s{S_NON}")
    p.vop("v_mov_b32", PT2 + 1, f"s{S_NON+1}")
    p.vop("v_and_b32", CT + 2, "1", CT)
    p.vop("v_lshlrev_b32", CT + 2, "4", CT + 2)
    p.s(f"s_movk_i32 s{S_T0}, 0x3f80")
    p.vop("v_lshlrev_b32", CT + 2, CT + 2, f"s{S_T0}")
    p.vop("v_lshrrev_b32", CT, "1", CT)
    p.vop("v_lshlrev_b32", CT + 1, "1", CT + 1)
    p.vop("v_sub_u32", CT, CT, CT + 1)
    for r in range(2):
        p.add(Ins(f"v_cmp_eq_u32 vcc, {r}, v{CT}", "valu", [CT], []))
        p.vop("v_mov_b32", SEL + r, "0")
        p.vop("v_mov_b32", SEL + 4 + r, "0")
        p.add(Ins(f"v_cndmask_b32 v{SEL+2+r}, 0, v{CT+2}, vcc", "valu", [CT + 2], [SEL + 2 + r]))
    setup = p.ins[s0:]
    def jload(q, jl, dst, own=S_JA):
        def f(p):
            so = S_JE[q - 4] if q >= 4 else S_T1 if q else own
            if 0 < q < 4 and jl == 0: p.s(f"s_add_u32 s{S_T1}, s{own}, {q * 81920}")
            if "J" not in ABL or own != S_JA or dst < JB: p.load4(dst, V_JA, SRD_WS, f"s{so}", jl * 1024, "job", E("JFL", "sc1"))
        return f
    def reduce(p, q, bufs, init=False):
        for e in range(2):
            for k, bf in enumerate(bufs): p.mfma(SUM + 8 * q + 4 * e, SEL + 2 - 2 * e, bf, None if (init and k == 0) else SUM + 8 * q + 4 * e)
    def next_off(): return [lambda p: p.vop("v_add_u32", V_SA, f"s{S_OF[0]}", V_LIN)] + [lambda p, k=k: p.s(f"s_mov_b32 s{S_OF[k]}, s{S_OF[k+1]}") for k in range(4)]
    def next_pair(p, d):
        p.s(f"s_add_u32 s{d}, s{S_WT}, 2048")
        p.s(f"s_sub_u32 s{S_T2}, s{S_WE}, 10240")
        p.s(f"s_cmp_eq_u32 s{d}, s{S_WE}")
        p.s(f"s_cselect_b32 s{d}, s{S_T2}, s{d}")
    def flag(p, off, tag):
        p.wait_vm(tag)
        p.s("s_mov_b64 exec, 1")
        p.store(PT2, 2, V_LIN, SRD_WS, f"s{S_FO}", off, tag="flag", flags="sc1")
        p.s("s_mov_b64 exec, -1")
    FPOS = int(E("FPOS", "56")); FPB = int(E("FPB", "190")); PPB = int(E("PPB", "244")); WSP = float(E("WSP", "6")); PLAT = int(E("PLAT", "60")); CPOS = int(E("CPOS", "206")); WST = int(E("WST", "4"))
    def one_pass(par):
        q = Prog()
        q.label(f"{name}_pass{par}")
        if PROF == 4: stamp(q, 32, S_PC)
        q.wait_vm(("WT", par, 15))
        sc = Sched(q, budget=int(E("PBUD", "8")), late_extra=8)
        for qn in ("wl", "st", "jl", "jp"): sc.group[qn] = "vm"
        sc.pace["vm"] = int(E("PPACE", "4"))
        pool = Pool(sc, POOL, 16)
        acc = lambda i: OWN if i == 8 else ACC + 8 * (i % 4)
        for i in range(9):
            a = acc(i)
            for kq in range(16):
                cons = [(a + 4 * e, P_R[par][2 * kq + e], a + 4 * e if kq else None, ("P", i, kq, e)) for e in range(2)]
                pool.frag(0, lambda r: [R128(r, AO[ooff(i, kq) // 49152], ooff(i, kq) % 49152)], cons, as_b=True)
        PG = int(E("PG", "4"))
        sc.m = [x for k in range(0, 288, 2 * PG) for x in sc.m[k:k + 2 * PG:2] + sc.m[k + 1:k + 2 * PG:2]]
        sc.idx = {x[4]: k for k, x in enumerate(sc.m)}
        mt = lambda i: sc.m[max(0, min(i, len(sc.m) - 1))][4]
        for f in range(NL, 144 + NL):
            (_, reads, cons, war) = pool.frags[f % 144]
            if f >= 144: war = pool.last[f % 16]
            if "R" not in ABL: sc.fill("rd", reads[0], 4, ds=True, after=war, before=mt(2 * (f - NL) + 1), early=2)
        for i in ((16, 22, 28) if PG == 1 else (16, 24) if PG <= 4 else (16,)): sc.fill("ww", lambda p, i=i: p.wait_vm(("WT", par, min(31, i + (5 if PG == 1 else 7 if PG <= 4 else 15)))), 4, before=mt(i), early=0)
        def su(p):
            next_pair(p, S_WT)
            if par == 0:
                p.s(f"s_cmp_eq_u32 s{S_PC}, 4")
                p.s(f"s_cselect_b32 s{S_WT}, {OOB:#x}, s{S_WT}")
        def keep(p):
            p.s(f"s_cmp_eq_u32 s{S_PC}, 4")
            for i in (5, 6, 7): p.s(f"s_cselect_b32 s{S_ST+i}, {OOB:#x}, s{S_ST+i}")
            p.s(f"s_cselect_b32 s{S_WT2}, s{S_PO}, {OOB:#x}")
        if par == 0: sc.fill("jr", keep, 16, after=mt(100), before=mt(150))
        fill_dma(sc, [(su, 0)], None, mt(WST + 2), queue="wl", lead=6)
        for i in range(32):
            fill_dma(sc, [(wload(1 - par, i), 0)], mt(WST + int(WSP * i)), mt(WST + 12 + int(WSP * i)), queue="wl", lead=10)
        sc.fill("jl", lambda p: poll_issue(p, V_FA, f"s{S_PO}", 0, PT), 8, before=mt(CPOS - PLAT), early=4, solo=SOLO)
        def cut(p):
            p.s(f"s_cmp_lt_u32 s{S_PC}, 2")
            p.s(f"s_cbranch_scc1 {name}_nojob{par}")
            if par == 0:
                p.s(f"s_cmp_eq_u32 s{S_PC}, 2")
                p.s(f"s_cbranch_scc1 {name}_pp0")
            p.label("@CUT")
        sc.fill("jr", cut, 8, before=mt(CPOS), early=0, tag="CUT")
        for x in [int(y) for y in E("PSL1", "").split(",") if y]: sc.fill("sl", lambda p: [p.raw("s_nop 15") for _ in range(int(E("PSN", "4")))], 16, before=mt(x), early=0)
        JSP = float(E("JSP", "5"))
        for k in range(12): fill_dma(sc, [(jload(k >> 1, k & 1, JB + 4 * k), 0)], ["CUT", mt(CPOS + int(JSP * k))], mt(CPOS + 12 + int(JSP * k)), queue="jl", lead=10)
        if par == 0: sc.fill("jp", lambda p: poll_issue(p, V_FA, f"s{S_WT2}", 64, PT3), 8, after=mt(PPB), before=mt(PPB + 8), lead=8, solo=SOLO)
        for i in range(-1, 8):
            a = acc(i % 9); d = PK + 4 * (i & 1) if (par == 0 and i >= 5) else a
            dl = mt(32 * i + 32 + 24)
            sc.fill("va", lambda p, a=a, d=d: p.cvtpk(d, a, a + 1), 4, after=dict(tag=("P", i, 15, 1), delay=4) if i >= 0 else mt(3), before=dl, lead=10)
            sc.fill("va", lambda p, a=a, d=d: p.cvtpk(d + 1, a + 2, a + 3), 4)
            sc.fill("va", lambda p, a=a, d=d: p.cvtpk(d + 2, a + 4, a + 5), 4)
            sc.fill("va", lambda p, a=a, d=d: p.cvtpk(d + 3, a + 6, a + 7), 4, tag=("CV", i), before=dl, lead=10)
            def st(p, d=d, i=i):
                if "O" not in ABL: p.store(d, 4, V_SA, SRD_WS, f"s{S_ST + i % 9}", 0, tag=("ps", i), flags=E("SFL", "sc1"))
            sc.fill("st", st, 8, after=("CV", i), before=dl, lead=20, tag=("ST", i), solo=SOLO)
            if i < 0:
                for fn in next_off(): sc.fill("va", fn, 4, after=("ST", -1))
        if PROF == 4:
            for k, x in enumerate(int(y) for y in E("PST", "66,74,224").split(",")): sc.fill(f"st{k}", lambda p, k=k: stamp(p, 33 + k, S_PC), 16, before=mt(x), early=0)
        sc.fill("fl", lambda p: flag(p, 0, ("ps", int(E("FTAG", "-1")))), 16, before=mt(FPOS), early=0)
        for r, x in ((S_FO, 64), (S_PC, 1)): sc.fill("fl", lambda p, r=r, x=x: p.s(f"s_add_u32 s{r}, s{r}, {x}"), 4, after=mt(272))
        if par:
            for r in (S_FO, S_PO): sc.fill("fl", lambda p, r=r: p.s(f"s_bitset0_b32 s{r}, 30"), 4)
        sc.run()
        if par == 0:
            q.s(f"s_cmp_eq_u32 s{S_PC}, 5")
            q.s(f"s_cbranch_scc1 {name}_ptail")
            q.s(f"s_add_u32 s{S_PO}, s{S_PO}, 64")
            q.s(f"s_cmp_eq_u32 s{S_PC}, 1")
            q.s(f"s_cbranch_scc1 {name}_fbw")
        else:
            q.s(f"s_add_u32 s{S_PO}, s{S_PO}, 64")
            q.s(f"s_branch {name}_pass0")
        k = next(i for i, x in enumerate(q.ins) if x.text.startswith("@CUT"))
        q2 = Prog(); q2.label(f"{name}_nojob{par}"); q2.ins += q.ins[k + 1:]; q.ins = q.ins[:k]
        blk = Prog()
        poll_check(blk, f"{name}_pp{par}", V_FA, f"s{S_PO}", 0, PT)
        red = Prog()
        if par == 0:
            blk.vop("v_mov_b32", V_JA, V_LIN)
            blk.s(f"s_cmp_eq_u32 s{S_PC}, 2")
            blk.s(f"s_cbranch_scc1 {name}_nojob{par}")
        red.vop("v_add_u32", V_JA, f"{40960 if par else AREA}", V_LIN)
        for c in range(6): reduce(red, c, [JB + 8 * c, JB + 8 * c + 4], par == 1)
        fb = Prog()
        if par == 0: flag(fb, 64, ("ps", 4))
        return q, fb, blk, red, q2
    def first_pass():
        q = Prog()
        q.label(f"{name}_P0")
        stamp(q, 9)
        if "F" in ABL: q.s(f"s_mov_b32 s{S_BAD}, 1")
        if "G" in ABL:
            q.s(f"s_cmp_eq_u32 s{S_W}, 2")
            q.s(f"s_cselect_b32 s{S_BAD}, 1, 0")
        sc = Sched(q, budget=int(E("P0BUD", "8")), late_extra=8)
        for qn in ("wl", "st"): sc.group[qn] = "vm"
        sc.pace["vm"] = int(E("P0PACE", "3"))
        acc = [V_S + 32, V_S + 40, 92, 100, 108, 116, 132, 140, OWN]
        POOL2 = POOL[:8] + [148 + 4 * k for k in range(4)] + POOL[12:]
        reg = lambda f: P0_B[f] if f < 72 else POOL2[f % 16] if f < 144 else POOL[f % 16]
        fk = lambda f: ((f % 72) // 8, f % 8 + 8 * ((f // 72) & 1))
        base = []
        for f0 in range(0, 144, 4):
            for e in range(2):
                for f in range(f0, f0 + 4):
                    i, kq = fk(f); a = acc[i] + 4 * e
                    base.append((a, P_R[0][2 * kq + e], reg(f), a if kq else None, ("P", f, e)))
        units = UNITS
        C0, CS, MB = int(E("P0C0", "22")), float(E("P0CS", "5.8")), int(E("P0MB", "12"))
        cpos = {C0 + int(CS * k) + (int(E("P0C8", "0")) if k >= 12 else 0): k for k in range(18)}
        for j, m in enumerate(base):
            if j in cpos:
                k = cpos[j]; sc.mfma(CHK, A_ONE, Oa(units[k][0], 2 * units[k][1]), CHK if k else None, ("CHK", k))
            sc.mfma(*m)
        bt = lambda j: base[min(j, 287)][4]
        for i in range(2, 9): assert sc.idx[("CHK", (acc[i] - V_O) // 8)] + 1 < sc.idx[bt(16 * i)]
        for f in range(8, 144 + NL):
            i, kq = fk(f)
            aft = [("P", f - 16, 1)] if (f >= 24 and not 72 <= f < 88) else []
            if f == 8: aft.append("AO")
            if f == 12: aft.append("XW")
            if f == 72: aft.append("MID")
            j = 2 * (f - NL) + 1
            if f >= 72: j = max(j, 144 - MB + 2 + f - 72)
            sc.fill("rd", R128(reg(f), AO[ooff(i, kq) // 49152], ooff(i, kq) % 49152), 4, ds=True, after=aft, before=bt(j), early=2)
        def V(fn, cost=4, **kw): sc.fill("va", fn, cost, **kw)
        sc.fill("ww", lambda p: p.wait_vm(("WT", 0, 15)), 4, before=bt(10), early=0)
        def each(fn):
            z = Prog(); fn(z)
            return [lambda p, x=x: p.add(x) for x in z.ins]
        V(lambda p: p.vop("v_add_u32", AO[1], "49152", V_LIN))
        V(lambda p: p.vop("v_add_u32", AO[2], "98304", V_LIN), tag="AO")
        for fn in each(f_addr): V(fn)
        for i in range(4): V(lambda p, i=i: p.ds_write(AD + 1, Oa(4, 4 + i), 4, i * 1024), 8, solo=True)
        V(lambda p: p.s(f"s_mul_i32 s{S_T0}, s{S_U}, 73728"))
        V(lambda p: p.s(f"s_sub_u32 s{S_T0}, {73728 + 36864}, s{S_T0}"))
        V(lambda p: p.vop("v_add_u32", AL + 1, f"s{S_T0}", V_DA + 4))
        V(lambda p: p.ds_write(AL + 1, La(4), 1, 0), ds=True, tag="XW")
        for n in range(5): V(lambda p, n=n: p.ar(RL + 2 * n, La(n)), tag=("AR", n))
        for n in range(5): V(lambda p, n=n: p.vop("v_add_u32", V_DA + n, "73728", V_DA + n), tag=("DA", n))
        def wr(p, k):
            n, t = units[k]
            p.ds_write(V_DA + n, Oa(n, 2 * t), 4, t * 18432 + (1024 if n < 4 else 0))
        for n in range(4): V(f_rcp(n)[0], 8); V(f_rcp(n)[1], tag=("RC", n))
        l8 = f_l8(); V(l8[0], after=dict(tag="PX", delay=8)); V(l8[1], 8); V(l8[2], tag=("RC", 4), before=("CHK", 10))
        ct = lambda k, d: sc.m[sc.idx[("CHK", k)] + d][4]
        for k, (n, t) in enumerate(units):
            pk, cv = f_norm(n, t)
            sc.fill("pk", lambda p, k=k, pk=pk: (wr(p, k - 1) if k else None, [fn(p) for fn in pk]), 8, solo=True, after=[("RC", n)] + ([("DA", 4)] if k else []),
                    before=ct(k - 1, 1) if k else ct(0, -5), early=0, lead=99, tag=("PK", k))
            for j, fn in enumerate(cv): sc.fill("c1", fn, 4, after=("PK", k), before=ct(k, -1), lead=0)
        sc.fill("pk", lambda p: wr(p, 17), 8, solo=True, before=ct(17, 1), early=0, lead=99, tag="W17")
        for j, fn in enumerate(f_range()): V(fn, 8 if j >= 4 else 4)
        sc.fill("bx", lambda p: p.barrier(), 4, after=[("P", 12, 0), ("DA", 4)], before=bt(int(E("P0BX", "34"))), early=0)
        for i in range(4): sc.fill("bx", R128(PX + 4 * i, AD, i * 1024), 4, ds=True, before=bt(60))
        sc.fill("bx", lambda p: p.ds_read32(V_S, V_DA + 4, 0), 4, ds=True, before=bt(60), tag="PX")
        V(lambda p: p.vop("v_bfe_u32", V_T + 1, V_LIN, "4", "2"))
        V(lambda p: p.vop("v_lshlrev_b32", V_T + 1, "12", V_T + 1))
        V(lambda p: p.vop("v_add_u32", V_T + 1, f"{MISC}", V_T + 1))
        c5 = f_fin()
        V(c5[0]); V(c5[1], 8, after=dict(tag=("CHK", 17), delay=2))
        V(lambda p: (p.s(f"s_or_b32 s{S_T0}, s{S_BAD}, s{S_BAD+1}"), p.vop("v_mov_b32", V_T, f"s{S_T0}")), 8)
        V(lambda p: p.ds_write(AD, V_T, 1, 0), ds=True, after="W17", before=bt(144 - MB - 4), lead=2)
        def mid(p):
            p.wait_vm(("WT", 0, 31), lgkm0=True); p.barrier()
            stamp(p, 16)
            p.ds_read32(V_T + 2, V_T + 1, 0)
        V(mid, 8, before=bt(144 - MB), early=0, tag="MID")
        def chk(p):
            p.add(Ins(f"v_cmp_ne_u32 vcc, 0, v{V_T+2}", "valu", [V_T + 2], []))
            p.s("s_cmp_lg_u64 vcc, 0")
            p.s(f"s_cbranch_scc1 {name}_fb")
        V(chk, 8, before=bt(146), early=0, tag="OK")
        for fn in next_off(): V(fn, before=bt(160))
        k = 0
        while k < len(setup):
            n = 4 if setup[k].text.startswith("v_cmp") else 1
            V(lambda p, g=setup[k:k + n]: [p.add(Ins(x.text, x.kind, x.rd, x.wr)) for x in g], 4 * n); k += n
        for i in range(8):
            a = acc[i]; dl = bt(144 + 16 * i + 16 + 14)
            sc.fill("cv", lambda p, a=a: p.cvtpk(a, a, a + 1), 4, after=["OK", dict(tag=("P", 72 + 8 * i + 7, 1), delay=3)], before=dl, lead=10)
            sc.fill("cv", lambda p, a=a: p.cvtpk(a + 1, a + 2, a + 3), 4)
            sc.fill("cv", lambda p, a=a: p.cvtpk(a + 2, a + 4, a + 5), 4)
            sc.fill("cv", lambda p, a=a: p.cvtpk(a + 3, a + 6, a + 7), 4, tag=("CV", i), before=dl, lead=10)
            def st(p, a=a, i=i):
                if "O" not in ABL: p.store(a, 4, V_SA, SRD_WS, f"s{S_ST+i}", 0, tag=("ps", i), flags=E("SFL", "sc1"))
            sj = int(E("P0S0", "200")) + int(E("P0SS", "8")) * i
            sc.fill("st", st, 8, after=[("CV", i), bt(sj)], before=bt(max(sj + 8, 144 + 16 * i + 30)), lead=20, tag=("ST", i), solo=SOLO)
        if WTP >= 100:
            for k in range(WTN): sc.fill("wt", lambda p, k=k: w_touch(p, 64 * k), 8, after=bt(WTP - 100 + 4 * k), before=bt(WTP - 92 + 4 * k), solo=True)
        for x in [int(y) for y in E("PSL0", "").split(",") if y]: sc.fill("sl", lambda p: [p.raw("s_nop 15") for _ in range(int(E("PSN", "4")))], 16, before=bt(x), early=0)
        W1 = float(E("P0W1", "5.0")); W2 = float(E("P0W2", "3.0"))
        for i in range(8): fill_dma(sc, [(wload(0, 24 + i), 0)], bt(17 + int(W1 * i)), bt(30 + int(W1 * i)), queue="wl", lead=4)
        for i in range(32):
            j = 17 + int(W1 * (8 + i)) if i < 15 else 146 + int(W2 * (i - 15))
            if i == 0: fill_dma(sc, [(lambda p: next_pair(p, S_WT2), 0)], None, bt(j), queue="wl", lead=4)
            fill_dma(sc, [(wload(1, i, sb=S_WT2), 0)], [bt(j), ("AR", 4)] + (["OK"] if i >= 15 else []), bt(j + 13), queue="wl", lead=4)
        sc.fill("fl", lambda p: p.s(f"s_mov_b32 s{S_WT}, s{S_WT2}"), 4, after=bt(275))
        for r, x in ((S_PO, 64), (S_FO, 64), (S_PC, 1)): sc.fill("fl", lambda p, r=r, x=x: p.s(f"s_add_u32 s{r}, s{r}, {x}"), 4, after=bt(275))
        sc.run()
        q.s(f"s_branch {name}_pass1")
        return q
    p.wait_lgkm0()
    p.s(f"s_branch {name}_pass0")
    pre = p
    p0 = first_pass()
    pe, po = one_pass(0), one_pass(1)
    p = Prog()
    p.label(f"{name}_ptail")
    stamp(p, 17)
    p.vop("v_add_u32", V_JA, f"{AREA + 40960}", V_LIN)
    poll_check(p, f"{name}_pp4", V_FA, f"s{S_PO}", 64, PT3, 0)
    stamp(p, 18)
    for c in range(4): jload(c, 0, POOL[8 + c], S_JC)(p)
    for k in range(4): jload(4 + (k >> 1), k & 1, POOL[12 + k])(p)
    stamp(p, 19)
    for c in (4, 5, 0, 1, 2, 3):
        if c < 4:
            for r in range(8): p.vop("v_add_f32", SUM + 8 * c + r, SUM + 8 * c + r, (ACC + 8 * (c + 1) if c < 3 else OWN) + r)
        reduce(p, c, [JB + 8 * c, JB + 8 * c + 4])
    stamp(p, 20)
    def out(c):
        a = SUM + 8 * c
        for r in range(4): p.cvtpk(a + r, a + 2 * r, a + 2 * r + 1)
        if 0 < c < 4: p.s(f"s_add_u32 s{S_JO}, s{S_JO}, {16 * 1280}")
        p.store(a, 4, V_OA, SRD_OUT, f"s{S_JO if c < 4 else S_EO[c - 4]}", 0, tag="out", flags=E("OFL", ""))
    for c in range(6):
        reduce(p, c, [POOL[8 + c]] if c < 4 else POOL[4 + 2 * c:6 + 2 * c])
        if c: out(c - 1)
    out(5)
    if PROF:
        p.wait_all()
        stamp(p, 21)
        p.s(f"s_getreg_b32 s{S_TM}, hwreg(HW_REG_HW_ID)")
        p.s(f"s_getreg_b32 s{S_TM+1}, hwreg(HW_REG_XCC_ID)")
        p.raw(f"v_writelane_b32 v0, s{S_TM}, 24")
        p.raw(f"v_writelane_b32 v0, s{S_TM+1}, 25")
        p.s(f"s_lshl_b32 s{S_T0}, s2, 2")
        p.s(f"s_add_u32 s{S_T0}, s{S_T0}, s{S_W}")
        p.s(f"s_lshl_b32 s{S_T0}, s{S_T0}, 8")
        p.s(f"s_add_u32 s{S_T0}, s{S_T0}, {PROFOFF}")
        p.vop("v_lshrrev_b32", PT, "2", V_LIN)
        p.store(0, 1, PT, SRD_WS, f"s{S_T0}", 0)
        p.s(f"s_add_u32 s{S_T0}, s{S_T0}, 0x40000")
        p.store(255, 1, PT, SRD_WS, f"s{S_T0}", 0)
        if E("ENC"):
            a_, b_ = E("ENC").split(",")
            if int(E("ENCW", "77")) >= 0:
                p.s(f"s_cmp_lg_u32 s2, {int(E('ENCW', '77'))}")
                p.s(f"s_cbranch_scc1 {name}_end")
            if a_ == "n": p.s(f"s_mov_b32 s56, s{S_NON}")
            else: p.raw(f"v_readlane_b32 s56, v0, {a_}")
            p.raw(f"v_readlane_b32 s57, v0, {b_}")
            p.raw("s_nop 4")
            p.s("s_sub_u32 s57, s57, s56")
            p.s("s_lshl_b32 s57, s57, 3")
            p.s("s_add_u32 s57, s57, 12000")
            p.label(f"{name}_enc")
            p.s("s_memrealtime s[58:59]")
            p.raw("s_waitcnt lgkmcnt(0)")
            p.s(f"s_sub_u32 s58, s58, s{S_NON}")
            p.s("s_cmp_lt_u32 s58, s57")
            p.s(f"s_cbranch_scc1 {name}_enc")
        if PROF == 5:
            p.s(f"s_cmp_lg_u32 s2, 77")
            p.s(f"s_cbranch_scc1 {name}_end")
            p.s(f"s_cmp_lg_u32 s{S_W}, 0")
            p.s(f"s_cbranch_scc1 {name}_end")
            p.raw("v_readlane_b32 s56, v0, 0")
            for k, ix in enumerate([23, 1, 2, 5, 6, 9, 10, 16, 17, 18, 20, 21]):
                p.raw(f"v_readlane_b32 s57, v0, {ix}")
                p.raw("s_nop 3")
                p.s("s_sub_u32 s57, s57, s56")
                p.raw(f"v_mov_b32 v30, s57")
                p.raw(f"buffer_store_dword v30, off, s[{SRD_DBG}:{SRD_DBG+3}], 0 offset:{8 + 4 * k}")
                p.raw("s_nop 1")
    p.label(f"{name}_end")
    p.raw("s_endpgm")
    rest = [po[0], po[4], pe[0], pe[2], pe[4], *po, *pe, p]
    fw = Prog(); fw.label(f"{name}_fbw"); fw.wait_all(); fw.s(f"s_branch {name}_pass1")
    return [p0, *pe, *po, p, pre, fw], [p0] + rest, [pre, pe[0], pe[4], fw] + rest

def gen(name):
    pro = prologue(name)
    Q = qmod(name)
    AE = aentry(name)
    A = [amod(name, qh) for qh in range(2)]
    F = afin(name)
    P, PS, PS2 = pmod(name)
    SL, SLS = slow(name)
    segs = [pro, Q, AE, A[0], A[1], F] + P + SL
    sims = [[(x, 1) for x in [pro, Q, AE, A[qh], F, AE, A[qh]] + PS] for qh in range(2)]
    sims.append([(x, 1) for x in SLS + PS2])
    lines, stats = finalize([(x, 1) for x in segs], sims=sims)
    if int(E("ROLL", "1")):
        lines = roll(lines, "; ---- a step", 8, S_LOOP, f"{name}_aloop")
        lines = roll(lines, "; ---- q step", 4, S_LOOP, f"{name}_qloop")
    lines += [f"{name}_last:", f".if {name}_last-{name}_pc < {65536 + CPO}", f".fill ({65536 + CPO}-({name}_last-{name}_pc))/4, 4, 0xbf810000", ".endif", f".if {name}_end-{name}_pc > {65536 + CPO}", '.warning "code range"', ".endif"]
    return [f".globl {name}", ".p2align 8", f".type {name},@function", f"{name}:"] + lines, stats
```

```python
from asmlib import *
import math, struct, os
E = os.environ.get
PROF = int(E("PROF", "0"))
ABL = E("ABL", "")
def f2u(f): return struct.unpack("<I", struct.pack("<f", f))[0]
CSCALE = math.log2(math.e) / math.sqrt(128.0)
NWG = 256
LDS_BYTES = 163840
XSL = 18432
XRING = 131072
XALT = 65536 - XSL
WRING = 65536
MISC = 147456
def IMG(kq): return (kq >> 3) * 73728 + (kq & 3) * 18432 + ((kq >> 2) & 1) * 9216
DROP = 0x30000
OOB = 0x40000000
WOT = 0
PART = 128 * 40960
AREA = 18 * 40960
PARTB = 2 * AREA
WFLG = PART + 32 * PARTB
PFLG = WFLG + 8192
WSBYTES = PFLG + 128 * 256
PROFOFF = 0x4000000

SRD_X, SRD_K, SRD_V, SRD_W, SRD_WS, SRD_WO, SRD_OUT, SRD_DBG = 8, 12, 16, 20, 24, 28, 32, 36
S_W = 3
S_T0, S_T1, S_B, S_G, S_P, S_T2 = 40, 41, 42, 43, 44, 45
S_CS, S_NON, S_SPIN, S_PH, S_GRP, S_SO = 46, 48, 50, 51, 52, 53
S_BAD = 54
S_KOFF, S_VOFF, S_KB, S_KVN, S_M0KV, S_WFP = 56, 57, 58, 59, 60, 61
S_WOFF, S_WB, S_XOFF, S_XB = 62, 63, 65, 66
S_M0W, S_M0X8 = 75, 72
S_WT, S_PT, S_PF, S_RD, S_OUTO = 76, 77, 78, 79, 80
S_LO, S_HI = 81, 82
S_TM = 84
S_VB = 88
S_M0KVP, S_KVP, S_M0D, S_U = 89, 91, 94, 95
S_LOOP = 92
S_WT2 = 98

V_DK, V_DV, V_DW, V_DX = 1, 5, 9, 13
V_AK, V_AV0, V_AV1, V_AX, V_AX8, V_LIN = 18, 19, 20, 21, 22, 24
V_E0, V_E1, V_E2 = 25, 26, 27
V_S = 28
V_AW = V_S + 40
V_O = 84
V_T = 244
V_DA = V_T + 3
V_NV = 252
V_JUNK = 254
A_Q, A_QN, A_L, A_ONE, A_POOL, A_X = 256, 336, 416, 436, 440, 472
A_QP = 480
NPOOL = 8
def Qf(n, ks, base=A_Q): return base + (n * 4 + ks) * 4
def Oa(n, m): return V_O + (n * 8 + m) * 4
def XS(par, n): return V_S + (par * 4 + n) * 4 if n < 4 else V_S + 48
def YS(n): return V_S + 32 + n * 4 if n < 4 else V_S + 52
def La(n): return A_L + 4 * n
def Xf(st, t): return V_S + (st * 5 + t) * 4
def QA(r, n, m): return (A_QN if r else V_O) + (n * 8 + m) * 4

def stamp(p, idx, dyn=None):
    if not PROF: return
    p.s(f"s_memrealtime s[{S_TM}:{S_TM+1}]")
    p.s(f"s_memtime s[{S_TM+2}:{S_TM+3}]")
    p.wait_lgkm0()
    if dyn is None:
        p.raw(f"v_writelane_b32 v0, s{S_TM}, {idx}")
        p.raw(f"v_writelane_b32 v255, s{S_TM+2}, {idx}")
    else:
        p.s("s_mov_b32 s99, m0")
        p.s(f"s_lshl_b32 m0, s{dyn}, 2")
        p.s(f"s_add_u32 m0, m0, {idx}")
        p.raw(f"v_writelane_b32 v0, s{S_TM}, m0")
        p.raw(f"v_writelane_b32 v255, s{S_TM+2}, m0")
        p.s("s_mov_b32 m0, s99")

KVSEQ = [("K", 0)]
for u in range(15): KVSEQ += [("K", u + 1), ("V", u)]
KVSEQ += [("V", 15)]
KVPOS = {t: i for i, t in enumerate(KVSEQ)}
DYN = (10, 30)
SRD_C = SRD_WO
S_ROT, S_C, S_D = S_KOFF, S_VOFF, S_VB
def kv_ops(pos):
    pre = pos >= 32; pos %= 32
    kind, u = KVSEQ[pos]
    dyn = DYN[0] <= pos <= DYN[1] and not pre
    ops = []
    for j in range(4):
        def f(p, j=j):
            if dyn:
                if j == 0:
                    if pos == DYN[0]:
                        p.s(f"s_add_u32 s{S_C}, s{S_ROT}, {u * 8192}")
                        p.s(f"s_and_b32 s{S_C}, s{S_C}, 0x1ffff")
                        p.s(f"s_mov_b32 s{S_D}, {16384 if kind == 'V' else -8192}")
                        p.s(f"s_mov_b32 s{S_M0D}, {(pos % 8) * 16384}")
                    p.s(f"s_cmp_gt_i32 s{S_D}, 0")
                    p.s(f"s_cselect_b64 s[{SRD_C}:{SRD_C+1}], s[{SRD_V}:{SRD_V+1}], s[{SRD_K}:{SRD_K+1}]")
                    p.s(f"s_add_u32 m0, s{S_M0KV}, s{S_M0D}")
                    p.s(f"s_add_u32 s{S_SO}, s{S_KB}, s{S_C}")
                if "D" not in ABL: p.dmao(V_DV + j, SRD_C, f"s{S_SO}", j * 1024, (kind, u), "nt")
                if j == 0: p.s(f"s_add_u32 s{S_C}, s{S_C}, s{S_D}")
                if j == 1:
                    p.s(f"s_and_b32 s{S_C}, s{S_C}, 0x1ffff")
                    p.s(f"s_sub_u32 s{S_D}, 8192, s{S_D}")
                if j == 2:
                    p.s(f"s_add_u32 s{S_M0D}, s{S_M0D}, 16384")
                    p.s(f"s_and_b32 s{S_M0D}, s{S_M0D}, 0x1ffff")
                return
            if j == 0:
                if pre: p.s(f"s_add_u32 m0, s{S_M0KVP + (pos >> 2)}, {(pos % 4) * 16384}")
                else: p.s(f"s_add_u32 m0, s{S_M0KV}, {(pos % 8) * 16384}")
                p.s(f"s_add_u32 s{S_SO}, s{S_ROT}, {u * 8192}")
                p.s(f"s_and_b32 s{S_SO}, s{S_SO}, 0x1ffff")
                p.s(f"s_add_u32 s{S_SO}, s{S_SO}, s{S_KVP if pre else S_KB}")
            if "D" not in ABL: p.dmao(V_DV + j, SRD_K if kind == "K" else SRD_V, f"s{S_SO}", j * 1024, (kind, u), "nt")
        ops.append((f, 8))
    return ops
def w_ops(h):
    ops = []
    for j in range(4):
        def f(p, j=j):
            if j == 0:
                p.s(f"s_add_u32 m0, s{S_M0W}, {(h % 4) * 16384}")
                p.s(f"s_add_u32 s{S_SO}, s{S_WB + (h & 1)}, s{S_WOFF}")
            if "W" not in ABL: p.dmao(V_DW + j, SRD_W, f"s{S_SO}", j * 1024, ("W", h))
            if j == 1 and h % 2 == 1: p.s(f"s_add_u32 s{S_WOFF}, s{S_WOFF}, {32 * 8192}")
            if j == 2 and h % 4 == 3:
                p.s(f"s_cmp_ge_u32 s{S_WOFF}, {640 * 8192}")
                p.s(f"s_cselect_b32 s{S_WOFF}, 0, s{S_WOFF}")
        ops.append((f, 12 if j == 0 or (j == 2 and h % 4 == 3) else 8 if j == 1 and h % 2 else 4))
    return ops
def xw_ops(i, h):
    def X(j):
        def f(p):
            p.s(f"s_add_u32 m0, s{S_M0KV if j < 4 else S_M0X8}, {XRING}")
            if j == 0: p.s(f"s_add_u32 s{S_T1}, s{S_XB}, s{S_XOFF}")
            p.dmao(V_DX + j, SRD_X, f"s{S_T1}", (j & 3) * 1024, ("X", i))
            if j == 1: p.s(f"s_add_u32 s{S_XOFF}, s{S_XOFF}, 128")
            if j == 2:
                p.s(f"s_cmp_ge_u32 s{S_XOFF}, 1280")
                p.s(f"s_cselect_b32 s{S_XOFF}, 0, s{S_XOFF}")
        return (f, 8)
    w = w_ops(h)
    W = lambda j: ((lambda p: ((p.s(f"s_add_u32 m0, s{S_M0W}, {(h % 4) * 16384}") if j else None), w[j][0](p))), 8)
    return [X(0), W(0), X(1), W(1), X(2), W(2), X(3), W(3), X(4)]
def x_ops(i):
    ops = []
    sb = XRING if i else XALT
    for j in range(5):
        def f(p, j=j):
            if j == 0:
                p.s(f"s_add_u32 m0, s{S_M0KV}, {sb}")
                p.s(f"s_add_u32 s{S_SO}, s{S_XB}, s{S_XOFF}")
            if "X" not in ABL: p.dmao(V_DX + j, SRD_X, f"s{S_SO}", (j & 3) * 1024, ("X", i), E("XFL", ""))
            if j == 1: p.s(f"s_add_u32 s{S_XOFF}, s{S_XOFF}, 128")
            if j == 2:
                p.s(f"s_cmp_ge_u32 s{S_XOFF}, 1280")
                p.s(f"s_cselect_b32 s{S_XOFF}, 0, s{S_XOFF}")
            if j == 3:
                p.s(f"s_add_u32 m0, s{S_M0X8}, {sb}")
                p.nop(0)
        ops.append((f, 12 if j in (0, 2, 3) else 8 if j == 1 else 4))
    return ops

SRD_E = 4
S_EM, S_ED, S_TAB, S_ES, S_WEND, S_EW = 67, 68, 69, 70, 71, 73
STG = 0x26000
V_WR = V_O + 144
EKP = [int(x) for x in E("EKP", "1,2,1,2").split(",")]
PFP = [int(x) for x in E("PFP", "")]; PFN = len(PFP)
PFS = int(E("PFS", "1"))
S_PFO, S_PFB = 74, 83
def ek_ops(h):
    it = h // 4
    tag = KVSEQ[(it - 1) // 2]
    def kp(p):
        p.s(f"s_and_b32 s{S_ES}, s{S_TAB}, 0x7000")
        p.s(f"s_add_u32 s{S_ES}, s{S_ES}, s{S_ROT}")
        p.s(f"s_and_b32 s{S_ES}, s{S_ES}, 0x1ffff")
        p.s(f"s_add_u32 s{S_ES}, s{S_ES}, s{S_KVP}")
        if PFS > 1 and not PFN:
            p.s(f"s_bitcmp1_b32 s{S_WEND}, 16")
            p.s(f"s_cselect_b32 s{S_ES}, s{S_ES}, {OOB:#x}")
        p.s(f"s_bitcmp1_b32 s{S_TAB}, 15")
        p.s(f"s_cselect_b64 s[{SRD_E}:{SRD_E+1}], s[{SRD_V}:{SRD_V+1}], s[{SRD_K}:{SRD_K+1}]")
        p.s(f"s_lshr_b32 s{S_T0}, s{S_TAB}, 4")
        p.s(f"s_lshl_b32 s{S_TAB}, s{S_TAB}, 28")
        p.s(f"s_or_b32 s{S_TAB}, s{S_TAB}, s{S_T0}")
    def k0(p):
        p.s(f"s_add_u32 m0, s{S_M0KV}, s{S_EM}")
        if "D" not in ABL: p.dmao(V_DV, SRD_E, f"s{S_ES}", 0, tag, "nt")
    def k1(p):
        p.s(f"s_add_u32 m0, s{S_M0KV}, s{S_EM}")
        p.s(f"s_add_u32 s{S_EM}, s{S_EM}, s{S_ED}")
        if "D" not in ABL: p.dmao(V_DV + 1, SRD_E, f"s{S_ES}", 1024, tag, "nt")
        p.s(f"s_xor_b32 s{S_ED}, s{S_ED}, {2048 ^ 14336}")
    def wo(p):
        p.s(f"s_mov_b32 m0, s{S_EW}")
        p.s(f"s_bitcmp1_b32 s{S_WEND}, 0")
        p.s(f"s_cselect_b32 s{S_T0}, s{S_WT}, {OOB:#x}")
        p.dmao(V_DX, SRD_WO, f"s{S_T0}", 0, ("WOP", it), E("WOFL", "nt"))
        p.s(f"s_xor_b32 s{S_EW}, s{S_EW}, 4096")
        p.s(f"s_lshr_b32 s{S_WEND}, s{S_WEND}, 1")
        p.s(f"s_add_u32 s{S_WT}, s{S_WT}, 128")
    def none(p): p.add(Ins(f"buffer_load_dword v{V_JUNK}, off, s[{SRD_DBG}:{SRD_DBG+3}], 0 offset:256", "vm", [], [], tag="none"))
    def pf(srd, du, j, last):
        def f(p):
            p.s(f"s_add_u32 s{S_T0}, s{S_PFO}, {du * 8192}")
            p.s(f"s_and_b32 s{S_T0}, s{S_T0}, 0x1ffff")
            p.s(f"s_add_u32 s{S_T0}, s{S_T0}, s{S_PFB}")
            p.add(Ins(f"buffer_load_dword v{V_JUNK}, v{V_DV + j}, s[{srd}:{srd+3}], s{S_T0} offen offset:{j * 1024} {E('PFFL', '')}", "vm", [V_DV + j], [], tag="pf"))
            if last:
                p.s(f"s_add_u32 s{S_PFO}, s{S_PFO}, {8192 * PFN // 2}")
                p.s(f"s_bitcmp1_b32 s{S_WEND}, 16")
                p.s(f"s_cselect_b32 s{S_PFB}, s{S_KVP}, {OOB:#x}")
        return f
    if int(E("PFD", "0")) == 2:
        def pf(srd, du, j, last):
            def f(p):
                p.s(f"s_mov_b32 m0, s94")
                p.s(f"s_add_u32 s{S_T0}, s{S_PFO}, {du * 8192}")
                p.s(f"s_and_b32 s{S_T0}, s{S_T0}, 0x1ffff")
                p.s(f"s_add_u32 s{S_T0}, s{S_T0}, s{S_PFB}")
                p.dmao(V_DV, srd, f"s{S_T0}", 0, "pf", E("PFFL", ""))
                if last:
                    p.s(f"s_add_u32 s{S_PFO}, s{S_PFO}, {8192 * PFN // 2}")
                    p.s(f"s_bitcmp1_b32 s{S_WEND}, 16")
                    p.s(f"s_cselect_b32 s{S_PFB}, s{S_KVP}, {OOB:#x}")
            return f
    if int(E("PFD", "0")) == 1:
        def pf(srd, du, j, last):
            def f(p):
                p.s(f"s_mov_b32 m0, s94")
                p.s(f"s_and_b32 s{S_T0}, s{S_PFO}, 0x1ffff")
                p.s(f"s_add_u32 s{S_T0}, s{S_T0}, s{S_PFB}")
                p.dmao(V_DV, SRD_V, f"s{S_T0}", 0, "pf", "nt")
                p.s(f"s_add_u32 s{S_PFO}, s{S_PFO}, 2048")
            return f
    fs = [k0, k1, wo, None, kp] if it else [none if x else None for x in EKP[:3]] + [None, kp]
    fs += [pf(SRD_K if k & 1 else SRD_V, (5 if k & 1 else 3) + (k >> 1), 3, k == PFN - 1) if it else (none if PFP[k] else None) for k in range(PFN)]
    fs += [code_touch] * len(CPQ)
    return [(f, 8) for f, x in zip(fs, EKP + [3] + PFP + CPQ) if f and x == h % 4]
def wst(p):
    for i in range(5):
        p.store(A_Q + 16 - 4 * i, 4, V_LIN, SRD_WS, f"s{S_PT}", 0, tag="wst", flags="sc1")
        if i < 4: p.s(f"s_add_u32 s{S_PT}, s{S_PT}, 4096")

def split_ops(ops):
    q = Prog()
    for f, _ in ops: f(q)
    out = []; i = 0; L = [x for x in q.ins if x.kind != "nop"]
    while i < len(L):
        grp = [L[i]]
        if L[i].text.startswith(("s_cmp", "s_bitcmp")): grp.append(L[i + 1])
        i += len(grp)
        out.append((lambda p, grp=grp: [p.add(x) for x in grp], "vm" if grp[0].kind in ("vm", "vml", "vms") else "s", 4 * len(grp)))
    return out
def fill_dma(sc, ops, after, before, tag=None, queue="dma", lead=80):
    so = split_ops(ops)
    for k, (fn, kind, cost) in enumerate(so):
        sc.fill(queue, fn, 8 if kind == "vm" else cost, after=after, before=before, lead=lead, solo=(kind == "vm" and SOLO), paced=(kind == "vm"),
                tag=tag if k == len(so) - 1 else None)
SOLO = int(E("SOLO", "1"))
T7 = int(E("T7", "0"))
def sprinkle(progs, ops, lo=0.0, hi=1.0):
    pts = []
    for p, st in progs:
        masked = False
        for i in range(st, len(p.ins)):
            x = p.ins[i]
            if x.text.startswith("s_mov_b64 exec"): masked = not x.text.endswith("-1")
            if x.kind == "label" and not x.text.startswith(";"): break
            if x.kind in ("valu", "perm") and not masked and p.ins[i - 1].kind in ("valu", "perm") and "v_cmp" not in x.text and "v_cmp" not in p.ins[i - 1].text: pts.append((p, i))
    a, b = int(lo * len(pts)), int(hi * len(pts))
    sel = [pts[a + (k * (b - a)) // len(ops)] for k in range(len(ops))]
    for (p, i), (fn, _) in reversed(list(zip(sel, ops))):
        q = Prog(); fn(q)
        p.ins[i:i] = q.ins

V_CP = 2
V_WP, WTP = 23, int(E("WTP", "-1"))
CPO = int(E("CPO", "1536"))
CPQ = [int(x) for x in E("CPQ", "2")]
CPA = [int(x) for x in E("CPA", "").split(",") if x]
WTN = int(E("WTN", "2"))
def w_touch(p, off): p.add(Ins(f"buffer_load_dword v{V_JUNK}, v{V_WP}, s[{SRD_WS}:{SRD_WS+3}], 0 offen offset:{off} sc1", "vm", [V_WP], [], tag="wtp"))
def code_addr(p, name, L):
    p.s(f"s_getpc_b64 s[{S_TM}:{S_TM+1}]")
    p.label(f"{name}_pc")
    p.s(f"s_lshr_b32 s{S_T0}, s2, 1")
    p.s(f"s_and_b32 s{S_T0}, s{S_T0}, 0x7c")
    p.s(f"s_add_u32 s{S_T0}, s{S_T0}, s{S_W}")
    p.s(f"s_lshl_b32 s{S_T0}, s{S_T0}, 9")
    p.s(f"s_add_u32 s{S_T0}, s{S_T0}, {CPO}")
    p.s(f"s_add_u32 s{S_TM}, s{S_TM}, s{S_T0}")
    p.s(f"s_addc_u32 s{S_TM+1}, s{S_TM+1}, 0")
    p.raw(f"v_and_b32 v{V_CP}, {7 if int(E('CP64', '0')) else 3}, v{L}")
    p.raw(f"v_lshlrev_b32 v{V_CP}, {6 if int(E('CP64', '0')) else 7}, v{V_CP}")
    p.raw(f"v_mov_b32 v{V_CP+1}, s{S_TM+1}")
    p.raw(f"v_add_co_u32 v{V_CP}, vcc, s{S_TM}, v{V_CP}")
    p.raw("s_nop 1")
    p.raw(f"v_addc_co_u32 v{V_CP+1}, vcc, 0, v{V_CP+1}, vcc")
def code_touch(p): p.add(Ins(f"global_load_dword v{V_JUNK}, v[{V_CP}:{V_CP+1}], off", "vm", [], [], tag="code"))

def get_nonce(p, name, t):
    p.add(Ins(f"v_readfirstlane_b32 s{S_NON}, v{V_NV}", "rfl", [V_NV], []))
    p.add(Ins(f"v_readfirstlane_b32 s{S_NON+1}, v{V_NV+1}", "rfl", [V_NV + 1], []))
    p.s(f"s_cmp_lt_i32 s{S_NON+1}, 0")
    p.s(f"s_cbranch_scc1 {name}_x")
    p.vop("v_mov_b32", t + 2, "0")
    p.label(f"{name}")
    p.raw(f"buffer_load_dwordx2 v[{t}:{t+1}], v{t+2}, s[{SRD_DBG}:{SRD_DBG+3}], 0 offen sc1")
    p.raw("s_waitcnt vmcnt(0)")
    p.raw(f"v_readfirstlane_b32 s{S_NON}, v{t}")
    p.raw(f"v_readfirstlane_b32 s{S_NON+1}, v{t+1}")
    p.s(f"s_sub_u32 s{S_SPIN}, s{S_SPIN}, 1")
    p.s(f"s_cbranch_scc1 {name}_x")
    p.s(f"s_cmp_lt_i32 s{S_NON+1}, 0")
    p.s(f"s_cbranch_scc0 {name}")
    p.label(f"{name}_x")
    p.nop(1)

def publish(p, soff, off, t):
    p.vop("v_mov_b32", t, f"s{S_NON}")
    p.vop("v_mov_b32", t + 1, f"s{S_NON+1}")
    p.s("s_mov_b64 exec, 1")
    p.store(t, 2, V_LIN, SRD_WS, soff, off, tag="flag", flags="sc1")
    p.s("s_mov_b64 exec, -1")

def poll_issue(p, vaddr, soff, off, t):
    p.add(Ins(f"buffer_load_dwordx2 v[{t}:{t+1}], v{vaddr}, s[{SRD_WS}:{SRD_WS+3}], {soff} offen offset:{off} sc1", "vml", [vaddr], [t, t + 1], tag="poll"))
def poll_check(p, name, vaddr, soff, off, t, slp=2):
    p.label(f"{name}")
    p.add(Ins(f"v_cmp_ne_u32 vcc, s{S_NON}, v{t}", "valu", [t], []))
    p.add(Ins(f"v_cmp_ne_u32 s[{S_TM+2}:{S_TM+3}], s{S_NON+1}, v{t+1}", "valu", [t + 1], []))
    p.s(f"s_or_b64 vcc, vcc, s[{S_TM+2}:{S_TM+3}]")
    if "Y" in ABL and "pp" in name: p.s(f"s_branch {name}_ok")
    p.s(f"s_cbranch_scc0 {name}_ok")
    p.s(f"s_sub_u32 s{S_SPIN}, s{S_SPIN}, 1")
    p.s(f"s_cbranch_scc1 {name}_ok")
    if slp: p.s(f"s_sleep {slp}")
    p.raw(f"buffer_load_dwordx2 v[{t}:{t+1}], v{vaddr}, s[{SRD_WS}:{SRD_WS+3}], {soff} offen offset:{off} sc1")
    p.raw("s_waitcnt vmcnt(0)")
    p.s(f"s_branch {name}")
    p.label(f"{name}_ok")

def prologue(name):
    p = Prog()
    if PROF: p.s("s_memrealtime s[100:101]")
    p.s(f"s_cmp_ge_u32 s2, {NWG}")
    p.s(f"s_cbranch_scc1 {name}_end")
    p.s("s_load_dwordx8 s[84:91], s[0:1], 0")
    p.s("s_load_dwordx8 s[92:99], s[0:1], 32")
    T = V_O
    W, L, a, b, c, d, U, P, VV, R8, PI, M, G, cv = range(T, T + 14)
    p.vop("v_lshrrev_b32", W, "6", 0)
    p.vop("v_and_b32", L, "63", 0)
    p.add(Ins(f"v_readfirstlane_b32 s{S_W}, v{W}", "rfl", [W], []))
    p.vop("v_and_b32", U, "1", W)
    p.vop("v_lshrrev_b32", P, "1", W)
    p.vop("v_lshrrev_b32", VV, "5", L)
    p.vop("v_bfe_u32", R8, L, "2", "3")
    p.vop("v_and_b32", PI, "3", L)
    p.s(f"s_movk_i32 s{S_T0}, 1280")
    p.vop("v_mul_lo_u32", a, R8, f"s{S_T0}")
    p.vop("v_lshl_add_u32", a, VV, "6", a)
    p.vop("v_xor_b32", c, "3", PI)
    p.vop("v_lshl_add_u32", V_DX, PI, "4", a)
    p.vop("v_lshl_add_u32", b, c, "4", a)
    p.vop("v_add_u32", V_DX + 1, f"{9216}", b)
    p.vop("v_add_u32", V_DX + 2, f"{2 * 9216}", V_DX)
    p.vop("v_add_u32", V_DX + 3, f"{3 * 9216}", b)
    p.vop("v_lshrrev_b32", d, "2", R8)
    p.vop("v_lshlrev_b32", cv, "1", d)
    p.vop("v_xor_b32", cv, cv, PI)
    p.vop("v_and_b32", b, "3", R8)
    p.vop("v_lshl_add_u32", b, d, "3", b)
    p.vop("v_lshlrev_b32", d, "7", U)
    p.vop("v_lshl_add_u32", d, VV, "6", d)
    p.vop("v_lshl_add_u32", b, b, "13", d)
    p.vop("v_lshl_add_u32", V_DW, cv, "4", b)
    for j in range(1, 4): p.vop("v_add_u32", V_DW + j, f"{(16 * (j & 1) + 4 * (j >> 1)) * 8192 - 1024 * j}", V_DW)
    p.vop("v_mul_u32_u24", b, "3", P)
    p.vop("v_xor_b32", b, b, PI)
    p.vop("v_lshl_add_u32", b, b, "4", a)
    p.vop("v_lshlrev_b32", a, "2", W)
    p.vop("v_sub_u32", a, P, a)
    p.vop("v_add_u32", a, "16", a)
    p.s(f"s_movk_i32 s{S_T1}, {8 * 1280}")
    p.vop("v_mul_lo_u32", a, a, f"s{S_T1}")
    p.vop("v_add_u32", a, a, b)
    p.vop("v_lshl_add_u32", V_DX + 4, U, "30", a)
    MAP = int(E("MAP", "0"))
    p.s(f"s_bfe_u32 s{S_T0}, s2, {(MAP << 16) | 3:#x}")
    p.s(f"s_lshr_b32 s{S_T2}, s2, {3 + MAP}")
    p.s(f"s_and_b32 s{S_G}, s2, {(1 << (3 - MAP)) - 1}")
    p.s(f"s_lshl_b32 s{S_G}, s{S_G}, {MAP}")
    p.s(f"s_or_b32 s{S_G}, s{S_G}, s{S_T0}")
    p.s(f"s_bfe_u32 s{S_B}, s2, {(MAP << 16) | (3 - MAP):#x}")
    p.s(f"s_lshl_b32 s{S_B}, s{S_B}, {5 - MAP}")
    p.s(f"s_or_b32 s{S_B}, s{S_B}, s{S_T2}")
    p.s(f"s_mul_i32 s{S_T0}, s{S_T0}, {int(E('PHM', str(1 << (5 - MAP))))}")
    p.s(f"s_lshl_b32 s{S_T2}, s{S_T2}, {MAP}")
    p.s(f"s_add_u32 s{S_T2}, s{S_T2}, s{S_T0}")
    if int(E("GPH", "0")):
        p.s(f"s_and_b32 s{S_T0}, s{S_G}, {int(E('GPM', '7'))}")
        p.s(f"s_mul_i32 s{S_T0}, s{S_T0}, {int(E('GPH', '0'))}")
        p.s(f"s_add_u32 s{S_T2}, s{S_T2}, s{S_T0}")
    p.s(f"s_and_b32 s{S_T2}, s{S_T2}, 31")
    p.s(f"s_lshr_b32 s{S_P}, s{S_W}, 1")
    p.s(f"s_lshl_b32 s{S_M0KV}, s{S_W}, 12")
    p.s(f"s_add_u32 s{S_M0W}, s{S_M0KV}, {WRING}")
    p.s(f"s_lshl_b32 s{S_M0X8}, s{S_P}, 10")
    p.s(f"s_add_u32 s{S_M0X8}, s{S_M0X8}, 16384")
    p.s(f"s_bitcmp1_b32 s{S_W}, 0")
    p.s(f"s_cselect_b32 s{S_M0X8}, 0x1d000, s{S_M0X8}")
    p.s(f"s_lshl_b32 s{S_T0}, s{S_G}, 2")
    p.s(f"s_add_u32 s{S_T0}, s{S_T0}, s{S_P}")
    p.s(f"s_lshl_b32 s{S_WB}, s{S_T0}, 8")
    p.s(f"s_add_u32 s{S_WB+1}, s{S_WB}, 512")
    p.s(f"s_lshl_b32 s{S_T1}, s{S_B}, 5")
    p.s(f"s_add_u32 s{S_T0}, s{S_T0}, s{S_T1}")
    p.s(f"s_lshl_b32 s{S_KVN}, s{S_T0}, 17")
    p.s(f"s_mul_i32 s{S_T0}, s{S_T2}, 5")
    p.s(f"s_lshr_b32 s{S_T0}, s{S_T0}, 4")
    if not int(E("ROT", "1")): p.s(f"s_mov_b32 s{S_T0}, 0")
    p.s(f"s_lshl_b32 s{S_XOFF}, s{S_T0}, 7")
    p.s(f"s_lshl_b32 s{S_WOFF}, s{S_T0}, 19")
    p.s(f"s_mul_i32 s{S_XB}, s{S_B}, {144 * 1280}")
    p.s(f"s_mul_i32 s{S_T0}, s{S_W}, {32 * 1280}")
    p.s(f"s_add_u32 s{S_XB}, s{S_XB}, s{S_T0}")
    def srd(r, src, size):
        p.s(f"s_mov_b32 s{r+2}, {size:#x}")
        p.s(f"s_mov_b32 s{r+3}, 0x20000")
    def srd2(r, src):
        p.s(f"s_mov_b32 s{r}, s{src}")
        p.s(f"s_and_b32 s{r+1}, s{src+1}, 0xffff")
    SR = ((SRD_X, 84, 32 * 144 * 640 * 2), (SRD_W, 90, 640 * 4096 * 2), (SRD_K, 86, 1 << 27), (SRD_V, 88, 1 << 27),
          (SRD_WO, 92, 4096 * 640 * 2), (SRD_OUT, 94, 32 * 144 * 640 * 2), (SRD_DBG, 96, 256), (SRD_WS, 98, (1 << 28) if PROF else WSBYTES))
    for x in SR: srd(*x)
    if PROF: p.s("s_memrealtime s[66:67]") if 0 else None
    p.s("s_waitcnt lgkmcnt(0)")
    if PROF: p.s("s_memrealtime s[4:5]")
    for x in SR[:2]: srd2(*x[:2])
    for ops in (x_ops(0), w_ops(0), w_ops(1)):
        for f, _ in ops: f(p)
    for x in SR[2:]: srd2(*x[:2])
    stamp(p, 0)
    if PROF:
        p.raw("v_writelane_b32 v0, s100, 3")
        p.raw("v_writelane_b32 v0, s4, 4")
    p.vop("v_lshlrev_b32", V_LIN, "4", L)
    code_addr(p, name, L)
    code_touch(p)
    p.vop("v_lshl_add_u32", b, R8, "8", d)
    p.vop("v_lshl_add_u32", V_DV, cv, "4", b)
    for j in range(1, 4): p.vop("v_add_u32", V_DV + j, f"{1024 * j}", V_DV)
    if E("LINT", "") == "1":
        for j in range(4): p.vop("v_lshl_add_u32", V_DV + j, U, "12", V_LIN)
    if E("LINT", "") == "2":
        p.vop("v_lshl_add_u32", V_DV, U, "10", V_LIN)
        for j in range(1, 4): p.vop("v_add_u32", V_DV + j, f"{1024 * j}", V_DV)
    p.s(f"s_lshl_b32 s{S_T0}, s2, 1")
    p.s(f"s_add_u32 s{S_T0}, s{S_T0}, s{S_P}")
    p.s(f"s_mul_i32 s{S_T0}, s{S_T0}, {int(E('KROT', '5'))}")
    p.s(f"s_lshr_b32 s{S_T1}, s2, 3")
    p.s(f"s_add_u32 s{S_T0}, s{S_T0}, s{S_T1}")
    p.s(f"s_and_b32 s{S_T0}, s{S_T0}, {15 if int(E('KROT', '5')) else 0}")
    p.s(f"s_lshl_b32 s{S_KOFF}, s{S_T0}, 13")
    p.s(f"s_mov_b32 s{S_M0KVP}, s{S_M0KV}")
    p.s(f"s_mov_b32 s{S_M0KVP+1}, s{S_M0W}")
    p.s(f"s_mov_b32 s{S_KVP}, s{S_KVN}")
    p.s(f"s_mov_b32 s{S_EM}, 0")
    p.s(f"s_movk_i32 s{S_ED}, 2048")
    p.s(f"s_mov_b32 s{S_TAB}, 0x83210549")
    srd(SRD_E, 0, 1 << 27)
    p.s(f"s_and_b32 s{S_U}, s{S_W}, 1")
    p.s(f"s_lshl_b32 s{S_T0}, s{S_B}, 2")
    p.s(f"s_lshr_b32 s{S_T1}, s{S_G}, 1")
    p.s(f"s_add_u32 s{S_T0}, s{S_T0}, s{S_T1}")
    p.s(f"s_and_b32 s{S_T1}, s{S_G}, 1")
    p.s(f"s_lshl_b32 s{S_WFP}, s{S_T1}, 7")
    p.s(f"s_add_u32 s{S_WFP}, s{S_WFP}, s{S_T0}")
    p.s(f"s_lshl2_add_u32 s{S_WFP}, s{S_WFP}, s{S_W}")
    p.s(f"s_lshl3_add_u32 s{S_WFP}, s{S_WFP}, {WFLG}")
    p.s(f"s_mul_i32 s{S_T0}, s{S_T0}, 40960")
    p.s(f"s_mul_i32 s{S_PT}, s{S_T1}, 20480")
    p.s(f"s_add_u32 s{S_PT}, s{S_PT}, s{S_T0}")
    p.s(f"s_lshl_b32 s{S_EW}, s{S_W}, 10")
    p.s(f"s_add_u32 s{S_PT}, s{S_PT}, s{S_EW}")
    p.s(f"s_add_u32 s{S_EW}, s{S_EW}, {STG}")
    p.s(f"s_mul_i32 s{S_T1}, s{S_T1}, 640")
    p.s(f"s_add_u32 s{S_WT}, s{S_T1}, s{S_T0}")
    p.s(f"s_mul_i32 s{S_T1}, s{S_W}, {8 * 1280}")
    p.s(f"s_add_u32 s{S_WT}, s{S_WT}, s{S_T1}")
    p.s(f"s_mov_b32 s{S_WEND}, {0x7c | ((0xfff << (15 + PFS)) & 0x7fff0000):#x}")
    if PFN:
        p.s(f"s_lshl_b32 s94, s{S_W}, 10")
        p.s(f"s_add_u32 s94, s94, {XRING + XSL}")
        p.s(f"s_sub_u32 s{S_PFO}, s{S_KOFF}, {8192 * PFN // 2 * (PFS - 1) + 65536 * (int(E('PFD', '0')) == 1)}")
        if int(E("PFD", "0")) == 2:
            p.s(f"s_add_u32 s{S_T0}, s{S_B}, s{S_G}")
            p.s(f"s_add_u32 s{S_T0}, s{S_T0}, s{S_P}")
            p.s(f"s_and_b32 s{S_T0}, s{S_T0}, 3")
            p.s(f"s_lshl_b32 s{S_T0}, s{S_T0}, 11")
            p.s(f"s_add_u32 s{S_PFO}, s{S_PFO}, s{S_T0}")
        p.s(f"s_mov_b32 s{S_PFB}, " + (f"s{S_KVP}" if PFS == 1 else f"{OOB:#x}"))
    if int(E("TOUCH", "1")):
        p.add(Ins(f"buffer_load_dword v{V_T+4}, off, s[{SRD_K}:{SRD_K+3}], s{S_KVN} nt", "vml", [], [V_T + 4], tag="touch"))
        p.add(Ins(f"buffer_load_dword v{V_T+5}, off, s[{SRD_V}:{SRD_V+3}], s{S_KVN} nt", "vml", [], [V_T + 5], tag="touch"))
        p.add(Ins(f"buffer_load_dword v{V_T+7}, off, s[{SRD_WS}:{SRD_WS+3}], s{S_PT} sc1", "vml", [], [V_T + 7], tag="touch"))
        if int(E("TOUCHO", "1")): p.add(Ins(f"buffer_load_dword v{V_T+6}, off, s[{SRD_WO}:{SRD_WO+3}], s{S_WT}", "vml", [], [V_T + 6], tag="touch"))
    p.s(f"s_sub_u32 s{S_WT}, s{S_WT}, 256")
    FWARM = int(E("FWARM", "3"))
    if FWARM & 1:
        p.s(f"s_lshl2_add_u32 s{S_T0}, s{S_B}, s{S_W}")
        p.s(f"s_and_b32 s{S_T1}, s{S_G}, 3")
        p.s(f"s_lshl2_add_u32 s{S_T0}, s{S_T0}, s{S_T1}")
        p.s(f"s_lshl_b32 s{S_T0}, s{S_T0}, 6")
        p.s(f"s_add_u32 s{S_T0}, s{S_T0}, {PFLG}")
        p.add(Ins(f"buffer_load_dword v{V_JUNK}, off, s[{SRD_WS}:{SRD_WS+3}], s{S_T0} sc1", "vm", [], [], tag="touch"))
    if FWARM & 4:
        p.s(f"s_lshl2_add_u32 s{S_T0}, s{S_B}, s{S_W}")
        p.s(f"s_mul_i32 s{S_T1}, s{S_T0}, {PARTB // 4}")
        p.s(f"s_add_u32 s{S_T1}, s{S_T1}, {PART}")
        p.add(Ins(f"buffer_load_dword v{V_JUNK}, off, s[{SRD_WS}:{SRD_WS+3}], s{S_T1} sc1 nt", "vm", [], [], tag="touch"))
        p.s(f"s_mul_i32 s{S_T1}, s{S_T0}, {36 * 1280}")
        p.add(Ins(f"buffer_load_dword v{V_JUNK}, off, s[{SRD_OUT}:{SRD_OUT+3}], s{S_T1} sc1 nt", "vm", [], [], tag="touch"))
    if FWARM & 8:
        p.vop("v_mul_u32_u24", V_T + 3, f"{PARTB // 64}", L)
        p.s(f"s_mul_i32 s{S_T1}, s{S_B}, {PARTB}")
        p.s(f"s_add_u32 s{S_T1}, s{S_T1}, {PART}")
        p.s(f"s_cmp_eq_u32 s{S_W}, 0")
        p.s(f"s_cselect_b32 s{S_T1}, s{S_T1}, {OOB:#x}")
        p.add(Ins(f"buffer_load_dword v{V_JUNK}, v{V_T+3}, s[{SRD_WS}:{SRD_WS+3}], s{S_T1} offen sc1 nt", "vm", [V_T + 3], [], tag="touch"))
    if FWARM & 2: p.add(Ins(f"buffer_load_dword v{V_JUNK}, off, s[{SRD_WS}:{SRD_WS+3}], s{S_WFP} sc1", "vm", [], [], tag="touch"))
    p.s(f"s_or_b32 s{S_T0}, s2, s{S_W}")
    p.s(f"s_cmp_lg_u32 s{S_T0}, 0")
    p.s(f"s_cbranch_scc1 {name}_nononce")
    p.s(f"s_memrealtime s[{S_NON}:{S_NON+1}]")
    p.s("s_waitcnt lgkmcnt(0)")
    p.s(f"s_or_b32 s{S_NON+1}, s{S_NON+1}, 0x80000000")
    p.raw(f"v_mov_b32 v{V_T}, s{S_NON}")
    p.raw(f"v_mov_b32 v{V_T+1}, s{S_NON+1}")
    p.s("s_mov_b64 exec, 1")
    p.raw(f"buffer_store_dwordx2 v[{V_T}:{V_T+1}], v{V_LIN}, s[{SRD_DBG}:{SRD_DBG+3}], 0 offen sc1")
    p.s("s_mov_b64 exec, -1")
    p.label(f"{name}_nononce")
    p.s(f"s_mov_b32 s{S_SPIN}, 0x40000")
    p.s(f"s_mov_b32 s{S_PH}, 0")
    if QT:
        p.s(f"s_add_u32 s{S_T0}, s{S_B}, s{S_G}")
        p.s(f"s_and_b32 s{S_T0}, s{S_T0}, {QT[1]}")
        p.s(f"s_add_u32 s{S_T0}, s{S_T0}, {QT[0]}")
        p.s(f"s_lshl_b32 s{S_TI}, 1, s{S_T0}")
    if PROF in (2, 3): p.s("s_mov_b32 s93, 32")
    p.s(f"s_mov_b64 s[{S_BAD}:{S_BAD+1}], 0")
    p.s(f"s_mov_b32 s{S_CS}, {f2u(CSCALE):#x}")
    p.s(f"s_mov_b32 s{S_CS+1}, s{S_CS}")
    p.s(f"s_mov_b32 s{S_LO}, {f2u(2.0 ** -24):#x}")
    p.s(f"s_mov_b32 s{S_HI}, {f2u(2.0 ** 16):#x}")
    p.vop("v_and_b32", M, "15", L)
    p.vop("v_lshrrev_b32", G, "4", L)
    p.vop("v_lshrrev_b32", a, "3", M)
    p.vop("v_mul_u32_u24", c, "3", a)
    p.vop("v_xor_b32", c, c, G)
    p.vop("v_and_b32", b, "7", M)
    p.vop("v_lshlrev_b32", b, "6", b)
    p.vop("v_lshl_add_u32", b, c, "4", b)
    p.vop("v_lshl_add_u32", b, a, "10", b)
    p.vop("v_add_u32", V_AX8, f"{XRING}", b)
    p.vop("v_lshl_add_u32", V_AX, U, "13", V_AX8)
    p.vop("v_add_u32", V_AW + 5, f"{XALT}", b)
    p.vop("v_lshl_add_u32", V_AW + 4, U, "13", V_AW + 5)
    p.vop("v_and_b32", c, "0x1ff", V_LIN)
    p.vop("v_lshl_add_u32", c, VV, "10", c)
    p.vop("v_lshl_add_u32", c, P, "9", c)
    p.vop("v_lshl_add_u32", c, U, "3", c)
    p.vop("v_add_u32", V_WR, f"{STG + 4096}", c)
    p.vop("v_and_b32", b, "0xffffffcf", b)
    p.vop("v_bfe_u32", a, M, "2", "1")
    p.vop("v_lshlrev_b32", a, "1", a)
    p.vop("v_xor_b32", a, a, G)
    p.vop("v_lshl_add_u32", b, a, "4", b)
    p.vop("v_lshl_add_u32", V_AK, P, "13", b)
    p.vop("v_lshrrev_b32", a, "1", G)
    p.vop("v_lshlrev_b32", b, "10", a)
    p.vop("v_lshl_add_u32", b, R8, "6", b)
    p.vop("v_and_b32", c, "1", L)
    p.vop("v_lshl_add_u32", b, c, "3", b)
    p.vop("v_bfe_u32", c, L, "1", "1")
    p.vop("v_lshl_add_u32", b, c, "4", b)
    p.vop("v_and_b32", c, "1", G)
    p.vop("v_lshl_add_u32", b, c, "5", b)
    p.vop("v_lshl_add_u32", V_AV0, P, "13", b)
    p.vop("v_xor_b32", V_AV1, "32", V_AV0)
    p.vop("v_lshl_add_u32", a, U, "12", V_AV0)
    p.vop("v_xor_b32", b, "32", a)
    p.vop("v_xor_b32", c, "4096", a)
    p.vop("v_xor_b32", d, "4096", b)
    for i, r in enumerate((a, b, c, d)): p.vop("v_add_u32", V_AW + i, f"{WRING}", r)
    for ops in (w_ops(2), x_ops(1), w_ops(3)):
        for f, _ in ops: f(p)
    stamp(p, 23)
    return p

def R128(d, a, off): return lambda p: p.ds_read128(d, a, off)
def TR(d, a, off): return lambda p: p.ds_tr(d, a, off)

class Pool:
    def __init__(self, sc, base, n):
        self.sc = sc; self.regs = base if isinstance(base, list) else [base + 4 * k for k in range(n)]; n = len(self.regs); self.n = n; self.last = [None] * n; self.i = 0; self.frags = []
    def frag(self, tile, mk_reads, consumers, as_b=False):
        k = self.i % self.n; self.i += 1
        r = self.regs[k]
        war = self.last[k]
        for (d, o, c, tag) in consumers:
            if as_b: self.sc.mfma(d, o, r, c, tag)
            else: self.sc.mfma(d, r, o, c, tag)
        self.last[k] = consumers[-1][3]
        self.frags.append((tile, mk_reads(r), consumers[0][3], war))

LEAD = int(E("LEAD", "9"))
LEADB = int(E("LEADB", "8"))
BGAP = int(E("BGAP", "4"))

def sstamp(p):
    p.s(f"s_memrealtime s[{S_TM}:{S_TM+1}]")
    p.s(f"s_memtime s[{S_TM+2}:{S_TM+3}]")
    p.wait_lgkm0()
    p.s("s_mov_b32 s99, m0")
    p.s("s_mov_b32 m0, s93")
    p.s("s_add_u32 s93, s93, 1")
    p.raw(f"v_writelane_b32 v0, s{S_TM}, m0")
    p.raw(f"v_writelane_b32 v255, s{S_TM+2}, m0")
    p.s("s_mov_b32 m0, s99")

QT = [int(x) for x in E("QT", "2,0,0,0,3").split(",") if x]
def qmod(name):
    p = Prog()
    KVS = [-1] * 4 + [int(x) for x in E("KVS", "37").split(",")]
    sc = Sched(p, budget=int(E("QBUD", "8")), late_extra=8)
    sc.group["dma"] = "vm"; sc.pace["vm"] = int(E("QPACE", "4"))
    sc.maxds = int(E("QMAXDS", "1"))
    pool = Pool(sc, A_QP, NPOOL)
    for h in range(40):
        r = h & 1; st = (h >> 1) & 1
        for k in range(8):
            off = (h % 4) * 16384 + ((k >> 1) & 1) * 512
            ad = V_AW + 2 * (k >> 2) + (k & 1)
            cons = [(QA(r, n, k), Xf(st, n), QA(r, n, k) if h > 1 else None, ("Q", h, k, n)) for n in range(5 if k < 4 else 4)]
            if int(E("QSNK", "1")) and k % 2 == 0: cons.reverse()
            pool.frag(h, lambda rg: [TR(rg, ad, off), TR(rg + 2, ad, off + 2048)], cons)
    mt = lambda i: sc.m[max(0, min(i, len(sc.m) - 1))][4]
    XT = int(E("XT", "1")); A_XT = A_Q + 40
    def xreads(i, kh):
        return [R128(A_XT + 4 * n if (XT and kh and i) else Xf(kh, n), (V_AX if i else V_AW + 4) + (n >> 2), (n if n < 4 else 8) * 2048 + kh * 512) for n in range(5)]
    for fi, (h, reads, cons, war) in enumerate(pool.frags):
        c0 = 36 * h
        tau = c0 - LEADB
        taun = c0 + 36 - LEADB
        if fi % 8 == 0:
            def bar(p, h=h):
                p.comment(f"---- q step {h}")
                tags = [("W", h)]
                if h == 0: tags.append(("X", 0))
                if h % 4 == 3 and h < 39: tags.append(("X", (h + 1) // 4))
                if h % 4 == EKP[3] and 4 <= h < 36: tags.append(("WOP", h // 4 - 1))
                if QT and h % 4 in QT[3:] and h >= 1:
                    p.s(f"s_lshr_b32 s{S_TI}, s{S_TI}, 1")
                    p.s("s_cbranch_scc0 1")
                    p.raw(f"s_waitcnt vmcnt({QT[2]})")
                p.wait_vm(tags, lgkm0=True)
                if "b" not in ABL or h < 4: p.barrier()
                if PROF == 2 and h % 2 == 0: sstamp(p)
                if int(E("QSL", "0")) and (h < 3 or int(E("QSA", "0"))): p.raw(f"s_nop {int(E('QSL', '0'))}")
            ops = []
            if h % 4 == 1 - XT and 4 <= h < 36: ops += x_ops(h // 4 + 1)
            if 1 <= h < 37: ops += w_ops(h + 3)
            if int(E("XW", "0")) and h % 4 == 0 and 4 <= h < 36: ops = xw_ops(h // 4 + 1, h + 3)
            if "d" in ABL: ops = []
            nb = len(ops)
            if h < 36: ops = ek_ops(h) + ops if (h % 4 == 0 and int(E("EKF", "0"))) else ops + ek_ops(h)
            nb = len(ops) - nb
            if h % 4 == EKP[3] and 4 <= h < 36:
                for r in range(15, -1, -1): sc.fill("rw", lambda p, r=r: p.amov(A_Q + 4 + r, A_Q + r), 4, after=dict(tag=("BAR", h), delay=14))
                for i in range(2): sc.fill("rw", TR(A_Q + 2 * i, V_WR, i * 2048), 4, ds=True, before=mt(taun - BGAP), lead=2)
                sc.fill("rw", lambda p: p.vop("v_xor_b32", V_WR, "4096", V_WR), 4, before=mt(taun - 1))
            if h == 36 and "S" not in ABL: ops += [(wst, 20)]
            for k, x in enumerate(KVS):
                if x == h: ops += kv_ops(32 + k)
            sc.fill("rd", bar, 8, before=mt(tau), early=0 if h else None, tag=("BAR", h))
            QD = int(E("QD", "14")) - 4 * nb * int(E("QDE", "0")) if len(ops) - nb <= 4 else int(E("QD2", "0"))
            fill_dma(sc, ops, dict(tag=("BAR", h), delay=QD), mt(taun - 1))
            if h == 0:
                for k, fn in enumerate(xreads(0, 0)): sc.fill("rd", fn, 4, ds=True, before=mt(0))
            xr = []; aft = [("BAR", h)]
            if h % 4 == 3 and h < 39: xr = xreads((h + 1) // 4, 0)
            if XT and xr: xr += xreads((h + 1) // 4, 1)
            if XT and h % 4 == 0 and h:
                for r in range(20): sc.fill("cp", lambda p, r=r: p.ar(Xf(1, 0) + r, A_XT + r), 4, after=dict(tag=("Q", h - 1, 7, 3), delay=1), before=mt(c0 + 62), lead=0, early=int(E("XCE", "20")))
            elif h % 4 == 0:
                xr = xreads(h // 4, 1)
                if h: aft.append(("Q", h - 1, 7, 3))
            for j, fn in enumerate(xr):
                sc.fill("rx", fn, 4, ds=True, after=aft, before=mt(taun - BGAP), lead=(2 if XT else 3) * (len(xr) - j))
        for k, fn in enumerate(reads):
            if "r" in ABL and h >= 2: continue
            bf = cons
            if sc.idx[cons] > taun - BGAP: bf = mt(taun - BGAP)
            sc.fill("rd", fn, 4, ds=True, after=war if k == 0 else None, before=bf, lead=LEAD if bf is cons else 0, early=int(E("QEARLY", "99")))
    def lastbar(p):
        p.comment("---- q step 40")
        p.wait_lgkm0(); p.barrier()
        p.add(Ins(f"buffer_load_dwordx2 v[{V_NV}:{V_NV+1}], off, s[{SRD_DBG}:{SRD_DBG+3}], 0 sc1", "vml", [], [V_NV, V_NV + 1], tag="non"))
    sc.fill("rd", lastbar, 8, before=mt(36 * 40 - LEADB), early=0)
    sc.run()
    stamp(p, 1)
    fstart = len(p.ins)
    TB = V_O + 144
    cnt = [0]
    def fin(r, n, t, i):
        s0 = QA(r, n, 2 * t)
        if r:
            tb = TB + 8 * (cnt[0] & 1); cnt[0] += 1
            for x in range(8): p.ar(tb + x, s0 + x)
            s0 = tb
        dst = V_S + 4 * i
        for x in range(0, 8, 2): p.pkmul(s0 + x, s0 + x, f"s[{S_CS}:{S_CS+1}]")
        for x in range(4): p.cvtpk(dst + x, s0 + 2 * x, s0 + 2 * x + 1)
        return dst
    p.v(f"v_lshl_add_u32 v{V_E0}, s{S_W}, 12, v{V_LIN}", [V_E0], [V_LIN])
    p.vop("v_add_u32", V_E0, f"{XRING}", V_E0)
    p.vop("v_xor_b32", V_E1, "4096", V_E0)
    p.vop("v_and_b32", V_E2, "0xfffffcf0", V_E0)
    p.vop("v_bfe_u32", V_T, V_LIN, "9", "1")
    p.vop("v_lshl_add_u32", V_E2, V_T, "8", V_E2)
    p.vop("v_bfe_u32", V_T, V_LIN, "8", "1")
    p.vop("v_lshl_add_u32", V_E2, V_T, "3", V_E2)
    for r in range(2):
        for t in range(2): p.ds_write2(V_E2, fin(r, 4, t, 2 * r + t), (2 * r + t) * 1024)
    for r in range(2):
        base = A_QN if r else A_Q
        for n in range(4):
            FL = [int(x) for x in E("FLD", "02,02").split(",")[r]]
            ds = {}
            for t in range(4):
                ds[t] = fin(r, n, t, 4 + (n & 1) * 4 + t)
                if t in FL: p.ds_write2(V_E2, ds.pop(t), 16384 + t * 1024)
            for f in (p.swap32, p.swap16):
                for d in ds.values(): f(d, d + 2); f(d + 1, d + 3)
            for t in FL: p.ds_read128(Qf(n, t, base), V_E0, 16384 + t * 1024)
            for t, d in ds.items():
                for x in range(4): p.aw(Qf(n, t, base) + x, d + x)
            if r == 0 and n == 1:
                p.raw(f"s_waitcnt lgkmcnt({2 * len(FL)})"); p.barrier()
                for t in range(2): p.ds_read128(Qf(4, t), V_E0, t * 1024)
                for t in range(2): p.ds_read128(Qf(4, 2 + t), V_E1, t * 1024)
    for t in range(2): p.ds_read128(Qf(4, t, A_QN), V_E0, 2048 + t * 1024)
    for t in range(2): p.ds_read128(Qf(4, 2 + t, A_QN), V_E1, 2048 + t * 1024)
    p.vop("v_mov_b32", V_T, "0x3f803f80")
    for r in range(4): p.aw(A_ONE + r, V_T)
    sprinkle([(p, fstart)], sum([kv_ops(32 + k) for k in range(len(KVS), 8 - T7)], []), 0.0, float(E("QSH", "1.0")))
    stamp(p, 26)
    get_nonce(p, f"{name}_n1", V_T)
    stamp(p, 27)
    p.wait_vm("wst")
    stamp(p, 28)
    publish(p, f"s{S_WFP}", 0, V_T)
    stamp(p, 29)
    z = p
    z.s(f"s_lshl_b32 s{S_PF}, s{S_P}, 12")
    z.s(f"s_lshl_b32 s{S_T1}, s{S_G}, 9")
    z.s(f"s_add_u32 s{S_PF}, s{S_PF}, s{S_T1}")
    z.s(f"s_add_u32 s{S_PF}, s{S_PF}, {WFLG}")
    z.vop("v_lshrrev_b32", V_AX, "1", V_LIN)
    for n in range(5): z.vop("v_mov_b32", V_DA + n, f"{DROP:#x}")
    ti_init(z, 0)
    z.vop("v_mov_b32", V_WP, f"{OOB:#x}")
    stamp(z, 2)
    return p

def a_mfmas(sc, pool, qh):
    AV = (V_AV0, V_AV1)
    has8 = lambda u: (u & 1) == qh
    for pos, (kind, u) in enumerate(KVSEQ):
        sb = (pos % 4) * 16384
        ns = [0, 1, 2, 3] + ([4] if has8(u) else [])
        if kind == "K":
            for kt in range(2):
                for ks in range(4):
                    off = sb + kt * 2048 + ((ks >> 1) ^ qh) * 4096 + (ks & 1) * 512
                    cons = []
                    for n in ns:
                        d = XS(u & 1, n) if kt == 0 else YS(n)
                        cons.append((d, Qf(n, ks), d if ks else None, ("S", u, kt, ks, n)))
                    pool.frag(pos, lambda r: [R128(r, V_AK, off)], cons)
                SCH = int(E("SCH", "4"))
                k0 = len(sc.m) - 4 * len(ns)
                sc.m[k0:] = sorted(sc.m[k0:], key=lambda x: (x[4][3] // SCH, x[4][4], x[4][3]))
                for k in range(k0, len(sc.m)): sc.idx[sc.m[k][4]] = k
        else:
            first = lambda n: u == 0 if n < 4 else u == qh
            for n in ns: sc.mfma(La(n), A_ONE, XS(u & 1, n), None if first(n) else La(n), ("L", u, n))
            for m in range(8):
                e, mp = m & 1, m >> 1
                off = sb + (mp >> 1) * 4096 + (mp & 1) * 512
                oa = lambda n: Oa(n, m if n < 4 else m ^ (4 * qh))
                cons = [(oa(n), XS(u & 1, n), None if first(n) else oa(n), ("PV", u, m, n)) for n in ns]
                if int(E("SNK", "1")) and m % 2 == 0: cons.reverse()
                pool.frag(pos, lambda r: [TR(r, AV[e], off), TR(r + 2, AV[e], off + 2048)], cons)

def a_taus():
    cs = []
    for qh in range(2):
        sc = Sched(Prog()); pool = Pool(sc, A_POOL, NPOOL); a_mfmas(sc, pool, qh)
        c = {}
        for (pos, _, cons, _) in pool.frags: c.setdefault(pos, sc.idx[cons])
        c[32] = len(sc.m) + LEADB - 3
        cs.append(c)
    return [min(cs[0][j], cs[1][j]) - LEADB for j in range(33)]

def aentry(name):
    p = Prog()
    p.label(f"{name}_A")
    p.s(f"s_mov_b32 s{S_KB}, s{S_KVN}")
    p.s(f"s_mov_b32 s{SRD_C+2}, 0x8000000")
    p.s(f"s_add_u32 s{S_KVN}, s{S_KVN}, {2 << 17}")
    p.s(f"s_cmp_eq_u32 s{S_PH}, 0")
    p.s(f"s_cselect_b32 s{S_M0KVP}, s{S_M0KV}, {DROP:#x}")
    p.s(f"s_cselect_b32 s{S_M0KVP+1}, s{S_M0W}, {DROP:#x}")
    p.s(f"s_cselect_b32 s{S_KVP}, s{S_KVN}, {OOB:#x}")
    p.s(f"s_cselect_b32 s{S_WT2}, {OOB:#x}, s{S_WT}")
    p.s(f"s_cmp_eq_u32 s{S_U}, 1")
    p.s(f"s_cbranch_scc1 {name}_A1")
    return p

def tile_addr(p, base, dst):
    p.s(f"s_cmp_lt_u32 s{S_G}, 5")
    p.s(f"s_cselect_b32 s{S_T0}, 1, 0")
    p.s(f"s_xor_b32 s{S_T0}, s{S_T0}, s{S_U}")
    p.v(f"v_lshl_add_u32 v{dst}, s{S_T0}, 12, v{base}", [dst], [base])
    for n in range(1, 4): p.vop("v_add_u32", dst + n, f"{1024 * n}", dst)

S_TI = 96
TI = [[tuple(int(x) for x in y.split("+")) for y in z.split(",")] for z in E("TI", "0+0,4+7;-1+0,-1+0").split(";")]
def ti_init(p, r):
    for k, (b, sp) in enumerate(TI[r]):
        if b < 0 or TI[0][k] == (0, 0): continue
        p.s(f"s_add_u32 s{S_T0}, s{S_B}, s{S_G}")
        p.s(f"s_and_b32 s{S_T0}, s{S_T0}, {sp}")
        p.s(f"s_add_u32 s{S_T0}, s{S_T0}, {b}")
        p.s(f"s_lshl_b32 s{S_TI + k}, 1, s{S_T0}")
WLP = [int(x) for x in E("WLP", "0,0,0,1,1,1,2,2,2,3,3,3").split(",")]
def avm(pos):
    if pos >= 30: return None
    pat = [int(x) for x in E("AVM", "3,4").split(",")]
    h = [int(x) for x in E("AVMH", "").split(",") if x]
    if pos < len(h): return h[pos]
    return pat[pos % len(pat)] + WLP.count(pos - 1) * int(E("WLC", "1"))
RQ = [int(x) for x in E("RQH", "3,3,3,3" if T7 else "0,3,3,2").split(",")] + [int(x) for k in "123" for x in E("RQ" + k, "43434343")] + [int(x) for x in E("RQT", "4,4,4,4").split(",")]
STREAM = sum([kv_ops(k) for k in range(8 - T7, 40 - T7)], [])
for s_ in range(32): assert sum(RQ[:s_ + 1]) <= 4 * (s_ + T7)
def amod(name, qh):
    p = Prog()
    p.label(f"{name}_A{qh}")
    sc = Sched(p, budget=int(E("ABUD", "8")), late_extra=int(E("ALATE", "8")))
    sc.group["dma"] = "vm"; sc.pace["vm"] = int(E("APACE", "2"))
    pool = Pool(sc, A_POOL, NPOOL)
    a_mfmas(sc, pool, qh)
    tau = a_taus()
    mt = lambda i: sc.m[max(0, min(i, len(sc.m) - 1))][4]
    def add_bar(pos):
        def bar(p, pos=pos):
            p.comment(f"---- a step {pos}")
            if TI[0][pos % 2] != (0, 0) and pos < 30:
                p.s(f"s_lshr_b32 s{S_TI + pos % 2}, s{S_TI + pos % 2}, 1")
                p.s("s_cbranch_scc0 1")
                p.raw(f"s_waitcnt vmcnt({avm(pos) - 1})")
            if pos < 32: p.wait_vm(KVSEQ[pos], lgkm0=True, cap=avm(pos))
            else: p.wait_lgkm0()
            p.barrier()
            if pos % 4 == 0 and pos:
                for r in (V_AV0, V_AV1, V_AK): p.vop("v_xor_b32", r, "0x10000", r)
            if PROF == 3 and pos % 2 == 0 and pos < 32: sstamp(p)
        sc.fill("rd", bar, 8, before=mt(tau[pos]), early=0 if pos else None, tag=("BAR", pos))
        if pos < 32:
            ops = STREAM[sum(RQ[:pos]):sum(RQ[:pos + 1])]
            aft = ("BAR", pos); bf = mt(tau[pos + 1] - 1)
            span = tau[pos + 1] - max(tau[pos], 0)
            if pos in CPA: ops = [(code_touch, 8)] + ops
            if pos == WTP: ops = [(lambda p: w_touch(p, 0), 8), (lambda p: w_touch(p, 64), 8)][:WTN] + ops
            for k, op in enumerate(ops): fill_dma(sc, [op], dict(tag=aft, delay=(k * (span - 2)) // len(ops)), bf)
            for k in [k for k in range(12) if WLP[k] == pos]:
                for fn, kind, cost in split_ops([(wload(0, k, S_T2, S_WT2), 8)]):
                    sc.fill("dmp", fn, 8 if kind == "vm" else 4, after=dict(tag=aft, delay=(5 if WLP.count(pos) > 1 else 20) + 9 * (k - WLP.index(pos))), solo=(kind == "vm"), before=bf, lead=20)
            if pos == 30:
                WLS = int(E("WLS", "6"))
                last = ("S", 15, 1, 3, 4 if qh == 1 else 3)
                for k in range(12):
                    for fn, kind, cost in split_ops([(wload(0, 12 + k, S_T2, S_WT2), 8)]):
                        sc.fill("dmp", fn, 8 if kind == "vm" else 4, after=dict(tag=last, delay=2 + WLS * k), solo=(kind == "vm"), before=mt(sc.idx[last] + 12 + WLS * k), lead=9)
            if 26 <= pos < 30:
                t = pos - 26
                ws = [(V_DA + n, Qf(n, t, A_QN), t * 18432 + 1024) for n in range(4)]
                if t >> 1 == qh: ws.append((V_DA + 4, Qf(4, t & 1, A_QN), (t & 1) * 18432))
                for k, w in enumerate(ws):
                    sc.fill("dw", lambda p, w=w: p.ds_write(w[0], w[1], 4, w[2]), 8, solo=True, after=dict(tag=aft, delay=4 + k * ((span - 10) // len(ws))), before=mt(tau[pos + 1] - BGAP), lead=12)
            if pos == 31:
                for f in range(8): sc.fill("dw", R128(P0_B[f], V_LIN, IMG(f)), 4, ds=True, after=dict(tag=aft, delay=16 + 2 * f), before=mt(tau[32] - BGAP), lead=4)
    cur = None
    for (pos, reads, cons, war) in pool.frags:
        if pos != cur:
            cur = pos; add_bar(pos)
        for k, fn in enumerate(reads):
            bf = cons
            if sc.idx[cons] > tau[pos + 1] - BGAP: bf = mt(tau[pos + 1] - BGAP)
            sc.fill("rd", fn, 4, ds=True, after=war if k == 0 else None, before=bf, lead=LEAD if bf is cons else 0)
    add_bar(32)
    def V(fn, after=None, before=None, cost=4, lead=0): sc.fill("va", fn, cost, after=after, before=before, lead=lead)
    EDL = int(E("EDL", "3"))
    for u in range(16):
        ns = [0, 1, 2, 3] + ([4] if (u & 1) == qh else [])
        for kt in range(2):
            for n in ns:
                src = XS(u & 1, n) if kt == 0 else YS(n)
                dst = XS(u & 1, n) + 2 * kt
                for r in range(4):
                    V(lambda p, reg=src + r: p.exp(reg, reg), after=dict(tag=("S", u, kt, 3, n), delay=EDL), cost=8)
                bf = ("L", u, n)
                if kt == 1 and n < 4 and u < 15: bf = ("S", u + 1, 1, 0, n)
                V(lambda p, dst=dst, src=src: p.cvtpk(dst, src, src + 1))
                V(lambda p, dst=dst, src=src: p.cvtpk(dst + 1, src + 2, src + 3), before=bf, lead=2)
    sc.run()
    p.s(f"s_cmp_eq_u32 s{S_PH}, 0")
    p.s(f"s_cbranch_scc0 {name}_P0")
    if qh == 0: p.s(f"s_branch {name}_F")
    return p

RL, CHK, PX, AD, AL = V_S + 2, V_S + 12, V_S + 16, V_S + 48, V_S + 50
def f_addr(p):
    p.v(f"v_lshl_add_u32 v{AD}, s{S_W}, 12, v{V_LIN}", [AD], [V_LIN])
    p.vop("v_add_u32", AD, f"{MISC}", AD)
    p.vop("v_xor_b32", AD + 1, "4096", AD)
def f_bad(op, a, b):
    def f(p):
        p.add(Ins(f"{op} vcc, v{a}, {b}", "valu", [a], []))
        p.s(f"s_or_b64 s[{S_BAD}:{S_BAD+1}], s[{S_BAD}:{S_BAD+1}], vcc")
    return f
def f_rcp(n): return [lambda p: p.vop("v_rcp_f32", RL + 2 * n, RL + 2 * n, kind="trans"), lambda p: p.vop("v_mov_b32", RL + 2 * n + 1, RL + 2 * n)]
def f_range():
    return [lambda p: p.vop("v_max3_f32", V_S, RL, RL + 2, RL + 4), lambda p: p.vop("v_min3_f32", V_S + 1, RL, RL + 2, RL + 4),
            lambda p: p.vop("v_max3_f32", V_S, V_S, RL + 6, RL + 8), lambda p: p.vop("v_min3_f32", V_S + 1, V_S + 1, RL + 6, RL + 8),
            f_bad("v_cmp_nle_f32", V_S, f"s{S_HI}"), f_bad("v_cmp_nge_f32", V_S + 1, f"s{S_LO}")]
def f_fin(): return [lambda p: p.s(f"s_movk_i32 s{S_T2}, 0x207"), f_bad("v_cmp_class_f32", CHK, f"s{S_T2}")]
def f_norm(n, t):
    s0 = Oa(n, 2 * t)
    add = [lambda p, r=r: p.add(Ins(f"v_pk_add_f32 {vr(s0 + r, 2)}, {vr(s0 + r, 2)}, {vr(PX + 8 * t + r, 2)}", "valu", R(s0 + r, 2) | R(PX + 8 * t + r, 2), R(s0 + r, 2))) for r in range(0, 8, 2)] if n == 4 else []
    return add + [lambda p, r=r: p.pkmul(s0 + r, s0 + r, RL + 2 * n) for r in range(0, 8, 2)], [lambda p, r=r: p.cvtpk(s0 + r, s0 + 2 * r, s0 + 2 * r + 1) for r in range(4)]
def f_l8(): return [lambda p: p.vop("v_add_f32", RL + 8, RL + 8, V_S)] + f_rcp(4)
UNITS = [(n, t) for n in (0, 1, 2, 4, 3) for t in range(4 if n < 4 else 2)]
def afin(name):
    p = Prog()
    p.label(f"{name}_F")
    stamp(p, 5)
    poll_issue(p, V_AX, f"s{S_PF}", 0, V_NV)
    f_addr(p)
    for i in range(4): p.ds_write(AD + 1, Oa(4, 4 + i), 4, i * 1024)
    for i in range(2): p.vop("v_subrev_u32", AL + i, "16384", AD + i)
    p.ds_write(AL + 1, La(4), 1, 0)
    for n in range(5): p.ar(RL + 2 * n, La(n))
    for k in range(2):
        for n in range(4): f_rcp(n)[k](p)
    p.wait_lgkm0()
    for k, (n, t) in enumerate(UNITS):
        if k == 4:
            p.barrier()
            for i in range(4): p.ds_read128(PX + 4 * i, AD, i * 1024)
            p.ds_read32(V_S, AL, 0)
        if k == 11:
            for f in f_l8(): f(p)
        for f in sum(f_norm(n, t), []): f(p)
    for f in f_range(): f(p)
    p.s(f"s_mov_b32 s{S_PH}, 1")
    stamp(p, 6)
    for r in range(80):
        if r % 4 == 0 and r < 72: p.mfma(CHK, A_ONE, Oa(UNITS[r // 4][0], 2 * UNITS[r // 4][1]), CHK if r else None)
        p.amov(A_Q + r, A_QN + r)
    for n, t in UNITS:
        for r in range(4): p.aw(Qf(n, t, A_QN) + r, Oa(n, 2 * t) + r)
    for f in f_fin(): f(p)
    sprinkle([(p, 8)], STREAM[sum(RQ):], 0.0, float(E("ASH", "0.7")))
    code_touch(p)
    p.s(f"s_mul_i32 s{S_T0}, s{S_P}, 9216")
    p.vop("v_add_u32", V_DA + 4, f"s{S_T0}", V_LIN)
    tile_addr(p, V_DA + 4, V_DA)
    p.s(f"s_mul_i32 s{S_T0}, s{S_U}, 36864")
    p.vop("v_add_u32", V_DA + 4, f"s{S_T0}", V_DA + 4)
    p.s(f"s_lshr_b32 s{S_T0}, s{S_B}, 1")
    p.s(f"s_lshl4_add_u32 s{S_T0}, s{S_G}, s{S_T0}")
    p.s(f"s_lshl1_add_u32 s{S_T0}, s{S_T0}, s{S_P}")
    p.s(f"s_and_b32 s{S_T1}, s{S_B}, 1")
    p.s(f"s_lshl1_add_u32 s{S_T0}, s{S_T0}, s{S_T1}")
    p.s(f"s_lshl1_add_u32 s{S_T0}, s{S_T0}, s{S_U}")
    p.s(f"s_mul_i32 s{S_T0}, s{S_T0}, 5120")
    p.vop("v_min_u32", V_WP, f"{39 * 16}", V_LIN)
    p.v(f"v_lshl_add_u32 v{V_WP}, v{V_WP}, 3, s{S_T0}", [V_WP], [V_WP])
    psetup(p)
    ti_init(p, 1)
    poll_check(p, f"{name}_wpoll", V_AX, f"s{S_PF}", 0, V_NV)
    p.s(f"s_branch {name}_A")
    return p

P_R = ([A_X + 4 * i for i in range(10)] + [10, 14] + [A_Q + 4 * i for i in range(20)],
       [A_L + 4 * i for i in range(5)] + [A_POOL + 4 * i for i in range(6)] + [A_QN + 64 + 4 * i for i in range(4)] + [A_QN + 4 * i for i in range(16)] + [A_ONE])
P0_B = P_R[0][24:] + [A_QN + 4 * (i % 16) for i in range(64)]
def wload(j, i, so=None, sb=None, extra=0):
    def f(p):
        if i % 2 == 0: p.s(f"s_add_u32 s{so or S_SO}, s{sb or S_WT}, {(i >> 1) * 40960 + extra}")
        if "B" not in ABL: p.load4(P_R[j & 1][i], V_LIN, SRD_WS, f"s{so or S_SO}", (i & 1) * 1024, ("WT", j, i), "sc1")
    return f

def slow(name):
    SI, SC, SX, SWq, SKV, SD, SK = 56, 57, 58, 59, 88, 89, 90
    VW, VX, VK, VV_, VD = 28, 36, 37, 38, 39
    MX, NM, LA, QF, SS, FB, AC, RAW, FR = 40, 44, 48, 52, 68, 76, 84, 116, 180
    def ld(p, op, n, d, vo, srd, so, off):
        p.add(Ins(f"{op} {vr(d, n)}, v{vo}, s[{srd}:{srd+3}], s{so} offen offset:{off}", "vml", [vo], R(d, n), tag="sl"))
    p0 = Prog()
    p0.label(f"{name}_slow")
    p0.wait_all()
    M, G = MX, MX + 1
    p0.vop("v_bfe_u32", M, V_LIN, "4", "4")
    p0.vop("v_lshrrev_b32", G, "8", V_LIN)
    p0.vop("v_lshlrev_b32", VW, "16", G)
    p0.vop("v_lshl_add_u32", VW, M, "1", VW)
    for i in range(1, 8): p0.vop("v_add_u32", VW + i, f"{8192 * i}", VW)
    p0.s(f"s_movk_i32 s{S_T0}, 1280")
    p0.vop("v_mul_lo_u32", VX, M, f"s{S_T0}")
    p0.vop("v_lshl_add_u32", VX, G, "4", VX)
    p0.vop("v_lshlrev_b32", VK, "8", M)
    p0.vop("v_lshl_add_u32", VK, G, "3", VK)
    p0.vop("v_lshlrev_b32", VV_, "10", G)
    p0.vop("v_lshl_add_u32", VV_, M, "1", VV_)
    p0.s(f"s_mov_b32 s{SI}, 0")
    p1 = Prog()
    p1.label(f"{name}_sl_it")
    p1.s(f"s_cmp_ge_u32 s{SI}, 5")
    p1.s(f"s_cselect_b32 s{S_T0}, 2, 0")
    p1.s(f"s_cselect_b32 s{S_T1}, 5, 0")
    p1.s(f"s_cselect_b32 s{SD}, {73728}, 0")
    p1.s(f"s_sub_u32 s{S_T1}, s{SI}, s{S_T1}")
    p1.s(f"s_add_u32 s{S_T0}, s{S_T0}, s{S_P}")
    p1.s(f"s_mul_i32 s{S_T2}, s{S_P}, 9216")
    p1.s(f"s_add_u32 s{SD}, s{SD}, s{S_T2}")
    p1.s(f"s_lshl_b32 s{S_T2}, s{S_G}, 2")
    p1.s(f"s_add_u32 s{S_T0}, s{S_T0}, s{S_T2}")
    p1.s(f"s_lshl_b32 s{SWq}, s{S_T0}, 8")
    p1.s(f"s_lshl_b32 s{S_T2}, s{S_B}, 5")
    p1.s(f"s_add_u32 s{S_T0}, s{S_T0}, s{S_T2}")
    p1.s(f"s_lshl_b32 s{SKV}, s{S_T0}, 17")
    p1.s(f"s_lshl_b32 s{S_T0}, s{S_U}, 2")
    p1.s(f"s_add_u32 s{S_T0}, s{S_T0}, s{S_T1}")
    p1.s(f"s_cmp_lt_u32 s{S_G}, 5")
    p1.s(f"s_cselect_b32 s{S_T2}, 4, 0")
    p1.s(f"s_xor_b32 s{S_T2}, s{S_T2}, s{S_T0}")
    p1.s(f"s_add_u32 s{S_T2}, s{S_T2}, 1")
    p1.s(f"s_cmp_eq_u32 s{S_T1}, 4")
    p1.s(f"s_cselect_b32 s{S_T0}, 8, s{S_T0}")
    p1.s(f"s_cselect_b32 s{S_T2}, 0, s{S_T2}")
    p1.s(f"s_lshl_b32 s{S_T2}, s{S_T2}, 10")
    p1.s(f"s_add_u32 s{SD}, s{SD}, s{S_T2}")
    p1.vop("v_add_u32", VD, f"s{SD}", V_LIN)
    p1.s(f"s_mul_i32 s{S_T2}, s{S_B}, 9")
    p1.s(f"s_add_u32 s{S_T0}, s{S_T0}, s{S_T2}")
    p1.s(f"s_mul_i32 s{SX}, s{S_T0}, {16 * 1280}")
    for r in range(32): p1.vop("v_mov_b32", AC + r, "0")
    p1.s(f"s_mov_b32 s{SC}, 0")
    def pack(p):
        for r in range(32): p.vop("v_lshl_or_b32", FR + r, RAW + 2 * r + 1, "16", RAW + 2 * r)
    def loop_end(p, lab, n):
        p.s(f"s_add_u32 s{SC}, s{SC}, 1")
        p.s(f"s_cmp_lt_u32 s{SC}, {n}")
        p.s(f"s_cbranch_scc1 {lab}")
    p2 = Prog()
    p2.label(f"{name}_sl_q")
    ld(p2, "buffer_load_dwordx4", 4, FB, VX, SRD_X, SX, 0)
    for m in range(8):
        for i in range(8): ld(p2, "buffer_load_ushort", 1, RAW + 8 * m + i, VW + i, SRD_W, SWq, 32 * m)
        if m == 3: p2.wait_all()
    p2.wait_all()
    pack(p2)
    for m in range(8): p2.mfma(AC + 4 * m, FR + 4 * m, FB, AC + 4 * m)
    p2.s(f"s_add_u32 s{SX}, s{SX}, 64")
    p2.s(f"s_add_u32 s{SWq}, s{SWq}, {32 * 8192}")
    loop_end(p2, f"{name}_sl_q", 20)
    p3 = Prog()
    for r in range(32): p3.vop("v_mul_f32", AC + r, f"s{S_CS}", AC + r)
    for r in range(16): p3.cvtpk(QF + r, AC + 2 * r, AC + 2 * r + 1)
    for r in range(32): p3.vop("v_mov_b32", AC + r, "0")
    for r in range(4): p3.vop("v_mov_b32", LA + r, "0")
    p3.vop("v_mov_b32", MX, "0xff800000")
    p3.s(f"s_mov_b32 s{SK}, s{SKV}")
    p3.s(f"s_mov_b32 s{SC}, 0")
    def kfrags(p, dst, so):
        for ks in range(4):
            ld(p, "buffer_load_dwordx2", 2, dst + 4 * ks, VK, SRD_K, so, 64 * ks)
            ld(p, "buffer_load_dwordx2", 2, dst + 4 * ks + 2, VK, SRD_K, so, 64 * ks + 32)
    p4 = Prog()
    p4.label(f"{name}_sl_m")
    kfrags(p4, FR, SK)
    p4.wait_all()
    for ks in range(4): p4.mfma(SS, FR + 4 * ks, QF + 4 * ks, SS if ks else None)
    p4.vop("v_max3_f32", MX, MX, SS, SS + 1)
    p4.vop("v_max3_f32", MX, MX, SS + 2, SS + 3)
    p4.s(f"s_add_u32 s{SK}, s{SK}, 4096")
    loop_end(p4, f"{name}_sl_m", 32)
    p5 = Prog()
    for sw in (p5.swap32, p5.swap16):
        p5.vop("v_mov_b32", MX + 1, MX)
        sw(MX, MX + 1)
        p5.vop("v_max_f32", MX, MX, MX + 1)
    for r in range(4): p5.vop("v_sub_f32", NM + r, "0", MX)
    p5.s(f"s_mov_b32 s{SC}, 0")
    p6 = Prog()
    p6.label(f"{name}_sl_a")
    p6.s(f"s_add_u32 s{SK}, s{SKV}, 4096")
    kfrags(p6, FR, SKV)
    kfrags(p6, FR + 16, SK)
    p6.wait_all()
    for m in range(8):
        for i in range(8): ld(p6, "buffer_load_ushort", 1, RAW + 8 * m + i, VV_, SRD_V, SK if i >= 4 else SKV, 32 * m + 256 * (i & 3))
        if m == 3: p6.wait_all()
    for kt in range(2):
        for ks in range(4): p6.mfma(SS + 4 * kt, FR + 16 * kt + 4 * ks, QF + 4 * ks, SS + 4 * kt if ks else NM)
    for r in range(8): p6.exp(SS + r, SS + r)
    for r in range(4): p6.cvtpk(FB + r, SS + 2 * r, SS + 2 * r + 1)
    p6.wait_all()
    pack(p6)
    p6.mfma(LA, A_ONE, FB, LA)
    for m in range(8): p6.mfma(AC + 4 * m, FR + 4 * m, FB, AC + 4 * m)
    p6.s(f"s_add_u32 s{SKV}, s{SKV}, 8192")
    loop_end(p6, f"{name}_sl_a", 16)
    p7 = Prog()
    p7.vop("v_rcp_f32", LA, LA, kind="trans")
    for r in range(32): p7.vop("v_mul_f32", AC + r, AC + r, LA)
    for r in range(16): p7.cvtpk(QF + r, AC + 2 * r, AC + 2 * r + 1)
    for hf in range(2):
        p7.s(f"s_cmp_eq_u32 s{S_U}, {hf}")
        p7.s(f"s_cselect_b32 s{S_T0}, 0, s{S_T1}")
        p7.s(f"s_cmp_eq_u32 s{S_T0}, 4")
        p7.s(f"s_cbranch_scc1 {name}_sl_s{hf}")
        for t in (2 * hf, 2 * hf + 1): p7.ds_write(VD, QF + 4 * t, 4, t * 18432)
        p7.label(f"{name}_sl_s{hf}")
    p7.wait_all()
    p7.s(f"s_add_u32 s{SI}, s{SI}, 1")
    p7.s(f"s_cmp_lt_u32 s{SI}, 10")
    p7.s(f"s_cbranch_scc1 {name}_sl_it")
    p7.s(f"s_branch {name}_P2")
    body = [p1, p2, p2, p3, p4, p4, p5, p6, p6, p7]
    return [p0, p1, p2, p3, p4, p5, p6, p7], [p0] + body + body

S_ST = 62
S_PC, S_FO, S_PO = 71, 72, 73
S_OF = (4, 5, 6, 7, 74)
S_JA, S_JC, S_JO, S_WE = 77, 83, 52, 101
S_JE, S_EO = (79, 80), (61, 100)
def psetup(p):
    C, J, BW, OW = S_TM, S_TM + 1, S_TM + 2, S_TM + 3
    p.s(f"s_mul_i32 s{BW}, s{S_B}, {PARTB}")
    p.s(f"s_lshl_b32 s{S_T1}, s{S_W}, 11")
    p.s(f"s_add_u32 s{BW}, s{BW}, s{S_T1}")
    p.s(f"s_add_u32 s{BW}, s{BW}, {PART}")
    p.s(f"s_mul_i32 s{OW}, s{S_B}, {144 * 1280}")
    p.s(f"s_mul_i32 s{S_T1}, s{S_W}, 320")
    p.s(f"s_add_u32 s{OW}, s{OW}, s{S_T1}")
    p.s(f"s_sub_u32 s{S_T0}, s{S_G}, 5")
    p.s(f"s_cselect_b32 s{C}, s{S_G}, s{S_T0}")
    p.s(f"s_cselect_b32 s{J}, 0, 1")
    p.s(f"s_add_u32 s{S_ST}, s{BW}, {8 * 81920}")
    p.s(f"s_mul_i32 s{S_T0}, s{J}, {4 * 81920}")
    p.s(f"s_add_u32 s{S_ST+5}, s{BW}, s{S_T0}")
    p.s(f"s_sub_u32 s{S_ST+1}, s{BW}, s{S_T0}")
    p.s(f"s_add_u32 s{S_ST+1}, s{S_ST+1}, {4 * 81920}")
    for i in (2, 3, 4, 6, 7, 8): p.s(f"s_add_u32 s{S_ST+i}, s{S_ST+i-1}, 81920")
    p.s(f"s_lshl_b32 s{S_T0}, s{C}, 13")
    p.s(f"s_add_u32 s{S_JA}, s{S_ST+5}, s{S_T0}")
    p.s(f"s_mul_i32 s{S_JO}, s{J}, {64 * 1280}")
    p.s(f"s_add_u32 s{S_JO}, s{S_JO}, s{OW}")
    p.s(f"s_lshl_b32 s{S_T0}, s{C}, 6")
    p.s(f"s_add_u32 s{S_JO}, s{S_JO}, s{S_T0}")
    p.s(f"s_mul_i32 s{S_WE}, s{S_G}, {16 * 40960}")
    p.s(f"s_mul_i32 s{S_T0}, s{S_W}, 10240")
    p.s(f"s_add_u32 s{S_WE}, s{S_WE}, s{S_T0}")
    for k in range(5):
        p.s(f"s_add_u32 s{C}, s{C}, 1")
        p.s(f"s_cmp_eq_u32 s{C}, 5")
        p.s(f"s_cselect_b32 s{C}, 0, s{C}")
        if k == 0:
            p.s(f"s_lshl_b32 s{S_WT}, s{C}, 11")
            p.s(f"s_add_u32 s{S_WT}, s{S_WT}, s{S_WE}")
            p.s(f"s_add_u32 s{S_WE}, s{S_WE}, 10240")
        p.s(f"s_and_b32 s{S_T0}, s{J}, 1")
        p.s(f"s_lshl3_add_u32 s{S_T0}, s{C}, s{S_T0}")
        p.s(f"s_lshl_b32 s{S_OF[k]}, s{S_T0}, 10")
        if k:
            p.s(f"s_bitcmp1_b32 s{J}, 1")
            p.s(f"s_cselect_b32 s{S_T0}, 40960, 0")
            p.s(f"s_add_u32 s{S_OF[k]}, s{S_OF[k]}, s{S_T0}")
        if k > 1:
            p.s(f"s_bitcmp1_b32 s{J}, 2")
            p.s(f"s_cselect_b32 s{S_T0}, {AREA}, 0")
            p.s(f"s_add_u32 s{S_OF[k]}, s{S_OF[k]}, s{S_T0}")
        if k < 4:
            p.s(f"s_cmp_lt_u32 s{C}, 3")
            p.s(f"s_addc_u32 s{J}, s{J}, 1")
    p.s(f"s_bitcmp1_b32 s{J}, 0")
    p.s(f"s_cselect_b32 s{S_T0}, 0, 1024")
    p.s(f"s_add_u32 s{S_JC}, s{S_JA}, s{S_T0}")
    for k in range(2):
        p.s(f"s_add_u32 s{S_T2}, s{S_G}, {8 * k + 11}")
        p.s(f"s_and_b32 s{S_T0}, s{S_T2}, 3")
        p.s(f"s_add_u32 s{S_T0}, s{S_T0}, 4")
        p.s(f"s_lshr_b32 s{S_T1}, s{S_T2}, 2")
        p.s(f"s_sub_u32 s{S_T1}, s{S_T1}, 1")
        if k == 0:
            p.s(f"s_cmp_lt_u32 s{S_G}, 5")
            p.s(f"s_cselect_b32 s{S_T0}, 8, s{S_T0}")
            p.s(f"s_cselect_b32 s{S_T1}, s{S_G}, s{S_T1}")
        p.s(f"s_mul_i32 s{S_JE[k]}, s{S_T0}, 10")
        p.s(f"s_add_u32 s{S_JE[k]}, s{S_JE[k]}, s{S_T1}")
        p.s(f"s_lshl_b32 s{S_JE[k]}, s{S_JE[k]}, 13")
        p.s(f"s_add_u32 s{S_JE[k]}, s{S_JE[k]}, s{BW}")
        p.s(f"s_mul_i32 s{S_EO[k]}, s{S_T0}, 320")
        p.s(f"s_add_u32 s{S_EO[k]}, s{S_EO[k]}, s{S_T1}")
        p.s(f"s_lshl_b32 s{S_EO[k]}, s{S_EO[k]}, 6")
        p.s(f"s_add_u32 s{S_EO[k]}, s{S_EO[k]}, s{OW}")
    p.s(f"s_cmp_ge_u32 s{S_G}, 5")
    p.s(f"s_cselect_b32 s{S_JE[1]}, {OOB:#x}, s{S_JE[1]}")
    p.s(f"s_cselect_b32 s{S_EO[1]}, {OOB:#x}, s{S_EO[1]}")
    p.s(f"s_lshl2_add_u32 s{S_PO}, s{S_B}, s{S_W}")
    p.s(f"s_lshl_b32 s{S_PO}, s{S_PO}, 8")
    p.s(f"s_add_u32 s{S_PO}, s{S_PO}, {PFLG - 128 + OOB}")
    p.s(f"s_lshl3_add_u32 s{S_FO}, s{S_G}, s{S_PO}")
    p.s(f"s_mov_b32 s{S_PC}, 0")

def pmod(name):
    p = Prog()
    p.label(f"{name}_fb")
    p.wait_all()
    p.s(f"s_cmp_lg_u64 s[{S_BAD}:{S_BAD+1}], 0")
    p.s(f"s_cbranch_scc1 {name}_slow")
    p.label(f"{name}_P2")
    AO = (V_LIN, 2, 3)
    V_FA, V_OA = 4, 5
    PT, PT2 = 6, 8
    V_SA, V_JA, PT3 = 1, 25, 26
    SEL = 18
    POOL = [28 + 4 * k for k in range(16)]
    ACC = 92
    OWN = 124
    PK, SUM, JB = 132, 140, 188
    CT = 244
    p.wait_all()
    p.barrier()
    NL = int(E("PLEAD", "8"))
    def ooff(i, kq): return IMG(kq) + i * 1024
    for f in range(NL): p.ds_read128(POOL[f], AO[ooff(0, f) // 49152], ooff(0, f) % 49152)
    p.vop("v_mov_b32", V_SA, f"{OOB:#x}")
    s0 = len(p.ins)
    p.vop("v_mov_b32", V_JA, f"{OOB:#x}")
    p.vop("v_bfe_u32", V_FA, V_LIN, "4", "3")
    p.vop("v_lshlrev_b32", V_FA, "3", V_FA)
    p.vop("v_bfe_u32", CT, V_LIN, "4", "4")
    p.s(f"s_movk_i32 s{S_T0}, 1280")
    p.vop("v_mul_lo_u32", V_OA, CT, f"s{S_T0}")
    p.vop("v_lshrrev_b32", CT + 1, "8", V_LIN)
    p.vop("v_lshl_add_u32", V_OA, CT + 1, "4", V_OA)
    p.vop("v_mov_b32", PT2, f"s{S_NON}")
    p.vop("v_mov_b32", PT2 + 1, f"s{S_NON+1}")
    p.vop("v_and_b32", CT + 2, "1", CT)
    p.vop("v_lshlrev_b32", CT + 2, "4", CT + 2)
    p.s(f"s_movk_i32 s{S_T0}, 0x3f80")
    p.vop("v_lshlrev_b32", CT + 2, CT + 2, f"s{S_T0}")
    p.vop("v_lshrrev_b32", CT, "1", CT)
    p.vop("v_lshlrev_b32", CT + 1, "1", CT + 1)
    p.vop("v_sub_u32", CT, CT, CT + 1)
    for r in range(2):
        p.add(Ins(f"v_cmp_eq_u32 vcc, {r}, v{CT}", "valu", [CT], []))
        p.vop("v_mov_b32", SEL + r, "0")
        p.vop("v_mov_b32", SEL + 4 + r, "0")
        p.add(Ins(f"v_cndmask_b32 v{SEL+2+r}, 0, v{CT+2}, vcc", "valu", [CT + 2], [SEL + 2 + r]))
    setup = p.ins[s0:]
    def jload(q, jl, dst, own=S_JA):
        def f(p):
            so = S_JE[q - 4] if q >= 4 else S_T1 if q else own
            if 0 < q < 4 and jl == 0: p.s(f"s_add_u32 s{S_T1}, s{own}, {q * 81920}")
            if "J" not in ABL or own != S_JA or dst < JB: p.load4(dst, V_JA, SRD_WS, f"s{so}", jl * 1024, "job", E("JFL", "sc1"))
        return f
    def reduce(p, q, bufs, init=False):
        for e in range(2):
            for k, bf in enumerate(bufs): p.mfma(SUM + 8 * q + 4 * e, SEL + 2 - 2 * e, bf, None if (init and k == 0) else SUM + 8 * q + 4 * e)
    def next_off(): return [lambda p: p.vop("v_add_u32", V_SA, f"s{S_OF[0]}", V_LIN)] + [lambda p, k=k: p.s(f"s_mov_b32 s{S_OF[k]}, s{S_OF[k+1]}") for k in range(4)]
    def next_pair(p, d):
        p.s(f"s_add_u32 s{d}, s{S_WT}, 2048")
        p.s(f"s_sub_u32 s{S_T2}, s{S_WE}, 10240")
        p.s(f"s_cmp_eq_u32 s{d}, s{S_WE}")
        p.s(f"s_cselect_b32 s{d}, s{S_T2}, s{d}")
    def flag(p, off, tag):
        p.wait_vm(tag)
        p.s("s_mov_b64 exec, 1")
        p.store(PT2, 2, V_LIN, SRD_WS, f"s{S_FO}", off, tag="flag", flags="sc1")
        p.s("s_mov_b64 exec, -1")
    FPOS = int(E("FPOS", "56")); FPB = int(E("FPB", "190")); PPB = int(E("PPB", "244")); WSP = float(E("WSP", "6")); PLAT = int(E("PLAT", "60")); CPOS = int(E("CPOS", "206")); WST = int(E("WST", "4"))
    def one_pass(par):
        q = Prog()
        q.label(f"{name}_pass{par}")
        if PROF == 4: stamp(q, 32, S_PC)
        q.wait_vm(("WT", par, 15))
        sc = Sched(q, budget=int(E("PBUD", "8")), late_extra=8)
        for qn in ("wl", "st", "jl", "jp"): sc.group[qn] = "vm"
        sc.pace["vm"] = int(E("PPACE", "4"))
        pool = Pool(sc, POOL, 16)
        acc = lambda i: OWN if i == 8 else ACC + 8 * (i % 4)
        for i in range(9):
            a = acc(i)
            for kq in range(16):
                cons = [(a + 4 * e, P_R[par][2 * kq + e], a + 4 * e if kq else None, ("P", i, kq, e)) for e in range(2)]
                pool.frag(0, lambda r: [R128(r, AO[ooff(i, kq) // 49152], ooff(i, kq) % 49152)], cons, as_b=True)
        PG = int(E("PG", "4"))
        sc.m = [x for k in range(0, 288, 2 * PG) for x in sc.m[k:k + 2 * PG:2] + sc.m[k + 1:k + 2 * PG:2]]
        sc.idx = {x[4]: k for k, x in enumerate(sc.m)}
        mt = lambda i: sc.m[max(0, min(i, len(sc.m) - 1))][4]
        for f in range(NL, 144 + NL):
            (_, reads, cons, war) = pool.frags[f % 144]
            if f >= 144: war = pool.last[f % 16]
            if "R" not in ABL: sc.fill("rd", reads[0], 4, ds=True, after=war, before=mt(2 * (f - NL) + 1), early=2)
        for i in ((16, 22, 28) if PG == 1 else (16, 24) if PG <= 4 else (16,)): sc.fill("ww", lambda p, i=i: p.wait_vm(("WT", par, min(31, i + (5 if PG == 1 else 7 if PG <= 4 else 15)))), 4, before=mt(i), early=0)
        def su(p):
            next_pair(p, S_WT)
            if par == 0:
                p.s(f"s_cmp_eq_u32 s{S_PC}, 4")
                p.s(f"s_cselect_b32 s{S_WT}, {OOB:#x}, s{S_WT}")
        def keep(p):
            p.s(f"s_cmp_eq_u32 s{S_PC}, 4")
            for i in (5, 6, 7): p.s(f"s_cselect_b32 s{S_ST+i}, {OOB:#x}, s{S_ST+i}")
            p.s(f"s_cselect_b32 s{S_WT2}, s{S_PO}, {OOB:#x}")
        if par == 0: sc.fill("jr", keep, 16, after=mt(100), before=mt(150))
        fill_dma(sc, [(su, 0)], None, mt(WST + 2), queue="wl", lead=6)
        for i in range(32):
            fill_dma(sc, [(wload(1 - par, i), 0)], mt(WST + int(WSP * i)), mt(WST + 12 + int(WSP * i)), queue="wl", lead=10)
        sc.fill("jl", lambda p: poll_issue(p, V_FA, f"s{S_PO}", 0, PT), 8, before=mt(CPOS - PLAT), early=4, solo=SOLO)
        def cut(p):
            p.s(f"s_cmp_lt_u32 s{S_PC}, 2")
            p.s(f"s_cbranch_scc1 {name}_nojob{par}")
            if par == 0:
                p.s(f"s_cmp_eq_u32 s{S_PC}, 2")
                p.s(f"s_cbranch_scc1 {name}_pp0")
            p.label("@CUT")
        sc.fill("jr", cut, 8, before=mt(CPOS), early=0, tag="CUT")
        for x in [int(y) for y in E("PSL1", "").split(",") if y]: sc.fill("sl", lambda p: [p.raw("s_nop 15") for _ in range(int(E("PSN", "4")))], 16, before=mt(x), early=0)
        JSP = float(E("JSP", "5"))
        for k in range(12): fill_dma(sc, [(jload(k >> 1, k & 1, JB + 4 * k), 0)], ["CUT", mt(CPOS + int(JSP * k))], mt(CPOS + 12 + int(JSP * k)), queue="jl", lead=10)
        if par == 0: sc.fill("jp", lambda p: poll_issue(p, V_FA, f"s{S_WT2}", 64, PT3), 8, after=mt(PPB), before=mt(PPB + 8), lead=8, solo=SOLO)
        for i in range(-1, 8):
            a = acc(i % 9); d = PK + 4 * (i & 1) if (par == 0 and i >= 5) else a
            dl = mt(32 * i + 32 + 24)
            sc.fill("va", lambda p, a=a, d=d: p.cvtpk(d, a, a + 1), 4, after=dict(tag=("P", i, 15, 1), delay=4) if i >= 0 else mt(3), before=dl, lead=10)
            sc.fill("va", lambda p, a=a, d=d: p.cvtpk(d + 1, a + 2, a + 3), 4)
            sc.fill("va", lambda p, a=a, d=d: p.cvtpk(d + 2, a + 4, a + 5), 4)
            sc.fill("va", lambda p, a=a, d=d: p.cvtpk(d + 3, a + 6, a + 7), 4, tag=("CV", i), before=dl, lead=10)
            def st(p, d=d, i=i):
                if "O" not in ABL: p.store(d, 4, V_SA, SRD_WS, f"s{S_ST + i % 9}", 0, tag=("ps", i), flags=E("SFL", "sc1"))
            sc.fill("st", st, 8, after=("CV", i), before=dl, lead=20, tag=("ST", i), solo=SOLO)
            if i < 0:
                for fn in next_off(): sc.fill("va", fn, 4, after=("ST", -1))
        if PROF == 4:
            for k, x in enumerate(int(y) for y in E("PST", "66,74,224").split(",")): sc.fill(f"st{k}", lambda p, k=k: stamp(p, 33 + k, S_PC), 16, before=mt(x), early=0)
        sc.fill("fl", lambda p: flag(p, 0, ("ps", int(E("FTAG", "-1")))), 16, before=mt(FPOS), early=0)
        for r, x in ((S_FO, 64), (S_PC, 1)): sc.fill("fl", lambda p, r=r, x=x: p.s(f"s_add_u32 s{r}, s{r}, {x}"), 4, after=mt(272))
        if par:
            for r in (S_FO, S_PO): sc.fill("fl", lambda p, r=r: p.s(f"s_bitset0_b32 s{r}, 30"), 4)
        sc.run()
        if par == 0:
            q.s(f"s_cmp_eq_u32 s{S_PC}, 5")
            q.s(f"s_cbranch_scc1 {name}_ptail")
            q.s(f"s_add_u32 s{S_PO}, s{S_PO}, 64")
            q.s(f"s_cmp_eq_u32 s{S_PC}, 1")
            q.s(f"s_cbranch_scc1 {name}_fbw")
        else:
            q.s(f"s_add_u32 s{S_PO}, s{S_PO}, 64")
            q.s(f"s_branch {name}_pass0")
        k = next(i for i, x in enumerate(q.ins) if x.text.startswith("@CUT"))
        q2 = Prog(); q2.label(f"{name}_nojob{par}"); q2.ins += q.ins[k + 1:]; q.ins = q.ins[:k]
        blk = Prog()
        poll_check(blk, f"{name}_pp{par}", V_FA, f"s{S_PO}", 0, PT)
        red = Prog()
        if par == 0:
            blk.vop("v_mov_b32", V_JA, V_LIN)
            blk.s(f"s_cmp_eq_u32 s{S_PC}, 2")
            blk.s(f"s_cbranch_scc1 {name}_nojob{par}")
        red.vop("v_add_u32", V_JA, f"{40960 if par else AREA}", V_LIN)
        for c in range(6): reduce(red, c, [JB + 8 * c, JB + 8 * c + 4], par == 1)
        fb = Prog()
        if par == 0: flag(fb, 64, ("ps", 4))
        return q, fb, blk, red, q2
    def first_pass():
        q = Prog()
        q.label(f"{name}_P0")
        stamp(q, 9)
        if "F" in ABL: q.s(f"s_mov_b32 s{S_BAD}, 1")
        if "G" in ABL:
            q.s(f"s_cmp_eq_u32 s{S_W}, 2")
            q.s(f"s_cselect_b32 s{S_BAD}, 1, 0")
        sc = Sched(q, budget=int(E("P0BUD", "8")), late_extra=8)
        for qn in ("wl", "st"): sc.group[qn] = "vm"
        sc.pace["vm"] = int(E("P0PACE", "3"))
        acc = [V_S + 32, V_S + 40, 92, 100, 108, 116, 132, 140, OWN]
        POOL2 = POOL[:8] + [148 + 4 * k for k in range(4)] + POOL[12:]
        reg = lambda f: P0_B[f] if f < 72 else POOL2[f % 16] if f < 144 else POOL[f % 16]
        fk = lambda f: ((f % 72) // 8, f % 8 + 8 * ((f // 72) & 1))
        base = []
        for f0 in range(0, 144, 4):
            for e in range(2):
                for f in range(f0, f0 + 4):
                    i, kq = fk(f); a = acc[i] + 4 * e
                    base.append((a, P_R[0][2 * kq + e], reg(f), a if kq else None, ("P", f, e)))
        units = UNITS
        C0, CS, MB = int(E("P0C0", "22")), float(E("P0CS", "5.8")), int(E("P0MB", "12"))
        cpos = {C0 + int(CS * k) + (int(E("P0C8", "0")) if k >= 12 else 0): k for k in range(18)}
        for j, m in enumerate(base):
            if j in cpos:
                k = cpos[j]; sc.mfma(CHK, A_ONE, Oa(units[k][0], 2 * units[k][1]), CHK if k else None, ("CHK", k))
            sc.mfma(*m)
        bt = lambda j: base[min(j, 287)][4]
        for i in range(2, 9): assert sc.idx[("CHK", (acc[i] - V_O) // 8)] + 1 < sc.idx[bt(16 * i)]
        for f in range(8, 144 + NL):
            i, kq = fk(f)
            aft = [("P", f - 16, 1)] if (f >= 24 and not 72 <= f < 88) else []
            if f == 8: aft.append("AO")
            if f == 12: aft.append("XW")
            if f == 72: aft.append("MID")
            j = 2 * (f - NL) + 1
            if f >= 72: j = max(j, 144 - MB + 2 + f - 72)
            sc.fill("rd", R128(reg(f), AO[ooff(i, kq) // 49152], ooff(i, kq) % 49152), 4, ds=True, after=aft, before=bt(j), early=2)
        def V(fn, cost=4, **kw): sc.fill("va", fn, cost, **kw)
        sc.fill("ww", lambda p: p.wait_vm(("WT", 0, 15)), 4, before=bt(10), early=0)
        def each(fn):
            z = Prog(); fn(z)
            return [lambda p, x=x: p.add(x) for x in z.ins]
        V(lambda p: p.vop("v_add_u32", AO[1], "49152", V_LIN))
        V(lambda p: p.vop("v_add_u32", AO[2], "98304", V_LIN), tag="AO")
        for fn in each(f_addr): V(fn)
        for i in range(4): V(lambda p, i=i: p.ds_write(AD + 1, Oa(4, 4 + i), 4, i * 1024), 8, solo=True)
        V(lambda p: p.s(f"s_mul_i32 s{S_T0}, s{S_U}, 73728"))
        V(lambda p: p.s(f"s_sub_u32 s{S_T0}, {73728 + 36864}, s{S_T0}"))
        V(lambda p: p.vop("v_add_u32", AL + 1, f"s{S_T0}", V_DA + 4))
        V(lambda p: p.ds_write(AL + 1, La(4), 1, 0), ds=True, tag="XW")
        for n in range(5): V(lambda p, n=n: p.ar(RL + 2 * n, La(n)), tag=("AR", n))
        for n in range(5): V(lambda p, n=n: p.vop("v_add_u32", V_DA + n, "73728", V_DA + n), tag=("DA", n))
        def wr(p, k):
            n, t = units[k]
            p.ds_write(V_DA + n, Oa(n, 2 * t), 4, t * 18432 + (1024 if n < 4 else 0))
        for n in range(4): V(f_rcp(n)[0], 8); V(f_rcp(n)[1], tag=("RC", n))
        l8 = f_l8(); V(l8[0], after=dict(tag="PX", delay=8)); V(l8[1], 8); V(l8[2], tag=("RC", 4), before=("CHK", 10))
        ct = lambda k, d: sc.m[sc.idx[("CHK", k)] + d][4]
        for k, (n, t) in enumerate(units):
            pk, cv = f_norm(n, t)
            sc.fill("pk", lambda p, k=k, pk=pk: (wr(p, k - 1) if k else None, [fn(p) for fn in pk]), 8, solo=True, after=[("RC", n)] + ([("DA", 4)] if k else []),
                    before=ct(k - 1, 1) if k else ct(0, -5), early=0, lead=99, tag=("PK", k))
            for j, fn in enumerate(cv): sc.fill("c1", fn, 4, after=("PK", k), before=ct(k, -1), lead=0)
        sc.fill("pk", lambda p: wr(p, 17), 8, solo=True, before=ct(17, 1), early=0, lead=99, tag="W17")
        for j, fn in enumerate(f_range()): V(fn, 8 if j >= 4 else 4)
        sc.fill("bx", lambda p: p.barrier(), 4, after=[("P", 12, 0), ("DA", 4)], before=bt(int(E("P0BX", "34"))), early=0)
        for i in range(4): sc.fill("bx", R128(PX + 4 * i, AD, i * 1024), 4, ds=True, before=bt(60))
        sc.fill("bx", lambda p: p.ds_read32(V_S, V_DA + 4, 0), 4, ds=True, before=bt(60), tag="PX")
        V(lambda p: p.vop("v_bfe_u32", V_T + 1, V_LIN, "4", "2"))
        V(lambda p: p.vop("v_lshlrev_b32", V_T + 1, "12", V_T + 1))
        V(lambda p: p.vop("v_add_u32", V_T + 1, f"{MISC}", V_T + 1))
        c5 = f_fin()
        V(c5[0]); V(c5[1], 8, after=dict(tag=("CHK", 17), delay=2))
        V(lambda p: (p.s(f"s_or_b32 s{S_T0}, s{S_BAD}, s{S_BAD+1}"), p.vop("v_mov_b32", V_T, f"s{S_T0}")), 8)
        V(lambda p: p.ds_write(AD, V_T, 1, 0), ds=True, after="W17", before=bt(144 - MB - 4), lead=2)
        def mid(p):
            p.wait_vm(("WT", 0, 31), lgkm0=True); p.barrier()
            stamp(p, 16)
            p.ds_read32(V_T + 2, V_T + 1, 0)
        V(mid, 8, before=bt(144 - MB), early=0, tag="MID")
        def chk(p):
            p.add(Ins(f"v_cmp_ne_u32 vcc, 0, v{V_T+2}", "valu", [V_T + 2], []))
            p.s("s_cmp_lg_u64 vcc, 0")
            p.s(f"s_cbranch_scc1 {name}_fb")
        V(chk, 8, before=bt(146), early=0, tag="OK")
        for fn in next_off(): V(fn, before=bt(160))
        k = 0
        while k < len(setup):
            n = 4 if setup[k].text.startswith("v_cmp") else 1
            V(lambda p, g=setup[k:k + n]: [p.add(Ins(x.text, x.kind, x.rd, x.wr)) for x in g], 4 * n); k += n
        for i in range(8):
            a = acc[i]; dl = bt(144 + 16 * i + 16 + 14)
            sc.fill("cv", lambda p, a=a: p.cvtpk(a, a, a + 1), 4, after=["OK", dict(tag=("P", 72 + 8 * i + 7, 1), delay=3)], before=dl, lead=10)
            sc.fill("cv", lambda p, a=a: p.cvtpk(a + 1, a + 2, a + 3), 4)
            sc.fill("cv", lambda p, a=a: p.cvtpk(a + 2, a + 4, a + 5), 4)
            sc.fill("cv", lambda p, a=a: p.cvtpk(a + 3, a + 6, a + 7), 4, tag=("CV", i), before=dl, lead=10)
            def st(p, a=a, i=i):
                if "O" not in ABL: p.store(a, 4, V_SA, SRD_WS, f"s{S_ST+i}", 0, tag=("ps", i), flags=E("SFL", "sc1"))
            sj = int(E("P0S0", "200")) + int(E("P0SS", "8")) * i
            sc.fill("st", st, 8, after=[("CV", i), bt(sj)], before=bt(max(sj + 8, 144 + 16 * i + 30)), lead=20, tag=("ST", i), solo=SOLO)
        if WTP >= 100:
            for k in range(WTN): sc.fill("wt", lambda p, k=k: w_touch(p, 64 * k), 8, after=bt(WTP - 100 + 4 * k), before=bt(WTP - 92 + 4 * k), solo=True)
        for x in [int(y) for y in E("PSL0", "").split(",") if y]: sc.fill("sl", lambda p: [p.raw("s_nop 15") for _ in range(int(E("PSN", "4")))], 16, before=bt(x), early=0)
        W1 = float(E("P0W1", "5.0")); W2 = float(E("P0W2", "3.0"))
        for i in range(8): fill_dma(sc, [(wload(0, 24 + i), 0)], bt(17 + int(W1 * i)), bt(30 + int(W1 * i)), queue="wl", lead=4)
        for i in range(32):
            j = 17 + int(W1 * (8 + i)) if i < 15 else 146 + int(W2 * (i - 15))
            if i == 0: fill_dma(sc, [(lambda p: next_pair(p, S_WT2), 0)], None, bt(j), queue="wl", lead=4)
            fill_dma(sc, [(wload(1, i, sb=S_WT2), 0)], [bt(j), ("AR", 4)] + (["OK"] if i >= 15 else []), bt(j + 13), queue="wl", lead=4)
        sc.fill("fl", lambda p: p.s(f"s_mov_b32 s{S_WT}, s{S_WT2}"), 4, after=bt(275))
        for r, x in ((S_PO, 64), (S_FO, 64), (S_PC, 1)): sc.fill("fl", lambda p, r=r, x=x: p.s(f"s_add_u32 s{r}, s{r}, {x}"), 4, after=bt(275))
        sc.run()
        q.s(f"s_branch {name}_pass1")
        return q
    p.wait_lgkm0()
    p.s(f"s_branch {name}_pass0")
    pre = p
    p0 = first_pass()
    pe, po = one_pass(0), one_pass(1)
    p = Prog()
    p.label(f"{name}_ptail")
    stamp(p, 17)
    p.vop("v_add_u32", V_JA, f"{AREA + 40960}", V_LIN)
    poll_check(p, f"{name}_pp4", V_FA, f"s{S_PO}", 64, PT3, 0)
    stamp(p, 18)
    for c in range(4): jload(c, 0, POOL[8 + c], S_JC)(p)
    for k in range(4): jload(4 + (k >> 1), k & 1, POOL[12 + k])(p)
    stamp(p, 19)
    for c in (4, 5, 0, 1, 2, 3):
        if c < 4:
            for r in range(8): p.vop("v_add_f32", SUM + 8 * c + r, SUM + 8 * c + r, (ACC + 8 * (c + 1) if c < 3 else OWN) + r)
        reduce(p, c, [JB + 8 * c, JB + 8 * c + 4])
    stamp(p, 20)
    def out(c):
        a = SUM + 8 * c
        for r in range(4): p.cvtpk(a + r, a + 2 * r, a + 2 * r + 1)
        if 0 < c < 4: p.s(f"s_add_u32 s{S_JO}, s{S_JO}, {16 * 1280}")
        p.store(a, 4, V_OA, SRD_OUT, f"s{S_JO if c < 4 else S_EO[c - 4]}", 0, tag="out", flags=E("OFL", ""))
    for c in range(6):
        reduce(p, c, [POOL[8 + c]] if c < 4 else POOL[4 + 2 * c:6 + 2 * c])
        if c: out(c - 1)
    out(5)
    if PROF:
        p.wait_all()
        stamp(p, 21)
        p.s(f"s_getreg_b32 s{S_TM}, hwreg(HW_REG_HW_ID)")
        p.s(f"s_getreg_b32 s{S_TM+1}, hwreg(HW_REG_XCC_ID)")
        p.raw(f"v_writelane_b32 v0, s{S_TM}, 24")
        p.raw(f"v_writelane_b32 v0, s{S_TM+1}, 25")
        p.s(f"s_lshl_b32 s{S_T0}, s2, 2")
        p.s(f"s_add_u32 s{S_T0}, s{S_T0}, s{S_W}")
        p.s(f"s_lshl_b32 s{S_T0}, s{S_T0}, 8")
        p.s(f"s_add_u32 s{S_T0}, s{S_T0}, {PROFOFF}")
        p.vop("v_lshrrev_b32", PT, "2", V_LIN)
        p.store(0, 1, PT, SRD_WS, f"s{S_T0}", 0)
        p.s(f"s_add_u32 s{S_T0}, s{S_T0}, 0x40000")
        p.store(255, 1, PT, SRD_WS, f"s{S_T0}", 0)
        if E("ENC"):
            a_, b_ = E("ENC").split(",")
            if int(E("ENCW", "77")) >= 0:
                p.s(f"s_cmp_lg_u32 s2, {int(E('ENCW', '77'))}")
                p.s(f"s_cbranch_scc1 {name}_end")
            if a_ == "n": p.s(f"s_mov_b32 s56, s{S_NON}")
            else: p.raw(f"v_readlane_b32 s56, v0, {a_}")
            if b_ == "n": p.s(f"s_mov_b32 s57, s{S_NON}")
            else: p.raw(f"v_readlane_b32 s57, v0, {b_}")
            p.raw("s_nop 4")
            p.s("s_sub_u32 s57, s57, s56")
            p.s("s_lshl_b32 s57, s57, 3")
            p.s("s_add_u32 s57, s57, 12000")
            p.label(f"{name}_enc")
            p.s("s_memrealtime s[58:59]")
            p.raw("s_waitcnt lgkmcnt(0)")
            p.s(f"s_sub_u32 s58, s58, s{S_NON}")
            p.s("s_cmp_lt_u32 s58, s57")
            p.s(f"s_cbranch_scc1 {name}_enc")
        if PROF == 5:
            p.s(f"s_cmp_lg_u32 s2, 77")
            p.s(f"s_cbranch_scc1 {name}_end")
            p.s(f"s_cmp_lg_u32 s{S_W}, 0")
            p.s(f"s_cbranch_scc1 {name}_end")
            p.raw("v_readlane_b32 s56, v0, 0")
            for k, ix in enumerate([23, 1, 2, 5, 6, 9, 10, 16, 17, 18, 20, 21]):
                p.raw(f"v_readlane_b32 s57, v0, {ix}")
                p.raw("s_nop 3")
                p.s("s_sub_u32 s57, s57, s56")
                p.raw(f"v_mov_b32 v30, s57")
                p.raw(f"buffer_store_dword v30, off, s[{SRD_DBG}:{SRD_DBG+3}], 0 offset:{8 + 4 * k}")
                p.raw("s_nop 1")
    p.label(f"{name}_end")
    p.raw("s_endpgm")
    rest = [po[0], po[4], pe[0], pe[2], pe[4], *po, *pe, p]
    fw = Prog(); fw.label(f"{name}_fbw"); fw.wait_all(); fw.s(f"s_branch {name}_pass1")
    return [p0, *pe, *po, p, pre, fw], [p0] + rest, [pre, pe[0], pe[4], fw] + rest

def gen(name):
    pro = prologue(name)
    Q = qmod(name)
    AE = aentry(name)
    A = [amod(name, qh) for qh in range(2)]
    F = afin(name)
    P, PS, PS2 = pmod(name)
    SL, SLS = slow(name)
    segs = [pro, Q, AE, A[0], A[1], F] + P + SL
    sims = [[(x, 1) for x in [pro, Q, AE, A[qh], F, AE, A[qh]] + PS] for qh in range(2)]
    sims.append([(x, 1) for x in SLS + PS2])
    lines, stats = finalize([(x, 1) for x in segs], sims=sims)
    if int(E("ROLL", "1")):
        lines = roll(lines, "; ---- a step", 8, S_LOOP, f"{name}_aloop")
        lines = roll(lines, "; ---- q step", 4, S_LOOP, f"{name}_qloop")
    lines += [f"{name}_last:", f".if {name}_last-{name}_pc < {65536 + CPO}", f".fill ({65536 + CPO}-({name}_last-{name}_pc))/4, 4, 0xbf810000", ".endif", f".if {name}_end-{name}_pc > {65536 + CPO}", '.warning "code range"', ".endif"]
    return [f".globl {name}", ".p2align 8", f".type {name},@function", f"{name}:"] + lines, stats
```

```python
from asmlib import *
import math, struct, os
E = os.environ.get
PROF = int(E("PROF", "0"))
ABL = E("ABL", "")
def f2u(f): return struct.unpack("<I", struct.pack("<f", f))[0]
CSCALE = math.log2(math.e) / math.sqrt(128.0)
NWG = 256
LDS_BYTES = 163840
XSL = 18432
XRING = 131072
XALT = 65536 - XSL
WRING = 65536
MISC = 147456
def IMG(kq): return (kq >> 3) * 73728 + (kq & 3) * 18432 + ((kq >> 2) & 1) * 9216
DROP = 0x30000
OOB = 0x40000000
WOT = 0
PART = 128 * 40960
AREA = 18 * 40960
PARTB = 2 * AREA
WFLG = PART + 32 * PARTB
PFLG = WFLG + 8192
WSBYTES = PFLG + 128 * 256
PROFOFF = 0x4000000

SRD_X, SRD_K, SRD_V, SRD_W, SRD_WS, SRD_WO, SRD_OUT, SRD_DBG = 8, 12, 16, 20, 24, 28, 32, 36
S_W = 3
S_T0, S_T1, S_B, S_G, S_P, S_T2 = 40, 41, 42, 43, 44, 45
S_CS, S_NON, S_SPIN, S_PH, S_GRP, S_SO = 46, 48, 50, 51, 52, 53
S_BAD = 54
S_KOFF, S_VOFF, S_KB, S_KVN, S_M0KV, S_WFP = 56, 57, 58, 59, 60, 61
S_WOFF, S_WB, S_XOFF, S_XB = 62, 63, 65, 66
S_M0W, S_M0X8 = 75, 72
S_WT, S_PT, S_PF, S_RD, S_OUTO = 76, 77, 78, 79, 80
S_LO, S_HI = 81, 82
S_TM = 84
S_VB = 88
S_M0KVP, S_KVP, S_M0D, S_U = 89, 91, 94, 95
S_LOOP = 92
S_WT2 = 98

V_DK, V_DV, V_DW, V_DX = 1, 5, 9, 13
V_AK, V_AV0, V_AV1, V_AX, V_AX8, V_LIN = 18, 19, 20, 21, 22, 24
V_E0, V_E1, V_E2 = 25, 26, 27
V_S = 28
V_AW = V_S + 40
V_O = 84
V_T = 244
V_DA = V_T + 3
V_NV = 252
V_JUNK = 254
A_Q, A_QN, A_L, A_ONE, A_POOL, A_X = 256, 336, 416, 436, 440, 472
A_QP = 480
NPOOL = 8
def Qf(n, ks, base=A_Q): return base + (n * 4 + ks) * 4
def Oa(n, m): return V_O + (n * 8 + m) * 4
def XS(par, n): return V_S + (par * 4 + n) * 4 if n < 4 else V_S + 48
def YS(n): return V_S + 32 + n * 4 if n < 4 else V_S + 52
def La(n): return A_L + 4 * n
def Xf(st, t): return V_S + (st * 5 + t) * 4
def QA(r, n, m): return (A_QN if r else V_O) + (n * 8 + m) * 4

def stamp(p, idx, dyn=None):
    if not PROF: return
    p.s(f"s_memrealtime s[{S_TM}:{S_TM+1}]")
    p.s(f"s_memtime s[{S_TM+2}:{S_TM+3}]")
    p.wait_lgkm0()
    if dyn is None:
        p.raw(f"v_writelane_b32 v0, s{S_TM}, {idx}")
        p.raw(f"v_writelane_b32 v255, s{S_TM+2}, {idx}")
    else:
        p.s("s_mov_b32 s99, m0")
        p.s(f"s_lshl_b32 m0, s{dyn}, 2")
        p.s(f"s_add_u32 m0, m0, {idx}")
        p.raw(f"v_writelane_b32 v0, s{S_TM}, m0")
        p.raw(f"v_writelane_b32 v255, s{S_TM+2}, m0")
        p.s("s_mov_b32 m0, s99")

KVSEQ = [("K", 0)]
for u in range(15): KVSEQ += [("K", u + 1), ("V", u)]
KVSEQ += [("V", 15)]
KVPOS = {t: i for i, t in enumerate(KVSEQ)}
DYN = (10, 30)
SRD_C = SRD_WO
S_ROT, S_C, S_D = S_KOFF, S_VOFF, S_VB
def kv_ops(pos):
    pre = pos >= 32; pos %= 32
    kind, u = KVSEQ[pos]
    dyn = DYN[0] <= pos <= DYN[1] and not pre
    ops = []
    for j in range(4):
        def f(p, j=j):
            if dyn:
                if j == 0:
                    if pos == DYN[0]:
                        p.s(f"s_add_u32 s{S_C}, s{S_ROT}, {u * 8192}")
                        p.s(f"s_and_b32 s{S_C}, s{S_C}, 0x1ffff")
                        p.s(f"s_mov_b32 s{S_D}, {16384 if kind == 'V' else -8192}")
                        p.s(f"s_mov_b32 s{S_M0D}, {(pos % 8) * 16384}")
                    p.s(f"s_cmp_gt_i32 s{S_D}, 0")
                    p.s(f"s_cselect_b64 s[{SRD_C}:{SRD_C+1}], s[{SRD_V}:{SRD_V+1}], s[{SRD_K}:{SRD_K+1}]")
                    p.s(f"s_add_u32 m0, s{S_M0KV}, s{S_M0D}")
                    p.s(f"s_add_u32 s{S_SO}, s{S_KB}, s{S_C}")
                if "D" not in ABL: p.dmao(V_DV + j, SRD_C, f"s{S_SO}", j * 1024, (kind, u), "nt")
                if j == 0: p.s(f"s_add_u32 s{S_C}, s{S_C}, s{S_D}")
                if j == 1:
                    p.s(f"s_and_b32 s{S_C}, s{S_C}, 0x1ffff")
                    p.s(f"s_sub_u32 s{S_D}, 8192, s{S_D}")
                if j == 2:
                    p.s(f"s_add_u32 s{S_M0D}, s{S_M0D}, 16384")
                    p.s(f"s_and_b32 s{S_M0D}, s{S_M0D}, 0x1ffff")
                return
            if j == 0:
                if pre: p.s(f"s_add_u32 m0, s{S_M0KVP + (pos >> 2)}, {(pos % 4) * 16384}")
                else: p.s(f"s_add_u32 m0, s{S_M0KV}, {(pos % 8) * 16384}")
                p.s(f"s_add_u32 s{S_SO}, s{S_ROT}, {u * 8192}")
                p.s(f"s_and_b32 s{S_SO}, s{S_SO}, 0x1ffff")
                p.s(f"s_add_u32 s{S_SO}, s{S_SO}, s{S_KVP if pre else S_KB}")
            if "D" not in ABL: p.dmao(V_DV + j, SRD_K if kind == "K" else SRD_V, f"s{S_SO}", j * 1024, (kind, u), "nt")
        ops.append((f, 8))
    return ops
def w_ops(h):
    ops = []
    for j in range(4):
        def f(p, j=j):
            if j == 0:
                p.s(f"s_add_u32 m0, s{S_M0W}, {(h % 4) * 16384}")
                p.s(f"s_add_u32 s{S_SO}, s{S_WB + (h & 1)}, s{S_WOFF}")
            if "W" not in ABL: p.dmao(V_DW + j, SRD_W, f"s{S_SO}", j * 1024, ("W", h))
            if j == 1 and h % 2 == 1: p.s(f"s_add_u32 s{S_WOFF}, s{S_WOFF}, {32 * 8192}")
            if j == 2 and h % 4 == 3:
                p.s(f"s_cmp_ge_u32 s{S_WOFF}, {640 * 8192}")
                p.s(f"s_cselect_b32 s{S_WOFF}, 0, s{S_WOFF}")
        ops.append((f, 12 if j == 0 or (j == 2 and h % 4 == 3) else 8 if j == 1 and h % 2 else 4))
    return ops
def xw_ops(i, h):
    def X(j):
        def f(p):
            p.s(f"s_add_u32 m0, s{S_M0KV if j < 4 else S_M0X8}, {XRING}")
            if j == 0: p.s(f"s_add_u32 s{S_T1}, s{S_XB}, s{S_XOFF}")
            p.dmao(V_DX + j, SRD_X, f"s{S_T1}", (j & 3) * 1024, ("X", i))
            if j == 1: p.s(f"s_add_u32 s{S_XOFF}, s{S_XOFF}, 128")
            if j == 2:
                p.s(f"s_cmp_ge_u32 s{S_XOFF}, 1280")
                p.s(f"s_cselect_b32 s{S_XOFF}, 0, s{S_XOFF}")
        return (f, 8)
    w = w_ops(h)
    W = lambda j: ((lambda p: ((p.s(f"s_add_u32 m0, s{S_M0W}, {(h % 4) * 16384}") if j else None), w[j][0](p))), 8)
    return [X(0), W(0), X(1), W(1), X(2), W(2), X(3), W(3), X(4)]
def x_ops(i):
    ops = []
    sb = XRING if i else XALT
    for j in range(5):
        def f(p, j=j):
            if j == 0:
                p.s(f"s_add_u32 m0, s{S_M0KV}, {sb}")
                p.s(f"s_add_u32 s{S_SO}, s{S_XB}, s{S_XOFF}")
            if "X" not in ABL: p.dmao(V_DX + j, SRD_X, f"s{S_SO}", (j & 3) * 1024, ("X", i), E("XFL", ""))
            if j == 1: p.s(f"s_add_u32 s{S_XOFF}, s{S_XOFF}, 128")
            if j == 2:
                p.s(f"s_cmp_ge_u32 s{S_XOFF}, 1280")
                p.s(f"s_cselect_b32 s{S_XOFF}, 0, s{S_XOFF}")
            if j == 3:
                p.s(f"s_add_u32 m0, s{S_M0X8}, {sb}")
                p.nop(0)
        ops.append((f, 12 if j in (0, 2, 3) else 8 if j == 1 else 4))
    return ops

SRD_E = 4
S_EM, S_ED, S_TAB, S_ES, S_WEND, S_EW = 67, 68, 69, 70, 71, 73
STG = 0x26000
V_WR = V_O + 144
EKP = [int(x) for x in E("EKP", "1,2,1,2").split(",")]
PFP = [int(x) for x in E("PFP", "")]; PFN = len(PFP)
PFS = int(E("PFS", "1"))
S_PFO, S_PFB = 74, 83
def ek_ops(h):
    it = h // 4
    tag = KVSEQ[(it - 1) // 2]
    def kp(p):
        p.s(f"s_and_b32 s{S_ES}, s{S_TAB}, 0x7000")
        p.s(f"s_add_u32 s{S_ES}, s{S_ES}, s{S_ROT}")
        p.s(f"s_and_b32 s{S_ES}, s{S_ES}, 0x1ffff")
        p.s(f"s_add_u32 s{S_ES}, s{S_ES}, s{S_KVP}")
        if PFS > 1 and not PFN:
            p.s(f"s_bitcmp1_b32 s{S_WEND}, 16")
            p.s(f"s_cselect_b32 s{S_ES}, s{S_ES}, {OOB:#x}")
        p.s(f"s_bitcmp1_b32 s{S_TAB}, 15")
        p.s(f"s_cselect_b64 s[{SRD_E}:{SRD_E+1}], s[{SRD_V}:{SRD_V+1}], s[{SRD_K}:{SRD_K+1}]")
        p.s(f"s_lshr_b32 s{S_T0}, s{S_TAB}, 4")
        p.s(f"s_lshl_b32 s{S_TAB}, s{S_TAB}, 28")
        p.s(f"s_or_b32 s{S_TAB}, s{S_TAB}, s{S_T0}")
    def k0(p):
        p.s(f"s_add_u32 m0, s{S_M0KV}, s{S_EM}")
        if "D" not in ABL: p.dmao(V_DV, SRD_E, f"s{S_ES}", 0, tag, "nt")
    def k1(p):
        p.s(f"s_add_u32 m0, s{S_M0KV}, s{S_EM}")
        p.s(f"s_add_u32 s{S_EM}, s{S_EM}, s{S_ED}")
        if "D" not in ABL: p.dmao(V_DV + 1, SRD_E, f"s{S_ES}", 1024, tag, "nt")
        p.s(f"s_xor_b32 s{S_ED}, s{S_ED}, {2048 ^ 14336}")
    def wo(p):
        p.s(f"s_mov_b32 m0, s{S_EW}")
        p.s(f"s_bitcmp1_b32 s{S_WEND}, 0")
        p.s(f"s_cselect_b32 s{S_T0}, s{S_WT}, {OOB:#x}")
        p.dmao(V_DX, SRD_WO, f"s{S_T0}", 0, ("WOP", it), E("WOFL", "nt"))
        p.s(f"s_xor_b32 s{S_EW}, s{S_EW}, 4096")
        p.s(f"s_lshr_b32 s{S_WEND}, s{S_WEND}, 1")
        p.s(f"s_add_u32 s{S_WT}, s{S_WT}, 128")
    def none(p): p.add(Ins(f"buffer_load_dword v{V_JUNK}, off, s[{SRD_DBG}:{SRD_DBG+3}], 0 offset:256", "vm", [], [], tag="none"))
    def pf(srd, du, j, last):
        def f(p):
            p.s(f"s_add_u32 s{S_T0}, s{S_PFO}, {du * 8192}")
            p.s(f"s_and_b32 s{S_T0}, s{S_T0}, 0x1ffff")
            p.s(f"s_add_u32 s{S_T0}, s{S_T0}, s{S_PFB}")
            p.add(Ins(f"buffer_load_dword v{V_JUNK}, v{V_DV + j}, s[{srd}:{srd+3}], s{S_T0} offen offset:{j * 1024} {E('PFFL', '')}", "vm", [V_DV + j], [], tag="pf"))
            if last:
                p.s(f"s_add_u32 s{S_PFO}, s{S_PFO}, {8192 * PFN // 2}")
                p.s(f"s_bitcmp1_b32 s{S_WEND}, 16")
                p.s(f"s_cselect_b32 s{S_PFB}, s{S_KVP}, {OOB:#x}")
        return f
    if int(E("PFD", "0")) == 2:
        def pf(srd, du, j, last):
            def f(p):
                p.s(f"s_mov_b32 m0, s94")
                p.s(f"s_add_u32 s{S_T0}, s{S_PFO}, {du * 8192}")
                p.s(f"s_and_b32 s{S_T0}, s{S_T0}, 0x1ffff")
                p.s(f"s_add_u32 s{S_T0}, s{S_T0}, s{S_PFB}")
                p.dmao(V_DV, srd, f"s{S_T0}", 0, "pf", E("PFFL", ""))
                if last:
                    p.s(f"s_add_u32 s{S_PFO}, s{S_PFO}, {8192 * PFN // 2}")
                    p.s(f"s_bitcmp1_b32 s{S_WEND}, 16")
                    p.s(f"s_cselect_b32 s{S_PFB}, s{S_KVP}, {OOB:#x}")
            return f
    if int(E("PFD", "0")) == 1:
        def pf(srd, du, j, last):
            def f(p):
                p.s(f"s_mov_b32 m0, s94")
                p.s(f"s_and_b32 s{S_T0}, s{S_PFO}, 0x1ffff")
                p.s(f"s_add_u32 s{S_T0}, s{S_T0}, s{S_PFB}")
                p.dmao(V_DV, SRD_V, f"s{S_T0}", 0, "pf", "nt")
                p.s(f"s_add_u32 s{S_PFO}, s{S_PFO}, 2048")
            return f
    fs = [k0, k1, wo, None, kp] if it else [none if x else None for x in EKP[:3]] + [None, kp]
    fs += [pf(SRD_K if k & 1 else SRD_V, (5 if k & 1 else 3) + (k >> 1), 3, k == PFN - 1) if it else (none if PFP[k] else None) for k in range(PFN)]
    fs += [code_touch] * len(CPQ)
    return [(f, 8) for f, x in zip(fs, EKP + [3] + PFP + CPQ) if f and x == h % 4]
def wst(p):
    for i in range(5):
        p.store(A_Q + 16 - 4 * i, 4, V_LIN, SRD_WS, f"s{S_PT}", 0, tag="wst", flags="sc1")
        if i < 4: p.s(f"s_add_u32 s{S_PT}, s{S_PT}, 4096")

def split_ops(ops):
    q = Prog()
    for f, _ in ops: f(q)
    out = []; i = 0; L = [x for x in q.ins if x.kind != "nop"]
    while i < len(L):
        grp = [L[i]]
        if L[i].text.startswith(("s_cmp", "s_bitcmp")): grp.append(L[i + 1])
        i += len(grp)
        out.append((lambda p, grp=grp: [p.add(x) for x in grp], "vm" if grp[0].kind in ("vm", "vml", "vms") else "s", 4 * len(grp)))
    return out
def fill_dma(sc, ops, after, before, tag=None, queue="dma", lead=80):
    so = split_ops(ops)
    for k, (fn, kind, cost) in enumerate(so):
        sc.fill(queue, fn, 8 if kind == "vm" else cost, after=after, before=before, lead=lead, solo=(kind == "vm" and SOLO), paced=(kind == "vm"),
                tag=tag if k == len(so) - 1 else None)
SOLO = int(E("SOLO", "1"))
T7 = int(E("T7", "0"))
def sprinkle(progs, ops, lo=0.0, hi=1.0):
    pts = []
    for p, st in progs:
        masked = False
        for i in range(st, len(p.ins)):
            x = p.ins[i]
            if x.text.startswith("s_mov_b64 exec"): masked = not x.text.endswith("-1")
            if x.kind == "label" and not x.text.startswith(";"): break
            if x.kind in ("valu", "perm") and not masked and p.ins[i - 1].kind in ("valu", "perm") and "v_cmp" not in x.text and "v_cmp" not in p.ins[i - 1].text: pts.append((p, i))
    a, b = int(lo * len(pts)), int(hi * len(pts))
    sel = [pts[a + (k * (b - a)) // len(ops)] for k in range(len(ops))]
    for (p, i), (fn, _) in reversed(list(zip(sel, ops))):
        q = Prog(); fn(q)
        p.ins[i:i] = q.ins

V_CP = 2
V_WP, WTP = 23, int(E("WTP", "-1"))
CPO = int(E("CPO", "1536"))
CPQ = [int(x) for x in E("CPQ", "2")]
CPA = [int(x) for x in E("CPA", "").split(",") if x]
WTN = int(E("WTN", "2"))
def w_touch(p, off): p.add(Ins(f"buffer_load_dword v{V_JUNK}, v{V_WP}, s[{SRD_WS}:{SRD_WS+3}], 0 offen offset:{off} sc1", "vm", [V_WP], [], tag="wtp"))
def code_addr(p, name, L):
    p.s(f"s_getpc_b64 s[{S_TM}:{S_TM+1}]")
    p.label(f"{name}_pc")
    p.s(f"s_lshr_b32 s{S_T0}, s2, 1")
    p.s(f"s_and_b32 s{S_T0}, s{S_T0}, 0x7c")
    p.s(f"s_add_u32 s{S_T0}, s{S_T0}, s{S_W}")
    p.s(f"s_lshl_b32 s{S_T0}, s{S_T0}, 9")
    p.s(f"s_add_u32 s{S_T0}, s{S_T0}, {CPO}")
    p.s(f"s_add_u32 s{S_TM}, s{S_TM}, s{S_T0}")
    p.s(f"s_addc_u32 s{S_TM+1}, s{S_TM+1}, 0")
    p.raw(f"v_and_b32 v{V_CP}, {7 if int(E('CP64', '0')) else 3}, v{L}")
    p.raw(f"v_lshlrev_b32 v{V_CP}, {6 if int(E('CP64', '0')) else 7}, v{V_CP}")
    p.raw(f"v_mov_b32 v{V_CP+1}, s{S_TM+1}")
    p.raw(f"v_add_co_u32 v{V_CP}, vcc, s{S_TM}, v{V_CP}")
    p.raw("s_nop 1")
    p.raw(f"v_addc_co_u32 v{V_CP+1}, vcc, 0, v{V_CP+1}, vcc")
def code_touch(p): p.add(Ins(f"global_load_dword v{V_JUNK}, v[{V_CP}:{V_CP+1}], off", "vm", [], [], tag="code"))

def get_nonce(p, name, t):
    p.add(Ins(f"v_readfirstlane_b32 s{S_NON}, v{V_NV}", "rfl", [V_NV], []))
    p.add(Ins(f"v_readfirstlane_b32 s{S_NON+1}, v{V_NV+1}", "rfl", [V_NV + 1], []))
    p.s(f"s_cmp_lt_i32 s{S_NON+1}, 0")
    p.s(f"s_cbranch_scc1 {name}_x")
    p.vop("v_mov_b32", t + 2, "0")
    p.label(f"{name}")
    p.raw(f"buffer_load_dwordx2 v[{t}:{t+1}], v{t+2}, s[{SRD_DBG}:{SRD_DBG+3}], 0 offen sc1")
    p.raw("s_waitcnt vmcnt(0)")
    p.raw(f"v_readfirstlane_b32 s{S_NON}, v{t}")
    p.raw(f"v_readfirstlane_b32 s{S_NON+1}, v{t+1}")
    p.s(f"s_sub_u32 s{S_SPIN}, s{S_SPIN}, 1")
    p.s(f"s_cbranch_scc1 {name}_x")
    p.s(f"s_cmp_lt_i32 s{S_NON+1}, 0")
    p.s(f"s_cbranch_scc0 {name}")
    p.label(f"{name}_x")
    p.nop(1)

def publish(p, soff, off, t):
    p.vop("v_mov_b32", t, f"s{S_NON}")
    p.vop("v_mov_b32", t + 1, f"s{S_NON+1}")
    p.s("s_mov_b64 exec, 1")
    p.store(t, 2, V_LIN, SRD_WS, soff, off, tag="flag", flags="sc1")
    p.s("s_mov_b64 exec, -1")

def poll_issue(p, vaddr, soff, off, t):
    p.add(Ins(f"buffer_load_dwordx2 v[{t}:{t+1}], v{vaddr}, s[{SRD_WS}:{SRD_WS+3}], {soff} offen offset:{off} sc1", "vml", [vaddr], [t, t + 1], tag="poll"))
def poll_check(p, name, vaddr, soff, off, t, slp=2):
    p.label(f"{name}")
    p.add(Ins(f"v_cmp_ne_u32 vcc, s{S_NON}, v{t}", "valu", [t], []))
    p.add(Ins(f"v_cmp_ne_u32 s[{S_TM+2}:{S_TM+3}], s{S_NON+1}, v{t+1}", "valu", [t + 1], []))
    p.s(f"s_or_b64 vcc, vcc, s[{S_TM+2}:{S_TM+3}]")
    if "Y" in ABL and "pp" in name: p.s(f"s_branch {name}_ok")
    p.s(f"s_cbranch_scc0 {name}_ok")
    p.s(f"s_sub_u32 s{S_SPIN}, s{S_SPIN}, 1")
    p.s(f"s_cbranch_scc1 {name}_ok")
    if slp: p.s(f"s_sleep {slp}")
    p.raw(f"buffer_load_dwordx2 v[{t}:{t+1}], v{vaddr}, s[{SRD_WS}:{SRD_WS+3}], {soff} offen offset:{off} sc1")
    p.raw("s_waitcnt vmcnt(0)")
    p.s(f"s_branch {name}")
    p.label(f"{name}_ok")

def prologue(name):
    p = Prog()
    if PROF: p.s("s_memrealtime s[100:101]")
    p.s(f"s_cmp_ge_u32 s2, {NWG}")
    p.s(f"s_cbranch_scc1 {name}_end")
    p.s("s_load_dwordx8 s[84:91], s[0:1], 0")
    p.s("s_load_dwordx8 s[92:99], s[0:1], 32")
    T = V_O
    W, L, a, b, c, d, U, P, VV, R8, PI, M, G, cv = range(T, T + 14)
    p.vop("v_lshrrev_b32", W, "6", 0)
    p.vop("v_and_b32", L, "63", 0)
    p.add(Ins(f"v_readfirstlane_b32 s{S_W}, v{W}", "rfl", [W], []))
    p.vop("v_and_b32", U, "1", W)
    p.vop("v_lshrrev_b32", P, "1", W)
    p.vop("v_lshrrev_b32", VV, "5", L)
    p.vop("v_bfe_u32", R8, L, "2", "3")
    p.vop("v_and_b32", PI, "3", L)
    p.s(f"s_movk_i32 s{S_T0}, 1280")
    p.vop("v_mul_lo_u32", a, R8, f"s{S_T0}")
    p.vop("v_lshl_add_u32", a, VV, "6", a)
    p.vop("v_xor_b32", c, "3", PI)
    p.vop("v_lshl_add_u32", V_DX, PI, "4", a)
    p.vop("v_lshl_add_u32", b, c, "4", a)
    p.vop("v_add_u32", V_DX + 1, f"{9216}", b)
    p.vop("v_add_u32", V_DX + 2, f"{2 * 9216}", V_DX)
    p.vop("v_add_u32", V_DX + 3, f"{3 * 9216}", b)
    p.vop("v_lshrrev_b32", d, "2", R8)
    p.vop("v_lshlrev_b32", cv, "1", d)
    p.vop("v_xor_b32", cv, cv, PI)
    p.vop("v_and_b32", b, "3", R8)
    p.vop("v_lshl_add_u32", b, d, "3", b)
    p.vop("v_lshlrev_b32", d, "7", U)
    p.vop("v_lshl_add_u32", d, VV, "6", d)
    p.vop("v_lshl_add_u32", b, b, "13", d)
    p.vop("v_lshl_add_u32", V_DW, cv, "4", b)
    for j in range(1, 4): p.vop("v_add_u32", V_DW + j, f"{(16 * (j & 1) + 4 * (j >> 1)) * 8192 - 1024 * j}", V_DW)
    p.vop("v_mul_u32_u24", b, "3", P)
    p.vop("v_xor_b32", b, b, PI)
    p.vop("v_lshl_add_u32", b, b, "4", a)
    p.vop("v_lshlrev_b32", a, "2", W)
    p.vop("v_sub_u32", a, P, a)
    p.vop("v_add_u32", a, "16", a)
    p.s(f"s_movk_i32 s{S_T1}, {8 * 1280}")
    p.vop("v_mul_lo_u32", a, a, f"s{S_T1}")
    p.vop("v_add_u32", a, a, b)
    p.vop("v_lshl_add_u32", V_DX + 4, U, "30", a)
    MAP = int(E("MAP", "0"))
    p.s(f"s_bfe_u32 s{S_T0}, s2, {(MAP << 16) | 3:#x}")
    p.s(f"s_lshr_b32 s{S_T2}, s2, {3 + MAP}")
    p.s(f"s_and_b32 s{S_G}, s2, {(1 << (3 - MAP)) - 1}")
    p.s(f"s_lshl_b32 s{S_G}, s{S_G}, {MAP}")
    p.s(f"s_or_b32 s{S_G}, s{S_G}, s{S_T0}")
    p.s(f"s_bfe_u32 s{S_B}, s2, {(MAP << 16) | (3 - MAP):#x}")
    p.s(f"s_lshl_b32 s{S_B}, s{S_B}, {5 - MAP}")
    p.s(f"s_or_b32 s{S_B}, s{S_B}, s{S_T2}")
    p.s(f"s_mul_i32 s{S_T0}, s{S_T0}, {int(E('PHM', str(1 << (5 - MAP))))}")
    p.s(f"s_lshl_b32 s{S_T2}, s{S_T2}, {MAP}")
    p.s(f"s_add_u32 s{S_T2}, s{S_T2}, s{S_T0}")
    if int(E("GPH", "0")):
        p.s(f"s_and_b32 s{S_T0}, s{S_G}, {int(E('GPM', '7'))}")
        p.s(f"s_mul_i32 s{S_T0}, s{S_T0}, {int(E('GPH', '0'))}")
        p.s(f"s_add_u32 s{S_T2}, s{S_T2}, s{S_T0}")
    p.s(f"s_and_b32 s{S_T2}, s{S_T2}, 31")
    p.s(f"s_lshr_b32 s{S_P}, s{S_W}, 1")
    p.s(f"s_lshl_b32 s{S_M0KV}, s{S_W}, 12")
    p.s(f"s_add_u32 s{S_M0W}, s{S_M0KV}, {WRING}")
    p.s(f"s_lshl_b32 s{S_M0X8}, s{S_P}, 10")
    p.s(f"s_add_u32 s{S_M0X8}, s{S_M0X8}, 16384")
    p.s(f"s_bitcmp1_b32 s{S_W}, 0")
    p.s(f"s_cselect_b32 s{S_M0X8}, 0x1d000, s{S_M0X8}")
    p.s(f"s_lshl_b32 s{S_T0}, s{S_G}, 2")
    p.s(f"s_add_u32 s{S_T0}, s{S_T0}, s{S_P}")
    p.s(f"s_lshl_b32 s{S_WB}, s{S_T0}, 8")
    p.s(f"s_add_u32 s{S_WB+1}, s{S_WB}, 512")
    p.s(f"s_lshl_b32 s{S_T1}, s{S_B}, 5")
    p.s(f"s_add_u32 s{S_T0}, s{S_T0}, s{S_T1}")
    p.s(f"s_lshl_b32 s{S_KVN}, s{S_T0}, 17")
    p.s(f"s_mul_i32 s{S_T0}, s{S_T2}, 5")
    p.s(f"s_lshr_b32 s{S_T0}, s{S_T0}, 4")
    if not int(E("ROT", "1")): p.s(f"s_mov_b32 s{S_T0}, 0")
    p.s(f"s_lshl_b32 s{S_XOFF}, s{S_T0}, 7")
    p.s(f"s_lshl_b32 s{S_WOFF}, s{S_T0}, 19")
    p.s(f"s_mul_i32 s{S_XB}, s{S_B}, {144 * 1280}")
    p.s(f"s_mul_i32 s{S_T0}, s{S_W}, {32 * 1280}")
    p.s(f"s_add_u32 s{S_XB}, s{S_XB}, s{S_T0}")
    def srd(r, src, size):
        p.s(f"s_mov_b32 s{r+2}, {size:#x}")
        p.s(f"s_mov_b32 s{r+3}, 0x20000")
    def srd2(r, src):
        p.s(f"s_mov_b32 s{r}, s{src}")
        p.s(f"s_and_b32 s{r+1}, s{src+1}, 0xffff")
    SR = ((SRD_X, 84, 32 * 144 * 640 * 2), (SRD_W, 90, 640 * 4096 * 2), (SRD_K, 86, 1 << 27), (SRD_V, 88, 1 << 27),
          (SRD_WO, 92, 4096 * 640 * 2), (SRD_OUT, 94, 32 * 144 * 640 * 2), (SRD_DBG, 96, 256), (SRD_WS, 98, (1 << 28) if PROF else WSBYTES))
    for x in SR: srd(*x)
    if PROF: p.s("s_memrealtime s[66:67]") if 0 else None
    p.s("s_waitcnt lgkmcnt(0)")
    if PROF: p.s("s_memrealtime s[4:5]")
    for x in SR[:2]: srd2(*x[:2])
    for ops in (x_ops(0), w_ops(0), w_ops(1)):
        for f, _ in ops: f(p)
    for x in SR[2:]: srd2(*x[:2])
    stamp(p, 0)
    if PROF:
        p.raw("v_writelane_b32 v0, s100, 3")
        p.raw("v_writelane_b32 v0, s4, 4")
    p.vop("v_lshlrev_b32", V_LIN, "4", L)
    code_addr(p, name, L)
    code_touch(p)
    p.vop("v_lshl_add_u32", b, R8, "8", d)
    p.vop("v_lshl_add_u32", V_DV, cv, "4", b)
    for j in range(1, 4): p.vop("v_add_u32", V_DV + j, f"{1024 * j}", V_DV)
    if E("LINT", "") == "1":
        for j in range(4): p.vop("v_lshl_add_u32", V_DV + j, U, "12", V_LIN)
    if E("LINT", "") == "2":
        p.vop("v_lshl_add_u32", V_DV, U, "10", V_LIN)
        for j in range(1, 4): p.vop("v_add_u32", V_DV + j, f"{1024 * j}", V_DV)
    p.s(f"s_lshl_b32 s{S_T0}, s2, 1")
    p.s(f"s_add_u32 s{S_T0}, s{S_T0}, s{S_P}")
    p.s(f"s_mul_i32 s{S_T0}, s{S_T0}, {int(E('KROT', '5'))}")
    p.s(f"s_lshr_b32 s{S_T1}, s2, 3")
    p.s(f"s_add_u32 s{S_T0}, s{S_T0}, s{S_T1}")
    p.s(f"s_and_b32 s{S_T0}, s{S_T0}, {15 if int(E('KROT', '5')) else 0}")
    p.s(f"s_lshl_b32 s{S_KOFF}, s{S_T0}, 13")
    p.s(f"s_mov_b32 s{S_M0KVP}, s{S_M0KV}")
    p.s(f"s_mov_b32 s{S_M0KVP+1}, s{S_M0W}")
    p.s(f"s_mov_b32 s{S_KVP}, s{S_KVN}")
    p.s(f"s_mov_b32 s{S_EM}, 0")
    p.s(f"s_movk_i32 s{S_ED}, 2048")
    p.s(f"s_mov_b32 s{S_TAB}, 0x83210549")
    srd(SRD_E, 0, 1 << 27)
    p.s(f"s_and_b32 s{S_U}, s{S_W}, 1")
    p.s(f"s_lshl_b32 s{S_T0}, s{S_B}, 2")
    p.s(f"s_lshr_b32 s{S_T1}, s{S_G}, 1")
    p.s(f"s_add_u32 s{S_T0}, s{S_T0}, s{S_T1}")
    p.s(f"s_and_b32 s{S_T1}, s{S_G}, 1")
    p.s(f"s_lshl_b32 s{S_WFP}, s{S_P}, 7")
    p.s(f"s_add_u32 s{S_WFP}, s{S_WFP}, s{S_T0}")
    p.s(f"s_lshl1_add_u32 s{S_WFP}, s{S_WFP}, s{S_T1}")
    p.s(f"s_lshl1_add_u32 s{S_WFP}, s{S_WFP}, s{S_U}")
    p.s(f"s_lshl3_add_u32 s{S_WFP}, s{S_WFP}, {WFLG}")
    p.s(f"s_mul_i32 s{S_T0}, s{S_T0}, 40960")
    p.s(f"s_mul_i32 s{S_PT}, s{S_T1}, 20480")
    p.s(f"s_add_u32 s{S_PT}, s{S_PT}, s{S_T0}")
    p.s(f"s_lshl_b32 s{S_EW}, s{S_W}, 10")
    p.s(f"s_add_u32 s{S_PT}, s{S_PT}, s{S_EW}")
    p.s(f"s_add_u32 s{S_EW}, s{S_EW}, {STG}")
    p.s(f"s_mul_i32 s{S_T1}, s{S_T1}, 640")
    p.s(f"s_add_u32 s{S_WT}, s{S_T1}, s{S_T0}")
    p.s(f"s_mul_i32 s{S_T1}, s{S_W}, {8 * 1280}")
    p.s(f"s_add_u32 s{S_WT}, s{S_WT}, s{S_T1}")
    p.s(f"s_mov_b32 s{S_WEND}, {0x7c | ((0xfff << (15 + PFS)) & 0x7fff0000):#x}")
    if PFN:
        p.s(f"s_lshl_b32 s94, s{S_W}, 10")
        p.s(f"s_add_u32 s94, s94, {XRING + XSL}")
        p.s(f"s_sub_u32 s{S_PFO}, s{S_KOFF}, {8192 * PFN // 2 * (PFS - 1) + 65536 * (int(E('PFD', '0')) == 1)}")
        if int(E("PFD", "0")) == 2:
            p.s(f"s_add_u32 s{S_T0}, s{S_B}, s{S_G}")
            p.s(f"s_add_u32 s{S_T0}, s{S_T0}, s{S_P}")
            p.s(f"s_and_b32 s{S_T0}, s{S_T0}, 3")
            p.s(f"s_lshl_b32 s{S_T0}, s{S_T0}, 11")
            p.s(f"s_add_u32 s{S_PFO}, s{S_PFO}, s{S_T0}")
        p.s(f"s_mov_b32 s{S_PFB}, " + (f"s{S_KVP}" if PFS == 1 else f"{OOB:#x}"))
    if int(E("TOUCH", "1")):
        p.add(Ins(f"buffer_load_dword v{V_T+4}, off, s[{SRD_K}:{SRD_K+3}], s{S_KVN} nt", "vml", [], [V_T + 4], tag="touch"))
        p.add(Ins(f"buffer_load_dword v{V_T+5}, off, s[{SRD_V}:{SRD_V+3}], s{S_KVN} nt", "vml", [], [V_T + 5], tag="touch"))
        p.add(Ins(f"buffer_load_dword v{V_T+7}, off, s[{SRD_WS}:{SRD_WS+3}], s{S_PT} sc1", "vml", [], [V_T + 7], tag="touch"))
        if int(E("TOUCHO", "1")): p.add(Ins(f"buffer_load_dword v{V_T+6}, off, s[{SRD_WO}:{SRD_WO+3}], s{S_WT}", "vml", [], [V_T + 6], tag="touch"))
    p.s(f"s_sub_u32 s{S_WT}, s{S_WT}, 256")
    FWARM = int(E("FWARM", "3"))
    if FWARM & 1:
        p.s(f"s_lshl2_add_u32 s{S_T0}, s{S_B}, s{S_W}")
        p.s(f"s_and_b32 s{S_T1}, s{S_G}, 3")
        p.s(f"s_lshl2_add_u32 s{S_T0}, s{S_T0}, s{S_T1}")
        p.s(f"s_lshl_b32 s{S_T0}, s{S_T0}, 6")
        p.s(f"s_add_u32 s{S_T0}, s{S_T0}, {PFLG}")
        p.add(Ins(f"buffer_load_dword v{V_JUNK}, off, s[{SRD_WS}:{SRD_WS+3}], s{S_T0} sc1", "vm", [], [], tag="touch"))
    if FWARM & 4:
        p.s(f"s_lshl2_add_u32 s{S_T0}, s{S_B}, s{S_W}")
        p.s(f"s_mul_i32 s{S_T1}, s{S_T0}, {PARTB // 4}")
        p.s(f"s_add_u32 s{S_T1}, s{S_T1}, {PART}")
        p.add(Ins(f"buffer_load_dword v{V_JUNK}, off, s[{SRD_WS}:{SRD_WS+3}], s{S_T1} sc1 nt", "vm", [], [], tag="touch"))
        p.s(f"s_mul_i32 s{S_T1}, s{S_T0}, {36 * 1280}")
        p.add(Ins(f"buffer_load_dword v{V_JUNK}, off, s[{SRD_OUT}:{SRD_OUT+3}], s{S_T1} sc1 nt", "vm", [], [], tag="touch"))
    if FWARM & 8:
        p.vop("v_mul_u32_u24", V_T + 3, f"{PARTB // 64}", L)
        p.s(f"s_mul_i32 s{S_T1}, s{S_B}, {PARTB}")
        p.s(f"s_add_u32 s{S_T1}, s{S_T1}, {PART}")
        p.s(f"s_cmp_eq_u32 s{S_W}, 0")
        p.s(f"s_cselect_b32 s{S_T1}, s{S_T1}, {OOB:#x}")
        p.add(Ins(f"buffer_load_dword v{V_JUNK}, v{V_T+3}, s[{SRD_WS}:{SRD_WS+3}], s{S_T1} offen sc1 nt", "vm", [V_T + 3], [], tag="touch"))
    if FWARM & 2: p.add(Ins(f"buffer_load_dword v{V_JUNK}, off, s[{SRD_WS}:{SRD_WS+3}], s{S_WFP} sc1", "vm", [], [], tag="touch"))
    p.s(f"s_or_b32 s{S_T0}, s2, s{S_W}")
    p.s(f"s_cmp_lg_u32 s{S_T0}, 0")
    p.s(f"s_cbranch_scc1 {name}_nononce")
    p.s(f"s_memrealtime s[{S_NON}:{S_NON+1}]")
    p.s("s_waitcnt lgkmcnt(0)")
    p.s(f"s_or_b32 s{S_NON+1}, s{S_NON+1}, 0x80000000")
    p.raw(f"v_mov_b32 v{V_T}, s{S_NON}")
    p.raw(f"v_mov_b32 v{V_T+1}, s{S_NON+1}")
    p.s("s_mov_b64 exec, 1")
    p.raw(f"buffer_store_dwordx2 v[{V_T}:{V_T+1}], v{V_LIN}, s[{SRD_DBG}:{SRD_DBG+3}], 0 offen sc1")
    p.s("s_mov_b64 exec, -1")
    p.label(f"{name}_nononce")
    p.s(f"s_mov_b32 s{S_SPIN}, 0x40000")
    p.s(f"s_mov_b32 s{S_PH}, 0")
    if QT:
        p.s(f"s_add_u32 s{S_T0}, s{S_B}, s{S_G}")
        p.s(f"s_and_b32 s{S_T0}, s{S_T0}, {QT[1]}")
        p.s(f"s_add_u32 s{S_T0}, s{S_T0}, {QT[0]}")
        p.s(f"s_lshl_b32 s{S_TI}, 1, s{S_T0}")
    if PROF in (2, 3): p.s("s_mov_b32 s93, 32")
    p.s(f"s_mov_b64 s[{S_BAD}:{S_BAD+1}], 0")
    p.s(f"s_mov_b32 s{S_CS}, {f2u(CSCALE):#x}")
    p.s(f"s_mov_b32 s{S_CS+1}, s{S_CS}")
    p.s(f"s_mov_b32 s{S_LO}, {f2u(2.0 ** -24):#x}")
    p.s(f"s_mov_b32 s{S_HI}, {f2u(2.0 ** 16):#x}")
    p.vop("v_and_b32", M, "15", L)
    p.vop("v_lshrrev_b32", G, "4", L)
    p.vop("v_lshrrev_b32", a, "3", M)
    p.vop("v_mul_u32_u24", c, "3", a)
    p.vop("v_xor_b32", c, c, G)
    p.vop("v_and_b32", b, "7", M)
    p.vop("v_lshlrev_b32", b, "6", b)
    p.vop("v_lshl_add_u32", b, c, "4", b)
    p.vop("v_lshl_add_u32", b, a, "10", b)
    p.vop("v_add_u32", V_AX8, f"{XRING}", b)
    p.vop("v_lshl_add_u32", V_AX, U, "13", V_AX8)
    p.vop("v_add_u32", V_AW + 5, f"{XALT}", b)
    p.vop("v_lshl_add_u32", V_AW + 4, U, "13", V_AW + 5)
    p.vop("v_and_b32", c, "0x1ff", V_LIN)
    p.vop("v_lshl_add_u32", c, VV, "10", c)
    p.vop("v_lshl_add_u32", c, P, "9", c)
    p.vop("v_lshl_add_u32", c, U, "3", c)
    p.vop("v_add_u32", V_WR, f"{STG + 4096}", c)
    p.vop("v_and_b32", b, "0xffffffcf", b)
    p.vop("v_bfe_u32", a, M, "2", "1")
    p.vop("v_lshlrev_b32", a, "1", a)
    p.vop("v_xor_b32", a, a, G)
    p.vop("v_lshl_add_u32", b, a, "4", b)
    p.vop("v_lshl_add_u32", V_AK, P, "13", b)
    p.vop("v_lshrrev_b32", a, "1", G)
    p.vop("v_lshlrev_b32", b, "10", a)
    p.vop("v_lshl_add_u32", b, R8, "6", b)
    p.vop("v_and_b32", c, "1", L)
    p.vop("v_lshl_add_u32", b, c, "3", b)
    p.vop("v_bfe_u32", c, L, "1", "1")
    p.vop("v_lshl_add_u32", b, c, "4", b)
    p.vop("v_and_b32", c, "1", G)
    p.vop("v_lshl_add_u32", b, c, "5", b)
    p.vop("v_lshl_add_u32", V_AV0, P, "13", b)
    p.vop("v_xor_b32", V_AV1, "32", V_AV0)
    p.vop("v_lshl_add_u32", a, U, "12", V_AV0)
    p.vop("v_xor_b32", b, "32", a)
    p.vop("v_xor_b32", c, "4096", a)
    p.vop("v_xor_b32", d, "4096", b)
    for i, r in enumerate((a, b, c, d)): p.vop("v_add_u32", V_AW + i, f"{WRING}", r)
    for ops in (w_ops(2), x_ops(1), w_ops(3)):
        for f, _ in ops: f(p)
    stamp(p, 23)
    return p

def R128(d, a, off): return lambda p: p.ds_read128(d, a, off)
def TR(d, a, off): return lambda p: p.ds_tr(d, a, off)

class Pool:
    def __init__(self, sc, base, n):
        self.sc = sc; self.regs = base if isinstance(base, list) else [base + 4 * k for k in range(n)]; n = len(self.regs); self.n = n; self.last = [None] * n; self.i = 0; self.frags = []
    def frag(self, tile, mk_reads, consumers, as_b=False):
        k = self.i % self.n; self.i += 1
        r = self.regs[k]
        war = self.last[k]
        for (d, o, c, tag) in consumers:
            if as_b: self.sc.mfma(d, o, r, c, tag)
            else: self.sc.mfma(d, r, o, c, tag)
        self.last[k] = consumers[-1][3]
        self.frags.append((tile, mk_reads(r), consumers[0][3], war))

LEAD = int(E("LEAD", "9"))
LEADB = int(E("LEADB", "8"))
BGAP = int(E("BGAP", "4"))

def sstamp(p):
    p.s(f"s_memrealtime s[{S_TM}:{S_TM+1}]")
    p.s(f"s_memtime s[{S_TM+2}:{S_TM+3}]")
    p.wait_lgkm0()
    p.s("s_mov_b32 s99, m0")
    p.s("s_mov_b32 m0, s93")
    p.s("s_add_u32 s93, s93, 1")
    p.raw(f"v_writelane_b32 v0, s{S_TM}, m0")
    p.raw(f"v_writelane_b32 v255, s{S_TM+2}, m0")
    p.s("s_mov_b32 m0, s99")

QT = [int(x) for x in E("QT", "2,0,0,0,3").split(",") if x]
def qmod(name):
    p = Prog()
    KVS = [-1] * 4 + [int(x) for x in E("KVS", "37").split(",")]
    sc = Sched(p, budget=int(E("QBUD", "8")), late_extra=8)
    sc.group["dma"] = "vm"; sc.pace["vm"] = int(E("QPACE", "4"))
    sc.maxds = int(E("QMAXDS", "1"))
    pool = Pool(sc, A_QP, NPOOL)
    for h in range(40):
        r = h & 1; st = (h >> 1) & 1
        for k in range(8):
            off = (h % 4) * 16384 + ((k >> 1) & 1) * 512
            ad = V_AW + 2 * (k >> 2) + (k & 1)
            cons = [(QA(r, n, k), Xf(st, n), QA(r, n, k) if h > 1 else None, ("Q", h, k, n)) for n in range(5 if k < 4 else 4)]
            if int(E("QSNK", "1")) and k % 2 == 0: cons.reverse()
            pool.frag(h, lambda rg: [TR(rg, ad, off), TR(rg + 2, ad, off + 2048)], cons)
    mt = lambda i: sc.m[max(0, min(i, len(sc.m) - 1))][4]
    XT = int(E("XT", "1")); A_XT = A_Q + 40
    def xreads(i, kh):
        return [R128(A_XT + 4 * n if (XT and kh and i) else Xf(kh, n), (V_AX if i else V_AW + 4) + (n >> 2), (n if n < 4 else 8) * 2048 + kh * 512) for n in range(5)]
    for fi, (h, reads, cons, war) in enumerate(pool.frags):
        c0 = 36 * h
        tau = c0 - LEADB
        taun = c0 + 36 - LEADB
        if fi % 8 == 0:
            def bar(p, h=h):
                p.comment(f"---- q step {h}")
                tags = [("W", h)]
                if h == 0: tags.append(("X", 0))
                if h % 4 == 3 and h < 39: tags.append(("X", (h + 1) // 4))
                if h % 4 == EKP[3] and 4 <= h < 36: tags.append(("WOP", h // 4 - 1))
                if QT and h % 4 in QT[3:] and h >= 1:
                    p.s(f"s_lshr_b32 s{S_TI}, s{S_TI}, 1")
                    p.s("s_cbranch_scc0 1")
                    p.raw(f"s_waitcnt vmcnt({QT[2]})")
                p.wait_vm(tags, lgkm0=True)
                if "b" not in ABL or h < 4: p.barrier()
                if PROF == 2 and h % 2 == 0: sstamp(p)
                if int(E("QSL", "0")) and (h < 3 or int(E("QSA", "0"))): p.raw(f"s_nop {int(E('QSL', '0'))}")
            ops = []
            if h % 4 == 1 - XT and 4 <= h < 36: ops += x_ops(h // 4 + 1)
            if 1 <= h < 37: ops += w_ops(h + 3)
            if int(E("XW", "0")) and h % 4 == 0 and 4 <= h < 36: ops = xw_ops(h // 4 + 1, h + 3)
            if "d" in ABL: ops = []
            nb = len(ops)
            if h < 36: ops = ek_ops(h) + ops if (h % 4 == 0 and int(E("EKF", "0"))) else ops + ek_ops(h)
            nb = len(ops) - nb
            if h % 4 == EKP[3] and 4 <= h < 36:
                for r in range(15, -1, -1): sc.fill("rw", lambda p, r=r: p.amov(A_Q + 4 + r, A_Q + r), 4, after=dict(tag=("BAR", h), delay=14))
                for i in range(2): sc.fill("rw", TR(A_Q + 2 * i, V_WR, i * 2048), 4, ds=True, before=mt(taun - BGAP), lead=2)
                sc.fill("rw", lambda p: p.vop("v_xor_b32", V_WR, "4096", V_WR), 4, before=mt(taun - 1))
            if h == 36 and "S" not in ABL: ops += [(wst, 20)]
            for k, x in enumerate(KVS):
                if x == h: ops += kv_ops(32 + k)
            sc.fill("rd", bar, 8, before=mt(tau), early=0 if h else None, tag=("BAR", h))
            QD = int(E("QD", "14")) - 4 * nb * int(E("QDE", "0")) if len(ops) - nb <= 4 else int(E("QD2", "0"))
            fill_dma(sc, ops, dict(tag=("BAR", h), delay=QD), mt(taun - 1))
            if h == 0:
                for k, fn in enumerate(xreads(0, 0)): sc.fill("rd", fn, 4, ds=True, before=mt(0))
            xr = []; aft = [("BAR", h)]
            if h % 4 == 3 and h < 39: xr = xreads((h + 1) // 4, 0)
            if XT and xr: xr += xreads((h + 1) // 4, 1)
            if XT and h % 4 == 0 and h:
                for r in range(20): sc.fill("cp", lambda p, r=r: p.ar(Xf(1, 0) + r, A_XT + r), 4, after=dict(tag=("Q", h - 1, 7, 3), delay=1), before=mt(c0 + 62), lead=0, early=int(E("XCE", "20")))
            elif h % 4 == 0:
                xr = xreads(h // 4, 1)
                if h: aft.append(("Q", h - 1, 7, 3))
            for j, fn in enumerate(xr):
                sc.fill("rx", fn, 4, ds=True, after=aft, before=mt(taun - BGAP), lead=(2 if XT else 3) * (len(xr) - j))
        for k, fn in enumerate(reads):
            if "r" in ABL and h >= 2: continue
            bf = cons
            if sc.idx[cons] > taun - BGAP: bf = mt(taun - BGAP)
            sc.fill("rd", fn, 4, ds=True, after=war if k == 0 else None, before=bf, lead=LEAD if bf is cons else 0, early=int(E("QEARLY", "99")))
    def lastbar(p):
        p.comment("---- q step 40")
        p.wait_lgkm0(); p.barrier()
        p.add(Ins(f"buffer_load_dwordx2 v[{V_NV}:{V_NV+1}], off, s[{SRD_DBG}:{SRD_DBG+3}], 0 sc1", "vml", [], [V_NV, V_NV + 1], tag="non"))
    sc.fill("rd", lastbar, 8, before=mt(36 * 40 - LEADB), early=0)
    sc.run()
    stamp(p, 1)
    fstart = len(p.ins)
    TB = V_O + 144
    cnt = [0]
    def fin(r, n, t, i):
        s0 = QA(r, n, 2 * t)
        if r:
            tb = TB + 8 * (cnt[0] & 1); cnt[0] += 1
            for x in range(8): p.ar(tb + x, s0 + x)
            s0 = tb
        dst = V_S + 4 * i
        for x in range(0, 8, 2): p.pkmul(s0 + x, s0 + x, f"s[{S_CS}:{S_CS+1}]")
        for x in range(4): p.cvtpk(dst + x, s0 + 2 * x, s0 + 2 * x + 1)
        return dst
    p.v(f"v_lshl_add_u32 v{V_E0}, s{S_W}, 12, v{V_LIN}", [V_E0], [V_LIN])
    p.vop("v_add_u32", V_E0, f"{XRING}", V_E0)
    p.vop("v_xor_b32", V_E1, "4096", V_E0)
    p.vop("v_and_b32", V_E2, "0xfffffcf0", V_E0)
    p.vop("v_bfe_u32", V_T, V_LIN, "9", "1")
    p.vop("v_lshl_add_u32", V_E2, V_T, "8", V_E2)
    p.vop("v_bfe_u32", V_T, V_LIN, "8", "1")
    p.vop("v_lshl_add_u32", V_E2, V_T, "3", V_E2)
    for r in range(2):
        for t in range(2): p.ds_write2(V_E2, fin(r, 4, t, 2 * r + t), (2 * r + t) * 1024)
    for r in range(2):
        base = A_QN if r else A_Q
        for n in range(4):
            FL = [int(x) for x in E("FLD", "02,02").split(",")[r]]
            ds = {}
            for t in range(4):
                ds[t] = fin(r, n, t, 4 + (n & 1) * 4 + t)
                if t in FL: p.ds_write2(V_E2, ds.pop(t), 16384 + t * 1024)
            for f in (p.swap32, p.swap16):
                for d in ds.values(): f(d, d + 2); f(d + 1, d + 3)
            for t in FL: p.ds_read128(Qf(n, t, base), V_E0, 16384 + t * 1024)
            for t, d in ds.items():
                for x in range(4): p.aw(Qf(n, t, base) + x, d + x)
            if r == 0 and n == 1:
                p.raw(f"s_waitcnt lgkmcnt({2 * len(FL)})"); p.barrier()
                for t in range(2): p.ds_read128(Qf(4, t), V_E0, t * 1024)
                for t in range(2): p.ds_read128(Qf(4, 2 + t), V_E1, t * 1024)
    for t in range(2): p.ds_read128(Qf(4, t, A_QN), V_E0, 2048 + t * 1024)
    for t in range(2): p.ds_read128(Qf(4, 2 + t, A_QN), V_E1, 2048 + t * 1024)
    p.vop("v_mov_b32", V_T, "0x3f803f80")
    for r in range(4): p.aw(A_ONE + r, V_T)
    sprinkle([(p, fstart)], sum([kv_ops(32 + k) for k in range(len(KVS), 8 - T7)], []), 0.0, float(E("QSH", "1.0")))
    stamp(p, 26)
    get_nonce(p, f"{name}_n1", V_T)
    stamp(p, 27)
    p.wait_vm("wst")
    stamp(p, 28)
    publish(p, f"s{S_WFP}", 0, V_T)
    stamp(p, 29)
    z = p
    z.s(f"s_lshl_b32 s{S_PF}, s{S_U}, 12")
    z.s(f"s_lshl_b32 s{S_T1}, s{S_G}, 9")
    z.s(f"s_add_u32 s{S_PF}, s{S_PF}, s{S_T1}")
    z.s(f"s_add_u32 s{S_PF}, s{S_PF}, {WFLG}")
    z.vop("v_lshrrev_b32", V_AX, "1", V_LIN)
    for n in range(5): z.vop("v_mov_b32", V_DA + n, f"{DROP:#x}")
    ti_init(z, 0)
    stamp(z, 2)
    return p

def a_mfmas(sc, pool, qh):
    AV = (V_AV0, V_AV1)
    has8 = lambda u: (u & 1) == qh
    for pos, (kind, u) in enumerate(KVSEQ):
        sb = (pos % 4) * 16384
        ns = [0, 1, 2, 3] + ([4] if has8(u) else [])
        if kind == "K":
            for kt in range(2):
                for ks in range(4):
                    off = sb + kt * 2048 + ((ks >> 1) ^ qh) * 4096 + (ks & 1) * 512
                    cons = []
                    for n in ns:
                        d = XS(u & 1, n) if kt == 0 else YS(n)
                        cons.append((d, Qf(n, ks), d if ks else None, ("S", u, kt, ks, n)))
                    pool.frag(pos, lambda r: [R128(r, V_AK, off)], cons)
                SCH = int(E("SCH", "4"))
                k0 = len(sc.m) - 4 * len(ns)
                sc.m[k0:] = sorted(sc.m[k0:], key=lambda x: (x[4][3] // SCH, x[4][4], x[4][3]))
                for k in range(k0, len(sc.m)): sc.idx[sc.m[k][4]] = k
        else:
            first = lambda n: u == 0 if n < 4 else u == qh
            for n in ns: sc.mfma(La(n), A_ONE, XS(u & 1, n), None if first(n) else La(n), ("L", u, n))
            for m in range(8):
                e, mp = m & 1, m >> 1
                off = sb + (mp >> 1) * 4096 + (mp & 1) * 512
                oa = lambda n: Oa(n, m if n < 4 else m ^ (4 * qh))
                cons = [(oa(n), XS(u & 1, n), None if first(n) else oa(n), ("PV", u, m, n)) for n in ns]
                if int(E("SNK", "1")) and m % 2 == 0: cons.reverse()
                pool.frag(pos, lambda r: [TR(r, AV[e], off), TR(r + 2, AV[e], off + 2048)], cons)

def a_taus():
    cs = []
    for qh in range(2):
        sc = Sched(Prog()); pool = Pool(sc, A_POOL, NPOOL); a_mfmas(sc, pool, qh)
        c = {}
        for (pos, _, cons, _) in pool.frags: c.setdefault(pos, sc.idx[cons])
        c[32] = len(sc.m) + LEADB - 3
        cs.append(c)
    return [min(cs[0][j], cs[1][j]) - LEADB for j in range(33)]

def aentry(name):
    p = Prog()
    p.label(f"{name}_A")
    p.s(f"s_mov_b32 s{S_KB}, s{S_KVN}")
    p.s(f"s_mov_b32 s{SRD_C+2}, 0x8000000")
    p.s(f"s_add_u32 s{S_KVN}, s{S_KVN}, {2 << 17}")
    p.s(f"s_cmp_eq_u32 s{S_PH}, 0")
    p.s(f"s_cselect_b32 s{S_M0KVP}, s{S_M0KV}, {DROP:#x}")
    p.s(f"s_cselect_b32 s{S_M0KVP+1}, s{S_M0W}, {DROP:#x}")
    p.s(f"s_cselect_b32 s{S_KVP}, s{S_KVN}, {OOB:#x}")
    p.s(f"s_cselect_b32 s{S_WT2}, {OOB:#x}, s{S_WT}")
    p.s(f"s_cmp_eq_u32 s{S_U}, 1")
    p.s(f"s_cbranch_scc1 {name}_A1")
    return p

def tile_addr(p, base, dst):
    p.s(f"s_cmp_lt_u32 s{S_G}, 5")
    p.s(f"s_cselect_b32 s{S_T0}, 1, 0")
    p.s(f"s_xor_b32 s{S_T0}, s{S_T0}, s{S_U}")
    p.v(f"v_lshl_add_u32 v{dst}, s{S_T0}, 12, v{base}", [dst], [base])
    for n in range(1, 4): p.vop("v_add_u32", dst + n, f"{1024 * n}", dst)

S_TI = 96
TI = [[tuple(int(x) for x in y.split("+")) for y in z.split(",")] for z in E("TI", "0+0,4+7;-1+0,-1+0").split(";")]
def ti_init(p, r):
    for k, (b, sp) in enumerate(TI[r]):
        if b < 0 or TI[0][k] == (0, 0): continue
        p.s(f"s_add_u32 s{S_T0}, s{S_B}, s{S_G}")
        p.s(f"s_and_b32 s{S_T0}, s{S_T0}, {sp}")
        p.s(f"s_add_u32 s{S_T0}, s{S_T0}, {b}")
        p.s(f"s_lshl_b32 s{S_TI + k}, 1, s{S_T0}")
WLP = [int(x) for x in E("WLP", "0,0,0,1,1,1,2,2,2,3,3,3").split(",")]
def avm(pos):
    if pos >= 30: return None
    pat = [int(x) for x in E("AVM", "3,4").split(",")]
    h = [int(x) for x in E("AVMH", "").split(",") if x]
    if pos < len(h): return h[pos]
    return pat[pos % len(pat)] + WLP.count(pos - 1) * int(E("WLC", "1"))
RQ = [int(x) for x in E("RQH", "3,3,3,3" if T7 else "0,3,3,2").split(",")] + [int(x) for k in "123" for x in E("RQ" + k, "43434343")] + [int(x) for x in E("RQT", "4,4,4,4").split(",")]
STREAM = sum([kv_ops(k) for k in range(8 - T7, 40 - T7)], [])
for s_ in range(32): assert sum(RQ[:s_ + 1]) <= 4 * (s_ + T7)
def amod(name, qh):
    p = Prog()
    p.label(f"{name}_A{qh}")
    sc = Sched(p, budget=int(E("ABUD", "8")), late_extra=int(E("ALATE", "8")))
    sc.group["dma"] = "vm"; sc.pace["vm"] = int(E("APACE", "2"))
    pool = Pool(sc, A_POOL, NPOOL)
    a_mfmas(sc, pool, qh)
    tau = a_taus()
    mt = lambda i: sc.m[max(0, min(i, len(sc.m) - 1))][4]
    def add_bar(pos):
        def bar(p, pos=pos):
            p.comment(f"---- a step {pos}")
            if TI[0][pos % 2] != (0, 0) and pos < 30:
                p.s(f"s_lshr_b32 s{S_TI + pos % 2}, s{S_TI + pos % 2}, 1")
                p.s("s_cbranch_scc0 1")
                p.raw(f"s_waitcnt vmcnt({avm(pos) - 1})")
            if pos < 32: p.wait_vm(KVSEQ[pos], lgkm0=True, cap=avm(pos))
            else: p.wait_lgkm0()
            p.barrier()
            if pos % 4 == 0 and pos:
                for r in (V_AV0, V_AV1, V_AK): p.vop("v_xor_b32", r, "0x10000", r)
            if PROF == 3 and pos % 2 == 0 and pos < 32: sstamp(p)
        sc.fill("rd", bar, 8, before=mt(tau[pos]), early=0 if pos else None, tag=("BAR", pos))
        if pos < 32:
            ops = STREAM[sum(RQ[:pos]):sum(RQ[:pos + 1])]
            aft = ("BAR", pos); bf = mt(tau[pos + 1] - 1)
            span = tau[pos + 1] - max(tau[pos], 0)
            if pos in CPA: ops = [(code_touch, 8)] + ops
            if pos == WTP: ops = [(lambda p: w_touch(p, 0), 8), (lambda p: w_touch(p, 64), 8)][:WTN] + ops
            for k, op in enumerate(ops): fill_dma(sc, [op], dict(tag=aft, delay=(k * (span - 2)) // len(ops)), bf)
            for k in [k for k in range(12) if WLP[k] == pos]:
                for fn, kind, cost in split_ops([(wload(0, k, S_T2, S_WT2), 8)]):
                    sc.fill("dmp", fn, 8 if kind == "vm" else 4, after=dict(tag=aft, delay=(5 if WLP.count(pos) > 1 else 20) + 9 * (k - WLP.index(pos))), solo=(kind == "vm"), before=bf, lead=20)
            if pos == 30:
                WLS = int(E("WLS", "6"))
                last = ("S", 15, 1, 3, 4 if qh == 1 else 3)
                for k in range(12):
                    for fn, kind, cost in split_ops([(wload(0, 12 + k, S_T2, S_WT2), 8)]):
                        sc.fill("dmp", fn, 8 if kind == "vm" else 4, after=dict(tag=last, delay=2 + WLS * k), solo=(kind == "vm"), before=mt(sc.idx[last] + 12 + WLS * k), lead=9)
            if 26 <= pos < 30:
                t = pos - 26
                ws = [(V_DA + n, Qf(n, t, A_QN), t * 18432 + 1024) for n in range(4)]
                if t >> 1 == qh: ws.append((V_DA + 4, Qf(4, t & 1, A_QN), (t & 1) * 18432))
                for k, w in enumerate(ws):
                    sc.fill("dw", lambda p, w=w: p.ds_write(w[0], w[1], 4, w[2]), 8, solo=True, after=dict(tag=aft, delay=4 + k * ((span - 10) // len(ws))), before=mt(tau[pos + 1] - BGAP), lead=12)
            if pos == 31:
                for f in range(8): sc.fill("dw", R128(P0_B[f], V_LIN, IMG(f)), 4, ds=True, after=dict(tag=aft, delay=16 + 2 * f), before=mt(tau[32] - BGAP), lead=4)
    cur = None
    for (pos, reads, cons, war) in pool.frags:
        if pos != cur:
            cur = pos; add_bar(pos)
        for k, fn in enumerate(reads):
            bf = cons
            if sc.idx[cons] > tau[pos + 1] - BGAP: bf = mt(tau[pos + 1] - BGAP)
            sc.fill("rd", fn, 4, ds=True, after=war if k == 0 else None, before=bf, lead=LEAD if bf is cons else 0)
    add_bar(32)
    def V(fn, after=None, before=None, cost=4, lead=0): sc.fill("va", fn, cost, after=after, before=before, lead=lead)
    EDL = int(E("EDL", "3"))
    for u in range(16):
        ns = [0, 1, 2, 3] + ([4] if (u & 1) == qh else [])
        for kt in range(2):
            for n in ns:
                src = XS(u & 1, n) if kt == 0 else YS(n)
                dst = XS(u & 1, n) + 2 * kt
                for r in range(4):
                    V(lambda p, reg=src + r: p.exp(reg, reg), after=dict(tag=("S", u, kt, 3, n), delay=EDL), cost=8)
                bf = ("L", u, n)
                if kt == 1 and n < 4 and u < 15: bf = ("S", u + 1, 1, 0, n)
                V(lambda p, dst=dst, src=src: p.cvtpk(dst, src, src + 1))
                V(lambda p, dst=dst, src=src: p.cvtpk(dst + 1, src + 2, src + 3), before=bf, lead=2)
    sc.run()
    p.s(f"s_cmp_eq_u32 s{S_PH}, 0")
    p.s(f"s_cbranch_scc0 {name}_P0")
    if qh == 0: p.s(f"s_branch {name}_F")
    return p

RL, CHK, PX, AD, AL = V_S + 2, V_S + 12, V_S + 16, V_S + 48, V_S + 50
def f_addr(p):
    p.v(f"v_lshl_add_u32 v{AD}, s{S_W}, 12, v{V_LIN}", [AD], [V_LIN])
    p.vop("v_add_u32", AD, f"{MISC}", AD)
    p.vop("v_xor_b32", AD + 1, "4096", AD)
def f_bad(op, a, b):
    def f(p):
        p.add(Ins(f"{op} vcc, v{a}, {b}", "valu", [a], []))
        p.s(f"s_or_b64 s[{S_BAD}:{S_BAD+1}], s[{S_BAD}:{S_BAD+1}], vcc")
    return f
def f_rcp(n): return [lambda p: p.vop("v_rcp_f32", RL + 2 * n, RL + 2 * n, kind="trans"), lambda p: p.vop("v_mov_b32", RL + 2 * n + 1, RL + 2 * n)]
def f_range():
    return [lambda p: p.vop("v_max3_f32", V_S, RL, RL + 2, RL + 4), lambda p: p.vop("v_min3_f32", V_S + 1, RL, RL + 2, RL + 4),
            lambda p: p.vop("v_max3_f32", V_S, V_S, RL + 6, RL + 8), lambda p: p.vop("v_min3_f32", V_S + 1, V_S + 1, RL + 6, RL + 8),
            f_bad("v_cmp_nle_f32", V_S, f"s{S_HI}"), f_bad("v_cmp_nge_f32", V_S + 1, f"s{S_LO}")]
def f_fin(): return [lambda p: p.s(f"s_movk_i32 s{S_T2}, 0x207"), f_bad("v_cmp_class_f32", CHK, f"s{S_T2}")]
def f_norm(n, t):
    s0 = Oa(n, 2 * t)
    add = [lambda p, r=r: p.add(Ins(f"v_pk_add_f32 {vr(s0 + r, 2)}, {vr(s0 + r, 2)}, {vr(PX + 8 * t + r, 2)}", "valu", R(s0 + r, 2) | R(PX + 8 * t + r, 2), R(s0 + r, 2))) for r in range(0, 8, 2)] if n == 4 else []
    return add + [lambda p, r=r: p.pkmul(s0 + r, s0 + r, RL + 2 * n) for r in range(0, 8, 2)], [lambda p, r=r: p.cvtpk(s0 + r, s0 + 2 * r, s0 + 2 * r + 1) for r in range(4)]
def f_l8(): return [lambda p: p.vop("v_add_f32", RL + 8, RL + 8, V_S)] + f_rcp(4)
UNITS = [(n, t) for n in (0, 1, 2, 4, 3) for t in range(4 if n < 4 else 2)]
def afin(name):
    p = Prog()
    p.label(f"{name}_F")
    stamp(p, 5)
    poll_issue(p, V_AX, f"s{S_PF}", 0, V_NV)
    f_addr(p)
    for i in range(4): p.ds_write(AD + 1, Oa(4, 4 + i), 4, i * 1024)
    for i in range(2): p.vop("v_subrev_u32", AL + i, "16384", AD + i)
    p.ds_write(AL + 1, La(4), 1, 0)
    for n in range(5): p.ar(RL + 2 * n, La(n))
    for k in range(2):
        for n in range(4): f_rcp(n)[k](p)
    p.wait_lgkm0()
    for k, (n, t) in enumerate(UNITS):
        if k == 4:
            p.barrier()
            for i in range(4): p.ds_read128(PX + 4 * i, AD, i * 1024)
            p.ds_read32(V_S, AL, 0)
        if k == 11:
            for f in f_l8(): f(p)
        for f in sum(f_norm(n, t), []): f(p)
    for f in f_range(): f(p)
    p.s(f"s_mov_b32 s{S_PH}, 1")
    stamp(p, 6)
    for r in range(80):
        if r % 4 == 0 and r < 72: p.mfma(CHK, A_ONE, Oa(UNITS[r // 4][0], 2 * UNITS[r // 4][1]), CHK if r else None)
        p.amov(A_Q + r, A_QN + r)
    for n, t in UNITS:
        for r in range(4): p.aw(Qf(n, t, A_QN) + r, Oa(n, 2 * t) + r)
    for f in f_fin(): f(p)
    sprinkle([(p, 8)], STREAM[sum(RQ):], 0.0, float(E("ASH", "0.7")))
    code_touch(p)
    p.s(f"s_mul_i32 s{S_T0}, s{S_P}, 9216")
    p.vop("v_add_u32", V_DA + 4, f"s{S_T0}", V_LIN)
    tile_addr(p, V_DA + 4, V_DA)
    p.s(f"s_mul_i32 s{S_T0}, s{S_U}, 36864")
    p.vop("v_add_u32", V_DA + 4, f"s{S_T0}", V_DA + 4)
    psetup(p)
    ti_init(p, 1)
    poll_check(p, f"{name}_wpoll", V_AX, f"s{S_PF}", 0, V_NV)
    p.s(f"s_branch {name}_A")
    return p

P_R = ([A_X + 4 * i for i in range(10)] + [10, 14] + [A_Q + 4 * i for i in range(20)],
       [A_L + 4 * i for i in range(5)] + [A_POOL + 4 * i for i in range(6)] + [A_QN + 64 + 4 * i for i in range(4)] + [A_QN + 4 * i for i in range(16)] + [A_ONE])
P0_B = P_R[0][24:] + [A_QN + 4 * (i % 16) for i in range(64)]
def wload(j, i, so=None, sb=None, extra=0):
    def f(p):
        if i % 2 == 0: p.s(f"s_add_u32 s{so or S_SO}, s{sb or S_WT}, {(i >> 1) * 40960 + extra}")
        if "B" not in ABL: p.load4(P_R[j & 1][i], V_LIN, SRD_WS, f"s{so or S_SO}", (i & 1) * 1024, ("WT", j, i), "sc1")
    return f

def slow(name):
    SI, SC, SX, SWq, SKV, SD, SK = 56, 57, 58, 59, 88, 89, 90
    VW, VX, VK, VV_, VD = 28, 36, 37, 38, 39
    MX, NM, LA, QF, SS, FB, AC, RAW, FR = 40, 44, 48, 52, 68, 76, 84, 116, 180
    def ld(p, op, n, d, vo, srd, so, off):
        p.add(Ins(f"{op} {vr(d, n)}, v{vo}, s[{srd}:{srd+3}], s{so} offen offset:{off}", "vml", [vo], R(d, n), tag="sl"))
    p0 = Prog()
    p0.label(f"{name}_slow")
    p0.wait_all()
    M, G = MX, MX + 1
    p0.vop("v_bfe_u32", M, V_LIN, "4", "4")
    p0.vop("v_lshrrev_b32", G, "8", V_LIN)
    p0.vop("v_lshlrev_b32", VW, "16", G)
    p0.vop("v_lshl_add_u32", VW, M, "1", VW)
    for i in range(1, 8): p0.vop("v_add_u32", VW + i, f"{8192 * i}", VW)
    p0.s(f"s_movk_i32 s{S_T0}, 1280")
    p0.vop("v_mul_lo_u32", VX, M, f"s{S_T0}")
    p0.vop("v_lshl_add_u32", VX, G, "4", VX)
    p0.vop("v_lshlrev_b32", VK, "8", M)
    p0.vop("v_lshl_add_u32", VK, G, "3", VK)
    p0.vop("v_lshlrev_b32", VV_, "10", G)
    p0.vop("v_lshl_add_u32", VV_, M, "1", VV_)
    p0.s(f"s_mov_b32 s{SI}, 0")
    p1 = Prog()
    p1.label(f"{name}_sl_it")
    p1.s(f"s_cmp_ge_u32 s{SI}, 5")
    p1.s(f"s_cselect_b32 s{S_T0}, 2, 0")
    p1.s(f"s_cselect_b32 s{S_T1}, 5, 0")
    p1.s(f"s_cselect_b32 s{SD}, {73728}, 0")
    p1.s(f"s_sub_u32 s{S_T1}, s{SI}, s{S_T1}")
    p1.s(f"s_add_u32 s{S_T0}, s{S_T0}, s{S_P}")
    p1.s(f"s_mul_i32 s{S_T2}, s{S_P}, 9216")
    p1.s(f"s_add_u32 s{SD}, s{SD}, s{S_T2}")
    p1.s(f"s_lshl_b32 s{S_T2}, s{S_G}, 2")
    p1.s(f"s_add_u32 s{S_T0}, s{S_T0}, s{S_T2}")
    p1.s(f"s_lshl_b32 s{SWq}, s{S_T0}, 8")
    p1.s(f"s_lshl_b32 s{S_T2}, s{S_B}, 5")
    p1.s(f"s_add_u32 s{S_T0}, s{S_T0}, s{S_T2}")
    p1.s(f"s_lshl_b32 s{SKV}, s{S_T0}, 17")
    p1.s(f"s_lshl_b32 s{S_T0}, s{S_U}, 2")
    p1.s(f"s_add_u32 s{S_T0}, s{S_T0}, s{S_T1}")
    p1.s(f"s_cmp_lt_u32 s{S_G}, 5")
    p1.s(f"s_cselect_b32 s{S_T2}, 4, 0")
    p1.s(f"s_xor_b32 s{S_T2}, s{S_T2}, s{S_T0}")
    p1.s(f"s_add_u32 s{S_T2}, s{S_T2}, 1")
    p1.s(f"s_cmp_eq_u32 s{S_T1}, 4")
    p1.s(f"s_cselect_b32 s{S_T0}, 8, s{S_T0}")
    p1.s(f"s_cselect_b32 s{S_T2}, 0, s{S_T2}")
    p1.s(f"s_lshl_b32 s{S_T2}, s{S_T2}, 10")
    p1.s(f"s_add_u32 s{SD}, s{SD}, s{S_T2}")
    p1.vop("v_add_u32", VD, f"s{SD}", V_LIN)
    p1.s(f"s_mul_i32 s{S_T2}, s{S_B}, 9")
    p1.s(f"s_add_u32 s{S_T0}, s{S_T0}, s{S_T2}")
    p1.s(f"s_mul_i32 s{SX}, s{S_T0}, {16 * 1280}")
    for r in range(32): p1.vop("v_mov_b32", AC + r, "0")
    p1.s(f"s_mov_b32 s{SC}, 0")
    def pack(p):
        for r in range(32): p.vop("v_lshl_or_b32", FR + r, RAW + 2 * r + 1, "16", RAW + 2 * r)
    def loop_end(p, lab, n):
        p.s(f"s_add_u32 s{SC}, s{SC}, 1")
        p.s(f"s_cmp_lt_u32 s{SC}, {n}")
        p.s(f"s_cbranch_scc1 {lab}")
    p2 = Prog()
    p2.label(f"{name}_sl_q")
    ld(p2, "buffer_load_dwordx4", 4, FB, VX, SRD_X, SX, 0)
    for m in range(8):
        for i in range(8): ld(p2, "buffer_load_ushort", 1, RAW + 8 * m + i, VW + i, SRD_W, SWq, 32 * m)
        if m == 3: p2.wait_all()
    p2.wait_all()
    pack(p2)
    for m in range(8): p2.mfma(AC + 4 * m, FR + 4 * m, FB, AC + 4 * m)
    p2.s(f"s_add_u32 s{SX}, s{SX}, 64")
    p2.s(f"s_add_u32 s{SWq}, s{SWq}, {32 * 8192}")
    loop_end(p2, f"{name}_sl_q", 20)
    p3 = Prog()
    for r in range(32): p3.vop("v_mul_f32", AC + r, f"s{S_CS}", AC + r)
    for r in range(16): p3.cvtpk(QF + r, AC + 2 * r, AC + 2 * r + 1)
    for r in range(32): p3.vop("v_mov_b32", AC + r, "0")
    for r in range(4): p3.vop("v_mov_b32", LA + r, "0")
    p3.vop("v_mov_b32", MX, "0xff800000")
    p3.s(f"s_mov_b32 s{SK}, s{SKV}")
    p3.s(f"s_mov_b32 s{SC}, 0")
    def kfrags(p, dst, so):
        for ks in range(4):
            ld(p, "buffer_load_dwordx2", 2, dst + 4 * ks, VK, SRD_K, so, 64 * ks)
            ld(p, "buffer_load_dwordx2", 2, dst + 4 * ks + 2, VK, SRD_K, so, 64 * ks + 32)
    p4 = Prog()
    p4.label(f"{name}_sl_m")
    kfrags(p4, FR, SK)
    p4.wait_all()
    for ks in range(4): p4.mfma(SS, FR + 4 * ks, QF + 4 * ks, SS if ks else None)
    p4.vop("v_max3_f32", MX, MX, SS, SS + 1)
    p4.vop("v_max3_f32", MX, MX, SS + 2, SS + 3)
    p4.s(f"s_add_u32 s{SK}, s{SK}, 4096")
    loop_end(p4, f"{name}_sl_m", 32)
    p5 = Prog()
    for sw in (p5.swap32, p5.swap16):
        p5.vop("v_mov_b32", MX + 1, MX)
        sw(MX, MX + 1)
        p5.vop("v_max_f32", MX, MX, MX + 1)
    for r in range(4): p5.vop("v_sub_f32", NM + r, "0", MX)
    p5.s(f"s_mov_b32 s{SC}, 0")
    p6 = Prog()
    p6.label(f"{name}_sl_a")
    p6.s(f"s_add_u32 s{SK}, s{SKV}, 4096")
    kfrags(p6, FR, SKV)
    kfrags(p6, FR + 16, SK)
    p6.wait_all()
    for m in range(8):
        for i in range(8): ld(p6, "buffer_load_ushort", 1, RAW + 8 * m + i, VV_, SRD_V, SK if i >= 4 else SKV, 32 * m + 256 * (i & 3))
        if m == 3: p6.wait_all()
    for kt in range(2):
        for ks in range(4): p6.mfma(SS + 4 * kt, FR + 16 * kt + 4 * ks, QF + 4 * ks, SS + 4 * kt if ks else NM)
    for r in range(8): p6.exp(SS + r, SS + r)
    for r in range(4): p6.cvtpk(FB + r, SS + 2 * r, SS + 2 * r + 1)
    p6.wait_all()
    pack(p6)
    p6.mfma(LA, A_ONE, FB, LA)
    for m in range(8): p6.mfma(AC + 4 * m, FR + 4 * m, FB, AC + 4 * m)
    p6.s(f"s_add_u32 s{SKV}, s{SKV}, 8192")
    loop_end(p6, f"{name}_sl_a", 16)
    p7 = Prog()
    p7.vop("v_rcp_f32", LA, LA, kind="trans")
    for r in range(32): p7.vop("v_mul_f32", AC + r, AC + r, LA)
    for r in range(16): p7.cvtpk(QF + r, AC + 2 * r, AC + 2 * r + 1)
    for hf in range(2):
        p7.s(f"s_cmp_eq_u32 s{S_U}, {hf}")
        p7.s(f"s_cselect_b32 s{S_T0}, 0, s{S_T1}")
        p7.s(f"s_cmp_eq_u32 s{S_T0}, 4")
        p7.s(f"s_cbranch_scc1 {name}_sl_s{hf}")
        for t in (2 * hf, 2 * hf + 1): p7.ds_write(VD, QF + 4 * t, 4, t * 18432)
        p7.label(f"{name}_sl_s{hf}")
    p7.wait_all()
    p7.s(f"s_add_u32 s{SI}, s{SI}, 1")
    p7.s(f"s_cmp_lt_u32 s{SI}, 10")
    p7.s(f"s_cbranch_scc1 {name}_sl_it")
    p7.s(f"s_branch {name}_P2")
    body = [p1, p2, p2, p3, p4, p4, p5, p6, p6, p7]
    return [p0, p1, p2, p3, p4, p5, p6, p7], [p0] + body + body

S_ST = 62
S_PC, S_FO, S_PO = 71, 72, 73
S_OF = (4, 5, 6, 7, 74)
S_JA, S_JC, S_JO, S_WE = 77, 83, 52, 101
S_JE, S_EO = (79, 80), (61, 100)
def psetup(p):
    C, J, BW, OW = S_TM, S_TM + 1, S_TM + 2, S_TM + 3
    p.s(f"s_mul_i32 s{BW}, s{S_B}, {PARTB}")
    p.s(f"s_lshl_b32 s{S_T1}, s{S_W}, 11")
    p.s(f"s_add_u32 s{BW}, s{BW}, s{S_T1}")
    p.s(f"s_add_u32 s{BW}, s{BW}, {PART}")
    p.s(f"s_mul_i32 s{OW}, s{S_B}, {144 * 1280}")
    p.s(f"s_lshl_b32 s{S_T1}, s{S_W}, 6")
    p.s(f"s_add_u32 s{OW}, s{OW}, s{S_T1}")
    p.s(f"s_sub_u32 s{S_T0}, s{S_G}, 5")
    p.s(f"s_cselect_b32 s{C}, s{S_G}, s{S_T0}")
    p.s(f"s_cselect_b32 s{J}, 0, 1")
    p.s(f"s_add_u32 s{S_ST}, s{BW}, {8 * 81920}")
    p.s(f"s_mul_i32 s{S_T0}, s{J}, {4 * 81920}")
    p.s(f"s_add_u32 s{S_ST+5}, s{BW}, s{S_T0}")
    p.s(f"s_sub_u32 s{S_ST+1}, s{BW}, s{S_T0}")
    p.s(f"s_add_u32 s{S_ST+1}, s{S_ST+1}, {4 * 81920}")
    for i in (2, 3, 4, 6, 7, 8): p.s(f"s_add_u32 s{S_ST+i}, s{S_ST+i-1}, 81920")
    p.s(f"s_lshl_b32 s{S_T0}, s{C}, 13")
    p.s(f"s_add_u32 s{S_JA}, s{S_ST+5}, s{S_T0}")
    p.s(f"s_mul_i32 s{S_JO}, s{J}, {64 * 1280}")
    p.s(f"s_add_u32 s{S_JO}, s{S_JO}, s{OW}")
    p.s(f"s_lshl_b32 s{S_T0}, s{C}, 8")
    p.s(f"s_add_u32 s{S_JO}, s{S_JO}, s{S_T0}")
    p.s(f"s_mul_i32 s{S_WE}, s{S_G}, {16 * 40960}")
    p.s(f"s_lshl_b32 s{S_T0}, s{S_W}, 11")
    p.s(f"s_add_u32 s{S_WE}, s{S_WE}, s{S_T0}")
    for k in range(5):
        p.s(f"s_add_u32 s{C}, s{C}, 1")
        p.s(f"s_cmp_eq_u32 s{C}, 5")
        p.s(f"s_cselect_b32 s{C}, 0, s{C}")
        if k == 0:
            p.s(f"s_lshl_b32 s{S_WT}, s{C}, 13")
            p.s(f"s_add_u32 s{S_WT}, s{S_WT}, s{S_WE}")
            p.s(f"s_add_u32 s{S_WE}, s{S_WE}, 40960")
        p.s(f"s_and_b32 s{S_T0}, s{J}, 1")
        p.s(f"s_lshl3_add_u32 s{S_T0}, s{C}, s{S_T0}")
        p.s(f"s_lshl_b32 s{S_OF[k]}, s{S_T0}, 10")
        if k:
            p.s(f"s_bitcmp1_b32 s{J}, 1")
            p.s(f"s_cselect_b32 s{S_T0}, 40960, 0")
            p.s(f"s_add_u32 s{S_OF[k]}, s{S_OF[k]}, s{S_T0}")
        if k > 1:
            p.s(f"s_bitcmp1_b32 s{J}, 2")
            p.s(f"s_cselect_b32 s{S_T0}, {AREA}, 0")
            p.s(f"s_add_u32 s{S_OF[k]}, s{S_OF[k]}, s{S_T0}")
        if k < 4:
            p.s(f"s_cmp_lt_u32 s{C}, 3")
            p.s(f"s_addc_u32 s{J}, s{J}, 1")
    p.s(f"s_bitcmp1_b32 s{J}, 0")
    p.s(f"s_cselect_b32 s{S_T0}, 0, 1024")
    p.s(f"s_add_u32 s{S_JC}, s{S_JA}, s{S_T0}")
    for k in range(2):
        p.s(f"s_add_u32 s{S_T2}, s{S_G}, {8 * k + 11}")
        p.s(f"s_and_b32 s{S_T0}, s{S_T2}, 3")
        p.s(f"s_add_u32 s{S_T0}, s{S_T0}, 4")
        p.s(f"s_lshr_b32 s{S_T1}, s{S_T2}, 2")
        p.s(f"s_sub_u32 s{S_T1}, s{S_T1}, 1")
        if k == 0:
            p.s(f"s_cmp_lt_u32 s{S_G}, 5")
            p.s(f"s_cselect_b32 s{S_T0}, 8, s{S_T0}")
            p.s(f"s_cselect_b32 s{S_T1}, s{S_G}, s{S_T1}")
        p.s(f"s_mul_i32 s{S_JE[k]}, s{S_T0}, 10")
        p.s(f"s_add_u32 s{S_JE[k]}, s{S_JE[k]}, s{S_T1}")
        p.s(f"s_lshl_b32 s{S_JE[k]}, s{S_JE[k]}, 13")
        p.s(f"s_add_u32 s{S_JE[k]}, s{S_JE[k]}, s{BW}")
        p.s(f"s_mul_i32 s{S_EO[k]}, s{S_T0}, 80")
        p.s(f"s_add_u32 s{S_EO[k]}, s{S_EO[k]}, s{S_T1}")
        p.s(f"s_lshl_b32 s{S_EO[k]}, s{S_EO[k]}, 8")
        p.s(f"s_add_u32 s{S_EO[k]}, s{S_EO[k]}, s{OW}")
    p.s(f"s_cmp_ge_u32 s{S_G}, 5")
    p.s(f"s_cselect_b32 s{S_JE[1]}, {OOB:#x}, s{S_JE[1]}")
    p.s(f"s_cselect_b32 s{S_EO[1]}, {OOB:#x}, s{S_EO[1]}")
    p.s(f"s_lshl2_add_u32 s{S_PO}, s{S_B}, s{S_W}")
    p.s(f"s_lshl_b32 s{S_PO}, s{S_PO}, 8")
    p.s(f"s_add_u32 s{S_PO}, s{S_PO}, {PFLG - 128 + OOB}")
    p.s(f"s_lshl3_add_u32 s{S_FO}, s{S_G}, s{S_PO}")
    p.s(f"s_mov_b32 s{S_PC}, 0")

def pmod(name):
    p = Prog()
    p.label(f"{name}_fb")
    p.wait_all()
    p.s(f"s_cmp_lg_u64 s[{S_BAD}:{S_BAD+1}], 0")
    p.s(f"s_cbranch_scc1 {name}_slow")
    p.label(f"{name}_P2")
    AO = (V_LIN, 2, 3)
    V_FA, V_OA = 4, 5
    PT, PT2 = 6, 8
    V_SA, V_JA, PT3 = 1, 25, 26
    SEL = 18
    POOL = [28 + 4 * k for k in range(16)]
    ACC = 92
    OWN = 124
    PK, SUM, JB = 132, 140, 188
    CT = 244
    p.wait_all()
    p.barrier()
    NL = int(E("PLEAD", "8"))
    def ooff(i, kq): return IMG(kq) + i * 1024
    for f in range(NL): p.ds_read128(POOL[f], AO[ooff(0, f) // 49152], ooff(0, f) % 49152)
    p.vop("v_mov_b32", V_SA, f"{OOB:#x}")
    s0 = len(p.ins)
    p.vop("v_mov_b32", V_JA, f"{OOB:#x}")
    p.vop("v_bfe_u32", V_FA, V_LIN, "4", "3")
    p.vop("v_lshlrev_b32", V_FA, "3", V_FA)
    p.vop("v_bfe_u32", CT, V_LIN, "4", "4")
    p.s(f"s_movk_i32 s{S_T0}, 1280")
    p.vop("v_mul_lo_u32", V_OA, CT, f"s{S_T0}")
    p.vop("v_lshrrev_b32", CT + 1, "8", V_LIN)
    p.vop("v_lshl_add_u32", V_OA, CT + 1, "4", V_OA)
    p.vop("v_mov_b32", PT2, f"s{S_NON}")
    p.vop("v_mov_b32", PT2 + 1, f"s{S_NON+1}")
    p.vop("v_and_b32", CT + 2, "1", CT)
    p.vop("v_lshlrev_b32", CT + 2, "4", CT + 2)
    p.s(f"s_movk_i32 s{S_T0}, 0x3f80")
    p.vop("v_lshlrev_b32", CT + 2, CT + 2, f"s{S_T0}")
    p.vop("v_lshrrev_b32", CT, "1", CT)
    p.vop("v_lshlrev_b32", CT + 1, "1", CT + 1)
    p.vop("v_sub_u32", CT, CT, CT + 1)
    for r in range(2):
        p.add(Ins(f"v_cmp_eq_u32 vcc, {r}, v{CT}", "valu", [CT], []))
        p.vop("v_mov_b32", SEL + r, "0")
        p.vop("v_mov_b32", SEL + 4 + r, "0")
        p.add(Ins(f"v_cndmask_b32 v{SEL+2+r}, 0, v{CT+2}, vcc", "valu", [CT + 2], [SEL + 2 + r]))
    setup = p.ins[s0:]
    def jload(q, jl, dst, own=S_JA):
        def f(p):
            so = S_JE[q - 4] if q >= 4 else S_T1 if q else own
            if 0 < q < 4 and jl == 0: p.s(f"s_add_u32 s{S_T1}, s{own}, {q * 81920}")
            if "J" not in ABL or own != S_JA or dst < JB: p.load4(dst, V_JA, SRD_WS, f"s{so}", jl * 1024, "job", E("JFL", "sc1"))
        return f
    def reduce(p, q, bufs, init=False):
        for e in range(2):
            for k, bf in enumerate(bufs): p.mfma(SUM + 8 * q + 4 * e, SEL + 2 - 2 * e, bf, None if (init and k == 0) else SUM + 8 * q + 4 * e)
    def next_off(): return [lambda p: p.vop("v_add_u32", V_SA, f"s{S_OF[0]}", V_LIN)] + [lambda p, k=k: p.s(f"s_mov_b32 s{S_OF[k]}, s{S_OF[k+1]}") for k in range(4)]
    def next_pair(p, d):
        p.s(f"s_add_u32 s{d}, s{S_WT}, 8192")
        p.s(f"s_sub_u32 s{S_T2}, s{S_WE}, 40960")
        p.s(f"s_cmp_eq_u32 s{d}, s{S_WE}")
        p.s(f"s_cselect_b32 s{d}, s{S_T2}, s{d}")
    def flag(p, off, tag):
        p.wait_vm(tag)
        p.s("s_mov_b64 exec, 1")
        p.store(PT2, 2, V_LIN, SRD_WS, f"s{S_FO}", off, tag="flag", flags="sc1")
        p.s("s_mov_b64 exec, -1")
    FPOS = int(E("FPOS", "56")); FPB = int(E("FPB", "190")); PPB = int(E("PPB", "244")); WSP = float(E("WSP", "6")); PLAT = int(E("PLAT", "60")); CPOS = int(E("CPOS", "206")); WST = int(E("WST", "4"))
    def one_pass(par):
        q = Prog()
        q.label(f"{name}_pass{par}")
        if PROF == 4: stamp(q, 32, S_PC)
        q.wait_vm(("WT", par, 15))
        sc = Sched(q, budget=int(E("PBUD", "8")), late_extra=8)
        for qn in ("wl", "st", "jl", "jp"): sc.group[qn] = "vm"
        sc.pace["vm"] = int(E("PPACE", "4"))
        pool = Pool(sc, POOL, 16)
        acc = lambda i: OWN if i == 8 else ACC + 8 * (i % 4)
        for i in range(9):
            a = acc(i)
            for kq in range(16):
                cons = [(a + 4 * e, P_R[par][2 * kq + e], a + 4 * e if kq else None, ("P", i, kq, e)) for e in range(2)]
                pool.frag(0, lambda r: [R128(r, AO[ooff(i, kq) // 49152], ooff(i, kq) % 49152)], cons, as_b=True)
        PG = int(E("PG", "4"))
        sc.m = [x for k in range(0, 288, 2 * PG) for x in sc.m[k:k + 2 * PG:2] + sc.m[k + 1:k + 2 * PG:2]]
        sc.idx = {x[4]: k for k, x in enumerate(sc.m)}
        mt = lambda i: sc.m[max(0, min(i, len(sc.m) - 1))][4]
        for f in range(NL, 144 + NL):
            (_, reads, cons, war) = pool.frags[f % 144]
            if f >= 144: war = pool.last[f % 16]
            if "R" not in ABL: sc.fill("rd", reads[0], 4, ds=True, after=war, before=mt(2 * (f - NL) + 1), early=2)
        for i in ((16, 22, 28) if PG == 1 else (16, 24) if PG <= 4 else (16,)): sc.fill("ww", lambda p, i=i: p.wait_vm(("WT", par, min(31, i + (5 if PG == 1 else 7 if PG <= 4 else 15)))), 4, before=mt(i), early=0)
        def su(p):
            next_pair(p, S_WT)
            if par == 0:
                p.s(f"s_cmp_eq_u32 s{S_PC}, 4")
                p.s(f"s_cselect_b32 s{S_WT}, {OOB:#x}, s{S_WT}")
        def keep(p):
            p.s(f"s_cmp_eq_u32 s{S_PC}, 4")
            for i in (5, 6, 7): p.s(f"s_cselect_b32 s{S_ST+i}, {OOB:#x}, s{S_ST+i}")
            p.s(f"s_cselect_b32 s{S_WT2}, s{S_PO}, {OOB:#x}")
        if par == 0: sc.fill("jr", keep, 16, after=mt(100), before=mt(150))
        fill_dma(sc, [(su, 0)], None, mt(WST + 2), queue="wl", lead=6)
        for i in range(32):
            fill_dma(sc, [(wload(1 - par, i), 0)], mt(WST + int(WSP * i)), mt(WST + 12 + int(WSP * i)), queue="wl", lead=10)
        sc.fill("jl", lambda p: poll_issue(p, V_FA, f"s{S_PO}", 0, PT), 8, before=mt(CPOS - PLAT), early=4, solo=SOLO)
        def cut(p):
            p.s(f"s_cmp_lt_u32 s{S_PC}, 2")
            p.s(f"s_cbranch_scc1 {name}_nojob{par}")
            if par == 0:
                p.s(f"s_cmp_eq_u32 s{S_PC}, 2")
                p.s(f"s_cbranch_scc1 {name}_pp0")
            p.label("@CUT")
        sc.fill("jr", cut, 8, before=mt(CPOS), early=0, tag="CUT")
        for x in [int(y) for y in E("PSL1", "").split(",") if y]: sc.fill("sl", lambda p: [p.raw("s_nop 15") for _ in range(int(E("PSN", "4")))], 16, before=mt(x), early=0)
        JSP = float(E("JSP", "5"))
        for k in range(12): fill_dma(sc, [(jload(k >> 1, k & 1, JB + 4 * k), 0)], ["CUT", mt(CPOS + int(JSP * k))], mt(CPOS + 12 + int(JSP * k)), queue="jl", lead=10)
        if par == 0: sc.fill("jp", lambda p: poll_issue(p, V_FA, f"s{S_WT2}", 64, PT3), 8, after=mt(PPB), before=mt(PPB + 8), lead=8, solo=SOLO)
        for i in range(-1, 8):
            a = acc(i % 9); d = PK + 4 * (i & 1) if (par == 0 and i >= 5) else a
            dl = mt(32 * i + 32 + 24)
            sc.fill("va", lambda p, a=a, d=d: p.cvtpk(d, a, a + 1), 4, after=dict(tag=("P", i, 15, 1), delay=4) if i >= 0 else mt(3), before=dl, lead=10)
            sc.fill("va", lambda p, a=a, d=d: p.cvtpk(d + 1, a + 2, a + 3), 4)
            sc.fill("va", lambda p, a=a, d=d: p.cvtpk(d + 2, a + 4, a + 5), 4)
            sc.fill("va", lambda p, a=a, d=d: p.cvtpk(d + 3, a + 6, a + 7), 4, tag=("CV", i), before=dl, lead=10)
            def st(p, d=d, i=i):
                if "O" not in ABL: p.store(d, 4, V_SA, SRD_WS, f"s{S_ST + i % 9}", 0, tag=("ps", i), flags=E("SFL", "sc1"))
            sc.fill("st", st, 8, after=("CV", i), before=dl, lead=20, tag=("ST", i), solo=SOLO)
            if i < 0:
                for fn in next_off(): sc.fill("va", fn, 4, after=("ST", -1))
        if PROF == 4:
            for k, x in enumerate(int(y) for y in E("PST", "66,74,224").split(",")): sc.fill(f"st{k}", lambda p, k=k: stamp(p, 33 + k, S_PC), 16, before=mt(x), early=0)
        sc.fill("fl", lambda p: flag(p, 0, ("ps", int(E("FTAG", "-1")))), 16, before=mt(FPOS), early=0)
        for r, x in ((S_FO, 64), (S_PC, 1)): sc.fill("fl", lambda p, r=r, x=x: p.s(f"s_add_u32 s{r}, s{r}, {x}"), 4, after=mt(272))
        if par:
            for r in (S_FO, S_PO): sc.fill("fl", lambda p, r=r: p.s(f"s_bitset0_b32 s{r}, 30"), 4)
        sc.run()
        if par == 0:
            q.s(f"s_cmp_eq_u32 s{S_PC}, 5")
            q.s(f"s_cbranch_scc1 {name}_ptail")
            q.s(f"s_add_u32 s{S_PO}, s{S_PO}, 64")
            q.s(f"s_cmp_eq_u32 s{S_PC}, 1")
            q.s(f"s_cbranch_scc1 {name}_fbw")
        else:
            q.s(f"s_add_u32 s{S_PO}, s{S_PO}, 64")
            q.s(f"s_branch {name}_pass0")
        k = next(i for i, x in enumerate(q.ins) if x.text.startswith("@CUT"))
        q2 = Prog(); q2.label(f"{name}_nojob{par}"); q2.ins += q.ins[k + 1:]; q.ins = q.ins[:k]
        blk = Prog()
        poll_check(blk, f"{name}_pp{par}", V_FA, f"s{S_PO}", 0, PT)
        red = Prog()
        if par == 0:
            blk.vop("v_mov_b32", V_JA, V_LIN)
            blk.s(f"s_cmp_eq_u32 s{S_PC}, 2")
            blk.s(f"s_cbranch_scc1 {name}_nojob{par}")
        red.vop("v_add_u32", V_JA, f"{40960 if par else AREA}", V_LIN)
        for c in range(6): reduce(red, c, [JB + 8 * c, JB + 8 * c + 4], par == 1)
        fb = Prog()
        if par == 0: flag(fb, 64, ("ps", 4))
        return q, fb, blk, red, q2
    def first_pass():
        q = Prog()
        q.label(f"{name}_P0")
        stamp(q, 9)
        if "F" in ABL: q.s(f"s_mov_b32 s{S_BAD}, 1")
        if "G" in ABL:
            q.s(f"s_cmp_eq_u32 s{S_W}, 2")
            q.s(f"s_cselect_b32 s{S_BAD}, 1, 0")
        sc = Sched(q, budget=int(E("P0BUD", "8")), late_extra=8)
        for qn in ("wl", "st"): sc.group[qn] = "vm"
        sc.pace["vm"] = int(E("P0PACE", "3"))
        acc = [V_S + 32, V_S + 40, 92, 100, 108, 116, 132, 140, OWN]
        POOL2 = POOL[:8] + [148 + 4 * k for k in range(4)] + POOL[12:]
        reg = lambda f: P0_B[f] if f < 72 else POOL2[f % 16] if f < 144 else POOL[f % 16]
        fk = lambda f: ((f % 72) // 8, f % 8 + 8 * ((f // 72) & 1))
        base = []
        for f0 in range(0, 144, 4):
            for e in range(2):
                for f in range(f0, f0 + 4):
                    i, kq = fk(f); a = acc[i] + 4 * e
                    base.append((a, P_R[0][2 * kq + e], reg(f), a if kq else None, ("P", f, e)))
        units = UNITS
        C0, CS, MB = int(E("P0C0", "22")), float(E("P0CS", "5.8")), int(E("P0MB", "12"))
        cpos = {C0 + int(CS * k) + (int(E("P0C8", "0")) if k >= 12 else 0): k for k in range(18)}
        for j, m in enumerate(base):
            if j in cpos:
                k = cpos[j]; sc.mfma(CHK, A_ONE, Oa(units[k][0], 2 * units[k][1]), CHK if k else None, ("CHK", k))
            sc.mfma(*m)
        bt = lambda j: base[min(j, 287)][4]
        for i in range(2, 9): assert sc.idx[("CHK", (acc[i] - V_O) // 8)] + 1 < sc.idx[bt(16 * i)]
        for f in range(8, 144 + NL):
            i, kq = fk(f)
            aft = [("P", f - 16, 1)] if (f >= 24 and not 72 <= f < 88) else []
            if f == 8: aft.append("AO")
            if f == 12: aft.append("XW")
            if f == 72: aft.append("MID")
            j = 2 * (f - NL) + 1
            if f >= 72: j = max(j, 144 - MB + 2 + f - 72)
            sc.fill("rd", R128(reg(f), AO[ooff(i, kq) // 49152], ooff(i, kq) % 49152), 4, ds=True, after=aft, before=bt(j), early=2)
        def V(fn, cost=4, **kw): sc.fill("va", fn, cost, **kw)
        sc.fill("ww", lambda p: p.wait_vm(("WT", 0, 15)), 4, before=bt(10), early=0)
        def each(fn):
            z = Prog(); fn(z)
            return [lambda p, x=x: p.add(x) for x in z.ins]
        V(lambda p: p.vop("v_add_u32", AO[1], "49152", V_LIN))
        V(lambda p: p.vop("v_add_u32", AO[2], "98304", V_LIN), tag="AO")
        for fn in each(f_addr): V(fn)
        for i in range(4): V(lambda p, i=i: p.ds_write(AD + 1, Oa(4, 4 + i), 4, i * 1024), 8, solo=True)
        V(lambda p: p.s(f"s_mul_i32 s{S_T0}, s{S_U}, 73728"))
        V(lambda p: p.s(f"s_sub_u32 s{S_T0}, {73728 + 36864}, s{S_T0}"))
        V(lambda p: p.vop("v_add_u32", AL + 1, f"s{S_T0}", V_DA + 4))
        V(lambda p: p.ds_write(AL + 1, La(4), 1, 0), ds=True, tag="XW")
        for n in range(5): V(lambda p, n=n: p.ar(RL + 2 * n, La(n)), tag=("AR", n))
        for n in range(5): V(lambda p, n=n: p.vop("v_add_u32", V_DA + n, "73728", V_DA + n), tag=("DA", n))
        def wr(p, k):
            n, t = units[k]
            p.ds_write(V_DA + n, Oa(n, 2 * t), 4, t * 18432 + (1024 if n < 4 else 0))
        for n in range(4): V(f_rcp(n)[0], 8); V(f_rcp(n)[1], tag=("RC", n))
        l8 = f_l8(); V(l8[0], after=dict(tag="PX", delay=8)); V(l8[1], 8); V(l8[2], tag=("RC", 4), before=("CHK", 10))
        ct = lambda k, d: sc.m[sc.idx[("CHK", k)] + d][4]
        for k, (n, t) in enumerate(units):
            pk, cv = f_norm(n, t)
            sc.fill("pk", lambda p, k=k, pk=pk: (wr(p, k - 1) if k else None, [fn(p) for fn in pk]), 8, solo=True, after=[("RC", n)] + ([("DA", 4)] if k else []),
                    before=ct(k - 1, 1) if k else ct(0, -5), early=0, lead=99, tag=("PK", k))
            for j, fn in enumerate(cv): sc.fill("c1", fn, 4, after=("PK", k), before=ct(k, -1), lead=0)
        sc.fill("pk", lambda p: wr(p, 17), 8, solo=True, before=ct(17, 1), early=0, lead=99, tag="W17")
        for j, fn in enumerate(f_range()): V(fn, 8 if j >= 4 else 4)
        sc.fill("bx", lambda p: p.barrier(), 4, after=[("P", 12, 0), ("DA", 4)], before=bt(int(E("P0BX", "34"))), early=0)
        for i in range(4): sc.fill("bx", R128(PX + 4 * i, AD, i * 1024), 4, ds=True, before=bt(60))
        sc.fill("bx", lambda p: p.ds_read32(V_S, V_DA + 4, 0), 4, ds=True, before=bt(60), tag="PX")
        V(lambda p: p.vop("v_bfe_u32", V_T + 1, V_LIN, "4", "2"))
        V(lambda p: p.vop("v_lshlrev_b32", V_T + 1, "12", V_T + 1))
        V(lambda p: p.vop("v_add_u32", V_T + 1, f"{MISC}", V_T + 1))
        c5 = f_fin()
        V(c5[0]); V(c5[1], 8, after=dict(tag=("CHK", 17), delay=2))
        V(lambda p: (p.s(f"s_or_b32 s{S_T0}, s{S_BAD}, s{S_BAD+1}"), p.vop("v_mov_b32", V_T, f"s{S_T0}")), 8)
        V(lambda p: p.ds_write(AD, V_T, 1, 0), ds=True, after="W17", before=bt(144 - MB - 4), lead=2)
        def mid(p):
            p.wait_vm(("WT", 0, 31), lgkm0=True); p.barrier()
            stamp(p, 16)
            p.ds_read32(V_T + 2, V_T + 1, 0)
        V(mid, 8, before=bt(144 - MB), early=0, tag="MID")
        def chk(p):
            p.add(Ins(f"v_cmp_ne_u32 vcc, 0, v{V_T+2}", "valu", [V_T + 2], []))
            p.s("s_cmp_lg_u64 vcc, 0")
            p.s(f"s_cbranch_scc1 {name}_fb")
        V(chk, 8, before=bt(146), early=0, tag="OK")
        for fn in next_off(): V(fn, before=bt(160))
        k = 0
        while k < len(setup):
            n = 4 if setup[k].text.startswith("v_cmp") else 1
            V(lambda p, g=setup[k:k + n]: [p.add(Ins(x.text, x.kind, x.rd, x.wr)) for x in g], 4 * n); k += n
        for i in range(8):
            a = acc[i]; dl = bt(144 + 16 * i + 16 + 14)
            sc.fill("cv", lambda p, a=a: p.cvtpk(a, a, a + 1), 4, after=["OK", dict(tag=("P", 72 + 8 * i + 7, 1), delay=3)], before=dl, lead=10)
            sc.fill("cv", lambda p, a=a: p.cvtpk(a + 1, a + 2, a + 3), 4)
            sc.fill("cv", lambda p, a=a: p.cvtpk(a + 2, a + 4, a + 5), 4)
            sc.fill("cv", lambda p, a=a: p.cvtpk(a + 3, a + 6, a + 7), 4, tag=("CV", i), before=dl, lead=10)
            def st(p, a=a, i=i):
                if "O" not in ABL: p.store(a, 4, V_SA, SRD_WS, f"s{S_ST+i}", 0, tag=("ps", i), flags=E("SFL", "sc1"))
            sj = int(E("P0S0", "200")) + int(E("P0SS", "8")) * i
            sc.fill("st", st, 8, after=[("CV", i), bt(sj)], before=bt(max(sj + 8, 144 + 16 * i + 30)), lead=20, tag=("ST", i), solo=SOLO)
        if WTP >= 100:
            for k in range(WTN): sc.fill("wt", lambda p, k=k: w_touch(p, 64 * k), 8, after=bt(WTP - 100 + 4 * k), before=bt(WTP - 92 + 4 * k), solo=True)
        for x in [int(y) for y in E("PSL0", "").split(",") if y]: sc.fill("sl", lambda p: [p.raw("s_nop 15") for _ in range(int(E("PSN", "4")))], 16, before=bt(x), early=0)
        W1 = float(E("P0W1", "5.0")); W2 = float(E("P0W2", "3.0"))
        for i in range(8): fill_dma(sc, [(wload(0, 24 + i), 0)], bt(17 + int(W1 * i)), bt(30 + int(W1 * i)), queue="wl", lead=4)
        for i in range(32):
            j = 17 + int(W1 * (8 + i)) if i < 15 else 146 + int(W2 * (i - 15))
            if i == 0: fill_dma(sc, [(lambda p: next_pair(p, S_WT2), 0)], None, bt(j), queue="wl", lead=4)
            fill_dma(sc, [(wload(1, i, sb=S_WT2), 0)], [bt(j), ("AR", 4)] + (["OK"] if i >= 15 else []), bt(j + 13), queue="wl", lead=4)
        sc.fill("fl", lambda p: p.s(f"s_mov_b32 s{S_WT}, s{S_WT2}"), 4, after=bt(275))
        for r, x in ((S_PO, 64), (S_FO, 64), (S_PC, 1)): sc.fill("fl", lambda p, r=r, x=x: p.s(f"s_add_u32 s{r}, s{r}, {x}"), 4, after=bt(275))
        sc.run()
        q.s(f"s_branch {name}_pass1")
        return q
    p.wait_lgkm0()
    p.s(f"s_branch {name}_pass0")
    pre = p
    p0 = first_pass()
    pe, po = one_pass(0), one_pass(1)
    p = Prog()
    p.label(f"{name}_ptail")
    stamp(p, 17)
    p.vop("v_add_u32", V_JA, f"{AREA + 40960}", V_LIN)
    poll_check(p, f"{name}_pp4", V_FA, f"s{S_PO}", 64, PT3, 0)
    stamp(p, 18)
    for c in range(4): jload(c, 0, POOL[8 + c], S_JC)(p)
    for k in range(4): jload(4 + (k >> 1), k & 1, POOL[12 + k])(p)
    stamp(p, 19)
    for c in (4, 5, 0, 1, 2, 3):
        if c < 4:
            for r in range(8): p.vop("v_add_f32", SUM + 8 * c + r, SUM + 8 * c + r, (ACC + 8 * (c + 1) if c < 3 else OWN) + r)
        reduce(p, c, [JB + 8 * c, JB + 8 * c + 4])
    stamp(p, 20)
    def out(c):
        a = SUM + 8 * c
        for r in range(4): p.cvtpk(a + r, a + 2 * r, a + 2 * r + 1)
        if 0 < c < 4: p.s(f"s_add_u32 s{S_JO}, s{S_JO}, {16 * 1280}")
        p.store(a, 4, V_OA, SRD_OUT, f"s{S_JO if c < 4 else S_EO[c - 4]}", 0, tag="out", flags=E("OFL", ""))
    for c in range(6):
        reduce(p, c, [POOL[8 + c]] if c < 4 else POOL[4 + 2 * c:6 + 2 * c])
        if c: out(c - 1)
    out(5)
    if PROF:
        p.wait_all()
        stamp(p, 21)
        p.s(f"s_getreg_b32 s{S_TM}, hwreg(HW_REG_HW_ID)")
        p.s(f"s_getreg_b32 s{S_TM+1}, hwreg(HW_REG_XCC_ID)")
        p.raw(f"v_writelane_b32 v0, s{S_TM}, 24")
        p.raw(f"v_writelane_b32 v0, s{S_TM+1}, 25")
        p.s(f"s_lshl_b32 s{S_T0}, s2, 2")
        p.s(f"s_add_u32 s{S_T0}, s{S_T0}, s{S_W}")
        p.s(f"s_lshl_b32 s{S_T0}, s{S_T0}, 8")
        p.s(f"s_add_u32 s{S_T0}, s{S_T0}, {PROFOFF}")
        p.vop("v_lshrrev_b32", PT, "2", V_LIN)
        p.store(0, 1, PT, SRD_WS, f"s{S_T0}", 0)
        p.s(f"s_add_u32 s{S_T0}, s{S_T0}, 0x40000")
        p.store(255, 1, PT, SRD_WS, f"s{S_T0}", 0)
        if E("ENC"):
            a_, b_ = E("ENC").split(",")
            if int(E("ENCW", "77")) >= 0:
                p.s(f"s_cmp_lg_u32 s2, {int(E('ENCW', '77'))}")
                p.s(f"s_cbranch_scc1 {name}_end")
            if a_ == "n": p.s(f"s_mov_b32 s56, s{S_NON}")
            else: p.raw(f"v_readlane_b32 s56, v0, {a_}")
            if b_ == "n": p.s(f"s_mov_b32 s57, s{S_NON}")
            else: p.raw(f"v_readlane_b32 s57, v0, {b_}")
            p.raw("s_nop 4")
            p.s("s_sub_u32 s57, s57, s56")
            p.s("s_lshl_b32 s57, s57, 3")
            p.s("s_add_u32 s57, s57, 12000")
            p.label(f"{name}_enc")
            p.s("s_memrealtime s[58:59]")
            p.raw("s_waitcnt lgkmcnt(0)")
            p.s(f"s_sub_u32 s58, s58, s{S_NON}")
            p.s("s_cmp_lt_u32 s58, s57")
            p.s(f"s_cbranch_scc1 {name}_enc")
        if PROF == 5:
            p.s(f"s_cmp_lg_u32 s2, 77")
            p.s(f"s_cbranch_scc1 {name}_end")
            p.s(f"s_cmp_lg_u32 s{S_W}, 0")
            p.s(f"s_cbranch_scc1 {name}_end")
            p.raw("v_readlane_b32 s56, v0, 0")
            for k, ix in enumerate([23, 1, 2, 5, 6, 9, 10, 16, 17, 18, 20, 21]):
                p.raw(f"v_readlane_b32 s57, v0, {ix}")
                p.raw("s_nop 3")
                p.s("s_sub_u32 s57, s57, s56")
                p.raw(f"v_mov_b32 v30, s57")
                p.raw(f"buffer_store_dword v30, off, s[{SRD_DBG}:{SRD_DBG+3}], 0 offset:{8 + 4 * k}")
                p.raw("s_nop 1")
    p.label(f"{name}_end")
    p.raw("s_endpgm")
    rest = [po[0], po[4], pe[0], pe[2], pe[4], *po, *pe, p]
    fw = Prog(); fw.label(f"{name}_fbw"); fw.wait_all(); fw.s(f"s_branch {name}_pass1")
    return [p0, *pe, *po, p, pre, fw], [p0] + rest, [pre, pe[0], pe[4], fw] + rest

def gen(name):
    pro = prologue(name)
    Q = qmod(name)
    AE = aentry(name)
    A = [amod(name, qh) for qh in range(2)]
    F = afin(name)
    P, PS, PS2 = pmod(name)
    SL, SLS = slow(name)
    segs = [pro, Q, AE, A[0], A[1], F] + P + SL
    sims = [[(x, 1) for x in [pro, Q, AE, A[qh], F, AE, A[qh]] + PS] for qh in range(2)]
    sims.append([(x, 1) for x in SLS + PS2])
    lines, stats = finalize([(x, 1) for x in segs], sims=sims)
    if int(E("ROLL", "1")):
        lines = roll(lines, "; ---- a step", 8, S_LOOP, f"{name}_aloop")
        lines = roll(lines, "; ---- q step", 4, S_LOOP, f"{name}_qloop")
    lines += [f"{name}_last:", f".if {name}_last-{name}_pc < {65536 + CPO}", f".fill ({65536 + CPO}-({name}_last-{name}_pc))/4, 4, 0xbf810000", ".endif", f".if {name}_end-{name}_pc > {65536 + CPO}", '.warning "code range"', ".endif"]
    return [f".globl {name}", ".p2align 8", f".type {name},@function", f"{name}:"] + lines, stats
```

```python
from asmlib import *
import math, struct, os
E = os.environ.get
PROF = int(E("PROF", "0"))
ABL = E("ABL", "")
def f2u(f): return struct.unpack("<I", struct.pack("<f", f))[0]
CSCALE = math.log2(math.e) / math.sqrt(128.0)
NWG = 256
LDS_BYTES = 163840
XSL = 18432
XRING = 131072
XALT = 65536 - XSL
WRING = 65536
MISC = 147456
def IMG(kq): return (kq >> 3) * 73728 + (kq & 3) * 18432 + ((kq >> 2) & 1) * 9216
DROP = 0x30000
OOB = 0x40000000
WOT = 0
PART = 128 * 40960
AREA = 18 * 40960
PARTB = 2 * AREA
WFLG = PART + 32 * PARTB
PFLG = WFLG + 8192
WSBYTES = PFLG + 128 * 256
PROFOFF = 0x4000000

SRD_X, SRD_K, SRD_V, SRD_W, SRD_WS, SRD_WO, SRD_OUT, SRD_DBG = 8, 12, 16, 20, 24, 28, 32, 36
S_W = 3
S_T0, S_T1, S_B, S_G, S_P, S_T2 = 40, 41, 42, 43, 44, 45
S_CS, S_NON, S_SPIN, S_PH, S_GRP, S_SO = 46, 48, 50, 51, 52, 53
S_BAD = 54
S_KOFF, S_VOFF, S_KB, S_KVN, S_M0KV, S_WFP = 56, 57, 58, 59, 60, 61
S_WOFF, S_WB, S_XOFF, S_XB = 62, 63, 65, 66
S_M0W, S_M0X8 = 75, 72
S_WT, S_PT, S_PF, S_RD, S_OUTO = 76, 77, 78, 79, 80
S_LO, S_HI = 81, 82
S_TM = 84
S_VB = 88
S_M0KVP, S_KVP, S_M0D, S_U = 89, 91, 94, 95
S_LOOP = 92
S_WT2 = 98

V_DK, V_DV, V_DW, V_DX = 1, 5, 9, 13
V_AK, V_AV0, V_AV1, V_AX, V_AX8, V_LIN = 18, 19, 20, 21, 22, 24
V_E0, V_E1, V_E2 = 25, 26, 27
V_S = 28
V_AW = V_S + 40
V_O = 84
V_T = 244
V_DA = V_T + 3
V_NV = 252
V_JUNK = 254
A_Q, A_QN, A_L, A_ONE, A_POOL, A_X = 256, 336, 416, 436, 440, 472
A_QP = 480
NPOOL = 8
def Qf(n, ks, base=A_Q): return base + (n * 4 + ks) * 4
def Oa(n, m): return V_O + (n * 8 + m) * 4
def XS(par, n): return V_S + (par * 4 + n) * 4 if n < 4 else V_S + 48
def YS(n): return V_S + 32 + n * 4 if n < 4 else V_S + 52
def La(n): return A_L + 4 * n
def Xf(st, t): return V_S + (st * 5 + t) * 4
def QA(r, n, m): return (A_QN if r else V_O) + (n * 8 + m) * 4

def stamp(p, idx, dyn=None):
    if not PROF: return
    p.s(f"s_memrealtime s[{S_TM}:{S_TM+1}]")
    p.s(f"s_memtime s[{S_TM+2}:{S_TM+3}]")
    p.wait_lgkm0()
    if dyn is None:
        p.raw(f"v_writelane_b32 v0, s{S_TM}, {idx}")
        p.raw(f"v_writelane_b32 v255, s{S_TM+2}, {idx}")
    else:
        p.s("s_mov_b32 s99, m0")
        p.s(f"s_lshl_b32 m0, s{dyn}, 2")
        p.s(f"s_add_u32 m0, m0, {idx}")
        p.raw(f"v_writelane_b32 v0, s{S_TM}, m0")
        p.raw(f"v_writelane_b32 v255, s{S_TM+2}, m0")
        p.s("s_mov_b32 m0, s99")

KVSEQ = [("K", 0)]
for u in range(15): KVSEQ += [("K", u + 1), ("V", u)]
KVSEQ += [("V", 15)]
KVPOS = {t: i for i, t in enumerate(KVSEQ)}
DYN = (10, 30)
SRD_C = SRD_WO
S_ROT, S_C, S_D = S_KOFF, S_VOFF, S_VB
def kv_ops(pos):
    pre = pos >= 32; pos %= 32
    kind, u = KVSEQ[pos]
    dyn = DYN[0] <= pos <= DYN[1] and not pre
    ops = []
    for j in range(4):
        def f(p, j=j):
            if dyn:
                if j == 0:
                    if pos == DYN[0]:
                        p.s(f"s_add_u32 s{S_C}, s{S_ROT}, {u * 8192}")
                        p.s(f"s_and_b32 s{S_C}, s{S_C}, 0x1ffff")
                        p.s(f"s_mov_b32 s{S_D}, {16384 if kind == 'V' else -8192}")
                        p.s(f"s_mov_b32 s{S_M0D}, {(pos % 8) * 16384}")
                    p.s(f"s_cmp_gt_i32 s{S_D}, 0")
                    p.s(f"s_cselect_b64 s[{SRD_C}:{SRD_C+1}], s[{SRD_V}:{SRD_V+1}], s[{SRD_K}:{SRD_K+1}]")
                    p.s(f"s_add_u32 m0, s{S_M0KV}, s{S_M0D}")
                    p.s(f"s_add_u32 s{S_SO}, s{S_KB}, s{S_C}")
                if "D" not in ABL: p.dmao(V_DV + j, SRD_C, f"s{S_SO}", j * 1024, (kind, u), "nt")
                if j == 0: p.s(f"s_add_u32 s{S_C}, s{S_C}, s{S_D}")
                if j == 1:
                    p.s(f"s_and_b32 s{S_C}, s{S_C}, 0x1ffff")
                    p.s(f"s_sub_u32 s{S_D}, 8192, s{S_D}")
                if j == 2:
                    p.s(f"s_add_u32 s{S_M0D}, s{S_M0D}, 16384")
                    p.s(f"s_and_b32 s{S_M0D}, s{S_M0D}, 0x1ffff")
                return
            if j == 0:
                if pre: p.s(f"s_add_u32 m0, s{S_M0KVP + (pos >> 2)}, {(pos % 4) * 16384}")
                else: p.s(f"s_add_u32 m0, s{S_M0KV}, {(pos % 8) * 16384}")
                p.s(f"s_add_u32 s{S_SO}, s{S_ROT}, {u * 8192}")
                p.s(f"s_and_b32 s{S_SO}, s{S_SO}, 0x1ffff")
                p.s(f"s_add_u32 s{S_SO}, s{S_SO}, s{S_KVP if pre else S_KB}")
            if "D" not in ABL: p.dmao(V_DV + j, SRD_K if kind == "K" else SRD_V, f"s{S_SO}", j * 1024, (kind, u), "nt")
        ops.append((f, 8))
    return ops
def w_ops(h):
    ops = []
    for j in range(4):
        def f(p, j=j):
            if j == 0:
                p.s(f"s_add_u32 m0, s{S_M0W}, {(h % 4) * 16384}")
                p.s(f"s_add_u32 s{S_SO}, s{S_WB + (h & 1)}, s{S_WOFF}")
            if "W" not in ABL: p.dmao(V_DW + j, SRD_W, f"s{S_SO}", j * 1024, ("W", h))
            if j == 1 and h % 2 == 1: p.s(f"s_add_u32 s{S_WOFF}, s{S_WOFF}, {32 * 8192}")
            if j == 2 and h % 4 == 3:
                p.s(f"s_cmp_ge_u32 s{S_WOFF}, {640 * 8192}")
                p.s(f"s_cselect_b32 s{S_WOFF}, 0, s{S_WOFF}")
        ops.append((f, 12 if j == 0 or (j == 2 and h % 4 == 3) else 8 if j == 1 and h % 2 else 4))
    return ops
def xw_ops(i, h):
    def X(j):
        def f(p):
            p.s(f"s_add_u32 m0, s{S_M0KV if j < 4 else S_M0X8}, {XRING}")
            if j == 0: p.s(f"s_add_u32 s{S_T1}, s{S_XB}, s{S_XOFF}")
            p.dmao(V_DX + j, SRD_X, f"s{S_T1}", (j & 3) * 1024, ("X", i))
            if j == 1: p.s(f"s_add_u32 s{S_XOFF}, s{S_XOFF}, 128")
            if j == 2:
                p.s(f"s_cmp_ge_u32 s{S_XOFF}, 1280")
                p.s(f"s_cselect_b32 s{S_XOFF}, 0, s{S_XOFF}")
        return (f, 8)
    w = w_ops(h)
    W = lambda j: ((lambda p: ((p.s(f"s_add_u32 m0, s{S_M0W}, {(h % 4) * 16384}") if j else None), w[j][0](p))), 8)
    return [X(0), W(0), X(1), W(1), X(2), W(2), X(3), W(3), X(4)]
def x_ops(i):
    ops = []
    sb = XRING if i else XALT
    for j in range(5):
        def f(p, j=j):
            if j == 0:
                p.s(f"s_add_u32 m0, s{S_M0KV}, {sb}")
                p.s(f"s_add_u32 s{S_SO}, s{S_XB}, s{S_XOFF}")
            if "X" not in ABL: p.dmao(V_DX + j, SRD_X, f"s{S_SO}", (j & 3) * 1024, ("X", i), E("XFL", ""))
            if j == 1: p.s(f"s_add_u32 s{S_XOFF}, s{S_XOFF}, 128")
            if j == 2:
                p.s(f"s_cmp_ge_u32 s{S_XOFF}, 1280")
                p.s(f"s_cselect_b32 s{S_XOFF}, 0, s{S_XOFF}")
            if j == 3:
                p.s(f"s_add_u32 m0, s{S_M0X8}, {sb}")
                p.nop(0)
        ops.append((f, 12 if j in (0, 2, 3) else 8 if j == 1 else 4))
    return ops

SRD_E = 4
S_EM, S_ED, S_TAB, S_ES, S_WEND, S_EW = 67, 68, 69, 70, 71, 73
STG = 0x26000
V_WR = V_O + 144
EKP = [int(x) for x in E("EKP", "1,2,1,2").split(",")]
PFP = [int(x) for x in E("PFP", "")]; PFN = len(PFP)
PFS = int(E("PFS", "1"))
S_PFO, S_PFB = 74, 83
def ek_ops(h):
    it = h // 4
    tag = KVSEQ[(it - 1) // 2]
    def kp(p):
        p.s(f"s_and_b32 s{S_ES}, s{S_TAB}, 0x7000")
        p.s(f"s_add_u32 s{S_ES}, s{S_ES}, s{S_ROT}")
        p.s(f"s_and_b32 s{S_ES}, s{S_ES}, 0x1ffff")
        p.s(f"s_add_u32 s{S_ES}, s{S_ES}, s{S_KVP}")
        if PFS > 1 and not PFN:
            p.s(f"s_bitcmp1_b32 s{S_WEND}, 16")
            p.s(f"s_cselect_b32 s{S_ES}, s{S_ES}, {OOB:#x}")
        p.s(f"s_bitcmp1_b32 s{S_TAB}, 15")
        p.s(f"s_cselect_b64 s[{SRD_E}:{SRD_E+1}], s[{SRD_V}:{SRD_V+1}], s[{SRD_K}:{SRD_K+1}]")
        p.s(f"s_lshr_b32 s{S_T0}, s{S_TAB}, 4")
        p.s(f"s_lshl_b32 s{S_TAB}, s{S_TAB}, 28")
        p.s(f"s_or_b32 s{S_TAB}, s{S_TAB}, s{S_T0}")
    def k0(p):
        p.s(f"s_add_u32 m0, s{S_M0KV}, s{S_EM}")
        if "D" not in ABL: p.dmao(V_DV, SRD_E, f"s{S_ES}", 0, tag, "nt")
    def k1(p):
        p.s(f"s_add_u32 m0, s{S_M0KV}, s{S_EM}")
        p.s(f"s_add_u32 s{S_EM}, s{S_EM}, s{S_ED}")
        if "D" not in ABL: p.dmao(V_DV + 1, SRD_E, f"s{S_ES}", 1024, tag, "nt")
        p.s(f"s_xor_b32 s{S_ED}, s{S_ED}, {2048 ^ 14336}")
    def wo(p):
        p.s(f"s_mov_b32 m0, s{S_EW}")
        p.s(f"s_bitcmp1_b32 s{S_WEND}, 0")
        p.s(f"s_cselect_b32 s{S_T0}, s{S_WT}, {OOB:#x}")
        p.dmao(V_DX, SRD_WO, f"s{S_T0}", 0, ("WOP", it), E("WOFL", "nt"))
        p.s(f"s_xor_b32 s{S_EW}, s{S_EW}, 4096")
        p.s(f"s_lshr_b32 s{S_WEND}, s{S_WEND}, 1")
        p.s(f"s_add_u32 s{S_WT}, s{S_WT}, 128")
    def none(p): p.add(Ins(f"buffer_load_dword v{V_JUNK}, off, s[{SRD_DBG}:{SRD_DBG+3}], 0 offset:256", "vm", [], [], tag="none"))
    def pf(srd, du, j, last):
        def f(p):
            p.s(f"s_add_u32 s{S_T0}, s{S_PFO}, {du * 8192}")
            p.s(f"s_and_b32 s{S_T0}, s{S_T0}, 0x1ffff")
            p.s(f"s_add_u32 s{S_T0}, s{S_T0}, s{S_PFB}")
            p.add(Ins(f"buffer_load_dword v{V_JUNK}, v{V_DV + j}, s[{srd}:{srd+3}], s{S_T0} offen offset:{j * 1024} {E('PFFL', '')}", "vm", [V_DV + j], [], tag="pf"))
            if last:
                p.s(f"s_add_u32 s{S_PFO}, s{S_PFO}, {8192 * PFN // 2}")
                p.s(f"s_bitcmp1_b32 s{S_WEND}, 16")
                p.s(f"s_cselect_b32 s{S_PFB}, s{S_KVP}, {OOB:#x}")
        return f
    if int(E("PFD", "0")) == 2:
        def pf(srd, du, j, last):
            def f(p):
                p.s(f"s_mov_b32 m0, s94")
                p.s(f"s_add_u32 s{S_T0}, s{S_PFO}, {du * 8192}")
                p.s(f"s_and_b32 s{S_T0}, s{S_T0}, 0x1ffff")
                p.s(f"s_add_u32 s{S_T0}, s{S_T0}, s{S_PFB}")
                p.dmao(V_DV, srd, f"s{S_T0}", 0, "pf", E("PFFL", ""))
                if last:
                    p.s(f"s_add_u32 s{S_PFO}, s{S_PFO}, {8192 * PFN // 2}")
                    p.s(f"s_bitcmp1_b32 s{S_WEND}, 16")
                    p.s(f"s_cselect_b32 s{S_PFB}, s{S_KVP}, {OOB:#x}")
            return f
    if int(E("PFD", "0")) == 1:
        def pf(srd, du, j, last):
            def f(p):
                p.s(f"s_mov_b32 m0, s94")
                p.s(f"s_and_b32 s{S_T0}, s{S_PFO}, 0x1ffff")
                p.s(f"s_add_u32 s{S_T0}, s{S_T0}, s{S_PFB}")
                p.dmao(V_DV, SRD_V, f"s{S_T0}", 0, "pf", "nt")
                p.s(f"s_add_u32 s{S_PFO}, s{S_PFO}, 2048")
            return f
    fs = [k0, k1, wo, None, kp] if it else [none if x else None for x in EKP[:3]] + [None, kp]
    fs += [pf(SRD_K if k & 1 else SRD_V, (5 if k & 1 else 3) + (k >> 1), 3, k == PFN - 1) if it else (none if PFP[k] else None) for k in range(PFN)]
    fs += [code_touch] * len(CPQ)
    return [(f, 8) for f, x in zip(fs, EKP + [3] + PFP + CPQ) if f and x == h % 4]
def wst(p):
    for i in range(5):
        p.store(A_Q + 16 - 4 * i, 4, V_LIN, SRD_WS, f"s{S_PT}", 0, tag="wst", flags="sc1")
        if i < 4: p.s(f"s_add_u32 s{S_PT}, s{S_PT}, 4096")

def split_ops(ops):
    q = Prog()
    for f, _ in ops: f(q)
    out = []; i = 0; L = [x for x in q.ins if x.kind != "nop"]
    while i < len(L):
        grp = [L[i]]
        if L[i].text.startswith(("s_cmp", "s_bitcmp")): grp.append(L[i + 1])
        i += len(grp)
        out.append((lambda p, grp=grp: [p.add(x) for x in grp], "vm" if grp[0].kind in ("vm", "vml", "vms") else "s", 4 * len(grp)))
    return out
def fill_dma(sc, ops, after, before, tag=None, queue="dma", lead=80):
    so = split_ops(ops)
    for k, (fn, kind, cost) in enumerate(so):
        sc.fill(queue, fn, 8 if kind == "vm" else cost, after=after, before=before, lead=lead, solo=(kind == "vm" and SOLO), paced=(kind == "vm"),
                tag=tag if k == len(so) - 1 else None)
SOLO = int(E("SOLO", "1"))
T7 = int(E("T7", "0"))
def sprinkle(progs, ops, lo=0.0, hi=1.0):
    pts = []
    for p, st in progs:
        masked = False
        for i in range(st, len(p.ins)):
            x = p.ins[i]
            if x.text.startswith("s_mov_b64 exec"): masked = not x.text.endswith("-1")
            if x.kind == "label" and not x.text.startswith(";"): break
            if x.kind in ("valu", "perm") and not masked and p.ins[i - 1].kind in ("valu", "perm") and "v_cmp" not in x.text and "v_cmp" not in p.ins[i - 1].text: pts.append((p, i))
    a, b = int(lo * len(pts)), int(hi * len(pts))
    sel = [pts[a + (k * (b - a)) // len(ops)] for k in range(len(ops))]
    for (p, i), (fn, _) in reversed(list(zip(sel, ops))):
        q = Prog(); fn(q)
        p.ins[i:i] = q.ins

V_CP = 2
V_WP, WTP = 23, int(E("WTP", "-1"))
CPO = int(E("CPO", "1536"))
CPQ = [int(x) for x in E("CPQ", "2")]
CPA = [int(x) for x in E("CPA", "").split(",") if x]
WTN = int(E("WTN", "2"))
def w_touch(p, off): p.add(Ins(f"buffer_load_dword v{V_JUNK}, v{V_WP}, s[{SRD_WS}:{SRD_WS+3}], 0 offen offset:{off} sc1", "vm", [V_WP], [], tag="wtp"))
def code_addr(p, name, L):
    p.s(f"s_getpc_b64 s[{S_TM}:{S_TM+1}]")
    p.label(f"{name}_pc")
    p.s(f"s_lshr_b32 s{S_T0}, s2, 1")
    p.s(f"s_and_b32 s{S_T0}, s{S_T0}, 0x7c")
    p.s(f"s_add_u32 s{S_T0}, s{S_T0}, s{S_W}")
    p.s(f"s_lshl_b32 s{S_T0}, s{S_T0}, 9")
    p.s(f"s_add_u32 s{S_T0}, s{S_T0}, {CPO}")
    p.s(f"s_add_u32 s{S_TM}, s{S_TM}, s{S_T0}")
    p.s(f"s_addc_u32 s{S_TM+1}, s{S_TM+1}, 0")
    p.raw(f"v_and_b32 v{V_CP}, {7 if int(E('CP64', '0')) else 3}, v{L}")
    p.raw(f"v_lshlrev_b32 v{V_CP}, {6 if int(E('CP64', '0')) else 7}, v{V_CP}")
    p.raw(f"v_mov_b32 v{V_CP+1}, s{S_TM+1}")
    p.raw(f"v_add_co_u32 v{V_CP}, vcc, s{S_TM}, v{V_CP}")
    p.raw("s_nop 1")
    p.raw(f"v_addc_co_u32 v{V_CP+1}, vcc, 0, v{V_CP+1}, vcc")
def code_touch(p): p.add(Ins(f"global_load_dword v{V_JUNK}, v[{V_CP}:{V_CP+1}], off", "vm", [], [], tag="code"))

def get_nonce(p, name, t):
    p.add(Ins(f"v_readfirstlane_b32 s{S_NON}, v{V_NV}", "rfl", [V_NV], []))
    p.add(Ins(f"v_readfirstlane_b32 s{S_NON+1}, v{V_NV+1}", "rfl", [V_NV + 1], []))
    p.s(f"s_cmp_lt_i32 s{S_NON+1}, 0")
    p.s(f"s_cbranch_scc1 {name}_x")
    p.vop("v_mov_b32", t + 2, "0")
    p.label(f"{name}")
    p.raw(f"buffer_load_dwordx2 v[{t}:{t+1}], v{t+2}, s[{SRD_DBG}:{SRD_DBG+3}], 0 offen sc1")
    p.raw("s_waitcnt vmcnt(0)")
    p.raw(f"v_readfirstlane_b32 s{S_NON}, v{t}")
    p.raw(f"v_readfirstlane_b32 s{S_NON+1}, v{t+1}")
    p.s(f"s_sub_u32 s{S_SPIN}, s{S_SPIN}, 1")
    p.s(f"s_cbranch_scc1 {name}_x")
    p.s(f"s_cmp_lt_i32 s{S_NON+1}, 0")
    p.s(f"s_cbranch_scc0 {name}")
    p.label(f"{name}_x")
    p.nop(1)

def publish(p, soff, off, t):
    p.vop("v_mov_b32", t, f"s{S_NON}")
    p.vop("v_mov_b32", t + 1, f"s{S_NON+1}")
    p.s("s_mov_b64 exec, 1")
    p.store(t, 2, V_LIN, SRD_WS, soff, off, tag="flag", flags="sc1")
    p.s("s_mov_b64 exec, -1")

def poll_issue(p, vaddr, soff, off, t):
    p.add(Ins(f"buffer_load_dwordx2 v[{t}:{t+1}], v{vaddr}, s[{SRD_WS}:{SRD_WS+3}], {soff} offen offset:{off} sc1", "vml", [vaddr], [t, t + 1], tag="poll"))
def poll_check(p, name, vaddr, soff, off, t, slp=2):
    p.label(f"{name}")
    p.add(Ins(f"v_cmp_ne_u32 vcc, s{S_NON}, v{t}", "valu", [t], []))
    p.add(Ins(f"v_cmp_ne_u32 s[{S_TM+2}:{S_TM+3}], s{S_NON+1}, v{t+1}", "valu", [t + 1], []))
    p.s(f"s_or_b64 vcc, vcc, s[{S_TM+2}:{S_TM+3}]")
    if "Y" in ABL and "pp" in name: p.s(f"s_branch {name}_ok")
    p.s(f"s_cbranch_scc0 {name}_ok")
    p.s(f"s_sub_u32 s{S_SPIN}, s{S_SPIN}, 1")
    p.s(f"s_cbranch_scc1 {name}_ok")
    if slp: p.s(f"s_sleep {slp}")
    p.raw(f"buffer_load_dwordx2 v[{t}:{t+1}], v{vaddr}, s[{SRD_WS}:{SRD_WS+3}], {soff} offen offset:{off} sc1")
    p.raw("s_waitcnt vmcnt(0)")
    p.s(f"s_branch {name}")
    p.label(f"{name}_ok")

PRO = int(E("PRO", "0"))
def prologue(name):
    p = Prog()
    if PROF: p.s("s_memrealtime s[100:101]")
    p.s(f"s_cmp_ge_u32 s2, {NWG}")
    p.s(f"s_cbranch_scc1 {name}_end")
    p.s("s_load_dwordx8 s[84:91], s[0:1], 0")
    p.s("s_load_dwordx8 s[92:99], s[0:1], 32")
    T = V_O
    W, L, a, b, c, d, U, P, VV, R8, PI, M, G, cv = range(T, T + 14)
    p.vop("v_lshrrev_b32", W, "6", 0)
    p.vop("v_and_b32", L, "63", 0)
    p.add(Ins(f"v_readfirstlane_b32 s{S_W}, v{W}", "rfl", [W], []))
    p.vop("v_and_b32", U, "1", W)
    p.vop("v_lshrrev_b32", P, "1", W)
    p.vop("v_lshrrev_b32", VV, "5", L)
    p.vop("v_bfe_u32", R8, L, "2", "3")
    p.vop("v_and_b32", PI, "3", L)
    p.s(f"s_movk_i32 s{S_T0}, 1280")
    p.vop("v_mul_lo_u32", a, R8, f"s{S_T0}")
    p.vop("v_lshl_add_u32", a, VV, "6", a)
    p.vop("v_xor_b32", c, "3", PI)
    p.vop("v_lshl_add_u32", V_DX, PI, "4", a)
    p.vop("v_lshl_add_u32", b, c, "4", a)
    p.vop("v_add_u32", V_DX + 1, f"{9216}", b)
    p.vop("v_add_u32", V_DX + 2, f"{2 * 9216}", V_DX)
    p.vop("v_add_u32", V_DX + 3, f"{3 * 9216}", b)
    p.vop("v_lshrrev_b32", d, "2", R8)
    p.vop("v_lshlrev_b32", cv, "1", d)
    p.vop("v_xor_b32", cv, cv, PI)
    p.vop("v_and_b32", b, "3", R8)
    p.vop("v_lshl_add_u32", b, d, "3", b)
    p.vop("v_lshlrev_b32", d, "7", U)
    p.vop("v_lshl_add_u32", d, VV, "6", d)
    p.vop("v_lshl_add_u32", b, b, "13", d)
    p.vop("v_lshl_add_u32", V_DW, cv, "4", b)
    for j in range(1, 4): p.vop("v_add_u32", V_DW + j, f"{(16 * (j & 1) + 4 * (j >> 1)) * 8192 - 1024 * j}", V_DW)
    p.vop("v_mul_u32_u24", b, "3", P)
    p.vop("v_xor_b32", b, b, PI)
    p.vop("v_lshl_add_u32", b, b, "4", a)
    p.vop("v_lshlrev_b32", a, "2", W)
    p.vop("v_sub_u32", a, P, a)
    p.vop("v_add_u32", a, "16", a)
    p.s(f"s_movk_i32 s{S_T1}, {8 * 1280}")
    p.vop("v_mul_lo_u32", a, a, f"s{S_T1}")
    p.vop("v_add_u32", a, a, b)
    p.vop("v_lshl_add_u32", V_DX + 4, U, "30", a)
    MAP = int(E("MAP", "0"))
    p.s(f"s_bfe_u32 s{S_T0}, s2, {(MAP << 16) | 3:#x}")
    p.s(f"s_lshr_b32 s{S_T2}, s2, {3 + MAP}")
    p.s(f"s_and_b32 s{S_G}, s2, {(1 << (3 - MAP)) - 1}")
    p.s(f"s_lshl_b32 s{S_G}, s{S_G}, {MAP}")
    p.s(f"s_or_b32 s{S_G}, s{S_G}, s{S_T0}")
    p.s(f"s_bfe_u32 s{S_B}, s2, {(MAP << 16) | (3 - MAP):#x}")
    p.s(f"s_lshl_b32 s{S_B}, s{S_B}, {5 - MAP}")
    p.s(f"s_or_b32 s{S_B}, s{S_B}, s{S_T2}")
    p.s(f"s_mul_i32 s{S_T0}, s{S_T0}, {int(E('PHM', str(1 << (5 - MAP))))}")
    p.s(f"s_lshl_b32 s{S_T2}, s{S_T2}, {MAP}")
    p.s(f"s_add_u32 s{S_T2}, s{S_T2}, s{S_T0}")
    if int(E("GPH", "0")):
        p.s(f"s_and_b32 s{S_T0}, s{S_G}, {int(E('GPM', '7'))}")
        p.s(f"s_mul_i32 s{S_T0}, s{S_T0}, {int(E('GPH', '0'))}")
        p.s(f"s_add_u32 s{S_T2}, s{S_T2}, s{S_T0}")
    p.s(f"s_and_b32 s{S_T2}, s{S_T2}, 31")
    p.s(f"s_lshr_b32 s{S_P}, s{S_W}, 1")
    p.s(f"s_lshl_b32 s{S_M0KV}, s{S_W}, 12")
    p.s(f"s_add_u32 s{S_M0W}, s{S_M0KV}, {WRING}")
    p.s(f"s_lshl_b32 s{S_M0X8}, s{S_P}, 10")
    p.s(f"s_add_u32 s{S_M0X8}, s{S_M0X8}, 16384")
    p.s(f"s_bitcmp1_b32 s{S_W}, 0")
    p.s(f"s_cselect_b32 s{S_M0X8}, 0x1d000, s{S_M0X8}")
    p.s(f"s_lshl_b32 s{S_T0}, s{S_G}, 2")
    p.s(f"s_add_u32 s{S_T0}, s{S_T0}, s{S_P}")
    p.s(f"s_lshl_b32 s{S_WB}, s{S_T0}, 8")
    p.s(f"s_add_u32 s{S_WB+1}, s{S_WB}, 512")
    p.s(f"s_lshl_b32 s{S_T1}, s{S_B}, 5")
    p.s(f"s_add_u32 s{S_T0}, s{S_T0}, s{S_T1}")
    p.s(f"s_lshl_b32 s{S_KVN}, s{S_T0}, 17")
    p.s(f"s_mul_i32 s{S_T0}, s{S_T2}, 5")
    p.s(f"s_lshr_b32 s{S_T0}, s{S_T0}, 4")
    if not int(E("ROT", "1")): p.s(f"s_mov_b32 s{S_T0}, 0")
    p.s(f"s_lshl_b32 s{S_XOFF}, s{S_T0}, 7")
    p.s(f"s_lshl_b32 s{S_WOFF}, s{S_T0}, 19")
    p.s(f"s_mul_i32 s{S_XB}, s{S_B}, {144 * 1280}")
    p.s(f"s_mul_i32 s{S_T0}, s{S_W}, {32 * 1280}")
    p.s(f"s_add_u32 s{S_XB}, s{S_XB}, s{S_T0}")
    def srd(r, src, size):
        p.s(f"s_mov_b32 s{r+2}, {size:#x}")
        p.s(f"s_mov_b32 s{r+3}, 0x20000")
    def srd2(r, src):
        p.s(f"s_mov_b32 s{r}, s{src}")
        p.s(f"s_and_b32 s{r+1}, s{src+1}, 0xffff")
    SR = ((SRD_X, 84, 32 * 144 * 640 * 2), (SRD_W, 90, 640 * 4096 * 2), (SRD_K, 86, 1 << 27), (SRD_V, 88, 1 << 27),
          (SRD_WO, 92, 4096 * 640 * 2), (SRD_OUT, 94, 32 * 144 * 640 * 2), (SRD_DBG, 96, 256), (SRD_WS, 98, (1 << 28) if PROF else WSBYTES))
    for x in SR: srd(*x)
    if PROF: p.s("s_memrealtime s[66:67]") if 0 else None
    p.s("s_waitcnt lgkmcnt(0)")
    if PROF: p.s("s_memrealtime s[4:5]")
    for x in SR[:2]: srd2(*x[:2])
    for ops in (x_ops(0), w_ops(0), w_ops(1)):
        for f, _ in ops: f(p)
    for x in SR[2:]: srd2(*x[:2])
    stamp(p, 0)
    if PROF:
        p.raw("v_writelane_b32 v0, s100, 3")
        p.raw("v_writelane_b32 v0, s4, 4")
    p.vop("v_lshlrev_b32", V_LIN, "4", L)
    code_addr(p, name, L)
    code_touch(p)
    p.vop("v_lshl_add_u32", b, R8, "8", d)
    p.vop("v_lshl_add_u32", V_DV, cv, "4", b)
    for j in range(1, 4): p.vop("v_add_u32", V_DV + j, f"{1024 * j}", V_DV)
    if E("LINT", "") == "1":
        for j in range(4): p.vop("v_lshl_add_u32", V_DV + j, U, "12", V_LIN)
    if E("LINT", "") == "2":
        p.vop("v_lshl_add_u32", V_DV, U, "10", V_LIN)
        for j in range(1, 4): p.vop("v_add_u32", V_DV + j, f"{1024 * j}", V_DV)
    p.s(f"s_lshl_b32 s{S_T0}, s2, 1")
    p.s(f"s_add_u32 s{S_T0}, s{S_T0}, s{S_P}")
    p.s(f"s_mul_i32 s{S_T0}, s{S_T0}, {int(E('KROT', '5'))}")
    p.s(f"s_lshr_b32 s{S_T1}, s2, 3")
    p.s(f"s_add_u32 s{S_T0}, s{S_T0}, s{S_T1}")
    p.s(f"s_and_b32 s{S_T0}, s{S_T0}, {15 if int(E('KROT', '5')) else 0}")
    p.s(f"s_lshl_b32 s{S_KOFF}, s{S_T0}, 13")
    p.s(f"s_mov_b32 s{S_M0KVP}, s{S_M0KV}")
    p.s(f"s_mov_b32 s{S_M0KVP+1}, s{S_M0W}")
    p.s(f"s_mov_b32 s{S_KVP}, s{S_KVN}")
    p.s(f"s_mov_b32 s{S_EM}, 0")
    p.s(f"s_movk_i32 s{S_ED}, 2048")
    p.s(f"s_mov_b32 s{S_TAB}, 0x83210549")
    srd(SRD_E, 0, 1 << 27)
    p.s(f"s_and_b32 s{S_U}, s{S_W}, 1")
    p.s(f"s_lshl_b32 s{S_T0}, s{S_B}, 2")
    p.s(f"s_lshr_b32 s{S_T1}, s{S_G}, 1")
    p.s(f"s_add_u32 s{S_T0}, s{S_T0}, s{S_T1}")
    p.s(f"s_and_b32 s{S_T1}, s{S_G}, 1")
    p.s(f"s_lshl_b32 s{S_WFP}, s{S_P}, 7")
    p.s(f"s_add_u32 s{S_WFP}, s{S_WFP}, s{S_T0}")
    p.s(f"s_lshl1_add_u32 s{S_WFP}, s{S_WFP}, s{S_T1}")
    p.s(f"s_lshl1_add_u32 s{S_WFP}, s{S_WFP}, s{S_U}")
    p.s(f"s_lshl3_add_u32 s{S_WFP}, s{S_WFP}, {WFLG}")
    p.s(f"s_mul_i32 s{S_T0}, s{S_T0}, 40960")
    p.s(f"s_mul_i32 s{S_PT}, s{S_T1}, 20480")
    p.s(f"s_add_u32 s{S_PT}, s{S_PT}, s{S_T0}")
    p.s(f"s_lshl_b32 s{S_EW}, s{S_W}, 10")
    p.s(f"s_add_u32 s{S_PT}, s{S_PT}, s{S_EW}")
    p.s(f"s_add_u32 s{S_EW}, s{S_EW}, {STG}")
    p.s(f"s_mul_i32 s{S_T1}, s{S_T1}, 640")
    p.s(f"s_add_u32 s{S_WT}, s{S_T1}, s{S_T0}")
    p.s(f"s_mul_i32 s{S_T1}, s{S_W}, {8 * 1280}")
    p.s(f"s_add_u32 s{S_WT}, s{S_WT}, s{S_T1}")
    p.s(f"s_mov_b32 s{S_WEND}, {0x7c | ((0xfff << (15 + PFS)) & 0x7fff0000):#x}")
    if PFN:
        p.s(f"s_lshl_b32 s94, s{S_W}, 10")
        p.s(f"s_add_u32 s94, s94, {XRING + XSL}")
        p.s(f"s_sub_u32 s{S_PFO}, s{S_KOFF}, {8192 * PFN // 2 * (PFS - 1) + 65536 * (int(E('PFD', '0')) == 1)}")
        if int(E("PFD", "0")) == 2:
            p.s(f"s_add_u32 s{S_T0}, s{S_B}, s{S_G}")
            p.s(f"s_add_u32 s{S_T0}, s{S_T0}, s{S_P}")
            p.s(f"s_and_b32 s{S_T0}, s{S_T0}, 3")
            p.s(f"s_lshl_b32 s{S_T0}, s{S_T0}, 11")
            p.s(f"s_add_u32 s{S_PFO}, s{S_PFO}, s{S_T0}")
        p.s(f"s_mov_b32 s{S_PFB}, " + (f"s{S_KVP}" if PFS == 1 else f"{OOB:#x}"))
    if int(E("TOUCH", "1")):
        p.add(Ins(f"buffer_load_dword v{V_T+4}, off, s[{SRD_K}:{SRD_K+3}], s{S_KVN} nt", "vml", [], [V_T + 4], tag="touch"))
        p.add(Ins(f"buffer_load_dword v{V_T+5}, off, s[{SRD_V}:{SRD_V+3}], s{S_KVN} nt", "vml", [], [V_T + 5], tag="touch"))
        p.add(Ins(f"buffer_load_dword v{V_T+7}, off, s[{SRD_WS}:{SRD_WS+3}], s{S_PT} sc1", "vml", [], [V_T + 7], tag="touch"))
        if int(E("TOUCHO", "1")): p.add(Ins(f"buffer_load_dword v{V_T+6}, off, s[{SRD_WO}:{SRD_WO+3}], s{S_WT}", "vml", [], [V_T + 6], tag="touch"))
    p.s(f"s_sub_u32 s{S_WT}, s{S_WT}, 256")
    FWARM = int(E("FWARM", "3"))
    if FWARM & 1:
        p.s(f"s_lshl2_add_u32 s{S_T0}, s{S_B}, s{S_W}")
        p.s(f"s_and_b32 s{S_T1}, s{S_G}, 3")
        p.s(f"s_lshl2_add_u32 s{S_T0}, s{S_T0}, s{S_T1}")
        p.s(f"s_lshl_b32 s{S_T0}, s{S_T0}, 6")
        p.s(f"s_add_u32 s{S_T0}, s{S_T0}, {PFLG}")
        p.add(Ins(f"buffer_load_dword v{V_JUNK}, off, s[{SRD_WS}:{SRD_WS+3}], s{S_T0} sc1", "vm", [], [], tag="touch"))
    if FWARM & 4:
        p.s(f"s_lshl2_add_u32 s{S_T0}, s{S_B}, s{S_W}")
        p.s(f"s_mul_i32 s{S_T1}, s{S_T0}, {PARTB // 4}")
        p.s(f"s_add_u32 s{S_T1}, s{S_T1}, {PART}")
        p.add(Ins(f"buffer_load_dword v{V_JUNK}, off, s[{SRD_WS}:{SRD_WS+3}], s{S_T1} sc1 nt", "vm", [], [], tag="touch"))
        p.s(f"s_mul_i32 s{S_T1}, s{S_T0}, {36 * 1280}")
        p.add(Ins(f"buffer_load_dword v{V_JUNK}, off, s[{SRD_OUT}:{SRD_OUT+3}], s{S_T1} sc1 nt", "vm", [], [], tag="touch"))
    if FWARM & 8:
        p.vop("v_mul_u32_u24", V_T + 3, f"{PARTB // 64}", L)
        p.s(f"s_mul_i32 s{S_T1}, s{S_B}, {PARTB}")
        p.s(f"s_add_u32 s{S_T1}, s{S_T1}, {PART}")
        p.s(f"s_cmp_eq_u32 s{S_W}, 0")
        p.s(f"s_cselect_b32 s{S_T1}, s{S_T1}, {OOB:#x}")
        p.add(Ins(f"buffer_load_dword v{V_JUNK}, v{V_T+3}, s[{SRD_WS}:{SRD_WS+3}], s{S_T1} offen sc1 nt", "vm", [V_T + 3], [], tag="touch"))
    if FWARM & 2: p.add(Ins(f"buffer_load_dword v{V_JUNK}, off, s[{SRD_WS}:{SRD_WS+3}], s{S_WFP} sc1", "vm", [], [], tag="touch"))
    p.s(f"s_or_b32 s{S_T0}, s2, s{S_W}")
    p.s(f"s_cmp_lg_u32 s{S_T0}, 0")
    p.s(f"s_cbranch_scc1 {name}_nononce")
    p.s(f"s_memrealtime s[{S_NON}:{S_NON+1}]")
    p.s("s_waitcnt lgkmcnt(0)")
    p.s(f"s_or_b32 s{S_NON+1}, s{S_NON+1}, 0x80000000")
    p.raw(f"v_mov_b32 v{V_T}, s{S_NON}")
    p.raw(f"v_mov_b32 v{V_T+1}, s{S_NON+1}")
    p.s("s_mov_b64 exec, 1")
    p.raw(f"buffer_store_dwordx2 v[{V_T}:{V_T+1}], v{V_LIN}, s[{SRD_DBG}:{SRD_DBG+3}], 0 offen sc1")
    p.s("s_mov_b64 exec, -1")
    p.label(f"{name}_nononce")
    p.s(f"s_mov_b32 s{S_SPIN}, 0x40000")
    p.s(f"s_mov_b32 s{S_PH}, 0")
    if QT:
        p.s(f"s_add_u32 s{S_T0}, s{S_B}, s{S_G}")
        p.s(f"s_and_b32 s{S_T0}, s{S_T0}, {QT[1]}")
        p.s(f"s_add_u32 s{S_T0}, s{S_T0}, {QT[0]}")
        p.s(f"s_lshl_b32 s{S_TI}, 1, s{S_T0}")
    if PROF in (2, 3): p.s("s_mov_b32 s93, 32")
    p.s(f"s_mov_b64 s[{S_BAD}:{S_BAD+1}], 0")
    p.s(f"s_mov_b32 s{S_CS}, {f2u(CSCALE):#x}")
    p.s(f"s_mov_b32 s{S_CS+1}, s{S_CS}")
    p.s(f"s_mov_b32 s{S_LO}, {f2u(2.0 ** -24):#x}")
    p.s(f"s_mov_b32 s{S_HI}, {f2u(2.0 ** 16):#x}")
    p.vop("v_and_b32", M, "15", L)
    p.vop("v_lshrrev_b32", G, "4", L)
    p.vop("v_lshrrev_b32", a, "3", M)
    p.vop("v_mul_u32_u24", c, "3", a)
    p.vop("v_xor_b32", c, c, G)
    p.vop("v_and_b32", b, "7", M)
    p.vop("v_lshlrev_b32", b, "6", b)
    p.vop("v_lshl_add_u32", b, c, "4", b)
    p.vop("v_lshl_add_u32", b, a, "10", b)
    p.vop("v_add_u32", V_AX8, f"{XRING}", b)
    p.vop("v_lshl_add_u32", V_AX, U, "13", V_AX8)
    p.vop("v_add_u32", V_AW + 5, f"{XALT}", b)
    p.vop("v_lshl_add_u32", V_AW + 4, U, "13", V_AW + 5)
    p.vop("v_and_b32", c, "0x1ff", V_LIN)
    p.vop("v_lshl_add_u32", c, VV, "10", c)
    p.vop("v_lshl_add_u32", c, P, "9", c)
    p.vop("v_lshl_add_u32", c, U, "3", c)
    p.vop("v_add_u32", V_WR, f"{STG + 4096}", c)
    p.vop("v_and_b32", b, "0xffffffcf", b)
    p.vop("v_bfe_u32", a, M, "2", "1")
    p.vop("v_lshlrev_b32", a, "1", a)
    p.vop("v_xor_b32", a, a, G)
    p.vop("v_lshl_add_u32", b, a, "4", b)
    p.vop("v_lshl_add_u32", V_AK, P, "13", b)
    p.vop("v_lshrrev_b32", a, "1", G)
    p.vop("v_lshlrev_b32", b, "10", a)
    p.vop("v_lshl_add_u32", b, R8, "6", b)
    p.vop("v_and_b32", c, "1", L)
    p.vop("v_lshl_add_u32", b, c, "3", b)
    p.vop("v_bfe_u32", c, L, "1", "1")
    p.vop("v_lshl_add_u32", b, c, "4", b)
    p.vop("v_and_b32", c, "1", G)
    p.vop("v_lshl_add_u32", b, c, "5", b)
    p.vop("v_lshl_add_u32", V_AV0, P, "13", b)
    p.vop("v_xor_b32", V_AV1, "32", V_AV0)
    p.vop("v_lshl_add_u32", a, U, "12", V_AV0)
    p.vop("v_xor_b32", b, "32", a)
    p.vop("v_xor_b32", c, "4096", a)
    p.vop("v_xor_b32", d, "4096", b)
    for i, r in enumerate((a, b, c, d)): p.vop("v_add_u32", V_AW + i, f"{WRING}", r)
    for ops in (w_ops(2), x_ops(1), w_ops(3))[:3 - PRO]:
        for f, _ in ops: f(p)
    stamp(p, 23)
    return p

def R128(d, a, off): return lambda p: p.ds_read128(d, a, off)
def TR(d, a, off): return lambda p: p.ds_tr(d, a, off)

class Pool:
    def __init__(self, sc, base, n):
        self.sc = sc; self.regs = base if isinstance(base, list) else [base + 4 * k for k in range(n)]; n = len(self.regs); self.n = n; self.last = [None] * n; self.i = 0; self.frags = []
    def frag(self, tile, mk_reads, consumers, as_b=False):
        k = self.i % self.n; self.i += 1
        r = self.regs[k]
        war = self.last[k]
        for (d, o, c, tag) in consumers:
            if as_b: self.sc.mfma(d, o, r, c, tag)
            else: self.sc.mfma(d, r, o, c, tag)
        self.last[k] = consumers[-1][3]
        self.frags.append((tile, mk_reads(r), consumers[0][3], war))

LEAD = int(E("LEAD", "9"))
LEADB = int(E("LEADB", "8"))
BGAP = int(E("BGAP", "4"))

def sstamp(p):
    p.s(f"s_memrealtime s[{S_TM}:{S_TM+1}]")
    p.s(f"s_memtime s[{S_TM+2}:{S_TM+3}]")
    p.wait_lgkm0()
    p.s("s_mov_b32 s99, m0")
    p.s("s_mov_b32 m0, s93")
    p.s("s_add_u32 s93, s93, 1")
    p.raw(f"v_writelane_b32 v0, s{S_TM}, m0")
    p.raw(f"v_writelane_b32 v255, s{S_TM+2}, m0")
    p.s("s_mov_b32 m0, s99")

QT = [int(x) for x in E("QT", "2,0,0,0,3").split(",") if x]
def qmod(name):
    p = Prog()
    KVS = [-1] * 4 + [int(x) for x in E("KVS", "37").split(",")]
    sc = Sched(p, budget=int(E("QBUD", "8")), late_extra=8)
    sc.group["dma"] = "vm"; sc.pace["vm"] = int(E("QPACE", "4"))
    sc.maxds = int(E("QMAXDS", "1"))
    pool = Pool(sc, A_QP, NPOOL)
    for h in range(40):
        r = h & 1; st = (h >> 1) & 1
        for k in range(8):
            off = (h % 4) * 16384 + ((k >> 1) & 1) * 512
            ad = V_AW + 2 * (k >> 2) + (k & 1)
            cons = [(QA(r, n, k), Xf(st, n), QA(r, n, k) if h > 1 else None, ("Q", h, k, n)) for n in range(5 if k < 4 else 4)]
            if int(E("QSNK", "1")) and k % 2 == 0: cons.reverse()
            pool.frag(h, lambda rg: [TR(rg, ad, off), TR(rg + 2, ad, off + 2048)], cons)
    mt = lambda i: sc.m[max(0, min(i, len(sc.m) - 1))][4]
    XT = int(E("XT", "1")); A_XT = A_Q + 40
    def xreads(i, kh):
        return [R128(A_XT + 4 * n if (XT and kh and i) else Xf(kh, n), (V_AX if i else V_AW + 4) + (n >> 2), (n if n < 4 else 8) * 2048 + kh * 512) for n in range(5)]
    for fi, (h, reads, cons, war) in enumerate(pool.frags):
        c0 = 36 * h
        tau = c0 - LEADB
        taun = c0 + 36 - LEADB
        if fi % 8 == 0:
            def bar(p, h=h):
                p.comment(f"---- q step {h}")
                tags = [("W", h)]
                if h == 0: tags.append(("X", 0))
                if h % 4 == 3 and h < 39: tags.append(("X", (h + 1) // 4))
                if h % 4 == EKP[3] and 4 <= h < 36: tags.append(("WOP", h // 4 - 1))
                if QT and h % 4 in QT[3:] and h >= 1:
                    p.s(f"s_lshr_b32 s{S_TI}, s{S_TI}, 1")
                    p.s("s_cbranch_scc0 1")
                    p.raw(f"s_waitcnt vmcnt({QT[2]})")
                p.wait_vm(tags, lgkm0=True)
                if "b" not in ABL or h < 4: p.barrier()
                if PROF == 2 and h % 2 == 0: sstamp(p)
                if int(E("QSL", "0")) and (h < 3 or int(E("QSA", "0"))): p.raw(f"s_nop {int(E('QSL', '0'))}")
            ops = []
            if h % 4 == 1 - XT and 4 <= h < 36: ops += x_ops(h // 4 + 1)
            if 1 <= h < 37: ops += w_ops(h + 3)
            if h == 0 and PRO: ops += sum([w_ops(2), x_ops(1), w_ops(3)][3 - PRO:], [])
            if int(E("XW", "0")) and h % 4 == 0 and 4 <= h < 36: ops = xw_ops(h // 4 + 1, h + 3)
            if "d" in ABL: ops = []
            nb = len(ops)
            if h < 36: ops = ek_ops(h) + ops if (h % 4 == 0 and int(E("EKF", "0"))) else ops + ek_ops(h)
            nb = len(ops) - nb
            if h % 4 == EKP[3] and 4 <= h < 36:
                for r in range(15, -1, -1): sc.fill("rw", lambda p, r=r: p.amov(A_Q + 4 + r, A_Q + r), 4, after=dict(tag=("BAR", h), delay=14))
                for i in range(2): sc.fill("rw", TR(A_Q + 2 * i, V_WR, i * 2048), 4, ds=True, before=mt(taun - BGAP), lead=2)
                sc.fill("rw", lambda p: p.vop("v_xor_b32", V_WR, "4096", V_WR), 4, before=mt(taun - 1))
            if h == 36 and "S" not in ABL: ops += [(wst, 20)]
            for k, x in enumerate(KVS):
                if x == h: ops += kv_ops(32 + k)
            sc.fill("rd", bar, 8, before=mt(tau), early=0 if h else None, tag=("BAR", h))
            QD = int(E("QD", "14")) - 4 * nb * int(E("QDE", "0")) if (len(ops) - nb <= 4 and h) else int(E("QD2", "0"))
            fill_dma(sc, ops, dict(tag=("BAR", h), delay=QD), mt(taun - 1))
            if h == 0:
                for k, fn in enumerate(xreads(0, 0)): sc.fill("rd", fn, 4, ds=True, before=mt(0))
            xr = []; aft = [("BAR", h)]
            if h % 4 == 3 and h < 39: xr = xreads((h + 1) // 4, 0)
            if XT and xr: xr += xreads((h + 1) // 4, 1)
            if XT and h % 4 == 0 and h:
                for r in range(20): sc.fill("cp", lambda p, r=r: p.ar(Xf(1, 0) + r, A_XT + r), 4, after=dict(tag=("Q", h - 1, 7, 3), delay=1), before=mt(c0 + 62), lead=0, early=int(E("XCE", "20")))
            elif h % 4 == 0:
                xr = xreads(h // 4, 1)
                if h: aft.append(("Q", h - 1, 7, 3))
            for j, fn in enumerate(xr):
                sc.fill("rx", fn, 4, ds=True, after=aft, before=mt(taun - BGAP), lead=(2 if XT else 3) * (len(xr) - j))
        for k, fn in enumerate(reads):
            if "r" in ABL and h >= 2: continue
            bf = cons
            if sc.idx[cons] > taun - BGAP: bf = mt(taun - BGAP)
            sc.fill("rd", fn, 4, ds=True, after=war if k == 0 else None, before=bf, lead=LEAD if bf is cons else 0, early=int(E("QEARLY", "99")))
    def lastbar(p):
        p.comment("---- q step 40")
        p.wait_lgkm0(); p.barrier()
        p.add(Ins(f"buffer_load_dwordx2 v[{V_NV}:{V_NV+1}], off, s[{SRD_DBG}:{SRD_DBG+3}], 0 sc1", "vml", [], [V_NV, V_NV + 1], tag="non"))
    sc.fill("rd", lastbar, 8, before=mt(36 * 40 - LEADB), early=0)
    sc.run()
    stamp(p, 1)
    fstart = len(p.ins)
    TB = V_O + 144
    cnt = [0]
    def fin(r, n, t, i):
        s0 = QA(r, n, 2 * t)
        if r:
            tb = TB + 8 * (cnt[0] & 1); cnt[0] += 1
            for x in range(8): p.ar(tb + x, s0 + x)
            s0 = tb
        dst = V_S + 4 * i
        for x in range(0, 8, 2): p.pkmul(s0 + x, s0 + x, f"s[{S_CS}:{S_CS+1}]")
        for x in range(4): p.cvtpk(dst + x, s0 + 2 * x, s0 + 2 * x + 1)
        return dst
    p.v(f"v_lshl_add_u32 v{V_E0}, s{S_W}, 12, v{V_LIN}", [V_E0], [V_LIN])
    p.vop("v_add_u32", V_E0, f"{XRING}", V_E0)
    p.vop("v_xor_b32", V_E1, "4096", V_E0)
    p.vop("v_and_b32", V_E2, "0xfffffcf0", V_E0)
    p.vop("v_bfe_u32", V_T, V_LIN, "9", "1")
    p.vop("v_lshl_add_u32", V_E2, V_T, "8", V_E2)
    p.vop("v_bfe_u32", V_T, V_LIN, "8", "1")
    p.vop("v_lshl_add_u32", V_E2, V_T, "3", V_E2)
    for r in range(2):
        for t in range(2): p.ds_write2(V_E2, fin(r, 4, t, 2 * r + t), (2 * r + t) * 1024)
    for r in range(2):
        base = A_QN if r else A_Q
        for n in range(4):
            FL = [int(x) for x in E("FLD", "02,02").split(",")[r]]
            ds = {}
            for t in range(4):
                ds[t] = fin(r, n, t, 4 + (n & 1) * 4 + t)
                if t in FL: p.ds_write2(V_E2, ds.pop(t), 16384 + t * 1024)
            for f in (p.swap32, p.swap16):
                for d in ds.values(): f(d, d + 2); f(d + 1, d + 3)
            for t in FL: p.ds_read128(Qf(n, t, base), V_E0, 16384 + t * 1024)
            for t, d in ds.items():
                for x in range(4): p.aw(Qf(n, t, base) + x, d + x)
            if r == 0 and n == 1:
                p.raw(f"s_waitcnt lgkmcnt({2 * len(FL)})"); p.barrier()
                for t in range(2): p.ds_read128(Qf(4, t), V_E0, t * 1024)
                for t in range(2): p.ds_read128(Qf(4, 2 + t), V_E1, t * 1024)
    for t in range(2): p.ds_read128(Qf(4, t, A_QN), V_E0, 2048 + t * 1024)
    for t in range(2): p.ds_read128(Qf(4, 2 + t, A_QN), V_E1, 2048 + t * 1024)
    p.vop("v_mov_b32", V_T, "0x3f803f80")
    for r in range(4): p.aw(A_ONE + r, V_T)
    sprinkle([(p, fstart)], sum([kv_ops(32 + k) for k in range(len(KVS), 8 - T7)], []), 0.0, float(E("QSH", "1.0")))
    stamp(p, 26)
    get_nonce(p, f"{name}_n1", V_T)
    stamp(p, 27)
    p.wait_vm("wst")
    stamp(p, 28)
    publish(p, f"s{S_WFP}", 0, V_T)
    stamp(p, 29)
    z = p
    z.s(f"s_lshl_b32 s{S_PF}, s{S_U}, 12")
    z.s(f"s_lshl_b32 s{S_T1}, s{S_G}, 9")
    z.s(f"s_add_u32 s{S_PF}, s{S_PF}, s{S_T1}")
    z.s(f"s_add_u32 s{S_PF}, s{S_PF}, {WFLG}")
    z.vop("v_lshrrev_b32", V_AX, "1", V_LIN)
    for n in range(5): z.vop("v_mov_b32", V_DA + n, f"{DROP:#x}")
    ti_init(z, 0)
    stamp(z, 2)
    return p

def a_mfmas(sc, pool, qh):
    AV = (V_AV0, V_AV1)
    has8 = lambda u: (u & 1) == qh
    for pos, (kind, u) in enumerate(KVSEQ):
        sb = (pos % 4) * 16384
        ns = [0, 1, 2, 3] + ([4] if has8(u) else [])
        if kind == "K":
            for kt in range(2):
                for ks in range(4):
                    off = sb + kt * 2048 + ((ks >> 1) ^ qh) * 4096 + (ks & 1) * 512
                    cons = []
                    for n in ns:
                        d = XS(u & 1, n) if kt == 0 else YS(n)
                        cons.append((d, Qf(n, ks), d if ks else None, ("S", u, kt, ks, n)))
                    pool.frag(pos, lambda r: [R128(r, V_AK, off)], cons)
                SCH = int(E("SCH", "4"))
                k0 = len(sc.m) - 4 * len(ns)
                sc.m[k0:] = sorted(sc.m[k0:], key=lambda x: (x[4][3] // SCH, x[4][4], x[4][3]))
                for k in range(k0, len(sc.m)): sc.idx[sc.m[k][4]] = k
        else:
            first = lambda n: u == 0 if n < 4 else u == qh
            for n in ns: sc.mfma(La(n), A_ONE, XS(u & 1, n), None if first(n) else La(n), ("L", u, n))
            for m in range(8):
                e, mp = m & 1, m >> 1
                off = sb + (mp >> 1) * 4096 + (mp & 1) * 512
                oa = lambda n: Oa(n, m if n < 4 else m ^ (4 * qh))
                cons = [(oa(n), XS(u & 1, n), None if first(n) else oa(n), ("PV", u, m, n)) for n in ns]
                if int(E("SNK", "1")) and m % 2 == 0: cons.reverse()
                pool.frag(pos, lambda r: [TR(r, AV[e], off), TR(r + 2, AV[e], off + 2048)], cons)

def a_taus():
    cs = []
    for qh in range(2):
        sc = Sched(Prog()); pool = Pool(sc, A_POOL, NPOOL); a_mfmas(sc, pool, qh)
        c = {}
        for (pos, _, cons, _) in pool.frags: c.setdefault(pos, sc.idx[cons])
        c[32] = len(sc.m) + LEADB - 3
        cs.append(c)
    return [min(cs[0][j], cs[1][j]) - LEADB for j in range(33)]

def aentry(name):
    p = Prog()
    p.label(f"{name}_A")
    p.s(f"s_mov_b32 s{S_KB}, s{S_KVN}")
    p.s(f"s_mov_b32 s{SRD_C+2}, 0x8000000")
    p.s(f"s_add_u32 s{S_KVN}, s{S_KVN}, {2 << 17}")
    p.s(f"s_cmp_eq_u32 s{S_PH}, 0")
    p.s(f"s_cselect_b32 s{S_M0KVP}, s{S_M0KV}, {DROP:#x}")
    p.s(f"s_cselect_b32 s{S_M0KVP+1}, s{S_M0W}, {DROP:#x}")
    p.s(f"s_cselect_b32 s{S_KVP}, s{S_KVN}, {OOB:#x}")
    p.s(f"s_cselect_b32 s{S_WT2}, {OOB:#x}, s{S_WT}")
    p.s(f"s_cmp_eq_u32 s{S_U}, 1")
    p.s(f"s_cbranch_scc1 {name}_A1")
    return p

def tile_addr(p, base, dst):
    p.s(f"s_cmp_lt_u32 s{S_G}, 5")
    p.s(f"s_cselect_b32 s{S_T0}, 1, 0")
    p.s(f"s_xor_b32 s{S_T0}, s{S_T0}, s{S_U}")
    p.v(f"v_lshl_add_u32 v{dst}, s{S_T0}, 12, v{base}", [dst], [base])
    for n in range(1, 4): p.vop("v_add_u32", dst + n, f"{1024 * n}", dst)

S_TI = 96
TI = [[tuple(int(x) for x in y.split("+")) for y in z.split(",")] for z in E("TI", "0+0,4+7;-1+0,-1+0").split(";")]
def ti_init(p, r):
    for k, (b, sp) in enumerate(TI[r]):
        if b < 0 or TI[0][k] == (0, 0): continue
        p.s(f"s_add_u32 s{S_T0}, s{S_B}, s{S_G}")
        p.s(f"s_and_b32 s{S_T0}, s{S_T0}, {sp}")
        p.s(f"s_add_u32 s{S_T0}, s{S_T0}, {b}")
        p.s(f"s_lshl_b32 s{S_TI + k}, 1, s{S_T0}")
WLP = [int(x) for x in E("WLP", "0,0,0,1,1,1,2,2,2,3,3,3").split(",")]
def avm(pos):
    if pos >= 30: return None
    pat = [int(x) for x in E("AVM", "3,4").split(",")]
    h = [int(x) for x in E("AVMH", "").split(",") if x]
    if pos < len(h): return h[pos]
    return pat[pos % len(pat)] + WLP.count(pos - 1) * int(E("WLC", "1"))
RQ = [int(x) for x in E("RQH", "3,3,3,3" if T7 else "0,3,3,2").split(",")] + [int(x) for k in "123" for x in E("RQ" + k, "43434343")] + [int(x) for x in E("RQT", "4,4,4,4").split(",")]
STREAM = sum([kv_ops(k) for k in range(8 - T7, 40 - T7)], [])
for s_ in range(32): assert sum(RQ[:s_ + 1]) <= 4 * (s_ + T7)
def amod(name, qh):
    p = Prog()
    p.label(f"{name}_A{qh}")
    sc = Sched(p, budget=int(E("ABUD", "8")), late_extra=int(E("ALATE", "8")))
    sc.group["dma"] = "vm"; sc.pace["vm"] = int(E("APACE", "2"))
    pool = Pool(sc, A_POOL, NPOOL)
    a_mfmas(sc, pool, qh)
    tau = a_taus()
    mt = lambda i: sc.m[max(0, min(i, len(sc.m) - 1))][4]
    def add_bar(pos):
        def bar(p, pos=pos):
            p.comment(f"---- a step {pos}")
            if TI[0][pos % 2] != (0, 0) and pos < 30:
                p.s(f"s_lshr_b32 s{S_TI + pos % 2}, s{S_TI + pos % 2}, 1")
                p.s("s_cbranch_scc0 1")
                p.raw(f"s_waitcnt vmcnt({avm(pos) - 1})")
            if pos < 32: p.wait_vm(KVSEQ[pos], lgkm0=True, cap=avm(pos))
            else: p.wait_lgkm0()
            p.barrier()
            if pos % 4 == 0 and pos:
                for r in (V_AV0, V_AV1, V_AK): p.vop("v_xor_b32", r, "0x10000", r)
            if PROF == 3 and pos % 2 == 0 and pos < 32: sstamp(p)
        sc.fill("rd", bar, 8, before=mt(tau[pos]), early=0 if pos else None, tag=("BAR", pos))
        if pos < 32:
            ops = STREAM[sum(RQ[:pos]):sum(RQ[:pos + 1])]
            aft = ("BAR", pos); bf = mt(tau[pos + 1] - 1)
            span = tau[pos + 1] - max(tau[pos], 0)
            if pos in CPA: ops = [(code_touch, 8)] + ops
            if pos == WTP: ops = [(lambda p: w_touch(p, 0), 8), (lambda p: w_touch(p, 64), 8)][:WTN] + ops
            for k, op in enumerate(ops): fill_dma(sc, [op], dict(tag=aft, delay=(k * (span - 2)) // len(ops)), bf)
            for k in [k for k in range(12) if WLP[k] == pos]:
                for fn, kind, cost in split_ops([(wload(0, k, S_T2, S_WT2), 8)]):
                    sc.fill("dmp", fn, 8 if kind == "vm" else 4, after=dict(tag=aft, delay=(5 if WLP.count(pos) > 1 else 20) + 9 * (k - WLP.index(pos))), solo=(kind == "vm"), before=bf, lead=20)
            if pos == 30:
                WLS = int(E("WLS", "6"))
                last = ("S", 15, 1, 3, 4 if qh == 1 else 3)
                for k in range(12):
                    for fn, kind, cost in split_ops([(wload(0, 12 + k, S_T2, S_WT2), 8)]):
                        sc.fill("dmp", fn, 8 if kind == "vm" else 4, after=dict(tag=last, delay=2 + WLS * k), solo=(kind == "vm"), before=mt(sc.idx[last] + 12 + WLS * k), lead=9)
            if 26 <= pos < 30:
                t = pos - 26
                ws = [(V_DA + n, Qf(n, t, A_QN), t * 18432 + 1024) for n in range(4)]
                if t >> 1 == qh: ws.append((V_DA + 4, Qf(4, t & 1, A_QN), (t & 1) * 18432))
                for k, w in enumerate(ws):
                    sc.fill("dw", lambda p, w=w: p.ds_write(w[0], w[1], 4, w[2]), 8, solo=True, after=dict(tag=aft, delay=4 + k * ((span - 10) // len(ws))), before=mt(tau[pos + 1] - BGAP), lead=12)
            if pos == 31:
                for f in range(8): sc.fill("dw", R128(P0_B[f], V_LIN, IMG(f)), 4, ds=True, after=dict(tag=aft, delay=16 + 2 * f), before=mt(tau[32] - BGAP), lead=4)
    cur = None
    for (pos, reads, cons, war) in pool.frags:
        if pos != cur:
            cur = pos; add_bar(pos)
        for k, fn in enumerate(reads):
            bf = cons
            if sc.idx[cons] > tau[pos + 1] - BGAP: bf = mt(tau[pos + 1] - BGAP)
            sc.fill("rd", fn, 4, ds=True, after=war if k == 0 else None, before=bf, lead=LEAD if bf is cons else 0)
    add_bar(32)
    def V(fn, after=None, before=None, cost=4, lead=0): sc.fill("va", fn, cost, after=after, before=before, lead=lead)
    EDL = int(E("EDL", "3"))
    for u in range(16):
        ns = [0, 1, 2, 3] + ([4] if (u & 1) == qh else [])
        for kt in range(2):
            for n in ns:
                src = XS(u & 1, n) if kt == 0 else YS(n)
                dst = XS(u & 1, n) + 2 * kt
                for r in range(4):
                    V(lambda p, reg=src + r: p.exp(reg, reg), after=dict(tag=("S", u, kt, 3, n), delay=EDL), cost=8)
                bf = ("L", u, n)
                if kt == 1 and n < 4 and u < 15: bf = ("S", u + 1, 1, 0, n)
                V(lambda p, dst=dst, src=src: p.cvtpk(dst, src, src + 1))
                V(lambda p, dst=dst, src=src: p.cvtpk(dst + 1, src + 2, src + 3), before=bf, lead=2)
    sc.run()
    p.s(f"s_cmp_eq_u32 s{S_PH}, 0")
    p.s(f"s_cbranch_scc0 {name}_P0")
    if qh == 0: p.s(f"s_branch {name}_F")
    return p

RL, CHK, PX, AD, AL = V_S + 2, V_S + 12, V_S + 16, V_S + 48, V_S + 50
def f_addr(p):
    p.v(f"v_lshl_add_u32 v{AD}, s{S_W}, 12, v{V_LIN}", [AD], [V_LIN])
    p.vop("v_add_u32", AD, f"{MISC}", AD)
    p.vop("v_xor_b32", AD + 1, "4096", AD)
def f_bad(op, a, b):
    def f(p):
        p.add(Ins(f"{op} vcc, v{a}, {b}", "valu", [a], []))
        p.s(f"s_or_b64 s[{S_BAD}:{S_BAD+1}], s[{S_BAD}:{S_BAD+1}], vcc")
    return f
def f_rcp(n): return [lambda p: p.vop("v_rcp_f32", RL + 2 * n, RL + 2 * n, kind="trans"), lambda p: p.vop("v_mov_b32", RL + 2 * n + 1, RL + 2 * n)]
def f_range():
    return [lambda p: p.vop("v_max3_f32", V_S, RL, RL + 2, RL + 4), lambda p: p.vop("v_min3_f32", V_S + 1, RL, RL + 2, RL + 4),
            lambda p: p.vop("v_max3_f32", V_S, V_S, RL + 6, RL + 8), lambda p: p.vop("v_min3_f32", V_S + 1, V_S + 1, RL + 6, RL + 8),
            f_bad("v_cmp_nle_f32", V_S, f"s{S_HI}"), f_bad("v_cmp_nge_f32", V_S + 1, f"s{S_LO}")]
def f_fin(): return [lambda p: p.s(f"s_movk_i32 s{S_T2}, 0x207"), f_bad("v_cmp_class_f32", CHK, f"s{S_T2}")]
def f_norm(n, t):
    s0 = Oa(n, 2 * t)
    add = [lambda p, r=r: p.add(Ins(f"v_pk_add_f32 {vr(s0 + r, 2)}, {vr(s0 + r, 2)}, {vr(PX + 8 * t + r, 2)}", "valu", R(s0 + r, 2) | R(PX + 8 * t + r, 2), R(s0 + r, 2))) for r in range(0, 8, 2)] if n == 4 else []
    return add + [lambda p, r=r: p.pkmul(s0 + r, s0 + r, RL + 2 * n) for r in range(0, 8, 2)], [lambda p, r=r: p.cvtpk(s0 + r, s0 + 2 * r, s0 + 2 * r + 1) for r in range(4)]
def f_l8(): return [lambda p: p.vop("v_add_f32", RL + 8, RL + 8, V_S)] + f_rcp(4)
UNITS = [(n, t) for n in (0, 1, 2, 4, 3) for t in range(4 if n < 4 else 2)]
def afin(name):
    p = Prog()
    p.label(f"{name}_F")
    stamp(p, 5)
    poll_issue(p, V_AX, f"s{S_PF}", 0, V_NV)
    f_addr(p)
    for i in range(4): p.ds_write(AD + 1, Oa(4, 4 + i), 4, i * 1024)
    for i in range(2): p.vop("v_subrev_u32", AL + i, "16384", AD + i)
    p.ds_write(AL + 1, La(4), 1, 0)
    for n in range(5): p.ar(RL + 2 * n, La(n))
    for k in range(2):
        for n in range(4): f_rcp(n)[k](p)
    p.wait_lgkm0()
    for k, (n, t) in enumerate(UNITS):
        if k == 4:
            p.barrier()
            for i in range(4): p.ds_read128(PX + 4 * i, AD, i * 1024)
            p.ds_read32(V_S, AL, 0)
        if k == 11:
            for f in f_l8(): f(p)
        for f in sum(f_norm(n, t), []): f(p)
    for f in f_range(): f(p)
    p.s(f"s_mov_b32 s{S_PH}, 1")
    stamp(p, 6)
    for r in range(80):
        if r % 4 == 0 and r < 72: p.mfma(CHK, A_ONE, Oa(UNITS[r // 4][0], 2 * UNITS[r // 4][1]), CHK if r else None)
        p.amov(A_Q + r, A_QN + r)
    for n, t in UNITS:
        for r in range(4): p.aw(Qf(n, t, A_QN) + r, Oa(n, 2 * t) + r)
    for f in f_fin(): f(p)
    sprinkle([(p, 8)], STREAM[sum(RQ):], 0.0, float(E("ASH", "0.7")))
    code_touch(p)
    p.s(f"s_mul_i32 s{S_T0}, s{S_P}, 9216")
    p.vop("v_add_u32", V_DA + 4, f"s{S_T0}", V_LIN)
    tile_addr(p, V_DA + 4, V_DA)
    p.s(f"s_mul_i32 s{S_T0}, s{S_U}, 36864")
    p.vop("v_add_u32", V_DA + 4, f"s{S_T0}", V_DA + 4)
    psetup(p)
    ti_init(p, 1)
    poll_check(p, f"{name}_wpoll", V_AX, f"s{S_PF}", 0, V_NV)
    p.s(f"s_branch {name}_A")
    return p

P_R = ([A_X + 4 * i for i in range(10)] + [10, 14] + [A_Q + 4 * i for i in range(20)],
       [A_L + 4 * i for i in range(5)] + [A_POOL + 4 * i for i in range(6)] + [A_QN + 64 + 4 * i for i in range(4)] + [A_QN + 4 * i for i in range(16)] + [A_ONE])
P0_B = P_R[0][24:] + [A_QN + 4 * (i % 16) for i in range(64)]
def wload(j, i, so=None, sb=None, extra=0):
    def f(p):
        if i % 2 == 0: p.s(f"s_add_u32 s{so or S_SO}, s{sb or S_WT}, {(i >> 1) * 40960 + extra}")
        if "B" not in ABL: p.load4(P_R[j & 1][i], V_LIN, SRD_WS, f"s{so or S_SO}", (i & 1) * 1024, ("WT", j, i), "sc1")
    return f

def slow(name):
    SI, SC, SX, SWq, SKV, SD, SK = 56, 57, 58, 59, 88, 89, 90
    VW, VX, VK, VV_, VD = 28, 36, 37, 38, 39
    MX, NM, LA, QF, SS, FB, AC, RAW, FR = 40, 44, 48, 52, 68, 76, 84, 116, 180
    def ld(p, op, n, d, vo, srd, so, off):
        p.add(Ins(f"{op} {vr(d, n)}, v{vo}, s[{srd}:{srd+3}], s{so} offen offset:{off}", "vml", [vo], R(d, n), tag="sl"))
    p0 = Prog()
    p0.label(f"{name}_slow")
    p0.wait_all()
    M, G = MX, MX + 1
    p0.vop("v_bfe_u32", M, V_LIN, "4", "4")
    p0.vop("v_lshrrev_b32", G, "8", V_LIN)
    p0.vop("v_lshlrev_b32", VW, "16", G)
    p0.vop("v_lshl_add_u32", VW, M, "1", VW)
    for i in range(1, 8): p0.vop("v_add_u32", VW + i, f"{8192 * i}", VW)
    p0.s(f"s_movk_i32 s{S_T0}, 1280")
    p0.vop("v_mul_lo_u32", VX, M, f"s{S_T0}")
    p0.vop("v_lshl_add_u32", VX, G, "4", VX)
    p0.vop("v_lshlrev_b32", VK, "8", M)
    p0.vop("v_lshl_add_u32", VK, G, "3", VK)
    p0.vop("v_lshlrev_b32", VV_, "10", G)
    p0.vop("v_lshl_add_u32", VV_, M, "1", VV_)
    p0.s(f"s_mov_b32 s{SI}, 0")
    p1 = Prog()
    p1.label(f"{name}_sl_it")
    p1.s(f"s_cmp_ge_u32 s{SI}, 5")
    p1.s(f"s_cselect_b32 s{S_T0}, 2, 0")
    p1.s(f"s_cselect_b32 s{S_T1}, 5, 0")
    p1.s(f"s_cselect_b32 s{SD}, {73728}, 0")
    p1.s(f"s_sub_u32 s{S_T1}, s{SI}, s{S_T1}")
    p1.s(f"s_add_u32 s{S_T0}, s{S_T0}, s{S_P}")
    p1.s(f"s_mul_i32 s{S_T2}, s{S_P}, 9216")
    p1.s(f"s_add_u32 s{SD}, s{SD}, s{S_T2}")
    p1.s(f"s_lshl_b32 s{S_T2}, s{S_G}, 2")
    p1.s(f"s_add_u32 s{S_T0}, s{S_T0}, s{S_T2}")
    p1.s(f"s_lshl_b32 s{SWq}, s{S_T0}, 8")
    p1.s(f"s_lshl_b32 s{S_T2}, s{S_B}, 5")
    p1.s(f"s_add_u32 s{S_T0}, s{S_T0}, s{S_T2}")
    p1.s(f"s_lshl_b32 s{SKV}, s{S_T0}, 17")
    p1.s(f"s_lshl_b32 s{S_T0}, s{S_U}, 2")
    p1.s(f"s_add_u32 s{S_T0}, s{S_T0}, s{S_T1}")
    p1.s(f"s_cmp_lt_u32 s{S_G}, 5")
    p1.s(f"s_cselect_b32 s{S_T2}, 4, 0")
    p1.s(f"s_xor_b32 s{S_T2}, s{S_T2}, s{S_T0}")
    p1.s(f"s_add_u32 s{S_T2}, s{S_T2}, 1")
    p1.s(f"s_cmp_eq_u32 s{S_T1}, 4")
    p1.s(f"s_cselect_b32 s{S_T0}, 8, s{S_T0}")
    p1.s(f"s_cselect_b32 s{S_T2}, 0, s{S_T2}")
    p1.s(f"s_lshl_b32 s{S_T2}, s{S_T2}, 10")
    p1.s(f"s_add_u32 s{SD}, s{SD}, s{S_T2}")
    p1.vop("v_add_u32", VD, f"s{SD}", V_LIN)
    p1.s(f"s_mul_i32 s{S_T2}, s{S_B}, 9")
    p1.s(f"s_add_u32 s{S_T0}, s{S_T0}, s{S_T2}")
    p1.s(f"s_mul_i32 s{SX}, s{S_T0}, {16 * 1280}")
    for r in range(32): p1.vop("v_mov_b32", AC + r, "0")
    p1.s(f"s_mov_b32 s{SC}, 0")
    def pack(p):
        for r in range(32): p.vop("v_lshl_or_b32", FR + r, RAW + 2 * r + 1, "16", RAW + 2 * r)
    def loop_end(p, lab, n):
        p.s(f"s_add_u32 s{SC}, s{SC}, 1")
        p.s(f"s_cmp_lt_u32 s{SC}, {n}")
        p.s(f"s_cbranch_scc1 {lab}")
    p2 = Prog()
    p2.label(f"{name}_sl_q")
    ld(p2, "buffer_load_dwordx4", 4, FB, VX, SRD_X, SX, 0)
    for m in range(8):
        for i in range(8): ld(p2, "buffer_load_ushort", 1, RAW + 8 * m + i, VW + i, SRD_W, SWq, 32 * m)
        if m == 3: p2.wait_all()
    p2.wait_all()
    pack(p2)
    for m in range(8): p2.mfma(AC + 4 * m, FR + 4 * m, FB, AC + 4 * m)
    p2.s(f"s_add_u32 s{SX}, s{SX}, 64")
    p2.s(f"s_add_u32 s{SWq}, s{SWq}, {32 * 8192}")
    loop_end(p2, f"{name}_sl_q", 20)
    p3 = Prog()
    for r in range(32): p3.vop("v_mul_f32", AC + r, f"s{S_CS}", AC + r)
    for r in range(16): p3.cvtpk(QF + r, AC + 2 * r, AC + 2 * r + 1)
    for r in range(32): p3.vop("v_mov_b32", AC + r, "0")
    for r in range(4): p3.vop("v_mov_b32", LA + r, "0")
    p3.vop("v_mov_b32", MX, "0xff800000")
    p3.s(f"s_mov_b32 s{SK}, s{SKV}")
    p3.s(f"s_mov_b32 s{SC}, 0")
    def kfrags(p, dst, so):
        for ks in range(4):
            ld(p, "buffer_load_dwordx2", 2, dst + 4 * ks, VK, SRD_K, so, 64 * ks)
            ld(p, "buffer_load_dwordx2", 2, dst + 4 * ks + 2, VK, SRD_K, so, 64 * ks + 32)
    p4 = Prog()
    p4.label(f"{name}_sl_m")
    kfrags(p4, FR, SK)
    p4.wait_all()
    for ks in range(4): p4.mfma(SS, FR + 4 * ks, QF + 4 * ks, SS if ks else None)
    p4.vop("v_max3_f32", MX, MX, SS, SS + 1)
    p4.vop("v_max3_f32", MX, MX, SS + 2, SS + 3)
    p4.s(f"s_add_u32 s{SK}, s{SK}, 4096")
    loop_end(p4, f"{name}_sl_m", 32)
    p5 = Prog()
    for sw in (p5.swap32, p5.swap16):
        p5.vop("v_mov_b32", MX + 1, MX)
        sw(MX, MX + 1)
        p5.vop("v_max_f32", MX, MX, MX + 1)
    for r in range(4): p5.vop("v_sub_f32", NM + r, "0", MX)
    p5.s(f"s_mov_b32 s{SC}, 0")
    p6 = Prog()
    p6.label(f"{name}_sl_a")
    p6.s(f"s_add_u32 s{SK}, s{SKV}, 4096")
    kfrags(p6, FR, SKV)
    kfrags(p6, FR + 16, SK)
    p6.wait_all()
    for m in range(8):
        for i in range(8): ld(p6, "buffer_load_ushort", 1, RAW + 8 * m + i, VV_, SRD_V, SK if i >= 4 else SKV, 32 * m + 256 * (i & 3))
        if m == 3: p6.wait_all()
    for kt in range(2):
        for ks in range(4): p6.mfma(SS + 4 * kt, FR + 16 * kt + 4 * ks, QF + 4 * ks, SS + 4 * kt if ks else NM)
    for r in range(8): p6.exp(SS + r, SS + r)
    for r in range(4): p6.cvtpk(FB + r, SS + 2 * r, SS + 2 * r + 1)
    p6.wait_all()
    pack(p6)
    p6.mfma(LA, A_ONE, FB, LA)
    for m in range(8): p6.mfma(AC + 4 * m, FR + 4 * m, FB, AC + 4 * m)
    p6.s(f"s_add_u32 s{SKV}, s{SKV}, 8192")
    loop_end(p6, f"{name}_sl_a", 16)
    p7 = Prog()
    p7.vop("v_rcp_f32", LA, LA, kind="trans")
    for r in range(32): p7.vop("v_mul_f32", AC + r, AC + r, LA)
    for r in range(16): p7.cvtpk(QF + r, AC + 2 * r, AC + 2 * r + 1)
    for hf in range(2):
        p7.s(f"s_cmp_eq_u32 s{S_U}, {hf}")
        p7.s(f"s_cselect_b32 s{S_T0}, 0, s{S_T1}")
        p7.s(f"s_cmp_eq_u32 s{S_T0}, 4")
        p7.s(f"s_cbranch_scc1 {name}_sl_s{hf}")
        for t in (2 * hf, 2 * hf + 1): p7.ds_write(VD, QF + 4 * t, 4, t * 18432)
        p7.label(f"{name}_sl_s{hf}")
    p7.wait_all()
    p7.s(f"s_add_u32 s{SI}, s{SI}, 1")
    p7.s(f"s_cmp_lt_u32 s{SI}, 10")
    p7.s(f"s_cbranch_scc1 {name}_sl_it")
    p7.s(f"s_branch {name}_P2")
    body = [p1, p2, p2, p3, p4, p4, p5, p6, p6, p7]
    return [p0, p1, p2, p3, p4, p5, p6, p7], [p0] + body + body

S_ST = 62
S_PC, S_FO, S_PO = 71, 72, 73
S_OF = (4, 5, 6, 7, 74)
S_JA, S_JC, S_JO, S_WE = 77, 83, 52, 101
S_JE, S_EO = (79, 80), (61, 100)
def psetup(p):
    C, J, BW, OW = S_TM, S_TM + 1, S_TM + 2, S_TM + 3
    p.s(f"s_mul_i32 s{BW}, s{S_B}, {PARTB}")
    p.s(f"s_lshl_b32 s{S_T1}, s{S_W}, 11")
    p.s(f"s_add_u32 s{BW}, s{BW}, s{S_T1}")
    p.s(f"s_add_u32 s{BW}, s{BW}, {PART}")
    p.s(f"s_mul_i32 s{OW}, s{S_B}, {144 * 1280}")
    p.s(f"s_lshl_b32 s{S_T1}, s{S_W}, 6")
    p.s(f"s_add_u32 s{OW}, s{OW}, s{S_T1}")
    p.s(f"s_sub_u32 s{S_T0}, s{S_G}, 5")
    p.s(f"s_cselect_b32 s{C}, s{S_G}, s{S_T0}")
    p.s(f"s_cselect_b32 s{J}, 0, 1")
    p.s(f"s_add_u32 s{S_ST}, s{BW}, {8 * 81920}")
    p.s(f"s_mul_i32 s{S_T0}, s{J}, {4 * 81920}")
    p.s(f"s_add_u32 s{S_ST+5}, s{BW}, s{S_T0}")
    p.s(f"s_sub_u32 s{S_ST+1}, s{BW}, s{S_T0}")
    p.s(f"s_add_u32 s{S_ST+1}, s{S_ST+1}, {4 * 81920}")
    for i in (2, 3, 4, 6, 7, 8): p.s(f"s_add_u32 s{S_ST+i}, s{S_ST+i-1}, 81920")
    p.s(f"s_lshl_b32 s{S_T0}, s{C}, 13")
    p.s(f"s_add_u32 s{S_JA}, s{S_ST+5}, s{S_T0}")
    p.s(f"s_mul_i32 s{S_JO}, s{J}, {64 * 1280}")
    p.s(f"s_add_u32 s{S_JO}, s{S_JO}, s{OW}")
    p.s(f"s_lshl_b32 s{S_T0}, s{C}, 8")
    p.s(f"s_add_u32 s{S_JO}, s{S_JO}, s{S_T0}")
    p.s(f"s_mul_i32 s{S_WE}, s{S_G}, {16 * 40960}")
    p.s(f"s_lshl_b32 s{S_T0}, s{S_W}, 11")
    p.s(f"s_add_u32 s{S_WE}, s{S_WE}, s{S_T0}")
    for k in range(5):
        p.s(f"s_add_u32 s{C}, s{C}, 1")
        p.s(f"s_cmp_eq_u32 s{C}, 5")
        p.s(f"s_cselect_b32 s{C}, 0, s{C}")
        if k == 0:
            p.s(f"s_lshl_b32 s{S_WT}, s{C}, 13")
            p.s(f"s_add_u32 s{S_WT}, s{S_WT}, s{S_WE}")
            p.s(f"s_add_u32 s{S_WE}, s{S_WE}, 40960")
        p.s(f"s_and_b32 s{S_T0}, s{J}, 1")
        p.s(f"s_lshl3_add_u32 s{S_T0}, s{C}, s{S_T0}")
        p.s(f"s_lshl_b32 s{S_OF[k]}, s{S_T0}, 10")
        if k:
            p.s(f"s_bitcmp1_b32 s{J}, 1")
            p.s(f"s_cselect_b32 s{S_T0}, 40960, 0")
            p.s(f"s_add_u32 s{S_OF[k]}, s{S_OF[k]}, s{S_T0}")
        if k > 1:
            p.s(f"s_bitcmp1_b32 s{J}, 2")
            p.s(f"s_cselect_b32 s{S_T0}, {AREA}, 0")
            p.s(f"s_add_u32 s{S_OF[k]}, s{S_OF[k]}, s{S_T0}")
        if k < 4:
            p.s(f"s_cmp_lt_u32 s{C}, 3")
            p.s(f"s_addc_u32 s{J}, s{J}, 1")
    p.s(f"s_bitcmp1_b32 s{J}, 0")
    p.s(f"s_cselect_b32 s{S_T0}, 0, 1024")
    p.s(f"s_add_u32 s{S_JC}, s{S_JA}, s{S_T0}")
    for k in range(2):
        p.s(f"s_add_u32 s{S_T2}, s{S_G}, {8 * k + 11}")
        p.s(f"s_and_b32 s{S_T0}, s{S_T2}, 3")
        p.s(f"s_add_u32 s{S_T0}, s{S_T0}, 4")
        p.s(f"s_lshr_b32 s{S_T1}, s{S_T2}, 2")
        p.s(f"s_sub_u32 s{S_T1}, s{S_T1}, 1")
        if k == 0:
            p.s(f"s_cmp_lt_u32 s{S_G}, 5")
            p.s(f"s_cselect_b32 s{S_T0}, 8, s{S_T0}")
            p.s(f"s_cselect_b32 s{S_T1}, s{S_G}, s{S_T1}")
        p.s(f"s_mul_i32 s{S_JE[k]}, s{S_T0}, 10")
        p.s(f"s_add_u32 s{S_JE[k]}, s{S_JE[k]}, s{S_T1}")
        p.s(f"s_lshl_b32 s{S_JE[k]}, s{S_JE[k]}, 13")
        p.s(f"s_add_u32 s{S_JE[k]}, s{S_JE[k]}, s{BW}")
        p.s(f"s_mul_i32 s{S_EO[k]}, s{S_T0}, 80")
        p.s(f"s_add_u32 s{S_EO[k]}, s{S_EO[k]}, s{S_T1}")
        p.s(f"s_lshl_b32 s{S_EO[k]}, s{S_EO[k]}, 8")
        p.s(f"s_add_u32 s{S_EO[k]}, s{S_EO[k]}, s{OW}")
    p.s(f"s_cmp_ge_u32 s{S_G}, 5")
    p.s(f"s_cselect_b32 s{S_JE[1]}, {OOB:#x}, s{S_JE[1]}")
    p.s(f"s_cselect_b32 s{S_EO[1]}, {OOB:#x}, s{S_EO[1]}")
    p.s(f"s_lshl2_add_u32 s{S_PO}, s{S_B}, s{S_W}")
    p.s(f"s_lshl_b32 s{S_PO}, s{S_PO}, 8")
    p.s(f"s_add_u32 s{S_PO}, s{S_PO}, {PFLG - 128 + OOB}")
    p.s(f"s_lshl3_add_u32 s{S_FO}, s{S_G}, s{S_PO}")
    p.s(f"s_mov_b32 s{S_PC}, 0")

def pmod(name):
    p = Prog()
    p.label(f"{name}_fb")
    p.wait_all()
    p.s(f"s_cmp_lg_u64 s[{S_BAD}:{S_BAD+1}], 0")
    p.s(f"s_cbranch_scc1 {name}_slow")
    p.label(f"{name}_P2")
    AO = (V_LIN, 2, 3)
    V_FA, V_OA = 4, 5
    PT, PT2 = 6, 8
    V_SA, V_JA, PT3 = 1, 25, 26
    SEL = 18
    POOL = [28 + 4 * k for k in range(16)]
    ACC = 92
    OWN = 124
    PK, SUM, JB = 132, 140, 188
    CT = 244
    p.wait_all()
    p.barrier()
    NL = int(E("PLEAD", "8"))
    def ooff(i, kq): return IMG(kq) + i * 1024
    for f in range(NL): p.ds_read128(POOL[f], AO[ooff(0, f) // 49152], ooff(0, f) % 49152)
    p.vop("v_mov_b32", V_SA, f"{OOB:#x}")
    s0 = len(p.ins)
    p.vop("v_mov_b32", V_JA, f"{OOB:#x}")
    p.vop("v_bfe_u32", V_FA, V_LIN, "4", "3")
    p.vop("v_lshlrev_b32", V_FA, "3", V_FA)
    p.vop("v_bfe_u32", CT, V_LIN, "4", "4")
    p.s(f"s_movk_i32 s{S_T0}, 1280")
    p.vop("v_mul_lo_u32", V_OA, CT, f"s{S_T0}")
    p.vop("v_lshrrev_b32", CT + 1, "8", V_LIN)
    p.vop("v_lshl_add_u32", V_OA, CT + 1, "4", V_OA)
    p.vop("v_mov_b32", PT2, f"s{S_NON}")
    p.vop("v_mov_b32", PT2 + 1, f"s{S_NON+1}")
    p.vop("v_and_b32", CT + 2, "1", CT)
    p.vop("v_lshlrev_b32", CT + 2, "4", CT + 2)
    p.s(f"s_movk_i32 s{S_T0}, 0x3f80")
    p.vop("v_lshlrev_b32", CT + 2, CT + 2, f"s{S_T0}")
    p.vop("v_lshrrev_b32", CT, "1", CT)
    p.vop("v_lshlrev_b32", CT + 1, "1", CT + 1)
    p.vop("v_sub_u32", CT, CT, CT + 1)
    for r in range(2):
        p.add(Ins(f"v_cmp_eq_u32 vcc, {r}, v{CT}", "valu", [CT], []))
        p.vop("v_mov_b32", SEL + r, "0")
        p.vop("v_mov_b32", SEL + 4 + r, "0")
        p.add(Ins(f"v_cndmask_b32 v{SEL+2+r}, 0, v{CT+2}, vcc", "valu", [CT + 2], [SEL + 2 + r]))
    setup = p.ins[s0:]
    def jload(q, jl, dst, own=S_JA):
        def f(p):
            so = S_JE[q - 4] if q >= 4 else S_T1 if q else own
            if 0 < q < 4 and jl == 0: p.s(f"s_add_u32 s{S_T1}, s{own}, {q * 81920}")
            if "J" not in ABL or own != S_JA or dst < JB: p.load4(dst, V_JA, SRD_WS, f"s{so}", jl * 1024, "job", E("JFL", "sc1"))
        return f
    def reduce(p, q, bufs, init=False):
        for e in range(2):
            for k, bf in enumerate(bufs): p.mfma(SUM + 8 * q + 4 * e, SEL + 2 - 2 * e, bf, None if (init and k == 0) else SUM + 8 * q + 4 * e)
    def next_off(): return [lambda p: p.vop("v_add_u32", V_SA, f"s{S_OF[0]}", V_LIN)] + [lambda p, k=k: p.s(f"s_mov_b32 s{S_OF[k]}, s{S_OF[k+1]}") for k in range(4)]
    def next_pair(p, d):
        p.s(f"s_add_u32 s{d}, s{S_WT}, 8192")
        p.s(f"s_sub_u32 s{S_T2}, s{S_WE}, 40960")
        p.s(f"s_cmp_eq_u32 s{d}, s{S_WE}")
        p.s(f"s_cselect_b32 s{d}, s{S_T2}, s{d}")
    def flag(p, off, tag):
        p.wait_vm(tag)
        p.s("s_mov_b64 exec, 1")
        p.store(PT2, 2, V_LIN, SRD_WS, f"s{S_FO}", off, tag="flag", flags="sc1")
        p.s("s_mov_b64 exec, -1")
    FPOS = int(E("FPOS", "56")); FPB = int(E("FPB", "190")); PPB = int(E("PPB", "244")); WSP = float(E("WSP", "6")); PLAT = int(E("PLAT", "60")); CPOS = int(E("CPOS", "206")); WST = int(E("WST", "4"))
    def one_pass(par):
        q = Prog()
        q.label(f"{name}_pass{par}")
        if PROF == 4: stamp(q, 32, S_PC)
        q.wait_vm(("WT", par, 15))
        sc = Sched(q, budget=int(E("PBUD", "8")), late_extra=8)
        for qn in ("wl", "st", "jl", "jp"): sc.group[qn] = "vm"
        sc.pace["vm"] = int(E("PPACE", "4"))
        pool = Pool(sc, POOL, 16)
        acc = lambda i: OWN if i == 8 else ACC + 8 * (i % 4)
        for i in range(9):
            a = acc(i)
            for kq in range(16):
                cons = [(a + 4 * e, P_R[par][2 * kq + e], a + 4 * e if kq else None, ("P", i, kq, e)) for e in range(2)]
                pool.frag(0, lambda r: [R128(r, AO[ooff(i, kq) // 49152], ooff(i, kq) % 49152)], cons, as_b=True)
        PG = int(E("PG", "4"))
        sc.m = [x for k in range(0, 288, 2 * PG) for x in sc.m[k:k + 2 * PG:2] + sc.m[k + 1:k + 2 * PG:2]]
        sc.idx = {x[4]: k for k, x in enumerate(sc.m)}
        mt = lambda i: sc.m[max(0, min(i, len(sc.m) - 1))][4]
        for f in range(NL, 144 + NL):
            (_, reads, cons, war) = pool.frags[f % 144]
            if f >= 144: war = pool.last[f % 16]
            if "R" not in ABL: sc.fill("rd", reads[0], 4, ds=True, after=war, before=mt(2 * (f - NL) + 1), early=2)
        for i in ((16, 22, 28) if PG == 1 else (16, 24) if PG <= 4 else (16,)): sc.fill("ww", lambda p, i=i: p.wait_vm(("WT", par, min(31, i + (5 if PG == 1 else 7 if PG <= 4 else 15)))), 4, before=mt(i), early=0)
        def su(p):
            next_pair(p, S_WT)
            if par == 0:
                p.s(f"s_cmp_eq_u32 s{S_PC}, 4")
                p.s(f"s_cselect_b32 s{S_WT}, {OOB:#x}, s{S_WT}")
        def keep(p):
            p.s(f"s_cmp_eq_u32 s{S_PC}, 4")
            for i in (5, 6, 7): p.s(f"s_cselect_b32 s{S_ST+i}, {OOB:#x}, s{S_ST+i}")
            p.s(f"s_cselect_b32 s{S_WT2}, s{S_PO}, {OOB:#x}")
        if par == 0: sc.fill("jr", keep, 16, after=mt(100), before=mt(150))
        fill_dma(sc, [(su, 0)], None, mt(WST + 2), queue="wl", lead=6)
        for i in range(32):
            fill_dma(sc, [(wload(1 - par, i), 0)], mt(WST + int(WSP * i)), mt(WST + 12 + int(WSP * i)), queue="wl", lead=10)
        sc.fill("jl", lambda p: poll_issue(p, V_FA, f"s{S_PO}", 0, PT), 8, before=mt(CPOS - PLAT), early=4, solo=SOLO)
        def cut(p):
            p.s(f"s_cmp_lt_u32 s{S_PC}, 2")
            p.s(f"s_cbranch_scc1 {name}_nojob{par}")
            if par == 0:
                p.s(f"s_cmp_eq_u32 s{S_PC}, 2")
                p.s(f"s_cbranch_scc1 {name}_pp0")
            p.label("@CUT")
        sc.fill("jr", cut, 8, before=mt(CPOS), early=0, tag="CUT")
        for x in [int(y) for y in E("PSL1", "").split(",") if y]: sc.fill("sl", lambda p: [p.raw("s_nop 15") for _ in range(int(E("PSN", "4")))], 16, before=mt(x), early=0)
        JSP = float(E("JSP", "5"))
        for k in range(12): fill_dma(sc, [(jload(k >> 1, k & 1, JB + 4 * k), 0)], ["CUT", mt(CPOS + int(JSP * k))], mt(CPOS + 12 + int(JSP * k)), queue="jl", lead=10)
        if par == 0: sc.fill("jp", lambda p: poll_issue(p, V_FA, f"s{S_WT2}", 64, PT3), 8, after=mt(PPB), before=mt(PPB + 8), lead=8, solo=SOLO)
        for i in range(-1, 8):
            a = acc(i % 9); d = PK + 4 * (i & 1) if (par == 0 and i >= 5) else a
            dl = mt(32 * i + 32 + 24)
            sc.fill("va", lambda p, a=a, d=d: p.cvtpk(d, a, a + 1), 4, after=dict(tag=("P", i, 15, 1), delay=4) if i >= 0 else mt(3), before=dl, lead=10)
            sc.fill("va", lambda p, a=a, d=d: p.cvtpk(d + 1, a + 2, a + 3), 4)
            sc.fill("va", lambda p, a=a, d=d: p.cvtpk(d + 2, a + 4, a + 5), 4)
            sc.fill("va", lambda p, a=a, d=d: p.cvtpk(d + 3, a + 6, a + 7), 4, tag=("CV", i), before=dl, lead=10)
            def st(p, d=d, i=i):
                if "O" not in ABL: p.store(d, 4, V_SA, SRD_WS, f"s{S_ST + i % 9}", 0, tag=("ps", i), flags=E("SFL", "sc1"))
            sc.fill("st", st, 8, after=("CV", i), before=dl, lead=20, tag=("ST", i), solo=SOLO)
            if i < 0:
                for fn in next_off(): sc.fill("va", fn, 4, after=("ST", -1))
        if PROF == 4:
            for k, x in enumerate(int(y) for y in E("PST", "66,74,224").split(",")): sc.fill(f"st{k}", lambda p, k=k: stamp(p, 33 + k, S_PC), 16, before=mt(x), early=0)
        sc.fill("fl", lambda p: flag(p, 0, ("ps", int(E("FTAG", "-1")))), 16, before=mt(FPOS), early=0)
        for r, x in ((S_FO, 64), (S_PC, 1)): sc.fill("fl", lambda p, r=r, x=x: p.s(f"s_add_u32 s{r}, s{r}, {x}"), 4, after=mt(272))
        if par:
            for r in (S_FO, S_PO): sc.fill("fl", lambda p, r=r: p.s(f"s_bitset0_b32 s{r}, 30"), 4)
        sc.run()
        if par == 0:
            q.s(f"s_cmp_eq_u32 s{S_PC}, 5")
            q.s(f"s_cbranch_scc1 {name}_ptail")
            q.s(f"s_add_u32 s{S_PO}, s{S_PO}, 64")
            q.s(f"s_cmp_eq_u32 s{S_PC}, 1")
            q.s(f"s_cbranch_scc1 {name}_fbw")
        else:
            q.s(f"s_add_u32 s{S_PO}, s{S_PO}, 64")
            q.s(f"s_branch {name}_pass0")
        k = next(i for i, x in enumerate(q.ins) if x.text.startswith("@CUT"))
        q2 = Prog(); q2.label(f"{name}_nojob{par}"); q2.ins += q.ins[k + 1:]; q.ins = q.ins[:k]
        blk = Prog()
        poll_check(blk, f"{name}_pp{par}", V_FA, f"s{S_PO}", 0, PT)
        red = Prog()
        if par == 0:
            blk.vop("v_mov_b32", V_JA, V_LIN)
            blk.s(f"s_cmp_eq_u32 s{S_PC}, 2")
            blk.s(f"s_cbranch_scc1 {name}_nojob{par}")
        red.vop("v_add_u32", V_JA, f"{40960 if par else AREA}", V_LIN)
        for c in range(6): reduce(red, c, [JB + 8 * c, JB + 8 * c + 4], par == 1)
        fb = Prog()
        if par == 0: flag(fb, 64, ("ps", 4))
        return q, fb, blk, red, q2
    def first_pass():
        q = Prog()
        q.label(f"{name}_P0")
        stamp(q, 9)
        if "F" in ABL: q.s(f"s_mov_b32 s{S_BAD}, 1")
        if "G" in ABL:
            q.s(f"s_cmp_eq_u32 s{S_W}, 2")
            q.s(f"s_cselect_b32 s{S_BAD}, 1, 0")
        sc = Sched(q, budget=int(E("P0BUD", "8")), late_extra=8)
        for qn in ("wl", "st"): sc.group[qn] = "vm"
        sc.pace["vm"] = int(E("P0PACE", "3"))
        acc = [V_S + 32, V_S + 40, 92, 100, 108, 116, 132, 140, OWN]
        POOL2 = POOL[:8] + [148 + 4 * k for k in range(4)] + POOL[12:]
        reg = lambda f: P0_B[f] if f < 72 else POOL2[f % 16] if f < 144 else POOL[f % 16]
        fk = lambda f: ((f % 72) // 8, f % 8 + 8 * ((f // 72) & 1))
        base = []
        for f0 in range(0, 144, 4):
            for e in range(2):
                for f in range(f0, f0 + 4):
                    i, kq = fk(f); a = acc[i] + 4 * e
                    base.append((a, P_R[0][2 * kq + e], reg(f), a if kq else None, ("P", f, e)))
        units = UNITS
        C0, CS, MB = int(E("P0C0", "22")), float(E("P0CS", "5.8")), int(E("P0MB", "12"))
        cpos = {C0 + int(CS * k) + (int(E("P0C8", "0")) if k >= 12 else 0): k for k in range(18)}
        for j, m in enumerate(base):
            if j in cpos:
                k = cpos[j]; sc.mfma(CHK, A_ONE, Oa(units[k][0], 2 * units[k][1]), CHK if k else None, ("CHK", k))
            sc.mfma(*m)
        bt = lambda j: base[min(j, 287)][4]
        for i in range(2, 9): assert sc.idx[("CHK", (acc[i] - V_O) // 8)] + 1 < sc.idx[bt(16 * i)]
        for f in range(8, 144 + NL):
            i, kq = fk(f)
            aft = [("P", f - 16, 1)] if (f >= 24 and not 72 <= f < 88) else []
            if f == 8: aft.append("AO")
            if f == 12: aft.append("XW")
            if f == 72: aft.append("MID")
            j = 2 * (f - NL) + 1
            if f >= 72: j = max(j, 144 - MB + 2 + f - 72)
            sc.fill("rd", R128(reg(f), AO[ooff(i, kq) // 49152], ooff(i, kq) % 49152), 4, ds=True, after=aft, before=bt(j), early=2)
        def V(fn, cost=4, **kw): sc.fill("va", fn, cost, **kw)
        sc.fill("ww", lambda p: p.wait_vm(("WT", 0, 15)), 4, before=bt(10), early=0)
        def each(fn):
            z = Prog(); fn(z)
            return [lambda p, x=x: p.add(x) for x in z.ins]
        V(lambda p: p.vop("v_add_u32", AO[1], "49152", V_LIN))
        V(lambda p: p.vop("v_add_u32", AO[2], "98304", V_LIN), tag="AO")
        for fn in each(f_addr): V(fn)
        for i in range(4): V(lambda p, i=i: p.ds_write(AD + 1, Oa(4, 4 + i), 4, i * 1024), 8, solo=True)
        V(lambda p: p.s(f"s_mul_i32 s{S_T0}, s{S_U}, 73728"))
        V(lambda p: p.s(f"s_sub_u32 s{S_T0}, {73728 + 36864}, s{S_T0}"))
        V(lambda p: p.vop("v_add_u32", AL + 1, f"s{S_T0}", V_DA + 4))
        V(lambda p: p.ds_write(AL + 1, La(4), 1, 0), ds=True, tag="XW")
        for n in range(5): V(lambda p, n=n: p.ar(RL + 2 * n, La(n)), tag=("AR", n))
        for n in range(5): V(lambda p, n=n: p.vop("v_add_u32", V_DA + n, "73728", V_DA + n), tag=("DA", n))
        def wr(p, k):
            n, t = units[k]
            p.ds_write(V_DA + n, Oa(n, 2 * t), 4, t * 18432 + (1024 if n < 4 else 0))
        for n in range(4): V(f_rcp(n)[0], 8); V(f_rcp(n)[1], tag=("RC", n))
        l8 = f_l8(); V(l8[0], after=dict(tag="PX", delay=8)); V(l8[1], 8); V(l8[2], tag=("RC", 4), before=("CHK", 10))
        ct = lambda k, d: sc.m[sc.idx[("CHK", k)] + d][4]
        for k, (n, t) in enumerate(units):
            pk, cv = f_norm(n, t)
            sc.fill("pk", lambda p, k=k, pk=pk: (wr(p, k - 1) if k else None, [fn(p) for fn in pk]), 8, solo=True, after=[("RC", n)] + ([("DA", 4)] if k else []),
                    before=ct(k - 1, 1) if k else ct(0, -5), early=0, lead=99, tag=("PK", k))
            for j, fn in enumerate(cv): sc.fill("c1", fn, 4, after=("PK", k), before=ct(k, -1), lead=0)
        sc.fill("pk", lambda p: wr(p, 17), 8, solo=True, before=ct(17, 1), early=0, lead=99, tag="W17")
        for j, fn in enumerate(f_range()): V(fn, 8 if j >= 4 else 4)
        sc.fill("bx", lambda p: p.barrier(), 4, after=[("P", 12, 0), ("DA", 4)], before=bt(int(E("P0BX", "34"))), early=0)
        for i in range(4): sc.fill("bx", R128(PX + 4 * i, AD, i * 1024), 4, ds=True, before=bt(60))
        sc.fill("bx", lambda p: p.ds_read32(V_S, V_DA + 4, 0), 4, ds=True, before=bt(60), tag="PX")
        V(lambda p: p.vop("v_bfe_u32", V_T + 1, V_LIN, "4", "2"))
        V(lambda p: p.vop("v_lshlrev_b32", V_T + 1, "12", V_T + 1))
        V(lambda p: p.vop("v_add_u32", V_T + 1, f"{MISC}", V_T + 1))
        c5 = f_fin()
        V(c5[0]); V(c5[1], 8, after=dict(tag=("CHK", 17), delay=2))
        V(lambda p: (p.s(f"s_or_b32 s{S_T0}, s{S_BAD}, s{S_BAD+1}"), p.vop("v_mov_b32", V_T, f"s{S_T0}")), 8)
        V(lambda p: p.ds_write(AD, V_T, 1, 0), ds=True, after="W17", before=bt(144 - MB - 4), lead=2)
        def mid(p):
            p.wait_vm(("WT", 0, 31), lgkm0=True); p.barrier()
            stamp(p, 16)
            p.ds_read32(V_T + 2, V_T + 1, 0)
        V(mid, 8, before=bt(144 - MB), early=0, tag="MID")
        def chk(p):
            p.add(Ins(f"v_cmp_ne_u32 vcc, 0, v{V_T+2}", "valu", [V_T + 2], []))
            p.s("s_cmp_lg_u64 vcc, 0")
            p.s(f"s_cbranch_scc1 {name}_fb")
        V(chk, 8, before=bt(146), early=0, tag="OK")
        for fn in next_off(): V(fn, before=bt(160))
        k = 0
        while k < len(setup):
            n = 4 if setup[k].text.startswith("v_cmp") else 1
            V(lambda p, g=setup[k:k + n]: [p.add(Ins(x.text, x.kind, x.rd, x.wr)) for x in g], 4 * n); k += n
        for i in range(8):
            a = acc[i]; dl = bt(144 + 16 * i + 16 + 14)
            sc.fill("cv", lambda p, a=a: p.cvtpk(a, a, a + 1), 4, after=["OK", dict(tag=("P", 72 + 8 * i + 7, 1), delay=3)], before=dl, lead=10)
            sc.fill("cv", lambda p, a=a: p.cvtpk(a + 1, a + 2, a + 3), 4)
            sc.fill("cv", lambda p, a=a: p.cvtpk(a + 2, a + 4, a + 5), 4)
            sc.fill("cv", lambda p, a=a: p.cvtpk(a + 3, a + 6, a + 7), 4, tag=("CV", i), before=dl, lead=10)
            def st(p, a=a, i=i):
                if "O" not in ABL: p.store(a, 4, V_SA, SRD_WS, f"s{S_ST+i}", 0, tag=("ps", i), flags=E("SFL", "sc1"))
            sj = int(E("P0S0", "200")) + int(E("P0SS", "8")) * i
            sc.fill("st", st, 8, after=[("CV", i), bt(sj)], before=bt(max(sj + 8, 144 + 16 * i + 30)), lead=20, tag=("ST", i), solo=SOLO)
        if WTP >= 100:
            for k in range(WTN): sc.fill("wt", lambda p, k=k: w_touch(p, 64 * k), 8, after=bt(WTP - 100 + 4 * k), before=bt(WTP - 92 + 4 * k), solo=True)
        for x in [int(y) for y in E("PSL0", "").split(",") if y]: sc.fill("sl", lambda p: [p.raw("s_nop 15") for _ in range(int(E("PSN", "4")))], 16, before=bt(x), early=0)
        W1 = float(E("P0W1", "5.0")); W2 = float(E("P0W2", "3.0"))
        for i in range(8): fill_dma(sc, [(wload(0, 24 + i), 0)], bt(17 + int(W1 * i)), bt(30 + int(W1 * i)), queue="wl", lead=4)
        for i in range(32):
            j = 17 + int(W1 * (8 + i)) if i < 15 else 146 + int(W2 * (i - 15))
            if i == 0: fill_dma(sc, [(lambda p: next_pair(p, S_WT2), 0)], None, bt(j), queue="wl", lead=4)
            fill_dma(sc, [(wload(1, i, sb=S_WT2), 0)], [bt(j), ("AR", 4)] + (["OK"] if i >= 15 else []), bt(j + 13), queue="wl", lead=4)
        sc.fill("fl", lambda p: p.s(f"s_mov_b32 s{S_WT}, s{S_WT2}"), 4, after=bt(275))
        for r, x in ((S_PO, 64), (S_FO, 64), (S_PC, 1)): sc.fill("fl", lambda p, r=r, x=x: p.s(f"s_add_u32 s{r}, s{r}, {x}"), 4, after=bt(275))
        sc.run()
        q.s(f"s_branch {name}_pass1")
        return q
    p.wait_lgkm0()
    p.s(f"s_branch {name}_pass0")
    pre = p
    p0 = first_pass()
    pe, po = one_pass(0), one_pass(1)
    p = Prog()
    p.label(f"{name}_ptail")
    stamp(p, 17)
    p.vop("v_add_u32", V_JA, f"{AREA + 40960}", V_LIN)
    poll_check(p, f"{name}_pp4", V_FA, f"s{S_PO}", 64, PT3, 0)
    stamp(p, 18)
    for c in range(4): jload(c, 0, POOL[8 + c], S_JC)(p)
    for k in range(4): jload(4 + (k >> 1), k & 1, POOL[12 + k])(p)
    stamp(p, 19)
    for c in (4, 5, 0, 1, 2, 3):
        if c < 4:
            for r in range(8): p.vop("v_add_f32", SUM + 8 * c + r, SUM + 8 * c + r, (ACC + 8 * (c + 1) if c < 3 else OWN) + r)
        reduce(p, c, [JB + 8 * c, JB + 8 * c + 4])
    stamp(p, 20)
    def out(c):
        a = SUM + 8 * c
        for r in range(4): p.cvtpk(a + r, a + 2 * r, a + 2 * r + 1)
        if 0 < c < 4: p.s(f"s_add_u32 s{S_JO}, s{S_JO}, {16 * 1280}")
        p.store(a, 4, V_OA, SRD_OUT, f"s{S_JO if c < 4 else S_EO[c - 4]}", 0, tag="out", flags=E("OFL", "sc1"))
    for c in range(6):
        reduce(p, c, [POOL[8 + c]] if c < 4 else POOL[4 + 2 * c:6 + 2 * c])
        if c: out(c - 1)
    out(5)
    if PROF:
        p.wait_all()
        stamp(p, 21)
        p.s(f"s_getreg_b32 s{S_TM}, hwreg(HW_REG_HW_ID)")
        p.s(f"s_getreg_b32 s{S_TM+1}, hwreg(HW_REG_XCC_ID)")
        p.raw(f"v_writelane_b32 v0, s{S_TM}, 24")
        p.raw(f"v_writelane_b32 v0, s{S_TM+1}, 25")
        p.s(f"s_lshl_b32 s{S_T0}, s2, 2")
        p.s(f"s_add_u32 s{S_T0}, s{S_T0}, s{S_W}")
        p.s(f"s_lshl_b32 s{S_T0}, s{S_T0}, 8")
        p.s(f"s_add_u32 s{S_T0}, s{S_T0}, {PROFOFF}")
        p.vop("v_lshrrev_b32", PT, "2", V_LIN)
        p.store(0, 1, PT, SRD_WS, f"s{S_T0}", 0)
        p.s(f"s_add_u32 s{S_T0}, s{S_T0}, 0x40000")
        p.store(255, 1, PT, SRD_WS, f"s{S_T0}", 0)
        if E("ENC"):
            a_, b_ = E("ENC").split(",")
            if int(E("ENCW", "77")) >= 0:
                p.s(f"s_cmp_lg_u32 s2, {int(E('ENCW', '77'))}")
                p.s(f"s_cbranch_scc1 {name}_end")
            if a_ == "n": p.s(f"s_mov_b32 s56, s{S_NON}")
            else: p.raw(f"v_readlane_b32 s56, v0, {a_}")
            if b_ == "n": p.s(f"s_mov_b32 s57, s{S_NON}")
            else: p.raw(f"v_readlane_b32 s57, v0, {b_}")
            p.raw("s_nop 4")
            p.s("s_sub_u32 s57, s57, s56")
            p.s("s_lshl_b32 s57, s57, 3")
            p.s("s_add_u32 s57, s57, 12000")
            p.label(f"{name}_enc")
            p.s("s_memrealtime s[58:59]")
            p.raw("s_waitcnt lgkmcnt(0)")
            p.s(f"s_sub_u32 s58, s58, s{S_NON}")
            p.s("s_cmp_lt_u32 s58, s57")
            p.s(f"s_cbranch_scc1 {name}_enc")
        if PROF == 5:
            p.s(f"s_cmp_lg_u32 s2, 77")
            p.s(f"s_cbranch_scc1 {name}_end")
            p.s(f"s_cmp_lg_u32 s{S_W}, 0")
            p.s(f"s_cbranch_scc1 {name}_end")
            p.raw("v_readlane_b32 s56, v0, 0")
            for k, ix in enumerate([23, 1, 2, 5, 6, 9, 10, 16, 17, 18, 20, 21]):
                p.raw(f"v_readlane_b32 s57, v0, {ix}")
                p.raw("s_nop 3")
                p.s("s_sub_u32 s57, s57, s56")
                p.raw(f"v_mov_b32 v30, s57")
                p.raw(f"buffer_store_dword v30, off, s[{SRD_DBG}:{SRD_DBG+3}], 0 offset:{8 + 4 * k}")
                p.raw("s_nop 1")
    p.label(f"{name}_end")
    p.raw("s_endpgm")
    rest = [po[0], po[4], pe[0], pe[2], pe[4], *po, *pe, p]
    fw = Prog(); fw.label(f"{name}_fbw"); fw.wait_all(); fw.s(f"s_branch {name}_pass1")
    return [p0, *pe, *po, p, pre, fw], [p0] + rest, [pre, pe[0], pe[4], fw] + rest

def gen(name):
    pro = prologue(name)
    Q = qmod(name)
    AE = aentry(name)
    A = [amod(name, qh) for qh in range(2)]
    F = afin(name)
    P, PS, PS2 = pmod(name)
    SL, SLS = slow(name)
    segs = [pro, Q, AE, A[0], A[1], F] + P + SL
    sims = [[(x, 1) for x in [pro, Q, AE, A[qh], F, AE, A[qh]] + PS] for qh in range(2)]
    sims.append([(x, 1) for x in SLS + PS2])
    lines, stats = finalize([(x, 1) for x in segs], sims=sims)
    if int(E("ROLL", "1")):
        lines = roll(lines, "; ---- a step", 8, S_LOOP, f"{name}_aloop")
        lines = roll(lines, "; ---- q step", 4, S_LOOP, f"{name}_qloop")
    lines += [f"{name}_last:", f".if {name}_last-{name}_pc < {65536 + CPO}", f".fill ({65536 + CPO}-({name}_last-{name}_pc))/4, 4, 0xbf810000", ".endif", f".if {name}_end-{name}_pc > {65536 + CPO}", '.warning "code range"', ".endif"]
    return [f".globl {name}", ".p2align 8", f".type {name},@function", f"{name}:"] + lines, stats
```

```python
from asmlib import *
import math, struct, os
E = os.environ.get
PROF = int(E("PROF", "0"))
ABL = E("ABL", "")
def f2u(f): return struct.unpack("<I", struct.pack("<f", f))[0]
CSCALE = math.log2(math.e) / math.sqrt(128.0)
NWG = 256
LDS_BYTES = 163840
XSL = 18432
XRING = 131072
XALT = 65536 - XSL
WRING = 65536
MISC = 147456
def IMG(kq): return (kq >> 3) * 73728 + (kq & 3) * 18432 + ((kq >> 2) & 1) * 9216
DROP = 0x30000
OOB = 0x40000000
WOT = 0
PART = 128 * 40960
AREA = 18 * 40960
PARTB = 2 * AREA
WFLG = PART + 32 * PARTB
PFLG = WFLG + 8192
FG = int(E('FG', '3')); FS = int(E('FS', '128'))
WSBYTES = PFLG + 128 * 4 * FS
PROFOFF = 0x4000000

SRD_X, SRD_K, SRD_V, SRD_W, SRD_WS, SRD_WO, SRD_OUT, SRD_DBG = 8, 12, 16, 20, 24, 28, 32, 36
S_W = 3
S_T0, S_T1, S_B, S_G, S_P, S_T2 = 40, 41, 42, 43, 44, 45
S_CS, S_NON, S_SPIN, S_PH, S_GRP, S_SO = 46, 48, 50, 51, 52, 53
S_BAD = 54
S_KOFF, S_VOFF, S_KB, S_KVN, S_M0KV, S_WFP = 56, 57, 58, 59, 60, 61
S_WOFF, S_WB, S_XOFF, S_XB = 62, 63, 65, 66
S_M0W, S_M0X8 = 75, 72
S_WT, S_PT, S_PF, S_RD, S_OUTO = 76, 77, 78, 79, 80
S_LO, S_HI = 81, 82
S_TM = 84
S_VB = 88
S_M0KVP, S_KVP, S_M0D, S_U = 89, 91, 94, 95
S_LOOP = 92
S_WT2 = 98

V_DK, V_DV, V_DW, V_DX = 1, 5, 9, 13
V_AK, V_AV0, V_AV1, V_AX, V_AX8, V_LIN = 18, 19, 20, 21, 22, 24
V_E0, V_E1, V_E2 = 25, 26, 27
V_S = 28
V_AW = V_S + 40
V_O = 84
V_T = 244
V_DA = V_T + 3
V_NV = 252
V_JUNK = 254
A_Q, A_QN, A_L, A_ONE, A_POOL, A_X = 256, 336, 416, 436, 440, 472
A_QP = 480
NPOOL = 8
def Qf(n, ks, base=A_Q): return base + (n * 4 + ks) * 4
def Oa(n, m): return V_O + (n * 8 + m) * 4
def XS(par, n): return V_S + (par * 4 + n) * 4 if n < 4 else V_S + 48
def YS(n): return V_S + 32 + n * 4 if n < 4 else V_S + 52
def La(n): return A_L + 4 * n
def Xf(st, t): return V_S + (st * 5 + t) * 4
def QA(r, n, m): return (A_QN if r else V_O) + (n * 8 + m) * 4

def stamp(p, idx, dyn=None):
    if not PROF: return
    p.s(f"s_memrealtime s[{S_TM}:{S_TM+1}]")
    p.s(f"s_memtime s[{S_TM+2}:{S_TM+3}]")
    p.wait_lgkm0()
    if dyn is None:
        p.raw(f"v_writelane_b32 v0, s{S_TM}, {idx}")
        p.raw(f"v_writelane_b32 v255, s{S_TM+2}, {idx}")
    else:
        p.s("s_mov_b32 s99, m0")
        p.s(f"s_lshl_b32 m0, s{dyn}, 2")
        p.s(f"s_add_u32 m0, m0, {idx}")
        p.raw(f"v_writelane_b32 v0, s{S_TM}, m0")
        p.raw(f"v_writelane_b32 v255, s{S_TM+2}, m0")
        p.s("s_mov_b32 m0, s99")

KVSEQ = [("K", 0)]
for u in range(15): KVSEQ += [("K", u + 1), ("V", u)]
KVSEQ += [("V", 15)]
KVPOS = {t: i for i, t in enumerate(KVSEQ)}
DYN = (10, 30)
SRD_C = SRD_WO
S_ROT, S_C, S_D = S_KOFF, S_VOFF, S_VB
def kv_ops(pos):
    pre = pos >= 32; pos %= 32
    kind, u = KVSEQ[pos]
    dyn = DYN[0] <= pos <= DYN[1] and not pre
    ops = []
    for j in range(4):
        def f(p, j=j):
            if dyn:
                if j == 0:
                    if pos == DYN[0]:
                        p.s(f"s_add_u32 s{S_C}, s{S_ROT}, {u * 8192}")
                        p.s(f"s_and_b32 s{S_C}, s{S_C}, 0x1ffff")
                        p.s(f"s_mov_b32 s{S_D}, {16384 if kind == 'V' else -8192}")
                        p.s(f"s_mov_b32 s{S_M0D}, {(pos % 8) * 16384}")
                    p.s(f"s_cmp_gt_i32 s{S_D}, 0")
                    p.s(f"s_cselect_b64 s[{SRD_C}:{SRD_C+1}], s[{SRD_V}:{SRD_V+1}], s[{SRD_K}:{SRD_K+1}]")
                    p.s(f"s_add_u32 m0, s{S_M0KV}, s{S_M0D}")
                    p.s(f"s_add_u32 s{S_SO}, s{S_KB}, s{S_C}")
                if "D" not in ABL: p.dmao(V_DV + j, SRD_C, f"s{S_SO}", j * 1024, (kind, u), "nt")
                if j == 0: p.s(f"s_add_u32 s{S_C}, s{S_C}, s{S_D}")
                if j == 1:
                    p.s(f"s_and_b32 s{S_C}, s{S_C}, 0x1ffff")
                    p.s(f"s_sub_u32 s{S_D}, 8192, s{S_D}")
                if j == 2:
                    p.s(f"s_add_u32 s{S_M0D}, s{S_M0D}, 16384")
                    p.s(f"s_and_b32 s{S_M0D}, s{S_M0D}, 0x1ffff")
                return
            if j == 0:
                if pre: p.s(f"s_add_u32 m0, s{S_M0KVP + (pos >> 2)}, {(pos % 4) * 16384}")
                else: p.s(f"s_add_u32 m0, s{S_M0KV}, {(pos % 8) * 16384}")
                p.s(f"s_add_u32 s{S_SO}, s{S_ROT}, {u * 8192}")
                p.s(f"s_and_b32 s{S_SO}, s{S_SO}, 0x1ffff")
                p.s(f"s_add_u32 s{S_SO}, s{S_SO}, s{S_KVP if pre else S_KB}")
            if "D" not in ABL: p.dmao(V_DV + j, SRD_K if kind == "K" else SRD_V, f"s{S_SO}", j * 1024, (kind, u), "nt")
        ops.append((f, 8))
    return ops
def w_ops(h):
    ops = []
    for j in range(4):
        def f(p, j=j):
            if j == 0:
                p.s(f"s_add_u32 m0, s{S_M0W}, {(h % 4) * 16384}")
                p.s(f"s_add_u32 s{S_SO}, s{S_WB + (h & 1)}, s{S_WOFF}")
            if "W" not in ABL: p.dmao(V_DW + j, SRD_W, f"s{S_SO}", j * 1024, ("W", h))
            if j == 1 and h % 2 == 1: p.s(f"s_add_u32 s{S_WOFF}, s{S_WOFF}, {32 * 8192}")
            if j == 2 and h % 4 == 3:
                p.s(f"s_cmp_ge_u32 s{S_WOFF}, {640 * 8192}")
                p.s(f"s_cselect_b32 s{S_WOFF}, 0, s{S_WOFF}")
        ops.append((f, 12 if j == 0 or (j == 2 and h % 4 == 3) else 8 if j == 1 and h % 2 else 4))
    return ops
def xw_ops(i, h):
    def X(j):
        def f(p):
            p.s(f"s_add_u32 m0, s{S_M0KV if j < 4 else S_M0X8}, {XRING}")
            if j == 0: p.s(f"s_add_u32 s{S_T1}, s{S_XB}, s{S_XOFF}")
            p.dmao(V_DX + j, SRD_X, f"s{S_T1}", (j & 3) * 1024, ("X", i))
            if j == 1: p.s(f"s_add_u32 s{S_XOFF}, s{S_XOFF}, 128")
            if j == 2:
                p.s(f"s_cmp_ge_u32 s{S_XOFF}, 1280")
                p.s(f"s_cselect_b32 s{S_XOFF}, 0, s{S_XOFF}")
        return (f, 8)
    w = w_ops(h)
    W = lambda j: ((lambda p: ((p.s(f"s_add_u32 m0, s{S_M0W}, {(h % 4) * 16384}") if j else None), w[j][0](p))), 8)
    return [X(0), W(0), X(1), W(1), X(2), W(2), X(3), W(3), X(4)]
def x_ops(i):
    ops = []
    sb = XRING if i else XALT
    for j in range(5):
        def f(p, j=j):
            if j == 0:
                p.s(f"s_add_u32 m0, s{S_M0KV}, {sb}")
                p.s(f"s_add_u32 s{S_SO}, s{S_XB}, s{S_XOFF}")
            if "X" not in ABL: p.dmao(V_DX + j, SRD_X, f"s{S_SO}", (j & 3) * 1024, ("X", i), E("XFL", ""))
            if j == 1: p.s(f"s_add_u32 s{S_XOFF}, s{S_XOFF}, 128")
            if j == 2:
                p.s(f"s_cmp_ge_u32 s{S_XOFF}, 1280")
                p.s(f"s_cselect_b32 s{S_XOFF}, 0, s{S_XOFF}")
            if j == 3:
                p.s(f"s_add_u32 m0, s{S_M0X8}, {sb}")
                p.nop(0)
        ops.append((f, 12 if j in (0, 2, 3) else 8 if j == 1 else 4))
    return ops

SRD_E = 4
S_EM, S_ED, S_TAB, S_ES, S_WEND, S_EW = 67, 68, 69, 70, 71, 73
STG = 0x26000
V_WR = V_O + 144
EKP = [int(x) for x in E("EKP", "1,2,1,2").split(",")]
PFP = [int(x) for x in E("PFP", "")]; PFN = len(PFP)
PFS = int(E("PFS", "1"))
S_PFO, S_PFB = 74, 83
FWL = int(E("FWL", "1"))
def ek_ops(h):
    it = h // 4
    tag = KVSEQ[(it - 1) // 2]
    def kp(p):
        p.s(f"s_and_b32 s{S_ES}, s{S_TAB}, 0x7000")
        p.s(f"s_add_u32 s{S_ES}, s{S_ES}, s{S_ROT}")
        p.s(f"s_and_b32 s{S_ES}, s{S_ES}, 0x1ffff")
        p.s(f"s_add_u32 s{S_ES}, s{S_ES}, s{S_KVP}")
        if PFS > 1 and not PFN:
            p.s(f"s_bitcmp1_b32 s{S_WEND}, 16")
            p.s(f"s_cselect_b32 s{S_ES}, s{S_ES}, {OOB:#x}")
        p.s(f"s_bitcmp1_b32 s{S_TAB}, 15")
        p.s(f"s_cselect_b64 s[{SRD_E}:{SRD_E+1}], s[{SRD_V}:{SRD_V+1}], s[{SRD_K}:{SRD_K+1}]")
        p.s(f"s_lshr_b32 s{S_T0}, s{S_TAB}, 4")
        p.s(f"s_lshl_b32 s{S_TAB}, s{S_TAB}, 28")
        p.s(f"s_or_b32 s{S_TAB}, s{S_TAB}, s{S_T0}")
    def k0(p):
        p.s(f"s_add_u32 m0, s{S_M0KV}, s{S_EM}")
        if "D" not in ABL: p.dmao(V_DV, SRD_E, f"s{S_ES}", 0, tag, "nt")
    def k1(p):
        p.s(f"s_add_u32 m0, s{S_M0KV}, s{S_EM}")
        p.s(f"s_add_u32 s{S_EM}, s{S_EM}, s{S_ED}")
        if "D" not in ABL: p.dmao(V_DV + 1, SRD_E, f"s{S_ES}", 1024, tag, "nt")
        p.s(f"s_xor_b32 s{S_ED}, s{S_ED}, {2048 ^ 14336}")
    def wo(p):
        p.s(f"s_mov_b32 m0, s{S_EW}")
        p.s(f"s_bitcmp1_b32 s{S_WEND}, 0")
        p.s(f"s_cselect_b32 s{S_T0}, s{S_WT}, {OOB:#x}")
        p.dmao(V_DX, SRD_WO, f"s{S_T0}", 0, ("WOP", it), E("WOFL", "nt"))
        p.s(f"s_xor_b32 s{S_EW}, s{S_EW}, 4096")
        p.s(f"s_lshr_b32 s{S_WEND}, s{S_WEND}, 1")
        p.s(f"s_add_u32 s{S_WT}, s{S_WT}, 128")
    def none(p): p.add(Ins(f"buffer_load_dword v{V_JUNK}, off, s[{SRD_DBG}:{SRD_DBG+3}], 0 offset:256", "vm", [], [], tag="none"))
    def pf(srd, du, j, last):
        def f(p):
            p.s(f"s_add_u32 s{S_T0}, s{S_PFO}, {du * 8192}")
            p.s(f"s_and_b32 s{S_T0}, s{S_T0}, 0x1ffff")
            p.s(f"s_add_u32 s{S_T0}, s{S_T0}, s{S_PFB}")
            p.add(Ins(f"buffer_load_dword v{V_JUNK}, v{V_DV + j}, s[{srd}:{srd+3}], s{S_T0} offen offset:{j * 1024} {E('PFFL', '')}", "vm", [V_DV + j], [], tag="pf"))
            if last:
                p.s(f"s_add_u32 s{S_PFO}, s{S_PFO}, {8192 * PFN // 2}")
                p.s(f"s_bitcmp1_b32 s{S_WEND}, 16")
                p.s(f"s_cselect_b32 s{S_PFB}, s{S_KVP}, {OOB:#x}")
        return f
    if int(E("PFD", "0")) == 2:
        def pf(srd, du, j, last):
            def f(p):
                p.s(f"s_mov_b32 m0, s94")
                p.s(f"s_add_u32 s{S_T0}, s{S_PFO}, {du * 8192}")
                p.s(f"s_and_b32 s{S_T0}, s{S_T0}, 0x1ffff")
                p.s(f"s_add_u32 s{S_T0}, s{S_T0}, s{S_PFB}")
                p.dmao(V_DV, srd, f"s{S_T0}", 0, "pf", E("PFFL", ""))
                if last:
                    p.s(f"s_add_u32 s{S_PFO}, s{S_PFO}, {8192 * PFN // 2}")
                    p.s(f"s_bitcmp1_b32 s{S_WEND}, 16")
                    p.s(f"s_cselect_b32 s{S_PFB}, s{S_KVP}, {OOB:#x}")
            return f
    if int(E("PFD", "0")) == 1:
        def pf(srd, du, j, last):
            def f(p):
                p.s(f"s_mov_b32 m0, s94")
                p.s(f"s_and_b32 s{S_T0}, s{S_PFO}, 0x1ffff")
                p.s(f"s_add_u32 s{S_T0}, s{S_T0}, s{S_PFB}")
                p.dmao(V_DV, SRD_V, f"s{S_T0}", 0, "pf", "nt")
                p.s(f"s_add_u32 s{S_PFO}, s{S_PFO}, 2048")
            return f
    warm = lambda r: lambda p: p.add(Ins(f"buffer_load_dword v{V_JUNK}, off, s[{SRD_WS}:{SRD_WS+3}], s{r} sc1", "vm", [], [], tag="touch"))
    fs = [k0, k1, wo, None, kp] if it else [none if x else None for x in EKP[:3]] + [None, kp]
    if FWL and not it: fs[FWL // 10], fs[FWL % 10] = (lambda p: p.add(Ins(f"buffer_load_dword v{V_JUNK}, v4, s[{SRD_WS}:{SRD_WS+3}], s{S_T2} offen sc1", "vm", [4], [], tag="touch"))), warm(S_WFP)
    fs += [pf(SRD_K if k & 1 else SRD_V, (5 if k & 1 else 3) + (k >> 1), 3, k == PFN - 1) if it else (none if PFP[k] else None) for k in range(PFN)]
    fs += [code_touch] * len(CPQ)
    return [(f, 8) for f, x in zip(fs, EKP + [3] + PFP + CPQ) if f and x == h % 4]
def wst(p):
    for i in range(5):
        p.store(A_Q + 16 - 4 * i, 4, V_LIN, SRD_WS, f"s{S_PT}", 0, tag="wst", flags="sc1")
        if i < 4: p.s(f"s_add_u32 s{S_PT}, s{S_PT}, 4096")

def split_ops(ops):
    q = Prog()
    for f, _ in ops: f(q)
    out = []; i = 0; L = [x for x in q.ins if x.kind != "nop"]
    while i < len(L):
        grp = [L[i]]
        if L[i].text.startswith(("s_cmp", "s_bitcmp")): grp.append(L[i + 1])
        i += len(grp)
        out.append((lambda p, grp=grp: [p.add(x) for x in grp], "vm" if grp[0].kind in ("vm", "vml", "vms") else "s", 4 * len(grp)))
    return out
def fill_dma(sc, ops, after, before, tag=None, queue="dma", lead=80):
    so = split_ops(ops)
    for k, (fn, kind, cost) in enumerate(so):
        sc.fill(queue, fn, 8 if kind == "vm" else cost, after=after, before=before, lead=lead, solo=(kind == "vm" and SOLO), paced=(kind == "vm"),
                tag=tag if k == len(so) - 1 else None)
SOLO = int(E("SOLO", "1"))
T7 = int(E("T7", "0"))
def sprinkle(progs, ops, lo=0.0, hi=1.0):
    pts = []
    for p, st in progs:
        masked = False
        for i in range(st, len(p.ins)):
            x = p.ins[i]
            if x.text.startswith("s_mov_b64 exec"): masked = not x.text.endswith("-1")
            if x.kind == "label" and not x.text.startswith(";"): break
            if x.kind in ("valu", "perm") and not masked and p.ins[i - 1].kind in ("valu", "perm") and "v_cmp" not in x.text and "v_cmp" not in p.ins[i - 1].text: pts.append((p, i))
    a, b = int(lo * len(pts)), int(hi * len(pts))
    sel = [pts[a + (k * (b - a)) // len(ops)] for k in range(len(ops))]
    for (p, i), (fn, _) in reversed(list(zip(sel, ops))):
        q = Prog(); fn(q)
        p.ins[i:i] = q.ins

V_CP = 2
V_WP, WTP = 23, int(E("WTP", "-1"))
CPO = int(E("CPO", "1536"))
CPQ = [int(x) for x in E("CPQ", "2")]
CPA = [int(x) for x in E("CPA", "").split(",") if x]
WTN = int(E("WTN", "2"))
def w_touch(p, off): p.add(Ins(f"buffer_load_dword v{V_JUNK}, v{V_WP}, s[{SRD_WS}:{SRD_WS+3}], 0 offen offset:{off} sc1", "vm", [V_WP], [], tag="wtp"))
def code_addr(p, name, L):
    p.s(f"s_getpc_b64 s[{S_TM}:{S_TM+1}]")
    p.label(f"{name}_pc")
    p.s(f"s_lshr_b32 s{S_T0}, s2, 1")
    p.s(f"s_and_b32 s{S_T0}, s{S_T0}, 0x7c")
    p.s(f"s_add_u32 s{S_T0}, s{S_T0}, s{S_W}")
    p.s(f"s_lshl_b32 s{S_T0}, s{S_T0}, 9")
    p.s(f"s_add_u32 s{S_T0}, s{S_T0}, {CPO}")
    p.s(f"s_add_u32 s{S_TM}, s{S_TM}, s{S_T0}")
    p.s(f"s_addc_u32 s{S_TM+1}, s{S_TM+1}, 0")
    p.raw(f"v_and_b32 v{V_CP}, {7 if int(E('CP64', '0')) else 3}, v{L}")
    p.raw(f"v_lshlrev_b32 v{V_CP}, {6 if int(E('CP64', '0')) else 7}, v{V_CP}")
    p.raw(f"v_mov_b32 v{V_CP+1}, s{S_TM+1}")
    p.raw(f"v_add_co_u32 v{V_CP}, vcc, s{S_TM}, v{V_CP}")
    p.raw("s_nop 1")
    p.raw(f"v_addc_co_u32 v{V_CP+1}, vcc, 0, v{V_CP+1}, vcc")
def code_touch(p): p.add(Ins(f"global_load_dword v{V_JUNK}, v[{V_CP}:{V_CP+1}], off", "vm", [], [], tag="code"))

def get_nonce(p, name, t):
    p.add(Ins(f"v_readfirstlane_b32 s{S_NON}, v{V_NV}", "rfl", [V_NV], []))
    p.add(Ins(f"v_readfirstlane_b32 s{S_NON+1}, v{V_NV+1}", "rfl", [V_NV + 1], []))
    p.s(f"s_cmp_lt_i32 s{S_NON+1}, 0")
    p.s(f"s_cbranch_scc1 {name}_x")
    p.vop("v_mov_b32", t + 2, "0")
    p.label(f"{name}")
    p.raw(f"buffer_load_dwordx2 v[{t}:{t+1}], v{t+2}, s[{SRD_DBG}:{SRD_DBG+3}], 0 offen sc1")
    p.raw("s_waitcnt vmcnt(0)")
    p.raw(f"v_readfirstlane_b32 s{S_NON}, v{t}")
    p.raw(f"v_readfirstlane_b32 s{S_NON+1}, v{t+1}")
    p.s(f"s_sub_u32 s{S_SPIN}, s{S_SPIN}, 1")
    p.s(f"s_cbranch_scc1 {name}_x")
    p.s(f"s_cmp_lt_i32 s{S_NON+1}, 0")
    p.s(f"s_cbranch_scc0 {name}")
    p.label(f"{name}_x")
    p.nop(1)

def publish(p, soff, off, t):
    p.vop("v_mov_b32", t, f"s{S_NON}")
    p.vop("v_mov_b32", t + 1, f"s{S_NON+1}")
    p.s("s_mov_b64 exec, 1")
    p.store(t, 2, V_LIN, SRD_WS, soff, off, tag="flag", flags="sc1")
    p.s("s_mov_b64 exec, -1")

def poll_issue(p, vaddr, soff, off, t):
    p.add(Ins(f"buffer_load_dwordx2 v[{t}:{t+1}], v{vaddr}, s[{SRD_WS}:{SRD_WS+3}], {soff} offen offset:{off} sc1", "vml", [vaddr], [t, t + 1], tag="poll"))
def poll_check(p, name, vaddr, soff, off, t, slp=2):
    p.label(f"{name}")
    p.add(Ins(f"v_cmp_ne_u32 vcc, s{S_NON}, v{t}", "valu", [t], []))
    p.add(Ins(f"v_cmp_ne_u32 s[{S_TM+2}:{S_TM+3}], s{S_NON+1}, v{t+1}", "valu", [t + 1], []))
    p.s(f"s_or_b64 vcc, vcc, s[{S_TM+2}:{S_TM+3}]")
    if "Y" in ABL and "pp" in name: p.s(f"s_branch {name}_ok")
    p.s(f"s_cbranch_scc0 {name}_ok")
    p.s(f"s_sub_u32 s{S_SPIN}, s{S_SPIN}, 1")
    p.s(f"s_cbranch_scc1 {name}_ok")
    if slp: p.s(f"s_sleep {slp}")
    p.raw(f"buffer_load_dwordx2 v[{t}:{t+1}], v{vaddr}, s[{SRD_WS}:{SRD_WS+3}], {soff} offen offset:{off} sc1")
    p.raw("s_waitcnt vmcnt(0)")
    p.s(f"s_branch {name}")
    p.label(f"{name}_ok")

PRO = int(E("PRO", "2"))
def prologue(name):
    p = Prog()
    if PROF: p.s("s_memrealtime s[100:101]")
    p.s(f"s_cmp_ge_u32 s2, {NWG}")
    p.s(f"s_cbranch_scc1 {name}_end")
    p.s("s_load_dwordx8 s[84:91], s[0:1], 0")
    p.s("s_load_dwordx8 s[92:99], s[0:1], 32")
    T = V_O
    W, L, a, b, c, d, U, P, VV, R8, PI, M, G, cv = range(T, T + 14)
    p.vop("v_lshrrev_b32", W, "6", 0)
    p.vop("v_and_b32", L, "63", 0)
    p.add(Ins(f"v_readfirstlane_b32 s{S_W}, v{W}", "rfl", [W], []))
    p.vop("v_and_b32", U, "1", W)
    p.vop("v_lshrrev_b32", P, "1", W)
    p.vop("v_lshrrev_b32", VV, "5", L)
    p.vop("v_bfe_u32", R8, L, "2", "3")
    p.vop("v_and_b32", PI, "3", L)
    p.s(f"s_movk_i32 s{S_T0}, 1280")
    p.vop("v_mul_lo_u32", a, R8, f"s{S_T0}")
    p.vop("v_lshl_add_u32", a, VV, "6", a)
    p.vop("v_xor_b32", c, "3", PI)
    p.vop("v_lshl_add_u32", V_DX, PI, "4", a)
    p.vop("v_lshl_add_u32", b, c, "4", a)
    p.vop("v_add_u32", V_DX + 1, f"{9216}", b)
    p.vop("v_add_u32", V_DX + 2, f"{2 * 9216}", V_DX)
    p.vop("v_add_u32", V_DX + 3, f"{3 * 9216}", b)
    p.vop("v_lshrrev_b32", d, "2", R8)
    p.vop("v_lshlrev_b32", cv, "1", d)
    p.vop("v_xor_b32", cv, cv, PI)
    p.vop("v_and_b32", b, "3", R8)
    p.vop("v_lshl_add_u32", b, d, "3", b)
    p.vop("v_lshlrev_b32", d, "7", U)
    p.vop("v_lshl_add_u32", d, VV, "6", d)
    p.vop("v_lshl_add_u32", b, b, "13", d)
    p.vop("v_lshl_add_u32", V_DW, cv, "4", b)
    for j in range(1, 4): p.vop("v_add_u32", V_DW + j, f"{(16 * (j & 1) + 4 * (j >> 1)) * 8192 - 1024 * j}", V_DW)
    p.vop("v_mul_u32_u24", b, "3", P)
    p.vop("v_xor_b32", b, b, PI)
    p.vop("v_lshl_add_u32", b, b, "4", a)
    p.vop("v_lshlrev_b32", a, "2", W)
    p.vop("v_sub_u32", a, P, a)
    p.vop("v_add_u32", a, "16", a)
    p.s(f"s_movk_i32 s{S_T1}, {8 * 1280}")
    p.vop("v_mul_lo_u32", a, a, f"s{S_T1}")
    p.vop("v_add_u32", a, a, b)
    p.vop("v_lshl_add_u32", V_DX + 4, U, "30", a)
    MAP = int(E("MAP", "0"))
    p.s(f"s_bfe_u32 s{S_T0}, s2, {(MAP << 16) | 3:#x}")
    p.s(f"s_lshr_b32 s{S_T2}, s2, {3 + MAP}")
    p.s(f"s_and_b32 s{S_G}, s2, {(1 << (3 - MAP)) - 1}")
    p.s(f"s_lshl_b32 s{S_G}, s{S_G}, {MAP}")
    p.s(f"s_or_b32 s{S_G}, s{S_G}, s{S_T0}")
    p.s(f"s_bfe_u32 s{S_B}, s2, {(MAP << 16) | (3 - MAP):#x}")
    p.s(f"s_lshl_b32 s{S_B}, s{S_B}, {5 - MAP}")
    p.s(f"s_or_b32 s{S_B}, s{S_B}, s{S_T2}")
    p.s(f"s_mul_i32 s{S_T0}, s{S_T0}, {int(E('PHM', str(1 << (5 - MAP))))}")
    p.s(f"s_lshl_b32 s{S_T2}, s{S_T2}, {MAP}")
    p.s(f"s_add_u32 s{S_T2}, s{S_T2}, s{S_T0}")
    if int(E("GPH", "0")):
        p.s(f"s_and_b32 s{S_T0}, s{S_G}, {int(E('GPM', '7'))}")
        p.s(f"s_mul_i32 s{S_T0}, s{S_T0}, {int(E('GPH', '0'))}")
        p.s(f"s_add_u32 s{S_T2}, s{S_T2}, s{S_T0}")
    p.s(f"s_and_b32 s{S_T2}, s{S_T2}, 31")
    p.s(f"s_lshr_b32 s{S_P}, s{S_W}, 1")
    p.s(f"s_lshl_b32 s{S_M0KV}, s{S_W}, 12")
    p.s(f"s_add_u32 s{S_M0W}, s{S_M0KV}, {WRING}")
    p.s(f"s_lshl_b32 s{S_M0X8}, s{S_P}, 10")
    p.s(f"s_add_u32 s{S_M0X8}, s{S_M0X8}, 16384")
    p.s(f"s_bitcmp1_b32 s{S_W}, 0")
    p.s(f"s_cselect_b32 s{S_M0X8}, 0x1d000, s{S_M0X8}")
    p.s(f"s_lshl_b32 s{S_T0}, s{S_G}, 2")
    p.s(f"s_add_u32 s{S_T0}, s{S_T0}, s{S_P}")
    p.s(f"s_lshl_b32 s{S_WB}, s{S_T0}, 8")
    p.s(f"s_add_u32 s{S_WB+1}, s{S_WB}, 512")
    p.s(f"s_lshl_b32 s{S_T1}, s{S_B}, 5")
    p.s(f"s_add_u32 s{S_T0}, s{S_T0}, s{S_T1}")
    p.s(f"s_lshl_b32 s{S_KVN}, s{S_T0}, 17")
    p.s(f"s_mul_i32 s{S_T0}, s{S_T2}, 5")
    p.s(f"s_lshr_b32 s{S_T0}, s{S_T0}, 4")
    if not int(E("ROT", "1")): p.s(f"s_mov_b32 s{S_T0}, 0")
    p.s(f"s_lshl_b32 s{S_XOFF}, s{S_T0}, 7")
    p.s(f"s_lshl_b32 s{S_WOFF}, s{S_T0}, 19")
    p.s(f"s_mul_i32 s{S_XB}, s{S_B}, {144 * 1280}")
    p.s(f"s_mul_i32 s{S_T0}, s{S_W}, {32 * 1280}")
    p.s(f"s_add_u32 s{S_XB}, s{S_XB}, s{S_T0}")
    def srd(r, src, size):
        p.s(f"s_mov_b32 s{r+2}, {size:#x}")
        p.s(f"s_mov_b32 s{r+3}, 0x20000")
    def srd2(r, src):
        p.s(f"s_mov_b32 s{r}, s{src}")
        p.s(f"s_and_b32 s{r+1}, s{src+1}, 0xffff")
    SR = ((SRD_X, 84, 32 * 144 * 640 * 2), (SRD_W, 90, 640 * 4096 * 2), (SRD_K, 86, 1 << 27), (SRD_V, 88, 1 << 27),
          (SRD_WO, 92, 4096 * 640 * 2), (SRD_OUT, 94, 32 * 144 * 640 * 2), (SRD_DBG, 96, 256), (SRD_WS, 98, (1 << 28) if PROF else WSBYTES))
    for x in SR: srd(*x)
    if PROF: p.s("s_memrealtime s[66:67]") if 0 else None
    p.s("s_waitcnt lgkmcnt(0)")
    if PROF: p.s("s_memrealtime s[4:5]")
    for x in SR[:2]: srd2(*x[:2])
    for ops in (x_ops(0), w_ops(0), w_ops(1)):
        for f, _ in ops: f(p)
    for x in SR[2:]: srd2(*x[:2])
    stamp(p, 0)
    if PROF:
        p.raw("v_writelane_b32 v0, s100, 3")
        p.raw("v_writelane_b32 v0, s4, 4")
    p.vop("v_lshlrev_b32", V_LIN, "4", L)
    code_addr(p, name, L)
    code_touch(p)
    p.vop("v_lshl_add_u32", b, R8, "8", d)
    p.vop("v_lshl_add_u32", V_DV, cv, "4", b)
    for j in range(1, 4): p.vop("v_add_u32", V_DV + j, f"{1024 * j}", V_DV)
    if E("LINT", "") == "1":
        for j in range(4): p.vop("v_lshl_add_u32", V_DV + j, U, "12", V_LIN)
    if E("LINT", "") == "2":
        p.vop("v_lshl_add_u32", V_DV, U, "10", V_LIN)
        for j in range(1, 4): p.vop("v_add_u32", V_DV + j, f"{1024 * j}", V_DV)
    p.s(f"s_lshl_b32 s{S_T0}, s2, 1")
    p.s(f"s_add_u32 s{S_T0}, s{S_T0}, s{S_P}")
    p.s(f"s_mul_i32 s{S_T0}, s{S_T0}, {int(E('KROT', '5'))}")
    p.s(f"s_lshr_b32 s{S_T1}, s2, 3")
    p.s(f"s_add_u32 s{S_T0}, s{S_T0}, s{S_T1}")
    p.s(f"s_and_b32 s{S_T0}, s{S_T0}, {15 if int(E('KROT', '5')) else 0}")
    p.s(f"s_lshl_b32 s{S_KOFF}, s{S_T0}, 13")
    p.s(f"s_mov_b32 s{S_M0KVP}, s{S_M0KV}")
    p.s(f"s_mov_b32 s{S_M0KVP+1}, s{S_M0W}")
    p.s(f"s_mov_b32 s{S_KVP}, s{S_KVN}")
    p.s(f"s_mov_b32 s{S_EM}, 0")
    p.s(f"s_movk_i32 s{S_ED}, 2048")
    p.s(f"s_mov_b32 s{S_TAB}, 0x83210549")
    srd(SRD_E, 0, 1 << 27)
    p.s(f"s_and_b32 s{S_U}, s{S_W}, 1")
    p.s(f"s_lshl_b32 s{S_T0}, s{S_B}, 2")
    p.s(f"s_lshr_b32 s{S_T1}, s{S_G}, 1")
    p.s(f"s_add_u32 s{S_T0}, s{S_T0}, s{S_T1}")
    p.s(f"s_and_b32 s{S_T1}, s{S_G}, 1")
    p.s(f"s_lshl_b32 s{S_WFP}, s{S_P}, 7")
    p.s(f"s_add_u32 s{S_WFP}, s{S_WFP}, s{S_T0}")
    p.s(f"s_lshl1_add_u32 s{S_WFP}, s{S_WFP}, s{S_T1}")
    p.s(f"s_lshl1_add_u32 s{S_WFP}, s{S_WFP}, s{S_U}")
    p.s(f"s_lshl3_add_u32 s{S_WFP}, s{S_WFP}, {WFLG}")
    p.s(f"s_mul_i32 s{S_T0}, s{S_T0}, 40960")
    p.s(f"s_mul_i32 s{S_PT}, s{S_T1}, 20480")
    p.s(f"s_add_u32 s{S_PT}, s{S_PT}, s{S_T0}")
    p.s(f"s_lshl_b32 s{S_EW}, s{S_W}, 10")
    p.s(f"s_add_u32 s{S_PT}, s{S_PT}, s{S_EW}")
    p.s(f"s_add_u32 s{S_EW}, s{S_EW}, {STG}")
    p.s(f"s_mul_i32 s{S_T1}, s{S_T1}, 640")
    p.s(f"s_add_u32 s{S_WT}, s{S_T1}, s{S_T0}")
    p.s(f"s_mul_i32 s{S_T1}, s{S_W}, {8 * 1280}")
    p.s(f"s_add_u32 s{S_WT}, s{S_WT}, s{S_T1}")
    p.s(f"s_mov_b32 s{S_WEND}, {0x7c | ((0xfff << (15 + PFS)) & 0x7fff0000):#x}")
    if PFN:
        p.s(f"s_lshl_b32 s94, s{S_W}, 10")
        p.s(f"s_add_u32 s94, s94, {XRING + XSL}")
        p.s(f"s_sub_u32 s{S_PFO}, s{S_KOFF}, {8192 * PFN // 2 * (PFS - 1) + 65536 * (int(E('PFD', '0')) == 1)}")
        if int(E("PFD", "0")) == 2:
            p.s(f"s_add_u32 s{S_T0}, s{S_B}, s{S_G}")
            p.s(f"s_add_u32 s{S_T0}, s{S_T0}, s{S_P}")
            p.s(f"s_and_b32 s{S_T0}, s{S_T0}, 3")
            p.s(f"s_lshl_b32 s{S_T0}, s{S_T0}, 11")
            p.s(f"s_add_u32 s{S_PFO}, s{S_PFO}, s{S_T0}")
        p.s(f"s_mov_b32 s{S_PFB}, " + (f"s{S_KVP}" if PFS == 1 else f"{OOB:#x}"))
    if int(E("TOUCH", "0")):
        p.add(Ins(f"buffer_load_dword v{V_T+4}, off, s[{SRD_K}:{SRD_K+3}], s{S_KVN} nt", "vml", [], [V_T + 4], tag="touch"))
        p.add(Ins(f"buffer_load_dword v{V_T+5}, off, s[{SRD_V}:{SRD_V+3}], s{S_KVN} nt", "vml", [], [V_T + 5], tag="touch"))
        p.add(Ins(f"buffer_load_dword v{V_T+7}, off, s[{SRD_WS}:{SRD_WS+3}], s{S_PT} sc1", "vml", [], [V_T + 7], tag="touch"))
        if int(E("TOUCHO", "1")): p.add(Ins(f"buffer_load_dword v{V_T+6}, off, s[{SRD_WO}:{SRD_WO+3}], s{S_WT}", "vml", [], [V_T + 6], tag="touch"))
    p.s(f"s_sub_u32 s{S_WT}, s{S_WT}, 256")
    FWARM = int(E("FWARM", "3"))
    if FWARM & 1:
        p.s(f"s_lshl2_add_u32 s{S_T0}, s{S_B}, s{S_W}")
        p.s(f"s_mul_i32 s{S_T0}, s{S_T0}, {4 * FS}")
        p.s(f"s_lshl_b32 s{S_T1}, s{S_G}, {FG}")
        p.s(f"s_add_u32 s{S_T0}, s{S_T0}, s{S_T1}")
        p.s(f"s_add_u32 s{S_T2}, s{S_T0}, {PFLG}")
        p.vop("v_mul_u32_u24", 4, f"{FS}", PI)
        if not FWL: p.add(Ins(f"buffer_load_dword v{V_JUNK}, off, s[{SRD_WS}:{SRD_WS+3}], s{S_T2} sc1", "vm", [], [], tag="touch"))
    if FWARM & 4:
        p.s(f"s_lshl2_add_u32 s{S_T0}, s{S_B}, s{S_W}")
        p.s(f"s_mul_i32 s{S_T1}, s{S_T0}, {PARTB // 4}")
        p.s(f"s_add_u32 s{S_T1}, s{S_T1}, {PART}")
        p.add(Ins(f"buffer_load_dword v{V_JUNK}, off, s[{SRD_WS}:{SRD_WS+3}], s{S_T1} sc1 nt", "vm", [], [], tag="touch"))
        p.s(f"s_mul_i32 s{S_T1}, s{S_T0}, {36 * 1280}")
        p.add(Ins(f"buffer_load_dword v{V_JUNK}, off, s[{SRD_OUT}:{SRD_OUT+3}], s{S_T1} sc1 nt", "vm", [], [], tag="touch"))
    if FWARM & 8:
        p.vop("v_mul_u32_u24", V_T + 3, f"{PARTB // 64}", L)
        p.s(f"s_mul_i32 s{S_T1}, s{S_B}, {PARTB}")
        p.s(f"s_add_u32 s{S_T1}, s{S_T1}, {PART}")
        p.s(f"s_cmp_eq_u32 s{S_W}, 0")
        p.s(f"s_cselect_b32 s{S_T1}, s{S_T1}, {OOB:#x}")
        p.add(Ins(f"buffer_load_dword v{V_JUNK}, v{V_T+3}, s[{SRD_WS}:{SRD_WS+3}], s{S_T1} offen sc1 nt", "vm", [V_T + 3], [], tag="touch"))
    if FWARM & 2 and not FWL: p.add(Ins(f"buffer_load_dword v{V_JUNK}, off, s[{SRD_WS}:{SRD_WS+3}], s{S_WFP} sc1", "vm", [], [], tag="touch"))
    p.s(f"s_or_b32 s{S_T0}, s2, s{S_W}")
    p.s(f"s_cmp_lg_u32 s{S_T0}, 0")
    p.s(f"s_cbranch_scc1 {name}_nononce")
    p.s(f"s_memrealtime s[{S_NON}:{S_NON+1}]")
    p.s("s_waitcnt lgkmcnt(0)")
    p.s(f"s_or_b32 s{S_NON+1}, s{S_NON+1}, 0x80000000")
    p.raw(f"v_mov_b32 v{V_T}, s{S_NON}")
    p.raw(f"v_mov_b32 v{V_T+1}, s{S_NON+1}")
    p.s("s_mov_b64 exec, 1")
    p.raw(f"buffer_store_dwordx2 v[{V_T}:{V_T+1}], v{V_LIN}, s[{SRD_DBG}:{SRD_DBG+3}], 0 offen sc1")
    p.s("s_mov_b64 exec, -1")
    p.label(f"{name}_nononce")
    p.s(f"s_mov_b32 s{S_SPIN}, 0x40000")
    p.s(f"s_mov_b32 s{S_PH}, 0")
    if QT:
        p.s(f"s_add_u32 s{S_T0}, s{S_B}, s{S_G}")
        p.s(f"s_and_b32 s{S_T0}, s{S_T0}, {QT[1]}")
        p.s(f"s_add_u32 s{S_T0}, s{S_T0}, {QT[0]}")
        p.s(f"s_lshl_b32 s{S_TI}, 1, s{S_T0}")
    if PROF in (2, 3): p.s("s_mov_b32 s93, 32")
    p.s(f"s_mov_b64 s[{S_BAD}:{S_BAD+1}], 0")
    p.s(f"s_mov_b32 s{S_CS}, {f2u(CSCALE):#x}")
    p.s(f"s_mov_b32 s{S_CS+1}, s{S_CS}")
    p.s(f"s_mov_b32 s{S_LO}, {f2u(2.0 ** -24):#x}")
    p.s(f"s_mov_b32 s{S_HI}, {f2u(2.0 ** 16):#x}")
    p.vop("v_and_b32", M, "15", L)
    p.vop("v_lshrrev_b32", G, "4", L)
    p.vop("v_lshrrev_b32", a, "3", M)
    p.vop("v_mul_u32_u24", c, "3", a)
    p.vop("v_xor_b32", c, c, G)
    p.vop("v_and_b32", b, "7", M)
    p.vop("v_lshlrev_b32", b, "6", b)
    p.vop("v_lshl_add_u32", b, c, "4", b)
    p.vop("v_lshl_add_u32", b, a, "10", b)
    p.vop("v_add_u32", V_AX8, f"{XRING}", b)
    p.vop("v_lshl_add_u32", V_AX, U, "13", V_AX8)
    p.vop("v_add_u32", V_AW + 5, f"{XALT}", b)
    p.vop("v_lshl_add_u32", V_AW + 4, U, "13", V_AW + 5)
    p.vop("v_and_b32", c, "0x1ff", V_LIN)
    p.vop("v_lshl_add_u32", c, VV, "10", c)
    p.vop("v_lshl_add_u32", c, P, "9", c)
    p.vop("v_lshl_add_u32", c, U, "3", c)
    p.vop("v_add_u32", V_WR, f"{STG + 4096}", c)
    p.vop("v_and_b32", b, "0xffffffcf", b)
    p.vop("v_bfe_u32", a, M, "2", "1")
    p.vop("v_lshlrev_b32", a, "1", a)
    p.vop("v_xor_b32", a, a, G)
    p.vop("v_lshl_add_u32", b, a, "4", b)
    p.vop("v_lshl_add_u32", V_AK, P, "13", b)
    p.vop("v_lshrrev_b32", a, "1", G)
    p.vop("v_lshlrev_b32", b, "10", a)
    p.vop("v_lshl_add_u32", b, R8, "6", b)
    p.vop("v_and_b32", c, "1", L)
    p.vop("v_lshl_add_u32", b, c, "3", b)
    p.vop("v_bfe_u32", c, L, "1", "1")
    p.vop("v_lshl_add_u32", b, c, "4", b)
    p.vop("v_and_b32", c, "1", G)
    p.vop("v_lshl_add_u32", b, c, "5", b)
    p.vop("v_lshl_add_u32", V_AV0, P, "13", b)
    p.vop("v_xor_b32", V_AV1, "32", V_AV0)
    p.vop("v_lshl_add_u32", a, U, "12", V_AV0)
    p.vop("v_xor_b32", b, "32", a)
    p.vop("v_xor_b32", c, "4096", a)
    p.vop("v_xor_b32", d, "4096", b)
    for i, r in enumerate((a, b, c, d)): p.vop("v_add_u32", V_AW + i, f"{WRING}", r)
    for ops in (w_ops(2), x_ops(1), w_ops(3))[:3 - PRO]:
        for f, _ in ops: f(p)
    stamp(p, 23)
    return p

def R128(d, a, off): return lambda p: p.ds_read128(d, a, off)
def TR(d, a, off): return lambda p: p.ds_tr(d, a, off)

class Pool:
    def __init__(self, sc, base, n):
        self.sc = sc; self.regs = base if isinstance(base, list) else [base + 4 * k for k in range(n)]; n = len(self.regs); self.n = n; self.last = [None] * n; self.i = 0; self.frags = []
    def frag(self, tile, mk_reads, consumers, as_b=False):
        k = self.i % self.n; self.i += 1
        r = self.regs[k]
        war = self.last[k]
        for (d, o, c, tag) in consumers:
            if as_b: self.sc.mfma(d, o, r, c, tag)
            else: self.sc.mfma(d, r, o, c, tag)
        self.last[k] = consumers[-1][3]
        self.frags.append((tile, mk_reads(r), consumers[0][3], war))

LEAD = int(E("LEAD", "9"))
LEADB = int(E("LEADB", "8"))
BGAP = int(E("BGAP", "4"))

def sstamp(p):
    p.s(f"s_memrealtime s[{S_TM}:{S_TM+1}]")
    p.s(f"s_memtime s[{S_TM+2}:{S_TM+3}]")
    p.wait_lgkm0()
    p.s("s_mov_b32 s99, m0")
    p.s("s_mov_b32 m0, s93")
    p.s("s_add_u32 s93, s93, 1")
    p.raw(f"v_writelane_b32 v0, s{S_TM}, m0")
    p.raw(f"v_writelane_b32 v255, s{S_TM+2}, m0")
    p.s("s_mov_b32 m0, s99")

QT = [int(x) for x in E("QT", "").split(",") if x]
def qmod(name):
    p = Prog()
    KVS = [-1] * 4 + [int(x) for x in E("KVS", "37").split(",")]
    sc = Sched(p, budget=int(E("QBUD", "8")), late_extra=8)
    sc.group["dma"] = "vm"; sc.pace["vm"] = int(E("QPACE", "4"))
    sc.maxds = int(E("QMAXDS", "1"))
    pool = Pool(sc, A_QP, NPOOL)
    for h in range(40):
        r = h & 1; st = (h >> 1) & 1
        for k in range(8):
            off = (h % 4) * 16384 + ((k >> 1) & 1) * 512
            ad = V_AW + 2 * (k >> 2) + (k & 1)
            cons = [(QA(r, n, k), Xf(st, n), QA(r, n, k) if h > 1 else None, ("Q", h, k, n)) for n in range(5 if k < 4 else 4)]
            if int(E("QSNK", "1")) and k % 2 == 0: cons.reverse()
            pool.frag(h, lambda rg: [TR(rg, ad, off), TR(rg + 2, ad, off + 2048)], cons)
    mt = lambda i: sc.m[max(0, min(i, len(sc.m) - 1))][4]
    XT = int(E("XT", "1")); A_XT = A_Q + 40
    def xreads(i, kh):
        return [R128(A_XT + 4 * n if (XT and kh and i) else Xf(kh, n), (V_AX if i else V_AW + 4) + (n >> 2), (n if n < 4 else 8) * 2048 + kh * 512) for n in range(5)]
    for fi, (h, reads, cons, war) in enumerate(pool.frags):
        c0 = 36 * h
        tau = c0 - LEADB
        taun = c0 + 36 - LEADB
        if fi % 8 == 0:
            def bar(p, h=h):
                p.comment(f"---- q step {h}")
                tags = [("W", h)]
                if h == 0: tags.append(("X", 0))
                if h % 4 == 3 and h < 39: tags.append(("X", (h + 1) // 4))
                if h % 4 == EKP[3] and 4 <= h < 36: tags.append(("WOP", h // 4 - 1))
                if QT and h % 4 in QT[3:] and h >= 1:
                    p.s(f"s_lshr_b32 s{S_TI}, s{S_TI}, 1")
                    p.s("s_cbranch_scc0 1")
                    p.raw(f"s_waitcnt vmcnt({QT[2]})")
                p.wait_vm(tags, lgkm0=True)
                if "b" not in ABL or h < 4: p.barrier()
                if PROF == 2 and h % 2 == 0: sstamp(p)
                if int(E("QSL", "0")) and (h < 3 or int(E("QSA", "0"))): p.raw(f"s_nop {int(E('QSL', '0'))}")
            ops = []
            if h % 4 == 1 - XT and 4 <= h < 36: ops += x_ops(h // 4 + 1)
            if 1 <= h < 37: ops += w_ops(h + 3)
            if h == 0 and PRO: ops += sum([w_ops(2), x_ops(1), w_ops(3)][3 - PRO:], [])
            if int(E("XW", "0")) and h % 4 == 0 and 4 <= h < 36: ops = xw_ops(h // 4 + 1, h + 3)
            if "d" in ABL: ops = []
            nb = len(ops)
            if h < 36: ops = ek_ops(h) + ops if (h % 4 == 0 and int(E("EKF", "0"))) else ops + ek_ops(h)
            nb = len(ops) - nb
            if h % 4 == EKP[3] and 4 <= h < 36:
                for r in range(15, -1, -1): sc.fill("rw", lambda p, r=r: p.amov(A_Q + 4 + r, A_Q + r), 4, after=dict(tag=("BAR", h), delay=14))
                for i in range(2): sc.fill("rw", TR(A_Q + 2 * i, V_WR, i * 2048), 4, ds=True, before=mt(taun - BGAP), lead=2)
                sc.fill("rw", lambda p: p.vop("v_xor_b32", V_WR, "4096", V_WR), 4, before=mt(taun - 1))
            if h == 36 and "S" not in ABL: ops += [(wst, 20)]
            for k, x in enumerate(KVS):
                if x == h: ops += kv_ops(32 + k)
            sc.fill("rd", bar, 8, before=mt(tau), early=0 if h else None, tag=("BAR", h))
            QD = int(E("QD", "14")) - 4 * nb * int(E("QDE", "0")) if (len(ops) - nb <= 4 and h) else int(E("QD2", "0"))
            fill_dma(sc, ops, dict(tag=("BAR", h), delay=QD), mt(taun - 1))
            if h == 0:
                for k, fn in enumerate(xreads(0, 0)): sc.fill("rd", fn, 4, ds=True, before=mt(0))
            xr = []; aft = [("BAR", h)]
            if h % 4 == 3 and h < 39: xr = xreads((h + 1) // 4, 0)
            if XT and xr: xr += xreads((h + 1) // 4, 1)
            if XT and h % 4 == 0 and h:
                for r in range(20): sc.fill("cp", lambda p, r=r: p.ar(Xf(1, 0) + r, A_XT + r), 4, after=dict(tag=("Q", h - 1, 7, 3), delay=1), before=mt(c0 + 62), lead=0, early=int(E("XCE", "20")))
            elif h % 4 == 0:
                xr = xreads(h // 4, 1)
                if h: aft.append(("Q", h - 1, 7, 3))
            for j, fn in enumerate(xr):
                sc.fill("rx", fn, 4, ds=True, after=aft, before=mt(taun - BGAP), lead=(2 if XT else 3) * (len(xr) - j))
        for k, fn in enumerate(reads):
            if "r" in ABL and h >= 2: continue
            bf = cons
            if sc.idx[cons] > taun - BGAP: bf = mt(taun - BGAP)
            sc.fill("rd", fn, 4, ds=True, after=war if k == 0 else None, before=bf, lead=LEAD if bf is cons else 0, early=int(E("QEARLY", "99")))
    def lastbar(p):
        p.comment("---- q step 40")
        p.wait_lgkm0(); p.barrier()
        p.add(Ins(f"buffer_load_dwordx2 v[{V_NV}:{V_NV+1}], off, s[{SRD_DBG}:{SRD_DBG+3}], 0 sc1", "vml", [], [V_NV, V_NV + 1], tag="non"))
    sc.fill("rd", lastbar, 8, before=mt(36 * 40 - LEADB), early=0)
    sc.run()
    stamp(p, 1)
    fstart = len(p.ins)
    TB = V_O + 144
    cnt = [0]
    def fin(r, n, t, i):
        s0 = QA(r, n, 2 * t)
        if r:
            tb = TB + 8 * (cnt[0] & 1); cnt[0] += 1
            for x in range(8): p.ar(tb + x, s0 + x)
            s0 = tb
        dst = V_S + 4 * i
        for x in range(0, 8, 2): p.pkmul(s0 + x, s0 + x, f"s[{S_CS}:{S_CS+1}]")
        for x in range(4): p.cvtpk(dst + x, s0 + 2 * x, s0 + 2 * x + 1)
        return dst
    p.v(f"v_lshl_add_u32 v{V_E0}, s{S_W}, 12, v{V_LIN}", [V_E0], [V_LIN])
    p.vop("v_add_u32", V_E0, f"{XRING}", V_E0)
    p.vop("v_xor_b32", V_E1, "4096", V_E0)
    p.vop("v_and_b32", V_E2, "0xfffffcf0", V_E0)
    p.vop("v_bfe_u32", V_T, V_LIN, "9", "1")
    p.vop("v_lshl_add_u32", V_E2, V_T, "8", V_E2)
    p.vop("v_bfe_u32", V_T, V_LIN, "8", "1")
    p.vop("v_lshl_add_u32", V_E2, V_T, "3", V_E2)
    for r in range(2):
        for t in range(2): p.ds_write2(V_E2, fin(r, 4, t, 2 * r + t), (2 * r + t) * 1024)
    for r in range(2):
        base = A_QN if r else A_Q
        for n in range(4):
            FL = [int(x) for x in E("FLD", "02,02").split(",")[r]]
            ds = {}
            for t in range(4):
                ds[t] = fin(r, n, t, 4 + (n & 1) * 4 + t)
                if t in FL: p.ds_write2(V_E2, ds.pop(t), 16384 + t * 1024)
            for f in (p.swap32, p.swap16):
                for d in ds.values(): f(d, d + 2); f(d + 1, d + 3)
            for t in FL: p.ds_read128(Qf(n, t, base), V_E0, 16384 + t * 1024)
            for t, d in ds.items():
                for x in range(4): p.aw(Qf(n, t, base) + x, d + x)
            if r == 0 and n == 1:
                p.raw(f"s_waitcnt lgkmcnt({2 * len(FL)})"); p.barrier()
                for t in range(2): p.ds_read128(Qf(4, t), V_E0, t * 1024)
                for t in range(2): p.ds_read128(Qf(4, 2 + t), V_E1, t * 1024)
    for t in range(2): p.ds_read128(Qf(4, t, A_QN), V_E0, 2048 + t * 1024)
    for t in range(2): p.ds_read128(Qf(4, 2 + t, A_QN), V_E1, 2048 + t * 1024)
    p.vop("v_mov_b32", V_T, "0x3f803f80")
    for r in range(4): p.aw(A_ONE + r, V_T)
    sprinkle([(p, fstart)], sum([kv_ops(32 + k) for k in range(len(KVS), 8 - T7)], []), 0.0, float(E("QSH", "1.0")))
    stamp(p, 26)
    get_nonce(p, f"{name}_n1", V_T)
    stamp(p, 27)
    p.wait_vm("wst")
    stamp(p, 28)
    publish(p, f"s{S_WFP}", 0, V_T)
    stamp(p, 29)
    z = p
    z.s(f"s_lshl_b32 s{S_PF}, s{S_U}, 12")
    z.s(f"s_lshl_b32 s{S_T1}, s{S_G}, 9")
    z.s(f"s_add_u32 s{S_PF}, s{S_PF}, s{S_T1}")
    z.s(f"s_add_u32 s{S_PF}, s{S_PF}, {WFLG}")
    z.vop("v_lshrrev_b32", V_AX, "1", V_LIN)
    for n in range(5): z.vop("v_mov_b32", V_DA + n, f"{DROP:#x}")
    ti_init(z, 0)
    stamp(z, 2)
    return p

def a_mfmas(sc, pool, qh):
    AV = (V_AV0, V_AV1)
    has8 = lambda u: (u & 1) == qh
    for pos, (kind, u) in enumerate(KVSEQ):
        sb = (pos % 4) * 16384
        ns = [0, 1, 2, 3] + ([4] if has8(u) else [])
        if kind == "K":
            for kt in range(2):
                for ks in range(4):
                    off = sb + kt * 2048 + ((ks >> 1) ^ qh) * 4096 + (ks & 1) * 512
                    cons = []
                    for n in ns:
                        d = XS(u & 1, n) if kt == 0 else YS(n)
                        cons.append((d, Qf(n, ks), d if ks else None, ("S", u, kt, ks, n)))
                    pool.frag(pos, lambda r: [R128(r, V_AK, off)], cons)
                SCH = int(E("SCH", "4"))
                k0 = len(sc.m) - 4 * len(ns)
                sc.m[k0:] = sorted(sc.m[k0:], key=lambda x: (x[4][3] // SCH, x[4][4], x[4][3]))
                for k in range(k0, len(sc.m)): sc.idx[sc.m[k][4]] = k
        else:
            first = lambda n: u == 0 if n < 4 else u == qh
            for n in ns: sc.mfma(La(n), A_ONE, XS(u & 1, n), None if first(n) else La(n), ("L", u, n))
            for m in range(8):
                e, mp = m & 1, m >> 1
                off = sb + (mp >> 1) * 4096 + (mp & 1) * 512
                oa = lambda n: Oa(n, m if n < 4 else m ^ (4 * qh))
                cons = [(oa(n), XS(u & 1, n), None if first(n) else oa(n), ("PV", u, m, n)) for n in ns]
                if int(E("SNK", "1")) and m % 2 == 0: cons.reverse()
                pool.frag(pos, lambda r: [TR(r, AV[e], off), TR(r + 2, AV[e], off + 2048)], cons)

def a_taus():
    cs = []
    for qh in range(2):
        sc = Sched(Prog()); pool = Pool(sc, A_POOL, NPOOL); a_mfmas(sc, pool, qh)
        c = {}
        for (pos, _, cons, _) in pool.frags: c.setdefault(pos, sc.idx[cons])
        c[32] = len(sc.m) + LEADB - 3
        cs.append(c)
    return [min(cs[0][j], cs[1][j]) - LEADB for j in range(33)]

def aentry(name):
    p = Prog()
    p.label(f"{name}_A")
    p.s(f"s_mov_b32 s{S_KB}, s{S_KVN}")
    p.s(f"s_mov_b32 s{SRD_C+2}, 0x8000000")
    p.s(f"s_add_u32 s{S_KVN}, s{S_KVN}, {2 << 17}")
    p.s(f"s_cmp_eq_u32 s{S_PH}, 0")
    p.s(f"s_cselect_b32 s{S_M0KVP}, s{S_M0KV}, {DROP:#x}")
    p.s(f"s_cselect_b32 s{S_M0KVP+1}, s{S_M0W}, {DROP:#x}")
    p.s(f"s_cselect_b32 s{S_KVP}, s{S_KVN}, {OOB:#x}")
    p.s(f"s_cselect_b32 s{S_WT2}, {OOB:#x}, s{S_WT}")
    p.s(f"s_cmp_eq_u32 s{S_U}, 1")
    p.s(f"s_cbranch_scc1 {name}_A1")
    return p

def tile_addr(p, base, dst):
    p.s(f"s_cmp_lt_u32 s{S_G}, 5")
    p.s(f"s_cselect_b32 s{S_T0}, 1, 0")
    p.s(f"s_xor_b32 s{S_T0}, s{S_T0}, s{S_U}")
    p.v(f"v_lshl_add_u32 v{dst}, s{S_T0}, 12, v{base}", [dst], [base])
    for n in range(1, 4): p.vop("v_add_u32", dst + n, f"{1024 * n}", dst)

S_TI = 96
TI = [[tuple(int(x) for x in y.split("+")) for y in z.split(",")] for z in E("TI", "0+0,4+7;-1+0,-1+0").split(";")]
def ti_init(p, r):
    for k, (b, sp) in enumerate(TI[r]):
        if b < 0 or TI[0][k] == (0, 0): continue
        p.s(f"s_add_u32 s{S_T0}, s{S_B}, " + (f"s{S_G}" if int(E("TIG", "1")) else "0"))
        p.s(f"s_and_b32 s{S_T0}, s{S_T0}, {sp}" if sp >= 0 else f"s_andn2_b32 s{S_T0}, {-sp}, s{S_T0}")
        p.s(f"s_add_u32 s{S_T0}, s{S_T0}, {b}")
        p.s(f"s_lshl_b32 s{S_TI + k}, 1, s{S_T0}")
WLP = [int(x) for x in E("WLP", "0,0,0,1,1,1,2,2,2,3,3,3").split(",")]
def avm(pos):
    if pos >= 30: return None
    pat = [int(x) for x in E("AVM", "3,4").split(",")]
    h = [int(x) for x in E("AVMH", "").split(",") if x]
    if pos < len(h): return h[pos]
    return pat[pos % len(pat)] + WLP.count(pos - 1) * int(E("WLC", "1"))
RQ = [int(x) for x in E("RQH", "3,3,3,3" if T7 else "0,3,3,2").split(",")] + [int(x) for k in "123" for x in E("RQ" + k, "43434343")] + [int(x) for x in E("RQT", "4,4,4,4").split(",")]
STREAM = sum([kv_ops(k) for k in range(8 - T7, 40 - T7)], [])
for s_ in range(32): assert sum(RQ[:s_ + 1]) <= 4 * (s_ + T7)
def amod(name, qh):
    p = Prog()
    p.label(f"{name}_A{qh}")
    sc = Sched(p, budget=int(E("ABUD", "8")), late_extra=int(E("ALATE", "8")))
    sc.group["dma"] = "vm"; sc.pace["vm"] = int(E("APACE", "2"))
    pool = Pool(sc, A_POOL, NPOOL)
    a_mfmas(sc, pool, qh)
    tau = a_taus()
    mt = lambda i: sc.m[max(0, min(i, len(sc.m) - 1))][4]
    def add_bar(pos):
        def bar(p, pos=pos):
            p.comment(f"---- a step {pos}")
            if TI[0][pos % 2] != (0, 0) and pos < 30:
                p.s(f"s_lshr_b32 s{S_TI + pos % 2}, s{S_TI + pos % 2}, 1")
                p.s("s_cbranch_scc0 1")
                p.raw(f"s_waitcnt vmcnt({avm(pos) - 1})")
            if pos < 32: p.wait_vm(KVSEQ[pos], lgkm0=True, cap=avm(pos))
            else: p.wait_lgkm0()
            p.barrier()
            if pos % 4 == 0 and pos:
                for r in (V_AV0, V_AV1, V_AK): p.vop("v_xor_b32", r, "0x10000", r)
            if PROF == 3 and pos % 2 == 0 and pos < 32: sstamp(p)
        sc.fill("rd", bar, 8, before=mt(tau[pos]), early=0 if pos else None, tag=("BAR", pos))
        if pos < 32:
            ops = STREAM[sum(RQ[:pos]):sum(RQ[:pos + 1])]
            aft = ("BAR", pos); bf = mt(tau[pos + 1] - 1)
            span = tau[pos + 1] - max(tau[pos], 0)
            if pos in CPA: ops = [(code_touch, 8)] + ops
            if pos == WTP: ops = [(lambda p: w_touch(p, 0), 8), (lambda p: w_touch(p, 64), 8)][:WTN] + ops
            for k, op in enumerate(ops): fill_dma(sc, [op], dict(tag=aft, delay=(k * (span - 2)) // len(ops)), bf)
            for k in [k for k in range(12) if WLP[k] == pos]:
                for fn, kind, cost in split_ops([(wload(0, k, S_T2, S_WT2), 8)]):
                    sc.fill("dmp", fn, 8 if kind == "vm" else 4, after=dict(tag=aft, delay=(5 if WLP.count(pos) > 1 else 20) + 9 * (k - WLP.index(pos))), solo=(kind == "vm"), before=bf, lead=20)
            if pos == 30:
                WLS = int(E("WLS", "6"))
                last = ("S", 15, 1, 3, 4 if qh == 1 else 3)
                for k in range(12):
                    for fn, kind, cost in split_ops([(wload(0, 12 + k, S_T2, S_WT2), 8)]):
                        sc.fill("dmp", fn, 8 if kind == "vm" else 4, after=dict(tag=last, delay=2 + WLS * k), solo=(kind == "vm"), before=mt(sc.idx[last] + 12 + WLS * k), lead=9)
            if 26 <= pos < 30:
                t = pos - 26
                ws = [(V_DA + n, Qf(n, t, A_QN), t * 18432 + 1024) for n in range(4)]
                if t >> 1 == qh: ws.append((V_DA + 4, Qf(4, t & 1, A_QN), (t & 1) * 18432))
                for k, w in enumerate(ws):
                    sc.fill("dw", lambda p, w=w: p.ds_write(w[0], w[1], 4, w[2]), 8, solo=True, after=dict(tag=aft, delay=4 + k * ((span - 10) // len(ws))), before=mt(tau[pos + 1] - BGAP), lead=12)
            if pos == 31:
                for f in range(8): sc.fill("dw", R128(P0_B[f], V_LIN, IMG(f)), 4, ds=True, after=dict(tag=aft, delay=16 + 2 * f), before=mt(tau[32] - BGAP), lead=4)
    cur = None
    for (pos, reads, cons, war) in pool.frags:
        if pos != cur:
            cur = pos; add_bar(pos)
        for k, fn in enumerate(reads):
            bf = cons
            if sc.idx[cons] > tau[pos + 1] - BGAP: bf = mt(tau[pos + 1] - BGAP)
            sc.fill("rd", fn, 4, ds=True, after=war if k == 0 else None, before=bf, lead=LEAD if bf is cons else 0)
    add_bar(32)
    def V(fn, after=None, before=None, cost=4, lead=0): sc.fill("va", fn, cost, after=after, before=before, lead=lead)
    EDL = int(E("EDL", "3"))
    for u in range(16):
        ns = [0, 1, 2, 3] + ([4] if (u & 1) == qh else [])
        for kt in range(2):
            for n in ns:
                src = XS(u & 1, n) if kt == 0 else YS(n)
                dst = XS(u & 1, n) + 2 * kt
                for r in range(4):
                    V(lambda p, reg=src + r: p.exp(reg, reg), after=dict(tag=("S", u, kt, 3, n), delay=EDL), cost=8)
                bf = ("L", u, n)
                if kt == 1 and n < 4 and u < 15: bf = ("S", u + 1, 1, 0, n)
                V(lambda p, dst=dst, src=src: p.cvtpk(dst, src, src + 1))
                V(lambda p, dst=dst, src=src: p.cvtpk(dst + 1, src + 2, src + 3), before=bf, lead=2)
    sc.run()
    p.s(f"s_cmp_eq_u32 s{S_PH}, 0")
    p.s(f"s_cbranch_scc0 {name}_P0")
    if qh == 0: p.s(f"s_branch {name}_F")
    return p

RL, CHK, PX, AD, AL = V_S + 2, V_S + 12, V_S + 16, V_S + 48, V_S + 50
def f_addr(p):
    p.v(f"v_lshl_add_u32 v{AD}, s{S_W}, 12, v{V_LIN}", [AD], [V_LIN])
    p.vop("v_add_u32", AD, f"{MISC}", AD)
    p.vop("v_xor_b32", AD + 1, "4096", AD)
def f_bad(op, a, b):
    def f(p):
        p.add(Ins(f"{op} vcc, v{a}, {b}", "valu", [a], []))
        p.s(f"s_or_b64 s[{S_BAD}:{S_BAD+1}], s[{S_BAD}:{S_BAD+1}], vcc")
    return f
def f_rcp(n): return [lambda p: p.vop("v_rcp_f32", RL + 2 * n, RL + 2 * n, kind="trans"), lambda p: p.vop("v_mov_b32", RL + 2 * n + 1, RL + 2 * n)]
def f_range():
    return [lambda p: p.vop("v_max3_f32", V_S, RL, RL + 2, RL + 4), lambda p: p.vop("v_min3_f32", V_S + 1, RL, RL + 2, RL + 4),
            lambda p: p.vop("v_max3_f32", V_S, V_S, RL + 6, RL + 8), lambda p: p.vop("v_min3_f32", V_S + 1, V_S + 1, RL + 6, RL + 8),
            f_bad("v_cmp_nle_f32", V_S, f"s{S_HI}"), f_bad("v_cmp_nge_f32", V_S + 1, f"s{S_LO}")]
def f_fin(): return [lambda p: p.s(f"s_movk_i32 s{S_T2}, 0x207"), f_bad("v_cmp_class_f32", CHK, f"s{S_T2}")]
def f_norm(n, t):
    s0 = Oa(n, 2 * t)
    add = [lambda p, r=r: p.add(Ins(f"v_pk_add_f32 {vr(s0 + r, 2)}, {vr(s0 + r, 2)}, {vr(PX + 8 * t + r, 2)}", "valu", R(s0 + r, 2) | R(PX + 8 * t + r, 2), R(s0 + r, 2))) for r in range(0, 8, 2)] if n == 4 else []
    return add + [lambda p, r=r: p.pkmul(s0 + r, s0 + r, RL + 2 * n) for r in range(0, 8, 2)], [lambda p, r=r: p.cvtpk(s0 + r, s0 + 2 * r, s0 + 2 * r + 1) for r in range(4)]
def f_l8(): return [lambda p: p.vop("v_add_f32", RL + 8, RL + 8, V_S)] + f_rcp(4)
UNITS = [(n, t) for n in (0, 1, 2, 4, 3) for t in range(4 if n < 4 else 2)]
def afin(name):
    p = Prog()
    p.label(f"{name}_F")
    stamp(p, 5)
    poll_issue(p, V_AX, f"s{S_PF}", 0, V_NV)
    f_addr(p)
    for i in range(4): p.ds_write(AD + 1, Oa(4, 4 + i), 4, i * 1024)
    for i in range(2): p.vop("v_subrev_u32", AL + i, "16384", AD + i)
    p.ds_write(AL + 1, La(4), 1, 0)
    for n in range(5): p.ar(RL + 2 * n, La(n))
    for k in range(2):
        for n in range(4): f_rcp(n)[k](p)
    p.wait_lgkm0()
    for k, (n, t) in enumerate(UNITS):
        if k == 4:
            p.barrier()
            for i in range(4): p.ds_read128(PX + 4 * i, AD, i * 1024)
            p.ds_read32(V_S, AL, 0)
        if k == 11:
            for f in f_l8(): f(p)
        for f in sum(f_norm(n, t), []): f(p)
    for f in f_range(): f(p)
    p.s(f"s_mov_b32 s{S_PH}, 1")
    stamp(p, 6)
    for r in range(80):
        if r % 4 == 0 and r < 72: p.mfma(CHK, A_ONE, Oa(UNITS[r // 4][0], 2 * UNITS[r // 4][1]), CHK if r else None)
        p.amov(A_Q + r, A_QN + r)
    for n, t in UNITS:
        for r in range(4): p.aw(Qf(n, t, A_QN) + r, Oa(n, 2 * t) + r)
    for f in f_fin(): f(p)
    sprinkle([(p, 8)], STREAM[sum(RQ):], 0.0, float(E("ASH", "0.7")))
    code_touch(p)
    p.s(f"s_mul_i32 s{S_T0}, s{S_P}, 9216")
    p.vop("v_add_u32", V_DA + 4, f"s{S_T0}", V_LIN)
    tile_addr(p, V_DA + 4, V_DA)
    p.s(f"s_mul_i32 s{S_T0}, s{S_U}, 36864")
    p.vop("v_add_u32", V_DA + 4, f"s{S_T0}", V_DA + 4)
    psetup(p)
    ti_init(p, 1)
    poll_check(p, f"{name}_wpoll", V_AX, f"s{S_PF}", 0, V_NV)
    p.s(f"s_branch {name}_A")
    return p

P_R = ([A_X + 4 * i for i in range(10)] + [10, 14] + [A_Q + 4 * i for i in range(20)],
       [A_L + 4 * i for i in range(5)] + [A_POOL + 4 * i for i in range(6)] + [A_QN + 64 + 4 * i for i in range(4)] + [A_QN + 4 * i for i in range(16)] + [A_ONE])
P0_B = P_R[0][24:] + [A_QN + 4 * (i % 16) for i in range(64)]
def wload(j, i, so=None, sb=None, extra=0):
    def f(p):
        if i % 2 == 0: p.s(f"s_add_u32 s{so or S_SO}, s{sb or S_WT}, {(i >> 1) * 40960 + extra}")
        if "B" not in ABL: p.load4(P_R[j & 1][i], V_LIN, SRD_WS, f"s{so or S_SO}", (i & 1) * 1024, ("WT", j, i), "sc1")
    return f

def slow(name):
    SI, SC, SX, SWq, SKV, SD, SK = 56, 57, 58, 59, 88, 89, 90
    VW, VX, VK, VV_, VD = 28, 36, 37, 38, 39
    MX, NM, LA, QF, SS, FB, AC, RAW, FR = 40, 44, 48, 52, 68, 76, 84, 116, 180
    def ld(p, op, n, d, vo, srd, so, off):
        p.add(Ins(f"{op} {vr(d, n)}, v{vo}, s[{srd}:{srd+3}], s{so} offen offset:{off}", "vml", [vo], R(d, n), tag="sl"))
    p0 = Prog()
    p0.label(f"{name}_slow")
    p0.wait_all()
    M, G = MX, MX + 1
    p0.vop("v_bfe_u32", M, V_LIN, "4", "4")
    p0.vop("v_lshrrev_b32", G, "8", V_LIN)
    p0.vop("v_lshlrev_b32", VW, "16", G)
    p0.vop("v_lshl_add_u32", VW, M, "1", VW)
    for i in range(1, 8): p0.vop("v_add_u32", VW + i, f"{8192 * i}", VW)
    p0.s(f"s_movk_i32 s{S_T0}, 1280")
    p0.vop("v_mul_lo_u32", VX, M, f"s{S_T0}")
    p0.vop("v_lshl_add_u32", VX, G, "4", VX)
    p0.vop("v_lshlrev_b32", VK, "8", M)
    p0.vop("v_lshl_add_u32", VK, G, "3", VK)
    p0.vop("v_lshlrev_b32", VV_, "10", G)
    p0.vop("v_lshl_add_u32", VV_, M, "1", VV_)
    p0.s(f"s_mov_b32 s{SI}, 0")
    p1 = Prog()
    p1.label(f"{name}_sl_it")
    p1.s(f"s_cmp_ge_u32 s{SI}, 5")
    p1.s(f"s_cselect_b32 s{S_T0}, 2, 0")
    p1.s(f"s_cselect_b32 s{S_T1}, 5, 0")
    p1.s(f"s_cselect_b32 s{SD}, {73728}, 0")
    p1.s(f"s_sub_u32 s{S_T1}, s{SI}, s{S_T1}")
    p1.s(f"s_add_u32 s{S_T0}, s{S_T0}, s{S_P}")
    p1.s(f"s_mul_i32 s{S_T2}, s{S_P}, 9216")
    p1.s(f"s_add_u32 s{SD}, s{SD}, s{S_T2}")
    p1.s(f"s_lshl_b32 s{S_T2}, s{S_G}, 2")
    p1.s(f"s_add_u32 s{S_T0}, s{S_T0}, s{S_T2}")
    p1.s(f"s_lshl_b32 s{SWq}, s{S_T0}, 8")
    p1.s(f"s_lshl_b32 s{S_T2}, s{S_B}, 5")
    p1.s(f"s_add_u32 s{S_T0}, s{S_T0}, s{S_T2}")
    p1.s(f"s_lshl_b32 s{SKV}, s{S_T0}, 17")
    p1.s(f"s_lshl_b32 s{S_T0}, s{S_U}, 2")
    p1.s(f"s_add_u32 s{S_T0}, s{S_T0}, s{S_T1}")
    p1.s(f"s_cmp_lt_u32 s{S_G}, 5")
    p1.s(f"s_cselect_b32 s{S_T2}, 4, 0")
    p1.s(f"s_xor_b32 s{S_T2}, s{S_T2}, s{S_T0}")
    p1.s(f"s_add_u32 s{S_T2}, s{S_T2}, 1")
    p1.s(f"s_cmp_eq_u32 s{S_T1}, 4")
    p1.s(f"s_cselect_b32 s{S_T0}, 8, s{S_T0}")
    p1.s(f"s_cselect_b32 s{S_T2}, 0, s{S_T2}")
    p1.s(f"s_lshl_b32 s{S_T2}, s{S_T2}, 10")
    p1.s(f"s_add_u32 s{SD}, s{SD}, s{S_T2}")
    p1.vop("v_add_u32", VD, f"s{SD}", V_LIN)
    p1.s(f"s_mul_i32 s{S_T2}, s{S_B}, 9")
    p1.s(f"s_add_u32 s{S_T0}, s{S_T0}, s{S_T2}")
    p1.s(f"s_mul_i32 s{SX}, s{S_T0}, {16 * 1280}")
    for r in range(32): p1.vop("v_mov_b32", AC + r, "0")
    p1.s(f"s_mov_b32 s{SC}, 0")
    def pack(p):
        for r in range(32): p.vop("v_lshl_or_b32", FR + r, RAW + 2 * r + 1, "16", RAW + 2 * r)
    def loop_end(p, lab, n):
        p.s(f"s_add_u32 s{SC}, s{SC}, 1")
        p.s(f"s_cmp_lt_u32 s{SC}, {n}")
        p.s(f"s_cbranch_scc1 {lab}")
    p2 = Prog()
    p2.label(f"{name}_sl_q")
    ld(p2, "buffer_load_dwordx4", 4, FB, VX, SRD_X, SX, 0)
    for m in range(8):
        for i in range(8): ld(p2, "buffer_load_ushort", 1, RAW + 8 * m + i, VW + i, SRD_W, SWq, 32 * m)
        if m == 3: p2.wait_all()
    p2.wait_all()
    pack(p2)
    for m in range(8): p2.mfma(AC + 4 * m, FR + 4 * m, FB, AC + 4 * m)
    p2.s(f"s_add_u32 s{SX}, s{SX}, 64")
    p2.s(f"s_add_u32 s{SWq}, s{SWq}, {32 * 8192}")
    loop_end(p2, f"{name}_sl_q", 20)
    p3 = Prog()
    for r in range(32): p3.vop("v_mul_f32", AC + r, f"s{S_CS}", AC + r)
    for r in range(16): p3.cvtpk(QF + r, AC + 2 * r, AC + 2 * r + 1)
    for r in range(32): p3.vop("v_mov_b32", AC + r, "0")
    for r in range(4): p3.vop("v_mov_b32", LA + r, "0")
    p3.vop("v_mov_b32", MX, "0xff800000")
    p3.s(f"s_mov_b32 s{SK}, s{SKV}")
    p3.s(f"s_mov_b32 s{SC}, 0")
    def kfrags(p, dst, so):
        for ks in range(4):
            ld(p, "buffer_load_dwordx2", 2, dst + 4 * ks, VK, SRD_K, so, 64 * ks)
            ld(p, "buffer_load_dwordx2", 2, dst + 4 * ks + 2, VK, SRD_K, so, 64 * ks + 32)
    p4 = Prog()
    p4.label(f"{name}_sl_m")
    kfrags(p4, FR, SK)
    p4.wait_all()
    for ks in range(4): p4.mfma(SS, FR + 4 * ks, QF + 4 * ks, SS if ks else None)
    p4.vop("v_max3_f32", MX, MX, SS, SS + 1)
    p4.vop("v_max3_f32", MX, MX, SS + 2, SS + 3)
    p4.s(f"s_add_u32 s{SK}, s{SK}, 4096")
    loop_end(p4, f"{name}_sl_m", 32)
    p5 = Prog()
    for sw in (p5.swap32, p5.swap16):
        p5.vop("v_mov_b32", MX + 1, MX)
        sw(MX, MX + 1)
        p5.vop("v_max_f32", MX, MX, MX + 1)
    for r in range(4): p5.vop("v_sub_f32", NM + r, "0", MX)
    p5.s(f"s_mov_b32 s{SC}, 0")
    p6 = Prog()
    p6.label(f"{name}_sl_a")
    p6.s(f"s_add_u32 s{SK}, s{SKV}, 4096")
    kfrags(p6, FR, SKV)
    kfrags(p6, FR + 16, SK)
    p6.wait_all()
    for m in range(8):
        for i in range(8): ld(p6, "buffer_load_ushort", 1, RAW + 8 * m + i, VV_, SRD_V, SK if i >= 4 else SKV, 32 * m + 256 * (i & 3))
        if m == 3: p6.wait_all()
    for kt in range(2):
        for ks in range(4): p6.mfma(SS + 4 * kt, FR + 16 * kt + 4 * ks, QF + 4 * ks, SS + 4 * kt if ks else NM)
    for r in range(8): p6.exp(SS + r, SS + r)
    for r in range(4): p6.cvtpk(FB + r, SS + 2 * r, SS + 2 * r + 1)
    p6.wait_all()
    pack(p6)
    p6.mfma(LA, A_ONE, FB, LA)
    for m in range(8): p6.mfma(AC + 4 * m, FR + 4 * m, FB, AC + 4 * m)
    p6.s(f"s_add_u32 s{SKV}, s{SKV}, 8192")
    loop_end(p6, f"{name}_sl_a", 16)
    p7 = Prog()
    p7.vop("v_rcp_f32", LA, LA, kind="trans")
    for r in range(32): p7.vop("v_mul_f32", AC + r, AC + r, LA)
    for r in range(16): p7.cvtpk(QF + r, AC + 2 * r, AC + 2 * r + 1)
    for hf in range(2):
        p7.s(f"s_cmp_eq_u32 s{S_U}, {hf}")
        p7.s(f"s_cselect_b32 s{S_T0}, 0, s{S_T1}")
        p7.s(f"s_cmp_eq_u32 s{S_T0}, 4")
        p7.s(f"s_cbranch_scc1 {name}_sl_s{hf}")
        for t in (2 * hf, 2 * hf + 1): p7.ds_write(VD, QF + 4 * t, 4, t * 18432)
        p7.label(f"{name}_sl_s{hf}")
    p7.wait_all()
    p7.s(f"s_add_u32 s{SI}, s{SI}, 1")
    p7.s(f"s_cmp_lt_u32 s{SI}, 10")
    p7.s(f"s_cbranch_scc1 {name}_sl_it")
    p7.s(f"s_branch {name}_P2")
    body = [p1, p2, p2, p3, p4, p4, p5, p6, p6, p7]
    return [p0, p1, p2, p3, p4, p5, p6, p7], [p0] + body + body

S_ST = 62
S_PC, S_FO, S_PO = 71, 72, 73
S_OF = (4, 5, 6, 7, 74)
S_JA, S_JC, S_JO, S_WE = 77, 83, 52, 101
S_JE, S_EO = (79, 80), (61, 100)
def psetup(p):
    C, J, BW, OW = S_TM, S_TM + 1, S_TM + 2, S_TM + 3
    p.s(f"s_mul_i32 s{BW}, s{S_B}, {PARTB}")
    p.s(f"s_lshl_b32 s{S_T1}, s{S_W}, 11")
    p.s(f"s_add_u32 s{BW}, s{BW}, s{S_T1}")
    p.s(f"s_add_u32 s{BW}, s{BW}, {PART}")
    p.s(f"s_mul_i32 s{OW}, s{S_B}, {144 * 1280}")
    p.s(f"s_lshl_b32 s{S_T1}, s{S_W}, 6")
    p.s(f"s_add_u32 s{OW}, s{OW}, s{S_T1}")
    p.s(f"s_sub_u32 s{S_T0}, s{S_G}, 5")
    p.s(f"s_cselect_b32 s{C}, s{S_G}, s{S_T0}")
    p.s(f"s_cselect_b32 s{J}, 0, 1")
    p.s(f"s_add_u32 s{S_ST}, s{BW}, {8 * 81920}")
    p.s(f"s_mul_i32 s{S_T0}, s{J}, {4 * 81920}")
    p.s(f"s_add_u32 s{S_ST+5}, s{BW}, s{S_T0}")
    p.s(f"s_sub_u32 s{S_ST+1}, s{BW}, s{S_T0}")
    p.s(f"s_add_u32 s{S_ST+1}, s{S_ST+1}, {4 * 81920}")
    for i in (2, 3, 4, 6, 7, 8): p.s(f"s_add_u32 s{S_ST+i}, s{S_ST+i-1}, 81920")
    p.s(f"s_lshl_b32 s{S_T0}, s{C}, 13")
    p.s(f"s_add_u32 s{S_JA}, s{S_ST+5}, s{S_T0}")
    p.s(f"s_mul_i32 s{S_JO}, s{J}, {64 * 1280}")
    p.s(f"s_add_u32 s{S_JO}, s{S_JO}, s{OW}")
    p.s(f"s_lshl_b32 s{S_T0}, s{C}, 8")
    p.s(f"s_add_u32 s{S_JO}, s{S_JO}, s{S_T0}")
    p.s(f"s_mul_i32 s{S_WE}, s{S_G}, {16 * 40960}")
    p.s(f"s_lshl_b32 s{S_T0}, s{S_W}, 11")
    p.s(f"s_add_u32 s{S_WE}, s{S_WE}, s{S_T0}")
    for k in range(5):
        p.s(f"s_add_u32 s{C}, s{C}, 1")
        p.s(f"s_cmp_eq_u32 s{C}, 5")
        p.s(f"s_cselect_b32 s{C}, 0, s{C}")
        if k == 0:
            p.s(f"s_lshl_b32 s{S_WT}, s{C}, 13")
            p.s(f"s_add_u32 s{S_WT}, s{S_WT}, s{S_WE}")
            p.s(f"s_add_u32 s{S_WE}, s{S_WE}, 40960")
        p.s(f"s_and_b32 s{S_T0}, s{J}, 1")
        p.s(f"s_lshl3_add_u32 s{S_T0}, s{C}, s{S_T0}")
        p.s(f"s_lshl_b32 s{S_OF[k]}, s{S_T0}, 10")
        if k:
            p.s(f"s_bitcmp1_b32 s{J}, 1")
            p.s(f"s_cselect_b32 s{S_T0}, 40960, 0")
            p.s(f"s_add_u32 s{S_OF[k]}, s{S_OF[k]}, s{S_T0}")
        if k > 1:
            p.s(f"s_bitcmp1_b32 s{J}, 2")
            p.s(f"s_cselect_b32 s{S_T0}, {AREA}, 0")
            p.s(f"s_add_u32 s{S_OF[k]}, s{S_OF[k]}, s{S_T0}")
        if k < 4:
            p.s(f"s_cmp_lt_u32 s{C}, 3")
            p.s(f"s_addc_u32 s{J}, s{J}, 1")
    p.s(f"s_bitcmp1_b32 s{J}, 0")
    p.s(f"s_cselect_b32 s{S_T0}, 0, 1024")
    p.s(f"s_add_u32 s{S_JC}, s{S_JA}, s{S_T0}")
    for k in range(2):
        p.s(f"s_add_u32 s{S_T2}, s{S_G}, {8 * k + 11}")
        p.s(f"s_and_b32 s{S_T0}, s{S_T2}, 3")
        p.s(f"s_add_u32 s{S_T0}, s{S_T0}, 4")
        p.s(f"s_lshr_b32 s{S_T1}, s{S_T2}, 2")
        p.s(f"s_sub_u32 s{S_T1}, s{S_T1}, 1")
        if k == 0:
            p.s(f"s_cmp_lt_u32 s{S_G}, 5")
            p.s(f"s_cselect_b32 s{S_T0}, 8, s{S_T0}")
            p.s(f"s_cselect_b32 s{S_T1}, s{S_G}, s{S_T1}")
        p.s(f"s_mul_i32 s{S_JE[k]}, s{S_T0}, 10")
        p.s(f"s_add_u32 s{S_JE[k]}, s{S_JE[k]}, s{S_T1}")
        p.s(f"s_lshl_b32 s{S_JE[k]}, s{S_JE[k]}, 13")
        p.s(f"s_add_u32 s{S_JE[k]}, s{S_JE[k]}, s{BW}")
        p.s(f"s_mul_i32 s{S_EO[k]}, s{S_T0}, 80")
        p.s(f"s_add_u32 s{S_EO[k]}, s{S_EO[k]}, s{S_T1}")
        p.s(f"s_lshl_b32 s{S_EO[k]}, s{S_EO[k]}, 8")
        p.s(f"s_add_u32 s{S_EO[k]}, s{S_EO[k]}, s{OW}")
    p.s(f"s_cmp_ge_u32 s{S_G}, 5")
    p.s(f"s_cselect_b32 s{S_JE[1]}, {OOB:#x}, s{S_JE[1]}")
    p.s(f"s_cselect_b32 s{S_EO[1]}, {OOB:#x}, s{S_EO[1]}")
    p.s(f"s_lshl2_add_u32 s{S_PO}, s{S_B}, s{S_W}")
    p.s(f"s_mul_i32 s{S_PO}, s{S_PO}, {4 * FS}")
    p.s(f"s_add_u32 s{S_PO}, s{S_PO}, {PFLG - 2 * FS + OOB}")
    p.s(f"s_lshl_b32 s{S_FO}, s{S_G}, {FG}")
    p.s(f"s_add_u32 s{S_FO}, s{S_FO}, s{S_PO}")
    p.s(f"s_mov_b32 s{S_PC}, 0")

def pmod(name):
    p = Prog()
    p.label(f"{name}_fb")
    p.wait_all()
    p.s(f"s_cmp_lg_u64 s[{S_BAD}:{S_BAD+1}], 0")
    p.s(f"s_cbranch_scc1 {name}_slow")
    p.label(f"{name}_P2")
    AO = (V_LIN, 2, 3)
    V_FA, V_OA = 4, 5
    PT, PT2 = 6, 8
    V_SA, V_JA, PT3 = 1, 25, 26
    SEL = 18
    POOL = [28 + 4 * k for k in range(16)]
    ACC = 92
    OWN = 124
    PK, SUM, JB = 132, 140, 188
    CT = 244
    p.wait_all()
    p.barrier()
    NL = int(E("PLEAD", "8"))
    def ooff(i, kq): return IMG(kq) + i * 1024
    for f in range(NL): p.ds_read128(POOL[f], AO[ooff(0, f) // 49152], ooff(0, f) % 49152)
    p.vop("v_mov_b32", V_SA, f"{OOB:#x}")
    s0 = len(p.ins)
    p.vop("v_mov_b32", V_JA, f"{OOB:#x}")
    p.vop("v_bfe_u32", V_FA, V_LIN, "4", "3")
    p.vop("v_lshlrev_b32", V_FA, f"{FG}", V_FA)
    p.vop("v_bfe_u32", CT, V_LIN, "4", "4")
    p.s(f"s_movk_i32 s{S_T0}, 1280")
    p.vop("v_mul_lo_u32", V_OA, CT, f"s{S_T0}")
    p.vop("v_lshrrev_b32", CT + 1, "8", V_LIN)
    p.vop("v_lshl_add_u32", V_OA, CT + 1, "4", V_OA)
    p.vop("v_mov_b32", PT2, f"s{S_NON}")
    p.vop("v_mov_b32", PT2 + 1, f"s{S_NON+1}")
    p.vop("v_and_b32", CT + 2, "1", CT)
    p.vop("v_lshlrev_b32", CT + 2, "4", CT + 2)
    p.s(f"s_movk_i32 s{S_T0}, 0x3f80")
    p.vop("v_lshlrev_b32", CT + 2, CT + 2, f"s{S_T0}")
    p.vop("v_lshrrev_b32", CT, "1", CT)
    p.vop("v_lshlrev_b32", CT + 1, "1", CT + 1)
    p.vop("v_sub_u32", CT, CT, CT + 1)
    for r in range(2):
        p.add(Ins(f"v_cmp_eq_u32 vcc, {r}, v{CT}", "valu", [CT], []))
        p.vop("v_mov_b32", SEL + r, "0")
        p.vop("v_mov_b32", SEL + 4 + r, "0")
        p.add(Ins(f"v_cndmask_b32 v{SEL+2+r}, 0, v{CT+2}, vcc", "valu", [CT + 2], [SEL + 2 + r]))
    setup = p.ins[s0:]
    def jload(q, jl, dst, own=S_JA):
        def f(p):
            so = S_JE[q - 4] if q >= 4 else S_T1 if q else own
            if 0 < q < 4 and jl == 0: p.s(f"s_add_u32 s{S_T1}, s{own}, {q * 81920}")
            if "J" not in ABL or own != S_JA or dst < JB: p.load4(dst, V_JA, SRD_WS, f"s{so}", jl * 1024, "job", E("JFL", "sc1"))
        return f
    def reduce(p, q, bufs, init=False):
        for e in range(2):
            for k, bf in enumerate(bufs): p.mfma(SUM + 8 * q + 4 * e, SEL + 2 - 2 * e, bf, None if (init and k == 0) else SUM + 8 * q + 4 * e)
    def next_off(): return [lambda p: p.vop("v_add_u32", V_SA, f"s{S_OF[0]}", V_LIN)] + [lambda p, k=k: p.s(f"s_mov_b32 s{S_OF[k]}, s{S_OF[k+1]}") for k in range(4)]
    def next_pair(p, d):
        p.s(f"s_add_u32 s{d}, s{S_WT}, 8192")
        p.s(f"s_sub_u32 s{S_T2}, s{S_WE}, 40960")
        p.s(f"s_cmp_eq_u32 s{d}, s{S_WE}")
        p.s(f"s_cselect_b32 s{d}, s{S_T2}, s{d}")
    def flag(p, off, tag):
        p.wait_vm(tag)
        p.s("s_mov_b64 exec, 1")
        p.store(PT2, 2, V_LIN, SRD_WS, f"s{S_FO}", off, tag="flag", flags="sc1")
        p.s("s_mov_b64 exec, -1")
    FPOS = int(E("FPOS", "56")); PPB = int(E("PPB", "244")); WSP = float(E("WSP", "6")); PLAT = int(E("PLAT", "60")); CPOS = int(E("CPOS", "206")); WST = int(E("WST", "4"))
    CP2 = [int(x) for x in E("CP2", f"{CPOS},{CPOS}").split(",")]; JS2 = [float(x) for x in E("JS2", "5,5").split(",")]
    FPB = int(E("FPB", "0"))
    def one_pass(par):
        CPOS = CP2[par]
        q = Prog()
        q.label(f"{name}_pass{par}")
        if PROF == 4: stamp(q, 32, S_PC)
        q.wait_vm(("WT", par, 15))
        sc = Sched(q, budget=int(E("PBUD", "8")), late_extra=8)
        for qn in ("wl", "st", "jl", "jp"): sc.group[qn] = "vm"
        sc.pace["vm"] = int(E("PPACE", "4"))
        pool = Pool(sc, POOL, 16)
        acc = lambda i: OWN if i == 8 else ACC + 8 * (i % 4)
        for i in range(9):
            a = acc(i)
            for kq in range(16):
                cons = [(a + 4 * e, P_R[par][2 * kq + e], a + 4 * e if kq else None, ("P", i, kq, e)) for e in range(2)]
                pool.frag(0, lambda r: [R128(r, AO[ooff(i, kq) // 49152], ooff(i, kq) % 49152)], cons, as_b=True)
        PG = int(E("PG", "4"))
        sc.m = [x for k in range(0, 288, 2 * PG) for x in sc.m[k:k + 2 * PG:2] + sc.m[k + 1:k + 2 * PG:2]]
        sc.idx = {x[4]: k for k, x in enumerate(sc.m)}
        mt = lambda i: sc.m[max(0, min(i, len(sc.m) - 1))][4]
        for f in range(NL, 144 + NL):
            (_, reads, cons, war) = pool.frags[f % 144]
            if f >= 144: war = pool.last[f % 16]
            if "R" not in ABL: sc.fill("rd", reads[0], 4, ds=True, after=war, before=mt(2 * (f - NL) + 1), early=2)
        for i in ((16, 22, 28) if PG == 1 else (16, 24) if PG <= 4 else (16,)): sc.fill("ww", lambda p, i=i: p.wait_vm(("WT", par, min(31, i + (5 if PG == 1 else 7 if PG <= 4 else 15)))), 4, before=mt(i), early=0)
        def su(p):
            next_pair(p, S_WT)
            if par == 0:
                p.s(f"s_cmp_eq_u32 s{S_PC}, 4")
                p.s(f"s_cselect_b32 s{S_WT}, {OOB:#x}, s{S_WT}")
        def keep(p):
            p.s(f"s_cmp_eq_u32 s{S_PC}, 4")
            for i in (5, 6, 7): p.s(f"s_cselect_b32 s{S_ST+i}, {OOB:#x}, s{S_ST+i}")
            p.s(f"s_cselect_b32 s{S_WT2}, s{S_PO}, {OOB:#x}")
        if par == 0: sc.fill("jr", keep, 16, after=mt(100), before=mt(150))
        fill_dma(sc, [(su, 0)], None, mt(WST + 2), queue="wl", lead=6)
        for i in range(32):
            fill_dma(sc, [(wload(1 - par, i), 0)], mt(WST + int(WSP * i)), mt(WST + 12 + int(WSP * i)), queue="wl", lead=10)
        sc.fill("jl", lambda p: poll_issue(p, V_FA, f"s{S_PO}", 0, PT), 8, before=mt(CPOS - PLAT), early=4, solo=SOLO)
        def cut(p):
            p.s(f"s_cmp_lt_u32 s{S_PC}, 2")
            p.s(f"s_cbranch_scc1 {name}_nojob{par}")
            if par == 0 and not FPB:
                p.s(f"s_cmp_eq_u32 s{S_PC}, 2")
                p.s(f"s_cbranch_scc1 {name}_pp0")
            p.label("@CUT")
        sc.fill("jr", cut, 8, before=mt(CPOS), early=0, tag="CUT")
        for x in [int(y) for y in E("PSL1", "").split(",") if y]: sc.fill("sl", lambda p: [p.raw("s_nop 15") for _ in range(int(E("PSN", "4")))], 16, before=mt(x), early=0)
        JSP = JS2[par]
        def cut2(p):
            p.s(f"s_cmp_lg_u32 s{S_PC}, 4")
            p.s(f"s_cbranch_scc1 {name}_nofb")
            p.label("@CU2")
        if par == 0 and FPB: sc.fill("jr", cut2, 8, before=mt(FPB), early=0)
        for k in range(12): fill_dma(sc, [(jload(k >> 1, k & 1, JB + 4 * k), 0)], ["CUT", mt(CPOS + int(JSP * k))], mt(CPOS + 12 + int(JSP * k)), queue="jl", lead=10)
        if par == 0: sc.fill("jp", lambda p: poll_issue(p, V_FA, f"s{S_WT2}", FS, PT3), 8, after=mt(PPB), before=mt(PPB + 8), lead=8, solo=SOLO)
        for i in range(-1, 8):
            a = acc(i % 9); d = PK + 4 * (i & 1) if (par == 0 and i >= 5) else a
            dl = mt(32 * i + 32 + 24)
            sc.fill("va", lambda p, a=a, d=d: p.cvtpk(d, a, a + 1), 4, after=dict(tag=("P", i, 15, 1), delay=4) if i >= 0 else mt(3), before=dl, lead=10)
            sc.fill("va", lambda p, a=a, d=d: p.cvtpk(d + 1, a + 2, a + 3), 4)
            sc.fill("va", lambda p, a=a, d=d: p.cvtpk(d + 2, a + 4, a + 5), 4)
            sc.fill("va", lambda p, a=a, d=d: p.cvtpk(d + 3, a + 6, a + 7), 4, tag=("CV", i), before=dl, lead=10)
            def st(p, d=d, i=i):
                if "O" not in ABL: p.store(d, 4, V_SA, SRD_WS, f"s{S_ST + i % 9}", 0, tag=("ps", i), flags=E("SFL", "sc1"))
            sc.fill("st", st, 8, after=("CV", i), before=dl, lead=20, tag=("ST", i), solo=SOLO)
            if i < 0:
                for fn in next_off(): sc.fill("va", fn, 4, after=("ST", -1))
        if PROF == 4:
            for k, x in enumerate(int(y) for y in E("PST", "66,74,224").split(",")): sc.fill(f"st{k}", lambda p, k=k: stamp(p, 33 + k, S_PC), 16, before=mt(x), early=0)
        sc.fill("fl", lambda p: flag(p, 0, ("ps", int(E("FTAG", "-1")))), 16, before=mt(FPOS), early=0)
        for r, x in ((S_FO, FS), (S_PC, 1)): sc.fill("fl", lambda p, r=r, x=x: p.s(f"s_add_u32 s{r}, s{r}, {x}"), 4, after=mt(272))
        if par:
            for r in (S_FO, S_PO): sc.fill("fl", lambda p, r=r: p.s(f"s_bitset0_b32 s{r}, 30"), 4)
        sc.run()
        if par == 0:
            q.s(f"s_cmp_eq_u32 s{S_PC}, 5")
            q.s(f"s_cbranch_scc1 {name}_ptail")
            q.s(f"s_add_u32 s{S_PO}, s{S_PO}, {FS}")
            q.s(f"s_cmp_eq_u32 s{S_PC}, 1")
            q.s(f"s_cbranch_scc1 {name}_fbw")
        else:
            q.s(f"s_add_u32 s{S_PO}, s{S_PO}, {FS}")
            q.s(f"s_branch {name}_pass0")
        k = next(i for i, x in enumerate(q.ins) if x.text.startswith("@CUT"))
        q2 = Prog(); q2.label(f"{name}_nojob{par}"); q2.ins += q.ins[k + 1:]; q.ins = q.ins[:k]
        blk = Prog()
        poll_check(blk, f"{name}_pp{par}", V_FA, f"s{S_PO}", 0, PT, int(E("SLP", "2")))
        red = Prog()
        if par == 0:
            blk.vop("v_mov_b32", V_JA, V_LIN)
            blk.s(f"s_cmp_eq_u32 s{S_PC}, 2")
            blk.s(f"s_cbranch_scc1 {name}_nojob{par}")
        red.vop("v_add_u32", V_JA, f"{40960 if par else AREA}", V_LIN)
        for c in range(6): reduce(red, c, [JB + 8 * c, JB + 8 * c + 4], par == 1)
        fb = Prog()
        if par == 0: flag(fb, FS, ("ps", 4))
        if par == 0 and FPB:
            k = next(i for i, x in enumerate(q2.ins) if x.text.startswith("@CU2"))
            q3 = Prog(); q3.label(f"{name}_nofb"); q3.ins += q2.ins[k + 1:]; q2.ins = q2.ins[:k]
            return q, Prog(), blk, red, q2, fb, q3
        return q, fb, blk, red, q2, Prog(), Prog()
    def first_pass():
        q = Prog()
        q.label(f"{name}_P0")
        stamp(q, 9)
        if "F" in ABL: q.s(f"s_mov_b32 s{S_BAD}, 1")
        if "G" in ABL:
            q.s(f"s_cmp_eq_u32 s{S_W}, 2")
            q.s(f"s_cselect_b32 s{S_BAD}, 1, 0")
        sc = Sched(q, budget=int(E("P0BUD", "8")), late_extra=8)
        for qn in ("wl", "st"): sc.group[qn] = "vm"
        sc.pace["vm"] = int(E("P0PACE", "3"))
        acc = [V_S + 32, V_S + 40, 92, 100, 108, 116, 132, 140, OWN]
        POOL2 = POOL[:8] + [148 + 4 * k for k in range(4)] + POOL[12:]
        reg = lambda f: P0_B[f] if f < 72 else POOL2[f % 16] if f < 144 else POOL[f % 16]
        fk = lambda f: ((f % 72) // 8, f % 8 + 8 * ((f // 72) & 1))
        base = []
        for f0 in range(0, 144, 4):
            for e in range(2):
                for f in range(f0, f0 + 4):
                    i, kq = fk(f); a = acc[i] + 4 * e
                    base.append((a, P_R[0][2 * kq + e], reg(f), a if kq else None, ("P", f, e)))
        units = UNITS
        C0, CS, MB = int(E("P0C0", "22")), float(E("P0CS", "5.8")), int(E("P0MB", "12"))
        cpos = {C0 + int(CS * k) + (int(E("P0C8", "0")) if k >= 12 else 0): k for k in range(18)}
        for j, m in enumerate(base):
            if j in cpos:
                k = cpos[j]; sc.mfma(CHK, A_ONE, Oa(units[k][0], 2 * units[k][1]), CHK if k else None, ("CHK", k))
            sc.mfma(*m)
        bt = lambda j: base[min(j, 287)][4]
        for i in range(2, 9): assert sc.idx[("CHK", (acc[i] - V_O) // 8)] + 1 < sc.idx[bt(16 * i)]
        for f in range(8, 144 + NL):
            i, kq = fk(f)
            aft = [("P", f - 16, 1)] if (f >= 24 and not 72 <= f < 88) else []
            if f == 8: aft.append("AO")
            if f == 12: aft.append("XW")
            if f == 72: aft.append("MID")
            j = 2 * (f - NL) + 1
            if f >= 72: j = max(j, 144 - MB + 2 + f - 72)
            sc.fill("rd", R128(reg(f), AO[ooff(i, kq) // 49152], ooff(i, kq) % 49152), 4, ds=True, after=aft, before=bt(j), early=2)
        def V(fn, cost=4, **kw): sc.fill("va", fn, cost, **kw)
        sc.fill("ww", lambda p: p.wait_vm(("WT", 0, 15)), 4, before=bt(10), early=0)
        def each(fn):
            z = Prog(); fn(z)
            return [lambda p, x=x: p.add(x) for x in z.ins]
        V(lambda p: p.vop("v_add_u32", AO[1], "49152", V_LIN))
        V(lambda p: p.vop("v_add_u32", AO[2], "98304", V_LIN), tag="AO")
        for fn in each(f_addr): V(fn)
        for i in range(4): V(lambda p, i=i: p.ds_write(AD + 1, Oa(4, 4 + i), 4, i * 1024), 8, solo=True)
        V(lambda p: p.s(f"s_mul_i32 s{S_T0}, s{S_U}, 73728"))
        V(lambda p: p.s(f"s_sub_u32 s{S_T0}, {73728 + 36864}, s{S_T0}"))
        V(lambda p: p.vop("v_add_u32", AL + 1, f"s{S_T0}", V_DA + 4))
        V(lambda p: p.ds_write(AL + 1, La(4), 1, 0), ds=True, tag="XW")
        for n in range(5): V(lambda p, n=n: p.ar(RL + 2 * n, La(n)), tag=("AR", n))
        for n in range(5): V(lambda p, n=n: p.vop("v_add_u32", V_DA + n, "73728", V_DA + n), tag=("DA", n))
        def wr(p, k):
            n, t = units[k]
            p.ds_write(V_DA + n, Oa(n, 2 * t), 4, t * 18432 + (1024 if n < 4 else 0))
        for n in range(4): V(f_rcp(n)[0], 8); V(f_rcp(n)[1], tag=("RC", n))
        l8 = f_l8(); V(l8[0], after=dict(tag="PX", delay=8)); V(l8[1], 8); V(l8[2], tag=("RC", 4), before=("CHK", 10))
        ct = lambda k, d: sc.m[sc.idx[("CHK", k)] + d][4]
        for k, (n, t) in enumerate(units):
            pk, cv = f_norm(n, t)
            sc.fill("pk", lambda p, k=k, pk=pk: (wr(p, k - 1) if k else None, [fn(p) for fn in pk]), 8, solo=True, after=[("RC", n)] + ([("DA", 4)] if k else []),
                    before=ct(k - 1, 1) if k else ct(0, -5), early=0, lead=99, tag=("PK", k))
            for j, fn in enumerate(cv): sc.fill("c1", fn, 4, after=("PK", k), before=ct(k, -1), lead=0)
        sc.fill("pk", lambda p: wr(p, 17), 8, solo=True, before=ct(17, 1), early=0, lead=99, tag="W17")
        for j, fn in enumerate(f_range()): V(fn, 8 if j >= 4 else 4)
        sc.fill("bx", lambda p: p.barrier(), 4, after=[("P", 12, 0), ("DA", 4)], before=bt(int(E("P0BX", "34"))), early=0)
        for i in range(4): sc.fill("bx", R128(PX + 4 * i, AD, i * 1024), 4, ds=True, before=bt(60))
        sc.fill("bx", lambda p: p.ds_read32(V_S, V_DA + 4, 0), 4, ds=True, before=bt(60), tag="PX")
        V(lambda p: p.vop("v_bfe_u32", V_T + 1, V_LIN, "4", "2"))
        V(lambda p: p.vop("v_lshlrev_b32", V_T + 1, "12", V_T + 1))
        V(lambda p: p.vop("v_add_u32", V_T + 1, f"{MISC}", V_T + 1))
        c5 = f_fin()
        V(c5[0]); V(c5[1], 8, after=dict(tag=("CHK", 17), delay=2))
        V(lambda p: (p.s(f"s_or_b32 s{S_T0}, s{S_BAD}, s{S_BAD+1}"), p.vop("v_mov_b32", V_T, f"s{S_T0}")), 8)
        V(lambda p: p.ds_write(AD, V_T, 1, 0), ds=True, after="W17", before=bt(144 - MB - 4), lead=2)
        def mid(p):
            p.wait_vm(("WT", 0, 31), lgkm0=True); p.barrier()
            stamp(p, 16)
            p.ds_read32(V_T + 2, V_T + 1, 0)
        V(mid, 8, before=bt(144 - MB), early=0, tag="MID")
        def chk(p):
            p.add(Ins(f"v_cmp_ne_u32 vcc, 0, v{V_T+2}", "valu", [V_T + 2], []))
            p.s("s_cmp_lg_u64 vcc, 0")
            p.s(f"s_cbranch_scc1 {name}_fb")
        V(chk, 8, before=bt(146), early=0, tag="OK")
        for fn in next_off(): V(fn, before=bt(160))
        k = 0
        while k < len(setup):
            n = 4 if setup[k].text.startswith("v_cmp") else 1
            V(lambda p, g=setup[k:k + n]: [p.add(Ins(x.text, x.kind, x.rd, x.wr)) for x in g], 4 * n); k += n
        for i in range(8):
            a = acc[i]; dl = bt(144 + 16 * i + 16 + 14)
            sc.fill("cv", lambda p, a=a: p.cvtpk(a, a, a + 1), 4, after=["OK", dict(tag=("P", 72 + 8 * i + 7, 1), delay=3)], before=dl, lead=10)
            sc.fill("cv", lambda p, a=a: p.cvtpk(a + 1, a + 2, a + 3), 4)
            sc.fill("cv", lambda p, a=a: p.cvtpk(a + 2, a + 4, a + 5), 4)
            sc.fill("cv", lambda p, a=a: p.cvtpk(a + 3, a + 6, a + 7), 4, tag=("CV", i), before=dl, lead=10)
            def st(p, a=a, i=i):
                if "O" not in ABL: p.store(a, 4, V_SA, SRD_WS, f"s{S_ST+i}", 0, tag=("ps", i), flags=E("SFL", "sc1"))
            sj = int(E("P0S0", "200")) + int(E("P0SS", "8")) * i
            sc.fill("st", st, 8, after=[("CV", i), bt(sj)], before=bt(max(sj + 8, 144 + 16 * i + 30)), lead=20, tag=("ST", i), solo=SOLO)
        if WTP >= 100:
            for k in range(WTN): sc.fill("wt", lambda p, k=k: w_touch(p, 64 * k), 8, after=bt(WTP - 100 + 4 * k), before=bt(WTP - 92 + 4 * k), solo=True)
        for x in [int(y) for y in E("PSL0", "").split(",") if y]: sc.fill("sl", lambda p: [p.raw("s_nop 15") for _ in range(int(E("PSN", "4")))], 16, before=bt(x), early=0)
        W1 = float(E("P0W1", "5.0")); W2 = float(E("P0W2", "3.0"))
        for i in range(8): fill_dma(sc, [(wload(0, 24 + i), 0)], bt(17 + int(W1 * i)), bt(30 + int(W1 * i)), queue="wl", lead=4)
        for i in range(32):
            j = 17 + int(W1 * (8 + i)) if i < 15 else 146 + int(W2 * (i - 15))
            if i == 0: fill_dma(sc, [(lambda p: next_pair(p, S_WT2), 0)], None, bt(j), queue="wl", lead=4)
            fill_dma(sc, [(wload(1, i, sb=S_WT2), 0)], [bt(j), ("AR", 4)] + (["OK"] if i >= 15 else []), bt(j + 13), queue="wl", lead=4)
        sc.fill("fl", lambda p: p.s(f"s_mov_b32 s{S_WT}, s{S_WT2}"), 4, after=bt(275))
        for r, x in ((S_PO, FS), (S_FO, FS), (S_PC, 1)): sc.fill("fl", lambda p, r=r, x=x: p.s(f"s_add_u32 s{r}, s{r}, {x}"), 4, after=bt(275))
        sc.run()
        q.s(f"s_branch {name}_pass1")
        return q
    p.wait_lgkm0()
    p.s(f"s_branch {name}_pass0")
    pre = p
    p0 = first_pass()
    pe, po = one_pass(0), one_pass(1)
    p = Prog()
    p.label(f"{name}_ptail")
    stamp(p, 17)
    p.vop("v_add_u32", V_JA, f"{AREA + 40960}", V_LIN)
    poll_check(p, f"{name}_pp4", V_FA, f"s{S_PO}", FS, PT3, int(E("SLP4", "0")))
    stamp(p, 18)
    for c in range(4): jload(c, 0, POOL[8 + c], S_JC)(p)
    for k in range(4): jload(4 + (k >> 1), k & 1, POOL[12 + k])(p)
    stamp(p, 19)
    for c in (4, 5, 0, 1, 2, 3):
        if c < 4:
            for r in range(8): p.vop("v_add_f32", SUM + 8 * c + r, SUM + 8 * c + r, (ACC + 8 * (c + 1) if c < 3 else OWN) + r)
        reduce(p, c, [JB + 8 * c, JB + 8 * c + 4])
    stamp(p, 20)
    def out(c):
        a = SUM + 8 * c
        for r in range(4): p.cvtpk(a + r, a + 2 * r, a + 2 * r + 1)
        if 0 < c < 4: p.s(f"s_add_u32 s{S_JO}, s{S_JO}, {16 * 1280}")
        p.store(a, 4, V_OA, SRD_OUT, f"s{S_JO if c < 4 else S_EO[c - 4]}", 0, tag="out", flags=E("OFL", "sc1"))
    for c in range(6):
        reduce(p, c, [POOL[8 + c]] if c < 4 else POOL[4 + 2 * c:6 + 2 * c])
        if c: out(c - 1)
    out(5)
    if PROF:
        p.wait_all()
        stamp(p, 21)
        p.s(f"s_getreg_b32 s{S_TM}, hwreg(HW_REG_HW_ID)")
        p.s(f"s_getreg_b32 s{S_TM+1}, hwreg(HW_REG_XCC_ID)")
        p.raw(f"v_writelane_b32 v0, s{S_TM}, 24")
        p.raw(f"v_writelane_b32 v0, s{S_TM+1}, 25")
        p.s(f"s_lshl_b32 s{S_T0}, s2, 2")
        p.s(f"s_add_u32 s{S_T0}, s{S_T0}, s{S_W}")
        p.s(f"s_lshl_b32 s{S_T0}, s{S_T0}, 8")
        p.s(f"s_add_u32 s{S_T0}, s{S_T0}, {PROFOFF}")
        p.vop("v_lshrrev_b32", PT, "2", V_LIN)
        p.store(0, 1, PT, SRD_WS, f"s{S_T0}", 0)
        p.s(f"s_add_u32 s{S_T0}, s{S_T0}, 0x40000")
        p.store(255, 1, PT, SRD_WS, f"s{S_T0}", 0)
        if E("ENC"):
            a_, b_ = E("ENC").split(",")
            if int(E("ENCW", "77")) >= 0:
                p.s(f"s_cmp_lg_u32 s2, {int(E('ENCW', '77'))}")
                p.s(f"s_cbranch_scc1 {name}_end")
            if a_ == "n": p.s(f"s_mov_b32 s56, s{S_NON}")
            else: p.raw(f"v_readlane_b32 s56, v0, {a_}")
            if b_ == "n": p.s(f"s_mov_b32 s57, s{S_NON}")
            else: p.raw(f"v_readlane_b32 s57, v0, {b_}")
            p.raw("s_nop 4")
            p.s("s_sub_u32 s57, s57, s56")
            p.s("s_lshl_b32 s57, s57, 3")
            p.s("s_add_u32 s57, s57, 12000")
            p.label(f"{name}_enc")
            p.s("s_memrealtime s[58:59]")
            p.raw("s_waitcnt lgkmcnt(0)")
            p.s(f"s_sub_u32 s58, s58, s{S_NON}")
            p.s("s_cmp_lt_u32 s58, s57")
            p.s(f"s_cbranch_scc1 {name}_enc")
        if PROF == 5:
            p.s(f"s_cmp_lg_u32 s2, 77")
            p.s(f"s_cbranch_scc1 {name}_end")
            p.s(f"s_cmp_lg_u32 s{S_W}, 0")
            p.s(f"s_cbranch_scc1 {name}_end")
            p.raw("v_readlane_b32 s56, v0, 0")
            for k, ix in enumerate([23, 1, 2, 5, 6, 9, 10, 16, 17, 18, 20, 21]):
                p.raw(f"v_readlane_b32 s57, v0, {ix}")
                p.raw("s_nop 3")
                p.s("s_sub_u32 s57, s57, s56")
                p.raw(f"v_mov_b32 v30, s57")
                p.raw(f"buffer_store_dword v30, off, s[{SRD_DBG}:{SRD_DBG+3}], 0 offset:{8 + 4 * k}")
                p.raw("s_nop 1")
    p.label(f"{name}_end")
    p.raw("s_endpgm")
    rest = [po[0], po[4], pe[0], pe[2], pe[4], pe[6], *po, *pe, p]
    fw = Prog(); fw.label(f"{name}_fbw"); fw.wait_all(); fw.s(f"s_branch {name}_pass1")
    return [p0, *pe, *po, p, pre, fw], [p0] + rest, [pre, pe[0], pe[4], pe[6], fw] + rest

def gen(name):
    pro = prologue(name)
    Q = qmod(name)
    AE = aentry(name)
    A = [amod(name, qh) for qh in range(2)]
    F = afin(name)
    P, PS, PS2 = pmod(name)
    SL, SLS = slow(name)
    segs = [pro, Q, AE, A[0], A[1], F] + P + SL
    sims = [[(x, 1) for x in [pro, Q, AE, A[qh], F, AE, A[qh]] + PS] for qh in range(2)]
    sims.append([(x, 1) for x in SLS + PS2])
    lines, stats = finalize([(x, 1) for x in segs], sims=sims)
    if int(E("ROLL", "1")):
        lines = roll(lines, "; ---- a step", 8, S_LOOP, f"{name}_aloop")
        lines = roll(lines, "; ---- q step", 4, S_LOOP, f"{name}_qloop")
    lines += [f"{name}_last:", f".if {name}_last-{name}_pc < {65536 + CPO}", f".fill ({65536 + CPO}-({name}_last-{name}_pc))/4, 4, 0xbf810000", ".endif", f".if {name}_end-{name}_pc > {65536 + CPO}", '.warning "code range"', ".endif"]
    return [f".globl {name}", ".p2align 8", f".type {name},@function", f"{name}:"] + lines, stats
```

```python
from asmlib import *
import math, struct, os
E = os.environ.get
PROF = int(E("PROF", "0"))
ABL = E("ABL", "")
def f2u(f): return struct.unpack("<I", struct.pack("<f", f))[0]
CSCALE = math.log2(math.e) / math.sqrt(128.0)
NWG = 256
LDS_BYTES = 163840
XSL = 18432
XRING = 131072
XALT = 65536 - XSL
WRING = 65536
MISC = 147456
def IMG(kq): return (kq >> 3) * 73728 + (kq & 3) * 18432 + ((kq >> 2) & 1) * 9216
DROP = 0x30000
OOB = 0x40000000
WOT = 0
PART = 128 * 40960
AREA = 18 * 40960
PARTB = 2 * AREA
WFLG = PART + 32 * PARTB
PFLG = WFLG + 8192
FG = int(E('FG', '3')); FS = int(E('FS', '128'))
WSBYTES = PFLG + 128 * 4 * FS
PROFOFF = 0x4000000

SRD_X, SRD_K, SRD_V, SRD_W, SRD_WS, SRD_WO, SRD_OUT, SRD_DBG = 8, 12, 16, 20, 24, 28, 32, 36
S_W = 3
S_T0, S_T1, S_B, S_G, S_P, S_T2 = 40, 41, 42, 43, 44, 45
S_CS, S_NON, S_SPIN, S_PH, S_GRP, S_SO = 46, 48, 50, 51, 52, 53
S_BAD = 54
S_KOFF, S_VOFF, S_KB, S_KVN, S_M0KV, S_WFP = 56, 57, 58, 59, 60, 61
S_WOFF, S_WB, S_XOFF, S_XB = 62, 63, 65, 66
S_M0W, S_M0X8 = 75, 72
S_WT, S_PT, S_PF, S_RD, S_OUTO = 76, 77, 78, 79, 80
S_LO, S_HI = 81, 82
S_TM = 84
S_VB = 88
S_M0KVP, S_KVP, S_M0D, S_U = 89, 91, 94, 95
S_LOOP = 92
S_WT2 = 98

V_DK, V_DV, V_DW, V_DX = 1, 5, 9, 13
V_AK, V_AV0, V_AV1, V_AX, V_AX8, V_LIN = 18, 19, 20, 21, 22, 24
V_E0, V_E1, V_E2 = 25, 26, 27
V_S = 28
V_AW = V_S + 40
V_O = 84
V_T = 244
V_DA = V_T + 3
V_NV = 252
V_JUNK = 254
A_Q, A_QN, A_L, A_ONE, A_POOL, A_X = 256, 336, 416, 436, 440, 472
A_QP = 480
NPOOL = 8
def Qf(n, ks, base=A_Q): return base + (n * 4 + ks) * 4
def Oa(n, m): return V_O + (n * 8 + m) * 4
def XS(par, n): return V_S + (par * 4 + n) * 4 if n < 4 else V_S + 48
def YS(n): return V_S + 32 + n * 4 if n < 4 else V_S + 52
def La(n): return A_L + 4 * n
def Xf(st, t): return V_S + (st * 5 + t) * 4
def QA(r, n, m):
    if r == 0: return V_O + (n * 8 + m) * 4
    return A_QN + 64 + 4 * m if n == 4 else A_QN + 80 * (m & 1) + 16 * n + 4 * (m >> 1)

def stamp(p, idx, dyn=None):
    if not PROF: return
    p.s(f"s_memrealtime s[{S_TM}:{S_TM+1}]")
    p.s(f"s_memtime s[{S_TM+2}:{S_TM+3}]")
    p.wait_lgkm0()
    if dyn is None:
        p.raw(f"v_writelane_b32 v0, s{S_TM}, {idx}")
        p.raw(f"v_writelane_b32 v255, s{S_TM+2}, {idx}")
    else:
        p.s("s_mov_b32 s99, m0")
        p.s(f"s_lshl_b32 m0, s{dyn}, 2")
        p.s(f"s_add_u32 m0, m0, {idx}")
        p.raw(f"v_writelane_b32 v0, s{S_TM}, m0")
        p.raw(f"v_writelane_b32 v255, s{S_TM+2}, m0")
        p.s("s_mov_b32 m0, s99")

KVSEQ = [("K", 0)]
for u in range(15): KVSEQ += [("K", u + 1), ("V", u)]
KVSEQ += [("V", 15)]
KVPOS = {t: i for i, t in enumerate(KVSEQ)}
DYN = (10, 30)
SRD_C = SRD_WO
S_ROT, S_C, S_D = S_KOFF, S_VOFF, S_VB
def kv_ops(pos):
    pre = pos >= 32; pos %= 32
    kind, u = KVSEQ[pos]
    dyn = DYN[0] <= pos <= DYN[1] and not pre
    ops = []
    for j in range(4):
        def f(p, j=j):
            if dyn:
                if j == 0:
                    if pos == DYN[0]:
                        p.s(f"s_add_u32 s{S_C}, s{S_ROT}, {u * 8192}")
                        p.s(f"s_and_b32 s{S_C}, s{S_C}, 0x1ffff")
                        p.s(f"s_mov_b32 s{S_D}, {16384 if kind == 'V' else -8192}")
                        p.s(f"s_mov_b32 s{S_M0D}, {(pos % 8) * 16384}")
                    p.s(f"s_cmp_gt_i32 s{S_D}, 0")
                    p.s(f"s_cselect_b64 s[{SRD_C}:{SRD_C+1}], s[{SRD_V}:{SRD_V+1}], s[{SRD_K}:{SRD_K+1}]")
                    p.s(f"s_add_u32 m0, s{S_M0KV}, s{S_M0D}")
                    p.s(f"s_add_u32 s{S_SO}, s{S_KB}, s{S_C}")
                if "D" not in ABL: p.dmao(V_DV + j, SRD_C, f"s{S_SO}", j * 1024, (kind, u), "nt")
                if j == 0: p.s(f"s_add_u32 s{S_C}, s{S_C}, s{S_D}")
                if j == 1:
                    p.s(f"s_and_b32 s{S_C}, s{S_C}, 0x1ffff")
                    p.s(f"s_sub_u32 s{S_D}, 8192, s{S_D}")
                if j == 2:
                    p.s(f"s_add_u32 s{S_M0D}, s{S_M0D}, 16384")
                    p.s(f"s_and_b32 s{S_M0D}, s{S_M0D}, 0x1ffff")
                return
            if j == 0:
                if pre: p.s(f"s_add_u32 m0, s{S_M0KVP + (pos >> 2)}, {(pos % 4) * 16384}")
                else: p.s(f"s_add_u32 m0, s{S_M0KV}, {(pos % 8) * 16384}")
                p.s(f"s_add_u32 s{S_SO}, s{S_ROT}, {u * 8192}")
                p.s(f"s_and_b32 s{S_SO}, s{S_SO}, 0x1ffff")
                p.s(f"s_add_u32 s{S_SO}, s{S_SO}, s{S_KVP if pre else S_KB}")
            if "D" not in ABL: p.dmao(V_DV + j, SRD_K if kind == "K" else SRD_V, f"s{S_SO}", j * 1024, (kind, u), "nt")
        ops.append((f, 8))
    return ops
W39 = int(E("W39", "1"))
def w_ops(h):
    ops = []
    for j in range(4):
        def f(p, j=j):
            if j == 0:
                p.s(f"s_add_u32 m0, s{S_M0W}, {65536 if (h == 39 and W39) else (h % 4) * 16384}")
                p.s(f"s_add_u32 s{S_SO}, s{S_WB + (h & 1)}, s{S_WOFF}")
            if "W" not in ABL: p.dmao(V_DW + j, SRD_W, f"s{S_SO}", j * 1024, ("W", h))
            if j == 1 and h % 4 == 1: p.s(f"s_sub_u32 s{S_WOFF}, s{S_WOFF}, 512")
            if j == 1 and h % 4 == 3: p.s(f"s_add_u32 s{S_WOFF}, s{S_WOFF}, {64 * 8192 + 512}")
            if j == 2 and h % 4 == 3:
                p.s(f"s_cmp_ge_u32 s{S_WOFF}, {640 * 8192}")
                p.s(f"s_cselect_b32 s{S_WOFF}, 0, s{S_WOFF}")
        ops.append((f, 12 if j == 0 or (j == 2 and h % 4 == 3) else 8 if j == 1 and h % 2 else 4))
    return ops
def xw_ops(i, h):
    def X(j):
        def f(p):
            p.s(f"s_add_u32 m0, s{S_M0KV if j < 4 else S_M0X8}, {XRING}")
            if j == 0: p.s(f"s_add_u32 s{S_T1}, s{S_XB}, s{S_XOFF}")
            p.dmao(V_DX + j, SRD_X, f"s{S_T1}", (j & 3) * 1024, ("X", i))
            if j == 1: p.s(f"s_add_u32 s{S_XOFF}, s{S_XOFF}, 128")
            if j == 2:
                p.s(f"s_cmp_ge_u32 s{S_XOFF}, 1280")
                p.s(f"s_cselect_b32 s{S_XOFF}, 0, s{S_XOFF}")
        return (f, 8)
    w = w_ops(h)
    W = lambda j: ((lambda p: ((p.s(f"s_add_u32 m0, s{S_M0W}, {(h % 4) * 16384}") if j else None), w[j][0](p))), 8)
    return [X(0), W(0), X(1), W(1), X(2), W(2), X(3), W(3), X(4)]
def x_ops(i):
    ops = []
    sb = XRING if i else XALT
    for j in range(5):
        def f(p, j=j):
            if j == 0:
                p.s(f"s_add_u32 m0, s{S_M0KV}, {sb}")
                p.s(f"s_add_u32 s{S_SO}, s{S_XB}, s{S_XOFF}")
            if "X" not in ABL: p.dmao(V_DX + j, SRD_X, f"s{S_SO}", (j & 3) * 1024, ("X", i), E("XFL", ""))
            if j == 1: p.s(f"s_add_u32 s{S_XOFF}, s{S_XOFF}, 128")
            if j == 2:
                p.s(f"s_cmp_ge_u32 s{S_XOFF}, 1280")
                p.s(f"s_cselect_b32 s{S_XOFF}, 0, s{S_XOFF}")
            if j == 3:
                p.s(f"s_add_u32 m0, s{S_M0X8}, {sb}")
                p.nop(0)
        ops.append((f, 12 if j in (0, 2, 3) else 8 if j == 1 else 4))
    return ops

SRD_E = 4
S_EM, S_ED, S_TAB, S_ES, S_WEND, S_EW = 67, 68, 69, 70, 71, 73
STG = 0x26000
V_WR = V_O + 144
EKP = [int(x) for x in E("EKP", "1,1,1,2").split(",")]
PFP = [int(x) for x in E("PFP", "")]; PFN = len(PFP)
PFS = int(E("PFS", "1"))
S_PFO, S_PFB = 74, 83
FWL = int(E("FWL", "1"))
def ek_ops(h):
    it = h // 4
    tag = KVSEQ[(it - 1) // 2]
    def kp(p):
        p.s(f"s_and_b32 s{S_ES}, s{S_TAB}, 0x7000")
        p.s(f"s_add_u32 s{S_ES}, s{S_ES}, s{S_ROT}")
        p.s(f"s_and_b32 s{S_ES}, s{S_ES}, 0x1ffff")
        p.s(f"s_add_u32 s{S_ES}, s{S_ES}, s{S_KVP}")
        if PFS > 1 and not PFN:
            p.s(f"s_bitcmp1_b32 s{S_WEND}, 16")
            p.s(f"s_cselect_b32 s{S_ES}, s{S_ES}, {OOB:#x}")
        p.s(f"s_bitcmp1_b32 s{S_TAB}, 15")
        p.s(f"s_cselect_b64 s[{SRD_E}:{SRD_E+1}], s[{SRD_V}:{SRD_V+1}], s[{SRD_K}:{SRD_K+1}]")
        p.s(f"s_lshr_b32 s{S_T0}, s{S_TAB}, 4")
        p.s(f"s_lshl_b32 s{S_TAB}, s{S_TAB}, 28")
        p.s(f"s_or_b32 s{S_TAB}, s{S_TAB}, s{S_T0}")
    def k0(p):
        p.s(f"s_add_u32 m0, s{S_M0KV}, s{S_EM}")
        if "D" not in ABL: p.dmao(V_DV, SRD_E, f"s{S_ES}", 0, tag, "nt")
    def k1(p):
        p.s(f"s_add_u32 m0, s{S_M0KV}, s{S_EM}")
        p.s(f"s_add_u32 s{S_EM}, s{S_EM}, s{S_ED}")
        if "D" not in ABL: p.dmao(V_DV + 1, SRD_E, f"s{S_ES}", 1024, tag, "nt")
        p.s(f"s_xor_b32 s{S_ED}, s{S_ED}, {2048 ^ 14336}")
    def wo(p):
        p.s(f"s_mov_b32 m0, s{S_EW}")
        p.s(f"s_bitcmp1_b32 s{S_WEND}, 0")
        p.s(f"s_cselect_b32 s{S_T0}, s{S_WT}, {OOB:#x}")
        p.dmao(V_DX, SRD_WO, f"s{S_T0}", 0, ("WOP", it), E("WOFL", "nt"))
        p.s(f"s_xor_b32 s{S_EW}, s{S_EW}, 4096")
        p.s(f"s_lshr_b32 s{S_WEND}, s{S_WEND}, 1")
        p.s(f"s_add_u32 s{S_WT}, s{S_WT}, 128")
    def none(p): p.add(Ins(f"buffer_load_dword v{V_JUNK}, off, s[{SRD_DBG}:{SRD_DBG+3}], 0 offset:256", "vm", [], [], tag="none"))
    def pf(srd, du, j, last):
        def f(p):
            p.s(f"s_add_u32 s{S_T0}, s{S_PFO}, {du * 8192}")
            p.s(f"s_and_b32 s{S_T0}, s{S_T0}, 0x1ffff")
            p.s(f"s_add_u32 s{S_T0}, s{S_T0}, s{S_PFB}")
            p.add(Ins(f"buffer_load_dword v{V_JUNK}, v{V_DV + j}, s[{srd}:{srd+3}], s{S_T0} offen offset:{j * 1024} {E('PFFL', '')}", "vm", [V_DV + j], [], tag="pf"))
            if last:
                p.s(f"s_add_u32 s{S_PFO}, s{S_PFO}, {8192 * PFN // 2}")
                p.s(f"s_bitcmp1_b32 s{S_WEND}, 16")
                p.s(f"s_cselect_b32 s{S_PFB}, s{S_KVP}, {OOB:#x}")
        return f
    if int(E("PFD", "0")) == 2:
        def pf(srd, du, j, last):
            def f(p):
                p.s(f"s_mov_b32 m0, s94")
                p.s(f"s_add_u32 s{S_T0}, s{S_PFO}, {du * 8192}")
                p.s(f"s_and_b32 s{S_T0}, s{S_T0}, 0x1ffff")
                p.s(f"s_add_u32 s{S_T0}, s{S_T0}, s{S_PFB}")
                p.dmao(V_DV, srd, f"s{S_T0}", 0, "pf", E("PFFL", ""))
                if last:
                    p.s(f"s_add_u32 s{S_PFO}, s{S_PFO}, {8192 * PFN // 2}")
                    p.s(f"s_bitcmp1_b32 s{S_WEND}, 16")
                    p.s(f"s_cselect_b32 s{S_PFB}, s{S_KVP}, {OOB:#x}")
            return f
    if int(E("PFD", "0")) == 1:
        def pf(srd, du, j, last):
            def f(p):
                p.s(f"s_mov_b32 m0, s94")
                p.s(f"s_and_b32 s{S_T0}, s{S_PFO}, 0x1ffff")
                p.s(f"s_add_u32 s{S_T0}, s{S_T0}, s{S_PFB}")
                p.dmao(V_DV, SRD_V, f"s{S_T0}", 0, "pf", "nt")
                p.s(f"s_add_u32 s{S_PFO}, s{S_PFO}, 2048")
            return f
    warm = lambda r: lambda p: p.add(Ins(f"buffer_load_dword v{V_JUNK}, off, s[{SRD_WS}:{SRD_WS+3}], s{r} sc1", "vm", [], [], tag="touch"))
    fs = [k0, k1, wo, None, kp] if it else [none if x else None for x in EKP[:3]] + [None, kp]
    if FWL and not it: fs[FWL // 10], fs[FWL % 10] = (lambda p: p.add(Ins(f"buffer_load_dword v{V_JUNK}, v4, s[{SRD_WS}:{SRD_WS+3}], s{S_T2} offen sc1", "vm", [4], [], tag="touch"))), warm(S_WFP)
    fs += [pf(SRD_K if k & 1 else SRD_V, (5 if k & 1 else 3) + (k >> 1), 3, k == PFN - 1) if it else (none if PFP[k] else None) for k in range(PFN)]
    fs += [code_touch] * len(CPQ)
    return [(f, 8) for f, x in zip(fs, EKP + [3] + PFP + CPQ) if f and x == h % 4]
def wst(p):
    for i in range(5):
        p.store(A_Q + 16 - 4 * i, 4, V_LIN, SRD_WS, f"s{S_PT}", 0, tag="wst", flags="sc1")
        if i < 4: p.s(f"s_add_u32 s{S_PT}, s{S_PT}, 4096")

def split_ops(ops):
    q = Prog()
    for f, _ in ops: f(q)
    out = []; i = 0; L = [x for x in q.ins if x.kind != "nop"]
    while i < len(L):
        grp = [L[i]]
        if L[i].text.startswith(("s_cmp", "s_bitcmp")): grp.append(L[i + 1])
        i += len(grp)
        out.append((lambda p, grp=grp: [p.add(x) for x in grp], "vm" if grp[0].kind in ("vm", "vml", "vms") else "s", 4 * len(grp)))
    return out
def fill_dma(sc, ops, after, before, tag=None, queue="dma", lead=80):
    so = split_ops(ops)
    for k, (fn, kind, cost) in enumerate(so):
        sc.fill(queue, fn, 8 if kind == "vm" else cost, after=after, before=before, lead=lead, solo=(kind == "vm" and SOLO), paced=(kind == "vm"),
                tag=tag if k == len(so) - 1 else None)
SOLO = int(E("SOLO", "1"))
T7 = int(E("T7", "0"))
def sprinkle(progs, ops, lo=0.0, hi=1.0):
    pts = []
    for p, st in progs:
        masked = False
        for i in range(st, len(p.ins)):
            x = p.ins[i]
            if x.text.startswith("s_mov_b64 exec"): masked = not x.text.endswith("-1")
            if x.kind == "label" and not x.text.startswith(";"): break
            if x.kind in ("valu", "perm") and not masked and p.ins[i - 1].kind in ("valu", "perm") and "v_cmp" not in x.text and "v_cmp" not in p.ins[i - 1].text: pts.append((p, i))
    if not ops: return
    a, b = int(lo * len(pts)), int(hi * len(pts))
    sel = [pts[a + (k * (b - a)) // len(ops)] for k in range(len(ops))]
    for (p, i), (fn, _) in reversed(list(zip(sel, ops))):
        q = Prog(); fn(q)
        p.ins[i:i] = q.ins

V_CP = 2
V_WP, WTP = 23, int(E("WTP", "-1"))
CPO = int(E("CPO", "3072"))
CPQ = [int(x) for x in E("CPQ", "2")]
CPA = [int(x) for x in E("CPA", "").split(",") if x]
WTN = int(E("WTN", "2"))
def w_touch(p, off): p.add(Ins(f"buffer_load_dword v{V_JUNK}, v{V_WP}, s[{SRD_WS}:{SRD_WS+3}], 0 offen offset:{off} sc1", "vm", [V_WP], [], tag="wtp"))
def code_addr(p, name, L):
    p.s(f"s_getpc_b64 s[{S_TM}:{S_TM+1}]")
    p.label(f"{name}_pc")
    p.s(f"s_lshr_b32 s{S_T0}, s2, 1")
    p.s(f"s_and_b32 s{S_T0}, s{S_T0}, 0x7c")
    p.s(f"s_add_u32 s{S_T0}, s{S_T0}, s{S_W}")
    p.s(f"s_lshl_b32 s{S_T0}, s{S_T0}, 9")
    p.s(f"s_add_u32 s{S_T0}, s{S_T0}, {CPO}")
    p.s(f"s_add_u32 s{S_TM}, s{S_TM}, s{S_T0}")
    p.s(f"s_addc_u32 s{S_TM+1}, s{S_TM+1}, 0")
    p.raw(f"v_and_b32 v{V_CP}, {7 if int(E('CP64', '0')) else 3}, v{L}")
    p.raw(f"v_lshlrev_b32 v{V_CP}, {6 if int(E('CP64', '0')) else 7}, v{V_CP}")
    p.raw(f"v_mov_b32 v{V_CP+1}, s{S_TM+1}")
    p.raw(f"v_add_co_u32 v{V_CP}, vcc, s{S_TM}, v{V_CP}")
    p.raw("s_nop 1")
    p.raw(f"v_addc_co_u32 v{V_CP+1}, vcc, 0, v{V_CP+1}, vcc")
def code_touch(p): p.add(Ins(f"global_load_dword v{V_JUNK}, v[{V_CP}:{V_CP+1}], off", "vm", [], [], tag="code"))

def get_nonce(p, name, t):
    p.add(Ins(f"v_readfirstlane_b32 s{S_NON}, v{V_NV}", "rfl", [V_NV], []))
    p.add(Ins(f"v_readfirstlane_b32 s{S_NON+1}, v{V_NV+1}", "rfl", [V_NV + 1], []))
    p.s(f"s_cmp_lt_i32 s{S_NON+1}, 0")
    p.s(f"s_cbranch_scc1 {name}_x")
    p.vop("v_mov_b32", t + 2, "0")
    p.label(f"{name}")
    p.raw(f"buffer_load_dwordx2 v[{t}:{t+1}], v{t+2}, s[{SRD_DBG}:{SRD_DBG+3}], 0 offen sc1")
    p.raw("s_waitcnt vmcnt(0)")
    p.raw(f"v_readfirstlane_b32 s{S_NON}, v{t}")
    p.raw(f"v_readfirstlane_b32 s{S_NON+1}, v{t+1}")
    p.s(f"s_sub_u32 s{S_SPIN}, s{S_SPIN}, 1")
    p.s(f"s_cbranch_scc1 {name}_x")
    p.s(f"s_cmp_lt_i32 s{S_NON+1}, 0")
    p.s(f"s_cbranch_scc0 {name}")
    p.label(f"{name}_x")
    p.nop(1)

def publish(p, soff, off, t):
    p.vop("v_mov_b32", t, f"s{S_NON}")
    p.vop("v_mov_b32", t + 1, f"s{S_NON+1}")
    p.s("s_mov_b64 exec, 1")
    p.store(t, 2, V_LIN, SRD_WS, soff, off, tag="flag", flags="sc1")
    p.s("s_mov_b64 exec, -1")

def poll_issue(p, vaddr, soff, off, t):
    p.add(Ins(f"buffer_load_dwordx2 v[{t}:{t+1}], v{vaddr}, s[{SRD_WS}:{SRD_WS+3}], {soff} offen offset:{off} sc1", "vml", [vaddr], [t, t + 1], tag="poll"))
def poll_check(p, name, vaddr, soff, off, t, slp=2):
    p.label(f"{name}")
    p.add(Ins(f"v_cmp_ne_u32 vcc, s{S_NON}, v{t}", "valu", [t], []))
    p.add(Ins(f"v_cmp_ne_u32 s[{S_TM+2}:{S_TM+3}], s{S_NON+1}, v{t+1}", "valu", [t + 1], []))
    p.s(f"s_or_b64 vcc, vcc, s[{S_TM+2}:{S_TM+3}]")
    if "Y" in ABL and "pp" in name: p.s(f"s_branch {name}_ok")
    p.s(f"s_cbranch_scc0 {name}_ok")
    p.s(f"s_sub_u32 s{S_SPIN}, s{S_SPIN}, 1")
    p.s(f"s_cbranch_scc1 {name}_ok")
    if slp: p.s(f"s_sleep {slp}")
    p.raw(f"buffer_load_dwordx2 v[{t}:{t+1}], v{vaddr}, s[{SRD_WS}:{SRD_WS+3}], {soff} offen offset:{off} sc1")
    p.raw("s_waitcnt vmcnt(0)")
    p.s(f"s_branch {name}")
    p.label(f"{name}_ok")

PRO = int(E("PRO", "2"))
def prologue(name):
    p = Prog()
    if PROF: p.s("s_memrealtime s[100:101]")
    p.s(f"s_cmp_ge_u32 s2, {NWG}")
    p.s(f"s_cbranch_scc1 {name}_end")
    p.s("s_load_dwordx8 s[84:91], s[0:1], 0")
    p.s("s_load_dwordx8 s[92:99], s[0:1], 32")
    T = V_O
    W, L, a, b, c, d, U, P, VV, R8, PI, M, G, cv = range(T, T + 14)
    p.vop("v_lshrrev_b32", W, "6", 0)
    p.vop("v_and_b32", L, "63", 0)
    p.add(Ins(f"v_readfirstlane_b32 s{S_W}, v{W}", "rfl", [W], []))
    p.vop("v_and_b32", U, "1", W)
    p.vop("v_lshrrev_b32", P, "1", W)
    p.vop("v_lshrrev_b32", VV, "5", L)
    p.vop("v_bfe_u32", R8, L, "2", "3")
    p.vop("v_and_b32", PI, "3", L)
    p.s(f"s_movk_i32 s{S_T0}, 1280")
    p.vop("v_mul_lo_u32", a, R8, f"s{S_T0}")
    p.vop("v_lshl_add_u32", a, VV, "6", a)
    p.vop("v_xor_b32", c, "3", PI)
    p.vop("v_lshl_add_u32", V_DX, PI, "4", a)
    p.vop("v_lshl_add_u32", b, c, "4", a)
    p.vop("v_add_u32", V_DX + 1, f"{9216}", b)
    p.vop("v_add_u32", V_DX + 2, f"{2 * 9216}", V_DX)
    p.vop("v_add_u32", V_DX + 3, f"{3 * 9216}", b)
    p.vop("v_lshrrev_b32", d, "2", R8)
    p.vop("v_lshlrev_b32", cv, "1", d)
    p.vop("v_xor_b32", cv, cv, PI)
    p.vop("v_and_b32", b, "3", R8)
    p.vop("v_lshl_add_u32", b, d, "3", b)
    p.vop("v_lshl_add_u32", b, U, "5", b)
    p.vop("v_lshlrev_b32", d, "6", VV)
    p.vop("v_lshl_add_u32", b, b, "13", d)
    p.vop("v_lshl_add_u32", d, U, "7", d)
    p.vop("v_lshl_add_u32", V_DW, cv, "4", b)
    for j in range(1, 4): p.vop("v_add_u32", V_DW + j, f"{(16 * (j & 1) + 4 * (j >> 1)) * 8192 - 1024 * j}", V_DW)
    p.vop("v_mul_u32_u24", b, "3", P)
    p.vop("v_xor_b32", b, b, PI)
    p.vop("v_lshl_add_u32", b, b, "4", a)
    p.vop("v_lshlrev_b32", a, "2", W)
    p.vop("v_sub_u32", a, P, a)
    p.vop("v_add_u32", a, "16", a)
    p.s(f"s_movk_i32 s{S_T1}, {8 * 1280}")
    p.vop("v_mul_lo_u32", a, a, f"s{S_T1}")
    p.vop("v_add_u32", a, a, b)
    p.vop("v_lshl_add_u32", V_DX + 4, U, "30", a)
    MAP = int(E("MAP", "0"))
    p.s(f"s_bfe_u32 s{S_T0}, s2, {(MAP << 16) | 3:#x}")
    p.s(f"s_lshr_b32 s{S_T2}, s2, {3 + MAP}")
    p.s(f"s_and_b32 s{S_G}, s2, {(1 << (3 - MAP)) - 1}")
    p.s(f"s_lshl_b32 s{S_G}, s{S_G}, {MAP}")
    p.s(f"s_or_b32 s{S_G}, s{S_G}, s{S_T0}")
    p.s(f"s_bfe_u32 s{S_B}, s2, {(MAP << 16) | (3 - MAP):#x}")
    p.s(f"s_lshl_b32 s{S_B}, s{S_B}, {5 - MAP}")
    p.s(f"s_or_b32 s{S_B}, s{S_B}, s{S_T2}")
    p.s(f"s_mul_i32 s{S_T0}, s{S_T0}, {int(E('PHM', str(1 << (5 - MAP))))}")
    p.s(f"s_lshl_b32 s{S_T2}, s{S_T2}, {MAP}")
    p.s(f"s_add_u32 s{S_T2}, s{S_T2}, s{S_T0}")
    if int(E("GPH", "0")):
        p.s(f"s_and_b32 s{S_T0}, s{S_G}, {int(E('GPM', '7'))}")
        p.s(f"s_mul_i32 s{S_T0}, s{S_T0}, {int(E('GPH', '0'))}")
        p.s(f"s_add_u32 s{S_T2}, s{S_T2}, s{S_T0}")
    p.s(f"s_and_b32 s{S_T2}, s{S_T2}, 31")
    p.s(f"s_lshr_b32 s{S_P}, s{S_W}, 1")
    p.s(f"s_lshl_b32 s{S_M0KV}, s{S_W}, 12")
    p.s(f"s_add_u32 s{S_M0W}, s{S_M0KV}, {WRING}")
    p.s(f"s_lshl_b32 s{S_M0X8}, s{S_P}, 10")
    p.s(f"s_add_u32 s{S_M0X8}, s{S_M0X8}, 16384")
    p.s(f"s_bitcmp1_b32 s{S_W}, 0")
    p.s(f"s_cselect_b32 s{S_M0X8}, 0x1d000, s{S_M0X8}")
    p.s(f"s_lshl_b32 s{S_T0}, s{S_G}, 2")
    p.s(f"s_add_u32 s{S_T0}, s{S_T0}, s{S_P}")
    p.s(f"s_lshl_b32 s{S_WB}, s{S_T0}, 8")
    p.s(f"s_add_u32 s{S_WB}, s{S_WB}, 512")
    p.s(f"s_xor_b32 s{S_WB+1}, s{S_WB}, 128")
    p.s(f"s_lshl_b32 s{S_T1}, s{S_B}, 5")
    p.s(f"s_add_u32 s{S_T0}, s{S_T0}, s{S_T1}")
    p.s(f"s_lshl_b32 s{S_KVN}, s{S_T0}, 17")
    p.s(f"s_mul_i32 s{S_T0}, s{S_T2}, 5")
    p.s(f"s_lshr_b32 s{S_T0}, s{S_T0}, 4")
    if not int(E("ROT", "1")): p.s(f"s_mov_b32 s{S_T0}, 0")
    p.s(f"s_lshl_b32 s{S_XOFF}, s{S_T0}, 7")
    p.s(f"s_lshl_b32 s{S_WOFF}, s{S_T0}, 19")
    p.s(f"s_mul_i32 s{S_XB}, s{S_B}, {144 * 1280}")
    p.s(f"s_mul_i32 s{S_T0}, s{S_W}, {32 * 1280}")
    p.s(f"s_add_u32 s{S_XB}, s{S_XB}, s{S_T0}")
    def srd(r, src, size):
        p.s(f"s_mov_b32 s{r+2}, {size:#x}")
        p.s(f"s_mov_b32 s{r+3}, 0x20000")
    def srd2(r, src):
        p.s(f"s_mov_b32 s{r}, s{src}")
        p.s(f"s_and_b32 s{r+1}, s{src+1}, 0xffff")
    SR = ((SRD_X, 84, 32 * 144 * 640 * 2), (SRD_W, 90, 640 * 4096 * 2), (SRD_K, 86, 1 << 27), (SRD_V, 88, 1 << 27),
          (SRD_WO, 92, 4096 * 640 * 2), (SRD_OUT, 94, 32 * 144 * 640 * 2), (SRD_DBG, 96, 256), (SRD_WS, 98, (1 << 28) if PROF else WSBYTES))
    for x in SR: srd(*x)
    if PROF: p.s("s_memrealtime s[66:67]") if 0 else None
    p.s("s_waitcnt lgkmcnt(0)")
    if PROF: p.s("s_memrealtime s[4:5]")
    for x in SR[:2]: srd2(*x[:2])
    for ops in (x_ops(0), w_ops(0), w_ops(1)):
        for f, _ in ops: f(p)
    for x in SR[2:]: srd2(*x[:2])
    stamp(p, 0)
    if PROF:
        p.raw("v_writelane_b32 v0, s100, 3")
        p.raw("v_writelane_b32 v0, s4, 4")
    p.vop("v_lshlrev_b32", V_LIN, "4", L)
    code_addr(p, name, L)
    code_touch(p)
    p.vop("v_lshl_add_u32", b, R8, "8", d)
    p.vop("v_lshl_add_u32", V_DV, cv, "4", b)
    for j in range(1, 4): p.vop("v_add_u32", V_DV + j, f"{1024 * j}", V_DV)
    if E("LINT", "") == "1":
        for j in range(4): p.vop("v_lshl_add_u32", V_DV + j, U, "12", V_LIN)
    if E("LINT", "") == "2":
        p.vop("v_lshl_add_u32", V_DV, U, "10", V_LIN)
        for j in range(1, 4): p.vop("v_add_u32", V_DV + j, f"{1024 * j}", V_DV)
    p.s(f"s_lshl_b32 s{S_T0}, s2, 1")
    p.s(f"s_add_u32 s{S_T0}, s{S_T0}, s{S_P}")
    p.s(f"s_mul_i32 s{S_T0}, s{S_T0}, {int(E('KROT', '5'))}")
    p.s(f"s_lshr_b32 s{S_T1}, s2, 3")
    p.s(f"s_add_u32 s{S_T0}, s{S_T0}, s{S_T1}")
    p.s(f"s_and_b32 s{S_T0}, s{S_T0}, {15 if int(E('KROT', '5')) else 0}")
    p.s(f"s_lshl_b32 s{S_KOFF}, s{S_T0}, 13")
    p.s(f"s_mov_b32 s{S_M0KVP}, s{S_M0KV}")
    p.s(f"s_mov_b32 s{S_M0KVP+1}, s{S_M0W}")
    p.s(f"s_mov_b32 s{S_KVP}, s{S_KVN}")
    p.s(f"s_mov_b32 s{S_EM}, 0")
    p.s(f"s_movk_i32 s{S_ED}, 2048")
    p.s(f"s_mov_b32 s{S_TAB}, 0x83210549")
    srd(SRD_E, 0, 1 << 27)
    p.s(f"s_and_b32 s{S_U}, s{S_W}, 1")
    p.s(f"s_lshl_b32 s{S_T0}, s{S_B}, 2")
    p.s(f"s_lshr_b32 s{S_T1}, s{S_G}, 1")
    p.s(f"s_add_u32 s{S_T0}, s{S_T0}, s{S_T1}")
    p.s(f"s_and_b32 s{S_T1}, s{S_G}, 1")
    p.s(f"s_lshl_b32 s{S_WFP}, s{S_P}, 7")
    p.s(f"s_add_u32 s{S_WFP}, s{S_WFP}, s{S_T0}")
    p.s(f"s_lshl1_add_u32 s{S_WFP}, s{S_WFP}, s{S_T1}")
    p.s(f"s_lshl1_add_u32 s{S_WFP}, s{S_WFP}, s{S_U}")
    p.s(f"s_lshl3_add_u32 s{S_WFP}, s{S_WFP}, {WFLG}")
    p.s(f"s_mul_i32 s{S_T0}, s{S_T0}, 40960")
    p.s(f"s_mul_i32 s{S_PT}, s{S_T1}, 20480")
    p.s(f"s_add_u32 s{S_PT}, s{S_PT}, s{S_T0}")
    p.s(f"s_lshl_b32 s{S_EW}, s{S_W}, 10")
    p.s(f"s_add_u32 s{S_PT}, s{S_PT}, s{S_EW}")
    p.s(f"s_add_u32 s{S_EW}, s{S_EW}, {STG}")
    p.s(f"s_mul_i32 s{S_T1}, s{S_T1}, 640")
    p.s(f"s_add_u32 s{S_WT}, s{S_T1}, s{S_T0}")
    p.s(f"s_mul_i32 s{S_T1}, s{S_W}, {8 * 1280}")
    p.s(f"s_add_u32 s{S_WT}, s{S_WT}, s{S_T1}")
    p.s(f"s_mov_b32 s{S_WEND}, {0x7c | ((0xfff << (15 + PFS)) & 0x7fff0000):#x}")
    if PFN:
        p.s(f"s_lshl_b32 s94, s{S_W}, 10")
        p.s(f"s_add_u32 s94, s94, {XRING + XSL}")
        p.s(f"s_sub_u32 s{S_PFO}, s{S_KOFF}, {8192 * PFN // 2 * (PFS - 1) + 65536 * (int(E('PFD', '0')) == 1)}")
        if int(E("PFD", "0")) == 2:
            p.s(f"s_add_u32 s{S_T0}, s{S_B}, s{S_G}")
            p.s(f"s_add_u32 s{S_T0}, s{S_T0}, s{S_P}")
            p.s(f"s_and_b32 s{S_T0}, s{S_T0}, 3")
            p.s(f"s_lshl_b32 s{S_T0}, s{S_T0}, 11")
            p.s(f"s_add_u32 s{S_PFO}, s{S_PFO}, s{S_T0}")
        p.s(f"s_mov_b32 s{S_PFB}, " + (f"s{S_KVP}" if PFS == 1 else f"{OOB:#x}"))
    if int(E("TOUCH", "0")):
        p.add(Ins(f"buffer_load_dword v{V_T+4}, off, s[{SRD_K}:{SRD_K+3}], s{S_KVN} nt", "vml", [], [V_T + 4], tag="touch"))
        p.add(Ins(f"buffer_load_dword v{V_T+5}, off, s[{SRD_V}:{SRD_V+3}], s{S_KVN} nt", "vml", [], [V_T + 5], tag="touch"))
        p.add(Ins(f"buffer_load_dword v{V_T+7}, off, s[{SRD_WS}:{SRD_WS+3}], s{S_PT} sc1", "vml", [], [V_T + 7], tag="touch"))
        if int(E("TOUCHO", "1")): p.add(Ins(f"buffer_load_dword v{V_T+6}, off, s[{SRD_WO}:{SRD_WO+3}], s{S_WT}", "vml", [], [V_T + 6], tag="touch"))
    p.s(f"s_sub_u32 s{S_WT}, s{S_WT}, 256")
    FWARM = int(E("FWARM", "3"))
    if FWARM & 1:
        p.s(f"s_lshl2_add_u32 s{S_T0}, s{S_B}, s{S_W}")
        p.s(f"s_mul_i32 s{S_T0}, s{S_T0}, {4 * FS}")
        p.s(f"s_lshl_b32 s{S_T1}, s{S_G}, {FG}")
        p.s(f"s_add_u32 s{S_T0}, s{S_T0}, s{S_T1}")
        p.s(f"s_add_u32 s{S_T2}, s{S_T0}, {PFLG}")
        p.vop("v_mul_u32_u24", 4, f"{FS}", PI)
        if not FWL: p.add(Ins(f"buffer_load_dword v{V_JUNK}, off, s[{SRD_WS}:{SRD_WS+3}], s{S_T2} sc1", "vm", [], [], tag="touch"))
    if FWARM & 4:
        p.s(f"s_lshl2_add_u32 s{S_T0}, s{S_B}, s{S_W}")
        p.s(f"s_mul_i32 s{S_T1}, s{S_T0}, {PARTB // 4}")
        p.s(f"s_add_u32 s{S_T1}, s{S_T1}, {PART}")
        p.add(Ins(f"buffer_load_dword v{V_JUNK}, off, s[{SRD_WS}:{SRD_WS+3}], s{S_T1} sc1 nt", "vm", [], [], tag="touch"))
        p.s(f"s_mul_i32 s{S_T1}, s{S_T0}, {36 * 1280}")
        p.add(Ins(f"buffer_load_dword v{V_JUNK}, off, s[{SRD_OUT}:{SRD_OUT+3}], s{S_T1} sc1 nt", "vm", [], [], tag="touch"))
    if FWARM & 8:
        p.vop("v_mul_u32_u24", V_T + 3, f"{PARTB // 64}", L)
        p.s(f"s_mul_i32 s{S_T1}, s{S_B}, {PARTB}")
        p.s(f"s_add_u32 s{S_T1}, s{S_T1}, {PART}")
        p.s(f"s_cmp_eq_u32 s{S_W}, 0")
        p.s(f"s_cselect_b32 s{S_T1}, s{S_T1}, {OOB:#x}")
        p.add(Ins(f"buffer_load_dword v{V_JUNK}, v{V_T+3}, s[{SRD_WS}:{SRD_WS+3}], s{S_T1} offen sc1 nt", "vm", [V_T + 3], [], tag="touch"))
    if FWARM & 2 and not FWL: p.add(Ins(f"buffer_load_dword v{V_JUNK}, off, s[{SRD_WS}:{SRD_WS+3}], s{S_WFP} sc1", "vm", [], [], tag="touch"))
    p.s(f"s_or_b32 s{S_T0}, s2, s{S_W}")
    p.s(f"s_cmp_lg_u32 s{S_T0}, 0")
    p.s(f"s_cbranch_scc1 {name}_nononce")
    p.s(f"s_memrealtime s[{S_NON}:{S_NON+1}]")
    p.s("s_waitcnt lgkmcnt(0)")
    p.s(f"s_or_b32 s{S_NON+1}, s{S_NON+1}, 0x80000000")
    p.raw(f"v_mov_b32 v{V_T}, s{S_NON}")
    p.raw(f"v_mov_b32 v{V_T+1}, s{S_NON+1}")
    p.s("s_mov_b64 exec, 1")
    p.raw(f"buffer_store_dwordx2 v[{V_T}:{V_T+1}], v{V_LIN}, s[{SRD_DBG}:{SRD_DBG+3}], 0 offen sc1")
    p.s("s_mov_b64 exec, -1")
    p.label(f"{name}_nononce")
    p.s(f"s_mov_b32 s{S_SPIN}, 0x40000")
    p.s(f"s_mov_b32 s{S_PH}, 0")
    if QT:
        p.s(f"s_add_u32 s{S_T0}, s{S_B}, s{S_G}")
        p.s(f"s_and_b32 s{S_T0}, s{S_T0}, {QT[1]}")
        p.s(f"s_add_u32 s{S_T0}, s{S_T0}, {QT[0]}")
        p.s(f"s_lshl_b32 s{S_TI}, 1, s{S_T0}")
    if PROF in (2, 3): p.s("s_mov_b32 s93, 32")
    p.s(f"s_mov_b64 s[{S_BAD}:{S_BAD+1}], 0")
    p.s(f"s_mov_b32 s{S_CS}, {f2u(CSCALE):#x}")
    p.s(f"s_mov_b32 s{S_CS+1}, s{S_CS}")
    p.s(f"s_mov_b32 s{S_LO}, {f2u(2.0 ** -24):#x}")
    p.s(f"s_mov_b32 s{S_HI}, {f2u(2.0 ** 16):#x}")
    p.vop("v_and_b32", M, "15", L)
    p.vop("v_lshrrev_b32", G, "4", L)
    p.vop("v_lshrrev_b32", a, "3", M)
    p.vop("v_mul_u32_u24", c, "3", a)
    p.vop("v_xor_b32", c, c, G)
    p.vop("v_and_b32", b, "7", M)
    p.vop("v_lshlrev_b32", b, "6", b)
    p.vop("v_lshl_add_u32", b, c, "4", b)
    p.vop("v_lshl_add_u32", b, a, "10", b)
    p.vop("v_add_u32", V_AX8, f"{XRING}", b)
    p.vop("v_lshl_add_u32", V_AX, U, "13", V_AX8)
    p.vop("v_add_u32", V_AW + 5, f"{XALT}", b)
    p.vop("v_lshl_add_u32", V_AW + 4, U, "13", V_AW + 5)
    p.vop("v_and_b32", c, "0x1ff", V_LIN)
    p.vop("v_lshl_add_u32", c, VV, "10", c)
    p.vop("v_lshl_add_u32", c, P, "9", c)
    p.vop("v_lshl_add_u32", c, U, "3", c)
    p.vop("v_add_u32", V_WR, f"{STG + 4096}", c)
    p.vop("v_and_b32", b, "0xffffffcf", b)
    p.vop("v_bfe_u32", a, M, "2", "1")
    p.vop("v_lshlrev_b32", a, "1", a)
    p.vop("v_xor_b32", a, a, G)
    p.vop("v_lshl_add_u32", b, a, "4", b)
    p.vop("v_lshl_add_u32", V_AK, P, "13", b)
    p.vop("v_lshrrev_b32", a, "1", G)
    p.vop("v_lshlrev_b32", b, "10", a)
    p.vop("v_lshl_add_u32", b, R8, "6", b)
    p.vop("v_and_b32", c, "1", L)
    p.vop("v_lshl_add_u32", b, c, "3", b)
    p.vop("v_bfe_u32", c, L, "1", "1")
    p.vop("v_lshl_add_u32", b, c, "4", b)
    p.vop("v_and_b32", c, "1", G)
    p.vop("v_lshl_add_u32", b, c, "5", b)
    p.vop("v_lshl_add_u32", V_AV0, P, "13", b)
    p.vop("v_xor_b32", V_AV1, "32", V_AV0)
    p.vop("v_lshl_add_u32", a, U, "9", V_AV0)
    p.vop("v_xor_b32", b, "32", a)
    p.vop("v_xor_b32", c, "512", a)
    p.vop("v_xor_b32", d, "512", b)
    for i, r in enumerate((a, b, c, d)): p.vop("v_add_u32", V_AW + i, f"{WRING}", r)
    for n in range(4):
        for r in range(4): p.vop("v_mov_b32", QA(0, n, 7) + r, "0")
    for ops in (w_ops(2), x_ops(1), w_ops(3))[:3 - PRO]:
        for f, _ in ops: f(p)
    stamp(p, 23)
    return p

def R128(d, a, off): return lambda p: p.ds_read128(d, a, off)
def TR(d, a, off): return lambda p: p.ds_tr(d, a, off)

class Pool:
    def __init__(self, sc, base, n):
        self.sc = sc; self.regs = base if isinstance(base, list) else [base + 4 * k for k in range(n)]; n = len(self.regs); self.n = n; self.last = [None] * n; self.i = 0; self.frags = []
    def frag(self, tile, mk_reads, consumers, as_b=False):
        k = self.i % self.n; self.i += 1
        r = self.regs[k]
        war = self.last[k]
        for (d, o, c, tag) in consumers:
            if as_b: self.sc.mfma(d, o, r, c, tag)
            else: self.sc.mfma(d, r, o, c, tag)
        self.last[k] = consumers[-1][3]
        self.frags.append((tile, mk_reads(r), consumers[0][3], war))

LEAD = int(E("LEAD", "9"))
LEADB = int(E("LEADB", "8"))
BGAP = int(E("BGAP", "4"))

def sstamp(p):
    p.s(f"s_memrealtime s[{S_TM}:{S_TM+1}]")
    p.s(f"s_memtime s[{S_TM+2}:{S_TM+3}]")
    p.wait_lgkm0()
    p.s("s_mov_b32 s99, m0")
    p.s("s_mov_b32 m0, s93")
    p.s("s_add_u32 s93, s93, 1")
    p.raw(f"v_writelane_b32 v0, s{S_TM}, m0")
    p.raw(f"v_writelane_b32 v255, s{S_TM+2}, m0")
    p.s("s_mov_b32 m0, s99")

QT = [int(x) for x in E("QT", "").split(",") if x]
def qmod(name):
    p = Prog()
    KVS = [-1] * 4 + [int(x) for x in E("KVS", "37,0,0,36" if W39 else "37,0,0,0").split(",")]
    WSH = int(E("WSH", "38"))
    sc = Sched(p, budget=int(E("QBUD", "8")), late_extra=8)
    sc.group["dma"] = "vm"; sc.pace["vm"] = int(E("QPACE", "4"))
    sc.maxds = int(E("QMAXDS", "1"))
    pool = Pool(sc, A_QP, NPOOL)
    XS2 = lambda i, kh, n: (A_Q + 40 if i & 1 else V_S) + (kh * 5 + n) * 4
    for h in range(40):
        r = 1 - ((h >> 1) & 1); mh = h & 1
        for k in range(4):
            ns = list(range(5 if k < 2 else 4))
            if k % 2 == 0: ns.reverse()
            qa = lambda n: QA(r, n, 4 * mh + k if n < 4 else 2 * mh + k)
            for kh in range(2):
                off = (h % 4) * 16384 + kh * 4096
                cons = [(qa(n), XS2(h // 4, kh, n), qa(n) if (4 * h + k >= 15 or kh != (j & 1)) else None, ("Q", h, k, j, kh)) for j, n in enumerate(ns)]
                pool.frag(h, lambda rg: [TR(rg, V_AW + k, off), TR(rg + 2, V_AW + k, off + 2048)], cons)
            k0 = len(sc.m) - 2 * len(ns)
            sc.m[k0:] = sorted(sc.m[k0:], key=lambda x: (x[4][3], x[4][4] ^ (x[4][3] & 1)))
            for i in range(k0, len(sc.m)): sc.idx[sc.m[i][4]] = i
    mt = lambda i: sc.m[max(0, min(i, len(sc.m) - 1))][4]
    def xreads(i):
        return [R128(XS2(i, kh, n), (V_AX if i else V_AW + 4) + (n >> 2), (n if n < 4 else 8) * 2048 + kh * 512) for n in (4, 3, 2, 1, 0) for kh in range(2)]
    for fi, (h, reads, cons, war) in enumerate(pool.frags):
        c0 = 36 * h
        tau = c0 - LEADB
        taun = c0 + 36 - LEADB
        if fi % 8 == 0:
            def bar(p, h=h):
                p.comment(f"---- q step {h}")
                tags = [("W", h)]
                if h == 0: tags.append(("X", 0))
                if h % 4 == 3 and h < 39: tags.append(("X", (h + 1) // 4))
                if h % 4 == EKP[3] and 4 <= h < 36: tags.append(("WOP", h // 4 - 1))
                if QT and h % 4 in QT[3:] and h >= 1:
                    p.s(f"s_lshr_b32 s{S_TI}, s{S_TI}, 1")
                    p.s("s_cbranch_scc0 1")
                    p.raw(f"s_waitcnt vmcnt({QT[2]})")
                p.wait_vm(tags, lgkm0=True)
                if "b" not in ABL or h < 4: p.barrier()
                if h == 39 and W39:
                    for i in range(4): p.vop("v_add_u32", V_AW + i, "16384", V_AW + i)
                if PROF == 2 and h % 2 == 0: sstamp(p)
                if int(E("QSL", "0")) and (h < 3 or int(E("QSA", "0"))): p.raw(f"s_nop {int(E('QSL', '0'))}")
            ops = []
            if h % 4 == 0 and 4 <= h < 36: ops += x_ops(h // 4 + 1)
            if 1 <= h < 37: ops += w_ops(h + 3)
            if h == 0 and PRO: ops += sum([w_ops(2), x_ops(1), w_ops(3)][3 - PRO:], [])
            if int(E("XW", "0")) and h % 4 == 0 and 4 <= h < 36: ops = xw_ops(h // 4 + 1, h + 3)
            if "d" in ABL: ops = []
            nb = len(ops)
            if h < 36: ops = ek_ops(h) + ops if (str(h % 4) in E("EKF", "")) else ops + ek_ops(h)
            nb = len(ops) - nb
            if h % 4 == EKP[3] and 4 <= h < 36:
                for r in range(15, -1, -1): sc.fill("rw", lambda p, r=r: p.amov(A_Q + 4 + r, A_Q + r), 4, after=dict(tag=("BAR", h), delay=14))
                for i in range(2): sc.fill("rw", TR(A_Q + 2 * i, V_WR, i * 2048), 4, ds=True, before=mt(taun - BGAP), lead=2)
                sc.fill("rw", lambda p: p.vop("v_xor_b32", V_WR, "4096", V_WR), 4, before=mt(taun - 1))
            for k, x in enumerate(KVS):
                if x == h and h: ops += kv_ops(32 + k)
            if h == WSH and "S" not in ABL: ops += [(wst, 20)]
            sc.fill("rd", bar, 8, before=mt(tau), early=0 if h else None, tag=("BAR", h))
            QD = int(E("QD", "14")) - 4 * nb * int(E("QDE", "1")) if (len(ops) - nb <= 4 and h) else int(E("QD2", "0"))
            fill_dma(sc, ops, dict(tag=("BAR", h), delay=QD), mt(taun - 1), tag="WST" if h == WSH else None)
            if h == 0:
                for k, fn in enumerate(xreads(0)): sc.fill("rx", fn, 4, ds=True, after=("BAR", 0), before=mt(max(0, k - 5)))
            if h % 4 == 3 and h < 39:
                for j, fn in enumerate(xreads((h + 1) // 4)): sc.fill("rx", fn, 4, ds=True, after=("BAR", h), before=mt(taun - BGAP), lead=2 * (10 - j))
        for k, fn in enumerate(reads):
            if "r" in ABL and h >= 2: continue
            bf = cons
            if sc.idx[cons] > taun - BGAP: bf = mt(taun - BGAP)
            sc.fill("rd", fn, 4, ds=True, after=war if k == 0 else None, before=bf, lead=LEAD if bf is cons else 0, early=int(E("QEARLY", "99")))
    def lastbar(p):
        p.comment("---- q step 40")
        p.wait_lgkm0(); p.barrier()
        p.add(Ins(f"buffer_load_dwordx2 v[{V_NV}:{V_NV+1}], off, s[{SRD_DBG}:{SRD_DBG+3}], 0 sc1", "vml", [], [V_NV, V_NV + 1], tag="non"))
    sc.fill("rd", lastbar, 8, before=mt(36 * 40 - LEADB), early=0)
    def eaddr(p):
        p.v(f"v_lshl_add_u32 v{V_E0}, s{S_W}, 12, v{V_LIN}", [V_E0], [V_LIN])
        p.vop("v_add_u32", V_E0, f"{XRING}", V_E0)
        p.vop("v_xor_b32", V_E1, "4096", V_E0)
        p.vop("v_and_b32", V_E2, "0xfffffcf0", V_E0)
        p.vop("v_bfe_u32", V_T, V_LIN, "9", "1")
        p.vop("v_lshl_add_u32", V_E2, V_T, "8", V_E2)
        p.vop("v_bfe_u32", V_T, V_LIN, "8", "1")
        p.vop("v_lshl_add_u32", V_E2, V_T, "3", V_E2)
    z = Prog(); eaddr(z)
    for x in z.ins: sc.fill("fa", lambda p, x=x: p.add(x), 4, after=("BAR", 36))
    NH1, NH0 = [int(x) for x in E("NH", "10,3").split(",")]
    hid = [(1, n, t) for t in range(4) for n in range(4)][:NH1] + [(0, n, t) for t in range(2) for n in range(3)][:NH0]
    for k, (r, n, t) in enumerate(hid):
        done = dict(tag=mt(36 * (38 - 2 * r + (t >> 1)) + (20 if t % 2 == 0 else 36) - 1), delay=2)
        s0 = V_S + 8 * (k % 4) if r else QA(0, n, 2 * t)
        if r:
            for x in range(8): sc.fill("fa", lambda p, s0=s0, x=x, n=n, t=t: p.ar(s0 + x, QA(1, n, 2 * t + (x >> 2)) + (x & 3)), 4, after=[done] + ([("FP", k - 3)] if k >= 4 else []), tag=("FA", k) if x == 7 else None)
        def clump(p, k=k, s0=s0, prev=None if k == 0 else sprev):
            if k: p.ds_write2(V_E2, prev, 16384 + ((k - 1) % 4) * 1024)
            for x in range(0, 8, 2): p.pkmul(s0 + x, s0 + x, f"s[{S_CS}:{S_CS+1}]")
        sc.fill("fp", clump, 8, solo=True, after=[("FA", k) if r else done] + ([("FC", k - 1)] if k else []) + ([("FR", k - 5)] if k >= 5 else []), tag=("FP", k), before=mt(1439), lead=400)
        for x in range(4): sc.fill("fc", lambda p, s0=s0, x=x: p.cvtpk(s0 + x, s0 + 2 * x, s0 + 2 * x + 1), 4, after=("FP", k), tag=("FC", k) if x == 3 else None, before=mt(1439), lead=1)
        sc.fill("fr", R128(Qf(n, t, A_QN if r else A_Q), V_E0, 16384 + (k % 4) * 1024), 4, ds=True, after=[("FP", k + 1)] + ([] if r else ["WST"]), tag=("FR", k), before=mt(1439), lead=2)
        sprev = s0
    if hid: sc.fill("fp", lambda p: p.ds_write2(V_E2, sprev, 16384 + ((len(hid) - 1) % 4) * 1024), 8, solo=True, after=[("FC", len(hid) - 1)] + ([("FR", len(hid) - 5)] if len(hid) >= 5 else []), tag=("FP", len(hid)), before=mt(1439), lead=400)
    sc.run()
    stamp(p, 1)
    fstart = len(p.ins)
    TB = V_O + 144
    cnt = [0]
    def fin(r, n, t, i):
        s0 = QA(r, n, 2 * t)
        if r:
            tb = TB + 8 * (cnt[0] & 1); cnt[0] += 1
            for x in range(8): p.ar(tb + x, QA(r, n, 2 * t + (x >> 2)) + (x & 3))
            s0 = tb
        dst = V_S + 4 * i
        for x in range(0, 8, 2): p.pkmul(s0 + x, s0 + x, f"s[{S_CS}:{S_CS+1}]")
        for x in range(4): p.cvtpk(dst + x, s0 + 2 * x, s0 + 2 * x + 1)
        return dst
    for r in range(2):
        for t in range(2): p.ds_write2(V_E2, fin(r, 4, t, 2 * r + t), (2 * r + t) * 1024)
    left = [(r, n, t) for r in (1, 0) for n in range(4) for t in range(4) if (r, n, t) not in hid]
    FL = [int(x) for x in E("FLD", "02")]
    for g0 in range(0, len(left), 4):
        ds = {}; rd = []
        for j, (r, n, t) in enumerate(left[g0:g0 + 4]):
            d = fin(r, n, t, 4 + (g0 & 4) + j); q = Qf(n, t, A_QN if r else A_Q)
            if j in FL: p.ds_write2(V_E2, d, 16384 + j * 1024); rd.append((q, j))
            else: ds[q] = d
        for f in (p.swap32, p.swap16):
            for d in ds.values(): f(d, d + 2); f(d + 1, d + 3)
        for q, j in rd: p.ds_read128(q, V_E0, 16384 + j * 1024)
        for q, d in ds.items():
            for x in range(4): p.aw(q + x, d + x)
        if g0 == 4:
            p.raw(f"s_waitcnt lgkmcnt({2 * len(FL)})"); p.barrier()
            for r in range(2):
                for t in range(2): p.ds_read128(Qf(4, 2 * t, A_QN if r else A_Q), V_E0, (2 * r + t) * 1024)
                for t in range(2): p.ds_read128(Qf(4, 2 * t + 1, A_QN if r else A_Q), V_E1, (2 * r + t) * 1024)
    p.vop("v_mov_b32", V_T, "0x3f803f80")
    for r in range(4): p.aw(A_ONE + r, V_T)
    sprinkle([(p, fstart)], sum([kv_ops(32 + k) for k in range(4, 8 - T7) if KVS[k] == 0], []), 0.0, float(E("QSH", "1.0")))
    stamp(p, 26)
    get_nonce(p, f"{name}_n1", V_T)
    stamp(p, 27)
    p.wait_vm("wst")
    stamp(p, 28)
    publish(p, f"s{S_WFP}", 0, V_T)
    stamp(p, 29)
    z = p
    z.s(f"s_lshl_b32 s{S_PF}, s{S_U}, 12")
    z.s(f"s_lshl_b32 s{S_T1}, s{S_G}, 9")
    z.s(f"s_add_u32 s{S_PF}, s{S_PF}, s{S_T1}")
    z.s(f"s_add_u32 s{S_PF}, s{S_PF}, {WFLG}")
    z.vop("v_lshrrev_b32", V_AX, "1", V_LIN)
    for n in range(5): z.vop("v_mov_b32", V_DA + n, f"{DROP:#x}")
    ti_init(z, 0)
    stamp(z, 2)
    return p

def a_mfmas(sc, pool, qh):
    AV = (V_AV0, V_AV1)
    has8 = lambda u: (u & 1) == qh
    for pos, (kind, u) in enumerate(KVSEQ):
        sb = (pos % 4) * 16384
        ns = [0, 1, 2, 3] + ([4] if has8(u) else [])
        if kind == "K":
            for kt in range(2):
                for ks in range(4):
                    off = sb + kt * 2048 + (ks >> 1) * 4096 + ((ks & 1) ^ qh) * 512
                    cons = []
                    for n in ns:
                        d = XS(u & 1, n) if kt == 0 else YS(n)
                        cons.append((d, Qf(n, ks), d if ks else None, ("S", u, kt, ks, n)))
                    pool.frag(pos, lambda r: [R128(r, V_AK, off)], cons)
                SCH = int(E("SCH", "4"))
                k0 = len(sc.m) - 4 * len(ns)
                sc.m[k0:] = sorted(sc.m[k0:], key=lambda x: (x[4][3] // SCH, x[4][4], x[4][3]))
                for k in range(k0, len(sc.m)): sc.idx[sc.m[k][4]] = k
        else:
            first = lambda n: u == 0 if n < 4 else u == qh
            for n in ns: sc.mfma(La(n), A_ONE, XS(u & 1, n), None if first(n) else La(n), ("L", u, n))
            for m in range(8):
                e, mp = m & 1, m >> 1
                off = sb + (mp >> 1) * 4096 + (mp & 1) * 512
                oa = lambda n: Oa(n, m if n < 4 else m ^ (4 * qh))
                cons = [(oa(n), XS(u & 1, n), None if first(n) else oa(n), ("PV", u, m, n)) for n in ns]
                if int(E("SNK", "1")) and m % 2 == 0: cons.reverse()
                pool.frag(pos, lambda r: [TR(r, AV[e], off), TR(r + 2, AV[e], off + 2048)], cons)

def a_taus():
    cs = []
    for qh in range(2):
        sc = Sched(Prog()); pool = Pool(sc, A_POOL, NPOOL); a_mfmas(sc, pool, qh)
        c = {}
        for (pos, _, cons, _) in pool.frags: c.setdefault(pos, sc.idx[cons])
        c[32] = len(sc.m) + LEADB - 3
        cs.append(c)
    return [min(cs[0][j], cs[1][j]) - LEADB for j in range(33)]

def aentry(name):
    p = Prog()
    p.label(f"{name}_A")
    p.s(f"s_mov_b32 s{S_KB}, s{S_KVN}")
    p.s(f"s_mov_b32 s{SRD_C+2}, 0x8000000")
    p.s(f"s_add_u32 s{S_KVN}, s{S_KVN}, {2 << 17}")
    p.s(f"s_cmp_eq_u32 s{S_PH}, 0")
    p.s(f"s_cselect_b32 s{S_M0KVP}, s{S_M0KV}, {DROP:#x}")
    p.s(f"s_cselect_b32 s{S_M0KVP+1}, s{S_M0W}, {DROP:#x}")
    p.s(f"s_cselect_b32 s{S_KVP}, s{S_KVN}, {OOB:#x}")
    p.s(f"s_cselect_b32 s{S_WT2}, {OOB:#x}, s{S_WT}")
    p.s(f"s_cmp_eq_u32 s{S_U}, 1")
    p.s(f"s_cbranch_scc1 {name}_A1")
    return p

def tile_addr(p, base, dst):
    p.s(f"s_cmp_lt_u32 s{S_G}, 5")
    p.s(f"s_cselect_b32 s{S_T0}, 1, 0")
    p.s(f"s_xor_b32 s{S_T0}, s{S_T0}, s{S_U}")
    p.v(f"v_lshl_add_u32 v{dst}, s{S_T0}, 12, v{base}", [dst], [base])
    for n in range(1, 4): p.vop("v_add_u32", dst + n, f"{1024 * n}", dst)

S_TI = 96
TI = [[tuple(int(x) for x in y.split("+")) for y in z.split(",")] for z in E("TI", "0+0,3+15;0+0,2+3").split(";")]
def ti_init(p, r):
    for k, (b, sp) in enumerate(TI[r]):
        if b < 0 or TI[0][k] == (0, 0): continue
        p.s(f"s_add_u32 s{S_T0}, s{S_B}, " + (f"s{S_G}" if int(E("TIG", "1")) else "0"))
        p.s(f"s_and_b32 s{S_T0}, s{S_T0}, {sp}" if sp >= 0 else f"s_andn2_b32 s{S_T0}, {-sp}, s{S_T0}")
        p.s(f"s_add_u32 s{S_T0}, s{S_T0}, {b}")
        p.s(f"s_lshl_b32 s{S_TI + k}, 1, s{S_T0}")
WLP = [int(x) for x in E("WLP", "0,0,0,1,1,1,2,2,2,3,3,3").split(",")]
def avm(pos):
    if pos >= 30: return None
    pat = [int(x) for x in E("AVM", "3,4").split(",")]
    h = [int(x) for x in E("AVMH", "").split(",") if x]
    if pos < len(h): return h[pos]
    return pat[pos % len(pat)] + WLP.count(pos - 1) * int(E("WLC", "1"))
RQ = [int(x) for x in E("RQH", "3,3,3,3" if T7 else "0,3,3,2").split(",")] + [int(x) for k in "123" for x in E("RQ" + k, "43434343")] + [int(x) for x in E("RQT", "4,4,4,4").split(",")]
STREAM = sum([kv_ops(k) for k in range(8 - T7, 40 - T7)], [])
for s_ in range(32): assert sum(RQ[:s_ + 1]) <= 4 * (s_ + T7)
def amod(name, qh):
    p = Prog()
    p.label(f"{name}_A{qh}")
    sc = Sched(p, budget=int(E("ABUD", "8")), late_extra=int(E("ALATE", "8")))
    sc.group["dma"] = "vm"; sc.pace["vm"] = int(E("APACE", "2"))
    pool = Pool(sc, A_POOL, NPOOL)
    a_mfmas(sc, pool, qh)
    tau = a_taus()
    mt = lambda i: sc.m[max(0, min(i, len(sc.m) - 1))][4]
    def add_bar(pos):
        def bar(p, pos=pos):
            p.comment(f"---- a step {pos}")
            if TI[0][pos % 2] != (0, 0) and pos < 30:
                p.s(f"s_lshr_b32 s{S_TI + pos % 2}, s{S_TI + pos % 2}, 1")
                p.s("s_cbranch_scc0 1")
                p.raw(f"s_waitcnt vmcnt({avm(pos) - 1})")
            if pos < 32: p.wait_vm(KVSEQ[pos], lgkm0=True, cap=avm(pos))
            else: p.wait_lgkm0()
            p.barrier()
            if pos % 4 == 0 and pos:
                for r in (V_AV0, V_AV1, V_AK): p.vop("v_xor_b32", r, "0x10000", r)
            if PROF == 3 and pos % 2 == 0 and pos < 32: sstamp(p)
        sc.fill("rd", bar, 8, before=mt(tau[pos]), early=0 if pos else None, tag=("BAR", pos))
        if pos < 32:
            ops = STREAM[sum(RQ[:pos]):sum(RQ[:pos + 1])]
            aft = ("BAR", pos); bf = mt(tau[pos + 1] - 1)
            span = tau[pos + 1] - max(tau[pos], 0)
            if pos in CPA: ops = [(code_touch, 8)] + ops
            if pos == WTP: ops = [(lambda p: w_touch(p, 0), 8), (lambda p: w_touch(p, 64), 8)][:WTN] + ops
            for k, op in enumerate(ops): fill_dma(sc, [op], dict(tag=aft, delay=(k * (span - 2)) // len(ops)), bf)
            for k in [k for k in range(12) if WLP[k] == pos]:
                for fn, kind, cost in split_ops([(wload(0, k, S_T2, S_WT2), 8)]):
                    sc.fill("dmp", fn, 8 if kind == "vm" else 4, after=dict(tag=aft, delay=(5 if WLP.count(pos) > 1 else 20) + 9 * (k - WLP.index(pos))), solo=(kind == "vm"), before=bf, lead=20)
            if pos == 30:
                WLS = int(E("WLS", "6"))
                last = ("S", 15, 1, 3, 4 if qh == 1 else 3)
                for k in range(12):
                    for fn, kind, cost in split_ops([(wload(0, 12 + k, S_T2, S_WT2), 8)]):
                        sc.fill("dmp", fn, 8 if kind == "vm" else 4, after=dict(tag=last, delay=2 + WLS * k), solo=(kind == "vm"), before=mt(sc.idx[last] + 12 + WLS * k), lead=9)
            if 26 <= pos < 30:
                t = pos - 26
                ws = [(V_DA + n, Qf(n, t, A_QN), t * 18432 + 1024) for n in range(4)]
                if t >> 1 == qh: ws.append((V_DA + 4, Qf(4, t & 1, A_QN), (t & 1) * 18432))
                for k, w in enumerate(ws):
                    sc.fill("dw", lambda p, w=w: p.ds_write(w[0], w[1], 4, w[2]), 8, solo=True, after=dict(tag=aft, delay=4 + k * ((span - 10) // len(ws))), before=mt(tau[pos + 1] - BGAP), lead=12)
            if pos == 31:
                for f in range(8): sc.fill("dw", R128(P0_B[f], V_LIN, IMG(f)), 4, ds=True, after=dict(tag=aft, delay=16 + 2 * f), before=mt(tau[32] - BGAP), lead=4)
    cur = None
    for (pos, reads, cons, war) in pool.frags:
        if pos != cur:
            cur = pos; add_bar(pos)
        for k, fn in enumerate(reads):
            bf = cons
            if sc.idx[cons] > tau[pos + 1] - BGAP: bf = mt(tau[pos + 1] - BGAP)
            sc.fill("rd", fn, 4, ds=True, after=war if k == 0 else None, before=bf, lead=LEAD if bf is cons else 0)
    add_bar(32)
    def V(fn, after=None, before=None, cost=4, lead=0): sc.fill("va", fn, cost, after=after, before=before, lead=lead)
    EDL = int(E("EDL", "3"))
    for u in range(16):
        ns = [0, 1, 2, 3] + ([4] if (u & 1) == qh else [])
        for kt in range(2):
            for n in ns:
                src = XS(u & 1, n) if kt == 0 else YS(n)
                dst = XS(u & 1, n) + 2 * kt
                for r in range(4):
                    V(lambda p, reg=src + r: p.exp(reg, reg), after=dict(tag=("S", u, kt, 3, n), delay=EDL), cost=8)
                bf = ("L", u, n)
                if kt == 1 and n < 4 and u < 15: bf = ("S", u + 1, 1, 0, n)
                V(lambda p, dst=dst, src=src: p.cvtpk(dst, src, src + 1))
                V(lambda p, dst=dst, src=src: p.cvtpk(dst + 1, src + 2, src + 3), before=bf, lead=2)
    sc.run()
    p.s(f"s_cmp_eq_u32 s{S_PH}, 0")
    p.s(f"s_cbranch_scc0 {name}_P0")
    if qh == 0: p.s(f"s_branch {name}_F")
    return p

RL, CHK, PX, AD, AL = V_S + 2, V_S + 12, V_S + 16, V_S + 48, V_S + 50
def f_addr(p):
    p.v(f"v_lshl_add_u32 v{AD}, s{S_W}, 12, v{V_LIN}", [AD], [V_LIN])
    p.vop("v_add_u32", AD, f"{MISC}", AD)
    p.vop("v_xor_b32", AD + 1, "4096", AD)
def f_bad(op, a, b):
    def f(p):
        p.add(Ins(f"{op} vcc, v{a}, {b}", "valu", [a], []))
        p.s(f"s_or_b64 s[{S_BAD}:{S_BAD+1}], s[{S_BAD}:{S_BAD+1}], vcc")
    return f
def f_rcp(n): return [lambda p: p.vop("v_rcp_f32", RL + 2 * n, RL + 2 * n, kind="trans"), lambda p: p.vop("v_mov_b32", RL + 2 * n + 1, RL + 2 * n)]
def f_range():
    return [lambda p: p.vop("v_max3_f32", V_S, RL, RL + 2, RL + 4), lambda p: p.vop("v_min3_f32", V_S + 1, RL, RL + 2, RL + 4),
            lambda p: p.vop("v_max3_f32", V_S, V_S, RL + 6, RL + 8), lambda p: p.vop("v_min3_f32", V_S + 1, V_S + 1, RL + 6, RL + 8),
            f_bad("v_cmp_nle_f32", V_S, f"s{S_HI}"), f_bad("v_cmp_nge_f32", V_S + 1, f"s{S_LO}")]
def f_fin(): return [lambda p: p.s(f"s_movk_i32 s{S_T2}, 0x207"), f_bad("v_cmp_class_f32", CHK, f"s{S_T2}")]
def f_norm(n, t):
    s0 = Oa(n, 2 * t)
    add = [lambda p, r=r: p.add(Ins(f"v_pk_add_f32 {vr(s0 + r, 2)}, {vr(s0 + r, 2)}, {vr(PX + 8 * t + r, 2)}", "valu", R(s0 + r, 2) | R(PX + 8 * t + r, 2), R(s0 + r, 2))) for r in range(0, 8, 2)] if n == 4 else []
    return add + [lambda p, r=r: p.pkmul(s0 + r, s0 + r, RL + 2 * n) for r in range(0, 8, 2)], [lambda p, r=r: p.cvtpk(s0 + r, s0 + 2 * r, s0 + 2 * r + 1) for r in range(4)]
def f_l8(): return [lambda p: p.vop("v_add_f32", RL + 8, RL + 8, V_S)] + f_rcp(4)
UNITS = [(n, t) for n in (0, 1, 2, 4, 3) for t in range(4 if n < 4 else 2)]
def afin(name):
    p = Prog()
    p.label(f"{name}_F")
    stamp(p, 5)
    poll_issue(p, V_AX, f"s{S_PF}", 0, V_NV)
    f_addr(p)
    for i in range(4): p.ds_write(AD + 1, Oa(4, 4 + i), 4, i * 1024)
    for i in range(2): p.vop("v_subrev_u32", AL + i, "16384", AD + i)
    p.ds_write(AL + 1, La(4), 1, 0)
    for n in range(5): p.ar(RL + 2 * n, La(n))
    for k in range(2):
        for n in range(4): f_rcp(n)[k](p)
    p.wait_lgkm0()
    for k, (n, t) in enumerate(UNITS):
        if k == 4:
            p.barrier()
            for i in range(4): p.ds_read128(PX + 4 * i, AD, i * 1024)
            p.ds_read32(V_S, AL, 0)
        if k == 11:
            for f in f_l8(): f(p)
        for f in sum(f_norm(n, t), []): f(p)
    for f in f_range(): f(p)
    p.s(f"s_mov_b32 s{S_PH}, 1")
    stamp(p, 6)
    for r in range(80):
        if r % 4 == 0 and r < 72: p.mfma(CHK, A_ONE, Oa(UNITS[r // 4][0], 2 * UNITS[r // 4][1]), CHK if r else None)
        p.amov(A_Q + r, A_QN + r)
    for n, t in UNITS:
        for r in range(4): p.aw(Qf(n, t, A_QN) + r, Oa(n, 2 * t) + r)
    for f in f_fin(): f(p)
    sprinkle([(p, 8)], STREAM[sum(RQ):], 0.0, float(E("ASH", "0.7")))
    code_touch(p)
    p.s(f"s_mul_i32 s{S_T0}, s{S_P}, 9216")
    p.vop("v_add_u32", V_DA + 4, f"s{S_T0}", V_LIN)
    tile_addr(p, V_DA + 4, V_DA)
    p.s(f"s_mul_i32 s{S_T0}, s{S_U}, 36864")
    p.vop("v_add_u32", V_DA + 4, f"s{S_T0}", V_DA + 4)
    psetup(p)
    ti_init(p, 1)
    poll_check(p, f"{name}_wpoll", V_AX, f"s{S_PF}", 0, V_NV)
    p.s(f"s_branch {name}_A")
    return p

P_R = ([A_X + 4 * i for i in range(10)] + [10, 14] + [A_Q + 4 * i for i in range(20)],
       [A_L + 4 * i for i in range(5)] + [A_POOL + 4 * i for i in range(6)] + [A_QN + 64 + 4 * i for i in range(4)] + [A_QN + 4 * i for i in range(16)] + [A_ONE])
P0_B = P_R[0][24:] + [A_QN + 4 * (i % 16) for i in range(64)]
def wload(j, i, so=None, sb=None, extra=0):
    def f(p):
        if i % 2 == 0: p.s(f"s_add_u32 s{so or S_SO}, s{sb or S_WT}, {(i >> 1) * 40960 + extra}")
        if "B" not in ABL: p.load4(P_R[j & 1][i], V_LIN, SRD_WS, f"s{so or S_SO}", (i & 1) * 1024, ("WT", j, i), "sc1")
    return f

def slow(name):
    SI, SC, SX, SWq, SKV, SD, SK = 56, 57, 58, 59, 88, 89, 90
    VW, VX, VK, VV_, VD = 28, 36, 37, 38, 39
    MX, NM, LA, QF, SS, FB, AC, RAW, FR = 40, 44, 48, 52, 68, 76, 84, 116, 180
    def ld(p, op, n, d, vo, srd, so, off):
        p.add(Ins(f"{op} {vr(d, n)}, v{vo}, s[{srd}:{srd+3}], s{so} offen offset:{off}", "vml", [vo], R(d, n), tag="sl"))
    p0 = Prog()
    p0.label(f"{name}_slow")
    p0.wait_all()
    M, G = MX, MX + 1
    p0.vop("v_bfe_u32", M, V_LIN, "4", "4")
    p0.vop("v_lshrrev_b32", G, "8", V_LIN)
    p0.vop("v_lshlrev_b32", VW, "16", G)
    p0.vop("v_lshl_add_u32", VW, M, "1", VW)
    for i in range(1, 8): p0.vop("v_add_u32", VW + i, f"{8192 * i}", VW)
    p0.s(f"s_movk_i32 s{S_T0}, 1280")
    p0.vop("v_mul_lo_u32", VX, M, f"s{S_T0}")
    p0.vop("v_lshl_add_u32", VX, G, "4", VX)
    p0.vop("v_lshlrev_b32", VK, "8", M)
    p0.vop("v_lshl_add_u32", VK, G, "3", VK)
    p0.vop("v_lshlrev_b32", VV_, "10", G)
    p0.vop("v_lshl_add_u32", VV_, M, "1", VV_)
    p0.s(f"s_mov_b32 s{SI}, 0")
    p1 = Prog()
    p1.label(f"{name}_sl_it")
    p1.s(f"s_cmp_ge_u32 s{SI}, 5")
    p1.s(f"s_cselect_b32 s{S_T0}, 2, 0")
    p1.s(f"s_cselect_b32 s{S_T1}, 5, 0")
    p1.s(f"s_cselect_b32 s{SD}, {73728}, 0")
    p1.s(f"s_sub_u32 s{S_T1}, s{SI}, s{S_T1}")
    p1.s(f"s_add_u32 s{S_T0}, s{S_T0}, s{S_P}")
    p1.s(f"s_mul_i32 s{S_T2}, s{S_P}, 9216")
    p1.s(f"s_add_u32 s{SD}, s{SD}, s{S_T2}")
    p1.s(f"s_lshl_b32 s{S_T2}, s{S_G}, 2")
    p1.s(f"s_add_u32 s{S_T0}, s{S_T0}, s{S_T2}")
    p1.s(f"s_lshl_b32 s{SWq}, s{S_T0}, 8")
    p1.s(f"s_lshl_b32 s{S_T2}, s{S_B}, 5")
    p1.s(f"s_add_u32 s{S_T0}, s{S_T0}, s{S_T2}")
    p1.s(f"s_lshl_b32 s{SKV}, s{S_T0}, 17")
    p1.s(f"s_lshl_b32 s{S_T0}, s{S_U}, 2")
    p1.s(f"s_add_u32 s{S_T0}, s{S_T0}, s{S_T1}")
    p1.s(f"s_cmp_lt_u32 s{S_G}, 5")
    p1.s(f"s_cselect_b32 s{S_T2}, 4, 0")
    p1.s(f"s_xor_b32 s{S_T2}, s{S_T2}, s{S_T0}")
    p1.s(f"s_add_u32 s{S_T2}, s{S_T2}, 1")
    p1.s(f"s_cmp_eq_u32 s{S_T1}, 4")
    p1.s(f"s_cselect_b32 s{S_T0}, 8, s{S_T0}")
    p1.s(f"s_cselect_b32 s{S_T2}, 0, s{S_T2}")
    p1.s(f"s_lshl_b32 s{S_T2}, s{S_T2}, 10")
    p1.s(f"s_add_u32 s{SD}, s{SD}, s{S_T2}")
    p1.vop("v_add_u32", VD, f"s{SD}", V_LIN)
    p1.s(f"s_mul_i32 s{S_T2}, s{S_B}, 9")
    p1.s(f"s_add_u32 s{S_T0}, s{S_T0}, s{S_T2}")
    p1.s(f"s_mul_i32 s{SX}, s{S_T0}, {16 * 1280}")
    for r in range(32): p1.vop("v_mov_b32", AC + r, "0")
    p1.s(f"s_mov_b32 s{SC}, 0")
    def pack(p):
        for r in range(32): p.vop("v_lshl_or_b32", FR + r, RAW + 2 * r + 1, "16", RAW + 2 * r)
    def loop_end(p, lab, n):
        p.s(f"s_add_u32 s{SC}, s{SC}, 1")
        p.s(f"s_cmp_lt_u32 s{SC}, {n}")
        p.s(f"s_cbranch_scc1 {lab}")
    p2 = Prog()
    p2.label(f"{name}_sl_q")
    ld(p2, "buffer_load_dwordx4", 4, FB, VX, SRD_X, SX, 0)
    for m in range(8):
        for i in range(8): ld(p2, "buffer_load_ushort", 1, RAW + 8 * m + i, VW + i, SRD_W, SWq, 32 * m)
        if m == 3: p2.wait_all()
    p2.wait_all()
    pack(p2)
    for m in range(8): p2.mfma(AC + 4 * m, FR + 4 * m, FB, AC + 4 * m)
    p2.s(f"s_add_u32 s{SX}, s{SX}, 64")
    p2.s(f"s_add_u32 s{SWq}, s{SWq}, {32 * 8192}")
    loop_end(p2, f"{name}_sl_q", 20)
    p3 = Prog()
    for r in range(32): p3.vop("v_mul_f32", AC + r, f"s{S_CS}", AC + r)
    for r in range(16): p3.cvtpk(QF + r, AC + 2 * r, AC + 2 * r + 1)
    for r in range(32): p3.vop("v_mov_b32", AC + r, "0")
    for r in range(4): p3.vop("v_mov_b32", LA + r, "0")
    p3.vop("v_mov_b32", MX, "0xff800000")
    p3.s(f"s_mov_b32 s{SK}, s{SKV}")
    p3.s(f"s_mov_b32 s{SC}, 0")
    def kfrags(p, dst, so):
        for ks in range(4):
            ld(p, "buffer_load_dwordx2", 2, dst + 4 * ks, VK, SRD_K, so, 64 * ks)
            ld(p, "buffer_load_dwordx2", 2, dst + 4 * ks + 2, VK, SRD_K, so, 64 * ks + 32)
    p4 = Prog()
    p4.label(f"{name}_sl_m")
    kfrags(p4, FR, SK)
    p4.wait_all()
    for ks in range(4): p4.mfma(SS, FR + 4 * ks, QF + 4 * ks, SS if ks else None)
    p4.vop("v_max3_f32", MX, MX, SS, SS + 1)
    p4.vop("v_max3_f32", MX, MX, SS + 2, SS + 3)
    p4.s(f"s_add_u32 s{SK}, s{SK}, 4096")
    loop_end(p4, f"{name}_sl_m", 32)
    p5 = Prog()
    for sw in (p5.swap32, p5.swap16):
        p5.vop("v_mov_b32", MX + 1, MX)
        sw(MX, MX + 1)
        p5.vop("v_max_f32", MX, MX, MX + 1)
    for r in range(4): p5.vop("v_sub_f32", NM + r, "0", MX)
    p5.s(f"s_mov_b32 s{SC}, 0")
    p6 = Prog()
    p6.label(f"{name}_sl_a")
    p6.s(f"s_add_u32 s{SK}, s{SKV}, 4096")
    kfrags(p6, FR, SKV)
    kfrags(p6, FR + 16, SK)
    p6.wait_all()
    for m in range(8):
        for i in range(8): ld(p6, "buffer_load_ushort", 1, RAW + 8 * m + i, VV_, SRD_V, SK if i >= 4 else SKV, 32 * m + 256 * (i & 3))
        if m == 3: p6.wait_all()
    for kt in range(2):
        for ks in range(4): p6.mfma(SS + 4 * kt, FR + 16 * kt + 4 * ks, QF + 4 * ks, SS + 4 * kt if ks else NM)
    for r in range(8): p6.exp(SS + r, SS + r)
    for r in range(4): p6.cvtpk(FB + r, SS + 2 * r, SS + 2 * r + 1)
    p6.wait_all()
    pack(p6)
    p6.mfma(LA, A_ONE, FB, LA)
    for m in range(8): p6.mfma(AC + 4 * m, FR + 4 * m, FB, AC + 4 * m)
    p6.s(f"s_add_u32 s{SKV}, s{SKV}, 8192")
    loop_end(p6, f"{name}_sl_a", 16)
    p7 = Prog()
    p7.vop("v_rcp_f32", LA, LA, kind="trans")
    for r in range(32): p7.vop("v_mul_f32", AC + r, AC + r, LA)
    for r in range(16): p7.cvtpk(QF + r, AC + 2 * r, AC + 2 * r + 1)
    for hf in range(2):
        p7.s(f"s_cmp_eq_u32 s{S_U}, {hf}")
        p7.s(f"s_cselect_b32 s{S_T0}, 0, s{S_T1}")
        p7.s(f"s_cmp_eq_u32 s{S_T0}, 4")
        p7.s(f"s_cbranch_scc1 {name}_sl_s{hf}")
        for t in (2 * hf, 2 * hf + 1): p7.ds_write(VD, QF + 4 * t, 4, t * 18432)
        p7.label(f"{name}_sl_s{hf}")
    p7.wait_all()
    p7.s(f"s_add_u32 s{SI}, s{SI}, 1")
    p7.s(f"s_cmp_lt_u32 s{SI}, 10")
    p7.s(f"s_cbranch_scc1 {name}_sl_it")
    p7.s(f"s_branch {name}_P2")
    body = [p1, p2, p2, p3, p4, p4, p5, p6, p6, p7]
    return [p0, p1, p2, p3, p4, p5, p6, p7], [p0] + body + body

S_ST = 62
S_PC, S_FO, S_PO = 71, 72, 73
S_OF = (4, 5, 6, 7, 74)
S_JA, S_JC, S_JO, S_WE = 77, 83, 52, 101
S_JE, S_EO = (79, 80), (61, 100)
def psetup(p):
    C, J, BW, OW = S_TM, S_TM + 1, S_TM + 2, S_TM + 3
    p.s(f"s_mul_i32 s{BW}, s{S_B}, {PARTB}")
    p.s(f"s_lshl_b32 s{S_T1}, s{S_W}, 11")
    p.s(f"s_add_u32 s{BW}, s{BW}, s{S_T1}")
    p.s(f"s_add_u32 s{BW}, s{BW}, {PART}")
    p.s(f"s_mul_i32 s{OW}, s{S_B}, {144 * 1280}")
    p.s(f"s_lshl_b32 s{S_T1}, s{S_W}, 6")
    p.s(f"s_add_u32 s{OW}, s{OW}, s{S_T1}")
    p.s(f"s_sub_u32 s{S_T0}, s{S_G}, 5")
    p.s(f"s_cselect_b32 s{C}, s{S_G}, s{S_T0}")
    p.s(f"s_cselect_b32 s{J}, 0, 1")
    p.s(f"s_add_u32 s{S_ST}, s{BW}, {8 * 81920}")
    p.s(f"s_mul_i32 s{S_T0}, s{J}, {4 * 81920}")
    p.s(f"s_add_u32 s{S_ST+5}, s{BW}, s{S_T0}")
    p.s(f"s_sub_u32 s{S_ST+1}, s{BW}, s{S_T0}")
    p.s(f"s_add_u32 s{S_ST+1}, s{S_ST+1}, {4 * 81920}")
    for i in (2, 3, 4, 6, 7, 8): p.s(f"s_add_u32 s{S_ST+i}, s{S_ST+i-1}, 81920")
    p.s(f"s_lshl_b32 s{S_T0}, s{C}, 13")
    p.s(f"s_add_u32 s{S_JA}, s{S_ST+5}, s{S_T0}")
    p.s(f"s_mul_i32 s{S_JO}, s{J}, {64 * 1280}")
    p.s(f"s_add_u32 s{S_JO}, s{S_JO}, s{OW}")
    p.s(f"s_lshl_b32 s{S_T0}, s{C}, 8")
    p.s(f"s_add_u32 s{S_JO}, s{S_JO}, s{S_T0}")
    p.s(f"s_mul_i32 s{S_WE}, s{S_G}, {16 * 40960}")
    p.s(f"s_lshl_b32 s{S_T0}, s{S_W}, 11")
    p.s(f"s_add_u32 s{S_WE}, s{S_WE}, s{S_T0}")
    for k in range(5):
        p.s(f"s_add_u32 s{C}, s{C}, 1")
        p.s(f"s_cmp_eq_u32 s{C}, 5")
        p.s(f"s_cselect_b32 s{C}, 0, s{C}")
        if k == 0:
            p.s(f"s_lshl_b32 s{S_WT}, s{C}, 13")
            p.s(f"s_add_u32 s{S_WT}, s{S_WT}, s{S_WE}")
            p.s(f"s_add_u32 s{S_WE}, s{S_WE}, 40960")
        p.s(f"s_and_b32 s{S_T0}, s{J}, 1")
        p.s(f"s_lshl3_add_u32 s{S_T0}, s{C}, s{S_T0}")
        p.s(f"s_lshl_b32 s{S_OF[k]}, s{S_T0}, 10")
        if k:
            p.s(f"s_bitcmp1_b32 s{J}, 1")
            p.s(f"s_cselect_b32 s{S_T0}, 40960, 0")
            p.s(f"s_add_u32 s{S_OF[k]}, s{S_OF[k]}, s{S_T0}")
        if k > 1:
            p.s(f"s_bitcmp1_b32 s{J}, 2")
            p.s(f"s_cselect_b32 s{S_T0}, {AREA}, 0")
            p.s(f"s_add_u32 s{S_OF[k]}, s{S_OF[k]}, s{S_T0}")
        if k < 4:
            p.s(f"s_cmp_lt_u32 s{C}, 3")
            p.s(f"s_addc_u32 s{J}, s{J}, 1")
    p.s(f"s_bitcmp1_b32 s{J}, 0")
    p.s(f"s_cselect_b32 s{S_T0}, 0, 1024")
    p.s(f"s_add_u32 s{S_JC}, s{S_JA}, s{S_T0}")
    for k in range(2):
        p.s(f"s_add_u32 s{S_T2}, s{S_G}, {8 * k + 11}")
        p.s(f"s_and_b32 s{S_T0}, s{S_T2}, 3")
        p.s(f"s_add_u32 s{S_T0}, s{S_T0}, 4")
        p.s(f"s_lshr_b32 s{S_T1}, s{S_T2}, 2")
        p.s(f"s_sub_u32 s{S_T1}, s{S_T1}, 1")
        if k == 0:
            p.s(f"s_cmp_lt_u32 s{S_G}, 5")
            p.s(f"s_cselect_b32 s{S_T0}, 8, s{S_T0}")
            p.s(f"s_cselect_b32 s{S_T1}, s{S_G}, s{S_T1}")
        p.s(f"s_mul_i32 s{S_JE[k]}, s{S_T0}, 10")
        p.s(f"s_add_u32 s{S_JE[k]}, s{S_JE[k]}, s{S_T1}")
        p.s(f"s_lshl_b32 s{S_JE[k]}, s{S_JE[k]}, 13")
        p.s(f"s_add_u32 s{S_JE[k]}, s{S_JE[k]}, s{BW}")
        p.s(f"s_mul_i32 s{S_EO[k]}, s{S_T0}, 80")
        p.s(f"s_add_u32 s{S_EO[k]}, s{S_EO[k]}, s{S_T1}")
        p.s(f"s_lshl_b32 s{S_EO[k]}, s{S_EO[k]}, 8")
        p.s(f"s_add_u32 s{S_EO[k]}, s{S_EO[k]}, s{OW}")
    p.s(f"s_cmp_ge_u32 s{S_G}, 5")
    p.s(f"s_cselect_b32 s{S_JE[1]}, {OOB:#x}, s{S_JE[1]}")
    p.s(f"s_cselect_b32 s{S_EO[1]}, {OOB:#x}, s{S_EO[1]}")
    p.s(f"s_lshl2_add_u32 s{S_PO}, s{S_B}, s{S_W}")
    p.s(f"s_mul_i32 s{S_PO}, s{S_PO}, {4 * FS}")
    p.s(f"s_add_u32 s{S_PO}, s{S_PO}, {PFLG - 2 * FS + OOB}")
    p.s(f"s_lshl_b32 s{S_FO}, s{S_G}, {FG}")
    p.s(f"s_add_u32 s{S_FO}, s{S_FO}, s{S_PO}")
    p.s(f"s_mov_b32 s{S_PC}, 0")

def pmod(name):
    p = Prog()
    p.label(f"{name}_fb")
    p.wait_all()
    p.s(f"s_cmp_lg_u64 s[{S_BAD}:{S_BAD+1}], 0")
    p.s(f"s_cbranch_scc1 {name}_slow")
    p.label(f"{name}_P2")
    AO = (V_LIN, 2, 3)
    V_FA, V_OA = 4, 5
    PT, PT2 = 6, 8
    V_SA, V_JA, PT3 = 1, 25, 26
    SEL = 18
    POOL = [28 + 4 * k for k in range(16)]
    ACC = 92
    OWN = 124
    PK, SUM, JB = 132, 140, 188
    CT = 244
    p.wait_all()
    p.barrier()
    NL = int(E("PLEAD", "8"))
    def ooff(i, kq): return IMG(kq) + i * 1024
    for f in range(NL): p.ds_read128(POOL[f], AO[ooff(0, f) // 49152], ooff(0, f) % 49152)
    p.vop("v_mov_b32", V_SA, f"{OOB:#x}")
    s0 = len(p.ins)
    p.vop("v_mov_b32", V_JA, f"{OOB:#x}")
    p.vop("v_bfe_u32", V_FA, V_LIN, "4", "3")
    p.vop("v_lshlrev_b32", V_FA, f"{FG}", V_FA)
    p.vop("v_bfe_u32", CT, V_LIN, "4", "4")
    p.s(f"s_movk_i32 s{S_T0}, 1280")
    p.vop("v_mul_lo_u32", V_OA, CT, f"s{S_T0}")
    p.vop("v_lshrrev_b32", CT + 1, "8", V_LIN)
    p.vop("v_lshl_add_u32", V_OA, CT + 1, "4", V_OA)
    p.vop("v_mov_b32", PT2, f"s{S_NON}")
    p.vop("v_mov_b32", PT2 + 1, f"s{S_NON+1}")
    p.vop("v_and_b32", CT + 2, "1", CT)
    p.vop("v_lshlrev_b32", CT + 2, "4", CT + 2)
    p.s(f"s_movk_i32 s{S_T0}, 0x3f80")
    p.vop("v_lshlrev_b32", CT + 2, CT + 2, f"s{S_T0}")
    p.vop("v_lshrrev_b32", CT, "1", CT)
    p.vop("v_lshlrev_b32", CT + 1, "1", CT + 1)
    p.vop("v_sub_u32", CT, CT, CT + 1)
    for r in range(2):
        p.add(Ins(f"v_cmp_eq_u32 vcc, {r}, v{CT}", "valu", [CT], []))
        p.vop("v_mov_b32", SEL + r, "0")
        p.vop("v_mov_b32", SEL + 4 + r, "0")
        p.add(Ins(f"v_cndmask_b32 v{SEL+2+r}, 0, v{CT+2}, vcc", "valu", [CT + 2], [SEL + 2 + r]))
    setup = p.ins[s0:]
    def jload(q, jl, dst, own=S_JA):
        def f(p):
            so = S_JE[q - 4] if q >= 4 else S_T1 if q else own
            if 0 < q < 4 and jl == 0: p.s(f"s_add_u32 s{S_T1}, s{own}, {q * 81920}")
            if "J" not in ABL or own != S_JA or dst < JB: p.load4(dst, V_JA, SRD_WS, f"s{so}", jl * 1024, "job", E("JFL", "sc1"))
        return f
    def reduce(p, q, bufs, init=False):
        for e in range(2):
            for k, bf in enumerate(bufs): p.mfma(SUM + 8 * q + 4 * e, SEL + 2 - 2 * e, bf, None if (init and k == 0) else SUM + 8 * q + 4 * e)
    def next_off(): return [lambda p: p.vop("v_add_u32", V_SA, f"s{S_OF[0]}", V_LIN)] + [lambda p, k=k: p.s(f"s_mov_b32 s{S_OF[k]}, s{S_OF[k+1]}") for k in range(4)]
    def next_pair(p, d):
        p.s(f"s_add_u32 s{d}, s{S_WT}, 8192")
        p.s(f"s_sub_u32 s{S_T2}, s{S_WE}, 40960")
        p.s(f"s_cmp_eq_u32 s{d}, s{S_WE}")
        p.s(f"s_cselect_b32 s{d}, s{S_T2}, s{d}")
    def flag(p, off, tag):
        p.wait_vm(tag)
        p.s("s_mov_b64 exec, 1")
        p.store(PT2, 2, V_LIN, SRD_WS, f"s{S_FO}", off, tag="flag", flags="sc1")
        p.s("s_mov_b64 exec, -1")
    FPOS = int(E("FPOS", "56")); PPB = int(E("PPB", "244")); WSP = float(E("WSP", "6")); PLAT = int(E("PLAT", "60")); CPOS = int(E("CPOS", "206")); WST = int(E("WST", "4"))
    CP2 = [int(x) for x in E("CP2", f"{CPOS},{CPOS}").split(",")]; JS2 = [float(x) for x in E("JS2", "5,5").split(",")]
    FPB = int(E("FPB", "0"))
    def pord(e0, e1, g):
        if not int(E("PORD", "1")): return e0 + e1
        a, b = (e1, e0) if g & 1 else (e0, e1)
        b = b[::-1]
        if b[-1][3] is None: b = [(b[0][0], b[0][1], b[0][2], None, b[0][4])] + b[1:-1] + [(b[-1][0], b[-1][1], b[-1][2], b[-1][0], b[-1][4])]
        return a + b
    def one_pass(par):
        CPOS = CP2[par]
        q = Prog()
        q.label(f"{name}_pass{par}")
        if PROF == 4: stamp(q, 32, S_PC)
        q.wait_vm(("WT", par, 15))
        sc = Sched(q, budget=int(E("PBUD", "8")), late_extra=8)
        for qn in ("wl", "st", "jl", "jp"): sc.group[qn] = "vm"
        sc.pace["vm"] = int(E("PPACE", "4"))
        pool = Pool(sc, POOL, 16)
        acc = lambda i: OWN if i == 8 else ACC + 8 * (i % 4)
        for i in range(9):
            a = acc(i)
            for kq in range(16):
                cons = [(a + 4 * e, P_R[par][2 * kq + e], a + 4 * e if kq else None, ("P", i, kq, e)) for e in range(2)]
                pool.frag(0, lambda r: [R128(r, AO[ooff(i, kq) // 49152], ooff(i, kq) % 49152)], cons, as_b=True)
        PG = int(E("PG", "4"))
        sc.m = [x for k in range(0, 288, 2 * PG) for x in pord(sc.m[k:k + 2 * PG:2], sc.m[k + 1:k + 2 * PG:2], k // (2 * PG))]
        fix = lambda t: (lambda f: max(("P", t[1], t[2], 0), ("P", t[1], t[2], 1), key=f))
        ix = {x[4]: k for k, x in enumerate(sc.m)}
        late = lambda t: None if t is None else fix(t)(lambda y: ix[y])
        pool.frags = [(a_, b_, c_, late(d_)) for a_, b_, c_, d_ in pool.frags]; pool.last = [late(t) for t in pool.last]
        sc.idx = {x[4]: k for k, x in enumerate(sc.m)}
        mt = lambda i: sc.m[max(0, min(i, len(sc.m) - 1))][4]
        for f in range(NL, 144 + NL):
            (_, reads, cons, war) = pool.frags[f % 144]
            if f >= 144: war = pool.last[f % 16]
            if "R" not in ABL: sc.fill("rd", reads[0], 4, ds=True, after=war, before=mt(2 * (f - NL) + 1), early=2)
        for i in ((16, 22, 28) if PG == 1 else (16, 24) if PG <= 4 else (16,)): sc.fill("ww", lambda p, i=i: p.wait_vm(("WT", par, min(31, i + (5 if PG == 1 else 7 if PG <= 4 else 15)))), 4, before=mt(i), early=0)
        def su(p):
            next_pair(p, S_WT)
            if par == 0:
                p.s(f"s_cmp_eq_u32 s{S_PC}, 4")
                p.s(f"s_cselect_b32 s{S_WT}, {OOB:#x}, s{S_WT}")
        def keep(p):
            p.s(f"s_cmp_eq_u32 s{S_PC}, 4")
            for i in (5, 6, 7): p.s(f"s_cselect_b32 s{S_ST+i}, {OOB:#x}, s{S_ST+i}")
            p.s(f"s_cselect_b32 s{S_WT2}, s{S_PO}, {OOB:#x}")
        if par == 0: sc.fill("jr", keep, 16, after=mt(100), before=mt(150))
        fill_dma(sc, [(su, 0)], None, mt(WST + 2), queue="wl", lead=6)
        for i in range(32):
            fill_dma(sc, [(wload(1 - par, i), 0)], mt(WST + int(WSP * i)), mt(WST + 12 + int(WSP * i)), queue="wl", lead=10)
        sc.fill("jl", lambda p: poll_issue(p, V_FA, f"s{S_PO}", 0, PT), 8, before=mt(CPOS - PLAT), early=4, solo=SOLO)
        def cut(p):
            p.s(f"s_cmp_lt_u32 s{S_PC}, 2")
            p.s(f"s_cbranch_scc1 {name}_nojob{par}")
            if par == 0 and not FPB:
                p.s(f"s_cmp_eq_u32 s{S_PC}, 2")
                p.s(f"s_cbranch_scc1 {name}_pp0")
            p.label("@CUT")
        sc.fill("jr", cut, 8, before=mt(CPOS), early=0, tag="CUT")
        for x in [int(y) for y in E("PSL1", "").split(",") if y]: sc.fill("sl", lambda p: [p.raw("s_nop 15") for _ in range(int(E("PSN", "4")))], 16, before=mt(x), early=0)
        JSP = JS2[par]
        def cut2(p):
            p.s(f"s_cmp_lg_u32 s{S_PC}, 4")
            p.s(f"s_cbranch_scc1 {name}_nofb")
            p.label("@CU2")
        if par == 0 and FPB: sc.fill("jr", cut2, 8, before=mt(FPB), early=0)
        for k in range(12): fill_dma(sc, [(jload(k >> 1, k & 1, JB + 4 * k), 0)], ["CUT", mt(CPOS + int(JSP * k))], mt(CPOS + 12 + int(JSP * k)), queue="jl", lead=10)
        if par == 0: sc.fill("jp", lambda p: poll_issue(p, V_FA, f"s{S_WT2}", FS, PT3), 8, after=mt(PPB), before=mt(PPB + 8), lead=8, solo=SOLO)
        for i in range(-1, 8):
            a = acc(i % 9); d = PK + 4 * (i & 1) if (par == 0 and i >= 5) else a
            dl = mt(32 * i + 32 + 24)
            sc.fill("va", lambda p, a=a, d=d: p.cvtpk(d, a, a + 1), 4, after=dict(tag=mt(32 * i + 31), delay=4) if i >= 0 else mt(3), before=dl, lead=10)
            sc.fill("va", lambda p, a=a, d=d: p.cvtpk(d + 1, a + 2, a + 3), 4)
            sc.fill("va", lambda p, a=a, d=d: p.cvtpk(d + 2, a + 4, a + 5), 4)
            sc.fill("va", lambda p, a=a, d=d: p.cvtpk(d + 3, a + 6, a + 7), 4, tag=("CV", i), before=dl, lead=10)
            def st(p, d=d, i=i):
                if "O" not in ABL: p.store(d, 4, V_SA, SRD_WS, f"s{S_ST + i % 9}", 0, tag=("ps", i), flags=E("SFL", "sc1"))
            sc.fill("st", st, 8, after=("CV", i), before=dl, lead=20, tag=("ST", i), solo=SOLO)
            if i < 0:
                for fn in next_off(): sc.fill("va", fn, 4, after=("ST", -1))
        if PROF == 4:
            for k, x in enumerate(int(y) for y in E("PST", "66,74,224").split(",")): sc.fill(f"st{k}", lambda p, k=k: stamp(p, 33 + k, S_PC), 16, before=mt(x), early=0)
        sc.fill("fl", lambda p: flag(p, 0, ("ps", int(E("FTAG", "-1")))), 16, before=mt(FPOS), early=0)
        for r, x in ((S_FO, FS), (S_PC, 1)): sc.fill("fl", lambda p, r=r, x=x: p.s(f"s_add_u32 s{r}, s{r}, {x}"), 4, after=mt(272))
        if par:
            for r in (S_FO, S_PO): sc.fill("fl", lambda p, r=r: p.s(f"s_bitset0_b32 s{r}, 30"), 4)
        sc.run()
        if par == 0:
            q.s(f"s_cmp_eq_u32 s{S_PC}, 5")
            q.s(f"s_cbranch_scc1 {name}_ptail")
            q.s(f"s_add_u32 s{S_PO}, s{S_PO}, {FS}")
            q.s(f"s_cmp_eq_u32 s{S_PC}, 1")
            q.s(f"s_cbranch_scc1 {name}_fbw")
        else:
            q.s(f"s_add_u32 s{S_PO}, s{S_PO}, {FS}")
            q.s(f"s_branch {name}_pass0")
        k = next(i for i, x in enumerate(q.ins) if x.text.startswith("@CUT"))
        q2 = Prog(); q2.label(f"{name}_nojob{par}"); q2.ins += q.ins[k + 1:]; q.ins = q.ins[:k]
        blk = Prog()
        poll_check(blk, f"{name}_pp{par}", V_FA, f"s{S_PO}", 0, PT, int(E("SLP", "2")))
        red = Prog()
        if par == 0:
            blk.vop("v_mov_b32", V_JA, V_LIN)
            blk.s(f"s_cmp_eq_u32 s{S_PC}, 2")
            blk.s(f"s_cbranch_scc1 {name}_nojob{par}")
        red.vop("v_add_u32", V_JA, f"{40960 if par else AREA}", V_LIN)
        for c in range(6): reduce(red, c, [JB + 8 * c, JB + 8 * c + 4], par == 1)
        fb = Prog()
        if par == 0: flag(fb, FS, ("ps", 4))
        if par == 0 and FPB:
            k = next(i for i, x in enumerate(q2.ins) if x.text.startswith("@CU2"))
            q3 = Prog(); q3.label(f"{name}_nofb"); q3.ins += q2.ins[k + 1:]; q2.ins = q2.ins[:k]
            return q, Prog(), blk, red, q2, fb, q3
        return q, fb, blk, red, q2, Prog(), Prog()
    def first_pass():
        q = Prog()
        q.label(f"{name}_P0")
        stamp(q, 9)
        if "F" in ABL: q.s(f"s_mov_b32 s{S_BAD}, 1")
        if "G" in ABL:
            q.s(f"s_cmp_eq_u32 s{S_W}, 2")
            q.s(f"s_cselect_b32 s{S_BAD}, 1, 0")
        sc = Sched(q, budget=int(E("P0BUD", "8")), late_extra=8)
        for qn in ("wl", "st"): sc.group[qn] = "vm"
        sc.pace["vm"] = int(E("P0PACE", "3"))
        acc = [V_S + 32, V_S + 40, 92, 100, 108, 116, 132, 140, OWN]
        POOL2 = POOL[:8] + [148 + 4 * k for k in range(4)] + POOL[12:]
        reg = lambda f: P0_B[f] if f < 72 else POOL2[f % 16] if f < 144 else POOL[f % 16]
        fk = lambda f: ((f % 72) // 8, f % 8 + 8 * ((f // 72) & 1))
        base = []
        for f0 in range(0, 144, 4):
            for e in range(2):
                for f in range(f0, f0 + 4):
                    i, kq = fk(f); a = acc[i] + 4 * e
                    base.append((a, P_R[0][2 * kq + e], reg(f), a if kq else None, ("P", f, e)))
        units = UNITS
        C0, CS, MB = int(E("P0C0", "22")), float(E("P0CS", "5.8")), int(E("P0MB", "12"))
        cpos = {C0 + int(CS * k) + (int(E("P0C8", "0")) if k >= 12 else 0): k for k in range(18)}
        for j, m in enumerate(base):
            if j in cpos:
                k = cpos[j]; sc.mfma(CHK, A_ONE, Oa(units[k][0], 2 * units[k][1]), CHK if k else None, ("CHK", k))
            sc.mfma(*m)
        bt = lambda j: base[min(j, 287)][4]
        for i in range(2, 9): assert sc.idx[("CHK", (acc[i] - V_O) // 8)] + 1 < sc.idx[bt(16 * i)]
        for f in range(8, 144 + NL):
            i, kq = fk(f)
            aft = [("P", f - 16, 1)] if (f >= 24 and not 72 <= f < 88) else []
            if f == 8: aft.append("AO")
            if f == 12: aft.append("XW")
            if f == 72: aft.append("MID")
            j = 2 * (f - NL) + 1
            if f >= 72: j = max(j, 144 - MB + 2 + f - 72)
            sc.fill("rd", R128(reg(f), AO[ooff(i, kq) // 49152], ooff(i, kq) % 49152), 4, ds=True, after=aft, before=bt(j), early=2)
        def V(fn, cost=4, **kw): sc.fill("va", fn, cost, **kw)
        sc.fill("ww", lambda p: p.wait_vm(("WT", 0, 15)), 4, before=bt(10), early=0)
        def each(fn):
            z = Prog(); fn(z)
            return [lambda p, x=x: p.add(x) for x in z.ins]
        V(lambda p: p.vop("v_add_u32", AO[1], "49152", V_LIN))
        V(lambda p: p.vop("v_add_u32", AO[2], "98304", V_LIN), tag="AO")
        for fn in each(f_addr): V(fn)
        for i in range(4): V(lambda p, i=i: p.ds_write(AD + 1, Oa(4, 4 + i), 4, i * 1024), 8, solo=True)
        V(lambda p: p.s(f"s_mul_i32 s{S_T0}, s{S_U}, 73728"))
        V(lambda p: p.s(f"s_sub_u32 s{S_T0}, {73728 + 36864}, s{S_T0}"))
        V(lambda p: p.vop("v_add_u32", AL + 1, f"s{S_T0}", V_DA + 4))
        V(lambda p: p.ds_write(AL + 1, La(4), 1, 0), ds=True, tag="XW")
        for n in range(5): V(lambda p, n=n: p.ar(RL + 2 * n, La(n)), tag=("AR", n))
        for n in range(5): V(lambda p, n=n: p.vop("v_add_u32", V_DA + n, "73728", V_DA + n), tag=("DA", n))
        def wr(p, k):
            n, t = units[k]
            p.ds_write(V_DA + n, Oa(n, 2 * t), 4, t * 18432 + (1024 if n < 4 else 0))
        for n in range(4): V(f_rcp(n)[0], 8); V(f_rcp(n)[1], tag=("RC", n))
        l8 = f_l8(); V(l8[0], after=dict(tag="PX", delay=8)); V(l8[1], 8); V(l8[2], tag=("RC", 4), before=("CHK", 10))
        ct = lambda k, d: sc.m[sc.idx[("CHK", k)] + d][4]
        for k, (n, t) in enumerate(units):
            pk, cv = f_norm(n, t)
            sc.fill("pk", lambda p, k=k, pk=pk: (wr(p, k - 1) if k else None, [fn(p) for fn in pk]), 8, solo=True, after=[("RC", n)] + ([("DA", 4)] if k else []),
                    before=ct(k - 1, 1) if k else ct(0, -5), early=0, lead=99, tag=("PK", k))
            for j, fn in enumerate(cv): sc.fill("c1", fn, 4, after=("PK", k), before=ct(k, -1), lead=0)
        sc.fill("pk", lambda p: wr(p, 17), 8, solo=True, before=ct(17, 1), early=0, lead=99, tag="W17")
        for j, fn in enumerate(f_range()): V(fn, 8 if j >= 4 else 4)
        sc.fill("bx", lambda p: p.barrier(), 4, after=[("P", 12, 0), ("DA", 4)], before=bt(int(E("P0BX", "34"))), early=0)
        for i in range(4): sc.fill("bx", R128(PX + 4 * i, AD, i * 1024), 4, ds=True, before=bt(60))
        sc.fill("bx", lambda p: p.ds_read32(V_S, V_DA + 4, 0), 4, ds=True, before=bt(60), tag="PX")
        V(lambda p: p.vop("v_bfe_u32", V_T + 1, V_LIN, "4", "2"))
        V(lambda p: p.vop("v_lshlrev_b32", V_T + 1, "12", V_T + 1))
        V(lambda p: p.vop("v_add_u32", V_T + 1, f"{MISC}", V_T + 1))
        c5 = f_fin()
        V(c5[0]); V(c5[1], 8, after=dict(tag=("CHK", 17), delay=2))
        V(lambda p: (p.s(f"s_or_b32 s{S_T0}, s{S_BAD}, s{S_BAD+1}"), p.vop("v_mov_b32", V_T, f"s{S_T0}")), 8)
        V(lambda p: p.ds_write(AD, V_T, 1, 0), ds=True, after="W17", before=bt(144 - MB - 4), lead=2)
        def mid(p):
            p.wait_vm(("WT", 0, 31), lgkm0=True); p.barrier()
            stamp(p, 16)
            p.ds_read32(V_T + 2, V_T + 1, 0)
        V(mid, 8, before=bt(144 - MB), early=0, tag="MID")
        def chk(p):
            p.add(Ins(f"v_cmp_ne_u32 vcc, 0, v{V_T+2}", "valu", [V_T + 2], []))
            p.s("s_cmp_lg_u64 vcc, 0")
            p.s(f"s_cbranch_scc1 {name}_fb")
        V(chk, 8, before=bt(146), early=0, tag="OK")
        for fn in next_off(): V(fn, before=bt(160))
        k = 0
        while k < len(setup):
            n = 4 if setup[k].text.startswith("v_cmp") else 1
            V(lambda p, g=setup[k:k + n]: [p.add(Ins(x.text, x.kind, x.rd, x.wr)) for x in g], 4 * n); k += n
        for i in range(8):
            a = acc[i]; dl = bt(144 + 16 * i + 16 + 14)
            sc.fill("cv", lambda p, a=a: p.cvtpk(a, a, a + 1), 4, after=["OK", dict(tag=("P", 72 + 8 * i + 7, 1), delay=3)], before=dl, lead=10)
            sc.fill("cv", lambda p, a=a: p.cvtpk(a + 1, a + 2, a + 3), 4)
            sc.fill("cv", lambda p, a=a: p.cvtpk(a + 2, a + 4, a + 5), 4)
            sc.fill("cv", lambda p, a=a: p.cvtpk(a + 3, a + 6, a + 7), 4, tag=("CV", i), before=dl, lead=10)
            def st(p, a=a, i=i):
                if "O" not in ABL: p.store(a, 4, V_SA, SRD_WS, f"s{S_ST+i}", 0, tag=("ps", i), flags=E("SFL", "sc1"))
            sj = int(E("P0S0", "200")) + int(E("P0SS", "8")) * i
            sc.fill("st", st, 8, after=[("CV", i), bt(sj)], before=bt(max(sj + 8, 144 + 16 * i + 30)), lead=20, tag=("ST", i), solo=SOLO)
        if WTP >= 100:
            for k in range(WTN): sc.fill("wt", lambda p, k=k: w_touch(p, 64 * k), 8, after=bt(WTP - 100 + 4 * k), before=bt(WTP - 92 + 4 * k), solo=True)
        for x in [int(y) for y in E("PSL0", "").split(",") if y]: sc.fill("sl", lambda p: [p.raw("s_nop 15") for _ in range(int(E("PSN", "4")))], 16, before=bt(x), early=0)
        W1 = float(E("P0W1", "5.0")); W2 = float(E("P0W2", "3.0"))
        for i in range(8): fill_dma(sc, [(wload(0, 24 + i), 0)], bt(17 + int(W1 * i)), bt(30 + int(W1 * i)), queue="wl", lead=4)
        for i in range(32):
            j = 17 + int(W1 * (8 + i)) if i < 15 else 146 + int(W2 * (i - 15))
            if i == 0: fill_dma(sc, [(lambda p: next_pair(p, S_WT2), 0)], None, bt(j), queue="wl", lead=4)
            fill_dma(sc, [(wload(1, i, sb=S_WT2), 0)], [bt(j), ("AR", 4)] + (["OK"] if i >= 15 else []), bt(j + 13), queue="wl", lead=4)
        sc.fill("fl", lambda p: p.s(f"s_mov_b32 s{S_WT}, s{S_WT2}"), 4, after=bt(275))
        for r, x in ((S_PO, FS), (S_FO, FS), (S_PC, 1)): sc.fill("fl", lambda p, r=r, x=x: p.s(f"s_add_u32 s{r}, s{r}, {x}"), 4, after=bt(275))
        sc.run()
        q.s(f"s_branch {name}_pass1")
        return q
    p.wait_lgkm0()
    p.s(f"s_branch {name}_pass0")
    pre = p
    p0 = first_pass()
    pe, po = one_pass(0), one_pass(1)
    p = Prog()
    p.label(f"{name}_ptail")
    stamp(p, 17)
    p.vop("v_add_u32", V_JA, f"{AREA + 40960}", V_LIN)
    poll_check(p, f"{name}_pp4", V_FA, f"s{S_PO}", FS, PT3, int(E("SLP4", "0")))
    stamp(p, 18)
    for c in range(4): jload(c, 0, POOL[8 + c], S_JC)(p)
    for k in range(4): jload(4 + (k >> 1), k & 1, POOL[12 + k])(p)
    stamp(p, 19)
    for c in (4, 5, 0, 1, 2, 3):
        if c < 4:
            for r in range(8): p.vop("v_add_f32", SUM + 8 * c + r, SUM + 8 * c + r, (ACC + 8 * (c + 1) if c < 3 else OWN) + r)
        reduce(p, c, [JB + 8 * c, JB + 8 * c + 4])
    stamp(p, 20)
    def out(c):
        a = SUM + 8 * c
        for r in range(4): p.cvtpk(a + r, a + 2 * r, a + 2 * r + 1)
        if 0 < c < 4: p.s(f"s_add_u32 s{S_JO}, s{S_JO}, {16 * 1280}")
        p.store(a, 4, V_OA, SRD_OUT, f"s{S_JO if c < 4 else S_EO[c - 4]}", 0, tag="out", flags=E("OFL", "sc1"))
    for c in range(6):
        reduce(p, c, [POOL[8 + c]] if c < 4 else POOL[4 + 2 * c:6 + 2 * c])
        if c: out(c - 1)
    out(5)
    if PROF:
        p.wait_all()
        stamp(p, 21)
        p.s(f"s_getreg_b32 s{S_TM}, hwreg(HW_REG_HW_ID)")
        p.s(f"s_getreg_b32 s{S_TM+1}, hwreg(HW_REG_XCC_ID)")
        p.raw(f"v_writelane_b32 v0, s{S_TM}, 24")
        p.raw(f"v_writelane_b32 v0, s{S_TM+1}, 25")
        p.s(f"s_lshl_b32 s{S_T0}, s2, 2")
        p.s(f"s_add_u32 s{S_T0}, s{S_T0}, s{S_W}")
        p.s(f"s_lshl_b32 s{S_T0}, s{S_T0}, 8")
        p.s(f"s_add_u32 s{S_T0}, s{S_T0}, {PROFOFF}")
        p.vop("v_lshrrev_b32", PT, "2", V_LIN)
        p.store(0, 1, PT, SRD_WS, f"s{S_T0}", 0)
        p.s(f"s_add_u32 s{S_T0}, s{S_T0}, 0x40000")
        p.store(255, 1, PT, SRD_WS, f"s{S_T0}", 0)
        if E("ENC"):
            a_, b_ = E("ENC").split(",")
            if int(E("ENCW", "77")) >= 0:
                p.s(f"s_cmp_lg_u32 s2, {int(E('ENCW', '77'))}")
                p.s(f"s_cbranch_scc1 {name}_end")
            if a_ == "n": p.s(f"s_mov_b32 s56, s{S_NON}")
            else: p.raw(f"v_readlane_b32 s56, v0, {a_}")
            if b_ == "n": p.s(f"s_mov_b32 s57, s{S_NON}")
            else: p.raw(f"v_readlane_b32 s57, v0, {b_}")
            p.raw("s_nop 4")
            p.s("s_sub_u32 s57, s57, s56")
            p.s("s_lshl_b32 s57, s57, 3")
            p.s("s_add_u32 s57, s57, 12000")
            p.label(f"{name}_enc")
            p.s("s_memrealtime s[58:59]")
            p.raw("s_waitcnt lgkmcnt(0)")
            p.s(f"s_sub_u32 s58, s58, s{S_NON}")
            p.s("s_cmp_lt_u32 s58, s57")
            p.s(f"s_cbranch_scc1 {name}_enc")
        if PROF == 5:
            p.s(f"s_cmp_lg_u32 s2, 77")
            p.s(f"s_cbranch_scc1 {name}_end")
            p.s(f"s_cmp_lg_u32 s{S_W}, 0")
            p.s(f"s_cbranch_scc1 {name}_end")
            p.raw("v_readlane_b32 s56, v0, 0")
            for k, ix in enumerate([23, 1, 2, 5, 6, 9, 10, 16, 17, 18, 20, 21]):
                p.raw(f"v_readlane_b32 s57, v0, {ix}")
                p.raw("s_nop 3")
                p.s("s_sub_u32 s57, s57, s56")
                p.raw(f"v_mov_b32 v30, s57")
                p.raw(f"buffer_store_dword v30, off, s[{SRD_DBG}:{SRD_DBG+3}], 0 offset:{8 + 4 * k}")
                p.raw("s_nop 1")
    p.label(f"{name}_end")
    p.raw("s_endpgm")
    rest = [po[0], po[4], pe[0], pe[2], pe[4], pe[6], *po, *pe, p]
    fw = Prog(); fw.label(f"{name}_fbw"); fw.wait_all(); fw.s(f"s_branch {name}_pass1")
    return [p0, *pe, *po, p, pre, fw], [p0] + rest, [pre, pe[0], pe[4], pe[6], fw] + rest

def gen(name):
    pro = prologue(name)
    Q = qmod(name)
    AE = aentry(name)
    A = [amod(name, qh) for qh in range(2)]
    F = afin(name)
    P, PS, PS2 = pmod(name)
    SL, SLS = slow(name)
    segs = [pro, Q, AE, A[0], A[1], F] + P + SL
    sims = [[(x, 1) for x in [pro, Q, AE, A[qh], F, AE, A[qh]] + PS] for qh in range(2)]
    sims.append([(x, 1) for x in SLS + PS2])
    lines, stats = finalize([(x, 1) for x in segs], sims=sims)
    if int(E("ROLL", "1")):
        lines = roll(lines, "; ---- a step", 8, S_LOOP, f"{name}_aloop")
        lines = roll(lines, "; ---- q step", 8, S_LOOP, f"{name}_qloop")
    lines += [f"{name}_last:", f".if {name}_last-{name}_pc < {65536 + CPO}", f".fill ({65536 + CPO}-({name}_last-{name}_pc))/4, 4, 0xbf810000", ".endif", f".if {name}_end-{name}_pc > {65536 + CPO}", '.warning "code range"', ".endif"]
    return [f".globl {name}", ".p2align 8", f".type {name},@function", f"{name}:"] + lines, stats
```

```python
import re

def vr(base, n=1):
    p = "v"
    if base >= 256:
        p = "a"; base -= 256
    return f"{p}{base}" if n == 1 else f"{p}[{base}:{base+n-1}]"
def sr(base, n=1):
    return f"s{base}" if n == 1 else f"s[{base}:{base+n-1}]"
def R(base, n=1):
    return set(range(base, base + n))

class Ins:
    __slots__ = ("text", "kind", "rd", "wr", "tag", "extra", "srcc", "wait_id")
    def __init__(self, text, kind, rd=(), wr=(), tag=None, extra=None, srcc=()):
        self.text = text; self.kind = kind
        self.rd = set(rd); self.wr = set(wr); self.tag = tag; self.extra = extra
        self.srcc = set(srcc); self.wait_id = None

class Prog:
    def __init__(self):
        self.ins = []
    def add(self, i):
        self.ins.append(i); return i
    def raw(self, text, kind="salu"):
        return self.add(Ins(text, kind))
    def label(self, name):
        return self.add(Ins(name + ":", "label"))
    def comment(self, t):
        return self.add(Ins("; " + t, "label"))
    def s(self, text):
        return self.add(Ins(text, "salu"))
    def nop(self, n):
        return self.add(Ins(f"s_nop {n}", "nop", extra=n + 1))
    def v(self, text, wr=(), rd=(), kind="valu"):
        return self.add(Ins(text, kind, rd, wr))
    def vop(self, op, d, *srcs, kind="valu"):
        rd = [x for x in srcs if isinstance(x, int)]
        t = ", ".join(f"v{x}" if isinstance(x, int) else x for x in srcs)
        return self.add(Ins(f"{op} v{d}, {t}", kind, rd, [d]))
    def exp(self, d, a):
        return self.vop("v_exp_f32", d, a, kind="trans")
    def cvtpk(self, d, a, b):
        return self.vop("v_cvt_pk_bf16_f32", d, a, b)
    def swap32(self, a, b):
        return self.add(Ins(f"v_permlane32_swap_b32 v{a}, v{b}", "perm", [a, b], [a, b]))
    def swap16(self, a, b):
        return self.add(Ins(f"v_permlane16_swap_b32 v{a}, v{b}", "perm", [a, b], [a, b]))
    def mfma(self, d, a, b, c):
        ct = "0" if c is None else vr(c, 4)
        rd = R(a, 4) | R(b, 4)
        srcc = set() if c is None else R(c, 4)
        return self.add(Ins(f"v_mfma_f32_16x16x32_bf16 {vr(d,4)}, {vr(a,4)}, {vr(b,4)}, {ct}", "mfma", rd | srcc, R(d, 4), extra=(d, c), srcc=srcc))
    def ds_read128(self, d, addr, off):
        assert 0 <= off < 65536, off
        return self.add(Ins(f"ds_read_b128 {vr(d,4)}, v{addr} offset:{off}", "dsr", [addr], R(d, 4)))
    def ds_read64(self, d, addr, off):
        assert 0 <= off < 65536, off
        return self.add(Ins(f"ds_read_b64 {vr(d,2)}, v{addr} offset:{off}", "dsr", [addr], R(d, 2)))
    def ds_read32(self, d, addr, off):
        assert 0 <= off < 65536, off
        return self.add(Ins(f"ds_read_b32 v{d}, v{addr} offset:{off}", "dsr", [addr], [d]))
    def ds_tr(self, d, addr, off):
        assert 0 <= off < 65536, off
        return self.add(Ins(f"ds_read_b64_tr_b16 {vr(d,2)}, v{addr} offset:{off}", "dsr", [addr], R(d, 2)))
    def ds_write(self, addr, src, n, off):
        assert 0 <= off < 65536, off
        op = {1: "ds_write_b32", 2: "ds_write_b64", 4: "ds_write_b128"}[n]
        return self.add(Ins(f"{op} v{addr}, {vr(src,n)} offset:{off}", "dsw", {addr} | R(src, n), []))
    def ds_write2(self, addr, src, off):
        assert off % 512 == 0 and off // 512 < 255
        return self.add(Ins(f"ds_write2st64_b64 v{addr}, {vr(src,2)}, {vr(src+2,2)} offset0:{off//512} offset1:{off//512+1}", "dsw", {addr} | R(src, 4), []))
    def dma(self, voff, srd, soff, tag, flags=""):
        return self.add(Ins(f"buffer_load_dwordx4 v{voff}, {sr(srd,4)}, {soff} offen {flags} lds".replace("  ", " "), "vm", [voff], [], tag=tag))
    def dmao(self, voff, srd, soff, off, tag, flags=""):
        return self.add(Ins(f"buffer_load_dwordx4 v{voff}, {sr(srd,4)}, {soff} offen offset:{off} {flags} lds".replace("  ", " "), "vm", [voff], [], tag=tag))
    def ar(self, d, a):
        return self.add(Ins(f"v_accvgpr_read_b32 v{d}, a{a-256}", "valu", [a], [d]))
    def aw(self, a, v):
        return self.add(Ins(f"v_accvgpr_write_b32 a{a-256}, {'v%d' % v if isinstance(v, int) else v}", "valu", [v] if isinstance(v, int) else [], [a]))
    def amov(self, d, a):
        return self.add(Ins(f"v_accvgpr_mov_b32 a{d-256}, a{a-256}", "valu", [a], [d]))
    def pkmul(self, d, a, b):
        bt = f"v[{b}:{b+1}]" if isinstance(b, int) else b
        return self.add(Ins(f"v_pk_mul_f32 v[{d}:{d+1}], v[{a}:{a+1}], {bt}", "valu", R(a, 2) | (R(b, 2) if isinstance(b, int) else set()), R(d, 2)))
    def load4(self, d, voff, srd, soff, off, tag, flags=""):
        return self.add(Ins(f"buffer_load_dwordx4 {vr(d,4)}, v{voff}, {sr(srd,4)}, {soff} offen offset:{off} {flags}".strip(), "vml", [voff], R(d, 4), tag=tag))
    def load2(self, d, voff, srd, soff, off, tag, flags=""):
        return self.add(Ins(f"buffer_load_dwordx2 {vr(d,2)}, v{voff}, {sr(srd,4)}, {soff} offen offset:{off} {flags}".strip(), "vml", [voff], R(d, 2), tag=tag))
    def store(self, src, n, voff, srd, soff, off, tag="st", flags=""):
        op = {1: "buffer_store_dword", 2: "buffer_store_dwordx2", 4: "buffer_store_dwordx4"}[n]
        return self.add(Ins(f"{op} {vr(src,n)}, v{voff}, {sr(srd,4)}, {soff} offen offset:{off} {flags}".strip(), "vms", {voff} | R(src, n), [], tag=tag, extra=n))
    def wait_vm(self, tag, lgkm0=False, cap=None):
        i = self.add(Ins("", "waitvm", tag=tag, extra=lgkm0)); i.wait_id = cap
        return i
    def wait_all(self):
        return self.add(Ins("s_waitcnt vmcnt(0) lgkmcnt(0)", "waitall"))
    def wait_lgkm0(self):
        return self.add(Ins("s_waitcnt lgkmcnt(0)", "waitlgkm0"))
    def barrier(self):
        return self.add(Ins("s_barrier", "barrier"))

VALU_KINDS = ("valu", "trans", "perm")
import os
COALESCE = int(os.environ.get("COAL", "14"))
HOIST = int(os.environ.get("HOIST", "1"))

def finalize(segments, sim=None, sims=None):
    need_lgkm = {}
    need_vm = {}
    need_nop = {}
    sims = sims or [sim or segments]
    flat = []
    for sm in sims: flat += [(None, 0)] + list(sm)
    for _pass in range(4):
        changed = False
        for prog, rep in flat:
            if prog is None:
                lg = []
                vm = []
                hist = []
                t = 0
            for _r in range(rep):
                for ins in prog.ins:
                    k = ins.kind
                    if k == "label":
                        continue
                    key = id(ins)
                    touched = ins.rd | ins.wr
                    n = None
                    for idx in range(len(lg) - 1, -1, -1):
                        if lg[idx][0] & touched:
                            n = len(lg) - 1 - idx; break
                    if n is not None:
                        n = min(n, sum(1 for x in lg if x[1] > t - COALESCE))
                        n = min(n, 15)
                        if key not in need_lgkm or need_lgkm[key] > n:
                            need_lgkm[key] = n; changed = True
                    n = None
                    for idx in range(len(vm) - 1, -1, -1):
                        if vm[idx][1] & touched:
                            n = len(vm) - 1 - idx; break
                    if k == "waitvm":
                        for idx in range(len(vm) - 1, -1, -1):
                            if vm[idx][0] == ins.tag or (isinstance(ins.tag, list) and vm[idx][0] in ins.tag):
                                n = len(vm) - 1 - idx; break
                        if ins.wait_id is not None: n = ins.wait_id if n is None else min(n, ins.wait_id)
                    if n is not None:
                        n = min(n, 63)
                        if key not in need_vm or need_vm[key] > n:
                            need_vm[key] = n; changed = True
                    has_wait = False
                    if key in need_lgkm:
                        nn = need_lgkm[key]
                        if len(lg) > nn: lg = lg[len(lg) - nn:] if nn else []
                        has_wait = True
                    if key in need_vm:
                        nn = need_vm[key]
                        if len(vm) > nn: vm = vm[len(vm) - nn:] if nn else []
                        has_wait = True
                    if k == "waitvm":
                        if ins.extra: lg = []
                        t += 1
                        continue
                    if has_wait: t += 1
                    if k == "waitvmn" and len(vm) > ins.extra: vm = vm[len(vm) - ins.extra:] if ins.extra else []
                    if k == "waitall": lg = []; vm = []
                    if k == "waitlgkm0": lg = []
                    req = 0
                    for (p, tp) in hist:
                        dist = t - tp - 1
                        need = 0
                        pk = p.kind
                        if pk in VALU_KINDS:
                            if k == "mfma" and (p.wr & ins.rd): need = 2
                            if k == "perm" and (p.wr & ins.rd): need = max(need, 2)
                            if k == "dpp" and (p.wr & ins.rd): need = max(need, 2)
                            if k == "rfl" and (p.wr & ins.rd): need = max(need, 1)
                            if pk == "trans" and k in ("valu", "perm", "mfma") and (p.wr & ins.rd): need = max(need, 1)
                        elif pk == "mfma":
                            if k == "mfma":
                                ab = ins.rd - ins.srcc
                                if p.wr & ab: need = 8
                                elif p.wr & ins.srcc:
                                    need = 0 if (ins.extra[1] == p.extra[0]) else 6
                                elif p.wr & ins.wr: need = 0
                            else:
                                if p.wr & (ins.rd | ins.wr): need = 8
                                if k in VALU_KINDS and (p.srcc & ins.wr): need = max(need, 3)
                                if k in ("dsr", "vml") and (p.srcc & ins.wr): need = max(need, 3)
                        elif pk == "salu":
                            if k == "vm" and p.text.split()[1:2] == ["m0,"]: need = 1
                        elif pk == "vms" and p.extra == 4:
                            if k in VALU_KINDS or k == "mfma":
                                if p.rd & ins.wr: need = 2
                            elif p.rd & ins.wr: need = 1
                        if need > dist: req = max(req, need - dist)
                    if req > need_nop.get(key, 0):
                        need_nop[key] = req; changed = True
                    t += need_nop.get(key, 0)
                    if k == "dsr": lg.append((set(ins.wr), t))
                    elif k == "dsw": lg.append((set(), t))
                    elif k in ("vm", "vms"): vm.append((ins.tag, set()))
                    elif k == "vml": vm.append((ins.tag, set(ins.wr)))
                    hist.append((ins, t))
                    t += ins.extra if k == "nop" else 1
                    while hist and t - hist[0][1] > 12: hist.pop(0)
        if not changed: break
    out = []
    stats = dict(nops=0, lgkm=0, n=0, hoisted=0)
    for prog, rep in segments:
        L = prog.ins
        hoist_after = {}
        skip = set()
        if HOIST:
            for i, ins in enumerate(L):
                key = id(ins)
                if ins.kind != "mfma" or key not in need_lgkm or key in need_vm or need_nop.get(key, 0): continue
                n = need_lgkm[key]; j = i - 1; ok = True; nds = 0
                while j >= 0 and L[j].kind != "mfma":
                    kk = L[j].kind
                    if kk in ("dsr", "dsw"): nds += 1
                    elif kk not in ("valu", "trans"): ok = False; break
                    if id(L[j]) in need_lgkm or id(L[j]) in need_vm or need_nop.get(id(L[j]), 0): ok = False; break
                    j -= 1
                if not ok or j < 0 or j == i - 1 or n - nds < 0: continue
                if any(L[x].kind in VALU_KINDS and (L[x].wr & ins.rd) for x in range(max(j + 1, i - 3), i)): continue
                hoist_after[j] = n - nds; skip.add(i)
        for i, ins in enumerate(L):
            key = id(ins)
            w = []
            if key in need_vm: w.append(f"vmcnt({need_vm[key]})")
            if ins.kind == "waitvm" and ins.extra: w.append("lgkmcnt(0)")
            elif key in need_lgkm and i not in skip: w.append(f"lgkmcnt({need_lgkm[key]})"); stats["lgkm"] += 1
            if w: out.append("    s_waitcnt " + " ".join(w))
            elif ins.kind == "waitvm": out.append("    s_nop 0")
            if need_nop.get(key, 0):
                out.append(f"    s_nop {need_nop[key]-1}"); stats["nops"] += 1
            if ins.kind == "waitvm": continue
            out.append(ins.text if ins.kind == "label" else "    " + ins.text)
            stats["n"] += 1
            if i in hoist_after:
                out.append(f"    s_waitcnt lgkmcnt({hoist_after[i]})"); stats["hoisted"] += 1
    return out, stats

def kd(name, vgpr, sgpr=102, accum=None):
    accum = accum if accum is not None else ((vgpr + 3) // 4) * 4
    return [".p2align 6", f".amdhsa_kernel {name}",
            f"  .amdhsa_next_free_vgpr {vgpr}", f"  .amdhsa_next_free_sgpr {sgpr}", f"  .amdhsa_accum_offset {min(accum,256)}",
            "  .amdhsa_group_segment_fixed_size 0", "  .amdhsa_kernarg_size 64", "  .amdhsa_user_sgpr_count 2",
            "  .amdhsa_user_sgpr_kernarg_segment_ptr 1", "  .amdhsa_system_sgpr_workgroup_id_x 1", ".end_amdhsa_kernel"]

class Sched:
    def __init__(self, p, budget=8, late_extra=8):
        self.p = p; self.m = []; self.q = {}; self.budget = budget; self.late_extra = late_extra
        self.idx = {}
        self.pace = {}
        self.group = {}
        self.last = {}
        self.maxds = 1
        self.noed = False
    def mfma(self, d, a, b, c, tag=None):
        self.m.append((d, a, b, c, tag))
        if tag is not None: self.idx[tag] = len(self.m) - 1
    def fill(self, queue, fn, cost=4, after=None, before=None, lead=0, tag=None, early=None, ds=False, solo=False, paced=True):
        self.q.setdefault(queue, []).append(dict(fn=fn, cost=cost, after=after, before=before, lead=lead, tag=tag, early=early, ds=ds, solo=solo, paced=paced))
    def run(self):
        p = self.p
        done = {}
        N = len(self.m)
        INF = 10 ** 9
        for ql in self.q.values():
            hd = INF; sd = INF
            for f in reversed(ql):
                if f["before"] is not None:
                    b = self.idx[f["before"]]
                    hd = min(hd, b); sd = min(sd, b - f["lead"])
                f["hd"] = hd; f["sd"] = sd
        tagq = {}
        for qn, ql in self.q.items():
            for f in ql:
                if f["tag"] is not None: tagq[f["tag"]] = qn
        def ready(f, cnt):
            a = f["after"]
            if a is not None:
                for x in (a if isinstance(a, list) else [a]):
                    dl = 0
                    if isinstance(x, dict): dl = x["delay"]; x = x["tag"]
                    if x not in done or cnt < done[x] + dl: return False
            if f["early"] is not None and f["before"] is not None and cnt < self.idx[f["before"]] - f["early"]: return False
            return True
        def emit(qn, cnt):
            f = self.q[qn].pop(0)
            f["fn"](p)
            if qn in self.group and f.get("paced", True): self.last[self.group[qn]] = cnt
            if f["tag"] is not None: done[f["tag"]] = cnt
            return f["cost"]
        def force(qn, cnt, depth=0):
            f = self.q[qn][0]
            a = f["after"]
            for x in ([] if a is None else a if isinstance(a, list) else [a]):
                if isinstance(x, dict): x = x["tag"]
                while x not in done:
                    assert x in tagq and tagq[x] != qn and depth < 20, ("cannot force", f["tag"], f["before"], x, cnt)
                    force(tagq[x], cnt, depth + 1)
            return emit(qn, cnt)
        for i in range(N + 1):
            again = True
            while again:
                again = False
                for qn, ql in self.q.items():
                    while ql and (ql[0]["hd"] <= i or i == N):
                        force(qn, i); again = True
            if i == N: break
            d, a, b, c, tag = self.m[i]
            p.mfma(d, a, b, c)
            if tag is not None: done[tag] = i + 1
            used = 0; nds = 0; hase = False
            while True:
                best = None
                for qn, ql in self.q.items():
                    if ql and ready(ql[0], i + 1):
                        f = ql[0]
                        g = self.group.get(qn)
                        if g is not None and f.get("paced", True) and i + 1 - self.last.get(g, -99) < self.pace[g]: continue
                        late = f["sd"] <= i + 1
                        if f.get("ds") and nds >= (2 if late else self.maxds): continue
                        if f.get("solo") and used: continue
                        if hase and (f.get("ds") or qn in self.group): continue
                        if used and used + f["cost"] > self.budget + (self.late_extra if late else 0): continue
                        if best is None or f["sd"] < self.q[best][0]["sd"]: best = qn
                if best is None: break
                if self.q[best][0].get("ds"): nds += 1
                solo = self.q[best][0].get("solo")
                if self.noed and best == "va" and self.q[best][0]["cost"] == 8: hase = True
                used += emit(best, i + 1)
                if solo: break
                if used >= self.budget + self.late_extra: break


def roll(lines, marker, period, sreg, name, minrep=2):
    idx = [i for i, l in enumerate(lines) if l.startswith(marker)]
    runs = []; cur = []
    for i in idx:
        if int(lines[i].split()[-1]) == 0 and cur: runs.append(cur); cur = []
        cur.append(i)
    if cur: runs.append(cur)
    out = list(lines)
    for rn, r in reversed(list(enumerate(runs))):
        blk = [lines[r[k] + 1:r[k + 1]] for k in range(len(r) - 1)]
        same = [blk[k] == blk[k + period] and not any(l.endswith(":") for l in blk[k]) for k in range(len(blk) - period)]
        best = (0, 0); k = 0
        while k < len(same):
            if same[k]:
                j = k
                while j < len(same) and same[j]: j += 1
                if j - k > best[0]: best = (j - k, k)
                k = j
            else: k += 1
        n = best[0] // period + 1
        if n < minrep: continue
        k = best[1]
        lab = f"{name}_{rn}"
        body = lines[r[k]:r[k + period]]
        out[r[k]:r[k + n * period]] = [f"    s_mov_b32 s{sreg}, {n - 1}", f"{lab}:"] + body + [f"    s_sub_u32 s{sreg}, s{sreg}, 1", f"    s_cbranch_scc0 {lab}"]
    return out
```

```python
from asmlib import *
import math, struct, os
E = os.environ.get
PROF = int(E("PROF", "0"))
ABL = E("ABL", "")
def f2u(f): return struct.unpack("<I", struct.pack("<f", f))[0]
CSCALE = math.log2(math.e) / math.sqrt(128.0)
NWG = 256
LDS_BYTES = 163840
XSL = 18432
XRING = 131072
XALT = 65536 - XSL
WRING = 65536
MISC = 147456
def IMG(kq): return (kq >> 3) * 73728 + (kq & 3) * 18432 + ((kq >> 2) & 1) * 9216
DROP = 0x30000
OOB = 0x40000000
WOT = 0
PART = 128 * 40960
AREA = 18 * 40960
PARTB = 2 * AREA
WFLG = PART + 32 * PARTB
PFLG = WFLG + 8192
FG = int(E('FG', '3')); FS = int(E('FS', '128'))
WSBYTES = PFLG + 128 * 4 * FS
PROFOFF = 0x4000000

SRD_X, SRD_K, SRD_V, SRD_W, SRD_WS, SRD_WO, SRD_OUT, SRD_DBG = 8, 12, 16, 20, 24, 28, 32, 36
S_W = 3
S_T0, S_T1, S_B, S_G, S_P, S_T2 = 40, 41, 42, 43, 44, 45
S_CS, S_NON, S_SPIN, S_PH, S_GRP, S_SO = 46, 48, 50, 51, 52, 53
S_BAD = 54
S_KOFF, S_VOFF, S_KB, S_KVN, S_M0KV, S_WFP = 56, 57, 58, 59, 60, 61
S_WOFF, S_WB, S_XOFF, S_XB = 62, 63, 65, 66
S_M0W, S_M0X8 = 75, 72
S_WT, S_PT, S_PF, S_RD, S_OUTO = 76, 77, 78, 79, 80
S_LO, S_HI = 81, 82
S_TM = 84
S_VB = 88
S_M0KVP, S_KVP, S_M0D, S_U = 89, 91, 94, 95
S_LOOP = 92
S_WT2 = 98

V_DK, V_DV, V_DW, V_DX = 1, 5, 9, 13
V_AK, V_AV0, V_AV1, V_AX, V_AX8, V_LIN = 18, 19, 20, 21, 22, 24
V_E0, V_E1, V_E2 = 25, 26, 27
V_S = 28
V_AW = V_S + 40
V_O = 84
V_T = 244
V_DA = V_T + 3
V_NV = 252
V_JUNK = 254
A_Q, A_QN, A_L, A_ONE, A_POOL, A_X = 256, 336, 416, 436, 440, 472
A_QP = 480
NPOOL = 8
def Qf(n, ks, base=A_Q): return base + (n * 4 + ks) * 4
def Oa(n, m): return V_O + (n * 8 + m) * 4
def XS(par, n): return V_S + (par * 4 + n) * 4 if n < 4 else V_S + 48
def YS(n): return V_S + 32 + n * 4 if n < 4 else V_S + 52
def La(n): return A_L + 4 * n
def Xf(st, t): return V_S + (st * 5 + t) * 4
def QA(r, n, m):
    if r == 0: return V_O + (n * 8 + m) * 4
    return A_QN + 64 + 4 * m if n == 4 else A_QN + 80 * (m & 1) + 16 * n + 4 * (m >> 1)

def stamp(p, idx, dyn=None):
    if not PROF: return
    p.s(f"s_memrealtime s[{S_TM}:{S_TM+1}]")
    p.s(f"s_memtime s[{S_TM+2}:{S_TM+3}]")
    p.wait_lgkm0()
    if dyn is None:
        p.raw(f"v_writelane_b32 v0, s{S_TM}, {idx}")
        p.raw(f"v_writelane_b32 v255, s{S_TM+2}, {idx}")
    else:
        p.s("s_mov_b32 s99, m0")
        p.s(f"s_lshl_b32 m0, s{dyn}, 2")
        p.s(f"s_add_u32 m0, m0, {idx}")
        p.raw(f"v_writelane_b32 v0, s{S_TM}, m0")
        p.raw(f"v_writelane_b32 v255, s{S_TM+2}, m0")
        p.s("s_mov_b32 m0, s99")

KVSEQ = [("K", 0)]
for u in range(15): KVSEQ += [("K", u + 1), ("V", u)]
KVSEQ += [("V", 15)]
KVPOS = {t: i for i, t in enumerate(KVSEQ)}
DYN = (10, 30)
SRD_C = SRD_WO
S_ROT, S_C, S_D = S_KOFF, S_VOFF, S_VB
def kv_ops(pos):
    pre = pos >= 32; pos %= 32
    kind, u = KVSEQ[pos]
    dyn = DYN[0] <= pos <= DYN[1] and not pre
    ops = []
    for j in range(4):
        def f(p, j=j):
            if dyn:
                if j == 0:
                    if pos == DYN[0]:
                        p.s(f"s_add_u32 s{S_C}, s{S_ROT}, {u * 8192}")
                        p.s(f"s_and_b32 s{S_C}, s{S_C}, 0x1ffff")
                        p.s(f"s_mov_b32 s{S_D}, {16384 if kind == 'V' else -8192}")
                        p.s(f"s_mov_b32 s{S_M0D}, {(pos % 8) * 16384}")
                    p.s(f"s_cmp_gt_i32 s{S_D}, 0")
                    p.s(f"s_cselect_b64 s[{SRD_C}:{SRD_C+1}], s[{SRD_V}:{SRD_V+1}], s[{SRD_K}:{SRD_K+1}]")
                    p.s(f"s_add_u32 m0, s{S_M0KV}, s{S_M0D}")
                    p.s(f"s_add_u32 s{S_SO}, s{S_KB}, s{S_C}")
                if "D" not in ABL: p.dmao(V_DV + j, SRD_C, f"s{S_SO}", j * 1024, (kind, u), "nt")
                if j == 0: p.s(f"s_add_u32 s{S_C}, s{S_C}, s{S_D}")
                if j == 1:
                    p.s(f"s_and_b32 s{S_C}, s{S_C}, 0x1ffff")
                    p.s(f"s_sub_u32 s{S_D}, 8192, s{S_D}")
                if j == 2:
                    p.s(f"s_add_u32 s{S_M0D}, s{S_M0D}, 16384")
                    p.s(f"s_and_b32 s{S_M0D}, s{S_M0D}, 0x1ffff")
                return
            if j == 0:
                if pre: p.s(f"s_add_u32 m0, s{S_M0KVP + (pos >> 2)}, {(pos % 4) * 16384}")
                else: p.s(f"s_add_u32 m0, s{S_M0KV}, {(pos % 8) * 16384}")
                p.s(f"s_add_u32 s{S_SO}, s{S_ROT}, {u * 8192}")
                p.s(f"s_and_b32 s{S_SO}, s{S_SO}, 0x1ffff")
                p.s(f"s_add_u32 s{S_SO}, s{S_SO}, s{S_KVP if pre else S_KB}")
            if "D" not in ABL: p.dmao(V_DV + j, SRD_K if kind == "K" else SRD_V, f"s{S_SO}", j * 1024, (kind, u), "nt")
        ops.append((f, 8))
    return ops
W39 = int(E("W39", "1"))
def w_ops(h):
    ops = []
    for j in range(4):
        def f(p, j=j):
            if j == 0:
                p.s(f"s_add_u32 m0, s{S_M0W}, {65536 if (h == 39 and W39) else (h % 4) * 16384}")
                p.s(f"s_add_u32 s{S_SO}, s{S_WB + (h & 1)}, s{S_WOFF}")
            if "W" not in ABL: p.dmao(V_DW + j, SRD_W, f"s{S_SO}", j * 1024, ("W", h))
            if j == 1 and h % 4 == 1: p.s(f"s_sub_u32 s{S_WOFF}, s{S_WOFF}, 512")
            if j == 1 and h % 4 == 3: p.s(f"s_add_u32 s{S_WOFF}, s{S_WOFF}, {64 * 8192 + 512}")
            if j == 2 and h % 4 == 3:
                p.s(f"s_cmp_ge_u32 s{S_WOFF}, {640 * 8192}")
                p.s(f"s_cselect_b32 s{S_WOFF}, 0, s{S_WOFF}")
        ops.append((f, 12 if j == 0 or (j == 2 and h % 4 == 3) else 8 if j == 1 and h % 2 else 4))
    return ops
def xw_ops(i, h):
    def X(j):
        def f(p):
            p.s(f"s_add_u32 m0, s{S_M0KV if j < 4 else S_M0X8}, {XRING}")
            if j == 0: p.s(f"s_add_u32 s{S_T1}, s{S_XB}, s{S_XOFF}")
            p.dmao(V_DX + j, SRD_X, f"s{S_T1}", (j & 3) * 1024, ("X", i))
            if j == 1: p.s(f"s_add_u32 s{S_XOFF}, s{S_XOFF}, 128")
            if j == 2:
                p.s(f"s_cmp_ge_u32 s{S_XOFF}, 1280")
                p.s(f"s_cselect_b32 s{S_XOFF}, 0, s{S_XOFF}")
        return (f, 8)
    w = w_ops(h)
    W = lambda j: ((lambda p: ((p.s(f"s_add_u32 m0, s{S_M0W}, {(h % 4) * 16384}") if j else None), w[j][0](p))), 8)
    return [X(0), W(0), X(1), W(1), X(2), W(2), X(3), W(3), X(4)]
def x_ops(i):
    ops = []
    sb = XRING if i else XALT
    for j in range(5):
        def f(p, j=j):
            if j == 0:
                p.s(f"s_add_u32 m0, s{S_M0KV}, {sb}")
                p.s(f"s_add_u32 s{S_SO}, s{S_XB}, s{S_XOFF}")
            if "X" not in ABL: p.dmao(V_DX + j, SRD_X, f"s{S_SO}", (j & 3) * 1024, ("X", i), E("XFL", ""))
            if j == 1: p.s(f"s_add_u32 s{S_XOFF}, s{S_XOFF}, 128")
            if j == 2:
                p.s(f"s_cmp_ge_u32 s{S_XOFF}, 1280")
                p.s(f"s_cselect_b32 s{S_XOFF}, 0, s{S_XOFF}")
            if j == 3:
                p.s(f"s_add_u32 m0, s{S_M0X8}, {sb}")
                p.nop(0)
        ops.append((f, 12 if j in (0, 2, 3) else 8 if j == 1 else 4))
    return ops

SRD_E = 4
S_EM, S_ED, S_TAB, S_ES, S_WEND, S_EW = 67, 68, 69, 70, 71, 73
STG = 0x26000
V_WR = V_O + 144
EKP = [int(x) for x in E("EKP", "1,1,1,2").split(",")]
PFP = [int(x) for x in E("PFP", "")]; PFN = len(PFP)
PFS = int(E("PFS", "1"))
S_PFO, S_PFB = 74, 83
FWL = int(E("FWL", "1"))
def ek_ops(h):
    it = h // 4
    tag = KVSEQ[(it - 1) // 2]
    def kp(p):
        p.s(f"s_and_b32 s{S_ES}, s{S_TAB}, 0x7000")
        p.s(f"s_add_u32 s{S_ES}, s{S_ES}, s{S_ROT}")
        p.s(f"s_and_b32 s{S_ES}, s{S_ES}, 0x1ffff")
        p.s(f"s_add_u32 s{S_ES}, s{S_ES}, s{S_KVP}")
        if PFS > 1 and not PFN:
            p.s(f"s_bitcmp1_b32 s{S_WEND}, 16")
            p.s(f"s_cselect_b32 s{S_ES}, s{S_ES}, {OOB:#x}")
        p.s(f"s_bitcmp1_b32 s{S_TAB}, 15")
        p.s(f"s_cselect_b64 s[{SRD_E}:{SRD_E+1}], s[{SRD_V}:{SRD_V+1}], s[{SRD_K}:{SRD_K+1}]")
        p.s(f"s_lshr_b32 s{S_T0}, s{S_TAB}, 4")
        p.s(f"s_lshl_b32 s{S_TAB}, s{S_TAB}, 28")
        p.s(f"s_or_b32 s{S_TAB}, s{S_TAB}, s{S_T0}")
    def k0(p):
        p.s(f"s_add_u32 m0, s{S_M0KV}, s{S_EM}")
        if "D" not in ABL: p.dmao(V_DV, SRD_E, f"s{S_ES}", 0, tag, "nt")
    def k1(p):
        p.s(f"s_add_u32 m0, s{S_M0KV}, s{S_EM}")
        p.s(f"s_add_u32 s{S_EM}, s{S_EM}, s{S_ED}")
        if "D" not in ABL: p.dmao(V_DV + 1, SRD_E, f"s{S_ES}", 1024, tag, "nt")
        p.s(f"s_xor_b32 s{S_ED}, s{S_ED}, {2048 ^ 14336}")
    def wo(p):
        p.s(f"s_mov_b32 m0, s{S_EW}")
        p.s(f"s_bitcmp1_b32 s{S_WEND}, 0")
        p.s(f"s_cselect_b32 s{S_T0}, s{S_WT}, {OOB:#x}")
        p.dmao(V_DX, SRD_WO, f"s{S_T0}", 0, ("WOP", it), E("WOFL", "nt"))
        p.s(f"s_xor_b32 s{S_EW}, s{S_EW}, 4096")
        p.s(f"s_lshr_b32 s{S_WEND}, s{S_WEND}, 1")
        p.s(f"s_add_u32 s{S_WT}, s{S_WT}, 128")
    def none(p): p.add(Ins(f"buffer_load_dword v{V_JUNK}, off, s[{SRD_DBG}:{SRD_DBG+3}], 0 offset:256", "vm", [], [], tag="none"))
    def pf(srd, du, j, last):
        def f(p):
            p.s(f"s_add_u32 s{S_T0}, s{S_PFO}, {du * 8192}")
            p.s(f"s_and_b32 s{S_T0}, s{S_T0}, 0x1ffff")
            p.s(f"s_add_u32 s{S_T0}, s{S_T0}, s{S_PFB}")
            p.add(Ins(f"buffer_load_dword v{V_JUNK}, v{V_DV + j}, s[{srd}:{srd+3}], s{S_T0} offen offset:{j * 1024} {E('PFFL', '')}", "vm", [V_DV + j], [], tag="pf"))
            if last:
                p.s(f"s_add_u32 s{S_PFO}, s{S_PFO}, {8192 * PFN // 2}")
                p.s(f"s_bitcmp1_b32 s{S_WEND}, 16")
                p.s(f"s_cselect_b32 s{S_PFB}, s{S_KVP}, {OOB:#x}")
        return f
    if int(E("PFD", "0")) == 2:
        def pf(srd, du, j, last):
            def f(p):
                p.s(f"s_mov_b32 m0, s94")
                p.s(f"s_add_u32 s{S_T0}, s{S_PFO}, {du * 8192}")
                p.s(f"s_and_b32 s{S_T0}, s{S_T0}, 0x1ffff")
                p.s(f"s_add_u32 s{S_T0}, s{S_T0}, s{S_PFB}")
                p.dmao(V_DV, srd, f"s{S_T0}", 0, "pf", E("PFFL", ""))
                if last:
                    p.s(f"s_add_u32 s{S_PFO}, s{S_PFO}, {8192 * PFN // 2}")
                    p.s(f"s_bitcmp1_b32 s{S_WEND}, 16")
                    p.s(f"s_cselect_b32 s{S_PFB}, s{S_KVP}, {OOB:#x}")
            return f
    if int(E("PFD", "0")) == 1:
        def pf(srd, du, j, last):
            def f(p):
                p.s(f"s_mov_b32 m0, s94")
                p.s(f"s_and_b32 s{S_T0}, s{S_PFO}, 0x1ffff")
                p.s(f"s_add_u32 s{S_T0}, s{S_T0}, s{S_PFB}")
                p.dmao(V_DV, SRD_V, f"s{S_T0}", 0, "pf", "nt")
                p.s(f"s_add_u32 s{S_PFO}, s{S_PFO}, 2048")
            return f
    warm = lambda r: lambda p: p.add(Ins(f"buffer_load_dword v{V_JUNK}, off, s[{SRD_WS}:{SRD_WS+3}], s{r} sc1", "vm", [], [], tag="touch"))
    fs = [k0, k1, wo, None, kp] if it else [none if x else None for x in EKP[:3]] + [None, kp]
    if FWL and not it: fs[FWL // 10], fs[FWL % 10] = (lambda p: p.add(Ins(f"buffer_load_dword v{V_JUNK}, v4, s[{SRD_WS}:{SRD_WS+3}], s{S_T2} offen sc1", "vm", [4], [], tag="touch"))), warm(S_WFP)
    fs += [pf(SRD_K if k & 1 else SRD_V, (5 if k & 1 else 3) + (k >> 1), 3, k == PFN - 1) if it else (none if PFP[k] else None) for k in range(PFN)]
    fs += [code_touch] * len(CPQ)
    return [(f, 8) for f, x in zip(fs, EKP + [3] + PFP + CPQ) if f and x == h % 4]
def wst(p):
    for i in range(5):
        p.store(A_Q + 16 - 4 * i, 4, V_LIN, SRD_WS, f"s{S_PT}", 0, tag="wst", flags="sc1")
        if i < 4: p.s(f"s_add_u32 s{S_PT}, s{S_PT}, 4096")

def split_ops(ops):
    q = Prog()
    for f, _ in ops: f(q)
    out = []; i = 0; L = [x for x in q.ins if x.kind != "nop"]
    while i < len(L):
        grp = [L[i]]
        if L[i].text.startswith(("s_cmp", "s_bitcmp")): grp.append(L[i + 1])
        i += len(grp)
        out.append((lambda p, grp=grp: [p.add(x) for x in grp], "vm" if grp[0].kind in ("vm", "vml", "vms") else "s", 4 * len(grp)))
    return out
def fill_dma(sc, ops, after, before, tag=None, queue="dma", lead=80, solo=True):
    so = split_ops(ops)
    for k, (fn, kind, cost) in enumerate(so):
        sc.fill(queue, fn, (8 if solo else 4) if kind == "vm" else cost, after=after, before=before, lead=lead, solo=(kind == "vm" and SOLO and solo), paced=(kind == "vm"),
                tag=tag if k == len(so) - 1 else None)
SOLO = int(E("SOLO", "1"))
T7 = int(E("T7", "0"))
def sprinkle(progs, ops, lo=0.0, hi=1.0):
    pts = []
    for p, st in progs:
        masked = False
        for i in range(st, len(p.ins)):
            x = p.ins[i]
            if x.text.startswith("s_mov_b64 exec"): masked = not x.text.endswith("-1")
            if x.kind == "label" and not x.text.startswith(";"): break
            if x.kind in ("valu", "perm") and not masked and p.ins[i - 1].kind in ("valu", "perm") and "v_cmp" not in x.text and "v_cmp" not in p.ins[i - 1].text: pts.append((p, i))
    if not ops: return
    a, b = int(lo * len(pts)), int(hi * len(pts))
    sel = [pts[a + (k * (b - a)) // len(ops)] for k in range(len(ops))]
    for (p, i), (fn, _) in reversed(list(zip(sel, ops))):
        q = Prog(); fn(q)
        p.ins[i:i] = q.ins

V_CP = 2
V_WP, WTP = 23, int(E("WTP", "-1"))
CPO = int(E("CPO", "3072"))
CPQ = [int(x) for x in E("CPQ", "2")]
CPA = [int(x) for x in E("CPA", "").split(",") if x]
WTN = int(E("WTN", "2"))
def w_touch(p, off): p.add(Ins(f"buffer_load_dword v{V_JUNK}, v{V_WP}, s[{SRD_WS}:{SRD_WS+3}], 0 offen offset:{off} sc1", "vm", [V_WP], [], tag="wtp"))
def code_addr(p, name, L):
    p.s(f"s_getpc_b64 s[{S_TM}:{S_TM+1}]")
    p.label(f"{name}_pc")
    p.s(f"s_lshr_b32 s{S_T0}, s2, 1")
    p.s(f"s_and_b32 s{S_T0}, s{S_T0}, 0x7c")
    p.s(f"s_add_u32 s{S_T0}, s{S_T0}, s{S_W}")
    p.s(f"s_lshl_b32 s{S_T0}, s{S_T0}, 9")
    p.s(f"s_add_u32 s{S_T0}, s{S_T0}, {CPO}")
    p.s(f"s_add_u32 s{S_TM}, s{S_TM}, s{S_T0}")
    p.s(f"s_addc_u32 s{S_TM+1}, s{S_TM+1}, 0")
    p.raw(f"v_and_b32 v{V_CP}, {7 if int(E('CP64', '0')) else 3}, v{L}")
    p.raw(f"v_lshlrev_b32 v{V_CP}, {6 if int(E('CP64', '0')) else 7}, v{V_CP}")
    p.raw(f"v_mov_b32 v{V_CP+1}, s{S_TM+1}")
    p.raw(f"v_add_co_u32 v{V_CP}, vcc, s{S_TM}, v{V_CP}")
    p.raw("s_nop 1")
    p.raw(f"v_addc_co_u32 v{V_CP+1}, vcc, 0, v{V_CP+1}, vcc")
def code_touch(p): p.add(Ins(f"global_load_dword v{V_JUNK}, v[{V_CP}:{V_CP+1}], off", "vm", [], [], tag="code"))

def get_nonce(p, name, t):
    p.add(Ins(f"v_readfirstlane_b32 s{S_NON}, v{V_NV}", "rfl", [V_NV], []))
    p.add(Ins(f"v_readfirstlane_b32 s{S_NON+1}, v{V_NV+1}", "rfl", [V_NV + 1], []))
    p.s(f"s_cmp_lt_i32 s{S_NON+1}, 0")
    p.s(f"s_cbranch_scc1 {name}_x")
    p.vop("v_mov_b32", t + 2, "0")
    p.label(f"{name}")
    p.raw(f"buffer_load_dwordx2 v[{t}:{t+1}], v{t+2}, s[{SRD_DBG}:{SRD_DBG+3}], 0 offen sc1")
    p.raw("s_waitcnt vmcnt(0)")
    p.raw(f"v_readfirstlane_b32 s{S_NON}, v{t}")
    p.raw(f"v_readfirstlane_b32 s{S_NON+1}, v{t+1}")
    p.s(f"s_sub_u32 s{S_SPIN}, s{S_SPIN}, 1")
    p.s(f"s_cbranch_scc1 {name}_x")
    p.s(f"s_cmp_lt_i32 s{S_NON+1}, 0")
    p.s(f"s_cbranch_scc0 {name}")
    p.label(f"{name}_x")
    p.nop(1)

def publish(p, soff, off, t):
    p.vop("v_mov_b32", t, f"s{S_NON}")
    p.vop("v_mov_b32", t + 1, f"s{S_NON+1}")
    p.s("s_mov_b64 exec, 1")
    p.store(t, 2, V_LIN, SRD_WS, soff, off, tag="flag", flags="sc1")
    p.s("s_mov_b64 exec, -1")

def poll_issue(p, vaddr, soff, off, t):
    p.add(Ins(f"buffer_load_dwordx2 v[{t}:{t+1}], v{vaddr}, s[{SRD_WS}:{SRD_WS+3}], {soff} offen offset:{off} sc1", "vml", [vaddr], [t, t + 1], tag="poll"))
def poll_check(p, name, vaddr, soff, off, t, slp=2):
    p.label(f"{name}")
    p.add(Ins(f"v_cmp_ne_u32 vcc, s{S_NON}, v{t}", "valu", [t], []))
    p.add(Ins(f"v_cmp_ne_u32 s[{S_TM+2}:{S_TM+3}], s{S_NON+1}, v{t+1}", "valu", [t + 1], []))
    p.s(f"s_or_b64 vcc, vcc, s[{S_TM+2}:{S_TM+3}]")
    if "Y" in ABL and "pp" in name: p.s(f"s_branch {name}_ok")
    p.s(f"s_cbranch_scc0 {name}_ok")
    p.s(f"s_sub_u32 s{S_SPIN}, s{S_SPIN}, 1")
    p.s(f"s_cbranch_scc1 {name}_ok")
    if slp: p.s(f"s_sleep {slp}")
    p.raw(f"buffer_load_dwordx2 v[{t}:{t+1}], v{vaddr}, s[{SRD_WS}:{SRD_WS+3}], {soff} offen offset:{off} sc1")
    p.raw("s_waitcnt vmcnt(0)")
    p.s(f"s_branch {name}")
    p.label(f"{name}_ok")

PRO = int(E("PRO", "2"))
def prologue(name):
    p = Prog()
    if PROF: p.s("s_memrealtime s[100:101]")
    p.s(f"s_cmp_ge_u32 s2, {NWG}")
    p.s(f"s_cbranch_scc1 {name}_end")
    p.s("s_load_dwordx8 s[84:91], s[0:1], 0")
    p.s("s_load_dwordx8 s[92:99], s[0:1], 32")
    T = V_O
    W, L, a, b, c, d, U, P, VV, R8, PI, M, G, cv = range(T, T + 14)
    p.vop("v_lshrrev_b32", W, "6", 0)
    p.vop("v_and_b32", L, "63", 0)
    p.add(Ins(f"v_readfirstlane_b32 s{S_W}, v{W}", "rfl", [W], []))
    p.vop("v_and_b32", U, "1", W)
    p.vop("v_lshrrev_b32", P, "1", W)
    p.vop("v_lshrrev_b32", VV, "5", L)
    p.vop("v_bfe_u32", R8, L, "2", "3")
    p.vop("v_and_b32", PI, "3", L)
    p.s(f"s_movk_i32 s{S_T0}, 1280")
    p.vop("v_mul_lo_u32", a, R8, f"s{S_T0}")
    p.vop("v_lshl_add_u32", a, VV, "6", a)
    p.vop("v_xor_b32", c, "3", PI)
    p.vop("v_lshl_add_u32", V_DX, PI, "4", a)
    p.vop("v_lshl_add_u32", b, c, "4", a)
    p.vop("v_add_u32", V_DX + 1, f"{9216}", b)
    p.vop("v_add_u32", V_DX + 2, f"{2 * 9216}", V_DX)
    p.vop("v_add_u32", V_DX + 3, f"{3 * 9216}", b)
    p.vop("v_lshrrev_b32", d, "2", R8)
    p.vop("v_lshlrev_b32", cv, "1", d)
    p.vop("v_xor_b32", cv, cv, PI)
    p.vop("v_and_b32", b, "3", R8)
    p.vop("v_lshl_add_u32", b, d, "3", b)
    p.vop("v_lshl_add_u32", b, U, "5", b)
    p.vop("v_lshlrev_b32", d, "6", VV)
    p.vop("v_lshl_add_u32", b, b, "13", d)
    p.vop("v_lshl_add_u32", d, U, "7", d)
    p.vop("v_lshl_add_u32", V_DW, cv, "4", b)
    for j in range(1, 4): p.vop("v_add_u32", V_DW + j, f"{(16 * (j & 1) + 4 * (j >> 1)) * 8192 - 1024 * j}", V_DW)
    p.vop("v_mul_u32_u24", b, "3", P)
    p.vop("v_xor_b32", b, b, PI)
    p.vop("v_lshl_add_u32", b, b, "4", a)
    p.vop("v_lshlrev_b32", a, "2", W)
    p.vop("v_sub_u32", a, P, a)
    p.vop("v_add_u32", a, "16", a)
    p.s(f"s_movk_i32 s{S_T1}, {8 * 1280}")
    p.vop("v_mul_lo_u32", a, a, f"s{S_T1}")
    p.vop("v_add_u32", a, a, b)
    p.vop("v_lshl_add_u32", V_DX + 4, U, "30", a)
    MAP = int(E("MAP", "0"))
    p.s(f"s_bfe_u32 s{S_T0}, s2, {(MAP << 16) | 3:#x}")
    p.s(f"s_lshr_b32 s{S_T2}, s2, {3 + MAP}")
    p.s(f"s_and_b32 s{S_G}, s2, {(1 << (3 - MAP)) - 1}")
    p.s(f"s_lshl_b32 s{S_G}, s{S_G}, {MAP}")
    p.s(f"s_or_b32 s{S_G}, s{S_G}, s{S_T0}")
    p.s(f"s_bfe_u32 s{S_B}, s2, {(MAP << 16) | (3 - MAP):#x}")
    p.s(f"s_lshl_b32 s{S_B}, s{S_B}, {5 - MAP}")
    p.s(f"s_or_b32 s{S_B}, s{S_B}, s{S_T2}")
    p.s(f"s_mul_i32 s{S_T0}, s{S_T0}, {int(E('PHM', str(1 << (5 - MAP))))}")
    p.s(f"s_lshl_b32 s{S_T2}, s{S_T2}, {MAP}")
    p.s(f"s_add_u32 s{S_T2}, s{S_T2}, s{S_T0}")
    if int(E("GPH", "0")):
        p.s(f"s_and_b32 s{S_T0}, s{S_G}, {int(E('GPM', '7'))}")
        p.s(f"s_mul_i32 s{S_T0}, s{S_T0}, {int(E('GPH', '0'))}")
        p.s(f"s_add_u32 s{S_T2}, s{S_T2}, s{S_T0}")
    p.s(f"s_and_b32 s{S_T2}, s{S_T2}, 31")
    p.s(f"s_lshr_b32 s{S_P}, s{S_W}, 1")
    p.s(f"s_lshl_b32 s{S_M0KV}, s{S_W}, 12")
    p.s(f"s_add_u32 s{S_M0W}, s{S_M0KV}, {WRING}")
    p.s(f"s_lshl_b32 s{S_M0X8}, s{S_P}, 10")
    p.s(f"s_add_u32 s{S_M0X8}, s{S_M0X8}, 16384")
    p.s(f"s_bitcmp1_b32 s{S_W}, 0")
    p.s(f"s_cselect_b32 s{S_M0X8}, 0x1d000, s{S_M0X8}")
    p.s(f"s_lshl_b32 s{S_T0}, s{S_G}, 2")
    p.s(f"s_add_u32 s{S_T0}, s{S_T0}, s{S_P}")
    p.s(f"s_lshl_b32 s{S_WB}, s{S_T0}, 8")
    p.s(f"s_add_u32 s{S_WB}, s{S_WB}, 512")
    p.s(f"s_xor_b32 s{S_WB+1}, s{S_WB}, 128")
    p.s(f"s_lshl_b32 s{S_T1}, s{S_B}, 5")
    p.s(f"s_add_u32 s{S_T0}, s{S_T0}, s{S_T1}")
    p.s(f"s_lshl_b32 s{S_KVN}, s{S_T0}, 17")
    p.s(f"s_mul_i32 s{S_T0}, s{S_T2}, 5")
    p.s(f"s_lshr_b32 s{S_T0}, s{S_T0}, 4")
    if not int(E("ROT", "1")): p.s(f"s_mov_b32 s{S_T0}, 0")
    p.s(f"s_lshl_b32 s{S_XOFF}, s{S_T0}, 7")
    p.s(f"s_lshl_b32 s{S_WOFF}, s{S_T0}, 19")
    p.s(f"s_mul_i32 s{S_XB}, s{S_B}, {144 * 1280}")
    p.s(f"s_mul_i32 s{S_T0}, s{S_W}, {32 * 1280}")
    p.s(f"s_add_u32 s{S_XB}, s{S_XB}, s{S_T0}")
    def srd(r, src, size):
        p.s(f"s_mov_b32 s{r+2}, {size:#x}")
        p.s(f"s_mov_b32 s{r+3}, 0x20000")
    def srd2(r, src):
        p.s(f"s_mov_b32 s{r}, s{src}")
        p.s(f"s_and_b32 s{r+1}, s{src+1}, 0xffff")
    SR = ((SRD_X, 84, 32 * 144 * 640 * 2), (SRD_W, 90, 640 * 4096 * 2), (SRD_K, 86, 1 << 27), (SRD_V, 88, 1 << 27),
          (SRD_WO, 92, 4096 * 640 * 2), (SRD_OUT, 94, 32 * 144 * 640 * 2), (SRD_DBG, 96, 256), (SRD_WS, 98, (1 << 28) if PROF else WSBYTES))
    for x in SR: srd(*x)
    if PROF: p.s("s_memrealtime s[66:67]") if 0 else None
    p.s("s_waitcnt lgkmcnt(0)")
    if PROF: p.s("s_memrealtime s[4:5]")
    for x in SR[:2]: srd2(*x[:2])
    for ops in (x_ops(0), w_ops(0), w_ops(1)):
        for f, _ in ops: f(p)
    for x in SR[2:]: srd2(*x[:2])
    stamp(p, 0)
    if PROF:
        p.raw("v_writelane_b32 v0, s100, 3")
        p.raw("v_writelane_b32 v0, s4, 4")
    p.vop("v_lshlrev_b32", V_LIN, "4", L)
    code_addr(p, name, L)
    code_touch(p)
    p.vop("v_lshl_add_u32", b, R8, "8", d)
    p.vop("v_lshl_add_u32", V_DV, cv, "4", b)
    for j in range(1, 4): p.vop("v_add_u32", V_DV + j, f"{1024 * j}", V_DV)
    if E("LINT", "") == "1":
        for j in range(4): p.vop("v_lshl_add_u32", V_DV + j, U, "12", V_LIN)
    if E("LINT", "") == "2":
        p.vop("v_lshl_add_u32", V_DV, U, "10", V_LIN)
        for j in range(1, 4): p.vop("v_add_u32", V_DV + j, f"{1024 * j}", V_DV)
    p.s(f"s_lshl_b32 s{S_T0}, s2, 1")
    p.s(f"s_add_u32 s{S_T0}, s{S_T0}, s{S_P}")
    p.s(f"s_mul_i32 s{S_T0}, s{S_T0}, {int(E('KROT', '5'))}")
    p.s(f"s_lshr_b32 s{S_T1}, s2, 3")
    p.s(f"s_add_u32 s{S_T0}, s{S_T0}, s{S_T1}")
    p.s(f"s_and_b32 s{S_T0}, s{S_T0}, {15 if int(E('KROT', '5')) else 0}")
    p.s(f"s_lshl_b32 s{S_KOFF}, s{S_T0}, 13")
    p.s(f"s_mov_b32 s{S_M0KVP}, s{S_M0KV}")
    p.s(f"s_mov_b32 s{S_M0KVP+1}, s{S_M0W}")
    p.s(f"s_mov_b32 s{S_KVP}, s{S_KVN}")
    p.s(f"s_mov_b32 s{S_EM}, 0")
    p.s(f"s_movk_i32 s{S_ED}, 2048")
    p.s(f"s_mov_b32 s{S_TAB}, 0x83210549")
    srd(SRD_E, 0, 1 << 27)
    p.s(f"s_and_b32 s{S_U}, s{S_W}, 1")
    p.s(f"s_lshl_b32 s{S_T0}, s{S_B}, 2")
    p.s(f"s_lshr_b32 s{S_T1}, s{S_G}, 1")
    p.s(f"s_add_u32 s{S_T0}, s{S_T0}, s{S_T1}")
    p.s(f"s_and_b32 s{S_T1}, s{S_G}, 1")
    p.s(f"s_lshl_b32 s{S_WFP}, s{S_P}, 7")
    p.s(f"s_add_u32 s{S_WFP}, s{S_WFP}, s{S_T0}")
    p.s(f"s_lshl1_add_u32 s{S_WFP}, s{S_WFP}, s{S_T1}")
    p.s(f"s_lshl1_add_u32 s{S_WFP}, s{S_WFP}, s{S_U}")
    p.s(f"s_lshl3_add_u32 s{S_WFP}, s{S_WFP}, {WFLG}")
    p.s(f"s_mul_i32 s{S_T0}, s{S_T0}, 40960")
    p.s(f"s_mul_i32 s{S_PT}, s{S_T1}, 20480")
    p.s(f"s_add_u32 s{S_PT}, s{S_PT}, s{S_T0}")
    p.s(f"s_lshl_b32 s{S_EW}, s{S_W}, 10")
    p.s(f"s_add_u32 s{S_PT}, s{S_PT}, s{S_EW}")
    p.s(f"s_add_u32 s{S_EW}, s{S_EW}, {STG}")
    p.s(f"s_mul_i32 s{S_T1}, s{S_T1}, 640")
    p.s(f"s_add_u32 s{S_WT}, s{S_T1}, s{S_T0}")
    p.s(f"s_mul_i32 s{S_T1}, s{S_W}, {8 * 1280}")
    p.s(f"s_add_u32 s{S_WT}, s{S_WT}, s{S_T1}")
    p.s(f"s_mov_b32 s{S_WEND}, {0x7c | ((0xfff << (15 + PFS)) & 0x7fff0000):#x}")
    if PFN:
        p.s(f"s_lshl_b32 s94, s{S_W}, 10")
        p.s(f"s_add_u32 s94, s94, {XRING + XSL}")
        p.s(f"s_sub_u32 s{S_PFO}, s{S_KOFF}, {8192 * PFN // 2 * (PFS - 1) + 65536 * (int(E('PFD', '0')) == 1)}")
        if int(E("PFD", "0")) == 2:
            p.s(f"s_add_u32 s{S_T0}, s{S_B}, s{S_G}")
            p.s(f"s_add_u32 s{S_T0}, s{S_T0}, s{S_P}")
            p.s(f"s_and_b32 s{S_T0}, s{S_T0}, 3")
            p.s(f"s_lshl_b32 s{S_T0}, s{S_T0}, 11")
            p.s(f"s_add_u32 s{S_PFO}, s{S_PFO}, s{S_T0}")
        p.s(f"s_mov_b32 s{S_PFB}, " + (f"s{S_KVP}" if PFS == 1 else f"{OOB:#x}"))
    if int(E("TOUCH", "0")):
        p.add(Ins(f"buffer_load_dword v{V_T+4}, off, s[{SRD_K}:{SRD_K+3}], s{S_KVN} nt", "vml", [], [V_T + 4], tag="touch"))
        p.add(Ins(f"buffer_load_dword v{V_T+5}, off, s[{SRD_V}:{SRD_V+3}], s{S_KVN} nt", "vml", [], [V_T + 5], tag="touch"))
        p.add(Ins(f"buffer_load_dword v{V_T+7}, off, s[{SRD_WS}:{SRD_WS+3}], s{S_PT} sc1", "vml", [], [V_T + 7], tag="touch"))
        if int(E("TOUCHO", "1")): p.add(Ins(f"buffer_load_dword v{V_T+6}, off, s[{SRD_WO}:{SRD_WO+3}], s{S_WT}", "vml", [], [V_T + 6], tag="touch"))
    p.s(f"s_sub_u32 s{S_WT}, s{S_WT}, 256")
    FWARM = int(E("FWARM", "3"))
    if FWARM & 1:
        p.s(f"s_lshl2_add_u32 s{S_T0}, s{S_B}, s{S_W}")
        p.s(f"s_mul_i32 s{S_T0}, s{S_T0}, {4 * FS}")
        p.s(f"s_lshl_b32 s{S_T1}, s{S_G}, {FG}")
        p.s(f"s_add_u32 s{S_T0}, s{S_T0}, s{S_T1}")
        p.s(f"s_add_u32 s{S_T2}, s{S_T0}, {PFLG}")
        p.vop("v_mul_u32_u24", 4, f"{FS}", PI)
        if not FWL: p.add(Ins(f"buffer_load_dword v{V_JUNK}, off, s[{SRD_WS}:{SRD_WS+3}], s{S_T2} sc1", "vm", [], [], tag="touch"))
    if FWARM & 4:
        p.s(f"s_lshl2_add_u32 s{S_T0}, s{S_B}, s{S_W}")
        p.s(f"s_mul_i32 s{S_T1}, s{S_T0}, {PARTB // 4}")
        p.s(f"s_add_u32 s{S_T1}, s{S_T1}, {PART}")
        p.add(Ins(f"buffer_load_dword v{V_JUNK}, off, s[{SRD_WS}:{SRD_WS+3}], s{S_T1} sc1 nt", "vm", [], [], tag="touch"))
        p.s(f"s_mul_i32 s{S_T1}, s{S_T0}, {36 * 1280}")
        p.add(Ins(f"buffer_load_dword v{V_JUNK}, off, s[{SRD_OUT}:{SRD_OUT+3}], s{S_T1} sc1 nt", "vm", [], [], tag="touch"))
    if FWARM & 8:
        p.vop("v_mul_u32_u24", V_T + 3, f"{PARTB // 64}", L)
        p.s(f"s_mul_i32 s{S_T1}, s{S_B}, {PARTB}")
        p.s(f"s_add_u32 s{S_T1}, s{S_T1}, {PART}")
        p.s(f"s_cmp_eq_u32 s{S_W}, 0")
        p.s(f"s_cselect_b32 s{S_T1}, s{S_T1}, {OOB:#x}")
        p.add(Ins(f"buffer_load_dword v{V_JUNK}, v{V_T+3}, s[{SRD_WS}:{SRD_WS+3}], s{S_T1} offen sc1 nt", "vm", [V_T + 3], [], tag="touch"))
    if FWARM & 2 and not FWL: p.add(Ins(f"buffer_load_dword v{V_JUNK}, off, s[{SRD_WS}:{SRD_WS+3}], s{S_WFP} sc1", "vm", [], [], tag="touch"))
    p.s(f"s_or_b32 s{S_T0}, s2, s{S_W}")
    p.s(f"s_cmp_lg_u32 s{S_T0}, 0")
    p.s(f"s_cbranch_scc1 {name}_nononce")
    p.s(f"s_memrealtime s[{S_NON}:{S_NON+1}]")
    p.s("s_waitcnt lgkmcnt(0)")
    p.s(f"s_or_b32 s{S_NON+1}, s{S_NON+1}, 0x80000000")
    p.raw(f"v_mov_b32 v{V_T}, s{S_NON}")
    p.raw(f"v_mov_b32 v{V_T+1}, s{S_NON+1}")
    p.s("s_mov_b64 exec, 1")
    p.raw(f"buffer_store_dwordx2 v[{V_T}:{V_T+1}], v{V_LIN}, s[{SRD_DBG}:{SRD_DBG+3}], 0 offen sc1")
    p.s("s_mov_b64 exec, -1")
    p.label(f"{name}_nononce")
    p.s(f"s_mov_b32 s{S_SPIN}, 0x40000")
    p.s(f"s_mov_b32 s{S_PH}, 0")
    if QT:
        p.s(f"s_add_u32 s{S_T0}, s{S_B}, s{S_G}")
        p.s(f"s_and_b32 s{S_T0}, s{S_T0}, {QT[1]}")
        p.s(f"s_add_u32 s{S_T0}, s{S_T0}, {QT[0]}")
        p.s(f"s_lshl_b32 s{S_TI}, 1, s{S_T0}")
    if PROF in (2, 3): p.s("s_mov_b32 s93, 32")
    p.s(f"s_mov_b64 s[{S_BAD}:{S_BAD+1}], 0")
    p.s(f"s_mov_b32 s{S_CS}, {f2u(CSCALE):#x}")
    p.s(f"s_mov_b32 s{S_CS+1}, s{S_CS}")
    p.s(f"s_mov_b32 s{S_LO}, {f2u(2.0 ** -24):#x}")
    p.s(f"s_mov_b32 s{S_HI}, {f2u(2.0 ** 16):#x}")
    p.vop("v_and_b32", M, "15", L)
    p.vop("v_lshrrev_b32", G, "4", L)
    p.vop("v_lshrrev_b32", a, "3", M)
    p.vop("v_mul_u32_u24", c, "3", a)
    p.vop("v_xor_b32", c, c, G)
    p.vop("v_and_b32", b, "7", M)
    p.vop("v_lshlrev_b32", b, "6", b)
    p.vop("v_lshl_add_u32", b, c, "4", b)
    p.vop("v_lshl_add_u32", b, a, "10", b)
    p.vop("v_add_u32", V_AX8, f"{XRING}", b)
    p.vop("v_lshl_add_u32", V_AX, U, "13", V_AX8)
    p.vop("v_add_u32", V_AW + 5, f"{XALT}", b)
    p.vop("v_lshl_add_u32", V_AW + 4, U, "13", V_AW + 5)
    p.vop("v_and_b32", c, "0x1ff", V_LIN)
    p.vop("v_lshl_add_u32", c, VV, "10", c)
    p.vop("v_lshl_add_u32", c, P, "9", c)
    p.vop("v_lshl_add_u32", c, U, "3", c)
    p.vop("v_add_u32", V_WR, f"{STG + 4096}", c)
    p.vop("v_and_b32", b, "0xffffffcf", b)
    p.vop("v_bfe_u32", a, M, "2", "1")
    p.vop("v_lshlrev_b32", a, "1", a)
    p.vop("v_xor_b32", a, a, G)
    p.vop("v_lshl_add_u32", b, a, "4", b)
    p.vop("v_lshl_add_u32", V_AK, P, "13", b)
    p.vop("v_lshrrev_b32", a, "1", G)
    p.vop("v_lshlrev_b32", b, "10", a)
    p.vop("v_lshl_add_u32", b, R8, "6", b)
    p.vop("v_and_b32", c, "1", L)
    p.vop("v_lshl_add_u32", b, c, "3", b)
    p.vop("v_bfe_u32", c, L, "1", "1")
    p.vop("v_lshl_add_u32", b, c, "4", b)
    p.vop("v_and_b32", c, "1", G)
    p.vop("v_lshl_add_u32", b, c, "5", b)
    p.vop("v_lshl_add_u32", V_AV0, P, "13", b)
    p.vop("v_xor_b32", V_AV1, "32", V_AV0)
    p.vop("v_lshl_add_u32", a, U, "9", V_AV0)
    p.vop("v_xor_b32", b, "32", a)
    p.vop("v_xor_b32", c, "512", a)
    p.vop("v_xor_b32", d, "512", b)
    for i, r in enumerate((a, b, c, d)): p.vop("v_add_u32", V_AW + i, f"{WRING}", r)
    for n in range(4):
        for r in range(4): p.vop("v_mov_b32", QA(0, n, 7) + r, "0")
    for ops in (w_ops(2), x_ops(1), w_ops(3))[:3 - PRO]:
        for f, _ in ops: f(p)
    stamp(p, 23)
    return p

def R128(d, a, off): return lambda p: p.ds_read128(d, a, off)
def TR(d, a, off): return lambda p: p.ds_tr(d, a, off)

class Pool:
    def __init__(self, sc, base, n):
        self.sc = sc; self.regs = base if isinstance(base, list) else [base + 4 * k for k in range(n)]; n = len(self.regs); self.n = n; self.last = [None] * n; self.i = 0; self.frags = []
    def frag(self, tile, mk_reads, consumers, as_b=False):
        k = self.i % self.n; self.i += 1
        r = self.regs[k]
        war = self.last[k]
        for (d, o, c, tag) in consumers:
            if as_b: self.sc.mfma(d, o, r, c, tag)
            else: self.sc.mfma(d, r, o, c, tag)
        self.last[k] = consumers[-1][3]
        self.frags.append((tile, mk_reads(r), consumers[0][3], war))

LEAD = int(E("LEAD", "9"))
LEADB = int(E("LEADB", "8"))
BGAP = int(E("BGAP", "4"))

def sstamp(p):
    p.s(f"s_memrealtime s[{S_TM}:{S_TM+1}]")
    p.s(f"s_memtime s[{S_TM+2}:{S_TM+3}]")
    p.wait_lgkm0()
    p.s("s_mov_b32 s99, m0")
    p.s("s_mov_b32 m0, s93")
    p.s("s_add_u32 s93, s93, 1")
    p.raw(f"v_writelane_b32 v0, s{S_TM}, m0")
    p.raw(f"v_writelane_b32 v255, s{S_TM+2}, m0")
    p.s("s_mov_b32 m0, s99")

QT = [int(x) for x in E("QT", "").split(",") if x]
def qmod(name):
    p = Prog()
    KVS = [-1] * 4 + [int(x) for x in E("KVS", "37,0,0,36" if W39 else "37,0,0,0").split(",")]
    WSH = int(E("WSH", "38"))
    sc = Sched(p, budget=int(E("QBUD", "8")), late_extra=8)
    sc.group["dma"] = "vm"; sc.pace["vm"] = int(E("QPACE", "4"))
    sc.maxds = int(E("QMAXDS", "1"))
    pool = Pool(sc, A_QP, NPOOL)
    XS2 = lambda i, kh, n: (A_Q + 40 if i & 1 else V_S) + (kh * 5 + n) * 4
    for h in range(40):
        r = 1 - ((h >> 1) & 1); mh = h & 1
        for k in range(4):
            ns = list(range(5 if k < 2 else 4))
            if k % 2 == 0: ns.reverse()
            qa = lambda n: QA(r, n, 4 * mh + k if n < 4 else 2 * mh + k)
            for kh in range(2):
                off = (h % 4) * 16384 + kh * 4096
                cons = [(qa(n), XS2(h // 4, kh, n), qa(n) if (4 * h + k >= 15 or kh != (j & 1)) else None, ("Q", h, k, j, kh)) for j, n in enumerate(ns)]
                pool.frag(h, lambda rg: [TR(rg, V_AW + k, off), TR(rg + 2, V_AW + k, off + 2048)], cons)
            k0 = len(sc.m) - 2 * len(ns)
            sc.m[k0:] = sorted(sc.m[k0:], key=lambda x: (x[4][3], x[4][4] ^ (x[4][3] & 1)))
            for i in range(k0, len(sc.m)): sc.idx[sc.m[i][4]] = i
    mt = lambda i: sc.m[max(0, min(i, len(sc.m) - 1))][4]
    def xreads(i):
        return [R128(XS2(i, kh, n), (V_AX if i else V_AW + 4) + (n >> 2), (n if n < 4 else 8) * 2048 + kh * 512) for n in (4, 3, 2, 1, 0) for kh in range(2)]
    for fi, (h, reads, cons, war) in enumerate(pool.frags):
        c0 = 36 * h
        tau = c0 - LEADB
        taun = c0 + 36 - LEADB
        if fi % 8 == 0:
            def bar(p, h=h):
                p.comment(f"---- q step {h}")
                tags = [("W", h)]
                if h == 0: tags.append(("X", 0))
                if h % 4 == 3 and h < 39: tags.append(("X", (h + 1) // 4))
                if h % 4 == EKP[3] and 4 <= h < 36: tags.append(("WOP", h // 4 - 1))
                if QT and h % 4 in QT[3:] and h >= 1:
                    p.s(f"s_lshr_b32 s{S_TI}, s{S_TI}, 1")
                    p.s("s_cbranch_scc0 1")
                    p.raw(f"s_waitcnt vmcnt({QT[2]})")
                p.wait_vm(tags, lgkm0=True)
                if "b" not in ABL or h < 4: p.barrier()
                if h == 39 and W39:
                    for i in range(4): p.vop("v_add_u32", V_AW + i, "16384", V_AW + i)
                if PROF == 2 and h % 2 == 0: sstamp(p)
                if int(E("QSL", "0")) and (h < 3 or int(E("QSA", "0"))): p.raw(f"s_nop {int(E('QSL', '0'))}")
            ops = []
            if h % 4 == 0 and 4 <= h < 36: ops += x_ops(h // 4 + 1)
            if 1 <= h < 37: ops += w_ops(h + 3)
            if h == 0 and PRO: ops += sum([w_ops(2), x_ops(1), w_ops(3)][3 - PRO:], [])
            if int(E("XW", "0")) and h % 4 == 0 and 4 <= h < 36: ops = xw_ops(h // 4 + 1, h + 3)
            if "d" in ABL: ops = []
            nb = len(ops)
            if h < 36: ops = ek_ops(h) + ops if (str(h % 4) in E("EKF", "")) else ops + ek_ops(h)
            nb = len(ops) - nb
            if h % 4 == EKP[3] and 4 <= h < 36:
                for r in range(15, -1, -1): sc.fill("rw", lambda p, r=r: p.amov(A_Q + 4 + r, A_Q + r), 4, after=dict(tag=("BAR", h), delay=14))
                for i in range(2): sc.fill("rw", TR(A_Q + 2 * i, V_WR, i * 2048), 4, ds=True, before=mt(taun - BGAP), lead=2)
                sc.fill("rw", lambda p: p.vop("v_xor_b32", V_WR, "4096", V_WR), 4, before=mt(taun - 1))
            for k, x in enumerate(KVS):
                if x == h and h: ops += kv_ops(32 + k)
            if h == WSH and "S" not in ABL: ops += [(wst, 20)]
            sc.fill("rd", bar, 8, before=mt(tau), early=0 if h else None, tag=("BAR", h))
            QD = int(E("QD", "14")) - 4 * nb * int(E("QDE", "1")) if (len(ops) - nb <= 4 and h) else int(E("QD2", "0"))
            fill_dma(sc, ops, dict(tag=("BAR", h), delay=QD), mt(taun - 1), tag="WST" if h == WSH else None)
            if h == 0:
                for k, fn in enumerate(xreads(0)): sc.fill("rx", fn, 4, ds=True, after=("BAR", 0), before=mt(max(0, k - 5)))
            if h % 4 == 3 and h < 39:
                for j, fn in enumerate(xreads((h + 1) // 4)): sc.fill("rx", fn, 4, ds=True, after=("BAR", h), before=mt(taun - BGAP), lead=2 * (10 - j))
        for k, fn in enumerate(reads):
            if "r" in ABL and h >= 2: continue
            bf = cons
            if sc.idx[cons] > taun - BGAP: bf = mt(taun - BGAP)
            sc.fill("rd", fn, 4, ds=True, after=war if k == 0 else None, before=bf, lead=LEAD if bf is cons else 0, early=int(E("QEARLY", "99")))
    def lastbar(p):
        p.comment("---- q step 40")
        p.wait_lgkm0(); p.barrier()
        p.add(Ins(f"buffer_load_dwordx2 v[{V_NV}:{V_NV+1}], off, s[{SRD_DBG}:{SRD_DBG+3}], 0 sc1", "vml", [], [V_NV, V_NV + 1], tag="non"))
    sc.fill("rd", lastbar, 8, before=mt(36 * 40 - LEADB), early=0)
    def eaddr(p):
        p.v(f"v_lshl_add_u32 v{V_E0}, s{S_W}, 12, v{V_LIN}", [V_E0], [V_LIN])
        p.vop("v_add_u32", V_E0, f"{XRING}", V_E0)
        p.vop("v_xor_b32", V_E1, "4096", V_E0)
        p.vop("v_and_b32", V_E2, "0xfffffcf0", V_E0)
        p.vop("v_bfe_u32", V_T, V_LIN, "9", "1")
        p.vop("v_lshl_add_u32", V_E2, V_T, "8", V_E2)
        p.vop("v_bfe_u32", V_T, V_LIN, "8", "1")
        p.vop("v_lshl_add_u32", V_E2, V_T, "3", V_E2)
    z = Prog(); eaddr(z)
    for x in z.ins: sc.fill("fa", lambda p, x=x: p.add(x), 4, after=("BAR", 36))
    NH1, NH0 = [int(x) for x in E("NH", "10,3").split(",")]
    hid = [(1, n, t) for t in range(4) for n in range(4)][:NH1] + [(0, n, t) for t in range(2) for n in range(3)][:NH0]
    for k, (r, n, t) in enumerate(hid):
        done = dict(tag=mt(36 * (38 - 2 * r + (t >> 1)) + (20 if t % 2 == 0 else 36) - 1), delay=2)
        s0 = V_S + 8 * (k % 4) if r else QA(0, n, 2 * t)
        if r:
            for x in range(8): sc.fill("fa", lambda p, s0=s0, x=x, n=n, t=t: p.ar(s0 + x, QA(1, n, 2 * t + (x >> 2)) + (x & 3)), 4, after=[done] + ([("FP", k - 3)] if k >= 4 else []), tag=("FA", k) if x == 7 else None)
        def clump(p, k=k, s0=s0, prev=None if k == 0 else sprev):
            if k: p.ds_write2(V_E2, prev, 16384 + ((k - 1) % 4) * 1024)
            for x in range(0, 8, 2): p.pkmul(s0 + x, s0 + x, f"s[{S_CS}:{S_CS+1}]")
        sc.fill("fp", clump, 8, solo=True, after=[("FA", k) if r else done] + ([("FC", k - 1)] if k else []) + ([("FR", k - 5)] if k >= 5 else []), tag=("FP", k), before=mt(1439), lead=400)
        for x in range(4): sc.fill("fc", lambda p, s0=s0, x=x: p.cvtpk(s0 + x, s0 + 2 * x, s0 + 2 * x + 1), 4, after=("FP", k), tag=("FC", k) if x == 3 else None, before=mt(1439), lead=1)
        sc.fill("fr", R128(Qf(n, t, A_QN if r else A_Q), V_E0, 16384 + (k % 4) * 1024), 4, ds=True, after=[("FP", k + 1)] + ([] if r else ["WST"]), tag=("FR", k), before=mt(1439), lead=2)
        sprev = s0
    if hid: sc.fill("fp", lambda p: p.ds_write2(V_E2, sprev, 16384 + ((len(hid) - 1) % 4) * 1024), 8, solo=True, after=[("FC", len(hid) - 1)] + ([("FR", len(hid) - 5)] if len(hid) >= 5 else []), tag=("FP", len(hid)), before=mt(1439), lead=400)
    sc.run()
    stamp(p, 1)
    fstart = len(p.ins)
    TB = V_O + 144
    cnt = [0]
    def fin(r, n, t, i):
        s0 = QA(r, n, 2 * t)
        if r:
            tb = TB + 8 * (cnt[0] & 1); cnt[0] += 1
            for x in range(8): p.ar(tb + x, QA(r, n, 2 * t + (x >> 2)) + (x & 3))
            s0 = tb
        dst = V_S + 4 * i
        for x in range(0, 8, 2): p.pkmul(s0 + x, s0 + x, f"s[{S_CS}:{S_CS+1}]")
        for x in range(4): p.cvtpk(dst + x, s0 + 2 * x, s0 + 2 * x + 1)
        return dst
    for r in range(2):
        for t in range(2): p.ds_write2(V_E2, fin(r, 4, t, 2 * r + t), (2 * r + t) * 1024)
    left = [(r, n, t) for r in (1, 0) for n in range(4) for t in range(4) if (r, n, t) not in hid]
    FL = [int(x) for x in E("FLD", "02")]
    for g0 in range(0, len(left), 4):
        ds = {}; rd = []
        for j, (r, n, t) in enumerate(left[g0:g0 + 4]):
            d = fin(r, n, t, 4 + (g0 & 4) + j); q = Qf(n, t, A_QN if r else A_Q)
            if j in FL: p.ds_write2(V_E2, d, 16384 + j * 1024); rd.append((q, j))
            else: ds[q] = d
        for f in (p.swap32, p.swap16):
            for d in ds.values(): f(d, d + 2); f(d + 1, d + 3)
        for q, j in rd: p.ds_read128(q, V_E0, 16384 + j * 1024)
        for q, d in ds.items():
            for x in range(4): p.aw(q + x, d + x)
        if g0 == 4:
            p.raw(f"s_waitcnt lgkmcnt({2 * len(FL)})"); p.barrier()
            for r in range(2):
                for t in range(2): p.ds_read128(Qf(4, 2 * t, A_QN if r else A_Q), V_E0, (2 * r + t) * 1024)
                for t in range(2): p.ds_read128(Qf(4, 2 * t + 1, A_QN if r else A_Q), V_E1, (2 * r + t) * 1024)
    p.vop("v_mov_b32", V_T, "0x3f803f80")
    for r in range(4): p.aw(A_ONE + r, V_T)
    sprinkle([(p, fstart)], sum([kv_ops(32 + k) for k in range(4, 8 - T7) if KVS[k] == 0], []), 0.0, float(E("QSH", "1.0")))
    stamp(p, 26)
    get_nonce(p, f"{name}_n1", V_T)
    stamp(p, 27)
    p.wait_vm("wst")
    stamp(p, 28)
    publish(p, f"s{S_WFP}", 0, V_T)
    stamp(p, 29)
    z = p
    z.s(f"s_lshl_b32 s{S_PF}, s{S_U}, 12")
    z.s(f"s_lshl_b32 s{S_T1}, s{S_G}, 9")
    z.s(f"s_add_u32 s{S_PF}, s{S_PF}, s{S_T1}")
    z.s(f"s_add_u32 s{S_PF}, s{S_PF}, {WFLG}")
    z.vop("v_lshrrev_b32", V_AX, "1", V_LIN)
    for n in range(5): z.vop("v_mov_b32", V_DA + n, f"{DROP:#x}")
    ti_init(z, 0)
    stamp(z, 2)
    return p

def a_mfmas(sc, pool, qh):
    AV = (V_AV0, V_AV1)
    has8 = lambda u: (u & 1) == qh
    for pos, (kind, u) in enumerate(KVSEQ):
        sb = (pos % 4) * 16384
        ns = [0, 1, 2, 3] + ([4] if has8(u) else [])
        if kind == "K":
            for kt in range(2):
                for ks in range(4):
                    off = sb + kt * 2048 + (ks >> 1) * 4096 + ((ks & 1) ^ qh) * 512
                    cons = []
                    for n in ns:
                        d = XS(u & 1, n) if kt == 0 else YS(n)
                        cons.append((d, Qf(n, ks), d if ks else None, ("S", u, kt, ks, n)))
                    pool.frag(pos, lambda r: [R128(r, V_AK, off)], cons)
                SCH = int(E("SCH", "4"))
                k0 = len(sc.m) - 4 * len(ns)
                sc.m[k0:] = sorted(sc.m[k0:], key=lambda x: (x[4][3] // SCH, x[4][4], x[4][3]))
                for k in range(k0, len(sc.m)): sc.idx[sc.m[k][4]] = k
        else:
            first = lambda n: u == 0 if n < 4 else u == qh
            for n in ns: sc.mfma(La(n), A_ONE, XS(u & 1, n), None if first(n) else La(n), ("L", u, n))
            for m in range(8):
                e, mp = m & 1, m >> 1
                off = sb + (mp >> 1) * 4096 + (mp & 1) * 512
                oa = lambda n: Oa(n, m if n < 4 else m ^ (4 * qh))
                cons = [(oa(n), XS(u & 1, n), None if first(n) else oa(n), ("PV", u, m, n)) for n in ns]
                if int(E("SNK", "1")) and m % 2 == 0: cons.reverse()
                pool.frag(pos, lambda r: [TR(r, AV[e], off), TR(r + 2, AV[e], off + 2048)], cons)

def a_taus():
    cs = []
    for qh in range(2):
        sc = Sched(Prog()); pool = Pool(sc, A_POOL, NPOOL); a_mfmas(sc, pool, qh)
        c = {}
        for (pos, _, cons, _) in pool.frags: c.setdefault(pos, sc.idx[cons])
        c[32] = len(sc.m) + LEADB - 3
        cs.append(c)
    return [min(cs[0][j], cs[1][j]) - LEADB for j in range(33)]

def aentry(name):
    p = Prog()
    p.label(f"{name}_A")
    p.s(f"s_mov_b32 s{S_KB}, s{S_KVN}")
    p.s(f"s_mov_b32 s{SRD_C+2}, 0x8000000")
    p.s(f"s_add_u32 s{S_KVN}, s{S_KVN}, {2 << 17}")
    p.s(f"s_cmp_eq_u32 s{S_PH}, 0")
    p.s(f"s_cselect_b32 s{S_M0KVP}, s{S_M0KV}, {DROP:#x}")
    p.s(f"s_cselect_b32 s{S_M0KVP+1}, s{S_M0W}, {DROP:#x}")
    p.s(f"s_cselect_b32 s{S_KVP}, s{S_KVN}, {OOB:#x}")
    p.s(f"s_cselect_b32 s{S_WT2}, {OOB:#x}, s{S_WT}")
    p.s(f"s_cmp_eq_u32 s{S_U}, 1")
    p.s(f"s_cbranch_scc1 {name}_A1")
    return p

def tile_addr(p, base, dst):
    p.s(f"s_cmp_lt_u32 s{S_G}, 5")
    p.s(f"s_cselect_b32 s{S_T0}, 1, 0")
    p.s(f"s_xor_b32 s{S_T0}, s{S_T0}, s{S_U}")
    p.v(f"v_lshl_add_u32 v{dst}, s{S_T0}, 12, v{base}", [dst], [base])
    for n in range(1, 4): p.vop("v_add_u32", dst + n, f"{1024 * n}", dst)

S_TI = 96
TI = [[tuple(int(x) for x in y.split("+")) for y in z.split(",")] for z in E("TI", "0+0,4+7;0+0,2+3").split(";")]
def ti_init(p, r):
    for k, (b, sp) in enumerate(TI[r]):
        if b < 0 or TI[0][k] == (0, 0): continue
        p.s(f"s_add_u32 s{S_T0}, s{S_B}, " + (f"s{S_G}" if int(E("TIG", "1")) else "0"))
        p.s(f"s_and_b32 s{S_T0}, s{S_T0}, {sp}" if sp >= 0 else f"s_andn2_b32 s{S_T0}, {-sp}, s{S_T0}")
        p.s(f"s_add_u32 s{S_T0}, s{S_T0}, {b}")
        p.s(f"s_lshl_b32 s{S_TI + k}, 1, s{S_T0}")
WLP = [int(x) for x in E("WLP", "0,0,0,1,1,1,2,2,2,3,3,3").split(",")]
AVT = [int(x) for x in E("AVT", "6,8,12,12,12,12,12,12").split(",") if x]
def avm(pos, last=False):
    if pos >= 30: return None
    pat = [int(x) for x in E("AVM", "3,4").split(",")]
    h = [int(x) for x in E("AVMH", "").split(",") if x]
    if pos < len(h): return h[pos]
    if last and pos >= 30 - len(AVT): return AVT[pos - 30]
    return pat[pos % len(pat)] + WLP.count(pos - 1) * int(E("WLC", "1"))
RQ = [int(x) for x in E("RQH", "3,3,3,3" if T7 else "0,3,3,2").split(",")] + [int(x) for k in "123" for x in E("RQ" + k, "43434343")] + [int(x) for x in E("RQT", "4,4,4,4").split(",")]
STREAM = sum([kv_ops(k) for k in range(8 - T7, 40 - T7)], [])
for s_ in range(32): assert sum(RQ[:s_ + 1]) <= 4 * (s_ + T7)
def amod(name, qh):
    p = Prog()
    p.label(f"{name}_A{qh}")
    sc = Sched(p, budget=int(E("ABUD", "8")), late_extra=int(E("ALATE", "8")))
    sc.group["dma"] = "vm"; sc.pace["vm"] = int(E("APACE", "2"))
    sc.maxds = int(E("AMAXDS", "1")); sc.noed = bool(int(E("NOED", "0"))); ASOLO = bool(int(E("ASOLO", "1")))
    pool = Pool(sc, A_POOL, NPOOL)
    a_mfmas(sc, pool, qh)
    tau = a_taus()
    mt = lambda i: sc.m[max(0, min(i, len(sc.m) - 1))][4]
    def add_bar(pos):
        def bar(p, pos=pos):
            p.comment(f"---- a step {pos}")
            if 30 - len(AVT) <= pos < 30:
                p.s(f"s_cmp_eq_u32 s{S_PH}, 0")
                p.s("s_cbranch_scc0 1")
                p.raw(f"s_waitcnt vmcnt({avm(pos)})")
            elif TI[0][pos % 2] != (0, 0) and pos < 30:
                p.s(f"s_lshr_b32 s{S_TI + pos % 2}, s{S_TI + pos % 2}, 1")
                p.s("s_cbranch_scc0 1")
                p.raw(f"s_waitcnt vmcnt({avm(pos) - int(E('TD', '1'))})")
            if pos < 32: p.wait_vm(KVSEQ[pos], lgkm0=True, cap=avm(pos, True))
            else: p.wait_lgkm0()
            p.barrier()
            if pos % 4 == 0 and pos:
                for r in (V_AV0, V_AV1, V_AK): p.vop("v_xor_b32", r, "0x10000", r)
            if PROF == 3 and pos % 2 == 0 and pos < 32: sstamp(p)
        sc.fill("rd", bar, 8, before=mt(tau[pos]), early=0 if pos else None, tag=("BAR", pos))
        if pos < 32:
            ops = STREAM[sum(RQ[:pos]):sum(RQ[:pos + 1])]
            aft = ("BAR", pos); bf = mt(tau[pos + 1] - 1)
            span = tau[pos + 1] - max(tau[pos], 0)
            if pos in CPA: ops = [(code_touch, 8)] + ops
            if pos == WTP: ops = [(lambda p: w_touch(p, 0), 8), (lambda p: w_touch(p, 64), 8)][:WTN] + ops
            for k, op in enumerate(ops): fill_dma(sc, [op], dict(tag=aft, delay=(k * (span - 2)) // len(ops)), bf, solo=ASOLO)
            for k in [k for k in range(12) if WLP[k] == pos]:
                for fn, kind, cost in split_ops([(wload(0, k, S_T2, S_WT2), 8)]):
                    sc.fill("dmp", fn, 8 if (kind == "vm" and ASOLO) else 4, after=dict(tag=aft, delay=(5 if WLP.count(pos) > 1 else 20) + 9 * (k - WLP.index(pos))), solo=(kind == "vm" and ASOLO), before=bf, lead=20)
            if pos == 30:
                WLS = int(E("WLS", "6"))
                last = ("S", 15, 1, 3, 4 if qh == 1 else 3)
                for k in range(12):
                    for fn, kind, cost in split_ops([(wload(0, 12 + k, S_T2, S_WT2), 8)]):
                        sc.fill("dmp", fn, 8 if (kind == "vm" and ASOLO) else 4, after=dict(tag=last, delay=2 + WLS * k), solo=(kind == "vm" and ASOLO), before=mt(sc.idx[last] + 12 + WLS * k), lead=9)
            if 26 <= pos < 30:
                t = pos - 26
                ws = [(V_DA + n, Qf(n, t, A_QN), t * 18432 + 1024) for n in range(4)]
                if t >> 1 == qh: ws.append((V_DA + 4, Qf(4, t & 1, A_QN), (t & 1) * 18432))
                for k, w in enumerate(ws):
                    sc.fill("dw", lambda p, w=w: p.ds_write(w[0], w[1], 4, w[2]), 8, solo=True, after=dict(tag=aft, delay=4 + k * ((span - 10) // len(ws))), before=mt(tau[pos + 1] - BGAP), lead=12)
            if pos == 31:
                for f in range(8): sc.fill("dw", R128(P0_B[f], V_LIN, IMG(f)), 4, ds=True, after=dict(tag=aft, delay=16 + 2 * f), before=mt(tau[32] - BGAP), lead=4)
    cur = None
    for (pos, reads, cons, war) in pool.frags:
        if pos != cur:
            cur = pos; add_bar(pos)
        for k, fn in enumerate(reads):
            bf = cons
            if sc.idx[cons] > tau[pos + 1] - BGAP: bf = mt(tau[pos + 1] - BGAP)
            sc.fill("rd", fn, 4, ds=True, after=war if k == 0 else None, before=bf, lead=LEAD if bf is cons else 0)
    add_bar(32)
    def V(fn, after=None, before=None, cost=4, lead=0): sc.fill("va", fn, cost, after=after, before=before, lead=lead)
    EDL = int(E("EDL", "3"))
    for u in range(16):
        ns = [0, 1, 2, 3] + ([4] if (u & 1) == qh else [])
        for kt in range(2):
            for n in ns:
                src = XS(u & 1, n) if kt == 0 else YS(n)
                dst = XS(u & 1, n) + 2 * kt
                for r in range(4):
                    V(lambda p, reg=src + r: p.exp(reg, reg), after=dict(tag=("S", u, kt, 3, n), delay=EDL), cost=8)
                bf = ("L", u, n)
                if kt == 1 and n < 4 and u < 15: bf = ("S", u + 1, 1, 0, n)
                V(lambda p, dst=dst, src=src: p.cvtpk(dst, src, src + 1))
                V(lambda p, dst=dst, src=src: p.cvtpk(dst + 1, src + 2, src + 3), before=bf, lead=2)
    sc.run()
    p.s(f"s_cmp_eq_u32 s{S_PH}, 0")
    p.s(f"s_cbranch_scc0 {name}_P0")
    if qh == 0: p.s(f"s_branch {name}_F")
    return p

RL, CHK, PX, AD, AL = V_S + 2, V_S + 12, V_S + 16, V_S + 48, V_S + 50
def f_addr(p):
    p.v(f"v_lshl_add_u32 v{AD}, s{S_W}, 12, v{V_LIN}", [AD], [V_LIN])
    p.vop("v_add_u32", AD, f"{MISC}", AD)
    p.vop("v_xor_b32", AD + 1, "4096", AD)
def f_bad(op, a, b):
    def f(p):
        p.add(Ins(f"{op} vcc, v{a}, {b}", "valu", [a], []))
        p.s(f"s_or_b64 s[{S_BAD}:{S_BAD+1}], s[{S_BAD}:{S_BAD+1}], vcc")
    return f
def f_rcp(n): return [lambda p: p.vop("v_rcp_f32", RL + 2 * n, RL + 2 * n, kind="trans"), lambda p: p.vop("v_mov_b32", RL + 2 * n + 1, RL + 2 * n)]
def f_range():
    return [lambda p: p.vop("v_max3_f32", V_S, RL, RL + 2, RL + 4), lambda p: p.vop("v_min3_f32", V_S + 1, RL, RL + 2, RL + 4),
            lambda p: p.vop("v_max3_f32", V_S, V_S, RL + 6, RL + 8), lambda p: p.vop("v_min3_f32", V_S + 1, V_S + 1, RL + 6, RL + 8),
            f_bad("v_cmp_nle_f32", V_S, f"s{S_HI}"), f_bad("v_cmp_nge_f32", V_S + 1, f"s{S_LO}")]
def f_fin(): return [lambda p: p.s(f"s_movk_i32 s{S_T2}, 0x207"), f_bad("v_cmp_class_f32", CHK, f"s{S_T2}")]
def f_norm(n, t):
    s0 = Oa(n, 2 * t)
    add = [lambda p, r=r: p.add(Ins(f"v_pk_add_f32 {vr(s0 + r, 2)}, {vr(s0 + r, 2)}, {vr(PX + 8 * t + r, 2)}", "valu", R(s0 + r, 2) | R(PX + 8 * t + r, 2), R(s0 + r, 2))) for r in range(0, 8, 2)] if n == 4 else []
    return add + [lambda p, r=r: p.pkmul(s0 + r, s0 + r, RL + 2 * n) for r in range(0, 8, 2)], [lambda p, r=r: p.cvtpk(s0 + r, s0 + 2 * r, s0 + 2 * r + 1) for r in range(4)]
def f_l8(): return [lambda p: p.vop("v_add_f32", RL + 8, RL + 8, V_S)] + f_rcp(4)
UNITS = [(n, t) for n in (0, 1, 2, 4, 3) for t in range(4 if n < 4 else 2)]
def afin(name):
    p = Prog()
    p.label(f"{name}_F")
    stamp(p, 5)
    poll_issue(p, V_AX, f"s{S_PF}", 0, V_NV)
    f_addr(p)
    for i in range(4): p.ds_write(AD + 1, Oa(4, 4 + i), 4, i * 1024)
    for i in range(2): p.vop("v_subrev_u32", AL + i, "16384", AD + i)
    p.ds_write(AL + 1, La(4), 1, 0)
    for n in range(5): p.ar(RL + 2 * n, La(n))
    for k in range(2):
        for n in range(4): f_rcp(n)[k](p)
    p.wait_lgkm0()
    for k, (n, t) in enumerate(UNITS):
        if k == 4:
            p.barrier()
            for i in range(4): p.ds_read128(PX + 4 * i, AD, i * 1024)
            p.ds_read32(V_S, AL, 0)
        if k == 11:
            for f in f_l8(): f(p)
        for f in sum(f_norm(n, t), []): f(p)
    for f in f_range(): f(p)
    p.s(f"s_mov_b32 s{S_PH}, 1")
    stamp(p, 6)
    for r in range(80):
        if r % 4 == 0 and r < 72: p.mfma(CHK, A_ONE, Oa(UNITS[r // 4][0], 2 * UNITS[r // 4][1]), CHK if r else None)
        p.amov(A_Q + r, A_QN + r)
    for n, t in UNITS:
        for r in range(4): p.aw(Qf(n, t, A_QN) + r, Oa(n, 2 * t) + r)
    for f in f_fin(): f(p)
    sprinkle([(p, 8)], STREAM[sum(RQ):], 0.0, float(E("ASH", "0.7")))
    code_touch(p)
    p.s(f"s_mul_i32 s{S_T0}, s{S_P}, 9216")
    p.vop("v_add_u32", V_DA + 4, f"s{S_T0}", V_LIN)
    tile_addr(p, V_DA + 4, V_DA)
    p.s(f"s_mul_i32 s{S_T0}, s{S_U}, 36864")
    p.vop("v_add_u32", V_DA + 4, f"s{S_T0}", V_DA + 4)
    psetup(p)
    ti_init(p, 1)
    poll_check(p, f"{name}_wpoll", V_AX, f"s{S_PF}", 0, V_NV)
    p.s(f"s_branch {name}_A")
    return p

P_R = ([A_X + 4 * i for i in range(10)] + [10, 14] + [A_Q + 4 * i for i in range(20)],
       [A_L + 4 * i for i in range(5)] + [A_POOL + 4 * i for i in range(6)] + [A_QN + 64 + 4 * i for i in range(4)] + [A_QN + 4 * i for i in range(16)] + [A_ONE])
P0_B = P_R[0][24:] + [A_QN + 4 * (i % 16) for i in range(64)]
def wload(j, i, so=None, sb=None, extra=0):
    def f(p):
        if i % 2 == 0: p.s(f"s_add_u32 s{so or S_SO}, s{sb or S_WT}, {(i >> 1) * 40960 + extra}")
        if "B" not in ABL: p.load4(P_R[j & 1][i], V_LIN, SRD_WS, f"s{so or S_SO}", (i & 1) * 1024, ("WT", j, i), "sc1")
    return f

def slow(name):
    SI, SC, SX, SWq, SKV, SD, SK = 56, 57, 58, 59, 88, 89, 90
    VW, VX, VK, VV_, VD = 28, 36, 37, 38, 39
    MX, NM, LA, QF, SS, FB, AC, RAW, FR = 40, 44, 48, 52, 68, 76, 84, 116, 180
    def ld(p, op, n, d, vo, srd, so, off):
        p.add(Ins(f"{op} {vr(d, n)}, v{vo}, s[{srd}:{srd+3}], s{so} offen offset:{off}", "vml", [vo], R(d, n), tag="sl"))
    p0 = Prog()
    p0.label(f"{name}_slow")
    p0.wait_all()
    M, G = MX, MX + 1
    p0.vop("v_bfe_u32", M, V_LIN, "4", "4")
    p0.vop("v_lshrrev_b32", G, "8", V_LIN)
    p0.vop("v_lshlrev_b32", VW, "16", G)
    p0.vop("v_lshl_add_u32", VW, M, "1", VW)
    for i in range(1, 8): p0.vop("v_add_u32", VW + i, f"{8192 * i}", VW)
    p0.s(f"s_movk_i32 s{S_T0}, 1280")
    p0.vop("v_mul_lo_u32", VX, M, f"s{S_T0}")
    p0.vop("v_lshl_add_u32", VX, G, "4", VX)
    p0.vop("v_lshlrev_b32", VK, "8", M)
    p0.vop("v_lshl_add_u32", VK, G, "3", VK)
    p0.vop("v_lshlrev_b32", VV_, "10", G)
    p0.vop("v_lshl_add_u32", VV_, M, "1", VV_)
    p0.s(f"s_mov_b32 s{SI}, 0")
    p1 = Prog()
    p1.label(f"{name}_sl_it")
    p1.s(f"s_cmp_ge_u32 s{SI}, 5")
    p1.s(f"s_cselect_b32 s{S_T0}, 2, 0")
    p1.s(f"s_cselect_b32 s{S_T1}, 5, 0")
    p1.s(f"s_cselect_b32 s{SD}, {73728}, 0")
    p1.s(f"s_sub_u32 s{S_T1}, s{SI}, s{S_T1}")
    p1.s(f"s_add_u32 s{S_T0}, s{S_T0}, s{S_P}")
    p1.s(f"s_mul_i32 s{S_T2}, s{S_P}, 9216")
    p1.s(f"s_add_u32 s{SD}, s{SD}, s{S_T2}")
    p1.s(f"s_lshl_b32 s{S_T2}, s{S_G}, 2")
    p1.s(f"s_add_u32 s{S_T0}, s{S_T0}, s{S_T2}")
    p1.s(f"s_lshl_b32 s{SWq}, s{S_T0}, 8")
    p1.s(f"s_lshl_b32 s{S_T2}, s{S_B}, 5")
    p1.s(f"s_add_u32 s{S_T0}, s{S_T0}, s{S_T2}")
    p1.s(f"s_lshl_b32 s{SKV}, s{S_T0}, 17")
    p1.s(f"s_lshl_b32 s{S_T0}, s{S_U}, 2")
    p1.s(f"s_add_u32 s{S_T0}, s{S_T0}, s{S_T1}")
    p1.s(f"s_cmp_lt_u32 s{S_G}, 5")
    p1.s(f"s_cselect_b32 s{S_T2}, 4, 0")
    p1.s(f"s_xor_b32 s{S_T2}, s{S_T2}, s{S_T0}")
    p1.s(f"s_add_u32 s{S_T2}, s{S_T2}, 1")
    p1.s(f"s_cmp_eq_u32 s{S_T1}, 4")
    p1.s(f"s_cselect_b32 s{S_T0}, 8, s{S_T0}")
    p1.s(f"s_cselect_b32 s{S_T2}, 0, s{S_T2}")
    p1.s(f"s_lshl_b32 s{S_T2}, s{S_T2}, 10")
    p1.s(f"s_add_u32 s{SD}, s{SD}, s{S_T2}")
    p1.vop("v_add_u32", VD, f"s{SD}", V_LIN)
    p1.s(f"s_mul_i32 s{S_T2}, s{S_B}, 9")
    p1.s(f"s_add_u32 s{S_T0}, s{S_T0}, s{S_T2}")
    p1.s(f"s_mul_i32 s{SX}, s{S_T0}, {16 * 1280}")
    for r in range(32): p1.vop("v_mov_b32", AC + r, "0")
    p1.s(f"s_mov_b32 s{SC}, 0")
    def pack(p):
        for r in range(32): p.vop("v_lshl_or_b32", FR + r, RAW + 2 * r + 1, "16", RAW + 2 * r)
    def loop_end(p, lab, n):
        p.s(f"s_add_u32 s{SC}, s{SC}, 1")
        p.s(f"s_cmp_lt_u32 s{SC}, {n}")
        p.s(f"s_cbranch_scc1 {lab}")
    p2 = Prog()
    p2.label(f"{name}_sl_q")
    ld(p2, "buffer_load_dwordx4", 4, FB, VX, SRD_X, SX, 0)
    for m in range(8):
        for i in range(8): ld(p2, "buffer_load_ushort", 1, RAW + 8 * m + i, VW + i, SRD_W, SWq, 32 * m)
        if m == 3: p2.wait_all()
    p2.wait_all()
    pack(p2)
    for m in range(8): p2.mfma(AC + 4 * m, FR + 4 * m, FB, AC + 4 * m)
    p2.s(f"s_add_u32 s{SX}, s{SX}, 64")
    p2.s(f"s_add_u32 s{SWq}, s{SWq}, {32 * 8192}")
    loop_end(p2, f"{name}_sl_q", 20)
    p3 = Prog()
    for r in range(32): p3.vop("v_mul_f32", AC + r, f"s{S_CS}", AC + r)
    for r in range(16): p3.cvtpk(QF + r, AC + 2 * r, AC + 2 * r + 1)
    for r in range(32): p3.vop("v_mov_b32", AC + r, "0")
    for r in range(4): p3.vop("v_mov_b32", LA + r, "0")
    p3.vop("v_mov_b32", MX, "0xff800000")
    p3.s(f"s_mov_b32 s{SK}, s{SKV}")
    p3.s(f"s_mov_b32 s{SC}, 0")
    def kfrags(p, dst, so):
        for ks in range(4):
            ld(p, "buffer_load_dwordx2", 2, dst + 4 * ks, VK, SRD_K, so, 64 * ks)
            ld(p, "buffer_load_dwordx2", 2, dst + 4 * ks + 2, VK, SRD_K, so, 64 * ks + 32)
    p4 = Prog()
    p4.label(f"{name}_sl_m")
    kfrags(p4, FR, SK)
    p4.wait_all()
    for ks in range(4): p4.mfma(SS, FR + 4 * ks, QF + 4 * ks, SS if ks else None)
    p4.vop("v_max3_f32", MX, MX, SS, SS + 1)
    p4.vop("v_max3_f32", MX, MX, SS + 2, SS + 3)
    p4.s(f"s_add_u32 s{SK}, s{SK}, 4096")
    loop_end(p4, f"{name}_sl_m", 32)
    p5 = Prog()
    for sw in (p5.swap32, p5.swap16):
        p5.vop("v_mov_b32", MX + 1, MX)
        sw(MX, MX + 1)
        p5.vop("v_max_f32", MX, MX, MX + 1)
    for r in range(4): p5.vop("v_sub_f32", NM + r, "0", MX)
    p5.s(f"s_mov_b32 s{SC}, 0")
    p6 = Prog()
    p6.label(f"{name}_sl_a")
    p6.s(f"s_add_u32 s{SK}, s{SKV}, 4096")
    kfrags(p6, FR, SKV)
    kfrags(p6, FR + 16, SK)
    p6.wait_all()
    for m in range(8):
        for i in range(8): ld(p6, "buffer_load_ushort", 1, RAW + 8 * m + i, VV_, SRD_V, SK if i >= 4 else SKV, 32 * m + 256 * (i & 3))
        if m == 3: p6.wait_all()
    for kt in range(2):
        for ks in range(4): p6.mfma(SS + 4 * kt, FR + 16 * kt + 4 * ks, QF + 4 * ks, SS + 4 * kt if ks else NM)
    for r in range(8): p6.exp(SS + r, SS + r)
    for r in range(4): p6.cvtpk(FB + r, SS + 2 * r, SS + 2 * r + 1)
    p6.wait_all()
    pack(p6)
    p6.mfma(LA, A_ONE, FB, LA)
    for m in range(8): p6.mfma(AC + 4 * m, FR + 4 * m, FB, AC + 4 * m)
    p6.s(f"s_add_u32 s{SKV}, s{SKV}, 8192")
    loop_end(p6, f"{name}_sl_a", 16)
    p7 = Prog()
    p7.vop("v_rcp_f32", LA, LA, kind="trans")
    for r in range(32): p7.vop("v_mul_f32", AC + r, AC + r, LA)
    for r in range(16): p7.cvtpk(QF + r, AC + 2 * r, AC + 2 * r + 1)
    for hf in range(2):
        p7.s(f"s_cmp_eq_u32 s{S_U}, {hf}")
        p7.s(f"s_cselect_b32 s{S_T0}, 0, s{S_T1}")
        p7.s(f"s_cmp_eq_u32 s{S_T0}, 4")
        p7.s(f"s_cbranch_scc1 {name}_sl_s{hf}")
        for t in (2 * hf, 2 * hf + 1): p7.ds_write(VD, QF + 4 * t, 4, t * 18432)
        p7.label(f"{name}_sl_s{hf}")
    p7.wait_all()
    p7.s(f"s_add_u32 s{SI}, s{SI}, 1")
    p7.s(f"s_cmp_lt_u32 s{SI}, 10")
    p7.s(f"s_cbranch_scc1 {name}_sl_it")
    p7.s(f"s_branch {name}_P2")
    body = [p1, p2, p2, p3, p4, p4, p5, p6, p6, p7]
    return [p0, p1, p2, p3, p4, p5, p6, p7], [p0] + body + body

S_ST = 62
S_PC, S_FO, S_PO = 71, 72, 73
S_OF = (4, 5, 6, 7, 74)
S_JA, S_JC, S_JO, S_WE = 77, 83, 52, 101
S_JE, S_EO = (79, 80), (61, 100)
def psetup(p):
    C, J, BW, OW = S_TM, S_TM + 1, S_TM + 2, S_TM + 3
    p.s(f"s_mul_i32 s{BW}, s{S_B}, {PARTB}")
    p.s(f"s_lshl_b32 s{S_T1}, s{S_W}, 11")
    p.s(f"s_add_u32 s{BW}, s{BW}, s{S_T1}")
    p.s(f"s_add_u32 s{BW}, s{BW}, {PART}")
    p.s(f"s_mul_i32 s{OW}, s{S_B}, {144 * 1280}")
    p.s(f"s_lshl_b32 s{S_T1}, s{S_W}, 6")
    p.s(f"s_add_u32 s{OW}, s{OW}, s{S_T1}")
    p.s(f"s_sub_u32 s{S_T0}, s{S_G}, 5")
    p.s(f"s_cselect_b32 s{C}, s{S_G}, s{S_T0}")
    p.s(f"s_cselect_b32 s{J}, 0, 1")
    p.s(f"s_add_u32 s{S_ST}, s{BW}, {8 * 81920}")
    p.s(f"s_mul_i32 s{S_T0}, s{J}, {4 * 81920}")
    p.s(f"s_add_u32 s{S_ST+5}, s{BW}, s{S_T0}")
    p.s(f"s_sub_u32 s{S_ST+1}, s{BW}, s{S_T0}")
    p.s(f"s_add_u32 s{S_ST+1}, s{S_ST+1}, {4 * 81920}")
    for i in (2, 3, 4, 6, 7, 8): p.s(f"s_add_u32 s{S_ST+i}, s{S_ST+i-1}, 81920")
    p.s(f"s_lshl_b32 s{S_T0}, s{C}, 13")
    p.s(f"s_add_u32 s{S_JA}, s{S_ST+5}, s{S_T0}")
    p.s(f"s_mul_i32 s{S_JO}, s{J}, {64 * 1280}")
    p.s(f"s_add_u32 s{S_JO}, s{S_JO}, s{OW}")
    p.s(f"s_lshl_b32 s{S_T0}, s{C}, 8")
    p.s(f"s_add_u32 s{S_JO}, s{S_JO}, s{S_T0}")
    p.s(f"s_mul_i32 s{S_WE}, s{S_G}, {16 * 40960}")
    p.s(f"s_lshl_b32 s{S_T0}, s{S_W}, 11")
    p.s(f"s_add_u32 s{S_WE}, s{S_WE}, s{S_T0}")
    for k in range(5):
        p.s(f"s_add_u32 s{C}, s{C}, 1")
        p.s(f"s_cmp_eq_u32 s{C}, 5")
        p.s(f"s_cselect_b32 s{C}, 0, s{C}")
        if k == 0:
            p.s(f"s_lshl_b32 s{S_WT}, s{C}, 13")
            p.s(f"s_add_u32 s{S_WT}, s{S_WT}, s{S_WE}")
            p.s(f"s_add_u32 s{S_WE}, s{S_WE}, 40960")
        p.s(f"s_and_b32 s{S_T0}, s{J}, 1")
        p.s(f"s_lshl3_add_u32 s{S_T0}, s{C}, s{S_T0}")
        p.s(f"s_lshl_b32 s{S_OF[k]}, s{S_T0}, 10")
        if k:
            p.s(f"s_bitcmp1_b32 s{J}, 1")
            p.s(f"s_cselect_b32 s{S_T0}, 40960, 0")
            p.s(f"s_add_u32 s{S_OF[k]}, s{S_OF[k]}, s{S_T0}")
        if k > 1:
            p.s(f"s_bitcmp1_b32 s{J}, 2")
            p.s(f"s_cselect_b32 s{S_T0}, {AREA}, 0")
            p.s(f"s_add_u32 s{S_OF[k]}, s{S_OF[k]}, s{S_T0}")
        if k < 4:
            p.s(f"s_cmp_lt_u32 s{C}, 3")
            p.s(f"s_addc_u32 s{J}, s{J}, 1")
    p.s(f"s_bitcmp1_b32 s{J}, 0")
    p.s(f"s_cselect_b32 s{S_T0}, 0, 1024")
    p.s(f"s_add_u32 s{S_JC}, s{S_JA}, s{S_T0}")
    for k in range(2):
        p.s(f"s_add_u32 s{S_T2}, s{S_G}, {8 * k + 11}")
        p.s(f"s_and_b32 s{S_T0}, s{S_T2}, 3")
        p.s(f"s_add_u32 s{S_T0}, s{S_T0}, 4")
        p.s(f"s_lshr_b32 s{S_T1}, s{S_T2}, 2")
        p.s(f"s_sub_u32 s{S_T1}, s{S_T1}, 1")
        if k == 0:
            p.s(f"s_cmp_lt_u32 s{S_G}, 5")
            p.s(f"s_cselect_b32 s{S_T0}, 8, s{S_T0}")
            p.s(f"s_cselect_b32 s{S_T1}, s{S_G}, s{S_T1}")
        p.s(f"s_mul_i32 s{S_JE[k]}, s{S_T0}, 10")
        p.s(f"s_add_u32 s{S_JE[k]}, s{S_JE[k]}, s{S_T1}")
        p.s(f"s_lshl_b32 s{S_JE[k]}, s{S_JE[k]}, 13")
        p.s(f"s_add_u32 s{S_JE[k]}, s{S_JE[k]}, s{BW}")
        p.s(f"s_mul_i32 s{S_EO[k]}, s{S_T0}, 80")
        p.s(f"s_add_u32 s{S_EO[k]}, s{S_EO[k]}, s{S_T1}")
        p.s(f"s_lshl_b32 s{S_EO[k]}, s{S_EO[k]}, 8")
        p.s(f"s_add_u32 s{S_EO[k]}, s{S_EO[k]}, s{OW}")
    p.s(f"s_cmp_ge_u32 s{S_G}, 5")
    p.s(f"s_cselect_b32 s{S_JE[1]}, {OOB:#x}, s{S_JE[1]}")
    p.s(f"s_cselect_b32 s{S_EO[1]}, {OOB:#x}, s{S_EO[1]}")
    p.s(f"s_lshl2_add_u32 s{S_PO}, s{S_B}, s{S_W}")
    p.s(f"s_mul_i32 s{S_PO}, s{S_PO}, {4 * FS}")
    p.s(f"s_add_u32 s{S_PO}, s{S_PO}, {PFLG - 2 * FS + OOB}")
    p.s(f"s_lshl_b32 s{S_FO}, s{S_G}, {FG}")
    p.s(f"s_add_u32 s{S_FO}, s{S_FO}, s{S_PO}")
    p.s(f"s_mov_b32 s{S_PC}, 0")

def pmod(name):
    p = Prog()
    p.label(f"{name}_fb")
    p.wait_all()
    p.s(f"s_cmp_lg_u64 s[{S_BAD}:{S_BAD+1}], 0")
    p.s(f"s_cbranch_scc1 {name}_slow")
    p.label(f"{name}_P2")
    AO = (V_LIN, 2, 3)
    V_FA, V_OA = 4, 5
    PT, PT2 = 6, 8
    V_SA, V_JA, PT3 = 1, 25, 26
    SEL = 18
    POOL = [28 + 4 * k for k in range(16)]
    ACC = 92
    OWN = 124
    PK, SUM, JB = 132, 140, 188
    CT = 244
    p.wait_all()
    p.barrier()
    NL = int(E("PLEAD", "8"))
    def ooff(i, kq): return IMG(kq) + i * 1024
    for f in range(NL): p.ds_read128(POOL[f], AO[ooff(0, f) // 49152], ooff(0, f) % 49152)
    p.vop("v_mov_b32", V_SA, f"{OOB:#x}")
    s0 = len(p.ins)
    p.vop("v_mov_b32", V_JA, f"{OOB:#x}")
    p.vop("v_bfe_u32", V_FA, V_LIN, "4", "3")
    p.vop("v_lshlrev_b32", V_FA, f"{FG}", V_FA)
    p.vop("v_bfe_u32", CT, V_LIN, "4", "4")
    p.s(f"s_movk_i32 s{S_T0}, 1280")
    p.vop("v_mul_lo_u32", V_OA, CT, f"s{S_T0}")
    p.vop("v_lshrrev_b32", CT + 1, "8", V_LIN)
    p.vop("v_lshl_add_u32", V_OA, CT + 1, "4", V_OA)
    p.vop("v_mov_b32", PT2, f"s{S_NON}")
    p.vop("v_mov_b32", PT2 + 1, f"s{S_NON+1}")
    p.vop("v_and_b32", CT + 2, "1", CT)
    p.vop("v_lshlrev_b32", CT + 2, "4", CT + 2)
    p.s(f"s_movk_i32 s{S_T0}, 0x3f80")
    p.vop("v_lshlrev_b32", CT + 2, CT + 2, f"s{S_T0}")
    p.vop("v_lshrrev_b32", CT, "1", CT)
    p.vop("v_lshlrev_b32", CT + 1, "1", CT + 1)
    p.vop("v_sub_u32", CT, CT, CT + 1)
    for r in range(2):
        p.add(Ins(f"v_cmp_eq_u32 vcc, {r}, v{CT}", "valu", [CT], []))
        p.vop("v_mov_b32", SEL + r, "0")
        p.vop("v_mov_b32", SEL + 4 + r, "0")
        p.add(Ins(f"v_cndmask_b32 v{SEL+2+r}, 0, v{CT+2}, vcc", "valu", [CT + 2], [SEL + 2 + r]))
    setup = p.ins[s0:]
    def jload(q, jl, dst, own=S_JA):
        def f(p):
            so = S_JE[q - 4] if q >= 4 else S_T1 if q else own
            if 0 < q < 4 and jl == 0: p.s(f"s_add_u32 s{S_T1}, s{own}, {q * 81920}")
            if "J" not in ABL or own != S_JA or dst < JB: p.load4(dst, V_JA, SRD_WS, f"s{so}", jl * 1024, "job", E("JFL", "sc1"))
        return f
    def reduce(p, q, bufs, init=False):
        for e in range(2):
            for k, bf in enumerate(bufs): p.mfma(SUM + 8 * q + 4 * e, SEL + 2 - 2 * e, bf, None if (init and k == 0) else SUM + 8 * q + 4 * e)
    def next_off(): return [lambda p: p.vop("v_add_u32", V_SA, f"s{S_OF[0]}", V_LIN)] + [lambda p, k=k: p.s(f"s_mov_b32 s{S_OF[k]}, s{S_OF[k+1]}") for k in range(4)]
    def next_pair(p, d):
        p.s(f"s_add_u32 s{d}, s{S_WT}, 8192")
        p.s(f"s_sub_u32 s{S_T2}, s{S_WE}, 40960")
        p.s(f"s_cmp_eq_u32 s{d}, s{S_WE}")
        p.s(f"s_cselect_b32 s{d}, s{S_T2}, s{d}")
    def flag(p, off, tag):
        p.wait_vm(tag)
        p.s("s_mov_b64 exec, 1")
        p.store(PT2, 2, V_LIN, SRD_WS, f"s{S_FO}", off, tag="flag", flags="sc1")
        p.s("s_mov_b64 exec, -1")
    FPOS = int(E("FPOS", "56")); PPB = int(E("PPB", "244")); WSP = float(E("WSP", "6")); PLAT = int(E("PLAT", "60")); CPOS = int(E("CPOS", "206")); WST = int(E("WST", "4"))
    CP2 = [int(x) for x in E("CP2", f"{CPOS},{CPOS}").split(",")]; JS2 = [float(x) for x in E("JS2", "5,5").split(",")]
    FPB = int(E("FPB", "0"))
    def pord(e0, e1, g):
        if not int(E("PORD", "1")): return e0 + e1
        a, b = (e1, e0) if g & 1 else (e0, e1)
        b = b[::-1]
        if b[-1][3] is None: b = [(b[0][0], b[0][1], b[0][2], None, b[0][4])] + b[1:-1] + [(b[-1][0], b[-1][1], b[-1][2], b[-1][0], b[-1][4])]
        return a + b
    def one_pass(par):
        CPOS = CP2[par]
        q = Prog()
        q.label(f"{name}_pass{par}")
        if PROF == 4: stamp(q, 32, S_PC)
        q.wait_vm(("WT", par, 15))
        sc = Sched(q, budget=int(E("PBUD", "8")), late_extra=8)
        for qn in ("wl", "st", "jl", "jp"): sc.group[qn] = "vm"
        sc.pace["vm"] = int(E("PPACE", "4"))
        pool = Pool(sc, POOL, 16)
        acc = lambda i: OWN if i == 8 else ACC + 8 * (i % 4)
        for i in range(9):
            a = acc(i)
            for kq in range(16):
                cons = [(a + 4 * e, P_R[par][2 * kq + e], a + 4 * e if kq else None, ("P", i, kq, e)) for e in range(2)]
                pool.frag(0, lambda r: [R128(r, AO[ooff(i, kq) // 49152], ooff(i, kq) % 49152)], cons, as_b=True)
        PG = int(E("PG", "4"))
        sc.m = [x for k in range(0, 288, 2 * PG) for x in pord(sc.m[k:k + 2 * PG:2], sc.m[k + 1:k + 2 * PG:2], k // (2 * PG))]
        fix = lambda t: (lambda f: max(("P", t[1], t[2], 0), ("P", t[1], t[2], 1), key=f))
        ix = {x[4]: k for k, x in enumerate(sc.m)}
        late = lambda t: None if t is None else fix(t)(lambda y: ix[y])
        pool.frags = [(a_, b_, c_, late(d_)) for a_, b_, c_, d_ in pool.frags]; pool.last = [late(t) for t in pool.last]
        sc.idx = {x[4]: k for k, x in enumerate(sc.m)}
        mt = lambda i: sc.m[max(0, min(i, len(sc.m) - 1))][4]
        for f in range(NL, 144 + NL):
            (_, reads, cons, war) = pool.frags[f % 144]
            if f >= 144: war = pool.last[f % 16]
            if "R" not in ABL: sc.fill("rd", reads[0], 4, ds=True, after=war, before=mt(2 * (f - NL) + 1), early=2)
        for i in ((16, 22, 28) if PG == 1 else (16, 24) if PG <= 4 else (16,)): sc.fill("ww", lambda p, i=i: p.wait_vm(("WT", par, min(31, i + (5 if PG == 1 else 7 if PG <= 4 else 15)))), 4, before=mt(i), early=0)
        def su(p):
            next_pair(p, S_WT)
            if par == 0:
                p.s(f"s_cmp_eq_u32 s{S_PC}, 4")
                p.s(f"s_cselect_b32 s{S_WT}, {OOB:#x}, s{S_WT}")
        def keep(p):
            p.s(f"s_cmp_eq_u32 s{S_PC}, 4")
            for i in (5, 6, 7): p.s(f"s_cselect_b32 s{S_ST+i}, {OOB:#x}, s{S_ST+i}")
            p.s(f"s_cselect_b32 s{S_WT2}, s{S_PO}, {OOB:#x}")
        if par == 0: sc.fill("jr", keep, 16, after=mt(100), before=mt(150))
        fill_dma(sc, [(su, 0)], None, mt(WST + 2), queue="wl", lead=6)
        for i in range(32):
            fill_dma(sc, [(wload(1 - par, i), 0)], mt(WST + int(WSP * i)), mt(WST + 12 + int(WSP * i)), queue="wl", lead=10)
        sc.fill("jl", lambda p: poll_issue(p, V_FA, f"s{S_PO}", 0, PT), 8, before=mt(CPOS - PLAT), early=4, solo=SOLO)
        def cut(p):
            p.s(f"s_cmp_lt_u32 s{S_PC}, 2")
            p.s(f"s_cbranch_scc1 {name}_nojob{par}")
            if par == 0 and not FPB:
                p.s(f"s_cmp_eq_u32 s{S_PC}, 2")
                p.s(f"s_cbranch_scc1 {name}_pp0")
            p.label("@CUT")
        sc.fill("jr", cut, 8, before=mt(CPOS), early=0, tag="CUT")
        for x in [int(y) for y in E("PSL1", "").split(",") if y]: sc.fill("sl", lambda p: [p.raw("s_nop 15") for _ in range(int(E("PSN", "4")))], 16, before=mt(x), early=0)
        JSP = JS2[par]
        def cut2(p):
            p.s(f"s_cmp_lg_u32 s{S_PC}, 4")
            p.s(f"s_cbranch_scc1 {name}_nofb")
            p.label("@CU2")
        if par == 0 and FPB: sc.fill("jr", cut2, 8, before=mt(FPB), early=0)
        for k in range(12): fill_dma(sc, [(jload(k >> 1, k & 1, JB + 4 * k), 0)], ["CUT", mt(CPOS + int(JSP * k))], mt(CPOS + 12 + int(JSP * k)), queue="jl", lead=10)
        if par == 0: sc.fill("jp", lambda p: poll_issue(p, V_FA, f"s{S_WT2}", FS, PT3), 8, after=mt(PPB), before=mt(PPB + 8), lead=8, solo=SOLO)
        for i in range(-1, 8):
            a = acc(i % 9); d = PK + 4 * (i & 1) if (par == 0 and i >= 5) else a
            dl = mt(32 * i + 32 + 24)
            sc.fill("va", lambda p, a=a, d=d: p.cvtpk(d, a, a + 1), 4, after=dict(tag=mt(32 * i + 31), delay=4) if i >= 0 else mt(3), before=dl, lead=10)
            sc.fill("va", lambda p, a=a, d=d: p.cvtpk(d + 1, a + 2, a + 3), 4)
            sc.fill("va", lambda p, a=a, d=d: p.cvtpk(d + 2, a + 4, a + 5), 4)
            sc.fill("va", lambda p, a=a, d=d: p.cvtpk(d + 3, a + 6, a + 7), 4, tag=("CV", i), before=dl, lead=10)
            def st(p, d=d, i=i):
                if "O" not in ABL: p.store(d, 4, V_SA, SRD_WS, f"s{S_ST + i % 9}", 0, tag=("ps", i), flags=E("SFL", "sc1"))
            sc.fill("st", st, 8, after=("CV", i), before=dl, lead=20, tag=("ST", i), solo=SOLO)
            if i < 0:
                for fn in next_off(): sc.fill("va", fn, 4, after=("ST", -1))
        if PROF == 4:
            for k, x in enumerate(int(y) for y in E("PST", "66,74,224").split(",")): sc.fill(f"st{k}", lambda p, k=k: stamp(p, 33 + k, S_PC), 16, before=mt(x), early=0)
        sc.fill("fl", lambda p: flag(p, 0, ("ps", int(E("FTAG", "-1")))), 16, before=mt(FPOS), early=0)
        for r, x in ((S_FO, FS), (S_PC, 1)): sc.fill("fl", lambda p, r=r, x=x: p.s(f"s_add_u32 s{r}, s{r}, {x}"), 4, after=mt(272))
        if par:
            for r in (S_FO, S_PO): sc.fill("fl", lambda p, r=r: p.s(f"s_bitset0_b32 s{r}, 30"), 4)
        sc.run()
        if par == 0:
            q.s(f"s_cmp_eq_u32 s{S_PC}, 5")
            q.s(f"s_cbranch_scc1 {name}_ptail")
            q.s(f"s_add_u32 s{S_PO}, s{S_PO}, {FS}")
            q.s(f"s_cmp_eq_u32 s{S_PC}, 1")
            q.s(f"s_cbranch_scc1 {name}_fbw")
        else:
            q.s(f"s_add_u32 s{S_PO}, s{S_PO}, {FS}")
            q.s(f"s_branch {name}_pass0")
        k = next(i for i, x in enumerate(q.ins) if x.text.startswith("@CUT"))
        q2 = Prog(); q2.label(f"{name}_nojob{par}"); q2.ins += q.ins[k + 1:]; q.ins = q.ins[:k]
        blk = Prog()
        poll_check(blk, f"{name}_pp{par}", V_FA, f"s{S_PO}", 0, PT, int(E("SLP", "2")))
        red = Prog()
        if par == 0:
            blk.vop("v_mov_b32", V_JA, V_LIN)
            blk.s(f"s_cmp_eq_u32 s{S_PC}, 2")
            blk.s(f"s_cbranch_scc1 {name}_nojob{par}")
        red.vop("v_add_u32", V_JA, f"{40960 if par else AREA}", V_LIN)
        for c in range(6): reduce(red, c, [JB + 8 * c, JB + 8 * c + 4], par == 1)
        fb = Prog()
        if par == 0: flag(fb, FS, ("ps", 4))
        if par == 0 and FPB:
            k = next(i for i, x in enumerate(q2.ins) if x.text.startswith("@CU2"))
            q3 = Prog(); q3.label(f"{name}_nofb"); q3.ins += q2.ins[k + 1:]; q2.ins = q2.ins[:k]
            return q, Prog(), blk, red, q2, fb, q3
        return q, fb, blk, red, q2, Prog(), Prog()
    def first_pass():
        q = Prog()
        q.label(f"{name}_P0")
        stamp(q, 9)
        if "F" in ABL: q.s(f"s_mov_b32 s{S_BAD}, 1")
        if "G" in ABL:
            q.s(f"s_cmp_eq_u32 s{S_W}, 2")
            q.s(f"s_cselect_b32 s{S_BAD}, 1, 0")
        sc = Sched(q, budget=int(E("P0BUD", "8")), late_extra=8)
        for qn in ("wl", "st"): sc.group[qn] = "vm"
        sc.pace["vm"] = int(E("P0PACE", "3"))
        acc = [V_S + 32, V_S + 40, 92, 100, 108, 116, 132, 140, OWN]
        POOL2 = POOL[:8] + [148 + 4 * k for k in range(4)] + POOL[12:]
        reg = lambda f: P0_B[f] if f < 72 else POOL2[f % 16] if f < 144 else POOL[f % 16]
        fk = lambda f: ((f % 72) // 8, f % 8 + 8 * ((f // 72) & 1))
        base = []
        for f0 in range(0, 144, 4):
            for e in range(2):
                for f in range(f0, f0 + 4):
                    i, kq = fk(f); a = acc[i] + 4 * e
                    base.append((a, P_R[0][2 * kq + e], reg(f), a if kq else None, ("P", f, e)))
        units = UNITS
        C0, CS, MB = int(E("P0C0", "22")), float(E("P0CS", "5.8")), int(E("P0MB", "12"))
        cpos = {C0 + int(CS * k) + (int(E("P0C8", "0")) if k >= 12 else 0): k for k in range(18)}
        for j, m in enumerate(base):
            if j in cpos:
                k = cpos[j]; sc.mfma(CHK, A_ONE, Oa(units[k][0], 2 * units[k][1]), CHK if k else None, ("CHK", k))
            sc.mfma(*m)
        bt = lambda j: base[min(j, 287)][4]
        for i in range(2, 9): assert sc.idx[("CHK", (acc[i] - V_O) // 8)] + 1 < sc.idx[bt(16 * i)]
        for f in range(8, 144 + NL):
            i, kq = fk(f)
            aft = [("P", f - 16, 1)] if (f >= 24 and not 72 <= f < 88) else []
            if f == 8: aft.append("AO")
            if f == 12: aft.append("XW")
            if f == 72: aft.append("MID")
            j = 2 * (f - NL) + 1
            if f >= 72: j = max(j, 144 - MB + 2 + f - 72)
            sc.fill("rd", R128(reg(f), AO[ooff(i, kq) // 49152], ooff(i, kq) % 49152), 4, ds=True, after=aft, before=bt(j), early=2)
        def V(fn, cost=4, **kw): sc.fill("va", fn, cost, **kw)
        sc.fill("ww", lambda p: p.wait_vm(("WT", 0, 15)), 4, before=bt(10), early=0)
        def each(fn):
            z = Prog(); fn(z)
            return [lambda p, x=x: p.add(x) for x in z.ins]
        V(lambda p: p.vop("v_add_u32", AO[1], "49152", V_LIN))
        V(lambda p: p.vop("v_add_u32", AO[2], "98304", V_LIN), tag="AO")
        for fn in each(f_addr): V(fn)
        for i in range(4): V(lambda p, i=i: p.ds_write(AD + 1, Oa(4, 4 + i), 4, i * 1024), 8, solo=True)
        V(lambda p: p.s(f"s_mul_i32 s{S_T0}, s{S_U}, 73728"))
        V(lambda p: p.s(f"s_sub_u32 s{S_T0}, {73728 + 36864}, s{S_T0}"))
        V(lambda p: p.vop("v_add_u32", AL + 1, f"s{S_T0}", V_DA + 4))
        V(lambda p: p.ds_write(AL + 1, La(4), 1, 0), ds=True, tag="XW")
        for n in range(5): V(lambda p, n=n: p.ar(RL + 2 * n, La(n)), tag=("AR", n))
        for n in range(5): V(lambda p, n=n: p.vop("v_add_u32", V_DA + n, "73728", V_DA + n), tag=("DA", n))
        def wr(p, k):
            n, t = units[k]
            p.ds_write(V_DA + n, Oa(n, 2 * t), 4, t * 18432 + (1024 if n < 4 else 0))
        for n in range(4): V(f_rcp(n)[0], 8); V(f_rcp(n)[1], tag=("RC", n))
        l8 = f_l8(); V(l8[0], after=dict(tag="PX", delay=8)); V(l8[1], 8); V(l8[2], tag=("RC", 4), before=("CHK", 10))
        ct = lambda k, d: sc.m[sc.idx[("CHK", k)] + d][4]
        for k, (n, t) in enumerate(units):
            pk, cv = f_norm(n, t)
            sc.fill("pk", lambda p, k=k, pk=pk: (wr(p, k - 1) if k else None, [fn(p) for fn in pk]), 8, solo=True, after=[("RC", n)] + ([("DA", 4)] if k else []),
                    before=ct(k - 1, 1) if k else ct(0, -5), early=0, lead=99, tag=("PK", k))
            for j, fn in enumerate(cv): sc.fill("c1", fn, 4, after=("PK", k), before=ct(k, -1), lead=0)
        sc.fill("pk", lambda p: wr(p, 17), 8, solo=True, before=ct(17, 1), early=0, lead=99, tag="W17")
        for j, fn in enumerate(f_range()): V(fn, 8 if j >= 4 else 4)
        sc.fill("bx", lambda p: p.barrier(), 4, after=[("P", 12, 0), ("DA", 4)], before=bt(int(E("P0BX", "34"))), early=0)
        for i in range(4): sc.fill("bx", R128(PX + 4 * i, AD, i * 1024), 4, ds=True, before=bt(60))
        sc.fill("bx", lambda p: p.ds_read32(V_S, V_DA + 4, 0), 4, ds=True, before=bt(60), tag="PX")
        V(lambda p: p.vop("v_bfe_u32", V_T + 1, V_LIN, "4", "2"))
        V(lambda p: p.vop("v_lshlrev_b32", V_T + 1, "12", V_T + 1))
        V(lambda p: p.vop("v_add_u32", V_T + 1, f"{MISC}", V_T + 1))
        c5 = f_fin()
        V(c5[0]); V(c5[1], 8, after=dict(tag=("CHK", 17), delay=2))
        V(lambda p: (p.s(f"s_or_b32 s{S_T0}, s{S_BAD}, s{S_BAD+1}"), p.vop("v_mov_b32", V_T, f"s{S_T0}")), 8)
        V(lambda p: p.ds_write(AD, V_T, 1, 0), ds=True, after="W17", before=bt(144 - MB - 4), lead=2)
        def mid(p):
            p.wait_vm(("WT", 0, 31), lgkm0=True); p.barrier()
            stamp(p, 16)
            p.ds_read32(V_T + 2, V_T + 1, 0)
        V(mid, 8, before=bt(144 - MB), early=0, tag="MID")
        def chk(p):
            p.add(Ins(f"v_cmp_ne_u32 vcc, 0, v{V_T+2}", "valu", [V_T + 2], []))
            p.s("s_cmp_lg_u64 vcc, 0")
            p.s(f"s_cbranch_scc1 {name}_fb")
        V(chk, 8, before=bt(146), early=0, tag="OK")
        for fn in next_off(): V(fn, before=bt(160))
        k = 0
        while k < len(setup):
            n = 4 if setup[k].text.startswith("v_cmp") else 1
            V(lambda p, g=setup[k:k + n]: [p.add(Ins(x.text, x.kind, x.rd, x.wr)) for x in g], 4 * n); k += n
        for i in range(8):
            a = acc[i]; dl = bt(144 + 16 * i + 16 + 14)
            sc.fill("cv", lambda p, a=a: p.cvtpk(a, a, a + 1), 4, after=["OK", dict(tag=("P", 72 + 8 * i + 7, 1), delay=3)], before=dl, lead=10)
            sc.fill("cv", lambda p, a=a: p.cvtpk(a + 1, a + 2, a + 3), 4)
            sc.fill("cv", lambda p, a=a: p.cvtpk(a + 2, a + 4, a + 5), 4)
            sc.fill("cv", lambda p, a=a: p.cvtpk(a + 3, a + 6, a + 7), 4, tag=("CV", i), before=dl, lead=10)
            def st(p, a=a, i=i):
                if "O" not in ABL: p.store(a, 4, V_SA, SRD_WS, f"s{S_ST+i}", 0, tag=("ps", i), flags=E("SFL", "sc1"))
            sj = int(E("P0S0", "200")) + int(E("P0SS", "8")) * i
            sc.fill("st", st, 8, after=[("CV", i), bt(sj)], before=bt(max(sj + 8, 144 + 16 * i + 30)), lead=20, tag=("ST", i), solo=SOLO)
        if WTP >= 100:
            for k in range(WTN): sc.fill("wt", lambda p, k=k: w_touch(p, 64 * k), 8, after=bt(WTP - 100 + 4 * k), before=bt(WTP - 92 + 4 * k), solo=True)
        for x in [int(y) for y in E("PSL0", "").split(",") if y]: sc.fill("sl", lambda p: [p.raw("s_nop 15") for _ in range(int(E("PSN", "4")))], 16, before=bt(x), early=0)
        W1 = float(E("P0W1", "5.0")); W2 = float(E("P0W2", "3.0"))
        for i in range(8): fill_dma(sc, [(wload(0, 24 + i), 0)], bt(17 + int(W1 * i)), bt(30 + int(W1 * i)), queue="wl", lead=4)
        for i in range(32):
            j = 17 + int(W1 * (8 + i)) if i < 15 else 146 + int(W2 * (i - 15))
            if i == 0: fill_dma(sc, [(lambda p: next_pair(p, S_WT2), 0)], None, bt(j), queue="wl", lead=4)
            fill_dma(sc, [(wload(1, i, sb=S_WT2), 0)], [bt(j), ("AR", 4)] + (["OK"] if i >= 15 else []), bt(j + 13), queue="wl", lead=4)
        sc.fill("fl", lambda p: p.s(f"s_mov_b32 s{S_WT}, s{S_WT2}"), 4, after=bt(275))
        for r, x in ((S_PO, FS), (S_FO, FS), (S_PC, 1)): sc.fill("fl", lambda p, r=r, x=x: p.s(f"s_add_u32 s{r}, s{r}, {x}"), 4, after=bt(275))
        sc.run()
        q.s(f"s_branch {name}_pass1")
        return q
    p.wait_lgkm0()
    p.s(f"s_branch {name}_pass0")
    pre = p
    p0 = first_pass()
    pe, po = one_pass(0), one_pass(1)
    p = Prog()
    p.label(f"{name}_ptail")
    stamp(p, 17)
    p.vop("v_add_u32", V_JA, f"{AREA + 40960}", V_LIN)
    poll_check(p, f"{name}_pp4", V_FA, f"s{S_PO}", FS, PT3, int(E("SLP4", "0")))
    stamp(p, 18)
    for c in range(4): jload(c, 0, POOL[8 + c], S_JC)(p)
    for k in range(4): jload(4 + (k >> 1), k & 1, POOL[12 + k])(p)
    stamp(p, 19)
    for c in (4, 5, 0, 1, 2, 3):
        if c < 4:
            for r in range(8): p.vop("v_add_f32", SUM + 8 * c + r, SUM + 8 * c + r, (ACC + 8 * (c + 1) if c < 3 else OWN) + r)
        reduce(p, c, [JB + 8 * c, JB + 8 * c + 4])
    stamp(p, 20)
    def out(c):
        a = SUM + 8 * c
        for r in range(4): p.cvtpk(a + r, a + 2 * r, a + 2 * r + 1)
        if 0 < c < 4: p.s(f"s_add_u32 s{S_JO}, s{S_JO}, {16 * 1280}")
        p.store(a, 4, V_OA, SRD_OUT, f"s{S_JO if c < 4 else S_EO[c - 4]}", 0, tag="out", flags=E("OFL", "sc1"))
    for c in range(6):
        reduce(p, c, [POOL[8 + c]] if c < 4 else POOL[4 + 2 * c:6 + 2 * c])
        if c: out(c - 1)
    out(5)
    if PROF:
        p.wait_all()
        stamp(p, 21)
        p.s(f"s_getreg_b32 s{S_TM}, hwreg(HW_REG_HW_ID)")
        p.s(f"s_getreg_b32 s{S_TM+1}, hwreg(HW_REG_XCC_ID)")
        p.raw(f"v_writelane_b32 v0, s{S_TM}, 24")
        p.raw(f"v_writelane_b32 v0, s{S_TM+1}, 25")
        p.s(f"s_lshl_b32 s{S_T0}, s2, 2")
        p.s(f"s_add_u32 s{S_T0}, s{S_T0}, s{S_W}")
        p.s(f"s_lshl_b32 s{S_T0}, s{S_T0}, 8")
        p.s(f"s_add_u32 s{S_T0}, s{S_T0}, {PROFOFF}")
        p.vop("v_lshrrev_b32", PT, "2", V_LIN)
        p.store(0, 1, PT, SRD_WS, f"s{S_T0}", 0)
        p.s(f"s_add_u32 s{S_T0}, s{S_T0}, 0x40000")
        p.store(255, 1, PT, SRD_WS, f"s{S_T0}", 0)
        if E("ENC"):
            a_, b_ = E("ENC").split(",")
            if int(E("ENCW", "77")) >= 0:
                p.s(f"s_cmp_lg_u32 s2, {int(E('ENCW', '77'))}")
                p.s(f"s_cbranch_scc1 {name}_end")
            if a_ == "n": p.s(f"s_mov_b32 s56, s{S_NON}")
            else: p.raw(f"v_readlane_b32 s56, v0, {a_}")
            if b_ == "n": p.s(f"s_mov_b32 s57, s{S_NON}")
            else: p.raw(f"v_readlane_b32 s57, v0, {b_}")
            p.raw("s_nop 4")
            p.s("s_sub_u32 s57, s57, s56")
            p.s("s_lshl_b32 s57, s57, 3")
            p.s("s_add_u32 s57, s57, 12000")
            p.label(f"{name}_enc")
            p.s("s_memrealtime s[58:59]")
            p.raw("s_waitcnt lgkmcnt(0)")
            p.s(f"s_sub_u32 s58, s58, s{S_NON}")
            p.s("s_cmp_lt_u32 s58, s57")
            p.s(f"s_cbranch_scc1 {name}_enc")
        if PROF == 5:
            p.s(f"s_cmp_lg_u32 s2, 77")
            p.s(f"s_cbranch_scc1 {name}_end")
            p.s(f"s_cmp_lg_u32 s{S_W}, 0")
            p.s(f"s_cbranch_scc1 {name}_end")
            p.raw("v_readlane_b32 s56, v0, 0")
            for k, ix in enumerate([23, 1, 2, 5, 6, 9, 10, 16, 17, 18, 20, 21]):
                p.raw(f"v_readlane_b32 s57, v0, {ix}")
                p.raw("s_nop 3")
                p.s("s_sub_u32 s57, s57, s56")
                p.raw(f"v_mov_b32 v30, s57")
                p.raw(f"buffer_store_dword v30, off, s[{SRD_DBG}:{SRD_DBG+3}], 0 offset:{8 + 4 * k}")
                p.raw("s_nop 1")
    p.label(f"{name}_end")
    p.raw("s_endpgm")
    rest = [po[0], po[4], pe[0], pe[2], pe[4], pe[6], *po, *pe, p]
    fw = Prog(); fw.label(f"{name}_fbw"); fw.wait_all(); fw.s(f"s_branch {name}_pass1")
    return [p0, *pe, *po, p, pre, fw], [p0] + rest, [pre, pe[0], pe[4], pe[6], fw] + rest

def gen(name):
    pro = prologue(name)
    Q = qmod(name)
    AE = aentry(name)
    A = [amod(name, qh) for qh in range(2)]
    F = afin(name)
    P, PS, PS2 = pmod(name)
    SL, SLS = slow(name)
    segs = [pro, Q, AE, A[0], A[1], F] + P + SL
    sims = [[(x, 1) for x in [pro, Q, AE, A[qh], F, AE, A[qh]] + PS] for qh in range(2)]
    sims.append([(x, 1) for x in SLS + PS2])
    lines, stats = finalize([(x, 1) for x in segs], sims=sims)
    if int(E("ROLL", "1")):
        lines = roll(lines, "; ---- a step", 8, S_LOOP, f"{name}_aloop")
        lines = roll(lines, "; ---- q step", 8, S_LOOP, f"{name}_qloop")
    lines += [f"{name}_last:", f".if {name}_last-{name}_pc < {65536 + CPO}", f".fill ({65536 + CPO}-({name}_last-{name}_pc))/4, 4, 0xbf810000", ".endif", f".if {name}_end-{name}_pc > {65536 + CPO}", '.warning "code range"', ".endif"]
    return [f".globl {name}", ".p2align 8", f".type {name},@function", f"{name}:"] + lines, stats
```

```python
from asmlib import *
import math, struct, os
E = os.environ.get
PROF = int(E("PROF", "0"))
ABL = E("ABL", "")
def f2u(f): return struct.unpack("<I", struct.pack("<f", f))[0]
CSCALE = math.log2(math.e) / math.sqrt(128.0)
NWG = 256
LDS_BYTES = 163840
XSL = 18432
XRING = 131072
XALT = 65536 - XSL
WRING = 65536
MISC = 147456
def IMG(kq): return (kq >> 3) * 73728 + (kq & 3) * 18432 + ((kq >> 2) & 1) * 9216
DROP = 0x30000
OOB = 0x40000000
WOT = 0
PART = 128 * 40960
AREA = 18 * 40960
PARTB = 2 * AREA
WFLG = PART + 32 * PARTB
PFLG = WFLG + 8192
FG = int(E('FG', '3')); FS = int(E('FS', '128'))
WSBYTES = PFLG + 128 * 4 * FS
PROFOFF = 0x4000000

SRD_X, SRD_K, SRD_V, SRD_W, SRD_WS, SRD_WO, SRD_OUT, SRD_DBG = 8, 12, 16, 20, 24, 28, 32, 36
S_W = 3
S_T0, S_T1, S_B, S_G, S_P, S_T2 = 40, 41, 42, 43, 44, 45
S_CS, S_NON, S_SPIN, S_PH, S_GRP, S_SO = 46, 48, 50, 51, 52, 53
S_BAD = 54
S_KOFF, S_VOFF, S_KB, S_KVN, S_M0KV, S_WFP = 56, 57, 58, 59, 60, 61
S_WOFF, S_WB, S_XOFF, S_XB = 62, 63, 65, 66
S_M0W, S_M0X8 = 75, 72
S_WT, S_PT, S_PF, S_RD, S_OUTO = 76, 77, 78, 79, 80
S_LO, S_HI = 81, 82
S_TM = 84
S_VB = 88
S_M0KVP, S_KVP, S_M0D, S_U = 89, 91, 94, 95
S_LOOP = 92
S_WT2 = 98

V_DK, V_DV, V_DW, V_DX = 1, 5, 9, 13
V_AK, V_AV0, V_AV1, V_AX, V_AX8, V_LIN = 18, 19, 20, 21, 22, 24
V_E0, V_E1, V_E2 = 25, 26, 27
V_S = 28
V_AW = V_S + 40
V_O = 84
V_T = 244
V_DA = V_T + 3
V_NV = 252
V_JUNK = 254
A_Q, A_QN, A_L, A_ONE, A_POOL, A_X = 256, 336, 416, 436, 440, 472
A_QP = 480
NPOOL = 8
def Qf(n, ks, base=A_Q): return base + (n * 4 + ks) * 4
def Oa(n, m): return V_O + (n * 8 + m) * 4
def XS(par, n): return V_S + (par * 4 + n) * 4 if n < 4 else V_S + 48
def YS(n): return V_S + 32 + n * 4 if n < 4 else V_S + 52
def La(n): return A_L + 4 * n
def Xf(st, t): return V_S + (st * 5 + t) * 4
def QA(r, n, m):
    if r == 0: return V_O + (n * 8 + m) * 4
    return A_QN + 64 + 4 * m if n == 4 else A_QN + 80 * (m & 1) + 16 * n + 4 * (m >> 1)

def stamp(p, idx, dyn=None):
    if not PROF: return
    p.s(f"s_memrealtime s[{S_TM}:{S_TM+1}]")
    p.s(f"s_memtime s[{S_TM+2}:{S_TM+3}]")
    p.wait_lgkm0()
    if dyn is None:
        p.raw(f"v_writelane_b32 v0, s{S_TM}, {idx}")
        p.raw(f"v_writelane_b32 v255, s{S_TM+2}, {idx}")
    else:
        p.s("s_mov_b32 s99, m0")
        p.s(f"s_lshl_b32 m0, s{dyn}, 2")
        p.s(f"s_add_u32 m0, m0, {idx}")
        p.raw(f"v_writelane_b32 v0, s{S_TM}, m0")
        p.raw(f"v_writelane_b32 v255, s{S_TM+2}, m0")
        p.s("s_mov_b32 m0, s99")

KVSEQ = [("K", 0)]
for u in range(15): KVSEQ += [("K", u + 1), ("V", u)]
KVSEQ += [("V", 15)]
KVPOS = {t: i for i, t in enumerate(KVSEQ)}
DYN = (10, 30)
SRD_C = SRD_WO
S_ROT, S_C, S_D = S_KOFF, S_VOFF, S_VB
def kv_ops(pos):
    pre = pos >= 32; pos %= 32
    kind, u = KVSEQ[pos]
    dyn = DYN[0] <= pos <= DYN[1] and not pre
    ops = []
    for j in range(4):
        def f(p, j=j):
            if dyn:
                if j == 0:
                    if pos == DYN[0]:
                        p.s(f"s_add_u32 s{S_C}, s{S_ROT}, {u * 8192}")
                        p.s(f"s_and_b32 s{S_C}, s{S_C}, 0x1ffff")
                        p.s(f"s_mov_b32 s{S_D}, {16384 if kind == 'V' else -8192}")
                        p.s(f"s_mov_b32 s{S_M0D}, {(pos % 8) * 16384}")
                    p.s(f"s_cmp_gt_i32 s{S_D}, 0")
                    p.s(f"s_cselect_b64 s[{SRD_C}:{SRD_C+1}], s[{SRD_V}:{SRD_V+1}], s[{SRD_K}:{SRD_K+1}]")
                    p.s(f"s_add_u32 m0, s{S_M0KV}, s{S_M0D}")
                    p.s(f"s_add_u32 s{S_SO}, s{S_KB}, s{S_C}")
                if "D" not in ABL: p.dmao(V_DV + j, SRD_C, f"s{S_SO}", j * 1024, (kind, u), "nt")
                if j == 0: p.s(f"s_add_u32 s{S_C}, s{S_C}, s{S_D}")
                if j == 1:
                    p.s(f"s_and_b32 s{S_C}, s{S_C}, 0x1ffff")
                    p.s(f"s_sub_u32 s{S_D}, 8192, s{S_D}")
                if j == 2:
                    p.s(f"s_add_u32 s{S_M0D}, s{S_M0D}, 16384")
                    p.s(f"s_and_b32 s{S_M0D}, s{S_M0D}, 0x1ffff")
                return
            if j == 0:
                if pre: p.s(f"s_add_u32 m0, s{S_M0KVP + (pos >> 2)}, {(pos % 4) * 16384}")
                else: p.s(f"s_add_u32 m0, s{S_M0KV}, {(pos % 8) * 16384}")
                p.s(f"s_add_u32 s{S_SO}, s{S_ROT}, {u * 8192}")
                p.s(f"s_and_b32 s{S_SO}, s{S_SO}, 0x1ffff")
                p.s(f"s_add_u32 s{S_SO}, s{S_SO}, s{S_KVP if pre else S_KB}")
            if "D" not in ABL: p.dmao(V_DV + j, SRD_K if kind == "K" else SRD_V, f"s{S_SO}", j * 1024, (kind, u), "nt")
        ops.append((f, 8))
    return ops
W39 = int(E("W39", "1"))
def w_ops(h):
    ops = []
    for j in range(4):
        def f(p, j=j):
            if j == 0:
                p.s(f"s_add_u32 m0, s{S_M0W}, {65536 if (h == 39 and W39) else (h % 4) * 16384}")
                p.s(f"s_add_u32 s{S_SO}, s{S_WB + (h & 1)}, s{S_WOFF}")
            if "W" not in ABL: p.dmao(V_DW + j, SRD_W, f"s{S_SO}", j * 1024, ("W", h))
            if j == 1 and h % 4 == 1: p.s(f"s_sub_u32 s{S_WOFF}, s{S_WOFF}, 512")
            if j == 1 and h % 4 == 3: p.s(f"s_add_u32 s{S_WOFF}, s{S_WOFF}, {64 * 8192 + 512}")
            if j == 2 and h % 4 == 3:
                p.s(f"s_cmp_ge_u32 s{S_WOFF}, {640 * 8192}")
                p.s(f"s_cselect_b32 s{S_WOFF}, 0, s{S_WOFF}")
        ops.append((f, 12 if j == 0 or (j == 2 and h % 4 == 3) else 8 if j == 1 and h % 2 else 4))
    return ops
def xw_ops(i, h):
    def X(j):
        def f(p):
            p.s(f"s_add_u32 m0, s{S_M0KV if j < 4 else S_M0X8}, {XRING}")
            if j == 0: p.s(f"s_add_u32 s{S_T1}, s{S_XB}, s{S_XOFF}")
            p.dmao(V_DX + j, SRD_X, f"s{S_T1}", (j & 3) * 1024, ("X", i))
            if j == 1: p.s(f"s_add_u32 s{S_XOFF}, s{S_XOFF}, 128")
            if j == 2:
                p.s(f"s_cmp_ge_u32 s{S_XOFF}, 1280")
                p.s(f"s_cselect_b32 s{S_XOFF}, 0, s{S_XOFF}")
        return (f, 8)
    w = w_ops(h)
    W = lambda j: ((lambda p: ((p.s(f"s_add_u32 m0, s{S_M0W}, {(h % 4) * 16384}") if j else None), w[j][0](p))), 8)
    return [X(0), W(0), X(1), W(1), X(2), W(2), X(3), W(3), X(4)]
def x_ops(i):
    ops = []
    sb = XRING if i else XALT
    for j in range(5):
        def f(p, j=j):
            if j == 0:
                p.s(f"s_add_u32 m0, s{S_M0KV}, {sb}")
                p.s(f"s_add_u32 s{S_SO}, s{S_XB}, s{S_XOFF}")
            if "X" not in ABL: p.dmao(V_DX + j, SRD_X, f"s{S_SO}", (j & 3) * 1024, ("X", i), E("XFL", ""))
            if j == 1: p.s(f"s_add_u32 s{S_XOFF}, s{S_XOFF}, 128")
            if j == 2:
                p.s(f"s_cmp_ge_u32 s{S_XOFF}, 1280")
                p.s(f"s_cselect_b32 s{S_XOFF}, 0, s{S_XOFF}")
            if j == 3:
                p.s(f"s_add_u32 m0, s{S_M0X8}, {sb}")
                p.nop(0)
        ops.append((f, 12 if j in (0, 2, 3) else 8 if j == 1 else 4))
    return ops

SRD_E = 4
S_EM, S_ED, S_TAB, S_ES, S_WEND, S_EW = 67, 68, 69, 70, 71, 73
STG = 0x26000
V_WR = V_O + 144
EKP = [int(x) for x in E("EKP", "1,1,1,2").split(",")]
PFP = [int(x) for x in E("PFP", "")]; PFN = len(PFP)
PFS = int(E("PFS", "1"))
S_PFO, S_PFB = 74, 83
FWL = int(E("FWL", "1"))
def ek_ops(h):
    it = h // 4
    tag = KVSEQ[(it - 1) // 2]
    def kp(p):
        p.s(f"s_and_b32 s{S_ES}, s{S_TAB}, 0x7000")
        p.s(f"s_add_u32 s{S_ES}, s{S_ES}, s{S_ROT}")
        p.s(f"s_and_b32 s{S_ES}, s{S_ES}, 0x1ffff")
        p.s(f"s_add_u32 s{S_ES}, s{S_ES}, s{S_KVP}")
        if PFS > 1 and not PFN:
            p.s(f"s_bitcmp1_b32 s{S_WEND}, 16")
            p.s(f"s_cselect_b32 s{S_ES}, s{S_ES}, {OOB:#x}")
        p.s(f"s_bitcmp1_b32 s{S_TAB}, 15")
        p.s(f"s_cselect_b64 s[{SRD_E}:{SRD_E+1}], s[{SRD_V}:{SRD_V+1}], s[{SRD_K}:{SRD_K+1}]")
        p.s(f"s_lshr_b32 s{S_T0}, s{S_TAB}, 4")
        p.s(f"s_lshl_b32 s{S_TAB}, s{S_TAB}, 28")
        p.s(f"s_or_b32 s{S_TAB}, s{S_TAB}, s{S_T0}")
    def k0(p):
        p.s(f"s_add_u32 m0, s{S_M0KV}, s{S_EM}")
        if "D" not in ABL: p.dmao(V_DV, SRD_E, f"s{S_ES}", 0, tag, "nt")
    def k1(p):
        p.s(f"s_add_u32 m0, s{S_M0KV}, s{S_EM}")
        p.s(f"s_add_u32 s{S_EM}, s{S_EM}, s{S_ED}")
        if "D" not in ABL: p.dmao(V_DV + 1, SRD_E, f"s{S_ES}", 1024, tag, "nt")
        p.s(f"s_xor_b32 s{S_ED}, s{S_ED}, {2048 ^ 14336}")
    def wo(p):
        p.s(f"s_mov_b32 m0, s{S_EW}")
        p.s(f"s_bitcmp1_b32 s{S_WEND}, 0")
        p.s(f"s_cselect_b32 s{S_T0}, s{S_WT}, {OOB:#x}")
        p.dmao(V_DX, SRD_WO, f"s{S_T0}", 0, ("WOP", it), E("WOFL", "nt"))
        p.s(f"s_xor_b32 s{S_EW}, s{S_EW}, 4096")
        p.s(f"s_lshr_b32 s{S_WEND}, s{S_WEND}, 1")
        p.s(f"s_add_u32 s{S_WT}, s{S_WT}, 128")
    def none(p): p.add(Ins(f"buffer_load_dword v{V_JUNK}, off, s[{SRD_DBG}:{SRD_DBG+3}], 0 offset:256", "vm", [], [], tag="none"))
    def pf(srd, du, j, last):
        def f(p):
            p.s(f"s_add_u32 s{S_T0}, s{S_PFO}, {du * 8192}")
            p.s(f"s_and_b32 s{S_T0}, s{S_T0}, 0x1ffff")
            p.s(f"s_add_u32 s{S_T0}, s{S_T0}, s{S_PFB}")
            p.add(Ins(f"buffer_load_dword v{V_JUNK}, v{V_DV + j}, s[{srd}:{srd+3}], s{S_T0} offen offset:{j * 1024} {E('PFFL', '')}", "vm", [V_DV + j], [], tag="pf"))
            if last:
                p.s(f"s_add_u32 s{S_PFO}, s{S_PFO}, {8192 * PFN // 2}")
                p.s(f"s_bitcmp1_b32 s{S_WEND}, 16")
                p.s(f"s_cselect_b32 s{S_PFB}, s{S_KVP}, {OOB:#x}")
        return f
    if int(E("PFD", "0")) == 2:
        def pf(srd, du, j, last):
            def f(p):
                p.s(f"s_mov_b32 m0, s94")
                p.s(f"s_add_u32 s{S_T0}, s{S_PFO}, {du * 8192}")
                p.s(f"s_and_b32 s{S_T0}, s{S_T0}, 0x1ffff")
                p.s(f"s_add_u32 s{S_T0}, s{S_T0}, s{S_PFB}")
                p.dmao(V_DV, srd, f"s{S_T0}", 0, "pf", E("PFFL", ""))
                if last:
                    p.s(f"s_add_u32 s{S_PFO}, s{S_PFO}, {8192 * PFN // 2}")
                    p.s(f"s_bitcmp1_b32 s{S_WEND}, 16")
                    p.s(f"s_cselect_b32 s{S_PFB}, s{S_KVP}, {OOB:#x}")
            return f
    if int(E("PFD", "0")) == 1:
        def pf(srd, du, j, last):
            def f(p):
                p.s(f"s_mov_b32 m0, s94")
                p.s(f"s_and_b32 s{S_T0}, s{S_PFO}, 0x1ffff")
                p.s(f"s_add_u32 s{S_T0}, s{S_T0}, s{S_PFB}")
                p.dmao(V_DV, SRD_V, f"s{S_T0}", 0, "pf", "nt")
                p.s(f"s_add_u32 s{S_PFO}, s{S_PFO}, 2048")
            return f
    warm = lambda r: lambda p: p.add(Ins(f"buffer_load_dword v{V_JUNK}, off, s[{SRD_WS}:{SRD_WS+3}], s{r} sc1", "vm", [], [], tag="touch"))
    fs = [k0, k1, wo, None, kp] if it else [none if x else None for x in EKP[:3]] + [None, kp]
    if FWL and not it: fs[FWL // 10], fs[FWL % 10] = (lambda p: p.add(Ins(f"buffer_load_dword v{V_JUNK}, v4, s[{SRD_WS}:{SRD_WS+3}], s{S_T2} offen sc1", "vm", [4], [], tag="touch"))), warm(S_WFP)
    fs += [pf(SRD_K if k & 1 else SRD_V, (5 if k & 1 else 3) + (k >> 1), 3, k == PFN - 1) if it else (none if PFP[k] else None) for k in range(PFN)]
    fs += [code_touch] * len(CPQ)
    return [(f, 8) for f, x in zip(fs, EKP + [3] + PFP + CPQ) if f and x == h % 4]
def wst(p):
    for i in range(5):
        p.store(A_Q + 16 - 4 * i, 4, V_LIN, SRD_WS, f"s{S_PT}", 0, tag="wst", flags="sc1")
        if i < 4: p.s(f"s_add_u32 s{S_PT}, s{S_PT}, 4096")

def split_ops(ops):
    q = Prog()
    for f, _ in ops: f(q)
    out = []; i = 0; L = [x for x in q.ins if x.kind != "nop"]
    while i < len(L):
        grp = [L[i]]
        if L[i].text.startswith(("s_cmp", "s_bitcmp")): grp.append(L[i + 1])
        i += len(grp)
        out.append((lambda p, grp=grp: [p.add(x) for x in grp], "vm" if grp[0].kind in ("vm", "vml", "vms") else "s", 4 * len(grp)))
    return out
def fill_dma(sc, ops, after, before, tag=None, queue="dma", lead=80):
    so = split_ops(ops)
    for k, (fn, kind, cost) in enumerate(so):
        sc.fill(queue, fn, 8 if kind == "vm" else cost, after=after, before=before, lead=lead, solo=(kind == "vm" and SOLO), paced=(kind == "vm"),
                tag=tag if k == len(so) - 1 else None)
SOLO = int(E("SOLO", "1"))
T7 = int(E("T7", "0"))
def sprinkle(progs, ops, lo=0.0, hi=1.0):
    pts = []
    for p, st in progs:
        masked = False
        for i in range(st, len(p.ins)):
            x = p.ins[i]
            if x.text.startswith("s_mov_b64 exec"): masked = not x.text.endswith("-1")
            if x.kind == "label" and not x.text.startswith(";"): break
            if x.kind in ("valu", "perm") and not masked and p.ins[i - 1].kind in ("valu", "perm") and "v_cmp" not in x.text and "v_cmp" not in p.ins[i - 1].text: pts.append((p, i))
    if not ops: return
    a, b = int(lo * len(pts)), int(hi * len(pts))
    sel = [pts[a + (k * (b - a)) // len(ops)] for k in range(len(ops))]
    for (p, i), (fn, _) in reversed(list(zip(sel, ops))):
        q = Prog(); fn(q)
        p.ins[i:i] = q.ins

V_CP = 2
V_WP, WTP = 23, int(E("WTP", "-1"))
CPO = int(E("CPO", "3072"))
CPQ = [int(x) for x in E("CPQ", "2")]
CPA = [int(x) for x in E("CPA", "").split(",") if x]
WTN = int(E("WTN", "2"))
def w_touch(p, off): p.add(Ins(f"buffer_load_dword v{V_JUNK}, v{V_WP}, s[{SRD_WS}:{SRD_WS+3}], 0 offen offset:{off} sc1", "vm", [V_WP], [], tag="wtp"))
def code_addr(p, name, L):
    p.s(f"s_getpc_b64 s[{S_TM}:{S_TM+1}]")
    p.label(f"{name}_pc")
    p.s(f"s_lshr_b32 s{S_T0}, s2, 1")
    p.s(f"s_and_b32 s{S_T0}, s{S_T0}, 0x7c")
    p.s(f"s_add_u32 s{S_T0}, s{S_T0}, s{S_W}")
    p.s(f"s_lshl_b32 s{S_T0}, s{S_T0}, 9")
    p.s(f"s_add_u32 s{S_T0}, s{S_T0}, {CPO}")
    p.s(f"s_add_u32 s{S_TM}, s{S_TM}, s{S_T0}")
    p.s(f"s_addc_u32 s{S_TM+1}, s{S_TM+1}, 0")
    p.raw(f"v_and_b32 v{V_CP}, {7 if int(E('CP64', '0')) else 3}, v{L}")
    p.raw(f"v_lshlrev_b32 v{V_CP}, {6 if int(E('CP64', '0')) else 7}, v{V_CP}")
    p.raw(f"v_mov_b32 v{V_CP+1}, s{S_TM+1}")
    p.raw(f"v_add_co_u32 v{V_CP}, vcc, s{S_TM}, v{V_CP}")
    p.raw("s_nop 1")
    p.raw(f"v_addc_co_u32 v{V_CP+1}, vcc, 0, v{V_CP+1}, vcc")
def code_touch(p): p.add(Ins(f"global_load_dword v{V_JUNK}, v[{V_CP}:{V_CP+1}], off", "vm", [], [], tag="code"))

def get_nonce(p, name, t):
    p.add(Ins(f"v_readfirstlane_b32 s{S_NON}, v{V_NV}", "rfl", [V_NV], []))
    p.add(Ins(f"v_readfirstlane_b32 s{S_NON+1}, v{V_NV+1}", "rfl", [V_NV + 1], []))
    p.s(f"s_cmp_lt_i32 s{S_NON+1}, 0")
    p.s(f"s_cbranch_scc1 {name}_x")
    p.vop("v_mov_b32", t + 2, "0")
    p.label(f"{name}")
    p.raw(f"buffer_load_dwordx2 v[{t}:{t+1}], v{t+2}, s[{SRD_DBG}:{SRD_DBG+3}], 0 offen sc1")
    p.raw("s_waitcnt vmcnt(0)")
    p.raw(f"v_readfirstlane_b32 s{S_NON}, v{t}")
    p.raw(f"v_readfirstlane_b32 s{S_NON+1}, v{t+1}")
    p.s(f"s_sub_u32 s{S_SPIN}, s{S_SPIN}, 1")
    p.s(f"s_cbranch_scc1 {name}_x")
    p.s(f"s_cmp_lt_i32 s{S_NON+1}, 0")
    p.s(f"s_cbranch_scc0 {name}")
    p.label(f"{name}_x")
    p.nop(1)

def publish(p, soff, off, t):
    p.vop("v_mov_b32", t, f"s{S_NON}")
    p.vop("v_mov_b32", t + 1, f"s{S_NON+1}")
    p.s("s_mov_b64 exec, 1")
    p.store(t, 2, V_LIN, SRD_WS, soff, off, tag="flag", flags="sc1")
    p.s("s_mov_b64 exec, -1")

def poll_issue(p, vaddr, soff, off, t):
    p.add(Ins(f"buffer_load_dwordx2 v[{t}:{t+1}], v{vaddr}, s[{SRD_WS}:{SRD_WS+3}], {soff} offen offset:{off} sc1", "vml", [vaddr], [t, t + 1], tag="poll"))
def poll_check(p, name, vaddr, soff, off, t, slp=2):
    p.label(f"{name}")
    p.add(Ins(f"v_cmp_ne_u32 vcc, s{S_NON}, v{t}", "valu", [t], []))
    p.add(Ins(f"v_cmp_ne_u32 s[{S_TM+2}:{S_TM+3}], s{S_NON+1}, v{t+1}", "valu", [t + 1], []))
    p.s(f"s_or_b64 vcc, vcc, s[{S_TM+2}:{S_TM+3}]")
    if "Y" in ABL and "pp" in name: p.s(f"s_branch {name}_ok")
    p.s(f"s_cbranch_scc0 {name}_ok")
    p.s(f"s_sub_u32 s{S_SPIN}, s{S_SPIN}, 1")
    p.s(f"s_cbranch_scc1 {name}_ok")
    if slp: p.s(f"s_sleep {slp}")
    p.raw(f"buffer_load_dwordx2 v[{t}:{t+1}], v{vaddr}, s[{SRD_WS}:{SRD_WS+3}], {soff} offen offset:{off} sc1")
    p.raw("s_waitcnt vmcnt(0)")
    p.s(f"s_branch {name}")
    p.label(f"{name}_ok")

PRO = int(E("PRO", "2"))
def prologue(name):
    p = Prog()
    if PROF: p.s("s_memrealtime s[100:101]")
    p.s(f"s_cmp_ge_u32 s2, {NWG}")
    p.s(f"s_cbranch_scc1 {name}_end")
    p.s("s_load_dwordx8 s[84:91], s[0:1], 0")
    p.s("s_load_dwordx8 s[92:99], s[0:1], 32")
    T = V_O
    W, L, a, b, c, d, U, P, VV, R8, PI, M, G, cv = range(T, T + 14)
    p.vop("v_lshrrev_b32", W, "6", 0)
    p.vop("v_and_b32", L, "63", 0)
    p.add(Ins(f"v_readfirstlane_b32 s{S_W}, v{W}", "rfl", [W], []))
    p.vop("v_and_b32", U, "1", W)
    p.vop("v_lshrrev_b32", P, "1", W)
    p.vop("v_lshrrev_b32", VV, "5", L)
    p.vop("v_bfe_u32", R8, L, "2", "3")
    p.vop("v_and_b32", PI, "3", L)
    p.s(f"s_movk_i32 s{S_T0}, 1280")
    p.vop("v_mul_lo_u32", a, R8, f"s{S_T0}")
    p.vop("v_lshl_add_u32", a, VV, "6", a)
    p.vop("v_xor_b32", c, "3", PI)
    p.vop("v_lshl_add_u32", V_DX, PI, "4", a)
    p.vop("v_lshl_add_u32", b, c, "4", a)
    p.vop("v_add_u32", V_DX + 1, f"{9216}", b)
    p.vop("v_add_u32", V_DX + 2, f"{2 * 9216}", V_DX)
    p.vop("v_add_u32", V_DX + 3, f"{3 * 9216}", b)
    p.vop("v_lshrrev_b32", d, "2", R8)
    p.vop("v_lshlrev_b32", cv, "1", d)
    p.vop("v_xor_b32", cv, cv, PI)
    p.vop("v_and_b32", b, "3", R8)
    p.vop("v_lshl_add_u32", b, d, "3", b)
    p.vop("v_lshl_add_u32", b, U, "5", b)
    p.vop("v_lshlrev_b32", d, "6", VV)
    p.vop("v_lshl_add_u32", b, b, "13", d)
    p.vop("v_lshl_add_u32", d, U, "7", d)
    p.vop("v_lshl_add_u32", V_DW, cv, "4", b)
    for j in range(1, 4): p.vop("v_add_u32", V_DW + j, f"{(16 * (j & 1) + 4 * (j >> 1)) * 8192 - 1024 * j}", V_DW)
    p.vop("v_mul_u32_u24", b, "3", P)
    p.vop("v_xor_b32", b, b, PI)
    p.vop("v_lshl_add_u32", b, b, "4", a)
    p.vop("v_lshlrev_b32", a, "2", W)
    p.vop("v_sub_u32", a, P, a)
    p.vop("v_add_u32", a, "16", a)
    p.s(f"s_movk_i32 s{S_T1}, {8 * 1280}")
    p.vop("v_mul_lo_u32", a, a, f"s{S_T1}")
    p.vop("v_add_u32", a, a, b)
    p.vop("v_lshl_add_u32", V_DX + 4, U, "30", a)
    MAP = int(E("MAP", "0"))
    p.s(f"s_bfe_u32 s{S_T0}, s2, {(MAP << 16) | 3:#x}")
    p.s(f"s_lshr_b32 s{S_T2}, s2, {3 + MAP}")
    p.s(f"s_and_b32 s{S_G}, s2, {(1 << (3 - MAP)) - 1}")
    p.s(f"s_lshl_b32 s{S_G}, s{S_G}, {MAP}")
    p.s(f"s_or_b32 s{S_G}, s{S_G}, s{S_T0}")
    p.s(f"s_bfe_u32 s{S_B}, s2, {(MAP << 16) | (3 - MAP):#x}")
    p.s(f"s_lshl_b32 s{S_B}, s{S_B}, {5 - MAP}")
    p.s(f"s_or_b32 s{S_B}, s{S_B}, s{S_T2}")
    p.s(f"s_mul_i32 s{S_T0}, s{S_T0}, {int(E('PHM', str(1 << (5 - MAP))))}")
    p.s(f"s_lshl_b32 s{S_T2}, s{S_T2}, {MAP}")
    p.s(f"s_add_u32 s{S_T2}, s{S_T2}, s{S_T0}")
    if int(E("GPH", "0")):
        p.s(f"s_and_b32 s{S_T0}, s{S_G}, {int(E('GPM', '7'))}")
        p.s(f"s_mul_i32 s{S_T0}, s{S_T0}, {int(E('GPH', '0'))}")
        p.s(f"s_add_u32 s{S_T2}, s{S_T2}, s{S_T0}")
    p.s(f"s_and_b32 s{S_T2}, s{S_T2}, 31")
    p.s(f"s_lshr_b32 s{S_P}, s{S_W}, 1")
    p.s(f"s_lshl_b32 s{S_M0KV}, s{S_W}, 12")
    p.s(f"s_add_u32 s{S_M0W}, s{S_M0KV}, {WRING}")
    p.s(f"s_lshl_b32 s{S_M0X8}, s{S_P}, 10")
    p.s(f"s_add_u32 s{S_M0X8}, s{S_M0X8}, 16384")
    p.s(f"s_bitcmp1_b32 s{S_W}, 0")
    p.s(f"s_cselect_b32 s{S_M0X8}, 0x1d000, s{S_M0X8}")
    p.s(f"s_lshl_b32 s{S_T0}, s{S_G}, 2")
    p.s(f"s_add_u32 s{S_T0}, s{S_T0}, s{S_P}")
    p.s(f"s_lshl_b32 s{S_WB}, s{S_T0}, 8")
    p.s(f"s_add_u32 s{S_WB}, s{S_WB}, 512")
    p.s(f"s_xor_b32 s{S_WB+1}, s{S_WB}, 128")
    p.s(f"s_lshl_b32 s{S_T1}, s{S_B}, 5")
    p.s(f"s_add_u32 s{S_T0}, s{S_T0}, s{S_T1}")
    p.s(f"s_lshl_b32 s{S_KVN}, s{S_T0}, 17")
    p.s(f"s_mul_i32 s{S_T0}, s{S_T2}, 5")
    p.s(f"s_lshr_b32 s{S_T0}, s{S_T0}, 4")
    if not int(E("ROT", "1")): p.s(f"s_mov_b32 s{S_T0}, 0")
    p.s(f"s_lshl_b32 s{S_XOFF}, s{S_T0}, 7")
    p.s(f"s_lshl_b32 s{S_WOFF}, s{S_T0}, 19")
    p.s(f"s_mul_i32 s{S_XB}, s{S_B}, {144 * 1280}")
    p.s(f"s_mul_i32 s{S_T0}, s{S_W}, {32 * 1280}")
    p.s(f"s_add_u32 s{S_XB}, s{S_XB}, s{S_T0}")
    def srd(r, src, size):
        p.s(f"s_mov_b32 s{r+2}, {size:#x}")
        p.s(f"s_mov_b32 s{r+3}, 0x20000")
    def srd2(r, src):
        p.s(f"s_mov_b32 s{r}, s{src}")
        p.s(f"s_and_b32 s{r+1}, s{src+1}, 0xffff")
    SR = ((SRD_X, 84, 32 * 144 * 640 * 2), (SRD_W, 90, 640 * 4096 * 2), (SRD_K, 86, 1 << 27), (SRD_V, 88, 1 << 27),
          (SRD_WO, 92, 4096 * 640 * 2), (SRD_OUT, 94, 32 * 144 * 640 * 2), (SRD_DBG, 96, 256), (SRD_WS, 98, (1 << 28) if PROF else WSBYTES))
    for x in SR: srd(*x)
    if PROF: p.s("s_memrealtime s[66:67]") if 0 else None
    p.s("s_waitcnt lgkmcnt(0)")
    if PROF: p.s("s_memrealtime s[4:5]")
    for x in SR[:2]: srd2(*x[:2])
    for ops in (x_ops(0), w_ops(0), w_ops(1)):
        for f, _ in ops: f(p)
    for x in SR[2:]: srd2(*x[:2])
    stamp(p, 0)
    if PROF:
        p.raw("v_writelane_b32 v0, s100, 3")
        p.raw("v_writelane_b32 v0, s4, 4")
    p.vop("v_lshlrev_b32", V_LIN, "4", L)
    code_addr(p, name, L)
    code_touch(p)
    p.vop("v_lshl_add_u32", b, R8, "8", d)
    p.vop("v_lshl_add_u32", V_DV, cv, "4", b)
    for j in range(1, 4): p.vop("v_add_u32", V_DV + j, f"{1024 * j}", V_DV)
    if E("LINT", "") == "1":
        for j in range(4): p.vop("v_lshl_add_u32", V_DV + j, U, "12", V_LIN)
    if E("LINT", "") == "2":
        p.vop("v_lshl_add_u32", V_DV, U, "10", V_LIN)
        for j in range(1, 4): p.vop("v_add_u32", V_DV + j, f"{1024 * j}", V_DV)
    p.s(f"s_lshl_b32 s{S_T0}, s2, 1")
    p.s(f"s_add_u32 s{S_T0}, s{S_T0}, s{S_P}")
    p.s(f"s_mul_i32 s{S_T0}, s{S_T0}, {int(E('KROT', '5'))}")
    p.s(f"s_lshr_b32 s{S_T1}, s2, 3")
    p.s(f"s_add_u32 s{S_T0}, s{S_T0}, s{S_T1}")
    p.s(f"s_and_b32 s{S_T0}, s{S_T0}, {15 if int(E('KROT', '5')) else 0}")
    p.s(f"s_lshl_b32 s{S_KOFF}, s{S_T0}, 13")
    p.s(f"s_mov_b32 s{S_M0KVP}, s{S_M0KV}")
    p.s(f"s_mov_b32 s{S_M0KVP+1}, s{S_M0W}")
    p.s(f"s_mov_b32 s{S_KVP}, s{S_KVN}")
    p.s(f"s_mov_b32 s{S_EM}, 0")
    p.s(f"s_movk_i32 s{S_ED}, 2048")
    p.s(f"s_mov_b32 s{S_TAB}, 0x83210549")
    srd(SRD_E, 0, 1 << 27)
    p.s(f"s_and_b32 s{S_U}, s{S_W}, 1")
    p.s(f"s_lshl_b32 s{S_T0}, s{S_B}, 2")
    p.s(f"s_lshr_b32 s{S_T1}, s{S_G}, 1")
    p.s(f"s_add_u32 s{S_T0}, s{S_T0}, s{S_T1}")
    p.s(f"s_and_b32 s{S_T1}, s{S_G}, 1")
    p.s(f"s_lshl_b32 s{S_WFP}, s{S_P}, 7")
    p.s(f"s_add_u32 s{S_WFP}, s{S_WFP}, s{S_T0}")
    p.s(f"s_lshl1_add_u32 s{S_WFP}, s{S_WFP}, s{S_T1}")
    p.s(f"s_lshl1_add_u32 s{S_WFP}, s{S_WFP}, s{S_U}")
    p.s(f"s_lshl3_add_u32 s{S_WFP}, s{S_WFP}, {WFLG}")
    p.s(f"s_mul_i32 s{S_T0}, s{S_T0}, 40960")
    p.s(f"s_mul_i32 s{S_PT}, s{S_T1}, 20480")
    p.s(f"s_add_u32 s{S_PT}, s{S_PT}, s{S_T0}")
    p.s(f"s_lshl_b32 s{S_EW}, s{S_W}, 10")
    p.s(f"s_add_u32 s{S_PT}, s{S_PT}, s{S_EW}")
    p.s(f"s_add_u32 s{S_EW}, s{S_EW}, {STG}")
    p.s(f"s_mul_i32 s{S_T1}, s{S_T1}, 640")
    p.s(f"s_add_u32 s{S_WT}, s{S_T1}, s{S_T0}")
    p.s(f"s_mul_i32 s{S_T1}, s{S_W}, {8 * 1280}")
    p.s(f"s_add_u32 s{S_WT}, s{S_WT}, s{S_T1}")
    p.s(f"s_mov_b32 s{S_WEND}, {0x7c | ((0xfff << (15 + PFS)) & 0x7fff0000):#x}")
    if PFN:
        p.s(f"s_lshl_b32 s94, s{S_W}, 10")
        p.s(f"s_add_u32 s94, s94, {XRING + XSL}")
        p.s(f"s_sub_u32 s{S_PFO}, s{S_KOFF}, {8192 * PFN // 2 * (PFS - 1) + 65536 * (int(E('PFD', '0')) == 1)}")
        if int(E("PFD", "0")) == 2:
            p.s(f"s_add_u32 s{S_T0}, s{S_B}, s{S_G}")
            p.s(f"s_add_u32 s{S_T0}, s{S_T0}, s{S_P}")
            p.s(f"s_and_b32 s{S_T0}, s{S_T0}, 3")
            p.s(f"s_lshl_b32 s{S_T0}, s{S_T0}, 11")
            p.s(f"s_add_u32 s{S_PFO}, s{S_PFO}, s{S_T0}")
        p.s(f"s_mov_b32 s{S_PFB}, " + (f"s{S_KVP}" if PFS == 1 else f"{OOB:#x}"))
    if int(E("TOUCH", "0")):
        p.add(Ins(f"buffer_load_dword v{V_T+4}, off, s[{SRD_K}:{SRD_K+3}], s{S_KVN} nt", "vml", [], [V_T + 4], tag="touch"))
        p.add(Ins(f"buffer_load_dword v{V_T+5}, off, s[{SRD_V}:{SRD_V+3}], s{S_KVN} nt", "vml", [], [V_T + 5], tag="touch"))
        p.add(Ins(f"buffer_load_dword v{V_T+7}, off, s[{SRD_WS}:{SRD_WS+3}], s{S_PT} sc1", "vml", [], [V_T + 7], tag="touch"))
        if int(E("TOUCHO", "1")): p.add(Ins(f"buffer_load_dword v{V_T+6}, off, s[{SRD_WO}:{SRD_WO+3}], s{S_WT}", "vml", [], [V_T + 6], tag="touch"))
    p.s(f"s_sub_u32 s{S_WT}, s{S_WT}, 256")
    FWARM = int(E("FWARM", "3"))
    if FWARM & 1:
        p.s(f"s_lshl2_add_u32 s{S_T0}, s{S_B}, s{S_W}")
        p.s(f"s_mul_i32 s{S_T0}, s{S_T0}, {4 * FS}")
        p.s(f"s_lshl_b32 s{S_T1}, s{S_G}, {FG}")
        p.s(f"s_add_u32 s{S_T0}, s{S_T0}, s{S_T1}")
        p.s(f"s_add_u32 s{S_T2}, s{S_T0}, {PFLG}")
        p.vop("v_mul_u32_u24", 4, f"{FS}", PI)
        if not FWL: p.add(Ins(f"buffer_load_dword v{V_JUNK}, off, s[{SRD_WS}:{SRD_WS+3}], s{S_T2} sc1", "vm", [], [], tag="touch"))
    if FWARM & 4:
        p.s(f"s_lshl2_add_u32 s{S_T0}, s{S_B}, s{S_W}")
        p.s(f"s_mul_i32 s{S_T1}, s{S_T0}, {PARTB // 4}")
        p.s(f"s_add_u32 s{S_T1}, s{S_T1}, {PART}")
        p.add(Ins(f"buffer_load_dword v{V_JUNK}, off, s[{SRD_WS}:{SRD_WS+3}], s{S_T1} sc1 nt", "vm", [], [], tag="touch"))
        p.s(f"s_mul_i32 s{S_T1}, s{S_T0}, {36 * 1280}")
        p.add(Ins(f"buffer_load_dword v{V_JUNK}, off, s[{SRD_OUT}:{SRD_OUT+3}], s{S_T1} sc1 nt", "vm", [], [], tag="touch"))
    if FWARM & 8:
        p.vop("v_mul_u32_u24", V_T + 3, f"{PARTB // 64}", L)
        p.s(f"s_mul_i32 s{S_T1}, s{S_B}, {PARTB}")
        p.s(f"s_add_u32 s{S_T1}, s{S_T1}, {PART}")
        p.s(f"s_cmp_eq_u32 s{S_W}, 0")
        p.s(f"s_cselect_b32 s{S_T1}, s{S_T1}, {OOB:#x}")
        p.add(Ins(f"buffer_load_dword v{V_JUNK}, v{V_T+3}, s[{SRD_WS}:{SRD_WS+3}], s{S_T1} offen sc1 nt", "vm", [V_T + 3], [], tag="touch"))
    if FWARM & 2 and not FWL: p.add(Ins(f"buffer_load_dword v{V_JUNK}, off, s[{SRD_WS}:{SRD_WS+3}], s{S_WFP} sc1", "vm", [], [], tag="touch"))
    p.s(f"s_or_b32 s{S_T0}, s2, s{S_W}")
    p.s(f"s_cmp_lg_u32 s{S_T0}, 0")
    p.s(f"s_cbranch_scc1 {name}_nononce")
    p.s(f"s_memrealtime s[{S_NON}:{S_NON+1}]")
    p.s("s_waitcnt lgkmcnt(0)")
    p.s(f"s_or_b32 s{S_NON+1}, s{S_NON+1}, 0x80000000")
    p.raw(f"v_mov_b32 v{V_T}, s{S_NON}")
    p.raw(f"v_mov_b32 v{V_T+1}, s{S_NON+1}")
    p.s("s_mov_b64 exec, 1")
    p.raw(f"buffer_store_dwordx2 v[{V_T}:{V_T+1}], v{V_LIN}, s[{SRD_DBG}:{SRD_DBG+3}], 0 offen sc1")
    p.s("s_mov_b64 exec, -1")
    p.label(f"{name}_nononce")
    p.s(f"s_mov_b32 s{S_SPIN}, 0x40000")
    p.s(f"s_mov_b32 s{S_PH}, 0")
    if QT:
        p.s(f"s_add_u32 s{S_T0}, s{S_B}, s{S_G}")
        p.s(f"s_and_b32 s{S_T0}, s{S_T0}, {QT[1]}")
        p.s(f"s_add_u32 s{S_T0}, s{S_T0}, {QT[0]}")
        p.s(f"s_lshl_b32 s{S_TI}, 1, s{S_T0}")
    if PROF in (2, 3): p.s("s_mov_b32 s93, 32")
    p.s(f"s_mov_b64 s[{S_BAD}:{S_BAD+1}], 0")
    p.s(f"s_mov_b32 s{S_CS}, {f2u(CSCALE):#x}")
    p.s(f"s_mov_b32 s{S_CS+1}, s{S_CS}")
    p.s(f"s_mov_b32 s{S_LO}, {f2u(2.0 ** -24):#x}")
    p.s(f"s_mov_b32 s{S_HI}, {f2u(2.0 ** 16):#x}")
    p.vop("v_and_b32", M, "15", L)
    p.vop("v_lshrrev_b32", G, "4", L)
    p.vop("v_lshrrev_b32", a, "3", M)
    p.vop("v_mul_u32_u24", c, "3", a)
    p.vop("v_xor_b32", c, c, G)
    p.vop("v_and_b32", b, "7", M)
    p.vop("v_lshlrev_b32", b, "6", b)
    p.vop("v_lshl_add_u32", b, c, "4", b)
    p.vop("v_lshl_add_u32", b, a, "10", b)
    p.vop("v_add_u32", V_AX8, f"{XRING}", b)
    p.vop("v_lshl_add_u32", V_AX, U, "13", V_AX8)
    p.vop("v_add_u32", V_AW + 5, f"{XALT}", b)
    p.vop("v_lshl_add_u32", V_AW + 4, U, "13", V_AW + 5)
    p.vop("v_and_b32", c, "0x1ff", V_LIN)
    p.vop("v_lshl_add_u32", c, VV, "10", c)
    p.vop("v_lshl_add_u32", c, P, "9", c)
    p.vop("v_lshl_add_u32", c, U, "3", c)
    p.vop("v_add_u32", V_WR, f"{STG + 4096}", c)
    p.vop("v_and_b32", b, "0xffffffcf", b)
    p.vop("v_bfe_u32", a, M, "2", "1")
    p.vop("v_lshlrev_b32", a, "1", a)
    p.vop("v_xor_b32", a, a, G)
    p.vop("v_lshl_add_u32", b, a, "4", b)
    p.vop("v_lshl_add_u32", V_AK, P, "13", b)
    p.vop("v_lshrrev_b32", a, "1", G)
    p.vop("v_lshlrev_b32", b, "10", a)
    p.vop("v_lshl_add_u32", b, R8, "6", b)
    p.vop("v_and_b32", c, "1", L)
    p.vop("v_lshl_add_u32", b, c, "3", b)
    p.vop("v_bfe_u32", c, L, "1", "1")
    p.vop("v_lshl_add_u32", b, c, "4", b)
    p.vop("v_and_b32", c, "1", G)
    p.vop("v_lshl_add_u32", b, c, "5", b)
    p.vop("v_lshl_add_u32", V_AV0, P, "13", b)
    p.vop("v_xor_b32", V_AV1, "32", V_AV0)
    p.vop("v_lshl_add_u32", a, U, "9", V_AV0)
    p.vop("v_xor_b32", b, "32", a)
    p.vop("v_xor_b32", c, "512", a)
    p.vop("v_xor_b32", d, "512", b)
    for i, r in enumerate((a, b, c, d)): p.vop("v_add_u32", V_AW + i, f"{WRING}", r)
    for n in range(4):
        for r in range(4): p.vop("v_mov_b32", QA(0, n, 7) + r, "0")
    for ops in (w_ops(2), x_ops(1), w_ops(3))[:3 - PRO]:
        for f, _ in ops: f(p)
    stamp(p, 23)
    return p

def R128(d, a, off): return lambda p: p.ds_read128(d, a, off)
def TR(d, a, off): return lambda p: p.ds_tr(d, a, off)

class Pool:
    def __init__(self, sc, base, n):
        self.sc = sc; self.regs = base if isinstance(base, list) else [base + 4 * k for k in range(n)]; n = len(self.regs); self.n = n; self.last = [None] * n; self.i = 0; self.frags = []
    def frag(self, tile, mk_reads, consumers, as_b=False):
        k = self.i % self.n; self.i += 1
        r = self.regs[k]
        war = self.last[k]
        for (d, o, c, tag) in consumers:
            if as_b: self.sc.mfma(d, o, r, c, tag)
            else: self.sc.mfma(d, r, o, c, tag)
        self.last[k] = consumers[-1][3]
        self.frags.append((tile, mk_reads(r), consumers[0][3], war))

LEAD = int(E("LEAD", "9"))
LEADB = int(E("LEADB", "8"))
BGAP = int(E("BGAP", "4"))

def sstamp(p):
    p.s(f"s_memrealtime s[{S_TM}:{S_TM+1}]")
    p.s(f"s_memtime s[{S_TM+2}:{S_TM+3}]")
    p.wait_lgkm0()
    p.s("s_mov_b32 s99, m0")
    p.s("s_mov_b32 m0, s93")
    p.s("s_add_u32 s93, s93, 1")
    p.raw(f"v_writelane_b32 v0, s{S_TM}, m0")
    p.raw(f"v_writelane_b32 v255, s{S_TM+2}, m0")
    p.s("s_mov_b32 m0, s99")

QT = [int(x) for x in E("QT", "").split(",") if x]
def qmod(name):
    p = Prog()
    KVS = [-1] * 4 + [int(x) for x in E("KVS", "37,0,0,36" if W39 else "37,0,0,0").split(",")]
    WSH = int(E("WSH", "38"))
    sc = Sched(p, budget=int(E("QBUD", "8")), late_extra=8)
    sc.group["dma"] = "vm"; sc.pace["vm"] = int(E("QPACE", "4"))
    sc.maxds = int(E("QMAXDS", "1"))
    pool = Pool(sc, A_QP, NPOOL)
    XS2 = lambda i, kh, n: (A_Q + 40 if i & 1 else V_S) + (kh * 5 + n) * 4
    for h in range(40):
        r = 1 - ((h >> 1) & 1); mh = h & 1
        for k in range(4):
            ns = list(range(5 if k < 2 else 4))
            if k % 2 == 0: ns.reverse()
            qa = lambda n: QA(r, n, 4 * mh + k if n < 4 else 2 * mh + k)
            for kh in range(2):
                off = (h % 4) * 16384 + kh * 4096
                cons = [(qa(n), XS2(h // 4, kh, n), qa(n) if (4 * h + k >= 15 or kh != (j & 1)) else None, ("Q", h, k, j, kh)) for j, n in enumerate(ns)]
                pool.frag(h, lambda rg: [TR(rg, V_AW + k, off), TR(rg + 2, V_AW + k, off + 2048)], cons)
            k0 = len(sc.m) - 2 * len(ns)
            sc.m[k0:] = sorted(sc.m[k0:], key=lambda x: (x[4][3], x[4][4] ^ (x[4][3] & 1)))
            for i in range(k0, len(sc.m)): sc.idx[sc.m[i][4]] = i
    mt = lambda i: sc.m[max(0, min(i, len(sc.m) - 1))][4]
    def xreads(i):
        return [R128(XS2(i, kh, n), (V_AX if i else V_AW + 4) + (n >> 2), (n if n < 4 else 8) * 2048 + kh * 512) for n in (4, 3, 2, 1, 0) for kh in range(2)]
    for fi, (h, reads, cons, war) in enumerate(pool.frags):
        c0 = 36 * h
        tau = c0 - LEADB
        taun = c0 + 36 - LEADB
        if fi % 8 == 0:
            def bar(p, h=h):
                p.comment(f"---- q step {h}")
                tags = [("W", h)]
                if h == 0: tags.append(("X", 0))
                if h % 4 == 3 and h < 39: tags.append(("X", (h + 1) // 4))
                if h % 4 == EKP[3] and 4 <= h < 36: tags.append(("WOP", h // 4 - 1))
                if QT and h % 4 in QT[3:] and h >= 1:
                    p.s(f"s_lshr_b32 s{S_TI}, s{S_TI}, 1")
                    p.s("s_cbranch_scc0 1")
                    p.raw(f"s_waitcnt vmcnt({QT[2]})")
                p.wait_vm(tags, lgkm0=True)
                if "b" not in ABL or h < 4: p.barrier()
                if h == 39 and W39:
                    for i in range(4): p.vop("v_add_u32", V_AW + i, "16384", V_AW + i)
                if PROF == 2 and h % 2 == 0: sstamp(p)
                if int(E("QSL", "0")) and (h < 3 or int(E("QSA", "0"))): p.raw(f"s_nop {int(E('QSL', '0'))}")
            ops = []
            if h % 4 == 0 and 4 <= h < 36: ops += x_ops(h // 4 + 1)
            if 1 <= h < 37: ops += w_ops(h + 3)
            if h == 0 and PRO: ops += sum([w_ops(2), x_ops(1), w_ops(3)][3 - PRO:], [])
            if int(E("XW", "0")) and h % 4 == 0 and 4 <= h < 36: ops = xw_ops(h // 4 + 1, h + 3)
            if "d" in ABL: ops = []
            nb = len(ops)
            if h < 36: ops = ek_ops(h) + ops if (str(h % 4) in E("EKF", "")) else ops + ek_ops(h)
            nb = len(ops) - nb
            if h % 4 == EKP[3] and 4 <= h < 36:
                for r in range(15, -1, -1): sc.fill("rw", lambda p, r=r: p.amov(A_Q + 4 + r, A_Q + r), 4, after=dict(tag=("BAR", h), delay=14))
                for i in range(2): sc.fill("rw", TR(A_Q + 2 * i, V_WR, i * 2048), 4, ds=True, before=mt(taun - BGAP), lead=2)
                sc.fill("rw", lambda p: p.vop("v_xor_b32", V_WR, "4096", V_WR), 4, before=mt(taun - 1))
            for k, x in enumerate(KVS):
                if x == h and h: ops += kv_ops(32 + k)
            if h == WSH and "S" not in ABL: ops += [(wst, 20)]
            sc.fill("rd", bar, 8, before=mt(tau), early=0 if h else None, tag=("BAR", h))
            QD = int(E("QD", "14")) - 4 * nb * int(E("QDE", "1")) if (len(ops) - nb <= 4 and h) else int(E("QD2", "0"))
            fill_dma(sc, ops, dict(tag=("BAR", h), delay=QD), mt(taun - 1), tag="WST" if h == WSH else None)
            if h == 0:
                for k, fn in enumerate(xreads(0)): sc.fill("rx", fn, 4, ds=True, after=("BAR", 0), before=mt(max(0, k - 5)))
            if h % 4 == 3 and h < 39:
                for j, fn in enumerate(xreads((h + 1) // 4)): sc.fill("rx", fn, 4, ds=True, after=("BAR", h), before=mt(taun - BGAP), lead=2 * (10 - j))
        for k, fn in enumerate(reads):
            if "r" in ABL and h >= 2: continue
            bf = cons
            if sc.idx[cons] > taun - BGAP: bf = mt(taun - BGAP)
            sc.fill("rd", fn, 4, ds=True, after=war if k == 0 else None, before=bf, lead=LEAD if bf is cons else 0, early=int(E("QEARLY", "99")))
    def lastbar(p):
        p.comment("---- q step 40")
        p.wait_lgkm0(); p.barrier()
        p.add(Ins(f"buffer_load_dwordx2 v[{V_NV}:{V_NV+1}], off, s[{SRD_DBG}:{SRD_DBG+3}], 0 sc1", "vml", [], [V_NV, V_NV + 1], tag="non"))
    sc.fill("rd", lastbar, 8, before=mt(36 * 40 - LEADB), early=0)
    def eaddr(p):
        p.v(f"v_lshl_add_u32 v{V_E0}, s{S_W}, 12, v{V_LIN}", [V_E0], [V_LIN])
        p.vop("v_add_u32", V_E0, f"{XRING}", V_E0)
        p.vop("v_xor_b32", V_E1, "4096", V_E0)
        p.vop("v_and_b32", V_E2, "0xfffffcf0", V_E0)
        p.vop("v_bfe_u32", V_T, V_LIN, "9", "1")
        p.vop("v_lshl_add_u32", V_E2, V_T, "8", V_E2)
        p.vop("v_bfe_u32", V_T, V_LIN, "8", "1")
        p.vop("v_lshl_add_u32", V_E2, V_T, "3", V_E2)
    z = Prog(); eaddr(z)
    for x in z.ins: sc.fill("fa", lambda p, x=x: p.add(x), 4, after=("BAR", 36))
    NH1, NH0 = [int(x) for x in E("NH", "10,3").split(",")]
    hid = [(1, n, t) for t in range(4) for n in range(4)][:NH1] + [(0, n, t) for t in range(2) for n in range(3)][:NH0]
    for k, (r, n, t) in enumerate(hid):
        done = dict(tag=mt(36 * (38 - 2 * r + (t >> 1)) + (20 if t % 2 == 0 else 36) - 1), delay=2)
        s0 = V_S + 8 * (k % 4) if r else QA(0, n, 2 * t)
        if r:
            for x in range(8): sc.fill("fa", lambda p, s0=s0, x=x, n=n, t=t: p.ar(s0 + x, QA(1, n, 2 * t + (x >> 2)) + (x & 3)), 4, after=[done] + ([("FP", k - 3)] if k >= 4 else []), tag=("FA", k) if x == 7 else None)
        def clump(p, k=k, s0=s0, prev=None if k == 0 else sprev):
            if k: p.ds_write2(V_E2, prev, 16384 + ((k - 1) % 4) * 1024)
            for x in range(0, 8, 2): p.pkmul(s0 + x, s0 + x, f"s[{S_CS}:{S_CS+1}]")
        sc.fill("fp", clump, 8, solo=True, after=[("FA", k) if r else done] + ([("FC", k - 1)] if k else []) + ([("FR", k - 5)] if k >= 5 else []), tag=("FP", k), before=mt(1439), lead=400)
        for x in range(4): sc.fill("fc", lambda p, s0=s0, x=x: p.cvtpk(s0 + x, s0 + 2 * x, s0 + 2 * x + 1), 4, after=("FP", k), tag=("FC", k) if x == 3 else None, before=mt(1439), lead=1)
        sc.fill("fr", R128(Qf(n, t, A_QN if r else A_Q), V_E0, 16384 + (k % 4) * 1024), 4, ds=True, after=[("FP", k + 1)] + ([] if r else ["WST"]), tag=("FR", k), before=mt(1439), lead=2)
        sprev = s0
    if hid: sc.fill("fp", lambda p: p.ds_write2(V_E2, sprev, 16384 + ((len(hid) - 1) % 4) * 1024), 8, solo=True, after=[("FC", len(hid) - 1)] + ([("FR", len(hid) - 5)] if len(hid) >= 5 else []), tag=("FP", len(hid)), before=mt(1439), lead=400)
    sc.run()
    stamp(p, 1)
    fstart = len(p.ins)
    TB = V_O + 144
    cnt = [0]
    def fin(r, n, t, i):
        s0 = QA(r, n, 2 * t)
        if r:
            tb = TB + 8 * (cnt[0] & 1); cnt[0] += 1
            for x in range(8): p.ar(tb + x, QA(r, n, 2 * t + (x >> 2)) + (x & 3))
            s0 = tb
        dst = V_S + 4 * i
        for x in range(0, 8, 2): p.pkmul(s0 + x, s0 + x, f"s[{S_CS}:{S_CS+1}]")
        for x in range(4): p.cvtpk(dst + x, s0 + 2 * x, s0 + 2 * x + 1)
        return dst
    for r in range(2):
        for t in range(2): p.ds_write2(V_E2, fin(r, 4, t, 2 * r + t), (2 * r + t) * 1024)
    left = [(r, n, t) for r in (1, 0) for n in range(4) for t in range(4) if (r, n, t) not in hid]
    FL = [int(x) for x in E("FLD", "02")]
    for g0 in range(0, len(left), 4):
        ds = {}; rd = []
        for j, (r, n, t) in enumerate(left[g0:g0 + 4]):
            d = fin(r, n, t, 4 + (g0 & 4) + j); q = Qf(n, t, A_QN if r else A_Q)
            if j in FL: p.ds_write2(V_E2, d, 16384 + j * 1024); rd.append((q, j))
            else: ds[q] = d
        for f in (p.swap32, p.swap16):
            for d in ds.values(): f(d, d + 2); f(d + 1, d + 3)
        for q, j in rd: p.ds_read128(q, V_E0, 16384 + j * 1024)
        for q, d in ds.items():
            for x in range(4): p.aw(q + x, d + x)
        if g0 == 4:
            p.raw(f"s_waitcnt lgkmcnt({2 * len(FL)})"); p.barrier()
            for r in range(2):
                for t in range(2): p.ds_read128(Qf(4, 2 * t, A_QN if r else A_Q), V_E0, (2 * r + t) * 1024)
                for t in range(2): p.ds_read128(Qf(4, 2 * t + 1, A_QN if r else A_Q), V_E1, (2 * r + t) * 1024)
    p.vop("v_mov_b32", V_T, "0x3f803f80")
    for r in range(4): p.aw(A_ONE + r, V_T)
    sprinkle([(p, fstart)], sum([kv_ops(32 + k) for k in range(4, 8 - T7) if KVS[k] == 0], []), 0.0, float(E("QSH", "1.0")))
    stamp(p, 26)
    get_nonce(p, f"{name}_n1", V_T)
    stamp(p, 27)
    p.wait_vm("wst")
    stamp(p, 28)
    publish(p, f"s{S_WFP}", 0, V_T)
    stamp(p, 29)
    z = p
    z.s(f"s_lshl_b32 s{S_PF}, s{S_U}, 12")
    z.s(f"s_lshl_b32 s{S_T1}, s{S_G}, 9")
    z.s(f"s_add_u32 s{S_PF}, s{S_PF}, s{S_T1}")
    z.s(f"s_add_u32 s{S_PF}, s{S_PF}, {WFLG}")
    z.vop("v_lshrrev_b32", V_AX, "1", V_LIN)
    for n in range(5): z.vop("v_mov_b32", V_DA + n, f"{DROP:#x}")
    ti_init(z, 0)
    stamp(z, 2)
    return p

def a_mfmas(sc, pool, qh):
    AV = (V_AV0, V_AV1)
    has8 = lambda u: (u & 1) == qh
    for pos, (kind, u) in enumerate(KVSEQ):
        sb = (pos % 4) * 16384
        ns = [0, 1, 2, 3] + ([4] if has8(u) else [])
        if kind == "K":
            for kt in range(2):
                for ks in range(4):
                    off = sb + kt * 2048 + (ks >> 1) * 4096 + ((ks & 1) ^ qh) * 512
                    cons = []
                    for n in ns:
                        d = XS(u & 1, n) if kt == 0 else YS(n)
                        cons.append((d, Qf(n, ks), d if ks else None, ("S", u, kt, ks, n)))
                    pool.frag(pos, lambda r: [R128(r, V_AK, off)], cons)
                SCH = int(E("SCH", "4"))
                k0 = len(sc.m) - 4 * len(ns)
                sc.m[k0:] = sorted(sc.m[k0:], key=lambda x: (x[4][3] // SCH, x[4][4], x[4][3]))
                for k in range(k0, len(sc.m)): sc.idx[sc.m[k][4]] = k
        else:
            first = lambda n: u == 0 if n < 4 else u == qh
            for n in ns: sc.mfma(La(n), A_ONE, XS(u & 1, n), None if first(n) else La(n), ("L", u, n))
            for m in range(8):
                e, mp = m & 1, m >> 1
                off = sb + (mp >> 1) * 4096 + (mp & 1) * 512
                oa = lambda n: Oa(n, m if n < 4 else m ^ (4 * qh))
                cons = [(oa(n), XS(u & 1, n), None if first(n) else oa(n), ("PV", u, m, n)) for n in ns]
                if int(E("SNK", "1")) and m % 2 == 0: cons.reverse()
                pool.frag(pos, lambda r: [TR(r, AV[e], off), TR(r + 2, AV[e], off + 2048)], cons)

def a_taus():
    cs = []
    for qh in range(2):
        sc = Sched(Prog()); pool = Pool(sc, A_POOL, NPOOL); a_mfmas(sc, pool, qh)
        c = {}
        for (pos, _, cons, _) in pool.frags: c.setdefault(pos, sc.idx[cons])
        c[32] = len(sc.m) + LEADB - 3
        cs.append(c)
    return [min(cs[0][j], cs[1][j]) - LEADB for j in range(33)]

def aentry(name):
    p = Prog()
    p.label(f"{name}_A")
    p.s(f"s_mov_b32 s{S_KB}, s{S_KVN}")
    p.s(f"s_mov_b32 s{SRD_C+2}, 0x8000000")
    p.s(f"s_add_u32 s{S_KVN}, s{S_KVN}, {2 << 17}")
    p.s(f"s_cmp_eq_u32 s{S_PH}, 0")
    p.s(f"s_cselect_b32 s{S_M0KVP}, s{S_M0KV}, {DROP:#x}")
    p.s(f"s_cselect_b32 s{S_M0KVP+1}, s{S_M0W}, {DROP:#x}")
    p.s(f"s_cselect_b32 s{S_KVP}, s{S_KVN}, {OOB:#x}")
    p.s(f"s_cselect_b32 s{S_WT2}, {OOB:#x}, s{S_WT}")
    p.s(f"s_cmp_eq_u32 s{S_U}, 1")
    p.s(f"s_cbranch_scc1 {name}_A1")
    return p

def tile_addr(p, base, dst):
    p.s(f"s_cmp_lt_u32 s{S_G}, 5")
    p.s(f"s_cselect_b32 s{S_T0}, 1, 0")
    p.s(f"s_xor_b32 s{S_T0}, s{S_T0}, s{S_U}")
    p.v(f"v_lshl_add_u32 v{dst}, s{S_T0}, 12, v{base}", [dst], [base])
    for n in range(1, 4): p.vop("v_add_u32", dst + n, f"{1024 * n}", dst)

S_TI = 96
TI = [[tuple(int(x) for x in y.split("+")) for y in z.split(",")] for z in E("TI", "0+0,4+7;0+0,2+3").split(";")]
def ti_init(p, r):
    for k, (b, sp) in enumerate(TI[r]):
        if b < 0 or TI[0][k] == (0, 0): continue
        p.s(f"s_add_u32 s{S_T0}, s{S_B}, " + (f"s{S_G}" if int(E("TIG", "1")) else "0"))
        p.s(f"s_and_b32 s{S_T0}, s{S_T0}, {sp}" if sp >= 0 else f"s_andn2_b32 s{S_T0}, {-sp}, s{S_T0}")
        p.s(f"s_add_u32 s{S_T0}, s{S_T0}, {b}")
        p.s(f"s_lshl_b32 s{S_TI + k}, 1, s{S_T0}")
WLP = [int(x) for x in E("WLP", "0,0,0,1,1,1,2,2,2,3,3,3").split(",")]
def avm(pos):
    if pos >= 30: return None
    pat = [int(x) for x in E("AVM", "3,4").split(",")]
    h = [int(x) for x in E("AVMH", "").split(",") if x]
    if pos < len(h): return h[pos]
    return pat[pos % len(pat)] + WLP.count(pos - 1) * int(E("WLC", "1"))
RQ = [int(x) for x in E("RQH", "3,3,3,3" if T7 else "0,3,3,2").split(",")] + [int(x) for k in "123" for x in E("RQ" + k, "43434343")] + [int(x) for x in E("RQT", "4,4,4,4").split(",")]
STREAM = sum([kv_ops(k) for k in range(8 - T7, 40 - T7)], [])
for s_ in range(32): assert sum(RQ[:s_ + 1]) <= 4 * (s_ + T7)
def amod(name, qh):
    p = Prog()
    p.label(f"{name}_A{qh}")
    sc = Sched(p, budget=int(E("ABUD", "8")), late_extra=int(E("ALATE", "8")))
    sc.group["dma"] = "vm"; sc.pace["vm"] = int(E("APACE", "2"))
    pool = Pool(sc, A_POOL, NPOOL)
    a_mfmas(sc, pool, qh)
    tau = a_taus()
    mt = lambda i: sc.m[max(0, min(i, len(sc.m) - 1))][4]
    def add_bar(pos):
        def bar(p, pos=pos):
            p.comment(f"---- a step {pos}")
            if TI[0][pos % 2] != (0, 0) and pos < 30:
                p.s(f"s_lshr_b32 s{S_TI + pos % 2}, s{S_TI + pos % 2}, 1")
                p.s("s_cbranch_scc0 1")
                p.raw(f"s_waitcnt vmcnt({avm(pos) - 1})")
            if pos < 32: p.wait_vm(KVSEQ[pos], lgkm0=True, cap=avm(pos))
            else: p.wait_lgkm0()
            p.barrier()
            if pos % 4 == 0 and pos:
                for r in (V_AV0, V_AV1, V_AK): p.vop("v_xor_b32", r, "0x10000", r)
            if PROF == 3 and pos % 2 == 0 and pos < 32: sstamp(p)
        sc.fill("rd", bar, 8, before=mt(tau[pos]), early=0 if pos else None, tag=("BAR", pos))
        if pos < 32:
            ops = STREAM[sum(RQ[:pos]):sum(RQ[:pos + 1])]
            aft = ("BAR", pos); bf = mt(tau[pos + 1] - 1)
            span = tau[pos + 1] - max(tau[pos], 0)
            if pos in CPA: ops = [(code_touch, 8)] + ops
            if pos == WTP: ops = [(lambda p: w_touch(p, 0), 8), (lambda p: w_touch(p, 64), 8)][:WTN] + ops
            for k, op in enumerate(ops): fill_dma(sc, [op], dict(tag=aft, delay=(k * (span - 2)) // len(ops)), bf)
            for k in [k for k in range(12) if WLP[k] == pos]:
                for fn, kind, cost in split_ops([(wload(0, k, S_T2, S_WT2), 8)]):
                    sc.fill("dmp", fn, 8 if kind == "vm" else 4, after=dict(tag=aft, delay=(5 if WLP.count(pos) > 1 else 20) + 9 * (k - WLP.index(pos))), solo=(kind == "vm"), before=bf, lead=20)
            if pos == 30:
                WLS = int(E("WLS", "6"))
                last = ("S", 15, 1, 3, 4 if qh == 1 else 3)
                for k in range(12):
                    for fn, kind, cost in split_ops([(wload(0, 12 + k, S_T2, S_WT2), 8)]):
                        sc.fill("dmp", fn, 8 if kind == "vm" else 4, after=dict(tag=last, delay=2 + WLS * k), solo=(kind == "vm"), before=mt(sc.idx[last] + 12 + WLS * k), lead=9)
            if 26 <= pos < 30:
                t = pos - 26
                ws = [(V_DA + n, Qf(n, t, A_QN), t * 18432 + 1024) for n in range(4)]
                if t >> 1 == qh: ws.append((V_DA + 4, Qf(4, t & 1, A_QN), (t & 1) * 18432))
                for k, w in enumerate(ws):
                    sc.fill("dw", lambda p, w=w: p.ds_write(w[0], w[1], 4, w[2]), 8, solo=True, after=dict(tag=aft, delay=4 + k * ((span - 10) // len(ws))), before=mt(tau[pos + 1] - BGAP), lead=12)
            if pos == 31:
                for f in range(8): sc.fill("dw", R128(P0_B[f], V_LIN, IMG(f)), 4, ds=True, after=dict(tag=aft, delay=16 + 2 * f), before=mt(tau[32] - BGAP), lead=4)
    cur = None
    for (pos, reads, cons, war) in pool.frags:
        if pos != cur:
            cur = pos; add_bar(pos)
        for k, fn in enumerate(reads):
            bf = cons
            if sc.idx[cons] > tau[pos + 1] - BGAP: bf = mt(tau[pos + 1] - BGAP)
            sc.fill("rd", fn, 4, ds=True, after=war if k == 0 else None, before=bf, lead=LEAD if bf is cons else 0)
    add_bar(32)
    def V(fn, after=None, before=None, cost=4, lead=0): sc.fill("va", fn, cost, after=after, before=before, lead=lead)
    EDL = int(E("EDL", "3"))
    for u in range(16):
        ns = [0, 1, 2, 3] + ([4] if (u & 1) == qh else [])
        for kt in range(2):
            for n in ns:
                src = XS(u & 1, n) if kt == 0 else YS(n)
                dst = XS(u & 1, n) + 2 * kt
                for r in range(4):
                    V(lambda p, reg=src + r: p.exp(reg, reg), after=dict(tag=("S", u, kt, 3, n), delay=EDL), cost=8)
                bf = ("L", u, n)
                if kt == 1 and n < 4 and u < 15: bf = ("S", u + 1, 1, 0, n)
                V(lambda p, dst=dst, src=src: p.cvtpk(dst, src, src + 1))
                V(lambda p, dst=dst, src=src: p.cvtpk(dst + 1, src + 2, src + 3), before=bf, lead=2)
    sc.run()
    p.s(f"s_cmp_eq_u32 s{S_PH}, 0")
    p.s(f"s_cbranch_scc0 {name}_P0")
    if qh == 0: p.s(f"s_branch {name}_F")
    return p

RL, CHK, PX, AD, AL = V_S + 2, V_S + 12, V_S + 16, V_S + 48, V_S + 50
def f_addr(p):
    p.v(f"v_lshl_add_u32 v{AD}, s{S_W}, 12, v{V_LIN}", [AD], [V_LIN])
    p.vop("v_add_u32", AD, f"{MISC}", AD)
    p.vop("v_xor_b32", AD + 1, "4096", AD)
def f_bad(op, a, b):
    def f(p):
        p.add(Ins(f"{op} vcc, v{a}, {b}", "valu", [a], []))
        p.s(f"s_or_b64 s[{S_BAD}:{S_BAD+1}], s[{S_BAD}:{S_BAD+1}], vcc")
    return f
def f_rcp(n): return [lambda p: p.vop("v_rcp_f32", RL + 2 * n, RL + 2 * n, kind="trans"), lambda p: p.vop("v_mov_b32", RL + 2 * n + 1, RL + 2 * n)]
def f_range():
    return [lambda p: p.vop("v_max3_f32", V_S, RL, RL + 2, RL + 4), lambda p: p.vop("v_min3_f32", V_S + 1, RL, RL + 2, RL + 4),
            lambda p: p.vop("v_max3_f32", V_S, V_S, RL + 6, RL + 8), lambda p: p.vop("v_min3_f32", V_S + 1, V_S + 1, RL + 6, RL + 8),
            f_bad("v_cmp_nle_f32", V_S, f"s{S_HI}"), f_bad("v_cmp_nge_f32", V_S + 1, f"s{S_LO}")]
def f_fin(): return [lambda p: p.s(f"s_movk_i32 s{S_T2}, 0x207"), f_bad("v_cmp_class_f32", CHK, f"s{S_T2}")]
def f_norm(n, t):
    s0 = Oa(n, 2 * t)
    add = [lambda p, r=r: p.add(Ins(f"v_pk_add_f32 {vr(s0 + r, 2)}, {vr(s0 + r, 2)}, {vr(PX + 8 * t + r, 2)}", "valu", R(s0 + r, 2) | R(PX + 8 * t + r, 2), R(s0 + r, 2))) for r in range(0, 8, 2)] if n == 4 else []
    return add + [lambda p, r=r: p.pkmul(s0 + r, s0 + r, RL + 2 * n) for r in range(0, 8, 2)], [lambda p, r=r: p.cvtpk(s0 + r, s0 + 2 * r, s0 + 2 * r + 1) for r in range(4)]
def f_l8(): return [lambda p: p.vop("v_add_f32", RL + 8, RL + 8, V_S)] + f_rcp(4)
UNITS = [(n, t) for n in (0, 1, 2, 4, 3) for t in range(4 if n < 4 else 2)]
def afin(name):
    p = Prog()
    p.label(f"{name}_F")
    stamp(p, 5)
    poll_issue(p, V_AX, f"s{S_PF}", 0, V_NV)
    f_addr(p)
    for i in range(4): p.ds_write(AD + 1, Oa(4, 4 + i), 4, i * 1024)
    for i in range(2): p.vop("v_subrev_u32", AL + i, "16384", AD + i)
    p.ds_write(AL + 1, La(4), 1, 0)
    for n in range(5): p.ar(RL + 2 * n, La(n))
    for k in range(2):
        for n in range(4): f_rcp(n)[k](p)
    p.wait_lgkm0()
    for k, (n, t) in enumerate(UNITS):
        if k == 4:
            p.barrier()
            for i in range(4): p.ds_read128(PX + 4 * i, AD, i * 1024)
            p.ds_read32(V_S, AL, 0)
        if k == 11:
            for f in f_l8(): f(p)
        for f in sum(f_norm(n, t), []): f(p)
    for f in f_range(): f(p)
    p.s(f"s_mov_b32 s{S_PH}, 1")
    stamp(p, 6)
    for r in range(80):
        if r % 4 == 0 and r < 72: p.mfma(CHK, A_ONE, Oa(UNITS[r // 4][0], 2 * UNITS[r // 4][1]), CHK if r else None)
        p.amov(A_Q + r, A_QN + r)
    for n, t in UNITS:
        for r in range(4): p.aw(Qf(n, t, A_QN) + r, Oa(n, 2 * t) + r)
    for f in f_fin(): f(p)
    sprinkle([(p, 8)], STREAM[sum(RQ):], 0.0, float(E("ASH", "0.7")))
    code_touch(p)
    p.s(f"s_mul_i32 s{S_T0}, s{S_P}, 9216")
    p.vop("v_add_u32", V_DA + 4, f"s{S_T0}", V_LIN)
    tile_addr(p, V_DA + 4, V_DA)
    p.s(f"s_mul_i32 s{S_T0}, s{S_U}, 36864")
    p.vop("v_add_u32", V_DA + 4, f"s{S_T0}", V_DA + 4)
    psetup(p)
    ti_init(p, 1)
    poll_check(p, f"{name}_wpoll", V_AX, f"s{S_PF}", 0, V_NV)
    p.s(f"s_branch {name}_A")
    return p

P_R = ([A_X + 4 * i for i in range(10)] + [10, 14] + [A_Q + 4 * i for i in range(20)],
       [A_L + 4 * i for i in range(5)] + [A_POOL + 4 * i for i in range(6)] + [A_QN + 64 + 4 * i for i in range(4)] + [A_QN + 4 * i for i in range(16)] + [A_ONE])
P0_B = P_R[0][24:] + [A_QN + 4 * (i % 16) for i in range(64)]
def wload(j, i, so=None, sb=None, extra=0):
    def f(p):
        if i % 2 == 0: p.s(f"s_add_u32 s{so or S_SO}, s{sb or S_WT}, {(i >> 1) * 40960 + extra}")
        if "B" not in ABL: p.load4(P_R[j & 1][i], V_LIN, SRD_WS, f"s{so or S_SO}", (i & 1) * 1024, ("WT", j, i), "sc1")
    return f

def slow(name):
    SI, SC, SX, SWq, SKV, SD, SK = 56, 57, 58, 59, 88, 89, 90
    VW, VX, VK, VV_, VD = 28, 36, 37, 38, 39
    MX, NM, LA, QF, SS, FB, AC, RAW, FR = 40, 44, 48, 52, 68, 76, 84, 116, 180
    def ld(p, op, n, d, vo, srd, so, off):
        p.add(Ins(f"{op} {vr(d, n)}, v{vo}, s[{srd}:{srd+3}], s{so} offen offset:{off}", "vml", [vo], R(d, n), tag="sl"))
    p0 = Prog()
    p0.label(f"{name}_slow")
    p0.wait_all()
    M, G = MX, MX + 1
    p0.vop("v_bfe_u32", M, V_LIN, "4", "4")
    p0.vop("v_lshrrev_b32", G, "8", V_LIN)
    p0.vop("v_lshlrev_b32", VW, "16", G)
    p0.vop("v_lshl_add_u32", VW, M, "1", VW)
    for i in range(1, 8): p0.vop("v_add_u32", VW + i, f"{8192 * i}", VW)
    p0.s(f"s_movk_i32 s{S_T0}, 1280")
    p0.vop("v_mul_lo_u32", VX, M, f"s{S_T0}")
    p0.vop("v_lshl_add_u32", VX, G, "4", VX)
    p0.vop("v_lshlrev_b32", VK, "8", M)
    p0.vop("v_lshl_add_u32", VK, G, "3", VK)
    p0.vop("v_lshlrev_b32", VV_, "10", G)
    p0.vop("v_lshl_add_u32", VV_, M, "1", VV_)
    p0.s(f"s_mov_b32 s{SI}, 0")
    p1 = Prog()
    p1.label(f"{name}_sl_it")
    p1.s(f"s_cmp_ge_u32 s{SI}, 5")
    p1.s(f"s_cselect_b32 s{S_T0}, 2, 0")
    p1.s(f"s_cselect_b32 s{S_T1}, 5, 0")
    p1.s(f"s_cselect_b32 s{SD}, {73728}, 0")
    p1.s(f"s_sub_u32 s{S_T1}, s{SI}, s{S_T1}")
    p1.s(f"s_add_u32 s{S_T0}, s{S_T0}, s{S_P}")
    p1.s(f"s_mul_i32 s{S_T2}, s{S_P}, 9216")
    p1.s(f"s_add_u32 s{SD}, s{SD}, s{S_T2}")
    p1.s(f"s_lshl_b32 s{S_T2}, s{S_G}, 2")
    p1.s(f"s_add_u32 s{S_T0}, s{S_T0}, s{S_T2}")
    p1.s(f"s_lshl_b32 s{SWq}, s{S_T0}, 8")
    p1.s(f"s_lshl_b32 s{S_T2}, s{S_B}, 5")
    p1.s(f"s_add_u32 s{S_T0}, s{S_T0}, s{S_T2}")
    p1.s(f"s_lshl_b32 s{SKV}, s{S_T0}, 17")
    p1.s(f"s_lshl_b32 s{S_T0}, s{S_U}, 2")
    p1.s(f"s_add_u32 s{S_T0}, s{S_T0}, s{S_T1}")
    p1.s(f"s_cmp_lt_u32 s{S_G}, 5")
    p1.s(f"s_cselect_b32 s{S_T2}, 4, 0")
    p1.s(f"s_xor_b32 s{S_T2}, s{S_T2}, s{S_T0}")
    p1.s(f"s_add_u32 s{S_T2}, s{S_T2}, 1")
    p1.s(f"s_cmp_eq_u32 s{S_T1}, 4")
    p1.s(f"s_cselect_b32 s{S_T0}, 8, s{S_T0}")
    p1.s(f"s_cselect_b32 s{S_T2}, 0, s{S_T2}")
    p1.s(f"s_lshl_b32 s{S_T2}, s{S_T2}, 10")
    p1.s(f"s_add_u32 s{SD}, s{SD}, s{S_T2}")
    p1.vop("v_add_u32", VD, f"s{SD}", V_LIN)
    p1.s(f"s_mul_i32 s{S_T2}, s{S_B}, 9")
    p1.s(f"s_add_u32 s{S_T0}, s{S_T0}, s{S_T2}")
    p1.s(f"s_mul_i32 s{SX}, s{S_T0}, {16 * 1280}")
    for r in range(32): p1.vop("v_mov_b32", AC + r, "0")
    p1.s(f"s_mov_b32 s{SC}, 0")
    def pack(p):
        for r in range(32): p.vop("v_lshl_or_b32", FR + r, RAW + 2 * r + 1, "16", RAW + 2 * r)
    def loop_end(p, lab, n):
        p.s(f"s_add_u32 s{SC}, s{SC}, 1")
        p.s(f"s_cmp_lt_u32 s{SC}, {n}")
        p.s(f"s_cbranch_scc1 {lab}")
    p2 = Prog()
    p2.label(f"{name}_sl_q")
    ld(p2, "buffer_load_dwordx4", 4, FB, VX, SRD_X, SX, 0)
    for m in range(8):
        for i in range(8): ld(p2, "buffer_load_ushort", 1, RAW + 8 * m + i, VW + i, SRD_W, SWq, 32 * m)
        if m == 3: p2.wait_all()
    p2.wait_all()
    pack(p2)
    for m in range(8): p2.mfma(AC + 4 * m, FR + 4 * m, FB, AC + 4 * m)
    p2.s(f"s_add_u32 s{SX}, s{SX}, 64")
    p2.s(f"s_add_u32 s{SWq}, s{SWq}, {32 * 8192}")
    loop_end(p2, f"{name}_sl_q", 20)
    p3 = Prog()
    for r in range(32): p3.vop("v_mul_f32", AC + r, f"s{S_CS}", AC + r)
    for r in range(16): p3.cvtpk(QF + r, AC + 2 * r, AC + 2 * r + 1)
    for r in range(32): p3.vop("v_mov_b32", AC + r, "0")
    for r in range(4): p3.vop("v_mov_b32", LA + r, "0")
    p3.vop("v_mov_b32", MX, "0xff800000")
    p3.s(f"s_mov_b32 s{SK}, s{SKV}")
    p3.s(f"s_mov_b32 s{SC}, 0")
    def kfrags(p, dst, so):
        for ks in range(4):
            ld(p, "buffer_load_dwordx2", 2, dst + 4 * ks, VK, SRD_K, so, 64 * ks)
            ld(p, "buffer_load_dwordx2", 2, dst + 4 * ks + 2, VK, SRD_K, so, 64 * ks + 32)
    p4 = Prog()
    p4.label(f"{name}_sl_m")
    kfrags(p4, FR, SK)
    p4.wait_all()
    for ks in range(4): p4.mfma(SS, FR + 4 * ks, QF + 4 * ks, SS if ks else None)
    p4.vop("v_max3_f32", MX, MX, SS, SS + 1)
    p4.vop("v_max3_f32", MX, MX, SS + 2, SS + 3)
    p4.s(f"s_add_u32 s{SK}, s{SK}, 4096")
    loop_end(p4, f"{name}_sl_m", 32)
    p5 = Prog()
    for sw in (p5.swap32, p5.swap16):
        p5.vop("v_mov_b32", MX + 1, MX)
        sw(MX, MX + 1)
        p5.vop("v_max_f32", MX, MX, MX + 1)
    for r in range(4): p5.vop("v_sub_f32", NM + r, "0", MX)
    p5.s(f"s_mov_b32 s{SC}, 0")
    p6 = Prog()
    p6.label(f"{name}_sl_a")
    p6.s(f"s_add_u32 s{SK}, s{SKV}, 4096")
    kfrags(p6, FR, SKV)
    kfrags(p6, FR + 16, SK)
    p6.wait_all()
    for m in range(8):
        for i in range(8): ld(p6, "buffer_load_ushort", 1, RAW + 8 * m + i, VV_, SRD_V, SK if i >= 4 else SKV, 32 * m + 256 * (i & 3))
        if m == 3: p6.wait_all()
    for kt in range(2):
        for ks in range(4): p6.mfma(SS + 4 * kt, FR + 16 * kt + 4 * ks, QF + 4 * ks, SS + 4 * kt if ks else NM)
    for r in range(8): p6.exp(SS + r, SS + r)
    for r in range(4): p6.cvtpk(FB + r, SS + 2 * r, SS + 2 * r + 1)
    p6.wait_all()
    pack(p6)
    p6.mfma(LA, A_ONE, FB, LA)
    for m in range(8): p6.mfma(AC + 4 * m, FR + 4 * m, FB, AC + 4 * m)
    p6.s(f"s_add_u32 s{SKV}, s{SKV}, 8192")
    loop_end(p6, f"{name}_sl_a", 16)
    p7 = Prog()
    p7.vop("v_rcp_f32", LA, LA, kind="trans")
    for r in range(32): p7.vop("v_mul_f32", AC + r, AC + r, LA)
    for r in range(16): p7.cvtpk(QF + r, AC + 2 * r, AC + 2 * r + 1)
    for hf in range(2):
        p7.s(f"s_cmp_eq_u32 s{S_U}, {hf}")
        p7.s(f"s_cselect_b32 s{S_T0}, 0, s{S_T1}")
        p7.s(f"s_cmp_eq_u32 s{S_T0}, 4")
        p7.s(f"s_cbranch_scc1 {name}_sl_s{hf}")
        for t in (2 * hf, 2 * hf + 1): p7.ds_write(VD, QF + 4 * t, 4, t * 18432)
        p7.label(f"{name}_sl_s{hf}")
    p7.wait_all()
    p7.s(f"s_add_u32 s{SI}, s{SI}, 1")
    p7.s(f"s_cmp_lt_u32 s{SI}, 10")
    p7.s(f"s_cbranch_scc1 {name}_sl_it")
    p7.s(f"s_branch {name}_P2")
    body = [p1, p2, p2, p3, p4, p4, p5, p6, p6, p7]
    return [p0, p1, p2, p3, p4, p5, p6, p7], [p0] + body + body

S_ST = 62
S_PC, S_FO, S_PO = 71, 72, 73
S_OF = (4, 5, 6, 7, 74)
S_JA, S_JC, S_JO, S_WE = 77, 83, 52, 101
S_JE, S_EO = (79, 80), (61, 100)
def psetup(p):
    C, J, BW, OW = S_TM, S_TM + 1, S_TM + 2, S_TM + 3
    p.s(f"s_mul_i32 s{BW}, s{S_B}, {PARTB}")
    p.s(f"s_lshl_b32 s{S_T1}, s{S_W}, 11")
    p.s(f"s_add_u32 s{BW}, s{BW}, s{S_T1}")
    p.s(f"s_add_u32 s{BW}, s{BW}, {PART}")
    p.s(f"s_mul_i32 s{OW}, s{S_B}, {144 * 1280}")
    p.s(f"s_lshl_b32 s{S_T1}, s{S_W}, 6")
    p.s(f"s_add_u32 s{OW}, s{OW}, s{S_T1}")
    p.s(f"s_sub_u32 s{S_T0}, s{S_G}, 5")
    p.s(f"s_cselect_b32 s{C}, s{S_G}, s{S_T0}")
    p.s(f"s_cselect_b32 s{J}, 0, 1")
    p.s(f"s_add_u32 s{S_ST}, s{BW}, {8 * 81920}")
    p.s(f"s_mul_i32 s{S_T0}, s{J}, {4 * 81920}")
    p.s(f"s_add_u32 s{S_ST+5}, s{BW}, s{S_T0}")
    p.s(f"s_sub_u32 s{S_ST+1}, s{BW}, s{S_T0}")
    p.s(f"s_add_u32 s{S_ST+1}, s{S_ST+1}, {4 * 81920}")
    for i in (2, 3, 4, 6, 7, 8): p.s(f"s_add_u32 s{S_ST+i}, s{S_ST+i-1}, 81920")
    p.s(f"s_lshl_b32 s{S_T0}, s{C}, 13")
    p.s(f"s_add_u32 s{S_JA}, s{S_ST+5}, s{S_T0}")
    p.s(f"s_mul_i32 s{S_JO}, s{J}, {64 * 1280}")
    p.s(f"s_add_u32 s{S_JO}, s{S_JO}, s{OW}")
    p.s(f"s_lshl_b32 s{S_T0}, s{C}, 8")
    p.s(f"s_add_u32 s{S_JO}, s{S_JO}, s{S_T0}")
    p.s(f"s_mul_i32 s{S_WE}, s{S_G}, {16 * 40960}")
    p.s(f"s_lshl_b32 s{S_T0}, s{S_W}, 11")
    p.s(f"s_add_u32 s{S_WE}, s{S_WE}, s{S_T0}")
    for k in range(5):
        p.s(f"s_add_u32 s{C}, s{C}, 1")
        p.s(f"s_cmp_eq_u32 s{C}, 5")
        p.s(f"s_cselect_b32 s{C}, 0, s{C}")
        if k == 0:
            p.s(f"s_lshl_b32 s{S_WT}, s{C}, 13")
            p.s(f"s_add_u32 s{S_WT}, s{S_WT}, s{S_WE}")
            p.s(f"s_add_u32 s{S_WE}, s{S_WE}, 40960")
        p.s(f"s_and_b32 s{S_T0}, s{J}, 1")
        p.s(f"s_lshl3_add_u32 s{S_T0}, s{C}, s{S_T0}")
        p.s(f"s_lshl_b32 s{S_OF[k]}, s{S_T0}, 10")
        if k:
            p.s(f"s_bitcmp1_b32 s{J}, 1")
            p.s(f"s_cselect_b32 s{S_T0}, 40960, 0")
            p.s(f"s_add_u32 s{S_OF[k]}, s{S_OF[k]}, s{S_T0}")
        if k > 1:
            p.s(f"s_bitcmp1_b32 s{J}, 2")
            p.s(f"s_cselect_b32 s{S_T0}, {AREA}, 0")
            p.s(f"s_add_u32 s{S_OF[k]}, s{S_OF[k]}, s{S_T0}")
        if k < 4:
            p.s(f"s_cmp_lt_u32 s{C}, 3")
            p.s(f"s_addc_u32 s{J}, s{J}, 1")
    p.s(f"s_bitcmp1_b32 s{J}, 0")
    p.s(f"s_cselect_b32 s{S_T0}, 0, 1024")
    p.s(f"s_add_u32 s{S_JC}, s{S_JA}, s{S_T0}")
    for k in range(2):
        p.s(f"s_add_u32 s{S_T2}, s{S_G}, {8 * k + 11}")
        p.s(f"s_and_b32 s{S_T0}, s{S_T2}, 3")
        p.s(f"s_add_u32 s{S_T0}, s{S_T0}, 4")
        p.s(f"s_lshr_b32 s{S_T1}, s{S_T2}, 2")
        p.s(f"s_sub_u32 s{S_T1}, s{S_T1}, 1")
        if k == 0:
            p.s(f"s_cmp_lt_u32 s{S_G}, 5")
            p.s(f"s_cselect_b32 s{S_T0}, 8, s{S_T0}")
            p.s(f"s_cselect_b32 s{S_T1}, s{S_G}, s{S_T1}")
        p.s(f"s_mul_i32 s{S_JE[k]}, s{S_T0}, 10")
        p.s(f"s_add_u32 s{S_JE[k]}, s{S_JE[k]}, s{S_T1}")
        p.s(f"s_lshl_b32 s{S_JE[k]}, s{S_JE[k]}, 13")
        p.s(f"s_add_u32 s{S_JE[k]}, s{S_JE[k]}, s{BW}")
        p.s(f"s_mul_i32 s{S_EO[k]}, s{S_T0}, 80")
        p.s(f"s_add_u32 s{S_EO[k]}, s{S_EO[k]}, s{S_T1}")
        p.s(f"s_lshl_b32 s{S_EO[k]}, s{S_EO[k]}, 8")
        p.s(f"s_add_u32 s{S_EO[k]}, s{S_EO[k]}, s{OW}")
    p.s(f"s_cmp_ge_u32 s{S_G}, 5")
    p.s(f"s_cselect_b32 s{S_JE[1]}, {OOB:#x}, s{S_JE[1]}")
    p.s(f"s_cselect_b32 s{S_EO[1]}, {OOB:#x}, s{S_EO[1]}")
    p.s(f"s_lshl2_add_u32 s{S_PO}, s{S_B}, s{S_W}")
    p.s(f"s_mul_i32 s{S_PO}, s{S_PO}, {4 * FS}")
    p.s(f"s_add_u32 s{S_PO}, s{S_PO}, {PFLG - 2 * FS + OOB}")
    p.s(f"s_lshl_b32 s{S_FO}, s{S_G}, {FG}")
    p.s(f"s_add_u32 s{S_FO}, s{S_FO}, s{S_PO}")
    p.s(f"s_mov_b32 s{S_PC}, 0")

def pmod(name):
    p = Prog()
    p.label(f"{name}_fb")
    p.wait_all()
    p.s(f"s_cmp_lg_u64 s[{S_BAD}:{S_BAD+1}], 0")
    p.s(f"s_cbranch_scc1 {name}_slow")
    p.label(f"{name}_P2")
    AO = (V_LIN, 2, 3)
    V_FA, V_OA = 4, 5
    PT, PT2 = 6, 8
    V_SA, V_JA, PT3 = 1, 25, 26
    SEL = 18
    POOL = [28 + 4 * k for k in range(16)]
    ACC = 92
    OWN = 124
    PK, SUM, JB = 132, 140, 188
    CT = 244
    p.wait_all()
    p.barrier()
    NL = int(E("PLEAD", "8"))
    def ooff(i, kq): return IMG(kq) + i * 1024
    for f in range(NL): p.ds_read128(POOL[f], AO[ooff(0, f) // 49152], ooff(0, f) % 49152)
    p.vop("v_mov_b32", V_SA, f"{OOB:#x}")
    s0 = len(p.ins)
    p.vop("v_mov_b32", V_JA, f"{OOB:#x}")
    p.vop("v_bfe_u32", V_FA, V_LIN, "4", "3")
    p.vop("v_lshlrev_b32", V_FA, f"{FG}", V_FA)
    p.vop("v_bfe_u32", CT, V_LIN, "4", "4")
    p.s(f"s_movk_i32 s{S_T0}, 1280")
    p.vop("v_mul_lo_u32", V_OA, CT, f"s{S_T0}")
    p.vop("v_lshrrev_b32", CT + 1, "8", V_LIN)
    p.vop("v_lshl_add_u32", V_OA, CT + 1, "4", V_OA)
    p.vop("v_mov_b32", PT2, f"s{S_NON}")
    p.vop("v_mov_b32", PT2 + 1, f"s{S_NON+1}")
    p.vop("v_and_b32", CT + 2, "1", CT)
    p.vop("v_lshlrev_b32", CT + 2, "4", CT + 2)
    p.s(f"s_movk_i32 s{S_T0}, 0x3f80")
    p.vop("v_lshlrev_b32", CT + 2, CT + 2, f"s{S_T0}")
    p.vop("v_lshrrev_b32", CT, "1", CT)
    p.vop("v_lshlrev_b32", CT + 1, "1", CT + 1)
    p.vop("v_sub_u32", CT, CT, CT + 1)
    for r in range(2):
        p.add(Ins(f"v_cmp_eq_u32 vcc, {r}, v{CT}", "valu", [CT], []))
        p.vop("v_mov_b32", SEL + r, "0")
        p.vop("v_mov_b32", SEL + 4 + r, "0")
        p.add(Ins(f"v_cndmask_b32 v{SEL+2+r}, 0, v{CT+2}, vcc", "valu", [CT + 2], [SEL + 2 + r]))
    setup = p.ins[s0:]
    def jload(q, jl, dst, own=S_JA):
        def f(p):
            so = S_JE[q - 4] if q >= 4 else S_T1 if q else own
            if 0 < q < 4 and jl == 0: p.s(f"s_add_u32 s{S_T1}, s{own}, {q * 81920}")
            if "J" not in ABL or own != S_JA or dst < JB: p.load4(dst, V_JA, SRD_WS, f"s{so}", jl * 1024, "job", E("JFL", "sc1"))
        return f
    def reduce(p, q, bufs, init=False):
        for e in range(2):
            for k, bf in enumerate(bufs): p.mfma(SUM + 8 * q + 4 * e, SEL + 2 - 2 * e, bf, None if (init and k == 0) else SUM + 8 * q + 4 * e)
    def next_off(): return [lambda p: p.vop("v_add_u32", V_SA, f"s{S_OF[0]}", V_LIN)] + [lambda p, k=k: p.s(f"s_mov_b32 s{S_OF[k]}, s{S_OF[k+1]}") for k in range(4)]
    def next_pair(p, d):
        p.s(f"s_add_u32 s{d}, s{S_WT}, 8192")
        p.s(f"s_sub_u32 s{S_T2}, s{S_WE}, 40960")
        p.s(f"s_cmp_eq_u32 s{d}, s{S_WE}")
        p.s(f"s_cselect_b32 s{d}, s{S_T2}, s{d}")
    def flag(p, off, tag):
        p.wait_vm(tag)
        p.s("s_mov_b64 exec, 1")
        p.store(PT2, 2, V_LIN, SRD_WS, f"s{S_FO}", off, tag="flag", flags="sc1")
        p.s("s_mov_b64 exec, -1")
    FPOS = int(E("FPOS", "56")); PPB = int(E("PPB", "244")); WSP = float(E("WSP", "6")); PLAT = int(E("PLAT", "60")); CPOS = int(E("CPOS", "206")); WST = int(E("WST", "4"))
    CP2 = [int(x) for x in E("CP2", f"{CPOS},{CPOS}").split(",")]; JS2 = [float(x) for x in E("JS2", "5,5").split(",")]
    FPB = int(E("FPB", "0"))
    def pord(e0, e1, g):
        if not int(E("PORD", "1")): return e0 + e1
        a, b = (e1, e0) if g & 1 else (e0, e1)
        b = b[::-1]
        if b[-1][3] is None: b = [(b[0][0], b[0][1], b[0][2], None, b[0][4])] + b[1:-1] + [(b[-1][0], b[-1][1], b[-1][2], b[-1][0], b[-1][4])]
        return a + b
    def one_pass(par):
        CPOS = CP2[par]
        q = Prog()
        q.label(f"{name}_pass{par}")
        if PROF == 4: stamp(q, 32, S_PC)
        q.wait_vm(("WT", par, 15))
        sc = Sched(q, budget=int(E("PBUD", "8")), late_extra=8)
        for qn in ("wl", "st", "jl", "jp"): sc.group[qn] = "vm"
        sc.pace["vm"] = int(E("PPACE", "4"))
        pool = Pool(sc, POOL, 16)
        acc = lambda i: OWN if i == 8 else ACC + 8 * (i % 4)
        for i in range(9):
            a = acc(i)
            for kq in range(16):
                cons = [(a + 4 * e, P_R[par][2 * kq + e], a + 4 * e if kq else None, ("P", i, kq, e)) for e in range(2)]
                pool.frag(0, lambda r: [R128(r, AO[ooff(i, kq) // 49152], ooff(i, kq) % 49152)], cons, as_b=True)
        PG = int(E("PG", "4"))
        sc.m = [x for k in range(0, 288, 2 * PG) for x in pord(sc.m[k:k + 2 * PG:2], sc.m[k + 1:k + 2 * PG:2], k // (2 * PG))]
        fix = lambda t: (lambda f: max(("P", t[1], t[2], 0), ("P", t[1], t[2], 1), key=f))
        ix = {x[4]: k for k, x in enumerate(sc.m)}
        late = lambda t: None if t is None else fix(t)(lambda y: ix[y])
        pool.frags = [(a_, b_, c_, late(d_)) for a_, b_, c_, d_ in pool.frags]; pool.last = [late(t) for t in pool.last]
        sc.idx = {x[4]: k for k, x in enumerate(sc.m)}
        mt = lambda i: sc.m[max(0, min(i, len(sc.m) - 1))][4]
        for f in range(NL, 144 + NL):
            (_, reads, cons, war) = pool.frags[f % 144]
            if f >= 144: war = pool.last[f % 16]
            if "R" not in ABL: sc.fill("rd", reads[0], 4, ds=True, after=war, before=mt(2 * (f - NL) + 1), early=2)
        for i in ((16, 22, 28) if PG == 1 else (16, 24) if PG <= 4 else (16,)): sc.fill("ww", lambda p, i=i: p.wait_vm(("WT", par, min(31, i + (5 if PG == 1 else 7 if PG <= 4 else 15)))), 4, before=mt(i), early=0)
        def su(p):
            next_pair(p, S_WT)
            if par == 0:
                p.s(f"s_cmp_eq_u32 s{S_PC}, 4")
                p.s(f"s_cselect_b32 s{S_WT}, {OOB:#x}, s{S_WT}")
        def keep(p):
            p.s(f"s_cmp_eq_u32 s{S_PC}, 4")
            for i in (5, 6, 7): p.s(f"s_cselect_b32 s{S_ST+i}, {OOB:#x}, s{S_ST+i}")
            p.s(f"s_cselect_b32 s{S_WT2}, s{S_PO}, {OOB:#x}")
        if par == 0: sc.fill("jr", keep, 16, after=mt(100), before=mt(150))
        fill_dma(sc, [(su, 0)], None, mt(WST + 2), queue="wl", lead=6)
        for i in range(32):
            fill_dma(sc, [(wload(1 - par, i), 0)], mt(WST + int(WSP * i)), mt(WST + 12 + int(WSP * i)), queue="wl", lead=10)
        sc.fill("jl", lambda p: poll_issue(p, V_FA, f"s{S_PO}", 0, PT), 8, before=mt(CPOS - PLAT), early=4, solo=SOLO)
        def cut(p):
            p.s(f"s_cmp_lt_u32 s{S_PC}, 2")
            p.s(f"s_cbranch_scc1 {name}_nojob{par}")
            if par == 0 and not FPB:
                p.s(f"s_cmp_eq_u32 s{S_PC}, 2")
                p.s(f"s_cbranch_scc1 {name}_pp0")
            p.label("@CUT")
        sc.fill("jr", cut, 8, before=mt(CPOS), early=0, tag="CUT")
        for x in [int(y) for y in E("PSL1", "").split(",") if y]: sc.fill("sl", lambda p: [p.raw("s_nop 15") for _ in range(int(E("PSN", "4")))], 16, before=mt(x), early=0)
        JSP = JS2[par]
        def cut2(p):
            p.s(f"s_cmp_lg_u32 s{S_PC}, 4")
            p.s(f"s_cbranch_scc1 {name}_nofb")
            p.label("@CU2")
        if par == 0 and FPB: sc.fill("jr", cut2, 8, before=mt(FPB), early=0)
        for k in range(12): fill_dma(sc, [(jload(k >> 1, k & 1, JB + 4 * k), 0)], ["CUT", mt(CPOS + int(JSP * k))], mt(CPOS + 12 + int(JSP * k)), queue="jl", lead=10)
        if par == 0: sc.fill("jp", lambda p: poll_issue(p, V_FA, f"s{S_WT2}", FS, PT3), 8, after=mt(PPB), before=mt(PPB + 8), lead=8, solo=SOLO)
        for i in range(-1, 8):
            a = acc(i % 9); d = PK + 4 * (i & 1) if (par == 0 and i >= 5) else a
            dl = mt(32 * i + 32 + 24)
            sc.fill("va", lambda p, a=a, d=d: p.cvtpk(d, a, a + 1), 4, after=dict(tag=mt(32 * i + 31), delay=4) if i >= 0 else mt(3), before=dl, lead=10)
            sc.fill("va", lambda p, a=a, d=d: p.cvtpk(d + 1, a + 2, a + 3), 4)
            sc.fill("va", lambda p, a=a, d=d: p.cvtpk(d + 2, a + 4, a + 5), 4)
            sc.fill("va", lambda p, a=a, d=d: p.cvtpk(d + 3, a + 6, a + 7), 4, tag=("CV", i), before=dl, lead=10)
            def st(p, d=d, i=i):
                if "O" not in ABL: p.store(d, 4, V_SA, SRD_WS, f"s{S_ST + i % 9}", 0, tag=("ps", i), flags=E("SFL", "sc1"))
            sc.fill("st", st, 8, after=("CV", i), before=dl, lead=20, tag=("ST", i), solo=SOLO)
            if i < 0:
                for fn in next_off(): sc.fill("va", fn, 4, after=("ST", -1))
        if PROF == 4:
            for k, x in enumerate(int(y) for y in E("PST", "66,74,224").split(",")): sc.fill(f"st{k}", lambda p, k=k: stamp(p, 33 + k, S_PC), 16, before=mt(x), early=0)
        sc.fill("fl", lambda p: flag(p, 0, ("ps", int(E("FTAG", "-1")))), 16, before=mt(FPOS), early=0)
        for r, x in ((S_FO, FS), (S_PC, 1)): sc.fill("fl", lambda p, r=r, x=x: p.s(f"s_add_u32 s{r}, s{r}, {x}"), 4, after=mt(272))
        if par:
            for r in (S_FO, S_PO): sc.fill("fl", lambda p, r=r: p.s(f"s_bitset0_b32 s{r}, 30"), 4)
        sc.run()
        if par == 0:
            q.s(f"s_cmp_eq_u32 s{S_PC}, 5")
            q.s(f"s_cbranch_scc1 {name}_ptail")
            q.s(f"s_add_u32 s{S_PO}, s{S_PO}, {FS}")
            q.s(f"s_cmp_eq_u32 s{S_PC}, 1")
            q.s(f"s_cbranch_scc1 {name}_fbw")
        else:
            q.s(f"s_add_u32 s{S_PO}, s{S_PO}, {FS}")
            q.s(f"s_branch {name}_pass0")
        k = next(i for i, x in enumerate(q.ins) if x.text.startswith("@CUT"))
        q2 = Prog(); q2.label(f"{name}_nojob{par}"); q2.ins += q.ins[k + 1:]; q.ins = q.ins[:k]
        blk = Prog()
        poll_check(blk, f"{name}_pp{par}", V_FA, f"s{S_PO}", 0, PT, int(E("SLP", "2")))
        red = Prog()
        if par == 0:
            blk.vop("v_mov_b32", V_JA, V_LIN)
            blk.s(f"s_cmp_eq_u32 s{S_PC}, 2")
            blk.s(f"s_cbranch_scc1 {name}_nojob{par}")
        red.vop("v_add_u32", V_JA, f"{40960 if par else AREA}", V_LIN)
        for c in range(6): reduce(red, c, [JB + 8 * c, JB + 8 * c + 4], par == 1)
        fb = Prog()
        if par == 0: flag(fb, FS, ("ps", 4))
        if par == 0 and FPB:
            k = next(i for i, x in enumerate(q2.ins) if x.text.startswith("@CU2"))
            q3 = Prog(); q3.label(f"{name}_nofb"); q3.ins += q2.ins[k + 1:]; q2.ins = q2.ins[:k]
            return q, Prog(), blk, red, q2, fb, q3
        return q, fb, blk, red, q2, Prog(), Prog()
    def first_pass():
        q = Prog()
        q.label(f"{name}_P0")
        stamp(q, 9)
        if "F" in ABL: q.s(f"s_mov_b32 s{S_BAD}, 1")
        if "G" in ABL:
            q.s(f"s_cmp_eq_u32 s{S_W}, 2")
            q.s(f"s_cselect_b32 s{S_BAD}, 1, 0")
        sc = Sched(q, budget=int(E("P0BUD", "8")), late_extra=8)
        for qn in ("wl", "st"): sc.group[qn] = "vm"
        sc.pace["vm"] = int(E("P0PACE", "3"))
        acc = [V_S + 32, V_S + 40, 92, 100, 108, 116, 132, 140, OWN]
        POOL2 = POOL[:8] + [148 + 4 * k for k in range(4)] + POOL[12:]
        reg = lambda f: P0_B[f] if f < 72 else POOL2[f % 16] if f < 144 else POOL[f % 16]
        fk = lambda f: ((f % 72) // 8, f % 8 + 8 * ((f // 72) & 1))
        base = []
        for f0 in range(0, 144, 4):
            for e in range(2):
                for f in range(f0, f0 + 4):
                    i, kq = fk(f); a = acc[i] + 4 * e
                    base.append((a, P_R[0][2 * kq + e], reg(f), a if kq else None, ("P", f, e)))
        units = UNITS
        C0, CS, MB = int(E("P0C0", "22")), float(E("P0CS", "5.8")), int(E("P0MB", "12"))
        cpos = {C0 + int(CS * k) + (int(E("P0C8", "0")) if k >= 12 else 0): k for k in range(18)}
        for j, m in enumerate(base):
            if j in cpos:
                k = cpos[j]; sc.mfma(CHK, A_ONE, Oa(units[k][0], 2 * units[k][1]), CHK if k else None, ("CHK", k))
            sc.mfma(*m)
        bt = lambda j: base[min(j, 287)][4]
        for i in range(2, 9): assert sc.idx[("CHK", (acc[i] - V_O) // 8)] + 1 < sc.idx[bt(16 * i)]
        for f in range(8, 144 + NL):
            i, kq = fk(f)
            aft = [("P", f - 16, 1)] if (f >= 24 and not 72 <= f < 88) else []
            if f == 8: aft.append("AO")
            if f == 12: aft.append("XW")
            if f == 72: aft.append("MID")
            j = 2 * (f - NL) + 1
            if f >= 72: j = max(j, 144 - MB + 2 + f - 72)
            sc.fill("rd", R128(reg(f), AO[ooff(i, kq) // 49152], ooff(i, kq) % 49152), 4, ds=True, after=aft, before=bt(j), early=2)
        def V(fn, cost=4, **kw): sc.fill("va", fn, cost, **kw)
        sc.fill("ww", lambda p: p.wait_vm(("WT", 0, 15)), 4, before=bt(10), early=0)
        def each(fn):
            z = Prog(); fn(z)
            return [lambda p, x=x: p.add(x) for x in z.ins]
        V(lambda p: p.vop("v_add_u32", AO[1], "49152", V_LIN))
        V(lambda p: p.vop("v_add_u32", AO[2], "98304", V_LIN), tag="AO")
        for fn in each(f_addr): V(fn)
        for i in range(4): V(lambda p, i=i: p.ds_write(AD + 1, Oa(4, 4 + i), 4, i * 1024), 8, solo=True)
        V(lambda p: p.s(f"s_mul_i32 s{S_T0}, s{S_U}, 73728"))
        V(lambda p: p.s(f"s_sub_u32 s{S_T0}, {73728 + 36864}, s{S_T0}"))
        V(lambda p: p.vop("v_add_u32", AL + 1, f"s{S_T0}", V_DA + 4))
        V(lambda p: p.ds_write(AL + 1, La(4), 1, 0), ds=True, tag="XW")
        for n in range(5): V(lambda p, n=n: p.ar(RL + 2 * n, La(n)), tag=("AR", n))
        for n in range(5): V(lambda p, n=n: p.vop("v_add_u32", V_DA + n, "73728", V_DA + n), tag=("DA", n))
        def wr(p, k):
            n, t = units[k]
            p.ds_write(V_DA + n, Oa(n, 2 * t), 4, t * 18432 + (1024 if n < 4 else 0))
        for n in range(4): V(f_rcp(n)[0], 8); V(f_rcp(n)[1], tag=("RC", n))
        l8 = f_l8(); V(l8[0], after=dict(tag="PX", delay=8)); V(l8[1], 8); V(l8[2], tag=("RC", 4), before=("CHK", 10))
        ct = lambda k, d: sc.m[sc.idx[("CHK", k)] + d][4]
        for k, (n, t) in enumerate(units):
            pk, cv = f_norm(n, t)
            sc.fill("pk", lambda p, k=k, pk=pk: (wr(p, k - 1) if k else None, [fn(p) for fn in pk]), 8, solo=True, after=[("RC", n)] + ([("DA", 4)] if k else []),
                    before=ct(k - 1, 1) if k else ct(0, -5), early=0, lead=99, tag=("PK", k))
            for j, fn in enumerate(cv): sc.fill("c1", fn, 4, after=("PK", k), before=ct(k, -1), lead=0)
        sc.fill("pk", lambda p: wr(p, 17), 8, solo=True, before=ct(17, 1), early=0, lead=99, tag="W17")
        for j, fn in enumerate(f_range()): V(fn, 8 if j >= 4 else 4)
        sc.fill("bx", lambda p: p.barrier(), 4, after=[("P", 12, 0), ("DA", 4)], before=bt(int(E("P0BX", "34"))), early=0)
        for i in range(4): sc.fill("bx", R128(PX + 4 * i, AD, i * 1024), 4, ds=True, before=bt(60))
        sc.fill("bx", lambda p: p.ds_read32(V_S, V_DA + 4, 0), 4, ds=True, before=bt(60), tag="PX")
        V(lambda p: p.vop("v_bfe_u32", V_T + 1, V_LIN, "4", "2"))
        V(lambda p: p.vop("v_lshlrev_b32", V_T + 1, "12", V_T + 1))
        V(lambda p: p.vop("v_add_u32", V_T + 1, f"{MISC}", V_T + 1))
        c5 = f_fin()
        V(c5[0]); V(c5[1], 8, after=dict(tag=("CHK", 17), delay=2))
        V(lambda p: (p.s(f"s_or_b32 s{S_T0}, s{S_BAD}, s{S_BAD+1}"), p.vop("v_mov_b32", V_T, f"s{S_T0}")), 8)
        V(lambda p: p.ds_write(AD, V_T, 1, 0), ds=True, after="W17", before=bt(144 - MB - 4), lead=2)
        def mid(p):
            p.wait_vm(("WT", 0, 31), lgkm0=True); p.barrier()
            stamp(p, 16)
            p.ds_read32(V_T + 2, V_T + 1, 0)
        V(mid, 8, before=bt(144 - MB), early=0, tag="MID")
        def chk(p):
            p.add(Ins(f"v_cmp_ne_u32 vcc, 0, v{V_T+2}", "valu", [V_T + 2], []))
            p.s("s_cmp_lg_u64 vcc, 0")
            p.s(f"s_cbranch_scc1 {name}_fb")
        V(chk, 8, before=bt(146), early=0, tag="OK")
        for fn in next_off(): V(fn, before=bt(160))
        k = 0
        while k < len(setup):
            n = 4 if setup[k].text.startswith("v_cmp") else 1
            V(lambda p, g=setup[k:k + n]: [p.add(Ins(x.text, x.kind, x.rd, x.wr)) for x in g], 4 * n); k += n
        for i in range(8):
            a = acc[i]; dl = bt(144 + 16 * i + 16 + 14)
            sc.fill("cv", lambda p, a=a: p.cvtpk(a, a, a + 1), 4, after=["OK", dict(tag=("P", 72 + 8 * i + 7, 1), delay=3)], before=dl, lead=10)
            sc.fill("cv", lambda p, a=a: p.cvtpk(a + 1, a + 2, a + 3), 4)
            sc.fill("cv", lambda p, a=a: p.cvtpk(a + 2, a + 4, a + 5), 4)
            sc.fill("cv", lambda p, a=a: p.cvtpk(a + 3, a + 6, a + 7), 4, tag=("CV", i), before=dl, lead=10)
            def st(p, a=a, i=i):
                if "O" not in ABL: p.store(a, 4, V_SA, SRD_WS, f"s{S_ST+i}", 0, tag=("ps", i), flags=E("SFL", "sc1"))
            sj = int(E("P0S0", "200")) + int(E("P0SS", "8")) * i
            sc.fill("st", st, 8, after=[("CV", i), bt(sj)], before=bt(max(sj + 8, 144 + 16 * i + 30)), lead=20, tag=("ST", i), solo=SOLO)
        if WTP >= 100:
            for k in range(WTN): sc.fill("wt", lambda p, k=k: w_touch(p, 64 * k), 8, after=bt(WTP - 100 + 4 * k), before=bt(WTP - 92 + 4 * k), solo=True)
        for x in [int(y) for y in E("PSL0", "").split(",") if y]: sc.fill("sl", lambda p: [p.raw("s_nop 15") for _ in range(int(E("PSN", "4")))], 16, before=bt(x), early=0)
        W1 = float(E("P0W1", "5.0")); W2 = float(E("P0W2", "3.0"))
        for i in range(8): fill_dma(sc, [(wload(0, 24 + i), 0)], bt(17 + int(W1 * i)), bt(30 + int(W1 * i)), queue="wl", lead=4)
        for i in range(32):
            j = 17 + int(W1 * (8 + i)) if i < 15 else 146 + int(W2 * (i - 15))
            if i == 0: fill_dma(sc, [(lambda p: next_pair(p, S_WT2), 0)], None, bt(j), queue="wl", lead=4)
            fill_dma(sc, [(wload(1, i, sb=S_WT2), 0)], [bt(j), ("AR", 4)] + (["OK"] if i >= 15 else []), bt(j + 13), queue="wl", lead=4)
        sc.fill("fl", lambda p: p.s(f"s_mov_b32 s{S_WT}, s{S_WT2}"), 4, after=bt(275))
        for r, x in ((S_PO, FS), (S_FO, FS), (S_PC, 1)): sc.fill("fl", lambda p, r=r, x=x: p.s(f"s_add_u32 s{r}, s{r}, {x}"), 4, after=bt(275))
        sc.run()
        q.s(f"s_branch {name}_pass1")
        return q
    p.wait_lgkm0()
    p.s(f"s_branch {name}_pass0")
    pre = p
    p0 = first_pass()
    pe, po = one_pass(0), one_pass(1)
    p = Prog()
    p.label(f"{name}_ptail")
    stamp(p, 17)
    p.vop("v_add_u32", V_JA, f"{AREA + 40960}", V_LIN)
    poll_check(p, f"{name}_pp4", V_FA, f"s{S_PO}", FS, PT3, int(E("SLP4", "0")))
    stamp(p, 18)
    for c in range(4): jload(c, 0, POOL[8 + c], S_JC)(p)
    for k in range(4): jload(4 + (k >> 1), k & 1, POOL[12 + k])(p)
    stamp(p, 19)
    for c in (4, 5, 0, 1, 2, 3):
        if c < 4:
            for r in range(8): p.vop("v_add_f32", SUM + 8 * c + r, SUM + 8 * c + r, (ACC + 8 * (c + 1) if c < 3 else OWN) + r)
        reduce(p, c, [JB + 8 * c, JB + 8 * c + 4])
    stamp(p, 20)
    def out(c):
        a = SUM + 8 * c
        for r in range(4): p.cvtpk(a + r, a + 2 * r, a + 2 * r + 1)
        if 0 < c < 4: p.s(f"s_add_u32 s{S_JO}, s{S_JO}, {16 * 1280}")
        p.store(a, 4, V_OA, SRD_OUT, f"s{S_JO if c < 4 else S_EO[c - 4]}", 0, tag="out", flags=E("OFL", "sc1"))
    for c in range(6):
        reduce(p, c, [POOL[8 + c]] if c < 4 else POOL[4 + 2 * c:6 + 2 * c])
        if c: out(c - 1)
    out(5)
    if PROF:
        p.wait_all()
        stamp(p, 21)
        p.s(f"s_getreg_b32 s{S_TM}, hwreg(HW_REG_HW_ID)")
        p.s(f"s_getreg_b32 s{S_TM+1}, hwreg(HW_REG_XCC_ID)")
        p.raw(f"v_writelane_b32 v0, s{S_TM}, 24")
        p.raw(f"v_writelane_b32 v0, s{S_TM+1}, 25")
        p.s(f"s_lshl_b32 s{S_T0}, s2, 2")
        p.s(f"s_add_u32 s{S_T0}, s{S_T0}, s{S_W}")
        p.s(f"s_lshl_b32 s{S_T0}, s{S_T0}, 8")
        p.s(f"s_add_u32 s{S_T0}, s{S_T0}, {PROFOFF}")
        p.vop("v_lshrrev_b32", PT, "2", V_LIN)
        p.store(0, 1, PT, SRD_WS, f"s{S_T0}", 0)
        p.s(f"s_add_u32 s{S_T0}, s{S_T0}, 0x40000")
        p.store(255, 1, PT, SRD_WS, f"s{S_T0}", 0)
        if E("ENC"):
            a_, b_ = E("ENC").split(",")
            if int(E("ENCW", "77")) >= 0:
                p.s(f"s_cmp_lg_u32 s2, {int(E('ENCW', '77'))}")
                p.s(f"s_cbranch_scc1 {name}_end")
            if a_ == "n": p.s(f"s_mov_b32 s56, s{S_NON}")
            else: p.raw(f"v_readlane_b32 s56, v0, {a_}")
            if b_ == "n": p.s(f"s_mov_b32 s57, s{S_NON}")
            else: p.raw(f"v_readlane_b32 s57, v0, {b_}")
            p.raw("s_nop 4")
            p.s("s_sub_u32 s57, s57, s56")
            p.s("s_lshl_b32 s57, s57, 3")
            p.s("s_add_u32 s57, s57, 12000")
            p.label(f"{name}_enc")
            p.s("s_memrealtime s[58:59]")
            p.raw("s_waitcnt lgkmcnt(0)")
            p.s(f"s_sub_u32 s58, s58, s{S_NON}")
            p.s("s_cmp_lt_u32 s58, s57")
            p.s(f"s_cbranch_scc1 {name}_enc")
        if PROF == 5:
            p.s(f"s_cmp_lg_u32 s2, 77")
            p.s(f"s_cbranch_scc1 {name}_end")
            p.s(f"s_cmp_lg_u32 s{S_W}, 0")
            p.s(f"s_cbranch_scc1 {name}_end")
            p.raw("v_readlane_b32 s56, v0, 0")
            for k, ix in enumerate([23, 1, 2, 5, 6, 9, 10, 16, 17, 18, 20, 21]):
                p.raw(f"v_readlane_b32 s57, v0, {ix}")
                p.raw("s_nop 3")
                p.s("s_sub_u32 s57, s57, s56")
                p.raw(f"v_mov_b32 v30, s57")
                p.raw(f"buffer_store_dword v30, off, s[{SRD_DBG}:{SRD_DBG+3}], 0 offset:{8 + 4 * k}")
                p.raw("s_nop 1")
    p.label(f"{name}_end")
    p.raw("s_endpgm")
    rest = [po[0], po[4], pe[0], pe[2], pe[4], pe[6], *po, *pe, p]
    fw = Prog(); fw.label(f"{name}_fbw"); fw.wait_all(); fw.s(f"s_branch {name}_pass1")
    return [p0, *pe, *po, p, pre, fw], [p0] + rest, [pre, pe[0], pe[4], pe[6], fw] + rest

def gen(name):
    pro = prologue(name)
    Q = qmod(name)
    AE = aentry(name)
    A = [amod(name, qh) for qh in range(2)]
    F = afin(name)
    P, PS, PS2 = pmod(name)
    SL, SLS = slow(name)
    segs = [pro, Q, AE, A[0], A[1], F] + P + SL
    sims = [[(x, 1) for x in [pro, Q, AE, A[qh], F, AE, A[qh]] + PS] for qh in range(2)]
    sims.append([(x, 1) for x in SLS + PS2])
    lines, stats = finalize([(x, 1) for x in segs], sims=sims)
    if int(E("ROLL", "1")):
        lines = roll(lines, "; ---- a step", 8, S_LOOP, f"{name}_aloop")
        lines = roll(lines, "; ---- q step", 8, S_LOOP, f"{name}_qloop")
    lines += [f"{name}_last:", f".if {name}_last-{name}_pc < {65536 + CPO}", f".fill ({65536 + CPO}-({name}_last-{name}_pc))/4, 4, 0xbf810000", ".endif", f".if {name}_end-{name}_pc > {65536 + CPO}", '.warning "code range"', ".endif"]
    return [f".globl {name}", ".p2align 8", f".type {name},@function", f"{name}:"] + lines, stats
```

```python
from asmlib import *
import math, struct, os
E = os.environ.get
PROF = int(E("PROF", "0"))
ABL = E("ABL", "")
def f2u(f): return struct.unpack("<I", struct.pack("<f", f))[0]
CSCALE = math.log2(math.e) / math.sqrt(128.0)
NWG = 256
LDS_BYTES = 163840
XSL = 18432
XRING = 131072
XALT = 65536 - XSL
WRING = 65536
MISC = 147456
def IMG(kq): return (kq >> 3) * 73728 + (kq & 3) * 18432 + ((kq >> 2) & 1) * 9216
DROP = 0x30000
OOB = 0x40000000
WOT = 0
PART = 128 * 40960
AREA = 18 * 40960
PARTB = 2 * AREA
WFLG = PART + 32 * PARTB
PFLG = WFLG + 8192
FG = int(E('FG', '3')); FS = int(E('FS', '128'))
WSBYTES = PFLG + 128 * 4 * FS
PROFOFF = 0x4000000

SRD_X, SRD_K, SRD_V, SRD_W, SRD_WS, SRD_WO, SRD_OUT, SRD_DBG = 8, 12, 16, 20, 24, 28, 32, 36
S_W = 3
S_T0, S_T1, S_B, S_G, S_P, S_T2 = 40, 41, 42, 43, 44, 45
S_CS, S_NON, S_SPIN, S_PH, S_GRP, S_SO = 46, 48, 50, 51, 52, 53
S_BAD = 54
S_KOFF, S_VOFF, S_KB, S_KVN, S_M0KV, S_WFP = 56, 57, 58, 59, 60, 61
S_WOFF, S_WB, S_XOFF, S_XB = 62, 63, 65, 66
S_M0W, S_M0X8 = 75, 72
S_WT, S_PT, S_PF, S_RD, S_OUTO = 76, 77, 78, 79, 80
S_LO, S_HI = 81, 82
S_TM = 84
S_VB = 88
S_M0KVP, S_KVP, S_M0D, S_U = 89, 91, 94, 95
S_LOOP = 92
S_WT2 = 98

V_DK, V_DV, V_DW, V_DX = 1, 5, 9, 13
V_AK, V_AV0, V_AV1, V_AX, V_AX8, V_LIN = 18, 19, 20, 21, 22, 24
V_E0, V_E1, V_E2 = 25, 26, 27
V_S = 28
V_AW = V_S + 40
V_O = 84
V_T = 244
V_DA = V_T + 3
V_NV = 252
V_JUNK = 254
A_Q, A_QN, A_L, A_ONE, A_POOL, A_X = 256, 336, 416, 436, 440, 472
A_QP = 480
NPOOL = 8
def Qf(n, ks, base=A_Q): return base + (n * 4 + ks) * 4
def Oa(n, m): return V_O + (n * 8 + m) * 4
def XS(par, n): return V_S + (par * 4 + n) * 4 if n < 4 else V_S + 48
def YS(n): return V_S + 32 + n * 4 if n < 4 else V_S + 52
def La(n): return A_L + 4 * n
def Xf(st, t): return V_S + (st * 5 + t) * 4
def QA(r, n, m):
    if r == 0: return V_O + (n * 8 + m) * 4
    return A_QN + 64 + 4 * m if n == 4 else A_QN + 80 * (m & 1) + 16 * n + 4 * (m >> 1)

def stamp(p, idx, dyn=None):
    if not PROF: return
    p.s(f"s_memrealtime s[{S_TM}:{S_TM+1}]")
    p.s(f"s_memtime s[{S_TM+2}:{S_TM+3}]")
    p.wait_lgkm0()
    if dyn is None:
        p.raw(f"v_writelane_b32 v0, s{S_TM}, {idx}")
        p.raw(f"v_writelane_b32 v255, s{S_TM+2}, {idx}")
    else:
        p.s("s_mov_b32 s99, m0")
        p.s(f"s_lshl_b32 m0, s{dyn}, 2")
        p.s(f"s_add_u32 m0, m0, {idx}")
        p.raw(f"v_writelane_b32 v0, s{S_TM}, m0")
        p.raw(f"v_writelane_b32 v255, s{S_TM+2}, m0")
        p.s("s_mov_b32 m0, s99")

KVSEQ = [("K", 0)]
for u in range(15): KVSEQ += [("K", u + 1), ("V", u)]
KVSEQ += [("V", 15)]
KVPOS = {t: i for i, t in enumerate(KVSEQ)}
DYN = (10, 30)
SRD_C = SRD_WO
S_ROT, S_C, S_D = S_KOFF, S_VOFF, S_VB
def kv_ops(pos):
    pre = pos >= 32; pos %= 32
    kind, u = KVSEQ[pos]
    dyn = DYN[0] <= pos <= DYN[1] and not pre
    ops = []
    for j in range(4):
        def f(p, j=j):
            if dyn:
                if j == 0:
                    if pos == DYN[0]:
                        p.s(f"s_add_u32 s{S_C}, s{S_ROT}, {u * 8192}")
                        p.s(f"s_and_b32 s{S_C}, s{S_C}, 0x1ffff")
                        p.s(f"s_mov_b32 s{S_D}, {16384 if kind == 'V' else -8192}")
                        p.s(f"s_mov_b32 s{S_M0D}, {(pos % 8) * 16384}")
                    p.s(f"s_cmp_gt_i32 s{S_D}, 0")
                    p.s(f"s_cselect_b64 s[{SRD_C}:{SRD_C+1}], s[{SRD_V}:{SRD_V+1}], s[{SRD_K}:{SRD_K+1}]")
                    p.s(f"s_add_u32 m0, s{S_M0KV}, s{S_M0D}")
                    p.s(f"s_add_u32 s{S_SO}, s{S_KB}, s{S_C}")
                if "D" not in ABL: p.dmao(V_DV + j, SRD_C, f"s{S_SO}", j * 1024, (kind, u), "nt")
                if j == 0: p.s(f"s_add_u32 s{S_C}, s{S_C}, s{S_D}")
                if j == 1:
                    p.s(f"s_and_b32 s{S_C}, s{S_C}, 0x1ffff")
                    p.s(f"s_sub_u32 s{S_D}, 8192, s{S_D}")
                if j == 2:
                    p.s(f"s_add_u32 s{S_M0D}, s{S_M0D}, 16384")
                    p.s(f"s_and_b32 s{S_M0D}, s{S_M0D}, 0x1ffff")
                return
            if j == 0:
                if pre: p.s(f"s_add_u32 m0, s{S_M0KVP + (pos >> 2)}, {(pos % 4) * 16384}")
                else: p.s(f"s_add_u32 m0, s{S_M0KV}, {(pos % 8) * 16384}")
                p.s(f"s_add_u32 s{S_SO}, s{S_ROT}, {u * 8192}")
                p.s(f"s_and_b32 s{S_SO}, s{S_SO}, 0x1ffff")
                p.s(f"s_add_u32 s{S_SO}, s{S_SO}, s{S_KVP if pre else S_KB}")
            if "D" not in ABL: p.dmao(V_DV + j, SRD_K if kind == "K" else SRD_V, f"s{S_SO}", j * 1024, (kind, u), "nt")
        ops.append((f, 8))
    return ops
W39 = int(E("W39", "1"))
def w_ops(h):
    ops = []
    for j in range(4):
        def f(p, j=j):
            if j == 0:
                p.s(f"s_add_u32 m0, s{S_M0W}, {65536 if (h == 39 and W39) else (h % 4) * 16384}")
                p.s(f"s_add_u32 s{S_SO}, s{S_WB + (h & 1)}, s{S_WOFF}")
            if "W" not in ABL: p.dmao(V_DW + j, SRD_W, f"s{S_SO}", j * 1024, ("W", h))
            if j == 1 and h % 4 == 1: p.s(f"s_sub_u32 s{S_WOFF}, s{S_WOFF}, 512")
            if j == 1 and h % 4 == 3: p.s(f"s_add_u32 s{S_WOFF}, s{S_WOFF}, {64 * 8192 + 512}")
            if j == 2 and h % 4 == 3:
                p.s(f"s_cmp_ge_u32 s{S_WOFF}, {640 * 8192}")
                p.s(f"s_cselect_b32 s{S_WOFF}, 0, s{S_WOFF}")
        ops.append((f, 12 if j == 0 or (j == 2 and h % 4 == 3) else 8 if j == 1 and h % 2 else 4))
    return ops
def xw_ops(i, h):
    def X(j):
        def f(p):
            p.s(f"s_add_u32 m0, s{S_M0KV if j < 4 else S_M0X8}, {XRING}")
            if j == 0: p.s(f"s_add_u32 s{S_T1}, s{S_XB}, s{S_XOFF}")
            p.dmao(V_DX + j, SRD_X, f"s{S_T1}", (j & 3) * 1024, ("X", i))
            if j == 1: p.s(f"s_add_u32 s{S_XOFF}, s{S_XOFF}, 128")
            if j == 2:
                p.s(f"s_cmp_ge_u32 s{S_XOFF}, 1280")
                p.s(f"s_cselect_b32 s{S_XOFF}, 0, s{S_XOFF}")
        return (f, 8)
    w = w_ops(h)
    W = lambda j: ((lambda p: ((p.s(f"s_add_u32 m0, s{S_M0W}, {(h % 4) * 16384}") if j else None), w[j][0](p))), 8)
    return [X(0), W(0), X(1), W(1), X(2), W(2), X(3), W(3), X(4)]
def x_ops(i):
    ops = []
    sb = XRING if i else XALT
    for j in range(5):
        def f(p, j=j):
            if j == 0:
                p.s(f"s_add_u32 m0, s{S_M0KV}, {sb}")
                p.s(f"s_add_u32 s{S_SO}, s{S_XB}, s{S_XOFF}")
            if "X" not in ABL: p.dmao(V_DX + j, SRD_X, f"s{S_SO}", (j & 3) * 1024, ("X", i), E("XFL", ""))
            if j == 1: p.s(f"s_add_u32 s{S_XOFF}, s{S_XOFF}, 128")
            if j == 2:
                p.s(f"s_cmp_ge_u32 s{S_XOFF}, 1280")
                p.s(f"s_cselect_b32 s{S_XOFF}, 0, s{S_XOFF}")
            if j == 3:
                p.s(f"s_add_u32 m0, s{S_M0X8}, {sb}")
                p.nop(0)
        ops.append((f, 12 if j in (0, 2, 3) else 8 if j == 1 else 4))
    return ops

SRD_E = 4
S_EM, S_ED, S_TAB, S_ES, S_WEND, S_EW = 67, 68, 69, 70, 71, 73
STG = 0x26000
V_WR = V_O + 144
EKP = [int(x) for x in E("EKP", "1,1,1,2").split(",")]
PFP = [int(x) for x in E("PFP", "")]; PFN = len(PFP)
PFS = int(E("PFS", "1"))
S_PFO, S_PFB = 74, 83
FWL = int(E("FWL", "1"))
def ek_ops(h):
    it = h // 4
    tag = KVSEQ[(it - 1) // 2]
    def kp(p):
        p.s(f"s_and_b32 s{S_ES}, s{S_TAB}, 0x7000")
        p.s(f"s_add_u32 s{S_ES}, s{S_ES}, s{S_ROT}")
        p.s(f"s_and_b32 s{S_ES}, s{S_ES}, 0x1ffff")
        p.s(f"s_add_u32 s{S_ES}, s{S_ES}, s{S_KVP}")
        if PFS > 1 and not PFN:
            p.s(f"s_bitcmp1_b32 s{S_WEND}, 16")
            p.s(f"s_cselect_b32 s{S_ES}, s{S_ES}, {OOB:#x}")
        p.s(f"s_bitcmp1_b32 s{S_TAB}, 15")
        p.s(f"s_cselect_b64 s[{SRD_E}:{SRD_E+1}], s[{SRD_V}:{SRD_V+1}], s[{SRD_K}:{SRD_K+1}]")
        p.s(f"s_lshr_b32 s{S_T0}, s{S_TAB}, 4")
        p.s(f"s_lshl_b32 s{S_TAB}, s{S_TAB}, 28")
        p.s(f"s_or_b32 s{S_TAB}, s{S_TAB}, s{S_T0}")
    def k0(p):
        p.s(f"s_add_u32 m0, s{S_M0KV}, s{S_EM}")
        if "D" not in ABL: p.dmao(V_DV, SRD_E, f"s{S_ES}", 0, tag, "nt")
    def k1(p):
        p.s(f"s_add_u32 m0, s{S_M0KV}, s{S_EM}")
        p.s(f"s_add_u32 s{S_EM}, s{S_EM}, s{S_ED}")
        if "D" not in ABL: p.dmao(V_DV + 1, SRD_E, f"s{S_ES}", 1024, tag, "nt")
        p.s(f"s_xor_b32 s{S_ED}, s{S_ED}, {2048 ^ 14336}")
    def wo(p):
        p.s(f"s_mov_b32 m0, s{S_EW}")
        p.s(f"s_bitcmp1_b32 s{S_WEND}, 0")
        p.s(f"s_cselect_b32 s{S_T0}, s{S_WT}, {OOB:#x}")
        p.dmao(V_DX, SRD_WO, f"s{S_T0}", 0, ("WOP", it), E("WOFL", "nt"))
        p.s(f"s_xor_b32 s{S_EW}, s{S_EW}, 4096")
        p.s(f"s_lshr_b32 s{S_WEND}, s{S_WEND}, 1")
        p.s(f"s_add_u32 s{S_WT}, s{S_WT}, 128")
    def none(p): p.add(Ins(f"buffer_load_dword v{V_JUNK}, off, s[{SRD_DBG}:{SRD_DBG+3}], 0 offset:256", "vm", [], [], tag="none"))
    def pf(srd, du, j, last):
        def f(p):
            p.s(f"s_add_u32 s{S_T0}, s{S_PFO}, {du * 8192}")
            p.s(f"s_and_b32 s{S_T0}, s{S_T0}, 0x1ffff")
            p.s(f"s_add_u32 s{S_T0}, s{S_T0}, s{S_PFB}")
            p.add(Ins(f"buffer_load_dword v{V_JUNK}, v{V_DV + j}, s[{srd}:{srd+3}], s{S_T0} offen offset:{j * 1024} {E('PFFL', '')}", "vm", [V_DV + j], [], tag="pf"))
            if last:
                p.s(f"s_add_u32 s{S_PFO}, s{S_PFO}, {8192 * PFN // 2}")
                p.s(f"s_bitcmp1_b32 s{S_WEND}, 16")
                p.s(f"s_cselect_b32 s{S_PFB}, s{S_KVP}, {OOB:#x}")
        return f
    if int(E("PFD", "0")) == 2:
        def pf(srd, du, j, last):
            def f(p):
                p.s(f"s_mov_b32 m0, s94")
                p.s(f"s_add_u32 s{S_T0}, s{S_PFO}, {du * 8192}")
                p.s(f"s_and_b32 s{S_T0}, s{S_T0}, 0x1ffff")
                p.s(f"s_add_u32 s{S_T0}, s{S_T0}, s{S_PFB}")
                p.dmao(V_DV, srd, f"s{S_T0}", 0, "pf", E("PFFL", ""))
                if last:
                    p.s(f"s_add_u32 s{S_PFO}, s{S_PFO}, {8192 * PFN // 2}")
                    p.s(f"s_bitcmp1_b32 s{S_WEND}, 16")
                    p.s(f"s_cselect_b32 s{S_PFB}, s{S_KVP}, {OOB:#x}")
            return f
    if int(E("PFD", "0")) == 1:
        def pf(srd, du, j, last):
            def f(p):
                p.s(f"s_mov_b32 m0, s94")
                p.s(f"s_and_b32 s{S_T0}, s{S_PFO}, 0x1ffff")
                p.s(f"s_add_u32 s{S_T0}, s{S_T0}, s{S_PFB}")
                p.dmao(V_DV, SRD_V, f"s{S_T0}", 0, "pf", "nt")
                p.s(f"s_add_u32 s{S_PFO}, s{S_PFO}, 2048")
            return f
    warm = lambda r: lambda p: p.add(Ins(f"buffer_load_dword v{V_JUNK}, off, s[{SRD_WS}:{SRD_WS+3}], s{r} sc1", "vm", [], [], tag="touch"))
    fs = [k0, k1, wo, None, kp] if it else [none if x else None for x in EKP[:3]] + [None, kp]
    if FWL and not it: fs[FWL // 10], fs[FWL % 10] = (lambda p: p.add(Ins(f"buffer_load_dword v{V_JUNK}, v4, s[{SRD_WS}:{SRD_WS+3}], s{S_T2} offen sc1", "vm", [4], [], tag="touch"))), warm(S_WFP)
    fs += [pf(SRD_K if k & 1 else SRD_V, (5 if k & 1 else 3) + (k >> 1), 3, k == PFN - 1) if it else (none if PFP[k] else None) for k in range(PFN)]
    fs += [code_touch] * len(CPQ)
    return [(f, 8) for f, x in zip(fs, EKP + [3] + PFP + CPQ) if f and x == h % 4]
def wst(p):
    for i in range(5):
        p.store(A_Q + 16 - 4 * i, 4, V_LIN, SRD_WS, f"s{S_PT}", 0, tag="wst", flags="sc1")
        if i < 4: p.s(f"s_add_u32 s{S_PT}, s{S_PT}, 4096")

def split_ops(ops):
    q = Prog()
    for f, _ in ops: f(q)
    out = []; i = 0; L = [x for x in q.ins if x.kind != "nop"]
    while i < len(L):
        grp = [L[i]]
        if L[i].text.startswith(("s_cmp", "s_bitcmp")): grp.append(L[i + 1])
        i += len(grp)
        out.append((lambda p, grp=grp: [p.add(x) for x in grp], "vm" if grp[0].kind in ("vm", "vml", "vms") else "s", 4 * len(grp)))
    return out
def fill_dma(sc, ops, after, before, tag=None, queue="dma", lead=80, solo=True):
    so = split_ops(ops)
    for k, (fn, kind, cost) in enumerate(so):
        sc.fill(queue, fn, (8 if solo else 4) if kind == "vm" else cost, after=after, before=before, lead=lead, solo=(kind == "vm" and SOLO and solo), paced=(kind == "vm"),
                tag=tag if k == len(so) - 1 else None)
SOLO = int(E("SOLO", "1"))
T7 = int(E("T7", "0"))
def sprinkle(progs, ops, lo=0.0, hi=1.0):
    pts = []
    for p, st in progs:
        masked = False
        for i in range(st, len(p.ins)):
            x = p.ins[i]
            if x.text.startswith("s_mov_b64 exec"): masked = not x.text.endswith("-1")
            if x.kind == "label" and not x.text.startswith(";"): break
            if x.kind in ("valu", "perm") and not masked and p.ins[i - 1].kind in ("valu", "perm") and "v_cmp" not in x.text and "v_cmp" not in p.ins[i - 1].text: pts.append((p, i))
    if not ops: return
    a, b = int(lo * len(pts)), int(hi * len(pts))
    sel = [pts[a + (k * (b - a)) // len(ops)] for k in range(len(ops))]
    for (p, i), (fn, _) in reversed(list(zip(sel, ops))):
        q = Prog(); fn(q)
        p.ins[i:i] = q.ins

V_CP = 2
V_WP, WTP = 23, int(E("WTP", "-1"))
CPO = int(E("CPO", "3072"))
CPQ = [int(x) for x in E("CPQ", "2")]
CPA = [int(x) for x in E("CPA", "").split(",") if x]
WTN = int(E("WTN", "2"))
def w_touch(p, off): p.add(Ins(f"buffer_load_dword v{V_JUNK}, v{V_WP}, s[{SRD_WS}:{SRD_WS+3}], 0 offen offset:{off} sc1", "vm", [V_WP], [], tag="wtp"))
def code_addr(p, name, L):
    p.s(f"s_getpc_b64 s[{S_TM}:{S_TM+1}]")
    p.label(f"{name}_pc")
    p.s(f"s_lshr_b32 s{S_T0}, s2, 1")
    p.s(f"s_and_b32 s{S_T0}, s{S_T0}, 0x7c")
    p.s(f"s_add_u32 s{S_T0}, s{S_T0}, s{S_W}")
    p.s(f"s_lshl_b32 s{S_T0}, s{S_T0}, 9")
    p.s(f"s_add_u32 s{S_T0}, s{S_T0}, {CPO}")
    p.s(f"s_add_u32 s{S_TM}, s{S_TM}, s{S_T0}")
    p.s(f"s_addc_u32 s{S_TM+1}, s{S_TM+1}, 0")
    p.raw(f"v_and_b32 v{V_CP}, {7 if int(E('CP64', '0')) else 3}, v{L}")
    p.raw(f"v_lshlrev_b32 v{V_CP}, {6 if int(E('CP64', '0')) else 7}, v{V_CP}")
    p.raw(f"v_mov_b32 v{V_CP+1}, s{S_TM+1}")
    p.raw(f"v_add_co_u32 v{V_CP}, vcc, s{S_TM}, v{V_CP}")
    p.raw("s_nop 1")
    p.raw(f"v_addc_co_u32 v{V_CP+1}, vcc, 0, v{V_CP+1}, vcc")
def code_touch(p): p.add(Ins(f"global_load_dword v{V_JUNK}, v[{V_CP}:{V_CP+1}], off", "vm", [], [], tag="code"))

def get_nonce(p, name, t):
    p.add(Ins(f"v_readfirstlane_b32 s{S_NON}, v{V_NV}", "rfl", [V_NV], []))
    p.add(Ins(f"v_readfirstlane_b32 s{S_NON+1}, v{V_NV+1}", "rfl", [V_NV + 1], []))
    p.s(f"s_cmp_lt_i32 s{S_NON+1}, 0")
    p.s(f"s_cbranch_scc1 {name}_x")
    p.vop("v_mov_b32", t + 2, "0")
    p.label(f"{name}")
    p.raw(f"buffer_load_dwordx2 v[{t}:{t+1}], v{t+2}, s[{SRD_DBG}:{SRD_DBG+3}], 0 offen sc1")
    p.raw("s_waitcnt vmcnt(0)")
    p.raw(f"v_readfirstlane_b32 s{S_NON}, v{t}")
    p.raw(f"v_readfirstlane_b32 s{S_NON+1}, v{t+1}")
    p.s(f"s_sub_u32 s{S_SPIN}, s{S_SPIN}, 1")
    p.s(f"s_cbranch_scc1 {name}_x")
    p.s(f"s_cmp_lt_i32 s{S_NON+1}, 0")
    p.s(f"s_cbranch_scc0 {name}")
    p.label(f"{name}_x")
    p.nop(1)

def publish(p, soff, off, t):
    p.vop("v_mov_b32", t, f"s{S_NON}")
    p.vop("v_mov_b32", t + 1, f"s{S_NON+1}")
    p.s("s_mov_b64 exec, 1")
    p.store(t, 2, V_LIN, SRD_WS, soff, off, tag="flag", flags="sc1")
    p.s("s_mov_b64 exec, -1")

def poll_issue(p, vaddr, soff, off, t):
    p.add(Ins(f"buffer_load_dwordx2 v[{t}:{t+1}], v{vaddr}, s[{SRD_WS}:{SRD_WS+3}], {soff} offen offset:{off} sc1", "vml", [vaddr], [t, t + 1], tag="poll"))
def poll_check(p, name, vaddr, soff, off, t, slp=2):
    p.label(f"{name}")
    p.add(Ins(f"v_cmp_ne_u32 vcc, s{S_NON}, v{t}", "valu", [t], []))
    p.add(Ins(f"v_cmp_ne_u32 s[{S_TM+2}:{S_TM+3}], s{S_NON+1}, v{t+1}", "valu", [t + 1], []))
    p.s(f"s_or_b64 vcc, vcc, s[{S_TM+2}:{S_TM+3}]")
    if "Y" in ABL and "pp" in name: p.s(f"s_branch {name}_ok")
    p.s(f"s_cbranch_scc0 {name}_ok")
    p.s(f"s_sub_u32 s{S_SPIN}, s{S_SPIN}, 1")
    p.s(f"s_cbranch_scc1 {name}_ok")
    if slp: p.s(f"s_sleep {slp}")
    p.raw(f"buffer_load_dwordx2 v[{t}:{t+1}], v{vaddr}, s[{SRD_WS}:{SRD_WS+3}], {soff} offen offset:{off} sc1")
    p.raw("s_waitcnt vmcnt(0)")
    p.s(f"s_branch {name}")
    p.label(f"{name}_ok")

PRO = int(E("PRO", "2"))
def prologue(name):
    p = Prog()
    if PROF: p.s("s_memrealtime s[100:101]")
    p.s(f"s_cmp_ge_u32 s2, {NWG}")
    p.s(f"s_cbranch_scc1 {name}_end")
    p.s("s_load_dwordx8 s[84:91], s[0:1], 0")
    p.s("s_load_dwordx8 s[92:99], s[0:1], 32")
    T = V_O
    W, L, a, b, c, d, U, P, VV, R8, PI, M, G, cv = range(T, T + 14)
    p.vop("v_lshrrev_b32", W, "6", 0)
    p.vop("v_and_b32", L, "63", 0)
    p.add(Ins(f"v_readfirstlane_b32 s{S_W}, v{W}", "rfl", [W], []))
    p.vop("v_and_b32", U, "1", W)
    p.vop("v_lshrrev_b32", P, "1", W)
    p.vop("v_lshrrev_b32", VV, "5", L)
    p.vop("v_bfe_u32", R8, L, "2", "3")
    p.vop("v_and_b32", PI, "3", L)
    p.s(f"s_movk_i32 s{S_T0}, 1280")
    p.vop("v_mul_lo_u32", a, R8, f"s{S_T0}")
    p.vop("v_lshl_add_u32", a, VV, "6", a)
    p.vop("v_xor_b32", c, "3", PI)
    p.vop("v_lshl_add_u32", V_DX, PI, "4", a)
    p.vop("v_lshl_add_u32", b, c, "4", a)
    p.vop("v_add_u32", V_DX + 1, f"{9216}", b)
    p.vop("v_add_u32", V_DX + 2, f"{2 * 9216}", V_DX)
    p.vop("v_add_u32", V_DX + 3, f"{3 * 9216}", b)
    p.vop("v_lshrrev_b32", d, "2", R8)
    p.vop("v_lshlrev_b32", cv, "1", d)
    p.vop("v_xor_b32", cv, cv, PI)
    p.vop("v_and_b32", b, "3", R8)
    p.vop("v_lshl_add_u32", b, d, "3", b)
    p.vop("v_lshl_add_u32", b, U, "5", b)
    p.vop("v_lshlrev_b32", d, "6", VV)
    p.vop("v_lshl_add_u32", b, b, "13", d)
    p.vop("v_lshl_add_u32", d, U, "7", d)
    p.vop("v_lshl_add_u32", V_DW, cv, "4", b)
    for j in range(1, 4): p.vop("v_add_u32", V_DW + j, f"{(16 * (j & 1) + 4 * (j >> 1)) * 8192 - 1024 * j}", V_DW)
    p.vop("v_mul_u32_u24", b, "3", P)
    p.vop("v_xor_b32", b, b, PI)
    p.vop("v_lshl_add_u32", b, b, "4", a)
    p.vop("v_lshlrev_b32", a, "2", W)
    p.vop("v_sub_u32", a, P, a)
    p.vop("v_add_u32", a, "16", a)
    p.s(f"s_movk_i32 s{S_T1}, {8 * 1280}")
    p.vop("v_mul_lo_u32", a, a, f"s{S_T1}")
    p.vop("v_add_u32", a, a, b)
    p.vop("v_lshl_add_u32", V_DX + 4, U, "30", a)
    MAP = int(E("MAP", "0"))
    p.s(f"s_bfe_u32 s{S_T0}, s2, {(MAP << 16) | 3:#x}")
    p.s(f"s_lshr_b32 s{S_T2}, s2, {3 + MAP}")
    p.s(f"s_and_b32 s{S_G}, s2, {(1 << (3 - MAP)) - 1}")
    p.s(f"s_lshl_b32 s{S_G}, s{S_G}, {MAP}")
    p.s(f"s_or_b32 s{S_G}, s{S_G}, s{S_T0}")
    p.s(f"s_bfe_u32 s{S_B}, s2, {(MAP << 16) | (3 - MAP):#x}")
    p.s(f"s_lshl_b32 s{S_B}, s{S_B}, {5 - MAP}")
    p.s(f"s_or_b32 s{S_B}, s{S_B}, s{S_T2}")
    p.s(f"s_mul_i32 s{S_T0}, s{S_T0}, {int(E('PHM', str(1 << (5 - MAP))))}")
    p.s(f"s_lshl_b32 s{S_T2}, s{S_T2}, {MAP}")
    p.s(f"s_add_u32 s{S_T2}, s{S_T2}, s{S_T0}")
    if int(E("GPH", "0")):
        p.s(f"s_and_b32 s{S_T0}, s{S_G}, {int(E('GPM', '7'))}")
        p.s(f"s_mul_i32 s{S_T0}, s{S_T0}, {int(E('GPH', '0'))}")
        p.s(f"s_add_u32 s{S_T2}, s{S_T2}, s{S_T0}")
    p.s(f"s_and_b32 s{S_T2}, s{S_T2}, 31")
    p.s(f"s_lshr_b32 s{S_P}, s{S_W}, 1")
    p.s(f"s_lshl_b32 s{S_M0KV}, s{S_W}, 12")
    p.s(f"s_add_u32 s{S_M0W}, s{S_M0KV}, {WRING}")
    p.s(f"s_lshl_b32 s{S_M0X8}, s{S_P}, 10")
    p.s(f"s_add_u32 s{S_M0X8}, s{S_M0X8}, 16384")
    p.s(f"s_bitcmp1_b32 s{S_W}, 0")
    p.s(f"s_cselect_b32 s{S_M0X8}, 0x1d000, s{S_M0X8}")
    p.s(f"s_lshl_b32 s{S_T0}, s{S_G}, 2")
    p.s(f"s_add_u32 s{S_T0}, s{S_T0}, s{S_P}")
    p.s(f"s_lshl_b32 s{S_WB}, s{S_T0}, 8")
    p.s(f"s_add_u32 s{S_WB}, s{S_WB}, 512")
    p.s(f"s_xor_b32 s{S_WB+1}, s{S_WB}, 128")
    p.s(f"s_lshl_b32 s{S_T1}, s{S_B}, 5")
    p.s(f"s_add_u32 s{S_T0}, s{S_T0}, s{S_T1}")
    p.s(f"s_lshl_b32 s{S_KVN}, s{S_T0}, 17")
    p.s(f"s_mul_i32 s{S_T0}, s{S_T2}, 5")
    p.s(f"s_lshr_b32 s{S_T0}, s{S_T0}, 4")
    if not int(E("ROT", "1")): p.s(f"s_mov_b32 s{S_T0}, 0")
    p.s(f"s_lshl_b32 s{S_XOFF}, s{S_T0}, 7")
    p.s(f"s_lshl_b32 s{S_WOFF}, s{S_T0}, 19")
    p.s(f"s_mul_i32 s{S_XB}, s{S_B}, {144 * 1280}")
    p.s(f"s_mul_i32 s{S_T0}, s{S_W}, {32 * 1280}")
    p.s(f"s_add_u32 s{S_XB}, s{S_XB}, s{S_T0}")
    def srd(r, src, size):
        p.s(f"s_mov_b32 s{r+2}, {size:#x}")
        p.s(f"s_mov_b32 s{r+3}, 0x20000")
    def srd2(r, src):
        p.s(f"s_mov_b32 s{r}, s{src}")
        p.s(f"s_and_b32 s{r+1}, s{src+1}, 0xffff")
    SR = ((SRD_X, 84, 32 * 144 * 640 * 2), (SRD_W, 90, 640 * 4096 * 2), (SRD_K, 86, 1 << 27), (SRD_V, 88, 1 << 27),
          (SRD_WO, 92, 4096 * 640 * 2), (SRD_OUT, 94, 32 * 144 * 640 * 2), (SRD_DBG, 96, 256), (SRD_WS, 98, (1 << 28) if PROF else WSBYTES))
    for x in SR: srd(*x)
    if PROF: p.s("s_memrealtime s[66:67]") if 0 else None
    p.s("s_waitcnt lgkmcnt(0)")
    if PROF: p.s("s_memrealtime s[4:5]")
    for x in SR[:2]: srd2(*x[:2])
    for ops in (x_ops(0), w_ops(0), w_ops(1)):
        for f, _ in ops: f(p)
    for x in SR[2:]: srd2(*x[:2])
    stamp(p, 0)
    if PROF:
        p.raw("v_writelane_b32 v0, s100, 3")
        p.raw("v_writelane_b32 v0, s4, 4")
    p.vop("v_lshlrev_b32", V_LIN, "4", L)
    code_addr(p, name, L)
    code_touch(p)
    p.vop("v_lshl_add_u32", b, R8, "8", d)
    p.vop("v_lshl_add_u32", V_DV, cv, "4", b)
    for j in range(1, 4): p.vop("v_add_u32", V_DV + j, f"{1024 * j}", V_DV)
    if E("LINT", "") == "1":
        for j in range(4): p.vop("v_lshl_add_u32", V_DV + j, U, "12", V_LIN)
    if E("LINT", "") == "2":
        p.vop("v_lshl_add_u32", V_DV, U, "10", V_LIN)
        for j in range(1, 4): p.vop("v_add_u32", V_DV + j, f"{1024 * j}", V_DV)
    p.s(f"s_lshl_b32 s{S_T0}, s2, 1")
    p.s(f"s_add_u32 s{S_T0}, s{S_T0}, s{S_P}")
    p.s(f"s_mul_i32 s{S_T0}, s{S_T0}, {int(E('KROT', '5'))}")
    p.s(f"s_lshr_b32 s{S_T1}, s2, 3")
    p.s(f"s_add_u32 s{S_T0}, s{S_T0}, s{S_T1}")
    p.s(f"s_and_b32 s{S_T0}, s{S_T0}, {15 if int(E('KROT', '5')) else 0}")
    p.s(f"s_lshl_b32 s{S_KOFF}, s{S_T0}, 13")
    p.s(f"s_mov_b32 s{S_M0KVP}, s{S_M0KV}")
    p.s(f"s_mov_b32 s{S_M0KVP+1}, s{S_M0W}")
    p.s(f"s_mov_b32 s{S_KVP}, s{S_KVN}")
    p.s(f"s_mov_b32 s{S_EM}, 0")
    p.s(f"s_movk_i32 s{S_ED}, 2048")
    p.s(f"s_mov_b32 s{S_TAB}, 0x83210549")
    srd(SRD_E, 0, 1 << 27)
    p.s(f"s_and_b32 s{S_U}, s{S_W}, 1")
    p.s(f"s_lshl_b32 s{S_T0}, s{S_B}, 2")
    p.s(f"s_lshr_b32 s{S_T1}, s{S_G}, 1")
    p.s(f"s_add_u32 s{S_T0}, s{S_T0}, s{S_T1}")
    p.s(f"s_and_b32 s{S_T1}, s{S_G}, 1")
    p.s(f"s_lshl_b32 s{S_WFP}, s{S_P}, 7")
    p.s(f"s_add_u32 s{S_WFP}, s{S_WFP}, s{S_T0}")
    p.s(f"s_lshl1_add_u32 s{S_WFP}, s{S_WFP}, s{S_T1}")
    p.s(f"s_lshl1_add_u32 s{S_WFP}, s{S_WFP}, s{S_U}")
    p.s(f"s_lshl3_add_u32 s{S_WFP}, s{S_WFP}, {WFLG}")
    p.s(f"s_mul_i32 s{S_T0}, s{S_T0}, 40960")
    p.s(f"s_mul_i32 s{S_PT}, s{S_T1}, 20480")
    p.s(f"s_add_u32 s{S_PT}, s{S_PT}, s{S_T0}")
    p.s(f"s_lshl_b32 s{S_EW}, s{S_W}, 10")
    p.s(f"s_add_u32 s{S_PT}, s{S_PT}, s{S_EW}")
    p.s(f"s_add_u32 s{S_EW}, s{S_EW}, {STG}")
    p.s(f"s_mul_i32 s{S_T1}, s{S_T1}, 640")
    p.s(f"s_add_u32 s{S_WT}, s{S_T1}, s{S_T0}")
    p.s(f"s_mul_i32 s{S_T1}, s{S_W}, {8 * 1280}")
    p.s(f"s_add_u32 s{S_WT}, s{S_WT}, s{S_T1}")
    p.s(f"s_mov_b32 s{S_WEND}, {0x7c | ((0xfff << (15 + PFS)) & 0x7fff0000):#x}")
    if PFN:
        p.s(f"s_lshl_b32 s94, s{S_W}, 10")
        p.s(f"s_add_u32 s94, s94, {XRING + XSL}")
        p.s(f"s_sub_u32 s{S_PFO}, s{S_KOFF}, {8192 * PFN // 2 * (PFS - 1) + 65536 * (int(E('PFD', '0')) == 1)}")
        if int(E("PFD", "0")) == 2:
            p.s(f"s_add_u32 s{S_T0}, s{S_B}, s{S_G}")
            p.s(f"s_add_u32 s{S_T0}, s{S_T0}, s{S_P}")
            p.s(f"s_and_b32 s{S_T0}, s{S_T0}, 3")
            p.s(f"s_lshl_b32 s{S_T0}, s{S_T0}, 11")
            p.s(f"s_add_u32 s{S_PFO}, s{S_PFO}, s{S_T0}")
        p.s(f"s_mov_b32 s{S_PFB}, " + (f"s{S_KVP}" if PFS == 1 else f"{OOB:#x}"))
    if int(E("TOUCH", "0")):
        p.add(Ins(f"buffer_load_dword v{V_T+4}, off, s[{SRD_K}:{SRD_K+3}], s{S_KVN} nt", "vml", [], [V_T + 4], tag="touch"))
        p.add(Ins(f"buffer_load_dword v{V_T+5}, off, s[{SRD_V}:{SRD_V+3}], s{S_KVN} nt", "vml", [], [V_T + 5], tag="touch"))
        p.add(Ins(f"buffer_load_dword v{V_T+7}, off, s[{SRD_WS}:{SRD_WS+3}], s{S_PT} sc1", "vml", [], [V_T + 7], tag="touch"))
        if int(E("TOUCHO", "1")): p.add(Ins(f"buffer_load_dword v{V_T+6}, off, s[{SRD_WO}:{SRD_WO+3}], s{S_WT}", "vml", [], [V_T + 6], tag="touch"))
    p.s(f"s_sub_u32 s{S_WT}, s{S_WT}, 256")
    FWARM = int(E("FWARM", "3"))
    if FWARM & 1:
        p.s(f"s_lshl2_add_u32 s{S_T0}, s{S_B}, s{S_W}")
        p.s(f"s_mul_i32 s{S_T0}, s{S_T0}, {4 * FS}")
        p.s(f"s_lshl_b32 s{S_T1}, s{S_G}, {FG}")
        p.s(f"s_add_u32 s{S_T0}, s{S_T0}, s{S_T1}")
        p.s(f"s_add_u32 s{S_T2}, s{S_T0}, {PFLG}")
        p.vop("v_mul_u32_u24", 4, f"{FS}", PI)
        if not FWL: p.add(Ins(f"buffer_load_dword v{V_JUNK}, off, s[{SRD_WS}:{SRD_WS+3}], s{S_T2} sc1", "vm", [], [], tag="touch"))
    if FWARM & 4:
        p.s(f"s_lshl2_add_u32 s{S_T0}, s{S_B}, s{S_W}")
        p.s(f"s_mul_i32 s{S_T1}, s{S_T0}, {PARTB // 4}")
        p.s(f"s_add_u32 s{S_T1}, s{S_T1}, {PART}")
        p.add(Ins(f"buffer_load_dword v{V_JUNK}, off, s[{SRD_WS}:{SRD_WS+3}], s{S_T1} sc1 nt", "vm", [], [], tag="touch"))
        p.s(f"s_mul_i32 s{S_T1}, s{S_T0}, {36 * 1280}")
        p.add(Ins(f"buffer_load_dword v{V_JUNK}, off, s[{SRD_OUT}:{SRD_OUT+3}], s{S_T1} sc1 nt", "vm", [], [], tag="touch"))
    if FWARM & 8:
        p.vop("v_mul_u32_u24", V_T + 3, f"{PARTB // 64}", L)
        p.s(f"s_mul_i32 s{S_T1}, s{S_B}, {PARTB}")
        p.s(f"s_add_u32 s{S_T1}, s{S_T1}, {PART}")
        p.s(f"s_cmp_eq_u32 s{S_W}, 0")
        p.s(f"s_cselect_b32 s{S_T1}, s{S_T1}, {OOB:#x}")
        p.add(Ins(f"buffer_load_dword v{V_JUNK}, v{V_T+3}, s[{SRD_WS}:{SRD_WS+3}], s{S_T1} offen sc1 nt", "vm", [V_T + 3], [], tag="touch"))
    if FWARM & 2 and not FWL: p.add(Ins(f"buffer_load_dword v{V_JUNK}, off, s[{SRD_WS}:{SRD_WS+3}], s{S_WFP} sc1", "vm", [], [], tag="touch"))
    p.s(f"s_or_b32 s{S_T0}, s2, s{S_W}")
    p.s(f"s_cmp_lg_u32 s{S_T0}, 0")
    p.s(f"s_cbranch_scc1 {name}_nononce")
    p.s(f"s_memrealtime s[{S_NON}:{S_NON+1}]")
    p.s("s_waitcnt lgkmcnt(0)")
    p.s(f"s_or_b32 s{S_NON+1}, s{S_NON+1}, 0x80000000")
    p.raw(f"v_mov_b32 v{V_T}, s{S_NON}")
    p.raw(f"v_mov_b32 v{V_T+1}, s{S_NON+1}")
    p.s("s_mov_b64 exec, 1")
    p.raw(f"buffer_store_dwordx2 v[{V_T}:{V_T+1}], v{V_LIN}, s[{SRD_DBG}:{SRD_DBG+3}], 0 offen sc1")
    p.s("s_mov_b64 exec, -1")
    p.label(f"{name}_nononce")
    p.s(f"s_mov_b32 s{S_SPIN}, 0x40000")
    p.s(f"s_mov_b32 s{S_PH}, 0")
    if QT:
        p.s(f"s_add_u32 s{S_T0}, s{S_B}, s{S_G}")
        p.s(f"s_and_b32 s{S_T0}, s{S_T0}, {QT[1]}")
        p.s(f"s_add_u32 s{S_T0}, s{S_T0}, {QT[0]}")
        p.s(f"s_lshl_b32 s{S_TI}, 1, s{S_T0}")
    if PROF in (2, 3): p.s("s_mov_b32 s93, 32")
    p.s(f"s_mov_b64 s[{S_BAD}:{S_BAD+1}], 0")
    p.s(f"s_mov_b32 s{S_CS}, {f2u(CSCALE):#x}")
    p.s(f"s_mov_b32 s{S_CS+1}, s{S_CS}")
    p.s(f"s_mov_b32 s{S_LO}, {f2u(2.0 ** -24):#x}")
    p.s(f"s_mov_b32 s{S_HI}, {f2u(2.0 ** 16):#x}")
    p.vop("v_and_b32", M, "15", L)
    p.vop("v_lshrrev_b32", G, "4", L)
    p.vop("v_lshrrev_b32", a, "3", M)
    p.vop("v_mul_u32_u24", c, "3", a)
    p.vop("v_xor_b32", c, c, G)
    p.vop("v_and_b32", b, "7", M)
    p.vop("v_lshlrev_b32", b, "6", b)
    p.vop("v_lshl_add_u32", b, c, "4", b)
    p.vop("v_lshl_add_u32", b, a, "10", b)
    p.vop("v_add_u32", V_AX8, f"{XRING}", b)
    p.vop("v_lshl_add_u32", V_AX, U, "13", V_AX8)
    p.vop("v_add_u32", V_AW + 5, f"{XALT}", b)
    p.vop("v_lshl_add_u32", V_AW + 4, U, "13", V_AW + 5)
    p.vop("v_and_b32", c, "0x1ff", V_LIN)
    p.vop("v_lshl_add_u32", c, VV, "10", c)
    p.vop("v_lshl_add_u32", c, P, "9", c)
    p.vop("v_lshl_add_u32", c, U, "3", c)
    p.vop("v_add_u32", V_WR, f"{STG + 4096}", c)
    p.vop("v_and_b32", b, "0xffffffcf", b)
    p.vop("v_bfe_u32", a, M, "2", "1")
    p.vop("v_lshlrev_b32", a, "1", a)
    p.vop("v_xor_b32", a, a, G)
    p.vop("v_lshl_add_u32", b, a, "4", b)
    p.vop("v_lshl_add_u32", V_AK, P, "13", b)
    p.vop("v_lshrrev_b32", a, "1", G)
    p.vop("v_lshlrev_b32", b, "10", a)
    p.vop("v_lshl_add_u32", b, R8, "6", b)
    p.vop("v_and_b32", c, "1", L)
    p.vop("v_lshl_add_u32", b, c, "3", b)
    p.vop("v_bfe_u32", c, L, "1", "1")
    p.vop("v_lshl_add_u32", b, c, "4", b)
    p.vop("v_and_b32", c, "1", G)
    p.vop("v_lshl_add_u32", b, c, "5", b)
    p.vop("v_lshl_add_u32", V_AV0, P, "13", b)
    p.vop("v_xor_b32", V_AV1, "32", V_AV0)
    p.vop("v_lshl_add_u32", a, U, "9", V_AV0)
    p.vop("v_xor_b32", b, "32", a)
    p.vop("v_xor_b32", c, "512", a)
    p.vop("v_xor_b32", d, "512", b)
    for i, r in enumerate((a, b, c, d)): p.vop("v_add_u32", V_AW + i, f"{WRING}", r)
    for n in range(4):
        for r in range(4): p.vop("v_mov_b32", QA(0, n, 7) + r, "0")
    for ops in (w_ops(2), x_ops(1), w_ops(3))[:3 - PRO]:
        for f, _ in ops: f(p)
    stamp(p, 23)
    return p

def R128(d, a, off): return lambda p: p.ds_read128(d, a, off)
def TR(d, a, off): return lambda p: p.ds_tr(d, a, off)

class Pool:
    def __init__(self, sc, base, n):
        self.sc = sc; self.regs = base if isinstance(base, list) else [base + 4 * k for k in range(n)]; n = len(self.regs); self.n = n; self.last = [None] * n; self.i = 0; self.frags = []
    def frag(self, tile, mk_reads, consumers, as_b=False):
        k = self.i % self.n; self.i += 1
        r = self.regs[k]
        war = self.last[k]
        for (d, o, c, tag) in consumers:
            if as_b: self.sc.mfma(d, o, r, c, tag)
            else: self.sc.mfma(d, r, o, c, tag)
        self.last[k] = consumers[-1][3]
        self.frags.append((tile, mk_reads(r), consumers[0][3], war))

LEAD = int(E("LEAD", "9"))
LEADB = int(E("LEADB", "8"))
BGAP = int(E("BGAP", "4"))

def sstamp(p):
    p.s(f"s_memrealtime s[{S_TM}:{S_TM+1}]")
    p.s(f"s_memtime s[{S_TM+2}:{S_TM+3}]")
    p.wait_lgkm0()
    p.s("s_mov_b32 s99, m0")
    p.s("s_mov_b32 m0, s93")
    p.s("s_add_u32 s93, s93, 1")
    p.raw(f"v_writelane_b32 v0, s{S_TM}, m0")
    p.raw(f"v_writelane_b32 v255, s{S_TM+2}, m0")
    p.s("s_mov_b32 m0, s99")

QT = [int(x) for x in E("QT", "").split(",") if x]
def qmod(name):
    p = Prog()
    KVS = [-1] * 4 + [int(x) for x in E("KVS", "37,0,0,36" if W39 else "37,0,0,0").split(",")]
    WSH = int(E("WSH", "38"))
    sc = Sched(p, budget=int(E("QBUD", "8")), late_extra=8)
    sc.group["dma"] = "vm"; sc.pace["vm"] = int(E("QPACE", "4"))
    sc.maxds = int(E("QMAXDS", "1"))
    pool = Pool(sc, A_QP, NPOOL)
    XS2 = lambda i, kh, n: (A_Q + 40 if i & 1 else V_S) + (kh * 5 + n) * 4
    for h in range(40):
        r = 1 - ((h >> 1) & 1); mh = h & 1
        for k in range(4):
            ns = list(range(5 if k < 2 else 4))
            if k % 2 == 0: ns.reverse()
            qa = lambda n: QA(r, n, 4 * mh + k if n < 4 else 2 * mh + k)
            for kh in range(2):
                off = (h % 4) * 16384 + kh * 4096
                cons = [(qa(n), XS2(h // 4, kh, n), qa(n) if (4 * h + k >= 15 or kh != (j & 1)) else None, ("Q", h, k, j, kh)) for j, n in enumerate(ns)]
                pool.frag(h, lambda rg: [TR(rg, V_AW + k, off), TR(rg + 2, V_AW + k, off + 2048)], cons)
            k0 = len(sc.m) - 2 * len(ns)
            sc.m[k0:] = sorted(sc.m[k0:], key=lambda x: (x[4][3], x[4][4] ^ (x[4][3] & 1)))
            for i in range(k0, len(sc.m)): sc.idx[sc.m[i][4]] = i
    mt = lambda i: sc.m[max(0, min(i, len(sc.m) - 1))][4]
    def xreads(i):
        return [R128(XS2(i, kh, n), (V_AX if i else V_AW + 4) + (n >> 2), (n if n < 4 else 8) * 2048 + kh * 512) for n in (4, 3, 2, 1, 0) for kh in range(2)]
    for fi, (h, reads, cons, war) in enumerate(pool.frags):
        c0 = 36 * h
        tau = c0 - LEADB
        taun = c0 + 36 - LEADB
        if fi % 8 == 0:
            def bar(p, h=h):
                p.comment(f"---- q step {h}")
                tags = [("W", h)]
                if h == 0: tags.append(("X", 0))
                if h % 4 == 3 and h < 39: tags.append(("X", (h + 1) // 4))
                if h % 4 == EKP[3] and 4 <= h < 36: tags.append(("WOP", h // 4 - 1))
                if QT and h % 4 in QT[3:] and h >= 1:
                    p.s(f"s_lshr_b32 s{S_TI}, s{S_TI}, 1")
                    p.s("s_cbranch_scc0 1")
                    p.raw(f"s_waitcnt vmcnt({QT[2]})")
                p.wait_vm(tags, lgkm0=True)
                if "b" not in ABL or h < 4: p.barrier()
                if h == 39 and W39:
                    for i in range(4): p.vop("v_add_u32", V_AW + i, "16384", V_AW + i)
                if PROF == 2 and h % 2 == 0: sstamp(p)
                if int(E("QSL", "0")) and (h < 3 or int(E("QSA", "0"))): p.raw(f"s_nop {int(E('QSL', '0'))}")
            ops = []
            if h % 4 == 0 and 4 <= h < 36: ops += x_ops(h // 4 + 1)
            if 1 <= h < 37: ops += w_ops(h + 3)
            if h == 0 and PRO: ops += sum([w_ops(2), x_ops(1), w_ops(3)][3 - PRO:], [])
            if int(E("XW", "0")) and h % 4 == 0 and 4 <= h < 36: ops = xw_ops(h // 4 + 1, h + 3)
            if "d" in ABL: ops = []
            nb = len(ops)
            if h < 36: ops = ek_ops(h) + ops if (str(h % 4) in E("EKF", "")) else ops + ek_ops(h)
            nb = len(ops) - nb
            if h % 4 == EKP[3] and 4 <= h < 36:
                for r in range(15, -1, -1): sc.fill("rw", lambda p, r=r: p.amov(A_Q + 4 + r, A_Q + r), 4, after=dict(tag=("BAR", h), delay=14))
                for i in range(2): sc.fill("rw", TR(A_Q + 2 * i, V_WR, i * 2048), 4, ds=True, before=mt(taun - BGAP), lead=2)
                sc.fill("rw", lambda p: p.vop("v_xor_b32", V_WR, "4096", V_WR), 4, before=mt(taun - 1))
            for k, x in enumerate(KVS):
                if x == h and h: ops += kv_ops(32 + k)
            if h == WSH and "S" not in ABL: ops += [(wst, 20)]
            sc.fill("rd", bar, 8, before=mt(tau), early=0 if h else None, tag=("BAR", h))
            QD = int(E("QD", "14")) - 4 * nb * int(E("QDE", "1")) if (len(ops) - nb <= 4 and h) else int(E("QD2", "0"))
            fill_dma(sc, ops, dict(tag=("BAR", h), delay=QD), mt(taun - 1), tag="WST" if h == WSH else None)
            if h == 0:
                for k, fn in enumerate(xreads(0)): sc.fill("rx", fn, 4, ds=True, after=("BAR", 0), before=mt(max(0, k - 5)))
            if h % 4 == 3 and h < 39:
                for j, fn in enumerate(xreads((h + 1) // 4)): sc.fill("rx", fn, 4, ds=True, after=("BAR", h), before=mt(taun - BGAP), lead=2 * (10 - j))
        for k, fn in enumerate(reads):
            if "r" in ABL and h >= 2: continue
            bf = cons
            if sc.idx[cons] > taun - BGAP: bf = mt(taun - BGAP)
            sc.fill("rd", fn, 4, ds=True, after=war if k == 0 else None, before=bf, lead=LEAD if bf is cons else 0, early=int(E("QEARLY", "99")))
    def lastbar(p):
        p.comment("---- q step 40")
        p.wait_lgkm0(); p.barrier()
        p.add(Ins(f"buffer_load_dwordx2 v[{V_NV}:{V_NV+1}], off, s[{SRD_DBG}:{SRD_DBG+3}], 0 sc1", "vml", [], [V_NV, V_NV + 1], tag="non"))
    sc.fill("rd", lastbar, 8, before=mt(36 * 40 - LEADB), early=0)
    def eaddr(p):
        p.v(f"v_lshl_add_u32 v{V_E0}, s{S_W}, 12, v{V_LIN}", [V_E0], [V_LIN])
        p.vop("v_add_u32", V_E0, f"{XRING}", V_E0)
        p.vop("v_xor_b32", V_E1, "4096", V_E0)
        p.vop("v_and_b32", V_E2, "0xfffffcf0", V_E0)
        p.vop("v_bfe_u32", V_T, V_LIN, "9", "1")
        p.vop("v_lshl_add_u32", V_E2, V_T, "8", V_E2)
        p.vop("v_bfe_u32", V_T, V_LIN, "8", "1")
        p.vop("v_lshl_add_u32", V_E2, V_T, "3", V_E2)
    z = Prog(); eaddr(z)
    for x in z.ins: sc.fill("fa", lambda p, x=x: p.add(x), 4, after=("BAR", 36))
    NH1, NH0 = [int(x) for x in E("NH", "10,3").split(",")]
    hid = [(1, n, t) for t in range(4) for n in range(4)][:NH1] + [(0, n, t) for t in range(2) for n in range(3)][:NH0]
    for k, (r, n, t) in enumerate(hid):
        done = dict(tag=mt(36 * (38 - 2 * r + (t >> 1)) + (20 if t % 2 == 0 else 36) - 1), delay=2)
        s0 = V_S + 8 * (k % 4) if r else QA(0, n, 2 * t)
        if r:
            for x in range(8): sc.fill("fa", lambda p, s0=s0, x=x, n=n, t=t: p.ar(s0 + x, QA(1, n, 2 * t + (x >> 2)) + (x & 3)), 4, after=[done] + ([("FP", k - 3)] if k >= 4 else []), tag=("FA", k) if x == 7 else None)
        def clump(p, k=k, s0=s0, prev=None if k == 0 else sprev):
            if k: p.ds_write2(V_E2, prev, 16384 + ((k - 1) % 4) * 1024)
            for x in range(0, 8, 2): p.pkmul(s0 + x, s0 + x, f"s[{S_CS}:{S_CS+1}]")
        sc.fill("fp", clump, 8, solo=True, after=[("FA", k) if r else done] + ([("FC", k - 1)] if k else []) + ([("FR", k - 5)] if k >= 5 else []), tag=("FP", k), before=mt(1439), lead=400)
        for x in range(4): sc.fill("fc", lambda p, s0=s0, x=x: p.cvtpk(s0 + x, s0 + 2 * x, s0 + 2 * x + 1), 4, after=("FP", k), tag=("FC", k) if x == 3 else None, before=mt(1439), lead=1)
        sc.fill("fr", R128(Qf(n, t, A_QN if r else A_Q), V_E0, 16384 + (k % 4) * 1024), 4, ds=True, after=[("FP", k + 1)] + ([] if r else ["WST"]), tag=("FR", k), before=mt(1439), lead=2)
        sprev = s0
    if hid: sc.fill("fp", lambda p: p.ds_write2(V_E2, sprev, 16384 + ((len(hid) - 1) % 4) * 1024), 8, solo=True, after=[("FC", len(hid) - 1)] + ([("FR", len(hid) - 5)] if len(hid) >= 5 else []), tag=("FP", len(hid)), before=mt(1439), lead=400)
    sc.run()
    stamp(p, 1)
    fstart = len(p.ins)
    TB = V_O + 144
    cnt = [0]
    def fin(r, n, t, i):
        s0 = QA(r, n, 2 * t)
        if r:
            tb = TB + 8 * (cnt[0] & 1); cnt[0] += 1
            for x in range(8): p.ar(tb + x, QA(r, n, 2 * t + (x >> 2)) + (x & 3))
            s0 = tb
        dst = V_S + 4 * i
        for x in range(0, 8, 2): p.pkmul(s0 + x, s0 + x, f"s[{S_CS}:{S_CS+1}]")
        for x in range(4): p.cvtpk(dst + x, s0 + 2 * x, s0 + 2 * x + 1)
        return dst
    for r in range(2):
        for t in range(2): p.ds_write2(V_E2, fin(r, 4, t, 2 * r + t), (2 * r + t) * 1024)
    left = [(r, n, t) for r in (1, 0) for n in range(4) for t in range(4) if (r, n, t) not in hid]
    FL = [int(x) for x in E("FLD", "02")]
    for g0 in range(0, len(left), 4):
        ds = {}; rd = []
        for j, (r, n, t) in enumerate(left[g0:g0 + 4]):
            d = fin(r, n, t, 4 + (g0 & 4) + j); q = Qf(n, t, A_QN if r else A_Q)
            if j in FL: p.ds_write2(V_E2, d, 16384 + j * 1024); rd.append((q, j))
            else: ds[q] = d
        for f in (p.swap32, p.swap16):
            for d in ds.values(): f(d, d + 2); f(d + 1, d + 3)
        for q, j in rd: p.ds_read128(q, V_E0, 16384 + j * 1024)
        for q, d in ds.items():
            for x in range(4): p.aw(q + x, d + x)
        if g0 == 4:
            p.raw(f"s_waitcnt lgkmcnt({2 * len(FL)})"); p.barrier()
            for r in range(2):
                for t in range(2): p.ds_read128(Qf(4, 2 * t, A_QN if r else A_Q), V_E0, (2 * r + t) * 1024)
                for t in range(2): p.ds_read128(Qf(4, 2 * t + 1, A_QN if r else A_Q), V_E1, (2 * r + t) * 1024)
    p.vop("v_mov_b32", V_T, "0x3f803f80")
    for r in range(4): p.aw(A_ONE + r, V_T)
    sprinkle([(p, fstart)], sum([kv_ops(32 + k) for k in range(4, 8 - T7) if KVS[k] == 0], []), 0.0, float(E("QSH", "1.0")))
    stamp(p, 26)
    get_nonce(p, f"{name}_n1", V_T)
    stamp(p, 27)
    p.wait_vm("wst")
    stamp(p, 28)
    publish(p, f"s{S_WFP}", 0, V_T)
    stamp(p, 29)
    z = p
    z.s(f"s_lshl_b32 s{S_PF}, s{S_U}, 12")
    z.s(f"s_lshl_b32 s{S_T1}, s{S_G}, 9")
    z.s(f"s_add_u32 s{S_PF}, s{S_PF}, s{S_T1}")
    z.s(f"s_add_u32 s{S_PF}, s{S_PF}, {WFLG}")
    z.vop("v_lshrrev_b32", V_AX, "1", V_LIN)
    for n in range(5): z.vop("v_mov_b32", V_DA + n, f"{DROP:#x}")
    ti_init(z, 0)
    stamp(z, 2)
    return p

def a_mfmas(sc, pool, qh):
    AV = (V_AV0, V_AV1)
    has8 = lambda u: (u & 1) == qh
    for pos, (kind, u) in enumerate(KVSEQ):
        sb = (pos % 4) * 16384
        ns = [0, 1, 2, 3] + ([4] if has8(u) else [])
        if kind == "K":
            for kt in range(2):
                for ks in range(4):
                    off = sb + kt * 2048 + (ks >> 1) * 4096 + ((ks & 1) ^ qh) * 512
                    cons = []
                    for n in ns:
                        d = XS(u & 1, n) if kt == 0 else YS(n)
                        cons.append((d, Qf(n, ks), d if ks else None, ("S", u, kt, ks, n)))
                    pool.frag(pos, lambda r: [R128(r, V_AK, off)], cons)
                SCH = int(E("SCH", "4"))
                k0 = len(sc.m) - 4 * len(ns)
                sc.m[k0:] = sorted(sc.m[k0:], key=lambda x: (x[4][3] // SCH, x[4][4], x[4][3]))
                for k in range(k0, len(sc.m)): sc.idx[sc.m[k][4]] = k
        else:
            first = lambda n: u == 0 if n < 4 else u == qh
            for n in ns: sc.mfma(La(n), A_ONE, XS(u & 1, n), None if first(n) else La(n), ("L", u, n))
            for m in range(8):
                e, mp = m & 1, m >> 1
                off = sb + (mp >> 1) * 4096 + (mp & 1) * 512
                oa = lambda n: Oa(n, m if n < 4 else m ^ (4 * qh))
                cons = [(oa(n), XS(u & 1, n), None if first(n) else oa(n), ("PV", u, m, n)) for n in ns]
                if int(E("SNK", "1")) and m % 2 == 0: cons.reverse()
                pool.frag(pos, lambda r: [TR(r, AV[e], off), TR(r + 2, AV[e], off + 2048)], cons)

def a_taus():
    cs = []
    for qh in range(2):
        sc = Sched(Prog()); pool = Pool(sc, A_POOL, NPOOL); a_mfmas(sc, pool, qh)
        c = {}
        for (pos, _, cons, _) in pool.frags: c.setdefault(pos, sc.idx[cons])
        c[32] = len(sc.m) + LEADB - 3
        cs.append(c)
    return [min(cs[0][j], cs[1][j]) - LEADB for j in range(33)]

def aentry(name):
    p = Prog()
    p.label(f"{name}_A")
    p.s(f"s_mov_b32 s{S_KB}, s{S_KVN}")
    p.s(f"s_mov_b32 s{SRD_C+2}, 0x8000000")
    p.s(f"s_add_u32 s{S_KVN}, s{S_KVN}, {2 << 17}")
    p.s(f"s_cmp_eq_u32 s{S_PH}, 0")
    p.s(f"s_cselect_b32 s{S_M0KVP}, s{S_M0KV}, {DROP:#x}")
    p.s(f"s_cselect_b32 s{S_M0KVP+1}, s{S_M0W}, {DROP:#x}")
    p.s(f"s_cselect_b32 s{S_KVP}, s{S_KVN}, {OOB:#x}")
    p.s(f"s_cselect_b32 s{S_WT2}, {OOB:#x}, s{S_WT}")
    p.s(f"s_cmp_eq_u32 s{S_U}, 1")
    p.s(f"s_cbranch_scc1 {name}_A1")
    return p

def tile_addr(p, base, dst):
    p.s(f"s_cmp_lt_u32 s{S_G}, 5")
    p.s(f"s_cselect_b32 s{S_T0}, 1, 0")
    p.s(f"s_xor_b32 s{S_T0}, s{S_T0}, s{S_U}")
    p.v(f"v_lshl_add_u32 v{dst}, s{S_T0}, 12, v{base}", [dst], [base])
    for n in range(1, 4): p.vop("v_add_u32", dst + n, f"{1024 * n}", dst)

S_TI = 96
TI = [[tuple(int(x) for x in y.split("+")) for y in z.split(",")] for z in E("TI", "0+0,4+7;0+0,2+3").split(";")]
def ti_init(p, r):
    for k, (b, sp) in enumerate(TI[r]):
        if b < 0 or TI[0][k] == (0, 0): continue
        p.s(f"s_add_u32 s{S_T0}, s{S_B}, " + (f"s{S_G}" if int(E("TIG", "1")) else "0"))
        p.s(f"s_and_b32 s{S_T0}, s{S_T0}, {sp}" if sp >= 0 else f"s_andn2_b32 s{S_T0}, {-sp}, s{S_T0}")
        p.s(f"s_add_u32 s{S_T0}, s{S_T0}, {b}")
        p.s(f"s_lshl_b32 s{S_TI + k}, 1, s{S_T0}")
WLP = [int(x) for x in E("WLP", "0,0,0,1,1,1,2,2,2,3,3,3").split(",")]
AVT = [int(x) for x in E("AVT", "").split(",") if x]
def avm(pos, last=False):
    if pos >= 30: return None
    pat = [int(x) for x in E("AVM", "3,4").split(",")]
    h = [int(x) for x in E("AVMH", "").split(",") if x]
    if pos < len(h): return h[pos]
    if last and pos >= 30 - len(AVT): return AVT[pos - 30]
    return pat[pos % len(pat)] + WLP.count(pos - 1) * int(E("WLC", "1"))
RQ = [int(x) for x in E("RQH", "3,3,3,3" if T7 else "0,3,3,2").split(",")] + [int(x) for k in "123" for x in E("RQ" + k, "43434343")] + [int(x) for x in E("RQT", "4,4,4,4").split(",")]
STREAM = sum([kv_ops(k) for k in range(8 - T7, 40 - T7)], [])
for s_ in range(32): assert sum(RQ[:s_ + 1]) <= 4 * (s_ + T7)
def amod(name, qh):
    p = Prog()
    p.label(f"{name}_A{qh}")
    sc = Sched(p, budget=int(E("ABUD", "8")), late_extra=int(E("ALATE", "8")))
    sc.group["dma"] = "vm"; sc.pace["vm"] = int(E("APACE", "2"))
    sc.maxds = int(E("AMAXDS", "1")); sc.noed = bool(int(E("NOED", "0"))); ASOLO = bool(int(E("ASOLO", "1")))
    pool = Pool(sc, A_POOL, NPOOL)
    a_mfmas(sc, pool, qh)
    tau = a_taus()
    mt = lambda i: sc.m[max(0, min(i, len(sc.m) - 1))][4]
    def add_bar(pos):
        def bar(p, pos=pos):
            p.comment(f"---- a step {pos}")
            if 30 - len(AVT) <= pos < 30:
                p.s(f"s_cmp_eq_u32 s{S_PH}, 0")
                p.s("s_cbranch_scc0 1")
                p.raw(f"s_waitcnt vmcnt({avm(pos)})")
            elif TI[0][pos % 2] != (0, 0) and pos < 30:
                p.s(f"s_lshr_b32 s{S_TI + pos % 2}, s{S_TI + pos % 2}, 1")
                p.s("s_cbranch_scc0 1")
                p.raw(f"s_waitcnt vmcnt({avm(pos) - int(E('TD', '1'))})")
            if pos < 32: p.wait_vm(KVSEQ[pos], lgkm0=True, cap=avm(pos, True))
            else: p.wait_lgkm0()
            p.barrier()
            if pos % 4 == 0 and pos:
                for r in (V_AV0, V_AV1, V_AK): p.vop("v_xor_b32", r, "0x10000", r)
            if PROF == 3 and pos % 2 == 0 and pos < 32: sstamp(p)
        sc.fill("rd", bar, 8, before=mt(tau[pos]), early=0 if pos else None, tag=("BAR", pos))
        if pos < 32:
            ops = STREAM[sum(RQ[:pos]):sum(RQ[:pos + 1])]
            aft = ("BAR", pos); bf = mt(tau[pos + 1] - 1)
            span = tau[pos + 1] - max(tau[pos], 0)
            if pos in CPA: ops = [(code_touch, 8)] + ops
            if pos == WTP: ops = [(lambda p: w_touch(p, 0), 8), (lambda p: w_touch(p, 64), 8)][:WTN] + ops
            for k, op in enumerate(ops): fill_dma(sc, [op], dict(tag=aft, delay=(k * (span - 2)) // len(ops)), bf, solo=ASOLO)
            for k in [k for k in range(12) if WLP[k] == pos]:
                for fn, kind, cost in split_ops([(wload(0, k, S_T2, S_WT2), 8)]):
                    sc.fill("dmp", fn, 8 if (kind == "vm" and ASOLO) else 4, after=dict(tag=aft, delay=(5 if WLP.count(pos) > 1 else 20) + 9 * (k - WLP.index(pos))), solo=(kind == "vm" and ASOLO), before=bf, lead=20)
            if pos == 30:
                WLS = int(E("WLS", "6"))
                last = ("S", 15, 1, 3, 4 if qh == 1 else 3)
                for k in range(12):
                    for fn, kind, cost in split_ops([(wload(0, 12 + k, S_T2, S_WT2), 8)]):
                        sc.fill("dmp", fn, 8 if (kind == "vm" and ASOLO) else 4, after=dict(tag=last, delay=2 + WLS * k), solo=(kind == "vm" and ASOLO), before=mt(sc.idx[last] + 12 + WLS * k), lead=9)
            if 26 <= pos < 30:
                t = pos - 26
                ws = [(V_DA + n, Qf(n, t, A_QN), t * 18432 + 1024) for n in range(4)]
                if t >> 1 == qh: ws.append((V_DA + 4, Qf(4, t & 1, A_QN), (t & 1) * 18432))
                for k, w in enumerate(ws):
                    sc.fill("dw", lambda p, w=w: p.ds_write(w[0], w[1], 4, w[2]), 8, solo=True, after=dict(tag=aft, delay=4 + k * ((span - 10) // len(ws))), before=mt(tau[pos + 1] - BGAP), lead=12)
            if pos == 31:
                for f in range(8): sc.fill("dw", R128(P0_B[f], V_LIN, IMG(f)), 4, ds=True, after=dict(tag=aft, delay=16 + 2 * f), before=mt(tau[32] - BGAP), lead=4)
    cur = None
    for (pos, reads, cons, war) in pool.frags:
        if pos != cur:
            cur = pos; add_bar(pos)
        for k, fn in enumerate(reads):
            bf = cons
            if sc.idx[cons] > tau[pos + 1] - BGAP: bf = mt(tau[pos + 1] - BGAP)
            sc.fill("rd", fn, 4, ds=True, after=war if k == 0 else None, before=bf, lead=LEAD if bf is cons else 0)
    add_bar(32)
    def V(fn, after=None, before=None, cost=4, lead=0): sc.fill("va", fn, cost, after=after, before=before, lead=lead)
    EDL = int(E("EDL", "3"))
    for u in range(16):
        ns = [0, 1, 2, 3] + ([4] if (u & 1) == qh else [])
        for kt in range(2):
            for n in ns:
                src = XS(u & 1, n) if kt == 0 else YS(n)
                dst = XS(u & 1, n) + 2 * kt
                for r in range(4):
                    V(lambda p, reg=src + r: p.exp(reg, reg), after=dict(tag=("S", u, kt, 3, n), delay=EDL), cost=8)
                bf = ("L", u, n)
                if kt == 1 and n < 4 and u < 15: bf = ("S", u + 1, 1, 0, n)
                V(lambda p, dst=dst, src=src: p.cvtpk(dst, src, src + 1))
                V(lambda p, dst=dst, src=src: p.cvtpk(dst + 1, src + 2, src + 3), before=bf, lead=2)
    sc.run()
    p.s(f"s_cmp_eq_u32 s{S_PH}, 0")
    p.s(f"s_cbranch_scc0 {name}_P0")
    if qh == 0: p.s(f"s_branch {name}_F")
    return p

RL, CHK, PX, AD, AL = V_S + 2, V_S + 12, V_S + 16, V_S + 48, V_S + 50
def f_addr(p):
    p.v(f"v_lshl_add_u32 v{AD}, s{S_W}, 12, v{V_LIN}", [AD], [V_LIN])
    p.vop("v_add_u32", AD, f"{MISC}", AD)
    p.vop("v_xor_b32", AD + 1, "4096", AD)
def f_bad(op, a, b):
    def f(p):
        p.add(Ins(f"{op} vcc, v{a}, {b}", "valu", [a], []))
        p.s(f"s_or_b64 s[{S_BAD}:{S_BAD+1}], s[{S_BAD}:{S_BAD+1}], vcc")
    return f
def f_rcp(n): return [lambda p: p.vop("v_rcp_f32", RL + 2 * n, RL + 2 * n, kind="trans"), lambda p: p.vop("v_mov_b32", RL + 2 * n + 1, RL + 2 * n)]
def f_range():
    return [lambda p: p.vop("v_max3_f32", V_S, RL, RL + 2, RL + 4), lambda p: p.vop("v_min3_f32", V_S + 1, RL, RL + 2, RL + 4),
            lambda p: p.vop("v_max3_f32", V_S, V_S, RL + 6, RL + 8), lambda p: p.vop("v_min3_f32", V_S + 1, V_S + 1, RL + 6, RL + 8),
            f_bad("v_cmp_nle_f32", V_S, f"s{S_HI}"), f_bad("v_cmp_nge_f32", V_S + 1, f"s{S_LO}")]
def f_fin(): return [lambda p: p.s(f"s_movk_i32 s{S_T2}, 0x207"), f_bad("v_cmp_class_f32", CHK, f"s{S_T2}")]
def f_norm(n, t):
    s0 = Oa(n, 2 * t)
    add = [lambda p, r=r: p.add(Ins(f"v_pk_add_f32 {vr(s0 + r, 2)}, {vr(s0 + r, 2)}, {vr(PX + 8 * t + r, 2)}", "valu", R(s0 + r, 2) | R(PX + 8 * t + r, 2), R(s0 + r, 2))) for r in range(0, 8, 2)] if n == 4 else []
    return add + [lambda p, r=r: p.pkmul(s0 + r, s0 + r, RL + 2 * n) for r in range(0, 8, 2)], [lambda p, r=r: p.cvtpk(s0 + r, s0 + 2 * r, s0 + 2 * r + 1) for r in range(4)]
def f_l8(): return [lambda p: p.vop("v_add_f32", RL + 8, RL + 8, V_S)] + f_rcp(4)
UNITS = [(n, t) for n in (0, 1, 2, 4, 3) for t in range(4 if n < 4 else 2)]
def afin(name):
    p = Prog()
    p.label(f"{name}_F")
    stamp(p, 5)
    poll_issue(p, V_AX, f"s{S_PF}", 0, V_NV)
    f_addr(p)
    for i in range(4): p.ds_write(AD + 1, Oa(4, 4 + i), 4, i * 1024)
    for i in range(2): p.vop("v_subrev_u32", AL + i, "16384", AD + i)
    p.ds_write(AL + 1, La(4), 1, 0)
    for n in range(5): p.ar(RL + 2 * n, La(n))
    for k in range(2):
        for n in range(4): f_rcp(n)[k](p)
    p.wait_lgkm0()
    for k, (n, t) in enumerate(UNITS):
        if k == 4:
            p.barrier()
            for i in range(4): p.ds_read128(PX + 4 * i, AD, i * 1024)
            p.ds_read32(V_S, AL, 0)
        if k == 11:
            for f in f_l8(): f(p)
        for f in sum(f_norm(n, t), []): f(p)
    for f in f_range(): f(p)
    p.s(f"s_mov_b32 s{S_PH}, 1")
    stamp(p, 6)
    for r in range(80):
        if r % 4 == 0 and r < 72: p.mfma(CHK, A_ONE, Oa(UNITS[r // 4][0], 2 * UNITS[r // 4][1]), CHK if r else None)
        p.amov(A_Q + r, A_QN + r)
    for n, t in UNITS:
        for r in range(4): p.aw(Qf(n, t, A_QN) + r, Oa(n, 2 * t) + r)
    for f in f_fin(): f(p)
    sprinkle([(p, 8)], STREAM[sum(RQ):], 0.0, float(E("ASH", "0.7")))
    code_touch(p)
    p.s(f"s_mul_i32 s{S_T0}, s{S_P}, 9216")
    p.vop("v_add_u32", V_DA + 4, f"s{S_T0}", V_LIN)
    tile_addr(p, V_DA + 4, V_DA)
    p.s(f"s_mul_i32 s{S_T0}, s{S_U}, 36864")
    p.vop("v_add_u32", V_DA + 4, f"s{S_T0}", V_DA + 4)
    psetup(p)
    ti_init(p, 1)
    poll_check(p, f"{name}_wpoll", V_AX, f"s{S_PF}", 0, V_NV)
    if int(E("GX", "0")):
        p.s(f"s_cmp_lt_u32 s2, 128")
        p.s(f"s_cbranch_scc1 {name}_A")
        p.s(f"s_mov_b32 s{S_LOOP}, {int(E('GX')) // 36 - 1}")
        p.s(f"s_mov_b32 s{S_T1}, s{S_WT}")
        p.label(f"{name}_gx")
        for i in range(36):
            a = V_O + 8 * ((i // 8) % 4) + 4 * ((i >> 2) & 1)
            p.raw(f"v_mfma_f32_16x16x32_bf16 v[{a}:{a+3}], a[{4 * (i % 20)}:{4 * (i % 20) + 3}], v[{V_O + 40 + 4 * (i % 16)}:{V_O + 43 + 4 * (i % 16)}], v[{a}:{a+3}]")
            if i % 2 == 0: p.raw(f"ds_read_b128 v[{V_O + 40 + 4 * ((i + 8) % 16)}:{V_O + 43 + 4 * ((i + 8) % 16)}], v{V_LIN} offset:{i * 1024}")
            elif i % 9 == 4 or i % 18 == 9: p.raw(f"buffer_load_dwordx4 v[{V_O + 112 + 4 * (i % 8)}:{V_O + 115 + 4 * (i % 8)}], v{V_LIN}, s[{SRD_WS}:{SRD_WS+3}], s{S_T1} offen offset:{(i % 2) * 1024} sc1")
            elif i in (7, 25): p.raw(f"buffer_store_dwordx4 v[{V_O+4}:{V_O+7}], v{V_LIN}, s[{SRD_WS}:{SRD_WS+3}], s{S_T0} offen offset:{1024 * (i > 7)}")
            if i == 1:
                p.s(f"s_lshl2_add_u32 s{S_T0}, s2, s{S_W}")
                p.s(f"s_mul_i32 s{S_T0}, s{S_T0}, 24")
                p.s(f"s_add_u32 s{S_T0}, s{S_T0}, s{S_LOOP}")
            if i == 3:
                p.s(f"s_lshl_b32 s{S_T0}, s{S_T0}, 11")
                p.s(f"s_add_u32 s{S_T0}, s{S_T0}, 0x6000000")
            if i == 35: p.s(f"s_add_u32 s{S_T1}, s{S_T1}, 8192")
        p.s(f"s_sub_u32 s{S_LOOP}, s{S_LOOP}, 1")
        p.s(f"s_cbranch_scc0 {name}_gx")
        p.raw("s_waitcnt vmcnt(0) lgkmcnt(0)")
        p.raw("s_nop 7")
        stamp(p, 10)
    p.s(f"s_branch {name}_A")
    return p

P_R = ([A_X + 4 * i for i in range(10)] + [10, 14] + [A_Q + 4 * i for i in range(20)],
       [A_L + 4 * i for i in range(5)] + [A_POOL + 4 * i for i in range(6)] + [A_QN + 64 + 4 * i for i in range(4)] + [A_QN + 4 * i for i in range(16)] + [A_ONE])
P0_B = P_R[0][24:] + [A_QN + 4 * (i % 16) for i in range(64)]
def wload(j, i, so=None, sb=None, extra=0):
    def f(p):
        if i % 2 == 0: p.s(f"s_add_u32 s{so or S_SO}, s{sb or S_WT}, {(i >> 1) * 40960 + extra}")
        if "B" not in ABL: p.load4(P_R[j & 1][i], V_LIN, SRD_WS, f"s{so or S_SO}", (i & 1) * 1024, ("WT", j, i), "sc1")
    return f

def slow(name):
    SI, SC, SX, SWq, SKV, SD, SK = 56, 57, 58, 59, 88, 89, 90
    VW, VX, VK, VV_, VD = 28, 36, 37, 38, 39
    MX, NM, LA, QF, SS, FB, AC, RAW, FR = 40, 44, 48, 52, 68, 76, 84, 116, 180
    def ld(p, op, n, d, vo, srd, so, off):
        p.add(Ins(f"{op} {vr(d, n)}, v{vo}, s[{srd}:{srd+3}], s{so} offen offset:{off}", "vml", [vo], R(d, n), tag="sl"))
    p0 = Prog()
    p0.label(f"{name}_slow")
    p0.wait_all()
    M, G = MX, MX + 1
    p0.vop("v_bfe_u32", M, V_LIN, "4", "4")
    p0.vop("v_lshrrev_b32", G, "8", V_LIN)
    p0.vop("v_lshlrev_b32", VW, "16", G)
    p0.vop("v_lshl_add_u32", VW, M, "1", VW)
    for i in range(1, 8): p0.vop("v_add_u32", VW + i, f"{8192 * i}", VW)
    p0.s(f"s_movk_i32 s{S_T0}, 1280")
    p0.vop("v_mul_lo_u32", VX, M, f"s{S_T0}")
    p0.vop("v_lshl_add_u32", VX, G, "4", VX)
    p0.vop("v_lshlrev_b32", VK, "8", M)
    p0.vop("v_lshl_add_u32", VK, G, "3", VK)
    p0.vop("v_lshlrev_b32", VV_, "10", G)
    p0.vop("v_lshl_add_u32", VV_, M, "1", VV_)
    p0.s(f"s_mov_b32 s{SI}, 0")
    p1 = Prog()
    p1.label(f"{name}_sl_it")
    p1.s(f"s_cmp_ge_u32 s{SI}, 5")
    p1.s(f"s_cselect_b32 s{S_T0}, 2, 0")
    p1.s(f"s_cselect_b32 s{S_T1}, 5, 0")
    p1.s(f"s_cselect_b32 s{SD}, {73728}, 0")
    p1.s(f"s_sub_u32 s{S_T1}, s{SI}, s{S_T1}")
    p1.s(f"s_add_u32 s{S_T0}, s{S_T0}, s{S_P}")
    p1.s(f"s_mul_i32 s{S_T2}, s{S_P}, 9216")
    p1.s(f"s_add_u32 s{SD}, s{SD}, s{S_T2}")
    p1.s(f"s_lshl_b32 s{S_T2}, s{S_G}, 2")
    p1.s(f"s_add_u32 s{S_T0}, s{S_T0}, s{S_T2}")
    p1.s(f"s_lshl_b32 s{SWq}, s{S_T0}, 8")
    p1.s(f"s_lshl_b32 s{S_T2}, s{S_B}, 5")
    p1.s(f"s_add_u32 s{S_T0}, s{S_T0}, s{S_T2}")
    p1.s(f"s_lshl_b32 s{SKV}, s{S_T0}, 17")
    p1.s(f"s_lshl_b32 s{S_T0}, s{S_U}, 2")
    p1.s(f"s_add_u32 s{S_T0}, s{S_T0}, s{S_T1}")
    p1.s(f"s_cmp_lt_u32 s{S_G}, 5")
    p1.s(f"s_cselect_b32 s{S_T2}, 4, 0")
    p1.s(f"s_xor_b32 s{S_T2}, s{S_T2}, s{S_T0}")
    p1.s(f"s_add_u32 s{S_T2}, s{S_T2}, 1")
    p1.s(f"s_cmp_eq_u32 s{S_T1}, 4")
    p1.s(f"s_cselect_b32 s{S_T0}, 8, s{S_T0}")
    p1.s(f"s_cselect_b32 s{S_T2}, 0, s{S_T2}")
    p1.s(f"s_lshl_b32 s{S_T2}, s{S_T2}, 10")
    p1.s(f"s_add_u32 s{SD}, s{SD}, s{S_T2}")
    p1.vop("v_add_u32", VD, f"s{SD}", V_LIN)
    p1.s(f"s_mul_i32 s{S_T2}, s{S_B}, 9")
    p1.s(f"s_add_u32 s{S_T0}, s{S_T0}, s{S_T2}")
    p1.s(f"s_mul_i32 s{SX}, s{S_T0}, {16 * 1280}")
    for r in range(32): p1.vop("v_mov_b32", AC + r, "0")
    p1.s(f"s_mov_b32 s{SC}, 0")
    def pack(p):
        for r in range(32): p.vop("v_lshl_or_b32", FR + r, RAW + 2 * r + 1, "16", RAW + 2 * r)
    def loop_end(p, lab, n):
        p.s(f"s_add_u32 s{SC}, s{SC}, 1")
        p.s(f"s_cmp_lt_u32 s{SC}, {n}")
        p.s(f"s_cbranch_scc1 {lab}")
    p2 = Prog()
    p2.label(f"{name}_sl_q")
    ld(p2, "buffer_load_dwordx4", 4, FB, VX, SRD_X, SX, 0)
    for m in range(8):
        for i in range(8): ld(p2, "buffer_load_ushort", 1, RAW + 8 * m + i, VW + i, SRD_W, SWq, 32 * m)
        if m == 3: p2.wait_all()
    p2.wait_all()
    pack(p2)
    for m in range(8): p2.mfma(AC + 4 * m, FR + 4 * m, FB, AC + 4 * m)
    p2.s(f"s_add_u32 s{SX}, s{SX}, 64")
    p2.s(f"s_add_u32 s{SWq}, s{SWq}, {32 * 8192}")
    loop_end(p2, f"{name}_sl_q", 20)
    p3 = Prog()
    for r in range(32): p3.vop("v_mul_f32", AC + r, f"s{S_CS}", AC + r)
    for r in range(16): p3.cvtpk(QF + r, AC + 2 * r, AC + 2 * r + 1)
    for r in range(32): p3.vop("v_mov_b32", AC + r, "0")
    for r in range(4): p3.vop("v_mov_b32", LA + r, "0")
    p3.vop("v_mov_b32", MX, "0xff800000")
    p3.s(f"s_mov_b32 s{SK}, s{SKV}")
    p3.s(f"s_mov_b32 s{SC}, 0")
    def kfrags(p, dst, so):
        for ks in range(4):
            ld(p, "buffer_load_dwordx2", 2, dst + 4 * ks, VK, SRD_K, so, 64 * ks)
            ld(p, "buffer_load_dwordx2", 2, dst + 4 * ks + 2, VK, SRD_K, so, 64 * ks + 32)
    p4 = Prog()
    p4.label(f"{name}_sl_m")
    kfrags(p4, FR, SK)
    p4.wait_all()
    for ks in range(4): p4.mfma(SS, FR + 4 * ks, QF + 4 * ks, SS if ks else None)
    p4.vop("v_max3_f32", MX, MX, SS, SS + 1)
    p4.vop("v_max3_f32", MX, MX, SS + 2, SS + 3)
    p4.s(f"s_add_u32 s{SK}, s{SK}, 4096")
    loop_end(p4, f"{name}_sl_m", 32)
    p5 = Prog()
    for sw in (p5.swap32, p5.swap16):
        p5.vop("v_mov_b32", MX + 1, MX)
        sw(MX, MX + 1)
        p5.vop("v_max_f32", MX, MX, MX + 1)
    for r in range(4): p5.vop("v_sub_f32", NM + r, "0", MX)
    p5.s(f"s_mov_b32 s{SC}, 0")
    p6 = Prog()
    p6.label(f"{name}_sl_a")
    p6.s(f"s_add_u32 s{SK}, s{SKV}, 4096")
    kfrags(p6, FR, SKV)
    kfrags(p6, FR + 16, SK)
    p6.wait_all()
    for m in range(8):
        for i in range(8): ld(p6, "buffer_load_ushort", 1, RAW + 8 * m + i, VV_, SRD_V, SK if i >= 4 else SKV, 32 * m + 256 * (i & 3))
        if m == 3: p6.wait_all()
    for kt in range(2):
        for ks in range(4): p6.mfma(SS + 4 * kt, FR + 16 * kt + 4 * ks, QF + 4 * ks, SS + 4 * kt if ks else NM)
    for r in range(8): p6.exp(SS + r, SS + r)
    for r in range(4): p6.cvtpk(FB + r, SS + 2 * r, SS + 2 * r + 1)
    p6.wait_all()
    pack(p6)
    p6.mfma(LA, A_ONE, FB, LA)
    for m in range(8): p6.mfma(AC + 4 * m, FR + 4 * m, FB, AC + 4 * m)
    p6.s(f"s_add_u32 s{SKV}, s{SKV}, 8192")
    loop_end(p6, f"{name}_sl_a", 16)
    p7 = Prog()
    p7.vop("v_rcp_f32", LA, LA, kind="trans")
    for r in range(32): p7.vop("v_mul_f32", AC + r, AC + r, LA)
    for r in range(16): p7.cvtpk(QF + r, AC + 2 * r, AC + 2 * r + 1)
    for hf in range(2):
        p7.s(f"s_cmp_eq_u32 s{S_U}, {hf}")
        p7.s(f"s_cselect_b32 s{S_T0}, 0, s{S_T1}")
        p7.s(f"s_cmp_eq_u32 s{S_T0}, 4")
        p7.s(f"s_cbranch_scc1 {name}_sl_s{hf}")
        for t in (2 * hf, 2 * hf + 1): p7.ds_write(VD, QF + 4 * t, 4, t * 18432)
        p7.label(f"{name}_sl_s{hf}")
    p7.wait_all()
    p7.s(f"s_add_u32 s{SI}, s{SI}, 1")
    p7.s(f"s_cmp_lt_u32 s{SI}, 10")
    p7.s(f"s_cbranch_scc1 {name}_sl_it")
    p7.s(f"s_branch {name}_P2")
    body = [p1, p2, p2, p3, p4, p4, p5, p6, p6, p7]
    return [p0, p1, p2, p3, p4, p5, p6, p7], [p0] + body + body

S_ST = 62
S_PC, S_FO, S_PO = 71, 72, 73
S_OF = (4, 5, 6, 7, 74)
S_JA, S_JC, S_JO, S_WE = 77, 83, 52, 101
S_JE, S_EO = (79, 80), (61, 100)
def psetup(p):
    C, J, BW, OW = S_TM, S_TM + 1, S_TM + 2, S_TM + 3
    p.s(f"s_mul_i32 s{BW}, s{S_B}, {PARTB}")
    p.s(f"s_lshl_b32 s{S_T1}, s{S_W}, 11")
    p.s(f"s_add_u32 s{BW}, s{BW}, s{S_T1}")
    p.s(f"s_add_u32 s{BW}, s{BW}, {PART}")
    p.s(f"s_mul_i32 s{OW}, s{S_B}, {144 * 1280}")
    p.s(f"s_lshl_b32 s{S_T1}, s{S_W}, 6")
    p.s(f"s_add_u32 s{OW}, s{OW}, s{S_T1}")
    p.s(f"s_sub_u32 s{S_T0}, s{S_G}, 5")
    p.s(f"s_cselect_b32 s{C}, s{S_G}, s{S_T0}")
    p.s(f"s_cselect_b32 s{J}, 0, 1")
    p.s(f"s_add_u32 s{S_ST}, s{BW}, {8 * 81920}")
    p.s(f"s_mul_i32 s{S_T0}, s{J}, {4 * 81920}")
    p.s(f"s_add_u32 s{S_ST+5}, s{BW}, s{S_T0}")
    p.s(f"s_sub_u32 s{S_ST+1}, s{BW}, s{S_T0}")
    p.s(f"s_add_u32 s{S_ST+1}, s{S_ST+1}, {4 * 81920}")
    for i in (2, 3, 4, 6, 7, 8): p.s(f"s_add_u32 s{S_ST+i}, s{S_ST+i-1}, 81920")
    p.s(f"s_lshl_b32 s{S_T0}, s{C}, 13")
    p.s(f"s_add_u32 s{S_JA}, s{S_ST+5}, s{S_T0}")
    p.s(f"s_mul_i32 s{S_JO}, s{J}, {64 * 1280}")
    p.s(f"s_add_u32 s{S_JO}, s{S_JO}, s{OW}")
    p.s(f"s_lshl_b32 s{S_T0}, s{C}, 8")
    p.s(f"s_add_u32 s{S_JO}, s{S_JO}, s{S_T0}")
    p.s(f"s_mul_i32 s{S_WE}, s{S_G}, {16 * 40960}")
    p.s(f"s_lshl_b32 s{S_T0}, s{S_W}, 11")
    p.s(f"s_add_u32 s{S_WE}, s{S_WE}, s{S_T0}")
    for k in range(5):
        p.s(f"s_add_u32 s{C}, s{C}, 1")
        p.s(f"s_cmp_eq_u32 s{C}, 5")
        p.s(f"s_cselect_b32 s{C}, 0, s{C}")
        if k == 0:
            p.s(f"s_lshl_b32 s{S_WT}, s{C}, 13")
            p.s(f"s_add_u32 s{S_WT}, s{S_WT}, s{S_WE}")
            p.s(f"s_add_u32 s{S_WE}, s{S_WE}, 40960")
        p.s(f"s_and_b32 s{S_T0}, s{J}, 1")
        p.s(f"s_lshl3_add_u32 s{S_T0}, s{C}, s{S_T0}")
        p.s(f"s_lshl_b32 s{S_OF[k]}, s{S_T0}, 10")
        if k:
            p.s(f"s_bitcmp1_b32 s{J}, 1")
            p.s(f"s_cselect_b32 s{S_T0}, 40960, 0")
            p.s(f"s_add_u32 s{S_OF[k]}, s{S_OF[k]}, s{S_T0}")
        if k > 1:
            p.s(f"s_bitcmp1_b32 s{J}, 2")
            p.s(f"s_cselect_b32 s{S_T0}, {AREA}, 0")
            p.s(f"s_add_u32 s{S_OF[k]}, s{S_OF[k]}, s{S_T0}")
        if k < 4:
            p.s(f"s_cmp_lt_u32 s{C}, 3")
            p.s(f"s_addc_u32 s{J}, s{J}, 1")
    p.s(f"s_bitcmp1_b32 s{J}, 0")
    p.s(f"s_cselect_b32 s{S_T0}, 0, 1024")
    p.s(f"s_add_u32 s{S_JC}, s{S_JA}, s{S_T0}")
    for k in range(2):
        p.s(f"s_add_u32 s{S_T2}, s{S_G}, {8 * k + 11}")
        p.s(f"s_and_b32 s{S_T0}, s{S_T2}, 3")
        p.s(f"s_add_u32 s{S_T0}, s{S_T0}, 4")
        p.s(f"s_lshr_b32 s{S_T1}, s{S_T2}, 2")
        p.s(f"s_sub_u32 s{S_T1}, s{S_T1}, 1")
        if k == 0:
            p.s(f"s_cmp_lt_u32 s{S_G}, 5")
            p.s(f"s_cselect_b32 s{S_T0}, 8, s{S_T0}")
            p.s(f"s_cselect_b32 s{S_T1}, s{S_G}, s{S_T1}")
        p.s(f"s_mul_i32 s{S_JE[k]}, s{S_T0}, 10")
        p.s(f"s_add_u32 s{S_JE[k]}, s{S_JE[k]}, s{S_T1}")
        p.s(f"s_lshl_b32 s{S_JE[k]}, s{S_JE[k]}, 13")
        p.s(f"s_add_u32 s{S_JE[k]}, s{S_JE[k]}, s{BW}")
        p.s(f"s_mul_i32 s{S_EO[k]}, s{S_T0}, 80")
        p.s(f"s_add_u32 s{S_EO[k]}, s{S_EO[k]}, s{S_T1}")
        p.s(f"s_lshl_b32 s{S_EO[k]}, s{S_EO[k]}, 8")
        p.s(f"s_add_u32 s{S_EO[k]}, s{S_EO[k]}, s{OW}")
    p.s(f"s_cmp_ge_u32 s{S_G}, 5")
    p.s(f"s_cselect_b32 s{S_JE[1]}, {OOB:#x}, s{S_JE[1]}")
    p.s(f"s_cselect_b32 s{S_EO[1]}, {OOB:#x}, s{S_EO[1]}")
    p.s(f"s_lshl2_add_u32 s{S_PO}, s{S_B}, s{S_W}")
    p.s(f"s_mul_i32 s{S_PO}, s{S_PO}, {4 * FS}")
    p.s(f"s_add_u32 s{S_PO}, s{S_PO}, {PFLG - 2 * FS + OOB}")
    p.s(f"s_lshl_b32 s{S_FO}, s{S_G}, {FG}")
    p.s(f"s_add_u32 s{S_FO}, s{S_FO}, s{S_PO}")
    p.s(f"s_mov_b32 s{S_PC}, 0")

def pmod(name):
    p = Prog()
    p.label(f"{name}_fb")
    p.wait_all()
    p.s(f"s_cmp_lg_u64 s[{S_BAD}:{S_BAD+1}], 0")
    p.s(f"s_cbranch_scc1 {name}_slow")
    p.label(f"{name}_P2")
    AO = (V_LIN, 2, 3)
    V_FA, V_OA = 4, 5
    PT, PT2 = 6, 8
    V_SA, V_JA, PT3 = 1, 25, 26
    SEL = 18
    POOL = [28 + 4 * k for k in range(16)]
    ACC = 92
    OWN = 124
    PK, SUM, JB = 132, 140, 188
    CT = 244
    p.wait_all()
    p.barrier()
    NL = int(E("PLEAD", "8"))
    def ooff(i, kq): return IMG(kq) + i * 1024
    for f in range(NL): p.ds_read128(POOL[f], AO[ooff(0, f) // 49152], ooff(0, f) % 49152)
    p.vop("v_mov_b32", V_SA, f"{OOB:#x}")
    s0 = len(p.ins)
    p.vop("v_mov_b32", V_JA, f"{OOB:#x}")
    p.vop("v_bfe_u32", V_FA, V_LIN, "4", "3")
    p.vop("v_lshlrev_b32", V_FA, f"{FG}", V_FA)
    p.vop("v_bfe_u32", CT, V_LIN, "4", "4")
    p.s(f"s_movk_i32 s{S_T0}, 1280")
    p.vop("v_mul_lo_u32", V_OA, CT, f"s{S_T0}")
    p.vop("v_lshrrev_b32", CT + 1, "8", V_LIN)
    p.vop("v_lshl_add_u32", V_OA, CT + 1, "4", V_OA)
    p.vop("v_mov_b32", PT2, f"s{S_NON}")
    p.vop("v_mov_b32", PT2 + 1, f"s{S_NON+1}")
    p.vop("v_and_b32", CT + 2, "1", CT)
    p.vop("v_lshlrev_b32", CT + 2, "4", CT + 2)
    p.s(f"s_movk_i32 s{S_T0}, 0x3f80")
    p.vop("v_lshlrev_b32", CT + 2, CT + 2, f"s{S_T0}")
    p.vop("v_lshrrev_b32", CT, "1", CT)
    p.vop("v_lshlrev_b32", CT + 1, "1", CT + 1)
    p.vop("v_sub_u32", CT, CT, CT + 1)
    for r in range(2):
        p.add(Ins(f"v_cmp_eq_u32 vcc, {r}, v{CT}", "valu", [CT], []))
        p.vop("v_mov_b32", SEL + r, "0")
        p.vop("v_mov_b32", SEL + 4 + r, "0")
        p.add(Ins(f"v_cndmask_b32 v{SEL+2+r}, 0, v{CT+2}, vcc", "valu", [CT + 2], [SEL + 2 + r]))
    setup = p.ins[s0:]
    def jload(q, jl, dst, own=S_JA):
        def f(p):
            so = S_JE[q - 4] if q >= 4 else S_T1 if q else own
            if 0 < q < 4 and jl == 0: p.s(f"s_add_u32 s{S_T1}, s{own}, {q * 81920}")
            if "J" not in ABL or own != S_JA or dst < JB: p.load4(dst, V_JA, SRD_WS, f"s{so}", jl * 1024, "job", E("JFL", "sc1"))
        return f
    def reduce(p, q, bufs, init=False):
        for e in range(2):
            for k, bf in enumerate(bufs): p.mfma(SUM + 8 * q + 4 * e, SEL + 2 - 2 * e, bf, None if (init and k == 0) else SUM + 8 * q + 4 * e)
    def next_off(): return [lambda p: p.vop("v_add_u32", V_SA, f"s{S_OF[0]}", V_LIN)] + [lambda p, k=k: p.s(f"s_mov_b32 s{S_OF[k]}, s{S_OF[k+1]}") for k in range(4)]
    def next_pair(p, d):
        p.s(f"s_add_u32 s{d}, s{S_WT}, 8192")
        p.s(f"s_sub_u32 s{S_T2}, s{S_WE}, 40960")
        p.s(f"s_cmp_eq_u32 s{d}, s{S_WE}")
        p.s(f"s_cselect_b32 s{d}, s{S_T2}, s{d}")
    def flag(p, off, tag):
        p.wait_vm(tag)
        p.s("s_mov_b64 exec, 1")
        p.store(PT2, 2, V_LIN, SRD_WS, f"s{S_FO}", off, tag="flag", flags="sc1")
        p.s("s_mov_b64 exec, -1")
    FPOS = int(E("FPOS", "56")); PPB = int(E("PPB", "244")); WSP = float(E("WSP", "6")); PLAT = int(E("PLAT", "60")); CPOS = int(E("CPOS", "206")); WST = int(E("WST", "4"))
    CP2 = [int(x) for x in E("CP2", f"{CPOS},{CPOS}").split(",")]; JS2 = [float(x) for x in E("JS2", "5,5").split(",")]
    FPB = int(E("FPB", "0"))
    def pord(e0, e1, g):
        if not int(E("PORD", "1")): return e0 + e1
        a, b = (e1, e0) if g & 1 else (e0, e1)
        b = b[::-1]
        if b[-1][3] is None: b = [(b[0][0], b[0][1], b[0][2], None, b[0][4])] + b[1:-1] + [(b[-1][0], b[-1][1], b[-1][2], b[-1][0], b[-1][4])]
        return a + b
    def one_pass(par):
        CPOS = CP2[par]
        q = Prog()
        q.label(f"{name}_pass{par}")
        if PROF == 4: stamp(q, 32, S_PC)
        q.wait_vm(("WT", par, 15))
        sc = Sched(q, budget=int(E("PBUD", "8")), late_extra=8)
        for qn in ("wl", "st", "jl", "jp"): sc.group[qn] = "vm"
        sc.pace["vm"] = int(E("PPACE", "4"))
        pool = Pool(sc, POOL, 16)
        acc = lambda i: OWN if i == 8 else ACC + 8 * (i % 4)
        for i in range(9):
            a = acc(i)
            for kq in range(16):
                cons = [(a + 4 * e, P_R[par][2 * kq + e], a + 4 * e if kq else None, ("P", i, kq, e)) for e in range(2)]
                pool.frag(0, lambda r: [R128(r, AO[ooff(i, kq) // 49152], ooff(i, kq) % 49152)], cons, as_b=True)
        PG = int(E("PG", "4"))
        sc.m = [x for k in range(0, 288, 2 * PG) for x in pord(sc.m[k:k + 2 * PG:2], sc.m[k + 1:k + 2 * PG:2], k // (2 * PG))]
        fix = lambda t: (lambda f: max(("P", t[1], t[2], 0), ("P", t[1], t[2], 1), key=f))
        ix = {x[4]: k for k, x in enumerate(sc.m)}
        late = lambda t: None if t is None else fix(t)(lambda y: ix[y])
        pool.frags = [(a_, b_, c_, late(d_)) for a_, b_, c_, d_ in pool.frags]; pool.last = [late(t) for t in pool.last]
        sc.idx = {x[4]: k for k, x in enumerate(sc.m)}
        mt = lambda i: sc.m[max(0, min(i, len(sc.m) - 1))][4]
        for f in range(NL, 144 + NL):
            (_, reads, cons, war) = pool.frags[f % 144]
            if f >= 144: war = pool.last[f % 16]
            if "R" not in ABL: sc.fill("rd", reads[0], 4, ds=True, after=war, before=mt(2 * (f - NL) + 1), early=2)
        for i in ((16, 22, 28) if PG == 1 else (16, 24) if PG <= 4 else (16,)): sc.fill("ww", lambda p, i=i: p.wait_vm(("WT", par, min(31, i + (5 if PG == 1 else 7 if PG <= 4 else 15)))), 4, before=mt(i), early=0)
        def su(p):
            next_pair(p, S_WT)
            if par == 0:
                p.s(f"s_cmp_eq_u32 s{S_PC}, 4")
                p.s(f"s_cselect_b32 s{S_WT}, {OOB:#x}, s{S_WT}")
        def keep(p):
            p.s(f"s_cmp_eq_u32 s{S_PC}, 4")
            for i in (5, 6, 7): p.s(f"s_cselect_b32 s{S_ST+i}, {OOB:#x}, s{S_ST+i}")
            p.s(f"s_cselect_b32 s{S_WT2}, s{S_PO}, {OOB:#x}")
        if par == 0: sc.fill("jr", keep, 16, after=mt(100), before=mt(150))
        fill_dma(sc, [(su, 0)], None, mt(WST + 2), queue="wl", lead=6)
        for i in range(32):
            fill_dma(sc, [(wload(1 - par, i), 0)], mt(WST + int(WSP * i)), mt(WST + 12 + int(WSP * i)), queue="wl", lead=10)
        sc.fill("jl", lambda p: poll_issue(p, V_FA, f"s{S_PO}", 0, PT), 8, before=mt(CPOS - PLAT), early=4, solo=SOLO)
        def cut(p):
            p.s(f"s_cmp_lt_u32 s{S_PC}, 2")
            p.s(f"s_cbranch_scc1 {name}_nojob{par}")
            if par == 0 and not FPB:
                p.s(f"s_cmp_eq_u32 s{S_PC}, 2")
                p.s(f"s_cbranch_scc1 {name}_pp0")
            p.label("@CUT")
        sc.fill("jr", cut, 8, before=mt(CPOS), early=0, tag="CUT")
        for x in [int(y) for y in E("PSL1", "").split(",") if y]: sc.fill("sl", lambda p: [p.raw("s_nop 15") for _ in range(int(E("PSN", "4")))], 16, before=mt(x), early=0)
        JSP = JS2[par]
        def cut2(p):
            p.s(f"s_cmp_lg_u32 s{S_PC}, 4")
            p.s(f"s_cbranch_scc1 {name}_nofb")
            p.label("@CU2")
        if par == 0 and FPB: sc.fill("jr", cut2, 8, before=mt(FPB), early=0)
        for k in range(12): fill_dma(sc, [(jload(k >> 1, k & 1, JB + 4 * k), 0)], ["CUT", mt(CPOS + int(JSP * k))], mt(CPOS + 12 + int(JSP * k)), queue="jl", lead=10)
        if par == 0: sc.fill("jp", lambda p: poll_issue(p, V_FA, f"s{S_WT2}", FS, PT3), 8, after=mt(PPB), before=mt(PPB + 8), lead=8, solo=SOLO)
        for i in range(-1, 8):
            a = acc(i % 9); d = PK + 4 * (i & 1) if (par == 0 and i >= 5) else a
            dl = mt(32 * i + 32 + 24)
            sc.fill("va", lambda p, a=a, d=d: p.cvtpk(d, a, a + 1), 4, after=dict(tag=mt(32 * i + 31), delay=4) if i >= 0 else mt(3), before=dl, lead=10)
            sc.fill("va", lambda p, a=a, d=d: p.cvtpk(d + 1, a + 2, a + 3), 4)
            sc.fill("va", lambda p, a=a, d=d: p.cvtpk(d + 2, a + 4, a + 5), 4)
            sc.fill("va", lambda p, a=a, d=d: p.cvtpk(d + 3, a + 6, a + 7), 4, tag=("CV", i), before=dl, lead=10)
            def st(p, d=d, i=i):
                if "O" not in ABL: p.store(d, 4, V_SA, SRD_WS, f"s{S_ST + i % 9}", 0, tag=("ps", i), flags=E("SFL", "sc1"))
            sc.fill("st", st, 8, after=("CV", i), before=dl, lead=20, tag=("ST", i), solo=SOLO)
            if i < 0:
                for fn in next_off(): sc.fill("va", fn, 4, after=("ST", -1))
        if PROF == 4:
            for k, x in enumerate(int(y) for y in E("PST", "66,74,224").split(",")): sc.fill(f"st{k}", lambda p, k=k: stamp(p, 33 + k, S_PC), 16, before=mt(x), early=0)
        sc.fill("fl", lambda p: flag(p, 0, ("ps", int(E("FTAG", "-1")))), 16, before=mt(FPOS), early=0)
        for r, x in ((S_FO, FS), (S_PC, 1)): sc.fill("fl", lambda p, r=r, x=x: p.s(f"s_add_u32 s{r}, s{r}, {x}"), 4, after=mt(272))
        if par:
            for r in (S_FO, S_PO): sc.fill("fl", lambda p, r=r: p.s(f"s_bitset0_b32 s{r}, 30"), 4)
        sc.run()
        if par == 0:
            q.s(f"s_cmp_eq_u32 s{S_PC}, 5")
            q.s(f"s_cbranch_scc1 {name}_ptail")
            q.s(f"s_add_u32 s{S_PO}, s{S_PO}, {FS}")
            q.s(f"s_cmp_eq_u32 s{S_PC}, 1")
            q.s(f"s_cbranch_scc1 {name}_fbw")
        else:
            q.s(f"s_add_u32 s{S_PO}, s{S_PO}, {FS}")
            q.s(f"s_branch {name}_pass0")
        k = next(i for i, x in enumerate(q.ins) if x.text.startswith("@CUT"))
        q2 = Prog(); q2.label(f"{name}_nojob{par}"); q2.ins += q.ins[k + 1:]; q.ins = q.ins[:k]
        blk = Prog()
        poll_check(blk, f"{name}_pp{par}", V_FA, f"s{S_PO}", 0, PT, int(E("SLP", "2")))
        red = Prog()
        if par == 0:
            blk.vop("v_mov_b32", V_JA, V_LIN)
            blk.s(f"s_cmp_eq_u32 s{S_PC}, 2")
            blk.s(f"s_cbranch_scc1 {name}_nojob{par}")
        red.vop("v_add_u32", V_JA, f"{40960 if par else AREA}", V_LIN)
        for c in range(6): reduce(red, c, [JB + 8 * c, JB + 8 * c + 4], par == 1)
        fb = Prog()
        if par == 0: flag(fb, FS, ("ps", 4))
        if par == 0 and FPB:
            k = next(i for i, x in enumerate(q2.ins) if x.text.startswith("@CU2"))
            q3 = Prog(); q3.label(f"{name}_nofb"); q3.ins += q2.ins[k + 1:]; q2.ins = q2.ins[:k]
            return q, Prog(), blk, red, q2, fb, q3
        return q, fb, blk, red, q2, Prog(), Prog()
    def first_pass():
        q = Prog()
        q.label(f"{name}_P0")
        stamp(q, 9)
        if "F" in ABL: q.s(f"s_mov_b32 s{S_BAD}, 1")
        if "G" in ABL:
            q.s(f"s_cmp_eq_u32 s{S_W}, 2")
            q.s(f"s_cselect_b32 s{S_BAD}, 1, 0")
        sc = Sched(q, budget=int(E("P0BUD", "8")), late_extra=8)
        for qn in ("wl", "st"): sc.group[qn] = "vm"
        sc.pace["vm"] = int(E("P0PACE", "3"))
        acc = [V_S + 32, V_S + 40, 92, 100, 108, 116, 132, 140, OWN]
        POOL2 = POOL[:8] + [148 + 4 * k for k in range(4)] + POOL[12:]
        reg = lambda f: P0_B[f] if f < 72 else POOL2[f % 16] if f < 144 else POOL[f % 16]
        fk = lambda f: ((f % 72) // 8, f % 8 + 8 * ((f // 72) & 1))
        base = []
        for f0 in range(0, 144, 4):
            for e in range(2):
                for f in range(f0, f0 + 4):
                    i, kq = fk(f); a = acc[i] + 4 * e
                    base.append((a, P_R[0][2 * kq + e], reg(f), a if kq else None, ("P", f, e)))
        units = UNITS
        C0, CS, MB = int(E("P0C0", "22")), float(E("P0CS", "5.8")), int(E("P0MB", "12"))
        cpos = {C0 + int(CS * k) + (int(E("P0C8", "0")) if k >= 12 else 0): k for k in range(18)}
        for j, m in enumerate(base):
            if j in cpos:
                k = cpos[j]; sc.mfma(CHK, A_ONE, Oa(units[k][0], 2 * units[k][1]), CHK if k else None, ("CHK", k))
            sc.mfma(*m)
        bt = lambda j: base[min(j, 287)][4]
        for i in range(2, 9): assert sc.idx[("CHK", (acc[i] - V_O) // 8)] + 1 < sc.idx[bt(16 * i)]
        for f in range(8, 144 + NL):
            i, kq = fk(f)
            aft = [("P", f - 16, 1)] if (f >= 24 and not 72 <= f < 88) else []
            if f == 8: aft.append("AO")
            if f == 12: aft.append("XW")
            if f == 72: aft.append("MID")
            j = 2 * (f - NL) + 1
            if f >= 72: j = max(j, 144 - MB + 2 + f - 72)
            sc.fill("rd", R128(reg(f), AO[ooff(i, kq) // 49152], ooff(i, kq) % 49152), 4, ds=True, after=aft, before=bt(j), early=2)
        def V(fn, cost=4, **kw): sc.fill("va", fn, cost, **kw)
        sc.fill("ww", lambda p: p.wait_vm(("WT", 0, 15)), 4, before=bt(10), early=0)
        def each(fn):
            z = Prog(); fn(z)
            return [lambda p, x=x: p.add(x) for x in z.ins]
        V(lambda p: p.vop("v_add_u32", AO[1], "49152", V_LIN))
        V(lambda p: p.vop("v_add_u32", AO[2], "98304", V_LIN), tag="AO")
        for fn in each(f_addr): V(fn)
        for i in range(4): V(lambda p, i=i: p.ds_write(AD + 1, Oa(4, 4 + i), 4, i * 1024), 8, solo=True)
        V(lambda p: p.s(f"s_mul_i32 s{S_T0}, s{S_U}, 73728"))
        V(lambda p: p.s(f"s_sub_u32 s{S_T0}, {73728 + 36864}, s{S_T0}"))
        V(lambda p: p.vop("v_add_u32", AL + 1, f"s{S_T0}", V_DA + 4))
        V(lambda p: p.ds_write(AL + 1, La(4), 1, 0), ds=True, tag="XW")
        for n in range(5): V(lambda p, n=n: p.ar(RL + 2 * n, La(n)), tag=("AR", n))
        for n in range(5): V(lambda p, n=n: p.vop("v_add_u32", V_DA + n, "73728", V_DA + n), tag=("DA", n))
        def wr(p, k):
            n, t = units[k]
            p.ds_write(V_DA + n, Oa(n, 2 * t), 4, t * 18432 + (1024 if n < 4 else 0))
        for n in range(4): V(f_rcp(n)[0], 8); V(f_rcp(n)[1], tag=("RC", n))
        l8 = f_l8(); V(l8[0], after=dict(tag="PX", delay=8)); V(l8[1], 8); V(l8[2], tag=("RC", 4), before=("CHK", 10))
        ct = lambda k, d: sc.m[sc.idx[("CHK", k)] + d][4]
        for k, (n, t) in enumerate(units):
            pk, cv = f_norm(n, t)
            sc.fill("pk", lambda p, k=k, pk=pk: (wr(p, k - 1) if k else None, [fn(p) for fn in pk]), 8, solo=True, after=[("RC", n)] + ([("DA", 4)] if k else []),
                    before=ct(k - 1, 1) if k else ct(0, -5), early=0, lead=99, tag=("PK", k))
            for j, fn in enumerate(cv): sc.fill("c1", fn, 4, after=("PK", k), before=ct(k, -1), lead=0)
        sc.fill("pk", lambda p: wr(p, 17), 8, solo=True, before=ct(17, 1), early=0, lead=99, tag="W17")
        for j, fn in enumerate(f_range()): V(fn, 8 if j >= 4 else 4)
        sc.fill("bx", lambda p: p.barrier(), 4, after=[("P", 12, 0), ("DA", 4)], before=bt(int(E("P0BX", "34"))), early=0)
        for i in range(4): sc.fill("bx", R128(PX + 4 * i, AD, i * 1024), 4, ds=True, before=bt(60))
        sc.fill("bx", lambda p: p.ds_read32(V_S, V_DA + 4, 0), 4, ds=True, before=bt(60), tag="PX")
        V(lambda p: p.vop("v_bfe_u32", V_T + 1, V_LIN, "4", "2"))
        V(lambda p: p.vop("v_lshlrev_b32", V_T + 1, "12", V_T + 1))
        V(lambda p: p.vop("v_add_u32", V_T + 1, f"{MISC}", V_T + 1))
        c5 = f_fin()
        V(c5[0]); V(c5[1], 8, after=dict(tag=("CHK", 17), delay=2))
        V(lambda p: (p.s(f"s_or_b32 s{S_T0}, s{S_BAD}, s{S_BAD+1}"), p.vop("v_mov_b32", V_T, f"s{S_T0}")), 8)
        V(lambda p: p.ds_write(AD, V_T, 1, 0), ds=True, after="W17", before=bt(144 - MB - 4), lead=2)
        def mid(p):
            p.wait_vm(("WT", 0, 31), lgkm0=True); p.barrier()
            stamp(p, 16)
            p.ds_read32(V_T + 2, V_T + 1, 0)
        V(mid, 8, before=bt(144 - MB), early=0, tag="MID")
        def chk(p):
            p.add(Ins(f"v_cmp_ne_u32 vcc, 0, v{V_T+2}", "valu", [V_T + 2], []))
            p.s("s_cmp_lg_u64 vcc, 0")
            p.s(f"s_cbranch_scc1 {name}_fb")
        V(chk, 8, before=bt(146), early=0, tag="OK")
        for fn in next_off(): V(fn, before=bt(160))
        k = 0
        while k < len(setup):
            n = 4 if setup[k].text.startswith("v_cmp") else 1
            V(lambda p, g=setup[k:k + n]: [p.add(Ins(x.text, x.kind, x.rd, x.wr)) for x in g], 4 * n); k += n
        for i in range(8):
            a = acc[i]; dl = bt(144 + 16 * i + 16 + 14)
            sc.fill("cv", lambda p, a=a: p.cvtpk(a, a, a + 1), 4, after=["OK", dict(tag=("P", 72 + 8 * i + 7, 1), delay=3)], before=dl, lead=10)
            sc.fill("cv", lambda p, a=a: p.cvtpk(a + 1, a + 2, a + 3), 4)
            sc.fill("cv", lambda p, a=a: p.cvtpk(a + 2, a + 4, a + 5), 4)
            sc.fill("cv", lambda p, a=a: p.cvtpk(a + 3, a + 6, a + 7), 4, tag=("CV", i), before=dl, lead=10)
            def st(p, a=a, i=i):
                if "O" not in ABL: p.store(a, 4, V_SA, SRD_WS, f"s{S_ST+i}", 0, tag=("ps", i), flags=E("SFL", "sc1"))
            sj = int(E("P0S0", "200")) + int(E("P0SS", "8")) * i
            sc.fill("st", st, 8, after=[("CV", i), bt(sj)], before=bt(max(sj + 8, 144 + 16 * i + 30)), lead=20, tag=("ST", i), solo=SOLO)
        if WTP >= 100:
            for k in range(WTN): sc.fill("wt", lambda p, k=k: w_touch(p, 64 * k), 8, after=bt(WTP - 100 + 4 * k), before=bt(WTP - 92 + 4 * k), solo=True)
        for x in [int(y) for y in E("PSL0", "").split(",") if y]: sc.fill("sl", lambda p: [p.raw("s_nop 15") for _ in range(int(E("PSN", "4")))], 16, before=bt(x), early=0)
        W1 = float(E("P0W1", "5.0")); W2 = float(E("P0W2", "3.0"))
        for i in range(8): fill_dma(sc, [(wload(0, 24 + i), 0)], bt(17 + int(W1 * i)), bt(30 + int(W1 * i)), queue="wl", lead=4)
        for i in range(32):
            j = 17 + int(W1 * (8 + i)) if i < 15 else 146 + int(W2 * (i - 15))
            if i == 0: fill_dma(sc, [(lambda p: next_pair(p, S_WT2), 0)], None, bt(j), queue="wl", lead=4)
            fill_dma(sc, [(wload(1, i, sb=S_WT2), 0)], [bt(j), ("AR", 4)] + (["OK"] if i >= 15 else []), bt(j + 13), queue="wl", lead=4)
        sc.fill("fl", lambda p: p.s(f"s_mov_b32 s{S_WT}, s{S_WT2}"), 4, after=bt(275))
        for r, x in ((S_PO, FS), (S_FO, FS), (S_PC, 1)): sc.fill("fl", lambda p, r=r, x=x: p.s(f"s_add_u32 s{r}, s{r}, {x}"), 4, after=bt(275))
        sc.run()
        q.s(f"s_branch {name}_pass1")
        return q
    p.wait_lgkm0()
    p.s(f"s_branch {name}_pass0")
    pre = p
    p0 = first_pass()
    pe, po = one_pass(0), one_pass(1)
    p = Prog()
    p.label(f"{name}_ptail")
    stamp(p, 17)
    p.vop("v_add_u32", V_JA, f"{AREA + 40960}", V_LIN)
    poll_check(p, f"{name}_pp4", V_FA, f"s{S_PO}", FS, PT3, int(E("SLP4", "0")))
    stamp(p, 18)
    for c in range(4): jload(c, 0, POOL[8 + c], S_JC)(p)
    for k in range(4): jload(4 + (k >> 1), k & 1, POOL[12 + k])(p)
    stamp(p, 19)
    for c in (4, 5, 0, 1, 2, 3):
        if c < 4:
            for r in range(8): p.vop("v_add_f32", SUM + 8 * c + r, SUM + 8 * c + r, (ACC + 8 * (c + 1) if c < 3 else OWN) + r)
        reduce(p, c, [JB + 8 * c, JB + 8 * c + 4])
    stamp(p, 20)
    def out(c):
        a = SUM + 8 * c
        for r in range(4): p.cvtpk(a + r, a + 2 * r, a + 2 * r + 1)
        if 0 < c < 4: p.s(f"s_add_u32 s{S_JO}, s{S_JO}, {16 * 1280}")
        p.store(a, 4, V_OA, SRD_OUT, f"s{S_JO if c < 4 else S_EO[c - 4]}", 0, tag="out", flags=E("OFL", "sc1"))
    for c in range(6):
        reduce(p, c, [POOL[8 + c]] if c < 4 else POOL[4 + 2 * c:6 + 2 * c])
        if c: out(c - 1)
    out(5)
    if PROF:
        p.wait_all()
        stamp(p, 21)
        p.s(f"s_getreg_b32 s{S_TM}, hwreg(HW_REG_HW_ID)")
        p.s(f"s_getreg_b32 s{S_TM+1}, hwreg(HW_REG_XCC_ID)")
        p.raw(f"v_writelane_b32 v0, s{S_TM}, 24")
        p.raw(f"v_writelane_b32 v0, s{S_TM+1}, 25")
        p.s(f"s_lshl_b32 s{S_T0}, s2, 2")
        p.s(f"s_add_u32 s{S_T0}, s{S_T0}, s{S_W}")
        p.s(f"s_lshl_b32 s{S_T0}, s{S_T0}, 8")
        p.s(f"s_add_u32 s{S_T0}, s{S_T0}, {PROFOFF}")
        p.vop("v_lshrrev_b32", PT, "2", V_LIN)
        p.store(0, 1, PT, SRD_WS, f"s{S_T0}", 0)
        p.s(f"s_add_u32 s{S_T0}, s{S_T0}, 0x40000")
        p.store(255, 1, PT, SRD_WS, f"s{S_T0}", 0)
        if E("ENC"):
            a_, b_ = E("ENC").split(",")
            if int(E("ENCW", "77")) >= 0:
                p.s(f"s_cmp_lg_u32 s2, {int(E('ENCW', '77'))}")
                p.s(f"s_cbranch_scc1 {name}_end")
            if a_ == "n": p.s(f"s_mov_b32 s56, s{S_NON}")
            else: p.raw(f"v_readlane_b32 s56, v0, {a_}")
            if b_ == "n": p.s(f"s_mov_b32 s57, s{S_NON}")
            else: p.raw(f"v_readlane_b32 s57, v0, {b_}")
            p.raw("s_nop 4")
            p.s("s_sub_u32 s57, s57, s56")
            p.s("s_lshl_b32 s57, s57, 3")
            p.s("s_add_u32 s57, s57, 12000")
            p.label(f"{name}_enc")
            p.s("s_memrealtime s[58:59]")
            p.raw("s_waitcnt lgkmcnt(0)")
            p.s(f"s_sub_u32 s58, s58, s{S_NON}")
            p.s("s_cmp_lt_u32 s58, s57")
            p.s(f"s_cbranch_scc1 {name}_enc")
        if PROF == 5:
            p.s(f"s_cmp_lg_u32 s2, 77")
            p.s(f"s_cbranch_scc1 {name}_end")
            p.s(f"s_cmp_lg_u32 s{S_W}, 0")
            p.s(f"s_cbranch_scc1 {name}_end")
            p.raw("v_readlane_b32 s56, v0, 0")
            for k, ix in enumerate([23, 1, 2, 5, 6, 9, 10, 16, 17, 18, 20, 21]):
                p.raw(f"v_readlane_b32 s57, v0, {ix}")
                p.raw("s_nop 3")
                p.s("s_sub_u32 s57, s57, s56")
                p.raw(f"v_mov_b32 v30, s57")
                p.raw(f"buffer_store_dword v30, off, s[{SRD_DBG}:{SRD_DBG+3}], 0 offset:{8 + 4 * k}")
                p.raw("s_nop 1")
    p.label(f"{name}_end")
    p.raw("s_endpgm")
    rest = [po[0], po[4], pe[0], pe[2], pe[4], pe[6], *po, *pe, p]
    fw = Prog(); fw.label(f"{name}_fbw"); fw.wait_all(); fw.s(f"s_branch {name}_pass1")
    return [p0, *pe, *po, p, pre, fw], [p0] + rest, [pre, pe[0], pe[4], pe[6], fw] + rest

def gen(name):
    pro = prologue(name)
    Q = qmod(name)
    AE = aentry(name)
    A = [amod(name, qh) for qh in range(2)]
    F = afin(name)
    P, PS, PS2 = pmod(name)
    SL, SLS = slow(name)
    segs = [pro, Q, AE, A[0], A[1], F] + P + SL
    sims = [[(x, 1) for x in [pro, Q, AE, A[qh], F, AE, A[qh]] + PS] for qh in range(2)]
    sims.append([(x, 1) for x in SLS + PS2])
    lines, stats = finalize([(x, 1) for x in segs], sims=sims)
    if int(E("ROLL", "1")):
        lines = roll(lines, "; ---- a step", 8, S_LOOP, f"{name}_aloop")
        lines = roll(lines, "; ---- q step", 8, S_LOOP, f"{name}_qloop")
    lines += [f"{name}_last:", f".if {name}_last-{name}_pc < {65536 + CPO}", f".fill ({65536 + CPO}-({name}_last-{name}_pc))/4, 4, 0xbf810000", ".endif", f".if {name}_end-{name}_pc > {65536 + CPO}", '.warning "code range"', ".endif"]
    return [f".globl {name}", ".p2align 8", f".type {name},@function", f"{name}:"] + lines, stats
```
